```python
import torch

def _softmax(x, axis=-1):
    return torch.softmax(x, dim=axis)
def _gelu(x):
    return torch.nn.functional.gelu(x, approximate="tanh")
def _silu(x):
    return torch.nn.functional.silu(x)
def _sigmoid(x):
    return torch.sigmoid(x)
def _layernorm(x, axis=-1, eps=1e-5):
    m = x.mean(dim=axis, keepdim=True)
    v = x.var(dim=axis, keepdim=True, unbiased=False)
    return (x - m) / torch.sqrt(v + eps)
def _scatter_add(tgt, idx, src, axis=0):
    return tgt.clone().index_add_(axis, idx, src)
def _segment_sum(src, seg, n):
    out = torch.zeros((n,) + src.shape[1:], dtype=src.dtype)
    return out.index_add_(0, seg, src)
def _pad(x, pw):
    flat = tuple(v for pair in reversed(pw) for v in pair)
    return torch.nn.functional.pad(x, flat)

kernel_name = 'concat_heads__gqa_block_cached__mha_block_cached__near_ridge'

def setup_inputs():

    _w = (lambda a: (lambda t: t.to(torch.bfloat16) if t.is_floating_point() else t)(torch.as_tensor(a)))
    def _A_setup():
        B, Sq, D = 8, 144, 512
        Hq, Hkv, Sk, Dh = 32, 32, 512, 128
        assert Hq % Hkv == 0, (Hq, Hkv)
        return {
            "x": _w((lambda *s: torch.randn(*s, dtype=torch.bfloat16) * 0.8)(B, Sq, D)),
            "k_cache": _w((lambda *s: torch.randn(*s, dtype=torch.bfloat16) * 0.8)(B, Hkv, Sk, Dh)),
            "v_cache": _w((lambda *s: torch.randn(*s, dtype=torch.bfloat16) * 0.05)(B, Hkv, Sk, Dh)),
            "wq": _w((lambda *s: torch.randn(*s, dtype=torch.bfloat16) * 0.8)(D, Hq * Dh) * (D ** -0.5)),
            "wo": _w((lambda *s: torch.randn(*s, dtype=torch.bfloat16) * 0.05)(Hq * Dh, D) * ((Hq * Dh) ** -0.5)),
        }
    _A_in = _A_setup()

    def _B_setup():
        B, Sq, D = 8, 144, 512
        H, Sk, Dh = 32, 512, 128
        return {
            "x": _w((lambda *s: torch.randn(*s, dtype=torch.bfloat16) * 0.8)(B, Sq, D)),
            "k_cache": _w((lambda *s: torch.randn(*s, dtype=torch.bfloat16) * 0.8)(B, H, Sk, Dh)),
            "v_cache": _w((lambda *s: torch.randn(*s, dtype=torch.bfloat16) * 0.05)(B, H, Sk, Dh)),
            "wq": _w((lambda *s: torch.randn(*s, dtype=torch.bfloat16) * 0.8)(D, H * Dh) * (D ** -0.5)),
            "wo": _w((lambda *s: torch.randn(*s, dtype=torch.bfloat16) * 0.05)(H * Dh, D) * ((H * Dh) ** -0.5)),
        }
    _B_in = _B_setup()

    return {
        "A_x": _A_in["x"],
        "A_k_cache": _A_in["k_cache"],
        "A_v_cache": _A_in["v_cache"],
        "A_wq": _A_in["wq"],
        "A_wo": _A_in["wo"],
        "B_x": _B_in["x"],
        "B_k_cache": _B_in["k_cache"],
        "B_v_cache": _B_in["v_cache"],
        "B_wq": _B_in["wq"],
        "B_wo": _B_in["wo"],
    }

def reference(A_x, A_k_cache, A_v_cache, A_wq, A_wo, B_x, B_k_cache, B_v_cache, B_wq, B_wo):
    def _A_ref(x, k_cache, v_cache, wq, wo):
        B, Sq, D = x.shape
        Hq, Dh = 32, 128
        Hkv = k_cache.shape[1]
        rep = Hq // Hkv
        q = (lambda x, *d: x.permute(*d))((x @ wq).reshape(B, Sq, Hq, Dh), 0, 2, 1, 3)
        k = (lambda x, n, axis: torch.repeat_interleave(x, n, dim=axis))(k_cache, rep, axis=1)
        v = (lambda x, n, axis: torch.repeat_interleave(x, n, dim=axis))(v_cache, rep, axis=1)
        scores = torch.einsum("bhqd,bhkd->bhqk", q, k) * (Dh ** -0.5)
        p = _softmax(scores, axis=-1)
        o = torch.einsum("bhqk,bhkd->bhqd", p, v)
        return (lambda x, *d: x.permute(*d))(o, 0, 2, 1, 3).reshape(B, Sq, Hq * Dh) @ wo

    def _B_ref(x, k_cache, v_cache, wq, wo):
        B, Sq, D = x.shape
        H, Dh = 32, 128
        q = (lambda x, *d: x.permute(*d))((x @ wq).reshape(B, Sq, H, Dh), 0, 2, 1, 3)
        scores = torch.einsum("bhqd,bhkd->bhqk", q, k_cache) * (Dh ** -0.5)
        p = _softmax(scores, axis=-1)
        o = torch.einsum("bhqk,bhkd->bhqd", p, v_cache)
        return (lambda x, *d: x.permute(*d))(o, 0, 2, 1, 3).reshape(B, Sq, H * Dh) @ wo

    a = _A_ref(A_x, A_k_cache, A_v_cache, A_wq, A_wo)
    b = _B_ref(B_x, B_k_cache, B_v_cache, B_wq, B_wo)
    return torch.concatenate([a, b], axis=-1)
```

```python
import re

def expand(op):
    op = op.strip()
    neg = op.lstrip('-')
    m = re.fullmatch(r'([vas])\[(\d+):(\d+)\]', neg)
    if m:
        return [f"{m.group(1)}{i}" for i in range(int(m.group(2)), int(m.group(3)) + 1)]
    m = re.fullmatch(r'([vas])(\d+)', neg)
    if m:
        return [neg]
    if neg in ('vcc', 'm0', 'exec', 'scc'):
        return [neg]
    return []

TRANS = ('v_exp_f32', 'v_rcp_f32', 'v_log_f32', 'v_rsq_f32', 'v_sqrt_f32')

class I:
    __slots__ = ('txt', 'kind', 'rd', 'wr', 'lds_dst', 'tag')
    def __init__(self, txt, tag=None):
        self.txt = txt
        self.tag = tag
        self.lds_dst = None
        t = txt.split(';')[0].strip()
        parts = t.split(None, 1)
        op = parts[0]
        ops = []
        if len(parts) > 1:
            ops = [x.strip() for x in re.split(r',(?![^\[]*\])', parts[1])]
            if ops:
                last = ops[-1].split()
                ops[-1] = last[0] if last else ''
        R = lambda xs: set(r for x in xs for r in expand(x))
        self.rd, self.wr = set(), set()
        if op.startswith('v_mfma'):
            self.kind = 'mfma'; self.wr = R(ops[:1]); self.rd = R(ops[1:])
        elif op.startswith('ds_read'):
            self.kind = 'dsr'; self.lds_dst = R(ops[:1]); self.wr = set(self.lds_dst); self.rd = R(ops[1:])
        elif op.startswith('ds_write'):
            self.kind = 'dsw'; self.rd = R(ops)
        elif op.startswith('buffer_load') and ' lds' in t:
            self.kind = 'dma'; self.rd = R(ops) | {'m0'}
        elif op.startswith('buffer_load') or op.startswith('global_load'):
            self.kind = 'vld'; self.wr = R(ops[:1]); self.rd = R(ops[1:])
        elif op.startswith('buffer_store') or op.startswith('global_store'):
            self.kind = 'vst'; self.rd = R(ops)
        elif op.startswith('global_atomic') or op.startswith('buffer_atomic'):
            self.kind = 'vst'; self.rd = R(ops)
        elif op.startswith('buffer_inv') or op.startswith('buffer_wbl2'):
            self.kind = 'vst'
        elif op == 's_waitcnt':
            self.kind = 'wait'
        elif op == 's_barrier':
            self.kind = 'bar'
        elif op == 's_nop':
            self.kind = 'nop'
        elif op.startswith('s_cbranch') or op == 's_branch' or op == 's_endpgm':
            self.kind = 'br'
            if 'scc' in op: self.rd = {'scc'}
            if 'vcc' in op: self.rd = {'vcc'}
            if 'exec' in op: self.rd = {'exec'}
        elif op.startswith('s_cmp') or op.startswith('s_bitcmp'):
            self.kind = 'salu'; self.rd = R(ops); self.wr = {'scc'}
        elif op.startswith('s_load') or op.startswith('s_memtime') or op.startswith('s_memrealtime'):
            self.kind = 'smem'; self.wr = R(ops[:1]); self.rd = R(ops[1:])
        elif op in ('s_setprio', 's_sleep'):
            self.kind = 'salu'
        elif op.startswith('s_'):
            self.kind = 'salu'; self.wr = R(ops[:1]); self.rd = R(ops[1:])
            if op.startswith(('s_add', 's_sub', 's_lshl', 's_lshr', 's_and', 's_or', 's_xor', 's_min', 's_max', 's_ashr', 's_bfe', 's_andn2')):
                self.wr |= {'scc'}
            if op.startswith(('s_addc', 's_subb', 's_cselect')):
                self.rd |= {'scc'}
            if 'saveexec' in op:
                self.wr |= {'exec'}; self.rd |= {'exec'}
        elif op.startswith('v_cmp'):
            self.kind = 'valu'; self.wr = R(ops[:1]); self.rd = R(ops[1:])
        elif op.startswith('v_permlane') and 'swap' in op:
            self.kind = 'valu'; self.wr = R(ops[:2]); self.rd = R(ops[:2])
        elif op.startswith('v_'):
            self.kind = 'trans' if op.replace('_e32', '').replace('_e64', '') in TRANS else 'valu'
            self.wr = R(ops[:1]); self.rd = R(ops[1:])
            if op.startswith(('v_fmac', 'v_pk_fmac')): self.rd |= self.wr
            if op.startswith('v_cndmask') and len(ops) == 3: self.rd |= {'vcc'}
            if op.startswith(('v_add_co', 'v_sub_co', 'v_addc_co')):
                self.wr |= R(ops[1:2])
        elif op.endswith(':'):
            self.kind = 'label'
        elif op.startswith('.'):
            self.kind = 'dir'
        else:
            raise ValueError("unknown instr: " + txt)
    def op(self):
        return self.txt.split()[0]
    def __repr__(self):
        return self.txt

def II(*lines):
    out = []
    for l in lines:
        if isinstance(l, (list, tuple)):
            out += II(*l)
        elif isinstance(l, I):
            out.append(l)
        else:
            for x in l.split('\n'):
                x = x.strip()
                if x: out.append(I(x))
    return out

ORDER = {'label': -1, 'salu': 0, 'wait': 0, 'bar': 0, 'nop': 0, 'br': 0, 'smem': 0, 'dsr': 1, 'dsw': 1, 'dma': 2, 'vld': 2, 'vst': 2, 'valu': 3, 'trans': 3}
COST = {'dsr': 4, 'dsw': 4, 'dma': 8, 'vld': 8, 'vst': 8, 'valu': 4, 'trans': 8}

class Sched:
    def __init__(self, mfmas):
        self.m = list(mfmas)
        self.g = [[] for _ in self.m]
    def put(self, gap, *ins):
        for x in II(*ins):
            self.g[gap].append(x)
    def spread(self, ins, gaps):
        ins = II(*ins)
        assert len(ins) <= len(gaps), (len(ins), len(gaps))
        for x, g in zip(ins, gaps):
            self.g[g].append(x)
    def cost(self, gap):
        return sum(COST.get(x.kind, 0) for x in self.g[gap])
    def flat(self, sort=True):
        out = []
        for m, g in zip(self.m, self.g):
            out.append(m)
            if sort:
                g = sorted(g, key=lambda x: ORDER[x.kind])
            out += g
        return out
    def report(self, name=''):
        over = [(i, self.cost(i)) for i in range(len(self.g)) if self.cost(i) > 8]
        tot = sum(max(16, 8 + self.cost(i)) for i in range(len(self.g)))
        return f"{name}: {len(self.m)} mfma, est {tot} cyc, overfull gaps {over}"

def lgkm_waits(seq, pending=None, final_zero=False):
    out = []
    pend = [] if pending is None else list(pending)
    n = len(seq)
    def need_index(ins, q):
        regs = ins.rd | (ins.wr if ins.kind != 'dsr' else set())
        if ins.kind == 'dsr':
            regs = ins.rd | ins.wr
        k = -1
        for i, d in enumerate(q):
            if d and (d & regs): k = i
        return k
    def emit_wait(k):
        nonlocal pend
        cnt = len(pend) - 1 - k
        cnt = min(cnt, 15)
        out.append(I(f"s_waitcnt lgkmcnt({cnt})"))
        pend = pend[len(pend) - cnt:] if cnt > 0 else []
    i = 0
    while i < n:
        ins = seq[i]
        if ins.kind == 'wait' and 'lgkmcnt' in ins.txt:
            c = int(re.search(r'lgkmcnt\((\d+)\)', ins.txt).group(1))
            pend = pend[len(pend) - c:] if 0 < c < len(pend) else ([] if c == 0 else pend)
            out.append(ins); i += 1; continue
        k = need_index(ins, pend)
        if k >= 0:
            emit_wait(k)
        out.append(ins)
        if ins.kind in ('dsr', 'dsw'):
            pend.append(ins.lds_dst if ins.kind == 'dsr' else None)
        if ins.kind == 'smem':
            raise ValueError("smem inside lgkm-tracked region")
        if ins.kind == 'mfma':
            j = i + 1
            kk = -1
            while j < n:
                nx = seq[j]
                if nx.kind in ('label', 'br', 'bar'): break
                if nx.kind == 'wait' and 'lgkmcnt' in nx.txt: break
                kk = max(kk, need_index(nx, pend))
                if nx.kind == 'mfma': break
                j += 1
            if kk >= 0:
                emit_wait(kk)
        i += 1
    if final_zero and pend:
        out.append(I("s_waitcnt lgkmcnt(0)")); pend = []
    return out, pend

def states(ins):
    if ins.kind == 'nop':
        return int(ins.txt.split()[1]) + 1
    if ins.kind in ('label', 'dir'):
        return 0
    return 1

def is_valu(x): return x.kind in ('valu', 'trans')

def required(prod, cons):
    r = 0
    vregs = lambda s: {x for x in s if x[0] in 'va'}
    if prod.kind == 'mfma':
        D = prod.wr
        if cons.kind == 'mfma':
            ops = [x.strip() for x in re.split(r',(?![^\[]*\])', cons.txt.split(None, 1)[1])]
            a, b, c = set(expand(ops[1])), set(expand(ops[2])), set(expand(ops[3].split()[0]))
            if D & (a | b): r = max(r, 8)
            if D & c and c != D: r = max(r, 6)
            if D & cons.wr and cons.wr != D: r = max(r, 6)
            if D & cons.wr and not (D & c): r = max(r, 6)
        elif is_valu(cons) or cons.kind in ('vst', 'dsw', 'dsr', 'vld', 'dma'):
            if D & (cons.rd | cons.wr): r = max(r, 8)
        if is_valu(cons):
            ops = [x.strip() for x in re.split(r',(?![^\[]*\])', prod.txt.split(None, 1)[1])]
            c = set(expand(ops[3].split()[0]))
            if c & cons.wr: r = max(r, 3)
    if is_valu(prod):
        if cons.kind == 'mfma' and (vregs(prod.wr) & cons.rd): r = max(r, 2)
        if prod.kind == 'trans' and cons.kind == 'valu' and (prod.wr & cons.rd): r = max(r, 1)
        if prod.kind == 'trans' and cons.kind == 'trans' and (prod.wr & cons.rd): r = max(r, 1)
        if cons.op().startswith('v_permlane') and (vregs(prod.wr) & cons.rd): r = max(r, 2)
        if cons.op().startswith(('v_readfirstlane', 'v_readlane')) and (vregs(prod.wr) & cons.rd): r = max(r, 1)
        sw = {x for x in prod.wr if x[0] == 's' or x == 'vcc'}
        if sw:
            if is_valu(cons) and (sw & cons.rd): r = max(r, 2)
            if cons.kind in ('dma', 'vld', 'vst') and (sw & cons.rd): r = max(r, 5)
            if cons.kind in ('salu', 'br') and (sw & cons.rd): r = max(r, 4)
        if 'exec' in prod.wr: r = max(r, 5)
        if 'dpp' in cons.txt and (vregs(prod.wr) & cons.rd): r = max(r, 2)
    if prod.kind == 'salu':
        if 'm0' in prod.wr and cons.kind == 'dma': r = max(r, 1)
        if 'exec' in prod.wr and cons.kind == 'mfma': r = max(r, 4)
    if prod.kind == 'vst' and ('x4' in prod.op() or 'x3' in prod.op()):
        if vregs(prod.rd) & cons.wr:
            r = max(r, 2)
    return r

def hazards(seq, history=None, verbose=False):
    out = []
    hist = list(history) if history else []
    added = 0
    for ins in seq:
        if ins.kind in ('label', 'dir'):
            out.append(ins); continue
        need = 0; dist = 0
        for p in reversed(hist[-24:]):
            r = required(p, ins)
            if r > dist: need = max(need, r - dist)
            dist += states(p)
            if dist >= 12: break
        if need > 0:
            nop = I(f"s_nop {need - 1}")
            out.append(nop); hist.append(nop); added += need
            if verbose: print("  hazard nop", need, "before", ins.txt)
        out.append(ins); hist.append(ins)
    return out, added

def text(seq, indent='  '):
    return '\n'.join((x.txt if x.kind == 'label' else indent + x.txt) for x in seq)
```

```python
import sys, argparse
from ir import *

NAME = "concat_heads__gqa_block_cached__mha_block_cached__near_ridge"
OPT = dict(rotmul=1, dump=None, stamps=False, stop=None, kvnt=True, pst="sc1", verbose=False)

VB = 0
KB = 65536
WB = 16384
XB = 114688
WOA = 131072
WOB = 98304
OB = 0
def kphys(k): return ((k + 1) & 3) * 16384
def vphys(k): return (k & 3) * 16384

SRD_X, SRD_WQ, SRD_K, SRD_V, SRD_WO, SRD_P = "s[4:7]", "s[8:11]", "s[12:15]", "s[16:19]", "s[20:23]", "s[24:27]"
S_W, S_U, S_QH, S_CNT = "s28", "s29", "s30", "s31"
S_SOFFX, S_SOFFW0, S_UNUSED, S_MW, S_MX, S_DSLOT, S_RSLOT, S_DW, S_DX = "s32", "s33", "s34", "s35", "s36", "s37", "s38", "s39", "s40"
S_BW, S_BX = "s41", "s42"
S_SOFFK, S_SOFFV, S_MK, S_MV = "s45", "s46", "s47", "s48"
S_T0, S_T1, S_T2, S_T3 = "s50", "s51", "s52", "s53"
S_HP, S_B, S_BR, S_CL = "s54", "s55", "s56", "s57"
S_WS = "s[58:59]"
S_SOFFP = "s60"
S_STAMP = "s[62:63]"
S_FLAG = "s64"
S_KS, S_X0, S_W0 = "s88", "s89", "s87"
S_TAU, S_TB, S_TQ, S_T4N, S_TMASK, S_TSH, S_TM, S_TS = "s78", "s79", "s43", "s44", "s34", "s49", "s61", "s95"

V_LANE = "v1"
V_WQR = [2, 3, 4, 5]; V_XR = 6
V_WQD = [7, 8, 9, 10]; V_XD = [11, 12, 13]; V_TG, V_TI, V_TB, V_TV = 14, 15, 62, 63
V_KD = [16, 17, 18, 19]; V_VD = [20, 21]
V_KR = [22, 23, 24, 25]; V_VR = [26 + i for i in range(8)]
V_WOD = [34, 35, 36, 37]; V_WOR = [38, 39, 40, 41]
V_OW, V_OR, V_OR8, V_PS = 42, 43, 44, 45
VT = [46 + i for i in range(18)]
RB = 64
def grp(t, s): return RB + (t * 4 + s) * 8
def qacc(dt, t): return grp(t, dt >> 1) + 4 * (dt & 1)
def qfrag(t, s): return grp(t, s)
def Sreg(kt, t): return grp(t, kt) + 4
def Preg(par, t): return grp(t, 2 + par) + 4
def cinit(t): return 224 + 4 * t
V_C0, V_C1 = 244, 245
def vr(b, n=4): return f"v[{b}:{b+n-1}]"
def ar(b, n=4): return f"a[{b}:{b+n-1}]"
def oacc(dt, t): return t * 32 + dt * 4
def lacc(t): return 160 + 4 * t
A_ONES = 180
def abuf(i): return 184 + 4 * i
def bbuf(t): return 216 + 4 * t
def kbuf(kt, s): return 216 + 4 * (kt * 4 + s)

MF = "v_mfma_f32_16x16x32_bf16"
def mfma(d, a, b, c): return I(f"{MF} {d}, {a}, {b}, {c}")
SCALE = (128 ** -0.5) * 1.4426950408889634
import struct
def f2u(x): return struct.unpack("<I", struct.pack("<f", x))[0]

def NT(): return " nt" if OPT['kvnt'] else ""

stamp_id = [0]
def stamp(name):
    if not OPT['stamps']: return []
    i = stamp_id[0]; stamp_id[0] += 1
    STAMPS.append(name)
    return II(f"s_memrealtime s[66:67]",
              "s_waitcnt lgkmcnt(0)",
              f"v_mov_b32 v250, s66", f"v_mov_b32 v251, s67", f"v_mov_b32 v252, s65",
              f"global_store_dwordx2 v252, v[250:251], {S_STAMP} offset:{i*8}",
              f"s_memtime s[66:67]", "s_waitcnt lgkmcnt(0)", f"v_mov_b32 v250, s66", f"v_mov_b32 v251, s67",
              f"global_store_dwordx2 v252, v[250:251], {S_STAMP} offset:{128 + i*8}")
STAMPS = []

def setup():
    L = []
    A = lambda *x: L.extend(II(*x))
    A("s_cmp_ge_u32 s2, 256", "s_cbranch_scc1 L_main_end")
    A("s_load_dwordx8 s[68:75], s[0:1], 0", "s_load_dwordx2 s[76:77], s[0:1], 32",
      "s_load_dwordx8 s[80:87], s[0:1], 40", "s_load_dwordx2 s[88:89], s[0:1], 72",
      f"s_load_dwordx2 {S_WS}, s[0:1], 96")
    A("s_and_b32 s50, s2, 7", "s_lshr_b32 s51, s2, 3",
      f"s_lshr_b32 {S_BR}, s50, 2",
      "s_and_b32 s52, s50, 3", "s_lshl_b32 s52, s52, 2", "s_and_b32 s53, s51, 3", f"s_add_u32 {S_HP}, s52, s53",
      f"s_lshr_b32 {S_B}, s51, 2",
      f"s_lshl_b32 s52, {S_BR}, 3", f"s_add_u32 {S_CL}, s52, {S_B}")
    A("v_lshrrev_b32 v46, 6, v0", f"v_and_b32 {V_LANE}, 63, v0", "s_nop 0", f"v_readfirstlane_b32 {S_W}, v46", "s_nop 3")
    A(f"s_lshr_b32 {S_U}, {S_W}, 1", f"s_and_b32 {S_QH}, {S_W}, 1")
    A("s_waitcnt lgkmcnt(0)")
    A(f"s_cmp_eq_u32 {S_BR}, 1")
    for i in range(8): A(f"s_cselect_b32 s{68+i}, s{80+i}, s{68+i}")
    A("s_cselect_b32 s76, s88, s76", "s_cselect_b32 s77, s89, s77")
    def srd(dst, lo, hi, off_expr_regs, nrec):
        A(f"s_add_u32 s{dst}, s{lo}, s50", f"s_addc_u32 s{dst+1}, s{hi}, 0", f"s_and_b32 s{dst+1}, s{dst+1}, 0xffff")
        A(nrec, f"s_mov_b32 s{dst+3}, 0x20000")
    A(f"s_mul_i32 s50, {S_B}, 147456"); srd(4, 68, 69, None, "s_mov_b32 s6, 147456")
    A(f"s_lshl_b32 s50, {S_HP}, 9"); srd(8, 74, 75, None, "s_sub_u32 s10, 4194304, s50")
    A(f"s_lshl_b32 s50, {S_B}, 5", f"s_lshl_b32 s51, {S_HP}, 1", "s_add_u32 s50, s50, s51", f"s_add_u32 s50, s50, {S_U}", "s_lshl_b32 s50, s50, 17")
    srd(12, 70, 71, None, "s_mov_b32 s14, 131072")
    srd(16, 72, 73, None, "s_mov_b32 s18, 131072")
    A(f"s_lshl_b32 s50, {S_HP}, 18", f"s_lshl_b32 s51, {S_W}, 8", "s_add_u32 s50, s50, s51")
    A("s_sub_u32 s52, 262144, s51")
    srd(20, 76, 77, None, "s_mov_b32 s22, s52")
    A(f"s_mul_i32 s50, {S_CL}, 2359296"); srd(24, 58, 59, None, "s_mov_b32 s26, 2359296")
    if OPT['stamps']:
        A("s_add_u32 s62, s58, 0x8000000", "s_addc_u32 s63, s59, 0", "s_lshl_b32 s65, s2, 2", f"s_add_u32 s65, s65, {S_W}", "s_lshl_b32 s65, s65, 8")
    return L

def lane_consts_q():
    L = []; A = lambda *x: L.extend(II(*x))
    l = V_LANE; t0, t1, t2, t3, t4, t5 = [f"v{x}" for x in VT[:6]]
    A(f"v_lshrrev_b32 {t0}, 4, {l}", f"v_bfe_u32 {t1}, {l}, 2, 2", f"v_and_b32 {t2}, 3, {l}", f"v_and_b32 {t3}, 15, {l}")
    for n in range(4):
        A(f"v_add_u32 {t4}, {4*n}, {t0}", f"v_xor_b32 {t4}, {t4}, {t3}", f"v_lshlrev_b32 {t4}, 4, {t4}",
          f"v_lshl_add_u32 v{V_KD[n]}, {t0}, 8, {t4}")
    for n in range(2):
        A(f"v_add_u32 {t4}, {4*n}, {t0}", f"v_lshlrev_b32 {t4}, 1, {t4}", f"v_xor_b32 {t4}, {t4}, {t3}", f"v_lshlrev_b32 {t4}, 4, {t4}",
          f"v_lshl_add_u32 v{V_VD[n]}, {t0}, 8, {t4}")
    A(f"v_lshrrev_b32 {t4}, 5, {l}")
    A(f"v_bfe_u32 {t5}, {l}, 4, 1")
    for j in range(4):
        d = f"v{V_WQD[j]}"
        A(f"v_add_u32 {d}, {2*j}, {t4}",
          f"v_and_b32 v{VT[6]}, 3, {d}", f"v_lshlrev_b32 v{VT[6]}, 2, v{VT[6]}", f"v_xor_b32 v{VT[6]}, v{VT[6]}, {t3}", f"v_lshlrev_b32 v{VT[6]}, 4, v{VT[6]}",
          f"v_lshlrev_b32 {d}, 13, {d}", f"v_add_u32 {d}, {d}, v{VT[6]}", f"v_lshl_add_u32 {d}, {t5}, 8, {d}")
        if j: A(f"v_subrev_u32 {d}, {1024*j}, {d}")
    A(f"v_lshlrev_b32 {t4}, 1, {t0}", f"v_mov_b32 {t5}, 0x78", f"v_lshrrev_b32 {t4}, {t4}, {t5}", f"v_and_b32 {t4}, 3, {t4}",
      f"v_xor_b32 {t4}, {t4}, {t2}", f"v_lshlrev_b32 {t4}, 4, {t4}",
      f"v_lshrrev_b32 {t5}, 2, {l}", f"v_lshl_add_u32 {t4}, {t5}, 10, {t4}")
    for j in range(3):
        A(f"v_add_u32 v{V_XD[j]}, {j*16384 - 1024*j}, {t4}")
    A(f"v_mov_b32 v{V_TG}, {t0}", f"v_mov_b32 v{V_TI}, {t3}", f"v_lshlrev_b32 v{V_TB}, 8, {t0}")
    A(f"v_lshl_add_u32 {t4}, {t0}, 3, {t1}", f"v_lshlrev_b32 {t4}, 9, {t4}", f"v_lshl_add_u32 {t4}, {t2}, 4, {t4}",
      f"s_lshl_b32 s50, {S_U}, 8", f"s_add_u32 s50, s50, {WB}", f"v_add_u32 {t4}, s50, {t4}")
    for s in range(4):
        A(f"v_xor_b32 {t5}, {s}, {t1}", f"v_lshl_add_u32 v{V_WQR[s]}, {t5}, 6, {t4}")
    A(f"v_lshrrev_b32 {t4}, 2, {t3}", f"v_lshlrev_b32 {t4}, 1, {t4}", f"v_mov_b32 {t5}, 0x78", f"v_lshrrev_b32 {t4}, {t4}, {t5}", f"v_and_b32 {t4}, 3, {t4}",
      f"v_xor_b32 {t4}, {t4}, {t0}", f"v_lshlrev_b32 {t4}, 4, {t4}", f"v_lshl_add_u32 {t4}, {t3}, 6, {t4}",
      f"s_lshl_b32 s50, {S_QH}, 12", f"s_add_u32 s50, s50, {XB}", f"v_add_u32 v{V_XR}, s50, {t4}")
    return L

def lane_consts_rest():
    L = []; A = lambda *x: L.extend(II(*x))
    l = V_LANE; t0, t1, t2, t3, t4, t5, t6 = [f"v{x}" for x in VT[:7]]
    A(f"v_lshrrev_b32 {t0}, 4, {l}", f"v_bfe_u32 {t1}, {l}, 2, 2", f"v_and_b32 {t2}, 3, {l}", f"v_and_b32 {t3}, 15, {l}")
    A(f"s_lshl_b32 s50, {S_U}, 13", f"s_add_u32 s51, s50, {KB}", f"v_lshlrev_b32 {t4}, 8, {t3}", f"v_add_u32 {t4}, s51, {t4}")
    for s in range(4):
        A(f"v_add_u32 {t5}, {4*s}, {t0}", f"v_xor_b32 {t5}, {t5}, {t3}", f"v_lshl_add_u32 v{V_KR[s]}, {t5}, 4, {t4}")
    A(f"v_lshrrev_b32 {t4}, 2, {l}", f"v_and_b32 {t5}, 7, {t4}", f"v_lshlrev_b32 {t5}, 1, {t5}",
      f"v_lshlrev_b32 {t4}, 8, {t4}", f"v_add_u32 {t4}, s50, {t4}",
      f"v_and_b32 {t6}, 1, {t2}", f"v_lshl_add_u32 {t4}, {t6}, 3, {t4}",
      f"v_lshrrev_b32 {t6}, 1, {t2}")
    for dt in range(8):
        d = f"v{V_VR[dt]}"
        A(f"v_add_u32 {d}, {2*dt}, {t6}", f"v_xor_b32 {d}, {d}, {t5}", f"v_lshl_add_u32 {d}, {d}, 4, {t4}")
    A(f"v_lshlrev_b32 {t4}, 2, {t0}", f"v_xor_b32 {t4}, {t4}, {t3}", f"v_lshlrev_b32 {t4}, 4, {t4}", f"v_lshl_add_u32 {t4}, {t0}, 10, {t4}")
    for n in range(4):
        A(f"v_add_u32 v{V_WOD[n]}, {n*3072}, {t4}")
    A(f"v_lshrrev_b32 {t4}, 2, {l}", f"v_lshlrev_b32 {t4}, 8, {t4}", f"v_lshl_add_u32 {t4}, {t2}, 4, {t4}",
      f"s_lshl_b32 s50, {S_W}, 13", f"s_add_u32 s50, s50, {WOB}", f"v_add_u32 {t4}, s50, {t4}")
    for cp in range(4):
        A(f"v_xor_b32 {t5}, {cp}, {t1}", f"v_lshl_add_u32 v{V_WOR[cp]}, {t5}, 6, {t4}")
    A(f"s_lshl_b32 s50, {S_QH}, 15", f"s_lshl_b32 s51, {S_U}, 12", "s_add_u32 s50, s50, s51",
      f"v_lshlrev_b32 v{V_OR}, 4, {l}", f"v_add_u32 v{V_OW}, s50, v{V_OR}", f"v_add_u32 v{V_OR8}, 0x10000, v{V_OR}")
    A(f"s_lshl_b32 s50, {S_HP}, 10", f"v_add_u32 v{V_PS}, s50, v{V_OR}")
    return L

def dma(voff, srd, soff, imm, nt=False):
    o = f" offset:{imm}" if imm else ""
    return I(f"buffer_load_dwordx4 v{voff}, {srd}, {soff} offen{o}{' nt' if nt else ''} lds")

def kv_group(kind, m0expr, soffreg):
    if kind == 'K':
        return [dma(V_KD[n], SRD_K, soffreg, n * 1024, OPT['kvnt']) for n in range(4)]
    return [dma(V_VD[n & 1], SRD_V, soffreg, n * 1024, OPT['kvnt']) for n in range(4)]

def kv_tile_full_unused(kind, j):
    L = []
    base = (KB + kphys(j)) if kind == 'K' else (VB + vphys(j))
    for gI in range(2):
        L += II(f"s_lshl_b32 s50, {S_U}, 13", f"s_add_u32 m0, s50, {base + gI*4096}", f"s_mov_b32 s51, {j*8192 + gI*4096}")
        L += kv_group(kind, None, "s51")
    return L

def stage_setup_scalar():
    return II(f"s_lshl_b32 {S_X0}, {S_W}, 15",
              f"s_lshl_b32 {S_W0}, {S_W}, 16",
              f"s_lshr_b32 {S_KS}, s2, 3", f"s_mul_i32 {S_KS}, {S_KS}, {OPT['rotmul']}", f"s_and_b32 {S_KS}, {S_KS}, 15",
              f"s_lshl_b32 s50, {S_KS}, 6", f"s_add_u32 {S_SOFFX}, {S_X0}, s50",
              f"s_lshl_b32 s50, {S_KS}, 18", f"s_add_u32 {S_SOFFW0}, {S_W0}, s50",
              f"s_lshl_b32 s50, {S_W}, 12", f"s_add_u32 {S_BW}, s50, {WB}",
              f"s_lshl_b32 s50, {S_W}, 11", f"s_add_u32 {S_BX}, s50, {XB}",
              f"s_mov_b32 {S_DSLOT}, 0",
              f"s_mov_b32 {S_MW}, {S_BW}", f"s_mov_b32 {S_MX}, {S_BX}",
              f"s_mov_b32 {S_TAU}, 0",
              f"s_lshl_b32 s50, {S_U}, 13", f"s_lshl_b32 s51, {S_QH}, 12", f"s_add_u32 {S_TB}, s50, s51",
              f"s_lshl_b32 {S_TQ}, {S_QH}, 12")

def trickle_scalar():
    return II(f"s_min_u32 s50, {S_TAU}, 11",
              f"s_and_b32 s51, s50, 3",
              f"s_lshr_b32 s50, s50, 2",
              f"s_lshl_b32 {S_T4N}, s51, 2",
              f"s_lshl_b32 s51, s51, 10",
              f"s_cmp_eq_u32 s50, 2",
              f"s_cselect_b32 {S_TMASK}, 7, 15", f"s_cselect_b32 {S_TSH}, 1, 0",
              f"s_cselect_b32 s96, s16, s12", f"s_cselect_b32 s97, s17, s13",
              f"s_cselect_b32 s52, {VB + vphys(0)}, s94",
              f"s_cselect_b32 s53, 0, s50",
              f"s_lshl_b32 s50, s53, 14", f"s_add_u32 s52, s52, s50",
              f"s_add_u32 s52, s52, {S_TB}", f"s_add_u32 {S_TM}, s52, s51",
              f"s_lshl_b32 s53, s53, 13", f"s_add_u32 s53, s53, {S_TQ}", f"s_add_u32 {S_TS}, s53, s51",
              f"s_add_u32 {S_TAU}, {S_TAU}, 1")
def trickle_valu():
    return II(f"v_add_u32 v{V_TV}, {S_T4N}, v{V_TG}", f"v_and_b32 v{V_TV}, {S_TMASK}, v{V_TV}", f"v_lshlrev_b32 v{V_TV}, {S_TSH}, v{V_TV}",
              f"v_xor_b32 v{V_TV}, v{V_TV}, v{V_TI}", f"v_lshl_add_u32 v{V_TV}, v{V_TV}, 4, v{V_TB}")
def trickle_dma():
    if OPT.get('x_notrickle'): return ([I(f"s_mov_b32 m0, {S_TM}")], I('s_nop 0'))
    return ([I(f"s_mov_b32 m0, {S_TM}")], dma(V_TV, "s[96:99]", S_TS, 0, OPT['kvnt']))

def stage_dma_list():
    seq = []
    if OPT.get('x_nodma'): return [([I('s_mov_b32 m0, s35')], I('s_nop 0'))]
    if OPT.get('x_nox'):
        seq.append(([I(f"s_mov_b32 m0, {S_MW}")], dma(V_WQD[0], SRD_WQ, S_SOFFW0, 0)))
        for j in range(1, 4): seq.append(([], dma(V_WQD[j], SRD_WQ, S_SOFFW0, j * 1024)))
        return seq
    if OPT.get('x_now'):
        seq.append(([I(f"s_mov_b32 m0, {S_MX}")], dma(V_XD[0], SRD_X, S_SOFFX, 0)))
        for j in range(1, 3): seq.append(([], dma(V_XD[j], SRD_X, S_SOFFX, j * 1024)))
        return seq
    seq.append(([I(f"s_mov_b32 m0, {S_MW}")], dma(V_WQD[0], SRD_WQ, S_SOFFW0, 0)))
    for j in range(1, 4): seq.append(([], dma(V_WQD[j], SRD_WQ, S_SOFFW0, j * 1024)))
    seq.append(([I(f"s_mov_b32 m0, {S_MX}")], dma(V_XD[0], SRD_X, S_SOFFX, 0)))
    for j in range(1, 3): seq.append(([], dma(V_XD[j], SRD_X, S_SOFFX, j * 1024)))
    return seq

def place_dma(S, seq, gaps):
    k = 0
    last = None
    for e in seq:
        if e[0]:
            for p in e[0]: S.put(gaps[k], p)
            k += 1
        S.put(gaps[k], e[1]); last = gaps[k]
        if len(e) > 2:
            for p in e[2]: S.put(gaps[k] + 1, p)
        k += 1
    return last

def stage_advance():
    return II(f"s_add_u32 {S_KS}, {S_KS}, 1", f"s_and_b32 {S_KS}, {S_KS}, 15",
              f"s_lshl_b32 {S_SOFFX}, {S_KS}, 6", f"s_add_u32 {S_SOFFX}, {S_SOFFX}, {S_X0}",
              f"s_lshl_b32 {S_SOFFW0}, {S_KS}, 18", f"s_add_u32 {S_SOFFW0}, {S_SOFFW0}, {S_W0}",
              f"s_add_u32 {S_DSLOT}, {S_DSLOT}, 1", f"s_and_b32 {S_DSLOT}, {S_DSLOT}, 3",
              f"s_lshl_b32 {S_MW}, {S_DSLOT}, 14", f"s_add_u32 {S_MW}, {S_MW}, {S_BW}",
              f"s_mul_i32 {S_MX}, {S_DSLOT}, 9216", f"s_add_u32 {S_MX}, {S_MX}, {S_BX}")

def straight(seq):
    L = []
    for e in seq:
        L += e[0]
        if e[0]: L += II("s_nop 0")
        L.append(e[1])
        if len(e) > 2: L += e[2]
    return L

def stage_issue_straight(advance=True):
    return straight(stage_dma_list()) + trickle_scalar() + trickle_valu() + straight([trickle_dma()]) + (stage_advance() if advance else [])

def wq_read(dt, h2):
    if OPT.get('x_noread'): return I('s_nop 0')
    s, hf = dt >> 1, dt & 1
    b = abuf(dt) + 2 * h2
    off = hf * 8 + h2 * 2048
    return I(f"ds_read_b64_tr_b16 {ar(b,2)}, v{V_WQR[s]}" + (f" offset:{off}" if off else ""))
def x_read(t):
    if OPT.get('x_noread'): return I('s_nop 0')
    return I(f"ds_read_b128 {ar(bbuf(t))}, v{V_XR}" + (f" offset:{t*1024}" if t else ""))
def q_mfma(dt, t):
    return mfma(vr(qacc(dt, t)), ar(abuf(dt)), ar(bbuf(t)), vr(qacc(dt, t)))

def half_group(kind, j):
    if kind == 'K':
        pre = II(f"s_add_u32 m0, {S_MK}, {kphys(j)}", f"s_add_u32 s51, {S_TQ}, {j*8192}")
    else:
        pre = II(f"s_add_u32 m0, {S_MV}, {vphys(j)}", f"s_add_u32 s51, {S_TQ}, {j*8192}")
    g = kv_group(kind, None, "s51")
    return [(pre, g[0])] + [([], x) for x in g[1:]]

def q_body(with_dma, extra_dma=None, last_wait=None):
    ms = [q_mfma(dt, t) for t in range(5) for dt in (5, 6, 7)] + [q_mfma(dt, t) for t in range(5) for dt in range(5)]
    S = Sched(ms)
    rd = [wq_read(dt, h2) for dt in range(5) for h2 in range(2)]
    S.spread(rd, list(range(0, 10)))
    for t in range(5): S.put(3 * t + 3, x_read(t))
    S.spread([wq_read(dt, h2) for dt in (5, 6, 7) for h2 in range(2)], [15, 16, 17, 18, 19, 20])
    S.put(10, f"s_cmp_eq_u32 {S_RSLOT}, 3", f"s_cselect_b32 {S_DW}, s90, s91", f"s_cselect_b32 {S_DX}, s92, s93")
    S.put(11, f"s_add_u32 {S_RSLOT}, {S_RSLOT}, 1"); S.put(13, f"s_and_b32 {S_RSLOT}, {S_RSLOT}, 3")
    S.spread([f"v_add_u32 v{V_WQR[0]}, {S_DW}, v{V_WQR[0]}", f"v_add_u32 v{V_WQR[1]}, {S_DW}, v{V_WQR[1]}"], [36, 36])
    S.spread([f"v_add_u32 v{V_WQR[2]}, {S_DW}, v{V_WQR[2]}", f"v_add_u32 v{V_WQR[3]}, {S_DW}, v{V_WQR[3]}"], [37, 37])
    S.put(38, f"v_add_u32 v{V_XR}, {S_DX}, v{V_XR}")
    if with_dma:
        adv = stage_advance()
        for x, g in zip(adv, [0, 0, 1, 1, 2, 2, 4, 4, 5, 7, 8, 11]): S.put(g, x)
        ts = trickle_scalar()
        tg = [12, 13, 14, 14, 14] + [16]*7 + [17, 17, 18, 18, 19, 19, 20, 20]
        for x, g in zip(ts, tg): S.put(g, x)
        tv = trickle_valu()
        for x, g in zip(tv, [21, 21, 26, 30, 30]): S.put(g, x)
        last = place_dma(S, stage_dma_list() + [trickle_dma()], list(range(21, 40)))
    if extra_dma:
        place_dma(S, extra_dma, list(range(21, 40)))
    seq = S.flat()
    seq, pend = lgkm_waits(seq)
    endw = "s_waitcnt lgkmcnt(0)" + (f" vmcnt({last_wait})" if last_wait is not None else "")
    seq += II(endw, "s_barrier")
    if OPT['verbose']: print(S.report(f"q_body dma={with_dma}"))
    return seq

def zero_init():
    L = II("v_mov_b32 v244, 0", "v_mov_b32 v245, 0", "v_mov_b32 v246, 0", "v_mov_b32 v247, 0", "s_nop 1")
    for r in range(RB, RB + 160, 16): L += II(f"v_mfma_f32_32x32x16_bf16 v[{r}:{r+15}], v[244:247], v[244:247], 0")
    for r in range(0, 256, 16): L += II(f"v_mfma_f32_32x32x16_bf16 a[{r}:{r+15}], v[244:247], v[244:247], 0")
    return L

def phase_q():
    L = []; A = lambda *x: L.extend(II(*x))
    A(lane_consts_q())
    A(f"s_mov_b32 s94, {KB + kphys(0)}", "s_mov_b32 s98, s14", "s_mov_b32 s99, s15")
    A(stage_setup_scalar(), stage_issue_straight(), stage_issue_straight(), stage_issue_straight(False))
    A(stamp("q_issued"))
    A(zero_init())
    A(lane_consts_rest())
    A(f"s_lshl_b32 s50, {S_U}, 13", f"s_add_u32 s50, s50, {S_TQ}", f"s_add_u32 {S_MK}, s50, {KB}", f"s_add_u32 {S_MV}, s50, {VB}")
    A(f"s_mov_b32 {S_RSLOT}, 0", f"s_mov_b32 {S_CNT}, 0")
    A("s_mov_b32 s90, 0xffff4000", "s_mov_b32 s91, 16384", f"s_mov_b32 s92, {hex((-3*9216) & 0xffffffff)}", "s_mov_b32 s93, 9216")
    A("s_nop 7", "s_nop 7")
    A(f"v_mov_b32 v{VT[0]}, 0x3f803f80")
    for r in range(4): A(f"v_accvgpr_write_b32 a{A_ONES + r}, v{VT[0]}")
    nst = 2 if OPT['stamps'] else 0
    A(f"s_waitcnt vmcnt({17 + nst})", "s_barrier")
    A(stamp("q_start"))
    body = q_body(True, last_wait=17)
    body, n = hazards(body, history=body[-24:])
    A(".p2align 6", "L_q_loop:"); L.extend(body)
    A(f"s_add_u32 {S_CNT}, {S_CNT}, 1", f"s_cmp_lt_u32 {S_CNT}, 13", "s_cbranch_scc1 L_q_loop")
    b, n = hazards(q_body(False, extra_dma=half_group('V', 1), last_wait=13), history=body[-24:]); L.extend(b)
    b, n = hazards(q_body(False, extra_dma=half_group('K', 2) + half_group('V', 2), last_wait=13), history=b[-24:]); L.extend(b)
    b, n = hazards(q_body(False), history=b[-24:]); L.extend(b)
    A(straight(half_group('K', 3)))
    tail = [q_mfma(dt, t) for t in range(5) for dt in (5, 6, 7)]
    L.extend(tail)
    A("s_nop 7")
    A(stamp("q_mfma_done"))
    A(f"v_mov_b32 v{V_C0}, {hex(f2u(SCALE))}", f"v_mov_b32 v{V_C1}, {hex(f2u(SCALE))}")
    E = []
    for t in range(5):
        for s in range(4):
            b = grp(t, s)
            for k in range(4): E += II(f"v_pk_mul_f32 {vr(b+2*k,2)}, {vr(b+2*k,2)}, {vr(V_C0,2)}")
            for k in range(4): E += II(f"v_cvt_pk_bf16_f32 v{b+k}, v{b+2*k}, v{b+2*k+1}")
    E, n = hazards(E); L.extend(E)
    return L

def k_read(kt, s, slotk):
    off = kphys(slotk) + kt * 4096
    return I(f"ds_read_b128 {ar(kbuf(kt, s))}, v{V_KR[s]}" + (f" offset:{off}" if off else ""))
def v_read(dt, h, slotv):
    off = vphys(slotv) + h * 4096
    return I(f"ds_read_b64_tr_b16 {ar(abuf(dt) + 2*h, 2)}, v{V_VR[dt]}" + (f" offset:{off}" if off else ""))
def qk_mfma(kt, s, t, first_c):
    c = first_c(t) if s == 0 else vr(Sreg(kt, t))
    return mfma(vr(Sreg(kt, t)), ar(kbuf(kt, s)), vr(qfrag(t, s)), c)
def pv_mfma(dt, t, par):
    return mfma(ar(oacc(dt, t)), ar(abuf(dt)), vr(Preg(par, t)), ar(oacc(dt, t)))
def rs_mfma(t, par):
    return mfma(ar(lacc(t)), ar(A_ONES), vr(Preg(par, t)), ar(lacc(t)))
def cvts(par):
    out = []
    for kt in range(2):
        for t in range(5):
            s = Sreg(kt, t); p = Preg(par, t) + 2 * kt
            out.append(I(f"v_cvt_pk_bf16_f32 v{p}, v{s}, v{s+1}"))
            out.append(I(f"v_cvt_pk_bf16_f32 v{p+1}, v{s+2}, v{s+3}"))
    return out
def exps(kt):
    return [I(f"v_exp_f32 v{Sreg(kt,t)+i}, v{Sreg(kt,t)+i}") for t in range(5) for i in range(4)]

def att_dma(j, dyn=False):
    seq = []
    if j + 4 <= 15:
        pre = II(f"s_add_u32 m0, {S_MK}, {kphys(j + 4)}")
        g = kv_group('K', None, S_SOFFK)
        seq += [(pre, g[0])] + [([], x) for x in g[1:]]
        seq[-1] = (seq[-1][0], seq[-1][1], II(f"s_add_u32 {S_SOFFK}, {S_SOFFK}, 8192"))
    if j + 3 <= 15:
        pre = II(f"s_add_u32 m0, {S_MV}, {vphys(j + 3)}")
        g = kv_group('V', None, S_SOFFV)
        s2 = [(pre, g[0])] + [([], x) for x in g[1:]]
        s2[-1] = (s2[-1][0], s2[-1][1], II(f"s_add_u32 {S_SOFFV}, {S_SOFFV}, 8192"))
        seq += s2
    return seq

def wo_dma(ks, slot_base_imm):
    seq = []
    for gI in range(2):
        pre = II(f"s_lshl_b32 s50, {S_W}, 13", f"s_add_u32 m0, s50, {slot_base_imm + gI*4096}", f"s_mov_b32 s51, {ks*32768 + gI*16384}")
        for n in range(4):
            seq.append((pre if n == 0 else [], dma(V_WOD[n], SRD_WO, "s51", n * 1024)))
    return seq

def att_body(j, vmwait, extra_dma=None):
    par_old, par_new = (j - 1) & 1, j & 1
    ms = [pv_mfma(dt, t, par_old) for dt in (5, 6, 7) for t in range(5)] + [rs_mfma(t, par_old) for t in range(5)]
    ms += [qk_mfma(kt, s, t, lambda t: vr(cinit(t))) for kt in range(2) for s in range(4) for t in range(5)]
    ms += [pv_mfma(dt, t, par_new) for dt in range(5) for t in range(5)]
    S = Sched(ms)
    cv = cvts(par_new)
    gaps = list(range(0, 8)) + [8, 8, 9, 9, 10, 10, 11, 11, 12, 12, 13, 13]
    S.spread(cv, gaps)
    S.spread([k_read(kt, s, j + 1) for kt in range(2) for s in range(4)], list(range(0, 8)))
    vr_ = [v_read(dt, h, j) for dt in range(8) for h in range(2)]
    S.spread(vr_, [20 + i // 2 for i in range(16)])
    d = att_dma(j) + (extra_dma or [])
    place_dma(S, d, [13, 14, 15, 16, 17, 18, 19] + list(range(28, 41)) + [61, 82, 83])
    S.spread(exps(0), list(range(41, 61)))
    S.spread(exps(1), list(range(62, 82)))
    seq = S.flat()
    seq, pend = lgkm_waits(seq)
    seq += II(f"s_waitcnt vmcnt({vmwait}) lgkmcnt(0)", "s_barrier")
    if OPT['verbose']: print(S.report(f"att_body {j}"))
    return seq

def att_prologue():
    L = []; A = lambda *x: L.extend(II(*x))
    A(f"s_add_u32 {S_SOFFK}, {S_TQ}, {4*8192}", f"s_add_u32 {S_SOFFV}, {S_TQ}, {3*8192}")
    A("s_waitcnt vmcnt(16)", "s_barrier")
    A(stamp("att_k0"))
    seq = [k_read(kt, s, 0) for kt in range(2) for s in range(4)]
    seq += [qk_mfma(kt, s, t, lambda t: "0") for kt in range(2) for s in range(4) for t in range(5)]
    seq, _ = lgkm_waits(seq)
    L.extend(seq)
    A("s_nop 7")
    E = []
    t0, t1 = VT[0], VT[1]
    for t in range(5):
        a, b = Sreg(0, t), Sreg(1, t)
        E += II(f"v_max3_f32 v{t0}, v{a}, v{a+1}, v{a+2}", f"v_max3_f32 v{t0}, v{t0}, v{a+3}, v{b}",
                f"v_max3_f32 v{t0}, v{t0}, v{b+1}, v{b+2}", f"v_max_f32 v{t0}, v{t0}, v{b+3}",
                f"v_mov_b32 v{t1}, v{t0}", f"v_permlane32_swap_b32 v{t0}, v{t1}", f"v_max_f32 v{t0}, v{t0}, v{t1}",
                f"v_mov_b32 v{t1}, v{t0}", f"v_permlane16_swap_b32 v{t0}, v{t1}", f"v_max_f32 v{t0}, v{t0}, v{t1}")
        for k in range(4): E += II(f"v_sub_f32 v{cinit(t)+k}, 0, v{t0}")
        for base in (a, b):
            for k in range(4): E += II(f"v_sub_f32 v{base+k}, v{base+k}, v{t0}")
        for base in (a, b):
            for k in range(4): E += II(f"v_exp_f32 v{base+k}, v{base+k}")
    for t in range(5):
        for k in range(4): E += II(f"v_mov_b32 v{Preg(1,t)+k}, 0")
    for dt in (5, 6, 7):
        for k in range(4): E += II(f"v_accvgpr_write_b32 a{abuf(dt)+k}, 0")
    E, n = hazards(E); L.extend(E)
    A("s_barrier")
    return L

def attention():
    L = []; A = lambda *x: L.extend(II(*x))
    L += att_prologue()
    A(stamp("att_start"))
    A(f"s_mov_b32 {S_CNT}, 0")
    bodies = [att_body(j, 16) for j in range(4)]
    hist = bodies[3][-24:]
    A(".p2align 6", "L_att_loop:")
    for b in bodies:
        b2, n = hazards(b, history=hist); L.extend(b2); hist = b2[-24:]
    A(f"s_add_u32 {S_CNT}, {S_CNT}, 1", f"s_cmp_lt_u32 {S_CNT}, 3", "s_cbranch_scc1 L_att_loop")
    b, n = hazards(att_body(12, 12), history=hist); L.extend(b); hist = b[-24:]
    b, n = hazards(att_body(13, 12, extra_dma=wo_dma(0, WOA)), history=hist); L.extend(b); hist = b[-24:]
    b, n = hazards(att_body(14, 16, extra_dma=wo_dma(1, WOB)), history=hist); L.extend(b); hist = b[-24:]
    A(stamp("att_loop_done"))
    ms = [pv_mfma(dt, t, 0) for dt in (5, 6, 7) for t in range(5)] + [rs_mfma(t, 0) for t in range(5)]
    ms += [pv_mfma(dt, t, 1) for dt in range(8) for t in range(5)] + [rs_mfma(t, 1) for t in range(5)]
    S = Sched(ms)
    S.spread(cvts(1), list(range(0, 20)))
    vr_ = [v_read(dt, h, 15) for dt in range(5) for h in range(2)]
    S.spread(vr_, list(range(0, 10)))
    S.spread([v_read(dt, h, 15) for dt in (5, 6, 7) for h in range(2)], list(range(15, 21)))
    seq, pend = lgkm_waits(S.flat(), final_zero=True)
    seq, n = hazards(seq, history=hist); L.extend(seq)
    A("s_barrier")
    A("s_nop 7")
    A(stamp("att_done"))
    return L

def o_epilogue():
    L = []
    E = []
    tl = VT[0]; rc = VT[2]
    buf = [52, 56]
    for t in range(5):
        E += II(f"v_accvgpr_read_b32 v{tl}, a{lacc(t)}", f"v_rcp_f32 v{rc}, v{tl}", "s_nop 0", f"v_mov_b32 v{rc+1}, v{rc}")
        if t == 0: E += II(f"v_mov_b32 v{VT[1]}, v{tl}")
        else: E += II(f"v_max_f32 v{VT[1]}, v{VT[1]}, v{tl}")
        for ks in range(4):
            for h in range(2):
                for k in range(4):
                    E += II(f"v_accvgpr_read_b32 v{52 + 4*h + k}, a{oacc(2*ks + h, t) + k}")
            for k in range(4): E += II(f"v_pk_mul_f32 {vr(52+2*k,2)}, {vr(52+2*k,2)}, {vr(rc,2)}")
            for k in range(4): E += II(f"v_cvt_pk_bf16_f32 v{60+k}, v{52+2*k}, v{53+2*k}")
            E += II(f"ds_write_b128 v{V_OW}, {vr(60)} offset:{(t*8+ks)*1024}")
    E, n = hazards(E)
    L += E
    L += II("s_waitcnt lgkmcnt(0)", "s_barrier")
    return L

def wofrag(ks, m): return ks * 32 + m * 4
def wo_read(ks, m, h):
    cp, hf = m >> 1, m & 1
    off = (32768 if (ks & 1) == 0 else 0) + hf * 8 + h * 4096
    return I(f"ds_read_b64_tr_b16 {ar(wofrag(ks, m) + 2*h, 2)}, v{V_WOR[cp]}" + (f" offset:{off}" if off else ""))
def o_read(dst, t, ks):
    if t < 8: return I(f"ds_read_b128 {vr(dst)}, v{V_OR} offset:{(t*8+ks)*1024}")
    return I(f"ds_read_b128 {vr(dst)}, v{V_OR8} offset:{ks*1024}")
def pstore(src, t, cp):
    return II(f"s_add_u32 s51, {S_SOFFP}, {(cp*9 + t)*16384}")+ [I(f"buffer_store_dwordx4 {vr(src)}, v{V_PS}, {SRD_P}, s51 offen {OPT['pst']}")]

def out_proj():
    L = []; A = lambda *x: L.extend(II(*x))
    A(f"s_mul_i32 {S_SOFFP}, {S_W}, {4*9*16384}")
    ACC1 = 64
    def acc1(t, m): return ACC1 + (t * 8 + m) * 4
    BB = 160
    def bfr(par, t): return BB + (par * 3 + t) * 4
    seq = []
    for r in range(ACC1, ACC1 + 96): seq += II(f"v_mov_b32 v{r}, 0")
    L += seq
    for ks in range(8):
        s = []
        s += II(f"s_waitcnt vmcnt({8 if ks < 7 else 0})")
        s += [wo_read(ks, m, h) for m in range(8) for h in range(2)]
        s += [o_read(bfr(ks & 1, t), t, ks) for t in range(3)]
        s += II("s_waitcnt lgkmcnt(0)")
        if ks + 2 < 8:
            for pre, d in wo_dma(ks + 2, WOA if (ks & 1) == 0 else WOB):
                s += pre
                if pre: s += II("s_nop 0")
                s.append(d)
        s += [mfma(vr(acc1(t, m)), ar(wofrag(ks, m)), vr(bfr(ks & 1, t)), vr(acc1(t, m))) for m in range(8) for t in range(3)]
        s, n = hazards(s); L += s
    A("s_nop 7")
    E = []
    for t in range(3):
        for cp in range(4):
            a0, a1 = acc1(t, 2*cp), acc1(t, 2*cp + 1)
            d = 184 + 4 * (cp & 1)
            E += II(f"v_cvt_pk_bf16_f32 v{d}, v{a0}, v{a0+1}", f"v_cvt_pk_bf16_f32 v{d+1}, v{a0+2}, v{a0+3}",
                    f"v_cvt_pk_bf16_f32 v{d+2}, v{a1}, v{a1+1}", f"v_cvt_pk_bf16_f32 v{d+3}, v{a1+2}, v{a1+3}")
            E += pstore(d, t, cp)
    E, n = hazards(E); L += E
    ACC2 = 64
    for t in range(3, 9):
        s = [o_read(192 + 4 * ks, t, ks) for ks in range(8)]
        s += [mfma(vr(ACC2 + 4 * m), ar(wofrag(ks, m)), vr(192 + 4 * ks), ("0" if ks == 0 else vr(ACC2 + 4 * m))) for ks in range(8) for m in range(8)]
        s, _ = lgkm_waits(s)
        s += II("s_nop 7")
        for cp in range(4):
            a0, a1 = ACC2 + 8 * cp, ACC2 + 8 * cp + 4
            d = 184 + 4 * (cp & 1)
            s += II(f"v_cvt_pk_bf16_f32 v{d}, v{a0}, v{a0+1}", f"v_cvt_pk_bf16_f32 v{d+1}, v{a0+2}, v{a0+3}",
                    f"v_cvt_pk_bf16_f32 v{d+2}, v{a1}, v{a1+1}", f"v_cvt_pk_bf16_f32 v{d+3}, v{a1+2}, v{a1+3}")
            s += pstore(d, t, cp)
        s, n = hazards(s, history=L[-24:]); L += s
    return L

def dump_regs(regs, slot, kind='v'):
    L = []; A = lambda *x: L.extend(II(*x))
    A("s_add_u32 s66, s58, 0x4000000", "s_addc_u32 s67, s59, 0",
      "s_lshl_b32 s50, s2, 2", f"s_add_u32 s50, s50, {S_W}", "s_lshl_b32 s50, s50, 16",
      f"v_lshlrev_b32 v253, 2, {V_LANE}", "v_add_u32 v253, s50, v253")
    for i, r in enumerate(regs):
        if kind == 'a':
            A(f"v_accvgpr_read_b32 v254, a{r}", "s_nop 0")
            A(f"global_store_dword v253, v254, s[66:67]")
        else:
            A(f"global_store_dword v253, v{r}, s[66:67]")
        A("v_add_u32 v253, 256, v253")
    A("s_waitcnt vmcnt(0)")
    return L

def main_kernel():
    L = []
    L += setup()
    L += stamp("start")
    L += phase_q()
    L += stamp("q_done")
    if OPT['dump'] == 'q':
        L += II("s_nop 7") + dump_regs([qfrag(t, s) + k for t in range(5) for s in range(4) for k in range(4)], 0)
        L += II("s_waitcnt vmcnt(0)", "s_endpgm")
    L += attention()
    if OPT['dump'] == 'o':
        L += II("s_nop 7") + dump_regs([oacc(dt, t) + k for t in range(5) for dt in range(8) for k in range(4)] + [lacc(t) for t in range(5)], 0, 'a')
        L += II("s_waitcnt vmcnt(0)", "s_endpgm")
    L += o_epilogue()
    L += stamp("o_done")
    L += out_proj()
    L += stamp("op_done")
    L += II("s_waitcnt vmcnt(0)")
    L += stamp("end")
    L += II("L_main_end:", "s_endpgm")
    return L

def reduce_kernel():
    L = []; A = lambda *x: L.extend(II(*x))
    A("s_cmp_ge_u32 s2, 256", "s_cbranch_scc1 L_red_end")
    A("s_load_dwordx2 s[4:5], s[0:1], 80", "s_load_dwordx2 s[6:7], s[0:1], 96")
    A("v_lshrrev_b32 v2, 6, v0", "v_and_b32 v1, 63, v0", "s_nop 0", "v_readfirstlane_b32 s12, v2", "s_nop 3")
    A("s_waitcnt lgkmcnt(0)")
    A("s_mul_i32 s13, s2, 9", "s_add_u32 s13, s13, s12", "s_lshl_b32 s13, s13, 14")
    A("s_add_u32 s16, s6, s13", "s_addc_u32 s17, s7, 0", "s_and_b32 s17, s17, 0xffff", "s_mov_b32 s18, 16384", "s_mov_b32 s19, 0x20000")
    A("v_lshlrev_b32 v2, 4, v1")
    for p in range(16):
        A(f"buffer_load_dwordx4 v[{8+4*p}:{11+4*p}], v2, s[16:19], 0 offen offset:{(p%4)*1024}" if p < 4 else
          f"buffer_load_dwordx4 v[{8+4*p}:{11+4*p}], v2, s[16:19], s{20+p//4} offen offset:{(p%4)*1024}")
        if p == 3: A("s_mov_b32 s21, 4096", "s_mov_b32 s22, 8192", "s_mov_b32 s23, 12288")
    A("s_lshr_b32 s14, s2, 4", "s_and_b32 s15, s2, 15",
      "s_and_b32 s24, s14, 7", "s_lshr_b32 s25, s14, 3",
      "s_mul_i32 s24, s24, 144", "s_lshl_b32 s26, s12, 4", "s_add_u32 s24, s24, s26", "s_lshl_b32 s24, s24, 11",
      "s_lshl_b32 s25, s25, 10", "s_lshl_b32 s15, s15, 6", "s_add_u32 s24, s24, s25", "s_add_u32 s24, s24, s15")
    A("v_and_b32 v3, 15, v1", "v_lshlrev_b32 v3, 11, v3", "v_lshrrev_b32 v4, 4, v1", "v_lshl_add_u32 v3, v4, 4, v3")
    A("s_mov_b32 s28, s4", "s_and_b32 s29, s5, 0xffff", "s_mov_b32 s30, 2359296", "s_mov_b32 s31, 0x20000")
    acc = 80
    for p in range(16):
        A(f"s_waitcnt vmcnt({15-p})")
        for k in range(4):
            r = 8 + 4 * p + k
            if p == 0:
                A(f"v_lshlrev_b32 v{acc+2*k}, 16, v{r}", f"v_and_b32 v{acc+2*k+1}, 0xffff0000, v{r}")
            else:
                A(f"v_lshlrev_b32 v6, 16, v{r}", f"v_and_b32 v7, 0xffff0000, v{r}",
                  f"v_add_f32 v{acc+2*k}, v{acc+2*k}, v6", f"v_add_f32 v{acc+2*k+1}, v{acc+2*k+1}, v7")
    for k in range(4): A(f"v_cvt_pk_bf16_f32 v{8+k}, v{acc+2*k}, v{acc+2*k+1}")
    A("buffer_store_dwordx4 v[8:11], v3, s[28:31], s24 offen")
    A("s_waitcnt vmcnt(0)")
    A("L_red_end:", "s_endpgm")
    return L

def kernel_text(name, body, vgpr, accum, sgpr=102):
    return f""".globl {name}
.p2align 8
.type {name},@function
{name}:
{text(body)}
"""
def kd(name, nfv, accum, sgpr=102):
    return f""".amdhsa_kernel {name}
  .amdhsa_next_free_vgpr {nfv}
  .amdhsa_next_free_sgpr {sgpr}
  .amdhsa_accum_offset {accum}
  .amdhsa_group_segment_fixed_size 0
  .amdhsa_kernarg_size 104
  .amdhsa_user_sgpr_count 2
  .amdhsa_user_sgpr_kernarg_segment_ptr 1
  .amdhsa_system_sgpr_workgroup_id_x 1
.end_amdhsa_kernel
"""

def build():
    stamp_id[0] = 0; STAMPS.clear()
    k1 = NAME + "_kernel"; k2 = "reduce_heads_kernel"
    m = main_kernel(); r = reduce_kernel()
    hdr = f"; fused q-projection + attention + partial out-projection, then a reduction over head pairs\n"
    hdr += f"; @launch kernel={k1} grid=(256,1,1) block=(256,1,1) lds=163840\n"
    hdr += f"; @launch kernel={k2} grid=(256,1,1) block=(576,1,1) lds=0\n"
    s = hdr + '.amdgcn_target "amdgcn-amd-amdhsa--gfx950"\n.text\n'
    s += kernel_text(k1, m, 512, 256) + kernel_text(k2, r, 96, 96)
    s += '.section .rodata,"a"\n.p2align 6\n' + kd(k1, 512, 256) + ".p2align 6\n" + kd(k2, 96, 96, 40)
    return s

if __name__ == "__main__":
    ap = argparse.ArgumentParser()
    ap.add_argument("-o", default="cdna_kernels/" + NAME + ".s")
    ap.add_argument("--dump"); ap.add_argument("--stamps", action="store_true"); ap.add_argument("-v", action="store_true")
    ap.add_argument("--opt", action="append", default=[])
    a = ap.parse_args()
    OPT['dump'] = a.dump; OPT['stamps'] = a.stamps; OPT['verbose'] = a.v
    for o in a.opt:
        k, v = o.split("=", 1)
        OPT[k] = {'True': True, 'False': False}.get(v, v)
    s = build()
    open(a.o, "w").write(s)
    if a.stamps:
        import json; json.dump(STAMPS, open(a.o + ".stamps.json", "w"))
    print("wrote", a.o, len(s), "bytes")
```

```python
import re

def expand(op):
    op = op.strip()
    neg = op.lstrip('-')
    m = re.fullmatch(r'([vas])\[(\d+):(\d+)\]', neg)
    if m:
        return [f"{m.group(1)}{i}" for i in range(int(m.group(2)), int(m.group(3)) + 1)]
    m = re.fullmatch(r'([vas])(\d+)', neg)
    if m:
        return [neg]
    if neg in ('vcc', 'm0', 'exec', 'scc'):
        return [neg]
    if neg in ('vcc_lo', 'vcc_hi'):
        return ['vcc']
    return []

TRANS = ('v_exp_f32', 'v_rcp_f32', 'v_log_f32', 'v_rsq_f32', 'v_sqrt_f32')

class I:
    __slots__ = ('txt', 'kind', 'rd', 'wr', 'lds_dst', 'tag')
    def __init__(self, txt, tag=None):
        self.txt = txt
        self.tag = tag
        self.lds_dst = None
        t = txt.split(';')[0].strip()
        parts = t.split(None, 1)
        op = parts[0]
        ops = []
        if len(parts) > 1:
            ops = [x.strip() for x in re.split(r',(?![^\[]*\])', parts[1])]
            if ops:
                last = ops[-1].split()
                ops[-1] = last[0] if last else ''
        R = lambda xs: set(r for x in xs for r in expand(x))
        self.rd, self.wr = set(), set()
        if op.startswith('v_mfma'):
            self.kind = 'mfma'; self.wr = R(ops[:1]); self.rd = R(ops[1:])
        elif op.startswith('ds_read'):
            self.kind = 'dsr'; self.lds_dst = R(ops[:1]); self.wr = set(self.lds_dst); self.rd = R(ops[1:])
        elif op.startswith('ds_write'):
            self.kind = 'dsw'; self.rd = R(ops)
        elif op.startswith('buffer_load') and ' lds' in t:
            self.kind = 'dma'; self.rd = R(ops) | {'m0'}
        elif op.startswith('buffer_load') or op.startswith('global_load'):
            self.kind = 'vld'; self.wr = R(ops[:1]); self.rd = R(ops[1:])
        elif op.startswith('buffer_store') or op.startswith('global_store'):
            self.kind = 'vst'; self.rd = R(ops)
        elif op.startswith('global_atomic') or op.startswith('buffer_atomic'):
            self.kind = 'vst'; self.rd = R(ops)
        elif op.startswith('buffer_inv') or op.startswith('buffer_wbl2'):
            self.kind = 'vst'
        elif op == 's_waitcnt':
            self.kind = 'wait'
        elif op == 's_barrier':
            self.kind = 'bar'
        elif op == 's_nop':
            self.kind = 'nop'
        elif op.startswith('s_cbranch') or op == 's_branch' or op == 's_endpgm':
            self.kind = 'br'
            if 'scc' in op: self.rd = {'scc'}
            if 'vcc' in op: self.rd = {'vcc'}
            if 'exec' in op: self.rd = {'exec'}
        elif op.startswith('s_bitset'):
            self.kind = 'salu'; self.wr = R(ops[:1]); self.rd = R(ops[:1])
        elif op.startswith('s_cmp') or op.startswith('s_bitcmp'):
            self.kind = 'salu'; self.rd = R(ops); self.wr = {'scc'}
        elif op.startswith('s_load') or op.startswith('s_memtime') or op.startswith('s_memrealtime'):
            self.kind = 'smem'; self.wr = R(ops[:1]); self.rd = R(ops[1:])
        elif op in ('s_setprio', 's_sleep'):
            self.kind = 'salu'
        elif op.startswith('s_'):
            self.kind = 'salu'; self.wr = R(ops[:1]); self.rd = R(ops[1:])
            if op.startswith(('s_add', 's_sub', 's_lshl', 's_lshr', 's_and', 's_or', 's_xor', 's_min', 's_max', 's_ashr', 's_bfe', 's_andn2')):
                self.wr |= {'scc'}
            if op.startswith(('s_addc', 's_subb', 's_cselect')):
                self.rd |= {'scc'}
            if 'saveexec' in op:
                self.wr |= {'exec'}; self.rd |= {'exec'}
        elif op.startswith('v_cmp'):
            self.kind = 'valu'; self.wr = R(ops[:1]); self.rd = R(ops[1:])
        elif op.startswith('v_permlane') and 'swap' in op:
            self.kind = 'valu'; self.wr = R(ops[:2]); self.rd = R(ops[:2])
        elif op.startswith('v_'):
            self.kind = 'trans' if op.replace('_e32', '').replace('_e64', '') in TRANS else 'valu'
            self.wr = R(ops[:1]); self.rd = R(ops[1:])
            if op.startswith(('v_fmac', 'v_pk_fmac')): self.rd |= self.wr
            if op.startswith('v_cndmask') and len(ops) == 3: self.rd |= {'vcc'}
            if op.startswith(('v_add_co', 'v_sub_co', 'v_addc_co')):
                self.wr |= R(ops[1:2])
        elif op.endswith(':'):
            self.kind = 'label'
        elif op.startswith('.'):
            self.kind = 'dir'
        else:
            raise ValueError("unknown instr: " + txt)
    def op(self):
        return self.txt.split()[0]
    def __repr__(self):
        return self.txt

def II(*lines):
    out = []
    for l in lines:
        if isinstance(l, (list, tuple)):
            out += II(*l)
        elif isinstance(l, I):
            out.append(l)
        else:
            for x in l.split('\n'):
                x = x.strip()
                if x: out.append(I(x))
    return out

ORDER = {'label': 0, 'salu': 0, 'wait': 0, 'bar': 0, 'nop': 0, 'br': 0, 'smem': 0, 'dsr': 1, 'dsw': 1, 'dma': 2, 'vld': 2, 'vst': 2, 'valu': 3, 'trans': 3}
COST = {'dsr': 4, 'dsw': 4, 'dma': 8, 'vld': 8, 'vst': 8, 'valu': 4, 'trans': 8}

class Sched:
    def __init__(self, mfmas):
        self.m = list(mfmas)
        self.g = [[] for _ in self.m]
    def put(self, gap, *ins):
        for x in II(*ins):
            self.g[gap].append(x)
    def spread(self, ins, gaps):
        ins = II(*ins)
        assert len(ins) <= len(gaps), (len(ins), len(gaps))
        for x, g in zip(ins, gaps):
            self.g[g].append(x)
    def cost(self, gap):
        return sum(COST.get(x.kind, 0) for x in self.g[gap])
    def flat(self, sort=True):
        out = []
        for m, g in zip(self.m, self.g):
            if not (m.kind == 'nop'): out.append(m)
            if sort:
                g = sorted(g, key=lambda x: ORDER[x.kind])
            out += g
        return out
    def report(self, name=''):
        over = [(i, self.cost(i)) for i in range(len(self.g)) if self.cost(i) > 8]
        tot = sum(max(16, 8 + self.cost(i)) for i in range(len(self.g)))
        return f"{name}: {len(self.m)} mfma, est {tot} cyc, overfull gaps {over}"

def lgkm_waits(seq, pending=None, final_zero=False):
    out = []
    pend = [] if pending is None else list(pending)
    n = len(seq)
    def need_index(ins, q):
        regs = ins.rd | (ins.wr if ins.kind != 'dsr' else set())
        if ins.kind == 'dsr':
            regs = ins.rd | ins.wr
        k = -1
        for i, d in enumerate(q):
            if d and (d & regs): k = i
        return k
    def emit_wait(k):
        nonlocal pend
        cnt = len(pend) - 1 - k
        cnt = min(cnt, 15)
        out.append(I(f"s_waitcnt lgkmcnt({cnt})"))
        pend = pend[len(pend) - cnt:] if cnt > 0 else []
    i = 0
    while i < n:
        ins = seq[i]
        if ins.kind == 'wait' and 'lgkmcnt' in ins.txt:
            c = int(re.search(r'lgkmcnt\((\d+)\)', ins.txt).group(1))
            pend = pend[len(pend) - c:] if 0 < c < len(pend) else ([] if c == 0 else pend)
            out.append(ins); i += 1; continue
        k = need_index(ins, pend)
        if k >= 0:
            emit_wait(k)
        out.append(ins)
        if ins.kind in ('dsr', 'dsw'):
            pend.append(ins.lds_dst if ins.kind == 'dsr' else None)
        if ins.kind == 'smem':
            pass
        if ins.kind == 'mfma':
            j = i + 1
            kk = -1
            while j < n:
                nx = seq[j]
                if nx.kind in ('label', 'br', 'bar'): break
                if nx.kind == 'wait' and 'lgkmcnt' in nx.txt: break
                kk = max(kk, need_index(nx, pend))
                if nx.kind == 'mfma': break
                j += 1
            if kk >= 0:
                emit_wait(kk)
        i += 1
    if final_zero and pend:
        out.append(I("s_waitcnt lgkmcnt(0)")); pend = []
    return out, pend

def states(ins):
    if ins.kind == 'nop':
        return int(ins.txt.split()[1]) + 1
    if ins.kind in ('label', 'dir'):
        return 0
    return 1

def is_valu(x): return x.kind in ('valu', 'trans')

def required(prod, cons):
    r = 0
    vregs = lambda s: {x for x in s if x[0] in 'va'}
    if prod.kind == 'mfma':
        D = prod.wr
        if cons.kind == 'mfma':
            ops = [x.strip() for x in re.split(r',(?![^\[]*\])', cons.txt.split(None, 1)[1])]
            a, b, c = set(expand(ops[1])), set(expand(ops[2])), set(expand(ops[3].split()[0]))
            if D & (a | b): r = max(r, 8)
            if D & c and c != D: r = max(r, 6)
            if D & cons.wr and cons.wr != D: r = max(r, 6)
            if D & cons.wr and not (D & c): r = max(r, 6)
        elif is_valu(cons) or cons.kind in ('vst', 'dsw', 'dsr', 'vld', 'dma'):
            if D & (cons.rd | cons.wr): r = max(r, 8)
        if is_valu(cons):
            ops = [x.strip() for x in re.split(r',(?![^\[]*\])', prod.txt.split(None, 1)[1])]
            c = set(expand(ops[3].split()[0]))
            if c & cons.wr: r = max(r, 3)
    if is_valu(prod):
        if cons.kind == 'mfma' and (vregs(prod.wr) & cons.rd): r = max(r, 2)
        if prod.kind == 'trans' and cons.kind == 'valu' and (prod.wr & cons.rd): r = max(r, 1)
        if prod.kind == 'trans' and cons.kind == 'trans' and (prod.wr & cons.rd): r = max(r, 1)
        if cons.op().startswith('v_permlane') and (vregs(prod.wr) & cons.rd): r = max(r, 2)
        if cons.op().startswith(('v_readfirstlane', 'v_readlane')) and (vregs(prod.wr) & cons.rd): r = max(r, 1)
        sw = {x for x in prod.wr if x[0] == 's' or x == 'vcc'}
        if sw:
            if is_valu(cons) and (sw & cons.rd): r = max(r, 2)
            if cons.kind in ('dma', 'vld', 'vst') and (sw & cons.rd): r = max(r, 5)
            if cons.kind in ('salu', 'br') and (sw & cons.rd): r = max(r, 4)
        if 'exec' in prod.wr: r = max(r, 5)
        if 'dpp' in cons.txt and (vregs(prod.wr) & cons.rd): r = max(r, 2)
    if prod.kind == 'salu':
        if 'm0' in prod.wr and cons.kind == 'dma': r = max(r, 1)
        if 'exec' in prod.wr and cons.kind == 'mfma': r = max(r, 4)
    if prod.kind == 'vst' and ('x4' in prod.op() or 'x3' in prod.op()):
        if vregs(prod.rd) & cons.wr:
            r = max(r, 2)
    return r

def hazards(seq, history=None, verbose=False):
    out = []
    hist = list(history) if history else []
    added = 0
    for ins in seq:
        if ins.kind in ('label', 'dir'):
            out.append(ins); continue
        need = 0; dist = 0
        for p in reversed(hist[-24:]):
            r = required(p, ins)
            if r > dist: need = max(need, r - dist)
            dist += states(p)
            if dist >= 12: break
        if need > 0:
            nop = I(f"s_nop {need - 1}")
            out.append(nop); hist.append(nop); added += need
            if verbose: print("  hazard nop", need, "before", ins.txt)
        out.append(ins); hist.append(ins)
    return out, added

def text(seq, indent='  '):
    return '\n'.join((x.txt if x.kind == 'label' else indent + x.txt) for x in seq)

class VmNeed(I):
    def __init__(self, tag):
        self.txt = f"; vmneed {tag}"; self.kind = 'wait'; self.rd = set(); self.wr = set(); self.lds_dst = None; self.tag = tag

def tagged(ins, tag):
    for x in ins:
        x.tag = tag
    return ins

def vm_waits(seq, queue=None):
    q = list(queue or [])
    out = []
    for x in seq:
        if isinstance(x, VmNeed):
            idx = [i for i, t in enumerate(q) if t == x.tag]
            assert idx, f"no outstanding op with tag {x.tag}"
            n = len(q) - 1 - idx[-1]
            assert n <= 63
            out.append(I(f"s_waitcnt vmcnt({n})"))
            continue
        if x.kind in ('dma', 'vld', 'vst'):
            q.append(x.tag)
        out.append(x)
    return out, q

class Raw(I):
    def __init__(self, txt):
        self.txt = txt; self.kind = 'salu'; self.rd = set(); self.wr = set(); self.lds_dst = None; self.tag = None
```

```python
import sys, argparse
from ir import *

NAME = "concat_heads__gqa_block_cached__mha_block_cached__near_ridge"
OPT = dict(pf=1, pfnt=False, fused=True, rld='sc1', rot=True, wnt=False, xnt=False, wont=False, bursts=(3, 6, 9), dump=None, stamps=False, stop=None, kvnt=True, pst="sc1", verbose=False)

VB = 0
KB = 65536
WB = 16384
XB = 114688
WOA = 131072
WOB = 98304
OB = 0
def kphys(k): return ((k + 1) & 3) * 16384
def vphys(k): return (k & 3) * 16384

SRD_X, SRD_WQ, SRD_K, SRD_V, SRD_WO, SRD_P = "s[4:7]", "s[8:11]", "s[12:15]", "s[16:19]", "s[20:23]", "s[24:27]"
SRD_F, SRD_D, SRD_O = "s[68:71]", "s[72:75]", "s[80:83]"
S_W, S_U, S_QH, S_CNT = "s28", "s29", "s30", "s31"
S_SOFFX, S_SOFFW0, S_UNUSED, S_MW, S_MX, S_DSLOT, S_RSLOT, S_DW, S_DX = "s32", "s33", "s34", "s35", "s36", "s37", "s38", "s39", "s40"
S_BW, S_BX = "s41", "s42"
S_SOFFK, S_SOFFV, S_MK, S_MV = "s45", "s46", "s47", "s48"
S_T0, S_T1, S_T2, S_T3 = "s50", "s51", "s52", "s53"
S_HP, S_B, S_BR, S_CL = "s54", "s55", "s56", "s57"
S_WS = "s[58:59]"
S_SOFFP = "s60"
S_STAMP = "s[62:63]"
S_FLAG = "s64"
S_KS, S_X0, S_W0 = "s88", "s89", "s87"
S_TAU, S_TB, S_TQ, S_T4N, S_TMASK, S_TSH, S_TM, S_TS = "s78", "s79", "s43", "s44", "s34", "s49", "s61", "s95"

V_LANE = "v1"
V_WQR = [2, 3, 4, 5]; V_XR = 6
V_WQD = [7, 8, 9, 10]; V_XD = [11, 12, 13]; V_TG, V_TI, V_TB, V_TV = 14, 15, 62, 63
V_KD = [16, 17, 18, 19]; V_VD = [20, 21]
V_KR = [22, 23, 24, 25]; V_VR = [26 + i for i in range(8)]
V_WOD = [34, 35, 36, 37]; V_WOR = [38, 39, 40, 41]
V_OW, V_OR, V_OR8, V_PS = 42, 43, 44, 45
VT = [46 + i for i in range(18)]
RB = 64
def grp(t, s): return RB + (t * 4 + s) * 8
def qacc(dt, t): return grp(t, dt >> 1) + 4 * (dt & 1)
def qfrag(t, s): return grp(t, s)
def Sreg(kt, t): return grp(t, kt) + 4
def Preg(par, t): return grp(t, 2 + par) + 4
def cinit(t): return 224 + 4 * t
V_C0, V_C1 = 244, 245
def vr(b, n=4): return f"v[{b}:{b+n-1}]"
def ar(b, n=4): return f"a[{b}:{b+n-1}]"
def oacc(dt, t): return t * 32 + dt * 4
def lacc(t): return 160 + 4 * t
A_ONES = 180
def abuf(i): return 184 + 4 * i
def bbuf(t): return [48, 52, 56, 60, 248][t]
def kbuf(kt, s): return 216 + 4 * (kt * 4 + s)

MF = "v_mfma_f32_16x16x32_bf16"
def mfma(d, a, b, c): return I(f"{MF} {d}, {a}, {b}, {c}")
SCALE = (128 ** -0.5) * 1.4426950408889634
import struct
def f2u(x): return struct.unpack("<I", struct.pack("<f", x))[0]

def NT(): return " nt" if OPT['kvnt'] else ""

stamp_id = [0]
def stamp(name):
    if not OPT['stamps']: return []
    i = stamp_id[0]; stamp_id[0] += 1
    STAMPS.append(name)
    return II(f"s_memrealtime s[66:67]",
              "s_waitcnt lgkmcnt(0)",
              f"v_mov_b32 v46, s66", f"v_mov_b32 v47, s67", f"v_mov_b32 v0, s65",
              f"global_store_dwordx2 v0, v[46:47], {S_STAMP} offset:{i*8}",
              f"s_memtime s[66:67]", "s_waitcnt lgkmcnt(0)", f"v_mov_b32 v46, s66", f"v_mov_b32 v47, s67",
              f"global_store_dwordx2 v0, v[46:47], {S_STAMP} offset:{128 + i*8}")
STAMPS = []

def setup():
    L = []
    A = lambda *x: L.extend(II(*x))
    A("s_cmp_ge_u32 s2, 256", "s_cbranch_scc1 L_main_end")
    A("s_load_dwordx8 s[68:75], s[0:1], 0", "s_load_dwordx2 s[76:77], s[0:1], 32",
      "s_load_dwordx8 s[80:87], s[0:1], 40", "s_load_dwordx2 s[88:89], s[0:1], 72",
      f"s_load_dwordx2 {S_WS}, s[0:1], 96", "s_load_dwordx4 s[96:99], s[0:1], 80")
    A("s_and_b32 s50, s2, 7", "s_lshr_b32 s51, s2, 3",
      f"s_lshr_b32 {S_BR}, s50, 2",
      "s_and_b32 s52, s50, 3", "s_lshl_b32 s52, s52, 2", "s_and_b32 s53, s51, 3", f"s_add_u32 {S_HP}, s52, s53",
      f"s_lshr_b32 {S_B}, s51, 2",
      f"s_lshl_b32 s52, {S_BR}, 3", f"s_add_u32 {S_CL}, s52, {S_B}")
    A("v_lshrrev_b32 v46, 6, v0", f"v_and_b32 {V_LANE}, 63, v0", "s_nop 0", f"v_readfirstlane_b32 {S_W}, v46", "s_nop 3")
    A(f"s_lshr_b32 {S_U}, {S_W}, 1", f"s_and_b32 {S_QH}, {S_W}, 1")
    A(lane_consts_q())
    A("s_waitcnt lgkmcnt(0)")
    A(f"s_cmp_eq_u32 {S_BR}, 1")
    for i in range(8): A(f"s_cselect_b32 s{68+i}, s{80+i}, s{68+i}")
    A("s_cselect_b32 s76, s88, s76", "s_cselect_b32 s77, s89, s77")
    def srd(dst, lo, hi, off_expr_regs, nrec):
        A(f"s_add_u32 s{dst}, s{lo}, s50", f"s_addc_u32 s{dst+1}, s{hi}, 0", f"s_and_b32 s{dst+1}, s{dst+1}, 0xffff")
        A(nrec, f"s_mov_b32 s{dst+3}, 0x20000")
    A(f"s_mul_i32 s50, {S_B}, 147456"); srd(4, 68, 69, None, "s_mov_b32 s6, 147456")
    A(f"s_lshl_b32 s50, {S_HP}, 9"); srd(8, 74, 75, None, "s_sub_u32 s10, 4194304, s50")
    A(f"s_lshl_b32 s50, {S_B}, 5", f"s_lshl_b32 s51, {S_HP}, 1", "s_add_u32 s50, s50, s51", f"s_add_u32 s50, s50, {S_U}", "s_lshl_b32 s50, s50, 17")
    srd(12, 70, 71, None, "s_mov_b32 s14, 131072")
    srd(16, 72, 73, None, "s_mov_b32 s18, 131072")
    A(f"s_lshl_b32 s50, {S_HP}, 18", f"s_lshl_b32 s51, {S_W}, 8", "s_add_u32 s50, s50, s51")
    A("s_sub_u32 s52, 262144, s51")
    srd(20, 76, 77, None, "s_mov_b32 s22, s52")
    A(f"s_lshl_b32 s50, {S_HP}, 18"); srd(84, 76, 77, None, "s_mov_b32 s86, 262144")
    A(f"s_mul_i32 s50, {S_CL}, 2359296"); srd(24, 58, 59, None, "s_mov_b32 s26, 2359296")
    if OPT['fused']:
        A(f"s_mul_i32 s50, {S_CL}, 4608", "s_add_u32 s50, s50, 0x3000000"); srd(68, 58, 59, None, "s_mov_b32 s70, 4608")
        A("s_mov_b32 s72, s98", "s_and_b32 s73, s99, 0xffff", "s_mov_b32 s74, 256", "s_mov_b32 s75, 0x20000")
        A("s_mov_b32 s80, s96", "s_and_b32 s81, s97, 0xffff", "s_mov_b32 s82, 2359296", "s_mov_b32 s83, 0x20000")
        A(f"s_lshl_b32 s50, {S_W}, 7", f"s_lshl_b32 s51, {S_HP}, 2", "s_add_u32 s50, s50, s51",
          f"v_lshlrev_b32 v46, 9, {V_LANE}", "v_add_u32 v46, s50, v46", "v_mov_b32 v47, 0",
          f"buffer_store_dword v47, v46, {SRD_F}, 0 offen sc1")
    if OPT['stamps']:
        A("s_add_u32 s62, s58, 0x8000000", "s_addc_u32 s63, s59, 0", "s_lshl_b32 s65, s2, 2", f"s_add_u32 s65, s65, {S_W}", "s_lshl_b32 s65, s65, 8")
    return L

def lane_consts_q():
    L = []; A = lambda *x: L.extend(II(*x))
    l = V_LANE; t0, t1, t2, t3, t4, t5 = [f"v{x}" for x in VT[:6]]
    A(f"v_lshrrev_b32 {t0}, 4, {l}", f"v_bfe_u32 {t1}, {l}, 2, 2", f"v_and_b32 {t2}, 3, {l}", f"v_and_b32 {t3}, 15, {l}")
    for n in range(4):
        A(f"v_add_u32 {t4}, {4*n}, {t0}", f"v_xor_b32 {t4}, {t4}, {t3}", f"v_lshlrev_b32 {t4}, 4, {t4}",
          f"v_lshl_add_u32 v{V_KD[n]}, {t0}, 8, {t4}")
    for n in range(2):
        A(f"v_add_u32 {t4}, {4*n}, {t0}", f"v_lshlrev_b32 {t4}, 1, {t4}", f"v_xor_b32 {t4}, {t4}, {t3}", f"v_lshlrev_b32 {t4}, 4, {t4}",
          f"v_lshl_add_u32 v{V_VD[n]}, {t0}, 8, {t4}")
    A(f"v_lshrrev_b32 {t4}, 5, {l}")
    A(f"v_bfe_u32 {t5}, {l}, 4, 1")
    for j in range(4):
        d = f"v{V_WQD[j]}"
        A(f"v_add_u32 {d}, {2*j}, {t4}",
          f"v_and_b32 v{VT[6]}, 3, {d}", f"v_lshlrev_b32 v{VT[6]}, 2, v{VT[6]}", f"v_xor_b32 v{VT[6]}, v{VT[6]}, {t3}", f"v_lshlrev_b32 v{VT[6]}, 4, v{VT[6]}",
          f"v_lshlrev_b32 {d}, 13, {d}", f"v_add_u32 {d}, {d}, v{VT[6]}", f"v_lshl_add_u32 {d}, {t5}, 8, {d}")
        if j: A(f"v_subrev_u32 {d}, {1024*j}, {d}")
    A(f"v_lshlrev_b32 {t4}, 1, {t0}", f"v_mov_b32 {t5}, 0x78", f"v_lshrrev_b32 {t4}, {t4}, {t5}", f"v_and_b32 {t4}, 3, {t4}",
      f"v_xor_b32 {t4}, {t4}, {t2}", f"v_lshlrev_b32 {t4}, 4, {t4}",
      f"v_lshrrev_b32 {t5}, 2, {l}", f"v_lshl_add_u32 {t4}, {t5}, 10, {t4}")
    for j in range(3):
        A(f"v_add_u32 v{V_XD[j]}, {j*16384 - 1024*j}, {t4}")
    A(f"v_lshl_add_u32 {t4}, {t0}, 3, {t1}", f"v_lshlrev_b32 {t4}, 9, {t4}", f"v_lshl_add_u32 {t4}, {t2}, 4, {t4}",
      f"s_lshl_b32 s50, {S_U}, 8", f"s_add_u32 s50, s50, {WB}", f"v_add_u32 {t4}, s50, {t4}")
    for s in range(4):
        A(f"v_xor_b32 {t5}, {s}, {t1}", f"v_lshl_add_u32 v{V_WQR[s]}, {t5}, 6, {t4}")
    A(f"v_lshrrev_b32 {t4}, 2, {t3}", f"v_lshlrev_b32 {t4}, 1, {t4}", f"v_mov_b32 {t5}, 0x78", f"v_lshrrev_b32 {t4}, {t4}, {t5}", f"v_and_b32 {t4}, 3, {t4}",
      f"v_xor_b32 {t4}, {t4}, {t0}", f"v_lshlrev_b32 {t4}, 4, {t4}", f"v_lshl_add_u32 {t4}, {t3}, 6, {t4}",
      f"s_lshl_b32 s50, {S_QH}, 12", f"s_add_u32 s50, s50, {XB}", f"v_add_u32 v{V_XR}, s50, {t4}")
    return L

def lane_consts_rest():
    L = []; A = lambda *x: L.extend(II(*x))
    l = V_LANE; t0, t1, t2, t3, t4, t5, t6 = [f"v{x}" for x in VT[:7]]
    A(f"v_lshrrev_b32 {t0}, 4, {l}", f"v_bfe_u32 {t1}, {l}, 2, 2", f"v_and_b32 {t2}, 3, {l}", f"v_and_b32 {t3}, 15, {l}")
    A(f"s_lshl_b32 s50, {S_U}, 13", f"s_add_u32 s51, s50, {KB}", f"v_lshlrev_b32 {t4}, 8, {t3}", f"v_add_u32 {t4}, s51, {t4}")
    for s in range(4):
        A(f"v_add_u32 {t5}, {4*s}, {t0}", f"v_xor_b32 {t5}, {t5}, {t3}", f"v_lshl_add_u32 v{V_KR[s]}, {t5}, 4, {t4}")
    A(f"v_lshrrev_b32 {t4}, 2, {l}", f"v_and_b32 {t5}, 7, {t4}", f"v_lshlrev_b32 {t5}, 1, {t5}",
      f"v_lshlrev_b32 {t4}, 8, {t4}", f"v_add_u32 {t4}, s50, {t4}",
      f"v_and_b32 {t6}, 1, {t2}", f"v_lshl_add_u32 {t4}, {t6}, 3, {t4}",
      f"v_lshrrev_b32 {t6}, 1, {t2}")
    for dt in range(8):
        d = f"v{V_VR[dt]}"
        A(f"v_add_u32 {d}, {2*dt}, {t6}", f"v_xor_b32 {d}, {d}, {t5}", f"v_lshl_add_u32 {d}, {d}, 4, {t4}")
    A(f"v_lshlrev_b32 {t4}, 2, {t0}", f"v_xor_b32 {t4}, {t4}, {t3}", f"v_lshlrev_b32 {t4}, 4, {t4}", f"v_lshl_add_u32 {t4}, {t0}, 10, {t4}")
    for n in range(4):
        A(f"v_add_u32 v{V_WOD[n]}, {n*3072}, {t4}")
    A(f"v_lshrrev_b32 {t4}, 2, {l}", f"v_lshlrev_b32 {t4}, 8, {t4}", f"v_lshl_add_u32 {t4}, {t2}, 4, {t4}",
      f"s_lshl_b32 s50, {S_W}, 13", f"s_add_u32 s50, s50, {WOB}", f"v_add_u32 {t4}, s50, {t4}")
    for cp in range(4):
        A(f"v_xor_b32 {t5}, {cp}, {t1}", f"v_lshl_add_u32 v{V_WOR[cp]}, {t5}, 6, {t4}")
    A(f"s_lshl_b32 s50, {S_QH}, 15", f"s_lshl_b32 s51, {S_U}, 12", "s_add_u32 s50, s50, s51",
      f"v_lshlrev_b32 v{V_OR}, 4, {l}", f"v_add_u32 v{V_OW}, s50, v{V_OR}", f"v_add_u32 v{V_OR8}, 0x10000, v{V_OR}")
    A(f"s_lshl_b32 s50, {S_HP}, 10", f"v_add_u32 v{V_PS}, s50, v{V_OR}")
    return L

def dma(voff, srd, soff, imm, nt=False):
    o = f" offset:{imm}" if imm else ""
    return I(f"buffer_load_dwordx4 v{voff}, {srd}, {soff} offen{o}{' nt' if nt else ''} lds")

def kv_group(kind, m0expr, soffreg):
    if kind == 'K':
        return [dma(V_KD[n], SRD_K, soffreg, n * 1024, OPT['kvnt']) for n in range(4)]
    return [dma(V_VD[n & 1], SRD_V, soffreg, n * 1024, OPT['kvnt']) for n in range(4)]

def kv_tile_full_unused(kind, j):
    L = []
    base = (KB + kphys(j)) if kind == 'K' else (VB + vphys(j))
    for gI in range(2):
        L += II(f"s_lshl_b32 s50, {S_U}, 13", f"s_add_u32 m0, s50, {base + gI*4096}", f"s_mov_b32 s51, {j*8192 + gI*4096}")
        L += kv_group(kind, None, "s51")
    return L

def stage_setup_scalar():
    return II(f"s_lshr_b32 s50, s2, 3", "s_and_b32 s51, s50, 3", "s_lshl_b32 s51, s51, 2", "s_lshr_b32 s50, s50, 2", "s_lshl_b32 s50, s50, 1",
              f"s_add_u32 s52, s50, s51", f"s_and_b32 s52, s52, {15 if OPT['rot'] else 0}",
              f"s_lshl_b32 s50, s52, 6", f"s_lshl_b32 s51, {S_W}, 15", f"s_add_u32 {S_SOFFX}, s50, s51",
              f"s_lshl_b32 s50, s52, 18", f"s_lshl_b32 s51, {S_W}, 16", f"s_add_u32 {S_SOFFW0}, s50, s51",
              f"s_lshl_b32 s50, {S_W}, 12", f"s_add_u32 {S_BW}, s50, {WB}",
              f"s_lshl_b32 s50, {S_W}, 11", f"s_add_u32 {S_BX}, s50, {XB}",
              f"s_mov_b32 {S_MW}, 0", f"s_mov_b32 {S_MX}, 0",
              f"s_lshl_b32 {S_TQ}, {S_QH}, 12",
              f"s_lshl_b32 s50, {S_U}, 13", f"s_add_u32 s50, s50, {S_TQ}", f"s_add_u32 {S_MK}, s50, {KB}", f"s_add_u32 {S_MV}, s50, {VB}")

def stage_dma_list():
    seq = []
    if OPT.get('x_nodma'): return [([I('s_mov_b32 m0, s35')], I('s_nop 0'))]
    if OPT.get('x_nox'):
        seq.append(([I(f"s_mov_b32 m0, {S_MW}")], dma(V_WQD[0], SRD_WQ, S_SOFFW0, 0)))
        for j in range(1, 4): seq.append(([], dma(V_WQD[j], SRD_WQ, S_SOFFW0, j * 1024)))
        return seq
    if OPT.get('x_now'):
        seq.append(([I(f"s_mov_b32 m0, {S_MX}")], dma(V_XD[0], SRD_X, S_SOFFX, 0)))
        for j in range(1, 3): seq.append(([], dma(V_XD[j], SRD_X, S_SOFFX, j * 1024)))
        return seq
    seq.append(([I(f"s_add_u32 m0, {S_MW}, {S_BW}")], dma(V_WQD[0], SRD_WQ, S_SOFFW0, 0, OPT['wnt'])))
    for j in range(1, 4): seq.append(([], dma(V_WQD[j], SRD_WQ, S_SOFFW0, j * 1024, OPT['wnt'])))
    seq.append(([I(f"s_add_u32 m0, {S_MX}, {S_BX}")], dma(V_XD[0], SRD_X, S_SOFFX, 0, OPT['xnt'])))
    for j in range(1, 3): seq.append(([], dma(V_XD[j], SRD_X, S_SOFFX, j * 1024, OPT['xnt'])))
    return seq

def place_dma(S, seq, gaps):
    k = 0
    last = None
    for e in seq:
        if e[0]:
            for p in e[0]: S.put(gaps[k], p)
            k += 1
        S.put(gaps[k], e[1]); last = gaps[k]
        if len(e) > 2:
            for p in e[2]: S.put(gaps[k] + 1, p)
        k += 1
    return last

def stage_advance_w():
    return II(f"s_add_u32 {S_SOFFW0}, {S_SOFFW0}, 262144", f"s_and_b32 {S_SOFFW0}, {S_SOFFW0}, 0x3fffff",
              f"s_add_u32 {S_MW}, {S_MW}, 16384", f"s_and_b32 {S_MW}, {S_MW}, 0xffff")
def stage_advance_x():
    return II(f"s_add_u32 {S_SOFFX}, {S_SOFFX}, 64", f"s_and_b32 {S_SOFFX}, {S_SOFFX}, 0xfffffbff",
              f"s_add_u32 {S_MX}, {S_MX}, 9216", f"s_cmp_eq_u32 {S_MX}, 36864", f"s_cselect_b32 {S_MX}, 0, {S_MX}")
def stage_advance(): return stage_advance_w() + stage_advance_x()

def straight(seq):
    L = []
    for e in seq:
        L += e[0]
        if e[0]: L += II("s_nop 0")
        L.append(e[1])
        if len(e) > 2: L += e[2]
    return L

def stage_issue_straight(advance=True):
    return straight(stage_dma_list()) + (stage_advance() if advance else [])

def wq_read(dt, h2):
    if OPT.get('x_noread'): return I('s_nop 0')
    if OPT.get('x_fakewq'): return I(f"ds_read_b64_tr_b16 {ar(abuf(dt) + 2*h2, 2)}, v{V_VR[dt]} offset:{16384 + h2*4096}")
    s, hf = dt >> 1, dt & 1
    b = abuf(dt) + 2 * h2
    off = hf * 8 + h2 * 2048
    return I(f"ds_read_b64_tr_b16 {ar(b,2)}, v{V_WQR[s]}" + (f" offset:{off}" if off else ""))
def x_read(t):
    if OPT.get('x_noread'): return I('s_nop 0')
    return I(f"ds_read_b128 {vr(bbuf(t))}, v{V_XR}" + (f" offset:{t*1024}" if t else ""))
def q_mfma(dt, t):
    if OPT.get('x_t4') and t == 4: return I("s_nop 3")
    if OPT.get('x_t45') and t == 4 and dt >= 4: return I("s_nop 3")
    return mfma(vr(qacc(dt, t)), ar(abuf(dt)), vr(bbuf(t)), vr(qacc(dt, t)))

def half_group(kind, j):
    if kind == 'K':
        pre = II(f"s_add_u32 m0, {S_MK}, {kphys(j)}", f"s_add_u32 s51, {S_TQ}, {j*8192}")
    else:
        pre = II(f"s_add_u32 m0, {S_MV}, {vphys(j)}", f"s_add_u32 s51, {S_TQ}, {j*8192}")
    g = kv_group(kind, None, "s51")
    return [(pre, g[0])] + [([], x) for x in g[1:]]

def put_dmas(S, seq, gaps):
    prev = -1
    for e, g in zip(seq, gaps):
        if e[0]:
            assert g - 1 > prev or prev < 0, (g, prev)
            for p in e[0]: S.put(g - 1, p)
        S.put(g, e[1])
        if len(e) > 2:
            for p in e[2]: S.put(g + 1, p)
        prev = g
    assert len(seq) <= len(gaps)

QTAIL = (4, 5, 6, 7)
def q_tail(): return [q_mfma(dt, t) for t in range(5) for dt in QTAIL]
def q_body(with_dma, extra_dma=None, last_wait=None, loopctl=False):
    ms = q_tail() + [q_mfma(dt, t) for t in range(5) for dt in range(4)]
    S = Sched(ms)
    a = lambda dt, h: wq_read(dt, h)
    plan = {0: a(0,0), 1: a(0,1), 2: a(1,0), 3: a(1,1), 4: x_read(0), 5: a(2,0), 7: a(2,1), 8: x_read(1), 9: a(3,0), 11: a(3,1),
            12: x_read(2), 16: x_read(3), 20: x_read(4), 21: a(4,0), 22: a(4,1), 23: a(5,0), 24: a(5,1), 25: a(6,0), 27: a(6,1), 28: a(7,0), 29: a(7,1)}
    for g, ins in plan.items(): S.put(g, ins)
    S.put(13, f"s_cmp_eq_u32 {S_RSLOT}, 3", f"s_cselect_b32 {S_DW}, s90, s91", f"s_cselect_b32 {S_DX}, s92, s93")
    S.put(15, f"s_add_u32 {S_RSLOT}, {S_RSLOT}, 1", f"s_and_b32 {S_RSLOT}, {S_RSLOT}, 3")
    S.spread([f"v_add_u32 v{V_WQR[0]}, {S_DW}, v{V_WQR[0]}", f"v_add_u32 v{V_WQR[1]}, {S_DW}, v{V_WQR[1]}"], [31, 31])
    S.spread([f"v_add_u32 v{V_WQR[2]}, {S_DW}, v{V_WQR[2]}", f"v_add_u32 v{V_WQR[3]}, {S_DW}, v{V_WQR[3]}"], [32, 32])
    S.put(33, f"v_add_u32 v{V_XR}, {S_DX}, v{V_XR}")
    if with_dma:
        put_dmas(S, stage_dma_list(), [6, 10, 14, 18, 26, 30, 34])
        w = stage_advance_w()
        S.put(19, w[0], w[1]); S.put(19, w[2]); S.put(22, w[3])
        S.put(35, stage_advance_x()[:2]); S.put(38, stage_advance_x()[2:])
    if extra_dma:
        put_dmas(S, extra_dma, [6, 10, 14, 18, 26, 30, 34, 36][:len(extra_dma)])
    endw = []
    if loopctl:
        b0 = OPT['bursts'][0]
        S.put(17, f"s_sub_u32 s50, {S_CNT}, {b0}", "s_cmp_lt_u32 s50, 9", "s_cselect_b64 vcc, -1, 0")
        S.put(21, f"s_add_u32 {S_CNT}, {S_CNT}, 1")
        S.put(35, f"s_cmp_eq_u32 {S_CNT}, s49")
        S.g[35].append(I("s_cbranch_scc1 L_q_burst")); S.g[35].append(I("L_q_burst_done:"))
        if OPT.get('x_novm'):
            S.put(36, tr_mark(), "s_waitcnt lgkmcnt(0)", "L_q_wd:", tr_commit())
        else:
            S.put(36, tr_mark(), "s_waitcnt vmcnt(18) lgkmcnt(0)", "s_cbranch_vccz L_q_w14", "L_q_wd:", tr_commit())
        if not OPT.get('x_nobar'): S.put(37, "s_barrier")
        S.put(39, f"s_cmp_lt_u32 {S_CNT}, 13")
    elif last_wait is not None:
        S.put(37, tr_mark(), f"s_waitcnt vmcnt({last_wait}) lgkmcnt(0)", tr_commit())
        S.put(38, "s_barrier")
    seq = S.flat()
    seq, pend = lgkm_waits(seq)
    assert not pend
    if OPT['verbose']: print(S.report(f"q_body dma={with_dma}"))
    return seq

def tr_mark():
    return [Raw("s_memtime s[100:101]")] if OPT.get('trace') else []
def tr_commit():
    return [Raw("s_mov_b32 s95, m0\n  s_mov_b32 m0, s94\n  s_nop 0\n  v_writelane_b32 v0, s100, m0\n  s_mov_b32 m0, s95\n  s_add_u32 s94, s94, 1")] if OPT.get('trace') else []
def tr_dump():
    if not OPT.get('trace'): return []
    return II("s_add_u32 s66, s58, 0x9000000", "s_addc_u32 s67, s59, 0", "s_lshl_b32 s50, s2, 2", f"s_add_u32 s50, s50, {S_W}", "s_lshl_b32 s50, s50, 8",
              f"v_lshlrev_b32 v253, 2, {V_LANE}", "v_add_u32 v253, s50, v253", "global_store_dword v253, v0, s[66:67]")

def zero_init():
    L = II("v_mov_b32 v244, 0", "v_mov_b32 v245, 0", "v_mov_b32 v246, 0", "v_mov_b32 v247, 0", "s_nop 1")
    for r in range(RB, RB + 160, 16): L += II(f"v_mfma_f32_32x32x16_bf16 v[{r}:{r+15}], v[244:247], v[244:247], 0")
    for r in range(0, 256, 16): L += II(f"v_mfma_f32_32x32x16_bf16 a[{r}:{r+15}], v[244:247], v[244:247], 0")
    return L

def phase_q():
    L = []; A = lambda *x: L.extend(II(*x))
    nst = 2 if OPT['stamps'] else 0
    A(stage_setup_scalar(), stage_issue_straight())
    A(stamp("q_issued"))
    A(zero_init())
    A(lane_consts_rest())
    A(f"s_mov_b32 {S_RSLOT}, 0", f"s_mov_b32 {S_CNT}, 0")
    if OPT.get('trace'): A("s_mov_b32 s94, 1", "s_memtime s[100:101]", "s_waitcnt lgkmcnt(0)", "v_writelane_b32 v0, s100, 0")
    A("s_mov_b32 s90, 0xffff4000", "s_mov_b32 s91, 16384", f"s_mov_b32 s92, {hex((-3*9216) & 0xffffffff)}", "s_mov_b32 s93, 9216")
    A(f"v_mov_b32 v{VT[0]}, 0x3f803f80")
    for r in range(4): A(f"v_accvgpr_write_b32 a{A_ONES + r}, v{VT[0]}")
    for t in range(5):
        for k in range(4): A(f"v_mov_b32 v{bbuf(t)+k}, 0")
    A(f"s_mov_b32 s49, {OPT['bursts'][0] + 1}")
    A(stage_issue_straight(), stage_issue_straight())
    A(f"s_waitcnt vmcnt(14)", "s_barrier")
    if OPT['fused']:
        A(f"s_lshl_b32 s50, {S_CL}, 2", f"s_lshl_b32 s51, {S_W}, 14", "s_add_u32 s50, s50, s51",
          f"v_lshlrev_b32 v46, 8, {V_LANE}", "v_add_u32 v46, s50, v46", "v_mov_b32 v47, 1",
          f"buffer_atomic_add v47, v46, {SRD_D}, 0 offen sc1")
    A(stamp("q_start"))
    body = q_body(True, loopctl=True)
    body, n = hazards(body, history=body[-24:])
    A(".p2align 6", "L_q_loop:"); L.extend(body)
    b0, b1, b2 = OPT['bursts']
    assert b1 - b0 == 3 and b2 - b1 == 3
    tiles = [('K', 0), ('K', 1), ('V', 0)]
    OOL = II("L_q_burst:", f"s_add_u32 s49, s49, 3", f"s_cmp_eq_u32 {S_CNT}, {b1 + 1}", "s_cbranch_scc1 L_q_burst1",
             f"s_cmp_eq_u32 {S_CNT}, {b2 + 1}", "s_cbranch_scc1 L_q_burst2")
    for i in range(3):
        OOL += II(f"L_q_burst{i}:") + (II("s_mov_b32 s49, 99") if i == 2 else []) + straight(half_group(*tiles[i])) + II("s_branch L_q_burst_done")
    OOL += II("L_q_w14:", "s_waitcnt vmcnt(14)", "s_branch L_q_wd")
    A("s_cbranch_scc1 L_q_loop")
    b, n = hazards(q_body(False, extra_dma=half_group('V', 1), last_wait=11), history=body[-24:]); L.extend(b)
    b, n = hazards(q_body(False, extra_dma=half_group('K', 2) + half_group('V', 2), last_wait=12), history=b[-24:]); L.extend(b)
    b, n = hazards(q_body(False, last_wait=12), history=b[-24:]); L.extend(b)
    A("s_branch L_q_after_ool")
    L.extend(OOL)
    A("L_q_after_ool:")
    A(stamp("q_loop_done"))
    return L

def q_scale(ss):
    return [I(f"v_pk_mul_f32 {vr(grp(t,s)+2*k,2)}, {vr(grp(t,s)+2*k,2)}, {vr(V_C0,2)}") for s in ss for t in range(5) for k in range(4)]
def q_cvt(ss):
    return [I(f"v_cvt_pk_bf16_f32 v{grp(t,s)+k}, v{grp(t,s)+2*k}, v{grp(t,s)+2*k+1}") for s in ss for t in range(5) for k in range(4)]

def transition():
    L = []; A = lambda *x: L.extend(II(*x))
    A(f"s_add_u32 {S_SOFFK}, {S_TQ}, {4*8192}", f"s_add_u32 {S_SOFFV}, {S_TQ}, {3*8192}")
    A(f"v_mov_b32 v{V_C0}, {hex(f2u(SCALE))}", f"v_mov_b32 v{V_C1}, {hex(f2u(SCALE))}")
    A(straight(half_group('K', 3)))
    seq = [k_read(kt, s, 0) for kt in range(2) for s in range(4)]
    seq += II("s_nop 3") + q_scale((0, 1))
    S = Sched(q_tail())
    S.spread(q_cvt((0, 1)), [i // 2 for i in range(40)])
    seq += S.flat()
    seq += II("s_nop 7") + q_scale((2, 3))
    qk = lambda ss: [qk_mfma(kt, s, t, lambda t: "0") for s in ss for kt in range(2) for t in range(5)]
    S = Sched(qk((0, 1)))
    S.spread(q_cvt((2, 3)), [i // 2 for i in range(40)])
    seq += S.flat()
    seq += qk((2, 3))
    seq, _ = lgkm_waits(seq, final_zero=True)
    seq, n = hazards(seq); L.extend(seq)
    A("s_barrier")
    A(stamp("qk0_done"))
    E = II("s_nop 3")
    T = [VT[0] + 0, VT[0] + 1, 50, 51, 53]
    T = [2, 3, 4, 5, 6]
    U = [7, 8, 9, 10, 11]
    ab = [(Sreg(0, t), Sreg(1, t)) for t in range(5)]
    for t, (a, b) in enumerate(ab): E += II(f"v_max3_f32 v{T[t]}, v{a}, v{a+1}, v{a+2}")
    for t, (a, b) in enumerate(ab): E += II(f"v_max3_f32 v{T[t]}, v{T[t]}, v{a+3}, v{b}")
    for t, (a, b) in enumerate(ab): E += II(f"v_max3_f32 v{T[t]}, v{T[t]}, v{b+1}, v{b+2}")
    for t, (a, b) in enumerate(ab): E += II(f"v_max_f32 v{T[t]}, v{T[t]}, v{b+3}")
    for sw in ("v_permlane32_swap_b32", "v_permlane16_swap_b32"):
        for t in range(5): E += II(f"v_mov_b32 v{U[t]}, v{T[t]}")
        for t in range(5): E += II(f"{sw} v{T[t]}, v{U[t]}")
        for t in range(5): E += II(f"v_max_f32 v{T[t]}, v{T[t]}, v{U[t]}")
    for t in range(5):
        for k in range(4): E += II(f"v_sub_f32 v{cinit(t)+k}, 0, v{T[t]}")
    for t, (a, b) in enumerate(ab):
        for base in (a, b):
            for k in range(4): E += II(f"v_sub_f32 v{base+k}, v{base+k}, v{T[t]}")
    for t, (a, b) in enumerate(ab):
        for base in (a, b):
            for k in range(4): E += II(f"v_exp_f32 v{base+k}, v{base+k}")
    for t in range(5):
        for k in range(4): E += II(f"v_mov_b32 v{Preg(1,t)+k}, 0")
    E, n = hazards(E); L.extend(E)
    return L

def k_read(kt, s, slotk):
    off = kphys(slotk) + kt * 4096
    return I(f"ds_read_b128 {ar(kbuf(kt, s))}, v{V_KR[s]}" + (f" offset:{off}" if off else ""))
def v_read(dt, h, slotv):
    off = vphys(slotv) + h * 4096
    return I(f"ds_read_b64_tr_b16 {ar(abuf(dt) + 2*h, 2)}, v{V_VR[dt]}" + (f" offset:{off}" if off else ""))
def qk_mfma(kt, s, t, first_c):
    c = first_c(t) if s == 0 else vr(Sreg(kt, t))
    return mfma(vr(Sreg(kt, t)), ar(kbuf(kt, s)), vr(qfrag(t, s)), c)
def pv_mfma(dt, t, par):
    return mfma(ar(oacc(dt, t)), ar(abuf(dt)), vr(Preg(par, t)), ar(oacc(dt, t)))
def rs_mfma(t, par):
    return mfma(ar(lacc(t)), ar(A_ONES), vr(Preg(par, t)), ar(lacc(t)))
def cvts(par):
    out = []
    for kt in range(2):
        for t in range(5):
            s = Sreg(kt, t); p = Preg(par, t) + 2 * kt
            out.append(I(f"v_cvt_pk_bf16_f32 v{p}, v{s}, v{s+1}"))
            out.append(I(f"v_cvt_pk_bf16_f32 v{p+1}, v{s+2}, v{s+3}"))
    return out
def exps(kt):
    return [I(f"v_exp_f32 v{Sreg(kt,t)+i}, v{Sreg(kt,t)+i}") for t in range(5) for i in range(4)]

def att_dma(j, dyn=False):
    seq = []
    if j + 4 <= 15:
        pre = II(f"s_add_u32 m0, {S_MK}, {kphys(j + 4)}")
        g = kv_group('K', None, S_SOFFK)
        seq += [(pre, g[0])] + [([], x) for x in g[1:]]
        seq[-1] = (seq[-1][0], seq[-1][1], II(f"s_add_u32 {S_SOFFK}, {S_SOFFK}, 8192"))
    if j + 3 <= 15:
        pre = II(f"s_add_u32 m0, {S_MV}, {vphys(j + 3)}")
        g = kv_group('V', None, S_SOFFV)
        s2 = [(pre, g[0])] + [([], x) for x in g[1:]]
        s2[-1] = (s2[-1][0], s2[-1][1], II(f"s_add_u32 {S_SOFFV}, {S_SOFFV}, 8192"))
        seq += s2
    return seq

def wo_dma(ks, slot_base_imm):
    seq = []
    for gI in range(2):
        pre = II(f"s_lshl_b32 s50, {S_W}, 13", f"s_add_u32 m0, s50, {slot_base_imm + gI*4096}", f"s_mov_b32 s51, {ks*32768 + gI*16384}")
        for n in range(4):
            seq.append((pre if n == 0 else [], dma(V_WOD[n], SRD_WO, "s51", n * 1024, OPT["wont"])))
    return seq

def att_body(j, vmwait, extra_dma=None):
    par_old, par_new = (j - 1) & 1, j & 1
    ms = [pv_mfma(dt, t, par_old) for dt in (5, 6, 7) for t in range(5)] + [rs_mfma(t, par_old) for t in range(5)]
    ms += [qk_mfma(kt, s, t, lambda t: vr(cinit(t))) for kt in range(2) for s in range(4) for t in range(5)]
    ms += [pv_mfma(dt, t, par_new) for dt in range(5) for t in range(5)]
    S = Sched(ms)
    cv = cvts(par_new)
    S.spread(cv, [1, 1, 3, 3, 6, 6, 8, 8, 11, 11, 13, 13, 16, 16, 18, 18, 21, 21, 23, 23])
    S.spread([k_read(kt, s, j + 1) for kt in range(2) for s in range(4)], [0, 2, 5, 7, 10, 12, 15, 17])
    vr_ = [v_read(dt, h, j) for dt in range(8) for h in range(2)]
    S.spread(vr_, [20, 22, 25, 26, 27, 28, 30, 31, 32, 33, 35, 36, 37, 38, 40, 61])
    d = att_dma(j) + (extra_dma or [])
    if j + 4 > 15 and j + 3 <= 15 and not extra_dma:
        put_dmas(S, d, [24, 29, 34, 39])
    else:
        put_dmas(S, d, [4, 9, 14, 19, 24, 29, 34, 39])
    S.spread(exps(0), list(range(41, 61)))
    S.spread(exps(1), list(range(62, 82)))
    seq = S.flat()
    seq, pend = lgkm_waits(seq)
    seq += tr_mark() + II(f"s_waitcnt vmcnt({vmwait}) lgkmcnt(0)") + tr_commit() + II("s_barrier")
    if OPT['verbose']: print(S.report(f"att_body {j}"))
    return seq

WO1 = [192, 200, 208, 216, 224, 228, 232, 236]
def wofrag(ks, m, n=4, off=0):
    if ks == 0: return ar(216 + 4 * m + off, n)
    if ks == 1: return vr(WO1[m] + off, n)
    return ar((ks - 2) * 32 + 4 * m + off, n)
def wo_read(ks, m, h):
    cp, hf = m >> 1, m & 1
    off = (32768 if (ks & 1) == 0 else 0) + hf * 8 + h * 4096
    return I(f"ds_read_b64_tr_b16 {wofrag(ks, m, 2, 2*h)}, v{V_WOR[cp]}" + (f" offset:{off}" if off else ""))

def wo_prefetch():
    return II(f"v_lshrrev_b32 v46, 3, {V_LANE}", f"v_and_b32 v47, 7, {V_LANE}", "v_lshlrev_b32 v46, 10, v46", "v_lshl_add_u32 v46, v47, 7, v46",
              f"s_lshl_b32 s50, {S_B}, 15", f"s_lshl_b32 s51, {S_W}, 13", "s_add_u32 s50, s50, s51",
              "v_add_u32 v46, s50, v46",
              f"buffer_load_dword v47, v46, s[84:87], 0 offen" + (" nt" if OPT['pfnt'] else ""))

def attention():
    L = []; A = lambda *x: L.extend(II(*x))
    L += transition()
    A(stamp("att_start"))
    A(f"s_mov_b32 {S_CNT}, 0")
    bodies = [att_body(j, 16) for j in range(4)]
    hist = bodies[3][-24:]
    A(".p2align 6", "L_att_loop:")
    for b in bodies:
        b2, n = hazards(b, history=hist); L.extend(b2); hist = b2[-24:]
    if OPT['pf'] >= 0:
        A(f"s_cmp_eq_u32 {S_CNT}, {OPT['pf']}", "s_cbranch_scc0 L_att_nopf", wo_prefetch(), "L_att_nopf:")
    A(f"s_add_u32 {S_CNT}, {S_CNT}, 1", f"s_cmp_lt_u32 {S_CNT}, 3", "s_cbranch_scc1 L_att_loop")
    b, n = hazards(att_body(12, 12), history=hist); L.extend(b); hist = b[-24:]
    b, n = hazards(att_body(13, 12, extra_dma=wo_dma(0, WOA)), history=hist); L.extend(b); hist = b[-24:]
    b, n = hazards(att_body(14, 16, extra_dma=wo_dma(1, WOB)), history=hist); L.extend(b); hist = b[-24:]
    A(stamp("att_loop_done"))
    ms = [pv_mfma(dt, t, 0) for dt in (5, 6, 7) for t in range(5)] + [rs_mfma(t, 0) for t in range(5)]
    ms += [pv_mfma(dt, t, 1) for dt in range(8) for t in range(5)] + [rs_mfma(t, 1) for t in range(5)]
    S = Sched(ms)
    S.spread(cvts(1), list(range(0, 20)))
    S.spread([v_read(dt, h, 15) for dt in range(5) for h in range(2)], list(range(0, 10)))
    S.spread([v_read(dt, h, 15) for dt in (5, 6, 7) for h in range(2)], list(range(15, 21)))
    S.put(20, "s_waitcnt vmcnt(8)")
    S.spread([wo_read(0, m, h) for m in range(8) for h in range(2)], [21 + i // 2 for i in range(16)])
    S.put(28, "s_waitcnt vmcnt(0)")
    S.spread([wo_read(1, m, h) for m in range(8) for h in range(2)], [29 + i // 2 for i in range(16)])
    S.put(38, "s_waitcnt lgkmcnt(0)")
    put_dmas(S, wo_dma(2, WOA), [40, 43, 46, 49, 53, 56, 59, 62])
    seq, pend = lgkm_waits(S.flat(), final_zero=True)
    seq, n = hazards(seq, history=hist); L.extend(seq)
    A("s_barrier")
    A("s_nop 3")
    A(stamp("att_done"))
    return L

def wo_dma_t(ks):
    d = wo_dma(ks, WOA if (ks & 1) == 0 else WOB)
    for e in d: e[1].tag = f"wo{ks}"
    return d
def wo_reads(ks): return [wo_read(ks, m, h) for m in range(8) for h in range(2)]

LFLAG = 90112

def o_epilogue():
    E = []
    tl = VT[0]; rc = VT[2]
    d3, d4, d5 = wo_dma_t(3), wo_dma_t(4), wo_dma_t(5)
    def emit_dma(e):
        return e[0] + II("s_nop 0") * (1 if e[0] else 0) + [e[1]]
    nfr = 0
    for t in range(5):
        E += II(f"v_accvgpr_read_b32 v{tl}, a{lacc(t)}", f"v_rcp_f32 v{rc}, v{tl}", "s_nop 0", f"v_mov_b32 v{rc+1}, v{rc}")
        if t == 0: E += II(f"v_mov_b32 v{VT[1]}, v{tl}")
        else: E += II(f"v_max_f32 v{VT[1]}, v{VT[1]}, v{tl}")
        for ks in range(4):
            mid = []
            if nfr < 8: mid += emit_dma(d3[nfr])
            if 8 <= nfr < 16: mid += emit_dma(d4[nfr - 8])
            if nfr >= 16: mid += emit_dma(d5[2 * (nfr - 16)]) + emit_dma(d5[2 * (nfr - 16) + 1])
            rd = []
            if 4 <= nfr < 8:
                if nfr == 4: rd += [VmNeed("wo2")]
                rd += wo_reads(2)[4 * (nfr - 4): 4 * (nfr - 4) + 4]
            if 12 <= nfr < 16:
                if nfr == 12: rd += [VmNeed("wo3")]
                rd += wo_reads(3)[4 * (nfr - 12): 4 * (nfr - 12) + 4]
            if nfr in (8, 16): E += II("s_waitcnt lgkmcnt(0)")
            E += rd
            for h in range(2):
                for k in range(4):
                    E += II(f"v_accvgpr_read_b32 v{52 + 4*h + k}, a{oacc(2*ks + h, t) + k}")
            E += mid
            for k in range(4): E += II(f"v_pk_mul_f32 {vr(52+2*k,2)}, {vr(52+2*k,2)}, {vr(rc,2)}")
            for k in range(4): E += II(f"v_cvt_pk_bf16_f32 v{60+k}, v{52+2*k}, v{53+2*k}")
            E += II(f"ds_write_b128 v{V_OW}, {vr(60)} offset:{(t*8+ks)*1024}")
            nfr += 1
    E, q = vm_waits(E, ["wo2"] * 8)
    E, pend = lgkm_waits(E, final_zero=True)
    E, n = hazards(E)
    return E + II("s_barrier"), q

def o_read(dst, t, ks):
    if t < 8: return I(f"ds_read_b128 {vr(dst)}, v{V_OR} offset:{(t*8+ks)*1024}")
    return I(f"ds_read_b128 {vr(dst)}, v{V_OR8} offset:{ks*1024}")
def pstore(src, t, cp):
    return (II(f"s_add_u32 s51, {S_SOFFP}, {(cp*9 + t)*16384}"),
            I(f"buffer_store_dwordx4 {vr(src)}, v{V_PS}, {SRD_P}, s51 offen {OPT['pst']}"))

NP1 = 2
def acc1(t, m): return 64 + (t * 8 + m) * 4
def acc2(t, m): return 128 + ((t & 1) * 8 + m) * 4
def bfr1(par, t): return 2 + (par * 4 + t) * 4
STG = [48, 52, 56, 60]

def tile_epilogue(accf, t, k0):
    out = []
    for cp in range(4):
        a0, a1 = accf(t, 2*cp), accf(t, 2*cp + 1)
        d = STG[(k0 + cp) & 3]
        cv = II(f"v_cvt_pk_bf16_f32 v{d}, v{a0}, v{a0+1}", f"v_cvt_pk_bf16_f32 v{d+1}, v{a0+2}, v{a0+3}",
                f"v_cvt_pk_bf16_f32 v{d+2}, v{a1}, v{a1+1}", f"v_cvt_pk_bf16_f32 v{d+3}, v{a1+2}, v{a1+3}")
        pre, st = pstore(d, t, cp)
        st.tag = f"st{t}"
        out.append((cv, (pre, st)))
    return out

def out_proj(queue):
    L = []; A = lambda *x: L.extend(II(*x))
    A(f"s_mul_i32 {S_SOFFP}, {S_W}, {4*9*16384}")
    G = 8 * NP1
    ms = [mfma(vr(acc1(t, m)), wofrag(ks, m), vr(bfr1(ks & 1, t)), ("0" if ks == 0 else vr(acc1(t, m)))) for ks in range(8) for m in range(8) for t in range(NP1)]
    bt = lambda ks: 2 + 4 * ks
    P1 = len(ms)
    for t in range(NP1, 9):
        ms += [mfma(vr(acc2(t, m)), wofrag(ks, m), vr(bt(ks)), ("0" if ks == 0 else vr(acc2(t, m)))) for ks in range(8) for m in range(8)]
    S = Sched(ms)
    pre = [o_read(bfr1(0, t), t, 0) for t in range(NP1)]
    def reads(ks, g0): S.spread(wo_reads(ks), [g0 + i // 2 for i in range(16)])
    def dmas(ks, g0, step=4): put_dmas(S, wo_dma_t(ks), [g0 + step * i for i in range(8)])
    def put_free(ins, g0):
        g = g0
        while S.cost(g) + COST[ins.kind] > 8: g += 1
        S.put(g, ins); return g
    S.put(0, VmNeed("wo4")); reads(4, 0)
    S.put(9, "s_waitcnt lgkmcnt(0)"); dmas(6, 11, 3)
    S.put(33, VmNeed("wo5")); reads(5, 33)
    S.put(42, "s_waitcnt lgkmcnt(0)"); dmas(7, 44, 3)
    S.put(84, VmNeed("wo6")); reads(6, 84)
    S.put(100, VmNeed("wo7")); reads(7, 100)
    for ks in range(7):
        g = ks * G + (1 if ks else 8)
        for t in range(NP1):
            g = put_free(o_read(bfr1((ks + 1) & 1, t), t, ks + 1), g) + 1
        assert g <= (ks + 1) * G - 3, (ks, g)
    g = 6 * G + 4
    for ks in (2, 3, 6, 7): g = put_free(o_read(bt(ks), NP1, ks), g) + 1
    g = 7 * G + 1
    for ks in (0, 1): g = put_free(o_read(bt(ks), NP1, ks), g) + 1
    base = P1
    for ks in (4, 5): put_free(o_read(bt(ks), NP1, ks), base + 1)
    def epi(t, accf, g0, stride):
        for cp, (cv, (spre, st)) in enumerate(tile_epilogue(accf, t, 0)):
            g = g0 + cp * stride
            S.spread(cv, [g, g, g + 1, g + 1])
            for p in spre: S.put(g + 1, p)
            S.put(g + 2, st)
    epi(0, acc1, base + 4, 7); epi(1, acc1, base + 32, 7)
    for t in range(NP1, 9):
        b = P1 + (t - NP1) * 64
        if t > NP1: epi(t - 1, acc2, b + 6, 12)
        if t < 8:
            for ks in range(8):
                g = b + 8 * ks + 8
                if g >= b + 64: g = b + 64 + 1
                put_free(o_read(bt(ks), t + 1, ks), g)
    if OPT['fused']:
        b = P1 + (8 - NP1) * 64
        S.put(b + 1, f"s_lshl_b32 s50, {S_CL}, 2")
        S.spread([f"v_lshlrev_b32 v46, 8, {V_LANE}", "v_add_u32 v46, s50, v46"], [b + 2, b + 3])
        ld = I(f"buffer_load_dword v47, v46, {SRD_D}, 0 offen sc1"); ld.tag = "cnt"
        S.put(b + 4, ld)
    seq = pre + S.flat()
    tail = II("s_nop 7")
    for cp, (cv, (spre, st)) in enumerate(tile_epilogue(acc2, 8, 0)):
        tail += cv + spre + [st]
    if OPT['fused']:
        tail += II(f"s_lshl_b32 s50, {S_W}, 7", f"s_lshl_b32 s51, {S_HP}, 2", "s_add_u32 s50, s50, s51",
                   f"v_lshlrev_b32 v44, 13, {V_LANE}", "v_add_u32 v44, s50, v44", "v_mov_b32 v43, 1")
        for t in range(9):
            fs = I(f"buffer_store_dword v43, v44, {SRD_F}, s52 offen sc1"); fs.tag = "fl"
            tail += II(f"s_mov_b32 s52, {t*512}") + [VmNeed(f"st{t}"), fs]
    seq, q = vm_waits(seq + tail, queue)
    seq, pend = lgkm_waits(seq)
    seq, n = hazards(seq)
    if OPT['verbose']: print(S.report("out_proj"), "nops", n)
    L += seq
    return L, q

SPIN = 1 << 22
def reduce_phase():
    L = []; A = lambda *x: L.extend(II(*x))
    A(f"s_mov_b32 s53, {SPIN}", f"s_lshl_b32 s50, {S_CL}, 2", f"v_lshlrev_b32 v46, 8, {V_LANE}", "v_add_u32 v46, s50, v46")
    A("L_cnt_check:", "v_readfirstlane_b32 s52, v47", "s_nop 3", "s_cmp_ge_u32 s52, 16", "s_cbranch_scc1 L_cnt_ok",
      "s_sub_u32 s53, s53, 1", "s_cmp_eq_u32 s53, 0", "s_cbranch_scc1 L_cnt_ok", "s_sleep 2",
      f"buffer_load_dword v47, v46, {SRD_D}, 0 offen sc1", "s_waitcnt vmcnt(0)", "s_branch L_cnt_check", "L_cnt_ok:")
    A(f"s_lshr_b32 s50, {S_HP}, 2", "s_lshl_b32 s50, s50, 7",
      f"v_lshrrev_b32 v2, 4, {V_LANE}", "v_lshlrev_b32 v3, 13, v2", f"v_and_b32 v4, 15, {V_LANE}",
      "v_lshl_add_u32 v3, v4, 2, v3", "v_add_u32 v3, s50, v3",
      f"v_lshlrev_b32 v5, 4, {V_LANE}",
      "v_lshlrev_b32 v6, 11, v4", "v_lshl_add_u32 v6, v2, 4, v6")
    A(f"s_mul_i32 s32, {S_B}, {144*2048}", f"s_lshl_b32 s50, {S_BR}, 10", "s_add_u32 s32, s32, s50", f"s_lshl_b32 s50, {S_HP}, 6", "s_add_u32 s32, s32, s50")
    A(f"s_mul_i32 s33, {S_HP}, {9*16384}")
    A(f"s_mov_b32 s34, {S_W}")
    A("L_red_tile:")
    A("s_lshl_b32 s35, s34, 9", f"s_mov_b32 s53, {SPIN}")
    A("L_poll:", f"buffer_load_dword v7, v3, {SRD_F}, s35 offen sc1", "s_waitcnt vmcnt(0)",
      "v_cmp_eq_u32 vcc, 1, v7", "s_nop 3", "s_and_b32 s50, vcc_lo, 0xffff", "s_cmp_eq_u32 s50, 0xffff", "s_cbranch_scc1 L_poll_ok",
      "s_sub_u32 s53, s53, 1", "s_cmp_eq_u32 s53, 0", "s_cbranch_scc1 L_poll_ok", "s_sleep 1", "s_branch L_poll", "L_poll_ok:")
    A("s_lshl_b32 s50, s34, 14", "s_add_u32 s50, s50, s33", "s_add_u32 s51, s50, 4096", "s_add_u32 s52, s50, 8192", "s_add_u32 s53, s50, 12288")
    for p in range(16):
        so = ["s50", "s51", "s52", "s53"][p // 4]
        o = f" offset:{(p % 4) * 1024}" if p % 4 else ""
        A(f"buffer_load_dwordx4 v[{64+4*p}:{67+4*p}], v5, {SRD_P}, {so} offen{o} {OPT['rld']}")
    acc = 16
    for p in range(16):
        A(f"s_waitcnt vmcnt({15-p})")
        for k in range(4):
            r = 64 + 4 * p + k
            if p == 0:
                A(f"v_lshlrev_b32 v{acc+2*k}, 16, v{r}", f"v_and_b32 v{acc+2*k+1}, 0xffff0000, v{r}")
            else:
                A(f"v_lshlrev_b32 v{8+2*(k&1)}, 16, v{r}", f"v_and_b32 v{9+2*(k&1)}, 0xffff0000, v{r}",
                  f"v_pk_add_f32 v[{acc+2*k}:{acc+2*k+1}], v[{acc+2*k}:{acc+2*k+1}], v[{8+2*(k&1)}:{9+2*(k&1)}]")
    for k in range(4): A(f"v_cvt_pk_bf16_f32 v{12+k}, v{acc+2*k}, v{acc+2*k+1}")
    A("s_lshl_b32 s50, s34, 15", "s_add_u32 s50, s50, s32")
    A(f"buffer_store_dwordx4 v[12:15], v6, {SRD_O}, s50 offen")
    A("s_add_u32 s34, s34, 4", "s_cmp_lt_u32 s34, 9", "s_cbranch_scc1 L_red_tile")
    return L

def dump_regs(regs, slot, kind='v'):
    L = []; A = lambda *x: L.extend(II(*x))
    A("s_add_u32 s66, s58, 0x4000000", "s_addc_u32 s67, s59, 0",
      "s_lshl_b32 s50, s2, 2", f"s_add_u32 s50, s50, {S_W}", "s_lshl_b32 s50, s50, 16",
      f"v_lshlrev_b32 v253, 2, {V_LANE}", "v_add_u32 v253, s50, v253")
    for i, r in enumerate(regs):
        if kind == 'a':
            A(f"v_accvgpr_read_b32 v254, a{r}", "s_nop 0")
            A(f"global_store_dword v253, v254, s[66:67]")
        else:
            A(f"global_store_dword v253, v{r}, s[66:67]")
        A("v_add_u32 v253, 256, v253")
    A("s_waitcnt vmcnt(0)")
    return L

def main_kernel():
    L = []
    L += setup()
    L += stamp("start")
    L += phase_q()
    L += stamp("q_done")
    if OPT['dump'] == 'q':
        L += II("s_nop 7") + dump_regs([qfrag(t, s) + k for t in range(5) for s in range(4) for k in range(4)], 0)
        L += II("s_waitcnt vmcnt(0)", "s_endpgm")
    L += attention()
    if OPT['dump'] == 'o':
        L += II("s_nop 7") + dump_regs([oacc(dt, t) + k for t in range(5) for dt in range(8) for k in range(4)] + [lacc(t) for t in range(5)], 0, 'a')
        L += II("s_waitcnt vmcnt(0)", "s_endpgm")
    e, q = o_epilogue(); L += e
    L += stamp("o_done")
    e, q = out_proj(q + ([None] * 2 if OPT['stamps'] else [])); L += e
    L += stamp("op_done")
    if OPT['fused']:
        L += reduce_phase()
        L += stamp("red_done")
    L += tr_dump()
    L += II("s_waitcnt vmcnt(0)")
    L += stamp("end")
    L += II("L_main_end:", "s_endpgm")
    return L

def reduce_kernel():
    L = []; A = lambda *x: L.extend(II(*x))
    A("s_cmp_ge_u32 s2, 256", "s_cbranch_scc1 L_red_end")
    A("s_load_dwordx2 s[4:5], s[0:1], 80", "s_load_dwordx2 s[6:7], s[0:1], 96")
    A("v_lshrrev_b32 v2, 6, v0", "v_and_b32 v1, 63, v0", "s_nop 0", "v_readfirstlane_b32 s12, v2", "s_nop 3")
    A("s_waitcnt lgkmcnt(0)")
    A("s_mul_i32 s13, s2, 9", "s_add_u32 s13, s13, s12", "s_lshl_b32 s13, s13, 14")
    A("s_add_u32 s16, s6, s13", "s_addc_u32 s17, s7, 0", "s_and_b32 s17, s17, 0xffff", "s_mov_b32 s18, 16384", "s_mov_b32 s19, 0x20000")
    A("v_lshlrev_b32 v2, 4, v1")
    for p in range(16):
        A(f"buffer_load_dwordx4 v[{8+4*p}:{11+4*p}], v2, s[16:19], 0 offen offset:{(p%4)*1024}" if p < 4 else
          f"buffer_load_dwordx4 v[{8+4*p}:{11+4*p}], v2, s[16:19], s{20+p//4} offen offset:{(p%4)*1024}")
        if p == 3: A("s_mov_b32 s21, 4096", "s_mov_b32 s22, 8192", "s_mov_b32 s23, 12288")
    A("s_lshr_b32 s14, s2, 4", "s_and_b32 s15, s2, 15",
      "s_and_b32 s24, s14, 7", "s_lshr_b32 s25, s14, 3",
      "s_mul_i32 s24, s24, 144", "s_lshl_b32 s26, s12, 4", "s_add_u32 s24, s24, s26", "s_lshl_b32 s24, s24, 11",
      "s_lshl_b32 s25, s25, 10", "s_lshl_b32 s15, s15, 6", "s_add_u32 s24, s24, s25", "s_add_u32 s24, s24, s15")
    A("v_and_b32 v3, 15, v1", "v_lshlrev_b32 v3, 11, v3", "v_lshrrev_b32 v4, 4, v1", "v_lshl_add_u32 v3, v4, 4, v3")
    A("s_mov_b32 s28, s4", "s_and_b32 s29, s5, 0xffff", "s_mov_b32 s30, 2359296", "s_mov_b32 s31, 0x20000")
    acc = 80
    for p in range(16):
        A(f"s_waitcnt vmcnt({15-p})")
        for k in range(4):
            r = 8 + 4 * p + k
            if p == 0:
                A(f"v_lshlrev_b32 v{acc+2*k}, 16, v{r}", f"v_and_b32 v{acc+2*k+1}, 0xffff0000, v{r}")
            else:
                A(f"v_lshlrev_b32 v6, 16, v{r}", f"v_and_b32 v7, 0xffff0000, v{r}",
                  f"v_add_f32 v{acc+2*k}, v{acc+2*k}, v6", f"v_add_f32 v{acc+2*k+1}, v{acc+2*k+1}, v7")
    for k in range(4): A(f"v_cvt_pk_bf16_f32 v{8+k}, v{acc+2*k}, v{acc+2*k+1}")
    A("buffer_store_dwordx4 v[8:11], v3, s[28:31], s24 offen")
    A("s_waitcnt vmcnt(0)")
    A("L_red_end:", "s_endpgm")
    return L

def kernel_text(name, body, vgpr, accum, sgpr=102):
    return f""".globl {name}
.p2align 8
.type {name},@function
{name}:
{text(body)}
"""
def kd(name, nfv, accum, sgpr=102):
    return f""".amdhsa_kernel {name}
  .amdhsa_next_free_vgpr {nfv}
  .amdhsa_next_free_sgpr {sgpr}
  .amdhsa_accum_offset {accum}
  .amdhsa_group_segment_fixed_size 0
  .amdhsa_kernarg_size 104
  .amdhsa_user_sgpr_count 2
  .amdhsa_user_sgpr_kernarg_segment_ptr 1
  .amdhsa_system_sgpr_workgroup_id_x 1
.end_amdhsa_kernel
"""

def build():
    stamp_id[0] = 0; STAMPS.clear()
    k1 = NAME + "_kernel"; k2 = "reduce_heads_kernel"
    m = main_kernel()
    hdr = "; fused q-projection + attention + out-projection; the 16 head-pair partials of an output slice are summed by its owner\n"
    if OPT['fused']:
        hdr += f"; @launch grid=(256,1,1) block=(256,1,1) lds=163840\n"
    else:
        hdr += f"; @launch kernel={k1} grid=(256,1,1) block=(256,1,1) lds=163840\n"
        hdr += f"; @launch kernel={k2} grid=(256,1,1) block=(576,1,1) lds=0\n"
    s = hdr + '.amdgcn_target "amdgcn-amd-amdhsa--gfx950"\n.text\n'
    s += kernel_text(k1, m, 512, 256)
    if not OPT['fused']: s += kernel_text(k2, reduce_kernel(), 96, 96)
    s += '.section .rodata,"a"\n.p2align 6\n' + kd(k1, 512, 256)
    if not OPT['fused']: s += ".p2align 6\n" + kd(k2, 96, 96, 40)
    return s

if __name__ == "__main__":
    ap = argparse.ArgumentParser()
    ap.add_argument("-o", default="cdna_kernels/" + NAME + ".s")
    ap.add_argument("--dump"); ap.add_argument("--stamps", action="store_true"); ap.add_argument("-v", action="store_true")
    ap.add_argument("--opt", action="append", default=[])
    a = ap.parse_args()
    OPT['dump'] = a.dump; OPT['stamps'] = a.stamps; OPT['verbose'] = a.v
    for o in a.opt:
        k, v = o.split("=", 1)
        OPT[k] = {'True': True, 'False': False}.get(v, int(v) if v.lstrip('-').isdigit() else v)
    s = build()
    open(a.o, "w").write(s)
    if a.stamps:
        import json; json.dump(STAMPS, open(a.o + ".stamps.json", "w"))
    print("wrote", a.o, len(s), "bytes")
```

```python
import sys, argparse
from ir import *

NAME = "concat_heads__gqa_block_cached__mha_block_cached__near_ridge"
OPT = dict(pf=1, pfnt=False, fused=True, rld='sc1', rot=True, wnt=False, xnt=False, wont=False, bursts=(3, 6, 9), dump=None, stamps=False, stop=None, kvnt=True, pst="sc1", verbose=False)

VB = 0
KB = 65536
WB = 16384
XB = 114688
WOA = 131072
WOB = 98304
OB = 0
def kphys(k): return ((k + 1) & 3) * 16384
def vphys(k): return (k & 3) * 16384

SRD_X, SRD_WQ, SRD_K, SRD_V, SRD_WO, SRD_P = "s[4:7]", "s[8:11]", "s[12:15]", "s[16:19]", "s[20:23]", "s[24:27]"
SRD_F, SRD_D, SRD_O = "s[68:71]", "s[72:75]", "s[80:83]"
S_W, S_U, S_QH, S_CNT = "s28", "s29", "s30", "s31"
S_SOFFX, S_SOFFW0, S_UNUSED, S_MW, S_MX, S_DSLOT, S_RSLOT, S_DW, S_DX = "s32", "s33", "s34", "s35", "s36", "s37", "s38", "s39", "s40"
S_BW, S_BX = "s41", "s42"
S_SOFFK, S_SOFFV, S_MK, S_MV = "s45", "s46", "s47", "s48"
S_T0, S_T1, S_T2, S_T3 = "s50", "s51", "s52", "s53"
S_HP, S_B, S_BR, S_CL = "s54", "s55", "s56", "s57"
S_WS = "s[58:59]"
S_SOFFP = "s60"
S_STAMP = "s[62:63]"
S_FLAG = "s64"
S_KS, S_X0, S_W0 = "s88", "s89", "s87"
S_TAU, S_TB, S_TQ, S_T4N, S_TMASK, S_TSH, S_TM, S_TS = "s78", "s79", "s43", "s44", "s34", "s49", "s61", "s95"

V_LANE = "v1"
V_WQR = [2, 3, 4, 5]; V_XR = 6
V_WQD = [7, 8, 9, 10]; V_XD = [11, 12, 13]; V_TG, V_TI, V_TB, V_TV = 14, 15, 62, 63
V_KD = [16, 17, 18, 19]; V_VD = [20, 21]
V_KR = [22, 23, 24, 25]; V_VR = [26 + i for i in range(8)]
V_WOD = [34, 35, 36, 37]; V_WOR = [38, 39, 40, 41]
V_OW, V_OR, V_OR8, V_PS = 42, 43, 44, 45
VT = [46 + i for i in range(18)]
RB = 64
def grp(t, s): return RB + (t * 4 + s) * 8
def qacc(dt, t): return grp(t, dt >> 1) + 4 * (dt & 1)
def qfrag(t, s): return grp(t, s)
def Sreg(kt, t): return grp(t, kt) + 4
def Preg(par, t): return grp(t, 2 + par) + 4
def cinit(t): return 224 + 4 * t
V_C0, V_C1 = 244, 245
def vr(b, n=4): return f"v[{b}:{b+n-1}]"
def ar(b, n=4): return f"a[{b}:{b+n-1}]"
def oacc(dt, t): return t * 32 + dt * 4
def lacc(t): return 160 + 4 * t
A_ONES = 180
def abuf(i): return 184 + 4 * i
def bbuf(t): return [48, 52, 56, 60, 248][t]
def kbuf(kt, s): return 216 + 4 * (kt * 4 + s)

MF = "v_mfma_f32_16x16x32_bf16"
def mfma(d, a, b, c): return I(f"{MF} {d}, {a}, {b}, {c}")
SCALE = (128 ** -0.5) * 1.4426950408889634
import struct
def f2u(x): return struct.unpack("<I", struct.pack("<f", x))[0]

def NT(): return " nt" if OPT['kvnt'] else ""

stamp_id = [0]
def stamp(name):
    if not OPT['stamps']: return []
    i = stamp_id[0]; stamp_id[0] += 1
    STAMPS.append(name)
    return II("s_memrealtime s[66:67]", "s_memtime s[64:65]", "s_waitcnt lgkmcnt(0)",
              f"v_writelane_b32 v0, s66, {i}", f"v_writelane_b32 v0, s64, {32 + i}")
def stamp_dump():
    if not OPT['stamps']: return []
    return II("s_add_u32 s62, s58, 0x8000000", "s_addc_u32 s63, s59, 0", "s_lshl_b32 s65, s2, 2", f"s_add_u32 s65, s65, {S_W}", "s_lshl_b32 s65, s65, 8",
              f"v_lshlrev_b32 v1, 2, {V_LANE}", "v_add_u32 v1, s65, v1", "global_store_dword v1, v0, s[62:63]")
STAMPS = []

def setup():
    L = []
    A = lambda *x: L.extend(II(*x))
    A("s_cmp_ge_u32 s2, 256", "s_cbranch_scc1 L_main_end")
    A("s_load_dwordx8 s[68:75], s[0:1], 0", "s_load_dwordx2 s[76:77], s[0:1], 32",
      "s_load_dwordx8 s[80:87], s[0:1], 40", "s_load_dwordx2 s[88:89], s[0:1], 72",
      f"s_load_dwordx2 {S_WS}, s[0:1], 96", "s_load_dwordx4 s[96:99], s[0:1], 80")
    A("s_and_b32 s50, s2, 7", "s_lshr_b32 s51, s2, 3",
      f"s_lshr_b32 {S_BR}, s50, 2",
      "s_and_b32 s52, s50, 3", "s_lshl_b32 s52, s52, 2", "s_and_b32 s53, s51, 3", f"s_add_u32 {S_HP}, s52, s53",
      f"s_lshr_b32 {S_B}, s51, 2",
      f"s_lshl_b32 s52, {S_BR}, 3", f"s_add_u32 {S_CL}, s52, {S_B}")
    A("v_lshrrev_b32 v46, 6, v0", f"v_and_b32 {V_LANE}, 63, v0", "s_nop 0", f"v_readfirstlane_b32 {S_W}, v46", "s_nop 3")
    A(f"s_lshr_b32 {S_U}, {S_W}, 1", f"s_and_b32 {S_QH}, {S_W}, 1")
    A(lane_consts_q())
    A("s_waitcnt lgkmcnt(0)")
    A(f"s_cmp_eq_u32 {S_BR}, 1")
    for i in range(8): A(f"s_cselect_b32 s{68+i}, s{80+i}, s{68+i}")
    A("s_cselect_b32 s76, s88, s76", "s_cselect_b32 s77, s89, s77")
    def srd(dst, lo, hi, off_expr_regs, nrec):
        A(f"s_add_u32 s{dst}, s{lo}, s50", f"s_addc_u32 s{dst+1}, s{hi}, 0", f"s_and_b32 s{dst+1}, s{dst+1}, 0xffff")
        A(nrec, f"s_mov_b32 s{dst+3}, 0x20000")
    A(f"s_mul_i32 s50, {S_B}, 147456"); srd(4, 68, 69, None, "s_mov_b32 s6, 147456")
    A(f"s_lshl_b32 s50, {S_HP}, 9"); srd(8, 74, 75, None, "s_sub_u32 s10, 4194304, s50")
    A(f"s_lshl_b32 s50, {S_B}, 5", f"s_lshl_b32 s51, {S_HP}, 1", "s_add_u32 s50, s50, s51", f"s_add_u32 s50, s50, {S_U}", "s_lshl_b32 s50, s50, 17")
    srd(12, 70, 71, None, "s_mov_b32 s14, 131072")
    srd(16, 72, 73, None, "s_mov_b32 s18, 131072")
    A(f"s_lshl_b32 s50, {S_HP}, 18", f"s_lshl_b32 s51, {S_W}, 8", "s_add_u32 s50, s50, s51")
    A("s_sub_u32 s52, 262144, s51")
    srd(20, 76, 77, None, "s_mov_b32 s22, s52")
    A(f"s_lshl_b32 s50, {S_HP}, 18"); srd(84, 76, 77, None, "s_mov_b32 s86, 262144")
    A(f"s_mul_i32 s50, {S_CL}, 2359296"); srd(24, 58, 59, None, "s_mov_b32 s26, 2359296")
    if OPT['fused']:
        A(f"s_mul_i32 s50, {S_CL}, 4608", "s_add_u32 s50, s50, 0x3000000"); srd(68, 58, 59, None, "s_mov_b32 s70, 4608")
        A("s_mov_b32 s72, s98", "s_and_b32 s73, s99, 0xffff", "s_mov_b32 s74, 256", "s_mov_b32 s75, 0x20000")
        A("s_mov_b32 s80, s96", "s_and_b32 s81, s97, 0xffff", "s_mov_b32 s82, 2359296", "s_mov_b32 s83, 0x20000")
        A(f"s_lshl_b32 s50, {S_W}, 7", f"s_lshl_b32 s51, {S_HP}, 2", "s_add_u32 s50, s50, s51",
          f"v_lshlrev_b32 v46, 9, {V_LANE}", "v_add_u32 v46, s50, v46", "v_mov_b32 v47, 0",
          f"buffer_store_dword v47, v46, {SRD_F}, 0 offen sc1")
    return L

def lane_consts_q():
    L = []; A = lambda *x: L.extend(II(*x))
    l = V_LANE; t0, t1, t2, t3, t4, t5 = [f"v{x}" for x in VT[:6]]
    A(f"v_lshrrev_b32 {t0}, 4, {l}", f"v_bfe_u32 {t1}, {l}, 2, 2", f"v_and_b32 {t2}, 3, {l}", f"v_and_b32 {t3}, 15, {l}")
    for n in range(4):
        A(f"v_add_u32 {t4}, {4*n}, {t0}", f"v_xor_b32 {t4}, {t4}, {t3}", f"v_lshlrev_b32 {t4}, 4, {t4}",
          f"v_lshl_add_u32 v{V_KD[n]}, {t0}, 8, {t4}")
    for n in range(2):
        A(f"v_add_u32 {t4}, {4*n}, {t0}", f"v_lshlrev_b32 {t4}, 1, {t4}", f"v_xor_b32 {t4}, {t4}, {t3}", f"v_lshlrev_b32 {t4}, 4, {t4}",
          f"v_lshl_add_u32 v{V_VD[n]}, {t0}, 8, {t4}")
    A(f"v_lshrrev_b32 {t4}, 5, {l}")
    A(f"v_bfe_u32 {t5}, {l}, 4, 1")
    for j in range(4):
        d = f"v{V_WQD[j]}"
        A(f"v_add_u32 {d}, {2*j}, {t4}",
          f"v_and_b32 v{VT[6]}, 3, {d}", f"v_lshlrev_b32 v{VT[6]}, 2, v{VT[6]}", f"v_xor_b32 v{VT[6]}, v{VT[6]}, {t3}", f"v_lshlrev_b32 v{VT[6]}, 4, v{VT[6]}",
          f"v_lshlrev_b32 {d}, 13, {d}", f"v_add_u32 {d}, {d}, v{VT[6]}", f"v_lshl_add_u32 {d}, {t5}, 8, {d}")
        if j: A(f"v_subrev_u32 {d}, {1024*j}, {d}")
    A(f"v_lshlrev_b32 {t4}, 1, {t0}", f"v_mov_b32 {t5}, 0x78", f"v_lshrrev_b32 {t4}, {t4}, {t5}", f"v_and_b32 {t4}, 3, {t4}",
      f"v_xor_b32 {t4}, {t4}, {t2}", f"v_lshlrev_b32 {t4}, 4, {t4}",
      f"v_lshrrev_b32 {t5}, 2, {l}", f"v_lshl_add_u32 {t4}, {t5}, 10, {t4}")
    for j in range(3):
        A(f"v_add_u32 v{V_XD[j]}, {j*16384 - 1024*j}, {t4}")
    A(f"v_lshl_add_u32 {t4}, {t0}, 3, {t1}", f"v_lshlrev_b32 {t4}, 9, {t4}", f"v_lshl_add_u32 {t4}, {t2}, 4, {t4}",
      f"s_lshl_b32 s50, {S_U}, 8", f"s_add_u32 s50, s50, {WB}", f"v_add_u32 {t4}, s50, {t4}")
    for s in range(4):
        A(f"v_xor_b32 {t5}, {s}, {t1}", f"v_lshl_add_u32 v{V_WQR[s]}, {t5}, 6, {t4}")
    A(f"v_lshrrev_b32 {t4}, 2, {t3}", f"v_lshlrev_b32 {t4}, 1, {t4}", f"v_mov_b32 {t5}, 0x78", f"v_lshrrev_b32 {t4}, {t4}, {t5}", f"v_and_b32 {t4}, 3, {t4}",
      f"v_xor_b32 {t4}, {t4}, {t0}", f"v_lshlrev_b32 {t4}, 4, {t4}", f"v_lshl_add_u32 {t4}, {t3}, 6, {t4}",
      f"s_lshl_b32 s50, {S_QH}, 12", f"s_add_u32 s50, s50, {XB}", f"v_add_u32 v{V_XR}, s50, {t4}")
    return L

def lane_consts_rest():
    L = []; A = lambda *x: L.extend(II(*x))
    l = V_LANE; t0, t1, t2, t3, t4, t5, t6 = [f"v{x}" for x in VT[:7]]
    A(f"v_lshrrev_b32 {t0}, 4, {l}", f"v_bfe_u32 {t1}, {l}, 2, 2", f"v_and_b32 {t2}, 3, {l}", f"v_and_b32 {t3}, 15, {l}")
    A(f"s_lshl_b32 s50, {S_U}, 13", f"s_add_u32 s51, s50, {KB}", f"v_lshlrev_b32 {t4}, 8, {t3}", f"v_add_u32 {t4}, s51, {t4}")
    for s in range(4):
        A(f"v_add_u32 {t5}, {4*s}, {t0}", f"v_xor_b32 {t5}, {t5}, {t3}", f"v_lshl_add_u32 v{V_KR[s]}, {t5}, 4, {t4}")
    A(f"v_lshrrev_b32 {t4}, 2, {l}", f"v_and_b32 {t5}, 7, {t4}", f"v_lshlrev_b32 {t5}, 1, {t5}",
      f"v_lshlrev_b32 {t4}, 8, {t4}", f"v_add_u32 {t4}, s50, {t4}",
      f"v_and_b32 {t6}, 1, {t2}", f"v_lshl_add_u32 {t4}, {t6}, 3, {t4}",
      f"v_lshrrev_b32 {t6}, 1, {t2}")
    for dt in range(8):
        d = f"v{V_VR[dt]}"
        A(f"v_add_u32 {d}, {2*dt}, {t6}", f"v_xor_b32 {d}, {d}, {t5}", f"v_lshl_add_u32 {d}, {d}, 4, {t4}")
    A(f"v_lshlrev_b32 {t4}, 2, {t0}", f"v_xor_b32 {t4}, {t4}, {t3}", f"v_lshlrev_b32 {t4}, 4, {t4}", f"v_lshl_add_u32 {t4}, {t0}, 10, {t4}")
    for n in range(4):
        A(f"v_add_u32 v{V_WOD[n]}, {n*3072}, {t4}")
    A(f"v_lshrrev_b32 {t4}, 2, {l}", f"v_lshlrev_b32 {t4}, 8, {t4}", f"v_lshl_add_u32 {t4}, {t2}, 4, {t4}",
      f"s_lshl_b32 s50, {S_W}, 13", f"s_add_u32 s50, s50, {WOB}", f"v_add_u32 {t4}, s50, {t4}")
    for cp in range(4):
        A(f"v_xor_b32 {t5}, {cp}, {t1}", f"v_lshl_add_u32 v{V_WOR[cp]}, {t5}, 6, {t4}")
    A(f"s_lshl_b32 s50, {S_QH}, 15", f"s_lshl_b32 s51, {S_U}, 12", "s_add_u32 s50, s50, s51",
      f"v_lshlrev_b32 v{V_OR}, 4, {l}", f"v_add_u32 v{V_OW}, s50, v{V_OR}", f"v_add_u32 v{V_OR8}, 0x10000, v{V_OR}")
    A(f"s_lshl_b32 s50, {S_HP}, 10", f"v_add_u32 v{V_PS}, s50, v{V_OR}")
    return L

def dma(voff, srd, soff, imm, nt=False):
    o = f" offset:{imm}" if imm else ""
    return I(f"buffer_load_dwordx4 v{voff}, {srd}, {soff} offen{o}{' nt' if nt else ''} lds")

def kv_group(kind, m0expr, soffreg):
    if kind == 'K':
        return [dma(V_KD[n], SRD_K, soffreg, n * 1024, OPT['kvnt']) for n in range(4)]
    return [dma(V_VD[n & 1], SRD_V, soffreg, n * 1024, OPT['kvnt']) for n in range(4)]

def kv_tile_full_unused(kind, j):
    L = []
    base = (KB + kphys(j)) if kind == 'K' else (VB + vphys(j))
    for gI in range(2):
        L += II(f"s_lshl_b32 s50, {S_U}, 13", f"s_add_u32 m0, s50, {base + gI*4096}", f"s_mov_b32 s51, {j*8192 + gI*4096}")
        L += kv_group(kind, None, "s51")
    return L

def stage_setup_scalar():
    return II(f"s_lshr_b32 s50, s2, 3", "s_and_b32 s51, s50, 3", "s_lshl_b32 s51, s51, 2", "s_lshr_b32 s50, s50, 2", "s_lshl_b32 s50, s50, 1",
              f"s_add_u32 s52, s50, s51", f"s_and_b32 s52, s52, {15 if OPT['rot'] else 0}",
              f"s_lshl_b32 s50, s52, 6", f"s_lshl_b32 s51, {S_W}, 15", f"s_add_u32 {S_SOFFX}, s50, s51",
              f"s_lshl_b32 s50, s52, 18", f"s_lshl_b32 s51, {S_W}, 16", f"s_add_u32 {S_SOFFW0}, s50, s51",
              f"s_lshl_b32 s50, {S_W}, 12", f"s_add_u32 {S_BW}, s50, {WB}",
              f"s_lshl_b32 s50, {S_W}, 11", f"s_add_u32 {S_BX}, s50, {XB}",
              f"s_mov_b32 {S_MW}, 0", f"s_mov_b32 {S_MX}, 0",
              f"s_lshl_b32 {S_TQ}, {S_QH}, 12",
              f"s_lshl_b32 s50, {S_U}, 13", f"s_add_u32 s50, s50, {S_TQ}", f"s_add_u32 {S_MK}, s50, {KB}", f"s_add_u32 {S_MV}, s50, {VB}")

def stage_dma_list():
    seq = []
    if OPT.get('x_nodma'): return [([I('s_mov_b32 m0, s35')], I('s_nop 0'))]
    if OPT.get('x_nox'):
        seq.append(([I(f"s_mov_b32 m0, {S_MW}")], dma(V_WQD[0], SRD_WQ, S_SOFFW0, 0)))
        for j in range(1, 4): seq.append(([], dma(V_WQD[j], SRD_WQ, S_SOFFW0, j * 1024)))
        return seq
    if OPT.get('x_now'):
        seq.append(([I(f"s_mov_b32 m0, {S_MX}")], dma(V_XD[0], SRD_X, S_SOFFX, 0)))
        for j in range(1, 3): seq.append(([], dma(V_XD[j], SRD_X, S_SOFFX, j * 1024)))
        return seq
    seq.append(([I(f"s_add_u32 m0, {S_MW}, {S_BW}")], dma(V_WQD[0], SRD_WQ, S_SOFFW0, 0, OPT['wnt'])))
    for j in range(1, 4): seq.append(([], dma(V_WQD[j], SRD_WQ, S_SOFFW0, j * 1024, OPT['wnt'])))
    seq.append(([I(f"s_add_u32 m0, {S_MX}, {S_BX}")], dma(V_XD[0], SRD_X, S_SOFFX, 0, OPT['xnt'])))
    for j in range(1, 3): seq.append(([], dma(V_XD[j], SRD_X, S_SOFFX, j * 1024, OPT['xnt'])))
    return seq

def place_dma(S, seq, gaps):
    k = 0
    last = None
    for e in seq:
        if e[0]:
            for p in e[0]: S.put(gaps[k], p)
            k += 1
        S.put(gaps[k], e[1]); last = gaps[k]
        if len(e) > 2:
            for p in e[2]: S.put(gaps[k] + 1, p)
        k += 1
    return last

def stage_advance_w():
    return II(f"s_add_u32 {S_SOFFW0}, {S_SOFFW0}, 262144", f"s_and_b32 {S_SOFFW0}, {S_SOFFW0}, 0x3fffff",
              f"s_add_u32 {S_MW}, {S_MW}, 16384", f"s_and_b32 {S_MW}, {S_MW}, 0xffff")
def stage_advance_x():
    return II(f"s_add_u32 {S_SOFFX}, {S_SOFFX}, 64", f"s_and_b32 {S_SOFFX}, {S_SOFFX}, 0xfffffbff",
              f"s_add_u32 {S_MX}, {S_MX}, 9216", f"s_cmp_eq_u32 {S_MX}, 36864", f"s_cselect_b32 {S_MX}, 0, {S_MX}")
def stage_advance(): return stage_advance_w() + stage_advance_x()

def straight(seq):
    L = []
    for e in seq:
        L += e[0]
        if e[0]: L += II("s_nop 0")
        L.append(e[1])
        if len(e) > 2: L += e[2]
    return L

def stage_issue_straight(advance=True):
    return straight(stage_dma_list()) + (stage_advance() if advance else [])

def wq_read(dt, h2):
    if OPT.get('x_noread'): return I('s_nop 0')
    if OPT.get('x_fakewq'): return I(f"ds_read_b64_tr_b16 {ar(abuf(dt) + 2*h2, 2)}, v{V_VR[dt]} offset:{16384 + h2*4096}")
    s, hf = dt >> 1, dt & 1
    b = abuf(dt) + 2 * h2
    off = hf * 8 + h2 * 2048
    return I(f"ds_read_b64_tr_b16 {ar(b,2)}, v{V_WQR[s]}" + (f" offset:{off}" if off else ""))
def x_read(t):
    if OPT.get('x_noread'): return I('s_nop 0')
    return I(f"ds_read_b128 {vr(bbuf(t))}, v{V_XR}" + (f" offset:{t*1024}" if t else ""))
def q_mfma(dt, t):
    if OPT.get('x_t4') and t == 4: return I("s_nop 3")
    if OPT.get('x_t45') and t == 4 and dt >= 4: return I("s_nop 3")
    return mfma(vr(qacc(dt, t)), ar(abuf(dt)), vr(bbuf(t)), vr(qacc(dt, t)))

def half_group(kind, j):
    if kind == 'K':
        pre = II(f"s_add_u32 m0, {S_MK}, {kphys(j)}", f"s_add_u32 s51, {S_TQ}, {j*8192}")
    else:
        pre = II(f"s_add_u32 m0, {S_MV}, {vphys(j)}", f"s_add_u32 s51, {S_TQ}, {j*8192}")
    g = kv_group(kind, None, "s51")
    return [(pre, g[0])] + [([], x) for x in g[1:]]

def put_dmas(S, seq, gaps):
    prev = -1
    for e, g in zip(seq, gaps):
        if e[0]:
            assert g - 1 > prev or prev < 0, (g, prev)
            for p in e[0]: S.put(g - 1, p)
        S.put(g, e[1])
        if len(e) > 2:
            for p in e[2]: S.put(g + 1, p)
        prev = g
    assert len(seq) <= len(gaps)

QTAIL = (4, 5, 6, 7)
def q_tail(): return [q_mfma(dt, t) for t in range(5) for dt in QTAIL]
def q_body(with_dma, extra_dma=None, last_wait=None, loopctl=False):
    ms = q_tail() + [q_mfma(dt, t) for t in range(5) for dt in range(4)]
    S = Sched(ms)
    a = lambda dt, h: wq_read(dt, h)
    plan = {0: a(0,0), 1: a(0,1), 2: a(1,0), 3: a(1,1), 4: x_read(0), 5: a(2,0), 7: a(2,1), 8: x_read(1), 9: a(3,0), 11: a(3,1),
            12: x_read(2), 16: x_read(3), 20: x_read(4), 21: a(4,0), 22: a(4,1), 23: a(5,0), 24: a(5,1), 25: a(6,0), 27: a(6,1), 28: a(7,0), 29: a(7,1)}
    for g, ins in plan.items(): S.put(g, ins)
    S.put(13, f"s_cmp_eq_u32 {S_RSLOT}, 3", f"s_cselect_b32 {S_DW}, s90, s91", f"s_cselect_b32 {S_DX}, s92, s93")
    S.put(15, f"s_add_u32 {S_RSLOT}, {S_RSLOT}, 1", f"s_and_b32 {S_RSLOT}, {S_RSLOT}, 3")
    S.spread([f"v_add_u32 v{V_WQR[0]}, {S_DW}, v{V_WQR[0]}", f"v_add_u32 v{V_WQR[1]}, {S_DW}, v{V_WQR[1]}"], [31, 31])
    S.spread([f"v_add_u32 v{V_WQR[2]}, {S_DW}, v{V_WQR[2]}", f"v_add_u32 v{V_WQR[3]}, {S_DW}, v{V_WQR[3]}"], [32, 32])
    S.put(33, f"v_add_u32 v{V_XR}, {S_DX}, v{V_XR}")
    if with_dma:
        put_dmas(S, stage_dma_list(), [6, 10, 14, 18, 26, 30, 34])
        w = stage_advance_w()
        S.put(19, w[0], w[1]); S.put(19, w[2]); S.put(22, w[3])
        S.put(35, stage_advance_x()[:2]); S.put(38, stage_advance_x()[2:])
    if extra_dma:
        put_dmas(S, extra_dma, [6, 10, 14, 18, 26, 30, 34, 36][:len(extra_dma)])
    endw = []
    if loopctl:
        b0 = OPT['bursts'][0]
        S.put(17, f"s_sub_u32 s50, {S_CNT}, {b0}", "s_cmp_lt_u32 s50, 9", "s_cselect_b64 vcc, -1, 0")
        S.put(21, f"s_add_u32 {S_CNT}, {S_CNT}, 1")
        S.put(35, f"s_cmp_eq_u32 {S_CNT}, s49")
        S.g[35].append(I("s_cbranch_scc1 L_q_burst")); S.g[35].append(I("L_q_burst_done:"))
        if OPT.get('x_novm'):
            S.put(36, tr_mark(), "s_waitcnt lgkmcnt(0)", "L_q_wd:", tr_commit())
        else:
            S.put(36, tr_mark(), "s_waitcnt vmcnt(18) lgkmcnt(0)", "s_cbranch_vccz L_q_w14", "L_q_wd:", tr_commit())
        if not OPT.get('x_nobar'): S.put(37, "s_barrier")
        S.put(39, f"s_cmp_lt_u32 {S_CNT}, 13")
    elif last_wait is not None:
        S.put(37, tr_mark(), f"s_waitcnt vmcnt({last_wait}) lgkmcnt(0)", tr_commit())
        S.put(38, "s_barrier")
    seq = S.flat()
    seq, pend = lgkm_waits(seq)
    assert not pend
    if OPT['verbose']: print(S.report(f"q_body dma={with_dma}"))
    return seq

def tr_mark():
    return [Raw("s_memtime s[100:101]")] if OPT.get('trace') else []
def tr_commit():
    return [Raw("s_mov_b32 s95, m0\n  s_mov_b32 m0, s94\n  s_nop 0\n  v_writelane_b32 v0, s100, m0\n  s_mov_b32 m0, s95\n  s_add_u32 s94, s94, 1")] if OPT.get('trace') else []
def tr_dump():
    if not OPT.get('trace'): return []
    return II("s_add_u32 s66, s58, 0x9000000", "s_addc_u32 s67, s59, 0", "s_lshl_b32 s50, s2, 2", f"s_add_u32 s50, s50, {S_W}", "s_lshl_b32 s50, s50, 8",
              f"v_lshlrev_b32 v253, 2, {V_LANE}", "v_add_u32 v253, s50, v253", "global_store_dword v253, v0, s[66:67]")

def zero_init():
    L = II("v_mov_b32 v244, 0", "v_mov_b32 v245, 0", "v_mov_b32 v246, 0", "v_mov_b32 v247, 0", "s_nop 1")
    for r in range(RB, RB + 160, 16): L += II(f"v_mfma_f32_32x32x16_bf16 v[{r}:{r+15}], v[244:247], v[244:247], 0")
    for r in range(0, 256, 16): L += II(f"v_mfma_f32_32x32x16_bf16 a[{r}:{r+15}], v[244:247], v[244:247], 0")
    return L

def phase_q():
    L = []; A = lambda *x: L.extend(II(*x))
    nst = 2 if OPT['stamps'] else 0
    A(stage_setup_scalar(), stage_issue_straight())
    A(stamp("q_issued"))
    A(zero_init())
    A(lane_consts_rest())
    A(f"s_mov_b32 {S_RSLOT}, 0", f"s_mov_b32 {S_CNT}, 0")
    if OPT.get('trace'): A("s_mov_b32 s94, 1", "s_memtime s[100:101]", "s_waitcnt lgkmcnt(0)", "v_writelane_b32 v0, s100, 0")
    A("s_mov_b32 s90, 0xffff4000", "s_mov_b32 s91, 16384", f"s_mov_b32 s92, {hex((-3*9216) & 0xffffffff)}", "s_mov_b32 s93, 9216")
    A(f"v_mov_b32 v{VT[0]}, 0x3f803f80")
    for r in range(4): A(f"v_accvgpr_write_b32 a{A_ONES + r}, v{VT[0]}")
    for t in range(5):
        for k in range(4): A(f"v_mov_b32 v{bbuf(t)+k}, 0")
    A(f"s_mov_b32 s49, {OPT['bursts'][0] + 1}")
    A(stage_issue_straight(), stage_issue_straight())
    A(f"s_waitcnt vmcnt(14)", "s_barrier")
    if OPT['fused']:
        A(f"s_lshl_b32 s50, {S_CL}, 2", f"s_lshl_b32 s51, {S_W}, 14", "s_add_u32 s50, s50, s51",
          f"v_lshlrev_b32 v46, 8, {V_LANE}", "v_add_u32 v46, s50, v46", "v_mov_b32 v47, 1",
          f"buffer_atomic_add v47, v46, {SRD_D}, 0 offen sc1")
    A(stamp("q_start"))
    body = q_body(True, loopctl=True)
    body, n = hazards(body, history=body[-24:])
    A(".p2align 6", "L_q_loop:"); L.extend(body)
    b0, b1, b2 = OPT['bursts']
    assert b1 - b0 == 3 and b2 - b1 == 3
    tiles = [('K', 0), ('K', 1), ('V', 0)]
    OOL = II("L_q_burst:", f"s_add_u32 s49, s49, 3", f"s_cmp_eq_u32 {S_CNT}, {b1 + 1}", "s_cbranch_scc1 L_q_burst1",
             f"s_cmp_eq_u32 {S_CNT}, {b2 + 1}", "s_cbranch_scc1 L_q_burst2")
    for i in range(3):
        OOL += II(f"L_q_burst{i}:") + (II("s_mov_b32 s49, 99") if i == 2 else []) + straight(half_group(*tiles[i])) + II("s_branch L_q_burst_done")
    OOL += II("L_q_w14:", "s_waitcnt vmcnt(14)", "s_branch L_q_wd")
    A("s_cbranch_scc1 L_q_loop")
    b, n = hazards(q_body(False, extra_dma=half_group('V', 1), last_wait=11), history=body[-24:]); L.extend(b)
    b, n = hazards(q_body(False, extra_dma=half_group('K', 2) + half_group('V', 2), last_wait=12), history=b[-24:]); L.extend(b)
    b, n = hazards(q_body(False, last_wait=12), history=b[-24:]); L.extend(b)
    A("s_branch L_q_after_ool")
    L.extend(OOL)
    A("L_q_after_ool:")
    A(stamp("q_loop_done"))
    return L

def q_scale(ss):
    return [I(f"v_pk_mul_f32 {vr(grp(t,s)+2*k,2)}, {vr(grp(t,s)+2*k,2)}, {vr(V_C0,2)}") for s in ss for t in range(5) for k in range(4)]
def q_cvt(ss):
    return [I(f"v_cvt_pk_bf16_f32 v{grp(t,s)+k}, v{grp(t,s)+2*k}, v{grp(t,s)+2*k+1}") for s in ss for t in range(5) for k in range(4)]

def transition():
    L = []; A = lambda *x: L.extend(II(*x))
    A(f"s_add_u32 {S_SOFFK}, {S_TQ}, {4*8192}", f"s_add_u32 {S_SOFFV}, {S_TQ}, {3*8192}")
    A(f"v_mov_b32 v{V_C0}, {hex(f2u(SCALE))}", f"v_mov_b32 v{V_C1}, {hex(f2u(SCALE))}")
    A(straight(half_group('K', 3)))
    seq = [k_read(kt, s, 0) for kt in range(2) for s in range(4)]
    seq += II("s_nop 3") + q_scale((0, 1))
    S = Sched(q_tail())
    S.spread(q_cvt((0, 1)), [i // 2 for i in range(40)])
    seq += S.flat()
    seq += II("s_nop 7") + q_scale((2, 3))
    qk = lambda ss: [qk_mfma(kt, s, t, lambda t: "0") for s in ss for kt in range(2) for t in range(5)]
    S = Sched(qk((0, 1)))
    S.spread(q_cvt((2, 3)), [i // 2 for i in range(40)])
    seq += S.flat()
    seq += qk((2, 3))
    seq, _ = lgkm_waits(seq, final_zero=True)
    seq, n = hazards(seq); L.extend(seq)
    A("s_barrier")
    A(stamp("qk0_done"))
    E = II("s_nop 3")
    T = [VT[0] + 0, VT[0] + 1, 50, 51, 53]
    T = [2, 3, 4, 5, 6]
    U = [7, 8, 9, 10, 11]
    ab = [(Sreg(0, t), Sreg(1, t)) for t in range(5)]
    for t, (a, b) in enumerate(ab): E += II(f"v_max3_f32 v{T[t]}, v{a}, v{a+1}, v{a+2}")
    for t, (a, b) in enumerate(ab): E += II(f"v_max3_f32 v{T[t]}, v{T[t]}, v{a+3}, v{b}")
    for t, (a, b) in enumerate(ab): E += II(f"v_max3_f32 v{T[t]}, v{T[t]}, v{b+1}, v{b+2}")
    for t, (a, b) in enumerate(ab): E += II(f"v_max_f32 v{T[t]}, v{T[t]}, v{b+3}")
    for sw in ("v_permlane32_swap_b32", "v_permlane16_swap_b32"):
        for t in range(5): E += II(f"v_mov_b32 v{U[t]}, v{T[t]}")
        for t in range(5): E += II(f"{sw} v{T[t]}, v{U[t]}")
        for t in range(5): E += II(f"v_max_f32 v{T[t]}, v{T[t]}, v{U[t]}")
    for t in range(5):
        for k in range(4): E += II(f"v_sub_f32 v{cinit(t)+k}, 0, v{T[t]}")
    for t, (a, b) in enumerate(ab):
        for base in (a, b):
            for k in range(4): E += II(f"v_sub_f32 v{base+k}, v{base+k}, v{T[t]}")
    for t, (a, b) in enumerate(ab):
        for base in (a, b):
            for k in range(4): E += II(f"v_exp_f32 v{base+k}, v{base+k}")
    for t in range(5):
        for k in range(4): E += II(f"v_mov_b32 v{Preg(1,t)+k}, 0")
    E, n = hazards(E); L.extend(E)
    return L

def k_read(kt, s, slotk):
    off = kphys(slotk) + kt * 4096
    return I(f"ds_read_b128 {ar(kbuf(kt, s))}, v{V_KR[s]}" + (f" offset:{off}" if off else ""))
def v_read(dt, h, slotv):
    off = vphys(slotv) + h * 4096
    return I(f"ds_read_b64_tr_b16 {ar(abuf(dt) + 2*h, 2)}, v{V_VR[dt]}" + (f" offset:{off}" if off else ""))
def qk_mfma(kt, s, t, first_c):
    c = first_c(t) if s == 0 else vr(Sreg(kt, t))
    return mfma(vr(Sreg(kt, t)), ar(kbuf(kt, s)), vr(qfrag(t, s)), c)
def pv_mfma(dt, t, par):
    return mfma(ar(oacc(dt, t)), ar(abuf(dt)), vr(Preg(par, t)), ar(oacc(dt, t)))
def rs_mfma(t, par):
    return mfma(ar(lacc(t)), ar(A_ONES), vr(Preg(par, t)), ar(lacc(t)))
def cvts(par):
    out = []
    for kt in range(2):
        for t in range(5):
            s = Sreg(kt, t); p = Preg(par, t) + 2 * kt
            out.append(I(f"v_cvt_pk_bf16_f32 v{p}, v{s}, v{s+1}"))
            out.append(I(f"v_cvt_pk_bf16_f32 v{p+1}, v{s+2}, v{s+3}"))
    return out
def exps(kt):
    return [I(f"v_exp_f32 v{Sreg(kt,t)+i}, v{Sreg(kt,t)+i}") for t in range(5) for i in range(4)]

def att_dma(j, dyn=False):
    seq = []
    if j + 4 <= 15:
        pre = II(f"s_add_u32 m0, {S_MK}, {kphys(j + 4)}")
        g = kv_group('K', None, S_SOFFK)
        seq += [(pre, g[0])] + [([], x) for x in g[1:]]
        seq[-1] = (seq[-1][0], seq[-1][1], II(f"s_add_u32 {S_SOFFK}, {S_SOFFK}, 8192"))
    if j + 3 <= 15:
        pre = II(f"s_add_u32 m0, {S_MV}, {vphys(j + 3)}")
        g = kv_group('V', None, S_SOFFV)
        s2 = [(pre, g[0])] + [([], x) for x in g[1:]]
        s2[-1] = (s2[-1][0], s2[-1][1], II(f"s_add_u32 {S_SOFFV}, {S_SOFFV}, 8192"))
        seq += s2
    return seq

def wo_dma(ks, slot_base_imm):
    seq = []
    for gI in range(2):
        pre = II(f"s_lshl_b32 s50, {S_W}, 13", f"s_add_u32 m0, s50, {slot_base_imm + gI*4096}", f"s_mov_b32 s51, {ks*32768 + gI*16384}")
        for n in range(4):
            seq.append((pre if n == 0 else [], dma(V_WOD[n], SRD_WO, "s51", n * 1024, OPT["wont"])))
    return seq

def att_body(j, vmwait, extra_dma=None):
    par_old, par_new = (j - 1) & 1, j & 1
    ms = [pv_mfma(dt, t, par_old) for dt in (5, 6, 7) for t in range(5)] + [rs_mfma(t, par_old) for t in range(5)]
    ms += [qk_mfma(kt, s, t, lambda t: vr(cinit(t))) for kt in range(2) for s in range(4) for t in range(5)]
    ms += [pv_mfma(dt, t, par_new) for dt in range(5) for t in range(5)]
    S = Sched(ms)
    cv = cvts(par_new)
    S.spread(cv, [1, 1, 3, 3, 6, 6, 8, 8, 11, 11, 13, 13, 16, 16, 18, 18, 21, 21, 23, 23])
    S.spread([k_read(kt, s, j + 1) for kt in range(2) for s in range(4)], [0, 2, 5, 7, 10, 12, 15, 17])
    vr_ = [v_read(dt, h, j) for dt in range(8) for h in range(2)]
    S.spread(vr_, [20, 22, 25, 26, 27, 28, 30, 31, 32, 33, 35, 36, 37, 38, 40, 61])
    d = att_dma(j) + (extra_dma or [])
    if j + 4 > 15 and j + 3 <= 15 and not extra_dma:
        put_dmas(S, d, [24, 29, 34, 39])
    else:
        put_dmas(S, d, [4, 9, 14, 19, 24, 29, 34, 39])
    S.spread(exps(0), list(range(41, 61)))
    S.spread(exps(1), list(range(62, 82)))
    seq = S.flat()
    seq, pend = lgkm_waits(seq)
    seq += tr_mark() + II(f"s_waitcnt vmcnt({vmwait}) lgkmcnt(0)") + tr_commit() + II("s_barrier")
    if OPT['verbose']: print(S.report(f"att_body {j}"))
    return seq

WO1 = [192, 200, 208, 216, 224, 228, 232, 236]
def wofrag(ks, m, n=4, off=0):
    if ks == 0: return ar(216 + 4 * m + off, n)
    if ks == 1: return vr(WO1[m] + off, n)
    return ar((ks - 2) * 32 + 4 * m + off, n)
def wo_read(ks, m, h):
    cp, hf = m >> 1, m & 1
    off = (32768 if (ks & 1) == 0 else 0) + hf * 8 + h * 4096
    return I(f"ds_read_b64_tr_b16 {wofrag(ks, m, 2, 2*h)}, v{V_WOR[cp]}" + (f" offset:{off}" if off else ""))

def wo_prefetch():
    return II(f"v_lshrrev_b32 v46, 3, {V_LANE}", f"v_and_b32 v47, 7, {V_LANE}", "v_lshlrev_b32 v46, 10, v46", "v_lshl_add_u32 v46, v47, 7, v46",
              f"s_lshl_b32 s50, {S_B}, 15", f"s_lshl_b32 s51, {S_W}, 13", "s_add_u32 s50, s50, s51",
              "v_add_u32 v46, s50, v46",
              f"buffer_load_dword v47, v46, s[84:87], 0 offen" + (" nt" if OPT['pfnt'] else ""))

def attention():
    L = []; A = lambda *x: L.extend(II(*x))
    L += transition()
    A(stamp("att_start"))
    A(f"s_mov_b32 {S_CNT}, 0")
    bodies = [att_body(j, 16) for j in range(4)]
    hist = bodies[3][-24:]
    A(".p2align 6", "L_att_loop:")
    for b in bodies:
        b2, n = hazards(b, history=hist); L.extend(b2); hist = b2[-24:]
    if OPT['pf'] >= 0:
        A(f"s_cmp_eq_u32 {S_CNT}, {OPT['pf']}", "s_cbranch_scc0 L_att_nopf", wo_prefetch(), "L_att_nopf:")
    A(f"s_add_u32 {S_CNT}, {S_CNT}, 1", f"s_cmp_lt_u32 {S_CNT}, 3", "s_cbranch_scc1 L_att_loop")
    b, n = hazards(att_body(12, 12), history=hist); L.extend(b); hist = b[-24:]
    b, n = hazards(att_body(13, 12, extra_dma=wo_dma(0, WOA)), history=hist); L.extend(b); hist = b[-24:]
    b, n = hazards(att_body(14, 16, extra_dma=wo_dma(1, WOB)), history=hist); L.extend(b); hist = b[-24:]
    A(stamp("att_loop_done"))
    ms = [pv_mfma(dt, t, 0) for dt in (5, 6, 7) for t in range(5)] + [rs_mfma(t, 0) for t in range(5)]
    ms += [pv_mfma(dt, t, 1) for dt in range(8) for t in range(5)] + [rs_mfma(t, 1) for t in range(5)]
    S = Sched(ms)
    S.spread(cvts(1), list(range(0, 20)))
    S.spread([v_read(dt, h, 15) for dt in range(5) for h in range(2)], list(range(0, 10)))
    S.spread([v_read(dt, h, 15) for dt in (5, 6, 7) for h in range(2)], list(range(15, 21)))
    S.put(20, "s_waitcnt vmcnt(8)")
    S.spread([wo_read(0, m, h) for m in range(8) for h in range(2)], [21 + i // 2 for i in range(16)])
    S.put(28, "s_waitcnt vmcnt(0)")
    S.spread([wo_read(1, m, h) for m in range(8) for h in range(2)], [29 + i // 2 for i in range(16)])
    S.put(38, "s_waitcnt lgkmcnt(0)")
    put_dmas(S, wo_dma(2, WOA), [40, 43, 46, 49, 53, 56, 59, 62])
    seq, pend = lgkm_waits(S.flat(), final_zero=True)
    seq, n = hazards(seq, history=hist); L.extend(seq)
    A("s_barrier")
    A("s_nop 3")
    A(stamp("att_done"))
    return L

def wo_dma_t(ks):
    d = wo_dma(ks, WOA if (ks & 1) == 0 else WOB)
    for e in d: e[1].tag = f"wo{ks}"
    return d
def wo_reads(ks): return [wo_read(ks, m, h) for m in range(8) for h in range(2)]

LFLAG = 90112

def o_epilogue():
    E = []
    tl = VT[0]; rc = VT[2]
    d3, d4, d5 = wo_dma_t(3), wo_dma_t(4), wo_dma_t(5)
    def emit_dma(e):
        return e[0] + II("s_nop 0") * (1 if e[0] else 0) + [e[1]]
    nfr = 0
    for t in range(5):
        E += II(f"v_accvgpr_read_b32 v{tl}, a{lacc(t)}", f"v_rcp_f32 v{rc}, v{tl}", "s_nop 0", f"v_mov_b32 v{rc+1}, v{rc}")
        if t == 0: E += II(f"v_mov_b32 v{VT[1]}, v{tl}")
        else: E += II(f"v_max_f32 v{VT[1]}, v{VT[1]}, v{tl}")
        for ks in range(4):
            mid = []
            if nfr < 8: mid += emit_dma(d3[nfr])
            if 8 <= nfr < 16: mid += emit_dma(d4[nfr - 8])
            if nfr >= 16: mid += emit_dma(d5[2 * (nfr - 16)]) + emit_dma(d5[2 * (nfr - 16) + 1])
            rd = []
            if 4 <= nfr < 8:
                if nfr == 4: rd += [VmNeed("wo2")]
                rd += wo_reads(2)[4 * (nfr - 4): 4 * (nfr - 4) + 4]
            if 12 <= nfr < 16:
                if nfr == 12: rd += [VmNeed("wo3")]
                rd += wo_reads(3)[4 * (nfr - 12): 4 * (nfr - 12) + 4]
            if nfr in (8, 16): E += II("s_waitcnt lgkmcnt(0)")
            E += rd
            for h in range(2):
                for k in range(4):
                    E += II(f"v_accvgpr_read_b32 v{52 + 4*h + k}, a{oacc(2*ks + h, t) + k}")
            E += mid
            for k in range(4): E += II(f"v_pk_mul_f32 {vr(52+2*k,2)}, {vr(52+2*k,2)}, {vr(rc,2)}")
            for k in range(4): E += II(f"v_cvt_pk_bf16_f32 v{60+k}, v{52+2*k}, v{53+2*k}")
            E += II(f"ds_write_b128 v{V_OW}, {vr(60)} offset:{(t*8+ks)*1024}")
            nfr += 1
    E, q = vm_waits(E, ["wo2"] * 8)
    E, pend = lgkm_waits(E, final_zero=True)
    E, n = hazards(E)
    return E + II("s_barrier"), q

def o_read(dst, t, ks):
    if t < 8: return I(f"ds_read_b128 {vr(dst)}, v{V_OR} offset:{(t*8+ks)*1024}")
    return I(f"ds_read_b128 {vr(dst)}, v{V_OR8} offset:{ks*1024}")
def pstore(src, t, cp):
    return (II(f"s_add_u32 s51, {S_SOFFP}, {(cp*9 + t)*16384}"),
            I(f"buffer_store_dwordx4 {vr(src)}, v{V_PS}, {SRD_P}, s51 offen {OPT['pst']}"))

NP1 = 2
def acc1(t, m): return 64 + (t * 8 + m) * 4
def acc2(t, m): return 128 + ((t & 1) * 8 + m) * 4
def bfr1(par, t): return 2 + (par * 4 + t) * 4
STG = [48, 52, 56, 60]

def tile_epilogue(accf, t, k0):
    out = []
    for cp in range(4):
        a0, a1 = accf(t, 2*cp), accf(t, 2*cp + 1)
        d = STG[(k0 + cp) & 3]
        cv = II(f"v_cvt_pk_bf16_f32 v{d}, v{a0}, v{a0+1}", f"v_cvt_pk_bf16_f32 v{d+1}, v{a0+2}, v{a0+3}",
                f"v_cvt_pk_bf16_f32 v{d+2}, v{a1}, v{a1+1}", f"v_cvt_pk_bf16_f32 v{d+3}, v{a1+2}, v{a1+3}")
        pre, st = pstore(d, t, cp)
        st.tag = f"st{t}"
        out.append((cv, (pre, st)))
    return out

def out_proj(queue):
    L = []; A = lambda *x: L.extend(II(*x))
    A(f"s_mul_i32 {S_SOFFP}, {S_W}, {4*9*16384}")
    G = 8 * NP1
    ms = [mfma(vr(acc1(t, m)), wofrag(ks, m), vr(bfr1(ks & 1, t)), ("0" if ks == 0 else vr(acc1(t, m)))) for ks in range(8) for m in range(8) for t in range(NP1)]
    bt = lambda ks: 2 + 4 * ks
    P1 = len(ms)
    for t in range(NP1, 9):
        ms += [mfma(vr(acc2(t, m)), wofrag(ks, m), vr(bt(ks)), ("0" if ks == 0 else vr(acc2(t, m)))) for ks in range(8) for m in range(8)]
    S = Sched(ms)
    pre = [o_read(bfr1(0, t), t, 0) for t in range(NP1)]
    def reads(ks, g0): S.spread(wo_reads(ks), [g0 + i // 2 for i in range(16)])
    def dmas(ks, g0, step=4): put_dmas(S, wo_dma_t(ks), [g0 + step * i for i in range(8)])
    def put_free(ins, g0):
        g = g0
        while S.cost(g) + COST[ins.kind] > 8: g += 1
        S.put(g, ins); return g
    S.put(0, VmNeed("wo4")); reads(4, 0)
    S.put(9, "s_waitcnt lgkmcnt(0)"); dmas(6, 11, 3)
    S.put(33, VmNeed("wo5")); reads(5, 33)
    S.put(42, "s_waitcnt lgkmcnt(0)"); dmas(7, 44, 3)
    S.put(84, VmNeed("wo6")); reads(6, 84)
    S.put(100, VmNeed("wo7")); reads(7, 100)
    for ks in range(7):
        g = ks * G + (1 if ks else 8)
        for t in range(NP1):
            g = put_free(o_read(bfr1((ks + 1) & 1, t), t, ks + 1), g) + 1
        assert g <= (ks + 1) * G - 3, (ks, g)
    g = 6 * G + 4
    for ks in (2, 3, 6, 7): g = put_free(o_read(bt(ks), NP1, ks), g) + 1
    g = 7 * G + 1
    for ks in (0, 1): g = put_free(o_read(bt(ks), NP1, ks), g) + 1
    base = P1
    for ks in (4, 5): put_free(o_read(bt(ks), NP1, ks), base + 1)
    def epi(t, accf, g0, stride):
        for cp, (cv, (spre, st)) in enumerate(tile_epilogue(accf, t, 0)):
            g = g0 + cp * stride
            S.spread(cv, [g, g, g + 1, g + 1])
            for p in spre: S.put(g + 1, p)
            S.put(g + 2, st)
    epi(0, acc1, base + 4, 7); epi(1, acc1, base + 32, 7)
    for t in range(NP1, 9):
        b = P1 + (t - NP1) * 64
        if t > NP1: epi(t - 1, acc2, b + 6, 12)
        if t < 8:
            for ks in range(8):
                g = b + 8 * ks + 8
                if g >= b + 64: g = b + 64 + 1
                put_free(o_read(bt(ks), t + 1, ks), g)
    if OPT['fused']:
        b = P1 + (8 - NP1) * 64
        S.put(b + 1, f"s_lshl_b32 s50, {S_CL}, 2")
        S.spread([f"v_lshlrev_b32 v46, 8, {V_LANE}", "v_add_u32 v46, s50, v46"], [b + 2, b + 3])
        ld = I(f"buffer_load_dword v47, v46, {SRD_D}, 0 offen sc1"); ld.tag = "cnt"
        S.put(b + 4, ld)
    seq = pre + S.flat()
    tail = II("s_nop 7")
    for cp, (cv, (spre, st)) in enumerate(tile_epilogue(acc2, 8, 0)):
        tail += cv + spre + [st]
    if OPT['fused']:
        tail += II(f"s_lshl_b32 s50, {S_W}, 7", f"s_lshl_b32 s51, {S_HP}, 2", "s_add_u32 s50, s50, s51",
                   f"v_lshlrev_b32 v44, 13, {V_LANE}", "v_add_u32 v44, s50, v44", "v_mov_b32 v43, 1")
        for t in range(9):
            fs = I(f"buffer_store_dword v43, v44, {SRD_F}, s52 offen sc1"); fs.tag = "fl"
            tail += II(f"s_mov_b32 s52, {t*512}") + [VmNeed(f"st{t}"), fs]
    seq, q = vm_waits(seq + tail, queue)
    seq, pend = lgkm_waits(seq)
    seq, n = hazards(seq)
    if OPT['verbose']: print(S.report("out_proj"), "nops", n)
    L += seq
    return L, q

SPIN = 1 << 22
def reduce_phase():
    L = []; A = lambda *x: L.extend(II(*x))
    A(f"s_mov_b32 s53, {SPIN}", f"s_lshl_b32 s50, {S_CL}, 2", f"v_lshlrev_b32 v46, 8, {V_LANE}", "v_add_u32 v46, s50, v46")
    A("L_cnt_check:", "v_readfirstlane_b32 s52, v47", "s_nop 3", "s_cmp_ge_u32 s52, 16", "s_cbranch_scc1 L_cnt_ok",
      "s_sub_u32 s53, s53, 1", "s_cmp_eq_u32 s53, 0", "s_cbranch_scc1 L_cnt_ok", "s_sleep 2",
      f"buffer_load_dword v47, v46, {SRD_D}, 0 offen sc1", "s_waitcnt vmcnt(0)", "s_branch L_cnt_check", "L_cnt_ok:")
    A(f"s_lshr_b32 s50, {S_HP}, 2", "s_lshl_b32 s50, s50, 7",
      f"v_lshrrev_b32 v2, 4, {V_LANE}", "v_lshlrev_b32 v3, 13, v2", f"v_and_b32 v4, 15, {V_LANE}",
      "v_lshl_add_u32 v3, v4, 2, v3", "v_add_u32 v3, s50, v3",
      f"v_lshlrev_b32 v5, 4, {V_LANE}",
      "v_lshlrev_b32 v6, 11, v4", "v_lshl_add_u32 v6, v2, 4, v6")
    A(f"s_mul_i32 s32, {S_B}, {144*2048}", f"s_lshl_b32 s50, {S_BR}, 10", "s_add_u32 s32, s32, s50", f"s_lshl_b32 s50, {S_HP}, 6", "s_add_u32 s32, s32, s50")
    A(f"s_mul_i32 s33, {S_HP}, {9*16384}")
    A(f"s_mov_b32 s34, {S_W}")
    A("L_red_tile:")
    A("s_lshl_b32 s35, s34, 9", f"s_mov_b32 s53, {SPIN}")
    A("L_poll:", f"buffer_load_dword v7, v3, {SRD_F}, s35 offen sc1", "s_waitcnt vmcnt(0)",
      "v_cmp_eq_u32 vcc, 1, v7", "s_nop 3", "s_and_b32 s50, vcc_lo, 0xffff", "s_cmp_eq_u32 s50, 0xffff", "s_cbranch_scc1 L_poll_ok",
      "s_sub_u32 s53, s53, 1", "s_cmp_eq_u32 s53, 0", "s_cbranch_scc1 L_poll_ok", "s_sleep 1", "s_branch L_poll", "L_poll_ok:")
    A("s_lshl_b32 s50, s34, 14", "s_add_u32 s50, s50, s33", "s_add_u32 s51, s50, 4096", "s_add_u32 s52, s50, 8192", "s_add_u32 s53, s50, 12288")
    for p in range(16):
        so = ["s50", "s51", "s52", "s53"][p // 4]
        o = f" offset:{(p % 4) * 1024}" if p % 4 else ""
        A(f"buffer_load_dwordx4 v[{64+4*p}:{67+4*p}], v5, {SRD_P}, {so} offen{o} {OPT['rld']}")
    acc = 16
    for p in range(16):
        A(f"s_waitcnt vmcnt({15-p})")
        for k in range(4):
            r = 64 + 4 * p + k
            if p == 0:
                A(f"v_lshlrev_b32 v{acc+2*k}, 16, v{r}", f"v_and_b32 v{acc+2*k+1}, 0xffff0000, v{r}")
            else:
                A(f"v_lshlrev_b32 v{8+2*(k&1)}, 16, v{r}", f"v_and_b32 v{9+2*(k&1)}, 0xffff0000, v{r}",
                  f"v_pk_add_f32 v[{acc+2*k}:{acc+2*k+1}], v[{acc+2*k}:{acc+2*k+1}], v[{8+2*(k&1)}:{9+2*(k&1)}]")
    for k in range(4): A(f"v_cvt_pk_bf16_f32 v{12+k}, v{acc+2*k}, v{acc+2*k+1}")
    A("s_lshl_b32 s50, s34, 15", "s_add_u32 s50, s50, s32")
    A(f"buffer_store_dwordx4 v[12:15], v6, {SRD_O}, s50 offen")
    A("s_add_u32 s34, s34, 4", "s_cmp_lt_u32 s34, 9", "s_cbranch_scc1 L_red_tile")
    return L

def dump_regs(regs, slot, kind='v'):
    L = []; A = lambda *x: L.extend(II(*x))
    A("s_add_u32 s66, s58, 0x4000000", "s_addc_u32 s67, s59, 0",
      "s_lshl_b32 s50, s2, 2", f"s_add_u32 s50, s50, {S_W}", "s_lshl_b32 s50, s50, 16",
      f"v_lshlrev_b32 v253, 2, {V_LANE}", "v_add_u32 v253, s50, v253")
    for i, r in enumerate(regs):
        if kind == 'a':
            A(f"v_accvgpr_read_b32 v254, a{r}", "s_nop 0")
            A(f"global_store_dword v253, v254, s[66:67]")
        else:
            A(f"global_store_dword v253, v{r}, s[66:67]")
        A("v_add_u32 v253, 256, v253")
    A("s_waitcnt vmcnt(0)")
    return L

def main_kernel():
    L = []
    L += setup()
    L += stamp("start")
    L += phase_q()
    L += stamp("q_done")
    if OPT['dump'] == 'q':
        L += II("s_nop 7") + dump_regs([qfrag(t, s) + k for t in range(5) for s in range(4) for k in range(4)], 0)
        L += II("s_waitcnt vmcnt(0)", "s_endpgm")
    L += attention()
    if OPT['dump'] == 'o':
        L += II("s_nop 7") + dump_regs([oacc(dt, t) + k for t in range(5) for dt in range(8) for k in range(4)] + [lacc(t) for t in range(5)], 0, 'a')
        L += II("s_waitcnt vmcnt(0)", "s_endpgm")
    e, q = o_epilogue(); L += e
    L += stamp("o_done")
    e, q = out_proj(q); L += e
    L += stamp("op_done")
    if OPT['fused']:
        L += reduce_phase()
        L += stamp("red_done")
    L += tr_dump()
    L += II("s_waitcnt vmcnt(0)")
    L += stamp("end")
    L += stamp_dump()
    L += II("L_main_end:", "s_endpgm")
    return L

def reduce_kernel():
    L = []; A = lambda *x: L.extend(II(*x))
    A("s_cmp_ge_u32 s2, 256", "s_cbranch_scc1 L_red_end")
    A("s_load_dwordx2 s[4:5], s[0:1], 80", "s_load_dwordx2 s[6:7], s[0:1], 96")
    A("v_lshrrev_b32 v2, 6, v0", "v_and_b32 v1, 63, v0", "s_nop 0", "v_readfirstlane_b32 s12, v2", "s_nop 3")
    A("s_waitcnt lgkmcnt(0)")
    A("s_mul_i32 s13, s2, 9", "s_add_u32 s13, s13, s12", "s_lshl_b32 s13, s13, 14")
    A("s_add_u32 s16, s6, s13", "s_addc_u32 s17, s7, 0", "s_and_b32 s17, s17, 0xffff", "s_mov_b32 s18, 16384", "s_mov_b32 s19, 0x20000")
    A("v_lshlrev_b32 v2, 4, v1")
    for p in range(16):
        A(f"buffer_load_dwordx4 v[{8+4*p}:{11+4*p}], v2, s[16:19], 0 offen offset:{(p%4)*1024}" if p < 4 else
          f"buffer_load_dwordx4 v[{8+4*p}:{11+4*p}], v2, s[16:19], s{20+p//4} offen offset:{(p%4)*1024}")
        if p == 3: A("s_mov_b32 s21, 4096", "s_mov_b32 s22, 8192", "s_mov_b32 s23, 12288")
    A("s_lshr_b32 s14, s2, 4", "s_and_b32 s15, s2, 15",
      "s_and_b32 s24, s14, 7", "s_lshr_b32 s25, s14, 3",
      "s_mul_i32 s24, s24, 144", "s_lshl_b32 s26, s12, 4", "s_add_u32 s24, s24, s26", "s_lshl_b32 s24, s24, 11",
      "s_lshl_b32 s25, s25, 10", "s_lshl_b32 s15, s15, 6", "s_add_u32 s24, s24, s25", "s_add_u32 s24, s24, s15")
    A("v_and_b32 v3, 15, v1", "v_lshlrev_b32 v3, 11, v3", "v_lshrrev_b32 v4, 4, v1", "v_lshl_add_u32 v3, v4, 4, v3")
    A("s_mov_b32 s28, s4", "s_and_b32 s29, s5, 0xffff", "s_mov_b32 s30, 2359296", "s_mov_b32 s31, 0x20000")
    acc = 80
    for p in range(16):
        A(f"s_waitcnt vmcnt({15-p})")
        for k in range(4):
            r = 8 + 4 * p + k
            if p == 0:
                A(f"v_lshlrev_b32 v{acc+2*k}, 16, v{r}", f"v_and_b32 v{acc+2*k+1}, 0xffff0000, v{r}")
            else:
                A(f"v_lshlrev_b32 v6, 16, v{r}", f"v_and_b32 v7, 0xffff0000, v{r}",
                  f"v_add_f32 v{acc+2*k}, v{acc+2*k}, v6", f"v_add_f32 v{acc+2*k+1}, v{acc+2*k+1}, v7")
    for k in range(4): A(f"v_cvt_pk_bf16_f32 v{8+k}, v{acc+2*k}, v{acc+2*k+1}")
    A("buffer_store_dwordx4 v[8:11], v3, s[28:31], s24 offen")
    A("s_waitcnt vmcnt(0)")
    A("L_red_end:", "s_endpgm")
    return L

def kernel_text(name, body, vgpr, accum, sgpr=102):
    return f""".globl {name}
.p2align 8
.type {name},@function
{name}:
{text(body)}
"""
def kd(name, nfv, accum, sgpr=102):
    return f""".amdhsa_kernel {name}
  .amdhsa_next_free_vgpr {nfv}
  .amdhsa_next_free_sgpr {sgpr}
  .amdhsa_accum_offset {accum}
  .amdhsa_group_segment_fixed_size 0
  .amdhsa_kernarg_size 104
  .amdhsa_user_sgpr_count 2
  .amdhsa_user_sgpr_kernarg_segment_ptr 1
  .amdhsa_system_sgpr_workgroup_id_x 1
.end_amdhsa_kernel
"""

def build():
    stamp_id[0] = 0; STAMPS.clear()
    k1 = NAME + "_kernel"; k2 = "reduce_heads_kernel"
    m = main_kernel()
    hdr = "; fused q-projection + attention + out-projection; the 16 head-pair partials of an output slice are summed by its owner\n"
    if OPT['fused']:
        hdr += f"; @launch grid=(256,1,1) block=(256,1,1) lds=163840\n"
    else:
        hdr += f"; @launch kernel={k1} grid=(256,1,1) block=(256,1,1) lds=163840\n"
        hdr += f"; @launch kernel={k2} grid=(256,1,1) block=(576,1,1) lds=0\n"
    s = hdr + '.amdgcn_target "amdgcn-amd-amdhsa--gfx950"\n.text\n'
    s += kernel_text(k1, m, 512, 256)
    if not OPT['fused']: s += kernel_text(k2, reduce_kernel(), 96, 96)
    s += '.section .rodata,"a"\n.p2align 6\n' + kd(k1, 512, 256)
    if not OPT['fused']: s += ".p2align 6\n" + kd(k2, 96, 96, 40)
    return s

if __name__ == "__main__":
    ap = argparse.ArgumentParser()
    ap.add_argument("-o", default="cdna_kernels/" + NAME + ".s")
    ap.add_argument("--dump"); ap.add_argument("--stamps", action="store_true"); ap.add_argument("-v", action="store_true")
    ap.add_argument("--opt", action="append", default=[])
    a = ap.parse_args()
    OPT['dump'] = a.dump; OPT['stamps'] = a.stamps; OPT['verbose'] = a.v
    for o in a.opt:
        k, v = o.split("=", 1)
        OPT[k] = {'True': True, 'False': False}.get(v, int(v) if v.lstrip('-').isdigit() else v)
    s = build()
    open(a.o, "w").write(s)
    if a.stamps:
        import json; json.dump(STAMPS, open(a.o + ".stamps.json", "w"))
    print("wrote", a.o, len(s), "bytes")
```

```python
import sys, argparse
from ir import *

NAME = "concat_heads__gqa_block_cached__mha_block_cached__near_ridge"
OPT = dict(lthr=0, start2=True, pf=2, pfnt=False, fused=True, rld='sc1', rot=True, wnt=False, xnt=False, wont=False, bursts=(3, 6, 9), dump=None, stamps=False, stop=None, kvnt=True, pst="sc1", verbose=False)

VB = 0
KB = 65536
WB = 16384
XB = 114688
WOA = 131072
WOB = 98304
OB = 0
def kphys(k): return ((k + 1) & 3) * 16384
def vphys(k): return (k & 3) * 16384

SRD_X, SRD_WQ, SRD_K, SRD_V, SRD_WO, SRD_P = "s[4:7]", "s[8:11]", "s[12:15]", "s[16:19]", "s[20:23]", "s[24:27]"
SRD_F, SRD_D, SRD_O = "s[68:71]", "s[72:75]", "s[80:83]"
S_W, S_U, S_QH, S_CNT = "s28", "s29", "s30", "s31"
S_SOFFX, S_SOFFW0, S_UNUSED, S_MW, S_MX, S_DSLOT, S_RSLOT, S_DW, S_DX = "s32", "s33", "s34", "s35", "s36", "s37", "s38", "s39", "s40"
S_BW, S_BX = "s41", "s42"
S_SOFFK, S_SOFFV, S_MK, S_MV = "s45", "s46", "s47", "s48"
S_T0, S_T1, S_T2, S_T3 = "s50", "s51", "s52", "s53"
S_HP, S_B, S_BR, S_CL = "s54", "s55", "s56", "s57"
S_WS = "s[58:59]"
S_SOFFP = "s60"
S_STAMP = "s[62:63]"
S_FLAG = "s64"
S_SAFE = "s61"
LTHR = 0x4b800000
S_KS, S_X0, S_W0 = "s88", "s89", "s87"
S_TAU, S_TB, S_TQ, S_T4N, S_TMASK, S_TSH, S_TM, S_TS = "s78", "s79", "s43", "s44", "s34", "s49", "s61", "s95"

V_LANE = "v1"
V_WQR = [2, 3, 4, 5]; V_XR = 6
V_WQD = [7, 8, 9, 10]; V_XD = [11, 12, 13]; V_TG, V_TI, V_TB, V_TV = 14, 15, 62, 63
V_KD = [16, 17, 18, 19]; V_VD = [20, 21]
V_KR = [22, 23, 24, 25]; V_VR = [26 + i for i in range(8)]
V_WOD = [34, 35, 36, 37]; V_WOR = [38, 39, 40, 41]
V_OW, V_OR, V_OR8, V_PS = 42, 43, 44, 45
VT = [46 + i for i in range(18)]
RB = 64
def grp(t, s): return RB + (t * 4 + s) * 8
def qacc(dt, t): return grp(t, dt >> 1) + 4 * (dt & 1)
def qfrag(t, s): return grp(t, s)
def Sreg(kt, t): return grp(t, kt) + 4
def Preg(par, t): return grp(t, 2 + par) + 4
def cinit(t): return 224 + 4 * t
V_C0, V_C1 = 244, 245
def vr(b, n=4): return f"v[{b}:{b+n-1}]"
def ar(b, n=4): return f"a[{b}:{b+n-1}]"
def oacc(dt, t): return t * 32 + dt * 4
def lacc(t): return 160 + 4 * t
A_ONES = 180
def abuf(i): return 184 + 4 * i
def bbuf(t): return [48, 52, 56, 60, 248][t]
def kbuf(kt, s): return 216 + 4 * (kt * 4 + s)

MF = "v_mfma_f32_16x16x32_bf16"
def mfma(d, a, b, c): return I(f"{MF} {d}, {a}, {b}, {c}")
SCALE = (128 ** -0.5) * 1.4426950408889634
import struct
def f2u(x): return struct.unpack("<I", struct.pack("<f", x))[0]

def NT(): return " nt" if OPT['kvnt'] else ""

stamp_id = [0]
def stamp(name):
    if not OPT['stamps']: return []
    i = stamp_id[0]; stamp_id[0] += 1
    STAMPS.append(name)
    return II("s_memrealtime s[66:67]", "s_memtime s[64:65]", "s_waitcnt lgkmcnt(0)",
              f"v_writelane_b32 v0, s66, {i}", f"v_writelane_b32 v0, s64, {32 + i}")
def stamp_dump():
    if not OPT['stamps']: return []
    return II("s_add_u32 s62, s58, 0x8000000", "s_addc_u32 s63, s59, 0", "s_lshl_b32 s65, s2, 2", f"s_add_u32 s65, s65, {S_W}", "s_lshl_b32 s65, s65, 8",
              f"v_lshlrev_b32 v1, 2, {V_LANE}", "v_add_u32 v1, s65, v1", "global_store_dword v1, v0, s[62:63]")
STAMPS = []

def setup():
    L = []
    A = lambda *x: L.extend(II(*x))
    A("s_cmp_ge_u32 s2, 256", "s_cbranch_scc1 L_main_end")
    A("s_load_dwordx8 s[68:75], s[0:1], 0", "s_load_dwordx2 s[76:77], s[0:1], 32",
      "s_load_dwordx8 s[80:87], s[0:1], 40", "s_load_dwordx2 s[88:89], s[0:1], 72",
      f"s_load_dwordx2 {S_WS}, s[0:1], 96", "s_load_dwordx4 s[96:99], s[0:1], 80")
    A("s_and_b32 s50, s2, 7", "s_lshr_b32 s51, s2, 3",
      f"s_lshr_b32 {S_BR}, s50, 2",
      "s_and_b32 s52, s50, 3", "s_lshl_b32 s52, s52, 2", "s_and_b32 s53, s51, 3", f"s_add_u32 {S_HP}, s52, s53",
      f"s_lshr_b32 {S_B}, s51, 2",
      f"s_lshl_b32 s52, {S_BR}, 3", f"s_add_u32 {S_CL}, s52, {S_B}")
    A("v_lshrrev_b32 v46, 6, v0", f"v_and_b32 {V_LANE}, 63, v0", "s_nop 0", f"v_readfirstlane_b32 {S_W}, v46", "s_nop 3")
    A(f"s_lshr_b32 {S_U}, {S_W}, 1", f"s_and_b32 {S_QH}, {S_W}, 1", f"s_mov_b32 {S_SAFE}, 0")
    A(lane_consts_q())
    A("s_waitcnt lgkmcnt(0)")
    A(f"s_cmp_eq_u32 {S_BR}, 1")
    for i in range(8): A(f"s_cselect_b32 s{68+i}, s{80+i}, s{68+i}")
    A("s_cselect_b32 s76, s88, s76", "s_cselect_b32 s77, s89, s77")
    def srd(dst, lo, hi, off_expr_regs, nrec):
        A(f"s_add_u32 s{dst}, s{lo}, s50", f"s_addc_u32 s{dst+1}, s{hi}, 0", f"s_and_b32 s{dst+1}, s{dst+1}, 0xffff")
        A(nrec, f"s_mov_b32 s{dst+3}, 0x20000")
    A(f"s_mul_i32 s50, {S_B}, 147456"); srd(4, 68, 69, None, "s_mov_b32 s6, 147456")
    A(f"s_lshl_b32 s50, {S_HP}, 9"); srd(8, 74, 75, None, "s_sub_u32 s10, 4194304, s50")
    A(f"s_lshl_b32 s50, {S_B}, 5", f"s_lshl_b32 s51, {S_HP}, 1", "s_add_u32 s50, s50, s51", f"s_add_u32 s50, s50, {S_U}", "s_lshl_b32 s50, s50, 17")
    srd(12, 70, 71, None, "s_mov_b32 s14, 131072")
    srd(16, 72, 73, None, "s_mov_b32 s18, 131072")
    A(f"s_lshl_b32 s50, {S_HP}, 18", f"s_lshl_b32 s51, {S_W}, 8", "s_add_u32 s50, s50, s51")
    A("s_sub_u32 s52, 262144, s51")
    srd(20, 76, 77, None, "s_mov_b32 s22, s52")
    A(f"s_lshl_b32 s50, {S_HP}, 18"); srd(84, 76, 77, None, "s_mov_b32 s86, 262144")
    A(f"s_mul_i32 s50, {S_CL}, 2359296"); srd(24, 58, 59, None, "s_mov_b32 s26, 2359296")
    if OPT['fused']:
        A(f"s_mul_i32 s50, {S_CL}, 4608", "s_add_u32 s50, s50, 0x3000000"); srd(68, 58, 59, None, "s_mov_b32 s70, 4608")
        A("s_mov_b32 s72, s98", "s_and_b32 s73, s99, 0xffff", "s_mov_b32 s74, 256", "s_mov_b32 s75, 0x20000")
        A("s_mov_b32 s80, s96", "s_and_b32 s81, s97, 0xffff", "s_mov_b32 s82, 2359296", "s_mov_b32 s83, 0x20000")
        A(f"s_lshl_b32 s50, {S_W}, 7", f"s_lshl_b32 s51, {S_HP}, 2", "s_add_u32 s50, s50, s51",
          f"v_lshlrev_b32 v46, 13, {V_LANE}", "v_add_u32 v46, s50, v46", "v_mov_b32 v47, 0",
          f"buffer_store_dword v47, v46, {SRD_F}, 0 offen sc1")
    return L

def lane_consts_q():
    L = []; A = lambda *x: L.extend(II(*x))
    l = V_LANE; t0, t1, t2, t3, t4, t5 = [f"v{x}" for x in VT[:6]]
    A(f"v_lshrrev_b32 {t0}, 4, {l}", f"v_bfe_u32 {t1}, {l}, 2, 2", f"v_and_b32 {t2}, 3, {l}", f"v_and_b32 {t3}, 15, {l}")
    for n in range(4):
        A(f"v_add_u32 {t4}, {4*n}, {t0}", f"v_xor_b32 {t4}, {t4}, {t3}", f"v_lshlrev_b32 {t4}, 4, {t4}",
          f"v_lshl_add_u32 v{V_KD[n]}, {t0}, 8, {t4}")
    for n in range(2):
        A(f"v_add_u32 {t4}, {4*n}, {t0}", f"v_lshlrev_b32 {t4}, 1, {t4}", f"v_xor_b32 {t4}, {t4}, {t3}", f"v_lshlrev_b32 {t4}, 4, {t4}",
          f"v_lshl_add_u32 v{V_VD[n]}, {t0}, 8, {t4}")
    A(f"v_lshrrev_b32 {t4}, 5, {l}")
    A(f"v_bfe_u32 {t5}, {l}, 4, 1")
    for j in range(4):
        d = f"v{V_WQD[j]}"
        A(f"v_add_u32 {d}, {2*j}, {t4}",
          f"v_and_b32 v{VT[6]}, 3, {d}", f"v_lshlrev_b32 v{VT[6]}, 2, v{VT[6]}", f"v_xor_b32 v{VT[6]}, v{VT[6]}, {t3}", f"v_lshlrev_b32 v{VT[6]}, 4, v{VT[6]}",
          f"v_lshlrev_b32 {d}, 13, {d}", f"v_add_u32 {d}, {d}, v{VT[6]}", f"v_lshl_add_u32 {d}, {t5}, 8, {d}")
        if j: A(f"v_subrev_u32 {d}, {1024*j}, {d}")
    A(f"v_lshlrev_b32 {t4}, 1, {t0}", f"v_mov_b32 {t5}, 0x78", f"v_lshrrev_b32 {t4}, {t4}, {t5}", f"v_and_b32 {t4}, 3, {t4}",
      f"v_xor_b32 {t4}, {t4}, {t2}", f"v_lshlrev_b32 {t4}, 4, {t4}",
      f"v_lshrrev_b32 {t5}, 2, {l}", f"v_lshl_add_u32 {t4}, {t5}, 10, {t4}")
    for j in range(3):
        A(f"v_add_u32 v{V_XD[j]}, {j*16384 - 1024*j}, {t4}")
    A(f"v_lshl_add_u32 {t4}, {t0}, 3, {t1}", f"v_lshlrev_b32 {t4}, 9, {t4}", f"v_lshl_add_u32 {t4}, {t2}, 4, {t4}",
      f"s_lshl_b32 s50, {S_U}, 8", f"s_add_u32 s50, s50, {WB}", f"v_add_u32 {t4}, s50, {t4}")
    for s in range(4):
        A(f"v_xor_b32 {t5}, {s}, {t1}", f"v_lshl_add_u32 v{V_WQR[s]}, {t5}, 6, {t4}")
    A(f"v_lshrrev_b32 {t4}, 2, {t3}", f"v_lshlrev_b32 {t4}, 1, {t4}", f"v_mov_b32 {t5}, 0x78", f"v_lshrrev_b32 {t4}, {t4}, {t5}", f"v_and_b32 {t4}, 3, {t4}",
      f"v_xor_b32 {t4}, {t4}, {t0}", f"v_lshlrev_b32 {t4}, 4, {t4}", f"v_lshl_add_u32 {t4}, {t3}, 6, {t4}",
      f"s_lshl_b32 s50, {S_QH}, 12", f"s_add_u32 s50, s50, {XB}", f"v_add_u32 v{V_XR}, s50, {t4}")
    return L

def lane_consts_rest():
    L = []; A = lambda *x: L.extend(II(*x))
    l = V_LANE; t0, t1, t2, t3, t4, t5, t6 = [f"v{x}" for x in VT[:7]]
    A(f"v_lshrrev_b32 {t0}, 4, {l}", f"v_bfe_u32 {t1}, {l}, 2, 2", f"v_and_b32 {t2}, 3, {l}", f"v_and_b32 {t3}, 15, {l}")
    A(f"s_lshl_b32 s50, {S_U}, 13", f"s_add_u32 s51, s50, {KB}", f"v_lshlrev_b32 {t4}, 8, {t3}", f"v_add_u32 {t4}, s51, {t4}")
    for s in range(4):
        A(f"v_add_u32 {t5}, {4*s}, {t0}", f"v_xor_b32 {t5}, {t5}, {t3}", f"v_lshl_add_u32 v{V_KR[s]}, {t5}, 4, {t4}")
    A(f"v_lshrrev_b32 {t4}, 2, {l}", f"v_and_b32 {t5}, 7, {t4}", f"v_lshlrev_b32 {t5}, 1, {t5}",
      f"v_lshlrev_b32 {t4}, 8, {t4}", f"v_add_u32 {t4}, s50, {t4}",
      f"v_and_b32 {t6}, 1, {t2}", f"v_lshl_add_u32 {t4}, {t6}, 3, {t4}",
      f"v_lshrrev_b32 {t6}, 1, {t2}")
    for dt in range(8):
        d = f"v{V_VR[dt]}"
        A(f"v_add_u32 {d}, {2*dt}, {t6}", f"v_xor_b32 {d}, {d}, {t5}", f"v_lshl_add_u32 {d}, {d}, 4, {t4}")
    A(f"v_lshlrev_b32 {t4}, 2, {t0}", f"v_xor_b32 {t4}, {t4}, {t3}", f"v_lshlrev_b32 {t4}, 4, {t4}", f"v_lshl_add_u32 {t4}, {t0}, 10, {t4}")
    for n in range(4):
        A(f"v_add_u32 v{V_WOD[n]}, {n*3072}, {t4}")
    A(f"v_lshrrev_b32 {t4}, 2, {l}", f"v_lshlrev_b32 {t4}, 8, {t4}", f"v_lshl_add_u32 {t4}, {t2}, 4, {t4}",
      f"s_lshl_b32 s50, {S_W}, 13", f"s_add_u32 s50, s50, {WOB}", f"v_add_u32 {t4}, s50, {t4}")
    for cp in range(4):
        A(f"v_xor_b32 {t5}, {cp}, {t1}", f"v_lshl_add_u32 v{V_WOR[cp]}, {t5}, 6, {t4}")
    A(f"s_lshl_b32 s50, {S_QH}, 15", f"s_lshl_b32 s51, {S_U}, 12", "s_add_u32 s50, s50, s51",
      f"v_lshlrev_b32 v{V_OR}, 4, {l}", f"v_add_u32 v{V_OW}, s50, v{V_OR}", f"v_add_u32 v{V_OR8}, 0x10000, v{V_OR}")
    A(f"s_lshl_b32 s50, {S_HP}, 10", f"v_add_u32 v{V_PS}, s50, v{V_OR}")
    return L

def dma(voff, srd, soff, imm, nt=False):
    o = f" offset:{imm}" if imm else ""
    return I(f"buffer_load_dwordx4 v{voff}, {srd}, {soff} offen{o}{' nt' if nt else ''} lds")

def kv_group(kind, m0expr, soffreg):
    if kind == 'K':
        return [dma(V_KD[n], SRD_K, soffreg, n * 1024, OPT['kvnt']) for n in range(4)]
    return [dma(V_VD[n & 1], SRD_V, soffreg, n * 1024, OPT['kvnt']) for n in range(4)]

def kv_tile_full_unused(kind, j):
    L = []
    base = (KB + kphys(j)) if kind == 'K' else (VB + vphys(j))
    for gI in range(2):
        L += II(f"s_lshl_b32 s50, {S_U}, 13", f"s_add_u32 m0, s50, {base + gI*4096}", f"s_mov_b32 s51, {j*8192 + gI*4096}")
        L += kv_group(kind, None, "s51")
    return L

def stage_setup_scalar():
    return II(f"s_lshr_b32 s50, s2, 3", "s_and_b32 s51, s50, 3", "s_lshl_b32 s51, s51, 2", "s_lshr_b32 s50, s50, 2", "s_lshl_b32 s50, s50, 1",
              f"s_add_u32 s52, s50, s51", f"s_and_b32 s52, s52, {15 if OPT['rot'] else 0}",
              f"s_lshl_b32 s50, s52, 6", f"s_lshl_b32 s51, {S_W}, 15", f"s_add_u32 {S_SOFFX}, s50, s51",
              f"s_lshl_b32 s50, s52, 18", f"s_lshl_b32 s51, {S_W}, 16", f"s_add_u32 {S_SOFFW0}, s50, s51",
              f"s_lshl_b32 s50, {S_W}, 12", f"s_add_u32 {S_BW}, s50, {WB}",
              f"s_lshl_b32 s50, {S_W}, 11", f"s_add_u32 {S_BX}, s50, {XB}",
              f"s_mov_b32 {S_MW}, 0", f"s_mov_b32 {S_MX}, 0",
              f"s_lshl_b32 {S_TQ}, {S_QH}, 12",
              f"s_lshl_b32 s50, {S_U}, 13", f"s_add_u32 s50, s50, {S_TQ}", f"s_add_u32 {S_MK}, s50, {KB}", f"s_add_u32 {S_MV}, s50, {VB}")

def stage_dma_list():
    seq = []
    if OPT.get('x_nodma'): return [([I('s_mov_b32 m0, s35')], I('s_nop 0'))]
    if OPT.get('x_nox'):
        seq.append(([I(f"s_mov_b32 m0, {S_MW}")], dma(V_WQD[0], SRD_WQ, S_SOFFW0, 0)))
        for j in range(1, 4): seq.append(([], dma(V_WQD[j], SRD_WQ, S_SOFFW0, j * 1024)))
        return seq
    if OPT.get('x_now'):
        seq.append(([I(f"s_mov_b32 m0, {S_MX}")], dma(V_XD[0], SRD_X, S_SOFFX, 0)))
        for j in range(1, 3): seq.append(([], dma(V_XD[j], SRD_X, S_SOFFX, j * 1024)))
        return seq
    seq.append(([I(f"s_add_u32 m0, {S_MW}, {S_BW}")], dma(V_WQD[0], SRD_WQ, S_SOFFW0, 0, OPT['wnt'])))
    for j in range(1, 4): seq.append(([], dma(V_WQD[j], SRD_WQ, S_SOFFW0, j * 1024, OPT['wnt'])))
    seq.append(([I(f"s_add_u32 m0, {S_MX}, {S_BX}")], dma(V_XD[0], SRD_X, S_SOFFX, 0, OPT['xnt'])))
    for j in range(1, 3): seq.append(([], dma(V_XD[j], SRD_X, S_SOFFX, j * 1024, OPT['xnt'])))
    return seq

def place_dma(S, seq, gaps):
    k = 0
    last = None
    for e in seq:
        if e[0]:
            for p in e[0]: S.put(gaps[k], p)
            k += 1
        S.put(gaps[k], e[1]); last = gaps[k]
        if len(e) > 2:
            for p in e[2]: S.put(gaps[k] + 1, p)
        k += 1
    return last

def stage_advance_w():
    return II(f"s_add_u32 {S_SOFFW0}, {S_SOFFW0}, 262144", f"s_and_b32 {S_SOFFW0}, {S_SOFFW0}, 0x3fffff",
              f"s_add_u32 {S_MW}, {S_MW}, 16384", f"s_and_b32 {S_MW}, {S_MW}, 0xffff")
def stage_advance_x():
    return II(f"s_add_u32 {S_SOFFX}, {S_SOFFX}, 64", f"s_and_b32 {S_SOFFX}, {S_SOFFX}, 0xfffffbff",
              f"s_add_u32 {S_MX}, {S_MX}, 9216", f"s_cmp_eq_u32 {S_MX}, 36864", f"s_cselect_b32 {S_MX}, 0, {S_MX}")
def stage_advance(): return stage_advance_w() + stage_advance_x()

def straight(seq):
    L = []
    for e in seq:
        L += e[0]
        if e[0]: L += II("s_nop 0")
        L.append(e[1])
        if len(e) > 2: L += e[2]
    return L

def stage_issue_straight(advance=True):
    return straight(stage_dma_list()) + (stage_advance() if advance else [])

def wq_read(dt, h2):
    if OPT.get('x_noread'): return I('s_nop 0')
    if OPT.get('x_fakewq'): return I(f"ds_read_b64_tr_b16 {ar(abuf(dt) + 2*h2, 2)}, v{V_VR[dt]} offset:{16384 + h2*4096}")
    s, hf = dt >> 1, dt & 1
    b = abuf(dt) + 2 * h2
    off = hf * 8 + h2 * 2048
    return I(f"ds_read_b64_tr_b16 {ar(b,2)}, v{V_WQR[s]}" + (f" offset:{off}" if off else ""))
def x_read(t):
    if OPT.get('x_noread'): return I('s_nop 0')
    return I(f"ds_read_b128 {vr(bbuf(t))}, v{V_XR}" + (f" offset:{t*1024}" if t else ""))
def q_mfma(dt, t):
    if OPT.get('x_t4') and t == 4: return I("s_nop 3")
    if OPT.get('x_t45') and t == 4 and dt >= 4: return I("s_nop 3")
    return mfma(vr(qacc(dt, t)), ar(abuf(dt)), vr(bbuf(t)), vr(qacc(dt, t)))

def half_group(kind, j):
    if kind == 'K':
        pre = II(f"s_add_u32 m0, {S_MK}, {kphys(j)}", f"s_add_u32 s51, {S_TQ}, {j*8192}")
    else:
        pre = II(f"s_add_u32 m0, {S_MV}, {vphys(j)}", f"s_add_u32 s51, {S_TQ}, {j*8192}")
    g = kv_group(kind, None, "s51")
    return [(pre, g[0])] + [([], x) for x in g[1:]]

def put_dmas(S, seq, gaps):
    prev = -1
    for e, g in zip(seq, gaps):
        if e[0]:
            assert g - 1 > prev or prev < 0, (g, prev)
            for p in e[0]: S.put(g - 1, p)
        S.put(g, e[1])
        if len(e) > 2:
            for p in e[2]: S.put(g + 1, p)
        prev = g
    assert len(seq) <= len(gaps)

QTAIL = (4, 5, 6, 7)
def q_tail(): return [q_mfma(dt, t) for t in range(5) for dt in QTAIL]
def q_body(with_dma, extra_dma=None, last_wait=None, loopctl=False):
    ms = q_tail() + [q_mfma(dt, t) for t in range(5) for dt in range(4)]
    S = Sched(ms)
    a = lambda dt, h: wq_read(dt, h)
    plan = {0: a(0,0), 1: a(0,1), 2: a(1,0), 3: a(1,1), 4: x_read(0), 5: a(2,0), 7: a(2,1), 8: x_read(1), 9: a(3,0), 11: a(3,1),
            12: x_read(2), 16: x_read(3), 20: x_read(4), 21: a(4,0), 22: a(4,1), 23: a(5,0), 24: a(5,1), 25: a(6,0), 27: a(6,1), 28: a(7,0), 29: a(7,1)}
    for g, ins in plan.items(): S.put(g, ins)
    S.put(13, f"s_cmp_eq_u32 {S_RSLOT}, 3", f"s_cselect_b32 {S_DW}, s90, s91", f"s_cselect_b32 {S_DX}, s92, s93")
    S.put(15, f"s_add_u32 {S_RSLOT}, {S_RSLOT}, 1", f"s_and_b32 {S_RSLOT}, {S_RSLOT}, 3")
    S.spread([f"v_add_u32 v{V_WQR[0]}, {S_DW}, v{V_WQR[0]}", f"v_add_u32 v{V_WQR[1]}, {S_DW}, v{V_WQR[1]}"], [31, 31])
    S.spread([f"v_add_u32 v{V_WQR[2]}, {S_DW}, v{V_WQR[2]}", f"v_add_u32 v{V_WQR[3]}, {S_DW}, v{V_WQR[3]}"], [32, 32])
    S.put(33, f"v_add_u32 v{V_XR}, {S_DX}, v{V_XR}")
    if with_dma:
        put_dmas(S, stage_dma_list(), [6, 10, 14, 18, 26, 30, 34])
        w = stage_advance_w()
        S.put(19, w[0], w[1]); S.put(19, w[2]); S.put(22, w[3])
        S.put(35, stage_advance_x()[:2]); S.put(38, stage_advance_x()[2:])
    if extra_dma:
        put_dmas(S, extra_dma, [6, 10, 14, 18, 26, 30, 34, 36][:len(extra_dma)])
    endw = []
    if loopctl:
        b0 = OPT['bursts'][0]
        S.put(17, f"s_sub_u32 s50, {S_CNT}, {b0}", "s_cmp_lt_u32 s50, 9", "s_cselect_b64 vcc, -1, 0")
        S.put(21, f"s_add_u32 {S_CNT}, {S_CNT}, 1")
        S.put(35, f"s_cmp_eq_u32 {S_CNT}, s49")
        S.g[35].append(I("s_cbranch_scc1 L_q_burst")); S.g[35].append(I("L_q_burst_done:"))
        if OPT.get('x_novm'):
            S.put(36, tr_mark(), "s_waitcnt lgkmcnt(0)", "L_q_wd:", tr_commit())
        else:
            S.put(36, tr_mark(), "s_waitcnt vmcnt(18) lgkmcnt(0)", "s_cbranch_vccz L_q_w14", "L_q_wd:", tr_commit())
        if not OPT.get('x_nobar'): S.put(37, "s_barrier")
        S.put(39, f"s_cmp_lt_u32 {S_CNT}, 13")
    elif last_wait is not None:
        S.put(37, tr_mark(), f"s_waitcnt vmcnt({last_wait}) lgkmcnt(0)", tr_commit())
        S.put(38, "s_barrier")
    seq = S.flat()
    seq, pend = lgkm_waits(seq)
    assert not pend
    if OPT['verbose']: print(S.report(f"q_body dma={with_dma}"))
    return seq

def tr_mark():
    return [Raw("s_memtime s[100:101]")] if OPT.get('trace') else []
def tr_commit():
    return [Raw("s_mov_b32 s95, m0\n  s_mov_b32 m0, s94\n  s_nop 0\n  v_writelane_b32 v0, s100, m0\n  s_mov_b32 m0, s95\n  s_add_u32 s94, s94, 1")] if OPT.get('trace') else []
def tr_dump():
    if not OPT.get('trace'): return []
    return II("s_add_u32 s66, s58, 0x9000000", "s_addc_u32 s67, s59, 0", "s_lshl_b32 s50, s2, 2", f"s_add_u32 s50, s50, {S_W}", "s_lshl_b32 s50, s50, 8",
              f"v_lshlrev_b32 v253, 2, {V_LANE}", "v_add_u32 v253, s50, v253", "global_store_dword v253, v0, s[66:67]")

def zero_init():
    L = II("v_mov_b32 v244, 0", "v_mov_b32 v245, 0", "v_mov_b32 v246, 0", "v_mov_b32 v247, 0", "s_nop 1")
    for r in range(RB, RB + 160, 16): L += II(f"v_mfma_f32_32x32x16_bf16 v[{r}:{r+15}], v[244:247], v[244:247], 0")
    for r in range(0, 256, 16): L += II(f"v_mfma_f32_32x32x16_bf16 a[{r}:{r+15}], v[244:247], v[244:247], 0")
    return L

def phase_q():
    L = []; A = lambda *x: L.extend(II(*x))
    A("L_phase_q:")
    A(stage_setup_scalar(), stage_issue_straight())
    A(stamp("q_issued"))
    A(zero_init())
    A(lane_consts_rest())
    A(f"s_mov_b32 {S_RSLOT}, 0", f"s_mov_b32 {S_CNT}, 0")
    if OPT.get('trace'): A("s_mov_b32 s94, 1", "s_memtime s[100:101]", "s_waitcnt lgkmcnt(0)", "v_writelane_b32 v0, s100, 0")
    A("s_mov_b32 s90, 0xffff4000", "s_mov_b32 s91, 16384", f"s_mov_b32 s92, {hex((-3*9216) & 0xffffffff)}", "s_mov_b32 s93, 9216")
    A(f"v_mov_b32 v{VT[0]}, 0x3f803f80")
    for r in range(4): A(f"v_accvgpr_write_b32 a{A_ONES + r}, v{VT[0]}")
    for t in range(5):
        for k in range(4): A(f"v_mov_b32 v{bbuf(t)+k}, 0")
    A(f"s_mov_b32 s49, {OPT['bursts'][0] + 1}")
    if OPT['start2']:
        A(stage_issue_straight())
        A(f"s_waitcnt vmcnt(7)", "s_barrier")
    else:
        A(stage_issue_straight(), stage_issue_straight())
        A(f"s_waitcnt vmcnt(14)", "s_barrier")
    if OPT['fused']:
        A(f"s_cmp_eq_u32 {S_SAFE}, 1", "s_cbranch_scc1 L_no_arrive")
        A(f"s_lshl_b32 s50, {S_CL}, 2", f"s_lshl_b32 s51, {S_W}, 14", "s_add_u32 s50, s50, s51",
          f"v_lshlrev_b32 v46, 8, {V_LANE}", "v_add_u32 v46, s50, v46", "v_mov_b32 v47, 1",
          f"buffer_atomic_add v47, v46, {SRD_D}, 0 offen sc1")
        A("L_no_arrive:")
    if OPT['start2']: A(stage_issue_straight())
    A(stamp("q_start"))
    body = q_body(True, loopctl=True)
    body, n = hazards(body, history=body[-24:])
    A(".p2align 6", "L_q_loop:"); L.extend(body)
    b0, b1, b2 = OPT['bursts']
    assert b1 - b0 == 3 and b2 - b1 == 3
    tiles = [('K', 0), ('K', 1), ('V', 0)]
    OOL = II("L_q_burst:", f"s_add_u32 s49, s49, 3", f"s_cmp_eq_u32 {S_CNT}, {b1 + 1}", "s_cbranch_scc1 L_q_burst1",
             f"s_cmp_eq_u32 {S_CNT}, {b2 + 1}", "s_cbranch_scc1 L_q_burst2")
    for i in range(3):
        OOL += II(f"L_q_burst{i}:") + (II("s_mov_b32 s49, 99") if i == 2 else []) + straight(half_group(*tiles[i])) + II("s_branch L_q_burst_done")
    OOL += II("L_q_w14:", "s_waitcnt vmcnt(14)", "s_branch L_q_wd")
    A("s_cbranch_scc1 L_q_loop")
    b, n = hazards(q_body(False, extra_dma=half_group('V', 1), last_wait=11), history=body[-24:]); L.extend(b)
    b, n = hazards(q_body(False, extra_dma=half_group('K', 2) + half_group('V', 2), last_wait=12), history=b[-24:]); L.extend(b)
    b, n = hazards(q_body(False, last_wait=12), history=b[-24:]); L.extend(b)
    A("s_branch L_q_after_ool")
    L.extend(OOL)
    A("L_q_after_ool:")
    A(stamp("q_loop_done"))
    return L

def q_scale(ss):
    return [I(f"v_pk_mul_f32 {vr(grp(t,s)+2*k,2)}, {vr(grp(t,s)+2*k,2)}, {vr(V_C0,2)}") for s in ss for t in range(5) for k in range(4)]
def q_cvt(ss):
    return [I(f"v_cvt_pk_bf16_f32 v{grp(t,s)+k}, v{grp(t,s)+2*k}, v{grp(t,s)+2*k+1}") for s in ss for t in range(5) for k in range(4)]

def transition():
    L = []; A = lambda *x: L.extend(II(*x))
    A(f"s_add_u32 {S_SOFFK}, {S_TQ}, {4*8192}", f"s_add_u32 {S_SOFFV}, {S_TQ}, {3*8192}")
    A(f"v_mov_b32 v{V_C0}, {hex(f2u(SCALE))}", f"v_mov_b32 v{V_C1}, {hex(f2u(SCALE))}")
    A(straight(half_group('K', 3)))
    seq = [k_read(kt, s, 0) for kt in range(2) for s in range(4)]
    seq += II("s_nop 3") + q_scale((0, 1))
    S = Sched(q_tail())
    S.spread(q_cvt((0, 1)), [i // 2 for i in range(40)])
    seq += S.flat()
    seq += II("s_nop 7") + q_scale((2, 3))
    qk = lambda ss: [qk_mfma(kt, s, t, lambda t: "0") for s in ss for kt in range(2) for t in range(5)]
    S = Sched(qk((0, 1)))
    S.spread(q_cvt((2, 3)), [i // 2 for i in range(40)])
    seq += S.flat()
    seq += qk((2, 3))
    seq, _ = lgkm_waits(seq, final_zero=True)
    seq, n = hazards(seq); L.extend(seq)
    A("s_barrier")
    A(stamp("qk0_done"))
    A(f"s_cmp_eq_u32 {S_SAFE}, 1", "s_cbranch_scc1 L_safe_max")
    E = II("s_nop 3")
    T = [VT[0] + 0, VT[0] + 1, 50, 51, 53]
    T = [2, 3, 4, 5, 6]
    U = [7, 8, 9, 10, 11]
    ab = [(Sreg(0, t), Sreg(1, t)) for t in range(5)]
    for t, (a, b) in enumerate(ab): E += II(f"v_max3_f32 v{T[t]}, v{a}, v{a+1}, v{a+2}")
    for t, (a, b) in enumerate(ab): E += II(f"v_max3_f32 v{T[t]}, v{T[t]}, v{a+3}, v{b}")
    for t, (a, b) in enumerate(ab): E += II(f"v_max3_f32 v{T[t]}, v{T[t]}, v{b+1}, v{b+2}")
    for t, (a, b) in enumerate(ab): E += II(f"v_max_f32 v{T[t]}, v{T[t]}, v{b+3}")
    for sw in ("v_permlane32_swap_b32", "v_permlane16_swap_b32"):
        for t in range(5): E += II(f"v_mov_b32 v{U[t]}, v{T[t]}")
        for t in range(5): E += II(f"{sw} v{T[t]}, v{U[t]}")
        for t in range(5): E += II(f"v_max_f32 v{T[t]}, v{T[t]}, v{U[t]}")
    for t in range(5):
        for k in range(4): E += II(f"v_sub_f32 v{cinit(t)+k}, 0, v{T[t]}")
    for t, (a, b) in enumerate(ab):
        for base in (a, b):
            for k in range(4): E += II(f"v_sub_f32 v{base+k}, v{base+k}, v{T[t]}")
    for t, (a, b) in enumerate(ab):
        for base in (a, b):
            for k in range(4): E += II(f"v_exp_f32 v{base+k}, v{base+k}")
    E, n = hazards(E); L.extend(E)
    A("L_max_done:")
    for t in range(5):
        for k in range(4): A(f"v_mov_b32 v{Preg(1,t)+k}, 0")
    A("s_nop 1")
    return L

def row_max_finish(T, U):
    E = []
    for sw in ("v_permlane32_swap_b32", "v_permlane16_swap_b32"):
        for t in range(5): E += II(f"v_mov_b32 v{U[t]}, v{T[t]}")
        for t in range(5): E += II(f"{sw} v{T[t]}, v{U[t]}")
        for t in range(5): E += II(f"v_max_f32 v{T[t]}, v{T[t]}, v{U[t]}")
    for t in range(5):
        for k in range(4): E += II(f"v_sub_f32 v{cinit(t)+k}, 0, v{T[t]}")
    return E

def safe_paths():
    L = []; A = lambda *x: L.extend(II(*x))
    T = [2, 3, 4, 5, 6]; U = [7, 8, 9, 10, 11]
    ab = [(Sreg(0, t), Sreg(1, t)) for t in range(5)]
    A("L_safe_max:")
    for t in range(5): A(f"v_mov_b32 v{T[t]}, 0xff800000")
    A(f"s_mov_b32 {S_CNT}, 0")
    A("L_safe_loop:")
    A("s_waitcnt vmcnt(0) lgkmcnt(0)", "s_barrier")
    A(f"s_and_b32 s50, {S_CNT}, 15", "s_lshl_b32 s50, s50, 13", f"s_add_u32 s51, s50, {S_TQ}", f"s_add_u32 m0, {S_MK}, {kphys(0)}", "s_nop 0")
    A(kv_group('K', None, "s51"))
    A("s_waitcnt vmcnt(0)", "s_barrier")
    A([k_read(kt, s, 0) for kt in range(2) for s in range(4)], "s_waitcnt lgkmcnt(0)")
    A(f"s_cmp_eq_u32 {S_CNT}, 16", "s_cbranch_scc1 L_safe_last")
    A([qk_mfma(kt, s, t, lambda t: "0") for kt in range(2) for s in range(4) for t in range(5)], "s_nop 7", "s_nop 7")
    for t, (a, b) in enumerate(ab):
        A(f"v_max3_f32 v{T[t]}, v{T[t]}, v{a}, v{a+1}", f"v_max3_f32 v{T[t]}, v{T[t]}, v{a+2}, v{a+3}",
          f"v_max3_f32 v{T[t]}, v{T[t]}, v{b}, v{b+1}", f"v_max3_f32 v{T[t]}, v{T[t]}, v{b+2}, v{b+3}")
    A(f"s_add_u32 {S_CNT}, {S_CNT}, 1", f"s_cmp_lt_u32 {S_CNT}, 16", "s_cbranch_scc1 L_safe_loop")
    E, n = hazards(II("s_nop 3") + row_max_finish(T, U)); L.extend(E)
    A("s_branch L_safe_loop")
    A("L_safe_last:", "s_nop 3")
    A([qk_mfma(kt, s, t, lambda t: vr(cinit(t))) for kt in range(2) for s in range(4) for t in range(5)], "s_nop 7", "s_nop 7")
    A("s_barrier")
    for t, (a, b) in enumerate(ab):
        for base in (a, b):
            for k in range(4): A(f"v_exp_f32 v{base+k}, v{base+k}")
    A("s_nop 1", "s_branch L_max_done")
    A("L_restart:", f"s_mov_b32 {S_SAFE}, 1", "s_waitcnt vmcnt(0) lgkmcnt(0)", "s_barrier")
    A(lane_consts_q())
    A("s_branch L_phase_q")
    return L

def k_read(kt, s, slotk):
    off = kphys(slotk) + kt * 4096
    return I(f"ds_read_b128 {ar(kbuf(kt, s))}, v{V_KR[s]}" + (f" offset:{off}" if off else ""))
def v_read(dt, h, slotv):
    off = vphys(slotv) + h * 4096
    return I(f"ds_read_b64_tr_b16 {ar(abuf(dt) + 2*h, 2)}, v{V_VR[dt]}" + (f" offset:{off}" if off else ""))
def qk_mfma(kt, s, t, first_c):
    c = first_c(t) if s == 0 else vr(Sreg(kt, t))
    return mfma(vr(Sreg(kt, t)), ar(kbuf(kt, s)), vr(qfrag(t, s)), c)
def pv_mfma(dt, t, par):
    return mfma(ar(oacc(dt, t)), ar(abuf(dt)), vr(Preg(par, t)), ar(oacc(dt, t)))
def rs_mfma(t, par):
    return mfma(ar(lacc(t)), ar(A_ONES), vr(Preg(par, t)), ar(lacc(t)))
def cvts(par):
    out = []
    for kt in range(2):
        for t in range(5):
            s = Sreg(kt, t); p = Preg(par, t) + 2 * kt
            out.append(I(f"v_cvt_pk_bf16_f32 v{p}, v{s}, v{s+1}"))
            out.append(I(f"v_cvt_pk_bf16_f32 v{p+1}, v{s+2}, v{s+3}"))
    return out
def exps(kt):
    return [I(f"v_exp_f32 v{Sreg(kt,t)+i}, v{Sreg(kt,t)+i}") for t in range(5) for i in range(4)]

def att_dma(j, dyn=False):
    seq = []
    if j + 4 <= 15:
        pre = II(f"s_add_u32 m0, {S_MK}, {kphys(j + 4)}")
        g = kv_group('K', None, S_SOFFK)
        seq += [(pre, g[0])] + [([], x) for x in g[1:]]
        seq[-1] = (seq[-1][0], seq[-1][1], II(f"s_add_u32 {S_SOFFK}, {S_SOFFK}, 8192"))
    if j + 3 <= 15:
        pre = II(f"s_add_u32 m0, {S_MV}, {vphys(j + 3)}")
        g = kv_group('V', None, S_SOFFV)
        s2 = [(pre, g[0])] + [([], x) for x in g[1:]]
        s2[-1] = (s2[-1][0], s2[-1][1], II(f"s_add_u32 {S_SOFFV}, {S_SOFFV}, 8192"))
        seq += s2
    return seq

def wo_dma(ks, slot_base_imm):
    seq = []
    for gI in range(2):
        pre = II(f"s_lshl_b32 s50, {S_W}, 13", f"s_add_u32 m0, s50, {slot_base_imm + gI*4096}", f"s_mov_b32 s51, {ks*32768 + gI*16384}")
        for n in range(4):
            seq.append((pre if n == 0 else [], dma(V_WOD[n], SRD_WO, "s51", n * 1024, OPT["wont"])))
    return seq

def att_body(j, vmwait, extra_dma=None):
    par_old, par_new = (j - 1) & 1, j & 1
    ms = [pv_mfma(dt, t, par_old) for dt in (5, 6, 7) for t in range(5)] + [rs_mfma(t, par_old) for t in range(5)]
    ms += [qk_mfma(kt, s, t, lambda t: vr(cinit(t))) for kt in range(2) for s in range(4) for t in range(5)]
    ms += [pv_mfma(dt, t, par_new) for dt in range(5) for t in range(5)]
    S = Sched(ms)
    cv = cvts(par_new)
    S.spread(cv, [1, 1, 3, 3, 6, 6, 8, 8, 11, 11, 13, 13, 16, 16, 18, 18, 21, 21, 23, 23])
    S.spread([k_read(kt, s, j + 1) for kt in range(2) for s in range(4)], [0, 2, 5, 7, 10, 12, 15, 17])
    vr_ = [v_read(dt, h, j) for dt in range(8) for h in range(2)]
    S.spread(vr_, [20, 22, 25, 26, 27, 28, 30, 31, 32, 33, 35, 36, 37, 38, 40, 61])
    d = att_dma(j) + (extra_dma or [])
    if j + 4 > 15 and j + 3 <= 15 and not extra_dma:
        put_dmas(S, d, [24, 29, 34, 39])
    else:
        put_dmas(S, d, [4, 9, 14, 19, 24, 29, 34, 39])
    S.spread(exps(0), list(range(41, 61)))
    S.spread(exps(1), list(range(62, 82)))
    seq = S.flat()
    seq, pend = lgkm_waits(seq)
    seq += tr_mark() + II(f"s_waitcnt vmcnt({vmwait}) lgkmcnt(0)") + tr_commit() + II("s_barrier")
    if OPT['verbose']: print(S.report(f"att_body {j}"))
    return seq

WO1 = [192, 200, 208, 216, 224, 228, 232, 236]
def wofrag(ks, m, n=4, off=0):
    if ks == 0: return ar(216 + 4 * m + off, n)
    if ks == 1: return vr(WO1[m] + off, n)
    return ar((ks - 2) * 32 + 4 * m + off, n)
def wo_read(ks, m, h):
    cp, hf = m >> 1, m & 1
    off = (32768 if (ks & 1) == 0 else 0) + hf * 8 + h * 4096
    return I(f"ds_read_b64_tr_b16 {wofrag(ks, m, 2, 2*h)}, v{V_WOR[cp]}" + (f" offset:{off}" if off else ""))

def wo_prefetch():
    return II(f"v_lshrrev_b32 v46, 3, {V_LANE}", f"v_and_b32 v47, 7, {V_LANE}", "v_lshlrev_b32 v46, 10, v46", "v_lshl_add_u32 v46, v47, 7, v46",
              f"s_lshl_b32 s50, {S_B}, 15", f"s_lshl_b32 s51, {S_W}, 13", "s_add_u32 s50, s50, s51",
              "v_add_u32 v46, s50, v46",
              f"buffer_load_dword v47, v46, s[84:87], 0 offen" + (" nt" if OPT['pfnt'] else ""))

def attention():
    L = []; A = lambda *x: L.extend(II(*x))
    L += transition()
    A(stamp("att_start"))
    A(f"s_mov_b32 {S_CNT}, 0")
    bodies = [att_body(j, 16) for j in range(4)]
    hist = bodies[3][-24:]
    A(".p2align 6", "L_att_loop:")
    for b in bodies:
        b2, n = hazards(b, history=hist); L.extend(b2); hist = b2[-24:]
    if OPT['pf'] >= 0:
        A(f"s_cmp_eq_u32 {S_CNT}, {OPT['pf']}", "s_cbranch_scc0 L_att_nopf", wo_prefetch(), "L_att_nopf:")
    A(f"s_add_u32 {S_CNT}, {S_CNT}, 1", f"s_cmp_lt_u32 {S_CNT}, 3", "s_cbranch_scc1 L_att_loop")
    b, n = hazards(att_body(12, 12), history=hist); L.extend(b); hist = b[-24:]
    b, n = hazards(att_body(13, 12, extra_dma=wo_dma(0, WOA)), history=hist); L.extend(b); hist = b[-24:]
    b, n = hazards(att_body(14, 16, extra_dma=wo_dma(1, WOB)), history=hist); L.extend(b); hist = b[-24:]
    A(stamp("att_loop_done"))
    ms = [pv_mfma(dt, t, 0) for dt in (5, 6, 7) for t in range(5)] + [rs_mfma(t, 0) for t in range(5)]
    ms += [pv_mfma(dt, t, 1) for dt in range(8) for t in range(5)] + [rs_mfma(t, 1) for t in range(5)]
    S = Sched(ms)
    S.spread(cvts(1), list(range(0, 20)))
    S.spread([v_read(dt, h, 15) for dt in range(5) for h in range(2)], list(range(0, 10)))
    S.spread([v_read(dt, h, 15) for dt in (5, 6, 7) for h in range(2)], list(range(15, 21)))
    S.put(20, "s_waitcnt vmcnt(8)")
    S.spread([wo_read(0, m, h) for m in range(8) for h in range(2)], [21 + i // 2 for i in range(16)])
    S.put(28, "s_waitcnt vmcnt(0)")
    S.spread([wo_read(1, m, h) for m in range(8) for h in range(2)], [29 + i // 2 for i in range(16)])
    S.put(38, "s_waitcnt lgkmcnt(0)")
    put_dmas(S, wo_dma(2, WOA), [40, 43, 46, 49, 53, 56, 59, 62])
    seq, pend = lgkm_waits(S.flat(), final_zero=True)
    seq, n = hazards(seq, history=hist); L.extend(seq)
    A("s_barrier")
    A("s_nop 3")
    A(stamp("att_done"))
    return L

def wo_dma_t(ks):
    d = wo_dma(ks, WOA if (ks & 1) == 0 else WOB)
    for e in d: e[1].tag = f"wo{ks}"
    return d
def wo_reads(ks): return [wo_read(ks, m, h) for m in range(8) for h in range(2)]

LFLAG = 90112

def o_epilogue():
    E = []
    tl = VT[0]; rc = VT[2]
    d3, d4, d5 = wo_dma_t(3), wo_dma_t(4), wo_dma_t(5)
    def emit_dma(e):
        return e[0] + II("s_nop 0") * (1 if e[0] else 0) + [e[1]]
    nfr = 0
    for t in range(5):
        E += II(f"v_accvgpr_read_b32 v{tl}, a{lacc(t)}", f"v_rcp_f32 v{rc}, v{tl}", "s_nop 0", f"v_mov_b32 v{rc+1}, v{rc}")
        if t == 0: E += II(f"v_mov_b32 v{VT[1]}, v{tl}")
        else: E += II(f"v_max_f32 v{VT[1]}, v{VT[1]}, v{tl}")
        for ks in range(4):
            mid = []
            if nfr < 8: mid += emit_dma(d3[nfr])
            if 8 <= nfr < 16: mid += emit_dma(d4[nfr - 8])
            if nfr >= 16: mid += emit_dma(d5[2 * (nfr - 16)]) + emit_dma(d5[2 * (nfr - 16) + 1])
            rd = []
            if 4 <= nfr < 8:
                if nfr == 4: rd += [VmNeed("wo2")]
                rd += wo_reads(2)[4 * (nfr - 4): 4 * (nfr - 4) + 4]
            if 12 <= nfr < 16:
                if nfr == 12: rd += [VmNeed("wo3")]
                rd += wo_reads(3)[4 * (nfr - 12): 4 * (nfr - 12) + 4]
            if nfr in (8, 16): E += II("s_waitcnt lgkmcnt(0)")
            E += rd
            for h in range(2):
                for k in range(4):
                    E += II(f"v_accvgpr_read_b32 v{52 + 4*h + k}, a{oacc(2*ks + h, t) + k}")
            E += mid
            for k in range(4): E += II(f"v_pk_mul_f32 {vr(52+2*k,2)}, {vr(52+2*k,2)}, {vr(rc,2)}")
            for k in range(4): E += II(f"v_cvt_pk_bf16_f32 v{60+k}, v{52+2*k}, v{53+2*k}")
            E += II(f"ds_write_b128 v{V_OW}, {vr(60)} offset:{(t*8+ks)*1024}")
            nfr += 1
    E += II(f"v_cmp_nge_f32 vcc, {hex(OPT['lthr'] or LTHR)}, v{VT[1]}", f"s_lshl_b32 s50, {S_W}, 2", f"s_add_u32 s50, s50, {LFLAG}", f"v_mov_b32 v52, s50",
            "s_cmp_lg_u64 vcc, 0", "s_cselect_b32 s51, 1, 0", "v_mov_b32 v53, s51", "ds_write_b32 v52, v53")
    E, q = vm_waits(E, ["wo2"] * 8)
    E, pend = lgkm_waits(E, final_zero=True)
    E, n = hazards(E)
    return E + II("s_barrier"), q

def o_read(dst, t, ks):
    if t < 8: return I(f"ds_read_b128 {vr(dst)}, v{V_OR} offset:{(t*8+ks)*1024}")
    return I(f"ds_read_b128 {vr(dst)}, v{V_OR8} offset:{ks*1024}")
def pstore(src, t, cp):
    return (II(f"s_add_u32 s51, {S_SOFFP}, {(cp*9 + t)*16384}"),
            I(f"buffer_store_dwordx4 {vr(src)}, v{V_PS}, {SRD_P}, s51 offen {OPT['pst']}"))

NP1 = 2
def acc1(t, m): return 64 + (t * 8 + m) * 4
def acc2(t, m): return 128 + ((t & 1) * 8 + m) * 4
def bfr1(par, t): return 2 + (par * 4 + t) * 4
STG = [48, 52, 56, 60]

def tile_epilogue(accf, t, k0):
    out = []
    for cp in range(4):
        a0, a1 = accf(t, 2*cp), accf(t, 2*cp + 1)
        d = STG[(k0 + cp) & 3]
        cv = II(f"v_cvt_pk_bf16_f32 v{d}, v{a0}, v{a0+1}", f"v_cvt_pk_bf16_f32 v{d+1}, v{a0+2}, v{a0+3}",
                f"v_cvt_pk_bf16_f32 v{d+2}, v{a1}, v{a1+1}", f"v_cvt_pk_bf16_f32 v{d+3}, v{a1+2}, v{a1+3}")
        pre, st = pstore(d, t, cp)
        if OPT.get('x_nost') and not (t == 8 and cp == 3): st = I("s_nop 0")
        st.tag = f"st{t}"
        out.append((cv, (pre, st)))
    return out

def out_proj(queue):
    L = []; A = lambda *x: L.extend(II(*x))
    A(f"s_mul_i32 {S_SOFFP}, {S_W}, {4*9*16384}")
    G = 8 * NP1
    ms = [mfma(vr(acc1(t, m)), wofrag(ks, m), vr(bfr1(ks & 1, t)), ("0" if ks == 0 else vr(acc1(t, m)))) for ks in range(8) for m in range(8) for t in range(NP1)]
    bt = lambda ks: 2 + 4 * ks
    P1 = len(ms)
    for t in range(NP1, 9):
        ms += [mfma(vr(acc2(t, m)), wofrag(ks, m), vr(bt(ks)), ("0" if ks == 0 else vr(acc2(t, m)))) for ks in range(8) for m in range(8)]
    S = Sched(ms)
    pre = [o_read(bfr1(0, t), t, 0) for t in range(NP1)]
    def reads(ks, g0): S.spread(wo_reads(ks), [g0 + i // 2 for i in range(16)])
    def dmas(ks, g0, step=4): put_dmas(S, wo_dma_t(ks), [g0 + step * i for i in range(8)])
    def put_free(ins, g0):
        g = g0
        while S.cost(g) + COST[ins.kind] > 8: g += 1
        S.put(g, ins); return g
    S.put(0, VmNeed("wo4")); reads(4, 0)
    S.put(9, "s_waitcnt lgkmcnt(0)"); dmas(6, 11, 3)
    S.put(33, VmNeed("wo5")); reads(5, 33)
    S.put(42, "s_waitcnt lgkmcnt(0)"); dmas(7, 44, 3)
    S.put(84, VmNeed("wo6")); reads(6, 84)
    S.put(100, VmNeed("wo7")); reads(7, 100)
    for ks in range(7):
        g = ks * G + (1 if ks else 8)
        for t in range(NP1):
            g = put_free(o_read(bfr1((ks + 1) & 1, t), t, ks + 1), g) + 1
        assert g <= (ks + 1) * G - 3, (ks, g)
    g = 6 * G + 4
    for ks in (2, 3, 6, 7): g = put_free(o_read(bt(ks), NP1, ks), g) + 1
    g = 7 * G + 1
    for ks in (0, 1): g = put_free(o_read(bt(ks), NP1, ks), g) + 1
    base = P1
    for ks in (4, 5): put_free(o_read(bt(ks), NP1, ks), base + 1)
    def epi(t, accf, g0, stride):
        for cp, (cv, (spre, st)) in enumerate(tile_epilogue(accf, t, 0)):
            g = g0 + cp * stride
            S.spread(cv, [g, g, g + 1, g + 1])
            for p in spre: S.put(g + 1, p)
            S.put(g + 2, st)
    epi(0, acc1, base + 4, 7); epi(1, acc1, base + 32, 7)
    for t in range(NP1, 9):
        b = P1 + (t - NP1) * 64
        if t > NP1: epi(t - 1, acc2, b + 6, 12)
        if t < 8:
            for ks in range(8):
                g = b + 8 * ks + 8
                if g >= b + 64: g = b + 64 + 1
                put_free(o_read(bt(ks), t + 1, ks), g)
    if OPT['fused']:
        b = P1 + (8 - NP1) * 64
        S.put(b + 1, f"s_lshl_b32 s50, {S_CL}, 2")
        S.spread([f"v_lshlrev_b32 v46, 8, {V_LANE}", "v_add_u32 v46, s50, v46"], [b + 2, b + 3])
        ld = I(f"buffer_load_dword v47, v46, {SRD_D}, 0 offen sc1"); ld.tag = "cnt"
        S.put(b + 4, ld)
    pre = II(f"v_mov_b32 v56, {LFLAG}", f"ds_read_b128 {vr(52)}, v56") + pre
    pre += II("s_waitcnt lgkmcnt(0)", "v_or3_b32 v52, v52, v53, v54", "v_or_b32 v52, v52, v55", "s_nop 0", "v_readfirstlane_b32 s50, v52", "s_nop 3",
              f"s_andn2_b32 s50, s50, {S_SAFE}", "s_cmp_lg_u32 s50, 0", "s_cbranch_scc1 L_restart")
    seq = pre + S.flat()
    tail = II("s_nop 7")
    for cp, (cv, (spre, st)) in enumerate(tile_epilogue(acc2, 8, 0)):
        tail += cv + spre + [st]
    if OPT['fused']:
        tail += II(f"s_lshl_b32 s50, {S_W}, 7", f"s_lshl_b32 s51, {S_HP}, 2", "s_add_u32 s50, s50, s51",
                   f"v_lshlrev_b32 v44, 13, {V_LANE}", "v_add_u32 v44, s50, v44", "v_mov_b32 v43, 1")
        fs = I(f"buffer_store_dword v43, v44, {SRD_F}, 0 offen sc1"); fs.tag = "fl"
        tail += [VmNeed("st8"), fs]
    seq, q = vm_waits(seq + tail, queue)
    seq, pend = lgkm_waits(seq)
    seq, n = hazards(seq)
    if OPT['verbose']: print(S.report("out_proj"), "nops", n)
    L += seq
    return L, q

SPIN = 1 << 22
def reduce_phase():
    L = []; A = lambda *x: L.extend(II(*x))
    DAT = lambda g, tt, k: 64 + ((g * 2 + tt) * 4 + k) * 4
    D8 = lambda k: 192 + 4 * k
    ACC = lambda g, tt: 2 + (g * 2 + tt) * 8 if False else [208, 216, 224, 232, 240, 248, 2, 10][g * 2 + tt]
    A8 = 18
    T0, T1 = 26, 28
    V_POLL, V_L16, V_OUT, V_FL = 34, 35, 36, 37
    A(f"s_mov_b32 s53, {SPIN}", f"s_lshl_b32 s50, {S_CL}, 2", f"v_lshlrev_b32 v46, 8, {V_LANE}", "v_add_u32 v46, s50, v46")
    A("L_cnt_check:", "v_readfirstlane_b32 s52, v47", "s_nop 3", "s_cmp_ge_u32 s52, 16", "s_cbranch_scc1 L_cnt_ok",
      "s_sub_u32 s53, s53, 1", "s_cmp_eq_u32 s53, 0", "s_cbranch_scc1 L_cnt_ok", "s_sleep 2",
      f"buffer_load_dword v47, v46, {SRD_D}, 0 offen sc1", "s_waitcnt vmcnt(0)", "s_branch L_cnt_check", "L_cnt_ok:")
    A(f"s_lshr_b32 s50, {S_HP}, 2", "s_lshl_b32 s50, s50, 7",
      f"v_lshrrev_b32 v30, 4, {V_LANE}", f"v_lshlrev_b32 v{V_POLL}, 13, v30", f"v_and_b32 v31, 15, {V_LANE}",
      f"v_lshl_add_u32 v{V_POLL}, v31, 2, v{V_POLL}", f"v_add_u32 v{V_POLL}, s50, v{V_POLL}",
      f"v_lshlrev_b32 v{V_L16}, 4, {V_LANE}",
      f"v_lshlrev_b32 v{V_OUT}, 11, v31", f"v_lshl_add_u32 v{V_OUT}, v30, 4, v{V_OUT}")
    A(f"s_mul_i32 s32, {S_B}, {144*2048}", f"s_lshl_b32 s50, {S_BR}, 10", "s_add_u32 s32, s32, s50", f"s_lshl_b32 s50, {S_HP}, 6", "s_add_u32 s32, s32, s50")
    A(f"s_mul_i32 s33, {S_HP}, {9*16384}")
    A(f"s_lshl_b32 s50, {S_W}, 14", "s_add_u32 s34, s33, s50", "s_add_u32 s35, s34, 65536",
      f"s_add_u32 s36, s33, {8*16384}", f"s_lshl_b32 s50, {S_W}, 12", "s_add_u32 s36, s36, s50")
    A("s_mov_b32 s37, 0", "s_mov_b32 s38, 0", f"s_mov_b32 s53, {SPIN}")
    def unpack_add(acc, src, first):
        out = []
        for k in range(4):
            if first:
                out += [f"v_lshlrev_b32 v{acc+2*k}, 16, v{src+k}", f"v_and_b32 v{acc+2*k+1}, 0xffff0000, v{src+k}"]
            else:
                t = (T0, T1)[k & 1]
                out += [f"v_lshlrev_b32 v{t}, 16, v{src+k}", f"v_and_b32 v{t+1}, 0xffff0000, v{src+k}",
                        f"v_pk_add_f32 v[{acc+2*k}:{acc+2*k+1}], v[{acc+2*k}:{acc+2*k+1}], v[{t}:{t+1}]"]
        return out
    A("L_red_loop:")
    A("s_cmp_eq_u32 s37, 15", "s_cbranch_scc1 L_red_nopoll")
    A(f"buffer_load_dword v{V_FL}, v{V_POLL}, {SRD_F}, 0 offen sc1")
    A("L_red_nopoll:", "s_waitcnt vmcnt(0)")
    for g in range(4):
        A(f"s_andn2_b32 s50, s37, s38", f"s_bitcmp1_b32 s50, {g}", f"s_cbranch_scc0 L_red_nosum{g}")
        for tt in range(2):
            for k in range(4): A(unpack_add(ACC(g, tt), DAT(g, tt, k), k == 0))
        A(f"s_cmp_lg_u32 {S_W}, {g}", f"s_cbranch_scc1 L_red_no8_{g}")
        for k in range(4): A(unpack_add(A8, D8(k), k == 0))
        A(f"L_red_no8_{g}:", f"s_bitset1_b32 s38, {g}", f"L_red_nosum{g}:")
    A("s_cmp_eq_u32 s38, 15", "s_cbranch_scc1 L_red_done")
    A("s_cmp_eq_u32 s37, 15", "s_cbranch_scc1 L_red_loop")
    A(f"v_cmp_eq_u32 vcc, 1, v{V_FL}", "s_nop 3", "s_mov_b32 s39, vcc_lo", "s_mov_b32 s40, s37")
    A("s_sub_u32 s53, s53, 1", "s_cmp_eq_u32 s53, 0", "s_cselect_b32 s39, 0xffff, s39")
    A("s_cselect_b32 s53, 1, s53")
    for g in range(4):
        A(f"s_bitcmp1_b32 s37, {g}", f"s_cbranch_scc1 L_red_noiss{g}",
          f"s_lshr_b32 s50, s39, {4*g}", "s_and_b32 s50, s50, 15", "s_cmp_eq_u32 s50, 15", f"s_cbranch_scc0 L_red_noiss{g}")
        for tt in range(2):
            A(f"s_add_u32 s50, s{34+tt}, {g*4096}")
            for k in range(4):
                o = f" offset:{k*1024}" if k else ""
                A(f"buffer_load_dwordx4 {vr(DAT(g, tt, k))}, v{V_L16}, {SRD_P}, s50 offen{o} {OPT['rld']}")
        A(f"s_cmp_lg_u32 {S_W}, {g}", f"s_cbranch_scc1 L_red_noi8_{g}")
        for k in range(4):
            o = f" offset:{k*1024}" if k else ""
            A(f"buffer_load_dwordx4 {vr(D8(k))}, v{V_L16}, {SRD_P}, s36 offen{o} {OPT['rld']}")
        A(f"L_red_noi8_{g}:", f"s_bitset1_b32 s37, {g}", f"L_red_noiss{g}:")
    A("s_cmp_lg_u32 s37, s40", "s_cbranch_scc1 L_red_loop", "s_sleep 1", "s_branch L_red_loop")
    A("L_red_done:")
    A(f"s_lshl_b32 s50, {S_W}, 11", f"v_lshlrev_b32 v30, 5, {V_LANE}", "v_add_u32 v30, 81920, v30", "v_add_u32 v31, s50, v30",
      f"ds_write_b128 v31, {vr(A8)}", f"ds_write_b128 v31, {vr(A8+4)} offset:16")
    for tt in range(2):
        a0 = ACC(0, tt)
        for g in range(1, 4):
            for k in range(4): A(f"v_pk_add_f32 v[{a0+2*k}:{a0+2*k+1}], v[{a0+2*k}:{a0+2*k+1}], v[{ACC(g,tt)+2*k}:{ACC(g,tt)+2*k+1}]")
        for k in range(4): A(f"v_cvt_pk_bf16_f32 v{64+4*tt+k}, v{a0+2*k}, v{a0+2*k+1}")
        A(f"s_lshl_b32 s50, {S_W}, 15", f"s_add_u32 s50, s50, s32", f"s_add_u32 s50, s50, {tt*4*32768}")
        A(f"buffer_store_dwordx4 {vr(64+4*tt)}, v{V_OUT}, {SRD_O}, s50 offen")
    A("s_waitcnt lgkmcnt(0)", "s_barrier", f"s_cmp_eq_u32 {S_W}, 0", "s_cbranch_scc0 L_red_end")
    for g in range(4):
        A(f"ds_read_b128 {vr(80+8*g)}, v30 offset:{g*2048}", f"ds_read_b128 {vr(84+8*g)}, v30 offset:{g*2048+16}")
    A("s_waitcnt lgkmcnt(0)")
    for g in range(1, 4):
        for k in range(4): A(f"v_pk_add_f32 v[{80+2*k}:{81+2*k}], v[{80+2*k}:{81+2*k}], v[{80+8*g+2*k}:{81+8*g+2*k}]")
    for k in range(4): A(f"v_cvt_pk_bf16_f32 v{72+k}, v{80+2*k}, v{81+2*k}")
    A(f"s_add_u32 s50, s32, {8*32768}")
    A(f"buffer_store_dwordx4 {vr(72)}, v{V_OUT}, {SRD_O}, s50 offen")
    A("L_red_end:")
    L2, n = hazards(L)
    return L2

def dump_regs(regs, slot, kind='v'):
    L = []; A = lambda *x: L.extend(II(*x))
    A("s_add_u32 s66, s58, 0x4000000", "s_addc_u32 s67, s59, 0",
      "s_lshl_b32 s50, s2, 2", f"s_add_u32 s50, s50, {S_W}", "s_lshl_b32 s50, s50, 16",
      f"v_lshlrev_b32 v253, 2, {V_LANE}", "v_add_u32 v253, s50, v253")
    for i, r in enumerate(regs):
        if kind == 'a':
            A(f"v_accvgpr_read_b32 v254, a{r}", "s_nop 0")
            A(f"global_store_dword v253, v254, s[66:67]")
        else:
            A(f"global_store_dword v253, v{r}, s[66:67]")
        A("v_add_u32 v253, 256, v253")
    A("s_waitcnt vmcnt(0)")
    return L

def main_kernel():
    L = []
    L += setup()
    L += stamp("start")
    L += phase_q()
    L += stamp("q_done")
    if OPT['dump'] == 'q':
        L += II("s_nop 7") + dump_regs([qfrag(t, s) + k for t in range(5) for s in range(4) for k in range(4)], 0)
        L += II("s_waitcnt vmcnt(0)", "s_endpgm")
    L += attention()
    if OPT['dump'] == 'o':
        L += II("s_nop 7") + dump_regs([oacc(dt, t) + k for t in range(5) for dt in range(8) for k in range(4)] + [lacc(t) for t in range(5)], 0, 'a')
        L += II("s_waitcnt vmcnt(0)", "s_endpgm")
    e, q = o_epilogue(); L += e
    L += stamp("o_done")
    e, q = out_proj(q); L += e
    L += stamp("op_done")
    if OPT['fused']:
        L += reduce_phase()
        L += stamp("red_done")
    L += tr_dump()
    L += II("s_waitcnt vmcnt(0)")
    L += stamp("end")
    L += stamp_dump()
    L += II("L_main_end:", "s_endpgm")
    L += safe_paths()
    return L

def reduce_kernel():
    L = []; A = lambda *x: L.extend(II(*x))
    A("s_cmp_ge_u32 s2, 256", "s_cbranch_scc1 L_red_end")
    A("s_load_dwordx2 s[4:5], s[0:1], 80", "s_load_dwordx2 s[6:7], s[0:1], 96")
    A("v_lshrrev_b32 v2, 6, v0", "v_and_b32 v1, 63, v0", "s_nop 0", "v_readfirstlane_b32 s12, v2", "s_nop 3")
    A("s_waitcnt lgkmcnt(0)")
    A("s_mul_i32 s13, s2, 9", "s_add_u32 s13, s13, s12", "s_lshl_b32 s13, s13, 14")
    A("s_add_u32 s16, s6, s13", "s_addc_u32 s17, s7, 0", "s_and_b32 s17, s17, 0xffff", "s_mov_b32 s18, 16384", "s_mov_b32 s19, 0x20000")
    A("v_lshlrev_b32 v2, 4, v1")
    for p in range(16):
        A(f"buffer_load_dwordx4 v[{8+4*p}:{11+4*p}], v2, s[16:19], 0 offen offset:{(p%4)*1024}" if p < 4 else
          f"buffer_load_dwordx4 v[{8+4*p}:{11+4*p}], v2, s[16:19], s{20+p//4} offen offset:{(p%4)*1024}")
        if p == 3: A("s_mov_b32 s21, 4096", "s_mov_b32 s22, 8192", "s_mov_b32 s23, 12288")
    A("s_lshr_b32 s14, s2, 4", "s_and_b32 s15, s2, 15",
      "s_and_b32 s24, s14, 7", "s_lshr_b32 s25, s14, 3",
      "s_mul_i32 s24, s24, 144", "s_lshl_b32 s26, s12, 4", "s_add_u32 s24, s24, s26", "s_lshl_b32 s24, s24, 11",
      "s_lshl_b32 s25, s25, 10", "s_lshl_b32 s15, s15, 6", "s_add_u32 s24, s24, s25", "s_add_u32 s24, s24, s15")
    A("v_and_b32 v3, 15, v1", "v_lshlrev_b32 v3, 11, v3", "v_lshrrev_b32 v4, 4, v1", "v_lshl_add_u32 v3, v4, 4, v3")
    A("s_mov_b32 s28, s4", "s_and_b32 s29, s5, 0xffff", "s_mov_b32 s30, 2359296", "s_mov_b32 s31, 0x20000")
    acc = 80
    for p in range(16):
        A(f"s_waitcnt vmcnt({15-p})")
        for k in range(4):
            r = 8 + 4 * p + k
            if p == 0:
                A(f"v_lshlrev_b32 v{acc+2*k}, 16, v{r}", f"v_and_b32 v{acc+2*k+1}, 0xffff0000, v{r}")
            else:
                A(f"v_lshlrev_b32 v6, 16, v{r}", f"v_and_b32 v7, 0xffff0000, v{r}",
                  f"v_add_f32 v{acc+2*k}, v{acc+2*k}, v6", f"v_add_f32 v{acc+2*k+1}, v{acc+2*k+1}, v7")
    for k in range(4): A(f"v_cvt_pk_bf16_f32 v{8+k}, v{acc+2*k}, v{acc+2*k+1}")
    A("buffer_store_dwordx4 v[8:11], v3, s[28:31], s24 offen")
    A("s_waitcnt vmcnt(0)")
    A("L_red_end:", "s_endpgm")
    return L

def kernel_text(name, body, vgpr, accum, sgpr=102):
    return f""".globl {name}
.p2align 8
.type {name},@function
{name}:
{text(body)}
"""
def kd(name, nfv, accum, sgpr=102):
    return f""".amdhsa_kernel {name}
  .amdhsa_next_free_vgpr {nfv}
  .amdhsa_next_free_sgpr {sgpr}
  .amdhsa_accum_offset {accum}
  .amdhsa_group_segment_fixed_size 0
  .amdhsa_kernarg_size 104
  .amdhsa_user_sgpr_count 2
  .amdhsa_user_sgpr_kernarg_segment_ptr 1
  .amdhsa_system_sgpr_workgroup_id_x 1
.end_amdhsa_kernel
"""

def build():
    stamp_id[0] = 0; STAMPS.clear()
    k1 = NAME + "_kernel"; k2 = "reduce_heads_kernel"
    m = main_kernel()
    hdr = "; fused q-projection + attention + out-projection; the 16 head-pair partials of an output slice are summed by its owner\n"
    if OPT['fused']:
        hdr += f"; @launch grid=(256,1,1) block=(256,1,1) lds=163840\n"
    else:
        hdr += f"; @launch kernel={k1} grid=(256,1,1) block=(256,1,1) lds=163840\n"
        hdr += f"; @launch kernel={k2} grid=(256,1,1) block=(576,1,1) lds=0\n"
    s = hdr + '.amdgcn_target "amdgcn-amd-amdhsa--gfx950"\n.text\n'
    s += kernel_text(k1, m, 512, 256)
    if not OPT['fused']: s += kernel_text(k2, reduce_kernel(), 96, 96)
    s += '.section .rodata,"a"\n.p2align 6\n' + kd(k1, 512, 256)
    if not OPT['fused']: s += ".p2align 6\n" + kd(k2, 96, 96, 40)
    return s

if __name__ == "__main__":
    ap = argparse.ArgumentParser()
    ap.add_argument("-o", default="cdna_kernels/" + NAME + ".s")
    ap.add_argument("--dump"); ap.add_argument("--stamps", action="store_true"); ap.add_argument("-v", action="store_true")
    ap.add_argument("--opt", action="append", default=[])
    a = ap.parse_args()
    OPT['dump'] = a.dump; OPT['stamps'] = a.stamps; OPT['verbose'] = a.v
    for o in a.opt:
        k, v = o.split("=", 1)
        OPT[k] = {'True': True, 'False': False}.get(v, int(v) if v.lstrip('-').isdigit() else v)
    s = build()
    open(a.o, "w").write(s)
    if a.stamps:
        import json; json.dump(STAMPS, open(a.o + ".stamps.json", "w"))
    print("wrote", a.o, len(s), "bytes")
```

```python
import sys, argparse
from ir import *

NAME = "concat_heads__gqa_block_cached__mha_block_cached__near_ridge"
OPT = dict(np1=2, pfw=1, pfkv=0, pfkvnt=False, psleep=8, ost='', lthr=0, start2=True, pf=2, pfnt=False, fused=True, rld='sc1', rot=True, wnt=False, xnt=False, wont=False, bursts=(3, 6, 9), dump=None, stamps=False, stop=None, kvnt=True, pst="sc1", verbose=False)

VB = 0
KB = 65536
WB = 16384
XB = 114688
WOA = 131072
WOB = 98304
OB = 0
def kphys(k): return ((k + 1) & 3) * 16384
def vphys(k): return (k & 3) * 16384

SRD_X, SRD_WQ, SRD_K, SRD_V, SRD_WO, SRD_P = "s[4:7]", "s[8:11]", "s[12:15]", "s[16:19]", "s[20:23]", "s[24:27]"
SRD_F, SRD_D, SRD_O = "s[68:71]", "s[72:75]", "s[80:83]"
S_W, S_U, S_QH, S_CNT = "s28", "s29", "s30", "s31"
S_SOFFX, S_SOFFW0, S_UNUSED, S_MW, S_MX, S_DSLOT, S_RSLOT, S_DW, S_DX = "s32", "s33", "s34", "s35", "s36", "s37", "s38", "s39", "s40"
S_BW, S_BX = "s41", "s42"
S_SOFFK, S_SOFFV, S_MK, S_MV = "s45", "s46", "s47", "s48"
S_T0, S_T1, S_T2, S_T3 = "s50", "s51", "s52", "s53"
S_HP, S_B, S_BR, S_CL = "s54", "s55", "s56", "s57"
S_WS = "s[58:59]"
S_SOFFP = "s60"
S_STAMP = "s[62:63]"
S_FLAG = "s64"
S_SAFE = "s61"
LTHR = 0x4b800000
S_KS, S_X0, S_W0 = "s88", "s89", "s87"
S_TAU, S_TB, S_TQ, S_T4N, S_TMASK, S_TSH, S_TM, S_TS = "s78", "s79", "s43", "s44", "s34", "s49", "s61", "s95"

V_LANE = "v1"
V_WQR = [2, 3, 4, 5]; V_XR = 6
V_WQD = [7, 8, 9, 10]; V_XD = [11, 12, 13]; V_TG, V_TI, V_TB, V_TV = 14, 15, 62, 63
V_KD = [16, 17, 18, 19]; V_VD = [20, 21]
V_KR = [22, 23, 24, 25]; V_VR = [26 + i for i in range(8)]
V_WOD = [34, 35, 36, 37]; V_WOR = [38, 39, 40, 41]
V_OW, V_OR, V_OR8, V_PS = 42, 43, 44, 45
VT = [46 + i for i in range(18)]
RB = 64
def grp(t, s): return RB + (t * 4 + s) * 8
def qacc(dt, t): return grp(t, dt >> 1) + 4 * (dt & 1)
def qfrag(t, s): return grp(t, s)
def Sreg(kt, t): return grp(t, kt) + 4
def Preg(par, t): return grp(t, 2 + par) + 4
def cinit(t): return 224 + 4 * t
V_C0, V_C1 = 244, 245
def vr(b, n=4): return f"v[{b}:{b+n-1}]"
def ar(b, n=4): return f"a[{b}:{b+n-1}]"
def oacc(dt, t): return t * 32 + dt * 4
def lacc(t): return 160 + 4 * t
A_ONES = 180
def abuf(i): return 184 + 4 * i
def bbuf(t): return [48, 52, 56, 60, 248][t]
def kbuf(kt, s): return 216 + 4 * (kt * 4 + s)

MF = "v_mfma_f32_16x16x32_bf16"
def mfma(d, a, b, c): return I(f"{MF} {d}, {a}, {b}, {c}")
SCALE = (128 ** -0.5) * 1.4426950408889634
import struct
def f2u(x): return struct.unpack("<I", struct.pack("<f", x))[0]

def NT(): return " nt" if OPT['kvnt'] else ""

def CNTOFF(): return 128 if OPT.get('dbgst') is not None else 0
stamp_id = [0]
def stamp(name):
    if not OPT['stamps']: return []
    i = stamp_id[0]; stamp_id[0] += 1
    STAMPS.append(name)
    return II("s_memrealtime s[66:67]", "s_memtime s[64:65]", "s_waitcnt lgkmcnt(0)",
              f"v_writelane_b32 v0, s66, {i}", f"v_writelane_b32 v0, s64, {32 + i}")
def stamp_dump():
    if not OPT['stamps']: return []
    if OPT.get('dbgst') is not None:
        return II(f"s_cmp_eq_u32 s2, {OPT['dbgst']}", "s_cbranch_scc0 L_nodbg", f"s_cmp_eq_u32 {S_W}, 0", "s_cbranch_scc0 L_nodbg",
                  "v_readlane_b32 s50, v0, 0", "s_nop 3", "v_subrev_u32 v0, s50, v0",
                  f"v_lshlrev_b32 v1, 2, {V_LANE}", "v_cmp_gt_u32 vcc, 16, v1", f"v_lshrrev_b32 v2, 2, v1", "v_mov_b32 v3, 0x1000", "v_cmp_gt_u32 vcc, 16, v2", "s_nop 1",
                  "v_cndmask_b32 v1, v3, v1, vcc", f"buffer_store_dword v0, v1, {SRD_D}, 0 offen", "L_nodbg:")
    return II("s_add_u32 s62, s58, 0x8000000", "s_addc_u32 s63, s59, 0", "s_lshl_b32 s65, s2, 2", f"s_add_u32 s65, s65, {S_W}", "s_lshl_b32 s65, s65, 8",
              f"v_lshlrev_b32 v1, 2, {V_LANE}", "v_add_u32 v1, s65, v1", "global_store_dword v1, v0, s[62:63]")
STAMPS = []

def setup():
    L = []
    A = lambda *x: L.extend(II(*x))
    A("s_cmp_ge_u32 s2, 256", "s_cbranch_scc1 L_main_end")
    A("s_load_dwordx8 s[68:75], s[0:1], 0", "s_load_dwordx2 s[76:77], s[0:1], 32",
      "s_load_dwordx8 s[80:87], s[0:1], 40", "s_load_dwordx2 s[88:89], s[0:1], 72",
      f"s_load_dwordx2 {S_WS}, s[0:1], 96", "s_load_dwordx4 s[96:99], s[0:1], 80")
    A("s_and_b32 s50, s2, 7", "s_lshr_b32 s51, s2, 3",
      f"s_lshr_b32 {S_BR}, s50, 2",
      "s_and_b32 s52, s50, 3", "s_lshl_b32 s52, s52, 2", "s_and_b32 s53, s51, 3", f"s_add_u32 {S_HP}, s52, s53",
      f"s_lshr_b32 {S_B}, s51, 2",
      f"s_lshl_b32 s52, {S_BR}, 3", f"s_add_u32 {S_CL}, s52, {S_B}")
    A("v_lshrrev_b32 v46, 6, v0", f"v_and_b32 {V_LANE}, 63, v0", "s_nop 0", f"v_readfirstlane_b32 {S_W}, v46", "s_nop 3")
    A(f"s_lshr_b32 {S_U}, {S_W}, 1", f"s_and_b32 {S_QH}, {S_W}, 1", f"s_mov_b32 {S_SAFE}, 0")
    A(lane_consts_q())
    A("s_waitcnt lgkmcnt(0)")
    A(f"s_cmp_eq_u32 {S_BR}, 1")
    for i in range(8): A(f"s_cselect_b32 s{68+i}, s{80+i}, s{68+i}")
    A("s_cselect_b32 s76, s88, s76", "s_cselect_b32 s77, s89, s77")
    def srd(dst, lo, hi, off_expr_regs, nrec):
        A(f"s_add_u32 s{dst}, s{lo}, s50", f"s_addc_u32 s{dst+1}, s{hi}, 0", f"s_and_b32 s{dst+1}, s{dst+1}, 0xffff")
        A(nrec, f"s_mov_b32 s{dst+3}, 0x20000")
    A(f"s_mul_i32 s50, {S_B}, 147456"); srd(4, 68, 69, None, "s_mov_b32 s6, 147456")
    A(f"s_lshl_b32 s50, {S_HP}, 9"); srd(8, 74, 75, None, "s_sub_u32 s10, 4194304, s50")
    A(f"s_lshl_b32 s50, {S_B}, 5", f"s_lshl_b32 s51, {S_HP}, 1", "s_add_u32 s50, s50, s51", f"s_add_u32 s50, s50, {S_U}", "s_lshl_b32 s50, s50, 17")
    srd(12, 70, 71, None, "s_mov_b32 s14, 131072")
    srd(16, 72, 73, None, "s_mov_b32 s18, 131072")
    A(f"s_lshl_b32 s50, {S_HP}, 18", f"s_lshl_b32 s51, {S_W}, 8", "s_add_u32 s50, s50, s51")
    A("s_sub_u32 s52, 262144, s51")
    srd(20, 76, 77, None, "s_mov_b32 s22, s52")
    A(f"s_lshl_b32 s50, {S_HP}, 18"); srd(84, 76, 77, None, "s_mov_b32 s86, 262144")
    A(f"s_mul_i32 s50, {S_CL}, 2359296"); srd(24, 58, 59, None, "s_mov_b32 s26, 2359296")
    if OPT['fused']:
        A(f"s_mul_i32 s50, {S_CL}, 4608", "s_add_u32 s50, s50, 0x3000000"); srd(68, 58, 59, None, "s_mov_b32 s70, 4608")
        A("s_mov_b32 s72, s98", "s_and_b32 s73, s99, 0xffff", "s_mov_b32 s74, 256", "s_mov_b32 s75, 0x20000")
        A("s_mov_b32 s80, s96", "s_and_b32 s81, s97, 0xffff", "s_mov_b32 s82, 2359296", "s_mov_b32 s83, 0x20000")
        A(f"s_lshl_b32 s50, {S_W}, 7", f"s_lshl_b32 s51, {S_HP}, 2", "s_add_u32 s50, s50, s51",
          f"v_lshlrev_b32 v46, 9, {V_LANE}", "v_add_u32 v46, s50, v46", "v_mov_b32 v47, 0",
          f"buffer_store_dword v47, v46, {SRD_F}, 0 offen sc1")
    return L

def lane_consts_q():
    L = []; A = lambda *x: L.extend(II(*x))
    l = V_LANE; t0, t1, t2, t3, t4, t5 = [f"v{x}" for x in VT[:6]]
    A(f"v_lshrrev_b32 {t0}, 4, {l}", f"v_bfe_u32 {t1}, {l}, 2, 2", f"v_and_b32 {t2}, 3, {l}", f"v_and_b32 {t3}, 15, {l}")
    for n in range(4):
        A(f"v_add_u32 {t4}, {4*n}, {t0}", f"v_xor_b32 {t4}, {t4}, {t3}", f"v_lshlrev_b32 {t4}, 4, {t4}",
          f"v_lshl_add_u32 v{V_KD[n]}, {t0}, 8, {t4}")
    for n in range(2):
        A(f"v_add_u32 {t4}, {4*n}, {t0}", f"v_lshlrev_b32 {t4}, 1, {t4}", f"v_xor_b32 {t4}, {t4}, {t3}", f"v_lshlrev_b32 {t4}, 4, {t4}",
          f"v_lshl_add_u32 v{V_VD[n]}, {t0}, 8, {t4}")
    A(f"v_lshrrev_b32 {t4}, 5, {l}")
    A(f"v_bfe_u32 {t5}, {l}, 4, 1")
    for j in range(4):
        d = f"v{V_WQD[j]}"
        A(f"v_add_u32 {d}, {2*j}, {t4}",
          f"v_and_b32 v{VT[6]}, 3, {d}", f"v_lshlrev_b32 v{VT[6]}, 2, v{VT[6]}", f"v_xor_b32 v{VT[6]}, v{VT[6]}, {t3}", f"v_lshlrev_b32 v{VT[6]}, 4, v{VT[6]}",
          f"v_lshlrev_b32 {d}, 13, {d}", f"v_add_u32 {d}, {d}, v{VT[6]}", f"v_lshl_add_u32 {d}, {t5}, 8, {d}")
        if j: A(f"v_subrev_u32 {d}, {1024*j}, {d}")
    A(f"v_lshlrev_b32 {t4}, 1, {t0}", f"v_mov_b32 {t5}, 0x78", f"v_lshrrev_b32 {t4}, {t4}, {t5}", f"v_and_b32 {t4}, 3, {t4}",
      f"v_xor_b32 {t4}, {t4}, {t2}", f"v_lshlrev_b32 {t4}, 4, {t4}",
      f"v_lshrrev_b32 {t5}, 2, {l}", f"v_lshl_add_u32 {t4}, {t5}, 10, {t4}")
    for j in range(3):
        A(f"v_add_u32 v{V_XD[j]}, {j*16384 - 1024*j}, {t4}")
    A(f"v_lshl_add_u32 {t4}, {t0}, 3, {t1}", f"v_lshlrev_b32 {t4}, 9, {t4}", f"v_lshl_add_u32 {t4}, {t2}, 4, {t4}",
      f"s_lshl_b32 s50, {S_U}, 8", f"s_add_u32 s50, s50, {WB}", f"v_add_u32 {t4}, s50, {t4}")
    for s in range(4):
        A(f"v_xor_b32 {t5}, {s}, {t1}", f"v_lshl_add_u32 v{V_WQR[s]}, {t5}, 6, {t4}")
    A(f"v_lshrrev_b32 {t4}, 2, {t3}", f"v_lshlrev_b32 {t4}, 1, {t4}", f"v_mov_b32 {t5}, 0x78", f"v_lshrrev_b32 {t4}, {t4}, {t5}", f"v_and_b32 {t4}, 3, {t4}",
      f"v_xor_b32 {t4}, {t4}, {t0}", f"v_lshlrev_b32 {t4}, 4, {t4}", f"v_lshl_add_u32 {t4}, {t3}, 6, {t4}",
      f"s_lshl_b32 s50, {S_QH}, 12", f"s_add_u32 s50, s50, {XB}", f"v_add_u32 v{V_XR}, s50, {t4}")
    return L

def lane_consts_rest():
    L = []; A = lambda *x: L.extend(II(*x))
    l = V_LANE; t0, t1, t2, t3, t4, t5, t6 = [f"v{x}" for x in VT[:7]]
    A(f"v_lshrrev_b32 {t0}, 4, {l}", f"v_bfe_u32 {t1}, {l}, 2, 2", f"v_and_b32 {t2}, 3, {l}", f"v_and_b32 {t3}, 15, {l}")
    A(f"s_lshl_b32 s50, {S_U}, 13", f"s_add_u32 s51, s50, {KB}", f"v_lshlrev_b32 {t4}, 8, {t3}", f"v_add_u32 {t4}, s51, {t4}")
    for s in range(4):
        A(f"v_add_u32 {t5}, {4*s}, {t0}", f"v_xor_b32 {t5}, {t5}, {t3}", f"v_lshl_add_u32 v{V_KR[s]}, {t5}, 4, {t4}")
    A(f"v_lshrrev_b32 {t4}, 2, {l}", f"v_and_b32 {t5}, 7, {t4}", f"v_lshlrev_b32 {t5}, 1, {t5}",
      f"v_lshlrev_b32 {t4}, 8, {t4}", f"v_add_u32 {t4}, s50, {t4}",
      f"v_and_b32 {t6}, 1, {t2}", f"v_lshl_add_u32 {t4}, {t6}, 3, {t4}",
      f"v_lshrrev_b32 {t6}, 1, {t2}")
    for dt in range(8):
        d = f"v{V_VR[dt]}"
        A(f"v_add_u32 {d}, {2*dt}, {t6}", f"v_xor_b32 {d}, {d}, {t5}", f"v_lshl_add_u32 {d}, {d}, 4, {t4}")
    A(f"v_lshlrev_b32 {t4}, 2, {t0}", f"v_xor_b32 {t4}, {t4}, {t3}", f"v_lshlrev_b32 {t4}, 4, {t4}", f"v_lshl_add_u32 {t4}, {t0}, 10, {t4}")
    for n in range(4):
        A(f"v_add_u32 v{V_WOD[n]}, {n*3072}, {t4}")
    A(f"v_lshrrev_b32 {t4}, 2, {l}", f"v_lshlrev_b32 {t4}, 8, {t4}", f"v_lshl_add_u32 {t4}, {t2}, 4, {t4}",
      f"s_lshl_b32 s50, {S_W}, 13", f"s_add_u32 s50, s50, {WOB}", f"v_add_u32 {t4}, s50, {t4}")
    for cp in range(4):
        A(f"v_xor_b32 {t5}, {cp}, {t1}", f"v_lshl_add_u32 v{V_WOR[cp]}, {t5}, 6, {t4}")
    A(f"s_lshl_b32 s50, {S_QH}, 15", f"s_lshl_b32 s51, {S_U}, 12", "s_add_u32 s50, s50, s51",
      f"v_lshlrev_b32 v{V_OR}, 4, {l}", f"v_add_u32 v{V_OW}, s50, v{V_OR}", f"v_add_u32 v{V_OR8}, 0x10000, v{V_OR}")
    A(f"s_lshl_b32 s50, {S_HP}, 10", f"v_add_u32 v{V_PS}, s50, v{V_OR}")
    return L

def dma(voff, srd, soff, imm, nt=False):
    o = f" offset:{imm}" if imm else ""
    return I(f"buffer_load_dwordx4 v{voff}, {srd}, {soff} offen{o}{' nt' if nt else ''} lds")

def kv_group(kind, m0expr, soffreg):
    if kind == 'K':
        return [dma(V_KD[n], SRD_K, soffreg, n * 1024, OPT['kvnt']) for n in range(4)]
    return [dma(V_VD[n & 1], SRD_V, soffreg, n * 1024, OPT['kvnt']) for n in range(4)]

def kv_tile_full_unused(kind, j):
    L = []
    base = (KB + kphys(j)) if kind == 'K' else (VB + vphys(j))
    for gI in range(2):
        L += II(f"s_lshl_b32 s50, {S_U}, 13", f"s_add_u32 m0, s50, {base + gI*4096}", f"s_mov_b32 s51, {j*8192 + gI*4096}")
        L += kv_group(kind, None, "s51")
    return L

def stage_setup_scalar():
    return II(f"s_lshr_b32 s50, s2, 3", "s_and_b32 s51, s50, 3", "s_lshl_b32 s51, s51, 2", "s_lshr_b32 s50, s50, 2", "s_lshl_b32 s50, s50, 1",
              f"s_add_u32 s52, s50, s51", f"s_and_b32 s52, s52, {15 if OPT['rot'] else 0}",
              f"s_lshl_b32 s50, s52, 6", f"s_lshl_b32 s51, {S_W}, 15", f"s_add_u32 {S_SOFFX}, s50, s51",
              f"s_lshl_b32 s50, s52, 18", f"s_lshl_b32 s51, {S_W}, 16", f"s_add_u32 {S_SOFFW0}, s50, s51",
              f"s_lshl_b32 s50, {S_W}, 12", f"s_add_u32 {S_BW}, s50, {WB}",
              f"s_lshl_b32 s50, {S_W}, 11", f"s_add_u32 {S_BX}, s50, {XB}",
              f"s_mov_b32 {S_MW}, 0", f"s_mov_b32 {S_MX}, 0",
              f"s_lshl_b32 {S_TQ}, {S_QH}, 12",
              f"s_lshl_b32 s50, {S_U}, 13", f"s_add_u32 s50, s50, {S_TQ}", f"s_add_u32 {S_MK}, s50, {KB}", f"s_add_u32 {S_MV}, s50, {VB}")

def stage_dma_list():
    seq = []
    if OPT.get('x_nodma'): return [([I('s_mov_b32 m0, s35')], I('s_nop 0'))]
    if OPT.get('x_nox'):
        seq.append(([I(f"s_mov_b32 m0, {S_MW}")], dma(V_WQD[0], SRD_WQ, S_SOFFW0, 0)))
        for j in range(1, 4): seq.append(([], dma(V_WQD[j], SRD_WQ, S_SOFFW0, j * 1024)))
        return seq
    if OPT.get('x_now'):
        seq.append(([I(f"s_mov_b32 m0, {S_MX}")], dma(V_XD[0], SRD_X, S_SOFFX, 0)))
        for j in range(1, 3): seq.append(([], dma(V_XD[j], SRD_X, S_SOFFX, j * 1024)))
        return seq
    seq.append(([I(f"s_add_u32 m0, {S_MW}, {S_BW}")], dma(V_WQD[0], SRD_WQ, S_SOFFW0, 0, OPT['wnt'])))
    for j in range(1, 4): seq.append(([], dma(V_WQD[j], SRD_WQ, S_SOFFW0, j * 1024, OPT['wnt'])))
    seq.append(([I(f"s_add_u32 m0, {S_MX}, {S_BX}")], dma(V_XD[0], SRD_X, S_SOFFX, 0, OPT['xnt'])))
    for j in range(1, 3): seq.append(([], dma(V_XD[j], SRD_X, S_SOFFX, j * 1024, OPT['xnt'])))
    return seq

def place_dma(S, seq, gaps):
    k = 0
    last = None
    for e in seq:
        if e[0]:
            for p in e[0]: S.put(gaps[k], p)
            k += 1
        S.put(gaps[k], e[1]); last = gaps[k]
        if len(e) > 2:
            for p in e[2]: S.put(gaps[k] + 1, p)
        k += 1
    return last

def stage_advance_w():
    return II(f"s_add_u32 {S_SOFFW0}, {S_SOFFW0}, 262144", f"s_and_b32 {S_SOFFW0}, {S_SOFFW0}, 0x3fffff",
              f"s_add_u32 {S_MW}, {S_MW}, 16384", f"s_and_b32 {S_MW}, {S_MW}, 0xffff")
def stage_advance_x():
    return II(f"s_add_u32 {S_SOFFX}, {S_SOFFX}, 64", f"s_and_b32 {S_SOFFX}, {S_SOFFX}, 0xfffffbff",
              f"s_add_u32 {S_MX}, {S_MX}, 9216", f"s_cmp_eq_u32 {S_MX}, 36864", f"s_cselect_b32 {S_MX}, 0, {S_MX}")
def stage_advance(): return stage_advance_w() + stage_advance_x()

def straight(seq):
    L = []
    for e in seq:
        L += e[0]
        if e[0]: L += II("s_nop 0")
        L.append(e[1])
        if len(e) > 2: L += e[2]
    return L

def stage_issue_straight(advance=True):
    return straight(stage_dma_list()) + (stage_advance() if advance else [])

def wq_read(dt, h2):
    if OPT.get('x_noread'): return I('s_nop 0')
    if OPT.get('x_fakewq'): return I(f"ds_read_b64_tr_b16 {ar(abuf(dt) + 2*h2, 2)}, v{V_VR[dt]} offset:{16384 + h2*4096}")
    s, hf = dt >> 1, dt & 1
    b = abuf(dt) + 2 * h2
    off = hf * 8 + h2 * 2048
    return I(f"ds_read_b64_tr_b16 {ar(b,2)}, v{V_WQR[s]}" + (f" offset:{off}" if off else ""))
def x_read(t):
    if OPT.get('x_noread'): return I('s_nop 0')
    return I(f"ds_read_b128 {vr(bbuf(t))}, v{V_XR}" + (f" offset:{t*1024}" if t else ""))
def q_mfma(dt, t):
    if OPT.get('x_t4') and t == 4: return I("s_nop 3")
    if OPT.get('x_t45') and t == 4 and dt >= 4: return I("s_nop 3")
    return mfma(vr(qacc(dt, t)), ar(abuf(dt)), vr(bbuf(t)), vr(qacc(dt, t)))

def half_group(kind, j):
    if kind == 'K':
        pre = II(f"s_add_u32 m0, {S_MK}, {kphys(j)}", f"s_add_u32 s51, {S_TQ}, {j*8192}")
    else:
        pre = II(f"s_add_u32 m0, {S_MV}, {vphys(j)}", f"s_add_u32 s51, {S_TQ}, {j*8192}")
    g = kv_group(kind, None, "s51")
    return [(pre, g[0])] + [([], x) for x in g[1:]]

def put_dmas(S, seq, gaps):
    prev = -1
    for e, g in zip(seq, gaps):
        if e[0]:
            assert g - 1 > prev or prev < 0, (g, prev)
            for p in e[0]: S.put(g - 1, p)
        S.put(g, e[1])
        if len(e) > 2:
            for p in e[2]: S.put(g + 1, p)
        prev = g
    assert len(seq) <= len(gaps)

QTAIL = (4, 5, 6, 7)
def q_tail(): return [q_mfma(dt, t) for t in range(5) for dt in QTAIL]
def q_body(with_dma, extra_dma=None, last_wait=None, loopctl=False):
    ms = q_tail() + [q_mfma(dt, t) for t in range(5) for dt in range(4)]
    S = Sched(ms)
    a = lambda dt, h: wq_read(dt, h)
    plan = {0: a(0,0), 1: a(0,1), 2: a(1,0), 3: a(1,1), 4: x_read(0), 5: a(2,0), 7: a(2,1), 8: x_read(1), 9: a(3,0), 11: a(3,1),
            12: x_read(2), 16: x_read(3), 20: x_read(4), 21: a(4,0), 22: a(4,1), 23: a(5,0), 24: a(5,1), 25: a(6,0), 27: a(6,1), 28: a(7,0), 29: a(7,1)}
    for g, ins in plan.items(): S.put(g, ins)
    S.put(13, f"s_cmp_eq_u32 {S_RSLOT}, 3", f"s_cselect_b32 {S_DW}, s90, s91", f"s_cselect_b32 {S_DX}, s92, s93")
    S.put(15, f"s_add_u32 {S_RSLOT}, {S_RSLOT}, 1", f"s_and_b32 {S_RSLOT}, {S_RSLOT}, 3")
    S.spread([f"v_add_u32 v{V_WQR[0]}, {S_DW}, v{V_WQR[0]}", f"v_add_u32 v{V_WQR[1]}, {S_DW}, v{V_WQR[1]}"], [31, 31])
    S.spread([f"v_add_u32 v{V_WQR[2]}, {S_DW}, v{V_WQR[2]}", f"v_add_u32 v{V_WQR[3]}, {S_DW}, v{V_WQR[3]}"], [32, 32])
    S.put(33, f"v_add_u32 v{V_XR}, {S_DX}, v{V_XR}")
    if with_dma:
        put_dmas(S, stage_dma_list(), [6, 10, 14, 18, 26, 30, 34])
        w = stage_advance_w()
        S.put(19, w[0], w[1]); S.put(19, w[2]); S.put(22, w[3])
        S.put(35, stage_advance_x()[:2]); S.put(38, stage_advance_x()[2:])
    if extra_dma:
        put_dmas(S, extra_dma, [6, 10, 14, 18, 26, 30, 34, 36][:len(extra_dma)])
    endw = []
    if loopctl:
        b0 = OPT['bursts'][0]
        S.put(17, f"s_sub_u32 s50, {S_CNT}, {b0}", "s_cmp_lt_u32 s50, 9", "s_cselect_b64 vcc, -1, 0")
        S.put(21, f"s_add_u32 {S_CNT}, {S_CNT}, 1")
        S.put(35, f"s_cmp_eq_u32 {S_CNT}, s49")
        S.g[35].append(I("s_cbranch_scc1 L_q_burst")); S.g[35].append(I("L_q_burst_done:"))
        if OPT.get('x_novm'):
            S.put(36, tr_mark(), "s_waitcnt lgkmcnt(0)", "L_q_wd:", tr_commit())
        else:
            npf = {0: 0, 1: 1, 2: 1, 3: 2, 4: 2}[OPT['pfkv']]
            S.put(36, tr_mark(), f"s_waitcnt vmcnt({18 + npf}) lgkmcnt(0)", "s_cbranch_vccz L_q_w14", "L_q_wd:", tr_commit())
        if not OPT.get('x_nobar'): S.put(37, "s_barrier")
        S.put(39, f"s_cmp_lt_u32 {S_CNT}, 13")
    elif last_wait is not None:
        S.put(37, tr_mark(), f"s_waitcnt vmcnt({last_wait}) lgkmcnt(0)", tr_commit())
        S.put(38, "s_barrier")
    seq = S.flat()
    seq, pend = lgkm_waits(seq)
    assert not pend
    if OPT['verbose']: print(S.report(f"q_body dma={with_dma}"))
    return seq

def tr_mark():
    return [Raw("s_memtime s[100:101]")] if OPT.get('trace') else []
def tr_commit():
    return [Raw("s_mov_b32 s95, m0\n  s_mov_b32 m0, s94\n  s_nop 0\n  v_writelane_b32 v0, s100, m0\n  s_mov_b32 m0, s95\n  s_add_u32 s94, s94, 1")] if OPT.get('trace') else []
def tr_dump():
    if not OPT.get('trace'): return []
    return II("s_add_u32 s66, s58, 0x9000000", "s_addc_u32 s67, s59, 0", "s_lshl_b32 s50, s2, 2", f"s_add_u32 s50, s50, {S_W}", "s_lshl_b32 s50, s50, 8",
              f"v_lshlrev_b32 v253, 2, {V_LANE}", "v_add_u32 v253, s50, v253", "global_store_dword v253, v0, s[66:67]")

def zero_init():
    L = II("v_mov_b32 v244, 0", "v_mov_b32 v245, 0", "v_mov_b32 v246, 0", "v_mov_b32 v247, 0", "s_nop 1")
    for r in range(RB, RB + 160, 16): L += II(f"v_mfma_f32_32x32x16_bf16 v[{r}:{r+15}], v[244:247], v[244:247], 0")
    for r in range(0, 256, 16): L += II(f"v_mfma_f32_32x32x16_bf16 a[{r}:{r+15}], v[244:247], v[244:247], 0")
    return L

def phase_q():
    L = []; A = lambda *x: L.extend(II(*x))
    A("L_phase_q:")
    A(stage_setup_scalar(), stage_issue_straight())
    A(stamp("q_issued"))
    A(zero_init())
    A(lane_consts_rest())
    A(f"s_mov_b32 {S_RSLOT}, 0", f"s_mov_b32 {S_CNT}, 0")
    if OPT.get('trace'): A("s_mov_b32 s94, 1", "s_memtime s[100:101]", "s_waitcnt lgkmcnt(0)", "v_writelane_b32 v0, s100, 0")
    A("s_mov_b32 s90, 0xffff4000", "s_mov_b32 s91, 16384", f"s_mov_b32 s92, {hex((-3*9216) & 0xffffffff)}", "s_mov_b32 s93, 9216")
    A(f"v_mov_b32 v{VT[0]}, 0x3f803f80")
    for r in range(4): A(f"v_accvgpr_write_b32 a{A_ONES + r}, v{VT[0]}")
    for t in range(5):
        for k in range(4): A(f"v_mov_b32 v{bbuf(t)+k}, 0")
    if OPT['pfkv']:
        A(f"v_lshrrev_b32 v14, 5, {V_LANE}", "v_lshlrev_b32 v14, 13, v14", f"v_and_b32 v15, 31, {V_LANE}", "v_lshl_add_u32 v14, v15, 7, v14")
    A(f"s_mov_b32 s49, {OPT['bursts'][0] + 1}")
    if OPT['start2']:
        A(stage_issue_straight())
        A(f"s_waitcnt vmcnt(7)", "s_barrier")
    else:
        A(stage_issue_straight(), stage_issue_straight())
        A(f"s_waitcnt vmcnt(14)", "s_barrier")
    if OPT['fused']:
        A(f"s_cmp_eq_u32 {S_SAFE}, 1", "s_cbranch_scc1 L_no_arrive")
        A(f"s_lshl_b32 s50, {S_CL}, 2", f"s_add_u32 s50, s50, {CNTOFF()}", f"s_lshl_b32 s51, {S_W}, 14", "s_add_u32 s50, s50, s51",
          f"v_lshlrev_b32 v46, 8, {V_LANE}", "v_add_u32 v46, s50, v46", "v_mov_b32 v47, 1",
          f"buffer_atomic_add v47, v46, {SRD_D}, 0 offen sc1")
        A("L_no_arrive:")
    if OPT['start2']: A(stage_issue_straight())
    A(stamp("q_start"))
    body = q_body(True, loopctl=True)
    body, n = hazards(body, history=body[-24:])
    A(".p2align 6", "L_q_loop:"); L.extend(body)
    b0, b1, b2 = OPT['bursts']
    assert b1 - b0 == 3 and b2 - b1 == 3
    tiles = [('K', 0), ('K', 1), ('V', 0)]
    OOL = II("L_q_burst:", f"s_add_u32 s49, s49, 3", f"s_cmp_eq_u32 {S_CNT}, {b1 + 1}", "s_cbranch_scc1 L_q_burst1",
             f"s_cmp_eq_u32 {S_CNT}, {b2 + 1}", "s_cbranch_scc1 L_q_burst2")
    pfl = {0: [], 1: [[('K', 4)], [('V', 3)], []], 2: [[('K', 4)], [('V', 3)], [('K', 6)]], 3: [[('K', 4), ('V', 3)], [('K', 6), ('V', 5)], []],
           4: [[('K', 4), ('V', 3)], [('K', 6), ('V', 5)], [('K', 8), ('V', 7)]]}[OPT['pfkv']]
    npf = max(len(x) for x in pfl) if pfl else 0
    for i in range(3):
        pf = []
        for tens, blk in (pfl[i] if pfl else []):
            pf += II(f"s_add_u32 s51, {S_TQ}, {blk*8192}", f"buffer_load_dword v15, v14, {SRD_K if tens == 'K' else SRD_V}, s51 offen" + (" nt" if OPT['pfkvnt'] else ""))
        for _ in range(npf - len(pfl[i]) if pfl else 0):
            pf += II(f"buffer_load_dword v15, v14, {SRD_K}, {S_TQ} offen")
        OOL += II(f"L_q_burst{i}:") + (II("s_mov_b32 s49, 99") if i == 2 else []) + straight(half_group(*tiles[i])) + pf + II("s_branch L_q_burst_done")
    OOL += II("L_q_w14:", "s_waitcnt vmcnt(14)", "s_branch L_q_wd")
    A("s_cbranch_scc1 L_q_loop")
    b, n = hazards(q_body(False, extra_dma=half_group('V', 1), last_wait=11), history=body[-24:]); L.extend(b)
    b, n = hazards(q_body(False, extra_dma=half_group('K', 2) + half_group('V', 2), last_wait=12), history=b[-24:]); L.extend(b)
    b, n = hazards(q_body(False, last_wait=12), history=b[-24:]); L.extend(b)
    A("s_branch L_q_after_ool")
    L.extend(OOL)
    A("L_q_after_ool:")
    A(stamp("q_loop_done"))
    return L

def q_scale(ss):
    return [I(f"v_pk_mul_f32 {vr(grp(t,s)+2*k,2)}, {vr(grp(t,s)+2*k,2)}, {vr(V_C0,2)}") for s in ss for t in range(5) for k in range(4)]
def q_cvt(ss):
    return [I(f"v_cvt_pk_bf16_f32 v{grp(t,s)+k}, v{grp(t,s)+2*k}, v{grp(t,s)+2*k+1}") for s in ss for t in range(5) for k in range(4)]

def transition():
    L = []; A = lambda *x: L.extend(II(*x))
    A(f"s_add_u32 {S_SOFFK}, {S_TQ}, {4*8192}", f"s_add_u32 {S_SOFFV}, {S_TQ}, {3*8192}")
    A(f"v_mov_b32 v{V_C0}, {hex(f2u(SCALE))}", f"v_mov_b32 v{V_C1}, {hex(f2u(SCALE))}")
    A(straight(half_group('K', 3)))
    seq = [k_read(kt, s, 0) for kt in range(2) for s in range(4)]
    seq += II("s_nop 3") + q_scale((0, 1))
    S = Sched(q_tail())
    S.spread(q_cvt((0, 1)), [i // 2 for i in range(40)])
    seq += S.flat()
    seq += II("s_nop 7") + q_scale((2, 3))
    qk = lambda ss: [qk_mfma(kt, s, t, lambda t: "0") for s in ss for kt in range(2) for t in range(5)]
    S = Sched(qk((0, 1)))
    S.spread(q_cvt((2, 3)), [i // 2 for i in range(40)])
    seq += S.flat()
    seq += qk((2, 3))
    seq, _ = lgkm_waits(seq, final_zero=True)
    seq, n = hazards(seq); L.extend(seq)
    A("s_barrier")
    A(stamp("qk0_done"))
    A(f"s_cmp_eq_u32 {S_SAFE}, 1", "s_cbranch_scc1 L_safe_max")
    E = II("s_nop 3")
    T = [VT[0] + 0, VT[0] + 1, 50, 51, 53]
    T = [2, 3, 4, 5, 6]
    U = [7, 8, 9, 10, 11]
    ab = [(Sreg(0, t), Sreg(1, t)) for t in range(5)]
    for t, (a, b) in enumerate(ab): E += II(f"v_max3_f32 v{T[t]}, v{a}, v{a+1}, v{a+2}")
    for t, (a, b) in enumerate(ab): E += II(f"v_max3_f32 v{T[t]}, v{T[t]}, v{a+3}, v{b}")
    for t, (a, b) in enumerate(ab): E += II(f"v_max3_f32 v{T[t]}, v{T[t]}, v{b+1}, v{b+2}")
    for t, (a, b) in enumerate(ab): E += II(f"v_max_f32 v{T[t]}, v{T[t]}, v{b+3}")
    for sw in ("v_permlane32_swap_b32", "v_permlane16_swap_b32"):
        for t in range(5): E += II(f"v_mov_b32 v{U[t]}, v{T[t]}")
        for t in range(5): E += II(f"{sw} v{T[t]}, v{U[t]}")
        for t in range(5): E += II(f"v_max_f32 v{T[t]}, v{T[t]}, v{U[t]}")
    for t in range(5):
        for k in range(4): E += II(f"v_sub_f32 v{cinit(t)+k}, 0, v{T[t]}")
    for t, (a, b) in enumerate(ab):
        for base in (a, b):
            for k in range(4): E += II(f"v_sub_f32 v{base+k}, v{base+k}, v{T[t]}")
    for t, (a, b) in enumerate(ab):
        for base in (a, b):
            for k in range(4): E += II(f"v_exp_f32 v{base+k}, v{base+k}")
    E, n = hazards(E); L.extend(E)
    A("L_max_done:")
    for t in range(5):
        for k in range(4): A(f"v_mov_b32 v{Preg(1,t)+k}, 0")
    A("s_nop 1")
    return L

def row_max_finish(T, U):
    E = []
    for sw in ("v_permlane32_swap_b32", "v_permlane16_swap_b32"):
        for t in range(5): E += II(f"v_mov_b32 v{U[t]}, v{T[t]}")
        for t in range(5): E += II(f"{sw} v{T[t]}, v{U[t]}")
        for t in range(5): E += II(f"v_max_f32 v{T[t]}, v{T[t]}, v{U[t]}")
    for t in range(5):
        for k in range(4): E += II(f"v_sub_f32 v{cinit(t)+k}, 0, v{T[t]}")
    return E

def safe_paths():
    L = []; A = lambda *x: L.extend(II(*x))
    T = [2, 3, 4, 5, 6]; U = [7, 8, 9, 10, 11]
    ab = [(Sreg(0, t), Sreg(1, t)) for t in range(5)]
    A("L_safe_max:")
    for t in range(5): A(f"v_mov_b32 v{T[t]}, 0xff800000")
    A(f"s_mov_b32 {S_CNT}, 0")
    A("L_safe_loop:")
    A("s_waitcnt vmcnt(0) lgkmcnt(0)", "s_barrier")
    A(f"s_and_b32 s50, {S_CNT}, 15", "s_lshl_b32 s50, s50, 13", f"s_add_u32 s51, s50, {S_TQ}", f"s_add_u32 m0, {S_MK}, {kphys(0)}", "s_nop 0")
    A(kv_group('K', None, "s51"))
    A("s_waitcnt vmcnt(0)", "s_barrier")
    A([k_read(kt, s, 0) for kt in range(2) for s in range(4)], "s_waitcnt lgkmcnt(0)")
    A(f"s_cmp_eq_u32 {S_CNT}, 16", "s_cbranch_scc1 L_safe_last")
    A([qk_mfma(kt, s, t, lambda t: "0") for kt in range(2) for s in range(4) for t in range(5)], "s_nop 7", "s_nop 7")
    for t, (a, b) in enumerate(ab):
        A(f"v_max3_f32 v{T[t]}, v{T[t]}, v{a}, v{a+1}", f"v_max3_f32 v{T[t]}, v{T[t]}, v{a+2}, v{a+3}",
          f"v_max3_f32 v{T[t]}, v{T[t]}, v{b}, v{b+1}", f"v_max3_f32 v{T[t]}, v{T[t]}, v{b+2}, v{b+3}")
    A(f"s_add_u32 {S_CNT}, {S_CNT}, 1", f"s_cmp_lt_u32 {S_CNT}, 16", "s_cbranch_scc1 L_safe_loop")
    E, n = hazards(II("s_nop 3") + row_max_finish(T, U)); L.extend(E)
    A("s_branch L_safe_loop")
    A("L_safe_last:", "s_nop 3")
    A([qk_mfma(kt, s, t, lambda t: vr(cinit(t))) for kt in range(2) for s in range(4) for t in range(5)], "s_nop 7", "s_nop 7")
    A("s_barrier")
    for t, (a, b) in enumerate(ab):
        for base in (a, b):
            for k in range(4): A(f"v_exp_f32 v{base+k}, v{base+k}")
    A("s_nop 1", "s_branch L_max_done")
    if OPT['fused']:
        A("L_cnt_spin:", f"s_mov_b32 s53, {SPIN}", "L_cnt_spin_loop:", "s_sleep 2",
          f"buffer_load_dword v15, v14, {SRD_D}, 0 offen sc1", "s_waitcnt vmcnt(0)", "v_readfirstlane_b32 s52, v15", "s_nop 3",
          "s_cmp_ge_u32 s52, 16", "s_cbranch_scc1 L_cnt_ok", "s_sub_u32 s53, s53, 1", "s_cmp_lg_u32 s53, 0", "s_cbranch_scc1 L_cnt_spin_loop", "s_branch L_cnt_ok")
    A("L_restart:", f"s_mov_b32 {S_SAFE}, 1", "s_waitcnt vmcnt(0) lgkmcnt(0)", "s_barrier")
    A(lane_consts_q())
    A("s_branch L_phase_q")
    return L

def k_read(kt, s, slotk):
    off = kphys(slotk) + kt * 4096
    return I(f"ds_read_b128 {ar(kbuf(kt, s))}, v{V_KR[s]}" + (f" offset:{off}" if off else ""))
def v_read(dt, h, slotv):
    off = vphys(slotv) + h * 4096
    return I(f"ds_read_b64_tr_b16 {ar(abuf(dt) + 2*h, 2)}, v{V_VR[dt]}" + (f" offset:{off}" if off else ""))
def qk_mfma(kt, s, t, first_c):
    c = first_c(t) if s == 0 else vr(Sreg(kt, t))
    return mfma(vr(Sreg(kt, t)), ar(kbuf(kt, s)), vr(qfrag(t, s)), c)
def pv_mfma(dt, t, par):
    return mfma(ar(oacc(dt, t)), ar(abuf(dt)), vr(Preg(par, t)), ar(oacc(dt, t)))
def rs_mfma(t, par):
    return mfma(ar(lacc(t)), ar(A_ONES), vr(Preg(par, t)), ar(lacc(t)))
def cvts(par):
    out = []
    for kt in range(2):
        for t in range(5):
            s = Sreg(kt, t); p = Preg(par, t) + 2 * kt
            out.append(I(f"v_cvt_pk_bf16_f32 v{p}, v{s}, v{s+1}"))
            out.append(I(f"v_cvt_pk_bf16_f32 v{p+1}, v{s+2}, v{s+3}"))
    return out
def exps(kt):
    return [I(f"v_exp_f32 v{Sreg(kt,t)+i}, v{Sreg(kt,t)+i}") for t in range(5) for i in range(4)]

def att_dma(j, dyn=False):
    seq = []
    if j + 4 <= 15:
        pre = II(f"s_add_u32 m0, {S_MK}, {kphys(j + 4)}")
        g = kv_group('K', None, S_SOFFK)
        seq += [(pre, g[0])] + [([], x) for x in g[1:]]
        seq[-1] = (seq[-1][0], seq[-1][1], II(f"s_add_u32 {S_SOFFK}, {S_SOFFK}, 8192"))
    if j + 3 <= 15:
        pre = II(f"s_add_u32 m0, {S_MV}, {vphys(j + 3)}")
        g = kv_group('V', None, S_SOFFV)
        s2 = [(pre, g[0])] + [([], x) for x in g[1:]]
        s2[-1] = (s2[-1][0], s2[-1][1], II(f"s_add_u32 {S_SOFFV}, {S_SOFFV}, 8192"))
        seq += s2
    return seq

def wo_dma(ks, slot_base_imm):
    seq = []
    for gI in range(2):
        pre = II(f"s_lshl_b32 s50, {S_W}, 13", f"s_add_u32 m0, s50, {slot_base_imm + gI*4096}", f"s_mov_b32 s51, {ks*32768 + gI*16384}")
        for n in range(4):
            seq.append((pre if n == 0 else [], dma(V_WOD[n], SRD_WO, "s51", n * 1024, OPT["wont"])))
    return seq

def att_body(j, vmwait, extra_dma=None):
    par_old, par_new = (j - 1) & 1, j & 1
    ms = [pv_mfma(dt, t, par_old) for dt in (5, 6, 7) for t in range(5)] + [rs_mfma(t, par_old) for t in range(5)]
    ms += [qk_mfma(kt, s, t, lambda t: vr(cinit(t))) for kt in range(2) for s in range(4) for t in range(5)]
    ms += [pv_mfma(dt, t, par_new) for dt in range(5) for t in range(5)]
    S = Sched(ms)
    cv = cvts(par_new)
    S.spread(cv, [1, 1, 3, 3, 6, 6, 8, 8, 11, 11, 13, 13, 16, 16, 18, 18, 21, 21, 23, 23])
    S.spread([k_read(kt, s, j + 1) for kt in range(2) for s in range(4)], [0, 2, 5, 7, 10, 12, 15, 17])
    vr_ = [v_read(dt, h, j) for dt in range(8) for h in range(2)]
    S.spread(vr_, [20, 22, 25, 26, 27, 28, 30, 31, 32, 33, 35, 36, 37, 38, 40, 61])
    d = att_dma(j) + (extra_dma or [])
    if j + 4 > 15 and j + 3 <= 15 and not extra_dma:
        put_dmas(S, d, [24, 29, 34, 39])
    else:
        put_dmas(S, d, [4, 9, 14, 19, 24, 29, 34, 39])
    S.spread(exps(0), list(range(41, 61)))
    S.spread(exps(1), list(range(62, 82)))
    seq = S.flat()
    seq, pend = lgkm_waits(seq)
    seq += tr_mark() + II(f"s_waitcnt vmcnt({vmwait}) lgkmcnt(0)") + tr_commit() + II("s_barrier")
    if OPT['verbose']: print(S.report(f"att_body {j}"))
    return seq

WO1 = [192, 200, 208, 216, 224, 228, 232, 236]
def wofrag(ks, m, n=4, off=0):
    if ks == 0: return ar(216 + 4 * m + off, n)
    if ks == 1: return vr(WO1[m] + off, n)
    return ar((ks - 2) * 32 + 4 * m + off, n)
def wo_read(ks, m, h):
    cp, hf = m >> 1, m & 1
    off = (32768 if (ks & 1) == 0 else 0) + hf * 8 + h * 4096
    return I(f"ds_read_b64_tr_b16 {wofrag(ks, m, 2, 2*h)}, v{V_WOR[cp]}" + (f" offset:{off}" if off else ""))

def wo_prefetch():
    n = OPT['pfw']
    L = II(f"s_lshl_b32 s50, {S_B}, 15", f"s_lshl_b32 s51, {S_W}, 13", "s_add_u32 s50, s50, s51")
    nt = " nt" if OPT['pfnt'] else ""
    if n == 8:
        L += II(f"v_lshlrev_b32 v46, 4, {V_LANE}")
        for i in range(8):
            L += II(f"s_add_u32 s51, s50, {i*1024}", f"buffer_load_dwordx4 v[252:255], v46, s[84:87], s51 offen{nt}")
    else:
        sh = {1: 7, 2: 6, 4: 5}[n]
        L += II(f"v_lshlrev_b32 v46, {sh}, {V_LANE}")
        for i in range(n):
            L += II(f"s_add_u32 s51, s50, {i * (64 << sh)}", f"buffer_load_dword v47, v46, s[84:87], s51 offen{nt}")
    return L

def attention():
    L = []; A = lambda *x: L.extend(II(*x))
    L += transition()
    A(stamp("att_start"))
    A(f"s_mov_b32 {S_CNT}, 0")
    bodies = [att_body(j, 16) for j in range(4)]
    hist = bodies[3][-24:]
    A(".p2align 6", "L_att_loop:")
    for b in bodies:
        b2, n = hazards(b, history=hist); L.extend(b2); hist = b2[-24:]
    if OPT['pf'] >= 0:
        A(f"s_cmp_eq_u32 {S_CNT}, {OPT['pf']}", "s_cbranch_scc0 L_att_nopf", wo_prefetch(), "L_att_nopf:")
    A(f"s_add_u32 {S_CNT}, {S_CNT}, 1", f"s_cmp_lt_u32 {S_CNT}, 3", "s_cbranch_scc1 L_att_loop")
    b, n = hazards(att_body(12, 12), history=hist); L.extend(b); hist = b[-24:]
    b, n = hazards(att_body(13, 12, extra_dma=wo_dma(0, WOA)), history=hist); L.extend(b); hist = b[-24:]
    b, n = hazards(att_body(14, 16, extra_dma=wo_dma(1, WOB)), history=hist); L.extend(b); hist = b[-24:]
    A(stamp("att_loop_done"))
    ms = [pv_mfma(dt, t, 0) for dt in (5, 6, 7) for t in range(5)] + [rs_mfma(t, 0) for t in range(5)]
    ms += [pv_mfma(dt, t, 1) for dt in range(8) for t in range(5)] + [rs_mfma(t, 1) for t in range(5)]
    S = Sched(ms)
    S.spread(cvts(1), list(range(0, 20)))
    S.spread([v_read(dt, h, 15) for dt in range(5) for h in range(2)], list(range(0, 10)))
    S.spread([v_read(dt, h, 15) for dt in (5, 6, 7) for h in range(2)], list(range(15, 21)))
    S.put(20, "s_waitcnt vmcnt(8)")
    S.spread([wo_read(0, m, h) for m in range(8) for h in range(2)], [21 + i // 2 for i in range(16)])
    S.put(28, "s_waitcnt vmcnt(0)")
    S.spread([wo_read(1, m, h) for m in range(8) for h in range(2)], [29 + i // 2 for i in range(16)])
    S.put(38, "s_waitcnt lgkmcnt(0)")
    if OPT['fused']:
        S.put(36, f"s_lshl_b32 s50, {S_CL}, 2", f"s_add_u32 s50, s50, {CNTOFF()}")
        S.spread([f"v_lshlrev_b32 v14, 8, {V_LANE}", "v_add_u32 v14, s50, v14"], [37, 37])
        S.put(38, f"buffer_load_dword v15, v14, {SRD_D}, 0 offen sc1")
    put_dmas(S, wo_dma(2, WOA), [41, 44, 47, 50, 54, 57, 60, 63])
    seq, pend = lgkm_waits(S.flat(), final_zero=True)
    seq, n = hazards(seq, history=hist); L.extend(seq)
    A("s_barrier")
    A("s_nop 3")
    A(stamp("att_done"))
    return L

def wo_dma_t(ks):
    d = wo_dma(ks, WOA if (ks & 1) == 0 else WOB)
    for e in d: e[1].tag = f"wo{ks}"
    return d
def wo_reads(ks): return [wo_read(ks, m, h) for m in range(8) for h in range(2)]

LFLAG = 90112

def o_epilogue():
    E = []
    tl = VT[0]; rc = VT[2]
    d3, d4, d5 = wo_dma_t(3), wo_dma_t(4), wo_dma_t(5)
    def emit_dma(e):
        return e[0] + II("s_nop 0") * (1 if e[0] else 0) + [e[1]]
    nfr = 0
    for t in range(5):
        E += II(f"v_accvgpr_read_b32 v{tl}, a{lacc(t)}", f"v_rcp_f32 v{rc}, v{tl}", "s_nop 0", f"v_mov_b32 v{rc+1}, v{rc}")
        if t == 0: E += II(f"v_mov_b32 v{VT[1]}, v{tl}")
        else: E += II(f"v_max_f32 v{VT[1]}, v{VT[1]}, v{tl}")
        for ks in range(4):
            mid = []
            if nfr < 8: mid += emit_dma(d3[nfr])
            if 8 <= nfr < 16: mid += emit_dma(d4[nfr - 8])
            if nfr >= 16: mid += emit_dma(d5[2 * (nfr - 16)]) + emit_dma(d5[2 * (nfr - 16) + 1])
            if OPT.get('x_oenodma'): mid = [x for x in mid if x.kind == 'dma'][:0] + [x for x in mid if x.kind != 'dma']
            rd = []
            if 4 <= nfr < 8:
                if nfr == 4:
                    rd += [VmNeed("wo2")]
                    if OPT['fused']:
                        rd += II("v_readfirstlane_b32 s52, v15", "s_nop 3", "s_cmp_lt_u32 s52, 16", "s_cbranch_scc1 L_cnt_spin", "L_cnt_ok:")
                rd += wo_reads(2)[4 * (nfr - 4): 4 * (nfr - 4) + 4]
            if 12 <= nfr < 16:
                if nfr == 12: rd += [VmNeed("wo3")]
                rd += wo_reads(3)[4 * (nfr - 12): 4 * (nfr - 12) + 4]
            if nfr in (8, 16): E += II("s_waitcnt lgkmcnt(0)")
            E += rd
            for h in range(2):
                for k in range(4):
                    E += II(f"v_accvgpr_read_b32 v{52 + 4*h + k}, a{oacc(2*ks + h, t) + k}")
            E += mid
            for k in range(4): E += II(f"v_pk_mul_f32 {vr(52+2*k,2)}, {vr(52+2*k,2)}, {vr(rc,2)}")
            for k in range(4): E += II(f"v_cvt_pk_bf16_f32 v{60+k}, v{52+2*k}, v{53+2*k}")
            E += II(f"ds_write_b128 v{V_OW}, {vr(60)} offset:{(t*8+ks)*1024}")
            nfr += 1
        if OPT['stamps'] and OPT.get('oest'): E += [Raw("\n  ".join(x.txt for x in stamp(f"oe{t}")))] + II("s_waitcnt lgkmcnt(0)")
    E += II(f"v_cmp_nge_f32 vcc, {hex(OPT['lthr'] or LTHR)}, v{VT[1]}", f"s_lshl_b32 s50, {S_W}, 2", f"s_add_u32 s50, s50, {LFLAG}", f"v_mov_b32 v52, s50",
            "s_cmp_lg_u64 vcc, 0", "s_cselect_b32 s51, 1, 0", "v_mov_b32 v53, s51", "ds_write_b32 v52, v53")
    E, q = vm_waits(E, ["cnt"] + ["wo2"] * 8)
    E, pend = lgkm_waits(E, final_zero=True)
    E, n = hazards(E)
    return E + II("s_barrier"), q

def o_read(dst, t, ks):
    if t < 8: return I(f"ds_read_b128 {vr(dst)}, v{V_OR} offset:{(t*8+ks)*1024}")
    return I(f"ds_read_b128 {vr(dst)}, v{V_OR8} offset:{ks*1024}")
def pstore(src, t, cp):
    return (II(f"s_add_u32 s51, {S_SOFFP}, {(cp*9 + t)*16384}"),
            I(f"buffer_store_dwordx4 {vr(src)}, v{V_PS}, {SRD_P}, s51 offen {OPT['pst']}"))

NP1 = 2
def acc1(t, m): return 64 + (t * 8 + m) * 4
def acc2(t, m): return 128 + ((t & 1) * 8 + m) * 4
def bfr1(par, t): return 2 + (par * 4 + t) * 4
STG = [48, 52, 56, 60]

def tile_epilogue(accf, t, k0):
    out = []
    for cp in range(4):
        a0, a1 = accf(t, 2*cp), accf(t, 2*cp + 1)
        d = STG[(k0 + cp) & 3]
        cv = II(f"v_cvt_pk_bf16_f32 v{d}, v{a0}, v{a0+1}", f"v_cvt_pk_bf16_f32 v{d+1}, v{a0+2}, v{a0+3}",
                f"v_cvt_pk_bf16_f32 v{d+2}, v{a1}, v{a1+1}", f"v_cvt_pk_bf16_f32 v{d+3}, v{a1+2}, v{a1+3}")
        pre, st = pstore(d, t, cp)
        if OPT.get('x_nost') and not (t == 8 and cp == 3): st = I("s_nop 0")
        st.tag = f"st{t}"
        out.append((cv, (pre, st)))
    return out

def out_proj(queue):
    L = []; A = lambda *x: L.extend(II(*x))
    A(f"s_mul_i32 {S_SOFFP}, {S_W}, {4*9*16384}")
    NP = OPT['np1']
    G = 8 * NP
    ms = [mfma(vr(acc1(t, m)), wofrag(ks, m), vr(bfr1(ks & 1, t)), ("0" if ks == 0 else vr(acc1(t, m)))) for ks in range(8) for m in range(8) for t in range(NP)]
    bt = lambda ks: 2 + 4 * ks
    P1 = len(ms)
    for t in range(NP, 9):
        ms += [mfma(vr(acc2(t, m)), wofrag(ks, m), vr(bt(ks)), ("0" if ks == 0 else vr(acc2(t, m)))) for ks in range(8) for m in range(8)]
    S = Sched(ms)
    def reads(ks, g0): S.spread(wo_reads(ks), [g0 + i // 2 for i in range(16)])
    def dmas(ks, g0, step=4): put_dmas(S, wo_dma_t(ks), [g0 + step * i for i in range(8)])
    def put_free(ins, g0):
        g = g0
        while S.cost(g) + COST[ins.kind] > 8: g += 1
        S.put(g, ins); return g
    def epi(t, accf, g0, stride):
        for cp, (cv, (spre, st)) in enumerate(tile_epilogue(accf, t, 0)):
            g = g0 + cp * stride
            S.spread(cv, [g, g, g + 1, g + 1])
            for p in spre: S.put(g + 1, p)
            S.put(g + 2, st)
    if NP == 2:
        pre = [o_read(bfr1(0, t), t, 0) for t in range(NP)]
        S.put(0, VmNeed("wo4")); reads(4, 0)
        S.put(9, "s_waitcnt lgkmcnt(0)"); dmas(6, 11, 3)
        S.put(33, VmNeed("wo5")); reads(5, 33)
        S.put(42, "s_waitcnt lgkmcnt(0)"); dmas(7, 44, 3)
        S.put(84, VmNeed("wo6")); reads(6, 84)
        S.put(100, VmNeed("wo7")); reads(7, 100)
        for ks in range(7):
            g = ks * G + (1 if ks else 8)
            for t in range(NP):
                g = put_free(o_read(bfr1((ks + 1) & 1, t), t, ks + 1), g) + 1
            assert g <= (ks + 1) * G - 3, (ks, g)
        g = 6 * G + 4
        for ks in (2, 3, 6, 7): g = put_free(o_read(bt(ks), NP, ks), g) + 1
        g = 7 * G + 1
        for ks in (0, 1): g = put_free(o_read(bt(ks), NP, ks), g) + 1
        base = P1
        for ks in (4, 5): put_free(o_read(bt(ks), NP, ks), base + 1)
        epi(0, acc1, base + 4, 7); epi(1, acc1, base + 32, 7)
    else:
        assert NP == 0
        pre = [o_read(bt(ks), 0, ks) for ks in range(8)]
        S.put(0, VmNeed("wo4")); reads(4, 0)
        S.put(9, "s_waitcnt lgkmcnt(0)"); dmas(6, 11, 2)
        S.put(10, VmNeed("wo5"));
        S.spread(wo_reads(5), [12, 12, 14, 14, 16, 16, 18, 18, 20, 20, 22, 22, 24, 24, 26, 26])
        S.put(28, "s_waitcnt lgkmcnt(0)"); dmas(7, 30, 2)
        S.put(46, VmNeed("wo6")); S.spread(wo_reads(6), [46, 46, 46, 46] + [47 + i // 4 for i in range(12)])
        S.put(54, VmNeed("wo7")); S.spread(wo_reads(7), [54, 54, 54, 54] + [55 + i // 12 for i in range(12)])
    for t in range(NP, 9):
        b = P1 + (t - NP) * 64
        if t > NP: epi(t - 1, acc2, b + 6, 12)
        if t < 8:
            for ks in range(8):
                g = b + 8 * ks + 8
                if g >= b + 64: g = b + 64 + 1
                put_free(o_read(bt(ks), t + 1, ks), g)
    if OPT['fused']:
        g0 = P1 + (3 - NP) * 64 + 49
        S.put(g0, f"s_lshl_b32 s50, {S_W}, 7", f"s_lshl_b32 s52, {S_HP}, 2", "s_add_u32 s50, s50, s52")
        S.spread([f"v_lshlrev_b32 v36, 13, {V_LANE}", "v_add_u32 v36, s50, v36", "v_mov_b32 v37, 1"], [g0 + 1, g0 + 1, g0 + 2])
        S.put(g0 + 3, f"s_lshr_b32 s50, {S_HP}, 2", "s_lshl_b32 s50, s50, 7")
        S.spread([f"v_lshrrev_b32 v46, 4, {V_LANE}", "v_lshlrev_b32 v46, 9, v46", f"v_and_b32 v47, 15, {V_LANE}",
                  "v_lshl_add_u32 v46, v47, 2, v46", "v_add_u32 v46, s50, v46"], [g0 + 4, g0 + 4, g0 + 5, g0 + 9, g0 + 9])
        b = P1 + (8 - NP) * 64
        fa = I(f"buffer_store_dword v37, v36, {SRD_F}, 0 offen sc1"); fa.tag = "fl"
        S.put(b + 40, VmNeed("st3")); S.put(b + 41, fa)
        pl = I(f"buffer_load_dword v47, v46, {SRD_F}, 0 offen sc1"); pl.tag = "poll"
        S.put(b + 60, pl)
    if OPT['stamps'] and OPT.get('opst'):
        for nm, g in (("w1", 127), ("w3", 255), ("w5", 383), ("w8", 575)):
            S.put(g, Raw("\n  ".join(x.txt for x in stamp(nm))))
            S.put(g, "s_waitcnt lgkmcnt(0)")
    pre = II(f"v_mov_b32 v56, {LFLAG}", f"ds_read_b128 {vr(52)}, v56") + pre
    pre += II("s_waitcnt lgkmcnt(0)", "v_or3_b32 v52, v52, v53, v54", "v_or_b32 v52, v52, v55", "s_nop 0", "v_readfirstlane_b32 s50, v52", "s_nop 3",
              f"s_andn2_b32 s50, s50, {S_SAFE}", "s_cmp_lg_u32 s50, 0", "s_cbranch_scc1 L_restart")
    seq = pre + S.flat()
    tail = II("s_nop 7")
    for cp, (cv, (spre, st)) in enumerate(tile_epilogue(acc2, 8, 0)):
        tail += cv + spre + [st]
    if OPT['stamps'] and OPT.get('opst'): tail += stamp("st_iss")
    if OPT['fused']:
        fb = I(f"buffer_store_dword v37, v36, {SRD_F}, 0 offen offset:512 sc1"); fb.tag = "fl"
        fc = I(f"buffer_store_dword v37, v36, {SRD_F}, 0 offen offset:1024 sc1"); fc.tag = "fl"
        tail += [VmNeed("poll"), fb, VmNeed("st8"), fc]
    seq, q = vm_waits(seq + tail, queue)
    seq, pend = lgkm_waits(seq)
    seq, n = hazards(seq)
    if OPT['verbose']: print(S.report("out_proj"), "nops", n)
    L += seq
    return L, q

SPIN = 1 << 22
def reduce_phase():
    L = []; A = lambda *x: L.extend(II(*x))
    DAT = lambda g, tt, k: 64 + ((g * 2 + tt) * 4 + k) * 4
    D8 = lambda k: 192 + 4 * k
    ACC = lambda g, tt: [208, 216, 224, 232, 240, 248, 2, 10][g * 2 + tt]
    A8 = 18
    T0, T1 = 26, 28
    V_POLL, V_FL, V_L16, V_OUT = 46, 47, 32, 33
    A(f"v_lshrrev_b32 v30, 4, {V_LANE}", f"v_and_b32 v31, 15, {V_LANE}", f"v_lshlrev_b32 v{V_L16}, 4, {V_LANE}",
      f"v_lshlrev_b32 v{V_OUT}, 11, v31", f"v_lshl_add_u32 v{V_OUT}, v30, 4, v{V_OUT}")
    A(f"s_mul_i32 s32, {S_B}, {144*2048}", f"s_lshl_b32 s50, {S_BR}, 10", "s_add_u32 s32, s32, s50", f"s_lshl_b32 s50, {S_HP}, 6", "s_add_u32 s32, s32, s50")
    A(f"s_mul_i32 s33, {S_HP}, {9*16384}")
    A(f"s_lshl_b32 s50, {S_W}, 14", "s_add_u32 s34, s33, s50", "s_add_u32 s35, s34, 65536",
      f"s_add_u32 s36, s33, {8*16384}", f"s_lshl_b32 s50, {S_W}, 12", "s_add_u32 s36, s36, s50",
      f"s_lshl_b32 s41, {S_W}, 2")
    A("s_mov_b32 s37, 0", "s_mov_b32 s38, 0", f"s_mov_b32 s53, {SPIN}")
    def unpack_add(acc, src, first):
        out = []
        for k in range(4):
            if first:
                out += [f"v_lshlrev_b32 v{acc+2*k}, 16, v{src+k}", f"v_and_b32 v{acc+2*k+1}, 0xffff0000, v{src+k}"]
            else:
                t = (T0, T1)[k & 1]
                out += [f"v_lshlrev_b32 v{t}, 16, v{src+k}", f"v_and_b32 v{t+1}, 0xffff0000, v{src+k}",
                        f"v_pk_add_f32 v[{acc+2*k}:{acc+2*k+1}], v[{acc+2*k}:{acc+2*k+1}], v[{t}:{t+1}]"]
        return out
    items = [(tt, g) for tt in range(2) for g in range(4)] + [(2, None)]
    A("s_branch L_red_first")
    A("L_red_loop:")
    A("s_cmp_eq_u32 s37, 0x1ff", "s_cbranch_scc1 L_red_nopoll")
    A(f"buffer_load_dword v{V_FL}, v{V_POLL}, {SRD_F}, 0 offen sc1")
    A("L_red_nopoll:", "s_waitcnt vmcnt(0)")
    A("s_andn2_b32 s42, s37, s38")
    for i, (tt, g) in enumerate(items):
        A(f"s_bitcmp1_b32 s42, {i}", f"s_cbranch_scc0 L_red_nosum{i}")
        for k in range(4):
            A(unpack_add(ACC(g, tt), DAT(g, tt, k), k == 0) if tt < 2 else unpack_add(A8, D8(k), k == 0))
        A(f"L_red_nosum{i}:")
    A("s_mov_b32 s38, s37", "s_cmp_eq_u32 s38, 0x1ff", "s_cbranch_scc1 L_red_done")
    A("L_red_first:")
    A(f"v_cmp_eq_u32 vcc, 1, v{V_FL}", "s_nop 3", "s_mov_b32 s39, vcc_lo", "s_lshr_b32 s43, vcc_hi, s41", "s_and_b32 s43, s43, 15", "s_mov_b32 s40, s37")
    A("s_sub_u32 s53, s53, 1", "s_cmp_eq_u32 s53, 0", "s_cselect_b32 s39, -1, s39", "s_cselect_b32 s43, 15, s43", "s_cselect_b32 s53, 1, s53")
    for i, (tt, g) in enumerate(items):
        A(f"s_bitcmp1_b32 s37, {i}", f"s_cbranch_scc1 L_red_noiss{i}")
        if tt < 2:
            A(f"s_bfe_u32 s50, s39, {hex((4 << 16) | (16 * tt + 4 * g))}", "s_cmp_eq_u32 s50, 15")
        else:
            A("s_cmp_eq_u32 s43, 15")
        A(f"s_cbranch_scc0 L_red_noiss{i}")
        if tt < 2: A(f"s_add_u32 s50, s{34+tt}, {g*4096}")
        for k in range(4):
            o = f" offset:{k*1024}" if k else ""
            if tt < 2: A(f"buffer_load_dwordx4 {vr(DAT(g, tt, k))}, v{V_L16}, {SRD_P}, s50 offen{o} {OPT['rld']}")
            else: A(f"buffer_load_dwordx4 {vr(D8(k))}, v{V_L16}, {SRD_P}, s36 offen{o} {OPT['rld']}")
        A(f"s_bitset1_b32 s37, {i}", f"L_red_noiss{i}:")
    A("s_cmp_lg_u32 s37, s40", "s_cbranch_scc1 L_red_loop", f"s_sleep {OPT['psleep']}", "s_branch L_red_loop")
    A("L_red_done:")
    A(f"s_lshl_b32 s50, {S_W}, 11", f"v_lshlrev_b32 v30, 5, {V_LANE}", "v_add_u32 v30, 81920, v30", "v_add_u32 v31, s50, v30",
      f"ds_write_b128 v31, {vr(A8)}", f"ds_write_b128 v31, {vr(A8+4)} offset:16")
    for tt in range(2):
        a0 = ACC(0, tt)
        for g in range(1, 4):
            for k in range(4): A(f"v_pk_add_f32 v[{a0+2*k}:{a0+2*k+1}], v[{a0+2*k}:{a0+2*k+1}], v[{ACC(g,tt)+2*k}:{ACC(g,tt)+2*k+1}]")
        for k in range(4): A(f"v_cvt_pk_bf16_f32 v{64+4*tt+k}, v{a0+2*k}, v{a0+2*k+1}")
        A(f"s_lshl_b32 s50, {S_W}, 15", f"s_add_u32 s50, s50, s32", f"s_add_u32 s50, s50, {tt*4*32768}")
        A(f"buffer_store_dwordx4 {vr(64+4*tt)}, v{V_OUT}, {SRD_O}, s50 offen {OPT['ost']}")
    A("s_waitcnt lgkmcnt(0)", "s_barrier", f"s_cmp_eq_u32 {S_W}, 0", "s_cbranch_scc0 L_red_end")
    for g in range(4):
        A(f"ds_read_b128 {vr(80+8*g)}, v30 offset:{g*2048}", f"ds_read_b128 {vr(84+8*g)}, v30 offset:{g*2048+16}")
    A("s_waitcnt lgkmcnt(0)")
    for g in range(1, 4):
        for k in range(4): A(f"v_pk_add_f32 v[{80+2*k}:{81+2*k}], v[{80+2*k}:{81+2*k}], v[{80+8*g+2*k}:{81+8*g+2*k}]")
    for k in range(4): A(f"v_cvt_pk_bf16_f32 v{72+k}, v{80+2*k}, v{81+2*k}")
    A(f"s_add_u32 s50, s32, {8*32768}")
    A(f"buffer_store_dwordx4 {vr(72)}, v{V_OUT}, {SRD_O}, s50 offen {OPT['ost']}")
    A("L_red_end:")
    L2, n = hazards(L)
    return L2

def dump_regs(regs, slot, kind='v'):
    L = []; A = lambda *x: L.extend(II(*x))
    A("s_add_u32 s66, s58, 0x4000000", "s_addc_u32 s67, s59, 0",
      "s_lshl_b32 s50, s2, 2", f"s_add_u32 s50, s50, {S_W}", "s_lshl_b32 s50, s50, 16",
      f"v_lshlrev_b32 v253, 2, {V_LANE}", "v_add_u32 v253, s50, v253")
    for i, r in enumerate(regs):
        if kind == 'a':
            A(f"v_accvgpr_read_b32 v254, a{r}", "s_nop 0")
            A(f"global_store_dword v253, v254, s[66:67]")
        else:
            A(f"global_store_dword v253, v{r}, s[66:67]")
        A("v_add_u32 v253, 256, v253")
    A("s_waitcnt vmcnt(0)")
    return L

def main_kernel():
    L = []
    L += setup()
    L += stamp("start")
    L += phase_q()
    L += stamp("q_done")
    if OPT['dump'] == 'q':
        L += II("s_nop 7") + dump_regs([qfrag(t, s) + k for t in range(5) for s in range(4) for k in range(4)], 0)
        L += II("s_waitcnt vmcnt(0)", "s_endpgm")
    L += attention()
    if OPT['dump'] == 'o':
        L += II("s_nop 7") + dump_regs([oacc(dt, t) + k for t in range(5) for dt in range(8) for k in range(4)] + [lacc(t) for t in range(5)], 0, 'a')
        L += II("s_waitcnt vmcnt(0)", "s_endpgm")
    e, q = o_epilogue(); L += e
    L += stamp("o_done")
    e, q = out_proj(q); L += e
    L += stamp("op_done")
    if OPT['fused']:
        L += reduce_phase()
        L += stamp("red_done")
    L += tr_dump()
    L += II("s_waitcnt vmcnt(0)")
    L += stamp("end")
    L += stamp_dump()
    L += II("L_main_end:", "s_endpgm")
    L += safe_paths()
    return L

def reduce_kernel():
    L = []; A = lambda *x: L.extend(II(*x))
    A("s_cmp_ge_u32 s2, 256", "s_cbranch_scc1 L_red_end")
    A("s_load_dwordx2 s[4:5], s[0:1], 80", "s_load_dwordx2 s[6:7], s[0:1], 96")
    A("v_lshrrev_b32 v2, 6, v0", "v_and_b32 v1, 63, v0", "s_nop 0", "v_readfirstlane_b32 s12, v2", "s_nop 3")
    A("s_waitcnt lgkmcnt(0)")
    A("s_mul_i32 s13, s2, 9", "s_add_u32 s13, s13, s12", "s_lshl_b32 s13, s13, 14")
    A("s_add_u32 s16, s6, s13", "s_addc_u32 s17, s7, 0", "s_and_b32 s17, s17, 0xffff", "s_mov_b32 s18, 16384", "s_mov_b32 s19, 0x20000")
    A("v_lshlrev_b32 v2, 4, v1")
    for p in range(16):
        A(f"buffer_load_dwordx4 v[{8+4*p}:{11+4*p}], v2, s[16:19], 0 offen offset:{(p%4)*1024}" if p < 4 else
          f"buffer_load_dwordx4 v[{8+4*p}:{11+4*p}], v2, s[16:19], s{20+p//4} offen offset:{(p%4)*1024}")
        if p == 3: A("s_mov_b32 s21, 4096", "s_mov_b32 s22, 8192", "s_mov_b32 s23, 12288")
    A("s_lshr_b32 s14, s2, 4", "s_and_b32 s15, s2, 15",
      "s_and_b32 s24, s14, 7", "s_lshr_b32 s25, s14, 3",
      "s_mul_i32 s24, s24, 144", "s_lshl_b32 s26, s12, 4", "s_add_u32 s24, s24, s26", "s_lshl_b32 s24, s24, 11",
      "s_lshl_b32 s25, s25, 10", "s_lshl_b32 s15, s15, 6", "s_add_u32 s24, s24, s25", "s_add_u32 s24, s24, s15")
    A("v_and_b32 v3, 15, v1", "v_lshlrev_b32 v3, 11, v3", "v_lshrrev_b32 v4, 4, v1", "v_lshl_add_u32 v3, v4, 4, v3")
    A("s_mov_b32 s28, s4", "s_and_b32 s29, s5, 0xffff", "s_mov_b32 s30, 2359296", "s_mov_b32 s31, 0x20000")
    acc = 80
    for p in range(16):
        A(f"s_waitcnt vmcnt({15-p})")
        for k in range(4):
            r = 8 + 4 * p + k
            if p == 0:
                A(f"v_lshlrev_b32 v{acc+2*k}, 16, v{r}", f"v_and_b32 v{acc+2*k+1}, 0xffff0000, v{r}")
            else:
                A(f"v_lshlrev_b32 v6, 16, v{r}", f"v_and_b32 v7, 0xffff0000, v{r}",
                  f"v_add_f32 v{acc+2*k}, v{acc+2*k}, v6", f"v_add_f32 v{acc+2*k+1}, v{acc+2*k+1}, v7")
    for k in range(4): A(f"v_cvt_pk_bf16_f32 v{8+k}, v{acc+2*k}, v{acc+2*k+1}")
    A("buffer_store_dwordx4 v[8:11], v3, s[28:31], s24 offen")
    A("s_waitcnt vmcnt(0)")
    A("L_red_end:", "s_endpgm")
    return L

def kernel_text(name, body, vgpr, accum, sgpr=102):
    return f""".globl {name}
.p2align 8
.type {name},@function
{name}:
{text(body)}
"""
def kd(name, nfv, accum, sgpr=102):
    return f""".amdhsa_kernel {name}
  .amdhsa_next_free_vgpr {nfv}
  .amdhsa_next_free_sgpr {sgpr}
  .amdhsa_accum_offset {accum}
  .amdhsa_group_segment_fixed_size 0
  .amdhsa_kernarg_size 104
  .amdhsa_user_sgpr_count 2
  .amdhsa_user_sgpr_kernarg_segment_ptr 1
  .amdhsa_system_sgpr_workgroup_id_x 1
.end_amdhsa_kernel
"""

def build():
    stamp_id[0] = 0; STAMPS.clear()
    k1 = NAME + "_kernel"; k2 = "reduce_heads_kernel"
    m = main_kernel()
    hdr = "; fused q-projection + attention + out-projection; the 16 head-pair partials of an output slice are summed by its owner\n"
    if OPT['fused']:
        hdr += f"; @launch grid=(256,1,1) block=(256,1,1) lds=163840\n"
    else:
        hdr += f"; @launch kernel={k1} grid=(256,1,1) block=(256,1,1) lds=163840\n"
        hdr += f"; @launch kernel={k2} grid=(256,1,1) block=(576,1,1) lds=0\n"
    s = hdr + '.amdgcn_target "amdgcn-amd-amdhsa--gfx950"\n.text\n'
    s += kernel_text(k1, m, 512, 256)
    if not OPT['fused']: s += kernel_text(k2, reduce_kernel(), 96, 96)
    s += '.section .rodata,"a"\n.p2align 6\n' + kd(k1, 512, 256)
    if not OPT['fused']: s += ".p2align 6\n" + kd(k2, 96, 96, 40)
    return s

if __name__ == "__main__":
    ap = argparse.ArgumentParser()
    ap.add_argument("-o", default="cdna_kernels/" + NAME + ".s")
    ap.add_argument("--dump"); ap.add_argument("--stamps", action="store_true"); ap.add_argument("-v", action="store_true")
    ap.add_argument("--opt", action="append", default=[])
    a = ap.parse_args()
    OPT['dump'] = a.dump; OPT['stamps'] = a.stamps; OPT['verbose'] = a.v
    for o in a.opt:
        k, v = o.split("=", 1)
        OPT[k] = {'True': True, 'False': False}.get(v, int(v) if v.lstrip('-').isdigit() else v)
    s = build()
    open(a.o, "w").write(s)
    if a.stamps:
        import json; json.dump(STAMPS, open(a.o + ".stamps.json", "w"))
    print("wrote", a.o, len(s), "bytes")
```

```python
import sys, argparse
from ir import *

NAME = "concat_heads__gqa_block_cached__mha_block_cached__near_ridge"
OPT = dict(np1=2, pfw=1, pfkv=0, pfkvnt=False, psleep=8, ost='', lthr=0, start2=True, pf=2, pfnt=False, fused=True, rld='sc1', rot=True, wnt=False, xnt=False, wont=False, bursts=(3, 6, 9), dump=None, stamps=False, stop=None, kvnt=True, pst="sc1", verbose=False)

VB = 0
KB = 65536
WB = 16384
XB = 114688
WOA = 131072
WOB = 98304
OB = 0
def kphys(k): return ((k + 1) & 3) * 16384
def vphys(k): return (k & 3) * 16384

SRD_X, SRD_WQ, SRD_K, SRD_V, SRD_WO, SRD_P = "s[4:7]", "s[8:11]", "s[12:15]", "s[16:19]", "s[20:23]", "s[24:27]"
SRD_F, SRD_D, SRD_O = "s[68:71]", "s[72:75]", "s[80:83]"
S_W, S_U, S_QH, S_CNT = "s28", "s29", "s30", "s31"
S_SOFFX, S_SOFFW0, S_UNUSED, S_MW, S_MX, S_DSLOT, S_RSLOT, S_DW, S_DX = "s32", "s33", "s34", "s35", "s36", "s37", "s38", "s39", "s40"
S_BW, S_BX = "s41", "s42"
S_SOFFK, S_SOFFV, S_MK, S_MV = "s45", "s46", "s47", "s48"
S_T0, S_T1, S_T2, S_T3 = "s50", "s51", "s52", "s53"
S_HP, S_B, S_BR, S_CL = "s54", "s55", "s56", "s57"
S_WS = "s[58:59]"
S_SOFFP = "s60"
S_STAMP = "s[62:63]"
S_FLAG = "s64"
S_SAFE = "s61"
LTHR = 0x4b800000
S_KS, S_X0, S_W0 = "s88", "s89", "s87"
S_TAU, S_TB, S_TQ, S_T4N, S_TMASK, S_TSH, S_TM, S_TS = "s78", "s79", "s43", "s44", "s34", "s49", "s61", "s95"

V_LANE = "v1"
V_WQR = [2, 3, 4, 5]; V_XR = 6; V_XR4 = 14; V_OW4 = 50
V_WQD = [7, 8, 9, 10]; V_XD = [11, 12, 13]; V_TG, V_TI, V_TB, V_TV = 14, 15, 62, 63
V_KD = [16, 17, 18, 19]; V_VD = [20, 21]
V_KR = [22, 23, 24, 25]; V_VR = [26 + i for i in range(8)]
V_WOD = [34, 35, 36, 37]; V_WOR = [38, 39, 40, 41]
V_OW, V_OR, V_OR8, V_PS = 42, 43, 44, 45
VT = [46 + i for i in range(18)]
RB = 64
def grp(t, s): return RB + (t * 4 + s) * 8
def qacc(dt, t): return grp(t, dt >> 1) + 4 * (dt & 1)
def qfrag(t, s): return grp(t, s)
def Sreg(kt, t): return grp(t, kt) + 4
def Preg(par, t): return grp(t, 2 + par) + 4
def cinit(t): return 224 + 4 * t
V_C0, V_C1 = 244, 245
def vr(b, n=4): return f"v[{b}:{b+n-1}]"
def ar(b, n=4): return f"a[{b}:{b+n-1}]"
def oacc(dt, t): return t * 32 + dt * 4
def lacc(t): return 160 + 4 * t
A_ONES = 180
def abuf(i): return 184 + 4 * i
def bbuf(t): return [48, 52, 56, 60, 248][t]
def kbuf(kt, s): return 216 + 4 * (kt * 4 + s)

MF = "v_mfma_f32_16x16x32_bf16"
def mfma(d, a, b, c): return I(f"{MF} {d}, {a}, {b}, {c}")
SCALE = (128 ** -0.5) * 1.4426950408889634
import struct
def f2u(x): return struct.unpack("<I", struct.pack("<f", x))[0]

def NT(): return " nt" if OPT['kvnt'] else ""

def CNTOFF(): return 128 if OPT.get('dbgst') is not None else 0
stamp_id = [0]
def stamp(name):
    if not OPT['stamps']: return []
    i = stamp_id[0]; stamp_id[0] += 1
    STAMPS.append(name)
    return II("s_memrealtime s[66:67]", "s_memtime s[64:65]", "s_waitcnt lgkmcnt(0)",
              f"v_writelane_b32 v0, s66, {i}", f"v_writelane_b32 v0, s64, {32 + i}")
def stamp_dump():
    if not OPT['stamps']: return []
    if OPT.get('dbgst') is not None:
        return II(f"s_cmp_eq_u32 s2, {OPT['dbgst']}", "s_cbranch_scc0 L_nodbg", f"s_cmp_eq_u32 {S_W}, 0", "s_cbranch_scc0 L_nodbg",
                  "v_readlane_b32 s50, v0, 0", "s_nop 3", "v_subrev_u32 v0, s50, v0",
                  f"v_lshlrev_b32 v1, 2, {V_LANE}", "v_cmp_gt_u32 vcc, 16, v1", f"v_lshrrev_b32 v2, 2, v1", "v_mov_b32 v3, 0x1000", "v_cmp_gt_u32 vcc, 16, v2", "s_nop 1",
                  "v_cndmask_b32 v1, v3, v1, vcc", f"buffer_store_dword v0, v1, {SRD_D}, 0 offen", "L_nodbg:")
    return II("s_add_u32 s62, s58, 0x8000000", "s_addc_u32 s63, s59, 0", "s_lshl_b32 s65, s2, 2", f"s_add_u32 s65, s65, {S_W}", "s_lshl_b32 s65, s65, 8",
              f"v_lshlrev_b32 v1, 2, {V_LANE}", "v_add_u32 v1, s65, v1", "global_store_dword v1, v0, s[62:63]")
STAMPS = []

def setup():
    L = []
    A = lambda *x: L.extend(II(*x))
    A("s_cmp_ge_u32 s2, 256", "s_cbranch_scc1 L_main_end")
    A("s_load_dwordx8 s[68:75], s[0:1], 0", "s_load_dwordx2 s[76:77], s[0:1], 32",
      "s_load_dwordx8 s[80:87], s[0:1], 40", "s_load_dwordx2 s[88:89], s[0:1], 72",
      f"s_load_dwordx2 {S_WS}, s[0:1], 96", "s_load_dwordx4 s[96:99], s[0:1], 80")
    A("s_and_b32 s50, s2, 7", "s_lshr_b32 s51, s2, 3",
      f"s_lshr_b32 {S_BR}, s50, 2",
      "s_and_b32 s52, s50, 3", "s_lshl_b32 s52, s52, 2", "s_and_b32 s53, s51, 3", f"s_add_u32 {S_HP}, s52, s53",
      f"s_lshr_b32 {S_B}, s51, 2",
      f"s_lshl_b32 s52, {S_BR}, 3", f"s_add_u32 {S_CL}, s52, {S_B}")
    A("v_lshrrev_b32 v46, 6, v0", f"v_and_b32 {V_LANE}, 63, v0", "s_nop 0", f"v_readfirstlane_b32 {S_W}, v46", "s_nop 3")
    A(f"s_lshr_b32 {S_U}, {S_W}, 1", f"s_and_b32 {S_QH}, {S_W}, 1", f"s_mov_b32 {S_SAFE}, 0")
    A(lane_consts_q())
    A("s_waitcnt lgkmcnt(0)")
    A(f"s_cmp_eq_u32 {S_BR}, 1")
    for i in range(8): A(f"s_cselect_b32 s{68+i}, s{80+i}, s{68+i}")
    A("s_cselect_b32 s76, s88, s76", "s_cselect_b32 s77, s89, s77")
    def srd(dst, lo, hi, off_expr_regs, nrec):
        A(f"s_add_u32 s{dst}, s{lo}, s50", f"s_addc_u32 s{dst+1}, s{hi}, 0", f"s_and_b32 s{dst+1}, s{dst+1}, 0xffff")
        A(nrec, f"s_mov_b32 s{dst+3}, 0x20000")
    A(f"s_mul_i32 s50, {S_B}, 147456"); srd(4, 68, 69, None, "s_mov_b32 s6, 147456")
    A(f"s_lshl_b32 s50, {S_HP}, 9"); srd(8, 74, 75, None, "s_sub_u32 s10, 4194304, s50")
    A(f"s_lshl_b32 s50, {S_B}, 5", f"s_lshl_b32 s51, {S_HP}, 1", "s_add_u32 s50, s50, s51", f"s_add_u32 s50, s50, {S_U}", "s_lshl_b32 s50, s50, 17")
    srd(12, 70, 71, None, "s_mov_b32 s14, 131072")
    srd(16, 72, 73, None, "s_mov_b32 s18, 131072")
    A(f"s_lshl_b32 s50, {S_HP}, 18", f"s_lshl_b32 s51, {S_W}, 8", "s_add_u32 s50, s50, s51")
    A("s_sub_u32 s52, 262144, s51")
    srd(20, 76, 77, None, "s_mov_b32 s22, s52")
    A(f"s_lshl_b32 s50, {S_HP}, 18"); srd(84, 76, 77, None, "s_mov_b32 s86, 262144")
    A(f"s_mul_i32 s50, {S_CL}, 2359296"); srd(24, 58, 59, None, "s_mov_b32 s26, 2359296")
    if OPT['fused']:
        A(f"s_mul_i32 s50, {S_CL}, 4608", "s_add_u32 s50, s50, 0x3000000"); srd(68, 58, 59, None, "s_mov_b32 s70, 4608")
        A("s_mov_b32 s72, s98", "s_and_b32 s73, s99, 0xffff", "s_mov_b32 s74, 256", "s_mov_b32 s75, 0x20000")
        A("s_mov_b32 s80, s96", "s_and_b32 s81, s97, 0xffff", "s_mov_b32 s82, 2359296", "s_mov_b32 s83, 0x20000")
        A(f"s_lshl_b32 s50, {S_W}, 7", f"s_lshl_b32 s51, {S_HP}, 2", "s_add_u32 s50, s50, s51",
          f"v_lshlrev_b32 v46, 9, {V_LANE}", "v_add_u32 v46, s50, v46", "v_mov_b32 v47, 0",
          f"buffer_store_dword v47, v46, {SRD_F}, 0 offen sc1" if not OPT.get('x_noclr') else "s_nop 0")
    return L

def lane_consts_q():
    L = []; A = lambda *x: L.extend(II(*x))
    l = V_LANE; t0, t1, t2, t3, t4, t5 = [f"v{x}" for x in VT[:6]]
    A(f"v_lshrrev_b32 {t0}, 4, {l}", f"v_bfe_u32 {t1}, {l}, 2, 2", f"v_and_b32 {t2}, 3, {l}", f"v_and_b32 {t3}, 15, {l}")
    for n in range(4):
        A(f"v_add_u32 {t4}, {4*n}, {t0}", f"v_xor_b32 {t4}, {t4}, {t3}", f"v_lshlrev_b32 {t4}, 4, {t4}",
          f"v_lshl_add_u32 v{V_KD[n]}, {t0}, 8, {t4}")
    for n in range(2):
        A(f"v_add_u32 {t4}, {4*n}, {t0}", f"v_lshlrev_b32 {t4}, 1, {t4}", f"v_xor_b32 {t4}, {t4}, {t3}", f"v_lshlrev_b32 {t4}, 4, {t4}",
          f"v_lshl_add_u32 v{V_VD[n]}, {t0}, 8, {t4}")
    A(f"v_lshrrev_b32 {t4}, 5, {l}")
    A(f"v_bfe_u32 {t5}, {l}, 4, 1")
    for j in range(4):
        d = f"v{V_WQD[j]}"
        A(f"v_add_u32 {d}, {2*j}, {t4}",
          f"v_and_b32 v{VT[6]}, 3, {d}", f"v_lshlrev_b32 v{VT[6]}, 2, v{VT[6]}", f"v_xor_b32 v{VT[6]}, v{VT[6]}, {t3}", f"v_lshlrev_b32 v{VT[6]}, 4, v{VT[6]}",
          f"v_lshlrev_b32 {d}, 13, {d}", f"v_add_u32 {d}, {d}, v{VT[6]}", f"v_lshl_add_u32 {d}, {t5}, 8, {d}")
        if j: A(f"v_subrev_u32 {d}, {1024*j}, {d}")
    A(f"v_lshlrev_b32 {t4}, 1, {t0}", f"v_mov_b32 {t5}, 0x78", f"v_lshrrev_b32 {t4}, {t4}, {t5}", f"v_and_b32 {t4}, 3, {t4}",
      f"v_xor_b32 {t4}, {t4}, {t2}", f"v_lshlrev_b32 {t4}, 4, {t4}",
      f"v_lshrrev_b32 {t5}, 2, {l}", f"v_lshl_add_u32 {t4}, {t5}, 10, {t4}")
    for j in range(3):
        A(f"v_add_u32 v{V_XD[j]}, {j*16384 - 1024*j}, {t4}")
    A(f"v_lshl_add_u32 {t4}, {t0}, 3, {t1}", f"v_lshlrev_b32 {t4}, 9, {t4}", f"v_lshl_add_u32 {t4}, {t2}, 4, {t4}",
      f"s_lshl_b32 s50, {S_U}, 8", f"s_add_u32 s50, s50, {WB}", f"v_add_u32 {t4}, s50, {t4}")
    A(f"s_lshl_b32 s51, {S_QH}, 1", f"v_xor_b32 {t1}, s51, {t1}")
    for s in range(4):
        A(f"v_xor_b32 {t5}, {s}, {t1}", f"v_lshl_add_u32 v{V_WQR[s]}, {t5}, 6, {t4}")
    A(f"v_lshrrev_b32 {t4}, 2, {t3}", f"v_lshlrev_b32 {t4}, 1, {t4}", f"v_mov_b32 {t5}, 0x78", f"v_lshrrev_b32 {t4}, {t4}, {t5}", f"v_and_b32 {t4}, 3, {t4}",
      f"v_xor_b32 {t4}, {t4}, {t0}", f"v_lshlrev_b32 {t4}, 4, {t4}", f"v_lshl_add_u32 {t4}, {t3}, 6, {t4}",
      f"s_mul_i32 s50, {S_QH}, 5120", f"s_add_u32 s50, s50, {XB}", f"v_add_u32 v{V_XR}, s50, {t4}", f"v_add_u32 v{V_XR4}, {XB + 4096}, {t4}")
    return L

def lane_consts_rest():
    L = []; A = lambda *x: L.extend(II(*x))
    l = V_LANE; t0, t1, t2, t3, t4, t5, t6 = [f"v{x}" for x in VT[:7]]
    A(f"v_lshrrev_b32 {t0}, 4, {l}", f"v_bfe_u32 {t1}, {l}, 2, 2", f"v_and_b32 {t2}, 3, {l}", f"v_and_b32 {t3}, 15, {l}")
    A(f"s_lshl_b32 s50, {S_U}, 13", f"s_add_u32 s51, s50, {KB}", f"v_lshlrev_b32 {t4}, 8, {t3}", f"v_add_u32 {t4}, s51, {t4}")
    A(f"s_lshl_b32 s51, {S_QH}, 3", f"v_xor_b32 {t6}, s51, {t3}")
    for s in range(4):
        A(f"v_add_u32 {t5}, {4*s}, {t0}", f"v_xor_b32 {t5}, {t5}, {t6}", f"v_lshl_add_u32 v{V_KR[s]}, {t5}, 4, {t4}")
    A(f"v_lshrrev_b32 {t4}, 2, {l}", f"v_and_b32 {t5}, 7, {t4}", f"v_lshlrev_b32 {t5}, 1, {t5}",
      f"v_lshlrev_b32 {t4}, 8, {t4}", f"v_add_u32 {t4}, s50, {t4}",
      f"v_and_b32 {t6}, 1, {t2}", f"v_lshl_add_u32 {t4}, {t6}, 3, {t4}",
      f"v_lshrrev_b32 {t6}, 1, {t2}")
    for dt in range(8):
        d = f"v{V_VR[dt]}"
        A(f"v_add_u32 {d}, {2*dt}, {t6}", f"v_xor_b32 {d}, {d}, {t5}", f"v_lshl_add_u32 {d}, {d}, 4, {t4}")
    A(f"v_lshlrev_b32 {t4}, 2, {t0}", f"v_xor_b32 {t4}, {t4}, {t3}", f"v_lshlrev_b32 {t4}, 4, {t4}", f"v_lshl_add_u32 {t4}, {t0}, 10, {t4}")
    for n in range(4):
        A(f"v_add_u32 v{V_WOD[n]}, {n*3072}, {t4}")
    A(f"v_lshrrev_b32 {t4}, 2, {l}", f"v_lshlrev_b32 {t4}, 8, {t4}", f"v_lshl_add_u32 {t4}, {t2}, 4, {t4}",
      f"s_lshl_b32 s50, {S_W}, 13", f"s_add_u32 s50, s50, {WOB}", f"v_add_u32 {t4}, s50, {t4}")
    for cp in range(4):
        A(f"v_xor_b32 {t5}, {cp}, {t1}", f"v_lshl_add_u32 v{V_WOR[cp]}, {t5}, 6, {t4}")
    A(f"s_mul_i32 s50, {S_QH}, 40960", f"s_lshl_b32 s51, {S_U}, 12", "s_add_u32 s50, s50, s51",
      f"v_lshlrev_b32 v{V_OR}, 4, {l}", f"v_add_u32 v{V_OW}, s50, v{V_OR}", f"v_add_u32 v{V_OR8}, 0x10000, v{V_OR}")
    A(f"s_lshl_b32 s50, {S_HP}, 10", f"v_add_u32 v{V_PS}, s50, v{V_OR}")
    return L

def dma(voff, srd, soff, imm, nt=False):
    o = f" offset:{imm}" if imm else ""
    return I(f"buffer_load_dwordx4 v{voff}, {srd}, {soff} offen{o}{' nt' if nt else ''} lds")

def kv_group(kind, m0expr, soffreg):
    if kind == 'K':
        return [dma(V_KD[n], SRD_K, soffreg, n * 1024, OPT['kvnt']) for n in range(4)]
    return [dma(V_VD[n & 1], SRD_V, soffreg, n * 1024, OPT['kvnt']) for n in range(4)]

def kv_tile_full_unused(kind, j):
    L = []
    base = (KB + kphys(j)) if kind == 'K' else (VB + vphys(j))
    for gI in range(2):
        L += II(f"s_lshl_b32 s50, {S_U}, 13", f"s_add_u32 m0, s50, {base + gI*4096}", f"s_mov_b32 s51, {j*8192 + gI*4096}")
        L += kv_group(kind, None, "s51")
    return L

def stage_setup_scalar():
    return II(f"s_lshr_b32 s50, s2, 3", "s_and_b32 s51, s50, 3", "s_lshl_b32 s51, s51, 2", "s_lshr_b32 s50, s50, 2", "s_lshl_b32 s50, s50, 1",
              f"s_add_u32 s52, s50, s51", f"s_and_b32 s52, s52, {15 if OPT['rot'] else 0}",
              f"s_lshl_b32 s50, s52, 6", f"s_lshl_b32 s51, {S_W}, 15", f"s_add_u32 {S_SOFFX}, s50, s51",
              f"s_lshl_b32 s50, s52, 18", f"s_lshl_b32 s51, {S_W}, 16", f"s_add_u32 {S_SOFFW0}, s50, s51",
              f"s_lshl_b32 s50, {S_W}, 12", f"s_add_u32 {S_BW}, s50, {WB}",
              f"s_lshl_b32 s50, {S_W}, 11", f"s_add_u32 {S_BX}, s50, {XB}",
              f"s_lshl_b32 {S_TQ}, {S_QH}, 12",
              f"s_lshl_b32 s50, {S_U}, 13", f"s_add_u32 s50, s50, {S_TQ}", f"s_add_u32 {S_MK}, s50, {KB}", f"s_add_u32 {S_MV}, s50, {VB}")

def stage_dma_list(slot):
    seq = []
    seq.append(([I(f"s_add_u32 m0, {S_BW}, {slot*16384}")], dma(V_WQD[0], SRD_WQ, S_SOFFW0, 0, OPT['wnt'])))
    for j in range(1, 4): seq.append(([], dma(V_WQD[j], SRD_WQ, S_SOFFW0, j * 1024, OPT['wnt'])))
    seq.append(([I(f"s_add_u32 m0, {S_BX}, {slot*9216}")], dma(V_XD[0], SRD_X, S_SOFFX, 0, OPT['xnt'])))
    for j in range(1, 3): seq.append(([], dma(V_XD[j], SRD_X, S_SOFFX, j * 1024, OPT['xnt'])))
    return seq

def place_dma(S, seq, gaps):
    k = 0
    last = None
    for e in seq:
        if e[0]:
            for p in e[0]: S.put(gaps[k], p)
            k += 1
        S.put(gaps[k], e[1]); last = gaps[k]
        if len(e) > 2:
            for p in e[2]: S.put(gaps[k] + 1, p)
        k += 1
    return last

def stage_advance_w():
    return II(f"s_add_u32 {S_SOFFW0}, {S_SOFFW0}, 262144", f"s_and_b32 {S_SOFFW0}, {S_SOFFW0}, 0x3fffff")
def stage_advance_x():
    return II(f"s_add_u32 {S_SOFFX}, {S_SOFFX}, 64", f"s_and_b32 {S_SOFFX}, {S_SOFFX}, 0xfffffbff")
def stage_advance(): return stage_advance_w() + stage_advance_x()

def straight(seq):
    L = []
    for e in seq:
        L += e[0]
        if e[0]: L += II("s_nop 0")
        L.append(e[1])
        if len(e) > 2: L += e[2]
    return L

def stage_issue_straight(slot):
    return straight(stage_dma_list(slot)) + stage_advance()

def wq_read(dt, h2, slot):
    if OPT.get('x_noread'): return I('s_nop 0')
    s, hf = dt >> 1, dt & 1
    b = abuf(dt) + 2 * h2
    off = slot * 16384 + hf * 8 + h2 * 2048
    return I(f"ds_read_b64_tr_b16 {ar(b,2)}, v{V_WQR[s]}" + (f" offset:{off}" if off else ""))
def x_read(t, slot):
    if OPT.get('x_noread'): return I('s_nop 0')
    off = slot * 9216 + (0 if t == 4 else t * 1024)
    return I(f"ds_read_b128 {vr(bbuf(t))}, v{V_XR4 if t == 4 else V_XR}" + (f" offset:{off}" if off else ""))
def q_mfma(dt, t):
    if OPT.get('x_t4') and t == 4: return I("s_nop 3")
    if OPT.get('x_t45') and t == 4 and dt >= 4: return I("s_nop 3")
    return mfma(vr(qacc(dt, t)), ar(abuf(dt)), vr(bbuf(t)), vr(qacc(dt, t)))

def half_group(kind, j):
    if kind == 'K':
        pre = II(f"s_add_u32 m0, {S_MK}, {kphys(j)}", f"s_add_u32 s51, {S_TQ}, {j*8192}")
    else:
        pre = II(f"s_add_u32 m0, {S_MV}, {vphys(j)}", f"s_add_u32 s51, {S_TQ}, {j*8192}")
    g = kv_group(kind, None, "s51")
    return [(pre, g[0])] + [([], x) for x in g[1:]]

def put_dmas(S, seq, gaps):
    prev = -1
    for e, g in zip(seq, gaps):
        if e[0]:
            assert g - 1 > prev or prev < 0, (g, prev)
            for p in e[0]: S.put(g - 1, p)
        S.put(g, e[1])
        if len(e) > 2:
            for p in e[2]: S.put(g + 1, p)
        prev = g
    assert len(seq) <= len(gaps)

QTAIL = (4, 5, 6, 7)
def q_tail(): return [q_mfma(dt, t) for t in range(4) for dt in QTAIL]
SRD_T = "s[96:99]"; V_T = [10, 11, 12, 13]; S_TM, S_TS = "s35", "s36"
V_TB = [244, 245, 246, 247]
DUMMY = 151552
def burst_list():
    g = [dma(V_TB[n], SRD_T, S_TS, n * 1024, OPT['kvnt']) for n in range(4)]
    return [([I(f"s_mov_b32 m0, {S_TM}")], g[0])] + [([], x) for x in g[1:]]

def q_body(ks, with_dma, burst=False, extra_dma=None, wait=None):
    slot = ks & 3
    ms = q_tail() + [q_mfma(dt, t) for t in range(5) for dt in range(4)]
    S = Sched(ms)
    a = lambda dt, h: wq_read(dt, h, slot)
    xr = lambda t: x_read(t, slot)
    plan = {0: a(0,0), 1: a(0,1), 2: a(1,0), 3: a(1,1), 4: xr(0), 5: a(2,0), 7: a(2,1), 8: xr(1), 9: a(3,0), 11: a(3,1),
            12: xr(2), 13: xr(4), 16: xr(3), 17: a(4,0), 19: a(4,1), 20: a(5,0), 21: a(5,1), 23: a(6,0), 24: a(6,1), 25: a(7,0), 27: a(7,1)}
    for g, ins in plan.items(): S.put(g, ins)
    if with_dma:
        put_dmas(S, stage_dma_list((ks + 3) & 3), [6, 10, 14, 18, 22, 26, 29])
        w = stage_advance_w(); x = stage_advance_x()
        S.put(19, w[0]); S.put(20, w[1]); S.put(30, x[0]); S.put(31, x[1])
    if burst:
        put_dmas(S, burst_list(), [32, 33, 34, 35]) if False else None
        put_dmas(S, burst_list(), [15, 28, 31, 33])  if False else None
    if extra_dma:
        put_dmas(S, extra_dma, [6, 10, 14, 18, 22, 26, 30, 32][:len(extra_dma)])
    return S

def q_finish(S, wait, wg=33):
    S.put(wg, tr_mark(), f"s_waitcnt vmcnt({wait}) lgkmcnt(0)", tr_commit())
    S.put(wg + 1, "s_barrier")
    seq, pend = lgkm_waits(S.flat())
    assert not pend
    if OPT['verbose']: print(S.report("q_body"))
    return seq

def tr_mark():
    return [Raw("s_memtime s[100:101]")] if OPT.get('trace') else []
def tr_commit():
    return [Raw("s_mov_b32 s95, m0\n  s_mov_b32 m0, s94\n  s_nop 0\n  v_writelane_b32 v0, s100, m0\n  s_mov_b32 m0, s95\n  s_add_u32 s94, s94, 1")] if OPT.get('trace') else []
def tr_dump():
    if not OPT.get('trace'): return []
    return II("s_add_u32 s66, s58, 0x9000000", "s_addc_u32 s67, s59, 0", "s_lshl_b32 s50, s2, 2", f"s_add_u32 s50, s50, {S_W}", "s_lshl_b32 s50, s50, 8",
              f"v_lshlrev_b32 v253, 2, {V_LANE}", "v_add_u32 v253, s50, v253", "global_store_dword v253, v0, s[66:67]")

def zero_init():
    L = II("v_mov_b32 v244, 0", "v_mov_b32 v245, 0", "v_mov_b32 v246, 0", "v_mov_b32 v247, 0", "s_nop 1")
    for r in range(RB, RB + 160, 16): L += II(f"v_mfma_f32_32x32x16_bf16 v[{r}:{r+15}], v[244:247], v[244:247], 0")
    for r in range(0, 256, 16): L += II(f"v_mfma_f32_32x32x16_bf16 a[{r}:{r+15}], v[244:247], v[244:247], 0")
    return L

def phase_q():
    L = []; A = lambda *x: L.extend(II(*x))
    A("L_phase_q:")
    A(stage_setup_scalar(), stage_issue_straight(0))
    A(stamp("q_issued"))
    A(zero_init())
    A(lane_consts_rest())
    A(f"s_mov_b32 {S_CNT}, 0")
    if OPT.get('trace'): A("s_mov_b32 s94, 1", "s_memtime s[100:101]", "s_waitcnt lgkmcnt(0)", "v_writelane_b32 v0, s100, 0")
    A(f"v_mov_b32 v{VT[0]}, 0x3f803f80")
    for r in range(4): A(f"v_accvgpr_write_b32 a{A_ONES + r}, v{VT[0]}")
    for t in range(5):
        for k in range(4): A(f"v_mov_b32 v{bbuf(t)+k}, 0")
    A("s_mov_b32 s96, s12", "s_mov_b32 s97, s13", "s_mov_b32 s98, s14", "s_mov_b32 s99, s15")
    for n in range(4): A(f"v_mov_b32 v{V_TB[n]}, v{V_KD[n]}")
    if OPT.get('stst'): A(stamp("consts"))
    A(stage_issue_straight(1))
    if OPT.get('stst'): A(stamp("s1_iss"))
    A("s_waitcnt vmcnt(7)")
    if OPT.get('stst'): A(stamp("s0_land"))
    A("s_barrier")
    if OPT['fused']:
        A(f"s_cmp_eq_u32 {S_SAFE}, 1", "s_cbranch_scc1 L_no_arrive")
        A(f"s_lshl_b32 s50, {S_CL}, 2", f"s_add_u32 s50, s50, {CNTOFF()}", f"s_lshl_b32 s51, {S_W}, 14", "s_add_u32 s50, s50, s51",
          f"v_lshlrev_b32 v46, 8, {V_LANE}", "v_add_u32 v46, s50, v46", "v_mov_b32 v47, 1",
          f"buffer_atomic_add v47, v46, {SRD_D}, 0 offen sc1")
        A("L_no_arrive:")
    A(stage_issue_straight(2))
    if OPT.get('stst'): A(stamp("s2_iss"))
    A(f"s_add_u32 {S_TM}, {S_MK}, {kphys(0)}", f"s_mov_b32 {S_TS}, {S_TQ}")
    A(stamp("q_start"))
    bodies = []
    for k in range(4):
        S = q_body(k, True)
        if k == 1:
            bl = burst_list()
            S.put(27, bl[0][0]) if False else None
            put_dmas(S, bl, [32, 33, 34, 35])
            seq, pend = lgkm_waits(S.flat())
            seq += tr_mark() + II("s_waitcnt vmcnt(18) lgkmcnt(0)") + tr_commit() + II("s_barrier")
            if OPT['verbose']: print(S.report("q_body burst"))
        else:
            seq = q_finish(S, 14 if k == 0 else 18)
        bodies.append(seq)
    hist = bodies[3][-24:]
    A(".p2align 6", "L_q_loop:")
    for bi, b in enumerate(bodies):
        b2, n = hazards(b, history=hist); L.extend(b2); hist = b2[-24:]
        if OPT.get('stst') and bi < 2: A(f"s_cmp_eq_u32 {S_CNT}, 0", f"s_cbranch_scc0 L_nost{bi}", stamp(f"body{bi}"), f"L_nost{bi}:")
    A(f"s_add_u32 {S_TM}, {S_TM}, 16384", f"s_add_u32 {S_TS}, {S_TS}, 8192",
      f"s_add_u32 {S_CNT}, {S_CNT}, 1", f"s_cmp_eq_u32 {S_CNT}, 2", "s_cbranch_scc1 L_q_tov", "L_q_tov_done:",
      f"s_cmp_lt_u32 {S_CNT}, 3", "s_cbranch_scc1 L_q_loop")
    OOL = II("L_q_tov:", "s_mov_b32 s96, s16", "s_mov_b32 s97, s17", f"s_add_u32 {S_TM}, {S_MV}, {vphys(0)}", f"s_mov_b32 {S_TS}, {S_TQ}")
    for n in range(4): OOL += II(f"v_mov_b32 v{V_TB[n]}, v{V_VD[n & 1]}")
    OOL += II("s_branch L_q_tov_done")
    b, n = hazards(q_finish(q_body(12, True), 14), history=hist); L.extend(b)
    b, n = hazards(q_finish(q_body(13, False, extra_dma=half_group('V', 1)), 11), history=b[-24:]); L.extend(b)
    b, n = hazards(q_finish(q_body(14, False, extra_dma=half_group('K', 2) + half_group('V', 2)), 12), history=b[-24:]); L.extend(b)
    b, n = hazards(q_finish(q_body(15, False), 12), history=b[-24:]); L.extend(b)
    A("s_branch L_q_after_ool")
    L.extend(OOL)
    A("L_q_after_ool:")
    A(stamp("q_loop_done"))
    return L

def q_tiles(s): return range(5) if s < 2 else range(4)
def q_scale(ss):
    return [I(f"v_pk_mul_f32 {vr(grp(t,s)+2*k,2)}, {vr(grp(t,s)+2*k,2)}, {vr(V_C0,2)}") for s in ss for t in q_tiles(s) for k in range(4)]
def q_cvt(ss):
    return [I(f"v_cvt_pk_bf16_f32 v{grp(t,s)+k}, v{grp(t,s)+2*k}, v{grp(t,s)+2*k+1}") for s in ss for t in q_tiles(s) for k in range(4)]
QX = 155648

def transition():
    L = []; A = lambda *x: L.extend(II(*x))
    A(f"s_add_u32 {S_SOFFK}, {S_TQ}, {4*8192}", f"s_add_u32 {S_SOFFV}, {S_TQ}, {3*8192}")
    A(f"v_mov_b32 v{V_C0}, {hex(f2u(SCALE))}", f"v_mov_b32 v{V_C1}, {hex(f2u(SCALE))}")
    A(f"s_lshl_b32 s50, {S_W}, 11", f"s_add_u32 s50, s50, {QX}", f"v_lshlrev_b32 v7, 4, {V_LANE}", "v_add_u32 v8, s50, v7",
      "s_xor_b32 s50, s50, 2048", "v_add_u32 v9, s50, v7")
    A(straight(half_group('K', 3)))
    seq = [k_read(kt, s, 0) for kt in range(2) for s in range(4)]
    seq += II("s_nop 3") + q_scale((0, 1))
    S = Sched(q_tail())
    cv = q_cvt((0, 1))
    cv = [c for c in cv if any(f"v{grp(4,s)+k}," in c.txt.split()[1] + "," for s in (0, 1) for k in range(4))] + \
         [c for c in cv if not any(f"v{grp(4,s)+k}," in c.txt.split()[1] + "," for s in (0, 1) for k in range(4))]
    S.spread(cv, [min(i * 2 // 5, 15) for i in range(40)])
    S.put(5, f"ds_write_b128 v8, {vr(grp(4,0))}"); S.put(7, f"ds_write_b128 v8, {vr(grp(4,1))} offset:1024")
    seq += S.flat()
    seq += II("s_waitcnt lgkmcnt(0)", "s_barrier", f"ds_read_b128 {vr(grp(4,2))}, v9", f"ds_read_b128 {vr(grp(4,3))}, v9 offset:1024")
    seq += II("s_nop 5") + q_scale((2, 3))
    qk = lambda ss: [qk_mfma(kt, s, t, lambda t: "0") for s in ss for kt in range(2) for t in range(5)]
    S = Sched(qk((0, 1)))
    S.spread(q_cvt((2, 3)), [i * 5 // 8 for i in range(32)])
    seq += S.flat()
    seq += qk((2, 3))
    seq, _ = lgkm_waits(seq, final_zero=True)
    seq, n = hazards(seq); L.extend(seq)
    A("s_barrier")
    A(stamp("qk0_done"))
    A(f"s_cmp_eq_u32 {S_SAFE}, 1", "s_cbranch_scc1 L_safe_max")
    E = II("s_nop 3")
    T = [VT[0] + 0, VT[0] + 1, 50, 51, 53]
    T = [2, 3, 4, 5, 6]
    U = [7, 8, 9, 10, 11]
    ab = [(Sreg(0, t), Sreg(1, t)) for t in range(5)]
    for t, (a, b) in enumerate(ab): E += II(f"v_max3_f32 v{T[t]}, v{a}, v{a+1}, v{a+2}")
    for t, (a, b) in enumerate(ab): E += II(f"v_max3_f32 v{T[t]}, v{T[t]}, v{a+3}, v{b}")
    for t, (a, b) in enumerate(ab): E += II(f"v_max3_f32 v{T[t]}, v{T[t]}, v{b+1}, v{b+2}")
    for t, (a, b) in enumerate(ab): E += II(f"v_max_f32 v{T[t]}, v{T[t]}, v{b+3}")
    for sw in ("v_permlane32_swap_b32", "v_permlane16_swap_b32"):
        for t in range(5): E += II(f"v_mov_b32 v{U[t]}, v{T[t]}")
        for t in range(5): E += II(f"{sw} v{T[t]}, v{U[t]}")
        for t in range(5): E += II(f"v_max_f32 v{T[t]}, v{T[t]}, v{U[t]}")
    for t in range(5):
        for k in range(4): E += II(f"v_sub_f32 v{cinit(t)+k}, 0, v{T[t]}")
    for t, (a, b) in enumerate(ab):
        for base in (a, b):
            for k in range(4): E += II(f"v_sub_f32 v{base+k}, v{base+k}, v{T[t]}")
    for t, (a, b) in enumerate(ab):
        for base in (a, b):
            for k in range(4): E += II(f"v_exp_f32 v{base+k}, v{base+k}")
    E, n = hazards(E); L.extend(E)
    A("L_max_done:")
    for t in range(5):
        for k in range(4): A(f"v_mov_b32 v{Preg(1,t)+k}, 0")
    A("s_nop 1")
    return L

def row_max_finish(T, U):
    E = []
    for sw in ("v_permlane32_swap_b32", "v_permlane16_swap_b32"):
        for t in range(5): E += II(f"v_mov_b32 v{U[t]}, v{T[t]}")
        for t in range(5): E += II(f"{sw} v{T[t]}, v{U[t]}")
        for t in range(5): E += II(f"v_max_f32 v{T[t]}, v{T[t]}, v{U[t]}")
    for t in range(5):
        for k in range(4): E += II(f"v_sub_f32 v{cinit(t)+k}, 0, v{T[t]}")
    return E

def safe_paths():
    L = []; A = lambda *x: L.extend(II(*x))
    T = [2, 3, 4, 5, 6]; U = [7, 8, 9, 10, 11]
    ab = [(Sreg(0, t), Sreg(1, t)) for t in range(5)]
    A("L_safe_max:")
    for t in range(5): A(f"v_mov_b32 v{T[t]}, 0xff800000")
    A(f"s_mov_b32 {S_CNT}, 0")
    A("L_safe_loop:")
    A("s_waitcnt vmcnt(0) lgkmcnt(0)", "s_barrier")
    A(f"s_and_b32 s50, {S_CNT}, 15", "s_lshl_b32 s50, s50, 13", f"s_add_u32 s51, s50, {S_TQ}", f"s_add_u32 m0, {S_MK}, {kphys(0)}", "s_nop 0")
    A(kv_group('K', None, "s51"))
    A("s_waitcnt vmcnt(0)", "s_barrier")
    A([k_read(kt, s, 0) for kt in range(2) for s in range(4)], "s_waitcnt lgkmcnt(0)")
    A(f"s_cmp_eq_u32 {S_CNT}, 16", "s_cbranch_scc1 L_safe_last")
    A([qk_mfma(kt, s, t, lambda t: "0") for kt in range(2) for s in range(4) for t in range(5)], "s_nop 7", "s_nop 7")
    for t, (a, b) in enumerate(ab):
        A(f"v_max3_f32 v{T[t]}, v{T[t]}, v{a}, v{a+1}", f"v_max3_f32 v{T[t]}, v{T[t]}, v{a+2}, v{a+3}",
          f"v_max3_f32 v{T[t]}, v{T[t]}, v{b}, v{b+1}", f"v_max3_f32 v{T[t]}, v{T[t]}, v{b+2}, v{b+3}")
    A(f"s_add_u32 {S_CNT}, {S_CNT}, 1", f"s_cmp_lt_u32 {S_CNT}, 16", "s_cbranch_scc1 L_safe_loop")
    E, n = hazards(II("s_nop 3") + row_max_finish(T, U)); L.extend(E)
    A("s_branch L_safe_loop")
    A("L_safe_last:", "s_nop 3")
    A([qk_mfma(kt, s, t, lambda t: vr(cinit(t))) for kt in range(2) for s in range(4) for t in range(5)], "s_nop 7", "s_nop 7")
    A("s_barrier")
    for t, (a, b) in enumerate(ab):
        for base in (a, b):
            for k in range(4): A(f"v_exp_f32 v{base+k}, v{base+k}")
    A("s_nop 1", "s_branch L_max_done")
    if OPT['fused']:
        A("L_cnt_spin:", f"s_mov_b32 s53, {SPIN}", "L_cnt_spin_loop:", "s_sleep 2",
          f"buffer_load_dword v15, v14, {SRD_D}, 0 offen sc1", "s_waitcnt vmcnt(0)", "v_readfirstlane_b32 s52, v15", "s_nop 3",
          "s_cmp_ge_u32 s52, 16", "s_cbranch_scc1 L_cnt_ok", "s_sub_u32 s53, s53, 1", "s_cmp_lg_u32 s53, 0", "s_cbranch_scc1 L_cnt_spin_loop", "s_branch L_cnt_ok")
    A("L_restart:", f"s_mov_b32 {S_SAFE}, 1", "s_waitcnt vmcnt(0) lgkmcnt(0)", "s_barrier")
    A(lane_consts_q())
    A("s_branch L_phase_q")
    return L

def k_read(kt, s, slotk):
    off = kphys(slotk) + kt * 4096
    return I(f"ds_read_b128 {ar(kbuf(kt, s))}, v{V_KR[s]}" + (f" offset:{off}" if off else ""))
def v_read(dt, h, slotv):
    off = vphys(slotv) + h * 4096
    return I(f"ds_read_b64_tr_b16 {ar(abuf(dt) + 2*h, 2)}, v{V_VR[dt]}" + (f" offset:{off}" if off else ""))
def qk_mfma(kt, s, t, first_c):
    c = first_c(t) if s == 0 else vr(Sreg(kt, t))
    return mfma(vr(Sreg(kt, t)), ar(kbuf(kt, s)), vr(qfrag(t, s)), c)
def pv_mfma(dt, t, par):
    return mfma(ar(oacc(dt, t)), ar(abuf(dt)), vr(Preg(par, t)), ar(oacc(dt, t)))
def rs_mfma(t, par):
    return mfma(ar(lacc(t)), ar(A_ONES), vr(Preg(par, t)), ar(lacc(t)))
def cvts(par):
    out = []
    for kt in range(2):
        for t in range(5):
            s = Sreg(kt, t); p = Preg(par, t) + 2 * kt
            out.append(I(f"v_cvt_pk_bf16_f32 v{p}, v{s}, v{s+1}"))
            out.append(I(f"v_cvt_pk_bf16_f32 v{p+1}, v{s+2}, v{s+3}"))
    return out
def exps(kt):
    return [I(f"v_exp_f32 v{Sreg(kt,t)+i}, v{Sreg(kt,t)+i}") for t in range(5) for i in range(4)]

def att_dma(j, dyn=False):
    seq = []
    if j + 4 <= 15:
        pre = II(f"s_add_u32 m0, {S_MK}, {kphys(j + 4)}")
        g = kv_group('K', None, S_SOFFK)
        seq += [(pre, g[0])] + [([], x) for x in g[1:]]
        seq[-1] = (seq[-1][0], seq[-1][1], II(f"s_add_u32 {S_SOFFK}, {S_SOFFK}, 8192"))
    if j + 3 <= 15:
        pre = II(f"s_add_u32 m0, {S_MV}, {vphys(j + 3)}")
        g = kv_group('V', None, S_SOFFV)
        s2 = [(pre, g[0])] + [([], x) for x in g[1:]]
        s2[-1] = (s2[-1][0], s2[-1][1], II(f"s_add_u32 {S_SOFFV}, {S_SOFFV}, 8192"))
        seq += s2
    return seq

def wo_dma(ks, slot_base_imm):
    seq = []
    for gI in range(2):
        pre = II(f"s_lshl_b32 s50, {S_W}, 13", f"s_add_u32 m0, s50, {slot_base_imm + gI*4096}", f"s_mov_b32 s51, {ks*32768 + gI*16384}")
        for n in range(4):
            seq.append((pre if n == 0 else [], dma(V_WOD[n], SRD_WO, "s51", n * 1024, OPT["wont"])))
    return seq

def att_body(j, vmwait, extra_dma=None):
    par_old, par_new = (j - 1) & 1, j & 1
    ms = [pv_mfma(dt, t, par_old) for dt in (5, 6, 7) for t in range(5)] + [rs_mfma(t, par_old) for t in range(5)]
    ms += [qk_mfma(kt, s, t, lambda t: vr(cinit(t))) for kt in range(2) for s in range(4) for t in range(5)]
    ms += [pv_mfma(dt, t, par_new) for dt in range(5) for t in range(5)]
    S = Sched(ms)
    cv = cvts(par_new)
    S.spread(cv, [1, 1, 3, 3, 6, 6, 8, 8, 11, 11, 13, 13, 16, 16, 18, 18, 21, 21, 23, 23])
    S.spread([k_read(kt, s, j + 1) for kt in range(2) for s in range(4)], [0, 2, 5, 7, 10, 12, 15, 17])
    vr_ = [v_read(dt, h, j) for dt in range(8) for h in range(2)]
    S.spread(vr_, [20, 22, 25, 26, 27, 28, 30, 31, 32, 33, 35, 36, 37, 38, 40, 61])
    d = att_dma(j) + (extra_dma or [])
    if j + 4 > 15 and j + 3 <= 15 and not extra_dma:
        put_dmas(S, d, [24, 29, 34, 39])
    else:
        put_dmas(S, d, [4, 9, 14, 19, 24, 29, 34, 39])
    S.spread(exps(0), list(range(41, 61)))
    S.spread(exps(1), list(range(62, 82)))
    seq = S.flat()
    seq, pend = lgkm_waits(seq)
    seq += tr_mark() + II(f"s_waitcnt vmcnt({vmwait}) lgkmcnt(0)") + tr_commit() + II("s_barrier")
    if OPT['verbose']: print(S.report(f"att_body {j}"))
    return seq

WO1 = [192, 200, 208, 216, 224, 228, 232, 236]
def wofrag(ks, m, n=4, off=0):
    if ks == 0: return ar(216 + 4 * m + off, n)
    if ks == 1: return vr(WO1[m] + off, n)
    return ar((ks - 2) * 32 + 4 * m + off, n)
def wo_read(ks, m, h):
    cp, hf = m >> 1, m & 1
    off = (32768 if (ks & 1) == 0 else 0) + hf * 8 + h * 4096
    return I(f"ds_read_b64_tr_b16 {wofrag(ks, m, 2, 2*h)}, v{V_WOR[cp]}" + (f" offset:{off}" if off else ""))

def wo_prefetch():
    n = OPT['pfw']
    L = II(f"s_lshl_b32 s50, {S_B}, 15", f"s_lshl_b32 s51, {S_W}, 13", "s_add_u32 s50, s50, s51")
    nt = " nt" if OPT['pfnt'] else ""
    if n == 8:
        L += II(f"v_lshlrev_b32 v46, 4, {V_LANE}")
        for i in range(8):
            L += II(f"s_add_u32 s51, s50, {i*1024}", f"buffer_load_dwordx4 v[252:255], v46, s[84:87], s51 offen{nt}")
    else:
        sh = {1: 7, 2: 6, 4: 5}[n]
        L += II(f"v_lshlrev_b32 v46, {sh}, {V_LANE}")
        for i in range(n):
            L += II(f"s_add_u32 s51, s50, {i * (64 << sh)}", f"buffer_load_dword v47, v46, s[84:87], s51 offen{nt}")
    return L

def attention():
    L = []; A = lambda *x: L.extend(II(*x))
    L += transition()
    A(stamp("att_start"))
    A(f"s_mov_b32 {S_CNT}, 0")
    bodies = [att_body(j, 16) for j in range(4)]
    hist = bodies[3][-24:]
    A(".p2align 6", "L_att_loop:")
    for b in bodies:
        b2, n = hazards(b, history=hist); L.extend(b2); hist = b2[-24:]
    if OPT['pf'] >= 0:
        A(f"s_cmp_eq_u32 {S_CNT}, {OPT['pf']}", "s_cbranch_scc0 L_att_nopf", wo_prefetch(), "L_att_nopf:")
    A(f"s_add_u32 {S_CNT}, {S_CNT}, 1", f"s_cmp_lt_u32 {S_CNT}, 3", "s_cbranch_scc1 L_att_loop")
    b, n = hazards(att_body(12, 12), history=hist); L.extend(b); hist = b[-24:]
    b, n = hazards(att_body(13, 12, extra_dma=wo_dma(0, WOA)), history=hist); L.extend(b); hist = b[-24:]
    b, n = hazards(att_body(14, 16, extra_dma=wo_dma(1, WOB)), history=hist); L.extend(b); hist = b[-24:]
    A(stamp("att_loop_done"))
    ms = [pv_mfma(dt, t, 0) for dt in (5, 6, 7) for t in range(5)] + [rs_mfma(t, 0) for t in range(5)]
    ms += [pv_mfma(dt, t, 1) for dt in range(8) for t in range(5)] + [rs_mfma(t, 1) for t in range(5)]
    S = Sched(ms)
    S.spread(cvts(1), list(range(0, 20)))
    S.spread([v_read(dt, h, 15) for dt in range(5) for h in range(2)], list(range(0, 10)))
    S.spread([v_read(dt, h, 15) for dt in (5, 6, 7) for h in range(2)], list(range(15, 21)))
    S.put(20, "s_waitcnt vmcnt(8)")
    S.spread([wo_read(0, m, h) for m in range(8) for h in range(2)], [21 + i // 2 for i in range(16)])
    S.put(28, "s_waitcnt vmcnt(0)")
    S.spread([wo_read(1, m, h) for m in range(8) for h in range(2)], [29 + i // 2 for i in range(16)])
    S.put(38, "s_waitcnt lgkmcnt(0)")
    if OPT['fused']:
        S.put(36, f"s_lshl_b32 s50, {S_CL}, 2", f"s_add_u32 s50, s50, {CNTOFF()}")
        S.spread([f"v_lshlrev_b32 v14, 8, {V_LANE}", "v_add_u32 v14, s50, v14"], [37, 37])
        S.put(38, f"buffer_load_dword v15, v14, {SRD_D}, 0 offen sc1")
    put_dmas(S, wo_dma(2, WOA), [41, 44, 47, 50, 54, 57, 60, 63])
    seq, pend = lgkm_waits(S.flat(), final_zero=True)
    seq, n = hazards(seq, history=hist); L.extend(seq)
    A("s_barrier")
    A("s_nop 3")
    A(stamp("att_done"))
    return L

def wo_dma_t(ks):
    d = wo_dma(ks, WOA if (ks & 1) == 0 else WOB)
    for e in d: e[1].tag = f"wo{ks}"
    return d
def wo_reads(ks): return [wo_read(ks, m, h) for m in range(8) for h in range(2)]

LFLAG = 90112

def o_epilogue():
    E = []
    tl = VT[0]; rc = VT[2]
    d3, d4, d5 = wo_dma_t(3), wo_dma_t(4), wo_dma_t(5)
    E += II(f"s_lshl_b32 s50, {S_U}, 12", f"s_add_u32 s50, s50, 32768", f"v_add_u32 v{V_OW4}, s50, v{V_OR}")
    def emit_dma(e):
        return e[0] + II("s_nop 0") * (1 if e[0] else 0) + [e[1]]
    nfr = 0
    for t in range(5):
        E += II(f"v_accvgpr_read_b32 v{tl}, a{lacc(t)}", f"v_rcp_f32 v{rc}, v{tl}", "s_nop 0", f"v_mov_b32 v{rc+1}, v{rc}")
        if t == 0: E += II(f"v_mov_b32 v{VT[1]}, v{tl}")
        else: E += II(f"v_max_f32 v{VT[1]}, v{VT[1]}, v{tl}")
        for ks in range(4):
            mid = []
            if nfr < 8: mid += emit_dma(d3[nfr])
            if 8 <= nfr < 16: mid += emit_dma(d4[nfr - 8])
            if nfr >= 16: mid += emit_dma(d5[2 * (nfr - 16)]) + emit_dma(d5[2 * (nfr - 16) + 1])
            if OPT.get('x_oenodma'): mid = [x for x in mid if x.kind == 'dma'][:0] + [x for x in mid if x.kind != 'dma']
            rd = []
            if 4 <= nfr < 8:
                if nfr == 4:
                    rd += [VmNeed("wo2")]
                    if OPT['fused']:
                        rd += II("v_readfirstlane_b32 s52, v15", "s_nop 3", "s_cmp_lt_u32 s52, 16", "s_cbranch_scc1 L_cnt_spin", "L_cnt_ok:")
                rd += wo_reads(2)[4 * (nfr - 4): 4 * (nfr - 4) + 4]
            if 12 <= nfr < 16:
                if nfr == 12: rd += [VmNeed("wo3")]
                rd += wo_reads(3)[4 * (nfr - 12): 4 * (nfr - 12) + 4]
            if nfr in (8, 16): E += II("s_waitcnt lgkmcnt(0)")
            E += rd
            for h in range(2):
                for k in range(4):
                    E += II(f"v_accvgpr_read_b32 v{52 + 4*h + k}, a{oacc(2*ks + h, t) + k}")
            E += mid
            for k in range(4): E += II(f"v_pk_mul_f32 {vr(52+2*k,2)}, {vr(52+2*k,2)}, {vr(rc,2)}")
            for k in range(4): E += II(f"v_cvt_pk_bf16_f32 v{60+k}, v{52+2*k}, v{53+2*k}")
            E += II(f"ds_write_b128 v{V_OW}, {vr(60)} offset:{(t*8+ks)*1024}" if t < 4 else f"ds_write_b128 v{V_OW4}, {vr(60)} offset:{ks*1024}")
            nfr += 1
        if OPT['stamps'] and OPT.get('oest'): E += [Raw("\n  ".join(x.txt for x in stamp(f"oe{t}")))] + II("s_waitcnt lgkmcnt(0)")
    E += II(f"v_cmp_nge_f32 vcc, {hex(OPT['lthr'] or LTHR)}, v{VT[1]}", f"s_lshl_b32 s50, {S_W}, 2", f"s_add_u32 s50, s50, {LFLAG}", f"v_mov_b32 v52, s50",
            "s_cmp_lg_u64 vcc, 0", "s_cselect_b32 s51, 1, 0", "v_mov_b32 v53, s51", "ds_write_b32 v52, v53")
    E, q = vm_waits(E, ["cnt"] + ["wo2"] * 8)
    E, pend = lgkm_waits(E, final_zero=True)
    E, n = hazards(E)
    return E + II("s_barrier"), q

def o_read(dst, t, ks):
    if t < 8: return I(f"ds_read_b128 {vr(dst)}, v{V_OR} offset:{(t*8+ks)*1024}")
    return I(f"ds_read_b128 {vr(dst)}, v{V_OR8} offset:{ks*1024}")
def pstore(src, t, cp):
    return (II(f"s_add_u32 s51, {S_SOFFP}, {(cp*9 + t)*16384}"),
            I(f"buffer_store_dwordx4 {vr(src)}, v{V_PS}, {SRD_P}, s51 offen {OPT['pst']}"))

NP1 = 2
def acc1(t, m): return 64 + (t * 8 + m) * 4
def acc2(t, m): return 128 + ((t & 1) * 8 + m) * 4
def bfr1(par, t): return 2 + (par * 4 + t) * 4
STG = [48, 52, 56, 60]

def tile_epilogue(accf, t, k0):
    out = []
    for cp in range(4):
        a0, a1 = accf(t, 2*cp), accf(t, 2*cp + 1)
        d = STG[(k0 + cp) & 3]
        cv = II(f"v_cvt_pk_bf16_f32 v{d}, v{a0}, v{a0+1}", f"v_cvt_pk_bf16_f32 v{d+1}, v{a0+2}, v{a0+3}",
                f"v_cvt_pk_bf16_f32 v{d+2}, v{a1}, v{a1+1}", f"v_cvt_pk_bf16_f32 v{d+3}, v{a1+2}, v{a1+3}")
        pre, st = pstore(d, t, cp)
        if OPT.get('x_nost') and not (t == 8 and cp == 3): st = I("s_nop 0")
        st.tag = f"st{t}"
        out.append((cv, (pre, st)))
    return out

def out_proj(queue):
    L = []; A = lambda *x: L.extend(II(*x))
    A(f"s_mul_i32 {S_SOFFP}, {S_W}, {4*9*16384}")
    NP = OPT['np1']
    G = 8 * NP
    ms = [mfma(vr(acc1(t, m)), wofrag(ks, m), vr(bfr1(ks & 1, t)), ("0" if ks == 0 else vr(acc1(t, m)))) for ks in range(8) for m in range(8) for t in range(NP)]
    bt = lambda ks: 2 + 4 * ks
    P1 = len(ms)
    for t in range(NP, 9):
        ms += [mfma(vr(acc2(t, m)), wofrag(ks, m), vr(bt(ks)), ("0" if ks == 0 else vr(acc2(t, m)))) for ks in range(8) for m in range(8)]
    S = Sched(ms)
    def reads(ks, g0): S.spread(wo_reads(ks), [g0 + i // 2 for i in range(16)])
    def dmas(ks, g0, step=4): put_dmas(S, wo_dma_t(ks), [g0 + step * i for i in range(8)])
    def put_free(ins, g0):
        g = g0
        while S.cost(g) + COST[ins.kind] > 8: g += 1
        S.put(g, ins); return g
    def epi(t, accf, g0, stride):
        for cp, (cv, (spre, st)) in enumerate(tile_epilogue(accf, t, 0)):
            g = g0 + cp * stride
            S.spread(cv, [g, g, g + 1, g + 1])
            for p in spre: S.put(g + 1, p)
            S.put(g + 2, st)
    if NP == 2:
        pre = [o_read(bfr1(0, t), t, 0) for t in range(NP)]
        S.put(0, VmNeed("wo4")); reads(4, 0)
        S.put(9, "s_waitcnt lgkmcnt(0)"); dmas(6, 11, 3)
        S.put(33, VmNeed("wo5")); reads(5, 33)
        S.put(42, "s_waitcnt lgkmcnt(0)"); dmas(7, 44, 3)
        S.put(84, VmNeed("wo6")); reads(6, 84)
        S.put(100, VmNeed("wo7")); reads(7, 100)
        for ks in range(7):
            g = ks * G + (1 if ks else 8)
            for t in range(NP):
                g = put_free(o_read(bfr1((ks + 1) & 1, t), t, ks + 1), g) + 1
            assert g <= (ks + 1) * G - 3, (ks, g)
        g = 6 * G + 4
        for ks in (2, 3, 6, 7): g = put_free(o_read(bt(ks), NP, ks), g) + 1
        g = 7 * G + 1
        for ks in (0, 1): g = put_free(o_read(bt(ks), NP, ks), g) + 1
        base = P1
        for ks in (4, 5): put_free(o_read(bt(ks), NP, ks), base + 1)
        epi(0, acc1, base + 4, 7); epi(1, acc1, base + 32, 7)
    else:
        assert NP == 0
        pre = [o_read(bt(ks), 0, ks) for ks in range(8)]
        S.put(0, VmNeed("wo4")); reads(4, 0)
        S.put(9, "s_waitcnt lgkmcnt(0)"); dmas(6, 11, 2)
        S.put(10, VmNeed("wo5"));
        S.spread(wo_reads(5), [12, 12, 14, 14, 16, 16, 18, 18, 20, 20, 22, 22, 24, 24, 26, 26])
        S.put(28, "s_waitcnt lgkmcnt(0)"); dmas(7, 30, 2)
        S.put(46, VmNeed("wo6")); S.spread(wo_reads(6), [46, 46, 46, 46] + [47 + i // 4 for i in range(12)])
        S.put(54, VmNeed("wo7")); S.spread(wo_reads(7), [54, 54, 54, 54] + [55 + i // 12 for i in range(12)])
    for t in range(NP, 9):
        b = P1 + (t - NP) * 64
        if t > NP: epi(t - 1, acc2, b + 6, 12)
        if t < 8:
            for ks in range(8):
                g = b + 8 * ks + 8
                if g >= b + 64: g = b + 64 + 1
                put_free(o_read(bt(ks), t + 1, ks), g)
    if OPT['fused']:
        g0 = P1 + (3 - NP) * 64 + 49
        S.put(g0, f"s_lshl_b32 s50, {S_W}, 7", f"s_lshl_b32 s52, {S_HP}, 2", "s_add_u32 s50, s50, s52")
        S.spread([f"v_lshlrev_b32 v36, 13, {V_LANE}", "v_add_u32 v36, s50, v36", "v_mov_b32 v37, 1"], [g0 + 1, g0 + 1, g0 + 2])
        S.put(g0 + 3, f"s_lshr_b32 s50, {S_HP}, 2", "s_lshl_b32 s50, s50, 7")
        S.spread([f"v_lshrrev_b32 v46, 4, {V_LANE}", "v_lshlrev_b32 v46, 9, v46", f"v_and_b32 v47, 15, {V_LANE}",
                  "v_lshl_add_u32 v46, v47, 2, v46", "v_add_u32 v46, s50, v46"], [g0 + 4, g0 + 4, g0 + 5, g0 + 9, g0 + 9])
        b = P1 + (8 - NP) * 64
        fa = I(f"buffer_store_dword v37, v36, {SRD_F}, 0 offen sc1"); fa.tag = "fl"
        S.put(b + 40, VmNeed("st3")); S.put(b + 41, fa)
        pl = I(f"buffer_load_dword v47, v46, {SRD_F}, 0 offen sc1"); pl.tag = "poll"
        S.put(b + 60, pl)
    if OPT['stamps'] and OPT.get('opst'):
        for nm, g in (("w1", 127), ("w3", 255), ("w5", 383), ("w8", 575)):
            S.put(g, Raw("\n  ".join(x.txt for x in stamp(nm))))
            S.put(g, "s_waitcnt lgkmcnt(0)")
    pre = II(f"v_mov_b32 v56, {LFLAG}", f"ds_read_b128 {vr(52)}, v56") + pre
    pre += II("s_waitcnt lgkmcnt(0)", "v_or3_b32 v52, v52, v53, v54", "v_or_b32 v52, v52, v55", "s_nop 0", "v_readfirstlane_b32 s50, v52", "s_nop 3",
              f"s_andn2_b32 s50, s50, {S_SAFE}", "s_cmp_lg_u32 s50, 0", "s_cbranch_scc1 L_restart")
    seq = pre + S.flat()
    tail = II("s_nop 7")
    for cp, (cv, (spre, st)) in enumerate(tile_epilogue(acc2, 8, 0)):
        tail += cv + spre + [st]
    if OPT['stamps'] and OPT.get('opst'): tail += stamp("st_iss")
    if OPT['fused']:
        fb = I(f"buffer_store_dword v37, v36, {SRD_F}, 0 offen offset:512 sc1"); fb.tag = "fl"
        fc = I(f"buffer_store_dword v37, v36, {SRD_F}, 0 offen offset:1024 sc1"); fc.tag = "fl"
        tail += [VmNeed("poll"), fb, VmNeed("st8"), fc]
    seq, q = vm_waits(seq + tail, queue)
    seq, pend = lgkm_waits(seq)
    seq, n = hazards(seq)
    if OPT['verbose']: print(S.report("out_proj"), "nops", n)
    L += seq
    return L, q

SPIN = 1 << 22
def reduce_phase():
    L = []; A = lambda *x: L.extend(II(*x))
    DAT = lambda g, tt, k: 64 + ((g * 2 + tt) * 4 + k) * 4
    D8 = lambda k: 192 + 4 * k
    ACC = lambda g, tt: [208, 216, 224, 232, 240, 248, 2, 10][g * 2 + tt]
    A8 = 18
    T0, T1 = 26, 28
    V_POLL, V_FL, V_L16, V_OUT = 46, 47, 32, 33
    A(f"v_lshrrev_b32 v30, 4, {V_LANE}", f"v_and_b32 v31, 15, {V_LANE}", f"v_lshlrev_b32 v{V_L16}, 4, {V_LANE}",
      f"v_lshlrev_b32 v{V_OUT}, 11, v31", f"v_lshl_add_u32 v{V_OUT}, v30, 4, v{V_OUT}")
    A(f"s_mul_i32 s32, {S_B}, {144*2048}", f"s_lshl_b32 s50, {S_BR}, 10", "s_add_u32 s32, s32, s50", f"s_lshl_b32 s50, {S_HP}, 6", "s_add_u32 s32, s32, s50")
    A(f"s_mul_i32 s33, {S_HP}, {9*16384}")
    A(f"s_lshl_b32 s50, {S_W}, 14", "s_add_u32 s34, s33, s50", "s_add_u32 s35, s34, 65536",
      f"s_add_u32 s36, s33, {8*16384}", f"s_lshl_b32 s50, {S_W}, 12", "s_add_u32 s36, s36, s50",
      f"s_lshl_b32 s41, {S_W}, 2")
    A("s_mov_b32 s37, 0", "s_mov_b32 s38, 0", f"s_mov_b32 s53, {SPIN}")
    def unpack_add(acc, src, first):
        out = []
        for k in range(4):
            if first:
                out += [f"v_lshlrev_b32 v{acc+2*k}, 16, v{src+k}", f"v_and_b32 v{acc+2*k+1}, 0xffff0000, v{src+k}"]
            else:
                t = (T0, T1)[k & 1]
                out += [f"v_lshlrev_b32 v{t}, 16, v{src+k}", f"v_and_b32 v{t+1}, 0xffff0000, v{src+k}",
                        f"v_pk_add_f32 v[{acc+2*k}:{acc+2*k+1}], v[{acc+2*k}:{acc+2*k+1}], v[{t}:{t+1}]"]
        return out
    items = [(tt, g) for tt in range(2) for g in range(4)] + [(2, None)]
    A("s_branch L_red_first")
    A("L_red_loop:")
    A("s_cmp_eq_u32 s37, 0x1ff", "s_cbranch_scc1 L_red_nopoll")
    A(f"buffer_load_dword v{V_FL}, v{V_POLL}, {SRD_F}, 0 offen sc1")
    A("L_red_nopoll:", "s_waitcnt vmcnt(0)")
    A("s_andn2_b32 s42, s37, s38")
    for i, (tt, g) in enumerate(items):
        A(f"s_bitcmp1_b32 s42, {i}", f"s_cbranch_scc0 L_red_nosum{i}")
        for k in range(4):
            A(unpack_add(ACC(g, tt), DAT(g, tt, k), k == 0) if tt < 2 else unpack_add(A8, D8(k), k == 0))
        A(f"L_red_nosum{i}:")
    A("s_mov_b32 s38, s37", "s_cmp_eq_u32 s38, 0x1ff", "s_cbranch_scc1 L_red_done")
    A("L_red_first:")
    A(f"v_cmp_eq_u32 vcc, 1, v{V_FL}", "s_nop 3", "s_mov_b32 s39, vcc_lo", "s_lshr_b32 s43, vcc_hi, s41", "s_and_b32 s43, s43, 15", "s_mov_b32 s40, s37")
    A("s_sub_u32 s53, s53, 1", "s_cmp_eq_u32 s53, 0", "s_cselect_b32 s39, -1, s39", "s_cselect_b32 s43, 15, s43", "s_cselect_b32 s53, 1, s53")
    for i, (tt, g) in enumerate(items):
        A(f"s_bitcmp1_b32 s37, {i}", f"s_cbranch_scc1 L_red_noiss{i}")
        if tt < 2:
            A(f"s_bfe_u32 s50, s39, {hex((4 << 16) | (16 * tt + 4 * g))}", "s_cmp_eq_u32 s50, 15")
        else:
            A("s_cmp_eq_u32 s43, 15")
        A(f"s_cbranch_scc0 L_red_noiss{i}")
        if tt < 2: A(f"s_add_u32 s50, s{34+tt}, {g*4096}")
        for k in range(4):
            o = f" offset:{k*1024}" if k else ""
            if tt < 2: A(f"buffer_load_dwordx4 {vr(DAT(g, tt, k))}, v{V_L16}, {SRD_P}, s50 offen{o} {OPT['rld']}")
            else: A(f"buffer_load_dwordx4 {vr(D8(k))}, v{V_L16}, {SRD_P}, s36 offen{o} {OPT['rld']}")
        A(f"s_bitset1_b32 s37, {i}", f"L_red_noiss{i}:")
    A("s_cmp_lg_u32 s37, s40", "s_cbranch_scc1 L_red_loop", f"s_sleep {OPT['psleep']}", "s_branch L_red_loop")
    A("L_red_done:")
    A(f"s_lshl_b32 s50, {S_W}, 11", f"v_lshlrev_b32 v30, 5, {V_LANE}", "v_add_u32 v30, 81920, v30", "v_add_u32 v31, s50, v30",
      f"ds_write_b128 v31, {vr(A8)}", f"ds_write_b128 v31, {vr(A8+4)} offset:16")
    for tt in range(2):
        a0 = ACC(0, tt)
        for g in range(1, 4):
            for k in range(4): A(f"v_pk_add_f32 v[{a0+2*k}:{a0+2*k+1}], v[{a0+2*k}:{a0+2*k+1}], v[{ACC(g,tt)+2*k}:{ACC(g,tt)+2*k+1}]")
        for k in range(4): A(f"v_cvt_pk_bf16_f32 v{64+4*tt+k}, v{a0+2*k}, v{a0+2*k+1}")
        A(f"s_lshl_b32 s50, {S_W}, 15", f"s_add_u32 s50, s50, s32", f"s_add_u32 s50, s50, {tt*4*32768}")
        A(f"buffer_store_dwordx4 {vr(64+4*tt)}, v{V_OUT}, {SRD_O}, s50 offen {OPT['ost']}")
    A("s_waitcnt lgkmcnt(0)", "s_barrier", f"s_cmp_eq_u32 {S_W}, 0", "s_cbranch_scc0 L_red_end")
    for g in range(4):
        A(f"ds_read_b128 {vr(80+8*g)}, v30 offset:{g*2048}", f"ds_read_b128 {vr(84+8*g)}, v30 offset:{g*2048+16}")
    A("s_waitcnt lgkmcnt(0)")
    for g in range(1, 4):
        for k in range(4): A(f"v_pk_add_f32 v[{80+2*k}:{81+2*k}], v[{80+2*k}:{81+2*k}], v[{80+8*g+2*k}:{81+8*g+2*k}]")
    for k in range(4): A(f"v_cvt_pk_bf16_f32 v{72+k}, v{80+2*k}, v{81+2*k}")
    A(f"s_add_u32 s50, s32, {8*32768}")
    A(f"buffer_store_dwordx4 {vr(72)}, v{V_OUT}, {SRD_O}, s50 offen {OPT['ost']}")
    A("L_red_end:")
    L2, n = hazards(L)
    return L2

def dump_regs(regs, slot, kind='v'):
    L = []; A = lambda *x: L.extend(II(*x))
    A("s_add_u32 s66, s58, 0x4000000", "s_addc_u32 s67, s59, 0",
      "s_lshl_b32 s50, s2, 2", f"s_add_u32 s50, s50, {S_W}", "s_lshl_b32 s50, s50, 16",
      f"v_lshlrev_b32 v253, 2, {V_LANE}", "v_add_u32 v253, s50, v253")
    for i, r in enumerate(regs):
        if kind == 'a':
            A(f"v_accvgpr_read_b32 v254, a{r}", "s_nop 0")
            A(f"global_store_dword v253, v254, s[66:67]")
        else:
            A(f"global_store_dword v253, v{r}, s[66:67]")
        A("v_add_u32 v253, 256, v253")
    A("s_waitcnt vmcnt(0)")
    return L

def main_kernel():
    L = []
    L += setup()
    L += stamp("start")
    L += phase_q()
    L += stamp("q_done")
    if OPT['dump'] == 'q':
        L += II("s_nop 7") + dump_regs([qfrag(t, s) + k for t in range(5) for s in range(4) for k in range(4)], 0)
        L += II("s_waitcnt vmcnt(0)", "s_endpgm")
    L += attention()
    if OPT['dump'] == 'o':
        L += II("s_nop 7") + dump_regs([oacc(dt, t) + k for t in range(5) for dt in range(8) for k in range(4)] + [lacc(t) for t in range(5)], 0, 'a')
        L += II("s_waitcnt vmcnt(0)", "s_endpgm")
    e, q = o_epilogue(); L += e
    L += stamp("o_done")
    e, q = out_proj(q); L += e
    L += stamp("op_done")
    if OPT['fused']:
        L += reduce_phase()
        L += stamp("red_done")
    L += tr_dump()
    L += II("s_waitcnt vmcnt(0)")
    L += stamp("end")
    L += stamp_dump()
    L += II("L_main_end:", "s_endpgm")
    L += safe_paths()
    return L

def reduce_kernel():
    L = []; A = lambda *x: L.extend(II(*x))
    A("s_cmp_ge_u32 s2, 256", "s_cbranch_scc1 L_red_end")
    A("s_load_dwordx2 s[4:5], s[0:1], 80", "s_load_dwordx2 s[6:7], s[0:1], 96")
    A("v_lshrrev_b32 v2, 6, v0", "v_and_b32 v1, 63, v0", "s_nop 0", "v_readfirstlane_b32 s12, v2", "s_nop 3")
    A("s_waitcnt lgkmcnt(0)")
    A("s_mul_i32 s13, s2, 9", "s_add_u32 s13, s13, s12", "s_lshl_b32 s13, s13, 14")
    A("s_add_u32 s16, s6, s13", "s_addc_u32 s17, s7, 0", "s_and_b32 s17, s17, 0xffff", "s_mov_b32 s18, 16384", "s_mov_b32 s19, 0x20000")
    A("v_lshlrev_b32 v2, 4, v1")
    for p in range(16):
        A(f"buffer_load_dwordx4 v[{8+4*p}:{11+4*p}], v2, s[16:19], 0 offen offset:{(p%4)*1024}" if p < 4 else
          f"buffer_load_dwordx4 v[{8+4*p}:{11+4*p}], v2, s[16:19], s{20+p//4} offen offset:{(p%4)*1024}")
        if p == 3: A("s_mov_b32 s21, 4096", "s_mov_b32 s22, 8192", "s_mov_b32 s23, 12288")
    A("s_lshr_b32 s14, s2, 4", "s_and_b32 s15, s2, 15",
      "s_and_b32 s24, s14, 7", "s_lshr_b32 s25, s14, 3",
      "s_mul_i32 s24, s24, 144", "s_lshl_b32 s26, s12, 4", "s_add_u32 s24, s24, s26", "s_lshl_b32 s24, s24, 11",
      "s_lshl_b32 s25, s25, 10", "s_lshl_b32 s15, s15, 6", "s_add_u32 s24, s24, s25", "s_add_u32 s24, s24, s15")
    A("v_and_b32 v3, 15, v1", "v_lshlrev_b32 v3, 11, v3", "v_lshrrev_b32 v4, 4, v1", "v_lshl_add_u32 v3, v4, 4, v3")
    A("s_mov_b32 s28, s4", "s_and_b32 s29, s5, 0xffff", "s_mov_b32 s30, 2359296", "s_mov_b32 s31, 0x20000")
    acc = 80
    for p in range(16):
        A(f"s_waitcnt vmcnt({15-p})")
        for k in range(4):
            r = 8 + 4 * p + k
            if p == 0:
                A(f"v_lshlrev_b32 v{acc+2*k}, 16, v{r}", f"v_and_b32 v{acc+2*k+1}, 0xffff0000, v{r}")
            else:
                A(f"v_lshlrev_b32 v6, 16, v{r}", f"v_and_b32 v7, 0xffff0000, v{r}",
                  f"v_add_f32 v{acc+2*k}, v{acc+2*k}, v6", f"v_add_f32 v{acc+2*k+1}, v{acc+2*k+1}, v7")
    for k in range(4): A(f"v_cvt_pk_bf16_f32 v{8+k}, v{acc+2*k}, v{acc+2*k+1}")
    A("buffer_store_dwordx4 v[8:11], v3, s[28:31], s24 offen")
    A("s_waitcnt vmcnt(0)")
    A("L_red_end:", "s_endpgm")
    return L

def kernel_text(name, body, vgpr, accum, sgpr=102):
    return f""".globl {name}
.p2align 8
.type {name},@function
{name}:
{text(body)}
"""
def kd(name, nfv, accum, sgpr=102):
    return f""".amdhsa_kernel {name}
  .amdhsa_next_free_vgpr {nfv}
  .amdhsa_next_free_sgpr {sgpr}
  .amdhsa_accum_offset {accum}
  .amdhsa_group_segment_fixed_size 0
  .amdhsa_kernarg_size 104
  .amdhsa_user_sgpr_count 2
  .amdhsa_user_sgpr_kernarg_segment_ptr 1
  .amdhsa_system_sgpr_workgroup_id_x 1
.end_amdhsa_kernel
"""

def build():
    stamp_id[0] = 0; STAMPS.clear()
    k1 = NAME + "_kernel"; k2 = "reduce_heads_kernel"
    m = main_kernel()
    hdr = "; fused q-projection + attention + out-projection; the 16 head-pair partials of an output slice are summed by its owner\n"
    if OPT['fused']:
        hdr += f"; @launch grid=(256,1,1) block=(256,1,1) lds=163840\n"
    else:
        hdr += f"; @launch kernel={k1} grid=(256,1,1) block=(256,1,1) lds=163840\n"
        hdr += f"; @launch kernel={k2} grid=(256,1,1) block=(576,1,1) lds=0\n"
    s = hdr + '.amdgcn_target "amdgcn-amd-amdhsa--gfx950"\n.text\n'
    s += kernel_text(k1, m, 512, 256)
    if not OPT['fused']: s += kernel_text(k2, reduce_kernel(), 96, 96)
    s += '.section .rodata,"a"\n.p2align 6\n' + kd(k1, 512, 256)
    if not OPT['fused']: s += ".p2align 6\n" + kd(k2, 96, 96, 40)
    return s

if __name__ == "__main__":
    ap = argparse.ArgumentParser()
    ap.add_argument("-o", default="cdna_kernels/" + NAME + ".s")
    ap.add_argument("--dump"); ap.add_argument("--stamps", action="store_true"); ap.add_argument("-v", action="store_true")
    ap.add_argument("--opt", action="append", default=[])
    a = ap.parse_args()
    OPT['dump'] = a.dump; OPT['stamps'] = a.stamps; OPT['verbose'] = a.v
    for o in a.opt:
        k, v = o.split("=", 1)
        OPT[k] = {'True': True, 'False': False}.get(v, int(v) if v.lstrip('-').isdigit() else v)
    s = build()
    open(a.o, "w").write(s)
    if a.stamps:
        import json; json.dump(STAMPS, open(a.o + ".stamps.json", "w"))
    print("wrote", a.o, len(s), "bytes")
```

```python
import re

def expand(op):
    op = op.strip()
    neg = op.lstrip('-')
    m = re.fullmatch(r'([vas])\[(\d+):(\d+)\]', neg)
    if m:
        return [f"{m.group(1)}{i}" for i in range(int(m.group(2)), int(m.group(3)) + 1)]
    m = re.fullmatch(r'([vas])(\d+)', neg)
    if m:
        return [neg]
    if neg in ('vcc', 'm0', 'exec', 'scc'):
        return [neg]
    if neg in ('vcc_lo', 'vcc_hi'):
        return ['vcc']
    return []

TRANS = ('v_exp_f32', 'v_rcp_f32', 'v_log_f32', 'v_rsq_f32', 'v_sqrt_f32')

class I:
    __slots__ = ('txt', 'kind', 'rd', 'wr', 'lds_dst', 'tag')
    def __init__(self, txt, tag=None):
        self.txt = txt
        self.tag = tag
        self.lds_dst = None
        t = txt.split(';')[0].strip()
        parts = t.split(None, 1)
        op = parts[0]
        ops = []
        if len(parts) > 1:
            ops = [x.strip() for x in re.split(r',(?![^\[]*\])', parts[1])]
            if ops:
                last = ops[-1].split()
                ops[-1] = last[0] if last else ''
        R = lambda xs: set(r for x in xs for r in expand(x))
        self.rd, self.wr = set(), set()
        if op.startswith('v_mfma'):
            self.kind = 'mfma'; self.wr = R(ops[:1]); self.rd = R(ops[1:])
        elif op.startswith('ds_read'):
            self.kind = 'dsr'; self.lds_dst = R(ops[:1]); self.wr = set(self.lds_dst); self.rd = R(ops[1:])
        elif op.startswith('ds_write'):
            self.kind = 'dsw'; self.rd = R(ops)
        elif op.startswith('buffer_load') and ' lds' in t:
            self.kind = 'dma'; self.rd = R(ops) | {'m0'}
        elif op.startswith('buffer_load') or op.startswith('global_load'):
            self.kind = 'vld'; self.wr = R(ops[:1]); self.rd = R(ops[1:])
        elif op.startswith('buffer_store') or op.startswith('global_store'):
            self.kind = 'vst'; self.rd = R(ops)
        elif op.startswith('global_atomic') or op.startswith('buffer_atomic'):
            self.kind = 'vst'; self.rd = R(ops)
        elif op.startswith('buffer_inv') or op.startswith('buffer_wbl2'):
            self.kind = 'vst'
        elif op == 's_waitcnt':
            self.kind = 'wait'
        elif op == 's_barrier':
            self.kind = 'bar'
        elif op == 's_nop':
            self.kind = 'nop'
        elif op.startswith('s_cbranch') or op == 's_branch' or op == 's_endpgm':
            self.kind = 'br'
            if 'scc' in op: self.rd = {'scc'}
            if 'vcc' in op: self.rd = {'vcc'}
            if 'exec' in op: self.rd = {'exec'}
        elif op.startswith('s_bitset'):
            self.kind = 'salu'; self.wr = R(ops[:1]); self.rd = R(ops[:1])
        elif op.startswith('s_cmp') or op.startswith('s_bitcmp'):
            self.kind = 'salu'; self.rd = R(ops); self.wr = {'scc'}
        elif op.startswith('s_load') or op.startswith('s_memtime') or op.startswith('s_memrealtime'):
            self.kind = 'smem'; self.wr = R(ops[:1]); self.rd = R(ops[1:])
        elif op in ('s_setprio', 's_sleep'):
            self.kind = 'salu'
        elif op.startswith('s_'):
            self.kind = 'salu'; self.wr = R(ops[:1]); self.rd = R(ops[1:])
            if op.startswith(('s_add', 's_sub', 's_lshl', 's_lshr', 's_and', 's_or', 's_xor', 's_min', 's_max', 's_ashr', 's_bfe', 's_andn2')):
                self.wr |= {'scc'}
            if op.startswith(('s_addc', 's_subb', 's_cselect')):
                self.rd |= {'scc'}
            if 'saveexec' in op:
                self.wr |= {'exec'}; self.rd |= {'exec'}
        elif op.startswith('v_cmp'):
            self.kind = 'valu'; self.wr = R(ops[:1]); self.rd = R(ops[1:])
        elif op.startswith('v_permlane') and 'swap' in op:
            self.kind = 'valu'; self.wr = R(ops[:2]); self.rd = R(ops[:2])
        elif op.startswith('v_'):
            self.kind = 'trans' if op.replace('_e32', '').replace('_e64', '') in TRANS else 'valu'
            self.wr = R(ops[:1]); self.rd = R(ops[1:])
            if op.startswith(('v_fmac', 'v_pk_fmac')): self.rd |= self.wr
            if op.startswith('v_cndmask') and len(ops) == 3: self.rd |= {'vcc'}
            if op.startswith(('v_add_co', 'v_sub_co', 'v_addc_co')):
                self.wr |= R(ops[1:2])
        elif op.endswith(':'):
            self.kind = 'label'
        elif op.startswith('.'):
            self.kind = 'dir'
        else:
            raise ValueError("unknown instr: " + txt)
    def op(self):
        return self.txt.split()[0]
    def __repr__(self):
        return self.txt

def II(*lines):
    out = []
    for l in lines:
        if isinstance(l, (list, tuple)):
            out += II(*l)
        elif isinstance(l, I):
            out.append(l)
        else:
            for x in l.split('\n'):
                x = x.strip()
                if x: out.append(I(x))
    return out

ORDER = {'label': 0, 'salu': 0, 'wait': 0, 'bar': 0, 'nop': 0, 'br': 0, 'smem': 0, 'dsr': 1, 'dsw': 1, 'dma': 2, 'vld': 2, 'vst': 2, 'valu': 3, 'trans': 3}
COST = {'dsr': 4, 'dsw': 4, 'dma': 8, 'vld': 8, 'vst': 8, 'valu': 4, 'trans': 8}

class Sched:
    def __init__(self, mfmas):
        self.m = list(mfmas)
        self.g = [[] for _ in self.m]
    def put(self, gap, *ins):
        for x in II(*ins):
            self.g[gap].append(x)
    def spread(self, ins, gaps):
        ins = II(*ins)
        assert len(ins) <= len(gaps), (len(ins), len(gaps))
        for x, g in zip(ins, gaps):
            self.g[g].append(x)
    def cost(self, gap):
        return sum(COST.get(x.kind, 0) for x in self.g[gap])
    def flat(self, sort=True):
        out = []
        for m, g in zip(self.m, self.g):
            if not (m.kind == 'nop'): out.append(m)
            if sort:
                g = sorted(g, key=lambda x: ORDER[x.kind])
            out += g
        return out
    def report(self, name=''):
        over = [(i, self.cost(i)) for i in range(len(self.g)) if self.cost(i) > 8]
        tot = sum(max(16, 8 + self.cost(i)) for i in range(len(self.g)))
        return f"{name}: {len(self.m)} mfma, est {tot} cyc, overfull gaps {over}"

def lgkm_waits(seq, pending=None, final_zero=False):
    out = []
    pend = [] if pending is None else list(pending)
    n = len(seq)
    def need_index(ins, q):
        regs = ins.rd | (ins.wr if ins.kind != 'dsr' else set())
        if ins.kind == 'dsr':
            regs = ins.rd | ins.wr
        k = -1
        for i, d in enumerate(q):
            if d and (d & regs): k = i
        return k
    def emit_wait(k):
        nonlocal pend
        cnt = len(pend) - 1 - k
        cnt = min(cnt, 15)
        out.append(I(f"s_waitcnt lgkmcnt({cnt})"))
        pend = pend[len(pend) - cnt:] if cnt > 0 else []
    i = 0
    while i < n:
        ins = seq[i]
        if ins.kind == 'wait' and 'lgkmcnt' in ins.txt:
            c = int(re.search(r'lgkmcnt\((\d+)\)', ins.txt).group(1))
            pend = pend[len(pend) - c:] if 0 < c < len(pend) else ([] if c == 0 else pend)
            out.append(ins); i += 1; continue
        k = need_index(ins, pend)
        if k >= 0:
            emit_wait(k)
        out.append(ins)
        if ins.kind in ('dsr', 'dsw'):
            pend.append(ins.lds_dst if ins.kind == 'dsr' else None)
        if ins.kind == 'smem':
            pass
        if ins.kind == 'mfma':
            j = i + 1
            kk = -1
            while j < n:
                nx = seq[j]
                if nx.kind in ('label', 'br', 'bar'): break
                if nx.kind == 'wait' and 'lgkmcnt' in nx.txt: break
                kk = max(kk, need_index(nx, pend))
                if nx.kind == 'mfma': break
                j += 1
            if kk >= 0:
                emit_wait(kk)
        i += 1
    if final_zero and pend:
        out.append(I("s_waitcnt lgkmcnt(0)")); pend = []
    return out, pend

def states(ins):
    if ins.kind == 'nop':
        return int(ins.txt.split()[1]) + 1
    if ins.kind in ('label', 'dir'):
        return 0
    return 1

def is_valu(x): return x.kind in ('valu', 'trans')

def required(prod, cons):
    r = 0
    vregs = lambda s: {x for x in s if x[0] in 'va'}
    if prod.kind == 'mfma':
        D = prod.wr
        if cons.kind == 'mfma':
            ops = [x.strip() for x in re.split(r',(?![^\[]*\])', cons.txt.split(None, 1)[1])]
            a, b, c = set(expand(ops[1])), set(expand(ops[2])), set(expand(ops[3].split()[0]))
            if D & (a | b): r = max(r, 8)
            if D & c and c != D: r = max(r, 6)
            if D & cons.wr and cons.wr != D: r = max(r, 6)
            if D & cons.wr and not (D & c): r = max(r, 6)
        elif is_valu(cons) or cons.kind in ('vst', 'dsw', 'dsr', 'vld', 'dma'):
            if D & (cons.rd | cons.wr): r = max(r, 8)
        if is_valu(cons):
            ops = [x.strip() for x in re.split(r',(?![^\[]*\])', prod.txt.split(None, 1)[1])]
            c = set(expand(ops[3].split()[0]))
            if c & cons.wr: r = max(r, 3)
    if is_valu(prod):
        if cons.kind == 'mfma' and (vregs(prod.wr) & cons.rd): r = max(r, 2)
        if prod.kind == 'trans' and cons.kind == 'valu' and (prod.wr & cons.rd): r = max(r, 1)
        if prod.kind == 'trans' and cons.kind == 'trans' and (prod.wr & cons.rd): r = max(r, 1)
        if cons.op().startswith('v_permlane') and (vregs(prod.wr) & cons.rd): r = max(r, 2)
        if cons.op().startswith(('v_readfirstlane', 'v_readlane')) and (vregs(prod.wr) & cons.rd): r = max(r, 1)
        sw = {x for x in prod.wr if x[0] == 's' or x == 'vcc'}
        if sw:
            if is_valu(cons) and (sw & cons.rd): r = max(r, 2)
            if cons.kind in ('dma', 'vld', 'vst') and (sw & cons.rd): r = max(r, 5)
            if cons.kind in ('salu', 'br') and (sw & cons.rd): r = max(r, 4)
        if 'exec' in prod.wr: r = max(r, 5)
        if 'dpp' in cons.txt and (vregs(prod.wr) & cons.rd): r = max(r, 2)
    if prod.kind == 'salu':
        if 'm0' in prod.wr and cons.kind == 'dma': r = max(r, 1)
        if 'exec' in prod.wr and cons.kind == 'mfma': r = max(r, 4)
    if prod.kind == 'vst' and ('x4' in prod.op() or 'x3' in prod.op()):
        if vregs(prod.rd) & cons.wr:
            r = max(r, 2)
    return r

def hazards(seq, history=None, verbose=False):
    out = []
    hist = list(history) if history else []
    added = 0
    for ins in seq:
        if ins.kind in ('label', 'dir'):
            out.append(ins); continue
        need = 0; dist = 0
        for p in reversed(hist[-24:]):
            r = required(p, ins)
            if r > dist: need = max(need, r - dist)
            dist += states(p)
            if dist >= 12: break
        if need > 0:
            nop = I(f"s_nop {need - 1}")
            out.append(nop); hist.append(nop); added += need
            if verbose: print("  hazard nop", need, "before", ins.txt)
        out.append(ins); hist.append(ins)
    return out, added

def text(seq, indent='  '):
    return '\n'.join((x.txt if x.kind == 'label' else indent + x.txt) for x in seq)

class VmNeed(I):
    def __init__(self, tag):
        self.txt = f"; vmneed {tag}"; self.kind = 'wait'; self.rd = set(); self.wr = set(); self.lds_dst = None; self.tag = tag

def tagged(ins, tag):
    for x in ins:
        x.tag = tag
    return ins

def vm_waits(seq, queue=None):
    q = list(queue or [])
    out = []
    for x in seq:
        if isinstance(x, VmNeed):
            idx = [i for i, t in enumerate(q) if t == x.tag]
            assert idx, f"no outstanding op with tag {x.tag}"
            n = len(q) - 1 - idx[-1]
            assert n <= 63
            out.append(I(f"s_waitcnt vmcnt({n})"))
            continue
        if x.kind in ('dma', 'vld', 'vst'):
            q.append(x.tag)
        out.append(x)
    return out, q

class Raw(I):
    def __init__(self, txt):
        self.txt = txt; self.kind = 'salu'; self.rd = set(); self.wr = set(); self.lds_dst = None; self.tag = None

class Masked(I):
    def __init__(self, ins, mask):
        self.txt = f"s_mov_b64 exec, {hex(mask)}\n  {ins.txt}\n  s_mov_b64 exec, -1"
        self.kind = ins.kind; self.rd = set(ins.rd); self.wr = set(); self.lds_dst = None; self.tag = ins.tag
```

```python
import sys, argparse
from ir import *

NAME = "concat_heads__gqa_block_cached__mha_block_cached__near_ridge"
OPT = dict(wsoff=0, own=True, early=True, l2pf=False, np1=2, pfw=1, pfkv=0, pfkvnt=False, psleep=8, ost='', lthr=0, start2=True, pf=2, pfnt=False, fused=True, rld='sc1', rot=True, wnt=False, xnt=False, wont=False, bursts=(3, 6, 9), dump=None, stamps=False, stop=None, kvnt=True, pst="sc1", verbose=False)

VB = 0
KB = 65536
WB = 16384
XB = 114688
WOA = 131072
WOB = 98304
OB = 0
def kphys(k): return ((k + 1) & 3) * 16384
def vphys(k): return (k & 3) * 16384

SRD_X, SRD_WQ, SRD_K, SRD_V, SRD_WO, SRD_P = "s[4:7]", "s[8:11]", "s[12:15]", "s[16:19]", "s[20:23]", "s[24:27]"
SRD_F, SRD_D, SRD_O = "s[68:71]", "s[72:75]", "s[80:83]"
S_W, S_U, S_QH, S_CNT = "s28", "s29", "s30", "s31"
S_SOFFX, S_SOFFW0, S_UNUSED, S_MW, S_MX, S_DSLOT, S_RSLOT, S_DW, S_DX = "s32", "s33", "s34", "s35", "s36", "s37", "s38", "s39", "s40"
S_BW, S_BX = "s41", "s42"
S_SOFFK, S_SOFFV, S_MK, S_MV = "s45", "s46", "s47", "s48"
S_T0, S_T1, S_T2, S_T3 = "s50", "s51", "s52", "s53"
S_HP, S_B, S_BR, S_CL = "s54", "s55", "s56", "s57"
S_WS = "s[58:59]"
S_SOFFP = "s60"
S_STAMP = "s[62:63]"
S_FLAG = "s64"
S_SAFE = "s61"
S_BX3 = "s38"
LTHR = 0x4b800000
S_KS, S_X0, S_W0 = "s88", "s89", "s87"
S_TAU, S_TB, S_TQ, S_T4N, S_TMASK, S_TSH, S_TM, S_TS = "s78", "s79", "s43", "s44", "s34", "s49", "s61", "s95"

V_LANE = "v1"
V_WQR = [2, 3, 4, 5]; V_XR = 6; V_XR4 = 14; V_OW4 = 50; V_OWB = 51
V_WQD = [7, 8, 9, 10]; V_XD = [11, 12, 13]; V_TG, V_TI, V_TB, V_TV = 14, 15, 62, 63
V_KD = [16, 17, 18, 19]; V_VD = [20, 21]
V_KR = [22, 23, 24, 25]; V_VR = [26 + i for i in range(8)]
V_WOD = [34, 35, 36, 37]; V_WOR = [38, 39, 40, 41]
V_OW, V_OR, V_OR8, V_PS = 42, 43, 44, 45
VT = [46 + i for i in range(18)]
RB = 64
def grp(t, s): return RB + (t * 4 + s) * 8
def qacc(dt, t): return grp(t, dt >> 1) + 4 * (dt & 1)
def qfrag(t, s): return grp(t, s)
def Sreg(kt, t): return grp(t, kt) + 4
def Preg(par, t): return grp(t, 2 + par) + 4
def cinit(t): return 224 + 4 * t
V_C0, V_C1 = 244, 245
def vr(b, n=4): return f"v[{b}:{b+n-1}]"
def ar(b, n=4): return f"a[{b}:{b+n-1}]"
def oacc(dt, t): return t * 32 + dt * 4
def lacc(t): return 160 + 4 * t
A_ONES = 180
def abuf(i): return 184 + 4 * i
def bbuf(t): return [48, 52, 56, 60, 248][t]
def kbuf(kt, s): return 216 + 4 * (kt * 4 + s)

MF = "v_mfma_f32_16x16x32_bf16"
def mfma(d, a, b, c): return I(f"{MF} {d}, {a}, {b}, {c}")
SCALE = (128 ** -0.5) * 1.4426950408889634
import struct
def f2u(x): return struct.unpack("<I", struct.pack("<f", x))[0]

def NT(): return " nt" if OPT['kvnt'] else ""

def CNTOFF(): return 128 if OPT.get('dbgst') is not None else 0
stamp_id = [0]
def stamp(name):
    if not OPT['stamps']: return []
    i = stamp_id[0]; stamp_id[0] += 1
    STAMPS.append(name)
    return II("s_memrealtime s[66:67]", "s_memtime s[64:65]", "s_waitcnt lgkmcnt(0)",
              f"v_writelane_b32 v0, s66, {i}", f"v_writelane_b32 v0, s64, {32 + i}")
def stamp_dump():
    if not OPT['stamps']: return []
    if OPT.get('dbgst') is not None:
        return II(f"s_cmp_eq_u32 s2, {OPT['dbgst']}", "s_cbranch_scc0 L_nodbg", f"s_cmp_eq_u32 {S_W}, 0", "s_cbranch_scc0 L_nodbg",
                  "v_readlane_b32 s50, v0, 0", "s_nop 3", "v_subrev_u32 v0, s50, v0",
                  f"v_lshlrev_b32 v1, 2, {V_LANE}", "v_cmp_gt_u32 vcc, 16, v1", f"v_lshrrev_b32 v2, 2, v1", "v_mov_b32 v3, 0x1000", "v_cmp_gt_u32 vcc, 16, v2", "s_nop 1",
                  "v_cndmask_b32 v1, v3, v1, vcc", f"buffer_store_dword v0, v1, {SRD_D}, 0 offen", "L_nodbg:")
    return II("s_add_u32 s62, s58, 0x8000000", "s_addc_u32 s63, s59, 0", "s_lshl_b32 s65, s2, 2", f"s_add_u32 s65, s65, {S_W}", "s_lshl_b32 s65, s65, 8",
              f"v_lshlrev_b32 v1, 2, {V_LANE}", "v_add_u32 v1, s65, v1", "global_store_dword v1, v0, s[62:63]")
STAMPS = []

def setup():
    L = []
    A = lambda *x: L.extend(II(*x))
    A("s_cmp_ge_u32 s2, 256", "s_cbranch_scc1 L_main_end")
    A("s_load_dwordx8 s[68:75], s[0:1], 0", "s_load_dwordx2 s[76:77], s[0:1], 32",
      "s_load_dwordx8 s[80:87], s[0:1], 40", "s_load_dwordx2 s[88:89], s[0:1], 72",
      f"s_load_dwordx2 {S_WS}, s[0:1], 96", "s_load_dwordx4 s[96:99], s[0:1], 80")
    A("s_and_b32 s50, s2, 7", "s_lshr_b32 s51, s2, 3",
      f"s_lshr_b32 {S_BR}, s50, 2",
      "s_and_b32 s52, s50, 3", "s_lshl_b32 s52, s52, 2", "s_and_b32 s53, s51, 3", f"s_add_u32 {S_HP}, s52, s53",
      f"s_lshr_b32 {S_B}, s51, 2",
      f"s_lshl_b32 s52, {S_BR}, 3", f"s_add_u32 {S_CL}, s52, {S_B}")
    A("v_lshrrev_b32 v46, 6, v0", f"v_and_b32 {V_LANE}, 63, v0", "s_nop 0", f"v_readfirstlane_b32 {S_W}, v46", "s_nop 3")
    A(f"s_lshr_b32 {S_U}, {S_W}, 1", f"s_and_b32 {S_QH}, {S_W}, 1", f"s_mov_b32 {S_SAFE}, 0")
    A(lane_consts_q())
    A("s_waitcnt lgkmcnt(0)")
    A(f"s_cmp_eq_u32 {S_BR}, 1")
    for i in range(8): A(f"s_cselect_b32 s{68+i}, s{80+i}, s{68+i}")
    A("s_cselect_b32 s76, s88, s76", "s_cselect_b32 s77, s89, s77")
    def srd(dst, lo, hi, off_expr_regs, nrec):
        A(f"s_add_u32 s{dst}, s{lo}, s50", f"s_addc_u32 s{dst+1}, s{hi}, 0", f"s_and_b32 s{dst+1}, s{dst+1}, 0xffff")
        A(nrec, f"s_mov_b32 s{dst+3}, 0x20000")
    A(f"s_mul_i32 s50, {S_B}, 147456"); srd(4, 68, 69, None, "s_mov_b32 s6, 147456")
    A(f"s_lshl_b32 s50, {S_HP}, 9"); srd(8, 74, 75, None, "s_sub_u32 s10, 4194304, s50")
    A(f"s_lshl_b32 s50, {S_B}, 5", f"s_lshl_b32 s51, {S_HP}, 1", "s_add_u32 s50, s50, s51", f"s_add_u32 s50, s50, {S_U}", "s_lshl_b32 s50, s50, 17")
    srd(12, 70, 71, None, "s_mov_b32 s14, 131072")
    srd(16, 72, 73, None, "s_mov_b32 s18, 131072")
    A(f"s_lshl_b32 s50, {S_HP}, 18", f"s_lshl_b32 s51, {S_W}, 8", "s_add_u32 s50, s50, s51")
    A("s_sub_u32 s52, 262144, s51")
    srd(20, 76, 77, None, "s_mov_b32 s22, s52")
    A(f"s_lshl_b32 s50, {S_HP}, 18"); srd(84, 76, 77, None, "s_mov_b32 s86, 262144")
    A(f"s_mul_i32 s50, {S_CL}, 2359296", f"s_add_u32 s50, s50, {hex(OPT['wsoff'])}"); srd(24, 58, 59, None, "s_mov_b32 s26, 2359296")
    if OPT['fused']:
        A(f"s_mul_i32 s50, {S_CL}, 4608", f"s_add_u32 s50, s50, {hex(OPT['wsoff'] + 0x2400000 + 0x40000)}"); srd(68, 58, 59, None, "s_mov_b32 s70, 4608")
        A("s_mov_b32 s72, s98", "s_and_b32 s73, s99, 0xffff", "s_mov_b32 s74, 256", "s_mov_b32 s75, 0x20000")
        A("s_mov_b32 s80, s96", "s_and_b32 s81, s97, 0xffff", "s_mov_b32 s82, 2359296", "s_mov_b32 s83, 0x20000")
        A(f"s_lshl_b32 s50, {S_W}, 7", f"s_lshl_b32 s51, {S_HP}, 2", "s_add_u32 s50, s50, s51",
          f"v_lshlrev_b32 v46, 9, {V_LANE}", "v_add_u32 v46, s50, v46", "v_mov_b32 v47, 0",
          f"buffer_store_dword v47, v46, {SRD_F}, 0 offen sc1" if not OPT.get('x_noclr') else "s_nop 0")
    return L

def lane_consts_q():
    L = []; A = lambda *x: L.extend(II(*x))
    l = V_LANE; t0, t1, t2, t3, t4, t5 = [f"v{x}" for x in VT[:6]]
    A(f"v_lshrrev_b32 {t0}, 4, {l}", f"v_bfe_u32 {t1}, {l}, 2, 2", f"v_and_b32 {t2}, 3, {l}", f"v_and_b32 {t3}, 15, {l}")
    for n in range(4):
        A(f"v_add_u32 {t4}, {4*n}, {t0}", f"v_xor_b32 {t4}, {t4}, {t3}", f"v_lshlrev_b32 {t4}, 4, {t4}",
          f"v_lshl_add_u32 v{V_KD[n]}, {t0}, 8, {t4}")
    for n in range(2):
        A(f"v_add_u32 {t4}, {4*n}, {t0}", f"v_lshlrev_b32 {t4}, 1, {t4}", f"v_xor_b32 {t4}, {t4}, {t3}", f"v_lshlrev_b32 {t4}, 4, {t4}",
          f"v_lshl_add_u32 v{V_VD[n]}, {t0}, 8, {t4}")
    A(f"v_lshrrev_b32 {t4}, 5, {l}")
    A(f"v_bfe_u32 {t5}, {l}, 4, 1")
    for j in range(4):
        d = f"v{V_WQD[j]}"
        A(f"v_add_u32 {d}, {2*j}, {t4}",
          f"v_and_b32 v{VT[6]}, 3, {d}", f"v_lshlrev_b32 v{VT[6]}, 2, v{VT[6]}", f"v_xor_b32 v{VT[6]}, v{VT[6]}, {t3}", f"v_lshlrev_b32 v{VT[6]}, 4, v{VT[6]}",
          f"v_lshlrev_b32 {d}, 13, {d}", f"v_add_u32 {d}, {d}, v{VT[6]}", f"v_lshl_add_u32 {d}, {t5}, 8, {d}")
        if j: A(f"v_subrev_u32 {d}, {1024*j}, {d}")
    A(f"v_lshlrev_b32 {t4}, 1, {t0}", f"v_mov_b32 {t5}, 0x78", f"v_lshrrev_b32 {t4}, {t4}, {t5}", f"v_and_b32 {t4}, 3, {t4}",
      f"v_xor_b32 {t4}, {t4}, {t2}", f"v_lshlrev_b32 {t4}, 4, {t4}",
      f"v_lshrrev_b32 {t5}, 2, {l}", f"v_lshl_add_u32 {t4}, {t5}, 10, {t4}")
    for j in range(2):
        A(f"v_add_u32 v{V_XD[j]}, {j*16384 - 1024*j}, {t4}")
    A(f"s_lshl_b32 s50, {S_W}, 1", "s_lshr_b32 s50, 0x78, s50", "s_and_b32 s50, s50, 3",
      f"v_xor_b32 {t4}, s50, {t2}", f"v_lshlrev_b32 {t4}, 4, {t4}", f"v_lshl_add_u32 {t4}, {t5}, 10, {t4}",
      f"s_lshl_b32 s50, {S_W}, 12", f"s_lshl_b32 s51, {S_W}, 15", "s_sub_u32 s50, s50, s51", f"s_add_u32 s50, s50, {128*1024}",
      f"v_add_u32 v{V_XD[2]}, s50, {t4}")
    A(f"v_lshl_add_u32 {t4}, {t0}, 3, {t1}", f"v_lshlrev_b32 {t4}, 9, {t4}", f"v_lshl_add_u32 {t4}, {t2}, 4, {t4}",
      f"s_lshl_b32 s50, {S_U}, 8", f"s_add_u32 s50, s50, {WB}", f"v_add_u32 {t4}, s50, {t4}")
    A(f"s_lshl_b32 s51, {S_QH}, 1", f"v_xor_b32 {t1}, s51, {t1}")
    for s in range(4):
        A(f"v_xor_b32 {t5}, {s}, {t1}", f"v_lshl_add_u32 v{V_WQR[s]}, {t5}, 6, {t4}")
    A(f"v_lshrrev_b32 {t4}, 2, {t3}", f"v_lshlrev_b32 {t4}, 1, {t4}", f"v_mov_b32 {t5}, 0x78", f"v_lshrrev_b32 {t4}, {t4}, {t5}", f"v_and_b32 {t4}, 3, {t4}",
      f"v_xor_b32 {t4}, {t4}, {t0}", f"v_lshlrev_b32 {t4}, 4, {t4}", f"v_lshl_add_u32 {t4}, {t3}, 6, {t4}",
      f"s_mul_i32 s50, {S_QH}, 5120", f"s_add_u32 s50, s50, {XB}", f"v_add_u32 v{V_XR}, s50, {t4}", f"v_add_u32 v{V_XR4}, {XB + 4096}, {t4}")
    return L

def lane_consts_rest():
    L = []; A = lambda *x: L.extend(II(*x))
    l = V_LANE; t0, t1, t2, t3, t4, t5, t6 = [f"v{x}" for x in VT[:7]]
    A(f"v_lshrrev_b32 {t0}, 4, {l}", f"v_bfe_u32 {t1}, {l}, 2, 2", f"v_and_b32 {t2}, 3, {l}", f"v_and_b32 {t3}, 15, {l}")
    A(f"s_lshl_b32 s50, {S_U}, 13", f"s_add_u32 s51, s50, {KB}", f"v_lshlrev_b32 {t4}, 8, {t3}", f"v_add_u32 {t4}, s51, {t4}")
    A(f"s_lshl_b32 s51, {S_QH}, 3", f"v_xor_b32 {t6}, s51, {t3}")
    for s in range(4):
        A(f"v_add_u32 {t5}, {4*s}, {t0}", f"v_xor_b32 {t5}, {t5}, {t6}", f"v_lshl_add_u32 v{V_KR[s]}, {t5}, 4, {t4}")
    A(f"v_lshrrev_b32 {t4}, 2, {l}", f"v_and_b32 {t5}, 7, {t4}", f"v_lshlrev_b32 {t5}, 1, {t5}",
      f"v_lshlrev_b32 {t4}, 8, {t4}", f"v_add_u32 {t4}, s50, {t4}",
      f"v_and_b32 {t6}, 1, {t2}", f"v_lshl_add_u32 {t4}, {t6}, 3, {t4}",
      f"v_lshrrev_b32 {t6}, 1, {t2}",
      f"s_lshl_b32 s51, {S_QH}, 3", f"v_xor_b32 {t5}, s51, {t5}")
    for dt in range(8):
        d = f"v{V_VR[dt]}"
        A(f"v_add_u32 {d}, {2*dt}, {t6}", f"v_xor_b32 {d}, {d}, {t5}", f"v_lshl_add_u32 {d}, {d}, 4, {t4}")
    A(f"v_lshlrev_b32 {t4}, 2, {t0}", f"v_xor_b32 {t4}, {t4}, {t3}", f"v_lshlrev_b32 {t4}, 4, {t4}", f"v_lshl_add_u32 {t4}, {t0}, 10, {t4}")
    for n in range(4):
        A(f"v_add_u32 v{V_WOD[n]}, {n*3072}, {t4}")
    A(f"v_lshrrev_b32 {t4}, 2, {l}", f"v_lshlrev_b32 {t4}, 8, {t4}", f"v_lshl_add_u32 {t4}, {t2}, 4, {t4}",
      f"s_lshl_b32 s50, {S_W}, 13", f"s_add_u32 s50, s50, {WOB}", f"v_add_u32 {t4}, s50, {t4}")
    for cp in range(4):
        A(f"v_xor_b32 {t5}, {cp}, {t1}", f"v_lshl_add_u32 v{V_WOR[cp]}, {t5}, 6, {t4}")
    A(f"s_mul_i32 s50, {S_QH}, 40960", f"s_lshl_b32 s51, {S_U}, 12", "s_add_u32 s50, s50, s51",
      f"v_lshlrev_b32 v{V_OR}, 4, {l}", f"v_add_u32 v{V_OW}, s50, v{V_OR}", f"v_add_u32 v{V_OR8}, 0x10000, v{V_OR}")
    A(f"s_lshl_b32 s50, {S_HP}, 10", f"v_add_u32 v{V_PS}, s50, v{V_OR}")
    return L

def dma(voff, srd, soff, imm, nt=False):
    o = f" offset:{imm}" if imm else ""
    return I(f"buffer_load_dwordx4 v{voff}, {srd}, {soff} offen{o}{' nt' if nt else ''} lds")

def kv_group(kind, m0expr, soffreg):
    if kind == 'K':
        return [dma(V_KD[n], SRD_K, soffreg, n * 1024, OPT['kvnt']) for n in range(4)]
    return [dma(V_VD[n & 1], SRD_V, soffreg, n * 1024, OPT['kvnt']) for n in range(4)]

def kv_tile_full_unused(kind, j):
    L = []
    base = (KB + kphys(j)) if kind == 'K' else (VB + vphys(j))
    for gI in range(2):
        L += II(f"s_lshl_b32 s50, {S_U}, 13", f"s_add_u32 m0, s50, {base + gI*4096}", f"s_mov_b32 s51, {j*8192 + gI*4096}")
        L += kv_group(kind, None, "s51")
    return L

def stage_setup_scalar():
    rot = OPT['rot']
    R = II("s_lshr_b32 s50, s2, 3", "s_and_b32 s51, s50, 3", "s_lshr_b32 s50, s50, 2")
    if rot in (True, 1):   R += II("s_lshl_b32 s51, s51, 2", "s_lshl_b32 s50, s50, 1", "s_add_u32 s52, s50, s51")
    elif rot == 2:         R += II("s_lshr_b32 s50, s50, 1", "s_add_u32 s52, s50, s51", "s_lshl_b32 s52, s52, 2")
    elif rot == 3:         R += II("s_add_u32 s52, s50, s51", "s_lshl_b32 s52, s52, 2")
    elif rot == 4:         R += II("s_lshr_b32 s50, s50, 2", "s_lshl_b32 s50, s50, 3", "s_lshl_b32 s51, s51, 2", "s_add_u32 s52, s50, s51")
    elif rot == 5:         R += II("s_mul_i32 s50, s50, 3", "s_lshl_b32 s51, s51, 2", "s_add_u32 s52, s50, s51")
    elif rot == 6:         R += II("s_lshl_b32 s52, s50, 1")
    elif rot == 7:         R += II("s_lshl_b32 s50, s50, 1", "s_and_b32 s51, s51, 1", "s_lshl_b32 s51, s51, 3", "s_add_u32 s52, s50, s51")
    else:                  R += II("s_mov_b32 s52, 0")
    return R + II("s_and_b32 s52, s52, 15",
              f"s_lshl_b32 s50, s52, 6", f"s_lshl_b32 s51, {S_W}, 15", f"s_add_u32 {S_SOFFX}, s50, s51",
              f"s_lshl_b32 s50, s52, 18", f"s_lshl_b32 s51, {S_W}, 16", f"s_add_u32 {S_SOFFW0}, s50, s51",
              f"s_lshl_b32 s50, {S_W}, 12", f"s_add_u32 {S_BW}, s50, {WB}",
              f"s_lshl_b32 s50, {S_W}, 11", f"s_add_u32 {S_BX}, s50, {XB}",
              f"s_lshl_b32 s50, {S_W}, 8", f"s_add_u32 {S_BX3}, s50, {XB + 8192}",
              f"s_lshl_b32 {S_TQ}, {S_QH}, 12",
              f"s_lshl_b32 s50, {S_U}, 13", f"s_add_u32 s50, s50, {S_TQ}", f"s_add_u32 {S_MK}, s50, {KB}", f"s_add_u32 {S_MV}, s50, {VB}")

def stage_dma_list(slot):
    seq = []
    seq.append(([I(f"s_add_u32 m0, {S_BW}, {slot*16384}")], dma(V_WQD[0], SRD_WQ, S_SOFFW0, 0, OPT['wnt'])))
    for j in range(1, 4): seq.append(([], dma(V_WQD[j], SRD_WQ, S_SOFFW0, j * 1024, OPT['wnt'])))
    seq.append(([I(f"s_add_u32 m0, {S_BX}, {slot*9216}")], dma(V_XD[0], SRD_X, S_SOFFX, 0, OPT['xnt'])))
    seq.append(([], dma(V_XD[1], SRD_X, S_SOFFX, 1024, OPT['xnt'])))
    q = dma(V_XD[2], SRD_X, S_SOFFX, 0, OPT['xnt'])
    seq.append(([I(f"s_add_u32 m0, {S_BX3}, {slot*9216}")], Masked(q, 0xffff)))
    return seq

def place_dma(S, seq, gaps):
    k = 0
    last = None
    for e in seq:
        if e[0]:
            for p in e[0]: S.put(gaps[k], p)
            k += 1
        S.put(gaps[k], e[1]); last = gaps[k]
        if len(e) > 2:
            for p in e[2]: S.put(gaps[k] + 1, p)
        k += 1
    return last

def stage_advance_w():
    return II(f"s_add_u32 {S_SOFFW0}, {S_SOFFW0}, 262144", f"s_and_b32 {S_SOFFW0}, {S_SOFFW0}, 0x3fffff")
def stage_advance_x():
    return II(f"s_add_u32 {S_SOFFX}, {S_SOFFX}, 64", f"s_and_b32 {S_SOFFX}, {S_SOFFX}, 0xfffffbff")
def stage_advance(): return stage_advance_w() + stage_advance_x()

def straight(seq):
    L = []
    for e in seq:
        L += e[0]
        if e[0]: L += II("s_nop 0")
        L.append(e[1])
        if len(e) > 2: L += e[2]
    return L

def stage_issue_straight(slot):
    return straight(stage_dma_list(slot)) + stage_advance()

def wq_read(dt, h2, slot):
    if OPT.get('x_noread'): return I('s_nop 0')
    s, hf = dt >> 1, dt & 1
    b = abuf(dt) + 2 * h2
    off = slot * 16384 + hf * 8 + h2 * 2048
    return I(f"ds_read_b64_tr_b16 {ar(b,2)}, v{V_WQR[s]}" + (f" offset:{off}" if off else ""))
def x_read(t, slot):
    if OPT.get('x_noread'): return I('s_nop 0')
    off = slot * 9216 + (0 if t == 4 else t * 1024)
    return I(f"ds_read_b128 {vr(bbuf(t))}, v{V_XR4 if t == 4 else V_XR}" + (f" offset:{off}" if off else ""))
def q_mfma(dt, t):
    if OPT.get('x_t4') and t == 4: return I("s_nop 3")
    if OPT.get('x_t45') and t == 4 and dt >= 4: return I("s_nop 3")
    return mfma(vr(qacc(dt, t)), ar(abuf(dt)), vr(bbuf(t)), vr(qacc(dt, t)))

def half_group(kind, j):
    if kind == 'K':
        pre = II(f"s_add_u32 m0, {S_MK}, {kphys(j)}", f"s_add_u32 s51, {S_TQ}, {j*8192}")
    else:
        pre = II(f"s_add_u32 m0, {S_MV}, {vphys(j)}", f"s_add_u32 s51, {S_TQ}, {j*8192}")
    g = kv_group(kind, None, "s51")
    return [(pre, g[0])] + [([], x) for x in g[1:]]

def put_dmas(S, seq, gaps):
    prev = -1
    for e, g in zip(seq, gaps):
        if e[0]:
            assert g - 1 > prev or prev < 0, (g, prev)
            for p in e[0]: S.put(g - 1, p)
        S.put(g, e[1])
        if len(e) > 2:
            for p in e[2]: S.put(g + 1, p)
        prev = g
    assert len(seq) <= len(gaps)

QTAIL = (4, 5, 6, 7)
def q_tail(): return [q_mfma(dt, t) for t in range(4) for dt in QTAIL]
SRD_T = "s[96:99]"; V_T = [10, 11, 12, 13]; S_TM, S_TS = "s35", "s36"
V_TB2 = [252, 253, 254, 255]
V_TB = [244, 245, 246, 247]
DUMMY = 151552
def burst_list():
    g = [dma(V_TB[n], SRD_T, S_TS, n * 1024, OPT['kvnt']) for n in range(4)]
    return [([I(f"s_mov_b32 m0, {S_TM}")], g[0])] + [([], x) for x in g[1:]]

def q_body(ks, with_dma, burst=False, extra_dma=None, wait=None):
    slot = ks & 3
    ms = q_tail() + [q_mfma(dt, t) for t in range(5) for dt in range(4)]
    S = Sched(ms)
    a = lambda dt, h: wq_read(dt, h, slot)
    xr = lambda t: x_read(t, slot)
    plan = {0: a(0,0), 1: a(0,1), 2: a(1,0), 3: a(1,1), 4: xr(0), 5: a(2,0), 7: a(2,1), 8: xr(1), 9: a(3,0), 11: a(3,1),
            12: xr(2), 13: xr(4), 16: xr(3), 17: a(4,0), 19: a(4,1), 20: a(5,0), 21: a(5,1), 23: a(6,0), 24: a(6,1), 25: a(7,0), 27: a(7,1)}
    for g, ins in plan.items(): S.put(g, ins)
    if with_dma:
        put_dmas(S, stage_dma_list((ks + 3) & 3), [6, 10, 14, 18, 22, 26, 29])
        w = stage_advance_w(); x = stage_advance_x()
        S.put(19, w[0]); S.put(20, w[1]); S.put(30, x[0]); S.put(31, x[1])
    if burst:
        put_dmas(S, burst_list(), [32, 33, 34, 35]) if False else None
        put_dmas(S, burst_list(), [15, 28, 31, 33])  if False else None
    if extra_dma:
        put_dmas(S, extra_dma, [6, 10, 14, 18, 22, 26, 30, 32][:len(extra_dma)])
    return S

def q_finish(S, wait, wg=33):
    S.put(wg, tr_mark(), f"s_waitcnt vmcnt({wait}) lgkmcnt(0)", tr_commit())
    S.put(wg + 1, "s_barrier")
    seq, pend = lgkm_waits(S.flat())
    assert not pend
    if OPT['verbose']: print(S.report("q_body"))
    return seq

def tr_mark():
    return [Raw("s_memtime s[100:101]")] if OPT.get('trace') else []
def tr_commit():
    return [Raw("s_mov_b32 s95, m0\n  s_mov_b32 m0, s94\n  s_nop 0\n  v_writelane_b32 v0, s100, m0\n  s_mov_b32 m0, s95\n  s_add_u32 s94, s94, 1")] if OPT.get('trace') else []
def tr_dump():
    if not OPT.get('trace'): return []
    return II("s_add_u32 s66, s58, 0x9000000", "s_addc_u32 s67, s59, 0", "s_lshl_b32 s50, s2, 2", f"s_add_u32 s50, s50, {S_W}", "s_lshl_b32 s50, s50, 8",
              f"v_lshlrev_b32 v253, 2, {V_LANE}", "v_add_u32 v253, s50, v253", "global_store_dword v253, v0, s[66:67]")

def zero_init():
    L = II("v_mov_b32 v244, 0", "v_mov_b32 v245, 0", "v_mov_b32 v246, 0", "v_mov_b32 v247, 0", "s_nop 1")
    for r in range(RB, RB + 160, 16): L += II(f"v_mfma_f32_32x32x16_bf16 v[{r}:{r+15}], v[244:247], v[244:247], 0")
    for r in range(0, 256, 16): L += II(f"v_mfma_f32_32x32x16_bf16 a[{r}:{r+15}], v[244:247], v[244:247], 0")
    return L

def phase_q():
    L = []; A = lambda *x: L.extend(II(*x))
    A("L_phase_q:")
    A(stage_setup_scalar(), stage_issue_straight(0))
    A(stamp("q_issued"))
    A(zero_init())
    A(lane_consts_rest())
    A(f"s_mov_b32 {S_CNT}, 0")
    if OPT.get('trace'): A("s_mov_b32 s94, 1", "s_memtime s[100:101]", "s_waitcnt lgkmcnt(0)", "v_writelane_b32 v0, s100, 0")
    A(f"v_mov_b32 v{VT[0]}, 0x3f803f80")
    for r in range(4): A(f"v_accvgpr_write_b32 a{A_ONES + r}, v{VT[0]}")
    for t in range(5):
        for k in range(4): A(f"v_mov_b32 v{bbuf(t)+k}, 0")
    A("s_mov_b32 s96, s12", "s_mov_b32 s97, s13", "s_mov_b32 s98, s14", "s_mov_b32 s99, s15")
    for n in range(4): A(f"v_mov_b32 v{V_TB[n]}, v{V_KD[n]}")
    if OPT.get('stst'): A(stamp("consts"))
    A(stage_issue_straight(1))
    if OPT.get('stst'): A(stamp("s1_iss"))
    A("s_waitcnt vmcnt(7)")
    if OPT.get('stst'): A(stamp("s0_land"))
    A("s_barrier")
    if OPT['fused']:
        A(f"s_cmp_eq_u32 {S_SAFE}, 1", "s_cbranch_scc1 L_no_arrive")
        A(f"s_lshl_b32 s50, {S_CL}, 2", f"s_add_u32 s50, s50, {CNTOFF()}", f"s_lshl_b32 s51, {S_W}, 14", "s_add_u32 s50, s50, s51",
          f"v_lshlrev_b32 v46, 8, {V_LANE}", "v_add_u32 v46, s50, v46", "v_mov_b32 v47, 1",
          f"buffer_atomic_add v47, v46, {SRD_D}, 0 offen sc1")
        A("L_no_arrive:")
    A(stage_issue_straight(2))
    if OPT.get('stst'): A(stamp("s2_iss"))
    A(f"s_add_u32 {S_TM}, {S_MK}, {kphys(0)}", f"s_mov_b32 {S_TS}, {S_TQ}")
    A(stamp("q_start"))
    l2 = OPT['l2pf']
    if l2:
        A(f"s_add_u32 s37, {S_TQ}, {4*8192}", "s_mov_b32 s92, s12", "s_mov_b32 s93, s13", "s_mov_b32 s94, s14", "s_mov_b32 s95, s15",
          "s_mov_b64 vcc, -1")
    bodies = []
    QOOL = []
    for k in range(4):
        S = q_body(k, True)
        if k == 1:
            put_dmas(S, burst_list(), [32, 33, 34, 35])
        if k == 3 and l2:
            g = [dma(V_OR, "s[92:95]", "s37", n * 1024, False) for n in range(4)]
            put_dmas(S, [([I(f"s_mov_b32 m0, {DUMMY}")], g[0])] + [([], x) for x in g[1:]], [32, 33, 34, 35])
        if l2:
            n_steady, n_first = [(18, 14), (22, 18), (18, 18), (22, 22)][k]
        else:
            n_steady = n_first = 14 if k == 0 else 18
        if OPT.get('b0st') and k == 0:
            for nm, g in (("g5", 5), ("g6", 7), ("g15", 15), ("g20", 20), ("g30", 31)):
                S.put(g, Raw(f"s_cmp_eq_u32 {S_CNT}, 0\n  s_cbranch_scc0 L_b0_{nm}\n  " + "\n  ".join(x.txt for x in stamp(nm)) + f"\nL_b0_{nm}:"))
        late = (k == 1) or (k == 3 and l2)
        w = tr_mark() + II(f"s_waitcnt vmcnt({n_steady}) lgkmcnt(0)")
        if n_first != n_steady:
            w += II(f"s_cbranch_vccnz L_q_first{k}", f"L_q_back{k}:")
            QOOL += II(f"L_q_first{k}:", f"s_waitcnt vmcnt({n_first})", f"s_branch L_q_back{k}")
        w += tr_commit()
        if late:
            seq, pend = lgkm_waits(S.flat())
            seq += w + II("s_barrier")
        else:
            S.put(33, w); S.put(34, "s_barrier")
            seq, pend = lgkm_waits(S.flat())
            assert not pend
        if OPT['verbose']: print(S.report("q_body"))
        bodies.append(seq)
    hist = bodies[3][-24:]
    A(".p2align 6", "L_q_loop:")
    for bi, b in enumerate(bodies):
        b2, n = hazards(b, history=hist); L.extend(b2); hist = b2[-24:]
        if OPT.get('stst') and bi < 2: A(f"s_cmp_eq_u32 {S_CNT}, 0", f"s_cbranch_scc0 L_nost{bi}", stamp(f"body{bi}"), f"L_nost{bi}:")
    A(f"s_add_u32 {S_TM}, {S_TM}, 16384", f"s_add_u32 {S_TS}, {S_TS}, 8192", f"s_add_u32 {S_CNT}, {S_CNT}, 1")
    if l2:
        A("s_mov_b64 vcc, 0", f"s_cmp_eq_u32 {S_CNT}, 1", "s_cbranch_scc1 L_q_to1", "L_q_to1_done:")
    A(f"s_cmp_eq_u32 {S_CNT}, 2", "s_cbranch_scc1 L_q_tov", "L_q_tov_done:",
      f"s_cmp_lt_u32 {S_CNT}, 3", "s_cbranch_scc1 L_q_loop")
    OOL = II("L_q_tov:", "s_mov_b32 s96, s16", "s_mov_b32 s97, s17", f"s_add_u32 {S_TM}, {S_MV}, {vphys(0)}", f"s_mov_b32 {S_TS}, {S_TQ}")
    if l2: OOL += II("s_mov_b32 s92, s12", "s_mov_b32 s93, s13", f"s_add_u32 s37, {S_TQ}, {5*8192}")
    for n in range(4): OOL += II(f"v_mov_b32 v{V_TB[n]}, v{V_VD[n & 1]}")
    OOL += II("s_branch L_q_tov_done")
    if l2: OOL += II("L_q_to1:", "s_mov_b32 s92, s16", "s_mov_b32 s93, s17", f"s_add_u32 s37, {S_TQ}, {3*8192}", "s_branch L_q_to1_done")
    OOL += QOOL
    b, n = hazards(q_finish(q_body(12, True), 18 if l2 else 14), history=hist); L.extend(b)
    b, n = hazards(q_finish(q_body(13, False, extra_dma=half_group('V', 1)), 15 if l2 else 11), history=b[-24:]); L.extend(b)
    b, n = hazards(q_finish(q_body(14, False, extra_dma=half_group('K', 2) + half_group('V', 2)), 12), history=b[-24:]); L.extend(b)
    b, n = hazards(q_finish(q_body(15, False), 12), history=b[-24:]); L.extend(b)
    A("s_branch L_q_after_ool")
    L.extend(OOL)
    A("L_q_after_ool:")
    A(stamp("q_loop_done"))
    return L

def q_tiles(s): return range(5) if s < 2 else range(4)
def q_scale(ss):
    return [I(f"v_pk_mul_f32 {vr(grp(t,s)+2*k,2)}, {vr(grp(t,s)+2*k,2)}, {vr(V_C0,2)}") for s in ss for t in q_tiles(s) for k in range(4)]
def q_cvt(ss):
    return [I(f"v_cvt_pk_bf16_f32 v{grp(t,s)+k}, v{grp(t,s)+2*k}, v{grp(t,s)+2*k+1}") for s in ss for t in q_tiles(s) for k in range(4)]
QX = 155648

def transition():
    L = []; A = lambda *x: L.extend(II(*x))
    A(f"s_add_u32 {S_SOFFK}, {S_TQ}, {4*8192}", f"s_add_u32 {S_SOFFV}, {S_TQ}, {3*8192}")
    A(f"v_mov_b32 v{V_C0}, {hex(f2u(SCALE))}", f"v_mov_b32 v{V_C1}, {hex(f2u(SCALE))}")
    A(f"s_lshl_b32 s50, {S_W}, 11", f"s_add_u32 s50, s50, {QX}", f"v_lshlrev_b32 v7, 4, {V_LANE}", "v_add_u32 v8, s50, v7",
      "s_xor_b32 s50, s50, 2048", "v_add_u32 v9, s50, v7")
    k3 = half_group('K', 3)
    seq = [k_read(kt, s, 0) for kt in range(2) for s in range(4)]
    sc = q_scale((0, 1))
    seq += II("s_nop 3") + sc
    S = Sched(q_tail())
    cv = q_cvt((0, 1))
    sh = lambda c: any(f"v{grp(4,s)+k}," in c.txt.split()[1] + "," for s in (0, 1) for k in range(4))
    cv = [c for c in cv if sh(c)] + [c for c in cv if not sh(c)]
    S.spread(cv, [min(i * 2 // 5, 15) for i in range(40)])
    S.put(5, f"ds_write_b128 v8, {vr(grp(4,0))}"); S.put(7, f"ds_write_b128 v8, {vr(grp(4,1))} offset:1024")
    seq += S.flat()
    seq += II("s_waitcnt lgkmcnt(0)", "s_barrier", f"ds_read_b128 {vr(grp(4,2))}, v9", f"ds_read_b128 {vr(grp(4,3))}, v9 offset:1024")
    sc = q_scale((2, 3))
    seq += II("s_nop 3") + k3[0][0] + sc[:8] + [k3[0][1]] + sc[8:16] + [k3[1][1]] + sc[16:24] + [k3[2][1]] + sc[24:] + [k3[3][1]]
    qk = lambda kt, ss, c: [qk_mfma(kt, s, t, c) for s in ss for t in range(5)]
    S = Sched(qk(0, (0, 1), lambda t: "0") + qk(0, (2, 3), lambda t: "0"))
    S.spread(q_cvt((2, 3)), [min(i * 5 // 16, 9) for i in range(32)])
    S.spread([f"v_mov_b32 v{Preg(1,t)+k}, 0" for t in range(5) for k in range(4)], [10 + i // 2 for i in range(20)])
    seq += S.flat()
    seq, _ = lgkm_waits(seq, final_zero=True)
    seq, n = hazards(seq); L.extend(seq)
    A(stamp("qk0_done"))
    A(f"s_cmp_eq_u32 {S_SAFE}, 1", "s_cbranch_scc1 L_safe_max")
    T = [2, 3, 4, 5, 6]
    U = [7, 8, 9, 10, 11]
    E = II("s_nop 5")
    for t in range(5): E += II(f"v_max3_f32 v{T[t]}, v{Sreg(0,t)}, v{Sreg(0,t)+1}, v{Sreg(0,t)+2}")
    for t in range(5): E += II(f"v_max_f32 v{T[t]}, v{T[t]}, v{Sreg(0,t)+3}")
    E += row_max_finish(T, U)
    S = Sched(qk(1, range(4), lambda t: vr(cinit(t))))
    sub = [f"v_add_f32 v{Sreg(0,t)+k}, v{Sreg(0,t)+k}, v{cinit(t)}" for t in range(5) for k in range(4)]
    ex = [f"v_exp_f32 v{Sreg(0,t)+k}, v{Sreg(0,t)+k}" for t in range(5) for k in range(4)]
    S.spread(sub, [i // 2 for i in range(20)])
    S.spread(ex, [min(2 + i, 19) for i in range(20)])
    E += S.flat()
    E += II("s_barrier")
    E += II("s_nop 3") + exps(1)
    E, n = hazards(E, history=L[-24:]); L.extend(E)
    A("L_max_done:", "s_nop 1")
    return L

def row_max_finish(T, U):
    E = []
    for sw in ("v_permlane32_swap_b32", "v_permlane16_swap_b32"):
        for t in range(5): E += II(f"v_mov_b32 v{U[t]}, v{T[t]}")
        for t in range(5): E += II(f"{sw} v{T[t]}, v{U[t]}")
        for t in range(5): E += II(f"v_max_f32 v{T[t]}, v{T[t]}, v{U[t]}")
    for t in range(5):
        for k in range(4): E += II(f"v_sub_f32 v{cinit(t)+k}, 0, v{T[t]}")
    return E

def safe_paths():
    L = []; A = lambda *x: L.extend(II(*x))
    T = [2, 3, 4, 5, 6]; U = [7, 8, 9, 10, 11]
    ab = [(Sreg(0, t), Sreg(1, t)) for t in range(5)]
    A("L_safe_max:")
    for t in range(5): A(f"v_mov_b32 v{T[t]}, 0xff800000")
    A(f"s_mov_b32 {S_CNT}, 0")
    A("L_safe_loop:")
    A("s_waitcnt vmcnt(0) lgkmcnt(0)", "s_barrier")
    A(f"s_and_b32 s50, {S_CNT}, 15", "s_lshl_b32 s50, s50, 13", f"s_add_u32 s51, s50, {S_TQ}", f"s_add_u32 m0, {S_MK}, {kphys(0)}", "s_nop 0")
    A(kv_group('K', None, "s51"))
    A("s_waitcnt vmcnt(0)", "s_barrier")
    A([k_read(kt, s, 0) for kt in range(2) for s in range(4)], "s_waitcnt lgkmcnt(0)")
    A(f"s_cmp_eq_u32 {S_CNT}, 16", "s_cbranch_scc1 L_safe_last")
    A([qk_mfma(kt, s, t, lambda t: "0") for kt in range(2) for s in range(4) for t in range(5)], "s_nop 7", "s_nop 7")
    for t, (a, b) in enumerate(ab):
        A(f"v_max3_f32 v{T[t]}, v{T[t]}, v{a}, v{a+1}", f"v_max3_f32 v{T[t]}, v{T[t]}, v{a+2}, v{a+3}",
          f"v_max3_f32 v{T[t]}, v{T[t]}, v{b}, v{b+1}", f"v_max3_f32 v{T[t]}, v{T[t]}, v{b+2}, v{b+3}")
    A(f"s_add_u32 {S_CNT}, {S_CNT}, 1", f"s_cmp_lt_u32 {S_CNT}, 16", "s_cbranch_scc1 L_safe_loop")
    E, n = hazards(II("s_nop 3") + row_max_finish(T, U)); L.extend(E)
    A("s_branch L_safe_loop")
    A("L_safe_last:", "s_nop 3")
    A([qk_mfma(kt, s, t, lambda t: vr(cinit(t))) for kt in range(2) for s in range(4) for t in range(5)], "s_nop 7", "s_nop 7")
    A("s_barrier")
    for t, (a, b) in enumerate(ab):
        for base in (a, b):
            for k in range(4): A(f"v_exp_f32 v{base+k}, v{base+k}")
    A("s_nop 1", "s_branch L_max_done")
    if OPT['fused']:
        A("L_cnt_spin:", f"s_mov_b32 s53, {SPIN}", "L_cnt_spin_loop:", "s_sleep 2",
          f"buffer_load_dword v15, v14, {SRD_D}, 0 offen sc1", "s_waitcnt vmcnt(0)", "v_readfirstlane_b32 s52, v15", "s_nop 3",
          "s_cmp_ge_u32 s52, 16", "s_cbranch_scc1 L_cnt_ok", "s_sub_u32 s53, s53, 1", "s_cmp_lg_u32 s53, 0", "s_cbranch_scc1 L_cnt_spin_loop", "s_branch L_cnt_ok")
    A("L_restart:", f"s_mov_b32 {S_SAFE}, 1", "s_waitcnt vmcnt(0) lgkmcnt(0)", "s_barrier")
    A(lane_consts_q())
    A("s_branch L_phase_q")
    return L

def k_read(kt, s, slotk):
    off = kphys(slotk) + kt * 4096
    return I(f"ds_read_b128 {ar(kbuf(kt, s))}, v{V_KR[s]}" + (f" offset:{off}" if off else ""))
def v_read(dt, h, slotv):
    off = vphys(slotv) + h * 4096
    return I(f"ds_read_b64_tr_b16 {ar(abuf(dt) + 2*h, 2)}, v{V_VR[dt]}" + (f" offset:{off}" if off else ""))
def qk_mfma(kt, s, t, first_c):
    c = first_c(t) if s == 0 else vr(Sreg(kt, t))
    return mfma(vr(Sreg(kt, t)), ar(kbuf(kt, s)), vr(qfrag(t, s)), c)
def pv_mfma(dt, t, par):
    return mfma(ar(oacc(dt, t)), ar(abuf(dt)), vr(Preg(par, t)), ar(oacc(dt, t)))
def rs_mfma(t, par):
    return mfma(ar(lacc(t)), ar(A_ONES), vr(Preg(par, t)), ar(lacc(t)))
def cvts(par):
    out = []
    for kt in range(2):
        for t in range(5):
            s = Sreg(kt, t); p = Preg(par, t) + 2 * kt
            out.append(I(f"v_cvt_pk_bf16_f32 v{p}, v{s}, v{s+1}"))
            out.append(I(f"v_cvt_pk_bf16_f32 v{p+1}, v{s+2}, v{s+3}"))
    return out
def exps(kt):
    return [I(f"v_exp_f32 v{Sreg(kt,t)+i}, v{Sreg(kt,t)+i}") for t in range(5) for i in range(4)]

def att_dma(j, dyn=False):
    seq = []
    if j + 4 <= 15:
        pre = II(f"s_add_u32 m0, {S_MK}, {kphys(j + 4)}")
        g = kv_group('K', None, S_SOFFK)
        seq += [(pre, g[0])] + [([], x) for x in g[1:]]
        seq[-1] = (seq[-1][0], seq[-1][1], II(f"s_add_u32 {S_SOFFK}, {S_SOFFK}, 8192"))
    if j + 3 <= 15:
        pre = II(f"s_add_u32 m0, {S_MV}, {vphys(j + 3)}")
        g = kv_group('V', None, S_SOFFV)
        s2 = [(pre, g[0])] + [([], x) for x in g[1:]]
        s2[-1] = (s2[-1][0], s2[-1][1], II(f"s_add_u32 {S_SOFFV}, {S_SOFFV}, 8192"))
        seq += s2
    return seq

def wo_dma(ks, slot_base_imm):
    seq = []
    for gI in range(2):
        pre = II(f"s_lshl_b32 s50, {S_W}, 13", f"s_add_u32 m0, s50, {slot_base_imm + gI*4096}", f"s_mov_b32 s51, {ks*32768 + gI*16384}")
        for n in range(4):
            seq.append((pre if n == 0 else [], dma(V_WOD[n], SRD_WO, "s51", n * 1024, OPT["wont"])))
    return seq

def att_body(j, vmwait, extra_dma=None):
    par_old, par_new = (j - 1) & 1, j & 1
    ms = [pv_mfma(dt, t, par_old) for dt in (5, 6, 7) for t in range(5)] + [rs_mfma(t, par_old) for t in range(5)]
    ms += [qk_mfma(kt, s, t, lambda t: vr(cinit(t))) for kt in range(2) for s in range(4) for t in range(5)]
    ms += [pv_mfma(dt, t, par_new) for dt in range(5) for t in range(5)]
    S = Sched(ms)
    cv = cvts(par_new)
    S.spread(cv, [1, 1, 3, 3, 6, 6, 8, 8, 11, 11, 13, 13, 16, 16, 18, 18, 21, 21, 23, 23])
    S.spread([k_read(kt, s, j + 1) for kt in range(2) for s in range(4)], [0, 2, 5, 7, 10, 12, 15, 17])
    vr_ = [v_read(dt, h, j) for dt in range(8) for h in range(2)]
    S.spread(vr_, [20, 22, 25, 26, 27, 28, 30, 31, 32, 33, 35, 36, 37, 38, 40, 61])
    d = att_dma(j) + (extra_dma or [])
    if j + 4 > 15 and j + 3 <= 15 and not extra_dma:
        put_dmas(S, d, [24, 29, 34, 39])
    else:
        put_dmas(S, d, [4, 9, 14, 19, 24, 29, 34, 39])
    S.spread(exps(0), list(range(41, 61)))
    S.spread(exps(1), list(range(62, 82)))
    seq = S.flat()
    seq, pend = lgkm_waits(seq)
    seq += tr_mark() + II(f"s_waitcnt vmcnt({vmwait}) lgkmcnt(0)") + tr_commit() + II("s_barrier")
    if OPT['verbose']: print(S.report(f"att_body {j}"))
    return seq

WO1 = [192, 200, 208, 216, 224, 228, 232, 236]
def wofrag(ks, m, n=4, off=0):
    if ks == 0: return ar(216 + 4 * m + off, n)
    if ks == 1: return vr(WO1[m] + off, n)
    return ar((ks - 2) * 32 + 4 * m + off, n)
def wo_read(ks, m, h):
    cp, hf = m >> 1, m & 1
    off = (32768 if (ks & 1) == 0 else 0) + hf * 8 + h * 4096
    return I(f"ds_read_b64_tr_b16 {wofrag(ks, m, 2, 2*h)}, v{V_WOR[cp]}" + (f" offset:{off}" if off else ""))

def wo_prefetch():
    n = OPT['pfw']
    L = II(f"s_lshl_b32 s50, {S_B}, 15", f"s_lshl_b32 s51, {S_W}, 13", "s_add_u32 s50, s50, s51")
    nt = " nt" if OPT['pfnt'] else ""
    if n == 8:
        L += II(f"v_lshlrev_b32 v46, 4, {V_LANE}")
        for i in range(8):
            L += II(f"s_add_u32 s51, s50, {i*1024}", f"buffer_load_dwordx4 v[252:255], v46, s[84:87], s51 offen{nt}")
    else:
        sh = {1: 7, 2: 6, 4: 5}[n]
        L += II(f"v_lshlrev_b32 v46, {sh}, {V_LANE}")
        for i in range(n):
            L += II(f"s_add_u32 s51, s50, {i * (64 << sh)}", f"buffer_load_dword v47, v46, s[84:87], s51 offen{nt}")
    return L

def attention():
    L = []; A = lambda *x: L.extend(II(*x))
    L += transition()
    A(stamp("att_start"))
    A(f"s_mov_b32 {S_CNT}, 0")
    bodies = [att_body(j, 16) for j in range(4)]
    hist = bodies[3][-24:]
    A(".p2align 6", "L_att_loop:")
    for b in bodies:
        b2, n = hazards(b, history=hist); L.extend(b2); hist = b2[-24:]
    if OPT['pf'] >= 0:
        A(f"s_cmp_eq_u32 {S_CNT}, {OPT['pf']}", "s_cbranch_scc0 L_att_nopf", wo_prefetch(), "L_att_nopf:")
    A(f"s_add_u32 {S_CNT}, {S_CNT}, 1", f"s_cmp_lt_u32 {S_CNT}, 3", "s_cbranch_scc1 L_att_loop")
    b, n = hazards(att_body(12, 12), history=hist); L.extend(b); hist = b[-24:]
    b, n = hazards(att_body(13, 12, extra_dma=wo_dma(0, WOA)), history=hist); L.extend(b); hist = b[-24:]
    b, n = hazards(att_body(14, 16, extra_dma=wo_dma(1, WOB)), history=hist); L.extend(b); hist = b[-24:]
    A(stamp("att_loop_done"))
    ms = [pv_mfma(dt, t, 0) for dt in (5, 6, 7) for t in range(5)] + [rs_mfma(t, 0) for t in range(5)]
    ms += [pv_mfma(dt, t, 1) for dt in range(8) for t in range(5)] + [rs_mfma(t, 1) for t in range(5)]
    S = Sched(ms)
    S.spread(cvts(1), list(range(0, 20)))
    S.spread([v_read(dt, h, 15) for dt in range(5) for h in range(2)], list(range(0, 10)))
    S.spread([v_read(dt, h, 15) for dt in (5, 6, 7) for h in range(2)], list(range(15, 21)))
    S.put(20, "s_waitcnt vmcnt(8)")
    S.spread([wo_read(0, m, h) for m in range(8) for h in range(2)], [21 + i // 2 for i in range(16)])
    S.put(28, "s_waitcnt vmcnt(0)")
    S.spread([wo_read(1, m, h) for m in range(8) for h in range(2)], [29 + i // 2 for i in range(16)])
    S.put(38, "s_waitcnt lgkmcnt(0)")
    if OPT['fused']:
        S.put(36, f"s_lshl_b32 s50, {S_CL}, 2", f"s_add_u32 s50, s50, {CNTOFF()}")
        S.spread([f"v_lshlrev_b32 v14, 8, {V_LANE}", "v_add_u32 v14, s50, v14"], [37, 37])
        S.put(38, f"buffer_load_dword v15, v14, {SRD_D}, 0 offen sc1")
    put_dmas(S, wo_dma(2, WOA), [41, 44, 47, 50, 54, 57, 60, 63])
    seq, pend = lgkm_waits(S.flat(), final_zero=True)
    seq, n = hazards(seq, history=hist); L.extend(seq)
    A("s_barrier")
    A("s_nop 3")
    A(stamp("att_done"))
    return L

def wo_dma_t(ks):
    d = wo_dma(ks, WOA if (ks & 1) == 0 else WOB)
    for e in d: e[1].tag = f"wo{ks}"
    return d
def wo_reads(ks): return [wo_read(ks, m, h) for m in range(8) for h in range(2)]

LFLAG = 90112

def o_epilogue():
    E = []
    tl = VT[0]; rc = VT[2]
    d3, d4, d5 = wo_dma_t(3), wo_dma_t(4), wo_dma_t(5)
    E += II(f"s_lshl_b32 s51, {S_QH}, 11", f"v_subrev_u32 v{V_OWB}, s51, v{V_OW}", f"v_add_u32 v{V_OW}, s51, v{V_OW}",
            f"s_lshl_b32 s50, {S_U}, 12", f"s_add_u32 s50, s50, 32768", "s_add_u32 s50, s50, s51", f"v_add_u32 v{V_OW4}, s50, v{V_OR}")
    def emit_dma(e):
        return e[0] + II("s_nop 0") * (1 if e[0] else 0) + [e[1]]
    nfr = 0
    for t in range(5):
        E += II(f"v_accvgpr_read_b32 v{tl}, a{lacc(t)}", f"v_rcp_f32 v{rc}, v{tl}", "s_nop 0", f"v_mov_b32 v{rc+1}, v{rc}")
        if t == 0: E += II(f"v_mov_b32 v{VT[1]}, v{tl}")
        else: E += II(f"v_max_f32 v{VT[1]}, v{VT[1]}, v{tl}")
        for ks in range(4 if t < 4 else 2):
            mid = []
            if nfr < 8: mid += emit_dma(d3[nfr])
            if 8 <= nfr < 16: mid += emit_dma(d4[nfr - 8])
            if nfr >= 16:
                for i in range(4): mid += emit_dma(d5[4 * (nfr - 16) + i])
            if OPT.get('x_oenodma'): mid = [x for x in mid if x.kind == 'dma'][:0] + [x for x in mid if x.kind != 'dma']
            rd = []
            if 4 <= nfr < 8:
                if nfr == 4:
                    rd += [VmNeed("wo2")]
                    if OPT['fused']:
                        rd += II("v_readfirstlane_b32 s52, v15", "s_nop 3", "s_cmp_lt_u32 s52, 16", "s_cbranch_scc1 L_cnt_spin", "L_cnt_ok:")
                rd += wo_reads(2)[4 * (nfr - 4): 4 * (nfr - 4) + 4]
            if 12 <= nfr < 16:
                if nfr == 12: rd += [VmNeed("wo3")]
                rd += wo_reads(3)[4 * (nfr - 12): 4 * (nfr - 12) + 4]
            if nfr in (8, 16): E += II("s_waitcnt lgkmcnt(0)")
            E += rd
            for h in range(2):
                for k in range(4):
                    E += II(f"v_accvgpr_read_b32 v{52 + 4*h + k}, a{oacc(2*ks + h, t) + k}")
            E += mid
            for k in range(4): E += II(f"v_pk_mul_f32 {vr(52+2*k,2)}, {vr(52+2*k,2)}, {vr(rc,2)}")
            for k in range(4): E += II(f"v_cvt_pk_bf16_f32 v{60+k}, v{52+2*k}, v{53+2*k}")
            E += II(f"ds_write_b128 v{V_OW if ks < 2 else V_OWB}, {vr(60)} offset:{(t*8+ks)*1024}" if t < 4 else f"ds_write_b128 v{V_OW4}, {vr(60)} offset:{ks*1024}")
            nfr += 1
        if OPT['stamps'] and OPT.get('oest'): E += [Raw("\n  ".join(x.txt for x in stamp(f"oe{t}")))] + II("s_waitcnt lgkmcnt(0)")
    E += II(f"v_cmp_nge_f32 vcc, {hex(OPT['lthr'] or LTHR)}, v{VT[1]}", f"s_lshl_b32 s50, {S_W}, 2", f"s_add_u32 s50, s50, {LFLAG}", f"v_mov_b32 v52, s50",
            "s_cmp_lg_u64 vcc, 0", "s_cselect_b32 s51, 1, 0", "v_mov_b32 v53, s51", "ds_write_b32 v52, v53")
    E, q = vm_waits(E, ["cnt"] + ["wo2"] * 8)
    E, pend = lgkm_waits(E, final_zero=True)
    E, n = hazards(E)
    return E + II("s_barrier"), q

def o_read(dst, t, ks):
    if t < 8: return I(f"ds_read_b128 {vr(dst)}, v{V_OR} offset:{(t*8+ks)*1024}")
    return I(f"ds_read_b128 {vr(dst)}, v{V_OR8} offset:{ks*1024}")
V_PSC = [196, 197, 198, 199]
V_OWNA = 204; S_OWN = "s49"
OWNB = 73728
OWN_OOL = []
def pstore(src, t, cp):
    v = V_PSC[cp] if OPT['own'] else V_PS
    return (II(f"s_add_u32 s51, {S_SOFFP}, {(cp*9 + t)*16384}"),
            I(f"buffer_store_dwordx4 {vr(src)}, v{v}, {SRD_P}, s51 offen {OPT['pst']}"))
def own_hook(src, t, cp):
    if not OPT['own']: return []
    OWN_OOL.extend(II(f"L_own_{t}_{cp}:", f"ds_write_b128 v{V_OWNA}, {vr(src)} offset:{t*1024}", f"s_branch L_ownb_{t}_{cp}"))
    return II(f"s_cmp_eq_u32 {S_OWN}, {cp}", f"s_cbranch_scc1 L_own_{t}_{cp}", f"L_ownb_{t}_{cp}:")

NP1 = 2
def acc1(t, m): return 64 + (t * 8 + m) * 4
def acc2(t, m): return 128 + ((t & 1) * 8 + m) * 4
def bfr1(par, t): return 2 + (par * 4 + t) * 4
STG = [48, 52, 56, 60]

def tile_epilogue(accf, t, k0):
    out = []
    for cp in range(4):
        a0, a1 = accf(t, 2*cp), accf(t, 2*cp + 1)
        d = STG[(k0 + cp) & 3]
        cv = II(f"v_cvt_pk_bf16_f32 v{d}, v{a0}, v{a0+1}", f"v_cvt_pk_bf16_f32 v{d+1}, v{a0+2}, v{a0+3}",
                f"v_cvt_pk_bf16_f32 v{d+2}, v{a1}, v{a1+1}", f"v_cvt_pk_bf16_f32 v{d+3}, v{a1+2}, v{a1+3}")
        pre, st = pstore(d, t, cp)
        if OPT.get('x_nost') and not (t == 8 and cp == 3): st = I("s_nop 0")
        st.tag = f"st{t}"
        out.append((cv, (pre, st), own_hook(d, t, cp)))
    return out

def out_proj(queue):
    L = []; A = lambda *x: L.extend(II(*x))
    A(f"s_mul_i32 {S_SOFFP}, {S_W}, {4*9*16384}")
    OWN_OOL.clear()
    if OPT['own']:
        A(f"s_lshr_b32 s50, {S_HP}, 2", f"s_and_b32 s51, {S_HP}, 3", f"s_cmp_eq_u32 s50, {S_W}", f"s_cselect_b32 {S_OWN}, s51, 7")
        for cp in range(4):
            A(f"s_cmp_eq_u32 {S_OWN}, {cp}", "s_cselect_b32 s50, 0x40000000, 0", f"v_or_b32 v{V_PSC[cp]}, s50, v{V_PS}")
        A(f"v_add_u32 v{V_OWNA}, {OWNB}, v{V_OR}")
    NP = OPT['np1']
    G = 8 * NP
    ms = [mfma(vr(acc1(t, m)), wofrag(ks, m), vr(bfr1(ks & 1, t)), ("0" if ks == 0 else vr(acc1(t, m)))) for ks in range(8) for m in range(8) for t in range(NP)]
    bt = lambda ks: 2 + 4 * ks
    P1 = len(ms)
    for t in range(NP, 9):
        ms += [mfma(vr(acc2(t, m)), wofrag(ks, m), vr(bt(ks)), ("0" if ks == 0 else vr(acc2(t, m)))) for ks in range(8) for m in range(8)]
    S = Sched(ms)
    def reads(ks, g0): S.spread(wo_reads(ks), [g0 + i // 2 for i in range(16)])
    def dmas(ks, g0, step=4): put_dmas(S, wo_dma_t(ks), [g0 + step * i for i in range(8)])
    def put_free(ins, g0):
        g = g0
        while S.cost(g) + COST[ins.kind] > 8: g += 1
        S.put(g, ins); return g
    def epi(t, accf, g0, stride):
        for cp, (cv, (spre, st), hook) in enumerate(tile_epilogue(accf, t, 0)):
            g = g0 + cp * stride
            S.spread(cv, [g, g, g + 1, g + 1])
            for p in spre: S.put(g + 1, p)
            for p in hook: S.put(g + 2, p)
            S.put(g + 2, st)
    if NP == 2:
        pre = [o_read(bfr1(0, t), t, 0) for t in range(NP)]
        S.put(0, VmNeed("wo4")); reads(4, 0)
        S.put(9, "s_waitcnt lgkmcnt(0)"); dmas(6, 11, 3)
        S.put(33, VmNeed("wo5")); reads(5, 33)
        S.put(42, "s_waitcnt lgkmcnt(0)"); dmas(7, 44, 3)
        S.put(84, VmNeed("wo6")); reads(6, 84)
        S.put(100, VmNeed("wo7")); reads(7, 100)
        for ks in range(7):
            g = ks * G + (1 if ks else 8)
            for t in range(NP):
                g = put_free(o_read(bfr1((ks + 1) & 1, t), t, ks + 1), g) + 1
            assert g <= (ks + 1) * G - 3, (ks, g)
        g = 6 * G + 4
        for ks in (2, 3, 6, 7): g = put_free(o_read(bt(ks), NP, ks), g) + 1
        g = 7 * G + 1
        for ks in (0, 1): g = put_free(o_read(bt(ks), NP, ks), g) + 1
        base = P1
        for ks in (4, 5): put_free(o_read(bt(ks), NP, ks), base + 1)
        epi(0, acc1, base + 4, 7); epi(1, acc1, base + 32, 7)
    else:
        assert NP == 0
        pre = [o_read(bt(ks), 0, ks) for ks in range(8)]
        S.put(0, VmNeed("wo4")); reads(4, 0)
        S.put(9, "s_waitcnt lgkmcnt(0)"); dmas(6, 11, 2)
        S.put(10, VmNeed("wo5"));
        S.spread(wo_reads(5), [12, 12, 14, 14, 16, 16, 18, 18, 20, 20, 22, 22, 24, 24, 26, 26])
        S.put(28, "s_waitcnt lgkmcnt(0)"); dmas(7, 30, 2)
        S.put(46, VmNeed("wo6")); S.spread(wo_reads(6), [46, 46, 46, 46] + [47 + i // 4 for i in range(12)])
        S.put(54, VmNeed("wo7")); S.spread(wo_reads(7), [54, 54, 54, 54] + [55 + i // 12 for i in range(12)])
    for t in range(NP, 9):
        b = P1 + (t - NP) * 64
        if t > NP: epi(t - 1, acc2, b + 6, 12)
        if t < 8:
            for ks in range(8):
                g = b + 8 * ks + 8
                if g >= b + 64: g = b + 64 + 1
                put_free(o_read(bt(ks), t + 1, ks), g)
    if OPT['fused']:
        g0 = P1 + (3 - NP) * 64 + 49
        S.put(g0, f"s_lshl_b32 s50, {S_W}, 7", f"s_lshl_b32 s52, {S_HP}, 2", "s_add_u32 s50, s50, s52")
        S.spread([f"v_lshlrev_b32 v36, 13, {V_LANE}", "v_add_u32 v36, s50, v36", "v_mov_b32 v37, 1"], [g0 + 1, g0 + 1, g0 + 2])
        S.put(g0 + 3, f"s_lshr_b32 s50, {S_HP}, 2", "s_lshl_b32 s50, s50, 7")
        S.spread([f"v_lshrrev_b32 v46, 4, {V_LANE}", "v_lshlrev_b32 v46, 9, v46", f"v_and_b32 v47, 15, {V_LANE}",
                  "v_lshl_add_u32 v46, v47, 2, v46", "v_add_u32 v46, s50, v46"], [g0 + 4, g0 + 4, g0 + 5, g0 + 9, g0 + 9])
        b = P1 + (8 - NP) * 64
        fa = I(f"buffer_store_dword v37, v36, {SRD_F}, 0 offen sc1"); fa.tag = "fl"
        if OPT['early']:
            S.put(b + 40, VmNeed("st3")); S.put(b + 41, fa)
            pl = I(f"buffer_load_dword v47, v46, {SRD_F}, 0 offen sc1"); pl.tag = "poll"
            S.put(b + 60, pl)
    if OPT['stamps'] and OPT.get('opst'):
        for nm, g in (("w1", 127), ("w3", 255), ("w5", 383), ("w8", 575)):
            S.put(g, Raw("\n  ".join(x.txt for x in stamp(nm))))
            S.put(g, "s_waitcnt lgkmcnt(0)")
    pre = II(f"v_mov_b32 v56, {LFLAG}", f"ds_read_b128 {vr(52)}, v56") + pre
    pre += II("s_waitcnt lgkmcnt(0)", "v_or3_b32 v52, v52, v53, v54", "v_or_b32 v52, v52, v55", "s_nop 0", "v_readfirstlane_b32 s50, v52", "s_nop 3",
              f"s_andn2_b32 s50, s50, {S_SAFE}", "s_cmp_lg_u32 s50, 0", "s_cbranch_scc1 L_restart")
    seq = pre + S.flat()
    tail = II("s_nop 7")
    for cp, (cv, (spre, st), hook) in enumerate(tile_epilogue(acc2, 8, 0)):
        tail += cv + spre + hook + [st]
    if OPT['stamps'] and OPT.get('opst'): tail += stamp("st_iss")
    if OPT['fused']:
        fb = I(f"buffer_store_dword v37, v36, {SRD_F}, 0 offen offset:512 sc1"); fb.tag = "fl"
        fc = I(f"buffer_store_dword v37, v36, {SRD_F}, 0 offen offset:1024 sc1"); fc.tag = "fl"
        tail += [VmNeed("poll"), fb, VmNeed("st8"), fc] if OPT['early'] else [VmNeed("st8"), fa, fb, fc]
    seq, q = vm_waits(seq + tail, queue)
    seq, pend = lgkm_waits(seq)
    seq, n = hazards(seq)
    if OPT['verbose']: print(S.report("out_proj"), "nops", n)
    L += seq
    return L, q

SPIN = 1 << 22
def reduce_phase():
    L = []; A = lambda *x: L.extend(II(*x))
    DAT = lambda g, tt, k: 64 + ((g * 2 + tt) * 4 + k) * 4
    D8 = lambda k: 192 + 4 * k
    ACC = lambda g, tt: [208, 216, 224, 232, 240, 248, 2, 10][g * 2 + tt]
    A8 = 18
    T0, T1 = 26, 28
    V_POLL, V_FL, V_L16, V_OUT = 46, 47, 32, 33
    A(f"v_lshrrev_b32 v30, 4, {V_LANE}", f"v_and_b32 v31, 15, {V_LANE}", f"v_lshlrev_b32 v{V_L16}, 4, {V_LANE}",
      f"v_lshlrev_b32 v{V_OUT}, 11, v31", f"v_lshl_add_u32 v{V_OUT}, v30, 4, v{V_OUT}")
    A(f"s_mul_i32 s32, {S_B}, {144*2048}", f"s_lshl_b32 s50, {S_BR}, 10", "s_add_u32 s32, s32, s50", f"s_lshl_b32 s50, {S_HP}, 6", "s_add_u32 s32, s32, s50")
    A(f"s_mul_i32 s33, {S_HP}, {9*16384}")
    A(f"s_lshl_b32 s50, {S_W}, 14", "s_add_u32 s34, s33, s50", "s_add_u32 s35, s34, 65536",
      f"s_add_u32 s36, s33, {8*16384}", f"s_lshl_b32 s50, {S_W}, 12", "s_add_u32 s36, s36, s50",
      f"s_lshl_b32 s41, {S_W}, 2")
    A("s_mov_b32 s37, 0", "s_mov_b32 s38, 0", f"s_mov_b32 s53, {SPIN}")
    if OPT['own']:
        A(f"s_lshr_b32 s46, {S_HP}, 2", f"s_and_b32 s47, {S_HP}, 3", f"s_lshl_b32 s50, {S_W}, 10", f"s_add_u32 s50, s50, {OWNB}", f"v_add_u32 v44, s50, v{V_L16}",
          "s_waitcnt lgkmcnt(0)", "s_barrier", "ds_read_b128 v[36:39], v44", "ds_read_b128 v[40:43], v44 offset:4096")
    def unpack_add(acc, src, first):
        out = []
        for k in range(4):
            if first:
                out += [f"v_lshlrev_b32 v{acc+2*k}, 16, v{src+k}", f"v_and_b32 v{acc+2*k+1}, 0xffff0000, v{src+k}"]
            else:
                t = (T0, T1)[k & 1]
                out += [f"v_lshlrev_b32 v{t}, 16, v{src+k}", f"v_and_b32 v{t+1}, 0xffff0000, v{src+k}",
                        f"v_pk_add_f32 v[{acc+2*k}:{acc+2*k+1}], v[{acc+2*k}:{acc+2*k+1}], v[{t}:{t+1}]"]
        return out
    items = [(tt, g) for tt in range(2) for g in range(4)] + [(2, None)]
    if OPT['early']: A("s_branch L_red_first")
    A("L_red_loop:")
    A("s_cmp_eq_u32 s37, 0x1ff", "s_cbranch_scc1 L_red_nopoll")
    A(f"buffer_load_dword v{V_FL}, v{V_POLL}, {SRD_F}, 0 offen sc1")
    A("L_red_nopoll:", "s_waitcnt vmcnt(0)")
    A("s_andn2_b32 s42, s37, s38")
    for i, (tt, g) in enumerate(items):
        A(f"s_bitcmp1_b32 s42, {i}", f"s_cbranch_scc0 L_red_nosum{i}")
        for k in range(4):
            A(unpack_add(ACC(g, tt), DAT(g, tt, k), k == 0) if tt < 2 else unpack_add(A8, D8(k), k == 0))
        A(f"L_red_nosum{i}:")
    A("s_mov_b32 s38, s37", "s_cmp_eq_u32 s38, 0x1ff", "s_cbranch_scc1 L_red_done")
    A("L_red_first:")
    A(f"v_cmp_eq_u32 vcc, 1, v{V_FL}", "s_nop 3", "s_mov_b32 s39, vcc_lo", "s_lshr_b32 s43, vcc_hi, s41", "s_and_b32 s43, s43, 15", "s_mov_b32 s40, s37")
    A("s_sub_u32 s53, s53, 1", "s_cmp_eq_u32 s53, 0", "s_cselect_b32 s39, -1, s39", "s_cselect_b32 s43, 15, s43", "s_cselect_b32 s53, 1, s53")
    for i, (tt, g) in enumerate(items):
        A(f"s_bitcmp1_b32 s37, {i}", f"s_cbranch_scc1 L_red_noiss{i}")
        if tt < 2:
            A(f"s_bfe_u32 s50, s39, {hex((4 << 16) | (16 * tt + 4 * g))}", "s_cmp_eq_u32 s50, 15")
        else:
            A("s_cmp_eq_u32 s43, 15")
        A(f"s_cbranch_scc0 L_red_noiss{i}")
        if tt < 2: A(f"s_add_u32 s50, s{34+tt}, {g*4096}")
        if OPT['own']:
            A(f"s_cmp_eq_u32 s46, {g}" if tt < 2 else f"s_cmp_eq_u32 s46, {S_W}", "s_cselect_b32 s44, s47, 7")
        for k in range(4):
            o = f" offset:{k*1024}" if k else ""
            va = V_L16
            if OPT['own']:
                A(f"s_cmp_eq_u32 s44, {k}", "s_cselect_b32 s45, 0x40000000, 0", f"v_or_b32 v45, s45, v{V_L16}"); va = 45
            if tt < 2: A(f"buffer_load_dwordx4 {vr(DAT(g, tt, k))}, v{va}, {SRD_P}, s50 offen{o} {OPT['rld']}")
            else: A(f"buffer_load_dwordx4 {vr(D8(k))}, v{va}, {SRD_P}, s36 offen{o} {OPT['rld']}")
        A(f"s_bitset1_b32 s37, {i}", f"L_red_noiss{i}:")
    A("s_cmp_lg_u32 s37, s40", "s_cbranch_scc1 L_red_loop", f"s_sleep {OPT['psleep']}", "s_branch L_red_loop")
    A("L_red_done:")
    A(f"s_lshl_b32 s50, {S_W}, 11", f"v_lshlrev_b32 v30, 5, {V_LANE}", f"v_add_u32 v30, {WOB}, v30", "v_add_u32 v31, s50, v30",
      f"ds_write_b128 v31, {vr(A8)}", f"ds_write_b128 v31, {vr(A8+4)} offset:16")
    for tt in range(2):
        a0 = ACC(0, tt)
        for g in range(1, 4):
            for k in range(4): A(f"v_pk_add_f32 v[{a0+2*k}:{a0+2*k+1}], v[{a0+2*k}:{a0+2*k+1}], v[{ACC(g,tt)+2*k}:{ACC(g,tt)+2*k+1}]")
        if OPT['own']: A("s_waitcnt lgkmcnt(2)" if tt == 0 else "s_nop 0", unpack_add(a0, 36 + 4 * tt, False))
        for k in range(4): A(f"v_cvt_pk_bf16_f32 v{64+4*tt+k}, v{a0+2*k}, v{a0+2*k+1}")
        A(f"s_lshl_b32 s50, {S_W}, 15", f"s_add_u32 s50, s50, s32", f"s_add_u32 s50, s50, {tt*4*32768}")
        A(f"buffer_store_dwordx4 {vr(64+4*tt)}, v{V_OUT}, {SRD_O}, s50 offen {OPT['ost']}")
    A("s_waitcnt lgkmcnt(0)", "s_barrier", f"s_cmp_eq_u32 {S_W}, 0", "s_cbranch_scc0 L_red_end")
    for g in range(4):
        A(f"ds_read_b128 {vr(80+8*g)}, v30 offset:{g*2048}", f"ds_read_b128 {vr(84+8*g)}, v30 offset:{g*2048+16}")
    if OPT['own']: A("ds_read_b128 v[36:39], v44 offset:8192")
    A("s_waitcnt lgkmcnt(0)")
    for g in range(1, 4):
        for k in range(4): A(f"v_pk_add_f32 v[{80+2*k}:{81+2*k}], v[{80+2*k}:{81+2*k}], v[{80+8*g+2*k}:{81+8*g+2*k}]")
    if OPT['own']: A(unpack_add(80, 36, False))
    for k in range(4): A(f"v_cvt_pk_bf16_f32 v{72+k}, v{80+2*k}, v{81+2*k}")
    A(f"s_add_u32 s50, s32, {8*32768}")
    A(f"buffer_store_dwordx4 {vr(72)}, v{V_OUT}, {SRD_O}, s50 offen {OPT['ost']}")
    A("L_red_end:")
    L2, n = hazards(L)
    return L2

def dump_regs(regs, slot, kind='v'):
    L = []; A = lambda *x: L.extend(II(*x))
    A("s_add_u32 s66, s58, 0x4000000", "s_addc_u32 s67, s59, 0",
      "s_lshl_b32 s50, s2, 2", f"s_add_u32 s50, s50, {S_W}", "s_lshl_b32 s50, s50, 16",
      f"v_lshlrev_b32 v253, 2, {V_LANE}", "v_add_u32 v253, s50, v253")
    for i, r in enumerate(regs):
        if kind == 'a':
            A(f"v_accvgpr_read_b32 v254, a{r}", "s_nop 0")
            A(f"global_store_dword v253, v254, s[66:67]")
        else:
            A(f"global_store_dword v253, v{r}, s[66:67]")
        A("v_add_u32 v253, 256, v253")
    A("s_waitcnt vmcnt(0)")
    return L

def main_kernel():
    L = []
    L += setup()
    L += stamp("start")
    L += phase_q()
    L += stamp("q_done")
    if OPT['dump'] == 'q':
        L += II("s_nop 7") + dump_regs([qfrag(t, s) + k for t in range(5) for s in range(4) for k in range(4)], 0)
        L += II("s_waitcnt vmcnt(0)", "s_endpgm")
    L += attention()
    if OPT['dump'] == 'o':
        L += II("s_nop 7") + dump_regs([oacc(dt, t) + k for t in range(5) for dt in range(8) for k in range(4)] + [lacc(t) for t in range(5)], 0, 'a')
        L += II("s_waitcnt vmcnt(0)", "s_endpgm")
    e, q = o_epilogue(); L += e
    L += stamp("o_done")
    e, q = out_proj(q); L += e
    L += stamp("op_done")
    if OPT['fused']:
        L += reduce_phase()
        L += stamp("red_done")
    L += tr_dump()
    L += II("s_waitcnt vmcnt(0)")
    L += stamp("end")
    L += stamp_dump()
    L += II("L_main_end:", "s_endpgm")
    L += OWN_OOL
    L += safe_paths()
    return L

def reduce_kernel():
    L = []; A = lambda *x: L.extend(II(*x))
    A("s_cmp_ge_u32 s2, 256", "s_cbranch_scc1 L_red_end")
    A("s_load_dwordx2 s[4:5], s[0:1], 80", "s_load_dwordx2 s[6:7], s[0:1], 96")
    A("v_lshrrev_b32 v2, 6, v0", "v_and_b32 v1, 63, v0", "s_nop 0", "v_readfirstlane_b32 s12, v2", "s_nop 3")
    A("s_waitcnt lgkmcnt(0)")
    A("s_mul_i32 s13, s2, 9", "s_add_u32 s13, s13, s12", "s_lshl_b32 s13, s13, 14")
    A("s_add_u32 s16, s6, s13", "s_addc_u32 s17, s7, 0", "s_and_b32 s17, s17, 0xffff", "s_mov_b32 s18, 16384", "s_mov_b32 s19, 0x20000")
    A("v_lshlrev_b32 v2, 4, v1")
    for p in range(16):
        A(f"buffer_load_dwordx4 v[{8+4*p}:{11+4*p}], v2, s[16:19], 0 offen offset:{(p%4)*1024}" if p < 4 else
          f"buffer_load_dwordx4 v[{8+4*p}:{11+4*p}], v2, s[16:19], s{20+p//4} offen offset:{(p%4)*1024}")
        if p == 3: A("s_mov_b32 s21, 4096", "s_mov_b32 s22, 8192", "s_mov_b32 s23, 12288")
    A("s_lshr_b32 s14, s2, 4", "s_and_b32 s15, s2, 15",
      "s_and_b32 s24, s14, 7", "s_lshr_b32 s25, s14, 3",
      "s_mul_i32 s24, s24, 144", "s_lshl_b32 s26, s12, 4", "s_add_u32 s24, s24, s26", "s_lshl_b32 s24, s24, 11",
      "s_lshl_b32 s25, s25, 10", "s_lshl_b32 s15, s15, 6", "s_add_u32 s24, s24, s25", "s_add_u32 s24, s24, s15")
    A("v_and_b32 v3, 15, v1", "v_lshlrev_b32 v3, 11, v3", "v_lshrrev_b32 v4, 4, v1", "v_lshl_add_u32 v3, v4, 4, v3")
    A("s_mov_b32 s28, s4", "s_and_b32 s29, s5, 0xffff", "s_mov_b32 s30, 2359296", "s_mov_b32 s31, 0x20000")
    acc = 80
    for p in range(16):
        A(f"s_waitcnt vmcnt({15-p})")
        for k in range(4):
            r = 8 + 4 * p + k
            if p == 0:
                A(f"v_lshlrev_b32 v{acc+2*k}, 16, v{r}", f"v_and_b32 v{acc+2*k+1}, 0xffff0000, v{r}")
            else:
                A(f"v_lshlrev_b32 v6, 16, v{r}", f"v_and_b32 v7, 0xffff0000, v{r}",
                  f"v_add_f32 v{acc+2*k}, v{acc+2*k}, v6", f"v_add_f32 v{acc+2*k+1}, v{acc+2*k+1}, v7")
    for k in range(4): A(f"v_cvt_pk_bf16_f32 v{8+k}, v{acc+2*k}, v{acc+2*k+1}")
    A("buffer_store_dwordx4 v[8:11], v3, s[28:31], s24 offen")
    A("s_waitcnt vmcnt(0)")
    A("L_red_end:", "s_endpgm")
    return L

def kernel_text(name, body, vgpr, accum, sgpr=102):
    return f""".globl {name}
.p2align 8
.type {name},@function
{name}:
{text(body)}
"""
def kd(name, nfv, accum, sgpr=102):
    return f""".amdhsa_kernel {name}
  .amdhsa_next_free_vgpr {nfv}
  .amdhsa_next_free_sgpr {sgpr}
  .amdhsa_accum_offset {accum}
  .amdhsa_group_segment_fixed_size 0
  .amdhsa_kernarg_size 104
  .amdhsa_user_sgpr_count 2
  .amdhsa_user_sgpr_kernarg_segment_ptr 1
  .amdhsa_system_sgpr_workgroup_id_x 1
.end_amdhsa_kernel
"""

def build():
    stamp_id[0] = 0; STAMPS.clear()
    k1 = NAME + "_kernel"; k2 = "reduce_heads_kernel"
    m = main_kernel()
    hdr = "; fused q-projection + attention + out-projection; the 16 head-pair partials of an output slice are summed by its owner\n"
    if OPT['fused']:
        hdr += f"; @launch grid=(256,1,1) block=(256,1,1) lds=163840\n"
    else:
        hdr += f"; @launch kernel={k1} grid=(256,1,1) block=(256,1,1) lds=163840\n"
        hdr += f"; @launch kernel={k2} grid=(256,1,1) block=(576,1,1) lds=0\n"
    s = hdr + '.amdgcn_target "amdgcn-amd-amdhsa--gfx950"\n.text\n'
    s += kernel_text(k1, m, 512, 256)
    if not OPT['fused']: s += kernel_text(k2, reduce_kernel(), 96, 96)
    s += '.section .rodata,"a"\n.p2align 6\n' + kd(k1, 512, 256)
    if not OPT['fused']: s += ".p2align 6\n" + kd(k2, 96, 96, 40)
    return s

if __name__ == "__main__":
    ap = argparse.ArgumentParser()
    ap.add_argument("-o", default="cdna_kernels/" + NAME + ".s")
    ap.add_argument("--dump"); ap.add_argument("--stamps", action="store_true"); ap.add_argument("-v", action="store_true")
    ap.add_argument("--opt", action="append", default=[])
    a = ap.parse_args()
    OPT['dump'] = a.dump; OPT['stamps'] = a.stamps; OPT['verbose'] = a.v
    for o in a.opt:
        k, v = o.split("=", 1)
        OPT[k] = {'True': True, 'False': False}.get(v, int(v) if v.lstrip('-').isdigit() else v)
    s = build()
    open(a.o, "w").write(s)
    if a.stamps:
        import json; json.dump(STAMPS, open(a.o + ".stamps.json", "w"))
    print("wrote", a.o, len(s), "bytes")
```

```python
import sys, argparse
from ir import *

NAME = "concat_heads__gqa_block_cached__mha_block_cached__near_ridge"
OPT = dict(wsoff=0, own=True, early=True, l2pf=False, np1=2, pfw=1, pfkv=0, pfkvnt=False, psleep=8, ost='', lthr=0, start2=True, pf=2, pfnt=False, fused=True, rld='sc1', rot=True, wnt=False, xnt=False, wont=False, bursts=(3, 6, 9), dump=None, stamps=False, stop=None, kvnt=True, pst="sc1", verbose=False)

VB = 0
KB = 65536
WB = 16384
XB = 114688
WOA = 131072
WOB = 98304
OB = 0
def kphys(k): return ((k + 1) & 3) * 16384
def vphys(k): return (k & 3) * 16384

SRD_X, SRD_WQ, SRD_K, SRD_V, SRD_WO, SRD_P = "s[4:7]", "s[8:11]", "s[12:15]", "s[16:19]", "s[20:23]", "s[24:27]"
SRD_F, SRD_D, SRD_O = "s[68:71]", "s[72:75]", "s[80:83]"
S_W, S_U, S_QH, S_CNT = "s28", "s29", "s30", "s31"
S_SOFFX, S_SOFFW0, S_UNUSED, S_MW, S_MX, S_DSLOT, S_RSLOT, S_DW, S_DX = "s32", "s33", "s34", "s35", "s36", "s37", "s38", "s39", "s40"
S_BW, S_BX = "s41", "s42"
S_SOFFK, S_SOFFV, S_MK, S_MV = "s45", "s46", "s47", "s48"
S_T0, S_T1, S_T2, S_T3 = "s50", "s51", "s52", "s53"
S_HP, S_B, S_BR, S_CL = "s54", "s55", "s56", "s57"
S_WS = "s[58:59]"
S_SOFFP = "s60"
S_STAMP = "s[62:63]"
S_FLAG = "s64"
S_SAFE = "s61"
S_BX3 = "s38"
LTHR = 0x4b800000
S_KS, S_X0, S_W0 = "s88", "s89", "s87"
S_TAU, S_TB, S_TQ, S_T4N, S_TMASK, S_TSH, S_TM, S_TS = "s78", "s79", "s43", "s44", "s34", "s49", "s61", "s95"

V_LANE = "v1"
V_WQR = [2, 3, 4, 5]; V_XR = 6; V_XR4 = 14; V_OW4 = 50; V_OWB = 51
V_WQD = [7, 8, 9, 10]; V_XD = [11, 12, 13]; V_TG, V_TI, V_TB, V_TV = 14, 15, 62, 63
V_KD = [16, 17, 18, 19]; V_VD = [20, 21]
V_KR = [22, 23, 24, 25]; V_VR = [26 + i for i in range(8)]
V_WOD = [34, 35, 36, 37]; V_WOR = [38, 39, 40, 41]
V_OW, V_OR, V_OR8, V_PS = 42, 43, 44, 45
VT = [46 + i for i in range(18)]
RB = 64
def grp(t, s): return RB + (t * 4 + s) * 8
def qacc(dt, t): return grp(t, dt >> 1) + 4 * (dt & 1)
def qfrag(t, s): return grp(t, s)
def Sreg(kt, t): return grp(t, kt) + 4
def Preg(par, t): return grp(t, 2 + par) + 4
def cinit(t): return 224 + 4 * t
V_C0, V_C1 = 244, 245
def vr(b, n=4): return f"v[{b}:{b+n-1}]"
def ar(b, n=4): return f"a[{b}:{b+n-1}]"
def oacc(dt, t): return t * 32 + dt * 4
def lacc(t): return 160 + 4 * t
A_ONES = 180
def abuf(i): return 184 + 4 * i
def bbuf(t): return [48, 52, 56, 60, 248][t]
def kbuf(kt, s): return 216 + 4 * (kt * 4 + s)

MF = "v_mfma_f32_16x16x32_bf16"
def mfma(d, a, b, c): return I(f"{MF} {d}, {a}, {b}, {c}")
SCALE = (128 ** -0.5) * 1.4426950408889634
import struct
def f2u(x): return struct.unpack("<I", struct.pack("<f", x))[0]

def NT(): return " nt" if OPT['kvnt'] else ""

def CNTOFF(): return 128 if OPT.get('dbgst') is not None else 0
stamp_id = [0]
def stamp(name):
    if not OPT['stamps']: return []
    i = stamp_id[0]; stamp_id[0] += 1
    STAMPS.append(name)
    return II("s_memrealtime s[66:67]", "s_memtime s[64:65]", "s_waitcnt lgkmcnt(0)",
              f"v_writelane_b32 v0, s66, {i}", f"v_writelane_b32 v0, s64, {32 + i}")
def stamp_dump():
    if not OPT['stamps']: return []
    if OPT.get('dbgst') is not None:
        return II(f"s_cmp_eq_u32 s2, {OPT['dbgst']}", "s_cbranch_scc0 L_nodbg", f"s_cmp_eq_u32 {S_W}, 0", "s_cbranch_scc0 L_nodbg",
                  "v_readlane_b32 s50, v0, 0", "s_nop 3", "v_subrev_u32 v0, s50, v0",
                  f"v_lshlrev_b32 v1, 2, {V_LANE}", "v_cmp_gt_u32 vcc, 16, v1", f"v_lshrrev_b32 v2, 2, v1", "v_mov_b32 v3, 0x1000", "v_cmp_gt_u32 vcc, 16, v2", "s_nop 1",
                  "v_cndmask_b32 v1, v3, v1, vcc", f"buffer_store_dword v0, v1, {SRD_D}, 0 offen", "L_nodbg:")
    return II("s_add_u32 s62, s58, 0x8000000", "s_addc_u32 s63, s59, 0", "s_lshl_b32 s65, s2, 2", f"s_add_u32 s65, s65, {S_W}", "s_lshl_b32 s65, s65, 8",
              f"v_lshlrev_b32 v1, 2, {V_LANE}", "v_add_u32 v1, s65, v1", "global_store_dword v1, v0, s[62:63]")
STAMPS = []

def setup():
    L = []
    A = lambda *x: L.extend(II(*x))
    A("s_cmp_ge_u32 s2, 256", "s_cbranch_scc1 L_main_end")
    A("s_load_dwordx8 s[68:75], s[0:1], 0", "s_load_dwordx2 s[76:77], s[0:1], 32",
      "s_load_dwordx8 s[80:87], s[0:1], 40", "s_load_dwordx2 s[88:89], s[0:1], 72",
      f"s_load_dwordx2 {S_WS}, s[0:1], 96", "s_load_dwordx4 s[96:99], s[0:1], 80")
    A("s_and_b32 s50, s2, 7", "s_lshr_b32 s51, s2, 3",
      f"s_lshr_b32 {S_BR}, s50, 2",
      "s_and_b32 s52, s50, 3", "s_lshl_b32 s52, s52, 2", "s_and_b32 s53, s51, 3", f"s_add_u32 {S_HP}, s52, s53",
      f"s_lshr_b32 {S_B}, s51, 2",
      f"s_lshl_b32 s52, {S_BR}, 3", f"s_add_u32 {S_CL}, s52, {S_B}")
    A("v_lshrrev_b32 v46, 6, v0", f"v_and_b32 {V_LANE}, 63, v0", "s_nop 0", f"v_readfirstlane_b32 {S_W}, v46", "s_nop 3")
    A(f"s_lshr_b32 {S_U}, {S_W}, 1", f"s_and_b32 {S_QH}, {S_W}, 1", f"s_mov_b32 {S_SAFE}, 0")
    A(lane_consts_q())
    A("s_waitcnt lgkmcnt(0)")
    A(f"s_cmp_eq_u32 {S_BR}, 1")
    for i in range(8): A(f"s_cselect_b32 s{68+i}, s{80+i}, s{68+i}")
    A("s_cselect_b32 s76, s88, s76", "s_cselect_b32 s77, s89, s77")
    def srd(dst, lo, hi, off_expr_regs, nrec):
        A(f"s_add_u32 s{dst}, s{lo}, s50", f"s_addc_u32 s{dst+1}, s{hi}, 0", f"s_and_b32 s{dst+1}, s{dst+1}, 0xffff")
        A(nrec, f"s_mov_b32 s{dst+3}, 0x20000")
    A(f"s_mul_i32 s50, {S_B}, 147456"); srd(4, 68, 69, None, "s_mov_b32 s6, 147456")
    A(f"s_lshl_b32 s50, {S_HP}, 9"); srd(8, 74, 75, None, "s_sub_u32 s10, 4194304, s50")
    A(f"s_lshl_b32 s50, {S_B}, 5", f"s_lshl_b32 s51, {S_HP}, 1", "s_add_u32 s50, s50, s51", f"s_add_u32 s50, s50, {S_U}", "s_lshl_b32 s50, s50, 17")
    srd(12, 70, 71, None, "s_mov_b32 s14, 131072")
    srd(16, 72, 73, None, "s_mov_b32 s18, 131072")
    A(f"s_lshl_b32 s50, {S_HP}, 18", f"s_lshl_b32 s51, {S_W}, 8", "s_add_u32 s50, s50, s51")
    A("s_sub_u32 s52, 262144, s51")
    srd(20, 76, 77, None, "s_mov_b32 s22, s52")
    A(f"s_lshl_b32 s50, {S_HP}, 18"); srd(84, 76, 77, None, "s_mov_b32 s86, 262144")
    A(f"s_mul_i32 s50, {S_CL}, 2359296", f"s_add_u32 s50, s50, {hex(OPT['wsoff'])}"); srd(24, 58, 59, None, "s_mov_b32 s26, 2359296")
    if OPT['fused']:
        A(f"s_mul_i32 s50, {S_CL}, 4608", f"s_add_u32 s50, s50, {hex(OPT['wsoff'] + 0x2400000 + 0x40000)}"); srd(68, 58, 59, None, "s_mov_b32 s70, 4608")
        A("s_mov_b32 s72, s98", "s_and_b32 s73, s99, 0xffff", "s_mov_b32 s74, 256", "s_mov_b32 s75, 0x20000")
        A("s_mov_b32 s80, s96", "s_and_b32 s81, s97, 0xffff", "s_mov_b32 s82, 2359296", "s_mov_b32 s83, 0x20000")
        A(f"s_lshl_b32 s50, {S_W}, 7", f"s_lshl_b32 s51, {S_HP}, 2", "s_add_u32 s50, s50, s51",
          f"v_lshlrev_b32 v46, 9, {V_LANE}", "v_add_u32 v46, s50, v46", "v_mov_b32 v47, 0",
          f"buffer_store_dword v47, v46, {SRD_F}, 0 offen sc1" if not OPT.get('x_noclr') else "s_nop 0")
    return L

def lane_consts_q():
    L = []; A = lambda *x: L.extend(II(*x))
    l = V_LANE; t0, t1, t2, t3, t4, t5 = [f"v{x}" for x in VT[:6]]
    A(f"v_lshrrev_b32 {t0}, 4, {l}", f"v_bfe_u32 {t1}, {l}, 2, 2", f"v_and_b32 {t2}, 3, {l}", f"v_and_b32 {t3}, 15, {l}")
    for n in range(4):
        A(f"v_add_u32 {t4}, {4*n}, {t0}", f"v_xor_b32 {t4}, {t4}, {t3}", f"v_lshlrev_b32 {t4}, 4, {t4}",
          f"v_lshl_add_u32 v{V_KD[n]}, {t0}, 8, {t4}")
    for n in range(2):
        A(f"v_add_u32 {t4}, {4*n}, {t0}", f"v_lshlrev_b32 {t4}, 1, {t4}", f"v_xor_b32 {t4}, {t4}, {t3}", f"v_lshlrev_b32 {t4}, 4, {t4}",
          f"v_lshl_add_u32 v{V_VD[n]}, {t0}, 8, {t4}")
    A(f"v_lshrrev_b32 {t4}, 5, {l}")
    A(f"v_bfe_u32 {t5}, {l}, 4, 1")
    for j in range(4):
        d = f"v{V_WQD[j]}"
        A(f"v_add_u32 {d}, {2*j}, {t4}",
          f"v_and_b32 v{VT[6]}, 3, {d}", f"v_lshlrev_b32 v{VT[6]}, 2, v{VT[6]}", f"v_xor_b32 v{VT[6]}, v{VT[6]}, {t3}", f"v_lshlrev_b32 v{VT[6]}, 4, v{VT[6]}",
          f"v_lshlrev_b32 {d}, 13, {d}", f"v_add_u32 {d}, {d}, v{VT[6]}", f"v_lshl_add_u32 {d}, {t5}, 8, {d}")
        if j: A(f"v_subrev_u32 {d}, {1024*j}, {d}")
    A(f"v_lshlrev_b32 {t4}, 1, {t0}", f"v_mov_b32 {t5}, 0x78", f"v_lshrrev_b32 {t4}, {t4}, {t5}", f"v_and_b32 {t4}, 3, {t4}",
      f"v_xor_b32 {t4}, {t4}, {t2}", f"v_lshlrev_b32 {t4}, 4, {t4}",
      f"v_lshrrev_b32 {t5}, 2, {l}", f"v_lshl_add_u32 {t4}, {t5}, 10, {t4}")
    for j in range(2):
        A(f"v_add_u32 v{V_XD[j]}, {j*16384 - 1024*j}, {t4}")
    A(f"s_lshl_b32 s50, {S_W}, 1", "s_lshr_b32 s50, 0x78, s50", "s_and_b32 s50, s50, 3",
      f"v_xor_b32 {t4}, s50, {t2}", f"v_lshlrev_b32 {t4}, 4, {t4}", f"v_lshl_add_u32 {t4}, {t5}, 10, {t4}",
      f"s_lshl_b32 s50, {S_W}, 12", f"s_lshl_b32 s51, {S_W}, 15", "s_sub_u32 s50, s50, s51", f"s_add_u32 s50, s50, {128*1024}",
      f"v_add_u32 v{V_XD[2]}, s50, {t4}")
    A(f"v_lshl_add_u32 {t4}, {t0}, 3, {t1}", f"v_lshlrev_b32 {t4}, 9, {t4}", f"v_lshl_add_u32 {t4}, {t2}, 4, {t4}",
      f"s_lshl_b32 s50, {S_U}, 8", f"s_add_u32 s50, s50, {WB}", f"v_add_u32 {t4}, s50, {t4}")
    A(f"s_lshl_b32 s51, {S_QH}, 1", f"v_xor_b32 {t1}, s51, {t1}")
    for s in range(4):
        A(f"v_xor_b32 {t5}, {s}, {t1}", f"v_lshl_add_u32 v{V_WQR[s]}, {t5}, 6, {t4}")
    A(f"v_lshrrev_b32 {t4}, 2, {t3}", f"v_lshlrev_b32 {t4}, 1, {t4}", f"v_mov_b32 {t5}, 0x78", f"v_lshrrev_b32 {t4}, {t4}, {t5}", f"v_and_b32 {t4}, 3, {t4}",
      f"v_xor_b32 {t4}, {t4}, {t0}", f"v_lshlrev_b32 {t4}, 4, {t4}", f"v_lshl_add_u32 {t4}, {t3}, 6, {t4}",
      f"s_mul_i32 s50, {S_QH}, 5120", f"s_add_u32 s50, s50, {XB}", f"v_add_u32 v{V_XR}, s50, {t4}", f"v_add_u32 v{V_XR4}, {XB + 4096}, {t4}")
    return L

def lane_consts_rest():
    L = []; A = lambda *x: L.extend(II(*x))
    l = V_LANE; t0, t1, t2, t3, t4, t5, t6 = [f"v{x}" for x in VT[:7]]
    A(f"v_lshrrev_b32 {t0}, 4, {l}", f"v_bfe_u32 {t1}, {l}, 2, 2", f"v_and_b32 {t2}, 3, {l}", f"v_and_b32 {t3}, 15, {l}")
    A(f"s_lshl_b32 s50, {S_U}, 13", f"s_add_u32 s51, s50, {KB}", f"v_lshlrev_b32 {t4}, 8, {t3}", f"v_add_u32 {t4}, s51, {t4}")
    A(f"s_lshl_b32 s51, {S_QH}, 3", f"v_xor_b32 {t6}, s51, {t3}")
    for s in range(4):
        A(f"v_add_u32 {t5}, {4*s}, {t0}", f"v_xor_b32 {t5}, {t5}, {t6}", f"v_lshl_add_u32 v{V_KR[s]}, {t5}, 4, {t4}")
    A(f"v_lshrrev_b32 {t4}, 2, {l}", f"v_and_b32 {t5}, 7, {t4}", f"v_lshlrev_b32 {t5}, 1, {t5}",
      f"v_lshlrev_b32 {t4}, 8, {t4}", f"v_add_u32 {t4}, s50, {t4}",
      f"v_and_b32 {t6}, 1, {t2}", f"v_lshl_add_u32 {t4}, {t6}, 3, {t4}",
      f"v_lshrrev_b32 {t6}, 1, {t2}",
      f"s_lshl_b32 s51, {S_QH}, 3", f"v_xor_b32 {t5}, s51, {t5}")
    for dt in range(8):
        d = f"v{V_VR[dt]}"
        A(f"v_add_u32 {d}, {2*dt}, {t6}", f"v_xor_b32 {d}, {d}, {t5}", f"v_lshl_add_u32 {d}, {d}, 4, {t4}")
    A(f"v_lshlrev_b32 {t4}, 2, {t0}", f"v_xor_b32 {t4}, {t4}, {t3}", f"v_lshlrev_b32 {t4}, 4, {t4}", f"v_lshl_add_u32 {t4}, {t0}, 10, {t4}")
    for n in range(4):
        A(f"v_add_u32 v{V_WOD[n]}, {n*3072}, {t4}")
    A(f"v_lshrrev_b32 {t4}, 2, {l}", f"v_lshlrev_b32 {t4}, 8, {t4}", f"v_lshl_add_u32 {t4}, {t2}, 4, {t4}",
      f"s_lshl_b32 s50, {S_W}, 13", f"s_add_u32 s50, s50, {WOB}", f"v_add_u32 {t4}, s50, {t4}")
    for cp in range(4):
        A(f"v_xor_b32 {t5}, {cp}, {t1}", f"v_lshl_add_u32 v{V_WOR[cp]}, {t5}, 6, {t4}")
    A(f"s_mul_i32 s50, {S_QH}, 40960", f"s_lshl_b32 s51, {S_U}, 12", "s_add_u32 s50, s50, s51",
      f"v_lshlrev_b32 v{V_OR}, 4, {l}", f"v_add_u32 v{V_OW}, s50, v{V_OR}", f"v_add_u32 v{V_OR8}, 0x10000, v{V_OR}")
    A(f"s_lshl_b32 s50, {S_HP}, 10", f"v_add_u32 v{V_PS}, s50, v{V_OR}")
    return L

def dma(voff, srd, soff, imm, nt=False):
    o = f" offset:{imm}" if imm else ""
    return I(f"buffer_load_dwordx4 v{voff}, {srd}, {soff} offen{o}{' nt' if nt else ''} lds")

def kv_group(kind, m0expr, soffreg):
    if kind == 'K':
        return [dma(V_KD[n], SRD_K, soffreg, n * 1024, OPT['kvnt']) for n in range(4)]
    return [dma(V_VD[n & 1], SRD_V, soffreg, n * 1024, OPT['kvnt']) for n in range(4)]

def kv_tile_full_unused(kind, j):
    L = []
    base = (KB + kphys(j)) if kind == 'K' else (VB + vphys(j))
    for gI in range(2):
        L += II(f"s_lshl_b32 s50, {S_U}, 13", f"s_add_u32 m0, s50, {base + gI*4096}", f"s_mov_b32 s51, {j*8192 + gI*4096}")
        L += kv_group(kind, None, "s51")
    return L

def stage_setup_scalar():
    rot = OPT['rot']
    R = II("s_lshr_b32 s50, s2, 3", "s_and_b32 s51, s50, 3", "s_lshr_b32 s50, s50, 2")
    if rot in (True, 1):   R += II("s_lshl_b32 s51, s51, 2", "s_lshl_b32 s50, s50, 1", "s_add_u32 s52, s50, s51")
    elif rot == 2:         R += II("s_lshr_b32 s50, s50, 1", "s_add_u32 s52, s50, s51", "s_lshl_b32 s52, s52, 2")
    elif rot == 3:         R += II("s_add_u32 s52, s50, s51", "s_lshl_b32 s52, s52, 2")
    elif rot == 4:         R += II("s_lshr_b32 s50, s50, 2", "s_lshl_b32 s50, s50, 3", "s_lshl_b32 s51, s51, 2", "s_add_u32 s52, s50, s51")
    elif rot == 5:         R += II("s_mul_i32 s50, s50, 3", "s_lshl_b32 s51, s51, 2", "s_add_u32 s52, s50, s51")
    elif rot == 6:         R += II("s_lshl_b32 s52, s50, 1")
    elif rot == 7:         R += II("s_lshl_b32 s50, s50, 1", "s_and_b32 s51, s51, 1", "s_lshl_b32 s51, s51, 3", "s_add_u32 s52, s50, s51")
    else:                  R += II("s_mov_b32 s52, 0")
    return R + II("s_and_b32 s52, s52, 15",
              f"s_lshl_b32 s50, s52, 6", f"s_lshl_b32 s51, {S_W}, 15", f"s_add_u32 {S_SOFFX}, s50, s51",
              f"s_lshl_b32 s50, s52, 18", f"s_lshl_b32 s51, {S_W}, 16", f"s_add_u32 {S_SOFFW0}, s50, s51",
              f"s_lshl_b32 s50, {S_W}, 12", f"s_add_u32 {S_BW}, s50, {WB}",
              f"s_lshl_b32 s50, {S_W}, 11", f"s_add_u32 {S_BX}, s50, {XB}",
              f"s_lshl_b32 s50, {S_W}, 8", f"s_add_u32 {S_BX3}, s50, {XB + 8192}",
              f"s_lshl_b32 {S_TQ}, {S_QH}, 12",
              f"s_lshl_b32 s50, {S_U}, 13", f"s_add_u32 s50, s50, {S_TQ}", f"s_add_u32 {S_MK}, s50, {KB}", f"s_add_u32 {S_MV}, s50, {VB}")

def stage_dma_list(slot):
    seq = []
    seq.append(([I(f"s_add_u32 m0, {S_BW}, {slot*16384}")], dma(V_WQD[0], SRD_WQ, S_SOFFW0, 0, OPT['wnt'])))
    for j in range(1, 4): seq.append(([], dma(V_WQD[j], SRD_WQ, S_SOFFW0, j * 1024, OPT['wnt'])))
    seq.append(([I(f"s_add_u32 m0, {S_BX}, {slot*9216}")], dma(V_XD[0], SRD_X, S_SOFFX, 0, OPT['xnt'])))
    seq.append(([], dma(V_XD[1], SRD_X, S_SOFFX, 1024, OPT['xnt'])))
    q = dma(V_XD[2], SRD_X, S_SOFFX, 0, OPT['xnt'])
    seq.append(([I(f"s_add_u32 m0, {S_BX3}, {slot*9216}")], Masked(q, 0xffff)))
    return seq

def place_dma(S, seq, gaps):
    k = 0
    last = None
    for e in seq:
        if e[0]:
            for p in e[0]: S.put(gaps[k], p)
            k += 1
        S.put(gaps[k], e[1]); last = gaps[k]
        if len(e) > 2:
            for p in e[2]: S.put(gaps[k] + 1, p)
        k += 1
    return last

def stage_advance_w():
    return II(f"s_add_u32 {S_SOFFW0}, {S_SOFFW0}, 262144", f"s_and_b32 {S_SOFFW0}, {S_SOFFW0}, 0x3fffff")
def stage_advance_x():
    return II(f"s_add_u32 {S_SOFFX}, {S_SOFFX}, 64", f"s_and_b32 {S_SOFFX}, {S_SOFFX}, 0xfffffbff")
def stage_advance(): return stage_advance_w() + stage_advance_x()

def straight(seq):
    L = []
    for e in seq:
        L += e[0]
        if e[0]: L += II("s_nop 0")
        L.append(e[1])
        if len(e) > 2: L += e[2]
    return L

def stage_issue_straight(slot):
    return straight(stage_dma_list(slot)) + stage_advance()

def wq_read(dt, h2, slot):
    if OPT.get('x_noread'): return I('s_nop 0')
    s, hf = dt >> 1, dt & 1
    b = abuf(dt) + 2 * h2
    off = slot * 16384 + hf * 8 + h2 * 2048
    return I(f"ds_read_b64_tr_b16 {ar(b,2)}, v{V_WQR[s]}" + (f" offset:{off}" if off else ""))
def x_read(t, slot):
    if OPT.get('x_noread'): return I('s_nop 0')
    off = slot * 9216 + (0 if t == 4 else t * 1024)
    return I(f"ds_read_b128 {vr(bbuf(t))}, v{V_XR4 if t == 4 else V_XR}" + (f" offset:{off}" if off else ""))
def q_mfma(dt, t):
    if OPT.get('x_t4') and t == 4: return I("s_nop 3")
    if OPT.get('x_t45') and t == 4 and dt >= 4: return I("s_nop 3")
    return mfma(vr(qacc(dt, t)), ar(abuf(dt)), vr(bbuf(t)), vr(qacc(dt, t)))

def half_group(kind, j):
    if kind == 'K':
        pre = II(f"s_add_u32 m0, {S_MK}, {kphys(j)}", f"s_add_u32 s51, {S_TQ}, {j*8192}")
    else:
        pre = II(f"s_add_u32 m0, {S_MV}, {vphys(j)}", f"s_add_u32 s51, {S_TQ}, {j*8192}")
    g = kv_group(kind, None, "s51")
    return [(pre, g[0])] + [([], x) for x in g[1:]]

def put_dmas(S, seq, gaps):
    prev = -1
    for e, g in zip(seq, gaps):
        if e[0]:
            assert g - 1 > prev or prev < 0, (g, prev)
            for p in e[0]: S.put(g - 1, p)
        S.put(g, e[1])
        if len(e) > 2:
            for p in e[2]: S.put(g + 1, p)
        prev = g
    assert len(seq) <= len(gaps)

QTAIL = (4, 5, 6, 7)
def q_tail(): return [q_mfma(dt, t) for t in range(4) for dt in QTAIL]
SRD_T = "s[96:99]"; V_T = [10, 11, 12, 13]; S_TM, S_TS = "s35", "s36"
V_TB2 = [252, 253, 254, 255]
V_TB = [244, 245, 246, 247]
DUMMY = 151552
def burst_list():
    g = [dma(V_TB[n], SRD_T, S_TS, n * 1024, OPT['kvnt']) for n in range(4)]
    return [([I(f"s_mov_b32 m0, {S_TM}")], g[0])] + [([], x) for x in g[1:]]

def q_body(ks, with_dma, burst=False, extra_dma=None, wait=None):
    slot = ks & 3
    ms = q_tail() + [q_mfma(dt, t) for t in range(5) for dt in range(4)]
    S = Sched(ms)
    a = lambda dt, h: wq_read(dt, h, slot)
    xr = lambda t: x_read(t, slot)
    plan = {0: a(0,0), 1: a(0,1), 2: a(1,0), 3: a(1,1), 4: xr(0), 5: a(2,0), 7: a(2,1), 8: xr(1), 9: a(3,0), 11: a(3,1),
            12: xr(2), 13: xr(4), 16: xr(3), 17: a(4,0), 19: a(4,1), 20: a(5,0), 21: a(5,1), 23: a(6,0), 24: a(6,1), 25: a(7,0), 27: a(7,1)}
    for g, ins in plan.items(): S.put(g, ins)
    if with_dma:
        put_dmas(S, stage_dma_list((ks + 3) & 3), [6, 10, 14, 18, 22, 26, 29])
        w = stage_advance_w(); x = stage_advance_x()
        S.put(19, w[0]); S.put(20, w[1]); S.put(30, x[0]); S.put(31, x[1])
    if burst:
        put_dmas(S, burst_list(), [32, 33, 34, 35]) if False else None
        put_dmas(S, burst_list(), [15, 28, 31, 33])  if False else None
    if extra_dma:
        put_dmas(S, extra_dma, [6, 10, 14, 18, 22, 26, 30, 32][:len(extra_dma)])
    return S

def q_finish(S, wait, wg=33):
    S.put(wg, tr_mark(), f"s_waitcnt vmcnt({wait}) lgkmcnt(0)", tr_commit())
    S.put(wg + 1, "s_barrier")
    seq, pend = lgkm_waits(S.flat())
    assert not pend
    if OPT['verbose']: print(S.report("q_body"))
    return seq

def tr_mark():
    return [Raw("s_memtime s[100:101]")] if OPT.get('trace') else []
def tr_commit():
    return [Raw("s_mov_b32 s95, m0\n  s_mov_b32 m0, s94\n  s_nop 0\n  v_writelane_b32 v0, s100, m0\n  s_mov_b32 m0, s95\n  s_add_u32 s94, s94, 1")] if OPT.get('trace') else []
def tr_dump():
    if not OPT.get('trace'): return []
    return II("s_add_u32 s66, s58, 0x9000000", "s_addc_u32 s67, s59, 0", "s_lshl_b32 s50, s2, 2", f"s_add_u32 s50, s50, {S_W}", "s_lshl_b32 s50, s50, 8",
              f"v_lshlrev_b32 v253, 2, {V_LANE}", "v_add_u32 v253, s50, v253", "global_store_dword v253, v0, s[66:67]")

def zero_init():
    L = II("v_mov_b32 v244, 0", "v_mov_b32 v245, 0", "v_mov_b32 v246, 0", "v_mov_b32 v247, 0", "s_nop 1")
    for r in range(RB, RB + 160, 16): L += II(f"v_mfma_f32_32x32x16_bf16 v[{r}:{r+15}], v[244:247], v[244:247], 0")
    for r in range(0, 256, 16): L += II(f"v_mfma_f32_32x32x16_bf16 a[{r}:{r+15}], v[244:247], v[244:247], 0")
    return L

def phase_q():
    L = []; A = lambda *x: L.extend(II(*x))
    A("L_phase_q:")
    A(stage_setup_scalar(), stage_issue_straight(0))
    A(stamp("q_issued"))
    A(zero_init())
    A(lane_consts_rest())
    A(f"s_mov_b32 {S_CNT}, 0")
    if OPT.get('trace'): A("s_mov_b32 s94, 1", "s_memtime s[100:101]", "s_waitcnt lgkmcnt(0)", "v_writelane_b32 v0, s100, 0")
    A(f"v_mov_b32 v{VT[0]}, 0x3f803f80")
    for r in range(4): A(f"v_accvgpr_write_b32 a{A_ONES + r}, v{VT[0]}")
    for t in range(5):
        for k in range(4): A(f"v_mov_b32 v{bbuf(t)+k}, 0")
    A("s_mov_b32 s96, s12", "s_mov_b32 s97, s13", "s_mov_b32 s98, s14", "s_mov_b32 s99, s15")
    for n in range(4): A(f"v_mov_b32 v{V_TB[n]}, v{V_KD[n]}")
    if OPT.get('stst'): A(stamp("consts"))
    A(stage_issue_straight(1))
    if OPT.get('stst'): A(stamp("s1_iss"))
    A("s_waitcnt vmcnt(7)")
    if OPT.get('stst'): A(stamp("s0_land"))
    A("s_barrier")
    if OPT['fused']:
        A(f"s_cmp_eq_u32 {S_SAFE}, 1", "s_cbranch_scc1 L_no_arrive")
        A(f"s_lshl_b32 s50, {S_CL}, 2", f"s_add_u32 s50, s50, {CNTOFF()}", f"s_lshl_b32 s51, {S_W}, 14", "s_add_u32 s50, s50, s51",
          f"v_lshlrev_b32 v46, 8, {V_LANE}", "v_add_u32 v46, s50, v46", "v_mov_b32 v47, 1",
          f"buffer_atomic_add v47, v46, {SRD_D}, 0 offen sc1")
        A("L_no_arrive:")
    A(stage_issue_straight(2))
    if OPT.get('stst'): A(stamp("s2_iss"))
    A(f"s_add_u32 {S_TM}, {S_MK}, {kphys(0)}", f"s_mov_b32 {S_TS}, {S_TQ}")
    A(stamp("q_start"))
    l2 = OPT['l2pf']
    if l2:
        A(f"s_add_u32 s37, {S_TQ}, {4*8192}", "s_mov_b32 s92, s12", "s_mov_b32 s93, s13", "s_mov_b32 s94, s14", "s_mov_b32 s95, s15",
          "s_mov_b64 vcc, -1")
    bodies = []
    QOOL = []
    for k in range(4):
        S = q_body(k, True)
        if k == 1:
            put_dmas(S, burst_list(), [32, 33, 34, 35])
        if k == 3 and l2:
            g = [dma(V_OR, "s[92:95]", "s37", n * 1024, False) for n in range(4)]
            put_dmas(S, [([I(f"s_mov_b32 m0, {DUMMY}")], g[0])] + [([], x) for x in g[1:]], [32, 33, 34, 35])
        if l2:
            n_steady, n_first = [(18, 14), (22, 18), (18, 18), (22, 22)][k]
        else:
            n_steady = n_first = 14 if k == 0 else 18
        if OPT.get('b0st') and k == 0:
            for nm, g in (("g5", 5), ("g6", 7), ("g15", 15), ("g20", 20), ("g30", 31)):
                S.put(g, Raw(f"s_cmp_eq_u32 {S_CNT}, 0\n  s_cbranch_scc0 L_b0_{nm}\n  " + "\n  ".join(x.txt for x in stamp(nm)) + f"\nL_b0_{nm}:"))
        late = (k == 1) or (k == 3 and l2)
        w = tr_mark() + II(f"s_waitcnt vmcnt({n_steady}) lgkmcnt(0)")
        if n_first != n_steady:
            w += II(f"s_cbranch_vccnz L_q_first{k}", f"L_q_back{k}:")
            QOOL += II(f"L_q_first{k}:", f"s_waitcnt vmcnt({n_first})", f"s_branch L_q_back{k}")
        w += tr_commit()
        if late:
            seq, pend = lgkm_waits(S.flat())
            seq += w + II("s_barrier")
        else:
            S.put(33, w); S.put(34, "s_barrier")
            seq, pend = lgkm_waits(S.flat())
            assert not pend
        if OPT['verbose']: print(S.report("q_body"))
        bodies.append(seq)
    hist = bodies[3][-24:]
    A(".p2align 6", "L_q_loop:")
    for bi, b in enumerate(bodies):
        b2, n = hazards(b, history=hist); L.extend(b2); hist = b2[-24:]
        if OPT.get('stst') and bi < 2: A(f"s_cmp_eq_u32 {S_CNT}, 0", f"s_cbranch_scc0 L_nost{bi}", stamp(f"body{bi}"), f"L_nost{bi}:")
    A(f"s_add_u32 {S_TM}, {S_TM}, 16384", f"s_add_u32 {S_TS}, {S_TS}, 8192", f"s_add_u32 {S_CNT}, {S_CNT}, 1")
    if l2:
        A("s_mov_b64 vcc, 0", f"s_cmp_eq_u32 {S_CNT}, 1", "s_cbranch_scc1 L_q_to1", "L_q_to1_done:")
    A(f"s_cmp_eq_u32 {S_CNT}, 2", "s_cbranch_scc1 L_q_tov", "L_q_tov_done:",
      f"s_cmp_lt_u32 {S_CNT}, 3", "s_cbranch_scc1 L_q_loop")
    OOL = II("L_q_tov:", "s_mov_b32 s96, s16", "s_mov_b32 s97, s17", f"s_add_u32 {S_TM}, {S_MV}, {vphys(0)}", f"s_mov_b32 {S_TS}, {S_TQ}")
    if l2: OOL += II("s_mov_b32 s92, s12", "s_mov_b32 s93, s13", f"s_add_u32 s37, {S_TQ}, {5*8192}")
    for n in range(4): OOL += II(f"v_mov_b32 v{V_TB[n]}, v{V_VD[n & 1]}")
    OOL += II("s_branch L_q_tov_done")
    if l2: OOL += II("L_q_to1:", "s_mov_b32 s92, s16", "s_mov_b32 s93, s17", f"s_add_u32 s37, {S_TQ}, {3*8192}", "s_branch L_q_to1_done")
    OOL += QOOL
    b, n = hazards(q_finish(q_body(12, True), 18 if l2 else 14), history=hist); L.extend(b)
    b, n = hazards(q_finish(q_body(13, False, extra_dma=half_group('V', 1)), 15 if l2 else 11), history=b[-24:]); L.extend(b)
    b, n = hazards(q_finish(q_body(14, False, extra_dma=half_group('K', 2) + half_group('V', 2)), 12), history=b[-24:]); L.extend(b)
    b, n = hazards(q_finish(q_body(15, False), 12), history=b[-24:]); L.extend(b)
    A("s_branch L_q_after_ool")
    L.extend(OOL)
    A("L_q_after_ool:")
    A(stamp("q_loop_done"))
    return L

def q_tiles(s): return range(5) if s < 2 else range(4)
def q_scale(ss):
    return [I(f"v_pk_mul_f32 {vr(grp(t,s)+2*k,2)}, {vr(grp(t,s)+2*k,2)}, {vr(V_C0,2)}") for s in ss for t in q_tiles(s) for k in range(4)]
def q_cvt(ss):
    return [I(f"v_cvt_pk_bf16_f32 v{grp(t,s)+k}, v{grp(t,s)+2*k}, v{grp(t,s)+2*k+1}") for s in ss for t in q_tiles(s) for k in range(4)]
QX = 155648

def transition():
    L = []; A = lambda *x: L.extend(II(*x))
    A(f"s_add_u32 {S_SOFFK}, {S_TQ}, {4*8192}", f"s_add_u32 {S_SOFFV}, {S_TQ}, {3*8192}")
    A(f"v_mov_b32 v{V_C0}, {hex(f2u(SCALE))}", f"v_mov_b32 v{V_C1}, {hex(f2u(SCALE))}")
    A(f"s_lshl_b32 s50, {S_W}, 11", f"s_add_u32 s50, s50, {QX}", f"v_lshlrev_b32 v7, 4, {V_LANE}", "v_add_u32 v8, s50, v7",
      "s_xor_b32 s50, s50, 2048", "v_add_u32 v9, s50, v7")
    k3 = half_group('K', 3)
    seq = [k_read(kt, s, 0) for kt in range(2) for s in range(4)]
    sc = q_scale((0, 1))
    seq += II("s_nop 3") + sc
    S = Sched(q_tail())
    cv = q_cvt((0, 1))
    sh = lambda c: any(f"v{grp(4,s)+k}," in c.txt.split()[1] + "," for s in (0, 1) for k in range(4))
    cv = [c for c in cv if sh(c)] + [c for c in cv if not sh(c)]
    S.spread(cv, [min(i * 2 // 5, 15) for i in range(40)])
    S.put(5, f"ds_write_b128 v8, {vr(grp(4,0))}"); S.put(7, f"ds_write_b128 v8, {vr(grp(4,1))} offset:1024")
    seq += S.flat()
    seq += II("s_waitcnt lgkmcnt(0)", "s_barrier", f"ds_read_b128 {vr(grp(4,2))}, v9", f"ds_read_b128 {vr(grp(4,3))}, v9 offset:1024")
    sc = q_scale((2, 3))
    seq += II("s_nop 3") + k3[0][0] + sc[:8] + [k3[0][1]] + sc[8:16] + [k3[1][1]] + sc[16:24] + [k3[2][1]] + sc[24:] + [k3[3][1]]
    qk = lambda kt, ss, c: [qk_mfma(kt, s, t, c) for s in ss for t in range(5)]
    S = Sched(qk(0, (0, 1), lambda t: "0") + qk(0, (2, 3), lambda t: "0"))
    S.spread(q_cvt((2, 3)), [min(i * 5 // 16, 9) for i in range(32)])
    S.spread([f"v_mov_b32 v{Preg(1,t)+k}, 0" for t in range(5) for k in range(4)], [10 + i // 2 for i in range(20)])
    seq += S.flat()
    seq, _ = lgkm_waits(seq, final_zero=True)
    seq, n = hazards(seq); L.extend(seq)
    A(stamp("qk0_done"))
    A(f"s_cmp_eq_u32 {S_SAFE}, 1", "s_cbranch_scc1 L_safe_max")
    T = [2, 3, 4, 5, 6]
    U = [7, 8, 9, 10, 11]
    E = II("s_nop 5")
    for t in range(5): E += II(f"v_max3_f32 v{T[t]}, v{Sreg(0,t)}, v{Sreg(0,t)+1}, v{Sreg(0,t)+2}")
    for t in range(5): E += II(f"v_max_f32 v{T[t]}, v{T[t]}, v{Sreg(0,t)+3}")
    E += row_max_finish(T, U)
    S = Sched(qk(1, range(4), lambda t: vr(cinit(t))))
    sub = [f"v_add_f32 v{Sreg(0,t)+k}, v{Sreg(0,t)+k}, v{cinit(t)}" for t in range(5) for k in range(4)]
    ex = [f"v_exp_f32 v{Sreg(0,t)+k}, v{Sreg(0,t)+k}" for t in range(5) for k in range(4)]
    S.spread(sub, [i // 2 for i in range(20)])
    S.spread(ex, [min(2 + i, 19) for i in range(20)])
    E += S.flat()
    E += II("s_barrier")
    E += II("s_nop 3") + exps(1)
    E, n = hazards(E, history=L[-24:]); L.extend(E)
    A("L_max_done:", "s_nop 1")
    return L

def row_max_finish(T, U):
    E = []
    for sw in ("v_permlane32_swap_b32", "v_permlane16_swap_b32"):
        for t in range(5): E += II(f"v_mov_b32 v{U[t]}, v{T[t]}")
        for t in range(5): E += II(f"{sw} v{T[t]}, v{U[t]}")
        for t in range(5): E += II(f"v_max_f32 v{T[t]}, v{T[t]}, v{U[t]}")
    for t in range(5):
        for k in range(4): E += II(f"v_sub_f32 v{cinit(t)+k}, 0, v{T[t]}")
    return E

def safe_paths():
    L = []; A = lambda *x: L.extend(II(*x))
    T = [2, 3, 4, 5, 6]; U = [7, 8, 9, 10, 11]
    ab = [(Sreg(0, t), Sreg(1, t)) for t in range(5)]
    A("L_safe_max:")
    for t in range(5): A(f"v_mov_b32 v{T[t]}, 0xff800000")
    A(f"s_mov_b32 {S_CNT}, 0")
    A("L_safe_loop:")
    A("s_waitcnt vmcnt(0) lgkmcnt(0)", "s_barrier")
    A(f"s_and_b32 s50, {S_CNT}, 15", "s_lshl_b32 s50, s50, 13", f"s_add_u32 s51, s50, {S_TQ}", f"s_add_u32 m0, {S_MK}, {kphys(0)}", "s_nop 0")
    A(kv_group('K', None, "s51"))
    A("s_waitcnt vmcnt(0)", "s_barrier")
    A([k_read(kt, s, 0) for kt in range(2) for s in range(4)], "s_waitcnt lgkmcnt(0)")
    A(f"s_cmp_eq_u32 {S_CNT}, 16", "s_cbranch_scc1 L_safe_last")
    A([qk_mfma(kt, s, t, lambda t: "0") for kt in range(2) for s in range(4) for t in range(5)], "s_nop 7", "s_nop 7")
    for t, (a, b) in enumerate(ab):
        A(f"v_max3_f32 v{T[t]}, v{T[t]}, v{a}, v{a+1}", f"v_max3_f32 v{T[t]}, v{T[t]}, v{a+2}, v{a+3}",
          f"v_max3_f32 v{T[t]}, v{T[t]}, v{b}, v{b+1}", f"v_max3_f32 v{T[t]}, v{T[t]}, v{b+2}, v{b+3}")
    A(f"s_add_u32 {S_CNT}, {S_CNT}, 1", f"s_cmp_lt_u32 {S_CNT}, 16", "s_cbranch_scc1 L_safe_loop")
    E, n = hazards(II("s_nop 3") + row_max_finish(T, U)); L.extend(E)
    A("s_branch L_safe_loop")
    A("L_safe_last:", "s_nop 3")
    A([qk_mfma(kt, s, t, lambda t: vr(cinit(t))) for kt in range(2) for s in range(4) for t in range(5)], "s_nop 7", "s_nop 7")
    A("s_barrier")
    for t, (a, b) in enumerate(ab):
        for base in (a, b):
            for k in range(4): A(f"v_exp_f32 v{base+k}, v{base+k}")
    A("s_nop 1", "s_branch L_max_done")
    if OPT['fused']:
        A("L_cnt_spin:", f"s_mov_b32 s53, {SPIN}", "L_cnt_spin_loop:", "s_sleep 2",
          f"buffer_load_dword v15, v14, {SRD_D}, 0 offen sc1", "s_waitcnt vmcnt(0)", "v_readfirstlane_b32 s52, v15", "s_nop 3",
          "s_cmp_ge_u32 s52, 16", "s_cbranch_scc1 L_cnt_ok", "s_sub_u32 s53, s53, 1", "s_cmp_lg_u32 s53, 0", "s_cbranch_scc1 L_cnt_spin_loop", "s_branch L_cnt_ok")
    A("L_restart:", f"s_mov_b32 {S_SAFE}, 1", "s_waitcnt vmcnt(0) lgkmcnt(0)", "s_barrier")
    A(lane_consts_q())
    A("s_branch L_phase_q")
    return L

def k_read(kt, s, slotk):
    off = kphys(slotk) + kt * 4096
    return I(f"ds_read_b128 {ar(kbuf(kt, s))}, v{V_KR[s]}" + (f" offset:{off}" if off else ""))
def v_read(dt, h, slotv):
    off = vphys(slotv) + h * 4096
    return I(f"ds_read_b64_tr_b16 {ar(abuf(dt) + 2*h, 2)}, v{V_VR[dt]}" + (f" offset:{off}" if off else ""))
def qk_mfma(kt, s, t, first_c):
    c = first_c(t) if s == 0 else vr(Sreg(kt, t))
    return mfma(vr(Sreg(kt, t)), ar(kbuf(kt, s)), vr(qfrag(t, s)), c)
def pv_mfma(dt, t, par):
    return mfma(ar(oacc(dt, t)), ar(abuf(dt)), vr(Preg(par, t)), ar(oacc(dt, t)))
def rs_mfma(t, par):
    return mfma(ar(lacc(t)), ar(A_ONES), vr(Preg(par, t)), ar(lacc(t)))
def cvts(par):
    out = []
    for kt in range(2):
        for t in range(5):
            s = Sreg(kt, t); p = Preg(par, t) + 2 * kt
            out.append(I(f"v_cvt_pk_bf16_f32 v{p}, v{s}, v{s+1}"))
            out.append(I(f"v_cvt_pk_bf16_f32 v{p+1}, v{s+2}, v{s+3}"))
    return out
def exps(kt):
    return [I(f"v_exp_f32 v{Sreg(kt,t)+i}, v{Sreg(kt,t)+i}") for t in range(5) for i in range(4)]

def att_dma(j, dyn=False):
    seq = []
    if j + 4 <= 15:
        pre = II(f"s_add_u32 m0, {S_MK}, {kphys(j + 4)}")
        g = kv_group('K', None, S_SOFFK)
        seq += [(pre, g[0])] + [([], x) for x in g[1:]]
        seq[-1] = (seq[-1][0], seq[-1][1], II(f"s_add_u32 {S_SOFFK}, {S_SOFFK}, 8192"))
    if j + 3 <= 15:
        pre = II(f"s_add_u32 m0, {S_MV}, {vphys(j + 3)}")
        g = kv_group('V', None, S_SOFFV)
        s2 = [(pre, g[0])] + [([], x) for x in g[1:]]
        s2[-1] = (s2[-1][0], s2[-1][1], II(f"s_add_u32 {S_SOFFV}, {S_SOFFV}, 8192"))
        seq += s2
    return seq

def wo_dma(ks, slot_base_imm):
    seq = []
    for gI in range(2):
        pre = II(f"s_lshl_b32 s50, {S_W}, 13", f"s_add_u32 m0, s50, {slot_base_imm + gI*4096}", f"s_mov_b32 s51, {ks*32768 + gI*16384}")
        for n in range(4):
            seq.append((pre if n == 0 else [], dma(V_WOD[n], SRD_WO, "s51", n * 1024, OPT["wont"])))
    return seq

def att_body(j, vmwait, extra_dma=None):
    par_old, par_new = (j - 1) & 1, j & 1
    ms = [pv_mfma(dt, t, par_old) for dt in (5, 6, 7) for t in range(5)] + [rs_mfma(t, par_old) for t in range(5)]
    ms += [qk_mfma(kt, s, t, lambda t: vr(cinit(t))) for kt in range(2) for s in range(4) for t in range(5)]
    ms += [pv_mfma(dt, t, par_new) for dt in range(5) for t in range(5)]
    S = Sched(ms)
    cv = cvts(par_new)
    S.spread(cv, [1, 1, 3, 3, 6, 6, 8, 8, 11, 11, 13, 13, 16, 16, 18, 18, 21, 21, 23, 23])
    S.spread([k_read(kt, s, j + 1) for kt in range(2) for s in range(4)], [0, 2, 5, 7, 10, 12, 15, 17])
    vr_ = [v_read(dt, h, j) for dt in range(8) for h in range(2)]
    S.spread(vr_, [20, 22, 25, 26, 27, 28, 30, 31, 32, 33, 35, 36, 37, 38, 40, 61])
    d = att_dma(j) + (extra_dma or [])
    if j + 4 > 15 and j + 3 <= 15 and not extra_dma:
        put_dmas(S, d, [24, 29, 34, 39])
    else:
        put_dmas(S, d, [4, 9, 14, 19, 24, 29, 34, 39])
    S.spread(exps(0), list(range(41, 61)))
    S.spread(exps(1), list(range(62, 82)))
    seq = S.flat()
    seq, pend = lgkm_waits(seq)
    seq += tr_mark() + II(f"s_waitcnt vmcnt({vmwait}) lgkmcnt(0)") + tr_commit() + II("s_barrier")
    if OPT['verbose']: print(S.report(f"att_body {j}"))
    return seq

WO1 = [192, 200, 208, 216, 224, 228, 232, 236]
def wofrag(ks, m, n=4, off=0):
    if ks == 0: return ar(216 + 4 * m + off, n)
    if ks == 1: return vr(WO1[m] + off, n)
    return ar((ks - 2) * 32 + 4 * m + off, n)
def wo_read(ks, m, h):
    cp, hf = m >> 1, m & 1
    off = (32768 if (ks & 1) == 0 else 0) + hf * 8 + h * 4096
    return I(f"ds_read_b64_tr_b16 {wofrag(ks, m, 2, 2*h)}, v{V_WOR[cp]}" + (f" offset:{off}" if off else ""))

def wo_prefetch():
    n = OPT['pfw']
    L = II(f"s_lshl_b32 s50, {S_B}, 15", f"s_lshl_b32 s51, {S_W}, 13", "s_add_u32 s50, s50, s51")
    nt = " nt" if OPT['pfnt'] else ""
    if n == 8:
        L += II(f"v_lshlrev_b32 v46, 4, {V_LANE}")
        for i in range(8):
            L += II(f"s_add_u32 s51, s50, {i*1024}", f"buffer_load_dwordx4 v[252:255], v46, s[84:87], s51 offen{nt}")
    else:
        sh = {1: 7, 2: 6, 4: 5}[n]
        L += II(f"v_lshlrev_b32 v46, {sh}, {V_LANE}")
        for i in range(n):
            L += II(f"s_add_u32 s51, s50, {i * (64 << sh)}", f"buffer_load_dword v47, v46, s[84:87], s51 offen{nt}")
    return L

def attention():
    L = []; A = lambda *x: L.extend(II(*x))
    L += transition()
    A(stamp("att_start"))
    A(f"s_mov_b32 {S_CNT}, 0")
    bodies = [att_body(j, 16) for j in range(4)]
    hist = bodies[3][-24:]
    A(".p2align 6", "L_att_loop:")
    for b in bodies:
        b2, n = hazards(b, history=hist); L.extend(b2); hist = b2[-24:]
    if OPT['pf'] >= 0:
        A(f"s_cmp_eq_u32 {S_CNT}, {OPT['pf']}", "s_cbranch_scc0 L_att_nopf", wo_prefetch(), "L_att_nopf:")
    A(f"s_add_u32 {S_CNT}, {S_CNT}, 1", f"s_cmp_lt_u32 {S_CNT}, 3", "s_cbranch_scc1 L_att_loop")
    b, n = hazards(att_body(12, 12), history=hist); L.extend(b); hist = b[-24:]
    b, n = hazards(att_body(13, 12, extra_dma=wo_dma(0, WOA)), history=hist); L.extend(b); hist = b[-24:]
    b, n = hazards(att_body(14, 16, extra_dma=wo_dma(1, WOB)), history=hist); L.extend(b); hist = b[-24:]
    A(stamp("att_loop_done"))
    ms = [pv_mfma(dt, t, 0) for dt in (5, 6, 7) for t in range(5)] + [rs_mfma(t, 0) for t in range(5)]
    ms += [pv_mfma(dt, t, 1) for dt in range(8) for t in range(5)] + [rs_mfma(t, 1) for t in range(5)]
    S = Sched(ms)
    S.spread(cvts(1), list(range(0, 20)))
    S.spread([v_read(dt, h, 15) for dt in range(5) for h in range(2)], list(range(0, 10)))
    S.spread([v_read(dt, h, 15) for dt in (5, 6, 7) for h in range(2)], list(range(15, 21)))
    S.put(20, "s_waitcnt vmcnt(8)")
    S.spread([wo_read(0, m, h) for m in range(8) for h in range(2)], [21 + i // 2 for i in range(16)])
    S.put(28, "s_waitcnt vmcnt(0)")
    S.spread([wo_read(1, m, h) for m in range(8) for h in range(2)], [29 + i // 2 for i in range(16)])
    S.put(38, "s_waitcnt lgkmcnt(0)")
    if OPT['fused']:
        S.put(36, f"s_lshl_b32 s50, {S_CL}, 2", f"s_add_u32 s50, s50, {CNTOFF()}")
        S.spread([f"v_lshlrev_b32 v14, 8, {V_LANE}", "v_add_u32 v14, s50, v14"], [37, 37])
        S.put(38, f"buffer_load_dword v15, v14, {SRD_D}, 0 offen sc1")
    put_dmas(S, wo_dma(2, WOA), [41, 44, 47, 50, 54, 57, 60, 63])
    seq, pend = lgkm_waits(S.flat(), final_zero=True)
    seq, n = hazards(seq, history=hist); L.extend(seq)
    A("s_barrier")
    A("s_nop 3")
    A(stamp("att_done"))
    return L

def wo_dma_t(ks):
    d = wo_dma(ks, WOA if (ks & 1) == 0 else WOB)
    for e in d: e[1].tag = f"wo{ks}"
    return d
def wo_reads(ks): return [wo_read(ks, m, h) for m in range(8) for h in range(2)]

LFLAG = 90112

def o_epilogue():
    E = []
    tl = VT[0]; rc = VT[2]
    d3, d4, d5 = wo_dma_t(3), wo_dma_t(4), wo_dma_t(5)
    E += II(f"s_lshl_b32 s51, {S_QH}, 11", f"v_subrev_u32 v{V_OWB}, s51, v{V_OW}", f"v_add_u32 v{V_OW}, s51, v{V_OW}",
            f"s_lshl_b32 s50, {S_U}, 12", f"s_add_u32 s50, s50, 32768", "s_add_u32 s50, s50, s51", f"v_add_u32 v{V_OW4}, s50, v{V_OR}")
    def emit_dma(e):
        return e[0] + II("s_nop 0") * (1 if e[0] else 0) + [e[1]]
    nfr = 0
    for t in range(5):
        E += II(f"v_accvgpr_read_b32 v{tl}, a{lacc(t)}", f"v_rcp_f32 v{rc}, v{tl}", "s_nop 0", f"v_mov_b32 v{rc+1}, v{rc}")
        if t == 0: E += II(f"v_mov_b32 v{VT[1]}, v{tl}")
        else: E += II(f"v_max_f32 v{VT[1]}, v{VT[1]}, v{tl}")
        if t == 4:
            E += II(f"v_cmp_nge_f32 vcc, {hex(OPT['lthr'] or LTHR)}, v{VT[1]}", f"s_lshl_b32 s50, {S_W}, 2", f"s_add_u32 s50, s50, {LFLAG}", f"v_mov_b32 v52, s50",
                    "s_cmp_lg_u64 vcc, 0", "s_cselect_b32 s51, 1, 0", "v_mov_b32 v53, s51", "ds_write_b32 v52, v53")
        for ks in range(4 if t < 4 else 2):
            mid = []
            if nfr < 8: mid += emit_dma(d3[nfr])
            if 8 <= nfr < 16: mid += emit_dma(d4[nfr - 8])
            if nfr >= 16:
                for i in range(4): mid += emit_dma(d5[4 * (nfr - 16) + i])
            if OPT.get('x_oenodma'): mid = [x for x in mid if x.kind == 'dma'][:0] + [x for x in mid if x.kind != 'dma']
            rd = []
            cut = {0: (0, 6), 1: (6, 11), 2: (11, 16)}
            if 4 <= nfr < 7:
                if nfr == 4:
                    rd += [VmNeed("wo2")]
                    if OPT['fused']:
                        rd += II("v_readfirstlane_b32 s52, v15", "s_nop 3", "s_cmp_lt_u32 s52, 16", "s_cbranch_scc1 L_cnt_spin", "L_cnt_ok:")
                a_, b_ = cut[nfr - 4]; rd += wo_reads(2)[a_:b_]
            if 12 <= nfr < 15:
                if nfr == 12: rd += [VmNeed("wo3")]
                a_, b_ = cut[nfr - 12]; rd += wo_reads(3)[a_:b_]
            if OPT.get('oe_nord'): rd = [x for x in rd if x.kind != 'dsr']
            if OPT.get('oe_nowait'): rd = [x for x in rd if not isinstance(x, VmNeed)]
            if OPT.get('oe_nodma'): mid = []; rd = [x for x in rd if not (isinstance(x, VmNeed) and x.tag == 'wo3')]
            if nfr in (8, 16): E += II("s_waitcnt lgkmcnt(0)")
            E += rd
            for h in range(2):
                for k in range(4):
                    E += II(f"v_accvgpr_read_b32 v{52 + 4*h + k}, a{oacc(2*ks + h, t) + k}")
            E += mid
            for k in range(4): E += II(f"v_pk_mul_f32 {vr(52+2*k,2)}, {vr(52+2*k,2)}, {vr(rc,2)}")
            for k in range(4): E += II(f"v_cvt_pk_bf16_f32 v{60+k}, v{52+2*k}, v{53+2*k}")
            E += II(f"ds_write_b128 v{V_OW if ks < 2 else V_OWB}, {vr(60)} offset:{(t*8+ks)*1024}" if t < 4 else f"ds_write_b128 v{V_OW4}, {vr(60)} offset:{ks*1024}")
            nfr += 1
        if OPT['stamps'] and OPT.get('oest'): E += [Raw("\n  ".join(x.txt for x in stamp(f"oe{t}")))] + II("s_waitcnt lgkmcnt(0)")
    E, q = vm_waits(E, ["cnt"] + ["wo2"] * 8)
    E, pend = lgkm_waits(E, final_zero=True)
    E, n = hazards(E)
    return E + II("s_barrier"), q

def o_read(dst, t, ks):
    if t < 8: return I(f"ds_read_b128 {vr(dst)}, v{V_OR} offset:{(t*8+ks)*1024}")
    return I(f"ds_read_b128 {vr(dst)}, v{V_OR8} offset:{ks*1024}")
V_PSC = [196, 197, 198, 199]
V_OWNA = 204; S_OWN = "s49"
OWNB = 73728
OWN_OOL = []
def pstore(src, t, cp):
    v = V_PSC[cp] if OPT['own'] else V_PS
    return (II(f"s_add_u32 s51, {S_SOFFP}, {(cp*9 + t)*16384}"),
            I(f"buffer_store_dwordx4 {vr(src)}, v{v}, {SRD_P}, s51 offen {OPT['pst']}"))
def own_hook(src, t, cp):
    if not OPT['own']: return []
    OWN_OOL.extend(II(f"L_own_{t}_{cp}:", f"ds_write_b128 v{V_OWNA}, {vr(src)} offset:{t*1024}", f"s_branch L_ownb_{t}_{cp}"))
    return II(f"s_cmp_eq_u32 {S_OWN}, {cp}", f"s_cbranch_scc1 L_own_{t}_{cp}", f"L_ownb_{t}_{cp}:")

NP1 = 2
def acc1(t, m): return 64 + (t * 8 + m) * 4
def acc2(t, m): return 128 + ((t & 1) * 8 + m) * 4
def bfr1(par, t): return 2 + (par * 4 + t) * 4
STG = [48, 52, 56, 60]

def tile_epilogue(accf, t, k0):
    out = []
    for cp in range(4):
        a0, a1 = accf(t, 2*cp), accf(t, 2*cp + 1)
        d = STG[(k0 + cp) & 3]
        cv = II(f"v_cvt_pk_bf16_f32 v{d}, v{a0}, v{a0+1}", f"v_cvt_pk_bf16_f32 v{d+1}, v{a0+2}, v{a0+3}",
                f"v_cvt_pk_bf16_f32 v{d+2}, v{a1}, v{a1+1}", f"v_cvt_pk_bf16_f32 v{d+3}, v{a1+2}, v{a1+3}")
        pre, st = pstore(d, t, cp)
        if OPT.get('x_nost') and not (t == 8 and cp == 3): st = I("s_nop 0")
        st.tag = f"st{t}"
        out.append((cv, (pre, st), own_hook(d, t, cp)))
    return out

def out_proj(queue):
    L = []; A = lambda *x: L.extend(II(*x))
    A(f"s_mul_i32 {S_SOFFP}, {S_W}, {4*9*16384}")
    OWN_OOL.clear()
    if OPT['own']:
        A(f"s_lshr_b32 s50, {S_HP}, 2", f"s_and_b32 s51, {S_HP}, 3", f"s_cmp_eq_u32 s50, {S_W}", f"s_cselect_b32 {S_OWN}, s51, 7")
        for cp in range(4):
            A(f"s_cmp_eq_u32 {S_OWN}, {cp}", "s_cselect_b32 s50, 0x40000000, 0", f"v_or_b32 v{V_PSC[cp]}, s50, v{V_PS}")
        A(f"v_add_u32 v{V_OWNA}, {OWNB}, v{V_OR}")
    NP = OPT['np1']
    G = 8 * NP
    ms = [mfma(vr(acc1(t, m)), wofrag(ks, m), vr(bfr1(ks & 1, t)), ("0" if ks == 0 else vr(acc1(t, m)))) for ks in range(8) for m in range(8) for t in range(NP)]
    bt = lambda ks: 2 + 4 * ks
    P1 = len(ms)
    for t in range(NP, 9):
        ms += [mfma(vr(acc2(t, m)), wofrag(ks, m), vr(bt(ks)), ("0" if ks == 0 else vr(acc2(t, m)))) for ks in range(8) for m in range(8)]
    S = Sched(ms)
    def reads(ks, g0): S.spread(wo_reads(ks), [g0 + i // 2 for i in range(16)])
    def dmas(ks, g0, step=4): put_dmas(S, wo_dma_t(ks), [g0 + step * i for i in range(8)])
    def put_free(ins, g0):
        g = g0
        while S.cost(g) + COST[ins.kind] > 8: g += 1
        S.put(g, ins); return g
    def epi(t, accf, g0, stride):
        for cp, (cv, (spre, st), hook) in enumerate(tile_epilogue(accf, t, 0)):
            g = g0 + cp * stride
            S.spread(cv, [g, g, g + 1, g + 1])
            for p in spre: S.put(g + 1, p)
            for p in hook: S.put(g + 2, p)
            S.put(g + 2, st)
    if NP == 2:
        pre = [o_read(bfr1(0, t), t, 0) for t in range(NP)]
        S.put(0, VmNeed("wo4")); reads(4, 0)
        S.put(9, "s_waitcnt lgkmcnt(0)"); dmas(6, 11, 3)
        S.put(33, VmNeed("wo5")); reads(5, 33)
        S.put(42, "s_waitcnt lgkmcnt(0)"); dmas(7, 44, 3)
        S.put(84, VmNeed("wo6")); reads(6, 84)
        S.put(100, VmNeed("wo7")); reads(7, 100)
        for ks in range(7):
            g = ks * G + (1 if ks else 8)
            for t in range(NP):
                g = put_free(o_read(bfr1((ks + 1) & 1, t), t, ks + 1), g) + 1
            assert g <= (ks + 1) * G - 3, (ks, g)
        g = 6 * G + 4
        for ks in (2, 3, 6, 7): g = put_free(o_read(bt(ks), NP, ks), g) + 1
        g = 7 * G + 1
        for ks in (0, 1): g = put_free(o_read(bt(ks), NP, ks), g) + 1
        base = P1
        for ks in (4, 5): put_free(o_read(bt(ks), NP, ks), base + 1)
        epi(0, acc1, base + 4, 7); epi(1, acc1, base + 32, 7)
    else:
        assert NP == 0
        pre = [o_read(bt(ks), 0, ks) for ks in range(8)]
        S.put(0, VmNeed("wo4")); reads(4, 0)
        S.put(9, "s_waitcnt lgkmcnt(0)"); dmas(6, 11, 2)
        S.put(10, VmNeed("wo5"));
        S.spread(wo_reads(5), [12, 12, 14, 14, 16, 16, 18, 18, 20, 20, 22, 22, 24, 24, 26, 26])
        S.put(28, "s_waitcnt lgkmcnt(0)"); dmas(7, 30, 2)
        S.put(46, VmNeed("wo6")); S.spread(wo_reads(6), [46, 46, 46, 46] + [47 + i // 4 for i in range(12)])
        S.put(54, VmNeed("wo7")); S.spread(wo_reads(7), [54, 54, 54, 54] + [55 + i // 12 for i in range(12)])
    for t in range(NP, 9):
        b = P1 + (t - NP) * 64
        if t > NP: epi(t - 1, acc2, b + 6, 12)
        if t < 8:
            for ks in range(8):
                g = b + 8 * ks + 8
                if g >= b + 64: g = b + 64 + 1
                put_free(o_read(bt(ks), t + 1, ks), g)
    if OPT['fused']:
        g0 = P1 + (3 - NP) * 64 + 49
        S.put(g0, f"s_lshl_b32 s50, {S_W}, 7", f"s_lshl_b32 s52, {S_HP}, 2", "s_add_u32 s50, s50, s52")
        S.spread([f"v_lshlrev_b32 v36, 13, {V_LANE}", "v_add_u32 v36, s50, v36", "v_mov_b32 v37, 1"], [g0 + 1, g0 + 1, g0 + 2])
        S.put(g0 + 3, f"s_lshr_b32 s50, {S_HP}, 2", "s_lshl_b32 s50, s50, 7")
        S.spread([f"v_lshrrev_b32 v46, 4, {V_LANE}", "v_lshlrev_b32 v46, 9, v46", f"v_and_b32 v47, 15, {V_LANE}",
                  "v_lshl_add_u32 v46, v47, 2, v46", "v_add_u32 v46, s50, v46"], [g0 + 4, g0 + 4, g0 + 5, g0 + 9, g0 + 9])
        b = P1 + (8 - NP) * 64
        fa = I(f"buffer_store_dword v37, v36, {SRD_F}, 0 offen sc1"); fa.tag = "fl"
        if OPT['early']:
            S.put(b + 40, VmNeed("st3")); S.put(b + 41, fa)
            pl = I(f"buffer_load_dword v47, v46, {SRD_F}, 0 offen sc1"); pl.tag = "poll"
            S.put(b + 60, pl)
    if OPT['stamps'] and OPT.get('opst'):
        for nm, g in (("w1", 127), ("w3", 255), ("w5", 383), ("w8", 575)):
            S.put(g, Raw("\n  ".join(x.txt for x in stamp(nm))))
            S.put(g, "s_waitcnt lgkmcnt(0)")
    pre = II(f"v_mov_b32 v56, {LFLAG}", f"ds_read_b128 {vr(52)}, v56") + pre
    pre += II("s_waitcnt lgkmcnt(0)", "v_or3_b32 v52, v52, v53, v54", "v_or_b32 v52, v52, v55", "s_nop 0", "v_readfirstlane_b32 s50, v52", "s_nop 3",
              f"s_andn2_b32 s50, s50, {S_SAFE}", "s_cmp_lg_u32 s50, 0", "s_cbranch_scc1 L_restart")
    seq = pre + S.flat()
    tail = II("s_nop 7")
    for cp, (cv, (spre, st), hook) in enumerate(tile_epilogue(acc2, 8, 0)):
        tail += cv + spre + hook + [st]
    if OPT['stamps'] and OPT.get('opst'): tail += stamp("st_iss")
    if OPT['fused']:
        fb = I(f"buffer_store_dword v37, v36, {SRD_F}, 0 offen offset:512 sc1"); fb.tag = "fl"
        fc = I(f"buffer_store_dword v37, v36, {SRD_F}, 0 offen offset:1024 sc1"); fc.tag = "fl"
        tail += [VmNeed("poll"), fb, VmNeed("st8"), fc] if OPT['early'] else [VmNeed("st8"), fa, fb, fc]
    seq, q = vm_waits(seq + tail, queue)
    seq, pend = lgkm_waits(seq)
    seq, n = hazards(seq)
    if OPT['verbose']: print(S.report("out_proj"), "nops", n)
    L += seq
    return L, q

SPIN = 1 << 22
def reduce_phase():
    L = []; A = lambda *x: L.extend(II(*x))
    DAT = lambda g, tt, k: 64 + ((g * 2 + tt) * 4 + k) * 4
    D8 = lambda k: 192 + 4 * k
    ACC = lambda g, tt: [208, 216, 224, 232, 240, 248, 2, 10][g * 2 + tt]
    A8 = 18
    T0, T1 = 26, 28
    V_POLL, V_FL, V_L16, V_OUT = 46, 47, 32, 33
    A(f"v_lshrrev_b32 v30, 4, {V_LANE}", f"v_and_b32 v31, 15, {V_LANE}", f"v_lshlrev_b32 v{V_L16}, 4, {V_LANE}",
      f"v_lshlrev_b32 v{V_OUT}, 11, v31", f"v_lshl_add_u32 v{V_OUT}, v30, 4, v{V_OUT}")
    A(f"s_mul_i32 s32, {S_B}, {144*2048}", f"s_lshl_b32 s50, {S_BR}, 10", "s_add_u32 s32, s32, s50", f"s_lshl_b32 s50, {S_HP}, 6", "s_add_u32 s32, s32, s50")
    A(f"s_mul_i32 s33, {S_HP}, {9*16384}")
    A(f"s_lshl_b32 s50, {S_W}, 14", "s_add_u32 s34, s33, s50", "s_add_u32 s35, s34, 65536",
      f"s_add_u32 s36, s33, {8*16384}", f"s_lshl_b32 s50, {S_W}, 12", "s_add_u32 s36, s36, s50",
      f"s_lshl_b32 s41, {S_W}, 2")
    A("s_mov_b32 s37, 0", "s_mov_b32 s38, 0", f"s_mov_b32 s53, {SPIN}")
    if OPT['own']:
        A(f"s_lshr_b32 s46, {S_HP}, 2", f"s_and_b32 s47, {S_HP}, 3", f"s_lshl_b32 s50, {S_W}, 10", f"s_add_u32 s50, s50, {OWNB}", f"v_add_u32 v44, s50, v{V_L16}",
          "s_waitcnt lgkmcnt(0)", "s_barrier", "ds_read_b128 v[36:39], v44", "ds_read_b128 v[40:43], v44 offset:4096")
    def unpack_add(acc, src, first):
        out = []
        for k in range(4):
            if first:
                out += [f"v_lshlrev_b32 v{acc+2*k}, 16, v{src+k}", f"v_and_b32 v{acc+2*k+1}, 0xffff0000, v{src+k}"]
            else:
                t = (T0, T1)[k & 1]
                out += [f"v_lshlrev_b32 v{t}, 16, v{src+k}", f"v_and_b32 v{t+1}, 0xffff0000, v{src+k}",
                        f"v_pk_add_f32 v[{acc+2*k}:{acc+2*k+1}], v[{acc+2*k}:{acc+2*k+1}], v[{t}:{t+1}]"]
        return out
    items = [(tt, g) for tt in range(2) for g in range(4)] + [(2, None)]
    if OPT['early']: A("s_branch L_red_first")
    A("L_red_loop:")
    A("s_cmp_eq_u32 s37, 0x1ff", "s_cbranch_scc1 L_red_nopoll")
    A(f"buffer_load_dword v{V_FL}, v{V_POLL}, {SRD_F}, 0 offen sc1")
    A("L_red_nopoll:", "s_waitcnt vmcnt(0)")
    A("s_andn2_b32 s42, s37, s38")
    for i, (tt, g) in enumerate(items):
        A(f"s_bitcmp1_b32 s42, {i}", f"s_cbranch_scc0 L_red_nosum{i}")
        for k in range(4):
            A(unpack_add(ACC(g, tt), DAT(g, tt, k), k == 0) if tt < 2 else unpack_add(A8, D8(k), k == 0))
        A(f"L_red_nosum{i}:")
    A("s_mov_b32 s38, s37", "s_cmp_eq_u32 s38, 0x1ff", "s_cbranch_scc1 L_red_done")
    A("L_red_first:")
    A(f"v_cmp_eq_u32 vcc, 1, v{V_FL}", "s_nop 3", "s_mov_b32 s39, vcc_lo", "s_lshr_b32 s43, vcc_hi, s41", "s_and_b32 s43, s43, 15", "s_mov_b32 s40, s37")
    A("s_sub_u32 s53, s53, 1", "s_cmp_eq_u32 s53, 0", "s_cselect_b32 s39, -1, s39", "s_cselect_b32 s43, 15, s43", "s_cselect_b32 s53, 1, s53")
    for i, (tt, g) in enumerate(items):
        A(f"s_bitcmp1_b32 s37, {i}", f"s_cbranch_scc1 L_red_noiss{i}")
        if tt < 2:
            A(f"s_bfe_u32 s50, s39, {hex((4 << 16) | (16 * tt + 4 * g))}", "s_cmp_eq_u32 s50, 15")
        else:
            A("s_cmp_eq_u32 s43, 15")
        A(f"s_cbranch_scc0 L_red_noiss{i}")
        if tt < 2: A(f"s_add_u32 s50, s{34+tt}, {g*4096}")
        if OPT['own']:
            A(f"s_cmp_eq_u32 s46, {g}" if tt < 2 else f"s_cmp_eq_u32 s46, {S_W}", "s_cselect_b32 s44, s47, 7")
        for k in range(4):
            o = f" offset:{k*1024}" if k else ""
            va = V_L16
            if OPT['own']:
                A(f"s_cmp_eq_u32 s44, {k}", "s_cselect_b32 s45, 0x40000000, 0", f"v_or_b32 v45, s45, v{V_L16}"); va = 45
            if tt < 2: A(f"buffer_load_dwordx4 {vr(DAT(g, tt, k))}, v{va}, {SRD_P}, s50 offen{o} {OPT['rld']}")
            else: A(f"buffer_load_dwordx4 {vr(D8(k))}, v{va}, {SRD_P}, s36 offen{o} {OPT['rld']}")
        A(f"s_bitset1_b32 s37, {i}", f"L_red_noiss{i}:")
    if OPT.get('rdst'):
        A("s_cmp_eq_u32 s40, 0", "s_cbranch_scc0 L_rs1", "s_cmp_lg_u32 s37, 0", "s_cbranch_scc0 L_rs1", stamp("r_first"), "L_rs1:")
        A("s_cmp_eq_u32 s37, 0x1ff", "s_cbranch_scc0 L_rs2", stamp("r_alliss"), "L_rs2:")
    A("s_cmp_lg_u32 s37, s40", "s_cbranch_scc1 L_red_loop", f"s_sleep {OPT['psleep']}", "s_branch L_red_loop")
    A("L_red_done:")
    if OPT.get('rdst'): A(stamp("r_summed"))
    A(f"s_lshl_b32 s50, {S_W}, 11", f"v_lshlrev_b32 v30, 5, {V_LANE}", f"v_add_u32 v30, {WOB}, v30", "v_add_u32 v31, s50, v30",
      f"ds_write_b128 v31, {vr(A8)}", f"ds_write_b128 v31, {vr(A8+4)} offset:16")
    for tt in range(2):
        a0 = ACC(0, tt)
        for g in range(1, 4):
            for k in range(4): A(f"v_pk_add_f32 v[{a0+2*k}:{a0+2*k+1}], v[{a0+2*k}:{a0+2*k+1}], v[{ACC(g,tt)+2*k}:{ACC(g,tt)+2*k+1}]")
        if OPT['own']: A("s_waitcnt lgkmcnt(2)" if tt == 0 else "s_nop 0", unpack_add(a0, 36 + 4 * tt, False))
        for k in range(4): A(f"v_cvt_pk_bf16_f32 v{64+4*tt+k}, v{a0+2*k}, v{a0+2*k+1}")
        A(f"s_lshl_b32 s50, {S_W}, 15", f"s_add_u32 s50, s50, s32", f"s_add_u32 s50, s50, {tt*4*32768}")
        A(f"buffer_store_dwordx4 {vr(64+4*tt)}, v{V_OUT}, {SRD_O}, s50 offen {OPT['ost']}")
    A("s_waitcnt lgkmcnt(0)", "s_barrier", f"s_cmp_eq_u32 {S_W}, 0", "s_cbranch_scc0 L_red_end")
    for g in range(4):
        A(f"ds_read_b128 {vr(80+8*g)}, v30 offset:{g*2048}", f"ds_read_b128 {vr(84+8*g)}, v30 offset:{g*2048+16}")
    if OPT['own']: A("ds_read_b128 v[36:39], v44 offset:8192")
    A("s_waitcnt lgkmcnt(0)")
    for g in range(1, 4):
        for k in range(4): A(f"v_pk_add_f32 v[{80+2*k}:{81+2*k}], v[{80+2*k}:{81+2*k}], v[{80+8*g+2*k}:{81+8*g+2*k}]")
    if OPT['own']: A(unpack_add(80, 36, False))
    for k in range(4): A(f"v_cvt_pk_bf16_f32 v{72+k}, v{80+2*k}, v{81+2*k}")
    A(f"s_add_u32 s50, s32, {8*32768}")
    A(f"buffer_store_dwordx4 {vr(72)}, v{V_OUT}, {SRD_O}, s50 offen {OPT['ost']}")
    A("L_red_end:")
    L2, n = hazards(L)
    return L2

def dump_regs(regs, slot, kind='v'):
    L = []; A = lambda *x: L.extend(II(*x))
    A("s_add_u32 s66, s58, 0x4000000", "s_addc_u32 s67, s59, 0",
      "s_lshl_b32 s50, s2, 2", f"s_add_u32 s50, s50, {S_W}", "s_lshl_b32 s50, s50, 16",
      f"v_lshlrev_b32 v253, 2, {V_LANE}", "v_add_u32 v253, s50, v253")
    for i, r in enumerate(regs):
        if kind == 'a':
            A(f"v_accvgpr_read_b32 v254, a{r}", "s_nop 0")
            A(f"global_store_dword v253, v254, s[66:67]")
        else:
            A(f"global_store_dword v253, v{r}, s[66:67]")
        A("v_add_u32 v253, 256, v253")
    A("s_waitcnt vmcnt(0)")
    return L

def main_kernel():
    L = []
    L += setup()
    L += stamp("start")
    L += phase_q()
    L += stamp("q_done")
    if OPT['dump'] == 'q':
        L += II("s_nop 7") + dump_regs([qfrag(t, s) + k for t in range(5) for s in range(4) for k in range(4)], 0)
        L += II("s_waitcnt vmcnt(0)", "s_endpgm")
    L += attention()
    if OPT['dump'] == 'o':
        L += II("s_nop 7") + dump_regs([oacc(dt, t) + k for t in range(5) for dt in range(8) for k in range(4)] + [lacc(t) for t in range(5)], 0, 'a')
        L += II("s_waitcnt vmcnt(0)", "s_endpgm")
    e, q = o_epilogue(); L += e
    L += stamp("o_done")
    if OPT.get('stop') == 'o':
        L += II("s_waitcnt vmcnt(0)") + stamp("end") + stamp_dump() + II("L_main_end:", "s_endpgm") + safe_paths()
        return L
    e, q = out_proj(q); L += e
    L += stamp("op_done")
    if OPT['fused']:
        L += reduce_phase()
        L += stamp("red_done")
    L += tr_dump()
    L += II("s_waitcnt vmcnt(0)")
    L += stamp("end")
    L += stamp_dump()
    L += II("L_main_end:", "s_endpgm")
    L += OWN_OOL
    L += safe_paths()
    return L

def reduce_kernel():
    L = []; A = lambda *x: L.extend(II(*x))
    A("s_cmp_ge_u32 s2, 256", "s_cbranch_scc1 L_red_end")
    A("s_load_dwordx2 s[4:5], s[0:1], 80", "s_load_dwordx2 s[6:7], s[0:1], 96")
    A("v_lshrrev_b32 v2, 6, v0", "v_and_b32 v1, 63, v0", "s_nop 0", "v_readfirstlane_b32 s12, v2", "s_nop 3")
    A("s_waitcnt lgkmcnt(0)")
    A("s_mul_i32 s13, s2, 9", "s_add_u32 s13, s13, s12", "s_lshl_b32 s13, s13, 14")
    A("s_add_u32 s16, s6, s13", "s_addc_u32 s17, s7, 0", "s_and_b32 s17, s17, 0xffff", "s_mov_b32 s18, 16384", "s_mov_b32 s19, 0x20000")
    A("v_lshlrev_b32 v2, 4, v1")
    for p in range(16):
        A(f"buffer_load_dwordx4 v[{8+4*p}:{11+4*p}], v2, s[16:19], 0 offen offset:{(p%4)*1024}" if p < 4 else
          f"buffer_load_dwordx4 v[{8+4*p}:{11+4*p}], v2, s[16:19], s{20+p//4} offen offset:{(p%4)*1024}")
        if p == 3: A("s_mov_b32 s21, 4096", "s_mov_b32 s22, 8192", "s_mov_b32 s23, 12288")
    A("s_lshr_b32 s14, s2, 4", "s_and_b32 s15, s2, 15",
      "s_and_b32 s24, s14, 7", "s_lshr_b32 s25, s14, 3",
      "s_mul_i32 s24, s24, 144", "s_lshl_b32 s26, s12, 4", "s_add_u32 s24, s24, s26", "s_lshl_b32 s24, s24, 11",
      "s_lshl_b32 s25, s25, 10", "s_lshl_b32 s15, s15, 6", "s_add_u32 s24, s24, s25", "s_add_u32 s24, s24, s15")
    A("v_and_b32 v3, 15, v1", "v_lshlrev_b32 v3, 11, v3", "v_lshrrev_b32 v4, 4, v1", "v_lshl_add_u32 v3, v4, 4, v3")
    A("s_mov_b32 s28, s4", "s_and_b32 s29, s5, 0xffff", "s_mov_b32 s30, 2359296", "s_mov_b32 s31, 0x20000")
    acc = 80
    for p in range(16):
        A(f"s_waitcnt vmcnt({15-p})")
        for k in range(4):
            r = 8 + 4 * p + k
            if p == 0:
                A(f"v_lshlrev_b32 v{acc+2*k}, 16, v{r}", f"v_and_b32 v{acc+2*k+1}, 0xffff0000, v{r}")
            else:
                A(f"v_lshlrev_b32 v6, 16, v{r}", f"v_and_b32 v7, 0xffff0000, v{r}",
                  f"v_add_f32 v{acc+2*k}, v{acc+2*k}, v6", f"v_add_f32 v{acc+2*k+1}, v{acc+2*k+1}, v7")
    for k in range(4): A(f"v_cvt_pk_bf16_f32 v{8+k}, v{acc+2*k}, v{acc+2*k+1}")
    A("buffer_store_dwordx4 v[8:11], v3, s[28:31], s24 offen")
    A("s_waitcnt vmcnt(0)")
    A("L_red_end:", "s_endpgm")
    return L

def kernel_text(name, body, vgpr, accum, sgpr=102):
    return f""".globl {name}
.p2align 8
.type {name},@function
{name}:
{text(body)}
"""
def kd(name, nfv, accum, sgpr=102):
    return f""".amdhsa_kernel {name}
  .amdhsa_next_free_vgpr {nfv}
  .amdhsa_next_free_sgpr {sgpr}
  .amdhsa_accum_offset {accum}
  .amdhsa_group_segment_fixed_size 0
  .amdhsa_kernarg_size 104
  .amdhsa_user_sgpr_count 2
  .amdhsa_user_sgpr_kernarg_segment_ptr 1
  .amdhsa_system_sgpr_workgroup_id_x 1
.end_amdhsa_kernel
"""

def build():
    stamp_id[0] = 0; STAMPS.clear()
    k1 = NAME + "_kernel"; k2 = "reduce_heads_kernel"
    m = main_kernel()
    hdr = "; fused q-projection + attention + out-projection; the 16 head-pair partials of an output slice are summed by its owner\n"
    if OPT['fused']:
        hdr += f"; @launch grid=(256,1,1) block=(256,1,1) lds=163840\n"
    else:
        hdr += f"; @launch kernel={k1} grid=(256,1,1) block=(256,1,1) lds=163840\n"
        hdr += f"; @launch kernel={k2} grid=(256,1,1) block=(576,1,1) lds=0\n"
    s = hdr + '.amdgcn_target "amdgcn-amd-amdhsa--gfx950"\n.text\n'
    s += kernel_text(k1, m, 512, 256)
    if not OPT['fused']: s += kernel_text(k2, reduce_kernel(), 96, 96)
    s += '.section .rodata,"a"\n.p2align 6\n' + kd(k1, 512, 256)
    if not OPT['fused']: s += ".p2align 6\n" + kd(k2, 96, 96, 40)
    return s

if __name__ == "__main__":
    ap = argparse.ArgumentParser()
    ap.add_argument("-o", default="cdna_kernels/" + NAME + ".s")
    ap.add_argument("--dump"); ap.add_argument("--stamps", action="store_true"); ap.add_argument("-v", action="store_true")
    ap.add_argument("--opt", action="append", default=[])
    a = ap.parse_args()
    OPT['dump'] = a.dump; OPT['stamps'] = a.stamps; OPT['verbose'] = a.v
    for o in a.opt:
        k, v = o.split("=", 1)
        OPT[k] = {'True': True, 'False': False}.get(v, int(v) if v.lstrip('-').isdigit() else v)
    s = build()
    open(a.o, "w").write(s)
    if a.stamps:
        import json; json.dump(STAMPS, open(a.o + ".stamps.json", "w"))
    print("wrote", a.o, len(s), "bytes")
```

```python
import sys, argparse
from ir import *

NAME = "concat_heads__gqa_block_cached__mha_block_cached__near_ridge"
OPT = dict(wsoff=0, own=True, early=True, l2pf=False, np1=0, pfw=1, pfkv=0, pfkvnt=False, psleep=8, ost='', lthr=0, start2=True, pf=2, pfnt=False, fused=True, rld='sc1', rot=True, wnt=False, xnt=False, wont=False, bursts=(3, 6, 9), dump=None, stamps=False, stop=None, kvnt=True, pst="sc1", verbose=False)

VB = 0
KB = 65536
WB = 16384
XB = 114688
WOA = 131072
WOB = 98304
OB = 0
def kphys(k): return ((k + 1) & 3) * 16384
def vphys(k): return (k & 3) * 16384

SRD_X, SRD_WQ, SRD_K, SRD_V, SRD_WO, SRD_P = "s[4:7]", "s[8:11]", "s[12:15]", "s[16:19]", "s[20:23]", "s[24:27]"
SRD_F, SRD_D, SRD_O = "s[68:71]", "s[72:75]", "s[80:83]"
S_W, S_U, S_QH, S_CNT = "s28", "s29", "s30", "s31"
S_SOFFX, S_SOFFW0, S_UNUSED, S_MW, S_MX, S_DSLOT, S_RSLOT, S_DW, S_DX = "s32", "s33", "s34", "s35", "s36", "s37", "s38", "s39", "s40"
S_BW, S_BX = "s41", "s42"
S_SOFFK, S_SOFFV, S_MK, S_MV = "s45", "s46", "s47", "s48"
S_T0, S_T1, S_T2, S_T3 = "s50", "s51", "s52", "s53"
S_HP, S_B, S_BR, S_CL = "s54", "s55", "s56", "s57"
S_WS = "s[58:59]"
S_SOFFP = "s60"
S_STAMP = "s[62:63]"
S_FLAG = "s64"
S_SAFE = "s61"
S_BX3 = "s38"
LTHR = 0x4b800000
S_KS, S_X0, S_W0 = "s88", "s89", "s87"
S_TAU, S_TB, S_TQ, S_T4N, S_TMASK, S_TSH, S_TM, S_TS = "s78", "s79", "s43", "s44", "s34", "s49", "s61", "s95"

V_LANE = "v1"
V_WQR = [2, 3, 4, 5]; V_XR = 6; V_XR4 = 14; V_OW4 = 50; V_OWB = 51
V_WQD = [7, 8, 9, 10]; V_XD = [11, 12, 13]; V_TG, V_TI, V_TB, V_TV = 14, 15, 62, 63
V_KD = [16, 17, 18, 19]; V_VD = [20, 21]
V_KR = [22, 23, 24, 25]; V_VR = [26 + i for i in range(8)]
V_WOD = [34, 35, 36, 37]; V_WOR = [38, 39, 40, 41]
V_OW, V_OR, V_OR8, V_PS = 42, 43, 44, 45
VT = [46 + i for i in range(18)]
RB = 64
def grp(t, s): return RB + (t * 4 + s) * 8
def qacc(dt, t): return grp(t, dt >> 1) + 4 * (dt & 1)
def qfrag(t, s): return grp(t, s)
def Sreg(kt, t): return grp(t, kt) + 4
def Preg(par, t): return grp(t, 2 + par) + 4
def cinit(t): return 224 + 4 * t
V_C0, V_C1 = 244, 245
def vr(b, n=4): return f"v[{b}:{b+n-1}]"
def ar(b, n=4): return f"a[{b}:{b+n-1}]"
def oacc(dt, t): return t * 32 + dt * 4
def lacc(t): return 160 + 4 * t
A_ONES = 180
def abuf(i): return 184 + 4 * i
def bbuf(t): return [48, 52, 56, 60, 248][t]
def kbuf(kt, s): return 216 + 4 * (kt * 4 + s)

MF = "v_mfma_f32_16x16x32_bf16"
def mfma(d, a, b, c): return I(f"{MF} {d}, {a}, {b}, {c}")
SCALE = (128 ** -0.5) * 1.4426950408889634
import struct
def f2u(x): return struct.unpack("<I", struct.pack("<f", x))[0]

def NT(): return " nt" if OPT['kvnt'] else ""

def CNTOFF(): return 128 if OPT.get('dbgst') is not None else 0
stamp_id = [0]
def stamp(name):
    if not OPT['stamps']: return []
    i = stamp_id[0]; stamp_id[0] += 1
    STAMPS.append(name)
    return II("s_memrealtime s[66:67]", "s_memtime s[64:65]", "s_waitcnt lgkmcnt(0)",
              f"v_writelane_b32 v0, s66, {i}", f"v_writelane_b32 v0, s64, {32 + i}")
def stamp_dump():
    if not OPT['stamps']: return []
    if OPT.get('dbgst') is not None:
        return II(f"s_cmp_eq_u32 s2, {OPT['dbgst']}", "s_cbranch_scc0 L_nodbg", f"s_cmp_eq_u32 {S_W}, 0", "s_cbranch_scc0 L_nodbg",
                  "v_readlane_b32 s50, v0, 0", "s_nop 3", "v_subrev_u32 v0, s50, v0",
                  f"v_lshlrev_b32 v1, 2, {V_LANE}", "v_cmp_gt_u32 vcc, 16, v1", f"v_lshrrev_b32 v2, 2, v1", "v_mov_b32 v3, 0x1000", "v_cmp_gt_u32 vcc, 16, v2", "s_nop 1",
                  "v_cndmask_b32 v1, v3, v1, vcc", f"buffer_store_dword v0, v1, {SRD_D}, 0 offen", "L_nodbg:")
    return II("s_add_u32 s62, s58, 0x8000000", "s_addc_u32 s63, s59, 0", "s_lshl_b32 s65, s2, 2", f"s_add_u32 s65, s65, {S_W}", "s_lshl_b32 s65, s65, 8",
              f"v_lshlrev_b32 v1, 2, {V_LANE}", "v_add_u32 v1, s65, v1", "global_store_dword v1, v0, s[62:63]")
STAMPS = []

def setup():
    L = []
    A = lambda *x: L.extend(II(*x))
    A("s_cmp_ge_u32 s2, 256", "s_cbranch_scc1 L_main_end")
    A("s_load_dwordx8 s[68:75], s[0:1], 0", "s_load_dwordx2 s[76:77], s[0:1], 32",
      "s_load_dwordx8 s[80:87], s[0:1], 40", "s_load_dwordx2 s[88:89], s[0:1], 72",
      f"s_load_dwordx2 {S_WS}, s[0:1], 96", "s_load_dwordx4 s[96:99], s[0:1], 80")
    A("s_and_b32 s50, s2, 7", "s_lshr_b32 s51, s2, 3",
      f"s_lshr_b32 {S_BR}, s50, 2",
      "s_and_b32 s52, s50, 3", "s_lshl_b32 s52, s52, 2", "s_and_b32 s53, s51, 3", f"s_add_u32 {S_HP}, s52, s53",
      f"s_lshr_b32 {S_B}, s51, 2",
      f"s_lshl_b32 s52, {S_BR}, 3", f"s_add_u32 {S_CL}, s52, {S_B}")
    A("v_lshrrev_b32 v46, 6, v0", f"v_and_b32 {V_LANE}, 63, v0", "s_nop 0", f"v_readfirstlane_b32 {S_W}, v46", "s_nop 3")
    A(f"s_lshr_b32 {S_U}, {S_W}, 1", f"s_and_b32 {S_QH}, {S_W}, 1", f"s_mov_b32 {S_SAFE}, 0")
    A(lane_consts_q())
    A("s_waitcnt lgkmcnt(0)")
    A(f"s_cmp_eq_u32 {S_BR}, 1")
    for i in range(8): A(f"s_cselect_b32 s{68+i}, s{80+i}, s{68+i}")
    A("s_cselect_b32 s76, s88, s76", "s_cselect_b32 s77, s89, s77")
    def srd(dst, lo, hi, off_expr_regs, nrec):
        A(f"s_add_u32 s{dst}, s{lo}, s50", f"s_addc_u32 s{dst+1}, s{hi}, 0", f"s_and_b32 s{dst+1}, s{dst+1}, 0xffff")
        A(nrec, f"s_mov_b32 s{dst+3}, 0x20000")
    A(f"s_mul_i32 s50, {S_B}, 147456"); srd(4, 68, 69, None, "s_mov_b32 s6, 147456")
    A(f"s_lshl_b32 s50, {S_HP}, 9"); srd(8, 74, 75, None, "s_sub_u32 s10, 4194304, s50")
    A(f"s_lshl_b32 s50, {S_B}, 5", f"s_lshl_b32 s51, {S_HP}, 1", "s_add_u32 s50, s50, s51", f"s_add_u32 s50, s50, {S_U}", "s_lshl_b32 s50, s50, 17")
    srd(12, 70, 71, None, "s_mov_b32 s14, 131072")
    srd(16, 72, 73, None, "s_mov_b32 s18, 131072")
    A(f"s_lshl_b32 s50, {S_HP}, 18", f"s_lshl_b32 s51, {S_W}, 8", "s_add_u32 s50, s50, s51")
    A("s_sub_u32 s52, 262144, s51")
    srd(20, 76, 77, None, "s_mov_b32 s22, s52")
    A(f"s_lshl_b32 s50, {S_HP}, 18"); srd(84, 76, 77, None, "s_mov_b32 s86, 262144")
    A(f"s_mul_i32 s50, {S_CL}, 2359296", f"s_add_u32 s50, s50, {hex(OPT['wsoff'])}"); srd(24, 58, 59, None, "s_mov_b32 s26, 2359296")
    if OPT['fused']:
        A(f"s_mul_i32 s50, {S_CL}, 4608", f"s_add_u32 s50, s50, {hex(OPT['wsoff'] + 0x2400000 + 0x40000)}"); srd(68, 58, 59, None, "s_mov_b32 s70, 4608")
        A("s_mov_b32 s72, s98", "s_and_b32 s73, s99, 0xffff", "s_mov_b32 s74, 256", "s_mov_b32 s75, 0x20000")
        A("s_mov_b32 s80, s96", "s_and_b32 s81, s97, 0xffff", "s_mov_b32 s82, 2359296", "s_mov_b32 s83, 0x20000")
        A(f"s_lshl_b32 s50, {S_W}, 7", f"s_lshl_b32 s51, {S_HP}, 2", "s_add_u32 s50, s50, s51",
          f"v_lshlrev_b32 v46, 9, {V_LANE}", "v_add_u32 v46, s50, v46", "v_mov_b32 v47, 0",
          f"buffer_store_dword v47, v46, {SRD_F}, 0 offen sc1" if not OPT.get('x_noclr') else "s_nop 0")
    return L

def lane_consts_q():
    L = []; A = lambda *x: L.extend(II(*x))
    l = V_LANE; t0, t1, t2, t3, t4, t5 = [f"v{x}" for x in VT[:6]]
    A(f"v_lshrrev_b32 {t0}, 4, {l}", f"v_bfe_u32 {t1}, {l}, 2, 2", f"v_and_b32 {t2}, 3, {l}", f"v_and_b32 {t3}, 15, {l}")
    for n in range(4):
        A(f"v_add_u32 {t4}, {4*n}, {t0}", f"v_xor_b32 {t4}, {t4}, {t3}", f"v_lshlrev_b32 {t4}, 4, {t4}",
          f"v_lshl_add_u32 v{V_KD[n]}, {t0}, 8, {t4}")
    for n in range(2):
        A(f"v_add_u32 {t4}, {4*n}, {t0}", f"v_lshlrev_b32 {t4}, 1, {t4}", f"v_xor_b32 {t4}, {t4}, {t3}", f"v_lshlrev_b32 {t4}, 4, {t4}",
          f"v_lshl_add_u32 v{V_VD[n]}, {t0}, 8, {t4}")
    A(f"v_lshrrev_b32 {t4}, 5, {l}")
    A(f"v_bfe_u32 {t5}, {l}, 4, 1")
    for j in range(4):
        d = f"v{V_WQD[j]}"
        A(f"v_add_u32 {d}, {2*j}, {t4}",
          f"v_and_b32 v{VT[6]}, 3, {d}", f"v_lshlrev_b32 v{VT[6]}, 2, v{VT[6]}", f"v_xor_b32 v{VT[6]}, v{VT[6]}, {t3}", f"v_lshlrev_b32 v{VT[6]}, 4, v{VT[6]}",
          f"v_lshlrev_b32 {d}, 13, {d}", f"v_add_u32 {d}, {d}, v{VT[6]}", f"v_lshl_add_u32 {d}, {t5}, 8, {d}")
        if j: A(f"v_subrev_u32 {d}, {1024*j}, {d}")
    A(f"v_lshlrev_b32 {t4}, 1, {t0}", f"v_mov_b32 {t5}, 0x78", f"v_lshrrev_b32 {t4}, {t4}, {t5}", f"v_and_b32 {t4}, 3, {t4}",
      f"v_xor_b32 {t4}, {t4}, {t2}", f"v_lshlrev_b32 {t4}, 4, {t4}",
      f"v_lshrrev_b32 {t5}, 2, {l}", f"v_lshl_add_u32 {t4}, {t5}, 10, {t4}")
    for j in range(2):
        A(f"v_add_u32 v{V_XD[j]}, {j*16384 - 1024*j}, {t4}")
    A(f"s_lshl_b32 s50, {S_W}, 1", "s_lshr_b32 s50, 0x78, s50", "s_and_b32 s50, s50, 3",
      f"v_xor_b32 {t4}, s50, {t2}", f"v_lshlrev_b32 {t4}, 4, {t4}", f"v_lshl_add_u32 {t4}, {t5}, 10, {t4}",
      f"s_lshl_b32 s50, {S_W}, 12", f"s_lshl_b32 s51, {S_W}, 15", "s_sub_u32 s50, s50, s51", f"s_add_u32 s50, s50, {128*1024}",
      f"v_add_u32 v{V_XD[2]}, s50, {t4}")
    A(f"v_lshl_add_u32 {t4}, {t0}, 3, {t1}", f"v_lshlrev_b32 {t4}, 9, {t4}", f"v_lshl_add_u32 {t4}, {t2}, 4, {t4}",
      f"s_lshl_b32 s50, {S_U}, 8", f"s_add_u32 s50, s50, {WB}", f"v_add_u32 {t4}, s50, {t4}")
    A(f"s_lshl_b32 s51, {S_QH}, 1", f"v_xor_b32 {t1}, s51, {t1}")
    for s in range(4):
        A(f"v_xor_b32 {t5}, {s}, {t1}", f"v_lshl_add_u32 v{V_WQR[s]}, {t5}, 6, {t4}")
    A(f"v_lshrrev_b32 {t4}, 2, {t3}", f"v_lshlrev_b32 {t4}, 1, {t4}", f"v_mov_b32 {t5}, 0x78", f"v_lshrrev_b32 {t4}, {t4}, {t5}", f"v_and_b32 {t4}, 3, {t4}",
      f"v_xor_b32 {t4}, {t4}, {t0}", f"v_lshlrev_b32 {t4}, 4, {t4}", f"v_lshl_add_u32 {t4}, {t3}, 6, {t4}",
      f"s_mul_i32 s50, {S_QH}, 5120", f"s_add_u32 s50, s50, {XB}", f"v_add_u32 v{V_XR}, s50, {t4}", f"v_add_u32 v{V_XR4}, {XB + 4096}, {t4}")
    return L

def lane_consts_rest():
    L = []; A = lambda *x: L.extend(II(*x))
    l = V_LANE; t0, t1, t2, t3, t4, t5, t6 = [f"v{x}" for x in VT[:7]]
    A(f"v_lshrrev_b32 {t0}, 4, {l}", f"v_bfe_u32 {t1}, {l}, 2, 2", f"v_and_b32 {t2}, 3, {l}", f"v_and_b32 {t3}, 15, {l}")
    A(f"s_lshl_b32 s50, {S_U}, 13", f"s_add_u32 s51, s50, {KB}", f"v_lshlrev_b32 {t4}, 8, {t3}", f"v_add_u32 {t4}, s51, {t4}")
    A(f"s_lshl_b32 s51, {S_QH}, 3", f"v_xor_b32 {t6}, s51, {t3}")
    for s in range(4):
        A(f"v_add_u32 {t5}, {4*s}, {t0}", f"v_xor_b32 {t5}, {t5}, {t6}", f"v_lshl_add_u32 v{V_KR[s]}, {t5}, 4, {t4}")
    A(f"v_lshrrev_b32 {t4}, 2, {l}", f"v_and_b32 {t5}, 7, {t4}", f"v_lshlrev_b32 {t5}, 1, {t5}",
      f"v_lshlrev_b32 {t4}, 8, {t4}", f"v_add_u32 {t4}, s50, {t4}",
      f"v_and_b32 {t6}, 1, {t2}", f"v_lshl_add_u32 {t4}, {t6}, 3, {t4}",
      f"v_lshrrev_b32 {t6}, 1, {t2}",
      f"s_lshl_b32 s51, {S_QH}, 3", f"v_xor_b32 {t5}, s51, {t5}")
    for dt in range(8):
        d = f"v{V_VR[dt]}"
        A(f"v_add_u32 {d}, {2*dt}, {t6}", f"v_xor_b32 {d}, {d}, {t5}", f"v_lshl_add_u32 {d}, {d}, 4, {t4}")
    A(f"v_lshlrev_b32 {t4}, 2, {t0}", f"v_xor_b32 {t4}, {t4}, {t3}", f"v_lshlrev_b32 {t4}, 4, {t4}", f"v_lshl_add_u32 {t4}, {t0}, 10, {t4}")
    for n in range(4):
        A(f"v_add_u32 v{V_WOD[n]}, {n*3072}, {t4}")
    A(f"v_lshrrev_b32 {t4}, 2, {l}", f"v_lshlrev_b32 {t4}, 8, {t4}", f"v_lshl_add_u32 {t4}, {t2}, 4, {t4}",
      f"s_lshl_b32 s50, {S_W}, 13", f"s_add_u32 s50, s50, {WOB}", f"v_add_u32 {t4}, s50, {t4}")
    for cp in range(4):
        A(f"v_xor_b32 {t5}, {cp}, {t1}", f"v_lshl_add_u32 v{V_WOR[cp]}, {t5}, 6, {t4}")
    A(f"s_mul_i32 s50, {S_QH}, 40960", f"s_lshl_b32 s51, {S_U}, 12", "s_add_u32 s50, s50, s51",
      f"v_lshlrev_b32 v{V_OR}, 4, {l}", f"v_add_u32 v{V_OW}, s50, v{V_OR}", f"v_add_u32 v{V_OR8}, 0x10000, v{V_OR}")
    A(f"s_lshl_b32 s50, {S_HP}, 10", f"v_add_u32 v{V_PS}, s50, v{V_OR}")
    return L

def dma(voff, srd, soff, imm, nt=False):
    o = f" offset:{imm}" if imm else ""
    return I(f"buffer_load_dwordx4 v{voff}, {srd}, {soff} offen{o}{' nt' if nt else ''} lds")

def kv_group(kind, m0expr, soffreg):
    if kind == 'K':
        return [dma(V_KD[n], SRD_K, soffreg, n * 1024, OPT['kvnt']) for n in range(4)]
    return [dma(V_VD[n & 1], SRD_V, soffreg, n * 1024, OPT['kvnt']) for n in range(4)]

def kv_tile_full_unused(kind, j):
    L = []
    base = (KB + kphys(j)) if kind == 'K' else (VB + vphys(j))
    for gI in range(2):
        L += II(f"s_lshl_b32 s50, {S_U}, 13", f"s_add_u32 m0, s50, {base + gI*4096}", f"s_mov_b32 s51, {j*8192 + gI*4096}")
        L += kv_group(kind, None, "s51")
    return L

def stage_setup_scalar():
    rot = OPT['rot']
    R = II("s_lshr_b32 s50, s2, 3", "s_and_b32 s51, s50, 3", "s_lshr_b32 s50, s50, 2")
    if rot in (True, 1):   R += II("s_lshl_b32 s51, s51, 2", "s_lshl_b32 s50, s50, 1", "s_add_u32 s52, s50, s51")
    elif rot == 2:         R += II("s_lshr_b32 s50, s50, 1", "s_add_u32 s52, s50, s51", "s_lshl_b32 s52, s52, 2")
    elif rot == 3:         R += II("s_add_u32 s52, s50, s51", "s_lshl_b32 s52, s52, 2")
    elif rot == 4:         R += II("s_lshr_b32 s50, s50, 2", "s_lshl_b32 s50, s50, 3", "s_lshl_b32 s51, s51, 2", "s_add_u32 s52, s50, s51")
    elif rot == 5:         R += II("s_mul_i32 s50, s50, 3", "s_lshl_b32 s51, s51, 2", "s_add_u32 s52, s50, s51")
    elif rot == 6:         R += II("s_lshl_b32 s52, s50, 1")
    elif rot == 7:         R += II("s_lshl_b32 s50, s50, 1", "s_and_b32 s51, s51, 1", "s_lshl_b32 s51, s51, 3", "s_add_u32 s52, s50, s51")
    else:                  R += II("s_mov_b32 s52, 0")
    return R + II("s_and_b32 s52, s52, 15",
              f"s_lshl_b32 s50, s52, 6", f"s_lshl_b32 s51, {S_W}, 15", f"s_add_u32 {S_SOFFX}, s50, s51",
              f"s_lshl_b32 s50, s52, 18", f"s_lshl_b32 s51, {S_W}, 16", f"s_add_u32 {S_SOFFW0}, s50, s51",
              f"s_lshl_b32 s50, {S_W}, 12", f"s_add_u32 {S_BW}, s50, {WB}",
              f"s_lshl_b32 s50, {S_W}, 11", f"s_add_u32 {S_BX}, s50, {XB}",
              f"s_lshl_b32 s50, {S_W}, 8", f"s_add_u32 {S_BX3}, s50, {XB + 8192}",
              f"s_lshl_b32 {S_TQ}, {S_QH}, 12",
              f"s_lshl_b32 s50, {S_U}, 13", f"s_add_u32 s50, s50, {S_TQ}", f"s_add_u32 {S_MK}, s50, {KB}", f"s_add_u32 {S_MV}, s50, {VB}")

def stage_dma_list(slot):
    seq = []
    seq.append(([I(f"s_add_u32 m0, {S_BW}, {slot*16384}")], dma(V_WQD[0], SRD_WQ, S_SOFFW0, 0, OPT['wnt'])))
    for j in range(1, 4): seq.append(([], dma(V_WQD[j], SRD_WQ, S_SOFFW0, j * 1024, OPT['wnt'])))
    seq.append(([I(f"s_add_u32 m0, {S_BX}, {slot*9216}")], dma(V_XD[0], SRD_X, S_SOFFX, 0, OPT['xnt'])))
    seq.append(([], dma(V_XD[1], SRD_X, S_SOFFX, 1024, OPT['xnt'])))
    q = dma(V_XD[2], SRD_X, S_SOFFX, 0, OPT['xnt'])
    seq.append(([I(f"s_add_u32 m0, {S_BX3}, {slot*9216}")], Masked(q, 0xffff)))
    return seq

def place_dma(S, seq, gaps):
    k = 0
    last = None
    for e in seq:
        if e[0]:
            for p in e[0]: S.put(gaps[k], p)
            k += 1
        S.put(gaps[k], e[1]); last = gaps[k]
        if len(e) > 2:
            for p in e[2]: S.put(gaps[k] + 1, p)
        k += 1
    return last

def stage_advance_w():
    return II(f"s_add_u32 {S_SOFFW0}, {S_SOFFW0}, 262144", f"s_and_b32 {S_SOFFW0}, {S_SOFFW0}, 0x3fffff")
def stage_advance_x():
    return II(f"s_add_u32 {S_SOFFX}, {S_SOFFX}, 64", f"s_and_b32 {S_SOFFX}, {S_SOFFX}, 0xfffffbff")
def stage_advance(): return stage_advance_w() + stage_advance_x()

def straight(seq):
    L = []
    for e in seq:
        L += e[0]
        if e[0]: L += II("s_nop 0")
        L.append(e[1])
        if len(e) > 2: L += e[2]
    return L

def stage_issue_straight(slot):
    return straight(stage_dma_list(slot)) + stage_advance()

def wq_read(dt, h2, slot):
    if OPT.get('x_noread'): return I('s_nop 0')
    s, hf = dt >> 1, dt & 1
    b = abuf(dt) + 2 * h2
    off = slot * 16384 + hf * 8 + h2 * 2048
    return I(f"ds_read_b64_tr_b16 {ar(b,2)}, v{V_WQR[s]}" + (f" offset:{off}" if off else ""))
def x_read(t, slot):
    if OPT.get('x_noread'): return I('s_nop 0')
    off = slot * 9216 + (0 if t == 4 else t * 1024)
    return I(f"ds_read_b128 {vr(bbuf(t))}, v{V_XR4 if t == 4 else V_XR}" + (f" offset:{off}" if off else ""))
def q_mfma(dt, t):
    if OPT.get('x_t4') and t == 4: return I("s_nop 3")
    if OPT.get('x_t45') and t == 4 and dt >= 4: return I("s_nop 3")
    return mfma(vr(qacc(dt, t)), ar(abuf(dt)), vr(bbuf(t)), vr(qacc(dt, t)))

def half_group(kind, j):
    if kind == 'K':
        pre = II(f"s_add_u32 m0, {S_MK}, {kphys(j)}", f"s_add_u32 s51, {S_TQ}, {j*8192}")
    else:
        pre = II(f"s_add_u32 m0, {S_MV}, {vphys(j)}", f"s_add_u32 s51, {S_TQ}, {j*8192}")
    g = kv_group(kind, None, "s51")
    return [(pre, g[0])] + [([], x) for x in g[1:]]

def put_dmas(S, seq, gaps):
    prev = -1
    for e, g in zip(seq, gaps):
        if e[0]:
            assert g - 1 > prev or prev < 0, (g, prev)
            for p in e[0]: S.put(g - 1, p)
        S.put(g, e[1])
        if len(e) > 2:
            for p in e[2]: S.put(g + 1, p)
        prev = g
    assert len(seq) <= len(gaps)

QTAIL = (4, 5, 6, 7)
def q_tail(): return [q_mfma(dt, t) for t in range(4) for dt in QTAIL]
SRD_T = "s[96:99]"; V_T = [10, 11, 12, 13]; S_TM, S_TS = "s35", "s36"
V_TB2 = [252, 253, 254, 255]
V_TB = [244, 245, 246, 247]
DUMMY = 151552
def burst_list():
    g = [dma(V_TB[n], SRD_T, S_TS, n * 1024, OPT['kvnt']) for n in range(4)]
    return [([I(f"s_mov_b32 m0, {S_TM}")], g[0])] + [([], x) for x in g[1:]]

def q_body(ks, with_dma, burst=False, extra_dma=None, wait=None):
    slot = ks & 3
    ms = q_tail() + [q_mfma(dt, t) for t in range(5) for dt in range(4)]
    S = Sched(ms)
    a = lambda dt, h: wq_read(dt, h, slot)
    xr = lambda t: x_read(t, slot)
    plan = {0: a(0,0), 1: a(0,1), 2: a(1,0), 3: a(1,1), 4: xr(0), 5: a(2,0), 7: a(2,1), 8: xr(1), 9: a(3,0), 11: a(3,1),
            12: xr(2), 13: xr(4), 16: xr(3), 17: a(4,0), 19: a(4,1), 20: a(5,0), 21: a(5,1), 23: a(6,0), 24: a(6,1), 25: a(7,0), 27: a(7,1)}
    for g, ins in plan.items(): S.put(g, ins)
    if with_dma:
        put_dmas(S, stage_dma_list((ks + 3) & 3), [6, 10, 14, 18, 22, 26, 29])
        w = stage_advance_w(); x = stage_advance_x()
        S.put(19, w[0]); S.put(20, w[1]); S.put(30, x[0]); S.put(31, x[1])
    if burst:
        put_dmas(S, burst_list(), [32, 33, 34, 35]) if False else None
        put_dmas(S, burst_list(), [15, 28, 31, 33])  if False else None
    if extra_dma:
        put_dmas(S, extra_dma, [6, 10, 14, 18, 22, 26, 30, 32][:len(extra_dma)])
    return S

def q_finish(S, wait, wg=33):
    S.put(wg, tr_mark(), f"s_waitcnt vmcnt({wait}) lgkmcnt(0)", tr_commit())
    S.put(wg + 1, "s_barrier")
    seq, pend = lgkm_waits(S.flat())
    assert not pend
    if OPT['verbose']: print(S.report("q_body"))
    return seq

def tr_mark():
    return [Raw("s_memtime s[100:101]")] if OPT.get('trace') else []
def tr_commit():
    return [Raw("s_mov_b32 s95, m0\n  s_mov_b32 m0, s94\n  s_nop 0\n  v_writelane_b32 v0, s100, m0\n  s_mov_b32 m0, s95\n  s_add_u32 s94, s94, 1")] if OPT.get('trace') else []
def tr_dump():
    if not OPT.get('trace'): return []
    return II("s_add_u32 s66, s58, 0x9000000", "s_addc_u32 s67, s59, 0", "s_lshl_b32 s50, s2, 2", f"s_add_u32 s50, s50, {S_W}", "s_lshl_b32 s50, s50, 8",
              f"v_lshlrev_b32 v253, 2, {V_LANE}", "v_add_u32 v253, s50, v253", "global_store_dword v253, v0, s[66:67]")

def zero_init():
    L = II("v_mov_b32 v244, 0", "v_mov_b32 v245, 0", "v_mov_b32 v246, 0", "v_mov_b32 v247, 0", "s_nop 1")
    for r in range(RB, RB + 160, 16): L += II(f"v_mfma_f32_32x32x16_bf16 v[{r}:{r+15}], v[244:247], v[244:247], 0")
    for r in range(0, 256, 16): L += II(f"v_mfma_f32_32x32x16_bf16 a[{r}:{r+15}], v[244:247], v[244:247], 0")
    return L

def phase_q():
    L = []; A = lambda *x: L.extend(II(*x))
    A("L_phase_q:")
    A(stage_setup_scalar(), stage_issue_straight(0))
    A(stamp("q_issued"))
    A(zero_init())
    A(lane_consts_rest())
    A(f"s_mov_b32 {S_CNT}, 0")
    if OPT.get('trace'): A("s_mov_b32 s94, 1", "s_memtime s[100:101]", "s_waitcnt lgkmcnt(0)", "v_writelane_b32 v0, s100, 0")
    A(f"v_mov_b32 v{VT[0]}, 0x3f803f80")
    for r in range(4): A(f"v_accvgpr_write_b32 a{A_ONES + r}, v{VT[0]}")
    for t in range(5):
        for k in range(4): A(f"v_mov_b32 v{bbuf(t)+k}, 0")
    A("s_mov_b32 s96, s12", "s_mov_b32 s97, s13", "s_mov_b32 s98, s14", "s_mov_b32 s99, s15")
    for n in range(4): A(f"v_mov_b32 v{V_TB[n]}, v{V_KD[n]}")
    if OPT.get('stst'): A(stamp("consts"))
    A(stage_issue_straight(1))
    if OPT.get('stst'): A(stamp("s1_iss"))
    A("s_waitcnt vmcnt(7)")
    if OPT.get('stst'): A(stamp("s0_land"))
    A("s_barrier")
    if OPT['fused']:
        A(f"s_cmp_eq_u32 {S_SAFE}, 1", "s_cbranch_scc1 L_no_arrive")
        A(f"s_lshl_b32 s50, {S_CL}, 2", f"s_add_u32 s50, s50, {CNTOFF()}", f"s_lshl_b32 s51, {S_W}, 14", "s_add_u32 s50, s50, s51",
          f"v_lshlrev_b32 v46, 8, {V_LANE}", "v_add_u32 v46, s50, v46", "v_mov_b32 v47, 1",
          f"buffer_atomic_add v47, v46, {SRD_D}, 0 offen sc1")
        A("L_no_arrive:")
    A(stage_issue_straight(2))
    if OPT.get('stst'): A(stamp("s2_iss"))
    A(f"s_add_u32 {S_TM}, {S_MK}, {kphys(0)}", f"s_mov_b32 {S_TS}, {S_TQ}")
    A(stamp("q_start"))
    l2 = OPT['l2pf']
    if l2:
        A(f"s_add_u32 s37, {S_TQ}, {4*8192}", "s_mov_b32 s92, s12", "s_mov_b32 s93, s13", "s_mov_b32 s94, s14", "s_mov_b32 s95, s15",
          "s_mov_b64 vcc, -1")
    bodies = []
    QOOL = []
    for k in range(4):
        S = q_body(k, True)
        if k == 1:
            put_dmas(S, burst_list(), [32, 33, 34, 35])
        if k == 3 and l2:
            g = [dma(V_OR, "s[92:95]", "s37", n * 1024, False) for n in range(4)]
            put_dmas(S, [([I(f"s_mov_b32 m0, {DUMMY}")], g[0])] + [([], x) for x in g[1:]], [32, 33, 34, 35])
        if l2:
            n_steady, n_first = [(18, 14), (22, 18), (18, 18), (22, 22)][k]
        else:
            n_steady = n_first = 14 if k == 0 else 18
        if OPT.get('b0st') and k == 0:
            for nm, g in (("g5", 5), ("g6", 7), ("g15", 15), ("g20", 20), ("g30", 31)):
                S.put(g, Raw(f"s_cmp_eq_u32 {S_CNT}, 0\n  s_cbranch_scc0 L_b0_{nm}\n  " + "\n  ".join(x.txt for x in stamp(nm)) + f"\nL_b0_{nm}:"))
        late = (k == 1) or (k == 3 and l2)
        w = tr_mark() + II(f"s_waitcnt vmcnt({n_steady}) lgkmcnt(0)")
        if n_first != n_steady:
            w += II(f"s_cbranch_vccnz L_q_first{k}", f"L_q_back{k}:")
            QOOL += II(f"L_q_first{k}:", f"s_waitcnt vmcnt({n_first})", f"s_branch L_q_back{k}")
        w += tr_commit()
        if late:
            seq, pend = lgkm_waits(S.flat())
            seq += w + II("s_barrier")
        else:
            S.put(33, w); S.put(34, "s_barrier")
            seq, pend = lgkm_waits(S.flat())
            assert not pend
        if OPT['verbose']: print(S.report("q_body"))
        bodies.append(seq)
    hist = bodies[3][-24:]
    A(".p2align 6", "L_q_loop:")
    for bi, b in enumerate(bodies):
        b2, n = hazards(b, history=hist); L.extend(b2); hist = b2[-24:]
        if OPT.get('stst') and bi < 2: A(f"s_cmp_eq_u32 {S_CNT}, 0", f"s_cbranch_scc0 L_nost{bi}", stamp(f"body{bi}"), f"L_nost{bi}:")
    A(f"s_add_u32 {S_TM}, {S_TM}, 16384", f"s_add_u32 {S_TS}, {S_TS}, 8192", f"s_add_u32 {S_CNT}, {S_CNT}, 1")
    if l2:
        A("s_mov_b64 vcc, 0", f"s_cmp_eq_u32 {S_CNT}, 1", "s_cbranch_scc1 L_q_to1", "L_q_to1_done:")
    A(f"s_cmp_eq_u32 {S_CNT}, 2", "s_cbranch_scc1 L_q_tov", "L_q_tov_done:",
      f"s_cmp_lt_u32 {S_CNT}, 3", "s_cbranch_scc1 L_q_loop")
    OOL = II("L_q_tov:", "s_mov_b32 s96, s16", "s_mov_b32 s97, s17", f"s_add_u32 {S_TM}, {S_MV}, {vphys(0)}", f"s_mov_b32 {S_TS}, {S_TQ}")
    if l2: OOL += II("s_mov_b32 s92, s12", "s_mov_b32 s93, s13", f"s_add_u32 s37, {S_TQ}, {5*8192}")
    for n in range(4): OOL += II(f"v_mov_b32 v{V_TB[n]}, v{V_VD[n & 1]}")
    OOL += II("s_branch L_q_tov_done")
    if l2: OOL += II("L_q_to1:", "s_mov_b32 s92, s16", "s_mov_b32 s93, s17", f"s_add_u32 s37, {S_TQ}, {3*8192}", "s_branch L_q_to1_done")
    OOL += QOOL
    b, n = hazards(q_finish(q_body(12, True), 18 if l2 else 14), history=hist); L.extend(b)
    b, n = hazards(q_finish(q_body(13, False, extra_dma=half_group('V', 1)), 15 if l2 else 11), history=b[-24:]); L.extend(b)
    b, n = hazards(q_finish(q_body(14, False, extra_dma=half_group('K', 2) + half_group('V', 2)), 12), history=b[-24:]); L.extend(b)
    b, n = hazards(q_finish(q_body(15, False), 12), history=b[-24:]); L.extend(b)
    A("s_branch L_q_after_ool")
    L.extend(OOL)
    A("L_q_after_ool:")
    A(stamp("q_loop_done"))
    return L

def q_tiles(s): return range(5) if s < 2 else range(4)
def q_scale(ss):
    return [I(f"v_pk_mul_f32 {vr(grp(t,s)+2*k,2)}, {vr(grp(t,s)+2*k,2)}, {vr(V_C0,2)}") for s in ss for t in q_tiles(s) for k in range(4)]
def q_cvt(ss):
    return [I(f"v_cvt_pk_bf16_f32 v{grp(t,s)+k}, v{grp(t,s)+2*k}, v{grp(t,s)+2*k+1}") for s in ss for t in q_tiles(s) for k in range(4)]
QX = 155648

def transition():
    L = []; A = lambda *x: L.extend(II(*x))
    A(f"s_add_u32 {S_SOFFK}, {S_TQ}, {4*8192}", f"s_add_u32 {S_SOFFV}, {S_TQ}, {3*8192}")
    A(f"v_mov_b32 v{V_C0}, {hex(f2u(SCALE))}", f"v_mov_b32 v{V_C1}, {hex(f2u(SCALE))}")
    A(f"s_lshl_b32 s50, {S_W}, 11", f"s_add_u32 s50, s50, {QX}", f"v_lshlrev_b32 v7, 4, {V_LANE}", "v_add_u32 v8, s50, v7",
      "s_xor_b32 s50, s50, 2048", "v_add_u32 v9, s50, v7")
    k3 = half_group('K', 3)
    seq = [k_read(kt, s, 0) for kt in range(2) for s in range(4)]
    sc = q_scale((0, 1))
    seq += II("s_nop 3") + sc
    S = Sched(q_tail())
    cv = q_cvt((0, 1))
    sh = lambda c: any(f"v{grp(4,s)+k}," in c.txt.split()[1] + "," for s in (0, 1) for k in range(4))
    cv = [c for c in cv if sh(c)] + [c for c in cv if not sh(c)]
    S.spread(cv, [min(i * 2 // 5, 15) for i in range(40)])
    S.put(5, f"ds_write_b128 v8, {vr(grp(4,0))}"); S.put(7, f"ds_write_b128 v8, {vr(grp(4,1))} offset:1024")
    seq += S.flat()
    seq += II("s_waitcnt lgkmcnt(0)", "s_barrier", f"ds_read_b128 {vr(grp(4,2))}, v9", f"ds_read_b128 {vr(grp(4,3))}, v9 offset:1024")
    sc = q_scale((2, 3))
    seq += II("s_nop 3") + k3[0][0] + sc[:8] + [k3[0][1]] + sc[8:16] + [k3[1][1]] + sc[16:24] + [k3[2][1]] + sc[24:] + [k3[3][1]]
    qk = lambda kt, ss, c: [qk_mfma(kt, s, t, c) for s in ss for t in range(5)]
    S = Sched(qk(0, (0, 1), lambda t: "0") + qk(0, (2, 3), lambda t: "0"))
    S.spread(q_cvt((2, 3)), [min(i * 5 // 16, 9) for i in range(32)])
    S.spread([f"v_mov_b32 v{Preg(1,t)+k}, 0" for t in range(5) for k in range(4)], [10 + i // 2 for i in range(20)])
    seq += S.flat()
    seq, _ = lgkm_waits(seq, final_zero=True)
    seq, n = hazards(seq); L.extend(seq)
    A(stamp("qk0_done"))
    A(f"s_cmp_eq_u32 {S_SAFE}, 1", "s_cbranch_scc1 L_safe_max")
    T = [2, 3, 4, 5, 6]
    U = [7, 8, 9, 10, 11]
    E = II("s_nop 5")
    for t in range(5): E += II(f"v_max3_f32 v{T[t]}, v{Sreg(0,t)}, v{Sreg(0,t)+1}, v{Sreg(0,t)+2}")
    for t in range(5): E += II(f"v_max_f32 v{T[t]}, v{T[t]}, v{Sreg(0,t)+3}")
    E += row_max_finish(T, U)
    S = Sched(qk(1, range(4), lambda t: vr(cinit(t))))
    sub = [f"v_add_f32 v{Sreg(0,t)+k}, v{Sreg(0,t)+k}, v{cinit(t)}" for t in range(5) for k in range(4)]
    ex = [f"v_exp_f32 v{Sreg(0,t)+k}, v{Sreg(0,t)+k}" for t in range(5) for k in range(4)]
    S.spread(sub, [i // 2 for i in range(20)])
    S.spread(ex, [min(2 + i, 19) for i in range(20)])
    E += S.flat()
    E += II("s_barrier")
    E += II("s_nop 3") + exps(1)
    E, n = hazards(E, history=L[-24:]); L.extend(E)
    A("L_max_done:", "s_nop 1")
    return L

def row_max_finish(T, U):
    E = []
    for sw in ("v_permlane32_swap_b32", "v_permlane16_swap_b32"):
        for t in range(5): E += II(f"v_mov_b32 v{U[t]}, v{T[t]}")
        for t in range(5): E += II(f"{sw} v{T[t]}, v{U[t]}")
        for t in range(5): E += II(f"v_max_f32 v{T[t]}, v{T[t]}, v{U[t]}")
    for t in range(5):
        for k in range(4): E += II(f"v_sub_f32 v{cinit(t)+k}, 0, v{T[t]}")
    return E

def safe_paths():
    L = []; A = lambda *x: L.extend(II(*x))
    T = [2, 3, 4, 5, 6]; U = [7, 8, 9, 10, 11]
    ab = [(Sreg(0, t), Sreg(1, t)) for t in range(5)]
    A("L_safe_max:")
    for t in range(5): A(f"v_mov_b32 v{T[t]}, 0xff800000")
    A(f"s_mov_b32 {S_CNT}, 0")
    A("L_safe_loop:")
    A("s_waitcnt vmcnt(0) lgkmcnt(0)", "s_barrier")
    A(f"s_and_b32 s50, {S_CNT}, 15", "s_lshl_b32 s50, s50, 13", f"s_add_u32 s51, s50, {S_TQ}", f"s_add_u32 m0, {S_MK}, {kphys(0)}", "s_nop 0")
    A(kv_group('K', None, "s51"))
    A("s_waitcnt vmcnt(0)", "s_barrier")
    A([k_read(kt, s, 0) for kt in range(2) for s in range(4)], "s_waitcnt lgkmcnt(0)")
    A(f"s_cmp_eq_u32 {S_CNT}, 16", "s_cbranch_scc1 L_safe_last")
    A([qk_mfma(kt, s, t, lambda t: "0") for kt in range(2) for s in range(4) for t in range(5)], "s_nop 7", "s_nop 7")
    for t, (a, b) in enumerate(ab):
        A(f"v_max3_f32 v{T[t]}, v{T[t]}, v{a}, v{a+1}", f"v_max3_f32 v{T[t]}, v{T[t]}, v{a+2}, v{a+3}",
          f"v_max3_f32 v{T[t]}, v{T[t]}, v{b}, v{b+1}", f"v_max3_f32 v{T[t]}, v{T[t]}, v{b+2}, v{b+3}")
    A(f"s_add_u32 {S_CNT}, {S_CNT}, 1", f"s_cmp_lt_u32 {S_CNT}, 16", "s_cbranch_scc1 L_safe_loop")
    E, n = hazards(II("s_nop 3") + row_max_finish(T, U)); L.extend(E)
    A("s_branch L_safe_loop")
    A("L_safe_last:", "s_nop 3")
    A([qk_mfma(kt, s, t, lambda t: vr(cinit(t))) for kt in range(2) for s in range(4) for t in range(5)], "s_nop 7", "s_nop 7")
    A("s_barrier")
    for t, (a, b) in enumerate(ab):
        for base in (a, b):
            for k in range(4): A(f"v_exp_f32 v{base+k}, v{base+k}")
    A("s_nop 1", "s_branch L_max_done")
    if OPT['fused']:
        A("L_cnt_spin:", f"s_mov_b32 s53, {SPIN}", "L_cnt_spin_loop:", "s_sleep 2",
          f"buffer_load_dword v15, v14, {SRD_D}, 0 offen sc1", "s_waitcnt vmcnt(0)", "v_readfirstlane_b32 s52, v15", "s_nop 3",
          "s_cmp_ge_u32 s52, 16", "s_cbranch_scc1 L_cnt_ok", "s_sub_u32 s53, s53, 1", "s_cmp_lg_u32 s53, 0", "s_cbranch_scc1 L_cnt_spin_loop", "s_branch L_cnt_ok")
    A("L_restart:", f"s_mov_b32 {S_SAFE}, 1", "s_waitcnt vmcnt(0) lgkmcnt(0)", "s_barrier")
    A(lane_consts_q())
    A("s_branch L_phase_q")
    return L

def k_read(kt, s, slotk):
    off = kphys(slotk) + kt * 4096
    return I(f"ds_read_b128 {ar(kbuf(kt, s))}, v{V_KR[s]}" + (f" offset:{off}" if off else ""))
def v_read(dt, h, slotv):
    off = vphys(slotv) + h * 4096
    return I(f"ds_read_b64_tr_b16 {ar(abuf(dt) + 2*h, 2)}, v{V_VR[dt]}" + (f" offset:{off}" if off else ""))
def qk_mfma(kt, s, t, first_c):
    c = first_c(t) if s == 0 else vr(Sreg(kt, t))
    return mfma(vr(Sreg(kt, t)), ar(kbuf(kt, s)), vr(qfrag(t, s)), c)
def pv_mfma(dt, t, par):
    return mfma(ar(oacc(dt, t)), ar(abuf(dt)), vr(Preg(par, t)), ar(oacc(dt, t)))
def rs_mfma(t, par):
    return mfma(ar(lacc(t)), ar(A_ONES), vr(Preg(par, t)), ar(lacc(t)))
def cvts(par):
    out = []
    for kt in range(2):
        for t in range(5):
            s = Sreg(kt, t); p = Preg(par, t) + 2 * kt
            out.append(I(f"v_cvt_pk_bf16_f32 v{p}, v{s}, v{s+1}"))
            out.append(I(f"v_cvt_pk_bf16_f32 v{p+1}, v{s+2}, v{s+3}"))
    return out
def exps(kt):
    return [I(f"v_exp_f32 v{Sreg(kt,t)+i}, v{Sreg(kt,t)+i}") for t in range(5) for i in range(4)]

def att_dma(j, dyn=False):
    seq = []
    if j + 4 <= 15:
        pre = II(f"s_add_u32 m0, {S_MK}, {kphys(j + 4)}")
        g = kv_group('K', None, S_SOFFK)
        seq += [(pre, g[0])] + [([], x) for x in g[1:]]
        seq[-1] = (seq[-1][0], seq[-1][1], II(f"s_add_u32 {S_SOFFK}, {S_SOFFK}, 8192"))
    if j + 3 <= 15:
        pre = II(f"s_add_u32 m0, {S_MV}, {vphys(j + 3)}")
        g = kv_group('V', None, S_SOFFV)
        s2 = [(pre, g[0])] + [([], x) for x in g[1:]]
        s2[-1] = (s2[-1][0], s2[-1][1], II(f"s_add_u32 {S_SOFFV}, {S_SOFFV}, 8192"))
        seq += s2
    return seq

def wo_dma(ks, slot_base_imm):
    seq = []
    for gI in range(2):
        pre = II(f"s_lshl_b32 s50, {S_W}, 13", f"s_add_u32 m0, s50, {slot_base_imm + gI*4096}", f"s_mov_b32 s51, {ks*32768 + gI*16384}")
        for n in range(4):
            seq.append((pre if n == 0 else [], dma(V_WOD[n], SRD_WO, "s51", n * 1024, OPT["wont"])))
    return seq

def att_body(j, vmwait, extra_dma=None):
    par_old, par_new = (j - 1) & 1, j & 1
    ms = [pv_mfma(dt, t, par_old) for dt in (5, 6, 7) for t in range(5)] + [rs_mfma(t, par_old) for t in range(5)]
    ms += [qk_mfma(kt, s, t, lambda t: vr(cinit(t))) for kt in range(2) for s in range(4) for t in range(5)]
    ms += [pv_mfma(dt, t, par_new) for dt in range(5) for t in range(5)]
    S = Sched(ms)
    cv = cvts(par_new)
    S.spread(cv, [1, 1, 3, 3, 6, 6, 8, 8, 11, 11, 13, 13, 16, 16, 18, 18, 21, 21, 23, 23])
    S.spread([k_read(kt, s, j + 1) for kt in range(2) for s in range(4)], [0, 2, 5, 7, 10, 12, 15, 17])
    vr_ = [v_read(dt, h, j) for dt in range(8) for h in range(2)]
    S.spread(vr_, [20, 22, 25, 26, 27, 28, 30, 31, 32, 33, 35, 36, 37, 38, 40, 61])
    d = att_dma(j) + (extra_dma or [])
    if j + 4 > 15 and j + 3 <= 15 and not extra_dma:
        put_dmas(S, d, [24, 29, 34, 39])
    else:
        put_dmas(S, d, [4, 9, 14, 19, 24, 29, 34, 39])
    S.spread(exps(0), list(range(41, 61)))
    S.spread(exps(1), list(range(62, 82)))
    seq = S.flat()
    seq, pend = lgkm_waits(seq)
    seq += tr_mark() + II(f"s_waitcnt vmcnt({vmwait}) lgkmcnt(0)") + tr_commit() + II("s_barrier")
    if OPT['verbose']: print(S.report(f"att_body {j}"))
    return seq

WO1 = [192, 200, 208, 216, 224, 228, 232, 236]
def wofrag(ks, m, n=4, off=0):
    if ks == 0: return ar(216 + 4 * m + off, n)
    if ks == 1: return vr(WO1[m] + off, n)
    return ar((ks - 2) * 32 + 4 * m + off, n)
def wo_read(ks, m, h):
    cp, hf = m >> 1, m & 1
    off = (32768 if (ks & 1) == 0 else 0) + hf * 8 + h * 4096
    return I(f"ds_read_b64_tr_b16 {wofrag(ks, m, 2, 2*h)}, v{V_WOR[cp]}" + (f" offset:{off}" if off else ""))

def wo_prefetch():
    n = OPT['pfw']
    L = II(f"s_lshl_b32 s50, {S_B}, 15", f"s_lshl_b32 s51, {S_W}, 13", "s_add_u32 s50, s50, s51")
    nt = " nt" if OPT['pfnt'] else ""
    if n == 8:
        L += II(f"v_lshlrev_b32 v46, 4, {V_LANE}")
        for i in range(8):
            L += II(f"s_add_u32 s51, s50, {i*1024}", f"buffer_load_dwordx4 v[252:255], v46, s[84:87], s51 offen{nt}")
    else:
        sh = {1: 7, 2: 6, 4: 5}[n]
        L += II(f"v_lshlrev_b32 v46, {sh}, {V_LANE}")
        for i in range(n):
            L += II(f"s_add_u32 s51, s50, {i * (64 << sh)}", f"buffer_load_dword v47, v46, s[84:87], s51 offen{nt}")
    return L

def attention():
    L = []; A = lambda *x: L.extend(II(*x))
    L += transition()
    A(stamp("att_start"))
    A(f"s_mov_b32 {S_CNT}, 0")
    bodies = [att_body(j, 16) for j in range(4)]
    hist = bodies[3][-24:]
    A(".p2align 6", "L_att_loop:")
    for b in bodies:
        b2, n = hazards(b, history=hist); L.extend(b2); hist = b2[-24:]
    if 0 <= OPT['pf'] < 3:
        A(f"s_cmp_eq_u32 {S_CNT}, {OPT['pf']}", "s_cbranch_scc0 L_att_nopf", wo_prefetch(), "L_att_nopf:")
    A(f"s_add_u32 {S_CNT}, {S_CNT}, 1", f"s_cmp_lt_u32 {S_CNT}, 3", "s_cbranch_scc1 L_att_loop")
    b, n = hazards(att_body(12, 12), history=hist); L.extend(b); hist = b[-24:]
    if OPT['pf'] == 12: A(wo_prefetch())
    b, n = hazards(att_body(13, 12, extra_dma=wo_dma(0, WOA)), history=hist); L.extend(b); hist = b[-24:]
    if OPT['pf'] == 13: A(wo_prefetch())
    b, n = hazards(att_body(14, 16, extra_dma=wo_dma(1, WOB)), history=hist); L.extend(b); hist = b[-24:]
    A(stamp("att_loop_done"))
    ms = [pv_mfma(dt, t, 0) for dt in (5, 6, 7) for t in range(5)] + [rs_mfma(t, 0) for t in range(5)]
    ms += [pv_mfma(dt, t, 1) for dt in range(8) for t in range(5)] + [rs_mfma(t, 1) for t in range(5)]
    S = Sched(ms)
    S.spread(cvts(1), list(range(0, 20)))
    S.spread([v_read(dt, h, 15) for dt in range(5) for h in range(2)], list(range(0, 10)))
    S.spread([v_read(dt, h, 15) for dt in (5, 6, 7) for h in range(2)], list(range(15, 21)))
    S.put(20, "s_waitcnt vmcnt(8)")
    S.spread([wo_read(0, m, h) for m in range(8) for h in range(2)], [21 + i // 2 for i in range(16)])
    S.put(28, "s_waitcnt vmcnt(0)")
    S.spread([wo_read(1, m, h) for m in range(8) for h in range(2)], [29 + i // 2 for i in range(16)])
    S.put(38, "s_waitcnt lgkmcnt(0)")
    if OPT['fused']:
        S.put(36, f"s_lshl_b32 s50, {S_CL}, 2", f"s_add_u32 s50, s50, {CNTOFF()}")
        S.spread([f"v_lshlrev_b32 v14, 8, {V_LANE}", "v_add_u32 v14, s50, v14"], [37, 37])
        S.put(38, f"buffer_load_dword v15, v14, {SRD_D}, 0 offen sc1")
    put_dmas(S, wo_dma(2, WOA), [41, 44, 47, 50, 54, 57, 60, 63])
    seq, pend = lgkm_waits(S.flat(), final_zero=True)
    seq, n = hazards(seq, history=hist); L.extend(seq)
    A("s_barrier")
    A("s_nop 3")
    A(stamp("att_done"))
    return L

def wo_dma_t(ks):
    d = wo_dma(ks, WOA if (ks & 1) == 0 else WOB)
    for e in d: e[1].tag = f"wo{ks}"
    return d
def wo_reads(ks): return [wo_read(ks, m, h) for m in range(8) for h in range(2)]

LFLAG = 90112

def o_epilogue():
    E = []
    tl = VT[0]; rc = VT[2]
    d3, d4, d5 = wo_dma_t(3), wo_dma_t(4), wo_dma_t(5)
    E += II(f"s_lshl_b32 s51, {S_QH}, 11", f"v_subrev_u32 v{V_OWB}, s51, v{V_OW}", f"v_add_u32 v{V_OW}, s51, v{V_OW}",
            f"s_lshl_b32 s50, {S_U}, 12", f"s_add_u32 s50, s50, 32768", "s_add_u32 s50, s50, s51", f"v_add_u32 v{V_OW4}, s50, v{V_OR}")
    def emit_dma(e):
        return e[0] + II("s_nop 0") * (1 if e[0] else 0) + [e[1]]
    nfr = 0
    for t in range(5):
        E += II(f"v_accvgpr_read_b32 v{tl}, a{lacc(t)}", f"v_rcp_f32 v{rc}, v{tl}", "s_nop 0", f"v_mov_b32 v{rc+1}, v{rc}")
        if t == 0: E += II(f"v_mov_b32 v{VT[1]}, v{tl}")
        else: E += II(f"v_max_f32 v{VT[1]}, v{VT[1]}, v{tl}")
        if t == 4:
            E += II(f"v_cmp_nge_f32 vcc, {hex(OPT['lthr'] or LTHR)}, v{VT[1]}", f"s_lshl_b32 s50, {S_W}, 2", f"s_add_u32 s50, s50, {LFLAG}", f"v_mov_b32 v52, s50",
                    "s_cmp_lg_u64 vcc, 0", "s_cselect_b32 s51, 1, 0", "v_mov_b32 v53, s51", "ds_write_b32 v52, v53")
        for ks in range(4 if t < 4 else 2):
            mid = []
            if nfr < 8: mid += emit_dma(d3[nfr])
            if 8 <= nfr < 16: mid += emit_dma(d4[nfr - 8])
            if nfr >= 16:
                for i in range(4): mid += emit_dma(d5[4 * (nfr - 16) + i])
            if OPT.get('x_oenodma'): mid = [x for x in mid if x.kind == 'dma'][:0] + [x for x in mid if x.kind != 'dma']
            rd = []
            cut = {0: (0, 6), 1: (6, 11), 2: (11, 16)}
            if 4 <= nfr < 7:
                if nfr == 4:
                    rd += [VmNeed("wo2")]
                    if OPT['fused']:
                        rd += II("v_readfirstlane_b32 s52, v15", "s_nop 3", "s_cmp_lt_u32 s52, 16", "s_cbranch_scc1 L_cnt_spin", "L_cnt_ok:")
                a_, b_ = cut[nfr - 4]; rd += wo_reads(2)[a_:b_]
            if 12 <= nfr < 15:
                if nfr == 12: rd += [VmNeed("wo3")]
                a_, b_ = cut[nfr - 12]; rd += wo_reads(3)[a_:b_]
            if OPT.get('oe_nord'): rd = [x for x in rd if x.kind != 'dsr']
            if OPT.get('oe_nowait'): rd = [x for x in rd if not isinstance(x, VmNeed)]
            if OPT.get('oe_nodma'): mid = []; rd = [x for x in rd if not (isinstance(x, VmNeed) and x.tag == 'wo3')]
            if nfr in (8, 16): E += II("s_waitcnt lgkmcnt(0)")
            E += rd
            for h in range(2):
                for k in range(4):
                    E += II(f"v_accvgpr_read_b32 v{52 + 4*h + k}, a{oacc(2*ks + h, t) + k}")
            E += mid
            for k in range(4): E += II(f"v_pk_mul_f32 {vr(52+2*k,2)}, {vr(52+2*k,2)}, {vr(rc,2)}")
            for k in range(4): E += II(f"v_cvt_pk_bf16_f32 v{60+k}, v{52+2*k}, v{53+2*k}")
            E += II(f"ds_write_b128 v{V_OW if ks < 2 else V_OWB}, {vr(60)} offset:{(t*8+ks)*1024}" if t < 4 else f"ds_write_b128 v{V_OW4}, {vr(60)} offset:{ks*1024}")
            nfr += 1
        if OPT['stamps'] and OPT.get('oest'): E += [Raw("\n  ".join(x.txt for x in stamp(f"oe{t}")))] + II("s_waitcnt lgkmcnt(0)")
    E, q = vm_waits(E, ["cnt"] + ["wo2"] * 8)
    E, pend = lgkm_waits(E, final_zero=True)
    E, n = hazards(E)
    return E + II("s_barrier"), q

def o_read(dst, t, ks):
    if t < 8: return I(f"ds_read_b128 {vr(dst)}, v{V_OR} offset:{(t*8+ks)*1024}")
    return I(f"ds_read_b128 {vr(dst)}, v{V_OR8} offset:{ks*1024}")
V_PSC = [196, 197, 198, 199]
V_OWNA = 204; S_OWN = "s49"
OWNB = 73728
OWN_OOL = []
def pstore(src, t, cp):
    v = V_PSC[cp] if OPT['own'] else V_PS
    return (II(f"s_add_u32 s51, {S_SOFFP}, {(cp*9 + t)*16384}"),
            I(f"buffer_store_dwordx4 {vr(src)}, v{v}, {SRD_P}, s51 offen {OPT['pst']}"))
def own_hook(src, t, cp):
    if not OPT['own']: return []
    OWN_OOL.extend(II(f"L_own_{t}_{cp}:", f"ds_write_b128 v{V_OWNA}, {vr(src)} offset:{t*1024}", f"s_branch L_ownb_{t}_{cp}"))
    return II(f"s_cmp_eq_u32 {S_OWN}, {cp}", f"s_cbranch_scc1 L_own_{t}_{cp}", f"L_ownb_{t}_{cp}:")

NP1 = 2
def acc1(t, m): return 64 + (t * 8 + m) * 4
def acc2(t, m): return 128 + ((t & 1) * 8 + m) * 4
def bfr1(par, t): return 2 + (par * 4 + t) * 4
STG = [48, 52, 56, 60]

def tile_epilogue(accf, t, k0):
    out = []
    for cp in range(4):
        a0, a1 = accf(t, 2*cp), accf(t, 2*cp + 1)
        d = STG[(k0 + cp) & 3]
        cv = II(f"v_cvt_pk_bf16_f32 v{d}, v{a0}, v{a0+1}", f"v_cvt_pk_bf16_f32 v{d+1}, v{a0+2}, v{a0+3}",
                f"v_cvt_pk_bf16_f32 v{d+2}, v{a1}, v{a1+1}", f"v_cvt_pk_bf16_f32 v{d+3}, v{a1+2}, v{a1+3}")
        pre, st = pstore(d, t, cp)
        if OPT.get('x_nost') and not (t == 8 and cp == 3): st = I("s_nop 0")
        st.tag = f"st{t}"
        out.append((cv, (pre, st), own_hook(d, t, cp)))
    return out

def out_proj(queue):
    L = []; A = lambda *x: L.extend(II(*x))
    A(f"s_mul_i32 {S_SOFFP}, {S_W}, {4*9*16384}")
    OWN_OOL.clear()
    if OPT['own']:
        A(f"s_lshr_b32 s50, {S_HP}, 2", f"s_and_b32 s51, {S_HP}, 3", f"s_cmp_eq_u32 s50, {S_W}", f"s_cselect_b32 {S_OWN}, s51, 7")
        for cp in range(4):
            A(f"s_cmp_eq_u32 {S_OWN}, {cp}", "s_cselect_b32 s50, 0x40000000, 0", f"v_or_b32 v{V_PSC[cp]}, s50, v{V_PS}")
        A(f"v_add_u32 v{V_OWNA}, {OWNB}, v{V_OR}")
    NP = OPT['np1']
    G = 8 * NP
    ms = [mfma(vr(acc1(t, m)), wofrag(ks, m), vr(bfr1(ks & 1, t)), ("0" if ks == 0 else vr(acc1(t, m)))) for ks in range(8) for m in range(8) for t in range(NP)]
    bt = lambda ks: 2 + 4 * ks
    P1 = len(ms)
    for t in range(NP, 9):
        ms += [mfma(vr(acc2(t, m)), wofrag(ks, m), vr(bt(ks)), ("0" if ks == 0 else vr(acc2(t, m)))) for ks in range(8) for m in range(8)]
    S = Sched(ms)
    def reads(ks, g0): S.spread(wo_reads(ks), [g0 + i // 2 for i in range(16)])
    def dmas(ks, g0, step=4): put_dmas(S, wo_dma_t(ks), [g0 + step * i for i in range(8)])
    def put_free(ins, g0):
        g = g0
        while S.cost(g) + COST[ins.kind] > 8: g += 1
        S.put(g, ins); return g
    def epi(t, accf, g0, stride):
        for cp, (cv, (spre, st), hook) in enumerate(tile_epilogue(accf, t, 0)):
            g = g0 + cp * stride
            S.spread(cv, [g, g, g + 1, g + 1])
            for p in spre: S.put(g + 1, p)
            for p in hook: S.put(g + 2, p)
            S.put(g + 2, st)
    if NP == 2:
        pre = [o_read(bfr1(0, t), t, 0) for t in range(NP)]
        S.put(0, VmNeed("wo4")); reads(4, 0)
        S.put(9, "s_waitcnt lgkmcnt(0)"); dmas(6, 11, 3)
        S.put(33, VmNeed("wo5")); reads(5, 33)
        S.put(42, "s_waitcnt lgkmcnt(0)"); dmas(7, 44, 3)
        S.put(84, VmNeed("wo6")); reads(6, 84)
        S.put(100, VmNeed("wo7")); reads(7, 100)
        for ks in range(7):
            g = ks * G + (1 if ks else 8)
            for t in range(NP):
                g = put_free(o_read(bfr1((ks + 1) & 1, t), t, ks + 1), g) + 1
            assert g <= (ks + 1) * G - 3, (ks, g)
        g = 6 * G + 4
        for ks in (2, 3, 6, 7): g = put_free(o_read(bt(ks), NP, ks), g) + 1
        g = 7 * G + 1
        for ks in (0, 1): g = put_free(o_read(bt(ks), NP, ks), g) + 1
        base = P1
        for ks in (4, 5): put_free(o_read(bt(ks), NP, ks), base + 1)
        epi(0, acc1, base + 4, 7); epi(1, acc1, base + 32, 7)
    else:
        assert NP == 0
        pre = [o_read(bt(ks), 0, ks) for ks in range(8)]
        S.put(0, VmNeed("wo4")); reads(4, 0)
        S.put(9, "s_waitcnt lgkmcnt(0)"); dmas(6, 11, 2)
        S.put(10, VmNeed("wo5"));
        S.spread(wo_reads(5), [12, 12, 14, 14, 16, 16, 18, 18, 20, 20, 22, 22, 24, 24, 26, 26])
        S.put(28, "s_waitcnt lgkmcnt(0)"); dmas(7, 30, 2)
        S.put(46, VmNeed("wo6")); S.spread(wo_reads(6), [46, 46, 46, 46] + [47 + i // 4 for i in range(12)])
        S.put(54, VmNeed("wo7")); S.spread(wo_reads(7), [54, 54, 54, 54] + [55 + i // 12 for i in range(12)])
    for t in range(NP, 9):
        b = P1 + (t - NP) * 64
        if t > NP: epi(t - 1, acc2, b + 6, 12)
        if t < 8:
            for ks in range(8):
                g = b + 8 * ks + 8
                if g >= b + 64: g = b + 64 + 1
                put_free(o_read(bt(ks), t + 1, ks), g)
    if OPT['fused']:
        g0 = P1 + (3 - NP) * 64 + 49
        S.put(g0, f"s_lshl_b32 s50, {S_W}, 7", f"s_lshl_b32 s52, {S_HP}, 2", "s_add_u32 s50, s50, s52")
        S.spread([f"v_lshlrev_b32 v36, 13, {V_LANE}", "v_add_u32 v36, s50, v36", "v_mov_b32 v37, 1"], [g0 + 1, g0 + 1, g0 + 2])
        S.put(g0 + 3, f"s_lshr_b32 s50, {S_HP}, 2", "s_lshl_b32 s50, s50, 7")
        S.spread([f"v_lshrrev_b32 v46, 4, {V_LANE}", "v_lshlrev_b32 v46, 9, v46", f"v_and_b32 v47, 15, {V_LANE}",
                  "v_lshl_add_u32 v46, v47, 2, v46", "v_add_u32 v46, s50, v46"], [g0 + 4, g0 + 4, g0 + 5, g0 + 9, g0 + 9])
        b = P1 + (8 - NP) * 64
        fa = I(f"buffer_store_dword v37, v36, {SRD_F}, 0 offen sc1"); fa.tag = "fl"
        if OPT['early']:
            S.put(b + 40, VmNeed("st3")); S.put(b + 41, fa)
            pl = I(f"buffer_load_dword v47, v46, {SRD_F}, 0 offen sc1"); pl.tag = "poll"
            S.put(b + 60, pl)
    if OPT['stamps'] and OPT.get('opst'):
        for nm, g in (("w1", 127), ("w3", 255), ("w5", 383), ("w8", 575)):
            S.put(g, Raw("\n  ".join(x.txt for x in stamp(nm))))
            S.put(g, "s_waitcnt lgkmcnt(0)")
    pre = II(f"v_mov_b32 v56, {LFLAG}", f"ds_read_b128 {vr(52)}, v56") + pre
    pre += II("s_waitcnt lgkmcnt(0)", "v_or3_b32 v52, v52, v53, v54", "v_or_b32 v52, v52, v55", "s_nop 0", "v_readfirstlane_b32 s50, v52", "s_nop 3",
              f"s_andn2_b32 s50, s50, {S_SAFE}", "s_cmp_lg_u32 s50, 0", "s_cbranch_scc1 L_restart")
    seq = pre + S.flat()
    tail = II("s_nop 7")
    for cp, (cv, (spre, st), hook) in enumerate(tile_epilogue(acc2, 8, 0)):
        tail += cv + spre + hook + [st]
    if OPT['stamps'] and OPT.get('opst'): tail += stamp("st_iss")
    if OPT['fused']:
        fb = I(f"buffer_store_dword v37, v36, {SRD_F}, 0 offen offset:512 sc1"); fb.tag = "fl"
        fc = I(f"buffer_store_dword v37, v36, {SRD_F}, 0 offen offset:1024 sc1"); fc.tag = "fl"
        tail += [VmNeed("poll"), fb, VmNeed("st8"), fc] if OPT['early'] else [VmNeed("st8"), fa, fb, fc]
    seq, q = vm_waits(seq + tail, queue)
    seq, pend = lgkm_waits(seq)
    seq, n = hazards(seq)
    if OPT['verbose']: print(S.report("out_proj"), "nops", n)
    L += seq
    return L, q

SPIN = 1 << 22
def reduce_phase():
    L = []; A = lambda *x: L.extend(II(*x))
    DAT = lambda g, tt, k: 64 + ((g * 2 + tt) * 4 + k) * 4
    D8 = lambda k: 192 + 4 * k
    ACC = lambda g, tt: [208, 216, 224, 232, 240, 248, 2, 10][g * 2 + tt]
    A8 = 18
    T0, T1 = 26, 28
    V_POLL, V_FL, V_L16, V_OUT = 46, 47, 32, 33
    A(f"v_lshrrev_b32 v30, 4, {V_LANE}", f"v_and_b32 v31, 15, {V_LANE}", f"v_lshlrev_b32 v{V_L16}, 4, {V_LANE}",
      f"v_lshlrev_b32 v{V_OUT}, 11, v31", f"v_lshl_add_u32 v{V_OUT}, v30, 4, v{V_OUT}")
    A(f"s_mul_i32 s32, {S_B}, {144*2048}", f"s_lshl_b32 s50, {S_BR}, 10", "s_add_u32 s32, s32, s50", f"s_lshl_b32 s50, {S_HP}, 6", "s_add_u32 s32, s32, s50")
    A(f"s_mul_i32 s33, {S_HP}, {9*16384}")
    A(f"s_lshl_b32 s50, {S_W}, 14", "s_add_u32 s34, s33, s50", "s_add_u32 s35, s34, 65536",
      f"s_add_u32 s36, s33, {8*16384}", f"s_lshl_b32 s50, {S_W}, 12", "s_add_u32 s36, s36, s50",
      f"s_lshl_b32 s41, {S_W}, 2")
    A("s_mov_b32 s37, 0", "s_mov_b32 s38, 0", f"s_mov_b32 s53, {SPIN}")
    if OPT['own']:
        A(f"s_lshr_b32 s46, {S_HP}, 2", f"s_and_b32 s47, {S_HP}, 3", f"s_lshl_b32 s50, {S_W}, 10", f"s_add_u32 s50, s50, {OWNB}", f"v_add_u32 v44, s50, v{V_L16}",
          "s_waitcnt lgkmcnt(0)", "s_barrier", "ds_read_b128 v[36:39], v44", "ds_read_b128 v[40:43], v44 offset:4096")
    def unpack_add(acc, src, first):
        out = []
        for k in range(4):
            if first:
                out += [f"v_lshlrev_b32 v{acc+2*k}, 16, v{src+k}", f"v_and_b32 v{acc+2*k+1}, 0xffff0000, v{src+k}"]
            else:
                t = (T0, T1)[k & 1]
                out += [f"v_lshlrev_b32 v{t}, 16, v{src+k}", f"v_and_b32 v{t+1}, 0xffff0000, v{src+k}",
                        f"v_pk_add_f32 v[{acc+2*k}:{acc+2*k+1}], v[{acc+2*k}:{acc+2*k+1}], v[{t}:{t+1}]"]
        return out
    items = [(tt, g) for tt in range(2) for g in range(4)] + [(2, None)]
    if OPT['early']: A("s_branch L_red_first")
    A("L_red_loop:")
    A("s_cmp_eq_u32 s37, 0x1ff", "s_cbranch_scc1 L_red_nopoll")
    A(f"buffer_load_dword v{V_FL}, v{V_POLL}, {SRD_F}, 0 offen sc1")
    A("L_red_nopoll:", "s_waitcnt vmcnt(0)")
    A("s_andn2_b32 s42, s37, s38")
    for i, (tt, g) in enumerate(items):
        A(f"s_bitcmp1_b32 s42, {i}", f"s_cbranch_scc0 L_red_nosum{i}")
        for k in range(4):
            A(unpack_add(ACC(g, tt), DAT(g, tt, k), k == 0) if tt < 2 else unpack_add(A8, D8(k), k == 0))
        A(f"L_red_nosum{i}:")
    A("s_mov_b32 s38, s37", "s_cmp_eq_u32 s38, 0x1ff", "s_cbranch_scc1 L_red_done")
    A("L_red_first:")
    A(f"v_cmp_eq_u32 vcc, 1, v{V_FL}", "s_nop 3", "s_mov_b32 s39, vcc_lo", "s_lshr_b32 s43, vcc_hi, s41", "s_and_b32 s43, s43, 15", "s_mov_b32 s40, s37")
    A("s_sub_u32 s53, s53, 1", "s_cmp_eq_u32 s53, 0", "s_cselect_b32 s39, -1, s39", "s_cselect_b32 s43, 15, s43", "s_cselect_b32 s53, 1, s53")
    for i, (tt, g) in enumerate(items):
        A(f"s_bitcmp1_b32 s37, {i}", f"s_cbranch_scc1 L_red_noiss{i}")
        if tt < 2:
            A(f"s_bfe_u32 s50, s39, {hex((4 << 16) | (16 * tt + 4 * g))}", "s_cmp_eq_u32 s50, 15")
        else:
            A("s_cmp_eq_u32 s43, 15")
        A(f"s_cbranch_scc0 L_red_noiss{i}")
        if tt < 2: A(f"s_add_u32 s50, s{34+tt}, {g*4096}")
        if OPT['own']:
            A(f"s_cmp_eq_u32 s46, {g}" if tt < 2 else f"s_cmp_eq_u32 s46, {S_W}", "s_cselect_b32 s44, s47, 7")
        for k in range(4):
            o = f" offset:{k*1024}" if k else ""
            va = V_L16
            if OPT['own']:
                A(f"s_cmp_eq_u32 s44, {k}", "s_cselect_b32 s45, 0x40000000, 0", f"v_or_b32 v45, s45, v{V_L16}"); va = 45
            if tt < 2: A(f"buffer_load_dwordx4 {vr(DAT(g, tt, k))}, v{va}, {SRD_P}, s50 offen{o} {OPT['rld']}")
            else: A(f"buffer_load_dwordx4 {vr(D8(k))}, v{va}, {SRD_P}, s36 offen{o} {OPT['rld']}")
        A(f"s_bitset1_b32 s37, {i}", f"L_red_noiss{i}:")
    if OPT.get('rdst'):
        A("s_cmp_eq_u32 s40, 0", "s_cbranch_scc0 L_rs1", "s_cmp_lg_u32 s37, 0", "s_cbranch_scc0 L_rs1", stamp("r_first"), "L_rs1:")
        A("s_cmp_eq_u32 s37, 0x1ff", "s_cbranch_scc0 L_rs2", stamp("r_alliss"), "L_rs2:")
    A("s_cmp_lg_u32 s37, s40", "s_cbranch_scc1 L_red_loop", f"s_sleep {OPT['psleep']}", "s_branch L_red_loop")
    A("L_red_done:")
    if OPT.get('rdst'): A(stamp("r_summed"))
    A(f"s_lshl_b32 s50, {S_W}, 11", f"v_lshlrev_b32 v30, 5, {V_LANE}", f"v_add_u32 v30, {WOB}, v30", "v_add_u32 v31, s50, v30",
      f"ds_write_b128 v31, {vr(A8)}", f"ds_write_b128 v31, {vr(A8+4)} offset:16")
    for tt in range(2):
        a0 = ACC(0, tt)
        for g in range(1, 4):
            for k in range(4): A(f"v_pk_add_f32 v[{a0+2*k}:{a0+2*k+1}], v[{a0+2*k}:{a0+2*k+1}], v[{ACC(g,tt)+2*k}:{ACC(g,tt)+2*k+1}]")
        if OPT['own']: A("s_waitcnt lgkmcnt(2)" if tt == 0 else "s_nop 0", unpack_add(a0, 36 + 4 * tt, False))
        for k in range(4): A(f"v_cvt_pk_bf16_f32 v{64+4*tt+k}, v{a0+2*k}, v{a0+2*k+1}")
        A(f"s_lshl_b32 s50, {S_W}, 15", f"s_add_u32 s50, s50, s32", f"s_add_u32 s50, s50, {tt*4*32768}")
        A(f"buffer_store_dwordx4 {vr(64+4*tt)}, v{V_OUT}, {SRD_O}, s50 offen {OPT['ost']}")
    A("s_waitcnt lgkmcnt(0)", "s_barrier", f"s_cmp_eq_u32 {S_W}, 0", "s_cbranch_scc0 L_red_end")
    for g in range(4):
        A(f"ds_read_b128 {vr(80+8*g)}, v30 offset:{g*2048}", f"ds_read_b128 {vr(84+8*g)}, v30 offset:{g*2048+16}")
    if OPT['own']: A("ds_read_b128 v[36:39], v44 offset:8192")
    A("s_waitcnt lgkmcnt(0)")
    for g in range(1, 4):
        for k in range(4): A(f"v_pk_add_f32 v[{80+2*k}:{81+2*k}], v[{80+2*k}:{81+2*k}], v[{80+8*g+2*k}:{81+8*g+2*k}]")
    if OPT['own']: A(unpack_add(80, 36, False))
    for k in range(4): A(f"v_cvt_pk_bf16_f32 v{72+k}, v{80+2*k}, v{81+2*k}")
    A(f"s_add_u32 s50, s32, {8*32768}")
    A(f"buffer_store_dwordx4 {vr(72)}, v{V_OUT}, {SRD_O}, s50 offen {OPT['ost']}")
    A("L_red_end:")
    L2, n = hazards(L)
    return L2

def dump_regs(regs, slot, kind='v'):
    L = []; A = lambda *x: L.extend(II(*x))
    A("s_add_u32 s66, s58, 0x4000000", "s_addc_u32 s67, s59, 0",
      "s_lshl_b32 s50, s2, 2", f"s_add_u32 s50, s50, {S_W}", "s_lshl_b32 s50, s50, 16",
      f"v_lshlrev_b32 v253, 2, {V_LANE}", "v_add_u32 v253, s50, v253")
    for i, r in enumerate(regs):
        if kind == 'a':
            A(f"v_accvgpr_read_b32 v254, a{r}", "s_nop 0")
            A(f"global_store_dword v253, v254, s[66:67]")
        else:
            A(f"global_store_dword v253, v{r}, s[66:67]")
        A("v_add_u32 v253, 256, v253")
    A("s_waitcnt vmcnt(0)")
    return L

def main_kernel():
    L = []
    L += setup()
    L += stamp("start")
    L += phase_q()
    L += stamp("q_done")
    if OPT['dump'] == 'q':
        L += II("s_nop 7") + dump_regs([qfrag(t, s) + k for t in range(5) for s in range(4) for k in range(4)], 0)
        L += II("s_waitcnt vmcnt(0)", "s_endpgm")
    L += attention()
    if OPT['dump'] == 'o':
        L += II("s_nop 7") + dump_regs([oacc(dt, t) + k for t in range(5) for dt in range(8) for k in range(4)] + [lacc(t) for t in range(5)], 0, 'a')
        L += II("s_waitcnt vmcnt(0)", "s_endpgm")
    e, q = o_epilogue(); L += e
    L += stamp("o_done")
    if OPT.get('stop') == 'o':
        L += II("s_waitcnt vmcnt(0)") + stamp("end") + stamp_dump() + II("L_main_end:", "s_endpgm") + safe_paths()
        return L
    e, q = out_proj(q); L += e
    L += stamp("op_done")
    if OPT['fused']:
        L += reduce_phase()
        L += stamp("red_done")
    L += tr_dump()
    L += II("s_waitcnt vmcnt(0)")
    L += stamp("end")
    L += stamp_dump()
    L += II("L_main_end:", "s_endpgm")
    L += OWN_OOL
    L += safe_paths()
    return L

def reduce_kernel():
    L = []; A = lambda *x: L.extend(II(*x))
    A("s_cmp_ge_u32 s2, 256", "s_cbranch_scc1 L_red_end")
    A("s_load_dwordx2 s[4:5], s[0:1], 80", "s_load_dwordx2 s[6:7], s[0:1], 96")
    A("v_lshrrev_b32 v2, 6, v0", "v_and_b32 v1, 63, v0", "s_nop 0", "v_readfirstlane_b32 s12, v2", "s_nop 3")
    A("s_waitcnt lgkmcnt(0)")
    A("s_mul_i32 s13, s2, 9", "s_add_u32 s13, s13, s12", "s_lshl_b32 s13, s13, 14")
    A("s_add_u32 s16, s6, s13", "s_addc_u32 s17, s7, 0", "s_and_b32 s17, s17, 0xffff", "s_mov_b32 s18, 16384", "s_mov_b32 s19, 0x20000")
    A("v_lshlrev_b32 v2, 4, v1")
    for p in range(16):
        A(f"buffer_load_dwordx4 v[{8+4*p}:{11+4*p}], v2, s[16:19], 0 offen offset:{(p%4)*1024}" if p < 4 else
          f"buffer_load_dwordx4 v[{8+4*p}:{11+4*p}], v2, s[16:19], s{20+p//4} offen offset:{(p%4)*1024}")
        if p == 3: A("s_mov_b32 s21, 4096", "s_mov_b32 s22, 8192", "s_mov_b32 s23, 12288")
    A("s_lshr_b32 s14, s2, 4", "s_and_b32 s15, s2, 15",
      "s_and_b32 s24, s14, 7", "s_lshr_b32 s25, s14, 3",
      "s_mul_i32 s24, s24, 144", "s_lshl_b32 s26, s12, 4", "s_add_u32 s24, s24, s26", "s_lshl_b32 s24, s24, 11",
      "s_lshl_b32 s25, s25, 10", "s_lshl_b32 s15, s15, 6", "s_add_u32 s24, s24, s25", "s_add_u32 s24, s24, s15")
    A("v_and_b32 v3, 15, v1", "v_lshlrev_b32 v3, 11, v3", "v_lshrrev_b32 v4, 4, v1", "v_lshl_add_u32 v3, v4, 4, v3")
    A("s_mov_b32 s28, s4", "s_and_b32 s29, s5, 0xffff", "s_mov_b32 s30, 2359296", "s_mov_b32 s31, 0x20000")
    acc = 80
    for p in range(16):
        A(f"s_waitcnt vmcnt({15-p})")
        for k in range(4):
            r = 8 + 4 * p + k
            if p == 0:
                A(f"v_lshlrev_b32 v{acc+2*k}, 16, v{r}", f"v_and_b32 v{acc+2*k+1}, 0xffff0000, v{r}")
            else:
                A(f"v_lshlrev_b32 v6, 16, v{r}", f"v_and_b32 v7, 0xffff0000, v{r}",
                  f"v_add_f32 v{acc+2*k}, v{acc+2*k}, v6", f"v_add_f32 v{acc+2*k+1}, v{acc+2*k+1}, v7")
    for k in range(4): A(f"v_cvt_pk_bf16_f32 v{8+k}, v{acc+2*k}, v{acc+2*k+1}")
    A("buffer_store_dwordx4 v[8:11], v3, s[28:31], s24 offen")
    A("s_waitcnt vmcnt(0)")
    A("L_red_end:", "s_endpgm")
    return L

def kernel_text(name, body, vgpr, accum, sgpr=102):
    return f""".globl {name}
.p2align 8
.type {name},@function
{name}:
{text(body)}
"""
def kd(name, nfv, accum, sgpr=102):
    return f""".amdhsa_kernel {name}
  .amdhsa_next_free_vgpr {nfv}
  .amdhsa_next_free_sgpr {sgpr}
  .amdhsa_accum_offset {accum}
  .amdhsa_group_segment_fixed_size 0
  .amdhsa_kernarg_size 104
  .amdhsa_user_sgpr_count 2
  .amdhsa_user_sgpr_kernarg_segment_ptr 1
  .amdhsa_system_sgpr_workgroup_id_x 1
.end_amdhsa_kernel
"""

def build():
    stamp_id[0] = 0; STAMPS.clear()
    k1 = NAME + "_kernel"; k2 = "reduce_heads_kernel"
    m = main_kernel()
    hdr = "; fused q-projection + attention + out-projection; the 16 head-pair partials of an output slice are summed by its owner\n"
    if OPT['fused']:
        hdr += f"; @launch grid=(256,1,1) block=(256,1,1) lds=163840\n"
    else:
        hdr += f"; @launch kernel={k1} grid=(256,1,1) block=(256,1,1) lds=163840\n"
        hdr += f"; @launch kernel={k2} grid=(256,1,1) block=(576,1,1) lds=0\n"
    s = hdr + '.amdgcn_target "amdgcn-amd-amdhsa--gfx950"\n.text\n'
    s += kernel_text(k1, m, 512, 256)
    if not OPT['fused']: s += kernel_text(k2, reduce_kernel(), 96, 96)
    s += '.section .rodata,"a"\n.p2align 6\n' + kd(k1, 512, 256)
    if not OPT['fused']: s += ".p2align 6\n" + kd(k2, 96, 96, 40)
    return s

if __name__ == "__main__":
    ap = argparse.ArgumentParser()
    ap.add_argument("-o", default="cdna_kernels/" + NAME + ".s")
    ap.add_argument("--dump"); ap.add_argument("--stamps", action="store_true"); ap.add_argument("-v", action="store_true")
    ap.add_argument("--opt", action="append", default=[])
    a = ap.parse_args()
    OPT['dump'] = a.dump; OPT['stamps'] = a.stamps; OPT['verbose'] = a.v
    for o in a.opt:
        k, v = o.split("=", 1)
        OPT[k] = {'True': True, 'False': False}.get(v, int(v) if v.lstrip('-').isdigit() else v)
    s = build()
    open(a.o, "w").write(s)
    if a.stamps:
        import json; json.dump(STAMPS, open(a.o + ".stamps.json", "w"))
    print("wrote", a.o, len(s), "bytes")
```

```python
import sys, argparse
from ir import *

NAME = "concat_heads__gqa_block_cached__mha_block_cached__near_ridge"
OPT = dict(wsoff=0, own=True, early=True, l2pf=False, np1=0, pfw=1, pfkv=0, pfkvnt=False, psleep=8, ost='', lthr=0, start2=True, pf=2, pfnt=False, fused=True, rld='sc1', rot=True, wnt=False, xnt=False, wont=False, bursts=(3, 6, 9), dump=None, stamps=False, stop=None, kvnt=True, pst="sc1", verbose=False)

VB = 0
KB = 65536
WB = 16384
XB = 114688
WOA = 131072
WOB = 98304
OB = 0
def kphys(k): return ((k + 1) & 3) * 16384
def vphys(k): return (k & 3) * 16384

SRD_X, SRD_WQ, SRD_K, SRD_V, SRD_WO, SRD_P = "s[4:7]", "s[8:11]", "s[12:15]", "s[16:19]", "s[20:23]", "s[24:27]"
SRD_F, SRD_D, SRD_O = "s[68:71]", "s[72:75]", "s[80:83]"
S_W, S_U, S_QH, S_CNT = "s28", "s29", "s30", "s31"
S_SOFFX, S_SOFFW0, S_UNUSED, S_MW, S_MX, S_DSLOT, S_RSLOT, S_DW, S_DX = "s32", "s33", "s34", "s35", "s36", "s37", "s38", "s39", "s40"
S_BW, S_BX = "s41", "s42"
S_SOFFK, S_SOFFV, S_MK, S_MV = "s45", "s46", "s47", "s48"
S_T0, S_T1, S_T2, S_T3 = "s50", "s51", "s52", "s53"
S_HP, S_B, S_BR, S_CL = "s54", "s55", "s56", "s57"
S_WS = "s[58:59]"
S_SOFFP = "s60"
S_STAMP = "s[62:63]"
S_FLAG = "s64"
S_SAFE = "s61"
S_BX3 = "s38"
LTHR = 0x4b800000
S_KS, S_X0, S_W0 = "s88", "s89", "s87"
S_TAU, S_TB, S_TQ, S_T4N, S_TMASK, S_TSH, S_TM, S_TS = "s78", "s79", "s43", "s44", "s34", "s49", "s61", "s95"

V_LANE = "v1"
V_WQR = [2, 3, 4, 5]; V_XR = 6; V_XR4 = 14; V_OW4 = 50; V_OWB = 51
V_WQD = [7, 8, 9, 10]; V_XD = [11, 12, 13]; V_TG, V_TI, V_TB, V_TV = 14, 15, 62, 63
V_KD = [16, 17, 18, 19]; V_VD = [20, 21]
V_KR = [22, 23, 24, 25]; V_VR = [26 + i for i in range(8)]
V_WOD = [34, 35, 36, 37]; V_WOR = [38, 39, 40, 41]
V_OW, V_OR, V_OR8, V_PS = 42, 43, 44, 45
VT = [46 + i for i in range(18)]
RB = 64
def grp(t, s): return RB + (t * 4 + s) * 8
def qacc(dt, t): return grp(t, dt >> 1) + 4 * (dt & 1)
def qfrag(t, s): return grp(t, s)
def Sreg(kt, t): return grp(t, kt) + 4
def Preg(par, t): return grp(t, 2 + par) + 4
def cinit(t): return 224 + 4 * t
V_C0, V_C1 = 244, 245
def vr(b, n=4): return f"v[{b}:{b+n-1}]"
def ar(b, n=4): return f"a[{b}:{b+n-1}]"
def oacc(dt, t): return t * 32 + dt * 4
def lacc(t): return 160 + 4 * t
A_ONES = 180
def abuf(i): return 184 + 4 * i
def bbuf(t): return [48, 52, 56, 60, 248][t]
def kbuf(kt, s): return 216 + 4 * (kt * 4 + s)

MF = "v_mfma_f32_16x16x32_bf16"
def mfma(d, a, b, c): return I(f"{MF} {d}, {a}, {b}, {c}")
SCALE = (128 ** -0.5) * 1.4426950408889634
import struct
def f2u(x): return struct.unpack("<I", struct.pack("<f", x))[0]

def NT(): return " nt" if OPT['kvnt'] else ""

def CNTOFF(): return 128 if OPT.get('dbgst') is not None else 0
stamp_id = [0]
def stamp(name):
    if not OPT['stamps']: return []
    i = stamp_id[0]; stamp_id[0] += 1
    STAMPS.append(name)
    return II("s_memrealtime s[66:67]", "s_memtime s[64:65]", "s_waitcnt lgkmcnt(0)",
              f"v_writelane_b32 v0, s66, {i}", f"v_writelane_b32 v0, s64, {32 + i}")
def stamp_dump():
    if not OPT['stamps']: return []
    if OPT.get('dbgst') is not None:
        return II(f"s_cmp_eq_u32 s2, {OPT['dbgst']}", "s_cbranch_scc0 L_nodbg", f"s_cmp_eq_u32 {S_W}, 0", "s_cbranch_scc0 L_nodbg",
                  "v_readlane_b32 s50, v0, 0", "s_nop 3", "v_subrev_u32 v0, s50, v0",
                  f"v_lshlrev_b32 v1, 2, {V_LANE}", "v_cmp_gt_u32 vcc, 16, v1", f"v_lshrrev_b32 v2, 2, v1", "v_mov_b32 v3, 0x1000", "v_cmp_gt_u32 vcc, 16, v2", "s_nop 1",
                  "v_cndmask_b32 v1, v3, v1, vcc", f"buffer_store_dword v0, v1, {SRD_D}, 0 offen", "L_nodbg:")
    return II("s_add_u32 s62, s58, 0x8000000", "s_addc_u32 s63, s59, 0", "s_lshl_b32 s65, s2, 2", f"s_add_u32 s65, s65, {S_W}", "s_lshl_b32 s65, s65, 8",
              f"v_lshlrev_b32 v1, 2, {V_LANE}", "v_add_u32 v1, s65, v1", "global_store_dword v1, v0, s[62:63]")
STAMPS = []

def setup():
    L = []
    A = lambda *x: L.extend(II(*x))
    A("s_cmp_ge_u32 s2, 256", "s_cbranch_scc1 L_main_end")
    A("s_load_dwordx8 s[68:75], s[0:1], 0", "s_load_dwordx2 s[76:77], s[0:1], 32",
      "s_load_dwordx8 s[80:87], s[0:1], 40", "s_load_dwordx2 s[88:89], s[0:1], 72",
      f"s_load_dwordx2 {S_WS}, s[0:1], 96", "s_load_dwordx4 s[96:99], s[0:1], 80")
    A("s_and_b32 s50, s2, 7", "s_lshr_b32 s51, s2, 3",
      f"s_lshr_b32 {S_BR}, s50, 2",
      "s_and_b32 s52, s50, 3", "s_lshl_b32 s52, s52, 2", "s_and_b32 s53, s51, 3", f"s_add_u32 {S_HP}, s52, s53",
      f"s_lshr_b32 {S_B}, s51, 2",
      f"s_lshl_b32 s52, {S_BR}, 3", f"s_add_u32 {S_CL}, s52, {S_B}")
    A("v_lshrrev_b32 v46, 6, v0", f"v_and_b32 {V_LANE}, 63, v0", "s_nop 0", f"v_readfirstlane_b32 {S_W}, v46", "s_nop 3")
    A(f"s_lshr_b32 {S_U}, {S_W}, 1", f"s_and_b32 {S_QH}, {S_W}, 1", f"s_mov_b32 {S_SAFE}, 0")
    A(lane_consts_q())
    A("s_waitcnt lgkmcnt(0)")
    A(f"s_cmp_eq_u32 {S_BR}, 1")
    for i in range(8): A(f"s_cselect_b32 s{68+i}, s{80+i}, s{68+i}")
    A("s_cselect_b32 s76, s88, s76", "s_cselect_b32 s77, s89, s77")
    def srd(dst, lo, hi, off_expr_regs, nrec):
        A(f"s_add_u32 s{dst}, s{lo}, s50", f"s_addc_u32 s{dst+1}, s{hi}, 0", f"s_and_b32 s{dst+1}, s{dst+1}, 0xffff")
        A(nrec, f"s_mov_b32 s{dst+3}, 0x20000")
    A(f"s_mul_i32 s50, {S_B}, 147456"); srd(4, 68, 69, None, "s_mov_b32 s6, 147456")
    A(f"s_lshl_b32 s50, {S_HP}, 9"); srd(8, 74, 75, None, "s_sub_u32 s10, 4194304, s50")
    return L

def setup_b():
    L = []
    A = lambda *x: L.extend(II(*x))
    def srd(dst, lo, hi, off_expr_regs, nrec):
        A(f"s_add_u32 s{dst}, s{lo}, s50", f"s_addc_u32 s{dst+1}, s{hi}, 0", f"s_and_b32 s{dst+1}, s{dst+1}, 0xffff")
        A(nrec, f"s_mov_b32 s{dst+3}, 0x20000")
    A(f"s_cmp_eq_u32 {S_SAFE}, 1", "s_cbranch_scc1 L_setup_b_done")
    A(f"s_lshl_b32 s50, {S_B}, 5", f"s_lshl_b32 s51, {S_HP}, 1", "s_add_u32 s50, s50, s51", f"s_add_u32 s50, s50, {S_U}", "s_lshl_b32 s50, s50, 17")
    srd(12, 70, 71, None, "s_mov_b32 s14, 131072")
    srd(16, 72, 73, None, "s_mov_b32 s18, 131072")
    A(f"s_lshl_b32 s50, {S_HP}, 18", f"s_lshl_b32 s51, {S_W}, 8", "s_add_u32 s50, s50, s51")
    A("s_sub_u32 s52, 262144, s51")
    srd(20, 76, 77, None, "s_mov_b32 s22, s52")
    A(f"s_lshl_b32 s50, {S_HP}, 18"); srd(84, 76, 77, None, "s_mov_b32 s86, 262144")
    A(f"s_mul_i32 s50, {S_CL}, 2359296", f"s_add_u32 s50, s50, {hex(OPT['wsoff'])}"); srd(24, 58, 59, None, "s_mov_b32 s26, 2359296")
    if OPT['fused']:
        A(f"s_mul_i32 s50, {S_CL}, 4608", f"s_add_u32 s50, s50, {hex(OPT['wsoff'] + 0x2400000 + 0x40000)}"); srd(68, 58, 59, None, "s_mov_b32 s70, 4608")
        A("s_mov_b32 s72, s98", "s_and_b32 s73, s99, 0xffff", "s_mov_b32 s74, 256", "s_mov_b32 s75, 0x20000")
        A("s_mov_b32 s80, s96", "s_and_b32 s81, s97, 0xffff", "s_mov_b32 s82, 2359296", "s_mov_b32 s83, 0x20000")
        A(f"s_lshl_b32 s50, {S_W}, 7", f"s_lshl_b32 s51, {S_HP}, 2", "s_add_u32 s50, s50, s51",
          f"v_lshlrev_b32 v46, 9, {V_LANE}", "v_add_u32 v46, s50, v46", "v_mov_b32 v47, 0",
          f"buffer_store_dword v47, v46, {SRD_F}, 0 offen sc1" if not OPT.get('x_noclr') else "s_nop 0")
    A("L_setup_b_done:")
    return L

def lane_consts_q():
    L = []; A = lambda *x: L.extend(II(*x))
    l = V_LANE; t0, t1, t2, t3, t4, t5 = [f"v{x}" for x in VT[:6]]
    A(f"v_lshrrev_b32 {t0}, 4, {l}", f"v_bfe_u32 {t1}, {l}, 2, 2", f"v_and_b32 {t2}, 3, {l}", f"v_and_b32 {t3}, 15, {l}")
    for n in range(4):
        A(f"v_add_u32 {t4}, {4*n}, {t0}", f"v_xor_b32 {t4}, {t4}, {t3}", f"v_lshlrev_b32 {t4}, 4, {t4}",
          f"v_lshl_add_u32 v{V_KD[n]}, {t0}, 8, {t4}")
    for n in range(2):
        A(f"v_add_u32 {t4}, {4*n}, {t0}", f"v_lshlrev_b32 {t4}, 1, {t4}", f"v_xor_b32 {t4}, {t4}, {t3}", f"v_lshlrev_b32 {t4}, 4, {t4}",
          f"v_lshl_add_u32 v{V_VD[n]}, {t0}, 8, {t4}")
    A(f"v_lshrrev_b32 {t4}, 5, {l}")
    A(f"v_bfe_u32 {t5}, {l}, 4, 1")
    for j in range(4):
        d = f"v{V_WQD[j]}"
        A(f"v_add_u32 {d}, {2*j}, {t4}",
          f"v_and_b32 v{VT[6]}, 3, {d}", f"v_lshlrev_b32 v{VT[6]}, 2, v{VT[6]}", f"v_xor_b32 v{VT[6]}, v{VT[6]}, {t3}", f"v_lshlrev_b32 v{VT[6]}, 4, v{VT[6]}",
          f"v_lshlrev_b32 {d}, 13, {d}", f"v_add_u32 {d}, {d}, v{VT[6]}", f"v_lshl_add_u32 {d}, {t5}, 8, {d}")
        if j: A(f"v_subrev_u32 {d}, {1024*j}, {d}")
    A(f"v_lshlrev_b32 {t4}, 1, {t0}", f"v_mov_b32 {t5}, 0x78", f"v_lshrrev_b32 {t4}, {t4}, {t5}", f"v_and_b32 {t4}, 3, {t4}",
      f"v_xor_b32 {t4}, {t4}, {t2}", f"v_lshlrev_b32 {t4}, 4, {t4}",
      f"v_lshrrev_b32 {t5}, 2, {l}", f"v_lshl_add_u32 {t4}, {t5}, 10, {t4}")
    for j in range(2):
        A(f"v_add_u32 v{V_XD[j]}, {j*16384 - 1024*j}, {t4}")
    A(f"s_lshl_b32 s50, {S_W}, 1", "s_lshr_b32 s50, 0x78, s50", "s_and_b32 s50, s50, 3",
      f"v_xor_b32 {t4}, s50, {t2}", f"v_lshlrev_b32 {t4}, 4, {t4}", f"v_lshl_add_u32 {t4}, {t5}, 10, {t4}",
      f"s_lshl_b32 s50, {S_W}, 12", f"s_lshl_b32 s51, {S_W}, 15", "s_sub_u32 s50, s50, s51", f"s_add_u32 s50, s50, {128*1024}",
      f"v_add_u32 v{V_XD[2]}, s50, {t4}")
    A(f"v_lshl_add_u32 {t4}, {t0}, 3, {t1}", f"v_lshlrev_b32 {t4}, 9, {t4}", f"v_lshl_add_u32 {t4}, {t2}, 4, {t4}",
      f"s_lshl_b32 s50, {S_U}, 8", f"s_add_u32 s50, s50, {WB}", f"v_add_u32 {t4}, s50, {t4}")
    A(f"s_lshl_b32 s51, {S_QH}, 1", f"v_xor_b32 {t1}, s51, {t1}")
    for s in range(4):
        A(f"v_xor_b32 {t5}, {s}, {t1}", f"v_lshl_add_u32 v{V_WQR[s]}, {t5}, 6, {t4}")
    A(f"v_lshrrev_b32 {t4}, 2, {t3}", f"v_lshlrev_b32 {t4}, 1, {t4}", f"v_mov_b32 {t5}, 0x78", f"v_lshrrev_b32 {t4}, {t4}, {t5}", f"v_and_b32 {t4}, 3, {t4}",
      f"v_xor_b32 {t4}, {t4}, {t0}", f"v_lshlrev_b32 {t4}, 4, {t4}", f"v_lshl_add_u32 {t4}, {t3}, 6, {t4}",
      f"s_mul_i32 s50, {S_QH}, 5120", f"s_add_u32 s50, s50, {XB}", f"v_add_u32 v{V_XR}, s50, {t4}", f"v_add_u32 v{V_XR4}, {XB + 4096}, {t4}")
    return L

def lane_consts_rest():
    L = []; A = lambda *x: L.extend(II(*x))
    l = V_LANE; t0, t1, t2, t3, t4, t5, t6 = [f"v{x}" for x in VT[:7]]
    A(f"v_lshrrev_b32 {t0}, 4, {l}", f"v_bfe_u32 {t1}, {l}, 2, 2", f"v_and_b32 {t2}, 3, {l}", f"v_and_b32 {t3}, 15, {l}")
    A(f"s_lshl_b32 s50, {S_U}, 13", f"s_add_u32 s51, s50, {KB}", f"v_lshlrev_b32 {t4}, 8, {t3}", f"v_add_u32 {t4}, s51, {t4}")
    A(f"s_lshl_b32 s51, {S_QH}, 3", f"v_xor_b32 {t6}, s51, {t3}")
    for s in range(4):
        A(f"v_add_u32 {t5}, {4*s}, {t0}", f"v_xor_b32 {t5}, {t5}, {t6}", f"v_lshl_add_u32 v{V_KR[s]}, {t5}, 4, {t4}")
    A(f"v_lshrrev_b32 {t4}, 2, {l}", f"v_and_b32 {t5}, 7, {t4}", f"v_lshlrev_b32 {t5}, 1, {t5}",
      f"v_lshlrev_b32 {t4}, 8, {t4}", f"v_add_u32 {t4}, s50, {t4}",
      f"v_and_b32 {t6}, 1, {t2}", f"v_lshl_add_u32 {t4}, {t6}, 3, {t4}",
      f"v_lshrrev_b32 {t6}, 1, {t2}",
      f"s_lshl_b32 s51, {S_QH}, 3", f"v_xor_b32 {t5}, s51, {t5}")
    for dt in range(8):
        d = f"v{V_VR[dt]}"
        A(f"v_add_u32 {d}, {2*dt}, {t6}", f"v_xor_b32 {d}, {d}, {t5}", f"v_lshl_add_u32 {d}, {d}, 4, {t4}")
    A(f"v_lshlrev_b32 {t4}, 2, {t0}", f"v_xor_b32 {t4}, {t4}, {t3}", f"v_lshlrev_b32 {t4}, 4, {t4}", f"v_lshl_add_u32 {t4}, {t0}, 10, {t4}")
    for n in range(4):
        A(f"v_add_u32 v{V_WOD[n]}, {n*3072}, {t4}")
    A(f"v_lshrrev_b32 {t4}, 2, {l}", f"v_lshlrev_b32 {t4}, 8, {t4}", f"v_lshl_add_u32 {t4}, {t2}, 4, {t4}",
      f"s_lshl_b32 s50, {S_W}, 13", f"s_add_u32 s50, s50, {WOB}", f"v_add_u32 {t4}, s50, {t4}")
    for cp in range(4):
        A(f"v_xor_b32 {t5}, {cp}, {t1}", f"v_lshl_add_u32 v{V_WOR[cp]}, {t5}, 6, {t4}")
    A(f"s_mul_i32 s50, {S_QH}, 40960", f"s_lshl_b32 s51, {S_U}, 12", "s_add_u32 s50, s50, s51",
      f"v_lshlrev_b32 v{V_OR}, 4, {l}", f"v_add_u32 v{V_OW}, s50, v{V_OR}", f"v_add_u32 v{V_OR8}, 0x10000, v{V_OR}")
    A(f"s_lshl_b32 s50, {S_HP}, 10", f"v_add_u32 v{V_PS}, s50, v{V_OR}")
    return L

def dma(voff, srd, soff, imm, nt=False):
    o = f" offset:{imm}" if imm else ""
    return I(f"buffer_load_dwordx4 v{voff}, {srd}, {soff} offen{o}{' nt' if nt else ''} lds")

def kv_group(kind, m0expr, soffreg):
    if kind == 'K':
        return [dma(V_KD[n], SRD_K, soffreg, n * 1024, OPT['kvnt']) for n in range(4)]
    return [dma(V_VD[n & 1], SRD_V, soffreg, n * 1024, OPT['kvnt']) for n in range(4)]

def kv_tile_full_unused(kind, j):
    L = []
    base = (KB + kphys(j)) if kind == 'K' else (VB + vphys(j))
    for gI in range(2):
        L += II(f"s_lshl_b32 s50, {S_U}, 13", f"s_add_u32 m0, s50, {base + gI*4096}", f"s_mov_b32 s51, {j*8192 + gI*4096}")
        L += kv_group(kind, None, "s51")
    return L

def stage_setup_scalar():
    rot = OPT['rot']
    R = II("s_lshr_b32 s50, s2, 3", "s_and_b32 s51, s50, 3", "s_lshr_b32 s50, s50, 2")
    if rot in (True, 1):   R += II("s_lshl_b32 s51, s51, 2", "s_lshl_b32 s50, s50, 1", "s_add_u32 s52, s50, s51")
    elif rot == 2:         R += II("s_lshr_b32 s50, s50, 1", "s_add_u32 s52, s50, s51", "s_lshl_b32 s52, s52, 2")
    elif rot == 3:         R += II("s_add_u32 s52, s50, s51", "s_lshl_b32 s52, s52, 2")
    elif rot == 4:         R += II("s_lshr_b32 s50, s50, 2", "s_lshl_b32 s50, s50, 3", "s_lshl_b32 s51, s51, 2", "s_add_u32 s52, s50, s51")
    elif rot == 5:         R += II("s_mul_i32 s50, s50, 3", "s_lshl_b32 s51, s51, 2", "s_add_u32 s52, s50, s51")
    elif rot == 6:         R += II("s_lshl_b32 s52, s50, 1")
    elif rot == 7:         R += II("s_lshl_b32 s50, s50, 1", "s_and_b32 s51, s51, 1", "s_lshl_b32 s51, s51, 3", "s_add_u32 s52, s50, s51")
    else:                  R += II("s_mov_b32 s52, 0")
    return R + II("s_and_b32 s52, s52, 15",
              f"s_lshl_b32 s50, s52, 6", f"s_lshl_b32 s51, {S_W}, 15", f"s_add_u32 {S_SOFFX}, s50, s51",
              f"s_lshl_b32 s50, s52, 18", f"s_lshl_b32 s51, {S_W}, 16", f"s_add_u32 {S_SOFFW0}, s50, s51",
              f"s_lshl_b32 s50, {S_W}, 12", f"s_add_u32 {S_BW}, s50, {WB}",
              f"s_lshl_b32 s50, {S_W}, 11", f"s_add_u32 {S_BX}, s50, {XB}",
              f"s_lshl_b32 s50, {S_W}, 8", f"s_add_u32 {S_BX3}, s50, {XB + 8192}",
              f"s_lshl_b32 {S_TQ}, {S_QH}, 12",
              f"s_lshl_b32 s50, {S_U}, 13", f"s_add_u32 s50, s50, {S_TQ}", f"s_add_u32 {S_MK}, s50, {KB}", f"s_add_u32 {S_MV}, s50, {VB}")

def stage_dma_list(slot):
    seq = []
    seq.append(([I(f"s_add_u32 m0, {S_BW}, {slot*16384}")], dma(V_WQD[0], SRD_WQ, S_SOFFW0, 0, OPT['wnt'])))
    for j in range(1, 4): seq.append(([], dma(V_WQD[j], SRD_WQ, S_SOFFW0, j * 1024, OPT['wnt'])))
    seq.append(([I(f"s_add_u32 m0, {S_BX}, {slot*9216}")], dma(V_XD[0], SRD_X, S_SOFFX, 0, OPT['xnt'])))
    seq.append(([], dma(V_XD[1], SRD_X, S_SOFFX, 1024, OPT['xnt'])))
    q = dma(V_XD[2], SRD_X, S_SOFFX, 0, OPT['xnt'])
    seq.append(([I(f"s_add_u32 m0, {S_BX3}, {slot*9216}")], Masked(q, 0xffff)))
    return seq

def place_dma(S, seq, gaps):
    k = 0
    last = None
    for e in seq:
        if e[0]:
            for p in e[0]: S.put(gaps[k], p)
            k += 1
        S.put(gaps[k], e[1]); last = gaps[k]
        if len(e) > 2:
            for p in e[2]: S.put(gaps[k] + 1, p)
        k += 1
    return last

def stage_advance_w():
    return II(f"s_add_u32 {S_SOFFW0}, {S_SOFFW0}, 262144", f"s_and_b32 {S_SOFFW0}, {S_SOFFW0}, 0x3fffff")
def stage_advance_x():
    return II(f"s_add_u32 {S_SOFFX}, {S_SOFFX}, 64", f"s_and_b32 {S_SOFFX}, {S_SOFFX}, 0xfffffbff")
def stage_advance(): return stage_advance_w() + stage_advance_x()

def straight(seq):
    L = []
    for e in seq:
        L += e[0]
        if e[0]: L += II("s_nop 0")
        L.append(e[1])
        if len(e) > 2: L += e[2]
    return L

def stage_issue_straight(slot):
    return straight(stage_dma_list(slot)) + stage_advance()

def wq_read(dt, h2, slot):
    if OPT.get('x_noread'): return I('s_nop 0')
    s, hf = dt >> 1, dt & 1
    b = abuf(dt) + 2 * h2
    off = slot * 16384 + hf * 8 + h2 * 2048
    return I(f"ds_read_b64_tr_b16 {ar(b,2)}, v{V_WQR[s]}" + (f" offset:{off}" if off else ""))
def x_read(t, slot):
    if OPT.get('x_noread'): return I('s_nop 0')
    off = slot * 9216 + (0 if t == 4 else t * 1024)
    return I(f"ds_read_b128 {vr(bbuf(t))}, v{V_XR4 if t == 4 else V_XR}" + (f" offset:{off}" if off else ""))
def q_mfma(dt, t):
    if OPT.get('x_t4') and t == 4: return I("s_nop 3")
    if OPT.get('x_t45') and t == 4 and dt >= 4: return I("s_nop 3")
    return mfma(vr(qacc(dt, t)), ar(abuf(dt)), vr(bbuf(t)), vr(qacc(dt, t)))

def half_group(kind, j):
    if kind == 'K':
        pre = II(f"s_add_u32 m0, {S_MK}, {kphys(j)}", f"s_add_u32 s51, {S_TQ}, {j*8192}")
    else:
        pre = II(f"s_add_u32 m0, {S_MV}, {vphys(j)}", f"s_add_u32 s51, {S_TQ}, {j*8192}")
    g = kv_group(kind, None, "s51")
    return [(pre, g[0])] + [([], x) for x in g[1:]]

def put_dmas(S, seq, gaps):
    prev = -1
    for e, g in zip(seq, gaps):
        if e[0]:
            assert g - 1 > prev or prev < 0, (g, prev)
            for p in e[0]: S.put(g - 1, p)
        S.put(g, e[1])
        if len(e) > 2:
            for p in e[2]: S.put(g + 1, p)
        prev = g
    assert len(seq) <= len(gaps)

QTAIL = (4, 5, 6, 7)
def q_tail(): return [q_mfma(dt, t) for t in range(4) for dt in QTAIL]
SRD_T = "s[96:99]"; V_T = [10, 11, 12, 13]; S_TM, S_TS = "s35", "s36"
V_TB2 = [252, 253, 254, 255]
V_TB = [244, 245, 246, 247]
DUMMY = 151552
def burst_list():
    g = [dma(V_TB[n], SRD_T, S_TS, n * 1024, OPT['kvnt']) for n in range(4)]
    return [([I(f"s_mov_b32 m0, {S_TM}")], g[0])] + [([], x) for x in g[1:]]

def q_body(ks, with_dma, burst=False, extra_dma=None, wait=None):
    slot = ks & 3
    ms = q_tail() + [q_mfma(dt, t) for t in range(5) for dt in range(4)]
    S = Sched(ms)
    a = lambda dt, h: wq_read(dt, h, slot)
    xr = lambda t: x_read(t, slot)
    plan = {0: a(0,0), 1: a(0,1), 2: a(1,0), 3: a(1,1), 4: xr(0), 5: a(2,0), 7: a(2,1), 8: xr(1), 9: a(3,0), 11: a(3,1),
            12: xr(2), 13: xr(4), 16: xr(3), 17: a(4,0), 19: a(4,1), 20: a(5,0), 21: a(5,1), 23: a(6,0), 24: a(6,1), 25: a(7,0), 27: a(7,1)}
    for g, ins in plan.items(): S.put(g, ins)
    if with_dma:
        put_dmas(S, stage_dma_list((ks + 3) & 3), [6, 10, 14, 18, 22, 26, 29])
        w = stage_advance_w(); x = stage_advance_x()
        S.put(19, w[0]); S.put(20, w[1]); S.put(30, x[0]); S.put(31, x[1])
    if burst:
        put_dmas(S, burst_list(), [32, 33, 34, 35]) if False else None
        put_dmas(S, burst_list(), [15, 28, 31, 33])  if False else None
    if extra_dma:
        put_dmas(S, extra_dma, [6, 10, 14, 18, 22, 26, 30, 32][:len(extra_dma)])
    return S

def q_finish(S, wait, wg=33):
    S.put(wg, tr_mark(), f"s_waitcnt vmcnt({wait}) lgkmcnt(0)", tr_commit())
    S.put(wg + 1, "s_barrier")
    seq, pend = lgkm_waits(S.flat())
    assert not pend
    if OPT['verbose']: print(S.report("q_body"))
    return seq

def tr_mark():
    return [Raw("s_memtime s[100:101]")] if OPT.get('trace') else []
def tr_commit():
    return [Raw("s_mov_b32 s95, m0\n  s_mov_b32 m0, s94\n  s_nop 0\n  v_writelane_b32 v0, s100, m0\n  s_mov_b32 m0, s95\n  s_add_u32 s94, s94, 1")] if OPT.get('trace') else []
def tr_dump():
    if not OPT.get('trace'): return []
    return II("s_add_u32 s66, s58, 0x9000000", "s_addc_u32 s67, s59, 0", "s_lshl_b32 s50, s2, 2", f"s_add_u32 s50, s50, {S_W}", "s_lshl_b32 s50, s50, 8",
              f"v_lshlrev_b32 v253, 2, {V_LANE}", "v_add_u32 v253, s50, v253", "global_store_dword v253, v0, s[66:67]")

def zero_init():
    L = II("v_mov_b32 v244, 0", "v_mov_b32 v245, 0", "v_mov_b32 v246, 0", "v_mov_b32 v247, 0", "s_nop 1")
    for r in range(RB, RB + 160, 16): L += II(f"v_mfma_f32_32x32x16_bf16 v[{r}:{r+15}], v[244:247], v[244:247], 0")
    for r in range(0, 256, 16): L += II(f"v_mfma_f32_32x32x16_bf16 a[{r}:{r+15}], v[244:247], v[244:247], 0")
    return L

def phase_q():
    L = []; A = lambda *x: L.extend(II(*x))
    A("L_phase_q:")
    A(stage_setup_scalar(), stage_issue_straight(0))
    A(setup_b())
    A(stamp("q_issued"))
    A(zero_init())
    A(lane_consts_rest())
    A(f"s_mov_b32 {S_CNT}, 0")
    if OPT.get('trace'): A("s_mov_b32 s94, 1", "s_memtime s[100:101]", "s_waitcnt lgkmcnt(0)", "v_writelane_b32 v0, s100, 0")
    A(f"v_mov_b32 v{VT[0]}, 0x3f803f80")
    for r in range(4): A(f"v_accvgpr_write_b32 a{A_ONES + r}, v{VT[0]}")
    for t in range(5):
        for k in range(4): A(f"v_mov_b32 v{bbuf(t)+k}, 0")
    A("s_mov_b32 s96, s12", "s_mov_b32 s97, s13", "s_mov_b32 s98, s14", "s_mov_b32 s99, s15")
    for n in range(4): A(f"v_mov_b32 v{V_TB[n]}, v{V_KD[n]}")
    if OPT.get('stst'): A(stamp("consts"))
    A(stage_issue_straight(1))
    if OPT.get('stst'): A(stamp("s1_iss"))
    A("s_waitcnt vmcnt(7)")
    if OPT.get('stst'): A(stamp("s0_land"))
    A("s_barrier")
    if OPT['fused']:
        A(f"s_cmp_eq_u32 {S_SAFE}, 1", "s_cbranch_scc1 L_no_arrive")
        A(f"s_lshl_b32 s50, {S_CL}, 2", f"s_add_u32 s50, s50, {CNTOFF()}", f"s_lshl_b32 s51, {S_W}, 14", "s_add_u32 s50, s50, s51",
          f"v_lshlrev_b32 v46, 8, {V_LANE}", "v_add_u32 v46, s50, v46", "v_mov_b32 v47, 1",
          f"buffer_atomic_add v47, v46, {SRD_D}, 0 offen sc1")
        A("L_no_arrive:")
    A(stage_issue_straight(2))
    if OPT.get('stst'): A(stamp("s2_iss"))
    A(f"s_add_u32 {S_TM}, {S_MK}, {kphys(0)}", f"s_mov_b32 {S_TS}, {S_TQ}")
    A(stamp("q_start"))
    l2 = OPT['l2pf']
    if l2:
        A(f"s_add_u32 s37, {S_TQ}, {4*8192}", "s_mov_b32 s92, s12", "s_mov_b32 s93, s13", "s_mov_b32 s94, s14", "s_mov_b32 s95, s15",
          "s_mov_b64 vcc, -1")
    bodies = []
    QOOL = []
    for k in range(4):
        S = q_body(k, True)
        if k == 1:
            put_dmas(S, burst_list(), [32, 33, 34, 35])
        if k == 3 and l2:
            g = [dma(V_OR, "s[92:95]", "s37", n * 1024, False) for n in range(4)]
            put_dmas(S, [([I(f"s_mov_b32 m0, {DUMMY}")], g[0])] + [([], x) for x in g[1:]], [32, 33, 34, 35])
        if l2:
            n_steady, n_first = [(18, 14), (22, 18), (18, 18), (22, 22)][k]
        else:
            n_steady = n_first = 14 if k == 0 else 18
        if OPT.get('b0st') and k == 0:
            for nm, g in (("g5", 5), ("g6", 7), ("g15", 15), ("g20", 20), ("g30", 31)):
                S.put(g, Raw(f"s_cmp_eq_u32 {S_CNT}, 0\n  s_cbranch_scc0 L_b0_{nm}\n  " + "\n  ".join(x.txt for x in stamp(nm)) + f"\nL_b0_{nm}:"))
        late = (k == 1) or (k == 3 and l2)
        w = tr_mark() + II(f"s_waitcnt vmcnt({n_steady}) lgkmcnt(0)")
        if n_first != n_steady:
            w += II(f"s_cbranch_vccnz L_q_first{k}", f"L_q_back{k}:")
            QOOL += II(f"L_q_first{k}:", f"s_waitcnt vmcnt({n_first})", f"s_branch L_q_back{k}")
        w += tr_commit()
        if late:
            seq, pend = lgkm_waits(S.flat())
            seq += w + II("s_barrier")
        else:
            S.put(33, w); S.put(34, "s_barrier")
            seq, pend = lgkm_waits(S.flat())
            assert not pend
        if OPT['verbose']: print(S.report("q_body"))
        bodies.append(seq)
    hist = bodies[3][-24:]
    A(".p2align 6", "L_q_loop:")
    for bi, b in enumerate(bodies):
        b2, n = hazards(b, history=hist); L.extend(b2); hist = b2[-24:]
        if OPT.get('stst') and bi < 2: A(f"s_cmp_eq_u32 {S_CNT}, 0", f"s_cbranch_scc0 L_nost{bi}", stamp(f"body{bi}"), f"L_nost{bi}:")
    A(f"s_add_u32 {S_TM}, {S_TM}, 16384", f"s_add_u32 {S_TS}, {S_TS}, 8192", f"s_add_u32 {S_CNT}, {S_CNT}, 1")
    if l2:
        A("s_mov_b64 vcc, 0", f"s_cmp_eq_u32 {S_CNT}, 1", "s_cbranch_scc1 L_q_to1", "L_q_to1_done:")
    A(f"s_cmp_eq_u32 {S_CNT}, 2", "s_cbranch_scc1 L_q_tov", "L_q_tov_done:",
      f"s_cmp_lt_u32 {S_CNT}, 3", "s_cbranch_scc1 L_q_loop")
    OOL = II("L_q_tov:", "s_mov_b32 s96, s16", "s_mov_b32 s97, s17", f"s_add_u32 {S_TM}, {S_MV}, {vphys(0)}", f"s_mov_b32 {S_TS}, {S_TQ}")
    if l2: OOL += II("s_mov_b32 s92, s12", "s_mov_b32 s93, s13", f"s_add_u32 s37, {S_TQ}, {5*8192}")
    for n in range(4): OOL += II(f"v_mov_b32 v{V_TB[n]}, v{V_VD[n & 1]}")
    OOL += II("s_branch L_q_tov_done")
    if l2: OOL += II("L_q_to1:", "s_mov_b32 s92, s16", "s_mov_b32 s93, s17", f"s_add_u32 s37, {S_TQ}, {3*8192}", "s_branch L_q_to1_done")
    OOL += QOOL
    b, n = hazards(q_finish(q_body(12, True), 18 if l2 else 14), history=hist); L.extend(b)
    b, n = hazards(q_finish(q_body(13, False, extra_dma=half_group('V', 1)), 15 if l2 else 11), history=b[-24:]); L.extend(b)
    b, n = hazards(q_finish(q_body(14, False, extra_dma=half_group('K', 2) + half_group('V', 2)), 12), history=b[-24:]); L.extend(b)
    b, n = hazards(q_finish(q_body(15, False), 12), history=b[-24:]); L.extend(b)
    A("s_branch L_q_after_ool")
    L.extend(OOL)
    A("L_q_after_ool:")
    A(stamp("q_loop_done"))
    return L

def q_tiles(s): return range(5) if s < 2 else range(4)
def q_scale(ss):
    return [I(f"v_pk_mul_f32 {vr(grp(t,s)+2*k,2)}, {vr(grp(t,s)+2*k,2)}, {vr(V_C0,2)}") for s in ss for t in q_tiles(s) for k in range(4)]
def q_cvt(ss):
    return [I(f"v_cvt_pk_bf16_f32 v{grp(t,s)+k}, v{grp(t,s)+2*k}, v{grp(t,s)+2*k+1}") for s in ss for t in q_tiles(s) for k in range(4)]
QX = 155648

def transition():
    L = []; A = lambda *x: L.extend(II(*x))
    A(f"s_add_u32 {S_SOFFK}, {S_TQ}, {5*8192}", f"s_add_u32 {S_SOFFV}, {S_TQ}, {4*8192}")
    A(f"v_mov_b32 v{V_C0}, {hex(f2u(SCALE))}", f"v_mov_b32 v{V_C1}, {hex(f2u(SCALE))}")
    A(f"s_lshl_b32 s50, {S_W}, 11", f"s_add_u32 s50, s50, {QX}", f"v_lshlrev_b32 v7, 4, {V_LANE}", "v_add_u32 v8, s50, v7",
      "s_xor_b32 s50, s50, 2048", "v_add_u32 v9, s50, v7")
    k3 = half_group('K', 3)
    seq = [k_read(kt, s, 0) for kt in range(2) for s in range(4)]
    sc = q_scale((0, 1))
    seq += II("s_nop 3") + sc
    S = Sched(q_tail())
    cv = q_cvt((0, 1))
    sh = lambda c: any(f"v{grp(4,s)+k}," in c.txt.split()[1] + "," for s in (0, 1) for k in range(4))
    cv = [c for c in cv if sh(c)] + [c for c in cv if not sh(c)]
    S.spread(cv, [min(i * 2 // 5, 15) for i in range(40)])
    S.put(5, f"ds_write_b128 v8, {vr(grp(4,0))}"); S.put(7, f"ds_write_b128 v8, {vr(grp(4,1))} offset:1024")
    seq += S.flat()
    seq += II("s_waitcnt lgkmcnt(0)", "s_barrier", f"ds_read_b128 {vr(grp(4,2))}, v9", f"ds_read_b128 {vr(grp(4,3))}, v9 offset:1024")
    sc = q_scale((2, 3))
    seq += II("s_nop 3") + k3[0][0] + sc[:8] + [k3[0][1]] + sc[8:16] + [k3[1][1]] + sc[16:24] + [k3[2][1]] + sc[24:] + [k3[3][1]]
    qk = lambda kt, ss, c: [qk_mfma(kt, s, t, c) for s in ss for t in range(5)]
    S = Sched(qk(0, (0, 1), lambda t: "0") + qk(0, (2, 3), lambda t: "0"))
    S.spread(q_cvt((2, 3)), [min(i * 5 // 16, 9) for i in range(32)])
    S.spread([f"v_mov_b32 v{Preg(1,t)+k}, 0" for t in range(5) for k in range(4)], [10 + i // 2 for i in range(20)])
    seq += S.flat()
    seq += straight(half_group('V', 3))
    seq, _ = lgkm_waits(seq, final_zero=True)
    seq, n = hazards(seq); L.extend(seq)
    A(stamp("qk0_done"))
    A(f"s_cmp_eq_u32 {S_SAFE}, 1", "s_cbranch_scc1 L_safe_max")
    T = [2, 3, 4, 5, 6]
    U = [7, 8, 9, 10, 11]
    E = II("s_nop 5")
    for t in range(5): E += II(f"v_max3_f32 v{T[t]}, v{Sreg(0,t)}, v{Sreg(0,t)+1}, v{Sreg(0,t)+2}")
    for t in range(5): E += II(f"v_max_f32 v{T[t]}, v{T[t]}, v{Sreg(0,t)+3}")
    E += row_max_finish(T, U)
    S = Sched(qk(1, range(4), lambda t: vr(cinit(t))))
    sub = [f"v_add_f32 v{Sreg(0,t)+k}, v{Sreg(0,t)+k}, v{cinit(t)}" for t in range(5) for k in range(4)]
    ex = [f"v_exp_f32 v{Sreg(0,t)+k}, v{Sreg(0,t)+k}" for t in range(5) for k in range(4)]
    S.spread(sub, [i // 2 for i in range(20)])
    S.spread(ex, [min(2 + i, 19) for i in range(20)])
    E += S.flat()
    E += II("s_barrier")
    E += II("s_nop 3") + exps(1)
    E, n = hazards(E, history=L[-24:]); L.extend(E)
    A("L_max_done:")
    A(straight(half_group('K', 4)))
    return L

def row_max_finish(T, U):
    E = []
    for sw in ("v_permlane32_swap_b32", "v_permlane16_swap_b32"):
        for t in range(5): E += II(f"v_mov_b32 v{U[t]}, v{T[t]}")
        for t in range(5): E += II(f"{sw} v{T[t]}, v{U[t]}")
        for t in range(5): E += II(f"v_max_f32 v{T[t]}, v{T[t]}, v{U[t]}")
    for t in range(5):
        for k in range(4): E += II(f"v_sub_f32 v{cinit(t)+k}, 0, v{T[t]}")
    return E

def safe_paths():
    L = []; A = lambda *x: L.extend(II(*x))
    T = [2, 3, 4, 5, 6]; U = [7, 8, 9, 10, 11]
    ab = [(Sreg(0, t), Sreg(1, t)) for t in range(5)]
    A("L_safe_max:")
    for t in range(5): A(f"v_mov_b32 v{T[t]}, 0xff800000")
    A(f"s_mov_b32 {S_CNT}, 0")
    A("L_safe_loop:")
    A("s_waitcnt vmcnt(0) lgkmcnt(0)", "s_barrier")
    A(f"s_and_b32 s50, {S_CNT}, 15", "s_lshl_b32 s50, s50, 13", f"s_add_u32 s51, s50, {S_TQ}", f"s_add_u32 m0, {S_MK}, {kphys(0)}", "s_nop 0")
    A(kv_group('K', None, "s51"))
    A("s_waitcnt vmcnt(0)", "s_barrier")
    A([k_read(kt, s, 0) for kt in range(2) for s in range(4)], "s_waitcnt lgkmcnt(0)")
    A(f"s_cmp_eq_u32 {S_CNT}, 16", "s_cbranch_scc1 L_safe_last")
    A([qk_mfma(kt, s, t, lambda t: "0") for kt in range(2) for s in range(4) for t in range(5)], "s_nop 7", "s_nop 7")
    for t, (a, b) in enumerate(ab):
        A(f"v_max3_f32 v{T[t]}, v{T[t]}, v{a}, v{a+1}", f"v_max3_f32 v{T[t]}, v{T[t]}, v{a+2}, v{a+3}",
          f"v_max3_f32 v{T[t]}, v{T[t]}, v{b}, v{b+1}", f"v_max3_f32 v{T[t]}, v{T[t]}, v{b+2}, v{b+3}")
    A(f"s_add_u32 {S_CNT}, {S_CNT}, 1", f"s_cmp_lt_u32 {S_CNT}, 16", "s_cbranch_scc1 L_safe_loop")
    E, n = hazards(II("s_nop 3") + row_max_finish(T, U)); L.extend(E)
    A("s_branch L_safe_loop")
    A("L_safe_last:", "s_nop 3")
    A([qk_mfma(kt, s, t, lambda t: vr(cinit(t))) for kt in range(2) for s in range(4) for t in range(5)], "s_nop 7", "s_nop 7")
    A("s_barrier")
    for t, (a, b) in enumerate(ab):
        for base in (a, b):
            for k in range(4): A(f"v_exp_f32 v{base+k}, v{base+k}")
    A("s_nop 1", "s_branch L_max_done")
    if OPT['fused']:
        A("L_cnt_spin:", f"s_mov_b32 s53, {SPIN}", "L_cnt_spin_loop:", "s_sleep 2",
          f"buffer_load_dword v15, v14, {SRD_D}, 0 offen sc1", "s_waitcnt vmcnt(0)", "v_readfirstlane_b32 s52, v15", "s_nop 3",
          "s_cmp_ge_u32 s52, 16", "s_cbranch_scc1 L_cnt_ok", "s_sub_u32 s53, s53, 1", "s_cmp_lg_u32 s53, 0", "s_cbranch_scc1 L_cnt_spin_loop", "s_branch L_cnt_ok")
    A("L_restart:", f"s_mov_b32 {S_SAFE}, 1", "s_waitcnt vmcnt(0) lgkmcnt(0)", "s_barrier")
    A(lane_consts_q())
    A("s_branch L_phase_q")
    return L

def k_read(kt, s, slotk):
    off = kphys(slotk) + kt * 4096
    return I(f"ds_read_b128 {ar(kbuf(kt, s))}, v{V_KR[s]}" + (f" offset:{off}" if off else ""))
def v_read(dt, h, slotv):
    off = vphys(slotv) + h * 4096
    return I(f"ds_read_b64_tr_b16 {ar(abuf(dt) + 2*h, 2)}, v{V_VR[dt]}" + (f" offset:{off}" if off else ""))
def qk_mfma(kt, s, t, first_c):
    c = first_c(t) if s == 0 else vr(Sreg(kt, t))
    return mfma(vr(Sreg(kt, t)), ar(kbuf(kt, s)), vr(qfrag(t, s)), c)
def pv_mfma(dt, t, par):
    return mfma(ar(oacc(dt, t)), ar(abuf(dt)), vr(Preg(par, t)), ar(oacc(dt, t)))
def rs_mfma(t, par):
    return mfma(ar(lacc(t)), ar(A_ONES), vr(Preg(par, t)), ar(lacc(t)))
def cvts(par):
    out = []
    for kt in range(2):
        for t in range(5):
            s = Sreg(kt, t); p = Preg(par, t) + 2 * kt
            out.append(I(f"v_cvt_pk_bf16_f32 v{p}, v{s}, v{s+1}"))
            out.append(I(f"v_cvt_pk_bf16_f32 v{p+1}, v{s+2}, v{s+3}"))
    return out
def exps(kt):
    return [I(f"v_exp_f32 v{Sreg(kt,t)+i}, v{Sreg(kt,t)+i}") for t in range(5) for i in range(4)]

def att_dma(j, dyn=False):
    seq = []
    if j == 0 or j > 12: return seq
    if True:
        pre = II(f"s_add_u32 m0, {S_MK}, {kphys(j + 4)}")
        g = kv_group('K', None, S_SOFFK)
        seq += [(pre, g[0])] + [([], x) for x in g[1:]]
        seq[-1] = (seq[-1][0], seq[-1][1], II(f"s_add_u32 {S_SOFFK}, {S_SOFFK}, 8192"))
    if j + 3 <= 15:
        pre = II(f"s_add_u32 m0, {S_MV}, {vphys(j + 3)}")
        g = kv_group('V', None, S_SOFFV)
        s2 = [(pre, g[0])] + [([], x) for x in g[1:]]
        s2[-1] = (s2[-1][0], s2[-1][1], II(f"s_add_u32 {S_SOFFV}, {S_SOFFV}, 8192"))
        seq += s2
    return seq

def wo_dma(ks, slot_base_imm):
    seq = []
    for gI in range(2):
        pre = II(f"s_lshl_b32 s50, {S_W}, 13", f"s_add_u32 m0, s50, {slot_base_imm + gI*4096}", f"s_mov_b32 s51, {ks*32768 + gI*16384}")
        for n in range(4):
            seq.append((pre if n == 0 else [], dma(V_WOD[n], SRD_WO, "s51", n * 1024, OPT["wont"])))
    return seq

def att_body(j, vmwait, extra_dma=None):
    par_old, par_new = (j - 1) & 1, j & 1
    ms = [pv_mfma(dt, t, par_old) for dt in (5, 6, 7) for t in range(5)] + [rs_mfma(t, par_old) for t in range(5)]
    ms += [qk_mfma(kt, s, t, lambda t: vr(cinit(t))) for kt in range(2) for s in range(4) for t in range(5)]
    ms += [pv_mfma(dt, t, par_new) for dt in range(5) for t in range(5)]
    S = Sched(ms)
    cv = cvts(par_new)
    S.spread(cv, [1, 1, 3, 3, 6, 6, 8, 8, 11, 11, 13, 13, 16, 16, 18, 18, 21, 21, 23, 23])
    S.spread([k_read(kt, s, j + 1) for kt in range(2) for s in range(4)], [0, 2, 5, 7, 10, 12, 15, 17])
    vr_ = [v_read(dt, h, j) for dt in range(8) for h in range(2)]
    S.spread(vr_, [20, 22, 25, 26, 27, 28, 30, 31, 32, 33, 35, 36, 37, 38, 40, 61])
    d = att_dma(j) + (extra_dma or [])
    put_dmas(S, d, [4, 9, 14, 19, 24, 29, 34, 39])
    S.spread(exps(0), list(range(41, 61)))
    S.spread(exps(1), list(range(62, 82)))
    seq = S.flat()
    seq, pend = lgkm_waits(seq)
    seq += tr_mark() + II(f"s_waitcnt vmcnt({vmwait}) lgkmcnt(0)") + tr_commit() + II("s_barrier")
    if OPT['verbose']: print(S.report(f"att_body {j}"))
    return seq

WO1 = [192, 200, 208, 216, 224, 228, 232, 236]
def wofrag(ks, m, n=4, off=0):
    if ks == 0: return ar(216 + 4 * m + off, n)
    if ks == 1: return vr(WO1[m] + off, n)
    return ar((ks - 2) * 32 + 4 * m + off, n)
def wo_read(ks, m, h):
    cp, hf = m >> 1, m & 1
    off = (32768 if (ks & 1) == 0 else 0) + hf * 8 + h * 4096
    return I(f"ds_read_b64_tr_b16 {wofrag(ks, m, 2, 2*h)}, v{V_WOR[cp]}" + (f" offset:{off}" if off else ""))

def wo_prefetch():
    n = OPT['pfw']
    L = II(f"s_lshl_b32 s50, {S_B}, 15", f"s_lshl_b32 s51, {S_W}, 13", "s_add_u32 s50, s50, s51")
    nt = " nt" if OPT['pfnt'] else ""
    if n == 8:
        L += II(f"v_lshlrev_b32 v46, 4, {V_LANE}")
        for i in range(8):
            L += II(f"s_add_u32 s51, s50, {i*1024}", f"buffer_load_dwordx4 v[252:255], v46, s[84:87], s51 offen{nt}")
    else:
        sh = {1: 7, 2: 6, 4: 5}[n]
        L += II(f"v_lshlrev_b32 v46, {sh}, {V_LANE}")
        for i in range(n):
            L += II(f"s_add_u32 s51, s50, {i * (64 << sh)}", f"buffer_load_dword v47, v46, s[84:87], s51 offen{nt}")
    return L

ATT_OOL = []
def attention():
    L = []; A = lambda *x: L.extend(II(*x))
    L += transition()
    A(stamp("att_start"))
    A(f"s_mov_b32 {S_CNT}, 0")
    b0, n = hazards(att_body(0, 16), history=L[-24:]); L.extend(b0)
    bodies = [att_body(j, 16) for j in range(1, 5)]
    hist = bodies[3][-24:]
    A(".p2align 6", "L_att_loop:")
    OOLA = []
    for i, b in enumerate(bodies):
        if i == 3:
            A(f"s_cmp_eq_u32 {S_CNT}, 2", "s_cbranch_scc1 L_att_nok", "L_att_nok_done:")
            OOLA += II("L_att_nok:") + [I(f"v_add_u32 v{V_KD[n]}, 0x40000000, v{V_KD[n]}") for n in range(4)] + II("s_branch L_att_nok_done")
        b2, n = hazards(b, history=hist); L.extend(b2); hist = b2[-24:]
    if 0 <= OPT['pf'] < 3:
        A(f"s_cmp_eq_u32 {S_CNT}, {OPT['pf']}", "s_cbranch_scc0 L_att_nopf", wo_prefetch(), "L_att_nopf:")
    A(f"s_add_u32 {S_CNT}, {S_CNT}, 1", f"s_cmp_lt_u32 {S_CNT}, 3", "s_cbranch_scc1 L_att_loop")
    ATT_OOL.clear(); ATT_OOL.extend(OOLA)
    b, n = hazards(att_body(13, 16, extra_dma=wo_dma(0, WOA)), history=hist); L.extend(b); hist = b[-24:]
    b, n = hazards(att_body(14, 16, extra_dma=wo_dma(1, WOB)), history=hist); L.extend(b); hist = b[-24:]
    A(stamp("att_loop_done"))
    ms = [pv_mfma(dt, t, 0) for dt in (5, 6, 7) for t in range(5)] + [rs_mfma(t, 0) for t in range(5)]
    ms += [pv_mfma(dt, t, 1) for dt in range(8) for t in range(5)] + [rs_mfma(t, 1) for t in range(5)]
    S = Sched(ms)
    S.spread(cvts(1), list(range(0, 20)))
    S.spread([v_read(dt, h, 15) for dt in range(5) for h in range(2)], list(range(0, 10)))
    S.spread([v_read(dt, h, 15) for dt in (5, 6, 7) for h in range(2)], list(range(15, 21)))
    S.put(20, "s_waitcnt vmcnt(8)")
    S.spread([wo_read(0, m, h) for m in range(8) for h in range(2)], [21 + i // 2 for i in range(16)])
    S.put(28, "s_waitcnt vmcnt(0)")
    S.spread([wo_read(1, m, h) for m in range(8) for h in range(2)], [29 + i // 2 for i in range(16)])
    S.put(38, "s_waitcnt lgkmcnt(0)")
    if OPT['fused']:
        S.put(36, f"s_lshl_b32 s50, {S_CL}, 2", f"s_add_u32 s50, s50, {CNTOFF()}")
        S.spread([f"v_lshlrev_b32 v14, 8, {V_LANE}", "v_add_u32 v14, s50, v14"], [37, 37])
        S.put(38, f"buffer_load_dword v15, v14, {SRD_D}, 0 offen sc1")
    put_dmas(S, wo_dma(2, WOA), [41, 44, 47, 50, 54, 57, 60, 63])
    seq, pend = lgkm_waits(S.flat(), final_zero=True)
    seq, n = hazards(seq, history=hist); L.extend(seq)
    A("s_barrier")
    A("s_nop 3")
    A(stamp("att_done"))
    return L

def wo_dma_t(ks):
    d = wo_dma(ks, WOA if (ks & 1) == 0 else WOB)
    for e in d: e[1].tag = f"wo{ks}"
    return d
def wo_reads(ks): return [wo_read(ks, m, h) for m in range(8) for h in range(2)]

LFLAG = 90112

def o_epilogue():
    E = []
    tl = VT[0]; rc = VT[2]
    d3, d4, d5 = wo_dma_t(3), wo_dma_t(4), wo_dma_t(5)
    E += II(f"s_lshl_b32 s51, {S_QH}, 11", f"v_subrev_u32 v{V_OWB}, s51, v{V_OW}", f"v_add_u32 v{V_OW}, s51, v{V_OW}",
            f"s_lshl_b32 s50, {S_U}, 12", f"s_add_u32 s50, s50, 32768", "s_add_u32 s50, s50, s51", f"v_add_u32 v{V_OW4}, s50, v{V_OR}")
    def emit_dma(e):
        return e[0] + II("s_nop 0") * (1 if e[0] else 0) + [e[1]]
    nfr = 0
    for t in range(5):
        E += II(f"v_accvgpr_read_b32 v{tl}, a{lacc(t)}", f"v_rcp_f32 v{rc}, v{tl}", "s_nop 0", f"v_mov_b32 v{rc+1}, v{rc}")
        if t == 0: E += II(f"v_mov_b32 v{VT[1]}, v{tl}")
        else: E += II(f"v_max_f32 v{VT[1]}, v{VT[1]}, v{tl}")
        if t == 4:
            E += II(f"v_cmp_nge_f32 vcc, {hex(OPT['lthr'] or LTHR)}, v{VT[1]}", f"s_lshl_b32 s50, {S_W}, 2", f"s_add_u32 s50, s50, {LFLAG}", f"v_mov_b32 v52, s50",
                    "s_cmp_lg_u64 vcc, 0", "s_cselect_b32 s51, 1, 0", "v_mov_b32 v53, s51", "ds_write_b32 v52, v53")
        for ks in range(4 if t < 4 else 2):
            mid = []
            if nfr < 8: mid += emit_dma(d3[nfr])
            if 8 <= nfr < 16: mid += emit_dma(d4[nfr - 8])
            if nfr >= 16:
                for i in range(4): mid += emit_dma(d5[4 * (nfr - 16) + i])
            if OPT.get('x_oenodma'): mid = [x for x in mid if x.kind == 'dma'][:0] + [x for x in mid if x.kind != 'dma']
            rd = []
            cut = {0: (0, 6), 1: (6, 11), 2: (11, 16)}
            if 4 <= nfr < 7:
                if nfr == 4:
                    rd += [VmNeed("wo2")]
                    if OPT['fused']:
                        rd += II("v_readfirstlane_b32 s52, v15", "s_nop 3", "s_cmp_lt_u32 s52, 16", "s_cbranch_scc1 L_cnt_spin", "L_cnt_ok:")
                a_, b_ = cut[nfr - 4]; rd += wo_reads(2)[a_:b_]
            if 12 <= nfr < 15:
                if nfr == 12: rd += [VmNeed("wo3")]
                a_, b_ = cut[nfr - 12]; rd += wo_reads(3)[a_:b_]
            if OPT.get('oe_nord'): rd = [x for x in rd if x.kind != 'dsr']
            if OPT.get('oe_nowait'): rd = [x for x in rd if not isinstance(x, VmNeed)]
            if OPT.get('oe_nodma'): mid = []; rd = [x for x in rd if not (isinstance(x, VmNeed) and x.tag == 'wo3')]
            if nfr in (8, 16): E += II("s_waitcnt lgkmcnt(0)")
            E += rd
            for h in range(2):
                for k in range(4):
                    E += II(f"v_accvgpr_read_b32 v{52 + 4*h + k}, a{oacc(2*ks + h, t) + k}")
            E += mid
            for k in range(4): E += II(f"v_pk_mul_f32 {vr(52+2*k,2)}, {vr(52+2*k,2)}, {vr(rc,2)}")
            for k in range(4): E += II(f"v_cvt_pk_bf16_f32 v{60+k}, v{52+2*k}, v{53+2*k}")
            E += II(f"ds_write_b128 v{V_OW if ks < 2 else V_OWB}, {vr(60)} offset:{(t*8+ks)*1024}" if t < 4 else f"ds_write_b128 v{V_OW4}, {vr(60)} offset:{ks*1024}")
            nfr += 1
        if OPT['stamps'] and OPT.get('oest'): E += [Raw("\n  ".join(x.txt for x in stamp(f"oe{t}")))] + II("s_waitcnt lgkmcnt(0)")
    E, q = vm_waits(E, ["cnt"] + ["wo2"] * 8)
    E, pend = lgkm_waits(E, final_zero=True)
    E, n = hazards(E)
    return E + II("s_barrier"), q

def o_read(dst, t, ks):
    if t < 8: return I(f"ds_read_b128 {vr(dst)}, v{V_OR} offset:{(t*8+ks)*1024}")
    return I(f"ds_read_b128 {vr(dst)}, v{V_OR8} offset:{ks*1024}")
V_PSC = [196, 197, 198, 199]
V_OWNA = 204; S_OWN = "s49"
OWNB = 73728
OWN_OOL = []
def pstore(src, t, cp):
    v = V_PSC[cp] if OPT['own'] else V_PS
    return (II(f"s_add_u32 s51, {S_SOFFP}, {(cp*9 + t)*16384}"),
            I(f"buffer_store_dwordx4 {vr(src)}, v{v}, {SRD_P}, s51 offen {OPT['pst']}"))
def own_hook(src, t, cp):
    if not OPT['own']: return []
    OWN_OOL.extend(II(f"L_own_{t}_{cp}:", f"ds_write_b128 v{V_OWNA}, {vr(src)} offset:{t*1024}", f"s_branch L_ownb_{t}_{cp}"))
    return II(f"s_cmp_eq_u32 {S_OWN}, {cp}", f"s_cbranch_scc1 L_own_{t}_{cp}", f"L_ownb_{t}_{cp}:")

NP1 = 2
def acc1(t, m): return 64 + (t * 8 + m) * 4
def acc2(t, m): return 128 + ((t & 1) * 8 + m) * 4
def bfr1(par, t): return 2 + (par * 4 + t) * 4
STG = [48, 52, 56, 60]

def tile_epilogue(accf, t, k0):
    out = []
    for cp in range(4):
        a0, a1 = accf(t, 2*cp), accf(t, 2*cp + 1)
        d = STG[(k0 + cp) & 3]
        cv = II(f"v_cvt_pk_bf16_f32 v{d}, v{a0}, v{a0+1}", f"v_cvt_pk_bf16_f32 v{d+1}, v{a0+2}, v{a0+3}",
                f"v_cvt_pk_bf16_f32 v{d+2}, v{a1}, v{a1+1}", f"v_cvt_pk_bf16_f32 v{d+3}, v{a1+2}, v{a1+3}")
        pre, st = pstore(d, t, cp)
        if OPT.get('x_nost') and not (t == 8 and cp == 3): st = I("s_nop 0")
        st.tag = f"st{t}"
        out.append((cv, (pre, st), own_hook(d, t, cp)))
    return out

def out_proj(queue):
    L = []; A = lambda *x: L.extend(II(*x))
    A(f"s_mul_i32 {S_SOFFP}, {S_W}, {4*9*16384}")
    OWN_OOL.clear()
    if OPT['own']:
        A(f"s_lshr_b32 s50, {S_HP}, 2", f"s_and_b32 s51, {S_HP}, 3", f"s_cmp_eq_u32 s50, {S_W}", f"s_cselect_b32 {S_OWN}, s51, 7")
        for cp in range(4):
            A(f"s_cmp_eq_u32 {S_OWN}, {cp}", "s_cselect_b32 s50, 0x40000000, 0", f"v_or_b32 v{V_PSC[cp]}, s50, v{V_PS}")
        A(f"v_add_u32 v{V_OWNA}, {OWNB}, v{V_OR}")
    NP = OPT['np1']
    G = 8 * NP
    ms = [mfma(vr(acc1(t, m)), wofrag(ks, m), vr(bfr1(ks & 1, t)), ("0" if ks == 0 else vr(acc1(t, m)))) for ks in range(8) for m in range(8) for t in range(NP)]
    bt = lambda ks: 2 + 4 * ks
    P1 = len(ms)
    for t in range(NP, 9):
        ms += [mfma(vr(acc2(t, m)), wofrag(ks, m), vr(bt(ks)), ("0" if ks == 0 else vr(acc2(t, m)))) for ks in range(8) for m in range(8)]
    S = Sched(ms)
    def reads(ks, g0): S.spread(wo_reads(ks), [g0 + i // 2 for i in range(16)])
    def dmas(ks, g0, step=4): put_dmas(S, wo_dma_t(ks), [g0 + step * i for i in range(8)])
    def put_free(ins, g0):
        g = g0
        while S.cost(g) + COST[ins.kind] > 8: g += 1
        S.put(g, ins); return g
    def epi(t, accf, g0, stride):
        for cp, (cv, (spre, st), hook) in enumerate(tile_epilogue(accf, t, 0)):
            g = g0 + cp * stride
            S.spread(cv, [g, g, g + 1, g + 1])
            for p in spre: S.put(g + 1, p)
            for p in hook: S.put(g + 2, p)
            S.put(g + 2, st)
    if NP == 2:
        pre = [o_read(bfr1(0, t), t, 0) for t in range(NP)]
        S.put(0, VmNeed("wo4")); reads(4, 0)
        S.put(9, "s_waitcnt lgkmcnt(0)"); dmas(6, 11, 3)
        S.put(33, VmNeed("wo5")); reads(5, 33)
        S.put(42, "s_waitcnt lgkmcnt(0)"); dmas(7, 44, 3)
        S.put(84, VmNeed("wo6")); reads(6, 84)
        S.put(100, VmNeed("wo7")); reads(7, 100)
        for ks in range(7):
            g = ks * G + (1 if ks else 8)
            for t in range(NP):
                g = put_free(o_read(bfr1((ks + 1) & 1, t), t, ks + 1), g) + 1
            assert g <= (ks + 1) * G - 3, (ks, g)
        g = 6 * G + 4
        for ks in (2, 3, 6, 7): g = put_free(o_read(bt(ks), NP, ks), g) + 1
        g = 7 * G + 1
        for ks in (0, 1): g = put_free(o_read(bt(ks), NP, ks), g) + 1
        base = P1
        for ks in (4, 5): put_free(o_read(bt(ks), NP, ks), base + 1)
        epi(0, acc1, base + 4, 7); epi(1, acc1, base + 32, 7)
    else:
        assert NP == 0
        pre = [o_read(bt(ks), 0, ks) for ks in range(8)]
        S.put(0, VmNeed("wo4")); reads(4, 0)
        S.put(9, "s_waitcnt lgkmcnt(0)"); dmas(6, 11, 2)
        S.put(10, VmNeed("wo5"));
        S.spread(wo_reads(5), [12, 12, 14, 14, 16, 16, 18, 18, 20, 20, 22, 22, 24, 24, 26, 26])
        S.put(28, "s_waitcnt lgkmcnt(0)"); dmas(7, 30, 2)
        S.put(46, VmNeed("wo6")); S.spread(wo_reads(6), [46, 46, 46, 46] + [47 + i // 4 for i in range(12)])
        S.put(54, VmNeed("wo7")); S.spread(wo_reads(7), [54, 54, 54, 54] + [55 + i // 12 for i in range(12)])
    for t in range(NP, 9):
        b = P1 + (t - NP) * 64
        if t > NP: epi(t - 1, acc2, b + 6, 12)
        if t < 8:
            for ks in range(8):
                g = b + 8 * ks + 8
                if g >= b + 64: g = b + 64 + 1
                put_free(o_read(bt(ks), t + 1, ks), g)
    if OPT['fused']:
        g0 = P1 + (3 - NP) * 64 + 49
        S.put(g0, f"s_lshl_b32 s50, {S_W}, 7", f"s_lshl_b32 s52, {S_HP}, 2", "s_add_u32 s50, s50, s52")
        S.spread([f"v_lshlrev_b32 v36, 13, {V_LANE}", "v_add_u32 v36, s50, v36", "v_mov_b32 v37, 1"], [g0 + 1, g0 + 1, g0 + 2])
        S.put(g0 + 3, f"s_lshr_b32 s50, {S_HP}, 2", "s_lshl_b32 s50, s50, 7")
        S.spread([f"v_lshrrev_b32 v46, 4, {V_LANE}", "v_lshlrev_b32 v46, 9, v46", f"v_and_b32 v47, 15, {V_LANE}",
                  "v_lshl_add_u32 v46, v47, 2, v46", "v_add_u32 v46, s50, v46"], [g0 + 4, g0 + 4, g0 + 5, g0 + 9, g0 + 9])
        b = P1 + (8 - NP) * 64
        fa = I(f"buffer_store_dword v37, v36, {SRD_F}, 0 offen sc1"); fa.tag = "fl"
        if OPT['early']:
            S.put(b + 40, VmNeed("st3")); S.put(b + 41, fa)
            pl = I(f"buffer_load_dword v47, v46, {SRD_F}, 0 offen sc1"); pl.tag = "poll"
            S.put(b + 60, pl)
    if OPT['stamps'] and OPT.get('opst'):
        for nm, g in (("w1", 127), ("w3", 255), ("w5", 383), ("w8", 575)):
            S.put(g, Raw("\n  ".join(x.txt for x in stamp(nm))))
            S.put(g, "s_waitcnt lgkmcnt(0)")
    pre = II(f"v_mov_b32 v56, {LFLAG}", f"ds_read_b128 {vr(52)}, v56") + pre
    pre += II("s_waitcnt lgkmcnt(0)", "v_or3_b32 v52, v52, v53, v54", "v_or_b32 v52, v52, v55", "s_nop 0", "v_readfirstlane_b32 s50, v52", "s_nop 3",
              f"s_andn2_b32 s50, s50, {S_SAFE}", "s_cmp_lg_u32 s50, 0", "s_cbranch_scc1 L_restart")
    seq = pre + S.flat()
    tail = II("s_nop 7")
    for cp, (cv, (spre, st), hook) in enumerate(tile_epilogue(acc2, 8, 0)):
        tail += cv + spre + hook + [st]
    if OPT['stamps'] and OPT.get('opst'): tail += stamp("st_iss")
    if OPT['fused']:
        fb = I(f"buffer_store_dword v37, v36, {SRD_F}, 0 offen offset:512 sc1"); fb.tag = "fl"
        fc = I(f"buffer_store_dword v37, v36, {SRD_F}, 0 offen offset:1024 sc1"); fc.tag = "fl"
        tail += [VmNeed("poll"), fb, VmNeed("st8"), fc] if OPT['early'] else [VmNeed("st8"), fa, fb, fc]
    seq, q = vm_waits(seq + tail, queue)
    seq, pend = lgkm_waits(seq)
    seq, n = hazards(seq)
    if OPT['verbose']: print(S.report("out_proj"), "nops", n)
    L += seq
    return L, q

SPIN = 1 << 22
def reduce_phase():
    L = []; A = lambda *x: L.extend(II(*x))
    DAT = lambda g, tt, k: 64 + ((g * 2 + tt) * 4 + k) * 4
    D8 = lambda k: 192 + 4 * k
    ACC = lambda g, tt: [208, 216, 224, 232, 240, 248, 2, 10][g * 2 + tt]
    A8 = 18
    T0, T1 = 26, 28
    V_POLL, V_FL, V_L16, V_OUT = 46, 47, 32, 33
    A(f"v_lshrrev_b32 v30, 4, {V_LANE}", f"v_and_b32 v31, 15, {V_LANE}", f"v_lshlrev_b32 v{V_L16}, 4, {V_LANE}",
      f"v_lshlrev_b32 v{V_OUT}, 11, v31", f"v_lshl_add_u32 v{V_OUT}, v30, 4, v{V_OUT}")
    A(f"s_mul_i32 s32, {S_B}, {144*2048}", f"s_lshl_b32 s50, {S_BR}, 10", "s_add_u32 s32, s32, s50", f"s_lshl_b32 s50, {S_HP}, 6", "s_add_u32 s32, s32, s50")
    A(f"s_mul_i32 s33, {S_HP}, {9*16384}")
    A(f"s_lshl_b32 s50, {S_W}, 14", "s_add_u32 s34, s33, s50", "s_add_u32 s35, s34, 65536",
      f"s_add_u32 s36, s33, {8*16384}", f"s_lshl_b32 s50, {S_W}, 12", "s_add_u32 s36, s36, s50",
      f"s_lshl_b32 s41, {S_W}, 2")
    A("s_mov_b32 s37, 0", "s_mov_b32 s38, 0", f"s_mov_b32 s53, {SPIN}")
    if OPT['own']:
        A(f"s_lshr_b32 s46, {S_HP}, 2", f"s_and_b32 s47, {S_HP}, 3", f"s_lshl_b32 s50, {S_W}, 10", f"s_add_u32 s50, s50, {OWNB}", f"v_add_u32 v44, s50, v{V_L16}",
          "s_waitcnt lgkmcnt(0)", "s_barrier", "ds_read_b128 v[36:39], v44", "ds_read_b128 v[40:43], v44 offset:4096")
    def unpack_add(acc, src, first):
        out = []
        for k in range(4):
            if first:
                out += [f"v_lshlrev_b32 v{acc+2*k}, 16, v{src+k}", f"v_and_b32 v{acc+2*k+1}, 0xffff0000, v{src+k}"]
            else:
                t = (T0, T1)[k & 1]
                out += [f"v_lshlrev_b32 v{t}, 16, v{src+k}", f"v_and_b32 v{t+1}, 0xffff0000, v{src+k}",
                        f"v_pk_add_f32 v[{acc+2*k}:{acc+2*k+1}], v[{acc+2*k}:{acc+2*k+1}], v[{t}:{t+1}]"]
        return out
    items = [(tt, g) for tt in range(2) for g in range(4)] + [(2, None)]
    if OPT['early']: A("s_branch L_red_first")
    A("L_red_loop:")
    A("s_cmp_eq_u32 s37, 0x1ff", "s_cbranch_scc1 L_red_nopoll")
    A(f"buffer_load_dword v{V_FL}, v{V_POLL}, {SRD_F}, 0 offen sc1")
    A("L_red_nopoll:", "s_waitcnt vmcnt(0)")
    A("s_andn2_b32 s42, s37, s38")
    for i, (tt, g) in enumerate(items):
        A(f"s_bitcmp1_b32 s42, {i}", f"s_cbranch_scc0 L_red_nosum{i}")
        for k in range(4):
            A(unpack_add(ACC(g, tt), DAT(g, tt, k), k == 0) if tt < 2 else unpack_add(A8, D8(k), k == 0))
        A(f"L_red_nosum{i}:")
    A("s_mov_b32 s38, s37", "s_cmp_eq_u32 s38, 0x1ff", "s_cbranch_scc1 L_red_done")
    A("L_red_first:")
    A(f"v_cmp_eq_u32 vcc, 1, v{V_FL}", "s_nop 3", "s_mov_b32 s39, vcc_lo", "s_lshr_b32 s43, vcc_hi, s41", "s_and_b32 s43, s43, 15", "s_mov_b32 s40, s37")
    A("s_sub_u32 s53, s53, 1", "s_cmp_eq_u32 s53, 0", "s_cselect_b32 s39, -1, s39", "s_cselect_b32 s43, 15, s43", "s_cselect_b32 s53, 1, s53")
    for i, (tt, g) in enumerate(items):
        A(f"s_bitcmp1_b32 s37, {i}", f"s_cbranch_scc1 L_red_noiss{i}")
        if tt < 2:
            A(f"s_bfe_u32 s50, s39, {hex((4 << 16) | (16 * tt + 4 * g))}", "s_cmp_eq_u32 s50, 15")
        else:
            A("s_cmp_eq_u32 s43, 15")
        A(f"s_cbranch_scc0 L_red_noiss{i}")
        if tt < 2: A(f"s_add_u32 s50, s{34+tt}, {g*4096}")
        if OPT['own']:
            A(f"s_cmp_eq_u32 s46, {g}" if tt < 2 else f"s_cmp_eq_u32 s46, {S_W}", "s_cselect_b32 s44, s47, 7")
        for k in range(4):
            o = f" offset:{k*1024}" if k else ""
            va = V_L16
            if OPT['own']:
                A(f"s_cmp_eq_u32 s44, {k}", "s_cselect_b32 s45, 0x40000000, 0", f"v_or_b32 v45, s45, v{V_L16}"); va = 45
            if tt < 2: A(f"buffer_load_dwordx4 {vr(DAT(g, tt, k))}, v{va}, {SRD_P}, s50 offen{o} {OPT['rld']}")
            else: A(f"buffer_load_dwordx4 {vr(D8(k))}, v{va}, {SRD_P}, s36 offen{o} {OPT['rld']}")
        A(f"s_bitset1_b32 s37, {i}", f"L_red_noiss{i}:")
    if OPT.get('rdst'):
        A("s_cmp_eq_u32 s40, 0", "s_cbranch_scc0 L_rs1", "s_cmp_lg_u32 s37, 0", "s_cbranch_scc0 L_rs1", stamp("r_first"), "L_rs1:")
        A("s_cmp_eq_u32 s37, 0x1ff", "s_cbranch_scc0 L_rs2", stamp("r_alliss"), "L_rs2:")
    A("s_cmp_lg_u32 s37, s40", "s_cbranch_scc1 L_red_loop", f"s_sleep {OPT['psleep']}", "s_branch L_red_loop")
    A("L_red_done:")
    if OPT.get('rdst'): A(stamp("r_summed"))
    A(f"s_lshl_b32 s50, {S_W}, 11", f"v_lshlrev_b32 v30, 5, {V_LANE}", f"v_add_u32 v30, {WOB}, v30", "v_add_u32 v31, s50, v30",
      f"ds_write_b128 v31, {vr(A8)}", f"ds_write_b128 v31, {vr(A8+4)} offset:16")
    for tt in range(2):
        a0 = ACC(0, tt)
        for g in range(1, 4):
            for k in range(4): A(f"v_pk_add_f32 v[{a0+2*k}:{a0+2*k+1}], v[{a0+2*k}:{a0+2*k+1}], v[{ACC(g,tt)+2*k}:{ACC(g,tt)+2*k+1}]")
        if OPT['own']: A("s_waitcnt lgkmcnt(2)" if tt == 0 else "s_nop 0", unpack_add(a0, 36 + 4 * tt, False))
        for k in range(4): A(f"v_cvt_pk_bf16_f32 v{64+4*tt+k}, v{a0+2*k}, v{a0+2*k+1}")
        A(f"s_lshl_b32 s50, {S_W}, 15", f"s_add_u32 s50, s50, s32", f"s_add_u32 s50, s50, {tt*4*32768}")
        A(f"buffer_store_dwordx4 {vr(64+4*tt)}, v{V_OUT}, {SRD_O}, s50 offen {OPT['ost']}")
    A("s_waitcnt lgkmcnt(0)", "s_barrier", f"s_cmp_eq_u32 {S_W}, 0", "s_cbranch_scc0 L_red_end")
    for g in range(4):
        A(f"ds_read_b128 {vr(80+8*g)}, v30 offset:{g*2048}", f"ds_read_b128 {vr(84+8*g)}, v30 offset:{g*2048+16}")
    if OPT['own']: A("ds_read_b128 v[36:39], v44 offset:8192")
    A("s_waitcnt lgkmcnt(0)")
    for g in range(1, 4):
        for k in range(4): A(f"v_pk_add_f32 v[{80+2*k}:{81+2*k}], v[{80+2*k}:{81+2*k}], v[{80+8*g+2*k}:{81+8*g+2*k}]")
    if OPT['own']: A(unpack_add(80, 36, False))
    for k in range(4): A(f"v_cvt_pk_bf16_f32 v{72+k}, v{80+2*k}, v{81+2*k}")
    A(f"s_add_u32 s50, s32, {8*32768}")
    A(f"buffer_store_dwordx4 {vr(72)}, v{V_OUT}, {SRD_O}, s50 offen {OPT['ost']}")
    A("L_red_end:")
    L2, n = hazards(L)
    return L2

def dump_regs(regs, slot, kind='v'):
    L = []; A = lambda *x: L.extend(II(*x))
    A("s_add_u32 s66, s58, 0x4000000", "s_addc_u32 s67, s59, 0",
      "s_lshl_b32 s50, s2, 2", f"s_add_u32 s50, s50, {S_W}", "s_lshl_b32 s50, s50, 16",
      f"v_lshlrev_b32 v253, 2, {V_LANE}", "v_add_u32 v253, s50, v253")
    for i, r in enumerate(regs):
        if kind == 'a':
            A(f"v_accvgpr_read_b32 v254, a{r}", "s_nop 0")
            A(f"global_store_dword v253, v254, s[66:67]")
        else:
            A(f"global_store_dword v253, v{r}, s[66:67]")
        A("v_add_u32 v253, 256, v253")
    A("s_waitcnt vmcnt(0)")
    return L

def main_kernel():
    L = []
    L += setup()
    L += stamp("start")
    L += phase_q()
    L += stamp("q_done")
    if OPT['dump'] == 'q':
        L += II("s_nop 7") + dump_regs([qfrag(t, s) + k for t in range(5) for s in range(4) for k in range(4)], 0)
        L += II("s_waitcnt vmcnt(0)", "s_endpgm")
    L += attention()
    if OPT['dump'] == 'o':
        L += II("s_nop 7") + dump_regs([oacc(dt, t) + k for t in range(5) for dt in range(8) for k in range(4)] + [lacc(t) for t in range(5)], 0, 'a')
        L += II("s_waitcnt vmcnt(0)", "s_endpgm")
    e, q = o_epilogue(); L += e
    L += stamp("o_done")
    if OPT.get('stop') == 'o':
        L += II("s_waitcnt vmcnt(0)") + stamp("end") + stamp_dump() + II("L_main_end:", "s_endpgm") + safe_paths()
        return L
    e, q = out_proj(q); L += e
    L += stamp("op_done")
    if OPT['fused']:
        L += reduce_phase()
        L += stamp("red_done")
    L += tr_dump()
    L += II("s_waitcnt vmcnt(0)")
    L += stamp("end")
    L += stamp_dump()
    L += II("L_main_end:", "s_endpgm")
    L += OWN_OOL + ATT_OOL
    L += safe_paths()
    return L

def reduce_kernel():
    L = []; A = lambda *x: L.extend(II(*x))
    A("s_cmp_ge_u32 s2, 256", "s_cbranch_scc1 L_red_end")
    A("s_load_dwordx2 s[4:5], s[0:1], 80", "s_load_dwordx2 s[6:7], s[0:1], 96")
    A("v_lshrrev_b32 v2, 6, v0", "v_and_b32 v1, 63, v0", "s_nop 0", "v_readfirstlane_b32 s12, v2", "s_nop 3")
    A("s_waitcnt lgkmcnt(0)")
    A("s_mul_i32 s13, s2, 9", "s_add_u32 s13, s13, s12", "s_lshl_b32 s13, s13, 14")
    A("s_add_u32 s16, s6, s13", "s_addc_u32 s17, s7, 0", "s_and_b32 s17, s17, 0xffff", "s_mov_b32 s18, 16384", "s_mov_b32 s19, 0x20000")
    A("v_lshlrev_b32 v2, 4, v1")
    for p in range(16):
        A(f"buffer_load_dwordx4 v[{8+4*p}:{11+4*p}], v2, s[16:19], 0 offen offset:{(p%4)*1024}" if p < 4 else
          f"buffer_load_dwordx4 v[{8+4*p}:{11+4*p}], v2, s[16:19], s{20+p//4} offen offset:{(p%4)*1024}")
        if p == 3: A("s_mov_b32 s21, 4096", "s_mov_b32 s22, 8192", "s_mov_b32 s23, 12288")
    A("s_lshr_b32 s14, s2, 4", "s_and_b32 s15, s2, 15",
      "s_and_b32 s24, s14, 7", "s_lshr_b32 s25, s14, 3",
      "s_mul_i32 s24, s24, 144", "s_lshl_b32 s26, s12, 4", "s_add_u32 s24, s24, s26", "s_lshl_b32 s24, s24, 11",
      "s_lshl_b32 s25, s25, 10", "s_lshl_b32 s15, s15, 6", "s_add_u32 s24, s24, s25", "s_add_u32 s24, s24, s15")
    A("v_and_b32 v3, 15, v1", "v_lshlrev_b32 v3, 11, v3", "v_lshrrev_b32 v4, 4, v1", "v_lshl_add_u32 v3, v4, 4, v3")
    A("s_mov_b32 s28, s4", "s_and_b32 s29, s5, 0xffff", "s_mov_b32 s30, 2359296", "s_mov_b32 s31, 0x20000")
    acc = 80
    for p in range(16):
        A(f"s_waitcnt vmcnt({15-p})")
        for k in range(4):
            r = 8 + 4 * p + k
            if p == 0:
                A(f"v_lshlrev_b32 v{acc+2*k}, 16, v{r}", f"v_and_b32 v{acc+2*k+1}, 0xffff0000, v{r}")
            else:
                A(f"v_lshlrev_b32 v6, 16, v{r}", f"v_and_b32 v7, 0xffff0000, v{r}",
                  f"v_add_f32 v{acc+2*k}, v{acc+2*k}, v6", f"v_add_f32 v{acc+2*k+1}, v{acc+2*k+1}, v7")
    for k in range(4): A(f"v_cvt_pk_bf16_f32 v{8+k}, v{acc+2*k}, v{acc+2*k+1}")
    A("buffer_store_dwordx4 v[8:11], v3, s[28:31], s24 offen")
    A("s_waitcnt vmcnt(0)")
    A("L_red_end:", "s_endpgm")
    return L

def kernel_text(name, body, vgpr, accum, sgpr=102):
    return f""".globl {name}
.p2align 8
.type {name},@function
{name}:
{text(body)}
"""
def kd(name, nfv, accum, sgpr=102):
    return f""".amdhsa_kernel {name}
  .amdhsa_next_free_vgpr {nfv}
  .amdhsa_next_free_sgpr {sgpr}
  .amdhsa_accum_offset {accum}
  .amdhsa_group_segment_fixed_size 0
  .amdhsa_kernarg_size 104
  .amdhsa_user_sgpr_count 2
  .amdhsa_user_sgpr_kernarg_segment_ptr 1
  .amdhsa_system_sgpr_workgroup_id_x 1
.end_amdhsa_kernel
"""

def build():
    stamp_id[0] = 0; STAMPS.clear()
    k1 = NAME + "_kernel"; k2 = "reduce_heads_kernel"
    m = main_kernel()
    hdr = "; fused q-projection + attention + out-projection; the 16 head-pair partials of an output slice are summed by its owner\n"
    if OPT['fused']:
        hdr += f"; @launch grid=(256,1,1) block=(256,1,1) lds=163840\n"
    else:
        hdr += f"; @launch kernel={k1} grid=(256,1,1) block=(256,1,1) lds=163840\n"
        hdr += f"; @launch kernel={k2} grid=(256,1,1) block=(576,1,1) lds=0\n"
    s = hdr + '.amdgcn_target "amdgcn-amd-amdhsa--gfx950"\n.text\n'
    s += kernel_text(k1, m, 512, 256)
    if not OPT['fused']: s += kernel_text(k2, reduce_kernel(), 96, 96)
    s += '.section .rodata,"a"\n.p2align 6\n' + kd(k1, 512, 256)
    if not OPT['fused']: s += ".p2align 6\n" + kd(k2, 96, 96, 40)
    return s

if __name__ == "__main__":
    ap = argparse.ArgumentParser()
    ap.add_argument("-o", default="cdna_kernels/" + NAME + ".s")
    ap.add_argument("--dump"); ap.add_argument("--stamps", action="store_true"); ap.add_argument("-v", action="store_true")
    ap.add_argument("--opt", action="append", default=[])
    a = ap.parse_args()
    OPT['dump'] = a.dump; OPT['stamps'] = a.stamps; OPT['verbose'] = a.v
    for o in a.opt:
        k, v = o.split("=", 1)
        OPT[k] = {'True': True, 'False': False}.get(v, int(v) if v.lstrip('-').isdigit() else v)
    s = build()
    open(a.o, "w").write(s)
    if a.stamps:
        import json; json.dump(STAMPS, open(a.o + ".stamps.json", "w"))
    print("wrote", a.o, len(s), "bytes")
```

```python
import sys, argparse
from ir import *

NAME = "concat_heads__gqa_block_cached__mha_block_cached__near_ridge"
OPT = dict(wsoff=0, own=True, early=True, l2pf=False, np1=0, pfw=1, pfkv=0, pfkvnt=False, psleep=8, ost='', lthr=0, start2=True, pf=2, pfnt=False, fused=True, rld='sc1', rot=True, wnt=False, xnt=False, wont=False, bursts=(3, 6, 9), dump=None, stamps=False, stop=None, kvnt=True, pst="sc1", verbose=False)

VB = 0
KB = 65536
WB = 16384
XB = 114688
WOA = 131072
WOB = 98304
OB = 0
def kphys(k): return ((k + 1) & 3) * 16384
def vphys(k): return (k & 3) * 16384

SRD_X, SRD_WQ, SRD_K, SRD_V, SRD_WO, SRD_P = "s[4:7]", "s[8:11]", "s[12:15]", "s[16:19]", "s[20:23]", "s[24:27]"
SRD_F, SRD_D, SRD_O = "s[68:71]", "s[72:75]", "s[80:83]"
S_W, S_U, S_QH, S_CNT = "s28", "s29", "s30", "s31"
S_SOFFX, S_SOFFW0, S_UNUSED, S_MW, S_MX, S_DSLOT, S_RSLOT, S_DW, S_DX = "s32", "s33", "s34", "s35", "s36", "s37", "s38", "s39", "s40"
S_BW, S_BX = "s41", "s42"
S_SOFFK, S_SOFFV, S_MK, S_MV = "s45", "s46", "s47", "s48"
S_T0, S_T1, S_T2, S_T3 = "s50", "s51", "s52", "s53"
S_HP, S_B, S_BR, S_CL = "s54", "s55", "s56", "s57"
S_WS = "s[58:59]"
S_SOFFP = "s60"
S_STAMP = "s[62:63]"
S_FLAG = "s64"
S_SAFE = "s61"
S_BX3 = "s38"
LTHR = 0x4b800000
S_KS, S_X0, S_W0 = "s88", "s89", "s87"
S_TAU, S_TB, S_TQ, S_T4N, S_TMASK, S_TSH, S_TM, S_TS = "s78", "s79", "s43", "s44", "s34", "s49", "s61", "s95"

V_LANE = "v1"
V_WQR = [2, 3, 4, 5]; V_XR = 6; V_XR4 = 14; V_OW4 = 50; V_OWB = 51
V_WQD = [7, 8, 9, 10]; V_XD = [11, 12, 13]; V_TG, V_TI, V_TB, V_TV = 14, 15, 62, 63
V_KD = [16, 17, 18, 19]; V_VD = [20, 21]
V_KR = [22, 23, 24, 25]; V_VR = [26 + i for i in range(8)]
V_WOD = [34, 35, 36, 37]; V_WOR = [38, 39, 40, 41]
V_OW, V_OR, V_OR8, V_PS = 42, 43, 44, 45
VT = [46 + i for i in range(18)]
RB = 64
def grp(t, s): return RB + (t * 4 + s) * 8
def qacc(dt, t): return grp(t, dt >> 1) + 4 * (dt & 1)
def qfrag(t, s): return grp(t, s)
def Sreg(kt, t): return grp(t, kt) + 4
def Preg(par, t): return grp(t, 2 + par) + 4
def cinit(t): return 224 + 4 * t
V_C0, V_C1 = 244, 245
def vr(b, n=4): return f"v[{b}:{b+n-1}]"
def ar(b, n=4): return f"a[{b}:{b+n-1}]"
def oacc(dt, t): return t * 32 + dt * 4
def lacc(t): return 160 + 4 * t
A_ONES = 180
def abuf(i): return 184 + 4 * i
def bbuf(t): return [48, 52, 56, 60, 248][t]
def kbuf(kt, s): return 216 + 4 * (kt * 4 + s)

MF = "v_mfma_f32_16x16x32_bf16"
def mfma(d, a, b, c): return I(f"{MF} {d}, {a}, {b}, {c}")
SCALE = (128 ** -0.5) * 1.4426950408889634
import struct
def f2u(x): return struct.unpack("<I", struct.pack("<f", x))[0]

def NT(): return " nt" if OPT['kvnt'] else ""

def CNTOFF(): return 128 if OPT.get('dbgst') is not None else 0
stamp_id = [0]
def stamp(name):
    if not OPT['stamps']: return []
    i = stamp_id[0]; stamp_id[0] += 1
    STAMPS.append(name)
    return II("s_memrealtime s[66:67]", "s_memtime s[64:65]", "s_waitcnt lgkmcnt(0)",
              f"v_writelane_b32 v0, s66, {i}", f"v_writelane_b32 v0, s64, {32 + i}")
def stamp_dump():
    if not OPT['stamps']: return []
    if OPT.get('dbgst') is not None:
        return II(f"s_cmp_eq_u32 s2, {OPT['dbgst']}", "s_cbranch_scc0 L_nodbg", f"s_cmp_eq_u32 {S_W}, 0", "s_cbranch_scc0 L_nodbg",
                  "v_readlane_b32 s50, v0, 0", "s_nop 3", "v_subrev_u32 v0, s50, v0",
                  f"v_lshlrev_b32 v1, 2, {V_LANE}", "v_cmp_gt_u32 vcc, 16, v1", f"v_lshrrev_b32 v2, 2, v1", "v_mov_b32 v3, 0x1000", "v_cmp_gt_u32 vcc, 16, v2", "s_nop 1",
                  "v_cndmask_b32 v1, v3, v1, vcc", f"buffer_store_dword v0, v1, {SRD_D}, 0 offen", "L_nodbg:")
    return II("s_add_u32 s62, s58, 0x8000000", "s_addc_u32 s63, s59, 0", "s_lshl_b32 s65, s2, 2", f"s_add_u32 s65, s65, {S_W}", "s_lshl_b32 s65, s65, 8",
              f"v_lshlrev_b32 v1, 2, {V_LANE}", "v_add_u32 v1, s65, v1", "global_store_dword v1, v0, s[62:63]")
STAMPS = []

def setup():
    L = []
    A = lambda *x: L.extend(II(*x))
    A("s_cmp_ge_u32 s2, 256", "s_cbranch_scc1 L_main_end")
    A("s_load_dwordx8 s[68:75], s[0:1], 0", "s_load_dwordx2 s[76:77], s[0:1], 32",
      "s_load_dwordx8 s[80:87], s[0:1], 40", "s_load_dwordx2 s[88:89], s[0:1], 72",
      f"s_load_dwordx2 {S_WS}, s[0:1], 96", "s_load_dwordx4 s[96:99], s[0:1], 80")
    A("s_and_b32 s50, s2, 7", "s_lshr_b32 s51, s2, 3",
      f"s_lshr_b32 {S_BR}, s50, 2",
      "s_and_b32 s52, s50, 3", "s_lshl_b32 s52, s52, 2", "s_and_b32 s53, s51, 3", f"s_add_u32 {S_HP}, s52, s53",
      f"s_lshr_b32 {S_B}, s51, 2",
      f"s_lshl_b32 s52, {S_BR}, 3", f"s_add_u32 {S_CL}, s52, {S_B}")
    A("v_lshrrev_b32 v46, 6, v0", f"v_and_b32 {V_LANE}, 63, v0", "s_nop 0", f"v_readfirstlane_b32 {S_W}, v46", "s_nop 3")
    A(f"s_lshr_b32 {S_U}, {S_W}, 1", f"s_and_b32 {S_QH}, {S_W}, 1", f"s_mov_b32 {S_SAFE}, 0")
    A(lane_consts_q())
    A("s_waitcnt lgkmcnt(0)")
    A(f"s_cmp_eq_u32 {S_BR}, 1")
    for i in range(8): A(f"s_cselect_b32 s{68+i}, s{80+i}, s{68+i}")
    A("s_cselect_b32 s76, s88, s76", "s_cselect_b32 s77, s89, s77")
    def srd(dst, lo, hi, off_expr_regs, nrec):
        A(f"s_add_u32 s{dst}, s{lo}, s50", f"s_addc_u32 s{dst+1}, s{hi}, 0", f"s_and_b32 s{dst+1}, s{dst+1}, 0xffff")
        A(nrec, f"s_mov_b32 s{dst+3}, 0x20000")
    A(f"s_mul_i32 s50, {S_B}, 147456"); srd(4, 68, 69, None, "s_mov_b32 s6, 147456")
    A(f"s_lshl_b32 s50, {S_HP}, 9"); srd(8, 74, 75, None, "s_sub_u32 s10, 4194304, s50")
    return L

def setup_b():
    L = []
    A = lambda *x: L.extend(II(*x))
    def srd(dst, lo, hi, off_expr_regs, nrec):
        A(f"s_add_u32 s{dst}, s{lo}, s50", f"s_addc_u32 s{dst+1}, s{hi}, 0", f"s_and_b32 s{dst+1}, s{dst+1}, 0xffff")
        A(nrec, f"s_mov_b32 s{dst+3}, 0x20000")
    A(f"s_cmp_eq_u32 {S_SAFE}, 1", "s_cbranch_scc1 L_setup_b_done")
    A(f"s_lshl_b32 s50, {S_B}, 5", f"s_lshl_b32 s51, {S_HP}, 1", "s_add_u32 s50, s50, s51", f"s_add_u32 s50, s50, {S_U}", "s_lshl_b32 s50, s50, 17")
    srd(12, 70, 71, None, "s_mov_b32 s14, 131072")
    srd(16, 72, 73, None, "s_mov_b32 s18, 131072")
    A(f"s_lshl_b32 s50, {S_HP}, 18", f"s_lshl_b32 s51, {S_W}, 8", "s_add_u32 s50, s50, s51")
    A("s_sub_u32 s52, 262144, s51")
    srd(20, 76, 77, None, "s_mov_b32 s22, s52")
    A(f"s_lshl_b32 s50, {S_HP}, 18"); srd(84, 76, 77, None, "s_mov_b32 s86, 262144")
    A(f"s_mul_i32 s50, {S_CL}, 2359296", f"s_add_u32 s50, s50, {hex(OPT['wsoff'])}"); srd(24, 58, 59, None, "s_mov_b32 s26, 2359296")
    if OPT['fused']:
        A(f"s_mul_i32 s50, {S_CL}, 4608", f"s_add_u32 s50, s50, {hex(OPT['wsoff'] + 0x2400000 + 0x40000)}"); srd(68, 58, 59, None, "s_mov_b32 s70, 4608")
        A("s_mov_b32 s72, s98", "s_and_b32 s73, s99, 0xffff", "s_mov_b32 s74, 256", "s_mov_b32 s75, 0x20000")
        A("s_mov_b32 s80, s96", "s_and_b32 s81, s97, 0xffff", "s_mov_b32 s82, 2359296", "s_mov_b32 s83, 0x20000")
        A(f"s_lshl_b32 s50, {S_W}, 7", f"s_lshl_b32 s51, {S_HP}, 2", "s_add_u32 s50, s50, s51",
          f"v_lshlrev_b32 v46, 9, {V_LANE}", "v_add_u32 v46, s50, v46", "v_mov_b32 v47, 0",
          f"buffer_store_dword v47, v46, {SRD_F}, 0 offen sc1" if not OPT.get('x_noclr') else "s_nop 0")
    A("L_setup_b_done:")
    return L

def lane_consts_q():
    L = []; A = lambda *x: L.extend(II(*x))
    l = V_LANE; t0, t1, t2, t3, t4, t5 = [f"v{x}" for x in VT[:6]]
    A(f"v_lshrrev_b32 {t0}, 4, {l}", f"v_bfe_u32 {t1}, {l}, 2, 2", f"v_and_b32 {t2}, 3, {l}", f"v_and_b32 {t3}, 15, {l}")
    for n in range(4):
        A(f"v_add_u32 {t4}, {4*n}, {t0}", f"v_xor_b32 {t4}, {t4}, {t3}", f"v_lshlrev_b32 {t4}, 4, {t4}",
          f"v_lshl_add_u32 v{V_KD[n]}, {t0}, 8, {t4}")
    for n in range(2):
        A(f"v_add_u32 {t4}, {4*n}, {t0}", f"v_lshlrev_b32 {t4}, 1, {t4}", f"v_xor_b32 {t4}, {t4}, {t3}", f"v_lshlrev_b32 {t4}, 4, {t4}",
          f"v_lshl_add_u32 v{V_VD[n]}, {t0}, 8, {t4}")
    A(f"v_lshrrev_b32 {t4}, 5, {l}")
    A(f"v_bfe_u32 {t5}, {l}, 4, 1")
    for j in range(4):
        d = f"v{V_WQD[j]}"
        A(f"v_add_u32 {d}, {2*j}, {t4}",
          f"v_and_b32 v{VT[6]}, 3, {d}", f"v_lshlrev_b32 v{VT[6]}, 2, v{VT[6]}", f"v_xor_b32 v{VT[6]}, v{VT[6]}, {t3}", f"v_lshlrev_b32 v{VT[6]}, 4, v{VT[6]}",
          f"v_lshlrev_b32 {d}, 13, {d}", f"v_add_u32 {d}, {d}, v{VT[6]}", f"v_lshl_add_u32 {d}, {t5}, 8, {d}")
        if j: A(f"v_subrev_u32 {d}, {1024*j}, {d}")
    A(f"v_lshlrev_b32 {t4}, 1, {t0}", f"v_mov_b32 {t5}, 0x78", f"v_lshrrev_b32 {t4}, {t4}, {t5}", f"v_and_b32 {t4}, 3, {t4}",
      f"v_xor_b32 {t4}, {t4}, {t2}", f"v_lshlrev_b32 {t4}, 4, {t4}",
      f"v_lshrrev_b32 {t5}, 2, {l}", f"v_lshl_add_u32 {t4}, {t5}, 10, {t4}")
    for j in range(2):
        A(f"v_add_u32 v{V_XD[j]}, {j*16384 - 1024*j}, {t4}")
    A(f"s_lshl_b32 s50, {S_W}, 1", "s_lshr_b32 s50, 0x78, s50", "s_and_b32 s50, s50, 3",
      f"v_xor_b32 {t4}, s50, {t2}", f"v_lshlrev_b32 {t4}, 4, {t4}", f"v_lshl_add_u32 {t4}, {t5}, 10, {t4}",
      f"s_lshl_b32 s50, {S_W}, 12", f"s_lshl_b32 s51, {S_W}, 15", "s_sub_u32 s50, s50, s51", f"s_add_u32 s50, s50, {128*1024}",
      f"v_add_u32 v{V_XD[2]}, s50, {t4}")
    A(f"v_lshl_add_u32 {t4}, {t0}, 3, {t1}", f"v_lshlrev_b32 {t4}, 9, {t4}", f"v_lshl_add_u32 {t4}, {t2}, 4, {t4}",
      f"s_lshl_b32 s50, {S_U}, 8", f"s_add_u32 s50, s50, {WB}", f"v_add_u32 {t4}, s50, {t4}")
    A(f"s_lshl_b32 s51, {S_QH}, 1", f"v_xor_b32 {t1}, s51, {t1}")
    for s in range(4):
        A(f"v_xor_b32 {t5}, {s}, {t1}", f"v_lshl_add_u32 v{V_WQR[s]}, {t5}, 6, {t4}")
    A(f"v_lshrrev_b32 {t4}, 2, {t3}", f"v_lshlrev_b32 {t4}, 1, {t4}", f"v_mov_b32 {t5}, 0x78", f"v_lshrrev_b32 {t4}, {t4}, {t5}", f"v_and_b32 {t4}, 3, {t4}",
      f"v_xor_b32 {t4}, {t4}, {t0}", f"v_lshlrev_b32 {t4}, 4, {t4}", f"v_lshl_add_u32 {t4}, {t3}, 6, {t4}",
      f"s_mul_i32 s50, {S_QH}, 5120", f"s_add_u32 s50, s50, {XB}", f"v_add_u32 v{V_XR}, s50, {t4}", f"v_add_u32 v{V_XR4}, {XB + 4096}, {t4}")
    return L

def lane_consts_rest():
    L = []; A = lambda *x: L.extend(II(*x))
    l = V_LANE; t0, t1, t2, t3, t4, t5, t6 = [f"v{x}" for x in VT[:7]]
    A(f"v_lshrrev_b32 {t0}, 4, {l}", f"v_bfe_u32 {t1}, {l}, 2, 2", f"v_and_b32 {t2}, 3, {l}", f"v_and_b32 {t3}, 15, {l}")
    A(f"s_lshl_b32 s50, {S_U}, 13", f"s_add_u32 s51, s50, {KB}", f"v_lshlrev_b32 {t4}, 8, {t3}", f"v_add_u32 {t4}, s51, {t4}")
    A(f"s_lshl_b32 s51, {S_QH}, 3", f"v_xor_b32 {t6}, s51, {t3}")
    for s in range(4):
        A(f"v_add_u32 {t5}, {4*s}, {t0}", f"v_xor_b32 {t5}, {t5}, {t6}", f"v_lshl_add_u32 v{V_KR[s]}, {t5}, 4, {t4}")
    A(f"v_lshrrev_b32 {t4}, 2, {l}", f"v_and_b32 {t5}, 7, {t4}", f"v_lshlrev_b32 {t5}, 1, {t5}",
      f"v_lshlrev_b32 {t4}, 8, {t4}", f"v_add_u32 {t4}, s50, {t4}",
      f"v_and_b32 {t6}, 1, {t2}", f"v_lshl_add_u32 {t4}, {t6}, 3, {t4}",
      f"v_lshrrev_b32 {t6}, 1, {t2}",
      f"s_lshl_b32 s51, {S_QH}, 3", f"v_xor_b32 {t5}, s51, {t5}")
    for dt in range(8):
        d = f"v{V_VR[dt]}"
        A(f"v_add_u32 {d}, {2*dt}, {t6}", f"v_xor_b32 {d}, {d}, {t5}", f"v_lshl_add_u32 {d}, {d}, 4, {t4}")
    A(f"v_lshlrev_b32 {t4}, 2, {t0}", f"v_xor_b32 {t4}, {t4}, {t3}", f"v_lshlrev_b32 {t4}, 4, {t4}", f"v_lshl_add_u32 {t4}, {t0}, 10, {t4}")
    for n in range(4):
        A(f"v_add_u32 v{V_WOD[n]}, {n*3072}, {t4}")
    A(f"v_lshrrev_b32 {t4}, 2, {l}", f"v_lshlrev_b32 {t4}, 8, {t4}", f"v_lshl_add_u32 {t4}, {t2}, 4, {t4}",
      f"s_lshl_b32 s50, {S_W}, 13", f"s_add_u32 s50, s50, {WOB}", f"v_add_u32 {t4}, s50, {t4}")
    for cp in range(4):
        A(f"v_xor_b32 {t5}, {cp}, {t1}", f"v_lshl_add_u32 v{V_WOR[cp]}, {t5}, 6, {t4}")
    A(f"s_mul_i32 s50, {S_QH}, 40960", f"s_lshl_b32 s51, {S_U}, 12", "s_add_u32 s50, s50, s51",
      f"v_lshlrev_b32 v{V_OR}, 4, {l}", f"v_add_u32 v{V_OW}, s50, v{V_OR}", f"v_add_u32 v{V_OR8}, 0x10000, v{V_OR}")
    A(f"s_lshl_b32 s50, {S_HP}, 10", f"v_add_u32 v{V_PS}, s50, v{V_OR}")
    return L

def dma(voff, srd, soff, imm, nt=False):
    o = f" offset:{imm}" if imm else ""
    return I(f"buffer_load_dwordx4 v{voff}, {srd}, {soff} offen{o}{' nt' if nt else ''} lds")

def kv_group(kind, m0expr, soffreg):
    if kind == 'K':
        return [dma(V_KD[n], SRD_K, soffreg, n * 1024, OPT['kvnt']) for n in range(4)]
    return [dma(V_VD[n & 1], SRD_V, soffreg, n * 1024, OPT['kvnt']) for n in range(4)]

def kv_tile_full_unused(kind, j):
    L = []
    base = (KB + kphys(j)) if kind == 'K' else (VB + vphys(j))
    for gI in range(2):
        L += II(f"s_lshl_b32 s50, {S_U}, 13", f"s_add_u32 m0, s50, {base + gI*4096}", f"s_mov_b32 s51, {j*8192 + gI*4096}")
        L += kv_group(kind, None, "s51")
    return L

def stage_setup_scalar():
    rot = OPT['rot']
    R = II("s_lshr_b32 s50, s2, 3", "s_and_b32 s51, s50, 3", "s_lshr_b32 s50, s50, 2")
    if rot in (True, 1):   R += II("s_lshl_b32 s51, s51, 2", "s_lshl_b32 s50, s50, 1", "s_add_u32 s52, s50, s51")
    elif rot == 2:         R += II("s_lshr_b32 s50, s50, 1", "s_add_u32 s52, s50, s51", "s_lshl_b32 s52, s52, 2")
    elif rot == 3:         R += II("s_add_u32 s52, s50, s51", "s_lshl_b32 s52, s52, 2")
    elif rot == 4:         R += II("s_lshr_b32 s50, s50, 2", "s_lshl_b32 s50, s50, 3", "s_lshl_b32 s51, s51, 2", "s_add_u32 s52, s50, s51")
    elif rot == 5:         R += II("s_mul_i32 s50, s50, 3", "s_lshl_b32 s51, s51, 2", "s_add_u32 s52, s50, s51")
    elif rot == 6:         R += II("s_lshl_b32 s52, s50, 1")
    elif rot == 7:         R += II("s_lshl_b32 s50, s50, 1", "s_and_b32 s51, s51, 1", "s_lshl_b32 s51, s51, 3", "s_add_u32 s52, s50, s51")
    else:                  R += II("s_mov_b32 s52, 0")
    return R + II("s_and_b32 s52, s52, 15",
              f"s_lshl_b32 s50, s52, 6", f"s_lshl_b32 s51, {S_W}, 15", f"s_add_u32 {S_SOFFX}, s50, s51",
              f"s_lshl_b32 s50, s52, 18", f"s_lshl_b32 s51, {S_W}, 16", f"s_add_u32 {S_SOFFW0}, s50, s51",
              f"s_lshl_b32 s50, {S_W}, 12", f"s_add_u32 {S_BW}, s50, {WB}",
              f"s_lshl_b32 s50, {S_W}, 11", f"s_add_u32 {S_BX}, s50, {XB}",
              f"s_lshl_b32 s50, {S_W}, 8", f"s_add_u32 {S_BX3}, s50, {XB + 8192}",
              f"s_lshl_b32 {S_TQ}, {S_QH}, 12",
              f"s_lshl_b32 s50, {S_U}, 13", f"s_add_u32 s50, s50, {S_TQ}", f"s_add_u32 {S_MK}, s50, {KB}", f"s_add_u32 {S_MV}, s50, {VB}")

def stage_dma_list(slot):
    seq = []
    seq.append(([I(f"s_add_u32 m0, {S_BW}, {slot*16384}")], dma(V_WQD[0], SRD_WQ, S_SOFFW0, 0, OPT['wnt'])))
    for j in range(1, 4): seq.append(([], dma(V_WQD[j], SRD_WQ, S_SOFFW0, j * 1024, OPT['wnt'])))
    seq.append(([I(f"s_add_u32 m0, {S_BX}, {slot*9216}")], dma(V_XD[0], SRD_X, S_SOFFX, 0, OPT['xnt'])))
    seq.append(([], dma(V_XD[1], SRD_X, S_SOFFX, 1024, OPT['xnt'])))
    q = dma(V_XD[2], SRD_X, S_SOFFX, 0, OPT['xnt'])
    seq.append(([I(f"s_add_u32 m0, {S_BX3}, {slot*9216}")], Masked(q, 0xffff)))
    return seq

def place_dma(S, seq, gaps):
    k = 0
    last = None
    for e in seq:
        if e[0]:
            for p in e[0]: S.put(gaps[k], p)
            k += 1
        S.put(gaps[k], e[1]); last = gaps[k]
        if len(e) > 2:
            for p in e[2]: S.put(gaps[k] + 1, p)
        k += 1
    return last

def stage_advance_w():
    return II(f"s_add_u32 {S_SOFFW0}, {S_SOFFW0}, 262144", f"s_and_b32 {S_SOFFW0}, {S_SOFFW0}, 0x3fffff")
def stage_advance_x():
    return II(f"s_add_u32 {S_SOFFX}, {S_SOFFX}, 64", f"s_and_b32 {S_SOFFX}, {S_SOFFX}, 0xfffffbff")
def stage_advance(): return stage_advance_w() + stage_advance_x()

def straight(seq):
    L = []
    for e in seq:
        L += e[0]
        if e[0]: L += II("s_nop 0")
        L.append(e[1])
        if len(e) > 2: L += e[2]
    return L

def stage_issue_straight(slot):
    return straight(stage_dma_list(slot)) + stage_advance()

def wq_read(dt, h2, slot):
    if OPT.get('x_noread'): return I('s_nop 0')
    s, hf = dt >> 1, dt & 1
    b = abuf(dt) + 2 * h2
    off = slot * 16384 + hf * 8 + h2 * 2048
    return I(f"ds_read_b64_tr_b16 {ar(b,2)}, v{V_WQR[s]}" + (f" offset:{off}" if off else ""))
def x_read(t, slot):
    if OPT.get('x_noread'): return I('s_nop 0')
    off = slot * 9216 + (0 if t == 4 else t * 1024)
    return I(f"ds_read_b128 {vr(bbuf(t))}, v{V_XR4 if t == 4 else V_XR}" + (f" offset:{off}" if off else ""))
def q_mfma(dt, t):
    if OPT.get('x_t4') and t == 4: return I("s_nop 3")
    if OPT.get('x_t45') and t == 4 and dt >= 4: return I("s_nop 3")
    return mfma(vr(qacc(dt, t)), ar(abuf(dt)), vr(bbuf(t)), vr(qacc(dt, t)))

def half_group(kind, j):
    if kind == 'K':
        pre = II(f"s_add_u32 m0, {S_MK}, {kphys(j)}", f"s_add_u32 s51, {S_TQ}, {j*8192}")
    else:
        pre = II(f"s_add_u32 m0, {S_MV}, {vphys(j)}", f"s_add_u32 s51, {S_TQ}, {j*8192}")
    g = kv_group(kind, None, "s51")
    return [(pre, g[0])] + [([], x) for x in g[1:]]

def put_dmas(S, seq, gaps):
    prev = -1
    for e, g in zip(seq, gaps):
        if e[0]:
            assert g - 1 > prev or prev < 0, (g, prev)
            for p in e[0]: S.put(g - 1, p)
        S.put(g, e[1])
        if len(e) > 2:
            for p in e[2]: S.put(g + 1, p)
        prev = g
    assert len(seq) <= len(gaps)

QTAIL = (4, 5, 6, 7)
def q_tail(): return [q_mfma(dt, t) for t in range(4) for dt in QTAIL]
SRD_T = "s[96:99]"; V_T = [10, 11, 12, 13]; S_TM, S_TS = "s35", "s36"
V_TB2 = [252, 253, 254, 255]
V_TB = [244, 245, 246, 247]
DUMMY = 151552
def burst_list():
    g = [dma(V_TB[n], SRD_T, S_TS, n * 1024, OPT['kvnt']) for n in range(4)]
    return [([I(f"s_mov_b32 m0, {S_TM}")], g[0])] + [([], x) for x in g[1:]]

def q_body(ks, with_dma, burst=False, extra_dma=None, wait=None):
    slot = ks & 3
    ms = q_tail() + [q_mfma(dt, t) for t in range(5) for dt in range(4)]
    S = Sched(ms)
    a = lambda dt, h: wq_read(dt, h, slot)
    xr = lambda t: x_read(t, slot)
    plan = {0: a(0,0), 1: a(0,1), 2: a(1,0), 3: a(1,1), 4: xr(0), 5: a(2,0), 7: a(2,1), 8: xr(1), 9: a(3,0), 11: a(3,1),
            12: xr(2), 13: xr(4), 16: xr(3), 17: a(4,0), 19: a(4,1), 20: a(5,0), 21: a(5,1), 23: a(6,0), 24: a(6,1), 25: a(7,0), 27: a(7,1)}
    for g, ins in plan.items(): S.put(g, ins)
    if with_dma:
        put_dmas(S, stage_dma_list((ks + 3) & 3), [6, 10, 14, 18, 22, 26, 29])
        w = stage_advance_w(); x = stage_advance_x()
        S.put(19, w[0]); S.put(20, w[1]); S.put(30, x[0]); S.put(31, x[1])
    if burst:
        put_dmas(S, burst_list(), [32, 33, 34, 35]) if False else None
        put_dmas(S, burst_list(), [15, 28, 31, 33])  if False else None
    if extra_dma:
        put_dmas(S, extra_dma, [6, 10, 14, 18, 22, 26, 30, 32][:len(extra_dma)])
    return S

def q_finish(S, wait, wg=33):
    S.put(wg, tr_mark(), f"s_waitcnt vmcnt({wait}) lgkmcnt(0)", tr_commit())
    S.put(wg + 1, "s_barrier")
    seq, pend = lgkm_waits(S.flat())
    assert not pend
    if OPT['verbose']: print(S.report("q_body"))
    return seq

def tr_mark():
    return [Raw("s_memtime s[100:101]")] if OPT.get('trace') else []
def tr_commit():
    return [Raw("s_mov_b32 s95, m0\n  s_mov_b32 m0, s94\n  s_nop 0\n  v_writelane_b32 v0, s100, m0\n  s_mov_b32 m0, s95\n  s_add_u32 s94, s94, 1")] if OPT.get('trace') else []
def tr_dump():
    if not OPT.get('trace'): return []
    return II("s_add_u32 s66, s58, 0x9000000", "s_addc_u32 s67, s59, 0", "s_lshl_b32 s50, s2, 2", f"s_add_u32 s50, s50, {S_W}", "s_lshl_b32 s50, s50, 8",
              f"v_lshlrev_b32 v253, 2, {V_LANE}", "v_add_u32 v253, s50, v253", "global_store_dword v253, v0, s[66:67]")

def zero_init():
    L = II("v_mov_b32 v244, 0", "v_mov_b32 v245, 0", "v_mov_b32 v246, 0", "v_mov_b32 v247, 0", "s_nop 1")
    for r in range(RB, RB + 160, 16): L += II(f"v_mfma_f32_32x32x16_bf16 v[{r}:{r+15}], v[244:247], v[244:247], 0")
    for r in range(0, 256, 16): L += II(f"v_mfma_f32_32x32x16_bf16 a[{r}:{r+15}], v[244:247], v[244:247], 0")
    return L

def phase_q():
    L = []; A = lambda *x: L.extend(II(*x))
    A("L_phase_q:")
    A(stage_setup_scalar(), stage_issue_straight(0))
    A(setup_b())
    A(stamp("q_issued"))
    A(zero_init())
    A(lane_consts_rest())
    A(f"s_mov_b32 {S_CNT}, 0")
    if OPT.get('trace'): A("s_mov_b32 s94, 1", "s_memtime s[100:101]", "s_waitcnt lgkmcnt(0)", "v_writelane_b32 v0, s100, 0")
    A(f"v_mov_b32 v{VT[0]}, 0x3f803f80")
    for r in range(4): A(f"v_accvgpr_write_b32 a{A_ONES + r}, v{VT[0]}")
    for t in range(5):
        for k in range(4): A(f"v_mov_b32 v{bbuf(t)+k}, 0")
    A("s_mov_b32 s96, s12", "s_mov_b32 s97, s13", "s_mov_b32 s98, s14", "s_mov_b32 s99, s15")
    for n in range(4): A(f"v_mov_b32 v{V_TB[n]}, v{V_KD[n]}")
    if OPT.get('stst'): A(stamp("consts"))
    A(stage_issue_straight(1))
    if OPT.get('stst'): A(stamp("s1_iss"))
    A("s_waitcnt vmcnt(7)")
    if OPT.get('stst'): A(stamp("s0_land"))
    A("s_barrier")
    if OPT['fused']:
        A(f"s_cmp_eq_u32 {S_SAFE}, 1", "s_cbranch_scc1 L_no_arrive")
        A(f"s_lshl_b32 s50, {S_CL}, 2", f"s_add_u32 s50, s50, {CNTOFF()}", f"s_lshl_b32 s51, {S_W}, 14", "s_add_u32 s50, s50, s51",
          f"v_lshlrev_b32 v46, 8, {V_LANE}", "v_add_u32 v46, s50, v46", "v_mov_b32 v47, 1",
          f"buffer_atomic_add v47, v46, {SRD_D}, 0 offen sc1")
        A("L_no_arrive:")
    A(stage_issue_straight(2))
    if OPT.get('stst'): A(stamp("s2_iss"))
    A(f"s_add_u32 {S_TM}, {S_MK}, {kphys(0)}", f"s_mov_b32 {S_TS}, {S_TQ}")
    A(stamp("q_start"))
    l2 = OPT['l2pf']
    if l2:
        A(f"s_add_u32 s37, {S_TQ}, {4*8192}", "s_mov_b32 s92, s12", "s_mov_b32 s93, s13", "s_mov_b32 s94, s14", "s_mov_b32 s95, s15",
          "s_mov_b64 vcc, -1")
    bodies = []
    QOOL = []
    for k in range(4):
        S = q_body(k, True)
        if k == 1:
            put_dmas(S, burst_list(), [32, 33, 34, 35])
        if k == 3 and l2:
            g = [dma(V_OR, "s[92:95]", "s37", n * 1024, False) for n in range(4)]
            put_dmas(S, [([I(f"s_mov_b32 m0, {DUMMY}")], g[0])] + [([], x) for x in g[1:]], [32, 33, 34, 35])
        if l2:
            n_steady, n_first = [(18, 14), (22, 18), (18, 18), (22, 22)][k]
        else:
            n_steady = n_first = 14 if k == 0 else 18
        if OPT.get('b0st') and k == 0:
            for nm, g in (("g5", 5), ("g6", 7), ("g15", 15), ("g20", 20), ("g30", 31)):
                S.put(g, Raw(f"s_cmp_eq_u32 {S_CNT}, 0\n  s_cbranch_scc0 L_b0_{nm}\n  " + "\n  ".join(x.txt for x in stamp(nm)) + f"\nL_b0_{nm}:"))
        late = (k == 1) or (k == 3 and l2)
        w = tr_mark() + II(f"s_waitcnt vmcnt({n_steady}) lgkmcnt(0)")
        if n_first != n_steady:
            w += II(f"s_cbranch_vccnz L_q_first{k}", f"L_q_back{k}:")
            QOOL += II(f"L_q_first{k}:", f"s_waitcnt vmcnt({n_first})", f"s_branch L_q_back{k}")
        w += tr_commit()
        if late:
            seq, pend = lgkm_waits(S.flat())
            seq += w + II("s_barrier")
        else:
            S.put(33, w); S.put(34, "s_barrier")
            seq, pend = lgkm_waits(S.flat())
            assert not pend
        if OPT['verbose']: print(S.report("q_body"))
        bodies.append(seq)
    hist = bodies[3][-24:]
    A(".p2align 6", "L_q_loop:")
    for bi, b in enumerate(bodies):
        b2, n = hazards(b, history=hist); L.extend(b2); hist = b2[-24:]
        if OPT.get('stst') and bi < 2: A(f"s_cmp_eq_u32 {S_CNT}, 0", f"s_cbranch_scc0 L_nost{bi}", stamp(f"body{bi}"), f"L_nost{bi}:")
    A(f"s_add_u32 {S_TM}, {S_TM}, 16384", f"s_add_u32 {S_TS}, {S_TS}, 8192", f"s_add_u32 {S_CNT}, {S_CNT}, 1")
    if l2:
        A("s_mov_b64 vcc, 0", f"s_cmp_eq_u32 {S_CNT}, 1", "s_cbranch_scc1 L_q_to1", "L_q_to1_done:")
    A(f"s_cmp_eq_u32 {S_CNT}, 2", "s_cbranch_scc1 L_q_tov", "L_q_tov_done:",
      f"s_cmp_lt_u32 {S_CNT}, 3", "s_cbranch_scc1 L_q_loop")
    OOL = II("L_q_tov:", "s_mov_b32 s96, s16", "s_mov_b32 s97, s17", f"s_add_u32 {S_TM}, {S_MV}, {vphys(0)}", f"s_mov_b32 {S_TS}, {S_TQ}")
    if l2: OOL += II("s_mov_b32 s92, s12", "s_mov_b32 s93, s13", f"s_add_u32 s37, {S_TQ}, {5*8192}")
    for n in range(4): OOL += II(f"v_mov_b32 v{V_TB[n]}, v{V_VD[n & 1]}")
    OOL += II("s_branch L_q_tov_done")
    if l2: OOL += II("L_q_to1:", "s_mov_b32 s92, s16", "s_mov_b32 s93, s17", f"s_add_u32 s37, {S_TQ}, {3*8192}", "s_branch L_q_to1_done")
    OOL += QOOL
    b, n = hazards(q_finish(q_body(12, True), 18 if l2 else 14), history=hist); L.extend(b)
    b, n = hazards(q_finish(q_body(13, False, extra_dma=half_group('V', 1)), 15 if l2 else 11), history=b[-24:]); L.extend(b)
    b, n = hazards(q_finish(q_body(14, False, extra_dma=half_group('K', 2) + half_group('V', 2)), 12), history=b[-24:]); L.extend(b)
    b, n = hazards(q_finish(q_body(15, False), 12), history=b[-24:]); L.extend(b)
    A("s_branch L_q_after_ool")
    L.extend(OOL)
    A("L_q_after_ool:")
    A(stamp("q_loop_done"))
    return L

def q_tiles(s): return range(5) if s < 2 else range(4)
def q_scale(ss):
    return [I(f"v_pk_mul_f32 {vr(grp(t,s)+2*k,2)}, {vr(grp(t,s)+2*k,2)}, {vr(V_C0,2)}") for s in ss for t in q_tiles(s) for k in range(4)]
def q_cvt(ss):
    return [I(f"v_cvt_pk_bf16_f32 v{grp(t,s)+k}, v{grp(t,s)+2*k}, v{grp(t,s)+2*k+1}") for s in ss for t in q_tiles(s) for k in range(4)]
QX = 155648

def transition():
    L = []; A = lambda *x: L.extend(II(*x))
    A(f"s_add_u32 {S_SOFFK}, {S_TQ}, {5*8192}", f"s_add_u32 {S_SOFFV}, {S_TQ}, {4*8192}")
    A(f"v_mov_b32 v{V_C0}, {hex(f2u(SCALE))}", f"v_mov_b32 v{V_C1}, {hex(f2u(SCALE))}")
    A(f"s_lshl_b32 s50, {S_W}, 11", f"s_add_u32 s50, s50, {QX}", f"v_lshlrev_b32 v7, 4, {V_LANE}", "v_add_u32 v8, s50, v7",
      "s_xor_b32 s50, s50, 2048", "v_add_u32 v9, s50, v7")
    k3 = half_group('K', 3)
    seq = [k_read(kt, s, 0) for kt in range(2) for s in range(4)]
    sc = q_scale((0, 1))
    seq += II("s_nop 3") + sc
    S = Sched(q_tail())
    cv = q_cvt((0, 1))
    sh = lambda c: any(f"v{grp(4,s)+k}," in c.txt.split()[1] + "," for s in (0, 1) for k in range(4))
    cv = [c for c in cv if sh(c)] + [c for c in cv if not sh(c)]
    S.spread(cv, [min(i * 2 // 5, 15) for i in range(40)])
    S.put(5, f"ds_write_b128 v8, {vr(grp(4,0))}"); S.put(7, f"ds_write_b128 v8, {vr(grp(4,1))} offset:1024")
    seq += S.flat()
    seq += II("s_waitcnt lgkmcnt(0)", "s_barrier", f"ds_read_b128 {vr(grp(4,2))}, v9", f"ds_read_b128 {vr(grp(4,3))}, v9 offset:1024")
    sc = q_scale((2, 3))
    seq += II("s_nop 3") + k3[0][0] + sc[:8] + [k3[0][1]] + sc[8:16] + [k3[1][1]] + sc[16:24] + [k3[2][1]] + sc[24:] + [k3[3][1]]
    qk = lambda kt, ss, c: [qk_mfma(kt, s, t, c) for s in ss for t in range(5)]
    S = Sched(qk(0, (0, 1), lambda t: "0") + qk(0, (2, 3), lambda t: "0"))
    S.spread(q_cvt((2, 3)), [min(i * 5 // 16, 9) for i in range(32)])
    S.spread([f"v_mov_b32 v{Preg(1,t)+k}, 0" for t in range(5) for k in range(4)], [10 + i // 2 for i in range(20)])
    seq += S.flat()
    seq += straight(half_group('V', 3))
    seq, _ = lgkm_waits(seq, final_zero=True)
    seq, n = hazards(seq); L.extend(seq)
    A(stamp("qk0_done"))
    A(f"s_cmp_eq_u32 {S_SAFE}, 1", "s_cbranch_scc1 L_safe_max")
    T = [2, 3, 4, 5, 6]
    U = [7, 8, 9, 10, 11]
    E = II("s_nop 5")
    for t in range(5): E += II(f"v_max3_f32 v{T[t]}, v{Sreg(0,t)}, v{Sreg(0,t)+1}, v{Sreg(0,t)+2}")
    for t in range(5): E += II(f"v_max_f32 v{T[t]}, v{T[t]}, v{Sreg(0,t)+3}")
    E += row_max_finish(T, U)
    S = Sched(qk(1, range(4), lambda t: vr(cinit(t))))
    sub = [f"v_add_f32 v{Sreg(0,t)+k}, v{Sreg(0,t)+k}, v{cinit(t)}" for t in range(5) for k in range(4)]
    ex = [f"v_exp_f32 v{Sreg(0,t)+k}, v{Sreg(0,t)+k}" for t in range(5) for k in range(4)]
    S.spread(sub, [i // 2 for i in range(20)])
    S.spread(ex, [min(2 + i, 19) for i in range(20)])
    E += S.flat()
    E += II("s_barrier")
    E += II("s_nop 3") + exps(1)
    E, n = hazards(E, history=L[-24:]); L.extend(E)
    A("L_max_done:")
    A(straight(half_group('K', 4)))
    return L

def row_max_finish(T, U):
    E = []
    for sw in ("v_permlane32_swap_b32", "v_permlane16_swap_b32"):
        for t in range(5): E += II(f"v_mov_b32 v{U[t]}, v{T[t]}")
        for t in range(5): E += II(f"{sw} v{T[t]}, v{U[t]}")
        for t in range(5): E += II(f"v_max_f32 v{T[t]}, v{T[t]}, v{U[t]}")
    for t in range(5):
        for k in range(4): E += II(f"v_sub_f32 v{cinit(t)+k}, 0, v{T[t]}")
    return E

def safe_paths():
    L = []; A = lambda *x: L.extend(II(*x))
    T = [2, 3, 4, 5, 6]; U = [7, 8, 9, 10, 11]
    ab = [(Sreg(0, t), Sreg(1, t)) for t in range(5)]
    A("L_safe_max:")
    for t in range(5): A(f"v_mov_b32 v{T[t]}, 0xff800000")
    A(f"s_mov_b32 {S_CNT}, 0")
    A("L_safe_loop:")
    A("s_waitcnt vmcnt(0) lgkmcnt(0)", "s_barrier")
    A(f"s_and_b32 s50, {S_CNT}, 15", "s_lshl_b32 s50, s50, 13", f"s_add_u32 s51, s50, {S_TQ}", f"s_add_u32 m0, {S_MK}, {kphys(0)}", "s_nop 0")
    A(kv_group('K', None, "s51"))
    A("s_waitcnt vmcnt(0)", "s_barrier")
    A([k_read(kt, s, 0) for kt in range(2) for s in range(4)], "s_waitcnt lgkmcnt(0)")
    A(f"s_cmp_eq_u32 {S_CNT}, 16", "s_cbranch_scc1 L_safe_last")
    A([qk_mfma(kt, s, t, lambda t: "0") for kt in range(2) for s in range(4) for t in range(5)], "s_nop 7", "s_nop 7")
    for t, (a, b) in enumerate(ab):
        A(f"v_max3_f32 v{T[t]}, v{T[t]}, v{a}, v{a+1}", f"v_max3_f32 v{T[t]}, v{T[t]}, v{a+2}, v{a+3}",
          f"v_max3_f32 v{T[t]}, v{T[t]}, v{b}, v{b+1}", f"v_max3_f32 v{T[t]}, v{T[t]}, v{b+2}, v{b+3}")
    A(f"s_add_u32 {S_CNT}, {S_CNT}, 1", f"s_cmp_lt_u32 {S_CNT}, 16", "s_cbranch_scc1 L_safe_loop")
    E, n = hazards(II("s_nop 3") + row_max_finish(T, U)); L.extend(E)
    A("s_branch L_safe_loop")
    A("L_safe_last:", "s_nop 3")
    A([qk_mfma(kt, s, t, lambda t: vr(cinit(t))) for kt in range(2) for s in range(4) for t in range(5)], "s_nop 7", "s_nop 7")
    A("s_barrier")
    for t, (a, b) in enumerate(ab):
        for base in (a, b):
            for k in range(4): A(f"v_exp_f32 v{base+k}, v{base+k}")
    A("s_nop 1", "s_branch L_max_done")
    if OPT['fused']:
        A("L_cnt_spin:", f"s_mov_b32 s53, {SPIN}", "L_cnt_spin_loop:", "s_sleep 2",
          f"buffer_load_dword v15, v14, {SRD_D}, 0 offen sc1", "s_waitcnt vmcnt(0)", "v_readfirstlane_b32 s52, v15", "s_nop 3",
          "s_cmp_ge_u32 s52, 16", "s_cbranch_scc1 L_cnt_ok", "s_sub_u32 s53, s53, 1", "s_cmp_lg_u32 s53, 0", "s_cbranch_scc1 L_cnt_spin_loop", "s_branch L_cnt_ok")
    A("L_restart:", f"s_mov_b32 {S_SAFE}, 1", "s_waitcnt vmcnt(0) lgkmcnt(0)", "s_barrier")
    A(lane_consts_q())
    A("s_branch L_phase_q")
    return L

def k_read(kt, s, slotk):
    off = kphys(slotk) + kt * 4096
    return I(f"ds_read_b128 {ar(kbuf(kt, s))}, v{V_KR[s]}" + (f" offset:{off}" if off else ""))
def v_read(dt, h, slotv):
    off = vphys(slotv) + h * 4096
    return I(f"ds_read_b64_tr_b16 {ar(abuf(dt) + 2*h, 2)}, v{V_VR[dt]}" + (f" offset:{off}" if off else ""))
def qk_mfma(kt, s, t, first_c):
    c = first_c(t) if s == 0 else vr(Sreg(kt, t))
    return mfma(vr(Sreg(kt, t)), ar(kbuf(kt, s)), vr(qfrag(t, s)), c)
def pv_mfma(dt, t, par):
    return mfma(ar(oacc(dt, t)), ar(abuf(dt)), vr(Preg(par, t)), ar(oacc(dt, t)))
def rs_mfma(t, par):
    return mfma(ar(lacc(t)), ar(A_ONES), vr(Preg(par, t)), ar(lacc(t)))
def cvts(par):
    out = []
    for kt in range(2):
        for t in range(5):
            s = Sreg(kt, t); p = Preg(par, t) + 2 * kt
            out.append(I(f"v_cvt_pk_bf16_f32 v{p}, v{s}, v{s+1}"))
            out.append(I(f"v_cvt_pk_bf16_f32 v{p+1}, v{s+2}, v{s+3}"))
    return out
def exps(kt):
    return [I(f"v_exp_f32 v{Sreg(kt,t)+i}, v{Sreg(kt,t)+i}") for t in range(5) for i in range(4)]

def att_dma(j, dyn=False):
    seq = []
    if j == 0 or j > 12: return seq
    if True:
        pre = II(f"s_add_u32 m0, {S_MK}, {kphys(j + 4)}")
        g = kv_group('K', None, S_SOFFK)
        seq += [(pre, g[0])] + [([], x) for x in g[1:]]
        seq[-1] = (seq[-1][0], seq[-1][1], II(f"s_add_u32 {S_SOFFK}, {S_SOFFK}, 8192"))
    if j + 3 <= 15:
        pre = II(f"s_add_u32 m0, {S_MV}, {vphys(j + 3)}")
        g = kv_group('V', None, S_SOFFV)
        s2 = [(pre, g[0])] + [([], x) for x in g[1:]]
        s2[-1] = (s2[-1][0], s2[-1][1], II(f"s_add_u32 {S_SOFFV}, {S_SOFFV}, 8192"))
        seq += s2
    return seq

def wo_dma(ks, slot_base_imm):
    seq = []
    for gI in range(2):
        pre = II(f"s_lshl_b32 s50, {S_W}, 13", f"s_add_u32 m0, s50, {slot_base_imm + gI*4096}", f"s_mov_b32 s51, {ks*32768 + gI*16384}")
        for n in range(4):
            seq.append((pre if n == 0 else [], dma(V_WOD[n], SRD_WO, "s51", n * 1024, OPT["wont"])))
    return seq

def att_body(j, vmwait, extra_dma=None):
    par_old, par_new = (j - 1) & 1, j & 1
    ms = [pv_mfma(dt, t, par_old) for dt in (5, 6, 7) for t in range(5)] + [rs_mfma(t, par_old) for t in range(5)]
    ms += [qk_mfma(kt, s, t, lambda t: vr(cinit(t))) for kt in range(2) for s in range(4) for t in range(5)]
    ms += [pv_mfma(dt, t, par_new) for dt in range(5) for t in range(5)]
    S = Sched(ms)
    cv = cvts(par_new)
    S.spread(cv, [1, 1, 3, 3, 6, 6, 8, 8, 11, 11, 13, 13, 16, 16, 18, 18, 21, 21, 23, 23])
    S.spread([k_read(kt, s, j + 1) for kt in range(2) for s in range(4)], [0, 2, 5, 7, 10, 12, 15, 17])
    vr_ = [v_read(dt, h, j) for dt in range(8) for h in range(2)]
    S.spread(vr_, [20, 22, 25, 26, 27, 28, 30, 31, 32, 33, 35, 36, 37, 38, 40, 61])
    d = att_dma(j) + (extra_dma or [])
    put_dmas(S, d, [4, 9, 14, 19, 24, 29, 34, 39])
    S.spread(exps(0), list(range(41, 61)))
    S.spread(exps(1), list(range(62, 82)))
    seq = S.flat()
    seq, pend = lgkm_waits(seq)
    seq += tr_mark() + II(f"s_waitcnt vmcnt({vmwait}) lgkmcnt(0)") + tr_commit() + II("s_barrier")
    if OPT['verbose']: print(S.report(f"att_body {j}"))
    return seq

WO1 = [192, 200, 208, 216, 224, 228, 232, 236]
def wofrag(ks, m, n=4, off=0):
    if ks == 0: return ar(216 + 4 * m + off, n)
    if ks == 1: return vr(WO1[m] + off, n)
    return ar((ks - 2) * 32 + 4 * m + off, n)
def wo_read(ks, m, h):
    cp, hf = m >> 1, m & 1
    off = (32768 if (ks & 1) == 0 else 0) + hf * 8 + h * 4096
    return I(f"ds_read_b64_tr_b16 {wofrag(ks, m, 2, 2*h)}, v{V_WOR[cp]}" + (f" offset:{off}" if off else ""))

def wo_prefetch(shift=0):
    n = OPT['pfw']
    L = II(f"s_add_u32 s50, {S_B}, {shift}", "s_and_b32 s50, s50, 7", "s_lshl_b32 s50, s50, 15", f"s_lshl_b32 s51, {S_W}, 13", "s_add_u32 s50, s50, s51")
    nt = " nt" if OPT['pfnt'] else ""
    if n == 8:
        L += II(f"v_lshlrev_b32 v46, 4, {V_LANE}")
        for i in range(8):
            L += II(f"s_add_u32 s51, s50, {i*1024}", f"buffer_load_dwordx4 v[252:255], v46, s[84:87], s51 offen{nt}")
    else:
        sh = {1: 7, 2: 6, 4: 5}[n]
        L += II(f"v_lshlrev_b32 v46, {sh}, {V_LANE}")
        for i in range(n):
            L += II(f"s_add_u32 s51, s50, {i * (64 << sh)}", f"buffer_load_dword v47, v46, s[84:87], s51 offen{nt}")
    return L

ATT_OOL = []
def attention():
    L = []; A = lambda *x: L.extend(II(*x))
    L += transition()
    A(stamp("att_start"))
    A(f"s_mov_b32 {S_CNT}, 0")
    b0, n = hazards(att_body(0, 16), history=L[-24:]); L.extend(b0)
    bodies = [att_body(j, 16) for j in range(1, 5)]
    hist = bodies[3][-24:]
    A(".p2align 6", "L_att_loop:")
    OOLA = []
    for i, b in enumerate(bodies):
        if i == 3:
            A(f"s_cmp_eq_u32 {S_CNT}, 2", "s_cbranch_scc1 L_att_nok", "L_att_nok_done:")
            OOLA += II("L_att_nok:") + [I(f"v_add_u32 v{V_KD[n]}, 0x40000000, v{V_KD[n]}") for n in range(4)] + II("s_branch L_att_nok_done")
        b2, n = hazards(b, history=hist); L.extend(b2); hist = b2[-24:]
    if 0 <= OPT['pf'] < 3:
        A(f"s_cmp_eq_u32 {S_CNT}, {OPT['pf']}", "s_cbranch_scc0 L_att_nopf", wo_prefetch(), (wo_prefetch(4) if OPT.get('pfdup') else []), "L_att_nopf:")
    A(f"s_add_u32 {S_CNT}, {S_CNT}, 1", f"s_cmp_lt_u32 {S_CNT}, 3", "s_cbranch_scc1 L_att_loop")
    ATT_OOL.clear(); ATT_OOL.extend(OOLA)
    b, n = hazards(att_body(13, 16, extra_dma=wo_dma(0, WOA)), history=hist); L.extend(b); hist = b[-24:]
    if OPT.get('pf2nd'): A(wo_prefetch(4))
    b, n = hazards(att_body(14, 16, extra_dma=wo_dma(1, WOB)), history=hist); L.extend(b); hist = b[-24:]
    A(stamp("att_loop_done"))
    ms = [pv_mfma(dt, t, 0) for dt in (5, 6, 7) for t in range(5)] + [rs_mfma(t, 0) for t in range(5)]
    ms += [pv_mfma(dt, t, 1) for dt in range(8) for t in range(5)] + [rs_mfma(t, 1) for t in range(5)]
    S = Sched(ms)
    S.spread(cvts(1), list(range(0, 20)))
    S.spread([v_read(dt, h, 15) for dt in range(5) for h in range(2)], list(range(0, 10)))
    S.spread([v_read(dt, h, 15) for dt in (5, 6, 7) for h in range(2)], list(range(15, 21)))
    S.put(20, "s_waitcnt vmcnt(8)")
    S.spread([wo_read(0, m, h) for m in range(8) for h in range(2)], [21 + i // 2 for i in range(16)])
    S.put(28, "s_waitcnt vmcnt(0)")
    S.spread([wo_read(1, m, h) for m in range(8) for h in range(2)], [29 + i // 2 for i in range(16)])
    S.put(38, "s_waitcnt lgkmcnt(0)")
    if OPT['fused']:
        S.put(36, f"s_lshl_b32 s50, {S_CL}, 2", f"s_add_u32 s50, s50, {CNTOFF()}")
        S.spread([f"v_lshlrev_b32 v14, 8, {V_LANE}", "v_add_u32 v14, s50, v14"], [37, 37])
        S.put(38, f"buffer_load_dword v15, v14, {SRD_D}, 0 offen sc1")
    put_dmas(S, wo_dma(2, WOA), [41, 44, 47, 50, 54, 57, 60, 63])
    seq, pend = lgkm_waits(S.flat(), final_zero=True)
    seq, n = hazards(seq, history=hist); L.extend(seq)
    A("s_barrier")
    A("s_nop 3")
    A(stamp("att_done"))
    return L

def wo_dma_t(ks):
    d = wo_dma(ks, WOA if (ks & 1) == 0 else WOB)
    for e in d: e[1].tag = f"wo{ks}"
    return d
def wo_reads(ks): return [wo_read(ks, m, h) for m in range(8) for h in range(2)]

LFLAG = 90112

def o_epilogue():
    E = []
    tl = VT[0]; rc = VT[2]
    d3, d4, d5 = wo_dma_t(3), wo_dma_t(4), wo_dma_t(5)
    E += II(f"s_lshl_b32 s51, {S_QH}, 11", f"v_subrev_u32 v{V_OWB}, s51, v{V_OW}", f"v_add_u32 v{V_OW}, s51, v{V_OW}",
            f"s_lshl_b32 s50, {S_U}, 12", f"s_add_u32 s50, s50, 32768", "s_add_u32 s50, s50, s51", f"v_add_u32 v{V_OW4}, s50, v{V_OR}")
    def emit_dma(e):
        return e[0] + II("s_nop 0") * (1 if e[0] else 0) + [e[1]]
    nfr = 0
    for t in range(5):
        E += II(f"v_accvgpr_read_b32 v{tl}, a{lacc(t)}", f"v_rcp_f32 v{rc}, v{tl}", "s_nop 0", f"v_mov_b32 v{rc+1}, v{rc}")
        if t == 0: E += II(f"v_mov_b32 v{VT[1]}, v{tl}")
        else: E += II(f"v_max_f32 v{VT[1]}, v{VT[1]}, v{tl}")
        if t == 4:
            E += II(f"v_cmp_nge_f32 vcc, {hex(OPT['lthr'] or LTHR)}, v{VT[1]}", f"s_lshl_b32 s50, {S_W}, 2", f"s_add_u32 s50, s50, {LFLAG}", f"v_mov_b32 v52, s50",
                    "s_cmp_lg_u64 vcc, 0", "s_cselect_b32 s51, 1, 0", "v_mov_b32 v53, s51", "ds_write_b32 v52, v53")
        for ks in range(4 if t < 4 else 2):
            mid = []
            if nfr < 8: mid += emit_dma(d3[nfr])
            if 8 <= nfr < 16: mid += emit_dma(d4[nfr - 8])
            if nfr >= 16:
                for i in range(4): mid += emit_dma(d5[4 * (nfr - 16) + i])
            if OPT.get('x_oenodma'): mid = [x for x in mid if x.kind == 'dma'][:0] + [x for x in mid if x.kind != 'dma']
            rd = []
            cut = {0: (0, 6), 1: (6, 11), 2: (11, 16)}
            if 4 <= nfr < 7:
                if nfr == 4:
                    rd += [VmNeed("wo2")]
                    if OPT['fused']:
                        rd += II("v_readfirstlane_b32 s52, v15", "s_nop 3", "s_cmp_lt_u32 s52, 16", "s_cbranch_scc1 L_cnt_spin", "L_cnt_ok:")
                a_, b_ = cut[nfr - 4]; rd += wo_reads(2)[a_:b_]
            if 12 <= nfr < 15:
                if nfr == 12: rd += [VmNeed("wo3")]
                a_, b_ = cut[nfr - 12]; rd += wo_reads(3)[a_:b_]
            if OPT.get('oe_nord'): rd = [x for x in rd if x.kind != 'dsr']
            if OPT.get('oe_nowait'): rd = [x for x in rd if not isinstance(x, VmNeed)]
            if OPT.get('oe_nodma'): mid = []; rd = [x for x in rd if not (isinstance(x, VmNeed) and x.tag == 'wo3')]
            if nfr in (8, 16): E += II("s_waitcnt lgkmcnt(0)")
            E += rd
            for h in range(2):
                for k in range(4):
                    E += II(f"v_accvgpr_read_b32 v{52 + 4*h + k}, a{oacc(2*ks + h, t) + k}")
            E += mid
            for k in range(4): E += II(f"v_pk_mul_f32 {vr(52+2*k,2)}, {vr(52+2*k,2)}, {vr(rc,2)}")
            for k in range(4): E += II(f"v_cvt_pk_bf16_f32 v{60+k}, v{52+2*k}, v{53+2*k}")
            E += II(f"ds_write_b128 v{V_OW if ks < 2 else V_OWB}, {vr(60)} offset:{(t*8+ks)*1024}" if t < 4 else f"ds_write_b128 v{V_OW4}, {vr(60)} offset:{ks*1024}")
            nfr += 1
        if OPT['stamps'] and OPT.get('oest'): E += [Raw("\n  ".join(x.txt for x in stamp(f"oe{t}")))] + II("s_waitcnt lgkmcnt(0)")
    E, q = vm_waits(E, ["cnt"] + ["wo2"] * 8)
    E, pend = lgkm_waits(E, final_zero=True)
    E, n = hazards(E)
    return E + II("s_barrier"), q

def o_read(dst, t, ks):
    if t < 8: return I(f"ds_read_b128 {vr(dst)}, v{V_OR} offset:{(t*8+ks)*1024}")
    return I(f"ds_read_b128 {vr(dst)}, v{V_OR8} offset:{ks*1024}")
V_PSC = [196, 197, 198, 199]
V_OWNA = 204; S_OWN = "s49"
OWNB = 73728
OWN_OOL = []
def pstore(src, t, cp):
    v = V_PSC[cp] if OPT['own'] else V_PS
    return (II(f"s_add_u32 s51, {S_SOFFP}, {(cp*9 + t)*16384}"),
            I(f"buffer_store_dwordx4 {vr(src)}, v{v}, {SRD_P}, s51 offen {OPT['pst']}"))
def own_hook(src, t, cp):
    if not OPT['own']: return []
    OWN_OOL.extend(II(f"L_own_{t}_{cp}:", f"ds_write_b128 v{V_OWNA}, {vr(src)} offset:{t*1024}", f"s_branch L_ownb_{t}_{cp}"))
    return II(f"s_cmp_eq_u32 {S_OWN}, {cp}", f"s_cbranch_scc1 L_own_{t}_{cp}", f"L_ownb_{t}_{cp}:")

NP1 = 2
def acc1(t, m): return 64 + (t * 8 + m) * 4
def acc2(t, m): return 128 + ((t & 1) * 8 + m) * 4
def bfr1(par, t): return 2 + (par * 4 + t) * 4
STG = [48, 52, 56, 60]

def tile_epilogue(accf, t, k0):
    out = []
    for cp in range(4):
        a0, a1 = accf(t, 2*cp), accf(t, 2*cp + 1)
        d = STG[(k0 + cp) & 3]
        cv = II(f"v_cvt_pk_bf16_f32 v{d}, v{a0}, v{a0+1}", f"v_cvt_pk_bf16_f32 v{d+1}, v{a0+2}, v{a0+3}",
                f"v_cvt_pk_bf16_f32 v{d+2}, v{a1}, v{a1+1}", f"v_cvt_pk_bf16_f32 v{d+3}, v{a1+2}, v{a1+3}")
        pre, st = pstore(d, t, cp)
        if OPT.get('x_nost') and not (t == 8 and cp == 3): st = I("s_nop 0")
        st.tag = f"st{t}"
        out.append((cv, (pre, st), own_hook(d, t, cp)))
    return out

def out_proj(queue):
    L = []; A = lambda *x: L.extend(II(*x))
    A(f"s_mul_i32 {S_SOFFP}, {S_W}, {4*9*16384}")
    OWN_OOL.clear()
    if OPT['own']:
        A(f"s_lshr_b32 s50, {S_HP}, 2", f"s_and_b32 s51, {S_HP}, 3", f"s_cmp_eq_u32 s50, {S_W}", f"s_cselect_b32 {S_OWN}, s51, 7")
        for cp in range(4):
            A(f"s_cmp_eq_u32 {S_OWN}, {cp}", "s_cselect_b32 s50, 0x40000000, 0", f"v_or_b32 v{V_PSC[cp]}, s50, v{V_PS}")
        A(f"v_add_u32 v{V_OWNA}, {OWNB}, v{V_OR}")
    NP = OPT['np1']
    G = 8 * NP
    ms = [mfma(vr(acc1(t, m)), wofrag(ks, m), vr(bfr1(ks & 1, t)), ("0" if ks == 0 else vr(acc1(t, m)))) for ks in range(8) for m in range(8) for t in range(NP)]
    bt = lambda ks: 2 + 4 * ks
    P1 = len(ms)
    for t in range(NP, 9):
        ms += [mfma(vr(acc2(t, m)), wofrag(ks, m), vr(bt(ks)), ("0" if ks == 0 else vr(acc2(t, m)))) for ks in range(8) for m in range(8)]
    S = Sched(ms)
    def reads(ks, g0): S.spread(wo_reads(ks), [g0 + i // 2 for i in range(16)])
    def dmas(ks, g0, step=4): put_dmas(S, wo_dma_t(ks), [g0 + step * i for i in range(8)])
    def put_free(ins, g0):
        g = g0
        while S.cost(g) + COST[ins.kind] > 8: g += 1
        S.put(g, ins); return g
    def epi(t, accf, g0, stride):
        for cp, (cv, (spre, st), hook) in enumerate(tile_epilogue(accf, t, 0)):
            g = g0 + cp * stride
            S.spread(cv, [g, g, g + 1, g + 1])
            for p in spre: S.put(g + 1, p)
            for p in hook: S.put(g + 2, p)
            S.put(g + 2, st)
    if NP == 2:
        pre = [o_read(bfr1(0, t), t, 0) for t in range(NP)]
        S.put(0, VmNeed("wo4")); reads(4, 0)
        S.put(9, "s_waitcnt lgkmcnt(0)"); dmas(6, 11, 3)
        S.put(33, VmNeed("wo5")); reads(5, 33)
        S.put(42, "s_waitcnt lgkmcnt(0)"); dmas(7, 44, 3)
        S.put(84, VmNeed("wo6")); reads(6, 84)
        S.put(100, VmNeed("wo7")); reads(7, 100)
        for ks in range(7):
            g = ks * G + (1 if ks else 8)
            for t in range(NP):
                g = put_free(o_read(bfr1((ks + 1) & 1, t), t, ks + 1), g) + 1
            assert g <= (ks + 1) * G - 3, (ks, g)
        g = 6 * G + 4
        for ks in (2, 3, 6, 7): g = put_free(o_read(bt(ks), NP, ks), g) + 1
        g = 7 * G + 1
        for ks in (0, 1): g = put_free(o_read(bt(ks), NP, ks), g) + 1
        base = P1
        for ks in (4, 5): put_free(o_read(bt(ks), NP, ks), base + 1)
        epi(0, acc1, base + 4, 7); epi(1, acc1, base + 32, 7)
    else:
        assert NP == 0
        pre = [o_read(bt(ks), 0, ks) for ks in range(8)]
        S.put(0, VmNeed("wo4")); reads(4, 0)
        S.put(9, "s_waitcnt lgkmcnt(0)"); dmas(6, 11, 2)
        S.put(10, VmNeed("wo5"));
        S.spread(wo_reads(5), [12, 12, 14, 14, 16, 16, 18, 18, 20, 20, 22, 22, 24, 24, 26, 26])
        S.put(28, "s_waitcnt lgkmcnt(0)"); dmas(7, 30, 2)
        S.put(46, VmNeed("wo6")); S.spread(wo_reads(6), [46, 46, 46, 46] + [47 + i // 4 for i in range(12)])
        S.put(54, VmNeed("wo7")); S.spread(wo_reads(7), [54, 54, 54, 54] + [55 + i // 12 for i in range(12)])
    for t in range(NP, 9):
        b = P1 + (t - NP) * 64
        if t > NP: epi(t - 1, acc2, b + 6, 12)
        if t < 8:
            for ks in range(8):
                g = b + 8 * ks + 8
                if g >= b + 64: g = b + 64 + 1
                put_free(o_read(bt(ks), t + 1, ks), g)
    if OPT['fused']:
        g0 = P1 + (3 - NP) * 64 + 49
        S.put(g0, f"s_lshl_b32 s50, {S_W}, 7", f"s_lshl_b32 s52, {S_HP}, 2", "s_add_u32 s50, s50, s52")
        S.spread([f"v_lshlrev_b32 v36, 13, {V_LANE}", "v_add_u32 v36, s50, v36", "v_mov_b32 v37, 1"], [g0 + 1, g0 + 1, g0 + 2])
        S.put(g0 + 3, f"s_lshr_b32 s50, {S_HP}, 2", "s_lshl_b32 s50, s50, 7")
        S.spread([f"v_lshrrev_b32 v46, 4, {V_LANE}", "v_lshlrev_b32 v46, 9, v46", f"v_and_b32 v47, 15, {V_LANE}",
                  "v_lshl_add_u32 v46, v47, 2, v46", "v_add_u32 v46, s50, v46"], [g0 + 4, g0 + 4, g0 + 5, g0 + 9, g0 + 9])
        b = P1 + (8 - NP) * 64
        fa = I(f"buffer_store_dword v37, v36, {SRD_F}, 0 offen sc1"); fa.tag = "fl"
        if OPT['early']:
            S.put(b + 40, VmNeed("st3")); S.put(b + 41, fa)
            pl = I(f"buffer_load_dword v47, v46, {SRD_F}, 0 offen sc1"); pl.tag = "poll"
            S.put(b + 60, pl)
    if OPT['stamps'] and OPT.get('opst'):
        for nm, g in (("w1", 127), ("w3", 255), ("w5", 383), ("w8", 575)):
            S.put(g, Raw("\n  ".join(x.txt for x in stamp(nm))))
            S.put(g, "s_waitcnt lgkmcnt(0)")
    pre = II(f"v_mov_b32 v56, {LFLAG}", f"ds_read_b128 {vr(52)}, v56") + pre
    pre += II("s_waitcnt lgkmcnt(0)", "v_or3_b32 v52, v52, v53, v54", "v_or_b32 v52, v52, v55", "s_nop 0", "v_readfirstlane_b32 s50, v52", "s_nop 3",
              f"s_andn2_b32 s50, s50, {S_SAFE}", "s_cmp_lg_u32 s50, 0", "s_cbranch_scc1 L_restart")
    seq = pre + S.flat()
    tail = II("s_nop 7")
    for cp, (cv, (spre, st), hook) in enumerate(tile_epilogue(acc2, 8, 0)):
        tail += cv + spre + hook + [st]
    if OPT['stamps'] and OPT.get('opst'): tail += stamp("st_iss")
    if OPT['fused']:
        fb = I(f"buffer_store_dword v37, v36, {SRD_F}, 0 offen offset:512 sc1"); fb.tag = "fl"
        fc = I(f"buffer_store_dword v37, v36, {SRD_F}, 0 offen offset:1024 sc1"); fc.tag = "fl"
        tail += [VmNeed("poll"), fb, VmNeed("st8"), fc] if OPT['early'] else [VmNeed("st8"), fa, fb, fc]
    seq, q = vm_waits(seq + tail, queue)
    seq, pend = lgkm_waits(seq)
    seq, n = hazards(seq)
    if OPT['verbose']: print(S.report("out_proj"), "nops", n)
    L += seq
    return L, q

SPIN = 1 << 22
def reduce_phase():
    L = []; A = lambda *x: L.extend(II(*x))
    DAT = lambda g, tt, k: 64 + ((g * 2 + tt) * 4 + k) * 4
    D8 = lambda k: 192 + 4 * k
    ACC = lambda g, tt: [208, 216, 224, 232, 240, 248, 2, 10][g * 2 + tt]
    A8 = 18
    T0, T1 = 26, 28
    V_POLL, V_FL, V_L16, V_OUT = 46, 47, 32, 33
    A(f"v_lshrrev_b32 v30, 4, {V_LANE}", f"v_and_b32 v31, 15, {V_LANE}", f"v_lshlrev_b32 v{V_L16}, 4, {V_LANE}",
      f"v_lshlrev_b32 v{V_OUT}, 11, v31", f"v_lshl_add_u32 v{V_OUT}, v30, 4, v{V_OUT}")
    A(f"s_mul_i32 s32, {S_B}, {144*2048}", f"s_lshl_b32 s50, {S_BR}, 10", "s_add_u32 s32, s32, s50", f"s_lshl_b32 s50, {S_HP}, 6", "s_add_u32 s32, s32, s50")
    A(f"s_mul_i32 s33, {S_HP}, {9*16384}")
    A(f"s_lshl_b32 s50, {S_W}, 14", "s_add_u32 s34, s33, s50", "s_add_u32 s35, s34, 65536",
      f"s_add_u32 s36, s33, {8*16384}", f"s_lshl_b32 s50, {S_W}, 12", "s_add_u32 s36, s36, s50",
      f"s_lshl_b32 s41, {S_W}, 2")
    A("s_mov_b32 s37, 0", "s_mov_b32 s38, 0", f"s_mov_b32 s53, {SPIN}")
    if OPT['own']:
        A(f"s_lshr_b32 s46, {S_HP}, 2", f"s_and_b32 s47, {S_HP}, 3", f"s_lshl_b32 s50, {S_W}, 10", f"s_add_u32 s50, s50, {OWNB}", f"v_add_u32 v44, s50, v{V_L16}",
          "s_waitcnt lgkmcnt(0)", "s_barrier", "ds_read_b128 v[36:39], v44", "ds_read_b128 v[40:43], v44 offset:4096")
    def unpack_add(acc, src, first):
        out = []
        for k in range(4):
            if first:
                out += [f"v_lshlrev_b32 v{acc+2*k}, 16, v{src+k}", f"v_and_b32 v{acc+2*k+1}, 0xffff0000, v{src+k}"]
            else:
                t = (T0, T1)[k & 1]
                out += [f"v_lshlrev_b32 v{t}, 16, v{src+k}", f"v_and_b32 v{t+1}, 0xffff0000, v{src+k}",
                        f"v_pk_add_f32 v[{acc+2*k}:{acc+2*k+1}], v[{acc+2*k}:{acc+2*k+1}], v[{t}:{t+1}]"]
        return out
    items = [(tt, g) for tt in range(2) for g in range(4)] + [(2, None)]
    if OPT['early']: A("s_branch L_red_first")
    A("L_red_loop:")
    A("s_cmp_eq_u32 s37, 0x1ff", "s_cbranch_scc1 L_red_nopoll")
    A(f"buffer_load_dword v{V_FL}, v{V_POLL}, {SRD_F}, 0 offen sc1")
    A("L_red_nopoll:", "s_waitcnt vmcnt(0)")
    A("s_andn2_b32 s42, s37, s38")
    for i, (tt, g) in enumerate(items):
        A(f"s_bitcmp1_b32 s42, {i}", f"s_cbranch_scc0 L_red_nosum{i}")
        for k in range(4):
            A(unpack_add(ACC(g, tt), DAT(g, tt, k), k == 0) if tt < 2 else unpack_add(A8, D8(k), k == 0))
        A(f"L_red_nosum{i}:")
    A("s_mov_b32 s38, s37", "s_cmp_eq_u32 s38, 0x1ff", "s_cbranch_scc1 L_red_done")
    A("L_red_first:")
    A(f"v_cmp_eq_u32 vcc, 1, v{V_FL}", "s_nop 3", "s_mov_b32 s39, vcc_lo", "s_lshr_b32 s43, vcc_hi, s41", "s_and_b32 s43, s43, 15", "s_mov_b32 s40, s37")
    A("s_sub_u32 s53, s53, 1", "s_cmp_eq_u32 s53, 0", "s_cselect_b32 s39, -1, s39", "s_cselect_b32 s43, 15, s43", "s_cselect_b32 s53, 1, s53")
    for i, (tt, g) in enumerate(items):
        A(f"s_bitcmp1_b32 s37, {i}", f"s_cbranch_scc1 L_red_noiss{i}")
        if tt < 2:
            A(f"s_bfe_u32 s50, s39, {hex((4 << 16) | (16 * tt + 4 * g))}", "s_cmp_eq_u32 s50, 15")
        else:
            A("s_cmp_eq_u32 s43, 15")
        A(f"s_cbranch_scc0 L_red_noiss{i}")
        if tt < 2: A(f"s_add_u32 s50, s{34+tt}, {g*4096}")
        if OPT['own']:
            A(f"s_cmp_eq_u32 s46, {g}" if tt < 2 else f"s_cmp_eq_u32 s46, {S_W}", "s_cselect_b32 s44, s47, 7")
        for k in range(4):
            o = f" offset:{k*1024}" if k else ""
            va = V_L16
            if OPT['own']:
                A(f"s_cmp_eq_u32 s44, {k}", "s_cselect_b32 s45, 0x40000000, 0", f"v_or_b32 v45, s45, v{V_L16}"); va = 45
            if tt < 2: A(f"buffer_load_dwordx4 {vr(DAT(g, tt, k))}, v{va}, {SRD_P}, s50 offen{o} {OPT['rld']}")
            else: A(f"buffer_load_dwordx4 {vr(D8(k))}, v{va}, {SRD_P}, s36 offen{o} {OPT['rld']}")
        A(f"s_bitset1_b32 s37, {i}", f"L_red_noiss{i}:")
    if OPT.get('rdst'):
        A("s_cmp_eq_u32 s40, 0", "s_cbranch_scc0 L_rs1", "s_cmp_lg_u32 s37, 0", "s_cbranch_scc0 L_rs1", stamp("r_first"), "L_rs1:")
        A("s_cmp_eq_u32 s37, 0x1ff", "s_cbranch_scc0 L_rs2", stamp("r_alliss"), "L_rs2:")
    A("s_cmp_lg_u32 s37, s40", "s_cbranch_scc1 L_red_loop", f"s_sleep {OPT['psleep']}", "s_branch L_red_loop")
    A("L_red_done:")
    if OPT.get('rdst'): A(stamp("r_summed"))
    A(f"s_lshl_b32 s50, {S_W}, 11", f"v_lshlrev_b32 v30, 5, {V_LANE}", f"v_add_u32 v30, {WOB}, v30", "v_add_u32 v31, s50, v30",
      f"ds_write_b128 v31, {vr(A8)}", f"ds_write_b128 v31, {vr(A8+4)} offset:16")
    for tt in range(2):
        a0 = ACC(0, tt)
        for g in range(1, 4):
            for k in range(4): A(f"v_pk_add_f32 v[{a0+2*k}:{a0+2*k+1}], v[{a0+2*k}:{a0+2*k+1}], v[{ACC(g,tt)+2*k}:{ACC(g,tt)+2*k+1}]")
        if OPT['own']: A("s_waitcnt lgkmcnt(2)" if tt == 0 else "s_nop 0", unpack_add(a0, 36 + 4 * tt, False))
        for k in range(4): A(f"v_cvt_pk_bf16_f32 v{64+4*tt+k}, v{a0+2*k}, v{a0+2*k+1}")
        A(f"s_lshl_b32 s50, {S_W}, 15", f"s_add_u32 s50, s50, s32", f"s_add_u32 s50, s50, {tt*4*32768}")
        A(f"buffer_store_dwordx4 {vr(64+4*tt)}, v{V_OUT}, {SRD_O}, s50 offen {OPT['ost']}")
    A("s_waitcnt lgkmcnt(0)", "s_barrier", f"s_cmp_eq_u32 {S_W}, 0", "s_cbranch_scc0 L_red_end")
    for g in range(4):
        A(f"ds_read_b128 {vr(80+8*g)}, v30 offset:{g*2048}", f"ds_read_b128 {vr(84+8*g)}, v30 offset:{g*2048+16}")
    if OPT['own']: A("ds_read_b128 v[36:39], v44 offset:8192")
    A("s_waitcnt lgkmcnt(0)")
    for g in range(1, 4):
        for k in range(4): A(f"v_pk_add_f32 v[{80+2*k}:{81+2*k}], v[{80+2*k}:{81+2*k}], v[{80+8*g+2*k}:{81+8*g+2*k}]")
    if OPT['own']: A(unpack_add(80, 36, False))
    for k in range(4): A(f"v_cvt_pk_bf16_f32 v{72+k}, v{80+2*k}, v{81+2*k}")
    A(f"s_add_u32 s50, s32, {8*32768}")
    A(f"buffer_store_dwordx4 {vr(72)}, v{V_OUT}, {SRD_O}, s50 offen {OPT['ost']}")
    A("L_red_end:")
    L2, n = hazards(L)
    return L2

def dump_regs(regs, slot, kind='v'):
    L = []; A = lambda *x: L.extend(II(*x))
    A("s_add_u32 s66, s58, 0x4000000", "s_addc_u32 s67, s59, 0",
      "s_lshl_b32 s50, s2, 2", f"s_add_u32 s50, s50, {S_W}", "s_lshl_b32 s50, s50, 16",
      f"v_lshlrev_b32 v253, 2, {V_LANE}", "v_add_u32 v253, s50, v253")
    for i, r in enumerate(regs):
        if kind == 'a':
            A(f"v_accvgpr_read_b32 v254, a{r}", "s_nop 0")
            A(f"global_store_dword v253, v254, s[66:67]")
        else:
            A(f"global_store_dword v253, v{r}, s[66:67]")
        A("v_add_u32 v253, 256, v253")
    A("s_waitcnt vmcnt(0)")
    return L

def main_kernel():
    L = []
    L += setup()
    L += stamp("start")
    L += phase_q()
    L += stamp("q_done")
    if OPT['dump'] == 'q':
        L += II("s_nop 7") + dump_regs([qfrag(t, s) + k for t in range(5) for s in range(4) for k in range(4)], 0)
        L += II("s_waitcnt vmcnt(0)", "s_endpgm")
    L += attention()
    if OPT['dump'] == 'o':
        L += II("s_nop 7") + dump_regs([oacc(dt, t) + k for t in range(5) for dt in range(8) for k in range(4)] + [lacc(t) for t in range(5)], 0, 'a')
        L += II("s_waitcnt vmcnt(0)", "s_endpgm")
    e, q = o_epilogue(); L += e
    L += stamp("o_done")
    if OPT.get('stop') == 'o':
        L += II("s_waitcnt vmcnt(0)") + stamp("end") + stamp_dump() + II("L_main_end:", "s_endpgm") + safe_paths()
        return L
    e, q = out_proj(q); L += e
    L += stamp("op_done")
    if OPT['fused']:
        L += reduce_phase()
        L += stamp("red_done")
    L += tr_dump()
    L += II("s_waitcnt vmcnt(0)")
    L += stamp("end")
    L += stamp_dump()
    L += II("L_main_end:", "s_endpgm")
    L += OWN_OOL + ATT_OOL
    L += safe_paths()
    return L

def reduce_kernel():
    L = []; A = lambda *x: L.extend(II(*x))
    A("s_cmp_ge_u32 s2, 256", "s_cbranch_scc1 L_red_end")
    A("s_load_dwordx2 s[4:5], s[0:1], 80", "s_load_dwordx2 s[6:7], s[0:1], 96")
    A("v_lshrrev_b32 v2, 6, v0", "v_and_b32 v1, 63, v0", "s_nop 0", "v_readfirstlane_b32 s12, v2", "s_nop 3")
    A("s_waitcnt lgkmcnt(0)")
    A("s_mul_i32 s13, s2, 9", "s_add_u32 s13, s13, s12", "s_lshl_b32 s13, s13, 14")
    A("s_add_u32 s16, s6, s13", "s_addc_u32 s17, s7, 0", "s_and_b32 s17, s17, 0xffff", "s_mov_b32 s18, 16384", "s_mov_b32 s19, 0x20000")
    A("v_lshlrev_b32 v2, 4, v1")
    for p in range(16):
        A(f"buffer_load_dwordx4 v[{8+4*p}:{11+4*p}], v2, s[16:19], 0 offen offset:{(p%4)*1024}" if p < 4 else
          f"buffer_load_dwordx4 v[{8+4*p}:{11+4*p}], v2, s[16:19], s{20+p//4} offen offset:{(p%4)*1024}")
        if p == 3: A("s_mov_b32 s21, 4096", "s_mov_b32 s22, 8192", "s_mov_b32 s23, 12288")
    A("s_lshr_b32 s14, s2, 4", "s_and_b32 s15, s2, 15",
      "s_and_b32 s24, s14, 7", "s_lshr_b32 s25, s14, 3",
      "s_mul_i32 s24, s24, 144", "s_lshl_b32 s26, s12, 4", "s_add_u32 s24, s24, s26", "s_lshl_b32 s24, s24, 11",
      "s_lshl_b32 s25, s25, 10", "s_lshl_b32 s15, s15, 6", "s_add_u32 s24, s24, s25", "s_add_u32 s24, s24, s15")
    A("v_and_b32 v3, 15, v1", "v_lshlrev_b32 v3, 11, v3", "v_lshrrev_b32 v4, 4, v1", "v_lshl_add_u32 v3, v4, 4, v3")
    A("s_mov_b32 s28, s4", "s_and_b32 s29, s5, 0xffff", "s_mov_b32 s30, 2359296", "s_mov_b32 s31, 0x20000")
    acc = 80
    for p in range(16):
        A(f"s_waitcnt vmcnt({15-p})")
        for k in range(4):
            r = 8 + 4 * p + k
            if p == 0:
                A(f"v_lshlrev_b32 v{acc+2*k}, 16, v{r}", f"v_and_b32 v{acc+2*k+1}, 0xffff0000, v{r}")
            else:
                A(f"v_lshlrev_b32 v6, 16, v{r}", f"v_and_b32 v7, 0xffff0000, v{r}",
                  f"v_add_f32 v{acc+2*k}, v{acc+2*k}, v6", f"v_add_f32 v{acc+2*k+1}, v{acc+2*k+1}, v7")
    for k in range(4): A(f"v_cvt_pk_bf16_f32 v{8+k}, v{acc+2*k}, v{acc+2*k+1}")
    A("buffer_store_dwordx4 v[8:11], v3, s[28:31], s24 offen")
    A("s_waitcnt vmcnt(0)")
    A("L_red_end:", "s_endpgm")
    return L

def kernel_text(name, body, vgpr, accum, sgpr=102):
    return f""".globl {name}
.p2align 8
.type {name},@function
{name}:
{text(body)}
"""
def kd(name, nfv, accum, sgpr=102):
    return f""".amdhsa_kernel {name}
  .amdhsa_next_free_vgpr {nfv}
  .amdhsa_next_free_sgpr {sgpr}
  .amdhsa_accum_offset {accum}
  .amdhsa_group_segment_fixed_size 0
  .amdhsa_kernarg_size 104
  .amdhsa_user_sgpr_count 2
  .amdhsa_user_sgpr_kernarg_segment_ptr 1
  .amdhsa_system_sgpr_workgroup_id_x 1
.end_amdhsa_kernel
"""

def build():
    stamp_id[0] = 0; STAMPS.clear()
    k1 = NAME + "_kernel"; k2 = "reduce_heads_kernel"
    m = main_kernel()
    hdr = "; fused q-projection + attention + out-projection; the 16 head-pair partials of an output slice are summed by its owner\n"
    if OPT['fused']:
        hdr += f"; @launch grid=(256,1,1) block=(256,1,1) lds=163840\n"
    else:
        hdr += f"; @launch kernel={k1} grid=(256,1,1) block=(256,1,1) lds=163840\n"
        hdr += f"; @launch kernel={k2} grid=(256,1,1) block=(576,1,1) lds=0\n"
    s = hdr + '.amdgcn_target "amdgcn-amd-amdhsa--gfx950"\n.text\n'
    s += kernel_text(k1, m, 512, 256)
    if not OPT['fused']: s += kernel_text(k2, reduce_kernel(), 96, 96)
    s += '.section .rodata,"a"\n.p2align 6\n' + kd(k1, 512, 256)
    if not OPT['fused']: s += ".p2align 6\n" + kd(k2, 96, 96, 40)
    return s

if __name__ == "__main__":
    ap = argparse.ArgumentParser()
    ap.add_argument("-o", default="cdna_kernels/" + NAME + ".s")
    ap.add_argument("--dump"); ap.add_argument("--stamps", action="store_true"); ap.add_argument("-v", action="store_true")
    ap.add_argument("--opt", action="append", default=[])
    a = ap.parse_args()
    OPT['dump'] = a.dump; OPT['stamps'] = a.stamps; OPT['verbose'] = a.v
    for o in a.opt:
        k, v = o.split("=", 1)
        OPT[k] = {'True': True, 'False': False}.get(v, int(v) if v.lstrip('-').isdigit() else v)
    s = build()
    open(a.o, "w").write(s)
    if a.stamps:
        import json; json.dump(STAMPS, open(a.o + ".stamps.json", "w"))
    print("wrote", a.o, len(s), "bytes")
```

```python
import sys, argparse
from ir import *

NAME = "concat_heads__gqa_block_cached__mha_block_cached__near_ridge"
OPT = dict(latebar=False, wsoff=0, own=True, early=True, l2pf=False, np1=0, pfw=1, pfkv=0, pfkvnt=False, psleep=8, ost='', lthr=0, start2=True, pf=2, pfnt=False, fused=True, rld='sc1', rot=True, wnt=False, xnt=False, wont=False, bursts=(3, 6, 9), dump=None, stamps=False, stop=None, kvnt=True, pst="sc1", verbose=False)

VB = 0
KB = 65536
WB = 16384
XB = 114688
WOA = 131072
WOB = 98304
OB = 0
def kphys(k): return ((k + 1) & 3) * 16384
def vphys(k): return (k & 3) * 16384

SRD_X, SRD_WQ, SRD_K, SRD_V, SRD_WO, SRD_P = "s[4:7]", "s[8:11]", "s[12:15]", "s[16:19]", "s[20:23]", "s[24:27]"
SRD_F, SRD_D, SRD_O = "s[68:71]", "s[72:75]", "s[80:83]"
S_W, S_U, S_QH, S_CNT = "s28", "s29", "s30", "s31"
S_SOFFX, S_SOFFW0, S_UNUSED, S_MW, S_MX, S_DSLOT, S_RSLOT, S_DW, S_DX = "s32", "s33", "s34", "s35", "s36", "s37", "s38", "s39", "s40"
S_BW, S_BX = "s41", "s42"
S_SOFFK, S_SOFFV, S_MK, S_MV = "s45", "s46", "s47", "s48"
S_T0, S_T1, S_T2, S_T3 = "s50", "s51", "s52", "s53"
S_HP, S_B, S_BR, S_CL = "s54", "s55", "s56", "s57"
S_WS = "s[58:59]"
S_SOFFP = "s60"
S_STAMP = "s[62:63]"
S_FLAG = "s64"
S_SAFE = "s61"
S_BX3 = "s38"
LTHR = 0x4b800000
S_KS, S_X0, S_W0 = "s88", "s89", "s87"
S_TAU, S_TB, S_TQ, S_T4N, S_TMASK, S_TSH, S_TM, S_TS = "s78", "s79", "s43", "s44", "s34", "s49", "s61", "s95"

V_LANE = "v1"
V_WQR = [2, 3, 4, 5]; V_XR = 6; V_XR4 = 14; V_OW4 = 50; V_OWB = 51
V_WQD = [7, 8, 9, 10]; V_XD = [11, 12, 13]; V_TG, V_TI, V_TB, V_TV = 14, 15, 62, 63
V_KD = [16, 17, 18, 19]; V_VD = [20, 21]
V_KR = [22, 23, 24, 25]; V_VR = [26 + i for i in range(8)]
V_WOD = [34, 35, 36, 37]; V_WOR = [38, 39, 40, 41]
V_OW, V_OR, V_OR8, V_PS = 42, 43, 44, 45
VT = [46 + i for i in range(18)]
RB = 64
def grp(t, s): return RB + (t * 4 + s) * 8
def qacc(dt, t): return grp(t, dt >> 1) + 4 * (dt & 1)
def qfrag(t, s): return grp(t, s)
def Sreg(kt, t): return grp(t, kt) + 4
def Preg(par, t): return grp(t, 2 + par) + 4
def cinit(t): return 224 + 4 * t
V_C0, V_C1 = 244, 245
def vr(b, n=4): return f"v[{b}:{b+n-1}]"
def ar(b, n=4): return f"a[{b}:{b+n-1}]"
def oacc(dt, t): return t * 32 + dt * 4
def lacc(t): return 160 + 4 * t
A_ONES = 180
def abuf(i): return 184 + 4 * i
def bbuf(t): return [48, 52, 56, 60, 248][t]
def kbuf(kt, s): return 216 + 4 * (kt * 4 + s)

MF = "v_mfma_f32_16x16x32_bf16"
def mfma(d, a, b, c): return I(f"{MF} {d}, {a}, {b}, {c}")
SCALE = (128 ** -0.5) * 1.4426950408889634
import struct
def f2u(x): return struct.unpack("<I", struct.pack("<f", x))[0]

def NT(): return " nt" if OPT['kvnt'] else ""

def CNTOFF(): return 128 if OPT.get('dbgst') is not None else 0
stamp_id = [0]
def stamp(name):
    if not OPT['stamps']: return []
    i = stamp_id[0]; stamp_id[0] += 1
    STAMPS.append(name)
    return II("s_memrealtime s[66:67]", "s_memtime s[64:65]", "s_waitcnt lgkmcnt(0)",
              f"v_writelane_b32 v0, s66, {i}", f"v_writelane_b32 v0, s64, {32 + i}")
def stamp_dump():
    if not OPT['stamps']: return []
    if OPT.get('dbgst') is not None:
        return II(f"s_cmp_eq_u32 s2, {OPT['dbgst']}", "s_cbranch_scc0 L_nodbg", f"s_cmp_eq_u32 {S_W}, 0", "s_cbranch_scc0 L_nodbg",
                  "v_readlane_b32 s50, v0, 0", "s_nop 3", "v_subrev_u32 v0, s50, v0",
                  f"v_lshlrev_b32 v1, 2, {V_LANE}", "v_cmp_gt_u32 vcc, 16, v1", f"v_lshrrev_b32 v2, 2, v1", "v_mov_b32 v3, 0x1000", "v_cmp_gt_u32 vcc, 16, v2", "s_nop 1",
                  "v_cndmask_b32 v1, v3, v1, vcc", f"buffer_store_dword v0, v1, {SRD_D}, 0 offen", "L_nodbg:")
    return II("s_add_u32 s62, s58, 0x8000000", "s_addc_u32 s63, s59, 0", "s_lshl_b32 s65, s2, 2", f"s_add_u32 s65, s65, {S_W}", "s_lshl_b32 s65, s65, 8",
              f"v_lshlrev_b32 v1, 2, {V_LANE}", "v_add_u32 v1, s65, v1", "global_store_dword v1, v0, s[62:63]")
STAMPS = []

def setup():
    L = []
    A = lambda *x: L.extend(II(*x))
    A("s_cmp_ge_u32 s2, 256", "s_cbranch_scc1 L_main_end")
    A("s_load_dwordx8 s[68:75], s[0:1], 0", "s_load_dwordx2 s[76:77], s[0:1], 32",
      "s_load_dwordx8 s[80:87], s[0:1], 40", "s_load_dwordx2 s[88:89], s[0:1], 72",
      f"s_load_dwordx2 {S_WS}, s[0:1], 96", "s_load_dwordx4 s[96:99], s[0:1], 80")
    A("s_and_b32 s50, s2, 7", "s_lshr_b32 s51, s2, 3",
      f"s_lshr_b32 {S_BR}, s50, 2",
      "s_and_b32 s52, s50, 3", "s_lshl_b32 s52, s52, 2", "s_and_b32 s53, s51, 3", f"s_add_u32 {S_HP}, s52, s53",
      f"s_lshr_b32 {S_B}, s51, 2",
      f"s_lshl_b32 s52, {S_BR}, 3", f"s_add_u32 {S_CL}, s52, {S_B}")
    A("v_lshrrev_b32 v46, 6, v0", f"v_and_b32 {V_LANE}, 63, v0", "s_nop 0", f"v_readfirstlane_b32 {S_W}, v46", "s_nop 3")
    A(f"s_lshr_b32 {S_U}, {S_W}, 1", f"s_and_b32 {S_QH}, {S_W}, 1", f"s_mov_b32 {S_SAFE}, 0")
    A(lane_consts_q())
    A("s_waitcnt lgkmcnt(0)")
    A(f"s_cmp_eq_u32 {S_BR}, 1")
    for i in range(8): A(f"s_cselect_b32 s{68+i}, s{80+i}, s{68+i}")
    A("s_cselect_b32 s76, s88, s76", "s_cselect_b32 s77, s89, s77")
    def srd(dst, lo, hi, off_expr_regs, nrec):
        A(f"s_add_u32 s{dst}, s{lo}, s50", f"s_addc_u32 s{dst+1}, s{hi}, 0", f"s_and_b32 s{dst+1}, s{dst+1}, 0xffff")
        A(nrec, f"s_mov_b32 s{dst+3}, 0x20000")
    A(f"s_mul_i32 s50, {S_B}, 147456"); srd(4, 68, 69, None, "s_mov_b32 s6, 147456")
    A(f"s_lshl_b32 s50, {S_HP}, 9"); srd(8, 74, 75, None, "s_sub_u32 s10, 4194304, s50")
    return L

def setup_b():
    L = []
    A = lambda *x: L.extend(II(*x))
    def srd(dst, lo, hi, off_expr_regs, nrec):
        A(f"s_add_u32 s{dst}, s{lo}, s50", f"s_addc_u32 s{dst+1}, s{hi}, 0", f"s_and_b32 s{dst+1}, s{dst+1}, 0xffff")
        A(nrec, f"s_mov_b32 s{dst+3}, 0x20000")
    A(f"s_cmp_eq_u32 {S_SAFE}, 1", "s_cbranch_scc1 L_setup_b_done")
    A(f"s_lshl_b32 s50, {S_B}, 5", f"s_lshl_b32 s51, {S_HP}, 1", "s_add_u32 s50, s50, s51", f"s_add_u32 s50, s50, {S_U}", "s_lshl_b32 s50, s50, 17")
    srd(12, 70, 71, None, "s_mov_b32 s14, 131072")
    srd(16, 72, 73, None, "s_mov_b32 s18, 131072")
    A(f"s_lshl_b32 s50, {S_HP}, 18", f"s_lshl_b32 s51, {S_W}, 8", "s_add_u32 s50, s50, s51")
    A("s_sub_u32 s52, 262144, s51")
    srd(20, 76, 77, None, "s_mov_b32 s22, s52")
    A(f"s_lshl_b32 s50, {S_HP}, 18"); srd(84, 76, 77, None, "s_mov_b32 s86, 262144")
    A(f"s_mul_i32 s50, {S_CL}, 2359296", f"s_add_u32 s50, s50, {hex(OPT['wsoff'])}"); srd(24, 58, 59, None, "s_mov_b32 s26, 2359296")
    if OPT['fused']:
        A(f"s_mul_i32 s50, {S_CL}, 4608", f"s_add_u32 s50, s50, {hex(OPT['wsoff'] + 0x2400000 + 0x40000)}"); srd(68, 58, 59, None, "s_mov_b32 s70, 4608")
        A("s_mov_b32 s72, s98", "s_and_b32 s73, s99, 0xffff", "s_mov_b32 s74, 256", "s_mov_b32 s75, 0x20000")
        A("s_mov_b32 s80, s96", "s_and_b32 s81, s97, 0xffff", "s_mov_b32 s82, 2359296", "s_mov_b32 s83, 0x20000")
        A(f"s_lshl_b32 s50, {S_W}, 7", f"s_lshl_b32 s51, {S_HP}, 2", "s_add_u32 s50, s50, s51",
          f"v_lshlrev_b32 v46, 9, {V_LANE}", "v_add_u32 v46, s50, v46", "v_mov_b32 v47, 0",
          f"buffer_store_dword v47, v46, {SRD_F}, 0 offen sc1" if not OPT.get('x_noclr') else "s_nop 0")
    A("L_setup_b_done:")
    return L

def lane_consts_q():
    L = []; A = lambda *x: L.extend(II(*x))
    l = V_LANE; t0, t1, t2, t3, t4, t5 = [f"v{x}" for x in VT[:6]]
    A(f"v_lshrrev_b32 {t0}, 4, {l}", f"v_bfe_u32 {t1}, {l}, 2, 2", f"v_and_b32 {t2}, 3, {l}", f"v_and_b32 {t3}, 15, {l}")
    for n in range(4):
        A(f"v_add_u32 {t4}, {4*n}, {t0}", f"v_xor_b32 {t4}, {t4}, {t3}", f"v_lshlrev_b32 {t4}, 4, {t4}",
          f"v_lshl_add_u32 v{V_KD[n]}, {t0}, 8, {t4}")
    for n in range(2):
        A(f"v_add_u32 {t4}, {4*n}, {t0}", f"v_lshlrev_b32 {t4}, 1, {t4}", f"v_xor_b32 {t4}, {t4}, {t3}", f"v_lshlrev_b32 {t4}, 4, {t4}",
          f"v_lshl_add_u32 v{V_VD[n]}, {t0}, 8, {t4}")
    A(f"v_lshrrev_b32 {t4}, 5, {l}")
    A(f"v_bfe_u32 {t5}, {l}, 4, 1")
    for j in range(4):
        d = f"v{V_WQD[j]}"
        A(f"v_add_u32 {d}, {2*j}, {t4}",
          f"v_and_b32 v{VT[6]}, 3, {d}", f"v_lshlrev_b32 v{VT[6]}, 2, v{VT[6]}", f"v_xor_b32 v{VT[6]}, v{VT[6]}, {t3}", f"v_lshlrev_b32 v{VT[6]}, 4, v{VT[6]}",
          f"v_lshlrev_b32 {d}, 13, {d}", f"v_add_u32 {d}, {d}, v{VT[6]}", f"v_lshl_add_u32 {d}, {t5}, 8, {d}")
        if j: A(f"v_subrev_u32 {d}, {1024*j}, {d}")
    A(f"v_lshlrev_b32 {t4}, 1, {t0}", f"v_mov_b32 {t5}, 0x78", f"v_lshrrev_b32 {t4}, {t4}, {t5}", f"v_and_b32 {t4}, 3, {t4}",
      f"v_xor_b32 {t4}, {t4}, {t2}", f"v_lshlrev_b32 {t4}, 4, {t4}",
      f"v_lshrrev_b32 {t5}, 2, {l}", f"v_lshl_add_u32 {t4}, {t5}, 10, {t4}")
    for j in range(2):
        A(f"v_add_u32 v{V_XD[j]}, {j*16384 - 1024*j}, {t4}")
    A(f"s_lshl_b32 s50, {S_W}, 1", "s_lshr_b32 s50, 0x78, s50", "s_and_b32 s50, s50, 3",
      f"v_xor_b32 {t4}, s50, {t2}", f"v_lshlrev_b32 {t4}, 4, {t4}", f"v_lshl_add_u32 {t4}, {t5}, 10, {t4}",
      f"s_lshl_b32 s50, {S_W}, 12", f"s_lshl_b32 s51, {S_W}, 15", "s_sub_u32 s50, s50, s51", f"s_add_u32 s50, s50, {128*1024}",
      f"v_add_u32 v{V_XD[2]}, s50, {t4}")
    A(f"v_lshl_add_u32 {t4}, {t0}, 3, {t1}", f"v_lshlrev_b32 {t4}, 9, {t4}", f"v_lshl_add_u32 {t4}, {t2}, 4, {t4}",
      f"s_lshl_b32 s50, {S_U}, 8", f"s_add_u32 s50, s50, {WB}", f"v_add_u32 {t4}, s50, {t4}")
    A(f"s_lshl_b32 s51, {S_QH}, 1", f"v_xor_b32 {t1}, s51, {t1}")
    for s in range(4):
        A(f"v_xor_b32 {t5}, {s}, {t1}", f"v_lshl_add_u32 v{V_WQR[s]}, {t5}, 6, {t4}")
    A(f"v_lshrrev_b32 {t4}, 2, {t3}", f"v_lshlrev_b32 {t4}, 1, {t4}", f"v_mov_b32 {t5}, 0x78", f"v_lshrrev_b32 {t4}, {t4}, {t5}", f"v_and_b32 {t4}, 3, {t4}",
      f"v_xor_b32 {t4}, {t4}, {t0}", f"v_lshlrev_b32 {t4}, 4, {t4}", f"v_lshl_add_u32 {t4}, {t3}, 6, {t4}",
      f"s_mul_i32 s50, {S_QH}, 5120", f"s_add_u32 s50, s50, {XB}", f"v_add_u32 v{V_XR}, s50, {t4}", f"v_add_u32 v{V_XR4}, {XB + 4096}, {t4}")
    return L

def lane_consts_rest():
    L = []; A = lambda *x: L.extend(II(*x))
    l = V_LANE; t0, t1, t2, t3, t4, t5, t6 = [f"v{x}" for x in VT[:7]]
    A(f"v_lshrrev_b32 {t0}, 4, {l}", f"v_bfe_u32 {t1}, {l}, 2, 2", f"v_and_b32 {t2}, 3, {l}", f"v_and_b32 {t3}, 15, {l}")
    A(f"s_lshl_b32 s50, {S_U}, 13", f"s_add_u32 s51, s50, {KB}", f"v_lshlrev_b32 {t4}, 8, {t3}", f"v_add_u32 {t4}, s51, {t4}")
    A(f"s_lshl_b32 s51, {S_QH}, 3", f"v_xor_b32 {t6}, s51, {t3}")
    for s in range(4):
        A(f"v_add_u32 {t5}, {4*s}, {t0}", f"v_xor_b32 {t5}, {t5}, {t6}", f"v_lshl_add_u32 v{V_KR[s]}, {t5}, 4, {t4}")
    A(f"v_lshrrev_b32 {t4}, 2, {l}", f"v_and_b32 {t5}, 7, {t4}", f"v_lshlrev_b32 {t5}, 1, {t5}",
      f"v_lshlrev_b32 {t4}, 8, {t4}", f"v_add_u32 {t4}, s50, {t4}",
      f"v_and_b32 {t6}, 1, {t2}", f"v_lshl_add_u32 {t4}, {t6}, 3, {t4}",
      f"v_lshrrev_b32 {t6}, 1, {t2}",
      f"s_lshl_b32 s51, {S_QH}, 3", f"v_xor_b32 {t5}, s51, {t5}")
    for dt in range(8):
        d = f"v{V_VR[dt]}"
        A(f"v_add_u32 {d}, {2*dt}, {t6}", f"v_xor_b32 {d}, {d}, {t5}", f"v_lshl_add_u32 {d}, {d}, 4, {t4}")
    A(f"v_lshlrev_b32 {t4}, 2, {t0}", f"v_xor_b32 {t4}, {t4}, {t3}", f"v_lshlrev_b32 {t4}, 4, {t4}", f"v_lshl_add_u32 {t4}, {t0}, 10, {t4}")
    for n in range(4):
        A(f"v_add_u32 v{V_WOD[n]}, {n*3072}, {t4}")
    A(f"v_lshrrev_b32 {t4}, 2, {l}", f"v_lshlrev_b32 {t4}, 8, {t4}", f"v_lshl_add_u32 {t4}, {t2}, 4, {t4}",
      f"s_lshl_b32 s50, {S_W}, 13", f"s_add_u32 s50, s50, {WOB}", f"v_add_u32 {t4}, s50, {t4}")
    for cp in range(4):
        A(f"v_xor_b32 {t5}, {cp}, {t1}", f"v_lshl_add_u32 v{V_WOR[cp]}, {t5}, 6, {t4}")
    A(f"s_mul_i32 s50, {S_QH}, 40960", f"s_lshl_b32 s51, {S_U}, 12", "s_add_u32 s50, s50, s51",
      f"v_lshlrev_b32 v{V_OR}, 4, {l}", f"v_add_u32 v{V_OW}, s50, v{V_OR}", f"v_add_u32 v{V_OR8}, 0x10000, v{V_OR}")
    A(f"s_lshl_b32 s50, {S_HP}, 10", f"v_add_u32 v{V_PS}, s50, v{V_OR}")
    return L

def dma(voff, srd, soff, imm, nt=False):
    o = f" offset:{imm}" if imm else ""
    return I(f"buffer_load_dwordx4 v{voff}, {srd}, {soff} offen{o}{' nt' if nt else ''} lds")

def kv_group(kind, m0expr, soffreg):
    if kind == 'K':
        return [dma(V_KD[n], SRD_K, soffreg, n * 1024, OPT['kvnt']) for n in range(4)]
    return [dma(V_VD[n & 1], SRD_V, soffreg, n * 1024, OPT['kvnt']) for n in range(4)]

def kv_tile_full_unused(kind, j):
    L = []
    base = (KB + kphys(j)) if kind == 'K' else (VB + vphys(j))
    for gI in range(2):
        L += II(f"s_lshl_b32 s50, {S_U}, 13", f"s_add_u32 m0, s50, {base + gI*4096}", f"s_mov_b32 s51, {j*8192 + gI*4096}")
        L += kv_group(kind, None, "s51")
    return L

def stage_setup_scalar():
    rot = OPT['rot']
    R = II("s_lshr_b32 s50, s2, 3", "s_and_b32 s51, s50, 3", "s_lshr_b32 s50, s50, 2")
    if rot in (True, 1):   R += II("s_lshl_b32 s51, s51, 2", "s_lshl_b32 s50, s50, 1", "s_add_u32 s52, s50, s51")
    elif rot == 2:         R += II("s_lshr_b32 s50, s50, 1", "s_add_u32 s52, s50, s51", "s_lshl_b32 s52, s52, 2")
    elif rot == 3:         R += II("s_add_u32 s52, s50, s51", "s_lshl_b32 s52, s52, 2")
    elif rot == 4:         R += II("s_lshr_b32 s50, s50, 2", "s_lshl_b32 s50, s50, 3", "s_lshl_b32 s51, s51, 2", "s_add_u32 s52, s50, s51")
    elif rot == 5:         R += II("s_mul_i32 s50, s50, 3", "s_lshl_b32 s51, s51, 2", "s_add_u32 s52, s50, s51")
    elif rot == 6:         R += II("s_lshl_b32 s52, s50, 1")
    elif rot == 7:         R += II("s_lshl_b32 s50, s50, 1", "s_and_b32 s51, s51, 1", "s_lshl_b32 s51, s51, 3", "s_add_u32 s52, s50, s51")
    else:                  R += II("s_mov_b32 s52, 0")
    return R + II("s_and_b32 s52, s52, 15",
              f"s_lshl_b32 s50, s52, 6", f"s_lshl_b32 s51, {S_W}, 15", f"s_add_u32 {S_SOFFX}, s50, s51",
              f"s_lshl_b32 s50, s52, 18", f"s_lshl_b32 s51, {S_W}, 16", f"s_add_u32 {S_SOFFW0}, s50, s51",
              f"s_lshl_b32 s50, {S_W}, 12", f"s_add_u32 {S_BW}, s50, {WB}",
              f"s_lshl_b32 s50, {S_W}, 11", f"s_add_u32 {S_BX}, s50, {XB}",
              f"s_lshl_b32 s50, {S_W}, 8", f"s_add_u32 {S_BX3}, s50, {XB + 8192}",
              f"s_lshl_b32 {S_TQ}, {S_QH}, 12",
              f"s_lshl_b32 s50, {S_U}, 13", f"s_add_u32 s50, s50, {S_TQ}", f"s_add_u32 {S_MK}, s50, {KB}", f"s_add_u32 {S_MV}, s50, {VB}")

def stage_dma_list(slot):
    seq = []
    seq.append(([I(f"s_add_u32 m0, {S_BW}, {slot*16384}")], dma(V_WQD[0], SRD_WQ, S_SOFFW0, 0, OPT['wnt'])))
    for j in range(1, 4): seq.append(([], dma(V_WQD[j], SRD_WQ, S_SOFFW0, j * 1024, OPT['wnt'])))
    seq.append(([I(f"s_add_u32 m0, {S_BX}, {slot*9216}")], dma(V_XD[0], SRD_X, S_SOFFX, 0, OPT['xnt'])))
    seq.append(([], dma(V_XD[1], SRD_X, S_SOFFX, 1024, OPT['xnt'])))
    q = dma(V_XD[2], SRD_X, S_SOFFX, 0, OPT['xnt'])
    seq.append(([I(f"s_add_u32 m0, {S_BX3}, {slot*9216}")], Masked(q, 0xffff)))
    return seq

def place_dma(S, seq, gaps):
    k = 0
    last = None
    for e in seq:
        if e[0]:
            for p in e[0]: S.put(gaps[k], p)
            k += 1
        S.put(gaps[k], e[1]); last = gaps[k]
        if len(e) > 2:
            for p in e[2]: S.put(gaps[k] + 1, p)
        k += 1
    return last

def stage_advance_w():
    return II(f"s_add_u32 {S_SOFFW0}, {S_SOFFW0}, 262144", f"s_and_b32 {S_SOFFW0}, {S_SOFFW0}, 0x3fffff")
def stage_advance_x():
    return II(f"s_add_u32 {S_SOFFX}, {S_SOFFX}, 64", f"s_and_b32 {S_SOFFX}, {S_SOFFX}, 0xfffffbff")
def stage_advance(): return stage_advance_w() + stage_advance_x()

def straight(seq):
    L = []
    for e in seq:
        L += e[0]
        if e[0]: L += II("s_nop 0")
        L.append(e[1])
        if len(e) > 2: L += e[2]
    return L

def stage_issue_straight(slot):
    return straight(stage_dma_list(slot)) + stage_advance()

def wq_read(dt, h2, slot):
    if OPT.get('x_noread'): return I('s_nop 0')
    s, hf = dt >> 1, dt & 1
    b = abuf(dt) + 2 * h2
    off = slot * 16384 + hf * 8 + h2 * 2048
    return I(f"ds_read_b64_tr_b16 {ar(b,2)}, v{V_WQR[s]}" + (f" offset:{off}" if off else ""))
def x_read(t, slot):
    if OPT.get('x_noread'): return I('s_nop 0')
    off = slot * 9216 + (0 if t == 4 else t * 1024)
    return I(f"ds_read_b128 {vr(bbuf(t))}, v{V_XR4 if t == 4 else V_XR}" + (f" offset:{off}" if off else ""))
def q_mfma(dt, t):
    if OPT.get('x_t4') and t == 4: return I("s_nop 3")
    if OPT.get('x_t45') and t == 4 and dt >= 4: return I("s_nop 3")
    return mfma(vr(qacc(dt, t)), ar(abuf(dt)), vr(bbuf(t)), vr(qacc(dt, t)))

def half_group(kind, j):
    if kind == 'K':
        pre = II(f"s_add_u32 m0, {S_MK}, {kphys(j)}", f"s_add_u32 s51, {S_TQ}, {j*8192}")
    else:
        pre = II(f"s_add_u32 m0, {S_MV}, {vphys(j)}", f"s_add_u32 s51, {S_TQ}, {j*8192}")
    g = kv_group(kind, None, "s51")
    return [(pre, g[0])] + [([], x) for x in g[1:]]

def put_dmas(S, seq, gaps):
    prev = -1
    for e, g in zip(seq, gaps):
        if e[0]:
            assert g - 1 > prev or prev < 0, (g, prev)
            for p in e[0]: S.put(g - 1, p)
        S.put(g, e[1])
        if len(e) > 2:
            for p in e[2]: S.put(g + 1, p)
        prev = g
    assert len(seq) <= len(gaps)

QTAIL = (4, 5, 6, 7)
def q_tail(): return [q_mfma(dt, t) for t in range(4) for dt in QTAIL]
SRD_T = "s[96:99]"; V_T = [10, 11, 12, 13]; S_TM, S_TS = "s35", "s36"
V_TB2 = [252, 253, 254, 255]
V_TB = [244, 245, 246, 247]
DUMMY = 151552
def burst_list():
    g = [dma(V_TB[n], SRD_T, S_TS, n * 1024, OPT['kvnt']) for n in range(4)]
    return [([I(f"s_mov_b32 m0, {S_TM}")], g[0])] + [([], x) for x in g[1:]]

def q_body(ks, with_dma, burst=False, extra_dma=None, wait=None):
    slot = ks & 3
    ms = q_tail() + [q_mfma(dt, t) for t in range(5) for dt in range(4)]
    S = Sched(ms)
    a = lambda dt, h: wq_read(dt, h, slot)
    xr = lambda t: x_read(t, slot)
    plan = {0: a(0,0), 1: a(0,1), 2: a(1,0), 3: a(1,1), 4: xr(0), 5: a(2,0), 7: a(2,1), 8: xr(1), 9: a(3,0), 11: a(3,1),
            12: xr(2), 13: xr(4), 16: xr(3), 17: a(4,0), 19: a(4,1), 20: a(5,0), 21: a(5,1), 23: a(6,0), 24: a(6,1), 25: a(7,0), 27: a(7,1)}
    for g, ins in plan.items(): S.put(g, ins)
    if with_dma:
        put_dmas(S, stage_dma_list((ks + 3) & 3), [6, 10, 14, 18, 22, 26, 29])
        w = stage_advance_w(); x = stage_advance_x()
        S.put(19, w[0]); S.put(20, w[1]); S.put(30, x[0]); S.put(31, x[1])
    if burst:
        put_dmas(S, burst_list(), [32, 33, 34, 35]) if False else None
        put_dmas(S, burst_list(), [15, 28, 31, 33])  if False else None
    if extra_dma:
        put_dmas(S, extra_dma, [6, 10, 14, 18, 22, 26, 30, 32][:len(extra_dma)])
    return S

def q_finish(S, wait, wg=33):
    S.put(wg, tr_mark(), f"s_waitcnt vmcnt({wait}) lgkmcnt(0)", tr_commit())
    S.put(wg + 1, "s_barrier")
    seq, pend = lgkm_waits(S.flat())
    assert not pend
    if OPT['verbose']: print(S.report("q_body"))
    return seq

def tr_mark():
    return [Raw("s_memtime s[100:101]")] if OPT.get('trace') else []
def tr_commit():
    return [Raw("s_mov_b32 s95, m0\n  s_mov_b32 m0, s94\n  s_nop 0\n  v_writelane_b32 v0, s100, m0\n  s_mov_b32 m0, s95\n  s_add_u32 s94, s94, 1")] if OPT.get('trace') else []
def tr_dump():
    if not OPT.get('trace'): return []
    return II("s_add_u32 s66, s58, 0x9000000", "s_addc_u32 s67, s59, 0", "s_lshl_b32 s50, s2, 2", f"s_add_u32 s50, s50, {S_W}", "s_lshl_b32 s50, s50, 8",
              f"v_lshlrev_b32 v253, 2, {V_LANE}", "v_add_u32 v253, s50, v253", "global_store_dword v253, v0, s[66:67]")

def zero_init():
    L = II("v_mov_b32 v244, 0", "v_mov_b32 v245, 0", "v_mov_b32 v246, 0", "v_mov_b32 v247, 0", "s_nop 1")
    for r in range(RB, RB + 160, 16): L += II(f"v_mfma_f32_32x32x16_bf16 v[{r}:{r+15}], v[244:247], v[244:247], 0")
    for r in range(0, 256, 16): L += II(f"v_mfma_f32_32x32x16_bf16 a[{r}:{r+15}], v[244:247], v[244:247], 0")
    return L

def phase_q():
    L = []; A = lambda *x: L.extend(II(*x))
    A("L_phase_q:")
    A(stage_setup_scalar(), stage_issue_straight(0))
    A(setup_b())
    A(stamp("q_issued"))
    A(zero_init())
    A(lane_consts_rest())
    A(f"s_mov_b32 {S_CNT}, 0")
    if OPT.get('trace'): A("s_mov_b32 s94, 1", "s_memtime s[100:101]", "s_waitcnt lgkmcnt(0)", "v_writelane_b32 v0, s100, 0")
    A(f"v_mov_b32 v{VT[0]}, 0x3f803f80")
    for r in range(4): A(f"v_accvgpr_write_b32 a{A_ONES + r}, v{VT[0]}")
    for t in range(5):
        for k in range(4): A(f"v_mov_b32 v{bbuf(t)+k}, 0")
    A("s_mov_b32 s96, s12", "s_mov_b32 s97, s13", "s_mov_b32 s98, s14", "s_mov_b32 s99, s15")
    for n in range(4): A(f"v_mov_b32 v{V_TB[n]}, v{V_KD[n]}")
    if OPT.get('stst'): A(stamp("consts"))
    A(stage_issue_straight(1))
    if OPT.get('stst'): A(stamp("s1_iss"))
    A("s_waitcnt vmcnt(7)")
    if OPT.get('stst'): A(stamp("s0_land"))
    A("s_barrier")
    if OPT['fused']:
        A(f"s_cmp_eq_u32 {S_SAFE}, 1", "s_cbranch_scc1 L_no_arrive")
        A(f"s_lshl_b32 s50, {S_CL}, 2", f"s_add_u32 s50, s50, {CNTOFF()}", f"s_lshl_b32 s51, {S_W}, 14", "s_add_u32 s50, s50, s51",
          f"v_lshlrev_b32 v46, 8, {V_LANE}", "v_add_u32 v46, s50, v46", "v_mov_b32 v47, 1",
          f"buffer_atomic_add v47, v46, {SRD_D}, 0 offen sc1")
        A("L_no_arrive:")
    A(stage_issue_straight(2))
    if OPT.get('stst'): A(stamp("s2_iss"))
    A(f"s_add_u32 {S_TM}, {S_MK}, {kphys(0)}", f"s_mov_b32 {S_TS}, {S_TQ}")
    A(stamp("q_start"))
    l2 = OPT['l2pf']
    if l2:
        A(f"s_add_u32 s37, {S_TQ}, {4*8192}", "s_mov_b32 s92, s12", "s_mov_b32 s93, s13", "s_mov_b32 s94, s14", "s_mov_b32 s95, s15",
          "s_mov_b64 vcc, -1")
    bodies = []
    QOOL = []
    for k in range(4):
        S = q_body(k, True)
        if k == 1:
            put_dmas(S, burst_list(), [32, 33, 34, 35])
        if k == 3 and l2:
            g = [dma(V_OR, "s[92:95]", "s37", n * 1024, False) for n in range(4)]
            put_dmas(S, [([I(f"s_mov_b32 m0, {DUMMY}")], g[0])] + [([], x) for x in g[1:]], [32, 33, 34, 35])
        if l2:
            n_steady, n_first = [(18, 14), (22, 18), (18, 18), (22, 22)][k]
        else:
            n_steady = n_first = 14 if k == 0 else 18
        if OPT.get('b0st') and k == 0:
            for nm, g in (("g5", 5), ("g6", 7), ("g15", 15), ("g20", 20), ("g30", 31)):
                S.put(g, Raw(f"s_cmp_eq_u32 {S_CNT}, 0\n  s_cbranch_scc0 L_b0_{nm}\n  " + "\n  ".join(x.txt for x in stamp(nm)) + f"\nL_b0_{nm}:"))
        late = (k == 1) or (k == 3 and l2)
        w = tr_mark() + II(f"s_waitcnt vmcnt({n_steady}) lgkmcnt(0)")
        if n_first != n_steady:
            w += II(f"s_cbranch_vccnz L_q_first{k}", f"L_q_back{k}:")
            QOOL += II(f"L_q_first{k}:", f"s_waitcnt vmcnt({n_first})", f"s_branch L_q_back{k}")
        w += tr_commit()
        if late:
            seq, pend = lgkm_waits(S.flat())
            seq += w + II("s_barrier")
        else:
            S.put(33, w); S.put(34, "s_barrier")
            seq, pend = lgkm_waits(S.flat())
            assert not pend
        if OPT['verbose']: print(S.report("q_body"))
        bodies.append(seq)
    hist = bodies[3][-24:]
    A(".p2align 6", "L_q_loop:")
    for bi, b in enumerate(bodies):
        b2, n = hazards(b, history=hist); L.extend(b2); hist = b2[-24:]
        if OPT.get('stst') and bi < 2: A(f"s_cmp_eq_u32 {S_CNT}, 0", f"s_cbranch_scc0 L_nost{bi}", stamp(f"body{bi}"), f"L_nost{bi}:")
    A(f"s_add_u32 {S_TM}, {S_TM}, 16384", f"s_add_u32 {S_TS}, {S_TS}, 8192", f"s_add_u32 {S_CNT}, {S_CNT}, 1")
    if l2:
        A("s_mov_b64 vcc, 0", f"s_cmp_eq_u32 {S_CNT}, 1", "s_cbranch_scc1 L_q_to1", "L_q_to1_done:")
    A(f"s_cmp_eq_u32 {S_CNT}, 2", "s_cbranch_scc1 L_q_tov", "L_q_tov_done:",
      f"s_cmp_lt_u32 {S_CNT}, 3", "s_cbranch_scc1 L_q_loop")
    OOL = II("L_q_tov:", "s_mov_b32 s96, s16", "s_mov_b32 s97, s17", f"s_add_u32 {S_TM}, {S_MV}, {vphys(0)}", f"s_mov_b32 {S_TS}, {S_TQ}")
    if l2: OOL += II("s_mov_b32 s92, s12", "s_mov_b32 s93, s13", f"s_add_u32 s37, {S_TQ}, {5*8192}")
    for n in range(4): OOL += II(f"v_mov_b32 v{V_TB[n]}, v{V_VD[n & 1]}")
    OOL += II("s_branch L_q_tov_done")
    if l2: OOL += II("L_q_to1:", "s_mov_b32 s92, s16", "s_mov_b32 s93, s17", f"s_add_u32 s37, {S_TQ}, {3*8192}", "s_branch L_q_to1_done")
    OOL += QOOL
    b, n = hazards(q_finish(q_body(12, True), 18 if l2 else 14), history=hist); L.extend(b)
    b, n = hazards(q_finish(q_body(13, False, extra_dma=half_group('V', 1)), 15 if l2 else 11), history=b[-24:]); L.extend(b)
    b, n = hazards(q_finish(q_body(14, False, extra_dma=half_group('K', 2) + half_group('V', 2)), 12), history=b[-24:]); L.extend(b)
    b, n = hazards(q_finish(q_body(15, False), 12), history=b[-24:]); L.extend(b)
    A("s_branch L_q_after_ool")
    L.extend(OOL)
    A("L_q_after_ool:")
    A(stamp("q_loop_done"))
    return L

def q_tiles(s): return range(5) if s < 2 else range(4)
def q_scale(ss):
    return [I(f"v_pk_mul_f32 {vr(grp(t,s)+2*k,2)}, {vr(grp(t,s)+2*k,2)}, {vr(V_C0,2)}") for s in ss for t in q_tiles(s) for k in range(4)]
def q_cvt(ss):
    return [I(f"v_cvt_pk_bf16_f32 v{grp(t,s)+k}, v{grp(t,s)+2*k}, v{grp(t,s)+2*k+1}") for s in ss for t in q_tiles(s) for k in range(4)]
QX = 155648

def transition():
    L = []; A = lambda *x: L.extend(II(*x))
    A(f"s_add_u32 {S_SOFFK}, {S_TQ}, {5*8192}", f"s_add_u32 {S_SOFFV}, {S_TQ}, {4*8192}")
    A(f"v_mov_b32 v{V_C0}, {hex(f2u(SCALE))}", f"v_mov_b32 v{V_C1}, {hex(f2u(SCALE))}")
    A(f"s_lshl_b32 s50, {S_W}, 11", f"s_add_u32 s50, s50, {QX}", f"v_lshlrev_b32 v7, 4, {V_LANE}", "v_add_u32 v8, s50, v7",
      "s_xor_b32 s50, s50, 2048", "v_add_u32 v9, s50, v7")
    k3 = half_group('K', 3)
    seq = [k_read(kt, s, 0) for kt in range(2) for s in range(4)]
    sc = q_scale((0, 1))
    seq += II("s_nop 3") + sc
    S = Sched(q_tail())
    cv = q_cvt((0, 1))
    sh = lambda c: any(f"v{grp(4,s)+k}," in c.txt.split()[1] + "," for s in (0, 1) for k in range(4))
    cv = [c for c in cv if sh(c)] + [c for c in cv if not sh(c)]
    S.spread(cv, [min(i * 2 // 5, 15) for i in range(40)])
    S.put(5, f"ds_write_b128 v8, {vr(grp(4,0))}"); S.put(7, f"ds_write_b128 v8, {vr(grp(4,1))} offset:1024")
    seq += S.flat()
    seq += II("s_waitcnt lgkmcnt(0)", "s_barrier", f"ds_read_b128 {vr(grp(4,2))}, v9", f"ds_read_b128 {vr(grp(4,3))}, v9 offset:1024")
    sc = q_scale((2, 3))
    seq += II("s_nop 3") + k3[0][0] + sc[:8] + [k3[0][1]] + sc[8:16] + [k3[1][1]] + sc[16:24] + [k3[2][1]] + sc[24:] + [k3[3][1]]
    qk = lambda kt, ss, c: [qk_mfma(kt, s, t, c) for s in ss for t in range(5)]
    S = Sched(qk(0, (0, 1), lambda t: "0") + qk(0, (2, 3), lambda t: "0"))
    S.spread(q_cvt((2, 3)), [min(i * 5 // 16, 9) for i in range(32)])
    S.spread([f"v_mov_b32 v{Preg(1,t)+k}, 0" for t in range(5) for k in range(4)], [10 + i // 2 for i in range(20)])
    seq += S.flat()
    seq += straight(half_group('V', 3))
    seq, _ = lgkm_waits(seq, final_zero=True)
    seq, n = hazards(seq); L.extend(seq)
    A(stamp("qk0_done"))
    A(f"s_cmp_eq_u32 {S_SAFE}, 1", "s_cbranch_scc1 L_safe_max")
    T = [2, 3, 4, 5, 6]
    U = [7, 8, 9, 10, 11]
    E = II("s_nop 5")
    for t in range(5): E += II(f"v_max3_f32 v{T[t]}, v{Sreg(0,t)}, v{Sreg(0,t)+1}, v{Sreg(0,t)+2}")
    for t in range(5): E += II(f"v_max_f32 v{T[t]}, v{T[t]}, v{Sreg(0,t)+3}")
    E += row_max_finish(T, U)
    S = Sched(qk(1, range(4), lambda t: vr(cinit(t))))
    sub = [f"v_add_f32 v{Sreg(0,t)+k}, v{Sreg(0,t)+k}, v{cinit(t)}" for t in range(5) for k in range(4)]
    ex = [f"v_exp_f32 v{Sreg(0,t)+k}, v{Sreg(0,t)+k}" for t in range(5) for k in range(4)]
    S.spread(sub, [i // 2 for i in range(20)])
    S.spread(ex, [min(2 + i, 19) for i in range(20)])
    E += S.flat()
    E += II("s_barrier")
    E += II("s_nop 3") + exps(1)
    E, n = hazards(E, history=L[-24:]); L.extend(E)
    A("L_max_done:")
    A(straight(half_group('K', 4)))
    return L

def row_max_finish(T, U):
    E = []
    for sw in ("v_permlane32_swap_b32", "v_permlane16_swap_b32"):
        for t in range(5): E += II(f"v_mov_b32 v{U[t]}, v{T[t]}")
        for t in range(5): E += II(f"{sw} v{T[t]}, v{U[t]}")
        for t in range(5): E += II(f"v_max_f32 v{T[t]}, v{T[t]}, v{U[t]}")
    for t in range(5):
        for k in range(4): E += II(f"v_sub_f32 v{cinit(t)+k}, 0, v{T[t]}")
    return E

def safe_paths():
    L = []; A = lambda *x: L.extend(II(*x))
    T = [2, 3, 4, 5, 6]; U = [7, 8, 9, 10, 11]
    ab = [(Sreg(0, t), Sreg(1, t)) for t in range(5)]
    A("L_safe_max:")
    for t in range(5): A(f"v_mov_b32 v{T[t]}, 0xff800000")
    A(f"s_mov_b32 {S_CNT}, 0")
    A("L_safe_loop:")
    A("s_waitcnt vmcnt(0) lgkmcnt(0)", "s_barrier")
    A(f"s_and_b32 s50, {S_CNT}, 15", "s_lshl_b32 s50, s50, 13", f"s_add_u32 s51, s50, {S_TQ}", f"s_add_u32 m0, {S_MK}, {kphys(0)}", "s_nop 0")
    A(kv_group('K', None, "s51"))
    A("s_waitcnt vmcnt(0)", "s_barrier")
    A([k_read(kt, s, 0) for kt in range(2) for s in range(4)], "s_waitcnt lgkmcnt(0)")
    A(f"s_cmp_eq_u32 {S_CNT}, 16", "s_cbranch_scc1 L_safe_last")
    A([qk_mfma(kt, s, t, lambda t: "0") for kt in range(2) for s in range(4) for t in range(5)], "s_nop 7", "s_nop 7")
    for t, (a, b) in enumerate(ab):
        A(f"v_max3_f32 v{T[t]}, v{T[t]}, v{a}, v{a+1}", f"v_max3_f32 v{T[t]}, v{T[t]}, v{a+2}, v{a+3}",
          f"v_max3_f32 v{T[t]}, v{T[t]}, v{b}, v{b+1}", f"v_max3_f32 v{T[t]}, v{T[t]}, v{b+2}, v{b+3}")
    A(f"s_add_u32 {S_CNT}, {S_CNT}, 1", f"s_cmp_lt_u32 {S_CNT}, 16", "s_cbranch_scc1 L_safe_loop")
    E, n = hazards(II("s_nop 3") + row_max_finish(T, U)); L.extend(E)
    A("s_branch L_safe_loop")
    A("L_safe_last:", "s_nop 3")
    A([qk_mfma(kt, s, t, lambda t: vr(cinit(t))) for kt in range(2) for s in range(4) for t in range(5)], "s_nop 7", "s_nop 7")
    A("s_barrier")
    for t, (a, b) in enumerate(ab):
        for base in (a, b):
            for k in range(4): A(f"v_exp_f32 v{base+k}, v{base+k}")
    A("s_nop 1", "s_branch L_max_done")
    if OPT['fused']:
        A("L_cnt_spin:", f"s_mov_b32 s53, {SPIN}", "L_cnt_spin_loop:", "s_sleep 2",
          f"buffer_load_dword v15, v14, {SRD_D}, 0 offen sc1", "s_waitcnt vmcnt(0)", "v_readfirstlane_b32 s52, v15", "s_nop 3",
          "s_cmp_ge_u32 s52, 16", "s_cbranch_scc1 L_cnt_ok", "s_sub_u32 s53, s53, 1", "s_cmp_lg_u32 s53, 0", "s_cbranch_scc1 L_cnt_spin_loop", "s_branch L_cnt_ok")
    A("L_restart:", f"s_mov_b32 {S_SAFE}, 1", "s_waitcnt vmcnt(0) lgkmcnt(0)", "s_barrier")
    A(lane_consts_q())
    A("s_branch L_phase_q")
    return L

def k_read(kt, s, slotk):
    off = kphys(slotk) + kt * 4096
    return I(f"ds_read_b128 {ar(kbuf(kt, s))}, v{V_KR[s]}" + (f" offset:{off}" if off else ""))
def v_read(dt, h, slotv):
    off = vphys(slotv) + h * 4096
    return I(f"ds_read_b64_tr_b16 {ar(abuf(dt) + 2*h, 2)}, v{V_VR[dt]}" + (f" offset:{off}" if off else ""))
def qk_mfma(kt, s, t, first_c):
    c = first_c(t) if s == 0 else vr(Sreg(kt, t))
    return mfma(vr(Sreg(kt, t)), ar(kbuf(kt, s)), vr(qfrag(t, s)), c)
def pv_mfma(dt, t, par):
    return mfma(ar(oacc(dt, t)), ar(abuf(dt)), vr(Preg(par, t)), ar(oacc(dt, t)))
def rs_mfma(t, par):
    return mfma(ar(lacc(t)), ar(A_ONES), vr(Preg(par, t)), ar(lacc(t)))
def cvts(par):
    out = []
    for kt in range(2):
        for t in range(5):
            s = Sreg(kt, t); p = Preg(par, t) + 2 * kt
            out.append(I(f"v_cvt_pk_bf16_f32 v{p}, v{s}, v{s+1}"))
            out.append(I(f"v_cvt_pk_bf16_f32 v{p+1}, v{s+2}, v{s+3}"))
    return out
def exps(kt):
    return [I(f"v_exp_f32 v{Sreg(kt,t)+i}, v{Sreg(kt,t)+i}") for t in range(5) for i in range(4)]

def att_dma(j, dyn=False):
    seq = []
    if j == 0 or j > 12: return seq
    if True:
        pre = II(f"s_add_u32 m0, {S_MK}, {kphys(j + 4)}")
        g = kv_group('K', None, S_SOFFK)
        seq += [(pre, g[0])] + [([], x) for x in g[1:]]
        seq[-1] = (seq[-1][0], seq[-1][1], II(f"s_add_u32 {S_SOFFK}, {S_SOFFK}, 8192"))
    if j + 3 <= 15:
        pre = II(f"s_add_u32 m0, {S_MV}, {vphys(j + 3)}")
        g = kv_group('V', None, S_SOFFV)
        s2 = [(pre, g[0])] + [([], x) for x in g[1:]]
        s2[-1] = (s2[-1][0], s2[-1][1], II(f"s_add_u32 {S_SOFFV}, {S_SOFFV}, 8192"))
        seq += s2
    return seq

def wo_dma(ks, slot_base_imm):
    seq = []
    for gI in range(2):
        pre = II(f"s_lshl_b32 s50, {S_W}, 13", f"s_add_u32 m0, s50, {slot_base_imm + gI*4096}", f"s_mov_b32 s51, {ks*32768 + gI*16384}")
        for n in range(4):
            seq.append((pre if n == 0 else [], dma(V_WOD[n], SRD_WO, "s51", n * 1024, OPT["wont"])))
    return seq

def att_body(j, vmwait, extra_dma=None):
    par_old, par_new = (j - 1) & 1, j & 1
    ms = [pv_mfma(dt, t, par_old) for dt in (5, 6, 7) for t in range(5)] + [rs_mfma(t, par_old) for t in range(5)]
    ms += [qk_mfma(kt, s, t, lambda t: vr(cinit(t))) for kt in range(2) for s in range(4) for t in range(5)]
    ms += [pv_mfma(dt, t, par_new) for dt in range(5) for t in range(5)]
    S = Sched(ms)
    cv = cvts(par_new)
    S.spread(cv, [1, 1, 3, 3, 6, 6, 8, 8, 11, 11, 13, 13, 16, 16, 18, 18, 21, 21, 23, 23])
    S.spread([k_read(kt, s, j + 1) for kt in range(2) for s in range(4)], [0, 2, 5, 7, 10, 12, 15, 17])
    vr_ = [v_read(dt, h, j) for dt in range(8) for h in range(2)]
    S.spread(vr_, [20, 22, 25, 26, 27, 28, 30, 31, 32, 33, 35, 36, 37, 38, 40, 61])
    d = att_dma(j) + (extra_dma or [])
    put_dmas(S, d, [4, 9, 14, 19, 24, 29, 34, 39])
    S.spread(exps(0), list(range(41, 61)))
    S.spread(exps(1), list(range(62, 82)))
    seq = S.flat()
    seq, pend = lgkm_waits(seq)
    seq += tr_mark() + II(f"s_waitcnt vmcnt({vmwait}) lgkmcnt(0)") + tr_commit() + II("s_barrier")
    if OPT['verbose']: print(S.report(f"att_body {j}"))
    return seq

WO1 = [192, 200, 208, 216, 224, 228, 232, 236]
def wofrag(ks, m, n=4, off=0):
    if ks == 0: return ar(216 + 4 * m + off, n)
    if ks == 1: return vr(WO1[m] + off, n)
    return ar((ks - 2) * 32 + 4 * m + off, n)
def wo_read(ks, m, h):
    cp, hf = m >> 1, m & 1
    off = (32768 if (ks & 1) == 0 else 0) + hf * 8 + h * 4096
    return I(f"ds_read_b64_tr_b16 {wofrag(ks, m, 2, 2*h)}, v{V_WOR[cp]}" + (f" offset:{off}" if off else ""))

def wo_prefetch(shift=0):
    n = OPT['pfw']
    L = II(f"s_add_u32 s50, {S_B}, {shift}", "s_and_b32 s50, s50, 7", "s_lshl_b32 s50, s50, 15", f"s_lshl_b32 s51, {S_W}, 13", "s_add_u32 s50, s50, s51")
    nt = " nt" if OPT['pfnt'] else ""
    if n == 8:
        L += II(f"v_lshlrev_b32 v46, 4, {V_LANE}")
        for i in range(8):
            L += II(f"s_add_u32 s51, s50, {i*1024}", f"buffer_load_dwordx4 v[252:255], v46, s[84:87], s51 offen{nt}")
    else:
        sh = {1: 7, 2: 6, 4: 5}[n]
        L += II(f"v_lshlrev_b32 v46, {sh}, {V_LANE}")
        for i in range(n):
            L += II(f"s_add_u32 s51, s50, {i * (64 << sh)}", f"buffer_load_dword v47, v46, s[84:87], s51 offen{nt}")
    return L

ATT_OOL = []
def attention():
    L = []; A = lambda *x: L.extend(II(*x))
    L += transition()
    A(stamp("att_start"))
    A(f"s_mov_b32 {S_CNT}, 0")
    b0, n = hazards(att_body(0, 16), history=L[-24:]); L.extend(b0)
    bodies = [att_body(j, 16) for j in range(1, 5)]
    hist = bodies[3][-24:]
    A(".p2align 6", "L_att_loop:")
    OOLA = []
    for i, b in enumerate(bodies):
        if i == 3:
            A(f"s_cmp_eq_u32 {S_CNT}, 2", "s_cbranch_scc1 L_att_nok", "L_att_nok_done:")
            OOLA += II("L_att_nok:") + [I(f"v_add_u32 v{V_KD[n]}, 0x40000000, v{V_KD[n]}") for n in range(4)] + II("s_branch L_att_nok_done")
        b2, n = hazards(b, history=hist); L.extend(b2); hist = b2[-24:]
    if 0 <= OPT['pf'] < 3:
        A(f"s_cmp_eq_u32 {S_CNT}, {OPT['pf']}", "s_cbranch_scc0 L_att_nopf", wo_prefetch(), (wo_prefetch(4) if OPT.get('pfdup') else []), "L_att_nopf:")
    A(f"s_add_u32 {S_CNT}, {S_CNT}, 1", f"s_cmp_lt_u32 {S_CNT}, 3", "s_cbranch_scc1 L_att_loop")
    ATT_OOL.clear(); ATT_OOL.extend(OOLA)
    b, n = hazards(att_body(13, 16, extra_dma=wo_dma(0, WOA)), history=hist); L.extend(b); hist = b[-24:]
    if OPT.get('pf2nd'): A(wo_prefetch(4))
    b, n = hazards(att_body(14, 16, extra_dma=wo_dma(1, WOB)), history=hist); L.extend(b); hist = b[-24:]
    A(stamp("att_loop_done"))
    ms = [pv_mfma(dt, t, 0) for dt in (5, 6, 7) for t in range(5)] + [rs_mfma(t, 0) for t in range(5)]
    ms += [pv_mfma(dt, t, 1) for dt in range(8) for t in range(5)] + [rs_mfma(t, 1) for t in range(5)]
    S = Sched(ms)
    S.spread(cvts(1), list(range(0, 20)))
    S.spread([v_read(dt, h, 15) for dt in range(5) for h in range(2)], list(range(0, 10)))
    S.spread([v_read(dt, h, 15) for dt in (5, 6, 7) for h in range(2)], list(range(15, 21)))
    S.put(20, "s_waitcnt vmcnt(8)")
    S.spread([wo_read(0, m, h) for m in range(8) for h in range(2)], [21 + i // 2 for i in range(16)])
    S.put(28, "s_waitcnt vmcnt(0)")
    S.spread([wo_read(1, m, h) for m in range(8) for h in range(2)], [29 + i // 2 for i in range(16)])
    S.put(38, "s_waitcnt lgkmcnt(0)")
    if OPT['fused']:
        S.put(36, f"s_lshl_b32 s50, {S_CL}, 2", f"s_add_u32 s50, s50, {CNTOFF()}")
        S.spread([f"v_lshlrev_b32 v14, 8, {V_LANE}", "v_add_u32 v14, s50, v14"], [37, 37])
        S.put(38, f"buffer_load_dword v15, v14, {SRD_D}, 0 offen sc1")
    put_dmas(S, wo_dma(2, WOA), [41, 44, 47, 50, 54, 57, 60, 63])
    seq, pend = lgkm_waits(S.flat(), final_zero=True)
    seq, n = hazards(seq, history=hist); L.extend(seq)
    A("s_barrier")
    A("s_nop 3")
    A(stamp("att_done"))
    return L

def wo_dma_t(ks):
    d = wo_dma(ks, WOA if (ks & 1) == 0 else WOB)
    for e in d: e[1].tag = f"wo{ks}"
    return d
def wo_reads(ks): return [wo_read(ks, m, h) for m in range(8) for h in range(2)]

LFLAG = 90112

def o_epilogue():
    E = []
    tl = VT[0]; rc = VT[2]
    d3, d4, d5 = wo_dma_t(3), wo_dma_t(4), wo_dma_t(5)
    E += II(f"s_lshl_b32 s51, {S_QH}, 11", f"v_subrev_u32 v{V_OWB}, s51, v{V_OW}", f"v_add_u32 v{V_OW}, s51, v{V_OW}",
            f"s_lshl_b32 s50, {S_U}, 12", f"s_add_u32 s50, s50, 32768", "s_add_u32 s50, s50, s51", f"v_add_u32 v{V_OW4}, s50, v{V_OR}")
    def emit_dma(e):
        return e[0] + II("s_nop 0") * (1 if e[0] else 0) + [e[1]]
    nfr = 0
    for t in range(5):
        E += II(f"v_accvgpr_read_b32 v{tl}, a{lacc(t)}", f"v_rcp_f32 v{rc}, v{tl}", "s_nop 0", f"v_mov_b32 v{rc+1}, v{rc}")
        if t == 0: E += II(f"v_mov_b32 v{VT[1]}, v{tl}")
        else: E += II(f"v_max_f32 v{VT[1]}, v{VT[1]}, v{tl}")
        if t == 4:
            E += II(f"v_cmp_nge_f32 vcc, {hex(OPT['lthr'] or LTHR)}, v{VT[1]}", f"s_lshl_b32 s50, {S_W}, 2", f"s_add_u32 s50, s50, {LFLAG}", f"v_mov_b32 v52, s50",
                    "s_cmp_lg_u64 vcc, 0", "s_cselect_b32 s51, 1, 0", "v_mov_b32 v53, s51", "ds_write_b32 v52, v53")
        for ks in range(4 if t < 4 else 2):
            mid = []
            if nfr < 8: mid += emit_dma(d3[nfr])
            if 8 <= nfr < 16: mid += emit_dma(d4[nfr - 8])
            if nfr >= 16:
                for i in range(4): mid += emit_dma(d5[4 * (nfr - 16) + i])
            if OPT.get('x_oenodma'): mid = [x for x in mid if x.kind == 'dma'][:0] + [x for x in mid if x.kind != 'dma']
            rd = []
            cut = {0: (0, 6), 1: (6, 11), 2: (11, 16)}
            if 4 <= nfr < 7:
                if nfr == 4:
                    rd += [VmNeed("wo2")]
                    if OPT['fused']:
                        rd += II("v_readfirstlane_b32 s52, v15", "s_nop 3", "s_cmp_lt_u32 s52, 16", "s_cbranch_scc1 L_cnt_spin", "L_cnt_ok:")
                a_, b_ = cut[nfr - 4]; rd += wo_reads(2)[a_:b_]
            if 12 <= nfr < 15:
                if nfr == 12: rd += [VmNeed("wo3")]
                a_, b_ = cut[nfr - 12]; rd += wo_reads(3)[a_:b_]
            if OPT.get('oe_nord'): rd = [x for x in rd if x.kind != 'dsr']
            if OPT.get('oe_nowait'): rd = [x for x in rd if not isinstance(x, VmNeed)]
            if OPT.get('oe_nodma'): mid = []; rd = [x for x in rd if not (isinstance(x, VmNeed) and x.tag == 'wo3')]
            if nfr in (8, 16): E += II("s_waitcnt lgkmcnt(0)")
            E += rd
            for h in range(2):
                for k in range(4):
                    E += II(f"v_accvgpr_read_b32 v{52 + 4*h + k}, a{oacc(2*ks + h, t) + k}")
            E += mid
            for k in range(4): E += II(f"v_pk_mul_f32 {vr(52+2*k,2)}, {vr(52+2*k,2)}, {vr(rc,2)}")
            for k in range(4): E += II(f"v_cvt_pk_bf16_f32 v{60+k}, v{52+2*k}, v{53+2*k}")
            E += II(f"ds_write_b128 v{V_OW if ks < 2 else V_OWB}, {vr(60)} offset:{(t*8+ks)*1024}" if t < 4 else f"ds_write_b128 v{V_OW4}, {vr(60)} offset:{ks*1024}")
            nfr += 1
        if OPT['stamps'] and OPT.get('oest'): E += [Raw("\n  ".join(x.txt for x in stamp(f"oe{t}")))] + II("s_waitcnt lgkmcnt(0)")
    E, q = vm_waits(E, ["cnt"] + ["wo2"] * 8)
    E, pend = lgkm_waits(E, final_zero=True)
    E, n = hazards(E)
    return E + II("s_barrier"), q

def o_read(dst, t, ks):
    if t < 8: return I(f"ds_read_b128 {vr(dst)}, v{V_OR} offset:{(t*8+ks)*1024}")
    return I(f"ds_read_b128 {vr(dst)}, v{V_OR8} offset:{ks*1024}")
V_PSC = [196, 197, 198, 199]
V_OWNA = 204; S_OWN = "s49"
OWNB = 73728
OWN_OOL = []
def pstore(src, t, cp):
    v = V_PSC[cp] if OPT['own'] else V_PS
    return (II(f"s_add_u32 s51, {S_SOFFP}, {(cp*9 + t)*16384}"),
            I(f"buffer_store_dwordx4 {vr(src)}, v{v}, {SRD_P}, s51 offen {OPT['pst']}"))
def own_hook(src, t, cp):
    if not OPT['own']: return []
    OWN_OOL.extend(II(f"L_own_{t}_{cp}:", f"ds_write_b128 v{V_OWNA}, {vr(src)} offset:{t*1024}", f"s_branch L_ownb_{t}_{cp}"))
    return II(f"s_cmp_eq_u32 {S_OWN}, {cp}", f"s_cbranch_scc1 L_own_{t}_{cp}", f"L_ownb_{t}_{cp}:")

NP1 = 2
def acc1(t, m): return 64 + (t * 8 + m) * 4
def acc2(t, m): return 128 + ((t & 1) * 8 + m) * 4
def bfr1(par, t): return 2 + (par * 4 + t) * 4
STG = [48, 52, 56, 60]

def tile_epilogue(accf, t, k0):
    out = []
    for cp in range(4):
        a0, a1 = accf(t, 2*cp), accf(t, 2*cp + 1)
        d = STG[(k0 + cp) & 3]
        cv = II(f"v_cvt_pk_bf16_f32 v{d}, v{a0}, v{a0+1}", f"v_cvt_pk_bf16_f32 v{d+1}, v{a0+2}, v{a0+3}",
                f"v_cvt_pk_bf16_f32 v{d+2}, v{a1}, v{a1+1}", f"v_cvt_pk_bf16_f32 v{d+3}, v{a1+2}, v{a1+3}")
        pre, st = pstore(d, t, cp)
        if OPT.get('x_nost') and not (t == 8 and cp == 3): st = I("s_nop 0")
        st.tag = f"st{t}"
        out.append((cv, (pre, st), own_hook(d, t, cp)))
    return out

def out_proj(queue):
    L = []; A = lambda *x: L.extend(II(*x))
    A(f"s_mul_i32 {S_SOFFP}, {S_W}, {4*9*16384}")
    OWN_OOL.clear()
    if OPT['own']:
        A(f"s_lshr_b32 s50, {S_HP}, 2", f"s_and_b32 s51, {S_HP}, 3", f"s_cmp_eq_u32 s50, {S_W}", f"s_cselect_b32 {S_OWN}, s51, 7")
        for cp in range(4):
            A(f"s_cmp_eq_u32 {S_OWN}, {cp}", "s_cselect_b32 s50, 0x40000000, 0", f"v_or_b32 v{V_PSC[cp]}, s50, v{V_PS}")
        A(f"v_add_u32 v{V_OWNA}, {OWNB}, v{V_OR}")
    NP = OPT['np1']
    G = 8 * NP
    ms = [mfma(vr(acc1(t, m)), wofrag(ks, m), vr(bfr1(ks & 1, t)), ("0" if ks == 0 else vr(acc1(t, m)))) for ks in range(8) for m in range(8) for t in range(NP)]
    bt = lambda ks: 2 + 4 * ks
    P1 = len(ms)
    for t in range(NP, 9):
        ms += [mfma(vr(acc2(t, m)), wofrag(ks, m), vr(bt(ks)), ("0" if ks == 0 else vr(acc2(t, m)))) for ks in range(8) for m in range(8)]
    S = Sched(ms)
    def reads(ks, g0): S.spread(wo_reads(ks), [g0 + i // 2 for i in range(16)])
    def dmas(ks, g0, step=4): put_dmas(S, wo_dma_t(ks), [g0 + step * i for i in range(8)])
    def put_free(ins, g0):
        g = g0
        while S.cost(g) + COST[ins.kind] > 8: g += 1
        S.put(g, ins); return g
    def epi(t, accf, g0, stride):
        for cp, (cv, (spre, st), hook) in enumerate(tile_epilogue(accf, t, 0)):
            g = g0 + cp * stride
            S.spread(cv, [g, g, g + 1, g + 1])
            for p in spre: S.put(g + 1, p)
            for p in hook: S.put(g + 2, p)
            S.put(g + 2, st)
    if NP == 2:
        pre = [o_read(bfr1(0, t), t, 0) for t in range(NP)]
        S.put(0, VmNeed("wo4")); reads(4, 0)
        S.put(9, "s_waitcnt lgkmcnt(0)"); dmas(6, 11, 3)
        S.put(33, VmNeed("wo5")); reads(5, 33)
        S.put(42, "s_waitcnt lgkmcnt(0)"); dmas(7, 44, 3)
        S.put(84, VmNeed("wo6")); reads(6, 84)
        S.put(100, VmNeed("wo7")); reads(7, 100)
        for ks in range(7):
            g = ks * G + (1 if ks else 8)
            for t in range(NP):
                g = put_free(o_read(bfr1((ks + 1) & 1, t), t, ks + 1), g) + 1
            assert g <= (ks + 1) * G - 3, (ks, g)
        g = 6 * G + 4
        for ks in (2, 3, 6, 7): g = put_free(o_read(bt(ks), NP, ks), g) + 1
        g = 7 * G + 1
        for ks in (0, 1): g = put_free(o_read(bt(ks), NP, ks), g) + 1
        base = P1
        for ks in (4, 5): put_free(o_read(bt(ks), NP, ks), base + 1)
        epi(0, acc1, base + 4, 7); epi(1, acc1, base + 32, 7)
    else:
        assert NP == 0
        pre = [o_read(bt(ks), 0, ks) for ks in range(8)]
        S.put(0, VmNeed("wo4")); reads(4, 0)
        S.put(9, "s_waitcnt lgkmcnt(0)"); dmas(6, 11, 2)
        S.put(10, VmNeed("wo5"));
        S.spread(wo_reads(5), [12, 12, 14, 14, 16, 16, 18, 18, 20, 20, 22, 22, 24, 24, 26, 26])
        S.put(28, "s_waitcnt lgkmcnt(0)"); dmas(7, 30, 2)
        S.put(46, VmNeed("wo6")); S.spread(wo_reads(6), [46, 46, 46, 46] + [47 + i // 4 for i in range(12)])
        S.put(54, VmNeed("wo7")); S.spread(wo_reads(7), [54, 54, 54, 54] + [55 + i // 12 for i in range(12)])
    for t in range(NP, 9):
        b = P1 + (t - NP) * 64
        if t > NP: epi(t - 1, acc2, b + 6, 12)
        if t < 8:
            for ks in range(8):
                g = b + 8 * ks + 8
                if g >= b + 64: g = b + 64 + 1
                put_free(o_read(bt(ks), t + 1, ks), g)
    if OPT['fused']:
        g0 = P1 + (3 - NP) * 64 + 49
        S.put(g0, f"s_lshl_b32 s50, {S_W}, 7", f"s_lshl_b32 s52, {S_HP}, 2", "s_add_u32 s50, s50, s52")
        S.spread([f"v_lshlrev_b32 v36, 13, {V_LANE}", "v_add_u32 v36, s50, v36", "v_mov_b32 v37, 1"], [g0 + 1, g0 + 1, g0 + 2])
        S.put(g0 + 3, f"s_lshr_b32 s50, {S_HP}, 2", "s_lshl_b32 s50, s50, 7")
        S.spread([f"v_lshrrev_b32 v46, 4, {V_LANE}", "v_lshlrev_b32 v46, 9, v46", f"v_and_b32 v47, 15, {V_LANE}",
                  "v_lshl_add_u32 v46, v47, 2, v46", "v_add_u32 v46, s50, v46"], [g0 + 4, g0 + 4, g0 + 5, g0 + 9, g0 + 9])
        b = P1 + (8 - NP) * 64
        fa = I(f"buffer_store_dword v37, v36, {SRD_F}, 0 offen sc1"); fa.tag = "fl"
        if OPT['early']:
            S.put(b + 40, VmNeed("st3")); S.put(b + 41, fa)
            pl = I(f"buffer_load_dword v47, v46, {SRD_F}, 0 offen sc1"); pl.tag = "poll"
            S.put(b + 60, pl)
    if OPT['stamps'] and OPT.get('opst'):
        for nm, g in (("w1", 127), ("w3", 255), ("w5", 383), ("w8", 575)):
            S.put(g, Raw("\n  ".join(x.txt for x in stamp(nm))))
            S.put(g, "s_waitcnt lgkmcnt(0)")
    pre = II(f"v_mov_b32 v56, {LFLAG}", f"ds_read_b128 {vr(52)}, v56") + pre
    pre += II("s_waitcnt lgkmcnt(0)", "v_or3_b32 v52, v52, v53, v54", "v_or_b32 v52, v52, v55", "s_nop 0", "v_readfirstlane_b32 s50, v52", "s_nop 3",
              f"s_andn2_b32 s50, s50, {S_SAFE}", "s_cmp_lg_u32 s50, 0", "s_cbranch_scc1 L_restart")
    seq = pre + S.flat()
    tail = II("s_nop 7")
    for cp, (cv, (spre, st), hook) in enumerate(tile_epilogue(acc2, 8, 0)):
        tail += cv + spre + hook + [st]
    if OPT['stamps'] and OPT.get('opst'): tail += stamp("st_iss")
    if OPT['fused']:
        fb = I(f"buffer_store_dword v37, v36, {SRD_F}, 0 offen offset:512 sc1"); fb.tag = "fl"
        fc = I(f"buffer_store_dword v37, v36, {SRD_F}, 0 offen offset:1024 sc1"); fc.tag = "fl"
        tail += [VmNeed("poll"), fb, VmNeed("st8"), fc] if OPT['early'] else [VmNeed("st8"), fa, fb, fc]
    seq, q = vm_waits(seq + tail, queue)
    seq, pend = lgkm_waits(seq)
    seq, n = hazards(seq)
    if OPT['verbose']: print(S.report("out_proj"), "nops", n)
    L += seq
    return L, q

SPIN = 1 << 22
def reduce_phase():
    L = []; A = lambda *x: L.extend(II(*x))
    DAT = lambda g, tt, k: 64 + ((g * 2 + tt) * 4 + k) * 4
    D8 = lambda k: 192 + 4 * k
    ACC = lambda g, tt: [208, 216, 224, 232, 240, 248, 2, 10][g * 2 + tt]
    A8 = 18
    T0, T1 = 26, 28
    V_POLL, V_FL, V_L16, V_OUT = 46, 47, 32, 33
    A(f"v_lshrrev_b32 v30, 4, {V_LANE}", f"v_and_b32 v31, 15, {V_LANE}", f"v_lshlrev_b32 v{V_L16}, 4, {V_LANE}",
      f"v_lshlrev_b32 v{V_OUT}, 11, v31", f"v_lshl_add_u32 v{V_OUT}, v30, 4, v{V_OUT}")
    A(f"s_mul_i32 s32, {S_B}, {144*2048}", f"s_lshl_b32 s50, {S_BR}, 10", "s_add_u32 s32, s32, s50", f"s_lshl_b32 s50, {S_HP}, 6", "s_add_u32 s32, s32, s50")
    A(f"s_mul_i32 s33, {S_HP}, {9*16384}")
    A(f"s_lshl_b32 s50, {S_W}, 14", "s_add_u32 s34, s33, s50", "s_add_u32 s35, s34, 65536",
      f"s_add_u32 s36, s33, {8*16384}", f"s_lshl_b32 s50, {S_W}, 12", "s_add_u32 s36, s36, s50",
      f"s_lshl_b32 s41, {S_W}, 2")
    A("s_mov_b32 s37, 0", "s_mov_b32 s38, 0", f"s_mov_b32 s53, {SPIN}")
    if OPT['own']:
        A(f"s_lshr_b32 s46, {S_HP}, 2", f"s_and_b32 s47, {S_HP}, 3", f"s_lshl_b32 s50, {S_W}, 10", f"s_add_u32 s50, s50, {OWNB}", f"v_add_u32 v44, s50, v{V_L16}")
        if not OPT['latebar']:
            A("s_waitcnt lgkmcnt(0)", "s_barrier", "ds_read_b128 v[36:39], v44", "ds_read_b128 v[40:43], v44 offset:4096")
    def unpack_add(acc, src, first):
        out = []
        for k in range(4):
            if first:
                out += [f"v_lshlrev_b32 v{acc+2*k}, 16, v{src+k}", f"v_and_b32 v{acc+2*k+1}, 0xffff0000, v{src+k}"]
            else:
                t = (T0, T1)[k & 1]
                out += [f"v_lshlrev_b32 v{t}, 16, v{src+k}", f"v_and_b32 v{t+1}, 0xffff0000, v{src+k}",
                        f"v_pk_add_f32 v[{acc+2*k}:{acc+2*k+1}], v[{acc+2*k}:{acc+2*k+1}], v[{t}:{t+1}]"]
        return out
    items = [(tt, g) for tt in range(2) for g in range(4)] + [(2, None)]
    if OPT['early']: A("s_branch L_red_first")
    A("L_red_loop:")
    A("s_cmp_eq_u32 s37, 0x1ff", "s_cbranch_scc1 L_red_nopoll")
    A(f"buffer_load_dword v{V_FL}, v{V_POLL}, {SRD_F}, 0 offen sc1")
    A("L_red_nopoll:", "s_waitcnt vmcnt(0)")
    A("s_andn2_b32 s42, s37, s38")
    for i, (tt, g) in enumerate(items):
        A(f"s_bitcmp1_b32 s42, {i}", f"s_cbranch_scc0 L_red_nosum{i}")
        for k in range(4):
            A(unpack_add(ACC(g, tt), DAT(g, tt, k), k == 0) if tt < 2 else unpack_add(A8, D8(k), k == 0))
        A(f"L_red_nosum{i}:")
    A("s_mov_b32 s38, s37", "s_cmp_eq_u32 s38, 0x1ff", "s_cbranch_scc1 L_red_done")
    A("L_red_first:")
    A(f"v_cmp_eq_u32 vcc, 1, v{V_FL}", "s_nop 3", "s_mov_b32 s39, vcc_lo", "s_lshr_b32 s43, vcc_hi, s41", "s_and_b32 s43, s43, 15", "s_mov_b32 s40, s37")
    A("s_sub_u32 s53, s53, 1", "s_cmp_eq_u32 s53, 0", "s_cselect_b32 s39, -1, s39", "s_cselect_b32 s43, 15, s43", "s_cselect_b32 s53, 1, s53")
    for i, (tt, g) in enumerate(items):
        A(f"s_bitcmp1_b32 s37, {i}", f"s_cbranch_scc1 L_red_noiss{i}")
        if tt < 2:
            A(f"s_bfe_u32 s50, s39, {hex((4 << 16) | (16 * tt + 4 * g))}", "s_cmp_eq_u32 s50, 15")
        else:
            A("s_cmp_eq_u32 s43, 15")
        A(f"s_cbranch_scc0 L_red_noiss{i}")
        if tt < 2: A(f"s_add_u32 s50, s{34+tt}, {g*4096}")
        if OPT['own']:
            A(f"s_cmp_eq_u32 s46, {g}" if tt < 2 else f"s_cmp_eq_u32 s46, {S_W}", "s_cselect_b32 s44, s47, 7")
        for k in range(4):
            o = f" offset:{k*1024}" if k else ""
            va = V_L16
            if OPT['own']:
                A(f"s_cmp_eq_u32 s44, {k}", "s_cselect_b32 s45, 0x40000000, 0", f"v_or_b32 v45, s45, v{V_L16}"); va = 45
            if tt < 2: A(f"buffer_load_dwordx4 {vr(DAT(g, tt, k))}, v{va}, {SRD_P}, s50 offen{o} {OPT['rld']}")
            else: A(f"buffer_load_dwordx4 {vr(D8(k))}, v{va}, {SRD_P}, s36 offen{o} {OPT['rld']}")
        A(f"s_bitset1_b32 s37, {i}", f"L_red_noiss{i}:")
    if OPT.get('rdst'):
        A("s_cmp_eq_u32 s40, 0", "s_cbranch_scc0 L_rs1", "s_cmp_lg_u32 s37, 0", "s_cbranch_scc0 L_rs1", stamp("r_first"), "L_rs1:")
        A("s_cmp_eq_u32 s37, 0x1ff", "s_cbranch_scc0 L_rs2", stamp("r_alliss"), "L_rs2:")
    A("s_cmp_lg_u32 s37, s40", "s_cbranch_scc1 L_red_loop", f"s_sleep {OPT['psleep']}", "s_branch L_red_loop")
    A("L_red_done:")
    if OPT.get('rdst'): A(stamp("r_summed"))
    A(f"s_lshl_b32 s50, {S_W}, 11", f"v_lshlrev_b32 v30, 5, {V_LANE}", f"v_add_u32 v30, {WOB}, v30", "v_add_u32 v31, s50, v30",
      f"ds_write_b128 v31, {vr(A8)}", f"ds_write_b128 v31, {vr(A8+4)} offset:16")
    late = OPT['own'] and OPT['latebar']
    for tt in range(2):
        a0 = ACC(0, tt)
        for g in range(1, 4):
            for k in range(4): A(f"v_pk_add_f32 v[{a0+2*k}:{a0+2*k+1}], v[{a0+2*k}:{a0+2*k+1}], v[{ACC(g,tt)+2*k}:{ACC(g,tt)+2*k+1}]")
    if late:
        A("s_waitcnt lgkmcnt(0)", "s_barrier", "ds_read_b128 v[36:39], v44", "ds_read_b128 v[40:43], v44 offset:4096")
    for tt in range(2):
        a0 = ACC(0, tt)
        if OPT['own']: A(("s_waitcnt lgkmcnt(1)" if late else "s_waitcnt lgkmcnt(2)") if tt == 0 else "s_waitcnt lgkmcnt(0)" if late else "s_nop 0", unpack_add(a0, 36 + 4 * tt, False))
        for k in range(4): A(f"v_cvt_pk_bf16_f32 v{64+4*tt+k}, v{a0+2*k}, v{a0+2*k+1}")
        A(f"s_lshl_b32 s50, {S_W}, 15", f"s_add_u32 s50, s50, s32", f"s_add_u32 s50, s50, {tt*4*32768}")
        A(f"buffer_store_dwordx4 {vr(64+4*tt)}, v{V_OUT}, {SRD_O}, s50 offen {OPT['ost']}")
    if not late: A("s_waitcnt lgkmcnt(0)", "s_barrier")
    A(f"s_cmp_eq_u32 {S_W}, 0", "s_cbranch_scc0 L_red_end")
    for g in range(4):
        A(f"ds_read_b128 {vr(80+8*g)}, v30 offset:{g*2048}", f"ds_read_b128 {vr(84+8*g)}, v30 offset:{g*2048+16}")
    if OPT['own']: A("ds_read_b128 v[36:39], v44 offset:8192")
    A("s_waitcnt lgkmcnt(0)")
    for g in range(1, 4):
        for k in range(4): A(f"v_pk_add_f32 v[{80+2*k}:{81+2*k}], v[{80+2*k}:{81+2*k}], v[{80+8*g+2*k}:{81+8*g+2*k}]")
    if OPT['own']: A(unpack_add(80, 36, False))
    for k in range(4): A(f"v_cvt_pk_bf16_f32 v{72+k}, v{80+2*k}, v{81+2*k}")
    A(f"s_add_u32 s50, s32, {8*32768}")
    A(f"buffer_store_dwordx4 {vr(72)}, v{V_OUT}, {SRD_O}, s50 offen {OPT['ost']}")
    A("L_red_end:")
    L2, n = hazards(L)
    return L2

def dump_regs(regs, slot, kind='v'):
    L = []; A = lambda *x: L.extend(II(*x))
    A("s_add_u32 s66, s58, 0x4000000", "s_addc_u32 s67, s59, 0",
      "s_lshl_b32 s50, s2, 2", f"s_add_u32 s50, s50, {S_W}", "s_lshl_b32 s50, s50, 16",
      f"v_lshlrev_b32 v253, 2, {V_LANE}", "v_add_u32 v253, s50, v253")
    for i, r in enumerate(regs):
        if kind == 'a':
            A(f"v_accvgpr_read_b32 v254, a{r}", "s_nop 0")
            A(f"global_store_dword v253, v254, s[66:67]")
        else:
            A(f"global_store_dword v253, v{r}, s[66:67]")
        A("v_add_u32 v253, 256, v253")
    A("s_waitcnt vmcnt(0)")
    return L

def main_kernel():
    L = []
    L += setup()
    L += stamp("start")
    L += phase_q()
    L += stamp("q_done")
    if OPT['dump'] == 'q':
        L += II("s_nop 7") + dump_regs([qfrag(t, s) + k for t in range(5) for s in range(4) for k in range(4)], 0)
        L += II("s_waitcnt vmcnt(0)", "s_endpgm")
    L += attention()
    if OPT['dump'] == 'o':
        L += II("s_nop 7") + dump_regs([oacc(dt, t) + k for t in range(5) for dt in range(8) for k in range(4)] + [lacc(t) for t in range(5)], 0, 'a')
        L += II("s_waitcnt vmcnt(0)", "s_endpgm")
    e, q = o_epilogue(); L += e
    L += stamp("o_done")
    if OPT.get('stop') == 'o':
        L += II("s_waitcnt vmcnt(0)") + stamp("end") + stamp_dump() + II("L_main_end:", "s_endpgm") + safe_paths()
        return L
    e, q = out_proj(q); L += e
    L += stamp("op_done")
    if OPT['fused']:
        L += reduce_phase()
        L += stamp("red_done")
    L += tr_dump()
    L += II("s_waitcnt vmcnt(0)")
    L += stamp("end")
    L += stamp_dump()
    L += II("L_main_end:", "s_endpgm")
    L += OWN_OOL + ATT_OOL
    L += safe_paths()
    return L

def reduce_kernel():
    L = []; A = lambda *x: L.extend(II(*x))
    A("s_cmp_ge_u32 s2, 256", "s_cbranch_scc1 L_red_end")
    A("s_load_dwordx2 s[4:5], s[0:1], 80", "s_load_dwordx2 s[6:7], s[0:1], 96")
    A("v_lshrrev_b32 v2, 6, v0", "v_and_b32 v1, 63, v0", "s_nop 0", "v_readfirstlane_b32 s12, v2", "s_nop 3")
    A("s_waitcnt lgkmcnt(0)")
    A("s_mul_i32 s13, s2, 9", "s_add_u32 s13, s13, s12", "s_lshl_b32 s13, s13, 14")
    A("s_add_u32 s16, s6, s13", "s_addc_u32 s17, s7, 0", "s_and_b32 s17, s17, 0xffff", "s_mov_b32 s18, 16384", "s_mov_b32 s19, 0x20000")
    A("v_lshlrev_b32 v2, 4, v1")
    for p in range(16):
        A(f"buffer_load_dwordx4 v[{8+4*p}:{11+4*p}], v2, s[16:19], 0 offen offset:{(p%4)*1024}" if p < 4 else
          f"buffer_load_dwordx4 v[{8+4*p}:{11+4*p}], v2, s[16:19], s{20+p//4} offen offset:{(p%4)*1024}")
        if p == 3: A("s_mov_b32 s21, 4096", "s_mov_b32 s22, 8192", "s_mov_b32 s23, 12288")
    A("s_lshr_b32 s14, s2, 4", "s_and_b32 s15, s2, 15",
      "s_and_b32 s24, s14, 7", "s_lshr_b32 s25, s14, 3",
      "s_mul_i32 s24, s24, 144", "s_lshl_b32 s26, s12, 4", "s_add_u32 s24, s24, s26", "s_lshl_b32 s24, s24, 11",
      "s_lshl_b32 s25, s25, 10", "s_lshl_b32 s15, s15, 6", "s_add_u32 s24, s24, s25", "s_add_u32 s24, s24, s15")
    A("v_and_b32 v3, 15, v1", "v_lshlrev_b32 v3, 11, v3", "v_lshrrev_b32 v4, 4, v1", "v_lshl_add_u32 v3, v4, 4, v3")
    A("s_mov_b32 s28, s4", "s_and_b32 s29, s5, 0xffff", "s_mov_b32 s30, 2359296", "s_mov_b32 s31, 0x20000")
    acc = 80
    for p in range(16):
        A(f"s_waitcnt vmcnt({15-p})")
        for k in range(4):
            r = 8 + 4 * p + k
            if p == 0:
                A(f"v_lshlrev_b32 v{acc+2*k}, 16, v{r}", f"v_and_b32 v{acc+2*k+1}, 0xffff0000, v{r}")
            else:
                A(f"v_lshlrev_b32 v6, 16, v{r}", f"v_and_b32 v7, 0xffff0000, v{r}",
                  f"v_add_f32 v{acc+2*k}, v{acc+2*k}, v6", f"v_add_f32 v{acc+2*k+1}, v{acc+2*k+1}, v7")
    for k in range(4): A(f"v_cvt_pk_bf16_f32 v{8+k}, v{acc+2*k}, v{acc+2*k+1}")
    A("buffer_store_dwordx4 v[8:11], v3, s[28:31], s24 offen")
    A("s_waitcnt vmcnt(0)")
    A("L_red_end:", "s_endpgm")
    return L

def kernel_text(name, body, vgpr, accum, sgpr=102):
    return f""".globl {name}
.p2align 8
.type {name},@function
{name}:
{text(body)}
"""
def kd(name, nfv, accum, sgpr=102):
    return f""".amdhsa_kernel {name}
  .amdhsa_next_free_vgpr {nfv}
  .amdhsa_next_free_sgpr {sgpr}
  .amdhsa_accum_offset {accum}
  .amdhsa_group_segment_fixed_size 0
  .amdhsa_kernarg_size 104
  .amdhsa_user_sgpr_count 2
  .amdhsa_user_sgpr_kernarg_segment_ptr 1
  .amdhsa_system_sgpr_workgroup_id_x 1
.end_amdhsa_kernel
"""

def build():
    stamp_id[0] = 0; STAMPS.clear()
    k1 = NAME + "_kernel"; k2 = "reduce_heads_kernel"
    m = main_kernel()
    hdr = """; Fused  x@wq -> softmax(q k^T / sqrt(128)) v -> @wo  for both branches, one launch, 256 workgroups x 4 waves.
"""
    if OPT['fused']:
        hdr += f"; @launch grid=(256,1,1) block=(256,1,1) lds=163840\n"
    else:
        hdr += f"; @launch kernel={k1} grid=(256,1,1) block=(256,1,1) lds=163840\n"
        hdr += f"; @launch kernel={k2} grid=(256,1,1) block=(576,1,1) lds=0\n"
    s = hdr + '.amdgcn_target "amdgcn-amd-amdhsa--gfx950"\n.text\n'
    s += kernel_text(k1, m, 512, 256)
    if not OPT['fused']: s += kernel_text(k2, reduce_kernel(), 96, 96)
    s += '.section .rodata,"a"\n.p2align 6\n' + kd(k1, 512, 256)
    if not OPT['fused']: s += ".p2align 6\n" + kd(k2, 96, 96, 40)
    return s

if __name__ == "__main__":
    ap = argparse.ArgumentParser()
    ap.add_argument("-o", default="cdna_kernels/" + NAME + ".s")
    ap.add_argument("--dump"); ap.add_argument("--stamps", action="store_true"); ap.add_argument("-v", action="store_true")
    ap.add_argument("--opt", action="append", default=[])
    a = ap.parse_args()
    OPT['dump'] = a.dump; OPT['stamps'] = a.stamps; OPT['verbose'] = a.v
    for o in a.opt:
        k, v = o.split("=", 1)
        OPT[k] = {'True': True, 'False': False}.get(v, int(v) if v.lstrip('-').isdigit() else v)
    s = build()
    open(a.o, "w").write(s)
    if a.stamps:
        import json; json.dump(STAMPS, open(a.o + ".stamps.json", "w"))
    print("wrote", a.o, len(s), "bytes")
```

```python
import sys, argparse
from ir import *

NAME = "concat_heads__gqa_block_cached__mha_block_cached__near_ridge"
OPT = dict(latebar=False, wsoff=0, own=True, early=True, l2pf=False, np1=0, pfw=1, pfkv=0, pfkvnt=False, psleep=8, ost='', lthr=0, start2=True, pf=2, pfnt=False, fused=True, rld='sc1', rot=True, wnt=False, xnt=False, wont=False, bursts=(3, 6, 9), dump=None, stamps=False, stop=None, kvnt=True, pst="sc1", verbose=False)

VB = 0
KB = 65536
WB = 16384
XB = 114688
WOA = 131072
WOB = 98304
OB = 0
def kphys(k): return ((k + 1) & 3) * 16384
def vphys(k): return (k & 3) * 16384

SRD_X, SRD_WQ, SRD_K, SRD_V, SRD_WO, SRD_P = "s[4:7]", "s[8:11]", "s[12:15]", "s[16:19]", "s[20:23]", "s[24:27]"
SRD_F, SRD_D, SRD_O = "s[68:71]", "s[72:75]", "s[80:83]"
S_W, S_U, S_QH, S_CNT = "s28", "s29", "s30", "s31"
S_SOFFX, S_SOFFW0, S_UNUSED, S_MW, S_MX, S_DSLOT, S_RSLOT, S_DW, S_DX = "s32", "s33", "s34", "s35", "s36", "s37", "s38", "s39", "s40"
S_BW, S_BX = "s41", "s42"
S_SOFFK, S_SOFFV, S_MK, S_MV = "s45", "s46", "s47", "s48"
S_T0, S_T1, S_T2, S_T3 = "s50", "s51", "s52", "s53"
S_HP, S_B, S_BR, S_CL = "s54", "s55", "s56", "s57"
S_WS = "s[58:59]"
S_SOFFP = "s60"
S_STAMP = "s[62:63]"
S_FLAG = "s64"
S_SAFE = "s61"
S_BX3 = "s38"
LTHR = 0x4b800000
S_KS, S_X0, S_W0 = "s88", "s89", "s87"
S_TAU, S_TB, S_TQ, S_T4N, S_TMASK, S_TSH, S_TM, S_TS = "s78", "s79", "s43", "s44", "s34", "s49", "s61", "s95"

V_LANE = "v1"
V_WQR = [2, 3, 4, 5]; V_XR = 6; V_XR4 = 14; V_OW4 = 50; V_OWB = 51
V_WQD = [7, 8, 9, 10]; V_XD = [11, 12, 13]; V_TG, V_TI, V_TB, V_TV = 14, 15, 62, 63
V_KD = [16, 17, 18, 19]; V_VD = [20, 21]
V_KR = [22, 23, 24, 25]; V_VR = [26 + i for i in range(8)]
V_WOD = [34, 35, 36, 37]; V_WOR = [38, 39, 40, 41]
V_OW, V_OR, V_OR8, V_PS = 42, 43, 44, 45
VT = [46 + i for i in range(18)]
RB = 64
def grp(t, s): return RB + (t * 4 + s) * 8
def qacc(dt, t): return grp(t, dt >> 1) + 4 * (dt & 1)
def qfrag(t, s): return grp(t, s)
def Sreg(kt, t): return grp(t, kt) + 4
def Preg(par, t): return grp(t, 2 + par) + 4
def cinit(t): return 224 + 4 * t
V_C0, V_C1 = 244, 245
def vr(b, n=4): return f"v[{b}:{b+n-1}]"
def ar(b, n=4): return f"a[{b}:{b+n-1}]"
def oacc(dt, t): return t * 32 + dt * 4
def lacc(t): return 160 + 4 * t
A_ONES = 180
def abuf(i): return 184 + 4 * i
def bbuf(t): return [48, 52, 56, 60, 248][t]
def kbuf(kt, s): return 216 + 4 * (kt * 4 + s)

MF = "v_mfma_f32_16x16x32_bf16"
def mfma(d, a, b, c): return I(f"{MF} {d}, {a}, {b}, {c}")
SCALE = (128 ** -0.5) * 1.4426950408889634
import struct
def f2u(x): return struct.unpack("<I", struct.pack("<f", x))[0]

def NT(): return " nt" if OPT['kvnt'] else ""

def CNTOFF(): return 128 if OPT.get('dbgst') is not None else 0
stamp_id = [0]
def stamp(name):
    if not OPT['stamps']: return []
    i = stamp_id[0]; stamp_id[0] += 1
    STAMPS.append(name)
    return II("s_memrealtime s[66:67]", "s_memtime s[64:65]", "s_waitcnt lgkmcnt(0)",
              f"v_writelane_b32 v0, s66, {i}", f"v_writelane_b32 v0, s64, {32 + i}")
def stamp_dump():
    if not OPT['stamps']: return []
    if OPT.get('dbgst') is not None:
        return II(f"s_cmp_eq_u32 s2, {OPT['dbgst']}", "s_cbranch_scc0 L_nodbg", f"s_cmp_eq_u32 {S_W}, 0", "s_cbranch_scc0 L_nodbg",
                  "v_readlane_b32 s50, v0, 0", "s_nop 3", "v_subrev_u32 v0, s50, v0",
                  f"v_lshlrev_b32 v1, 2, {V_LANE}", "v_cmp_gt_u32 vcc, 16, v1", f"v_lshrrev_b32 v2, 2, v1", "v_mov_b32 v3, 0x1000", "v_cmp_gt_u32 vcc, 16, v2", "s_nop 1",
                  "v_cndmask_b32 v1, v3, v1, vcc", f"buffer_store_dword v0, v1, {SRD_D}, 0 offen", "L_nodbg:")
    return II("s_add_u32 s62, s58, 0x8000000", "s_addc_u32 s63, s59, 0", "s_lshl_b32 s65, s2, 2", f"s_add_u32 s65, s65, {S_W}", "s_lshl_b32 s65, s65, 8",
              f"v_lshlrev_b32 v1, 2, {V_LANE}", "v_add_u32 v1, s65, v1", "global_store_dword v1, v0, s[62:63]")
STAMPS = []

def setup():
    L = []
    A = lambda *x: L.extend(II(*x))
    A("s_cmp_ge_u32 s2, 256", "s_cbranch_scc1 L_main_end")
    if OPT['stamps'] and OPT.get('t0st'): A("s_memrealtime s[100:101]")
    A("s_load_dwordx8 s[68:75], s[0:1], 0", "s_load_dwordx2 s[76:77], s[0:1], 32",
      "s_load_dwordx8 s[80:87], s[0:1], 40", "s_load_dwordx2 s[88:89], s[0:1], 72",
      f"s_load_dwordx2 {S_WS}, s[0:1], 96", "s_load_dwordx4 s[96:99], s[0:1], 80")
    A("s_and_b32 s50, s2, 7", "s_lshr_b32 s51, s2, 3",
      f"s_lshr_b32 {S_BR}, s50, 2",
      "s_and_b32 s52, s50, 3", "s_lshl_b32 s52, s52, 2", "s_and_b32 s53, s51, 3", f"s_add_u32 {S_HP}, s52, s53",
      f"s_lshr_b32 {S_B}, s51, 2",
      f"s_lshl_b32 s52, {S_BR}, 3", f"s_add_u32 {S_CL}, s52, {S_B}")
    A("v_lshrrev_b32 v46, 6, v0", f"v_and_b32 {V_LANE}, 63, v0", "s_nop 0", f"v_readfirstlane_b32 {S_W}, v46", "s_nop 3")
    A(f"s_lshr_b32 {S_U}, {S_W}, 1", f"s_and_b32 {S_QH}, {S_W}, 1", f"s_mov_b32 {S_SAFE}, 0")
    A(lane_consts_q())
    if OPT['stamps'] and OPT.get('t0st'):
        A("s_memrealtime s[66:67]")
    A("s_waitcnt lgkmcnt(0)")
    if OPT['stamps'] and OPT.get('t0st'):
        i0 = stamp_id[0]; stamp_id[0] += 2; STAMPS.extend(["entry", "consts_q"])
        A(f"v_writelane_b32 v0, s100, {i0}", f"v_writelane_b32 v0, s66, {i0+1}", f"v_writelane_b32 v0, s100, {32+i0}", f"v_writelane_b32 v0, s66, {33+i0}")
    A(f"s_cmp_eq_u32 {S_BR}, 1")
    for i in range(8): A(f"s_cselect_b32 s{68+i}, s{80+i}, s{68+i}")
    A("s_cselect_b32 s76, s88, s76", "s_cselect_b32 s77, s89, s77")
    def srd(dst, lo, hi, off_expr_regs, nrec):
        A(f"s_add_u32 s{dst}, s{lo}, s50", f"s_addc_u32 s{dst+1}, s{hi}, 0", f"s_and_b32 s{dst+1}, s{dst+1}, 0xffff")
        A(nrec, f"s_mov_b32 s{dst+3}, 0x20000")
    A(f"s_mul_i32 s50, {S_B}, 147456"); srd(4, 68, 69, None, "s_mov_b32 s6, 147456")
    A(f"s_lshl_b32 s50, {S_HP}, 9"); srd(8, 74, 75, None, "s_sub_u32 s10, 4194304, s50")
    return L

def setup_b():
    L = []
    A = lambda *x: L.extend(II(*x))
    def srd(dst, lo, hi, off_expr_regs, nrec):
        A(f"s_add_u32 s{dst}, s{lo}, s50", f"s_addc_u32 s{dst+1}, s{hi}, 0", f"s_and_b32 s{dst+1}, s{dst+1}, 0xffff")
        A(nrec, f"s_mov_b32 s{dst+3}, 0x20000")
    A(f"s_cmp_eq_u32 {S_SAFE}, 1", "s_cbranch_scc1 L_setup_b_done")
    A(f"s_lshl_b32 s50, {S_B}, 5", f"s_lshl_b32 s51, {S_HP}, 1", "s_add_u32 s50, s50, s51", f"s_add_u32 s50, s50, {S_U}", "s_lshl_b32 s50, s50, 17")
    srd(12, 70, 71, None, "s_mov_b32 s14, 131072")
    srd(16, 72, 73, None, "s_mov_b32 s18, 131072")
    A(f"s_lshl_b32 s50, {S_HP}, 18", f"s_lshl_b32 s51, {S_W}, 8", "s_add_u32 s50, s50, s51")
    A("s_sub_u32 s52, 262144, s51")
    srd(20, 76, 77, None, "s_mov_b32 s22, s52")
    A(f"s_lshl_b32 s50, {S_HP}, 18"); srd(84, 76, 77, None, "s_mov_b32 s86, 262144")
    A(f"s_mul_i32 s50, {S_CL}, 2359296", f"s_add_u32 s50, s50, {hex(OPT['wsoff'])}"); srd(24, 58, 59, None, "s_mov_b32 s26, 2359296")
    if OPT['fused']:
        A(f"s_mul_i32 s50, {S_CL}, 4608", f"s_add_u32 s50, s50, {hex(OPT['wsoff'] + 0x2400000 + 0x40000)}"); srd(68, 58, 59, None, "s_mov_b32 s70, 4608")
        A("s_mov_b32 s72, s98", "s_and_b32 s73, s99, 0xffff", "s_mov_b32 s74, 256", "s_mov_b32 s75, 0x20000")
        A("s_mov_b32 s80, s96", "s_and_b32 s81, s97, 0xffff", "s_mov_b32 s82, 2359296", "s_mov_b32 s83, 0x20000")
        A(f"s_lshl_b32 s50, {S_W}, 7", f"s_lshl_b32 s51, {S_HP}, 2", "s_add_u32 s50, s50, s51",
          f"v_lshlrev_b32 v46, 9, {V_LANE}", "v_add_u32 v46, s50, v46", "v_mov_b32 v47, 0",
          f"buffer_store_dword v47, v46, {SRD_F}, 0 offen sc1" if not OPT.get('x_noclr') else "s_nop 0")
    A("L_setup_b_done:")
    return L

def lane_consts_q():
    L = []; A = lambda *x: L.extend(II(*x))
    l = V_LANE; t0, t1, t2, t3, t4, t5 = [f"v{x}" for x in VT[:6]]
    A(f"v_lshrrev_b32 {t0}, 4, {l}", f"v_bfe_u32 {t1}, {l}, 2, 2", f"v_and_b32 {t2}, 3, {l}", f"v_and_b32 {t3}, 15, {l}")
    A(f"v_lshrrev_b32 {t4}, 5, {l}")
    A(f"v_bfe_u32 {t5}, {l}, 4, 1")
    for j in range(4):
        d = f"v{V_WQD[j]}"
        A(f"v_add_u32 {d}, {2*j}, {t4}",
          f"v_and_b32 v{VT[6]}, 3, {d}", f"v_lshlrev_b32 v{VT[6]}, 2, v{VT[6]}", f"v_xor_b32 v{VT[6]}, v{VT[6]}, {t3}", f"v_lshlrev_b32 v{VT[6]}, 4, v{VT[6]}",
          f"v_lshlrev_b32 {d}, 13, {d}", f"v_add_u32 {d}, {d}, v{VT[6]}", f"v_lshl_add_u32 {d}, {t5}, 8, {d}")
        if j: A(f"v_subrev_u32 {d}, {1024*j}, {d}")
    A(f"v_lshlrev_b32 {t4}, 1, {t0}", f"v_mov_b32 {t5}, 0x78", f"v_lshrrev_b32 {t4}, {t4}, {t5}", f"v_and_b32 {t4}, 3, {t4}",
      f"v_xor_b32 {t4}, {t4}, {t2}", f"v_lshlrev_b32 {t4}, 4, {t4}",
      f"v_lshrrev_b32 {t5}, 2, {l}", f"v_lshl_add_u32 {t4}, {t5}, 10, {t4}")
    for j in range(2):
        A(f"v_add_u32 v{V_XD[j]}, {j*16384 - 1024*j}, {t4}")
    A(f"s_lshl_b32 s50, {S_W}, 1", "s_lshr_b32 s50, 0x78, s50", "s_and_b32 s50, s50, 3",
      f"v_xor_b32 {t4}, s50, {t2}", f"v_lshlrev_b32 {t4}, 4, {t4}", f"v_lshl_add_u32 {t4}, {t5}, 10, {t4}",
      f"s_lshl_b32 s50, {S_W}, 12", f"s_lshl_b32 s51, {S_W}, 15", "s_sub_u32 s50, s50, s51", f"s_add_u32 s50, s50, {128*1024}",
      f"v_add_u32 v{V_XD[2]}, s50, {t4}")
    return L

def lane_consts_q2():
    L = []; A = lambda *x: L.extend(II(*x))
    l = V_LANE; t0, t1, t2, t3, t4, t5 = [f"v{x}" for x in VT[:6]]
    A(f"v_lshrrev_b32 {t0}, 4, {l}", f"v_bfe_u32 {t1}, {l}, 2, 2", f"v_and_b32 {t2}, 3, {l}", f"v_and_b32 {t3}, 15, {l}")
    for n in range(4):
        A(f"v_add_u32 {t4}, {4*n}, {t0}", f"v_xor_b32 {t4}, {t4}, {t3}", f"v_lshlrev_b32 {t4}, 4, {t4}",
          f"v_lshl_add_u32 v{V_KD[n]}, {t0}, 8, {t4}")
    for n in range(2):
        A(f"v_add_u32 {t4}, {4*n}, {t0}", f"v_lshlrev_b32 {t4}, 1, {t4}", f"v_xor_b32 {t4}, {t4}, {t3}", f"v_lshlrev_b32 {t4}, 4, {t4}",
          f"v_lshl_add_u32 v{V_VD[n]}, {t0}, 8, {t4}")
    A(f"v_lshl_add_u32 {t4}, {t0}, 3, {t1}", f"v_lshlrev_b32 {t4}, 9, {t4}", f"v_lshl_add_u32 {t4}, {t2}, 4, {t4}",
      f"s_lshl_b32 s50, {S_U}, 8", f"s_add_u32 s50, s50, {WB}", f"v_add_u32 {t4}, s50, {t4}")
    A(f"s_lshl_b32 s51, {S_QH}, 1", f"v_xor_b32 {t1}, s51, {t1}")
    for s in range(4):
        A(f"v_xor_b32 {t5}, {s}, {t1}", f"v_lshl_add_u32 v{V_WQR[s]}, {t5}, 6, {t4}")
    A(f"v_lshrrev_b32 {t4}, 2, {t3}", f"v_lshlrev_b32 {t4}, 1, {t4}", f"v_mov_b32 {t5}, 0x78", f"v_lshrrev_b32 {t4}, {t4}, {t5}", f"v_and_b32 {t4}, 3, {t4}",
      f"v_xor_b32 {t4}, {t4}, {t0}", f"v_lshlrev_b32 {t4}, 4, {t4}", f"v_lshl_add_u32 {t4}, {t3}, 6, {t4}",
      f"s_mul_i32 s50, {S_QH}, 5120", f"s_add_u32 s50, s50, {XB}", f"v_add_u32 v{V_XR}, s50, {t4}", f"v_add_u32 v{V_XR4}, {XB + 4096}, {t4}")
    return L

def lane_consts_rest():
    L = []; A = lambda *x: L.extend(II(*x))
    l = V_LANE; t0, t1, t2, t3, t4, t5, t6 = [f"v{x}" for x in VT[:7]]
    A(f"v_lshrrev_b32 {t0}, 4, {l}", f"v_bfe_u32 {t1}, {l}, 2, 2", f"v_and_b32 {t2}, 3, {l}", f"v_and_b32 {t3}, 15, {l}")
    A(f"s_lshl_b32 s50, {S_U}, 13", f"s_add_u32 s51, s50, {KB}", f"v_lshlrev_b32 {t4}, 8, {t3}", f"v_add_u32 {t4}, s51, {t4}")
    A(f"s_lshl_b32 s51, {S_QH}, 3", f"v_xor_b32 {t6}, s51, {t3}")
    for s in range(4):
        A(f"v_add_u32 {t5}, {4*s}, {t0}", f"v_xor_b32 {t5}, {t5}, {t6}", f"v_lshl_add_u32 v{V_KR[s]}, {t5}, 4, {t4}")
    A(f"v_lshrrev_b32 {t4}, 2, {l}", f"v_and_b32 {t5}, 7, {t4}", f"v_lshlrev_b32 {t5}, 1, {t5}",
      f"v_lshlrev_b32 {t4}, 8, {t4}", f"v_add_u32 {t4}, s50, {t4}",
      f"v_and_b32 {t6}, 1, {t2}", f"v_lshl_add_u32 {t4}, {t6}, 3, {t4}",
      f"v_lshrrev_b32 {t6}, 1, {t2}",
      f"s_lshl_b32 s51, {S_QH}, 3", f"v_xor_b32 {t5}, s51, {t5}")
    for dt in range(8):
        d = f"v{V_VR[dt]}"
        A(f"v_add_u32 {d}, {2*dt}, {t6}", f"v_xor_b32 {d}, {d}, {t5}", f"v_lshl_add_u32 {d}, {d}, 4, {t4}")
    A(f"v_lshlrev_b32 {t4}, 2, {t0}", f"v_xor_b32 {t4}, {t4}, {t3}", f"v_lshlrev_b32 {t4}, 4, {t4}", f"v_lshl_add_u32 {t4}, {t0}, 10, {t4}")
    for n in range(4):
        A(f"v_add_u32 v{V_WOD[n]}, {n*3072}, {t4}")
    A(f"v_lshrrev_b32 {t4}, 2, {l}", f"v_lshlrev_b32 {t4}, 8, {t4}", f"v_lshl_add_u32 {t4}, {t2}, 4, {t4}",
      f"s_lshl_b32 s50, {S_W}, 13", f"s_add_u32 s50, s50, {WOB}", f"v_add_u32 {t4}, s50, {t4}")
    for cp in range(4):
        A(f"v_xor_b32 {t5}, {cp}, {t1}", f"v_lshl_add_u32 v{V_WOR[cp]}, {t5}, 6, {t4}")
    A(f"s_mul_i32 s50, {S_QH}, 40960", f"s_lshl_b32 s51, {S_U}, 12", "s_add_u32 s50, s50, s51",
      f"v_lshlrev_b32 v{V_OR}, 4, {l}", f"v_add_u32 v{V_OW}, s50, v{V_OR}", f"v_add_u32 v{V_OR8}, 0x10000, v{V_OR}")
    A(f"s_lshl_b32 s50, {S_HP}, 10", f"v_add_u32 v{V_PS}, s50, v{V_OR}")
    return L

def dma(voff, srd, soff, imm, nt=False):
    o = f" offset:{imm}" if imm else ""
    return I(f"buffer_load_dwordx4 v{voff}, {srd}, {soff} offen{o}{' nt' if nt else ''} lds")

def kv_group(kind, m0expr, soffreg):
    if kind == 'K':
        return [dma(V_KD[n], SRD_K, soffreg, n * 1024, OPT['kvnt']) for n in range(4)]
    return [dma(V_VD[n & 1], SRD_V, soffreg, n * 1024, OPT['kvnt']) for n in range(4)]

def kv_tile_full_unused(kind, j):
    L = []
    base = (KB + kphys(j)) if kind == 'K' else (VB + vphys(j))
    for gI in range(2):
        L += II(f"s_lshl_b32 s50, {S_U}, 13", f"s_add_u32 m0, s50, {base + gI*4096}", f"s_mov_b32 s51, {j*8192 + gI*4096}")
        L += kv_group(kind, None, "s51")
    return L

def stage_setup_scalar():
    rot = OPT['rot']
    R = II("s_lshr_b32 s50, s2, 3", "s_and_b32 s51, s50, 3", "s_lshr_b32 s50, s50, 2")
    if rot in (True, 1):   R += II("s_lshl_b32 s51, s51, 2", "s_lshl_b32 s50, s50, 1", "s_add_u32 s52, s50, s51")
    elif rot == 2:         R += II("s_lshr_b32 s50, s50, 1", "s_add_u32 s52, s50, s51", "s_lshl_b32 s52, s52, 2")
    elif rot == 3:         R += II("s_add_u32 s52, s50, s51", "s_lshl_b32 s52, s52, 2")
    elif rot == 4:         R += II("s_lshr_b32 s50, s50, 2", "s_lshl_b32 s50, s50, 3", "s_lshl_b32 s51, s51, 2", "s_add_u32 s52, s50, s51")
    elif rot == 5:         R += II("s_mul_i32 s50, s50, 3", "s_lshl_b32 s51, s51, 2", "s_add_u32 s52, s50, s51")
    elif rot == 6:         R += II("s_lshl_b32 s52, s50, 1")
    elif rot == 7:         R += II("s_lshl_b32 s50, s50, 1", "s_and_b32 s51, s51, 1", "s_lshl_b32 s51, s51, 3", "s_add_u32 s52, s50, s51")
    else:                  R += II("s_mov_b32 s52, 0")
    return R + II("s_and_b32 s52, s52, 15",
              f"s_lshl_b32 s50, s52, 6", f"s_lshl_b32 s51, {S_W}, 15", f"s_add_u32 {S_SOFFX}, s50, s51",
              f"s_lshl_b32 s50, s52, 18", f"s_lshl_b32 s51, {S_W}, 16", f"s_add_u32 {S_SOFFW0}, s50, s51",
              f"s_lshl_b32 s50, {S_W}, 12", f"s_add_u32 {S_BW}, s50, {WB}",
              f"s_lshl_b32 s50, {S_W}, 11", f"s_add_u32 {S_BX}, s50, {XB}",
              f"s_lshl_b32 s50, {S_W}, 8", f"s_add_u32 {S_BX3}, s50, {XB + 8192}",
              f"s_lshl_b32 {S_TQ}, {S_QH}, 12",
              f"s_lshl_b32 s50, {S_U}, 13", f"s_add_u32 s50, s50, {S_TQ}", f"s_add_u32 {S_MK}, s50, {KB}", f"s_add_u32 {S_MV}, s50, {VB}")

def stage_dma_list(slot):
    seq = []
    seq.append(([I(f"s_add_u32 m0, {S_BW}, {slot*16384}")], dma(V_WQD[0], SRD_WQ, S_SOFFW0, 0, OPT['wnt'])))
    for j in range(1, 4): seq.append(([], dma(V_WQD[j], SRD_WQ, S_SOFFW0, j * 1024, OPT['wnt'])))
    seq.append(([I(f"s_add_u32 m0, {S_BX}, {slot*9216}")], dma(V_XD[0], SRD_X, S_SOFFX, 0, OPT['xnt'])))
    seq.append(([], dma(V_XD[1], SRD_X, S_SOFFX, 1024, OPT['xnt'])))
    q = dma(V_XD[2], SRD_X, S_SOFFX, 0, OPT['xnt'])
    seq.append(([I(f"s_add_u32 m0, {S_BX3}, {slot*9216}")], Masked(q, 0xffff)))
    return seq

def place_dma(S, seq, gaps):
    k = 0
    last = None
    for e in seq:
        if e[0]:
            for p in e[0]: S.put(gaps[k], p)
            k += 1
        S.put(gaps[k], e[1]); last = gaps[k]
        if len(e) > 2:
            for p in e[2]: S.put(gaps[k] + 1, p)
        k += 1
    return last

def stage_advance_w():
    return II(f"s_add_u32 {S_SOFFW0}, {S_SOFFW0}, 262144", f"s_and_b32 {S_SOFFW0}, {S_SOFFW0}, 0x3fffff")
def stage_advance_x():
    return II(f"s_add_u32 {S_SOFFX}, {S_SOFFX}, 64", f"s_and_b32 {S_SOFFX}, {S_SOFFX}, 0xfffffbff")
def stage_advance(): return stage_advance_w() + stage_advance_x()

def straight(seq):
    L = []
    for e in seq:
        L += e[0]
        if e[0]: L += II("s_nop 0")
        L.append(e[1])
        if len(e) > 2: L += e[2]
    return L

def stage_issue_straight(slot):
    return straight(stage_dma_list(slot)) + stage_advance()

def wq_read(dt, h2, slot):
    if OPT.get('x_noread'): return I('s_nop 0')
    s, hf = dt >> 1, dt & 1
    b = abuf(dt) + 2 * h2
    off = slot * 16384 + hf * 8 + h2 * 2048
    return I(f"ds_read_b64_tr_b16 {ar(b,2)}, v{V_WQR[s]}" + (f" offset:{off}" if off else ""))
def x_read(t, slot):
    if OPT.get('x_noread'): return I('s_nop 0')
    off = slot * 9216 + (0 if t == 4 else t * 1024)
    return I(f"ds_read_b128 {vr(bbuf(t))}, v{V_XR4 if t == 4 else V_XR}" + (f" offset:{off}" if off else ""))
def q_mfma(dt, t):
    if OPT.get('x_t4') and t == 4: return I("s_nop 3")
    if OPT.get('x_t45') and t == 4 and dt >= 4: return I("s_nop 3")
    return mfma(vr(qacc(dt, t)), ar(abuf(dt)), vr(bbuf(t)), vr(qacc(dt, t)))

def half_group(kind, j):
    if kind == 'K':
        pre = II(f"s_add_u32 m0, {S_MK}, {kphys(j)}", f"s_add_u32 s51, {S_TQ}, {j*8192}")
    else:
        pre = II(f"s_add_u32 m0, {S_MV}, {vphys(j)}", f"s_add_u32 s51, {S_TQ}, {j*8192}")
    g = kv_group(kind, None, "s51")
    return [(pre, g[0])] + [([], x) for x in g[1:]]

def put_dmas(S, seq, gaps):
    prev = -1
    for e, g in zip(seq, gaps):
        if e[0]:
            assert g - 1 > prev or prev < 0, (g, prev)
            for p in e[0]: S.put(g - 1, p)
        S.put(g, e[1])
        if len(e) > 2:
            for p in e[2]: S.put(g + 1, p)
        prev = g
    assert len(seq) <= len(gaps)

QTAIL = (4, 5, 6, 7)
def q_tail(): return [q_mfma(dt, t) for t in range(4) for dt in QTAIL]
SRD_T = "s[96:99]"; V_T = [10, 11, 12, 13]; S_TM, S_TS = "s35", "s36"
V_TB2 = [252, 253, 254, 255]
V_TB = [244, 245, 246, 247]
DUMMY = 151552
def burst_list():
    g = [dma(V_TB[n], SRD_T, S_TS, n * 1024, OPT['kvnt']) for n in range(4)]
    return [([I(f"s_mov_b32 m0, {S_TM}")], g[0])] + [([], x) for x in g[1:]]

def q_body(ks, with_dma, burst=False, extra_dma=None, wait=None):
    slot = ks & 3
    ms = q_tail() + [q_mfma(dt, t) for t in range(5) for dt in range(4)]
    S = Sched(ms)
    a = lambda dt, h: wq_read(dt, h, slot)
    xr = lambda t: x_read(t, slot)
    plan = {0: a(0,0), 1: a(0,1), 2: a(1,0), 3: a(1,1), 4: xr(0), 5: a(2,0), 7: a(2,1), 8: xr(1), 9: a(3,0), 11: a(3,1),
            12: xr(2), 13: xr(4), 16: xr(3), 17: a(4,0), 19: a(4,1), 20: a(5,0), 21: a(5,1), 23: a(6,0), 24: a(6,1), 25: a(7,0), 27: a(7,1)}
    for g, ins in plan.items(): S.put(g, ins)
    if with_dma:
        put_dmas(S, stage_dma_list((ks + 3) & 3), [6, 10, 14, 18, 22, 26, 29])
        w = stage_advance_w(); x = stage_advance_x()
        S.put(19, w[0]); S.put(20, w[1]); S.put(30, x[0]); S.put(31, x[1])
    if burst:
        put_dmas(S, burst_list(), [32, 33, 34, 35]) if False else None
        put_dmas(S, burst_list(), [15, 28, 31, 33])  if False else None
    if extra_dma:
        put_dmas(S, extra_dma, [6, 10, 14, 18, 22, 26, 30, 32][:len(extra_dma)])
    return S

def q_finish(S, wait, wg=33):
    S.put(wg, tr_mark(), f"s_waitcnt vmcnt({wait}) lgkmcnt(0)", tr_commit())
    S.put(wg + 1, "s_barrier")
    seq, pend = lgkm_waits(S.flat())
    assert not pend
    if OPT['verbose']: print(S.report("q_body"))
    return seq

def tr_mark():
    return [Raw("s_memtime s[100:101]")] if OPT.get('trace') else []
def tr_commit():
    return [Raw("s_mov_b32 s95, m0\n  s_mov_b32 m0, s94\n  s_nop 0\n  v_writelane_b32 v0, s100, m0\n  s_mov_b32 m0, s95\n  s_add_u32 s94, s94, 1")] if OPT.get('trace') else []
def tr_dump():
    if not OPT.get('trace'): return []
    return II("s_add_u32 s66, s58, 0x9000000", "s_addc_u32 s67, s59, 0", "s_lshl_b32 s50, s2, 2", f"s_add_u32 s50, s50, {S_W}", "s_lshl_b32 s50, s50, 8",
              f"v_lshlrev_b32 v253, 2, {V_LANE}", "v_add_u32 v253, s50, v253", "global_store_dword v253, v0, s[66:67]")

def zero_init():
    L = II("v_mov_b32 v244, 0", "v_mov_b32 v245, 0", "v_mov_b32 v246, 0", "v_mov_b32 v247, 0", "s_nop 1")
    for r in range(RB, RB + 160, 16): L += II(f"v_mfma_f32_32x32x16_bf16 v[{r}:{r+15}], v[244:247], v[244:247], 0")
    for r in range(0, 256, 16): L += II(f"v_mfma_f32_32x32x16_bf16 a[{r}:{r+15}], v[244:247], v[244:247], 0")
    return L

def phase_q():
    L = []; A = lambda *x: L.extend(II(*x))
    A("L_phase_q:")
    A(stage_setup_scalar(), stage_issue_straight(0))
    A(setup_b())
    A(lane_consts_q2())
    A(stamp("q_issued"))
    A(zero_init())
    A(lane_consts_rest())
    A(f"s_mov_b32 {S_CNT}, 0")
    if OPT.get('trace'): A("s_mov_b32 s94, 1", "s_memtime s[100:101]", "s_waitcnt lgkmcnt(0)", "v_writelane_b32 v0, s100, 0")
    A(f"v_mov_b32 v{VT[0]}, 0x3f803f80")
    for r in range(4): A(f"v_accvgpr_write_b32 a{A_ONES + r}, v{VT[0]}")
    for t in range(5):
        for k in range(4): A(f"v_mov_b32 v{bbuf(t)+k}, 0")
    A("s_mov_b32 s96, s12", "s_mov_b32 s97, s13", "s_mov_b32 s98, s14", "s_mov_b32 s99, s15")
    for n in range(4): A(f"v_mov_b32 v{V_TB[n]}, v{V_KD[n]}")
    if OPT.get('stst'): A(stamp("consts"))
    A(stage_issue_straight(1))
    if OPT.get('stst'): A(stamp("s1_iss"))
    A("s_waitcnt vmcnt(7)")
    if OPT.get('stst'): A(stamp("s0_land"))
    A("s_barrier")
    if OPT['fused']:
        A(f"s_cmp_eq_u32 {S_SAFE}, 1", "s_cbranch_scc1 L_no_arrive")
        A(f"s_lshl_b32 s50, {S_CL}, 2", f"s_add_u32 s50, s50, {CNTOFF()}", f"s_lshl_b32 s51, {S_W}, 14", "s_add_u32 s50, s50, s51",
          f"v_lshlrev_b32 v46, 8, {V_LANE}", "v_add_u32 v46, s50, v46", "v_mov_b32 v47, 1",
          f"buffer_atomic_add v47, v46, {SRD_D}, 0 offen sc1")
        A("L_no_arrive:")
    A(stage_issue_straight(2))
    if OPT.get('stst'): A(stamp("s2_iss"))
    A(f"s_add_u32 {S_TM}, {S_MK}, {kphys(0)}", f"s_mov_b32 {S_TS}, {S_TQ}")
    A(stamp("q_start"))
    l2 = OPT['l2pf']
    if l2:
        A(f"s_add_u32 s37, {S_TQ}, {4*8192}", "s_mov_b32 s92, s12", "s_mov_b32 s93, s13", "s_mov_b32 s94, s14", "s_mov_b32 s95, s15",
          "s_mov_b64 vcc, -1")
    bodies = []
    QOOL = []
    for k in range(4):
        S = q_body(k, True)
        if k == 1:
            put_dmas(S, burst_list(), [32, 33, 34, 35])
        if k == 3 and l2:
            g = [dma(V_OR, "s[92:95]", "s37", n * 1024, False) for n in range(4)]
            put_dmas(S, [([I(f"s_mov_b32 m0, {DUMMY}")], g[0])] + [([], x) for x in g[1:]], [32, 33, 34, 35])
        if l2:
            n_steady, n_first = [(18, 14), (22, 18), (18, 18), (22, 22)][k]
        else:
            n_steady = n_first = 14 if k == 0 else 18
        if OPT.get('b0st') and k == 0:
            for nm, g in (("g5", 5), ("g6", 7), ("g15", 15), ("g20", 20), ("g30", 31)):
                S.put(g, Raw(f"s_cmp_eq_u32 {S_CNT}, 0\n  s_cbranch_scc0 L_b0_{nm}\n  " + "\n  ".join(x.txt for x in stamp(nm)) + f"\nL_b0_{nm}:"))
        late = (k == 1) or (k == 3 and l2)
        w = tr_mark() + II(f"s_waitcnt vmcnt({n_steady}) lgkmcnt(0)")
        if n_first != n_steady:
            w += II(f"s_cbranch_vccnz L_q_first{k}", f"L_q_back{k}:")
            QOOL += II(f"L_q_first{k}:", f"s_waitcnt vmcnt({n_first})", f"s_branch L_q_back{k}")
        w += tr_commit()
        if late:
            seq, pend = lgkm_waits(S.flat())
            seq += w + II("s_barrier")
        else:
            S.put(33, w); S.put(34, "s_barrier")
            seq, pend = lgkm_waits(S.flat())
            assert not pend
        if OPT['verbose']: print(S.report("q_body"))
        bodies.append(seq)
    hist = bodies[3][-24:]
    A(".p2align 6", "L_q_loop:")
    for bi, b in enumerate(bodies):
        b2, n = hazards(b, history=hist); L.extend(b2); hist = b2[-24:]
        if OPT.get('stst') and bi < 2: A(f"s_cmp_eq_u32 {S_CNT}, 0", f"s_cbranch_scc0 L_nost{bi}", stamp(f"body{bi}"), f"L_nost{bi}:")
    A(f"s_add_u32 {S_TM}, {S_TM}, 16384", f"s_add_u32 {S_TS}, {S_TS}, 8192", f"s_add_u32 {S_CNT}, {S_CNT}, 1")
    if l2:
        A("s_mov_b64 vcc, 0", f"s_cmp_eq_u32 {S_CNT}, 1", "s_cbranch_scc1 L_q_to1", "L_q_to1_done:")
    A(f"s_cmp_eq_u32 {S_CNT}, 2", "s_cbranch_scc0 L_q_tov_done",
      "s_mov_b32 s96, s16", "s_mov_b32 s97, s17", f"s_add_u32 {S_TM}, {S_MV}, {vphys(0)}", f"s_mov_b32 {S_TS}, {S_TQ}")
    if l2: A("s_mov_b32 s92, s12", "s_mov_b32 s93, s13", f"s_add_u32 s37, {S_TQ}, {5*8192}")
    for n in range(4): A(f"v_mov_b32 v{V_TB[n]}, v{V_VD[n & 1]}")
    A("L_q_tov_done:", f"s_cmp_lt_u32 {S_CNT}, 3", "s_cbranch_scc1 L_q_loop")
    OOL = []
    if l2: OOL += II("L_q_to1:", "s_mov_b32 s92, s16", "s_mov_b32 s93, s17", f"s_add_u32 s37, {S_TQ}, {3*8192}", "s_branch L_q_to1_done")
    OOL += QOOL
    b, n = hazards(q_finish(q_body(12, True), 18 if l2 else 14), history=hist); L.extend(b)
    b, n = hazards(q_finish(q_body(13, False, extra_dma=half_group('V', 1)), 15 if l2 else 11), history=b[-24:]); L.extend(b)
    b, n = hazards(q_finish(q_body(14, False, extra_dma=half_group('K', 2) + half_group('V', 2)), 12), history=b[-24:]); L.extend(b)
    b, n = hazards(q_finish(q_body(15, False), 12), history=b[-24:]); L.extend(b)
    if OOL:
        A("s_branch L_q_after_ool")
        L.extend(OOL)
        A("L_q_after_ool:")
    A(stamp("q_loop_done"))
    return L

def q_tiles(s): return range(5) if s < 2 else range(4)
def q_scale(ss):
    return [I(f"v_pk_mul_f32 {vr(grp(t,s)+2*k,2)}, {vr(grp(t,s)+2*k,2)}, {vr(V_C0,2)}") for s in ss for t in q_tiles(s) for k in range(4)]
def q_cvt(ss):
    return [I(f"v_cvt_pk_bf16_f32 v{grp(t,s)+k}, v{grp(t,s)+2*k}, v{grp(t,s)+2*k+1}") for s in ss for t in q_tiles(s) for k in range(4)]
QX = 155648

def transition():
    L = []; A = lambda *x: L.extend(II(*x))
    A(f"s_add_u32 {S_SOFFK}, {S_TQ}, {5*8192}", f"s_add_u32 {S_SOFFV}, {S_TQ}, {4*8192}")
    A(f"v_mov_b32 v{V_C0}, {hex(f2u(SCALE))}", f"v_mov_b32 v{V_C1}, {hex(f2u(SCALE))}")
    A(f"s_lshl_b32 s50, {S_W}, 11", f"s_add_u32 s50, s50, {QX}", f"v_lshlrev_b32 v7, 4, {V_LANE}", "v_add_u32 v8, s50, v7",
      "s_xor_b32 s50, s50, 2048", "v_add_u32 v9, s50, v7")
    k3 = half_group('K', 3)
    seq = [k_read(kt, s, 0) for kt in range(2) for s in range(4)]
    sc = q_scale((0, 1))
    seq += II("s_nop 3") + sc
    S = Sched(q_tail())
    cv = q_cvt((0, 1))
    sh = lambda c: any(f"v{grp(4,s)+k}," in c.txt.split()[1] + "," for s in (0, 1) for k in range(4))
    cv = [c for c in cv if sh(c)] + [c for c in cv if not sh(c)]
    S.spread(cv, [min(i * 2 // 5, 15) for i in range(40)])
    S.put(5, f"ds_write_b128 v8, {vr(grp(4,0))}"); S.put(7, f"ds_write_b128 v8, {vr(grp(4,1))} offset:1024")
    seq += S.flat()
    seq += II("s_waitcnt lgkmcnt(0)", "s_barrier", f"ds_read_b128 {vr(grp(4,2))}, v9", f"ds_read_b128 {vr(grp(4,3))}, v9 offset:1024")
    sc = q_scale((2, 3))
    seq += II("s_nop 3") + k3[0][0] + sc[:8] + [k3[0][1]] + sc[8:16] + [k3[1][1]] + sc[16:24] + [k3[2][1]] + sc[24:] + [k3[3][1]]
    qk = lambda kt, ss, c: [qk_mfma(kt, s, t, c) for s in ss for t in range(5)]
    S = Sched(qk(0, (0, 1), lambda t: "0") + qk(0, (2, 3), lambda t: "0"))
    S.spread(q_cvt((2, 3)), [min(i * 5 // 16, 9) for i in range(32)])
    S.spread([f"v_mov_b32 v{Preg(1,t)+k}, 0" for t in range(5) for k in range(4)], [10 + i // 2 for i in range(20)])
    seq += S.flat()
    seq += straight(half_group('V', 3))
    seq, _ = lgkm_waits(seq, final_zero=True)
    seq, n = hazards(seq); L.extend(seq)
    A(stamp("qk0_done"))
    A(f"s_cmp_eq_u32 {S_SAFE}, 1", "s_cbranch_scc1 L_safe_max")
    T = [2, 3, 4, 5, 6]
    U = [7, 8, 9, 10, 11]
    E = II("s_nop 5")
    for t in range(5): E += II(f"v_max3_f32 v{T[t]}, v{Sreg(0,t)}, v{Sreg(0,t)+1}, v{Sreg(0,t)+2}")
    for t in range(5): E += II(f"v_max_f32 v{T[t]}, v{T[t]}, v{Sreg(0,t)+3}")
    E += row_max_finish(T, U)
    S = Sched(qk(1, range(4), lambda t: vr(cinit(t))))
    sub = [f"v_add_f32 v{Sreg(0,t)+k}, v{Sreg(0,t)+k}, v{cinit(t)}" for t in range(5) for k in range(4)]
    ex = [f"v_exp_f32 v{Sreg(0,t)+k}, v{Sreg(0,t)+k}" for t in range(5) for k in range(4)]
    S.spread(sub, [i // 2 for i in range(20)])
    S.spread(ex, [min(2 + i, 19) for i in range(20)])
    E += S.flat()
    E += II("s_barrier")
    E += II("s_nop 3") + exps(1)
    E, n = hazards(E, history=L[-24:]); L.extend(E)
    A("L_max_done:")
    A(straight(half_group('K', 4)))
    return L

def row_max_finish(T, U):
    E = []
    for sw in ("v_permlane32_swap_b32", "v_permlane16_swap_b32"):
        for t in range(5): E += II(f"v_mov_b32 v{U[t]}, v{T[t]}")
        for t in range(5): E += II(f"{sw} v{T[t]}, v{U[t]}")
        for t in range(5): E += II(f"v_max_f32 v{T[t]}, v{T[t]}, v{U[t]}")
    for t in range(5):
        for k in range(4): E += II(f"v_sub_f32 v{cinit(t)+k}, 0, v{T[t]}")
    return E

def safe_paths():
    L = []; A = lambda *x: L.extend(II(*x))
    T = [2, 3, 4, 5, 6]; U = [7, 8, 9, 10, 11]
    ab = [(Sreg(0, t), Sreg(1, t)) for t in range(5)]
    A("L_safe_max:")
    for t in range(5): A(f"v_mov_b32 v{T[t]}, 0xff800000")
    A(f"s_mov_b32 {S_CNT}, 0")
    A("L_safe_loop:")
    A("s_waitcnt vmcnt(0) lgkmcnt(0)", "s_barrier")
    A(f"s_and_b32 s50, {S_CNT}, 15", "s_lshl_b32 s50, s50, 13", f"s_add_u32 s51, s50, {S_TQ}", f"s_add_u32 m0, {S_MK}, {kphys(0)}", "s_nop 0")
    A(kv_group('K', None, "s51"))
    A("s_waitcnt vmcnt(0)", "s_barrier")
    A([k_read(kt, s, 0) for kt in range(2) for s in range(4)], "s_waitcnt lgkmcnt(0)")
    A(f"s_cmp_eq_u32 {S_CNT}, 16", "s_cbranch_scc1 L_safe_last")
    A([qk_mfma(kt, s, t, lambda t: "0") for kt in range(2) for s in range(4) for t in range(5)], "s_nop 7", "s_nop 7")
    for t, (a, b) in enumerate(ab):
        A(f"v_max3_f32 v{T[t]}, v{T[t]}, v{a}, v{a+1}", f"v_max3_f32 v{T[t]}, v{T[t]}, v{a+2}, v{a+3}",
          f"v_max3_f32 v{T[t]}, v{T[t]}, v{b}, v{b+1}", f"v_max3_f32 v{T[t]}, v{T[t]}, v{b+2}, v{b+3}")
    A(f"s_add_u32 {S_CNT}, {S_CNT}, 1", f"s_cmp_lt_u32 {S_CNT}, 16", "s_cbranch_scc1 L_safe_loop")
    E, n = hazards(II("s_nop 3") + row_max_finish(T, U)); L.extend(E)
    A("s_branch L_safe_loop")
    A("L_safe_last:", "s_nop 3")
    A([qk_mfma(kt, s, t, lambda t: vr(cinit(t))) for kt in range(2) for s in range(4) for t in range(5)], "s_nop 7", "s_nop 7")
    A("s_barrier")
    for t, (a, b) in enumerate(ab):
        for base in (a, b):
            for k in range(4): A(f"v_exp_f32 v{base+k}, v{base+k}")
    A("s_nop 1", "s_branch L_max_done")
    if OPT['fused']:
        A("L_cnt_spin:", f"s_mov_b32 s53, {SPIN}", "L_cnt_spin_loop:", "s_sleep 2",
          f"buffer_load_dword v15, v14, {SRD_D}, 0 offen sc1", "s_waitcnt vmcnt(0)", "v_readfirstlane_b32 s52, v15", "s_nop 3",
          "s_cmp_ge_u32 s52, 16", "s_cbranch_scc1 L_cnt_ok", "s_sub_u32 s53, s53, 1", "s_cmp_lg_u32 s53, 0", "s_cbranch_scc1 L_cnt_spin_loop", "s_branch L_cnt_ok")
    A("L_restart:", f"s_mov_b32 {S_SAFE}, 1", "s_waitcnt vmcnt(0) lgkmcnt(0)", "s_barrier")
    A(lane_consts_q())
    A("s_branch L_phase_q")
    return L

def k_read(kt, s, slotk):
    off = kphys(slotk) + kt * 4096
    return I(f"ds_read_b128 {ar(kbuf(kt, s))}, v{V_KR[s]}" + (f" offset:{off}" if off else ""))
def v_read(dt, h, slotv):
    off = vphys(slotv) + h * 4096
    return I(f"ds_read_b64_tr_b16 {ar(abuf(dt) + 2*h, 2)}, v{V_VR[dt]}" + (f" offset:{off}" if off else ""))
def qk_mfma(kt, s, t, first_c):
    c = first_c(t) if s == 0 else vr(Sreg(kt, t))
    return mfma(vr(Sreg(kt, t)), ar(kbuf(kt, s)), vr(qfrag(t, s)), c)
def pv_mfma(dt, t, par):
    return mfma(ar(oacc(dt, t)), ar(abuf(dt)), vr(Preg(par, t)), ar(oacc(dt, t)))
def rs_mfma(t, par):
    return mfma(ar(lacc(t)), ar(A_ONES), vr(Preg(par, t)), ar(lacc(t)))
def cvts(par):
    out = []
    for kt in range(2):
        for t in range(5):
            s = Sreg(kt, t); p = Preg(par, t) + 2 * kt
            out.append(I(f"v_cvt_pk_bf16_f32 v{p}, v{s}, v{s+1}"))
            out.append(I(f"v_cvt_pk_bf16_f32 v{p+1}, v{s+2}, v{s+3}"))
    return out
def exps(kt):
    return [I(f"v_exp_f32 v{Sreg(kt,t)+i}, v{Sreg(kt,t)+i}") for t in range(5) for i in range(4)]

def att_dma(j, dyn=False):
    seq = []
    if j == 0 or j > 12: return seq
    if True:
        pre = II(f"s_add_u32 m0, {S_MK}, {kphys(j + 4)}")
        g = kv_group('K', None, S_SOFFK)
        seq += [(pre, g[0])] + [([], x) for x in g[1:]]
        seq[-1] = (seq[-1][0], seq[-1][1], II(f"s_add_u32 {S_SOFFK}, {S_SOFFK}, 8192"))
    if j + 3 <= 15:
        pre = II(f"s_add_u32 m0, {S_MV}, {vphys(j + 3)}")
        g = kv_group('V', None, S_SOFFV)
        s2 = [(pre, g[0])] + [([], x) for x in g[1:]]
        s2[-1] = (s2[-1][0], s2[-1][1], II(f"s_add_u32 {S_SOFFV}, {S_SOFFV}, 8192"))
        seq += s2
    return seq

def wo_dma(ks, slot_base_imm):
    seq = []
    for gI in range(2):
        pre = II(f"s_lshl_b32 s50, {S_W}, 13", f"s_add_u32 m0, s50, {slot_base_imm + gI*4096}", f"s_mov_b32 s51, {ks*32768 + gI*16384}")
        for n in range(4):
            seq.append((pre if n == 0 else [], dma(V_WOD[n], SRD_WO, "s51", n * 1024, OPT["wont"])))
    return seq

def att_body(j, vmwait, extra_dma=None):
    par_old, par_new = (j - 1) & 1, j & 1
    ms = [pv_mfma(dt, t, par_old) for dt in (5, 6, 7) for t in range(5)] + [rs_mfma(t, par_old) for t in range(5)]
    ms += [qk_mfma(kt, s, t, lambda t: vr(cinit(t))) for kt in range(2) for s in range(4) for t in range(5)]
    ms += [pv_mfma(dt, t, par_new) for dt in range(5) for t in range(5)]
    S = Sched(ms)
    cv = cvts(par_new)
    S.spread(cv, [1, 1, 3, 3, 6, 6, 8, 8, 11, 11, 13, 13, 16, 16, 18, 18, 21, 21, 23, 23])
    S.spread([k_read(kt, s, j + 1) for kt in range(2) for s in range(4)], [0, 2, 5, 7, 10, 12, 15, 17])
    vr_ = [v_read(dt, h, j) for dt in range(8) for h in range(2)]
    S.spread(vr_, [20, 22, 25, 26, 27, 28, 30, 31, 32, 33, 35, 36, 37, 38, 40, 61])
    d = att_dma(j) + (extra_dma or [])
    put_dmas(S, d, [4, 9, 14, 19, 24, 29, 34, 39])
    S.spread(exps(0), list(range(41, 61)))
    S.spread(exps(1), list(range(62, 82)))
    seq = S.flat()
    seq, pend = lgkm_waits(seq)
    seq += tr_mark() + II(f"s_waitcnt vmcnt({vmwait}) lgkmcnt(0)") + tr_commit() + II("s_barrier")
    if OPT['verbose']: print(S.report(f"att_body {j}"))
    return seq

WO1 = [192, 200, 208, 216, 224, 228, 232, 236]
def wofrag(ks, m, n=4, off=0):
    if ks == 0: return ar(216 + 4 * m + off, n)
    if ks == 1: return vr(WO1[m] + off, n)
    return ar((ks - 2) * 32 + 4 * m + off, n)
def wo_read(ks, m, h):
    cp, hf = m >> 1, m & 1
    off = (32768 if (ks & 1) == 0 else 0) + hf * 8 + h * 4096
    return I(f"ds_read_b64_tr_b16 {wofrag(ks, m, 2, 2*h)}, v{V_WOR[cp]}" + (f" offset:{off}" if off else ""))

def wo_prefetch(shift=0):
    n = OPT['pfw']
    L = II(f"s_add_u32 s50, {S_B}, {shift}", "s_and_b32 s50, s50, 7", "s_lshl_b32 s50, s50, 15", f"s_lshl_b32 s51, {S_W}, 13", "s_add_u32 s50, s50, s51")
    nt = " nt" if OPT['pfnt'] else ""
    if n == 8:
        L += II(f"v_lshlrev_b32 v46, 4, {V_LANE}")
        for i in range(8):
            L += II(f"s_add_u32 s51, s50, {i*1024}", f"buffer_load_dwordx4 v[252:255], v46, s[84:87], s51 offen{nt}")
    else:
        sh = {1: 7, 2: 6, 4: 5}[n]
        L += II(f"v_lshlrev_b32 v46, {sh}, {V_LANE}")
        for i in range(n):
            L += II(f"s_add_u32 s51, s50, {i * (64 << sh)}", f"buffer_load_dword v47, v46, s[84:87], s51 offen{nt}")
    return L

ATT_OOL = []
def attention():
    L = []; A = lambda *x: L.extend(II(*x))
    L += transition()
    A(stamp("att_start"))
    A(f"s_mov_b32 {S_CNT}, 0")
    b0, n = hazards(att_body(0, 16), history=L[-24:]); L.extend(b0)
    bodies = [att_body(j, 16) for j in range(1, 5)]
    hist = bodies[3][-24:]
    A(".p2align 6", "L_att_loop:")
    OOLA = []
    for i, b in enumerate(bodies):
        if i == 3:
            A(f"s_cmp_eq_u32 {S_CNT}, 2", "s_cbranch_scc0 L_att_nok_done")
            for n in range(4): A(f"v_add_u32 v{V_KD[n]}, 0x40000000, v{V_KD[n]}")
            A("L_att_nok_done:")
        b2, n = hazards(b, history=hist); L.extend(b2); hist = b2[-24:]
    if 0 <= OPT['pf'] < 3:
        A(f"s_cmp_eq_u32 {S_CNT}, {OPT['pf']}", "s_cbranch_scc0 L_att_nopf", wo_prefetch(), (wo_prefetch(4) if OPT.get('pfdup') else []), "L_att_nopf:")
    A(f"s_add_u32 {S_CNT}, {S_CNT}, 1", f"s_cmp_lt_u32 {S_CNT}, 3", "s_cbranch_scc1 L_att_loop")
    ATT_OOL.clear(); ATT_OOL.extend(OOLA)
    b, n = hazards(att_body(13, 16, extra_dma=wo_dma(0, WOA)), history=hist); L.extend(b); hist = b[-24:]
    if OPT.get('pf2nd'): A(wo_prefetch(4))
    b, n = hazards(att_body(14, 16, extra_dma=wo_dma(1, WOB)), history=hist); L.extend(b); hist = b[-24:]
    A(stamp("att_loop_done"))
    ms = [pv_mfma(dt, t, 0) for dt in (5, 6, 7) for t in range(5)] + [rs_mfma(t, 0) for t in range(5)]
    ms += [pv_mfma(dt, t, 1) for dt in range(8) for t in range(5)] + [rs_mfma(t, 1) for t in range(5)]
    S = Sched(ms)
    S.spread(cvts(1), list(range(0, 20)))
    S.spread([v_read(dt, h, 15) for dt in range(5) for h in range(2)], list(range(0, 10)))
    S.spread([v_read(dt, h, 15) for dt in (5, 6, 7) for h in range(2)], list(range(15, 21)))
    S.put(20, "s_waitcnt vmcnt(8)")
    S.spread([wo_read(0, m, h) for m in range(8) for h in range(2)], [21 + i // 2 for i in range(16)])
    S.put(28, "s_waitcnt vmcnt(0)")
    S.spread([wo_read(1, m, h) for m in range(8) for h in range(2)], [29 + i // 2 for i in range(16)])
    S.put(38, "s_waitcnt lgkmcnt(0)")
    if OPT['fused']:
        S.put(36, f"s_lshl_b32 s50, {S_CL}, 2", f"s_add_u32 s50, s50, {CNTOFF()}")
        S.spread([f"v_lshlrev_b32 v14, 8, {V_LANE}", "v_add_u32 v14, s50, v14"], [37, 37])
        S.put(38, f"buffer_load_dword v15, v14, {SRD_D}, 0 offen sc1")
    put_dmas(S, wo_dma(2, WOA), [41, 44, 47, 50, 54, 57, 60, 63])
    seq, pend = lgkm_waits(S.flat(), final_zero=True)
    seq, n = hazards(seq, history=hist); L.extend(seq)
    A("s_barrier")
    A("s_nop 3")
    A(stamp("att_done"))
    return L

def wo_dma_t(ks):
    d = wo_dma(ks, WOA if (ks & 1) == 0 else WOB)
    for e in d: e[1].tag = f"wo{ks}"
    return d
def wo_reads(ks): return [wo_read(ks, m, h) for m in range(8) for h in range(2)]

LFLAG = 90112

def o_epilogue():
    E = []
    tl = VT[0]; rc = VT[2]
    d3, d4, d5 = wo_dma_t(3), wo_dma_t(4), wo_dma_t(5)
    E += II(f"s_lshl_b32 s51, {S_QH}, 11", f"v_subrev_u32 v{V_OWB}, s51, v{V_OW}", f"v_add_u32 v{V_OW}, s51, v{V_OW}",
            f"s_lshl_b32 s50, {S_U}, 12", f"s_add_u32 s50, s50, 32768", "s_add_u32 s50, s50, s51", f"v_add_u32 v{V_OW4}, s50, v{V_OR}")
    def emit_dma(e):
        return e[0] + II("s_nop 0") * (1 if e[0] else 0) + [e[1]]
    nfr = 0
    for t in range(5):
        E += II(f"v_accvgpr_read_b32 v{tl}, a{lacc(t)}", f"v_rcp_f32 v{rc}, v{tl}", "s_nop 0", f"v_mov_b32 v{rc+1}, v{rc}")
        if t == 0: E += II(f"v_mov_b32 v{VT[1]}, v{tl}")
        else: E += II(f"v_max_f32 v{VT[1]}, v{VT[1]}, v{tl}")
        if t == 4:
            E += II(f"v_cmp_nge_f32 vcc, {hex(OPT['lthr'] or LTHR)}, v{VT[1]}", f"s_lshl_b32 s50, {S_W}, 2", f"s_add_u32 s50, s50, {LFLAG}", f"v_mov_b32 v52, s50",
                    "s_cmp_lg_u64 vcc, 0", "s_cselect_b32 s51, 1, 0", "v_mov_b32 v53, s51", "ds_write_b32 v52, v53")
        for ks in range(4 if t < 4 else 2):
            mid = []
            if nfr < 8: mid += emit_dma(d3[nfr])
            if 8 <= nfr < 16: mid += emit_dma(d4[nfr - 8])
            if nfr >= 16:
                for i in range(4): mid += emit_dma(d5[4 * (nfr - 16) + i])
            if OPT.get('x_oenodma'): mid = [x for x in mid if x.kind == 'dma'][:0] + [x for x in mid if x.kind != 'dma']
            rd = []
            cut = {0: (0, 6), 1: (6, 11), 2: (11, 16)}
            if 4 <= nfr < 7:
                if nfr == 4:
                    rd += [VmNeed("wo2")]
                    if OPT['fused']:
                        rd += II("v_readfirstlane_b32 s52, v15", "s_nop 3", "s_cmp_lt_u32 s52, 16", "s_cbranch_scc1 L_cnt_spin", "L_cnt_ok:")
                a_, b_ = cut[nfr - 4]; rd += wo_reads(2)[a_:b_]
            if 12 <= nfr < 15:
                if nfr == 12: rd += [VmNeed("wo3")]
                a_, b_ = cut[nfr - 12]; rd += wo_reads(3)[a_:b_]
            if OPT.get('oe_nord'): rd = [x for x in rd if x.kind != 'dsr']
            if OPT.get('oe_nowait'): rd = [x for x in rd if not isinstance(x, VmNeed)]
            if OPT.get('oe_nodma'): mid = []; rd = [x for x in rd if not (isinstance(x, VmNeed) and x.tag == 'wo3')]
            if nfr in (8, 16): E += II("s_waitcnt lgkmcnt(0)")
            E += rd
            for h in range(2):
                for k in range(4):
                    E += II(f"v_accvgpr_read_b32 v{52 + 4*h + k}, a{oacc(2*ks + h, t) + k}")
            E += mid
            for k in range(4): E += II(f"v_pk_mul_f32 {vr(52+2*k,2)}, {vr(52+2*k,2)}, {vr(rc,2)}")
            for k in range(4): E += II(f"v_cvt_pk_bf16_f32 v{60+k}, v{52+2*k}, v{53+2*k}")
            E += II(f"ds_write_b128 v{V_OW if ks < 2 else V_OWB}, {vr(60)} offset:{(t*8+ks)*1024}" if t < 4 else f"ds_write_b128 v{V_OW4}, {vr(60)} offset:{ks*1024}")
            nfr += 1
        if OPT['stamps'] and OPT.get('oest'): E += [Raw("\n  ".join(x.txt for x in stamp(f"oe{t}")))] + II("s_waitcnt lgkmcnt(0)")
    E, q = vm_waits(E, ["cnt"] + ["wo2"] * 8)
    E, pend = lgkm_waits(E, final_zero=True)
    E, n = hazards(E)
    return E + II("s_barrier"), q

def o_read(dst, t, ks):
    if t < 8: return I(f"ds_read_b128 {vr(dst)}, v{V_OR} offset:{(t*8+ks)*1024}")
    return I(f"ds_read_b128 {vr(dst)}, v{V_OR8} offset:{ks*1024}")
V_PSC = [196, 197, 198, 199]
V_OWNA = 204; S_OWN = "s49"
OWNB = 73728
OWN_OOL = []
OWN_BLK = {}
def pstore(src, t, cp):
    v = V_PSC[cp] if OPT['own'] else V_PS
    return (II(f"s_add_u32 s51, {S_SOFFP}, {(cp*9 + t)*16384}"),
            I(f"buffer_store_dwordx4 {vr(src)}, v{v}, {SRD_P}, s51 offen {OPT['pst']}"))
def own_hook(src, t, cp):
    if not OPT['own']: return []
    OWN_BLK.setdefault(t, []).extend(II(f"L_own_{t}_{cp}:", f"ds_write_b128 v{V_OWNA}, {vr(src)} offset:{t*1024}", f"s_branch L_ownb_{t}_{cp}"))
    return II(f"s_cmp_eq_u32 {S_OWN}, {cp}", f"s_cbranch_scc1 L_own_{t}_{cp}", f"L_ownb_{t}_{cp}:")

NP1 = 2
def acc1(t, m): return 64 + (t * 8 + m) * 4
def acc2(t, m): return 128 + ((t & 1) * 8 + m) * 4
def bfr1(par, t): return 2 + (par * 4 + t) * 4
STG = [48, 52, 56, 60]

def tile_epilogue(accf, t, k0):
    out = []
    for cp in range(4):
        a0, a1 = accf(t, 2*cp), accf(t, 2*cp + 1)
        d = STG[(k0 + cp) & 3]
        cv = II(f"v_cvt_pk_bf16_f32 v{d}, v{a0}, v{a0+1}", f"v_cvt_pk_bf16_f32 v{d+1}, v{a0+2}, v{a0+3}",
                f"v_cvt_pk_bf16_f32 v{d+2}, v{a1}, v{a1+1}", f"v_cvt_pk_bf16_f32 v{d+3}, v{a1+2}, v{a1+3}")
        pre, st = pstore(d, t, cp)
        if OPT.get('x_nost') and not (t == 8 and cp == 3): st = I("s_nop 0")
        st.tag = f"st{t}"
        out.append((cv, (pre, st), own_hook(d, t, cp)))
    return out

def out_proj(queue):
    L = []; A = lambda *x: L.extend(II(*x))
    A(f"s_mul_i32 {S_SOFFP}, {S_W}, {4*9*16384}")
    OWN_OOL.clear(); OWN_BLK.clear()
    if OPT['own']:
        A(f"s_lshr_b32 s50, {S_HP}, 2", f"s_and_b32 s51, {S_HP}, 3", f"s_cmp_eq_u32 s50, {S_W}", f"s_cselect_b32 {S_OWN}, s51, 7")
        for cp in range(4):
            A(f"s_cmp_eq_u32 {S_OWN}, {cp}", "s_cselect_b32 s50, 0x40000000, 0", f"v_or_b32 v{V_PSC[cp]}, s50, v{V_PS}")
        A(f"v_add_u32 v{V_OWNA}, {OWNB}, v{V_OR}")
    NP = OPT['np1']
    G = 8 * NP
    ms = [mfma(vr(acc1(t, m)), wofrag(ks, m), vr(bfr1(ks & 1, t)), ("0" if ks == 0 else vr(acc1(t, m)))) for ks in range(8) for m in range(8) for t in range(NP)]
    bt = lambda ks: 2 + 4 * ks
    P1 = len(ms)
    for t in range(NP, 9):
        ms += [mfma(vr(acc2(t, m)), wofrag(ks, m), vr(bt(ks)), ("0" if ks == 0 else vr(acc2(t, m)))) for ks in range(8) for m in range(8)]
    S = Sched(ms)
    def reads(ks, g0): S.spread(wo_reads(ks), [g0 + i // 2 for i in range(16)])
    def dmas(ks, g0, step=4): put_dmas(S, wo_dma_t(ks), [g0 + step * i for i in range(8)])
    def put_free(ins, g0):
        g = g0
        while S.cost(g) + COST[ins.kind] > 8: g += 1
        S.put(g, ins); return g
    def epi(t, accf, g0, stride):
        for cp, (cv, (spre, st), hook) in enumerate(tile_epilogue(accf, t, 0)):
            g = g0 + cp * stride
            S.spread(cv, [g, g, g + 1, g + 1])
            for p in spre: S.put(g + 1, p)
            for p in hook: S.put(g + 2, p)
            S.put(g + 2, st)
        if OPT['own']:
            blk = OWN_BLK.pop(t)
            S.put(g0 + 3 * stride + 4, Raw(f"s_branch L_ownx_{t}\n" + "\n".join((x.txt if x.kind == 'label' else "  " + x.txt) for x in blk) + f"\nL_ownx_{t}:"))
    if NP == 2:
        pre = [o_read(bfr1(0, t), t, 0) for t in range(NP)]
        S.put(0, VmNeed("wo4")); reads(4, 0)
        S.put(9, "s_waitcnt lgkmcnt(0)"); dmas(6, 11, 3)
        S.put(33, VmNeed("wo5")); reads(5, 33)
        S.put(42, "s_waitcnt lgkmcnt(0)"); dmas(7, 44, 3)
        S.put(84, VmNeed("wo6")); reads(6, 84)
        S.put(100, VmNeed("wo7")); reads(7, 100)
        for ks in range(7):
            g = ks * G + (1 if ks else 8)
            for t in range(NP):
                g = put_free(o_read(bfr1((ks + 1) & 1, t), t, ks + 1), g) + 1
            assert g <= (ks + 1) * G - 3, (ks, g)
        g = 6 * G + 4
        for ks in (2, 3, 6, 7): g = put_free(o_read(bt(ks), NP, ks), g) + 1
        g = 7 * G + 1
        for ks in (0, 1): g = put_free(o_read(bt(ks), NP, ks), g) + 1
        base = P1
        for ks in (4, 5): put_free(o_read(bt(ks), NP, ks), base + 1)
        epi(0, acc1, base + 4, 7); epi(1, acc1, base + 32, 7)
    else:
        assert NP == 0
        pre = [o_read(bt(ks), 0, ks) for ks in range(8)]
        S.put(0, VmNeed("wo4")); reads(4, 0)
        S.put(9, "s_waitcnt lgkmcnt(0)"); dmas(6, 11, 2)
        S.put(10, VmNeed("wo5"));
        S.spread(wo_reads(5), [12, 12, 14, 14, 16, 16, 18, 18, 20, 20, 22, 22, 24, 24, 26, 26])
        S.put(28, "s_waitcnt lgkmcnt(0)"); dmas(7, 30, 2)
        S.put(46, VmNeed("wo6")); S.spread(wo_reads(6), [46, 46, 46, 46] + [47 + i // 4 for i in range(12)])
        S.put(54, VmNeed("wo7")); S.spread(wo_reads(7), [54, 54, 54, 54] + [55 + i // 12 for i in range(12)])
    for t in range(NP, 9):
        b = P1 + (t - NP) * 64
        if t > NP: epi(t - 1, acc2, b + 6, 12)
        if t < 8:
            for ks in range(8):
                g = b + 8 * ks + 8
                if g >= b + 64: g = b + 64 + 1
                put_free(o_read(bt(ks), t + 1, ks), g)
    if OPT['fused']:
        g0 = P1 + (3 - NP) * 64 + 49
        S.put(g0, f"s_lshl_b32 s50, {S_W}, 7", f"s_lshl_b32 s52, {S_HP}, 2", "s_add_u32 s50, s50, s52")
        S.spread([f"v_lshlrev_b32 v36, 13, {V_LANE}", "v_add_u32 v36, s50, v36", "v_mov_b32 v37, 1"], [g0 + 1, g0 + 1, g0 + 2])
        S.put(g0 + 3, f"s_lshr_b32 s50, {S_HP}, 2", "s_lshl_b32 s50, s50, 7")
        S.spread([f"v_lshrrev_b32 v46, 4, {V_LANE}", "v_lshlrev_b32 v46, 9, v46", f"v_and_b32 v47, 15, {V_LANE}",
                  "v_lshl_add_u32 v46, v47, 2, v46", "v_add_u32 v46, s50, v46"], [g0 + 4, g0 + 4, g0 + 5, g0 + 9, g0 + 9])
        b = P1 + (8 - NP) * 64
        fa = I(f"buffer_store_dword v37, v36, {SRD_F}, 0 offen sc1"); fa.tag = "fl"
        if OPT['early']:
            S.put(b + 40, VmNeed("st3")); S.put(b + 41, fa)
            pl = I(f"buffer_load_dword v47, v46, {SRD_F}, 0 offen sc1"); pl.tag = "poll"
            S.put(b + 60, pl)
    if OPT['stamps'] and OPT.get('opst'):
        for nm, g in (("w1", 127), ("w3", 255), ("w5", 383), ("w8", 575)):
            S.put(g, Raw("\n  ".join(x.txt for x in stamp(nm))))
            S.put(g, "s_waitcnt lgkmcnt(0)")
    pre = II(f"v_mov_b32 v56, {LFLAG}", f"ds_read_b128 {vr(52)}, v56") + pre
    pre += II("s_waitcnt lgkmcnt(0)", "v_or3_b32 v52, v52, v53, v54", "v_or_b32 v52, v52, v55", "s_nop 0", "v_readfirstlane_b32 s50, v52", "s_nop 3",
              f"s_andn2_b32 s50, s50, {S_SAFE}", "s_cmp_lg_u32 s50, 0", "s_cbranch_scc1 L_restart")
    seq = pre + S.flat()
    tail = II("s_nop 7")
    for cp, (cv, (spre, st), hook) in enumerate(tile_epilogue(acc2, 8, 0)):
        tail += cv + spre + hook + [st]
    if OPT['own']:
        tail += II("s_branch L_ownx_8") + OWN_BLK.pop(8) + II("L_ownx_8:")
    if OPT['stamps'] and OPT.get('opst'): tail += stamp("st_iss")
    if OPT['fused']:
        fb = I(f"buffer_store_dword v37, v36, {SRD_F}, 0 offen offset:512 sc1"); fb.tag = "fl"
        fc = I(f"buffer_store_dword v37, v36, {SRD_F}, 0 offen offset:1024 sc1"); fc.tag = "fl"
        tail += [VmNeed("poll"), fb, VmNeed("st8"), fc] if OPT['early'] else [VmNeed("st8"), fa, fb, fc]
    seq, q = vm_waits(seq + tail, queue)
    seq, pend = lgkm_waits(seq)
    seq, n = hazards(seq)
    if OPT['verbose']: print(S.report("out_proj"), "nops", n)
    L += seq
    return L, q

SPIN = 1 << 22
def reduce_phase():
    L = []; A = lambda *x: L.extend(II(*x))
    DAT = lambda g, tt, k: 64 + ((g * 2 + tt) * 4 + k) * 4
    D8 = lambda k: 192 + 4 * k
    ACC = lambda g, tt: [208, 216, 224, 232, 240, 248, 2, 10][g * 2 + tt]
    A8 = 18
    T0, T1 = 26, 28
    V_POLL, V_FL, V_L16, V_OUT = 46, 47, 32, 33
    A(f"v_lshrrev_b32 v30, 4, {V_LANE}", f"v_and_b32 v31, 15, {V_LANE}", f"v_lshlrev_b32 v{V_L16}, 4, {V_LANE}",
      f"v_lshlrev_b32 v{V_OUT}, 11, v31", f"v_lshl_add_u32 v{V_OUT}, v30, 4, v{V_OUT}")
    A(f"s_mul_i32 s32, {S_B}, {144*2048}", f"s_lshl_b32 s50, {S_BR}, 10", "s_add_u32 s32, s32, s50", f"s_lshl_b32 s50, {S_HP}, 6", "s_add_u32 s32, s32, s50")
    A(f"s_mul_i32 s33, {S_HP}, {9*16384}")
    A(f"s_lshl_b32 s50, {S_W}, 14", "s_add_u32 s34, s33, s50", "s_add_u32 s35, s34, 65536",
      f"s_add_u32 s36, s33, {8*16384}", f"s_lshl_b32 s50, {S_W}, 12", "s_add_u32 s36, s36, s50",
      f"s_lshl_b32 s41, {S_W}, 2")
    A("s_mov_b32 s37, 0", "s_mov_b32 s38, 0", f"s_mov_b32 s53, {SPIN}")
    if OPT['own']:
        A(f"s_lshr_b32 s46, {S_HP}, 2", f"s_and_b32 s47, {S_HP}, 3", f"s_lshl_b32 s50, {S_W}, 10", f"s_add_u32 s50, s50, {OWNB}", f"v_add_u32 v44, s50, v{V_L16}")
        if not OPT['latebar']:
            A("s_waitcnt lgkmcnt(0)", "s_barrier", "ds_read_b128 v[36:39], v44", "ds_read_b128 v[40:43], v44 offset:4096")
    def unpack_add(acc, src, first):
        out = []
        for k in range(4):
            if first:
                out += [f"v_lshlrev_b32 v{acc+2*k}, 16, v{src+k}", f"v_and_b32 v{acc+2*k+1}, 0xffff0000, v{src+k}"]
            else:
                t = (T0, T1)[k & 1]
                out += [f"v_lshlrev_b32 v{t}, 16, v{src+k}", f"v_and_b32 v{t+1}, 0xffff0000, v{src+k}",
                        f"v_pk_add_f32 v[{acc+2*k}:{acc+2*k+1}], v[{acc+2*k}:{acc+2*k+1}], v[{t}:{t+1}]"]
        return out
    items = [(tt, g) for tt in range(2) for g in range(4)] + [(2, None)]
    if OPT['early']: A("s_branch L_red_first")
    A("L_red_loop:")
    A("s_cmp_eq_u32 s37, 0x1ff", "s_cbranch_scc1 L_red_nopoll")
    A(f"buffer_load_dword v{V_FL}, v{V_POLL}, {SRD_F}, 0 offen sc1")
    A("L_red_nopoll:", "s_waitcnt vmcnt(0)")
    A("s_andn2_b32 s42, s37, s38")
    for i, (tt, g) in enumerate(items):
        if tt < 2 and g == 0: A(f"s_and_b32 s50, s42, {hex(15 << (4 * tt))}", f"s_cbranch_scc0 L_red_nosumc{tt}")
        A(f"s_bitcmp1_b32 s42, {i}", f"s_cbranch_scc0 L_red_nosum{i}")
        for k in range(4):
            A(unpack_add(ACC(g, tt), DAT(g, tt, k), k == 0) if tt < 2 else unpack_add(A8, D8(k), k == 0))
        A(f"L_red_nosum{i}:")
        if tt < 2 and g == 3: A(f"L_red_nosumc{tt}:")
    A("s_mov_b32 s38, s37", "s_cmp_eq_u32 s38, 0x1ff", "s_cbranch_scc1 L_red_done")
    A("L_red_first:")
    A(f"v_cmp_eq_u32 vcc, 1, v{V_FL}", "s_nop 3", "s_mov_b32 s39, vcc_lo", "s_lshr_b32 s43, vcc_hi, s41", "s_and_b32 s43, s43, 15", "s_mov_b32 s40, s37")
    A("s_sub_u32 s53, s53, 1", "s_cmp_eq_u32 s53, 0", "s_cselect_b32 s39, -1, s39", "s_cselect_b32 s43, 15, s43", "s_cselect_b32 s53, 1, s53")
    for i, (tt, g) in enumerate(items):
        if tt < 2 and g == 0:
            A(f"s_bfe_u32 s50, s37, {hex((4 << 16) | (4 * tt))}", "s_cmp_eq_u32 s50, 15", f"s_cbranch_scc1 L_red_noissc{tt}",
              f"s_bfe_u32 s50, s39, {hex((16 << 16) | (16 * tt))}", "s_cmp_eq_u32 s50, 0", f"s_cbranch_scc1 L_red_noissc{tt}")
        A(f"s_bitcmp1_b32 s37, {i}", f"s_cbranch_scc1 L_red_noiss{i}")
        if tt < 2:
            A(f"s_bfe_u32 s50, s39, {hex((4 << 16) | (16 * tt + 4 * g))}", "s_cmp_eq_u32 s50, 15")
        else:
            A("s_cmp_eq_u32 s43, 15")
        A(f"s_cbranch_scc0 L_red_noiss{i}")
        if tt < 2: A(f"s_add_u32 s50, s{34+tt}, {g*4096}")
        if OPT['own']:
            A(f"s_cmp_eq_u32 s46, {g}" if tt < 2 else f"s_cmp_eq_u32 s46, {S_W}", "s_cselect_b32 s44, s47, 7")
        for k in range(4):
            o = f" offset:{k*1024}" if k else ""
            va = V_L16
            if OPT['own']:
                A(f"s_cmp_eq_u32 s44, {k}", "s_cselect_b32 s45, 0x40000000, 0", f"v_or_b32 v45, s45, v{V_L16}"); va = 45
            if tt < 2: A(f"buffer_load_dwordx4 {vr(DAT(g, tt, k))}, v{va}, {SRD_P}, s50 offen{o} {OPT['rld']}")
            else: A(f"buffer_load_dwordx4 {vr(D8(k))}, v{va}, {SRD_P}, s36 offen{o} {OPT['rld']}")
        A(f"s_bitset1_b32 s37, {i}", f"L_red_noiss{i}:")
        if tt < 2 and g == 3: A(f"L_red_noissc{tt}:")
    if OPT.get('rdst'):
        A("s_cmp_eq_u32 s40, 0", "s_cbranch_scc0 L_rs1", "s_cmp_lg_u32 s37, 0", "s_cbranch_scc0 L_rs1", stamp("r_first"), "L_rs1:")
        A("s_cmp_eq_u32 s37, 0x1ff", "s_cbranch_scc0 L_rs2", stamp("r_alliss"), "L_rs2:")
    A("s_cmp_lg_u32 s37, s40", "s_cbranch_scc1 L_red_loop", f"s_sleep {OPT['psleep']}", "s_branch L_red_loop")
    A("L_red_done:")
    if OPT.get('rdst'): A(stamp("r_summed"))
    A(f"s_lshl_b32 s50, {S_W}, 11", f"v_lshlrev_b32 v30, 5, {V_LANE}", f"v_add_u32 v30, {WOB}, v30", "v_add_u32 v31, s50, v30",
      f"ds_write_b128 v31, {vr(A8)}", f"ds_write_b128 v31, {vr(A8+4)} offset:16")
    late = OPT['own'] and OPT['latebar']
    for tt in range(2):
        a0 = ACC(0, tt)
        for g in range(1, 4):
            for k in range(4): A(f"v_pk_add_f32 v[{a0+2*k}:{a0+2*k+1}], v[{a0+2*k}:{a0+2*k+1}], v[{ACC(g,tt)+2*k}:{ACC(g,tt)+2*k+1}]")
    if late:
        A("s_waitcnt lgkmcnt(0)", "s_barrier", "ds_read_b128 v[36:39], v44", "ds_read_b128 v[40:43], v44 offset:4096")
    for tt in range(2):
        a0 = ACC(0, tt)
        if OPT['own']: A(("s_waitcnt lgkmcnt(1)" if late else "s_waitcnt lgkmcnt(2)") if tt == 0 else "s_waitcnt lgkmcnt(0)" if late else "s_nop 0", unpack_add(a0, 36 + 4 * tt, False))
        for k in range(4): A(f"v_cvt_pk_bf16_f32 v{64+4*tt+k}, v{a0+2*k}, v{a0+2*k+1}")
        A(f"s_lshl_b32 s50, {S_W}, 15", f"s_add_u32 s50, s50, s32", f"s_add_u32 s50, s50, {tt*4*32768}")
        A(f"buffer_store_dwordx4 {vr(64+4*tt)}, v{V_OUT}, {SRD_O}, s50 offen {OPT['ost']}")
    if not late: A("s_waitcnt lgkmcnt(0)", "s_barrier")
    A(f"s_cmp_eq_u32 {S_W}, 0", "s_cbranch_scc0 L_red_end")
    for g in range(4):
        A(f"ds_read_b128 {vr(80+8*g)}, v30 offset:{g*2048}", f"ds_read_b128 {vr(84+8*g)}, v30 offset:{g*2048+16}")
    if OPT['own']: A("ds_read_b128 v[36:39], v44 offset:8192")
    A("s_waitcnt lgkmcnt(0)")
    for g in range(1, 4):
        for k in range(4): A(f"v_pk_add_f32 v[{80+2*k}:{81+2*k}], v[{80+2*k}:{81+2*k}], v[{80+8*g+2*k}:{81+8*g+2*k}]")
    if OPT['own']: A(unpack_add(80, 36, False))
    for k in range(4): A(f"v_cvt_pk_bf16_f32 v{72+k}, v{80+2*k}, v{81+2*k}")
    A(f"s_add_u32 s50, s32, {8*32768}")
    A(f"buffer_store_dwordx4 {vr(72)}, v{V_OUT}, {SRD_O}, s50 offen {OPT['ost']}")
    A("L_red_end:")
    L2, n = hazards(L)
    return L2

def dump_regs(regs, slot, kind='v'):
    L = []; A = lambda *x: L.extend(II(*x))
    A("s_add_u32 s66, s58, 0x4000000", "s_addc_u32 s67, s59, 0",
      "s_lshl_b32 s50, s2, 2", f"s_add_u32 s50, s50, {S_W}", "s_lshl_b32 s50, s50, 16",
      f"v_lshlrev_b32 v253, 2, {V_LANE}", "v_add_u32 v253, s50, v253")
    for i, r in enumerate(regs):
        if kind == 'a':
            A(f"v_accvgpr_read_b32 v254, a{r}", "s_nop 0")
            A(f"global_store_dword v253, v254, s[66:67]")
        else:
            A(f"global_store_dword v253, v{r}, s[66:67]")
        A("v_add_u32 v253, 256, v253")
    A("s_waitcnt vmcnt(0)")
    return L

def main_kernel():
    L = []
    L += setup()
    L += stamp("start")
    L += phase_q()
    L += stamp("q_done")
    if OPT['dump'] == 'q':
        L += II("s_nop 7") + dump_regs([qfrag(t, s) + k for t in range(5) for s in range(4) for k in range(4)], 0)
        L += II("s_waitcnt vmcnt(0)", "s_endpgm")
    L += attention()
    if OPT['dump'] == 'o':
        L += II("s_nop 7") + dump_regs([oacc(dt, t) + k for t in range(5) for dt in range(8) for k in range(4)] + [lacc(t) for t in range(5)], 0, 'a')
        L += II("s_waitcnt vmcnt(0)", "s_endpgm")
    e, q = o_epilogue(); L += e
    L += stamp("o_done")
    if OPT.get('stop') == 'o':
        L += II("s_waitcnt vmcnt(0)") + stamp("end") + stamp_dump() + II("L_main_end:", "s_endpgm") + safe_paths()
        return L
    e, q = out_proj(q); L += e
    L += stamp("op_done")
    if OPT['fused']:
        L += reduce_phase()
        L += stamp("red_done")
    L += tr_dump()
    L += II("s_waitcnt vmcnt(0)")
    L += stamp("end")
    L += stamp_dump()
    L += II("L_main_end:", "s_endpgm")
    L += OWN_OOL + ATT_OOL
    L += safe_paths()
    return L

def reduce_kernel():
    L = []; A = lambda *x: L.extend(II(*x))
    A("s_cmp_ge_u32 s2, 256", "s_cbranch_scc1 L_red_end")
    A("s_load_dwordx2 s[4:5], s[0:1], 80", "s_load_dwordx2 s[6:7], s[0:1], 96")
    A("v_lshrrev_b32 v2, 6, v0", "v_and_b32 v1, 63, v0", "s_nop 0", "v_readfirstlane_b32 s12, v2", "s_nop 3")
    A("s_waitcnt lgkmcnt(0)")
    A("s_mul_i32 s13, s2, 9", "s_add_u32 s13, s13, s12", "s_lshl_b32 s13, s13, 14")
    A("s_add_u32 s16, s6, s13", "s_addc_u32 s17, s7, 0", "s_and_b32 s17, s17, 0xffff", "s_mov_b32 s18, 16384", "s_mov_b32 s19, 0x20000")
    A("v_lshlrev_b32 v2, 4, v1")
    for p in range(16):
        A(f"buffer_load_dwordx4 v[{8+4*p}:{11+4*p}], v2, s[16:19], 0 offen offset:{(p%4)*1024}" if p < 4 else
          f"buffer_load_dwordx4 v[{8+4*p}:{11+4*p}], v2, s[16:19], s{20+p//4} offen offset:{(p%4)*1024}")
        if p == 3: A("s_mov_b32 s21, 4096", "s_mov_b32 s22, 8192", "s_mov_b32 s23, 12288")
    A("s_lshr_b32 s14, s2, 4", "s_and_b32 s15, s2, 15",
      "s_and_b32 s24, s14, 7", "s_lshr_b32 s25, s14, 3",
      "s_mul_i32 s24, s24, 144", "s_lshl_b32 s26, s12, 4", "s_add_u32 s24, s24, s26", "s_lshl_b32 s24, s24, 11",
      "s_lshl_b32 s25, s25, 10", "s_lshl_b32 s15, s15, 6", "s_add_u32 s24, s24, s25", "s_add_u32 s24, s24, s15")
    A("v_and_b32 v3, 15, v1", "v_lshlrev_b32 v3, 11, v3", "v_lshrrev_b32 v4, 4, v1", "v_lshl_add_u32 v3, v4, 4, v3")
    A("s_mov_b32 s28, s4", "s_and_b32 s29, s5, 0xffff", "s_mov_b32 s30, 2359296", "s_mov_b32 s31, 0x20000")
    acc = 80
    for p in range(16):
        A(f"s_waitcnt vmcnt({15-p})")
        for k in range(4):
            r = 8 + 4 * p + k
            if p == 0:
                A(f"v_lshlrev_b32 v{acc+2*k}, 16, v{r}", f"v_and_b32 v{acc+2*k+1}, 0xffff0000, v{r}")
            else:
                A(f"v_lshlrev_b32 v6, 16, v{r}", f"v_and_b32 v7, 0xffff0000, v{r}",
                  f"v_add_f32 v{acc+2*k}, v{acc+2*k}, v6", f"v_add_f32 v{acc+2*k+1}, v{acc+2*k+1}, v7")
    for k in range(4): A(f"v_cvt_pk_bf16_f32 v{8+k}, v{acc+2*k}, v{acc+2*k+1}")
    A("buffer_store_dwordx4 v[8:11], v3, s[28:31], s24 offen")
    A("s_waitcnt vmcnt(0)")
    A("L_red_end:", "s_endpgm")
    return L

def kernel_text(name, body, vgpr, accum, sgpr=102):
    return f""".globl {name}
.p2align 8
.type {name},@function
{name}:
{text(body)}
"""
def kd(name, nfv, accum, sgpr=102):
    return f""".amdhsa_kernel {name}
  .amdhsa_next_free_vgpr {nfv}
  .amdhsa_next_free_sgpr {sgpr}
  .amdhsa_accum_offset {accum}
  .amdhsa_group_segment_fixed_size 0
  .amdhsa_kernarg_size 104
  .amdhsa_user_sgpr_count 2
  .amdhsa_user_sgpr_kernarg_segment_ptr 1
  .amdhsa_system_sgpr_workgroup_id_x 1
.end_amdhsa_kernel
"""

def build():
    stamp_id[0] = 0; STAMPS.clear()
    k1 = NAME + "_kernel"; k2 = "reduce_heads_kernel"
    m = main_kernel()
    hdr = """; Fused  x@wq -> softmax(q k^T / sqrt(128)) v -> @wo  for both branches, one launch, 256 workgroups x 4 waves.
"""
    if OPT['fused']:
        hdr += f"; @launch grid=(256,1,1) block=(256,1,1) lds=163840\n"
    else:
        hdr += f"; @launch kernel={k1} grid=(256,1,1) block=(256,1,1) lds=163840\n"
        hdr += f"; @launch kernel={k2} grid=(256,1,1) block=(576,1,1) lds=0\n"
    s = hdr + '.amdgcn_target "amdgcn-amd-amdhsa--gfx950"\n.text\n'
    s += kernel_text(k1, m, 512, 256)
    if not OPT['fused']: s += kernel_text(k2, reduce_kernel(), 96, 96)
    s += '.section .rodata,"a"\n.p2align 6\n' + kd(k1, 512, 256)
    if not OPT['fused']: s += ".p2align 6\n" + kd(k2, 96, 96, 40)
    return s

if __name__ == "__main__":
    ap = argparse.ArgumentParser()
    ap.add_argument("-o", default="cdna_kernels/" + NAME + ".s")
    ap.add_argument("--dump"); ap.add_argument("--stamps", action="store_true"); ap.add_argument("-v", action="store_true")
    ap.add_argument("--opt", action="append", default=[])
    a = ap.parse_args()
    OPT['dump'] = a.dump; OPT['stamps'] = a.stamps; OPT['verbose'] = a.v
    for o in a.opt:
        k, v = o.split("=", 1)
        OPT[k] = {'True': True, 'False': False}.get(v, int(v) if v.lstrip('-').isdigit() else v)
    s = build()
    open(a.o, "w").write(s)
    if a.stamps:
        import json; json.dump(STAMPS, open(a.o + ".stamps.json", "w"))
    print("wrote", a.o, len(s), "bytes")
```

```python
import sys, argparse
from ir import *

NAME = "concat_heads__gqa_block_cached__mha_block_cached__near_ridge"
OPT = dict(linred=True, latebar=False, wsoff=0, own=True, early=True, l2pf=False, np1=0, pfw=1, pfkv=0, pfkvnt=False, psleep=8, ost='', lthr=0, start2=True, pf=2, pfnt=False, fused=True, rld='sc1', rot=True, wnt=False, xnt=False, wont=False, bursts=(3, 6, 9), dump=None, stamps=False, stop=None, kvnt=True, pst="sc1", verbose=False)

VB = 0
KB = 65536
WB = 16384
XB = 114688
WOA = 131072
WOB = 98304
OB = 0
def kphys(k): return ((k + 1) & 3) * 16384
def vphys(k): return (k & 3) * 16384

SRD_X, SRD_WQ, SRD_K, SRD_V, SRD_WO, SRD_P = "s[4:7]", "s[8:11]", "s[12:15]", "s[16:19]", "s[20:23]", "s[24:27]"
SRD_F, SRD_D, SRD_O = "s[68:71]", "s[72:75]", "s[80:83]"
S_W, S_U, S_QH, S_CNT = "s28", "s29", "s30", "s31"
S_SOFFX, S_SOFFW0, S_UNUSED, S_MW, S_MX, S_DSLOT, S_RSLOT, S_DW, S_DX = "s32", "s33", "s34", "s35", "s36", "s37", "s38", "s39", "s40"
S_BW, S_BX = "s41", "s42"
S_SOFFK, S_SOFFV, S_MK, S_MV = "s45", "s46", "s47", "s48"
S_T0, S_T1, S_T2, S_T3 = "s50", "s51", "s52", "s53"
S_HP, S_B, S_BR, S_CL = "s54", "s55", "s56", "s57"
S_WS = "s[58:59]"
S_SOFFP = "s60"
S_STAMP = "s[62:63]"
S_FLAG = "s64"
S_SAFE = "s61"
S_BX3 = "s38"
LTHR = 0x4b800000
S_KS, S_X0, S_W0 = "s88", "s89", "s87"
S_TAU, S_TB, S_TQ, S_T4N, S_TMASK, S_TSH, S_TM, S_TS = "s78", "s79", "s43", "s44", "s34", "s49", "s61", "s95"

V_LANE = "v1"
V_WQR = [2, 3, 4, 5]; V_XR = 6; V_XR4 = 14; V_OW4 = 50; V_OWB = 51
V_WQD = [7, 8, 9, 10]; V_XD = [11, 12, 13]; V_TG, V_TI, V_TB, V_TV = 14, 15, 62, 63
V_KD = [16, 17, 18, 19]; V_VD = [20, 21]
V_KR = [22, 23, 24, 25]; V_VR = [26 + i for i in range(8)]
V_WOD = [34, 35, 36, 37]; V_WOR = [38, 39, 40, 41]
V_OW, V_OR, V_OR8, V_PS = 42, 43, 44, 45
VT = [46 + i for i in range(18)]
RB = 64
def grp(t, s): return RB + (t * 4 + s) * 8
def qacc(dt, t): return grp(t, dt >> 1) + 4 * (dt & 1)
def qfrag(t, s): return grp(t, s)
def Sreg(kt, t): return grp(t, kt) + 4
def Preg(par, t): return grp(t, 2 + par) + 4
def cinit(t): return 224 + 4 * t
V_C0, V_C1 = 244, 245
def vr(b, n=4): return f"v[{b}:{b+n-1}]"
def ar(b, n=4): return f"a[{b}:{b+n-1}]"
def oacc(dt, t): return t * 32 + dt * 4
def lacc(t): return 160 + 4 * t
A_ONES = 180
def abuf(i): return 184 + 4 * i
def bbuf(t): return [48, 52, 56, 60, 248][t]
def kbuf(kt, s): return 216 + 4 * (kt * 4 + s)

MF = "v_mfma_f32_16x16x32_bf16"
def mfma(d, a, b, c): return I(f"{MF} {d}, {a}, {b}, {c}")
SCALE = (128 ** -0.5) * 1.4426950408889634
import struct
def f2u(x): return struct.unpack("<I", struct.pack("<f", x))[0]

def NT(): return " nt" if OPT['kvnt'] else ""

def CNTOFF(): return 128 if OPT.get('dbgst') is not None else 0
stamp_id = [0]
def stamp(name):
    if not OPT['stamps']: return []
    i = stamp_id[0]; stamp_id[0] += 1
    STAMPS.append(name)
    return II("s_memrealtime s[66:67]", "s_memtime s[64:65]", "s_waitcnt lgkmcnt(0)",
              f"v_writelane_b32 v0, s66, {i}", f"v_writelane_b32 v0, s64, {32 + i}")
def stamp_dump():
    if not OPT['stamps']: return []
    if OPT.get('dbgst') is not None:
        return II(f"s_cmp_eq_u32 s2, {OPT['dbgst']}", "s_cbranch_scc0 L_nodbg", f"s_cmp_eq_u32 {S_W}, 0", "s_cbranch_scc0 L_nodbg",
                  "v_readlane_b32 s50, v0, 0", "s_nop 3", "v_subrev_u32 v0, s50, v0",
                  f"v_lshlrev_b32 v1, 2, {V_LANE}", "v_cmp_gt_u32 vcc, 16, v1", f"v_lshrrev_b32 v2, 2, v1", "v_mov_b32 v3, 0x1000", "v_cmp_gt_u32 vcc, 16, v2", "s_nop 1",
                  "v_cndmask_b32 v1, v3, v1, vcc", f"buffer_store_dword v0, v1, {SRD_D}, 0 offen", "L_nodbg:")
    return II("s_add_u32 s62, s58, 0x8000000", "s_addc_u32 s63, s59, 0", "s_lshl_b32 s65, s2, 2", f"s_add_u32 s65, s65, {S_W}", "s_lshl_b32 s65, s65, 8",
              f"v_lshlrev_b32 v1, 2, {V_LANE}", "v_add_u32 v1, s65, v1", "global_store_dword v1, v0, s[62:63]")
STAMPS = []

def setup():
    L = []
    A = lambda *x: L.extend(II(*x))
    A("s_cmp_ge_u32 s2, 256", "s_cbranch_scc1 L_main_end")
    if OPT['stamps'] and OPT.get('t0st'): A("s_memrealtime s[100:101]")
    A("s_load_dwordx8 s[68:75], s[0:1], 0", "s_load_dwordx2 s[76:77], s[0:1], 32",
      "s_load_dwordx8 s[80:87], s[0:1], 40", "s_load_dwordx2 s[88:89], s[0:1], 72",
      f"s_load_dwordx2 {S_WS}, s[0:1], 96", "s_load_dwordx4 s[96:99], s[0:1], 80")
    A("s_and_b32 s50, s2, 7", "s_lshr_b32 s51, s2, 3",
      f"s_lshr_b32 {S_BR}, s50, 2",
      "s_and_b32 s52, s50, 3", "s_lshl_b32 s52, s52, 2", "s_and_b32 s53, s51, 3", f"s_add_u32 {S_HP}, s52, s53",
      f"s_lshr_b32 {S_B}, s51, 2",
      f"s_lshl_b32 s52, {S_BR}, 3", f"s_add_u32 {S_CL}, s52, {S_B}")
    A("v_lshrrev_b32 v46, 6, v0", f"v_and_b32 {V_LANE}, 63, v0", "s_nop 0", f"v_readfirstlane_b32 {S_W}, v46", "s_nop 3")
    A(f"s_lshr_b32 {S_U}, {S_W}, 1", f"s_and_b32 {S_QH}, {S_W}, 1", f"s_mov_b32 {S_SAFE}, 0")
    A(lane_consts_q())
    if OPT['stamps'] and OPT.get('t0st'):
        A("s_memrealtime s[66:67]")
    A("s_waitcnt lgkmcnt(0)")
    if OPT['stamps'] and OPT.get('t0st'):
        i0 = stamp_id[0]; stamp_id[0] += 2; STAMPS.extend(["entry", "consts_q"])
        A(f"v_writelane_b32 v0, s100, {i0}", f"v_writelane_b32 v0, s66, {i0+1}", f"v_writelane_b32 v0, s100, {32+i0}", f"v_writelane_b32 v0, s66, {33+i0}")
    A(f"s_cmp_eq_u32 {S_BR}, 1")
    for i in range(8): A(f"s_cselect_b32 s{68+i}, s{80+i}, s{68+i}")
    A("s_cselect_b32 s76, s88, s76", "s_cselect_b32 s77, s89, s77")
    def srd(dst, lo, hi, off_expr_regs, nrec):
        A(f"s_add_u32 s{dst}, s{lo}, s50", f"s_addc_u32 s{dst+1}, s{hi}, 0", f"s_and_b32 s{dst+1}, s{dst+1}, 0xffff")
        A(nrec, f"s_mov_b32 s{dst+3}, 0x20000")
    A(f"s_mul_i32 s50, {S_B}, 147456"); srd(4, 68, 69, None, "s_mov_b32 s6, 147456")
    A(f"s_lshl_b32 s50, {S_HP}, 9"); srd(8, 74, 75, None, "s_sub_u32 s10, 4194304, s50")
    return L

def setup_b():
    L = []
    A = lambda *x: L.extend(II(*x))
    def srd(dst, lo, hi, off_expr_regs, nrec):
        A(f"s_add_u32 s{dst}, s{lo}, s50", f"s_addc_u32 s{dst+1}, s{hi}, 0", f"s_and_b32 s{dst+1}, s{dst+1}, 0xffff")
        A(nrec, f"s_mov_b32 s{dst+3}, 0x20000")
    A(f"s_cmp_eq_u32 {S_SAFE}, 1", "s_cbranch_scc1 L_setup_b_done")
    A(f"s_lshl_b32 s50, {S_B}, 5", f"s_lshl_b32 s51, {S_HP}, 1", "s_add_u32 s50, s50, s51", f"s_add_u32 s50, s50, {S_U}", "s_lshl_b32 s50, s50, 17")
    srd(12, 70, 71, None, "s_mov_b32 s14, 131072")
    srd(16, 72, 73, None, "s_mov_b32 s18, 131072")
    A(f"s_lshl_b32 s50, {S_HP}, 18", f"s_lshl_b32 s51, {S_W}, 8", "s_add_u32 s50, s50, s51")
    A("s_sub_u32 s52, 262144, s51")
    srd(20, 76, 77, None, "s_mov_b32 s22, s52")
    A(f"s_lshl_b32 s50, {S_HP}, 18"); srd(84, 76, 77, None, "s_mov_b32 s86, 262144")
    A(f"s_mul_i32 s50, {S_CL}, 2359296", f"s_add_u32 s50, s50, {hex(OPT['wsoff'])}"); srd(24, 58, 59, None, "s_mov_b32 s26, 2359296")
    if OPT['fused']:
        A(f"s_mul_i32 s50, {S_CL}, 4608", f"s_add_u32 s50, s50, {hex(OPT['wsoff'] + 0x2400000 + 0x40000)}"); srd(68, 58, 59, None, "s_mov_b32 s70, 4608")
        A("s_mov_b32 s72, s98", "s_and_b32 s73, s99, 0xffff", "s_mov_b32 s74, 256", "s_mov_b32 s75, 0x20000")
        A("s_mov_b32 s80, s96", "s_and_b32 s81, s97, 0xffff", "s_mov_b32 s82, 2359296", "s_mov_b32 s83, 0x20000")
        A(f"s_lshl_b32 s50, {S_W}, 7", f"s_lshl_b32 s51, {S_HP}, 2", "s_add_u32 s50, s50, s51",
          f"v_lshlrev_b32 v46, 9, {V_LANE}", "v_add_u32 v46, s50, v46", "v_mov_b32 v47, 0",
          f"buffer_store_dword v47, v46, {SRD_F}, 0 offen sc1" if not OPT.get('x_noclr') else "s_nop 0")
    A("L_setup_b_done:")
    return L

def lane_consts_q():
    L = []; A = lambda *x: L.extend(II(*x))
    l = V_LANE; t0, t1, t2, t3, t4, t5 = [f"v{x}" for x in VT[:6]]
    A(f"v_lshrrev_b32 {t0}, 4, {l}", f"v_bfe_u32 {t1}, {l}, 2, 2", f"v_and_b32 {t2}, 3, {l}", f"v_and_b32 {t3}, 15, {l}")
    A(f"v_lshrrev_b32 {t4}, 5, {l}")
    A(f"v_bfe_u32 {t5}, {l}, 4, 1")
    for j in range(4):
        d = f"v{V_WQD[j]}"
        A(f"v_add_u32 {d}, {2*j}, {t4}",
          f"v_and_b32 v{VT[6]}, 3, {d}", f"v_lshlrev_b32 v{VT[6]}, 2, v{VT[6]}", f"v_xor_b32 v{VT[6]}, v{VT[6]}, {t3}", f"v_lshlrev_b32 v{VT[6]}, 4, v{VT[6]}",
          f"v_lshlrev_b32 {d}, 13, {d}", f"v_add_u32 {d}, {d}, v{VT[6]}", f"v_lshl_add_u32 {d}, {t5}, 8, {d}")
        if j: A(f"v_subrev_u32 {d}, {1024*j}, {d}")
    A(f"v_lshlrev_b32 {t4}, 1, {t0}", f"v_mov_b32 {t5}, 0x78", f"v_lshrrev_b32 {t4}, {t4}, {t5}", f"v_and_b32 {t4}, 3, {t4}",
      f"v_xor_b32 {t4}, {t4}, {t2}", f"v_lshlrev_b32 {t4}, 4, {t4}",
      f"v_lshrrev_b32 {t5}, 2, {l}", f"v_lshl_add_u32 {t4}, {t5}, 10, {t4}")
    for j in range(2):
        A(f"v_add_u32 v{V_XD[j]}, {j*16384 - 1024*j}, {t4}")
    A(f"s_lshl_b32 s50, {S_W}, 1", "s_lshr_b32 s50, 0x78, s50", "s_and_b32 s50, s50, 3",
      f"v_xor_b32 {t4}, s50, {t2}", f"v_lshlrev_b32 {t4}, 4, {t4}", f"v_lshl_add_u32 {t4}, {t5}, 10, {t4}",
      f"s_lshl_b32 s50, {S_W}, 12", f"s_lshl_b32 s51, {S_W}, 15", "s_sub_u32 s50, s50, s51", f"s_add_u32 s50, s50, {128*1024}",
      f"v_add_u32 v{V_XD[2]}, s50, {t4}")
    return L

def lane_consts_q2():
    L = []; A = lambda *x: L.extend(II(*x))
    l = V_LANE; t0, t1, t2, t3, t4, t5 = [f"v{x}" for x in VT[:6]]
    A(f"v_lshrrev_b32 {t0}, 4, {l}", f"v_bfe_u32 {t1}, {l}, 2, 2", f"v_and_b32 {t2}, 3, {l}", f"v_and_b32 {t3}, 15, {l}")
    for n in range(4):
        A(f"v_add_u32 {t4}, {4*n}, {t0}", f"v_xor_b32 {t4}, {t4}, {t3}", f"v_lshlrev_b32 {t4}, 4, {t4}",
          f"v_lshl_add_u32 v{V_KD[n]}, {t0}, 8, {t4}")
    for n in range(2):
        A(f"v_add_u32 {t4}, {4*n}, {t0}", f"v_lshlrev_b32 {t4}, 1, {t4}", f"v_xor_b32 {t4}, {t4}, {t3}", f"v_lshlrev_b32 {t4}, 4, {t4}",
          f"v_lshl_add_u32 v{V_VD[n]}, {t0}, 8, {t4}")
    A(f"v_lshl_add_u32 {t4}, {t0}, 3, {t1}", f"v_lshlrev_b32 {t4}, 9, {t4}", f"v_lshl_add_u32 {t4}, {t2}, 4, {t4}",
      f"s_lshl_b32 s50, {S_U}, 8", f"s_add_u32 s50, s50, {WB}", f"v_add_u32 {t4}, s50, {t4}")
    A(f"s_lshl_b32 s51, {S_QH}, 1", f"v_xor_b32 {t1}, s51, {t1}")
    for s in range(4):
        A(f"v_xor_b32 {t5}, {s}, {t1}", f"v_lshl_add_u32 v{V_WQR[s]}, {t5}, 6, {t4}")
    A(f"v_lshrrev_b32 {t4}, 2, {t3}", f"v_lshlrev_b32 {t4}, 1, {t4}", f"v_mov_b32 {t5}, 0x78", f"v_lshrrev_b32 {t4}, {t4}, {t5}", f"v_and_b32 {t4}, 3, {t4}",
      f"v_xor_b32 {t4}, {t4}, {t0}", f"v_lshlrev_b32 {t4}, 4, {t4}", f"v_lshl_add_u32 {t4}, {t3}, 6, {t4}",
      f"s_mul_i32 s50, {S_QH}, 5120", f"s_add_u32 s50, s50, {XB}", f"v_add_u32 v{V_XR}, s50, {t4}", f"v_add_u32 v{V_XR4}, {XB + 4096}, {t4}")
    return L

def lane_consts_rest():
    L = []; A = lambda *x: L.extend(II(*x))
    l = V_LANE; t0, t1, t2, t3, t4, t5, t6 = [f"v{x}" for x in VT[:7]]
    A(f"v_lshrrev_b32 {t0}, 4, {l}", f"v_bfe_u32 {t1}, {l}, 2, 2", f"v_and_b32 {t2}, 3, {l}", f"v_and_b32 {t3}, 15, {l}")
    A(f"s_lshl_b32 s50, {S_U}, 13", f"s_add_u32 s51, s50, {KB}", f"v_lshlrev_b32 {t4}, 8, {t3}", f"v_add_u32 {t4}, s51, {t4}")
    A(f"s_lshl_b32 s51, {S_QH}, 3", f"v_xor_b32 {t6}, s51, {t3}")
    for s in range(4):
        A(f"v_add_u32 {t5}, {4*s}, {t0}", f"v_xor_b32 {t5}, {t5}, {t6}", f"v_lshl_add_u32 v{V_KR[s]}, {t5}, 4, {t4}")
    A(f"v_lshrrev_b32 {t4}, 2, {l}", f"v_and_b32 {t5}, 7, {t4}", f"v_lshlrev_b32 {t5}, 1, {t5}",
      f"v_lshlrev_b32 {t4}, 8, {t4}", f"v_add_u32 {t4}, s50, {t4}",
      f"v_and_b32 {t6}, 1, {t2}", f"v_lshl_add_u32 {t4}, {t6}, 3, {t4}",
      f"v_lshrrev_b32 {t6}, 1, {t2}",
      f"s_lshl_b32 s51, {S_QH}, 3", f"v_xor_b32 {t5}, s51, {t5}")
    for dt in range(8):
        d = f"v{V_VR[dt]}"
        A(f"v_add_u32 {d}, {2*dt}, {t6}", f"v_xor_b32 {d}, {d}, {t5}", f"v_lshl_add_u32 {d}, {d}, 4, {t4}")
    A(f"v_lshlrev_b32 {t4}, 2, {t0}", f"v_xor_b32 {t4}, {t4}, {t3}", f"v_lshlrev_b32 {t4}, 4, {t4}", f"v_lshl_add_u32 {t4}, {t0}, 10, {t4}")
    for n in range(4):
        A(f"v_add_u32 v{V_WOD[n]}, {n*3072}, {t4}")
    A(f"v_lshrrev_b32 {t4}, 2, {l}", f"v_lshlrev_b32 {t4}, 8, {t4}", f"v_lshl_add_u32 {t4}, {t2}, 4, {t4}",
      f"s_lshl_b32 s50, {S_W}, 13", f"s_add_u32 s50, s50, {WOB}", f"v_add_u32 {t4}, s50, {t4}")
    for cp in range(4):
        A(f"v_xor_b32 {t5}, {cp}, {t1}", f"v_lshl_add_u32 v{V_WOR[cp]}, {t5}, 6, {t4}")
    A(f"s_mul_i32 s50, {S_QH}, 40960", f"s_lshl_b32 s51, {S_U}, 12", "s_add_u32 s50, s50, s51",
      f"v_lshlrev_b32 v{V_OR}, 4, {l}", f"v_add_u32 v{V_OW}, s50, v{V_OR}", f"v_add_u32 v{V_OR8}, 0x10000, v{V_OR}")
    A(f"s_lshl_b32 s50, {S_HP}, 10", f"v_add_u32 v{V_PS}, s50, v{V_OR}")
    return L

def dma(voff, srd, soff, imm, nt=False):
    o = f" offset:{imm}" if imm else ""
    return I(f"buffer_load_dwordx4 v{voff}, {srd}, {soff} offen{o}{' nt' if nt else ''} lds")

def kv_group(kind, m0expr, soffreg):
    if kind == 'K':
        return [dma(V_KD[n], SRD_K, soffreg, n * 1024, OPT['kvnt']) for n in range(4)]
    return [dma(V_VD[n & 1], SRD_V, soffreg, n * 1024, OPT['kvnt']) for n in range(4)]

def kv_tile_full_unused(kind, j):
    L = []
    base = (KB + kphys(j)) if kind == 'K' else (VB + vphys(j))
    for gI in range(2):
        L += II(f"s_lshl_b32 s50, {S_U}, 13", f"s_add_u32 m0, s50, {base + gI*4096}", f"s_mov_b32 s51, {j*8192 + gI*4096}")
        L += kv_group(kind, None, "s51")
    return L

def stage_setup_scalar():
    rot = OPT['rot']
    R = II("s_lshr_b32 s50, s2, 3", "s_and_b32 s51, s50, 3", "s_lshr_b32 s50, s50, 2")
    if rot in (True, 1):   R += II("s_lshl_b32 s51, s51, 2", "s_lshl_b32 s50, s50, 1", "s_add_u32 s52, s50, s51")
    elif rot == 2:         R += II("s_lshr_b32 s50, s50, 1", "s_add_u32 s52, s50, s51", "s_lshl_b32 s52, s52, 2")
    elif rot == 3:         R += II("s_add_u32 s52, s50, s51", "s_lshl_b32 s52, s52, 2")
    elif rot == 4:         R += II("s_lshr_b32 s50, s50, 2", "s_lshl_b32 s50, s50, 3", "s_lshl_b32 s51, s51, 2", "s_add_u32 s52, s50, s51")
    elif rot == 5:         R += II("s_mul_i32 s50, s50, 3", "s_lshl_b32 s51, s51, 2", "s_add_u32 s52, s50, s51")
    elif rot == 6:         R += II("s_lshl_b32 s52, s50, 1")
    elif rot == 7:         R += II("s_lshl_b32 s50, s50, 1", "s_and_b32 s51, s51, 1", "s_lshl_b32 s51, s51, 3", "s_add_u32 s52, s50, s51")
    else:                  R += II("s_mov_b32 s52, 0")
    return R + II("s_and_b32 s52, s52, 15",
              f"s_lshl_b32 s50, s52, 6", f"s_lshl_b32 s51, {S_W}, 15", f"s_add_u32 {S_SOFFX}, s50, s51",
              f"s_lshl_b32 s50, s52, 18", f"s_lshl_b32 s51, {S_W}, 16", f"s_add_u32 {S_SOFFW0}, s50, s51",
              f"s_lshl_b32 s50, {S_W}, 12", f"s_add_u32 {S_BW}, s50, {WB}",
              f"s_lshl_b32 s50, {S_W}, 11", f"s_add_u32 {S_BX}, s50, {XB}",
              f"s_lshl_b32 s50, {S_W}, 8", f"s_add_u32 {S_BX3}, s50, {XB + 8192}",
              f"s_lshl_b32 {S_TQ}, {S_QH}, 12",
              f"s_lshl_b32 s50, {S_U}, 13", f"s_add_u32 s50, s50, {S_TQ}", f"s_add_u32 {S_MK}, s50, {KB}", f"s_add_u32 {S_MV}, s50, {VB}")

def stage_dma_list(slot):
    seq = []
    seq.append(([I(f"s_add_u32 m0, {S_BW}, {slot*16384}")], dma(V_WQD[0], SRD_WQ, S_SOFFW0, 0, OPT['wnt'])))
    for j in range(1, 4): seq.append(([], dma(V_WQD[j], SRD_WQ, S_SOFFW0, j * 1024, OPT['wnt'])))
    seq.append(([I(f"s_add_u32 m0, {S_BX}, {slot*9216}")], dma(V_XD[0], SRD_X, S_SOFFX, 0, OPT['xnt'])))
    seq.append(([], dma(V_XD[1], SRD_X, S_SOFFX, 1024, OPT['xnt'])))
    q = dma(V_XD[2], SRD_X, S_SOFFX, 0, OPT['xnt'])
    seq.append(([I(f"s_add_u32 m0, {S_BX3}, {slot*9216}")], Masked(q, 0xffff)))
    return seq

def place_dma(S, seq, gaps):
    k = 0
    last = None
    for e in seq:
        if e[0]:
            for p in e[0]: S.put(gaps[k], p)
            k += 1
        S.put(gaps[k], e[1]); last = gaps[k]
        if len(e) > 2:
            for p in e[2]: S.put(gaps[k] + 1, p)
        k += 1
    return last

def stage_advance_w():
    return II(f"s_add_u32 {S_SOFFW0}, {S_SOFFW0}, 262144", f"s_and_b32 {S_SOFFW0}, {S_SOFFW0}, 0x3fffff")
def stage_advance_x():
    return II(f"s_add_u32 {S_SOFFX}, {S_SOFFX}, 64", f"s_and_b32 {S_SOFFX}, {S_SOFFX}, 0xfffffbff")
def stage_advance(): return stage_advance_w() + stage_advance_x()

def straight(seq):
    L = []
    for e in seq:
        L += e[0]
        if e[0]: L += II("s_nop 0")
        L.append(e[1])
        if len(e) > 2: L += e[2]
    return L

def stage_issue_straight(slot):
    return straight(stage_dma_list(slot)) + stage_advance()

def wq_read(dt, h2, slot):
    if OPT.get('x_noread'): return I('s_nop 0')
    s, hf = dt >> 1, dt & 1
    b = abuf(dt) + 2 * h2
    off = slot * 16384 + hf * 8 + h2 * 2048
    return I(f"ds_read_b64_tr_b16 {ar(b,2)}, v{V_WQR[s]}" + (f" offset:{off}" if off else ""))
def x_read(t, slot):
    if OPT.get('x_noread'): return I('s_nop 0')
    off = slot * 9216 + (0 if t == 4 else t * 1024)
    return I(f"ds_read_b128 {vr(bbuf(t))}, v{V_XR4 if t == 4 else V_XR}" + (f" offset:{off}" if off else ""))
def q_mfma(dt, t):
    if OPT.get('x_t4') and t == 4: return I("s_nop 3")
    if OPT.get('x_t45') and t == 4 and dt >= 4: return I("s_nop 3")
    return mfma(vr(qacc(dt, t)), ar(abuf(dt)), vr(bbuf(t)), vr(qacc(dt, t)))

def half_group(kind, j):
    if kind == 'K':
        pre = II(f"s_add_u32 m0, {S_MK}, {kphys(j)}", f"s_add_u32 s51, {S_TQ}, {j*8192}")
    else:
        pre = II(f"s_add_u32 m0, {S_MV}, {vphys(j)}", f"s_add_u32 s51, {S_TQ}, {j*8192}")
    g = kv_group(kind, None, "s51")
    return [(pre, g[0])] + [([], x) for x in g[1:]]

def put_dmas(S, seq, gaps):
    prev = -1
    for e, g in zip(seq, gaps):
        if e[0]:
            assert g - 1 > prev or prev < 0, (g, prev)
            for p in e[0]: S.put(g - 1, p)
        S.put(g, e[1])
        if len(e) > 2:
            for p in e[2]: S.put(g + 1, p)
        prev = g
    assert len(seq) <= len(gaps)

QTAIL = (4, 5, 6, 7)
def q_tail(): return [q_mfma(dt, t) for t in range(4) for dt in QTAIL]
SRD_T = "s[96:99]"; V_T = [10, 11, 12, 13]; S_TM, S_TS = "s35", "s36"
V_TB2 = [252, 253, 254, 255]
V_TB = [244, 245, 246, 247]
DUMMY = 151552
def burst_list():
    g = [dma(V_TB[n], SRD_T, S_TS, n * 1024, OPT['kvnt']) for n in range(4)]
    return [([I(f"s_mov_b32 m0, {S_TM}")], g[0])] + [([], x) for x in g[1:]]

def q_body(ks, with_dma, burst=False, extra_dma=None, wait=None):
    slot = ks & 3
    ms = q_tail() + [q_mfma(dt, t) for t in range(5) for dt in range(4)]
    S = Sched(ms)
    a = lambda dt, h: wq_read(dt, h, slot)
    xr = lambda t: x_read(t, slot)
    plan = {0: a(0,0), 1: a(0,1), 2: a(1,0), 3: a(1,1), 4: xr(0), 5: a(2,0), 7: a(2,1), 8: xr(1), 9: a(3,0), 11: a(3,1),
            12: xr(2), 13: xr(4), 16: xr(3), 17: a(4,0), 19: a(4,1), 20: a(5,0), 21: a(5,1), 23: a(6,0), 24: a(6,1), 25: a(7,0), 27: a(7,1)}
    for g, ins in plan.items(): S.put(g, ins)
    if with_dma:
        put_dmas(S, stage_dma_list((ks + 3) & 3), [6, 10, 14, 18, 22, 26, 29])
        w = stage_advance_w(); x = stage_advance_x()
        S.put(19, w[0]); S.put(20, w[1]); S.put(30, x[0]); S.put(31, x[1])
    if burst:
        put_dmas(S, burst_list(), [32, 33, 34, 35]) if False else None
        put_dmas(S, burst_list(), [15, 28, 31, 33])  if False else None
    if extra_dma:
        put_dmas(S, extra_dma, [6, 10, 14, 18, 22, 26, 30, 32][:len(extra_dma)])
    return S

def q_finish(S, wait, wg=33):
    S.put(wg, tr_mark(), f"s_waitcnt vmcnt({wait}) lgkmcnt(0)", tr_commit())
    S.put(wg + 1, "s_barrier")
    seq, pend = lgkm_waits(S.flat())
    assert not pend
    if OPT['verbose']: print(S.report("q_body"))
    return seq

def tr_mark():
    return [Raw("s_memtime s[100:101]")] if OPT.get('trace') else []
def tr_commit():
    return [Raw("s_mov_b32 s95, m0\n  s_mov_b32 m0, s94\n  s_nop 0\n  v_writelane_b32 v0, s100, m0\n  s_mov_b32 m0, s95\n  s_add_u32 s94, s94, 1")] if OPT.get('trace') else []
def tr_dump():
    if not OPT.get('trace'): return []
    return II("s_add_u32 s66, s58, 0x9000000", "s_addc_u32 s67, s59, 0", "s_lshl_b32 s50, s2, 2", f"s_add_u32 s50, s50, {S_W}", "s_lshl_b32 s50, s50, 8",
              f"v_lshlrev_b32 v253, 2, {V_LANE}", "v_add_u32 v253, s50, v253", "global_store_dword v253, v0, s[66:67]")

def zero_init():
    L = II("v_mov_b32 v244, 0", "v_mov_b32 v245, 0", "v_mov_b32 v246, 0", "v_mov_b32 v247, 0", "s_nop 1")
    for r in range(RB, RB + 160, 16): L += II(f"v_mfma_f32_32x32x16_bf16 v[{r}:{r+15}], v[244:247], v[244:247], 0")
    for r in range(0, 256, 16): L += II(f"v_mfma_f32_32x32x16_bf16 a[{r}:{r+15}], v[244:247], v[244:247], 0")
    return L

def phase_q():
    L = []; A = lambda *x: L.extend(II(*x))
    A("L_phase_q:")
    A(stage_setup_scalar(), stage_issue_straight(0))
    A(setup_b())
    A(lane_consts_q2())
    A(stamp("q_issued"))
    A(zero_init())
    A(lane_consts_rest())
    A(f"s_mov_b32 {S_CNT}, 0")
    if OPT.get('trace'): A("s_mov_b32 s94, 1", "s_memtime s[100:101]", "s_waitcnt lgkmcnt(0)", "v_writelane_b32 v0, s100, 0")
    A(f"v_mov_b32 v{VT[0]}, 0x3f803f80")
    for r in range(4): A(f"v_accvgpr_write_b32 a{A_ONES + r}, v{VT[0]}")
    for t in range(5):
        for k in range(4): A(f"v_mov_b32 v{bbuf(t)+k}, 0")
    A("s_mov_b32 s96, s12", "s_mov_b32 s97, s13", "s_mov_b32 s98, s14", "s_mov_b32 s99, s15")
    for n in range(4): A(f"v_mov_b32 v{V_TB[n]}, v{V_KD[n]}")
    if OPT.get('stst'): A(stamp("consts"))
    A(stage_issue_straight(1))
    if OPT.get('stst'): A(stamp("s1_iss"))
    A("s_waitcnt vmcnt(7)")
    if OPT.get('stst'): A(stamp("s0_land"))
    A("s_barrier")
    if OPT['fused']:
        A(f"s_cmp_eq_u32 {S_SAFE}, 1", "s_cbranch_scc1 L_no_arrive")
        A(f"s_lshl_b32 s50, {S_CL}, 2", f"s_add_u32 s50, s50, {CNTOFF()}", f"s_lshl_b32 s51, {S_W}, 14", "s_add_u32 s50, s50, s51",
          f"v_lshlrev_b32 v46, 8, {V_LANE}", "v_add_u32 v46, s50, v46", "v_mov_b32 v47, 1",
          f"buffer_atomic_add v47, v46, {SRD_D}, 0 offen sc1")
        A("L_no_arrive:")
    A(stage_issue_straight(2))
    if OPT.get('stst'): A(stamp("s2_iss"))
    A(f"s_add_u32 {S_TM}, {S_MK}, {kphys(0)}", f"s_mov_b32 {S_TS}, {S_TQ}")
    A(stamp("q_start"))
    l2 = OPT['l2pf']
    if l2:
        A(f"s_add_u32 s37, {S_TQ}, {4*8192}", "s_mov_b32 s92, s12", "s_mov_b32 s93, s13", "s_mov_b32 s94, s14", "s_mov_b32 s95, s15",
          "s_mov_b64 vcc, -1")
    bodies = []
    QOOL = []
    for k in range(4):
        S = q_body(k, True)
        if k == 1:
            put_dmas(S, burst_list(), [32, 33, 34, 35])
        if k == 3 and l2:
            g = [dma(V_OR, "s[92:95]", "s37", n * 1024, False) for n in range(4)]
            put_dmas(S, [([I(f"s_mov_b32 m0, {DUMMY}")], g[0])] + [([], x) for x in g[1:]], [32, 33, 34, 35])
        if l2:
            n_steady, n_first = [(18, 14), (22, 18), (18, 18), (22, 22)][k]
        else:
            n_steady = n_first = 14 if k == 0 else 18
        if OPT.get('b0st') and k == 0:
            for nm, g in (("g5", 5), ("g6", 7), ("g15", 15), ("g20", 20), ("g30", 31)):
                S.put(g, Raw(f"s_cmp_eq_u32 {S_CNT}, 0\n  s_cbranch_scc0 L_b0_{nm}\n  " + "\n  ".join(x.txt for x in stamp(nm)) + f"\nL_b0_{nm}:"))
        late = (k == 1) or (k == 3 and l2)
        w = tr_mark() + II(f"s_waitcnt vmcnt({n_steady}) lgkmcnt(0)")
        if n_first != n_steady:
            w += II(f"s_cbranch_vccnz L_q_first{k}", f"L_q_back{k}:")
            QOOL += II(f"L_q_first{k}:", f"s_waitcnt vmcnt({n_first})", f"s_branch L_q_back{k}")
        w += tr_commit()
        if late:
            seq, pend = lgkm_waits(S.flat())
            seq += w + II("s_barrier")
        else:
            S.put(33, w); S.put(34, "s_barrier")
            seq, pend = lgkm_waits(S.flat())
            assert not pend
        if OPT['verbose']: print(S.report("q_body"))
        bodies.append(seq)
    hist = bodies[3][-24:]
    A(".p2align 6", "L_q_loop:")
    for bi, b in enumerate(bodies):
        b2, n = hazards(b, history=hist); L.extend(b2); hist = b2[-24:]
        if OPT.get('stst') and bi < 2: A(f"s_cmp_eq_u32 {S_CNT}, 0", f"s_cbranch_scc0 L_nost{bi}", stamp(f"body{bi}"), f"L_nost{bi}:")
    A(f"s_add_u32 {S_TM}, {S_TM}, 16384", f"s_add_u32 {S_TS}, {S_TS}, 8192", f"s_add_u32 {S_CNT}, {S_CNT}, 1")
    if l2:
        A("s_mov_b64 vcc, 0", f"s_cmp_eq_u32 {S_CNT}, 1", "s_cbranch_scc1 L_q_to1", "L_q_to1_done:")
    A(f"s_cmp_eq_u32 {S_CNT}, 2", "s_cbranch_scc0 L_q_tov_done",
      "s_mov_b32 s96, s16", "s_mov_b32 s97, s17", f"s_add_u32 {S_TM}, {S_MV}, {vphys(0)}", f"s_mov_b32 {S_TS}, {S_TQ}")
    if l2: A("s_mov_b32 s92, s12", "s_mov_b32 s93, s13", f"s_add_u32 s37, {S_TQ}, {5*8192}")
    for n in range(4): A(f"v_mov_b32 v{V_TB[n]}, v{V_VD[n & 1]}")
    A("L_q_tov_done:", f"s_cmp_lt_u32 {S_CNT}, 3", "s_cbranch_scc1 L_q_loop")
    OOL = []
    if l2: OOL += II("L_q_to1:", "s_mov_b32 s92, s16", "s_mov_b32 s93, s17", f"s_add_u32 s37, {S_TQ}, {3*8192}", "s_branch L_q_to1_done")
    OOL += QOOL
    b, n = hazards(q_finish(q_body(12, True), 18 if l2 else 14), history=hist); L.extend(b)
    b, n = hazards(q_finish(q_body(13, False, extra_dma=half_group('V', 1)), 15 if l2 else 11), history=b[-24:]); L.extend(b)
    b, n = hazards(q_finish(q_body(14, False, extra_dma=half_group('K', 2) + half_group('V', 2)), 12), history=b[-24:]); L.extend(b)
    b, n = hazards(q_finish(q_body(15, False), 12), history=b[-24:]); L.extend(b)
    if OOL:
        A("s_branch L_q_after_ool")
        L.extend(OOL)
        A("L_q_after_ool:")
    A(stamp("q_loop_done"))
    return L

def q_tiles(s): return range(5) if s < 2 else range(4)
def q_scale(ss):
    return [I(f"v_pk_mul_f32 {vr(grp(t,s)+2*k,2)}, {vr(grp(t,s)+2*k,2)}, {vr(V_C0,2)}") for s in ss for t in q_tiles(s) for k in range(4)]
def q_cvt(ss):
    return [I(f"v_cvt_pk_bf16_f32 v{grp(t,s)+k}, v{grp(t,s)+2*k}, v{grp(t,s)+2*k+1}") for s in ss for t in q_tiles(s) for k in range(4)]
QX = 155648

def transition():
    L = []; A = lambda *x: L.extend(II(*x))
    A(f"s_add_u32 {S_SOFFK}, {S_TQ}, {5*8192}", f"s_add_u32 {S_SOFFV}, {S_TQ}, {4*8192}")
    A(f"v_mov_b32 v{V_C0}, {hex(f2u(SCALE))}", f"v_mov_b32 v{V_C1}, {hex(f2u(SCALE))}")
    A(f"s_lshl_b32 s50, {S_W}, 11", f"s_add_u32 s50, s50, {QX}", f"v_lshlrev_b32 v7, 4, {V_LANE}", "v_add_u32 v8, s50, v7",
      "s_xor_b32 s50, s50, 2048", "v_add_u32 v9, s50, v7")
    k3 = half_group('K', 3)
    seq = [k_read(kt, s, 0) for kt in range(2) for s in range(4)]
    sc = q_scale((0, 1))
    seq += II("s_nop 3") + sc
    S = Sched(q_tail())
    cv = q_cvt((0, 1))
    sh = lambda c: any(f"v{grp(4,s)+k}," in c.txt.split()[1] + "," for s in (0, 1) for k in range(4))
    cv = [c for c in cv if sh(c)] + [c for c in cv if not sh(c)]
    S.spread(cv, [min(i * 2 // 5, 15) for i in range(40)])
    S.put(5, f"ds_write_b128 v8, {vr(grp(4,0))}"); S.put(7, f"ds_write_b128 v8, {vr(grp(4,1))} offset:1024")
    seq += S.flat()
    seq += II("s_waitcnt lgkmcnt(0)", "s_barrier", f"ds_read_b128 {vr(grp(4,2))}, v9", f"ds_read_b128 {vr(grp(4,3))}, v9 offset:1024")
    sc = q_scale((2, 3))
    seq += II("s_nop 3") + k3[0][0] + sc[:8] + [k3[0][1]] + sc[8:16] + [k3[1][1]] + sc[16:24] + [k3[2][1]] + sc[24:] + [k3[3][1]]
    qk = lambda kt, ss, c: [qk_mfma(kt, s, t, c) for s in ss for t in range(5)]
    S = Sched(qk(0, (0, 1), lambda t: "0") + qk(0, (2, 3), lambda t: "0"))
    S.spread(q_cvt((2, 3)), [min(i * 5 // 16, 9) for i in range(32)])
    S.spread([f"v_mov_b32 v{Preg(1,t)+k}, 0" for t in range(5) for k in range(4)], [10 + i // 2 for i in range(20)])
    seq += S.flat()
    seq += straight(half_group('V', 3))
    seq, _ = lgkm_waits(seq, final_zero=True)
    seq, n = hazards(seq); L.extend(seq)
    A(stamp("qk0_done"))
    A(f"s_cmp_eq_u32 {S_SAFE}, 1", "s_cbranch_scc1 L_safe_max")
    T = [2, 3, 4, 5, 6]
    U = [7, 8, 9, 10, 11]
    E = II("s_nop 5")
    for t in range(5): E += II(f"v_max3_f32 v{T[t]}, v{Sreg(0,t)}, v{Sreg(0,t)+1}, v{Sreg(0,t)+2}")
    for t in range(5): E += II(f"v_max_f32 v{T[t]}, v{T[t]}, v{Sreg(0,t)+3}")
    E += row_max_finish(T, U)
    S = Sched(qk(1, range(4), lambda t: vr(cinit(t))))
    sub = [f"v_add_f32 v{Sreg(0,t)+k}, v{Sreg(0,t)+k}, v{cinit(t)}" for t in range(5) for k in range(4)]
    ex = [f"v_exp_f32 v{Sreg(0,t)+k}, v{Sreg(0,t)+k}" for t in range(5) for k in range(4)]
    S.spread(sub, [i // 2 for i in range(20)])
    S.spread(ex, [min(2 + i, 19) for i in range(20)])
    E += S.flat()
    E += II("s_barrier")
    E += II("s_nop 3") + exps(1)
    E, n = hazards(E, history=L[-24:]); L.extend(E)
    A("L_max_done:")
    A(straight(half_group('K', 4)))
    return L

def row_max_finish(T, U):
    E = []
    for sw in ("v_permlane32_swap_b32", "v_permlane16_swap_b32"):
        for t in range(5): E += II(f"v_mov_b32 v{U[t]}, v{T[t]}")
        for t in range(5): E += II(f"{sw} v{T[t]}, v{U[t]}")
        for t in range(5): E += II(f"v_max_f32 v{T[t]}, v{T[t]}, v{U[t]}")
    for t in range(5):
        for k in range(4): E += II(f"v_sub_f32 v{cinit(t)+k}, 0, v{T[t]}")
    return E

def safe_paths():
    L = []; A = lambda *x: L.extend(II(*x))
    T = [2, 3, 4, 5, 6]; U = [7, 8, 9, 10, 11]
    ab = [(Sreg(0, t), Sreg(1, t)) for t in range(5)]
    A("L_safe_max:")
    for t in range(5): A(f"v_mov_b32 v{T[t]}, 0xff800000")
    A(f"s_mov_b32 {S_CNT}, 0")
    A("L_safe_loop:")
    A("s_waitcnt vmcnt(0) lgkmcnt(0)", "s_barrier")
    A(f"s_and_b32 s50, {S_CNT}, 15", "s_lshl_b32 s50, s50, 13", f"s_add_u32 s51, s50, {S_TQ}", f"s_add_u32 m0, {S_MK}, {kphys(0)}", "s_nop 0")
    A(kv_group('K', None, "s51"))
    A("s_waitcnt vmcnt(0)", "s_barrier")
    A([k_read(kt, s, 0) for kt in range(2) for s in range(4)], "s_waitcnt lgkmcnt(0)")
    A(f"s_cmp_eq_u32 {S_CNT}, 16", "s_cbranch_scc1 L_safe_last")
    A([qk_mfma(kt, s, t, lambda t: "0") for kt in range(2) for s in range(4) for t in range(5)], "s_nop 7", "s_nop 7")
    for t, (a, b) in enumerate(ab):
        A(f"v_max3_f32 v{T[t]}, v{T[t]}, v{a}, v{a+1}", f"v_max3_f32 v{T[t]}, v{T[t]}, v{a+2}, v{a+3}",
          f"v_max3_f32 v{T[t]}, v{T[t]}, v{b}, v{b+1}", f"v_max3_f32 v{T[t]}, v{T[t]}, v{b+2}, v{b+3}")
    A(f"s_add_u32 {S_CNT}, {S_CNT}, 1", f"s_cmp_lt_u32 {S_CNT}, 16", "s_cbranch_scc1 L_safe_loop")
    E, n = hazards(II("s_nop 3") + row_max_finish(T, U)); L.extend(E)
    A("s_branch L_safe_loop")
    A("L_safe_last:", "s_nop 3")
    A([qk_mfma(kt, s, t, lambda t: vr(cinit(t))) for kt in range(2) for s in range(4) for t in range(5)], "s_nop 7", "s_nop 7")
    A("s_barrier")
    for t, (a, b) in enumerate(ab):
        for base in (a, b):
            for k in range(4): A(f"v_exp_f32 v{base+k}, v{base+k}")
    A("s_nop 1", "s_branch L_max_done")
    if OPT['fused']:
        A("L_cnt_spin:", f"s_mov_b32 s53, {SPIN}", "L_cnt_spin_loop:", "s_sleep 2",
          f"buffer_load_dword v15, v14, {SRD_D}, 0 offen sc1", "s_waitcnt vmcnt(0)", "v_readfirstlane_b32 s52, v15", "s_nop 3",
          "s_cmp_ge_u32 s52, 16", "s_cbranch_scc1 L_cnt_ok", "s_sub_u32 s53, s53, 1", "s_cmp_lg_u32 s53, 0", "s_cbranch_scc1 L_cnt_spin_loop", "s_branch L_cnt_ok")
    A("L_restart:", f"s_mov_b32 {S_SAFE}, 1", "s_waitcnt vmcnt(0) lgkmcnt(0)", "s_barrier")
    A(lane_consts_q())
    A("s_branch L_phase_q")
    return L

def k_read(kt, s, slotk):
    off = kphys(slotk) + kt * 4096
    return I(f"ds_read_b128 {ar(kbuf(kt, s))}, v{V_KR[s]}" + (f" offset:{off}" if off else ""))
def v_read(dt, h, slotv):
    off = vphys(slotv) + h * 4096
    return I(f"ds_read_b64_tr_b16 {ar(abuf(dt) + 2*h, 2)}, v{V_VR[dt]}" + (f" offset:{off}" if off else ""))
def qk_mfma(kt, s, t, first_c):
    c = first_c(t) if s == 0 else vr(Sreg(kt, t))
    return mfma(vr(Sreg(kt, t)), ar(kbuf(kt, s)), vr(qfrag(t, s)), c)
def pv_mfma(dt, t, par):
    return mfma(ar(oacc(dt, t)), ar(abuf(dt)), vr(Preg(par, t)), ar(oacc(dt, t)))
def rs_mfma(t, par):
    return mfma(ar(lacc(t)), ar(A_ONES), vr(Preg(par, t)), ar(lacc(t)))
def cvts(par):
    out = []
    for kt in range(2):
        for t in range(5):
            s = Sreg(kt, t); p = Preg(par, t) + 2 * kt
            out.append(I(f"v_cvt_pk_bf16_f32 v{p}, v{s}, v{s+1}"))
            out.append(I(f"v_cvt_pk_bf16_f32 v{p+1}, v{s+2}, v{s+3}"))
    return out
def exps(kt):
    return [I(f"v_exp_f32 v{Sreg(kt,t)+i}, v{Sreg(kt,t)+i}") for t in range(5) for i in range(4)]

def att_dma(j, dyn=False):
    seq = []
    if j == 0 or j > 12: return seq
    if True:
        pre = II(f"s_add_u32 m0, {S_MK}, {kphys(j + 4)}")
        g = kv_group('K', None, S_SOFFK)
        seq += [(pre, g[0])] + [([], x) for x in g[1:]]
        seq[-1] = (seq[-1][0], seq[-1][1], II(f"s_add_u32 {S_SOFFK}, {S_SOFFK}, 8192"))
    if j + 3 <= 15:
        pre = II(f"s_add_u32 m0, {S_MV}, {vphys(j + 3)}")
        g = kv_group('V', None, S_SOFFV)
        s2 = [(pre, g[0])] + [([], x) for x in g[1:]]
        s2[-1] = (s2[-1][0], s2[-1][1], II(f"s_add_u32 {S_SOFFV}, {S_SOFFV}, 8192"))
        seq += s2
    return seq

def wo_dma(ks, slot_base_imm):
    seq = []
    for gI in range(2):
        pre = II(f"s_lshl_b32 s50, {S_W}, 13", f"s_add_u32 m0, s50, {slot_base_imm + gI*4096}", f"s_mov_b32 s51, {ks*32768 + gI*16384}")
        for n in range(4):
            seq.append((pre if n == 0 else [], dma(V_WOD[n], SRD_WO, "s51", n * 1024, OPT["wont"])))
    return seq

def att_body(j, vmwait, extra_dma=None):
    par_old, par_new = (j - 1) & 1, j & 1
    ms = [pv_mfma(dt, t, par_old) for dt in (5, 6, 7) for t in range(5)] + [rs_mfma(t, par_old) for t in range(5)]
    ms += [qk_mfma(kt, s, t, lambda t: vr(cinit(t))) for kt in range(2) for s in range(4) for t in range(5)]
    ms += [pv_mfma(dt, t, par_new) for dt in range(5) for t in range(5)]
    S = Sched(ms)
    cv = cvts(par_new)
    S.spread(cv, [1, 1, 3, 3, 6, 6, 8, 8, 11, 11, 13, 13, 16, 16, 18, 18, 21, 21, 23, 23])
    S.spread([k_read(kt, s, j + 1) for kt in range(2) for s in range(4)], [0, 2, 5, 7, 10, 12, 15, 17])
    vr_ = [v_read(dt, h, j) for dt in range(8) for h in range(2)]
    S.spread(vr_, [20, 22, 25, 26, 27, 28, 30, 31, 32, 33, 35, 36, 37, 38, 40, 61])
    d = att_dma(j) + (extra_dma or [])
    put_dmas(S, d, [4, 9, 14, 19, 24, 29, 34, 39])
    S.spread(exps(0), list(range(41, 61)))
    S.spread(exps(1), list(range(62, 82)))
    seq = S.flat()
    seq, pend = lgkm_waits(seq)
    seq += tr_mark() + II(f"s_waitcnt vmcnt({vmwait}) lgkmcnt(0)") + tr_commit() + II("s_barrier")
    if OPT['verbose']: print(S.report(f"att_body {j}"))
    return seq

WO1 = [192, 200, 208, 216, 224, 228, 232, 236]
def wofrag(ks, m, n=4, off=0):
    if ks == 0: return ar(216 + 4 * m + off, n)
    if ks == 1: return vr(WO1[m] + off, n)
    return ar((ks - 2) * 32 + 4 * m + off, n)
def wo_read(ks, m, h):
    cp, hf = m >> 1, m & 1
    off = (32768 if (ks & 1) == 0 else 0) + hf * 8 + h * 4096
    return I(f"ds_read_b64_tr_b16 {wofrag(ks, m, 2, 2*h)}, v{V_WOR[cp]}" + (f" offset:{off}" if off else ""))

def wo_prefetch(shift=0):
    n = OPT['pfw']
    L = II(f"s_add_u32 s50, {S_B}, {shift}", "s_and_b32 s50, s50, 7", "s_lshl_b32 s50, s50, 15", f"s_lshl_b32 s51, {S_W}, 13", "s_add_u32 s50, s50, s51")
    nt = " nt" if OPT['pfnt'] else ""
    if n == 8:
        L += II(f"v_lshlrev_b32 v46, 4, {V_LANE}")
        for i in range(8):
            L += II(f"s_add_u32 s51, s50, {i*1024}", f"buffer_load_dwordx4 v[252:255], v46, s[84:87], s51 offen{nt}")
    else:
        sh = {1: 7, 2: 6, 4: 5}[n]
        L += II(f"v_lshlrev_b32 v46, {sh}, {V_LANE}")
        for i in range(n):
            L += II(f"s_add_u32 s51, s50, {i * (64 << sh)}", f"buffer_load_dword v47, v46, s[84:87], s51 offen{nt}")
    return L

ATT_OOL = []
def attention():
    L = []; A = lambda *x: L.extend(II(*x))
    L += transition()
    A(stamp("att_start"))
    A(f"s_mov_b32 {S_CNT}, 0")
    b0, n = hazards(att_body(0, 16), history=L[-24:]); L.extend(b0)
    bodies = [att_body(j, 16) for j in range(1, 5)]
    hist = bodies[3][-24:]
    A(".p2align 6", "L_att_loop:")
    OOLA = []
    for i, b in enumerate(bodies):
        if i == 3:
            A(f"s_cmp_eq_u32 {S_CNT}, 2", "s_cbranch_scc0 L_att_nok_done")
            for n in range(4): A(f"v_add_u32 v{V_KD[n]}, 0x40000000, v{V_KD[n]}")
            A("L_att_nok_done:")
        b2, n = hazards(b, history=hist); L.extend(b2); hist = b2[-24:]
    if 0 <= OPT['pf'] < 3:
        A(f"s_cmp_eq_u32 {S_CNT}, {OPT['pf']}", "s_cbranch_scc0 L_att_nopf", wo_prefetch(), (wo_prefetch(4) if OPT.get('pfdup') else []), "L_att_nopf:")
    A(f"s_add_u32 {S_CNT}, {S_CNT}, 1", f"s_cmp_lt_u32 {S_CNT}, 3", "s_cbranch_scc1 L_att_loop")
    ATT_OOL.clear(); ATT_OOL.extend(OOLA)
    b, n = hazards(att_body(13, 16, extra_dma=wo_dma(0, WOA)), history=hist); L.extend(b); hist = b[-24:]
    if OPT.get('pf2nd'): A(wo_prefetch(4))
    b, n = hazards(att_body(14, 16, extra_dma=wo_dma(1, WOB)), history=hist); L.extend(b); hist = b[-24:]
    A(stamp("att_loop_done"))
    ms = [pv_mfma(dt, t, 0) for dt in (5, 6, 7) for t in range(5)] + [rs_mfma(t, 0) for t in range(5)]
    ms += [pv_mfma(dt, t, 1) for dt in range(8) for t in range(5)] + [rs_mfma(t, 1) for t in range(5)]
    S = Sched(ms)
    S.spread(cvts(1), list(range(0, 20)))
    S.spread([v_read(dt, h, 15) for dt in range(5) for h in range(2)], list(range(0, 10)))
    S.spread([v_read(dt, h, 15) for dt in (5, 6, 7) for h in range(2)], list(range(15, 21)))
    S.put(20, "s_waitcnt vmcnt(8)")
    S.spread([wo_read(0, m, h) for m in range(8) for h in range(2)], [21 + i // 2 for i in range(16)])
    S.put(28, "s_waitcnt vmcnt(0)")
    S.spread([wo_read(1, m, h) for m in range(8) for h in range(2)], [29 + i // 2 for i in range(16)])
    S.put(38, "s_waitcnt lgkmcnt(0)")
    if OPT['fused']:
        S.put(36, f"s_lshl_b32 s50, {S_CL}, 2", f"s_add_u32 s50, s50, {CNTOFF()}")
        S.spread([f"v_lshlrev_b32 v14, 8, {V_LANE}", "v_add_u32 v14, s50, v14"], [37, 37])
        S.put(38, f"buffer_load_dword v15, v14, {SRD_D}, 0 offen sc1")
    put_dmas(S, wo_dma(2, WOA), [41, 44, 47, 50, 54, 57, 60, 63])
    seq, pend = lgkm_waits(S.flat(), final_zero=True)
    seq, n = hazards(seq, history=hist); L.extend(seq)
    A("s_barrier")
    A("s_nop 3")
    A(stamp("att_done"))
    return L

def wo_dma_t(ks):
    d = wo_dma(ks, WOA if (ks & 1) == 0 else WOB)
    for e in d: e[1].tag = f"wo{ks}"
    return d
def wo_reads(ks): return [wo_read(ks, m, h) for m in range(8) for h in range(2)]

LFLAG = 90112

def o_epilogue():
    E = []
    tl = VT[0]; rc = VT[2]
    d3, d4, d5 = wo_dma_t(3), wo_dma_t(4), wo_dma_t(5)
    E += II(f"s_lshl_b32 s51, {S_QH}, 11", f"v_subrev_u32 v{V_OWB}, s51, v{V_OW}", f"v_add_u32 v{V_OW}, s51, v{V_OW}",
            f"s_lshl_b32 s50, {S_U}, 12", f"s_add_u32 s50, s50, 32768", "s_add_u32 s50, s50, s51", f"v_add_u32 v{V_OW4}, s50, v{V_OR}")
    def emit_dma(e):
        return e[0] + II("s_nop 0") * (1 if e[0] else 0) + [e[1]]
    nfr = 0
    for t in range(5):
        E += II(f"v_accvgpr_read_b32 v{tl}, a{lacc(t)}", f"v_rcp_f32 v{rc}, v{tl}", "s_nop 0", f"v_mov_b32 v{rc+1}, v{rc}")
        if t == 0: E += II(f"v_mov_b32 v{VT[1]}, v{tl}")
        else: E += II(f"v_max_f32 v{VT[1]}, v{VT[1]}, v{tl}")
        if t == 4:
            E += II(f"v_cmp_nge_f32 vcc, {hex(OPT['lthr'] or LTHR)}, v{VT[1]}", f"s_lshl_b32 s50, {S_W}, 2", f"s_add_u32 s50, s50, {LFLAG}", f"v_mov_b32 v52, s50",
                    "s_cmp_lg_u64 vcc, 0", "s_cselect_b32 s51, 1, 0", "v_mov_b32 v53, s51", "ds_write_b32 v52, v53")
        for ks in range(4 if t < 4 else 2):
            mid = []
            if nfr < 8: mid += emit_dma(d3[nfr])
            if 8 <= nfr < 16: mid += emit_dma(d4[nfr - 8])
            if nfr >= 16:
                for i in range(4): mid += emit_dma(d5[4 * (nfr - 16) + i])
            if OPT.get('x_oenodma'): mid = [x for x in mid if x.kind == 'dma'][:0] + [x for x in mid if x.kind != 'dma']
            rd = []
            cut = {0: (0, 6), 1: (6, 11), 2: (11, 16)}
            if 4 <= nfr < 7:
                if nfr == 4:
                    rd += [VmNeed("wo2")]
                    if OPT['fused']:
                        rd += II("v_readfirstlane_b32 s52, v15", "s_nop 3", "s_cmp_lt_u32 s52, 16", "s_cbranch_scc1 L_cnt_spin", "L_cnt_ok:")
                a_, b_ = cut[nfr - 4]; rd += wo_reads(2)[a_:b_]
            if 12 <= nfr < 15:
                if nfr == 12: rd += [VmNeed("wo3")]
                a_, b_ = cut[nfr - 12]; rd += wo_reads(3)[a_:b_]
            if OPT.get('oe_nord'): rd = [x for x in rd if x.kind != 'dsr']
            if OPT.get('oe_nowait'): rd = [x for x in rd if not isinstance(x, VmNeed)]
            if OPT.get('oe_nodma'): mid = []; rd = [x for x in rd if not (isinstance(x, VmNeed) and x.tag == 'wo3')]
            if nfr in (8, 16): E += II("s_waitcnt lgkmcnt(0)")
            E += rd
            for h in range(2):
                for k in range(4):
                    E += II(f"v_accvgpr_read_b32 v{52 + 4*h + k}, a{oacc(2*ks + h, t) + k}")
            E += mid
            for k in range(4): E += II(f"v_pk_mul_f32 {vr(52+2*k,2)}, {vr(52+2*k,2)}, {vr(rc,2)}")
            for k in range(4): E += II(f"v_cvt_pk_bf16_f32 v{60+k}, v{52+2*k}, v{53+2*k}")
            E += II(f"ds_write_b128 v{V_OW if ks < 2 else V_OWB}, {vr(60)} offset:{(t*8+ks)*1024}" if t < 4 else f"ds_write_b128 v{V_OW4}, {vr(60)} offset:{ks*1024}")
            nfr += 1
        if OPT['stamps'] and OPT.get('oest'): E += [Raw("\n  ".join(x.txt for x in stamp(f"oe{t}")))] + II("s_waitcnt lgkmcnt(0)")
    E, q = vm_waits(E, ["cnt"] + ["wo2"] * 8)
    E, pend = lgkm_waits(E, final_zero=True)
    E, n = hazards(E)
    return E + II("s_barrier"), q

def o_read(dst, t, ks):
    if t < 8: return I(f"ds_read_b128 {vr(dst)}, v{V_OR} offset:{(t*8+ks)*1024}")
    return I(f"ds_read_b128 {vr(dst)}, v{V_OR8} offset:{ks*1024}")
V_PSC = [196, 197, 198, 199]
V_OWNA = 204; S_OWN = "s49"
OWNB = 73728
OWN_OOL = []
OWN_BLK = {}
def pstore(src, t, cp):
    v = V_PSC[cp] if OPT['own'] else V_PS
    return (II(f"s_add_u32 s51, {S_SOFFP}, {(cp*9 + t)*16384}"),
            I(f"buffer_store_dwordx4 {vr(src)}, v{v}, {SRD_P}, s51 offen {OPT['pst']}"))
def own_hook(src, t, cp):
    if not OPT['own']: return []
    OWN_BLK.setdefault(t, []).extend(II(f"L_own_{t}_{cp}:", f"ds_write_b128 v{V_OWNA}, {vr(src)} offset:{t*1024}", f"s_branch L_ownb_{t}_{cp}"))
    return II(f"s_cmp_eq_u32 {S_OWN}, {cp}", f"s_cbranch_scc1 L_own_{t}_{cp}", f"L_ownb_{t}_{cp}:")

NP1 = 2
def acc1(t, m): return 64 + (t * 8 + m) * 4
def acc2(t, m): return 128 + ((t & 1) * 8 + m) * 4
def bfr1(par, t): return 2 + (par * 4 + t) * 4
STG = [48, 52, 56, 60]

def tile_epilogue(accf, t, k0):
    out = []
    for cp in range(4):
        a0, a1 = accf(t, 2*cp), accf(t, 2*cp + 1)
        d = STG[(k0 + cp) & 3]
        cv = II(f"v_cvt_pk_bf16_f32 v{d}, v{a0}, v{a0+1}", f"v_cvt_pk_bf16_f32 v{d+1}, v{a0+2}, v{a0+3}",
                f"v_cvt_pk_bf16_f32 v{d+2}, v{a1}, v{a1+1}", f"v_cvt_pk_bf16_f32 v{d+3}, v{a1+2}, v{a1+3}")
        pre, st = pstore(d, t, cp)
        if OPT.get('x_nost') and not (t == 8 and cp == 3): st = I("s_nop 0")
        st.tag = f"st{t}"
        out.append((cv, (pre, st), own_hook(d, t, cp)))
    return out

def out_proj(queue):
    L = []; A = lambda *x: L.extend(II(*x))
    A(f"s_mul_i32 {S_SOFFP}, {S_W}, {4*9*16384}")
    OWN_OOL.clear(); OWN_BLK.clear()
    if OPT['own']:
        A(f"s_lshr_b32 s50, {S_HP}, 2", f"s_and_b32 s51, {S_HP}, 3", f"s_cmp_eq_u32 s50, {S_W}", f"s_cselect_b32 {S_OWN}, s51, 7")
        for cp in range(4):
            A(f"s_cmp_eq_u32 {S_OWN}, {cp}", "s_cselect_b32 s50, 0x40000000, 0", f"v_or_b32 v{V_PSC[cp]}, s50, v{V_PS}")
        A(f"v_add_u32 v{V_OWNA}, {OWNB}, v{V_OR}")
    NP = OPT['np1']
    G = 8 * NP
    ms = [mfma(vr(acc1(t, m)), wofrag(ks, m), vr(bfr1(ks & 1, t)), ("0" if ks == 0 else vr(acc1(t, m)))) for ks in range(8) for m in range(8) for t in range(NP)]
    bt = lambda ks: 2 + 4 * ks
    P1 = len(ms)
    for t in range(NP, 9):
        ms += [mfma(vr(acc2(t, m)), wofrag(ks, m), vr(bt(ks)), ("0" if ks == 0 else vr(acc2(t, m)))) for ks in range(8) for m in range(8)]
    S = Sched(ms)
    def reads(ks, g0): S.spread(wo_reads(ks), [g0 + i // 2 for i in range(16)])
    def dmas(ks, g0, step=4): put_dmas(S, wo_dma_t(ks), [g0 + step * i for i in range(8)])
    def put_free(ins, g0):
        g = g0
        while S.cost(g) + COST[ins.kind] > 8: g += 1
        S.put(g, ins); return g
    def epi(t, accf, g0, stride):
        for cp, (cv, (spre, st), hook) in enumerate(tile_epilogue(accf, t, 0)):
            g = g0 + cp * stride
            S.spread(cv, [g, g, g + 1, g + 1])
            for p in spre: S.put(g + 1, p)
            for p in hook: S.put(g + 2, p)
            S.put(g + 2, st)
        if OPT['own']:
            blk = OWN_BLK.pop(t)
            S.put(g0 + 3 * stride + 4, Raw(f"s_branch L_ownx_{t}\n" + "\n".join((x.txt if x.kind == 'label' else "  " + x.txt) for x in blk) + f"\nL_ownx_{t}:"))
    if NP == 2:
        pre = [o_read(bfr1(0, t), t, 0) for t in range(NP)]
        S.put(0, VmNeed("wo4")); reads(4, 0)
        S.put(9, "s_waitcnt lgkmcnt(0)"); dmas(6, 11, 3)
        S.put(33, VmNeed("wo5")); reads(5, 33)
        S.put(42, "s_waitcnt lgkmcnt(0)"); dmas(7, 44, 3)
        S.put(84, VmNeed("wo6")); reads(6, 84)
        S.put(100, VmNeed("wo7")); reads(7, 100)
        for ks in range(7):
            g = ks * G + (1 if ks else 8)
            for t in range(NP):
                g = put_free(o_read(bfr1((ks + 1) & 1, t), t, ks + 1), g) + 1
            assert g <= (ks + 1) * G - 3, (ks, g)
        g = 6 * G + 4
        for ks in (2, 3, 6, 7): g = put_free(o_read(bt(ks), NP, ks), g) + 1
        g = 7 * G + 1
        for ks in (0, 1): g = put_free(o_read(bt(ks), NP, ks), g) + 1
        base = P1
        for ks in (4, 5): put_free(o_read(bt(ks), NP, ks), base + 1)
        epi(0, acc1, base + 4, 7); epi(1, acc1, base + 32, 7)
    else:
        assert NP == 0
        pre = [o_read(bt(ks), 0, ks) for ks in range(8)]
        S.put(0, VmNeed("wo4")); reads(4, 0)
        S.put(9, "s_waitcnt lgkmcnt(0)"); dmas(6, 11, 2)
        S.put(10, VmNeed("wo5"));
        S.spread(wo_reads(5), [12, 12, 14, 14, 16, 16, 18, 18, 20, 20, 22, 22, 24, 24, 26, 26])
        S.put(28, "s_waitcnt lgkmcnt(0)"); dmas(7, 30, 2)
        S.put(46, VmNeed("wo6")); S.spread(wo_reads(6), [46, 46, 46, 46] + [47 + i // 4 for i in range(12)])
        S.put(54, VmNeed("wo7")); S.spread(wo_reads(7), [54, 54, 54, 54] + [55 + i // 12 for i in range(12)])
    for t in range(NP, 9):
        b = P1 + (t - NP) * 64
        if t > NP: epi(t - 1, acc2, b + 6, 12)
        if t < 8:
            for ks in range(8):
                g = b + 8 * ks + 8
                if g >= b + 64: g = b + 64 + 1
                put_free(o_read(bt(ks), t + 1, ks), g)
    if OPT['fused']:
        g0 = P1 + (3 - NP) * 64 + 49
        S.put(g0, f"s_lshl_b32 s50, {S_W}, 7", f"s_lshl_b32 s52, {S_HP}, 2", "s_add_u32 s50, s50, s52")
        S.spread([f"v_lshlrev_b32 v36, 13, {V_LANE}", "v_add_u32 v36, s50, v36", "v_mov_b32 v37, 1"], [g0 + 1, g0 + 1, g0 + 2])
        S.put(g0 + 3, f"s_lshr_b32 s50, {S_HP}, 2", "s_lshl_b32 s50, s50, 7")
        S.spread([f"v_lshrrev_b32 v46, 4, {V_LANE}", "v_lshlrev_b32 v46, 9, v46", f"v_and_b32 v47, 15, {V_LANE}",
                  "v_lshl_add_u32 v46, v47, 2, v46", "v_add_u32 v46, s50, v46"], [g0 + 4, g0 + 4, g0 + 5, g0 + 9, g0 + 9])
        b = P1 + (8 - NP) * 64
        fa = I(f"buffer_store_dword v37, v36, {SRD_F}, 0 offen sc1"); fa.tag = "fl"
        if OPT['early']:
            S.put(b + 40, VmNeed("st3")); S.put(b + 41, fa)
            pl = I(f"buffer_load_dword v47, v46, {SRD_F}, 0 offen sc1"); pl.tag = "poll"
            S.put(b + 60, pl)
    if OPT['stamps'] and OPT.get('opst'):
        for nm, g in (("w1", 127), ("w3", 255), ("w5", 383), ("w8", 575)):
            S.put(g, Raw("\n  ".join(x.txt for x in stamp(nm))))
            S.put(g, "s_waitcnt lgkmcnt(0)")
    pre = II(f"v_mov_b32 v56, {LFLAG}", f"ds_read_b128 {vr(52)}, v56") + pre
    pre += II("s_waitcnt lgkmcnt(0)", "v_or3_b32 v52, v52, v53, v54", "v_or_b32 v52, v52, v55", "s_nop 0", "v_readfirstlane_b32 s50, v52", "s_nop 3",
              f"s_andn2_b32 s50, s50, {S_SAFE}", "s_cmp_lg_u32 s50, 0", "s_cbranch_scc1 L_restart")
    seq = pre + S.flat()
    tail = II("s_nop 7")
    for cp, (cv, (spre, st), hook) in enumerate(tile_epilogue(acc2, 8, 0)):
        tail += cv + spre + hook + [st]
    if OPT['own']:
        tail += II("s_branch L_ownx_8") + OWN_BLK.pop(8) + II("L_ownx_8:")
    if OPT['stamps'] and OPT.get('opst'): tail += stamp("st_iss")
    if OPT['fused']:
        fb = I(f"buffer_store_dword v37, v36, {SRD_F}, 0 offen offset:512 sc1"); fb.tag = "fl"
        fc = I(f"buffer_store_dword v37, v36, {SRD_F}, 0 offen offset:1024 sc1"); fc.tag = "fl"
        tail += [VmNeed("poll"), fb, VmNeed("st8"), fc] if OPT['early'] else [VmNeed("st8"), fa, fb, fc]
    seq, q = vm_waits(seq + tail, queue)
    seq, pend = lgkm_waits(seq)
    seq, n = hazards(seq)
    if OPT['verbose']: print(S.report("out_proj"), "nops", n)
    L += seq
    return L, q

SPIN = 1 << 22
def reduce_phase_groups():
    L = []; A = lambda *x: L.extend(II(*x))
    DAT = lambda g, tt, k: 64 + ((g * 2 + tt) * 4 + k) * 4
    D8 = lambda k: 192 + 4 * k
    ACC = lambda g, tt: [208, 216, 224, 232, 240, 248, 2, 10][g * 2 + tt]
    A8 = 18
    T0, T1 = 26, 28
    V_POLL, V_FL, V_L16, V_OUT = 46, 47, 32, 33
    A(f"v_lshrrev_b32 v30, 4, {V_LANE}", f"v_and_b32 v31, 15, {V_LANE}", f"v_lshlrev_b32 v{V_L16}, 4, {V_LANE}",
      f"v_lshlrev_b32 v{V_OUT}, 11, v31", f"v_lshl_add_u32 v{V_OUT}, v30, 4, v{V_OUT}")
    A(f"s_mul_i32 s32, {S_B}, {144*2048}", f"s_lshl_b32 s50, {S_BR}, 10", "s_add_u32 s32, s32, s50", f"s_lshl_b32 s50, {S_HP}, 6", "s_add_u32 s32, s32, s50")
    A(f"s_mul_i32 s33, {S_HP}, {9*16384}")
    A(f"s_lshl_b32 s50, {S_W}, 14", "s_add_u32 s34, s33, s50", "s_add_u32 s35, s34, 65536",
      f"s_add_u32 s36, s33, {8*16384}", f"s_lshl_b32 s50, {S_W}, 12", "s_add_u32 s36, s36, s50",
      f"s_lshl_b32 s41, {S_W}, 2")
    A("s_mov_b32 s37, 0", "s_mov_b32 s38, 0", f"s_mov_b32 s53, {SPIN}")
    if OPT['own']:
        A(f"s_lshr_b32 s46, {S_HP}, 2", f"s_and_b32 s47, {S_HP}, 3", f"s_lshl_b32 s50, {S_W}, 10", f"s_add_u32 s50, s50, {OWNB}", f"v_add_u32 v44, s50, v{V_L16}")
        if not OPT['latebar']:
            A("s_waitcnt lgkmcnt(0)", "s_barrier", "ds_read_b128 v[36:39], v44", "ds_read_b128 v[40:43], v44 offset:4096")
    def unpack_add(acc, src, first):
        out = []
        for k in range(4):
            if first:
                out += [f"v_lshlrev_b32 v{acc+2*k}, 16, v{src+k}", f"v_and_b32 v{acc+2*k+1}, 0xffff0000, v{src+k}"]
            else:
                t = (T0, T1)[k & 1]
                out += [f"v_lshlrev_b32 v{t}, 16, v{src+k}", f"v_and_b32 v{t+1}, 0xffff0000, v{src+k}",
                        f"v_pk_add_f32 v[{acc+2*k}:{acc+2*k+1}], v[{acc+2*k}:{acc+2*k+1}], v[{t}:{t+1}]"]
        return out
    items = [(tt, g) for tt in range(2) for g in range(4)] + [(2, None)]
    if OPT['early']: A("s_branch L_red_first")
    A("L_red_loop:")
    A("s_cmp_eq_u32 s37, 0x1ff", "s_cbranch_scc1 L_red_nopoll")
    A(f"buffer_load_dword v{V_FL}, v{V_POLL}, {SRD_F}, 0 offen sc1")
    A("L_red_nopoll:", "s_waitcnt vmcnt(0)")
    A("s_andn2_b32 s42, s37, s38")
    for i, (tt, g) in enumerate(items):
        if tt < 2 and g == 0: A(f"s_and_b32 s50, s42, {hex(15 << (4 * tt))}", f"s_cbranch_scc0 L_red_nosumc{tt}")
        A(f"s_bitcmp1_b32 s42, {i}", f"s_cbranch_scc0 L_red_nosum{i}")
        for k in range(4):
            A(unpack_add(ACC(g, tt), DAT(g, tt, k), k == 0) if tt < 2 else unpack_add(A8, D8(k), k == 0))
        A(f"L_red_nosum{i}:")
        if tt < 2 and g == 3: A(f"L_red_nosumc{tt}:")
    A("s_mov_b32 s38, s37", "s_cmp_eq_u32 s38, 0x1ff", "s_cbranch_scc1 L_red_done")
    A("L_red_first:")
    A(f"v_cmp_eq_u32 vcc, 1, v{V_FL}", "s_nop 3", "s_mov_b32 s39, vcc_lo", "s_lshr_b32 s43, vcc_hi, s41", "s_and_b32 s43, s43, 15", "s_mov_b32 s40, s37")
    A("s_sub_u32 s53, s53, 1", "s_cmp_eq_u32 s53, 0", "s_cselect_b32 s39, -1, s39", "s_cselect_b32 s43, 15, s43", "s_cselect_b32 s53, 1, s53")
    for i, (tt, g) in enumerate(items):
        if tt < 2 and g == 0:
            A(f"s_bfe_u32 s50, s37, {hex((4 << 16) | (4 * tt))}", "s_cmp_eq_u32 s50, 15", f"s_cbranch_scc1 L_red_noissc{tt}",
              f"s_bfe_u32 s50, s39, {hex((16 << 16) | (16 * tt))}", "s_cmp_eq_u32 s50, 0", f"s_cbranch_scc1 L_red_noissc{tt}")
        A(f"s_bitcmp1_b32 s37, {i}", f"s_cbranch_scc1 L_red_noiss{i}")
        if tt < 2:
            A(f"s_bfe_u32 s50, s39, {hex((4 << 16) | (16 * tt + 4 * g))}", "s_cmp_eq_u32 s50, 15")
        else:
            A("s_cmp_eq_u32 s43, 15")
        A(f"s_cbranch_scc0 L_red_noiss{i}")
        if tt < 2: A(f"s_add_u32 s50, s{34+tt}, {g*4096}")
        if OPT['own']:
            A(f"s_cmp_eq_u32 s46, {g}" if tt < 2 else f"s_cmp_eq_u32 s46, {S_W}", "s_cselect_b32 s44, s47, 7")
        for k in range(4):
            o = f" offset:{k*1024}" if k else ""
            va = V_L16
            if OPT['own']:
                A(f"s_cmp_eq_u32 s44, {k}", "s_cselect_b32 s45, 0x40000000, 0", f"v_or_b32 v45, s45, v{V_L16}"); va = 45
            if tt < 2: A(f"buffer_load_dwordx4 {vr(DAT(g, tt, k))}, v{va}, {SRD_P}, s50 offen{o} {OPT['rld']}")
            else: A(f"buffer_load_dwordx4 {vr(D8(k))}, v{va}, {SRD_P}, s36 offen{o} {OPT['rld']}")
        A(f"s_bitset1_b32 s37, {i}", f"L_red_noiss{i}:")
        if tt < 2 and g == 3: A(f"L_red_noissc{tt}:")
    if OPT.get('rdst'):
        A("s_cmp_eq_u32 s40, 0", "s_cbranch_scc0 L_rs1", "s_cmp_lg_u32 s37, 0", "s_cbranch_scc0 L_rs1", stamp("r_first"), "L_rs1:")
        A("s_cmp_eq_u32 s37, 0x1ff", "s_cbranch_scc0 L_rs2", stamp("r_alliss"), "L_rs2:")
    A("s_cmp_lg_u32 s37, s40", "s_cbranch_scc1 L_red_loop", f"s_sleep {OPT['psleep']}", "s_branch L_red_loop")
    A("L_red_done:")
    if OPT.get('rdst'): A(stamp("r_summed"))
    A(f"s_lshl_b32 s50, {S_W}, 11", f"v_lshlrev_b32 v30, 5, {V_LANE}", f"v_add_u32 v30, {WOB}, v30", "v_add_u32 v31, s50, v30",
      f"ds_write_b128 v31, {vr(A8)}", f"ds_write_b128 v31, {vr(A8+4)} offset:16")
    late = OPT['own'] and OPT['latebar']
    for tt in range(2):
        a0 = ACC(0, tt)
        for g in range(1, 4):
            for k in range(4): A(f"v_pk_add_f32 v[{a0+2*k}:{a0+2*k+1}], v[{a0+2*k}:{a0+2*k+1}], v[{ACC(g,tt)+2*k}:{ACC(g,tt)+2*k+1}]")
    if late:
        A("s_waitcnt lgkmcnt(0)", "s_barrier", "ds_read_b128 v[36:39], v44", "ds_read_b128 v[40:43], v44 offset:4096")
    for tt in range(2):
        a0 = ACC(0, tt)
        if OPT['own']: A(("s_waitcnt lgkmcnt(1)" if late else "s_waitcnt lgkmcnt(2)") if tt == 0 else "s_waitcnt lgkmcnt(0)" if late else "s_nop 0", unpack_add(a0, 36 + 4 * tt, False))
        for k in range(4): A(f"v_cvt_pk_bf16_f32 v{64+4*tt+k}, v{a0+2*k}, v{a0+2*k+1}")
        A(f"s_lshl_b32 s50, {S_W}, 15", f"s_add_u32 s50, s50, s32", f"s_add_u32 s50, s50, {tt*4*32768}")
        A(f"buffer_store_dwordx4 {vr(64+4*tt)}, v{V_OUT}, {SRD_O}, s50 offen {OPT['ost']}")
    if not late: A("s_waitcnt lgkmcnt(0)", "s_barrier")
    A(f"s_cmp_eq_u32 {S_W}, 0", "s_cbranch_scc0 L_red_end")
    for g in range(4):
        A(f"ds_read_b128 {vr(80+8*g)}, v30 offset:{g*2048}", f"ds_read_b128 {vr(84+8*g)}, v30 offset:{g*2048+16}")
    if OPT['own']: A("ds_read_b128 v[36:39], v44 offset:8192")
    A("s_waitcnt lgkmcnt(0)")
    for g in range(1, 4):
        for k in range(4): A(f"v_pk_add_f32 v[{80+2*k}:{81+2*k}], v[{80+2*k}:{81+2*k}], v[{80+8*g+2*k}:{81+8*g+2*k}]")
    if OPT['own']: A(unpack_add(80, 36, False))
    for k in range(4): A(f"v_cvt_pk_bf16_f32 v{72+k}, v{80+2*k}, v{81+2*k}")
    A(f"s_add_u32 s50, s32, {8*32768}")
    A(f"buffer_store_dwordx4 {vr(72)}, v{V_OUT}, {SRD_O}, s50 offen {OPT['ost']}")
    A("L_red_end:")
    L2, n = hazards(L)
    return L2

def reduce_phase():
    if not OPT['linred']: return reduce_phase_groups()
    assert OPT['own'] and OPT['early']
    L = []; A = lambda *x: L.extend(II(*x))
    DA = lambda p: 64 + 4 * p
    DB = lambda p: 128 + 4 * p
    D8 = lambda k: 192 + 4 * k
    ACA, ACB, A8 = 208, 216, 224
    T0, T1 = 26, 28
    V_POLL, V_FL, V_L16, V_OUT = 46, 47, 32, 33
    A(f"v_lshrrev_b32 v30, 4, {V_LANE}", f"v_and_b32 v31, 15, {V_LANE}", f"v_lshlrev_b32 v{V_L16}, 4, {V_LANE}",
      f"v_lshlrev_b32 v{V_OUT}, 11, v31", f"v_lshl_add_u32 v{V_OUT}, v30, 4, v{V_OUT}")
    A(f"s_mul_i32 s33, {S_HP}, {9*16384}")
    A(f"s_lshl_b32 s50, {S_W}, 14", "s_add_u32 s34, s33, s50", "s_add_u32 s35, s34, 65536",
      f"s_add_u32 s36, s33, {8*16384}", f"s_lshl_b32 s50, {S_W}, 12", "s_add_u32 s36, s36, s50",
      f"s_lshl_b32 s41, {S_W}, 2", f"s_mov_b32 s53, {SPIN}")
    def loads(base, dst):
        for p in range(16):
            if p % 4 == 0: A(f"s_add_u32 s50, {base}, {p*1024}")
            o = f" offset:{(p % 4)*1024}" if p % 4 else ""
            A(f"s_cmp_eq_u32 {S_HP}, {p}", f"s_cbranch_scc1 L_rl_{base}_{p}",
              f"buffer_load_dwordx4 {vr(dst(p))}, v{V_L16}, {SRD_P}, s50 offen{o} {OPT['rld']}", f"L_rl_{base}_{p}:")
    def poll(name, test):
        A(f"L_poll_{name}:", f"v_cmp_eq_u32 vcc, 1, v{V_FL}", "s_nop 3")
        A(test)
        A(f"s_cbranch_scc1 L_poll_{name}_ok", "s_sub_u32 s53, s53, 1", "s_cmp_eq_u32 s53, 0", f"s_cbranch_scc1 L_poll_{name}_ok",
          f"s_sleep {OPT['psleep']}", f"buffer_load_dword v{V_FL}, v{V_POLL}, {SRD_F}, 0 offen sc1", "s_waitcnt vmcnt(0)", f"s_branch L_poll_{name}",
          f"L_poll_{name}_ok:")
    def unpack_add(acc, src):
        out = []
        for k in range(4):
            t = (T0, T1)[k & 1]
            out += [f"v_lshlrev_b32 v{t}, 16, v{src+k}", f"v_and_b32 v{t+1}, 0xffff0000, v{src+k}",
                    f"v_pk_add_f32 v[{acc+2*k}:{acc+2*k+1}], v[{acc+2*k}:{acc+2*k+1}], v[{t}:{t+1}]"]
        return out
    poll("a", ["s_and_b32 s50, vcc_lo, 0xffff", "s_cmp_eq_u32 s50, 0xffff"])
    loads("s34", DA)
    A(f"s_lshl_b32 s50, {S_W}, 10", f"s_add_u32 s50, s50, {OWNB}", f"v_add_u32 v44, s50, v{V_L16}",
      "s_waitcnt lgkmcnt(0)", "s_barrier", "ds_read_b128 v[36:39], v44", "ds_read_b128 v[40:43], v44 offset:4096")
    for r in range(ACA, ACA + 24): A(f"v_mov_b32 v{r}, 0")
    A(f"s_mul_i32 s32, {S_B}, {144*2048}", f"s_lshl_b32 s50, {S_BR}, 10", "s_add_u32 s32, s32, s50", f"s_lshl_b32 s50, {S_HP}, 6", "s_add_u32 s32, s32, s50")
    A(f"buffer_load_dword v{V_FL}, v{V_POLL}, {SRD_F}, 0 offen sc1", "s_waitcnt vmcnt(0)")
    poll("b", ["s_lshr_b32 s50, vcc_lo, 16", "s_lshr_b32 s51, vcc_hi, s41", "s_and_b32 s51, s51, 15", "s_lshl_b32 s51, s51, 16", "s_or_b32 s50, s50, s51",
               "s_cmp_eq_u32 s50, 0xfffff"])
    loads("s35", DB)
    for k in range(4):
        o = f" offset:{k*1024}" if k else ""
        A(f"s_add_u32 s50, s41, {k}", f"s_cmp_eq_u32 {S_HP}, s50", f"s_cbranch_scc1 L_rl8_{k}",
          f"buffer_load_dwordx4 {vr(D8(k))}, v{V_L16}, {SRD_P}, s36 offen{o} {OPT['rld']}", f"L_rl8_{k}:")
    for p in range(16):
        A(f"s_cmp_eq_u32 {S_HP}, {p}", f"s_cbranch_scc1 L_rs_a{p}", unpack_add(ACA, DA(p)), f"L_rs_a{p}:")
    A("s_waitcnt lgkmcnt(0)", unpack_add(ACA, 36))
    for k in range(4): A(f"v_cvt_pk_bf16_f32 v{64+k}, v{ACA+2*k}, v{ACA+2*k+1}")
    A(f"s_lshl_b32 s50, {S_W}, 15", "s_add_u32 s37, s50, s32")
    A(f"buffer_store_dwordx4 {vr(64)}, v{V_OUT}, {SRD_O}, s37 offen {OPT['ost']}")
    for p in range(16):
        A(f"s_waitcnt vmcnt({max(15 - p + 4 + 1 - 2, 0)})", f"s_cmp_eq_u32 {S_HP}, {p}", f"s_cbranch_scc1 L_rs_b{p}", unpack_add(ACB, DB(p)), f"L_rs_b{p}:")
    A(unpack_add(ACB, 40))
    for k in range(4): A(f"v_cvt_pk_bf16_f32 v{68+k}, v{ACB+2*k}, v{ACB+2*k+1}")
    A(f"s_add_u32 s37, s37, {4*32768}")
    A("s_waitcnt vmcnt(1)")
    for k in range(4):
        A(f"s_add_u32 s50, s41, {k}", f"s_cmp_eq_u32 {S_HP}, s50", f"s_cbranch_scc1 L_rs_c{k}", unpack_add(A8, D8(k)), f"L_rs_c{k}:")
    A(f"buffer_store_dwordx4 {vr(68)}, v{V_OUT}, {SRD_O}, s37 offen {OPT['ost']}")
    A(f"s_lshl_b32 s50, {S_W}, 11", f"v_lshlrev_b32 v30, 5, {V_LANE}", f"v_add_u32 v30, {WOB}, v30", "v_add_u32 v31, s50, v30",
      f"ds_write_b128 v31, {vr(A8)}", f"ds_write_b128 v31, {vr(A8+4)} offset:16")
    A("s_waitcnt lgkmcnt(0)", "s_barrier", f"s_cmp_eq_u32 {S_W}, 0", "s_cbranch_scc0 L_red_end")
    for g in range(4):
        A(f"ds_read_b128 {vr(80+8*g)}, v30 offset:{g*2048}", f"ds_read_b128 {vr(84+8*g)}, v30 offset:{g*2048+16}")
    A("ds_read_b128 v[36:39], v44 offset:8192")
    A("s_waitcnt lgkmcnt(0)")
    for g in range(1, 4):
        for k in range(4): A(f"v_pk_add_f32 v[{80+2*k}:{81+2*k}], v[{80+2*k}:{81+2*k}], v[{80+8*g+2*k}:{81+8*g+2*k}]")
    A(unpack_add(80, 36))
    for k in range(4): A(f"v_cvt_pk_bf16_f32 v{72+k}, v{80+2*k}, v{81+2*k}")
    A(f"s_add_u32 s50, s32, {8*32768}")
    A(f"buffer_store_dwordx4 {vr(72)}, v{V_OUT}, {SRD_O}, s50 offen {OPT['ost']}")
    A("L_red_end:")
    L2, n = hazards(L)
    return L2

def dump_regs(regs, slot, kind='v'):
    L = []; A = lambda *x: L.extend(II(*x))
    A("s_add_u32 s66, s58, 0x4000000", "s_addc_u32 s67, s59, 0",
      "s_lshl_b32 s50, s2, 2", f"s_add_u32 s50, s50, {S_W}", "s_lshl_b32 s50, s50, 16",
      f"v_lshlrev_b32 v253, 2, {V_LANE}", "v_add_u32 v253, s50, v253")
    for i, r in enumerate(regs):
        if kind == 'a':
            A(f"v_accvgpr_read_b32 v254, a{r}", "s_nop 0")
            A(f"global_store_dword v253, v254, s[66:67]")
        else:
            A(f"global_store_dword v253, v{r}, s[66:67]")
        A("v_add_u32 v253, 256, v253")
    A("s_waitcnt vmcnt(0)")
    return L

def main_kernel():
    L = []
    L += setup()
    L += stamp("start")
    L += phase_q()
    L += stamp("q_done")
    if OPT['dump'] == 'q':
        L += II("s_nop 7") + dump_regs([qfrag(t, s) + k for t in range(5) for s in range(4) for k in range(4)], 0)
        L += II("s_waitcnt vmcnt(0)", "s_endpgm")
    L += attention()
    if OPT['dump'] == 'o':
        L += II("s_nop 7") + dump_regs([oacc(dt, t) + k for t in range(5) for dt in range(8) for k in range(4)] + [lacc(t) for t in range(5)], 0, 'a')
        L += II("s_waitcnt vmcnt(0)", "s_endpgm")
    e, q = o_epilogue(); L += e
    L += stamp("o_done")
    if OPT.get('stop') == 'o':
        L += II("s_waitcnt vmcnt(0)") + stamp("end") + stamp_dump() + II("L_main_end:", "s_endpgm") + safe_paths()
        return L
    e, q = out_proj(q); L += e
    L += stamp("op_done")
    if OPT['fused']:
        L += reduce_phase()
        L += stamp("red_done")
    L += tr_dump()
    L += II("s_waitcnt vmcnt(0)")
    L += stamp("end")
    L += stamp_dump()
    L += II("L_main_end:", "s_endpgm")
    L += OWN_OOL + ATT_OOL
    L += safe_paths()
    return L

def reduce_kernel():
    L = []; A = lambda *x: L.extend(II(*x))
    A("s_cmp_ge_u32 s2, 256", "s_cbranch_scc1 L_red_end")
    A("s_load_dwordx2 s[4:5], s[0:1], 80", "s_load_dwordx2 s[6:7], s[0:1], 96")
    A("v_lshrrev_b32 v2, 6, v0", "v_and_b32 v1, 63, v0", "s_nop 0", "v_readfirstlane_b32 s12, v2", "s_nop 3")
    A("s_waitcnt lgkmcnt(0)")
    A("s_mul_i32 s13, s2, 9", "s_add_u32 s13, s13, s12", "s_lshl_b32 s13, s13, 14")
    A("s_add_u32 s16, s6, s13", "s_addc_u32 s17, s7, 0", "s_and_b32 s17, s17, 0xffff", "s_mov_b32 s18, 16384", "s_mov_b32 s19, 0x20000")
    A("v_lshlrev_b32 v2, 4, v1")
    for p in range(16):
        A(f"buffer_load_dwordx4 v[{8+4*p}:{11+4*p}], v2, s[16:19], 0 offen offset:{(p%4)*1024}" if p < 4 else
          f"buffer_load_dwordx4 v[{8+4*p}:{11+4*p}], v2, s[16:19], s{20+p//4} offen offset:{(p%4)*1024}")
        if p == 3: A("s_mov_b32 s21, 4096", "s_mov_b32 s22, 8192", "s_mov_b32 s23, 12288")
    A("s_lshr_b32 s14, s2, 4", "s_and_b32 s15, s2, 15",
      "s_and_b32 s24, s14, 7", "s_lshr_b32 s25, s14, 3",
      "s_mul_i32 s24, s24, 144", "s_lshl_b32 s26, s12, 4", "s_add_u32 s24, s24, s26", "s_lshl_b32 s24, s24, 11",
      "s_lshl_b32 s25, s25, 10", "s_lshl_b32 s15, s15, 6", "s_add_u32 s24, s24, s25", "s_add_u32 s24, s24, s15")
    A("v_and_b32 v3, 15, v1", "v_lshlrev_b32 v3, 11, v3", "v_lshrrev_b32 v4, 4, v1", "v_lshl_add_u32 v3, v4, 4, v3")
    A("s_mov_b32 s28, s4", "s_and_b32 s29, s5, 0xffff", "s_mov_b32 s30, 2359296", "s_mov_b32 s31, 0x20000")
    acc = 80
    for p in range(16):
        A(f"s_waitcnt vmcnt({15-p})")
        for k in range(4):
            r = 8 + 4 * p + k
            if p == 0:
                A(f"v_lshlrev_b32 v{acc+2*k}, 16, v{r}", f"v_and_b32 v{acc+2*k+1}, 0xffff0000, v{r}")
            else:
                A(f"v_lshlrev_b32 v6, 16, v{r}", f"v_and_b32 v7, 0xffff0000, v{r}",
                  f"v_add_f32 v{acc+2*k}, v{acc+2*k}, v6", f"v_add_f32 v{acc+2*k+1}, v{acc+2*k+1}, v7")
    for k in range(4): A(f"v_cvt_pk_bf16_f32 v{8+k}, v{acc+2*k}, v{acc+2*k+1}")
    A("buffer_store_dwordx4 v[8:11], v3, s[28:31], s24 offen")
    A("s_waitcnt vmcnt(0)")
    A("L_red_end:", "s_endpgm")
    return L

def kernel_text(name, body, vgpr, accum, sgpr=102):
    return f""".globl {name}
.p2align 8
.type {name},@function
{name}:
{text(body)}
"""
def kd(name, nfv, accum, sgpr=102):
    return f""".amdhsa_kernel {name}
  .amdhsa_next_free_vgpr {nfv}
  .amdhsa_next_free_sgpr {sgpr}
  .amdhsa_accum_offset {accum}
  .amdhsa_group_segment_fixed_size 0
  .amdhsa_kernarg_size 104
  .amdhsa_user_sgpr_count 2
  .amdhsa_user_sgpr_kernarg_segment_ptr 1
  .amdhsa_system_sgpr_workgroup_id_x 1
.end_amdhsa_kernel
"""

def build():
    stamp_id[0] = 0; STAMPS.clear()
    k1 = NAME + "_kernel"; k2 = "reduce_heads_kernel"
    m = main_kernel()
    hdr = """; Fused  x@wq -> softmax(q k^T / sqrt(128)) v -> @wo  for both branches, one launch, 256 workgroups x 4 waves.
"""
    if OPT['fused']:
        hdr += f"; @launch grid=(256,1,1) block=(256,1,1) lds=163840\n"
    else:
        hdr += f"; @launch kernel={k1} grid=(256,1,1) block=(256,1,1) lds=163840\n"
        hdr += f"; @launch kernel={k2} grid=(256,1,1) block=(576,1,1) lds=0\n"
    s = hdr + '.amdgcn_target "amdgcn-amd-amdhsa--gfx950"\n.text\n'
    s += kernel_text(k1, m, 512, 256)
    if not OPT['fused']: s += kernel_text(k2, reduce_kernel(), 96, 96)
    s += '.section .rodata,"a"\n.p2align 6\n' + kd(k1, 512, 256)
    if not OPT['fused']: s += ".p2align 6\n" + kd(k2, 96, 96, 40)
    return s

if __name__ == "__main__":
    ap = argparse.ArgumentParser()
    ap.add_argument("-o", default="cdna_kernels/" + NAME + ".s")
    ap.add_argument("--dump"); ap.add_argument("--stamps", action="store_true"); ap.add_argument("-v", action="store_true")
    ap.add_argument("--opt", action="append", default=[])
    a = ap.parse_args()
    OPT['dump'] = a.dump; OPT['stamps'] = a.stamps; OPT['verbose'] = a.v
    for o in a.opt:
        k, v = o.split("=", 1)
        OPT[k] = {'True': True, 'False': False}.get(v, int(v) if v.lstrip('-').isdigit() else v)
    s = build()
    open(a.o, "w").write(s)
    if a.stamps:
        import json; json.dump(STAMPS, open(a.o + ".stamps.json", "w"))
    print("wrote", a.o, len(s), "bytes")
```

```python
import sys, argparse
from ir import *

NAME = "concat_heads__gqa_block_cached__mha_block_cached__near_ridge"
OPT = dict(linred=True, latebar=False, wsoff=0, own=True, early=True, l2pf=False, np1=0, pfw=1, pfkv=0, pfkvnt=False, psleep=8, ost='', lthr=0, start2=True, pf=2, pfnt=False, fused=True, rld='sc1', rot=True, wnt=False, xnt=False, wont=False, bursts=(3, 6, 9), dump=None, stamps=False, stop=None, kvnt=True, pst="sc1", verbose=False)

VB = 0
KB = 65536
WB = 16384
XB = 114688
WOA = 131072
WOB = 98304
OB = 0
def kphys(k): return ((k + 1) & 3) * 16384
def vphys(k): return (k & 3) * 16384

SRD_X, SRD_WQ, SRD_K, SRD_V, SRD_WO, SRD_P = "s[4:7]", "s[8:11]", "s[12:15]", "s[16:19]", "s[20:23]", "s[24:27]"
SRD_F, SRD_D, SRD_O = "s[68:71]", "s[72:75]", "s[80:83]"
S_W, S_U, S_QH, S_CNT = "s28", "s29", "s30", "s31"
S_SOFFX, S_SOFFW0, S_UNUSED, S_MW, S_MX, S_DSLOT, S_RSLOT, S_DW, S_DX = "s32", "s33", "s34", "s35", "s36", "s37", "s38", "s39", "s40"
S_BW, S_BX = "s41", "s42"
S_SOFFK, S_SOFFV, S_MK, S_MV = "s45", "s46", "s47", "s48"
S_T0, S_T1, S_T2, S_T3 = "s50", "s51", "s52", "s53"
S_HP, S_B, S_BR, S_CL = "s54", "s55", "s56", "s57"
S_WS = "s[58:59]"
S_SOFFP = "s60"
S_STAMP = "s[62:63]"
S_FLAG = "s64"
S_SAFE = "s61"
S_BX3 = "s38"
LTHR = 0x4b800000
S_KS, S_X0, S_W0 = "s88", "s89", "s87"
S_TAU, S_TB, S_TQ, S_T4N, S_TMASK, S_TSH, S_TM, S_TS = "s78", "s79", "s43", "s44", "s34", "s49", "s61", "s95"

V_LANE = "v1"
V_WQR = [2, 3, 4, 5]; V_XR = 6; V_XR4 = 14; V_OW4 = 50; V_OWB = 51
V_WQD = [7, 8, 9, 10]; V_XD = [11, 12, 13]; V_TG, V_TI, V_TB, V_TV = 14, 15, 62, 63
V_KD = [16, 17, 18, 19]; V_VD = [20, 21]
V_KR = [22, 23, 24, 25]; V_VR = [26 + i for i in range(8)]
V_WOD = [34, 35, 36, 37]; V_WOR = [38, 39, 40, 41]
V_OW, V_OR, V_OR8, V_PS = 42, 43, 44, 45
VT = [46 + i for i in range(18)]
RB = 64
def grp(t, s): return RB + (t * 4 + s) * 8
def qacc(dt, t): return grp(t, dt >> 1) + 4 * (dt & 1)
def qfrag(t, s): return grp(t, s)
def Sreg(kt, t): return grp(t, kt) + 4
def Preg(par, t): return grp(t, 2 + par) + 4
def cinit(t): return 224 + 4 * t
V_C0, V_C1 = 244, 245
def vr(b, n=4): return f"v[{b}:{b+n-1}]"
def ar(b, n=4): return f"a[{b}:{b+n-1}]"
def oacc(dt, t): return t * 32 + dt * 4
def lacc(t): return 160 + 4 * t
A_ONES = 180
def abuf(i): return 184 + 4 * i
def bbuf(t): return [48, 52, 56, 60, 248][t]
def kbuf(kt, s): return 216 + 4 * (kt * 4 + s)

MF = "v_mfma_f32_16x16x32_bf16"
def mfma(d, a, b, c): return I(f"{MF} {d}, {a}, {b}, {c}")
SCALE = (128 ** -0.5) * 1.4426950408889634
import struct
def f2u(x): return struct.unpack("<I", struct.pack("<f", x))[0]

def NT(): return " nt" if OPT['kvnt'] else ""

def CNTOFF(): return 128 if OPT.get('dbgst') is not None else 0
stamp_id = [0]
def stamp(name):
    if not OPT['stamps']: return []
    i = stamp_id[0]; stamp_id[0] += 1
    STAMPS.append(name)
    return II("s_memrealtime s[66:67]", "s_memtime s[64:65]", "s_waitcnt lgkmcnt(0)",
              f"v_writelane_b32 v0, s66, {i}", f"v_writelane_b32 v0, s64, {32 + i}")
def stamp_dump():
    if not OPT['stamps']: return []
    if OPT.get('dbgst') is not None:
        return II(f"s_cmp_eq_u32 s2, {OPT['dbgst']}", "s_cbranch_scc0 L_nodbg", f"s_cmp_eq_u32 {S_W}, 0", "s_cbranch_scc0 L_nodbg",
                  "v_readlane_b32 s50, v0, 0", "s_nop 3", "v_subrev_u32 v0, s50, v0",
                  f"v_lshlrev_b32 v1, 2, {V_LANE}", "v_cmp_gt_u32 vcc, 16, v1", f"v_lshrrev_b32 v2, 2, v1", "v_mov_b32 v3, 0x1000", "v_cmp_gt_u32 vcc, 16, v2", "s_nop 1",
                  "v_cndmask_b32 v1, v3, v1, vcc", f"buffer_store_dword v0, v1, {SRD_D}, 0 offen", "L_nodbg:")
    return II("s_add_u32 s62, s58, 0x8000000", "s_addc_u32 s63, s59, 0", "s_lshl_b32 s65, s2, 2", f"s_add_u32 s65, s65, {S_W}", "s_lshl_b32 s65, s65, 8",
              f"v_lshlrev_b32 v1, 2, {V_LANE}", "v_add_u32 v1, s65, v1", "global_store_dword v1, v0, s[62:63]")
STAMPS = []

def setup():
    L = []
    A = lambda *x: L.extend(II(*x))
    A("s_cmp_ge_u32 s2, 256", "s_cbranch_scc1 L_main_end")
    if OPT['stamps'] and OPT.get('t0st'): A("s_memrealtime s[100:101]")
    A("s_load_dwordx8 s[68:75], s[0:1], 0", "s_load_dwordx2 s[76:77], s[0:1], 32",
      "s_load_dwordx8 s[80:87], s[0:1], 40", "s_load_dwordx2 s[88:89], s[0:1], 72",
      f"s_load_dwordx2 {S_WS}, s[0:1], 96", "s_load_dwordx4 s[96:99], s[0:1], 80")
    A("s_and_b32 s50, s2, 7", "s_lshr_b32 s51, s2, 3",
      f"s_lshr_b32 {S_BR}, s50, 2",
      "s_and_b32 s52, s50, 3", "s_lshl_b32 s52, s52, 2", "s_and_b32 s53, s51, 3", f"s_add_u32 {S_HP}, s52, s53",
      f"s_lshr_b32 {S_B}, s51, 2",
      f"s_lshl_b32 s52, {S_BR}, 3", f"s_add_u32 {S_CL}, s52, {S_B}")
    A("v_lshrrev_b32 v46, 6, v0", f"v_and_b32 {V_LANE}, 63, v0", "s_nop 0", f"v_readfirstlane_b32 {S_W}, v46", "s_nop 3")
    A(f"s_lshr_b32 {S_U}, {S_W}, 1", f"s_and_b32 {S_QH}, {S_W}, 1", f"s_mov_b32 {S_SAFE}, 0")
    A(lane_consts_q())
    if OPT['stamps'] and OPT.get('t0st'):
        A("s_memrealtime s[66:67]")
    A("s_waitcnt lgkmcnt(0)")
    if OPT['stamps'] and OPT.get('t0st'):
        i0 = stamp_id[0]; stamp_id[0] += 2; STAMPS.extend(["entry", "consts_q"])
        A(f"v_writelane_b32 v0, s100, {i0}", f"v_writelane_b32 v0, s66, {i0+1}", f"v_writelane_b32 v0, s100, {32+i0}", f"v_writelane_b32 v0, s66, {33+i0}")
    A(f"s_cmp_eq_u32 {S_BR}, 1")
    for i in (0, 1, 6, 7): A(f"s_cselect_b32 s{68+i}, s{80+i}, s{68+i}")
    def srd(dst, lo, hi, off_expr_regs, nrec):
        A(f"s_add_u32 s{dst}, s{lo}, s50", f"s_addc_u32 s{dst+1}, s{hi}, 0", f"s_and_b32 s{dst+1}, s{dst+1}, 0xffff")
        A(nrec, f"s_mov_b32 s{dst+3}, 0x20000")
    A(f"s_mul_i32 s50, {S_B}, 147456"); srd(4, 68, 69, None, "s_mov_b32 s6, 147456")
    A(f"s_lshl_b32 s50, {S_HP}, 9"); srd(8, 74, 75, None, "s_sub_u32 s10, 4194304, s50")
    return L

def setup_b():
    L = []
    A = lambda *x: L.extend(II(*x))
    def srd(dst, lo, hi, off_expr_regs, nrec):
        A(f"s_add_u32 s{dst}, s{lo}, s50", f"s_addc_u32 s{dst+1}, s{hi}, 0", f"s_and_b32 s{dst+1}, s{dst+1}, 0xffff")
        A(nrec, f"s_mov_b32 s{dst+3}, 0x20000")
    A(f"s_cmp_eq_u32 {S_SAFE}, 1", "s_cbranch_scc1 L_setup_b_done")
    A(f"s_cmp_eq_u32 {S_BR}, 1")
    for i in (2, 3, 4, 5): A(f"s_cselect_b32 s{68+i}, s{80+i}, s{68+i}")
    A("s_cselect_b32 s76, s88, s76", "s_cselect_b32 s77, s89, s77")
    A(f"s_lshl_b32 s50, {S_B}, 5", f"s_lshl_b32 s51, {S_HP}, 1", "s_add_u32 s50, s50, s51", f"s_add_u32 s50, s50, {S_U}", "s_lshl_b32 s50, s50, 17")
    srd(12, 70, 71, None, "s_mov_b32 s14, 131072")
    srd(16, 72, 73, None, "s_mov_b32 s18, 131072")
    A(f"s_lshl_b32 s50, {S_HP}, 18", f"s_lshl_b32 s51, {S_W}, 8", "s_add_u32 s50, s50, s51")
    A("s_sub_u32 s52, 262144, s51")
    srd(20, 76, 77, None, "s_mov_b32 s22, s52")
    A(f"s_lshl_b32 s50, {S_HP}, 18"); srd(84, 76, 77, None, "s_mov_b32 s86, 262144")
    A(f"s_mul_i32 s50, {S_CL}, 2359296", f"s_add_u32 s50, s50, {hex(OPT['wsoff'])}"); srd(24, 58, 59, None, "s_mov_b32 s26, 2359296")
    if OPT['fused']:
        A(f"s_mul_i32 s50, {S_CL}, 4608", f"s_add_u32 s50, s50, {hex(OPT['wsoff'] + 0x2400000 + 0x40000)}"); srd(68, 58, 59, None, "s_mov_b32 s70, 4608")
        A("s_mov_b32 s72, s98", "s_and_b32 s73, s99, 0xffff", "s_mov_b32 s74, 256", "s_mov_b32 s75, 0x20000")
        A("s_mov_b32 s80, s96", "s_and_b32 s81, s97, 0xffff", "s_mov_b32 s82, 2359296", "s_mov_b32 s83, 0x20000")
        A(f"s_lshl_b32 s50, {S_W}, 7", f"s_lshl_b32 s51, {S_HP}, 2", "s_add_u32 s50, s50, s51",
          f"v_lshlrev_b32 v46, 9, {V_LANE}", "v_add_u32 v46, s50, v46", "v_mov_b32 v47, 0",
          f"buffer_store_dword v47, v46, {SRD_F}, 0 offen sc1" if not OPT.get('x_noclr') else "s_nop 0")
    A("L_setup_b_done:")
    return L

def lane_consts_q():
    L = []; A = lambda *x: L.extend(II(*x))
    l = V_LANE; t0, t1, t2, t3, t4, t5 = [f"v{x}" for x in VT[:6]]
    A(f"v_lshrrev_b32 {t0}, 4, {l}", f"v_bfe_u32 {t1}, {l}, 2, 2", f"v_and_b32 {t2}, 3, {l}", f"v_and_b32 {t3}, 15, {l}")
    w0, w1, w2, w3 = [f"v{x}" for x in V_WQD]
    A(f"v_lshrrev_b32 {t4}, 5, {l}", f"v_bfe_u32 {t5}, {l}, 4, 1",
      f"v_lshlrev_b32 {w0}, 2, {t4}", f"v_xor_b32 {w0}, {w0}, {t3}", f"v_lshlrev_b32 {w0}, 4, {w0}",
      f"v_lshl_add_u32 {w0}, {t5}, 8, {w0}", f"v_lshl_add_u32 {w0}, {t4}, 13, {w0}",
      f"v_xor_b32 {w1}, 0x80, {w0}", f"v_add_u32 {w1}, {2*8192 - 1024}, {w1}",
      f"v_add_u32 {w2}, {4*8192 - 2048}, {w0}", f"v_add_u32 {w3}, {4*8192 - 2048}, {w1}")
    A(f"v_lshlrev_b32 {t4}, 1, {t0}", f"v_mov_b32 {t5}, 0x78", f"v_lshrrev_b32 {t4}, {t4}, {t5}", f"v_and_b32 {t4}, 3, {t4}",
      f"v_xor_b32 {t4}, {t4}, {t2}", f"v_lshlrev_b32 {t4}, 4, {t4}",
      f"v_lshrrev_b32 {t5}, 2, {l}", f"v_lshl_add_u32 {t4}, {t5}, 10, {t4}")
    for j in range(2):
        A(f"v_add_u32 v{V_XD[j]}, {j*16384 - 1024*j}, {t4}")
    A(f"s_lshl_b32 s50, {S_W}, 1", "s_lshr_b32 s50, 0x78, s50", "s_and_b32 s50, s50, 3",
      f"v_xor_b32 {t4}, s50, {t2}", f"v_lshlrev_b32 {t4}, 4, {t4}", f"v_lshl_add_u32 {t4}, {t5}, 10, {t4}",
      f"s_lshl_b32 s50, {S_W}, 12", f"s_lshl_b32 s51, {S_W}, 15", "s_sub_u32 s50, s50, s51", f"s_add_u32 s50, s50, {128*1024}",
      f"v_add_u32 v{V_XD[2]}, s50, {t4}")
    return L

def lane_consts_q2():
    L = []; A = lambda *x: L.extend(II(*x))
    l = V_LANE; t0, t1, t2, t3, t4, t5 = [f"v{x}" for x in VT[:6]]
    A(f"v_lshrrev_b32 {t0}, 4, {l}", f"v_bfe_u32 {t1}, {l}, 2, 2", f"v_and_b32 {t2}, 3, {l}", f"v_and_b32 {t3}, 15, {l}")
    for n in range(4):
        A(f"v_add_u32 {t4}, {4*n}, {t0}", f"v_xor_b32 {t4}, {t4}, {t3}", f"v_lshlrev_b32 {t4}, 4, {t4}",
          f"v_lshl_add_u32 v{V_KD[n]}, {t0}, 8, {t4}")
    for n in range(2):
        A(f"v_add_u32 {t4}, {4*n}, {t0}", f"v_lshlrev_b32 {t4}, 1, {t4}", f"v_xor_b32 {t4}, {t4}, {t3}", f"v_lshlrev_b32 {t4}, 4, {t4}",
          f"v_lshl_add_u32 v{V_VD[n]}, {t0}, 8, {t4}")
    A(f"v_lshl_add_u32 {t4}, {t0}, 3, {t1}", f"v_lshlrev_b32 {t4}, 9, {t4}", f"v_lshl_add_u32 {t4}, {t2}, 4, {t4}",
      f"s_lshl_b32 s50, {S_U}, 8", f"s_add_u32 s50, s50, {WB}", f"v_add_u32 {t4}, s50, {t4}")
    A(f"s_lshl_b32 s51, {S_QH}, 1", f"v_xor_b32 {t1}, s51, {t1}")
    for s in range(4):
        A(f"v_xor_b32 {t5}, {s}, {t1}", f"v_lshl_add_u32 v{V_WQR[s]}, {t5}, 6, {t4}")
    A(f"v_lshrrev_b32 {t4}, 2, {t3}", f"v_lshlrev_b32 {t4}, 1, {t4}", f"v_mov_b32 {t5}, 0x78", f"v_lshrrev_b32 {t4}, {t4}, {t5}", f"v_and_b32 {t4}, 3, {t4}",
      f"v_xor_b32 {t4}, {t4}, {t0}", f"v_lshlrev_b32 {t4}, 4, {t4}", f"v_lshl_add_u32 {t4}, {t3}, 6, {t4}",
      f"s_mul_i32 s50, {S_QH}, 5120", f"s_add_u32 s50, s50, {XB}", f"v_add_u32 v{V_XR}, s50, {t4}", f"v_add_u32 v{V_XR4}, {XB + 4096}, {t4}")
    return L

def lane_consts_rest():
    L = []; A = lambda *x: L.extend(II(*x))
    l = V_LANE; t0, t1, t2, t3, t4, t5, t6 = [f"v{x}" for x in VT[:7]]
    A(f"v_lshrrev_b32 {t0}, 4, {l}", f"v_bfe_u32 {t1}, {l}, 2, 2", f"v_and_b32 {t2}, 3, {l}", f"v_and_b32 {t3}, 15, {l}")
    A(f"s_lshl_b32 s50, {S_U}, 13", f"s_add_u32 s51, s50, {KB}", f"v_lshlrev_b32 {t4}, 8, {t3}", f"v_add_u32 {t4}, s51, {t4}")
    A(f"s_lshl_b32 s51, {S_QH}, 3", f"v_xor_b32 {t6}, s51, {t3}")
    for s in range(4):
        A(f"v_add_u32 {t5}, {4*s}, {t0}", f"v_xor_b32 {t5}, {t5}, {t6}", f"v_lshl_add_u32 v{V_KR[s]}, {t5}, 4, {t4}")
    A(f"v_lshrrev_b32 {t4}, 2, {l}", f"v_and_b32 {t5}, 7, {t4}", f"v_lshlrev_b32 {t5}, 1, {t5}",
      f"v_lshlrev_b32 {t4}, 8, {t4}", f"v_add_u32 {t4}, s50, {t4}",
      f"v_and_b32 {t6}, 1, {t2}", f"v_lshl_add_u32 {t4}, {t6}, 3, {t4}",
      f"v_lshrrev_b32 {t6}, 1, {t2}",
      f"s_lshl_b32 s51, {S_QH}, 3", f"v_xor_b32 {t5}, s51, {t5}")
    for dt in range(8):
        d = f"v{V_VR[dt]}"
        A(f"v_add_u32 {d}, {2*dt}, {t6}", f"v_xor_b32 {d}, {d}, {t5}", f"v_lshl_add_u32 {d}, {d}, 4, {t4}")
    A(f"v_lshlrev_b32 {t4}, 2, {t0}", f"v_xor_b32 {t4}, {t4}, {t3}", f"v_lshlrev_b32 {t4}, 4, {t4}", f"v_lshl_add_u32 {t4}, {t0}, 10, {t4}")
    for n in range(4):
        A(f"v_add_u32 v{V_WOD[n]}, {n*3072}, {t4}")
    A(f"v_lshrrev_b32 {t4}, 2, {l}", f"v_lshlrev_b32 {t4}, 8, {t4}", f"v_lshl_add_u32 {t4}, {t2}, 4, {t4}",
      f"s_lshl_b32 s50, {S_W}, 13", f"s_add_u32 s50, s50, {WOB}", f"v_add_u32 {t4}, s50, {t4}")
    for cp in range(4):
        A(f"v_xor_b32 {t5}, {cp}, {t1}", f"v_lshl_add_u32 v{V_WOR[cp]}, {t5}, 6, {t4}")
    A(f"s_mul_i32 s50, {S_QH}, 40960", f"s_lshl_b32 s51, {S_U}, 12", "s_add_u32 s50, s50, s51",
      f"v_lshlrev_b32 v{V_OR}, 4, {l}", f"v_add_u32 v{V_OW}, s50, v{V_OR}", f"v_add_u32 v{V_OR8}, 0x10000, v{V_OR}")
    A(f"s_lshl_b32 s50, {S_HP}, 10", f"v_add_u32 v{V_PS}, s50, v{V_OR}")
    return L

def dma(voff, srd, soff, imm, nt=False):
    o = f" offset:{imm}" if imm else ""
    return I(f"buffer_load_dwordx4 v{voff}, {srd}, {soff} offen{o}{' nt' if nt else ''} lds")

def kv_group(kind, m0expr, soffreg):
    if kind == 'K':
        return [dma(V_KD[n], SRD_K, soffreg, n * 1024, OPT['kvnt']) for n in range(4)]
    return [dma(V_VD[n & 1], SRD_V, soffreg, n * 1024, OPT['kvnt']) for n in range(4)]

def kv_tile_full_unused(kind, j):
    L = []
    base = (KB + kphys(j)) if kind == 'K' else (VB + vphys(j))
    for gI in range(2):
        L += II(f"s_lshl_b32 s50, {S_U}, 13", f"s_add_u32 m0, s50, {base + gI*4096}", f"s_mov_b32 s51, {j*8192 + gI*4096}")
        L += kv_group(kind, None, "s51")
    return L

def stage_setup_scalar():
    rot = OPT['rot']
    R = II("s_lshr_b32 s50, s2, 3", "s_and_b32 s51, s50, 3", "s_lshr_b32 s50, s50, 2")
    if rot in (True, 1):   R += II("s_lshl_b32 s51, s51, 2", "s_lshl_b32 s50, s50, 1", "s_add_u32 s52, s50, s51")
    elif rot == 2:         R += II("s_lshr_b32 s50, s50, 1", "s_add_u32 s52, s50, s51", "s_lshl_b32 s52, s52, 2")
    elif rot == 3:         R += II("s_add_u32 s52, s50, s51", "s_lshl_b32 s52, s52, 2")
    elif rot == 4:         R += II("s_lshr_b32 s50, s50, 2", "s_lshl_b32 s50, s50, 3", "s_lshl_b32 s51, s51, 2", "s_add_u32 s52, s50, s51")
    elif rot == 5:         R += II("s_mul_i32 s50, s50, 3", "s_lshl_b32 s51, s51, 2", "s_add_u32 s52, s50, s51")
    elif rot == 6:         R += II("s_lshl_b32 s52, s50, 1")
    elif rot == 7:         R += II("s_lshl_b32 s50, s50, 1", "s_and_b32 s51, s51, 1", "s_lshl_b32 s51, s51, 3", "s_add_u32 s52, s50, s51")
    else:                  R += II("s_mov_b32 s52, 0")
    return R + II("s_and_b32 s52, s52, 15",
              f"s_lshl_b32 s50, s52, 6", f"s_lshl_b32 s51, {S_W}, 15", f"s_add_u32 {S_SOFFX}, s50, s51",
              f"s_lshl_b32 s50, s52, 18", f"s_lshl_b32 s51, {S_W}, 16", f"s_add_u32 {S_SOFFW0}, s50, s51",
              f"s_lshl_b32 s50, {S_W}, 12", f"s_add_u32 {S_BW}, s50, {WB}",
              f"s_lshl_b32 s50, {S_W}, 11", f"s_add_u32 {S_BX}, s50, {XB}",
              f"s_lshl_b32 s50, {S_W}, 8", f"s_add_u32 {S_BX3}, s50, {XB + 8192}",
              )
def kv_setup_scalar():
    return II(f"s_lshl_b32 {S_TQ}, {S_QH}, 12",
              f"s_lshl_b32 s50, {S_U}, 13", f"s_add_u32 s50, s50, {S_TQ}", f"s_add_u32 {S_MK}, s50, {KB}", f"s_add_u32 {S_MV}, s50, {VB}")

def stage_dma_list(slot):
    seq = []
    seq.append(([I(f"s_add_u32 m0, {S_BW}, {slot*16384}")], dma(V_WQD[0], SRD_WQ, S_SOFFW0, 0, OPT['wnt'])))
    for j in range(1, 4): seq.append(([], dma(V_WQD[j], SRD_WQ, S_SOFFW0, j * 1024, OPT['wnt'])))
    seq.append(([I(f"s_add_u32 m0, {S_BX}, {slot*9216}")], dma(V_XD[0], SRD_X, S_SOFFX, 0, OPT['xnt'])))
    seq.append(([], dma(V_XD[1], SRD_X, S_SOFFX, 1024, OPT['xnt'])))
    q = dma(V_XD[2], SRD_X, S_SOFFX, 0, OPT['xnt'])
    seq.append(([I(f"s_add_u32 m0, {S_BX3}, {slot*9216}")], Masked(q, 0xffff)))
    return seq

def place_dma(S, seq, gaps):
    k = 0
    last = None
    for e in seq:
        if e[0]:
            for p in e[0]: S.put(gaps[k], p)
            k += 1
        S.put(gaps[k], e[1]); last = gaps[k]
        if len(e) > 2:
            for p in e[2]: S.put(gaps[k] + 1, p)
        k += 1
    return last

def stage_advance_w():
    return II(f"s_add_u32 {S_SOFFW0}, {S_SOFFW0}, 262144", f"s_and_b32 {S_SOFFW0}, {S_SOFFW0}, 0x3fffff")
def stage_advance_x():
    return II(f"s_add_u32 {S_SOFFX}, {S_SOFFX}, 64", f"s_and_b32 {S_SOFFX}, {S_SOFFX}, 0xfffffbff")
def stage_advance(): return stage_advance_w() + stage_advance_x()

def straight(seq):
    L = []
    for e in seq:
        L += e[0]
        if e[0]: L += II("s_nop 0")
        L.append(e[1])
        if len(e) > 2: L += e[2]
    return L

def stage_issue_straight(slot):
    return straight(stage_dma_list(slot)) + stage_advance()

def wq_read(dt, h2, slot):
    if OPT.get('x_noread'): return I('s_nop 0')
    s, hf = dt >> 1, dt & 1
    b = abuf(dt) + 2 * h2
    off = slot * 16384 + hf * 8 + h2 * 2048
    return I(f"ds_read_b64_tr_b16 {ar(b,2)}, v{V_WQR[s]}" + (f" offset:{off}" if off else ""))
def x_read(t, slot):
    if OPT.get('x_noread'): return I('s_nop 0')
    off = slot * 9216 + (0 if t == 4 else t * 1024)
    return I(f"ds_read_b128 {vr(bbuf(t))}, v{V_XR4 if t == 4 else V_XR}" + (f" offset:{off}" if off else ""))
def q_mfma(dt, t):
    if OPT.get('x_t4') and t == 4: return I("s_nop 3")
    if OPT.get('x_t45') and t == 4 and dt >= 4: return I("s_nop 3")
    return mfma(vr(qacc(dt, t)), ar(abuf(dt)), vr(bbuf(t)), vr(qacc(dt, t)))

def half_group(kind, j):
    if kind == 'K':
        pre = II(f"s_add_u32 m0, {S_MK}, {kphys(j)}", f"s_add_u32 s51, {S_TQ}, {j*8192}")
    else:
        pre = II(f"s_add_u32 m0, {S_MV}, {vphys(j)}", f"s_add_u32 s51, {S_TQ}, {j*8192}")
    g = kv_group(kind, None, "s51")
    return [(pre, g[0])] + [([], x) for x in g[1:]]

def put_dmas(S, seq, gaps):
    prev = -1
    for e, g in zip(seq, gaps):
        if e[0]:
            assert g - 1 > prev or prev < 0, (g, prev)
            for p in e[0]: S.put(g - 1, p)
        S.put(g, e[1])
        if len(e) > 2:
            for p in e[2]: S.put(g + 1, p)
        prev = g
    assert len(seq) <= len(gaps)

QTAIL = (4, 5, 6, 7)
def q_tail(): return [q_mfma(dt, t) for t in range(4) for dt in QTAIL]
SRD_T = "s[96:99]"; V_T = [10, 11, 12, 13]; S_TM, S_TS = "s35", "s36"
V_TB2 = [252, 253, 254, 255]
V_TB = [244, 245, 246, 247]
DUMMY = 151552
def burst_list():
    g = [dma(V_TB[n], SRD_T, S_TS, n * 1024, OPT['kvnt']) for n in range(4)]
    return [([I(f"s_mov_b32 m0, {S_TM}")], g[0])] + [([], x) for x in g[1:]]

def q_body(ks, with_dma, burst=False, extra_dma=None, wait=None):
    slot = ks & 3
    ms = q_tail() + [q_mfma(dt, t) for t in range(5) for dt in range(4)]
    S = Sched(ms)
    a = lambda dt, h: wq_read(dt, h, slot)
    xr = lambda t: x_read(t, slot)
    plan = {0: a(0,0), 1: a(0,1), 2: a(1,0), 3: a(1,1), 4: xr(0), 5: a(2,0), 7: a(2,1), 8: xr(1), 9: a(3,0), 11: a(3,1),
            12: xr(2), 13: xr(4), 16: xr(3), 17: a(4,0), 19: a(4,1), 20: a(5,0), 21: a(5,1), 23: a(6,0), 24: a(6,1), 25: a(7,0), 27: a(7,1)}
    for g, ins in plan.items(): S.put(g, ins)
    if with_dma:
        put_dmas(S, stage_dma_list((ks + 3) & 3), [6, 10, 14, 18, 22, 26, 29])
        w = stage_advance_w(); x = stage_advance_x()
        S.put(19, w[0]); S.put(20, w[1]); S.put(30, x[0]); S.put(31, x[1])
    if burst:
        put_dmas(S, burst_list(), [32, 33, 34, 35]) if False else None
        put_dmas(S, burst_list(), [15, 28, 31, 33])  if False else None
    if extra_dma:
        put_dmas(S, extra_dma, [6, 10, 14, 18, 22, 26, 30, 32][:len(extra_dma)])
    return S

def q_finish(S, wait, wg=33):
    S.put(wg, tr_mark(), f"s_waitcnt vmcnt({wait}) lgkmcnt(0)", tr_commit())
    S.put(wg + 1, "s_barrier")
    seq, pend = lgkm_waits(S.flat())
    assert not pend
    if OPT['verbose']: print(S.report("q_body"))
    return seq

def tr_mark():
    return [Raw("s_memtime s[100:101]")] if OPT.get('trace') else []
def tr_commit():
    return [Raw("s_mov_b32 s95, m0\n  s_mov_b32 m0, s94\n  s_nop 0\n  v_writelane_b32 v0, s100, m0\n  s_mov_b32 m0, s95\n  s_add_u32 s94, s94, 1")] if OPT.get('trace') else []
def tr_dump():
    if not OPT.get('trace'): return []
    return II("s_add_u32 s66, s58, 0x9000000", "s_addc_u32 s67, s59, 0", "s_lshl_b32 s50, s2, 2", f"s_add_u32 s50, s50, {S_W}", "s_lshl_b32 s50, s50, 8",
              f"v_lshlrev_b32 v253, 2, {V_LANE}", "v_add_u32 v253, s50, v253", "global_store_dword v253, v0, s[66:67]")

def zero_init():
    L = II("v_mov_b32 v244, 0", "v_mov_b32 v245, 0", "v_mov_b32 v246, 0", "v_mov_b32 v247, 0", "s_nop 1")
    for r in range(RB, RB + 160, 16): L += II(f"v_mfma_f32_32x32x16_bf16 v[{r}:{r+15}], v[244:247], v[244:247], 0")
    for r in range(0, 256, 16): L += II(f"v_mfma_f32_32x32x16_bf16 a[{r}:{r+15}], v[244:247], v[244:247], 0")
    return L

def phase_q():
    L = []; A = lambda *x: L.extend(II(*x))
    A("L_phase_q:")
    A(stage_setup_scalar(), stage_issue_straight(0))
    A(setup_b())
    A(kv_setup_scalar())
    A(lane_consts_q2())
    A(stamp("q_issued"))
    A(zero_init())
    A(lane_consts_rest())
    A(f"s_mov_b32 {S_CNT}, 0")
    if OPT.get('trace'): A("s_mov_b32 s94, 1", "s_memtime s[100:101]", "s_waitcnt lgkmcnt(0)", "v_writelane_b32 v0, s100, 0")
    A(f"v_mov_b32 v{VT[0]}, 0x3f803f80")
    for r in range(4): A(f"v_accvgpr_write_b32 a{A_ONES + r}, v{VT[0]}")
    for t in range(5):
        for k in range(4): A(f"v_mov_b32 v{bbuf(t)+k}, 0")
    A("s_mov_b32 s96, s12", "s_mov_b32 s97, s13", "s_mov_b32 s98, s14", "s_mov_b32 s99, s15")
    for n in range(4): A(f"v_mov_b32 v{V_TB[n]}, v{V_KD[n]}")
    if OPT.get('stst'): A(stamp("consts"))
    A(stage_issue_straight(1))
    if OPT.get('stst'): A(stamp("s1_iss"))
    A("s_waitcnt vmcnt(7)")
    if OPT.get('stst'): A(stamp("s0_land"))
    A("s_barrier")
    if OPT['fused']:
        A(f"s_cmp_eq_u32 {S_SAFE}, 1", "s_cbranch_scc1 L_no_arrive")
        A(f"s_lshl_b32 s50, {S_CL}, 2", f"s_add_u32 s50, s50, {CNTOFF()}", f"s_lshl_b32 s51, {S_W}, 14", "s_add_u32 s50, s50, s51",
          f"v_lshlrev_b32 v46, 8, {V_LANE}", "v_add_u32 v46, s50, v46", "v_mov_b32 v47, 1",
          f"buffer_atomic_add v47, v46, {SRD_D}, 0 offen sc1")
        A("L_no_arrive:")
    A(stage_issue_straight(2))
    if OPT.get('stst'): A(stamp("s2_iss"))
    A(f"s_add_u32 {S_TM}, {S_MK}, {kphys(0)}", f"s_mov_b32 {S_TS}, {S_TQ}")
    A(stamp("q_start"))
    l2 = OPT['l2pf']
    if l2:
        A(f"s_add_u32 s37, {S_TQ}, {4*8192}", "s_mov_b32 s92, s12", "s_mov_b32 s93, s13", "s_mov_b32 s94, s14", "s_mov_b32 s95, s15",
          "s_mov_b64 vcc, -1")
    bodies = []
    QOOL = []
    for k in range(4):
        S = q_body(k, True)
        if k == 1:
            put_dmas(S, burst_list(), [32, 33, 34, 35])
        if k == 3 and l2:
            g = [dma(V_OR, "s[92:95]", "s37", n * 1024, False) for n in range(4)]
            put_dmas(S, [([I(f"s_mov_b32 m0, {DUMMY}")], g[0])] + [([], x) for x in g[1:]], [32, 33, 34, 35])
        if l2:
            n_steady, n_first = [(18, 14), (22, 18), (18, 18), (22, 22)][k]
        else:
            n_steady = n_first = 14 if k == 0 else 18
        if OPT.get('b0st') and k == 0:
            for nm, g in (("g5", 5), ("g6", 7), ("g15", 15), ("g20", 20), ("g30", 31)):
                S.put(g, Raw(f"s_cmp_eq_u32 {S_CNT}, 0\n  s_cbranch_scc0 L_b0_{nm}\n  " + "\n  ".join(x.txt for x in stamp(nm)) + f"\nL_b0_{nm}:"))
        late = (k == 1) or (k == 3 and l2)
        w = tr_mark() + II(f"s_waitcnt vmcnt({n_steady}) lgkmcnt(0)")
        if n_first != n_steady:
            w += II(f"s_cbranch_vccnz L_q_first{k}", f"L_q_back{k}:")
            QOOL += II(f"L_q_first{k}:", f"s_waitcnt vmcnt({n_first})", f"s_branch L_q_back{k}")
        w += tr_commit()
        if late:
            seq, pend = lgkm_waits(S.flat())
            seq += w + II("s_barrier")
        else:
            S.put(33, w); S.put(34, "s_barrier")
            seq, pend = lgkm_waits(S.flat())
            assert not pend
        if OPT['verbose']: print(S.report("q_body"))
        bodies.append(seq)
    hist = bodies[3][-24:]
    A(".p2align 6", "L_q_loop:")
    for bi, b in enumerate(bodies):
        b2, n = hazards(b, history=hist); L.extend(b2); hist = b2[-24:]
        if OPT.get('stst') and bi < 2: A(f"s_cmp_eq_u32 {S_CNT}, 0", f"s_cbranch_scc0 L_nost{bi}", stamp(f"body{bi}"), f"L_nost{bi}:")
    A(f"s_add_u32 {S_TM}, {S_TM}, 16384", f"s_add_u32 {S_TS}, {S_TS}, 8192", f"s_add_u32 {S_CNT}, {S_CNT}, 1")
    if l2:
        A("s_mov_b64 vcc, 0", f"s_cmp_eq_u32 {S_CNT}, 1", "s_cbranch_scc1 L_q_to1", "L_q_to1_done:")
    A(f"s_cmp_eq_u32 {S_CNT}, 2", "s_cbranch_scc0 L_q_tov_done",
      "s_mov_b32 s96, s16", "s_mov_b32 s97, s17", f"s_add_u32 {S_TM}, {S_MV}, {vphys(0)}", f"s_mov_b32 {S_TS}, {S_TQ}")
    if l2: A("s_mov_b32 s92, s12", "s_mov_b32 s93, s13", f"s_add_u32 s37, {S_TQ}, {5*8192}")
    for n in range(4): A(f"v_mov_b32 v{V_TB[n]}, v{V_VD[n & 1]}")
    A("L_q_tov_done:", f"s_cmp_lt_u32 {S_CNT}, 3", "s_cbranch_scc1 L_q_loop")
    OOL = []
    if l2: OOL += II("L_q_to1:", "s_mov_b32 s92, s16", "s_mov_b32 s93, s17", f"s_add_u32 s37, {S_TQ}, {3*8192}", "s_branch L_q_to1_done")
    OOL += QOOL
    b, n = hazards(q_finish(q_body(12, True), 18 if l2 else 14), history=hist); L.extend(b)
    b, n = hazards(q_finish(q_body(13, False, extra_dma=half_group('V', 1)), 15 if l2 else 11), history=b[-24:]); L.extend(b)
    b, n = hazards(q_finish(q_body(14, False, extra_dma=half_group('K', 2) + half_group('V', 2)), 12), history=b[-24:]); L.extend(b)
    b, n = hazards(q_finish(q_body(15, False), 12), history=b[-24:]); L.extend(b)
    if OOL:
        A("s_branch L_q_after_ool")
        L.extend(OOL)
        A("L_q_after_ool:")
    A(stamp("q_loop_done"))
    return L

def q_tiles(s): return range(5) if s < 2 else range(4)
def q_scale(ss):
    return [I(f"v_pk_mul_f32 {vr(grp(t,s)+2*k,2)}, {vr(grp(t,s)+2*k,2)}, {vr(V_C0,2)}") for s in ss for t in q_tiles(s) for k in range(4)]
def q_cvt(ss):
    return [I(f"v_cvt_pk_bf16_f32 v{grp(t,s)+k}, v{grp(t,s)+2*k}, v{grp(t,s)+2*k+1}") for s in ss for t in q_tiles(s) for k in range(4)]
QX = 155648

def transition():
    L = []; A = lambda *x: L.extend(II(*x))
    A(f"s_add_u32 {S_SOFFK}, {S_TQ}, {5*8192}", f"s_add_u32 {S_SOFFV}, {S_TQ}, {4*8192}")
    A(f"v_mov_b32 v{V_C0}, {hex(f2u(SCALE))}", f"v_mov_b32 v{V_C1}, {hex(f2u(SCALE))}")
    A(f"s_lshl_b32 s50, {S_W}, 11", f"s_add_u32 s50, s50, {QX}", f"v_lshlrev_b32 v7, 4, {V_LANE}", "v_add_u32 v8, s50, v7",
      "s_xor_b32 s50, s50, 2048", "v_add_u32 v9, s50, v7")
    k3 = half_group('K', 3)
    seq = [k_read(kt, s, 0) for kt in range(2) for s in range(4)]
    sc = q_scale((0, 1))
    seq += II("s_nop 3") + sc
    S = Sched(q_tail())
    cv = q_cvt((0, 1))
    sh = lambda c: any(f"v{grp(4,s)+k}," in c.txt.split()[1] + "," for s in (0, 1) for k in range(4))
    cv = [c for c in cv if sh(c)] + [c for c in cv if not sh(c)]
    S.spread(cv, [min(i * 2 // 5, 15) for i in range(40)])
    S.put(5, f"ds_write_b128 v8, {vr(grp(4,0))}"); S.put(7, f"ds_write_b128 v8, {vr(grp(4,1))} offset:1024")
    seq += S.flat()
    seq += II("s_waitcnt lgkmcnt(0)", "s_barrier", f"ds_read_b128 {vr(grp(4,2))}, v9", f"ds_read_b128 {vr(grp(4,3))}, v9 offset:1024")
    sc = q_scale((2, 3))
    seq += II("s_nop 3") + k3[0][0] + sc[:8] + [k3[0][1]] + sc[8:16] + [k3[1][1]] + sc[16:24] + [k3[2][1]] + sc[24:] + [k3[3][1]]
    qk = lambda kt, ss, c: [qk_mfma(kt, s, t, c) for s in ss for t in range(5)]
    S = Sched(qk(0, (0, 1), lambda t: "0") + qk(0, (2, 3), lambda t: "0"))
    S.spread(q_cvt((2, 3)), [min(i * 5 // 16, 9) for i in range(32)])
    S.spread([f"v_mov_b32 v{Preg(1,t)+k}, 0" for t in range(5) for k in range(4)], [10 + i // 2 for i in range(20)])
    seq += S.flat()
    seq += straight(half_group('V', 3))
    seq, _ = lgkm_waits(seq, final_zero=True)
    seq, n = hazards(seq); L.extend(seq)
    A(stamp("qk0_done"))
    A(f"s_cmp_eq_u32 {S_SAFE}, 1", "s_cbranch_scc1 L_safe_max")
    T = [2, 3, 4, 5, 6]
    U = [7, 8, 9, 10, 11]
    E = II("s_nop 5")
    for t in range(5): E += II(f"v_max3_f32 v{T[t]}, v{Sreg(0,t)}, v{Sreg(0,t)+1}, v{Sreg(0,t)+2}")
    for t in range(5): E += II(f"v_max_f32 v{T[t]}, v{T[t]}, v{Sreg(0,t)+3}")
    E += row_max_finish(T, U)
    S = Sched(qk(1, range(4), lambda t: vr(cinit(t))))
    sub = [f"v_add_f32 v{Sreg(0,t)+k}, v{Sreg(0,t)+k}, v{cinit(t)}" for t in range(5) for k in range(4)]
    ex = [f"v_exp_f32 v{Sreg(0,t)+k}, v{Sreg(0,t)+k}" for t in range(5) for k in range(4)]
    S.spread(sub, [i // 2 for i in range(20)])
    S.spread(ex, [min(2 + i, 19) for i in range(20)])
    E += S.flat()
    E += II("s_barrier")
    E += II("s_nop 3") + exps(1)
    E, n = hazards(E, history=L[-24:]); L.extend(E)
    A("L_max_done:")
    A(straight(half_group('K', 4)))
    return L

def row_max_finish(T, U):
    E = []
    for sw in ("v_permlane32_swap_b32", "v_permlane16_swap_b32"):
        for t in range(5): E += II(f"v_mov_b32 v{U[t]}, v{T[t]}")
        for t in range(5): E += II(f"{sw} v{T[t]}, v{U[t]}")
        for t in range(5): E += II(f"v_max_f32 v{T[t]}, v{T[t]}, v{U[t]}")
    for t in range(5):
        for k in range(4): E += II(f"v_sub_f32 v{cinit(t)+k}, 0, v{T[t]}")
    return E

def safe_paths():
    L = []; A = lambda *x: L.extend(II(*x))
    T = [2, 3, 4, 5, 6]; U = [7, 8, 9, 10, 11]
    ab = [(Sreg(0, t), Sreg(1, t)) for t in range(5)]
    A("L_safe_max:")
    for t in range(5): A(f"v_mov_b32 v{T[t]}, 0xff800000")
    A(f"s_mov_b32 {S_CNT}, 0")
    A("L_safe_loop:")
    A("s_waitcnt vmcnt(0) lgkmcnt(0)", "s_barrier")
    A(f"s_and_b32 s50, {S_CNT}, 15", "s_lshl_b32 s50, s50, 13", f"s_add_u32 s51, s50, {S_TQ}", f"s_add_u32 m0, {S_MK}, {kphys(0)}", "s_nop 0")
    A(kv_group('K', None, "s51"))
    A("s_waitcnt vmcnt(0)", "s_barrier")
    A([k_read(kt, s, 0) for kt in range(2) for s in range(4)], "s_waitcnt lgkmcnt(0)")
    A(f"s_cmp_eq_u32 {S_CNT}, 16", "s_cbranch_scc1 L_safe_last")
    A([qk_mfma(kt, s, t, lambda t: "0") for kt in range(2) for s in range(4) for t in range(5)], "s_nop 7", "s_nop 7")
    for t, (a, b) in enumerate(ab):
        A(f"v_max3_f32 v{T[t]}, v{T[t]}, v{a}, v{a+1}", f"v_max3_f32 v{T[t]}, v{T[t]}, v{a+2}, v{a+3}",
          f"v_max3_f32 v{T[t]}, v{T[t]}, v{b}, v{b+1}", f"v_max3_f32 v{T[t]}, v{T[t]}, v{b+2}, v{b+3}")
    A(f"s_add_u32 {S_CNT}, {S_CNT}, 1", f"s_cmp_lt_u32 {S_CNT}, 16", "s_cbranch_scc1 L_safe_loop")
    E, n = hazards(II("s_nop 3") + row_max_finish(T, U)); L.extend(E)
    A("s_branch L_safe_loop")
    A("L_safe_last:", "s_nop 3")
    A([qk_mfma(kt, s, t, lambda t: vr(cinit(t))) for kt in range(2) for s in range(4) for t in range(5)], "s_nop 7", "s_nop 7")
    A("s_barrier")
    for t, (a, b) in enumerate(ab):
        for base in (a, b):
            for k in range(4): A(f"v_exp_f32 v{base+k}, v{base+k}")
    A("s_nop 1", "s_branch L_max_done")
    if OPT['fused']:
        A("L_cnt_spin:", f"s_mov_b32 s53, {SPIN}", "L_cnt_spin_loop:", "s_sleep 2",
          f"buffer_load_dword v15, v14, {SRD_D}, 0 offen sc1", "s_waitcnt vmcnt(0)", "v_readfirstlane_b32 s52, v15", "s_nop 3",
          "s_cmp_ge_u32 s52, 16", "s_cbranch_scc1 L_cnt_ok", "s_sub_u32 s53, s53, 1", "s_cmp_lg_u32 s53, 0", "s_cbranch_scc1 L_cnt_spin_loop", "s_branch L_cnt_ok")
    A("L_restart:", f"s_mov_b32 {S_SAFE}, 1", "s_waitcnt vmcnt(0) lgkmcnt(0)", "s_barrier")
    A(lane_consts_q())
    A("s_branch L_phase_q")
    return L

def k_read(kt, s, slotk):
    off = kphys(slotk) + kt * 4096
    return I(f"ds_read_b128 {ar(kbuf(kt, s))}, v{V_KR[s]}" + (f" offset:{off}" if off else ""))
def v_read(dt, h, slotv):
    off = vphys(slotv) + h * 4096
    return I(f"ds_read_b64_tr_b16 {ar(abuf(dt) + 2*h, 2)}, v{V_VR[dt]}" + (f" offset:{off}" if off else ""))
def qk_mfma(kt, s, t, first_c):
    c = first_c(t) if s == 0 else vr(Sreg(kt, t))
    return mfma(vr(Sreg(kt, t)), ar(kbuf(kt, s)), vr(qfrag(t, s)), c)
def pv_mfma(dt, t, par):
    return mfma(ar(oacc(dt, t)), ar(abuf(dt)), vr(Preg(par, t)), ar(oacc(dt, t)))
def rs_mfma(t, par):
    return mfma(ar(lacc(t)), ar(A_ONES), vr(Preg(par, t)), ar(lacc(t)))
def cvts(par):
    out = []
    for kt in range(2):
        for t in range(5):
            s = Sreg(kt, t); p = Preg(par, t) + 2 * kt
            out.append(I(f"v_cvt_pk_bf16_f32 v{p}, v{s}, v{s+1}"))
            out.append(I(f"v_cvt_pk_bf16_f32 v{p+1}, v{s+2}, v{s+3}"))
    return out
def exps(kt):
    return [I(f"v_exp_f32 v{Sreg(kt,t)+i}, v{Sreg(kt,t)+i}") for t in range(5) for i in range(4)]

def att_dma(j, dyn=False):
    seq = []
    if j == 0 or j > 12: return seq
    if True:
        pre = II(f"s_add_u32 m0, {S_MK}, {kphys(j + 4)}")
        g = kv_group('K', None, S_SOFFK)
        seq += [(pre, g[0])] + [([], x) for x in g[1:]]
        seq[-1] = (seq[-1][0], seq[-1][1], II(f"s_add_u32 {S_SOFFK}, {S_SOFFK}, 8192"))
    if j + 3 <= 15:
        pre = II(f"s_add_u32 m0, {S_MV}, {vphys(j + 3)}")
        g = kv_group('V', None, S_SOFFV)
        s2 = [(pre, g[0])] + [([], x) for x in g[1:]]
        s2[-1] = (s2[-1][0], s2[-1][1], II(f"s_add_u32 {S_SOFFV}, {S_SOFFV}, 8192"))
        seq += s2
    return seq

def wo_dma(ks, slot_base_imm):
    seq = []
    for gI in range(2):
        pre = II(f"s_lshl_b32 s50, {S_W}, 13", f"s_add_u32 m0, s50, {slot_base_imm + gI*4096}", f"s_mov_b32 s51, {ks*32768 + gI*16384}")
        for n in range(4):
            seq.append((pre if n == 0 else [], dma(V_WOD[n], SRD_WO, "s51", n * 1024, OPT["wont"])))
    return seq

def att_body(j, vmwait, extra_dma=None):
    par_old, par_new = (j - 1) & 1, j & 1
    ms = [pv_mfma(dt, t, par_old) for dt in (5, 6, 7) for t in range(5)] + [rs_mfma(t, par_old) for t in range(5)]
    ms += [qk_mfma(kt, s, t, lambda t: vr(cinit(t))) for kt in range(2) for s in range(4) for t in range(5)]
    ms += [pv_mfma(dt, t, par_new) for dt in range(5) for t in range(5)]
    S = Sched(ms)
    cv = cvts(par_new)
    S.spread(cv, [1, 1, 3, 3, 6, 6, 8, 8, 11, 11, 13, 13, 16, 16, 18, 18, 21, 21, 23, 23])
    S.spread([k_read(kt, s, j + 1) for kt in range(2) for s in range(4)], [0, 2, 5, 7, 10, 12, 15, 17])
    vr_ = [v_read(dt, h, j) for dt in range(8) for h in range(2)]
    S.spread(vr_, [20, 22, 25, 26, 27, 28, 30, 31, 32, 33, 35, 36, 37, 38, 40, 61])
    d = att_dma(j) + (extra_dma or [])
    put_dmas(S, d, [4, 9, 14, 19, 24, 29, 34, 39])
    S.spread(exps(0), list(range(41, 61)))
    S.spread(exps(1), list(range(62, 82)))
    seq = S.flat()
    seq, pend = lgkm_waits(seq)
    seq += tr_mark() + II(f"s_waitcnt vmcnt({vmwait}) lgkmcnt(0)") + tr_commit() + II("s_barrier")
    if OPT['verbose']: print(S.report(f"att_body {j}"))
    return seq

WO1 = [192, 200, 208, 216, 224, 228, 232, 236]
def wofrag(ks, m, n=4, off=0):
    if ks == 0: return ar(216 + 4 * m + off, n)
    if ks == 1: return vr(WO1[m] + off, n)
    return ar((ks - 2) * 32 + 4 * m + off, n)
def wo_read(ks, m, h):
    cp, hf = m >> 1, m & 1
    off = (32768 if (ks & 1) == 0 else 0) + hf * 8 + h * 4096
    return I(f"ds_read_b64_tr_b16 {wofrag(ks, m, 2, 2*h)}, v{V_WOR[cp]}" + (f" offset:{off}" if off else ""))

def wo_prefetch(shift=0):
    n = OPT['pfw']
    L = II(f"s_add_u32 s50, {S_B}, {shift}", "s_and_b32 s50, s50, 7", "s_lshl_b32 s50, s50, 15", f"s_lshl_b32 s51, {S_W}, 13", "s_add_u32 s50, s50, s51")
    nt = " nt" if OPT['pfnt'] else ""
    if n == 8:
        L += II(f"v_lshlrev_b32 v46, 4, {V_LANE}")
        for i in range(8):
            L += II(f"s_add_u32 s51, s50, {i*1024}", f"buffer_load_dwordx4 v[252:255], v46, s[84:87], s51 offen{nt}")
    else:
        sh = {1: 7, 2: 6, 4: 5}[n]
        L += II(f"v_lshlrev_b32 v46, {sh}, {V_LANE}")
        for i in range(n):
            L += II(f"s_add_u32 s51, s50, {i * (64 << sh)}", f"buffer_load_dword v47, v46, s[84:87], s51 offen{nt}")
    return L

ATT_OOL = []
def attention():
    L = []; A = lambda *x: L.extend(II(*x))
    L += transition()
    A(stamp("att_start"))
    A(f"s_mov_b32 {S_CNT}, 0")
    b0, n = hazards(att_body(0, 16), history=L[-24:]); L.extend(b0)
    bodies = [att_body(j, 16) for j in range(1, 5)]
    hist = bodies[3][-24:]
    A(".p2align 6", "L_att_loop:")
    OOLA = []
    for i, b in enumerate(bodies):
        if i == 3:
            A(f"s_cmp_eq_u32 {S_CNT}, 2", "s_cbranch_scc0 L_att_nok_done")
            for n in range(4): A(f"v_add_u32 v{V_KD[n]}, 0x40000000, v{V_KD[n]}")
            A("L_att_nok_done:")
        b2, n = hazards(b, history=hist); L.extend(b2); hist = b2[-24:]
    if 0 <= OPT['pf'] < 3:
        A(f"s_cmp_eq_u32 {S_CNT}, {OPT['pf']}", "s_cbranch_scc0 L_att_nopf", wo_prefetch(), (wo_prefetch(4) if OPT.get('pfdup') else []), "L_att_nopf:")
    A(f"s_add_u32 {S_CNT}, {S_CNT}, 1", f"s_cmp_lt_u32 {S_CNT}, 3", "s_cbranch_scc1 L_att_loop")
    ATT_OOL.clear(); ATT_OOL.extend(OOLA)
    b, n = hazards(att_body(13, 16, extra_dma=wo_dma(0, WOA)), history=hist); L.extend(b); hist = b[-24:]
    if OPT.get('pf2nd'): A(wo_prefetch(4))
    b, n = hazards(att_body(14, 16, extra_dma=wo_dma(1, WOB)), history=hist); L.extend(b); hist = b[-24:]
    A(stamp("att_loop_done"))
    ms = [pv_mfma(dt, t, 0) for dt in (5, 6, 7) for t in range(5)] + [rs_mfma(t, 0) for t in range(5)]
    ms += [pv_mfma(dt, t, 1) for dt in range(8) for t in range(5)] + [rs_mfma(t, 1) for t in range(5)]
    S = Sched(ms)
    S.spread(cvts(1), list(range(0, 20)))
    S.spread([v_read(dt, h, 15) for dt in range(5) for h in range(2)], list(range(0, 10)))
    S.spread([v_read(dt, h, 15) for dt in (5, 6, 7) for h in range(2)], list(range(15, 21)))
    S.put(20, "s_waitcnt vmcnt(8)")
    S.spread([wo_read(0, m, h) for m in range(8) for h in range(2)], [21 + i // 2 for i in range(16)])
    S.put(28, "s_waitcnt vmcnt(0)")
    S.spread([wo_read(1, m, h) for m in range(8) for h in range(2)], [29 + i // 2 for i in range(16)])
    S.put(38, "s_waitcnt lgkmcnt(0)")
    if OPT['fused']:
        S.put(36, f"s_lshl_b32 s50, {S_CL}, 2", f"s_add_u32 s50, s50, {CNTOFF()}")
        S.spread([f"v_lshlrev_b32 v14, 8, {V_LANE}", "v_add_u32 v14, s50, v14"], [37, 37])
        S.put(38, f"buffer_load_dword v15, v14, {SRD_D}, 0 offen sc1")
    put_dmas(S, wo_dma(2, WOA), [41, 44, 47, 50, 54, 57, 60, 63])
    seq, pend = lgkm_waits(S.flat(), final_zero=True)
    seq, n = hazards(seq, history=hist); L.extend(seq)
    A("s_barrier")
    A("s_nop 3")
    A(stamp("att_done"))
    return L

def wo_dma_t(ks):
    d = wo_dma(ks, WOA if (ks & 1) == 0 else WOB)
    for e in d: e[1].tag = f"wo{ks}"
    return d
def wo_reads(ks): return [wo_read(ks, m, h) for m in range(8) for h in range(2)]

LFLAG = 90112

def o_epilogue():
    E = []
    tl = VT[0]; rc = VT[2]
    d3, d4, d5 = wo_dma_t(3), wo_dma_t(4), wo_dma_t(5)
    E += II(f"s_lshl_b32 s51, {S_QH}, 11", f"v_subrev_u32 v{V_OWB}, s51, v{V_OW}", f"v_add_u32 v{V_OW}, s51, v{V_OW}",
            f"s_lshl_b32 s50, {S_U}, 12", f"s_add_u32 s50, s50, 32768", "s_add_u32 s50, s50, s51", f"v_add_u32 v{V_OW4}, s50, v{V_OR}")
    def emit_dma(e):
        return e[0] + II("s_nop 0") * (1 if e[0] else 0) + [e[1]]
    nfr = 0
    for t in range(5):
        E += II(f"v_accvgpr_read_b32 v{tl}, a{lacc(t)}", f"v_rcp_f32 v{rc}, v{tl}", "s_nop 0", f"v_mov_b32 v{rc+1}, v{rc}")
        if t == 0: E += II(f"v_mov_b32 v{VT[1]}, v{tl}")
        else: E += II(f"v_max_f32 v{VT[1]}, v{VT[1]}, v{tl}")
        if t == 4:
            E += II(f"v_cmp_nge_f32 vcc, {hex(OPT['lthr'] or LTHR)}, v{VT[1]}", f"s_lshl_b32 s50, {S_W}, 2", f"s_add_u32 s50, s50, {LFLAG}", f"v_mov_b32 v52, s50",
                    "s_cmp_lg_u64 vcc, 0", "s_cselect_b32 s51, 1, 0", "v_mov_b32 v53, s51", "ds_write_b32 v52, v53")
        for ks in range(4 if t < 4 else 2):
            mid = []
            if nfr < 8: mid += emit_dma(d3[nfr])
            if 8 <= nfr < 16: mid += emit_dma(d4[nfr - 8])
            if nfr >= 16:
                for i in range(4): mid += emit_dma(d5[4 * (nfr - 16) + i])
            if OPT.get('x_oenodma'): mid = [x for x in mid if x.kind == 'dma'][:0] + [x for x in mid if x.kind != 'dma']
            rd = []
            cut = {0: (0, 6), 1: (6, 11), 2: (11, 16)}
            if 4 <= nfr < 7:
                if nfr == 4:
                    rd += [VmNeed("wo2")]
                    if OPT['fused']:
                        rd += II("v_readfirstlane_b32 s52, v15", "s_nop 3", "s_cmp_lt_u32 s52, 16", "s_cbranch_scc1 L_cnt_spin", "L_cnt_ok:")
                a_, b_ = cut[nfr - 4]; rd += wo_reads(2)[a_:b_]
            if 12 <= nfr < 15:
                if nfr == 12: rd += [VmNeed("wo3")]
                a_, b_ = cut[nfr - 12]; rd += wo_reads(3)[a_:b_]
            if OPT.get('oe_nord'): rd = [x for x in rd if x.kind != 'dsr']
            if OPT.get('oe_nowait'): rd = [x for x in rd if not isinstance(x, VmNeed)]
            if OPT.get('oe_nodma'): mid = []; rd = [x for x in rd if not (isinstance(x, VmNeed) and x.tag == 'wo3')]
            if nfr in (8, 16): E += II("s_waitcnt lgkmcnt(0)")
            E += rd
            for h in range(2):
                for k in range(4):
                    E += II(f"v_accvgpr_read_b32 v{52 + 4*h + k}, a{oacc(2*ks + h, t) + k}")
            E += mid
            for k in range(4): E += II(f"v_pk_mul_f32 {vr(52+2*k,2)}, {vr(52+2*k,2)}, {vr(rc,2)}")
            for k in range(4): E += II(f"v_cvt_pk_bf16_f32 v{60+k}, v{52+2*k}, v{53+2*k}")
            E += II(f"ds_write_b128 v{V_OW if ks < 2 else V_OWB}, {vr(60)} offset:{(t*8+ks)*1024}" if t < 4 else f"ds_write_b128 v{V_OW4}, {vr(60)} offset:{ks*1024}")
            nfr += 1
        if OPT['stamps'] and OPT.get('oest'): E += [Raw("\n  ".join(x.txt for x in stamp(f"oe{t}")))] + II("s_waitcnt lgkmcnt(0)")
    E, q = vm_waits(E, ["cnt"] + ["wo2"] * 8)
    E, pend = lgkm_waits(E, final_zero=True)
    E, n = hazards(E)
    return E + II("s_barrier"), q

def o_read(dst, t, ks):
    if t < 8: return I(f"ds_read_b128 {vr(dst)}, v{V_OR} offset:{(t*8+ks)*1024}")
    return I(f"ds_read_b128 {vr(dst)}, v{V_OR8} offset:{ks*1024}")
V_PSC = [196, 197, 198, 199]
V_OWNA = 204; S_OWN = "s49"
OWNB = 73728
OWN_OOL = []
OWN_BLK = {}
def pstore(src, t, cp):
    v = V_PSC[cp] if OPT['own'] else V_PS
    return (II(f"s_add_u32 s51, {S_SOFFP}, {(cp*9 + t)*16384}"),
            I(f"buffer_store_dwordx4 {vr(src)}, v{v}, {SRD_P}, s51 offen {OPT['pst']}"))
def own_hook(src, t, cp):
    if not OPT['own']: return []
    OWN_BLK.setdefault(t, []).extend(II(f"L_own_{t}_{cp}:", f"ds_write_b128 v{V_OWNA}, {vr(src)} offset:{t*1024}", f"s_branch L_ownb_{t}_{cp}"))
    return II(f"s_cmp_eq_u32 {S_OWN}, {cp}", f"s_cbranch_scc1 L_own_{t}_{cp}", f"L_ownb_{t}_{cp}:")

NP1 = 2
def acc1(t, m): return 64 + (t * 8 + m) * 4
def acc2(t, m): return 128 + ((t & 1) * 8 + m) * 4
def bfr1(par, t): return 2 + (par * 4 + t) * 4
STG = [48, 52, 56, 60]

def tile_epilogue(accf, t, k0):
    out = []
    for cp in range(4):
        a0, a1 = accf(t, 2*cp), accf(t, 2*cp + 1)
        d = STG[(k0 + cp) & 3]
        cv = II(f"v_cvt_pk_bf16_f32 v{d}, v{a0}, v{a0+1}", f"v_cvt_pk_bf16_f32 v{d+1}, v{a0+2}, v{a0+3}",
                f"v_cvt_pk_bf16_f32 v{d+2}, v{a1}, v{a1+1}", f"v_cvt_pk_bf16_f32 v{d+3}, v{a1+2}, v{a1+3}")
        pre, st = pstore(d, t, cp)
        if OPT.get('x_nost') and not (t == 8 and cp == 3): st = I("s_nop 0")
        st.tag = f"st{t}"
        out.append((cv, (pre, st), own_hook(d, t, cp)))
    return out

def out_proj(queue):
    L = []; A = lambda *x: L.extend(II(*x))
    A(f"s_mul_i32 {S_SOFFP}, {S_W}, {4*9*16384}")
    OWN_OOL.clear(); OWN_BLK.clear()
    if OPT['own']:
        A(f"s_lshr_b32 s50, {S_HP}, 2", f"s_and_b32 s51, {S_HP}, 3", f"s_cmp_eq_u32 s50, {S_W}", f"s_cselect_b32 {S_OWN}, s51, 7")
        for cp in range(4):
            A(f"s_cmp_eq_u32 {S_OWN}, {cp}", "s_cselect_b32 s50, 0x40000000, 0", f"v_or_b32 v{V_PSC[cp]}, s50, v{V_PS}")
        A(f"v_add_u32 v{V_OWNA}, {OWNB}, v{V_OR}")
    NP = OPT['np1']
    G = 8 * NP
    ms = [mfma(vr(acc1(t, m)), wofrag(ks, m), vr(bfr1(ks & 1, t)), ("0" if ks == 0 else vr(acc1(t, m)))) for ks in range(8) for m in range(8) for t in range(NP)]
    bt = lambda ks: 2 + 4 * ks
    P1 = len(ms)
    for t in range(NP, 9):
        ms += [mfma(vr(acc2(t, m)), wofrag(ks, m), vr(bt(ks)), ("0" if ks == 0 else vr(acc2(t, m)))) for ks in range(8) for m in range(8)]
    S = Sched(ms)
    def reads(ks, g0): S.spread(wo_reads(ks), [g0 + i // 2 for i in range(16)])
    def dmas(ks, g0, step=4): put_dmas(S, wo_dma_t(ks), [g0 + step * i for i in range(8)])
    def put_free(ins, g0):
        g = g0
        while S.cost(g) + COST[ins.kind] > 8: g += 1
        S.put(g, ins); return g
    def epi(t, accf, g0, stride):
        for cp, (cv, (spre, st), hook) in enumerate(tile_epilogue(accf, t, 0)):
            g = g0 + cp * stride
            S.spread(cv, [g, g, g + 1, g + 1])
            for p in spre: S.put(g + 1, p)
            for p in hook: S.put(g + 2, p)
            S.put(g + 2, st)
        if OPT['own']:
            blk = OWN_BLK.pop(t)
            S.put(g0 + 3 * stride + 4, Raw(f"s_branch L_ownx_{t}\n" + "\n".join((x.txt if x.kind == 'label' else "  " + x.txt) for x in blk) + f"\nL_ownx_{t}:"))
    if NP == 2:
        pre = [o_read(bfr1(0, t), t, 0) for t in range(NP)]
        S.put(0, VmNeed("wo4")); reads(4, 0)
        S.put(9, "s_waitcnt lgkmcnt(0)"); dmas(6, 11, 3)
        S.put(33, VmNeed("wo5")); reads(5, 33)
        S.put(42, "s_waitcnt lgkmcnt(0)"); dmas(7, 44, 3)
        S.put(84, VmNeed("wo6")); reads(6, 84)
        S.put(100, VmNeed("wo7")); reads(7, 100)
        for ks in range(7):
            g = ks * G + (1 if ks else 8)
            for t in range(NP):
                g = put_free(o_read(bfr1((ks + 1) & 1, t), t, ks + 1), g) + 1
            assert g <= (ks + 1) * G - 3, (ks, g)
        g = 6 * G + 4
        for ks in (2, 3, 6, 7): g = put_free(o_read(bt(ks), NP, ks), g) + 1
        g = 7 * G + 1
        for ks in (0, 1): g = put_free(o_read(bt(ks), NP, ks), g) + 1
        base = P1
        for ks in (4, 5): put_free(o_read(bt(ks), NP, ks), base + 1)
        epi(0, acc1, base + 4, 7); epi(1, acc1, base + 32, 7)
    else:
        assert NP == 0
        pre = [o_read(bt(ks), 0, ks) for ks in range(8)]
        S.put(0, VmNeed("wo4")); reads(4, 0)
        S.put(9, "s_waitcnt lgkmcnt(0)"); dmas(6, 11, 2)
        S.put(10, VmNeed("wo5"));
        S.spread(wo_reads(5), [12, 12, 14, 14, 16, 16, 18, 18, 20, 20, 22, 22, 24, 24, 26, 26])
        S.put(28, "s_waitcnt lgkmcnt(0)"); dmas(7, 30, 2)
        S.put(46, VmNeed("wo6")); S.spread(wo_reads(6), [46, 46, 46, 46] + [47 + i // 4 for i in range(12)])
        S.put(54, VmNeed("wo7")); S.spread(wo_reads(7), [54, 54, 54, 54] + [55 + i // 12 for i in range(12)])
    for t in range(NP, 9):
        b = P1 + (t - NP) * 64
        if t > NP: epi(t - 1, acc2, b + 6, 12)
        if t < 8:
            for ks in range(8):
                g = b + 8 * ks + 8
                if g >= b + 64: g = b + 64 + 1
                put_free(o_read(bt(ks), t + 1, ks), g)
    if OPT['fused']:
        g0 = P1 + (3 - NP) * 64 + 49
        S.put(g0, f"s_lshl_b32 s50, {S_W}, 7", f"s_lshl_b32 s52, {S_HP}, 2", "s_add_u32 s50, s50, s52")
        S.spread([f"v_lshlrev_b32 v36, 13, {V_LANE}", "v_add_u32 v36, s50, v36", "v_mov_b32 v37, 1"], [g0 + 1, g0 + 1, g0 + 2])
        S.put(g0 + 3, f"s_lshr_b32 s50, {S_HP}, 2", "s_lshl_b32 s50, s50, 7")
        S.spread([f"v_lshrrev_b32 v46, 4, {V_LANE}", "v_lshlrev_b32 v46, 9, v46", f"v_and_b32 v47, 15, {V_LANE}",
                  "v_lshl_add_u32 v46, v47, 2, v46", "v_add_u32 v46, s50, v46"], [g0 + 4, g0 + 4, g0 + 5, g0 + 9, g0 + 9])
        b = P1 + (8 - NP) * 64
        fa = I(f"buffer_store_dword v37, v36, {SRD_F}, 0 offen sc1"); fa.tag = "fl"
        if OPT['early']:
            S.put(b + 40, VmNeed("st3")); S.put(b + 41, fa)
            pl = I(f"buffer_load_dword v47, v46, {SRD_F}, 0 offen sc1"); pl.tag = "poll"
            S.put(b + 60, pl)
    if OPT['stamps'] and OPT.get('opst'):
        for nm, g in (("w1", 127), ("w3", 255), ("w5", 383), ("w8", 575)):
            S.put(g, Raw("\n  ".join(x.txt for x in stamp(nm))))
            S.put(g, "s_waitcnt lgkmcnt(0)")
    pre = II(f"v_mov_b32 v56, {LFLAG}", f"ds_read_b128 {vr(52)}, v56") + pre
    pre += II("s_waitcnt lgkmcnt(0)", "v_or3_b32 v52, v52, v53, v54", "v_or_b32 v52, v52, v55", "s_nop 0", "v_readfirstlane_b32 s50, v52", "s_nop 3",
              f"s_andn2_b32 s50, s50, {S_SAFE}", "s_cmp_lg_u32 s50, 0", "s_cbranch_scc1 L_restart")
    seq = pre + S.flat()
    tail = II("s_nop 7")
    for cp, (cv, (spre, st), hook) in enumerate(tile_epilogue(acc2, 8, 0)):
        tail += cv + spre + hook + [st]
    if OPT['own']:
        tail += II("s_branch L_ownx_8") + OWN_BLK.pop(8) + II("L_ownx_8:")
    if OPT['stamps'] and OPT.get('opst'): tail += stamp("st_iss")
    if OPT['fused']:
        fb = I(f"buffer_store_dword v37, v36, {SRD_F}, 0 offen offset:512 sc1"); fb.tag = "fl"
        fc = I(f"buffer_store_dword v37, v36, {SRD_F}, 0 offen offset:1024 sc1"); fc.tag = "fl"
        tail += [VmNeed("poll"), fb, VmNeed("st8"), fc] if OPT['early'] else [VmNeed("st8"), fa, fb, fc]
    seq, q = vm_waits(seq + tail, queue)
    seq, pend = lgkm_waits(seq)
    seq, n = hazards(seq)
    if OPT['verbose']: print(S.report("out_proj"), "nops", n)
    L += seq
    return L, q

SPIN = 1 << 22
def reduce_phase_groups():
    L = []; A = lambda *x: L.extend(II(*x))
    DAT = lambda g, tt, k: 64 + ((g * 2 + tt) * 4 + k) * 4
    D8 = lambda k: 192 + 4 * k
    ACC = lambda g, tt: [208, 216, 224, 232, 240, 248, 2, 10][g * 2 + tt]
    A8 = 18
    T0, T1 = 26, 28
    V_POLL, V_FL, V_L16, V_OUT = 46, 47, 32, 33
    A(f"v_lshrrev_b32 v30, 4, {V_LANE}", f"v_and_b32 v31, 15, {V_LANE}", f"v_lshlrev_b32 v{V_L16}, 4, {V_LANE}",
      f"v_lshlrev_b32 v{V_OUT}, 11, v31", f"v_lshl_add_u32 v{V_OUT}, v30, 4, v{V_OUT}")
    A(f"s_mul_i32 s32, {S_B}, {144*2048}", f"s_lshl_b32 s50, {S_BR}, 10", "s_add_u32 s32, s32, s50", f"s_lshl_b32 s50, {S_HP}, 6", "s_add_u32 s32, s32, s50")
    A(f"s_mul_i32 s33, {S_HP}, {9*16384}")
    A(f"s_lshl_b32 s50, {S_W}, 14", "s_add_u32 s34, s33, s50", "s_add_u32 s35, s34, 65536",
      f"s_add_u32 s36, s33, {8*16384}", f"s_lshl_b32 s50, {S_W}, 12", "s_add_u32 s36, s36, s50",
      f"s_lshl_b32 s41, {S_W}, 2")
    A("s_mov_b32 s37, 0", "s_mov_b32 s38, 0", f"s_mov_b32 s53, {SPIN}")
    if OPT['own']:
        A(f"s_lshr_b32 s46, {S_HP}, 2", f"s_and_b32 s47, {S_HP}, 3", f"s_lshl_b32 s50, {S_W}, 10", f"s_add_u32 s50, s50, {OWNB}", f"v_add_u32 v44, s50, v{V_L16}")
        if not OPT['latebar']:
            A("s_waitcnt lgkmcnt(0)", "s_barrier", "ds_read_b128 v[36:39], v44", "ds_read_b128 v[40:43], v44 offset:4096")
    def unpack_add(acc, src, first):
        out = []
        for k in range(4):
            if first:
                out += [f"v_lshlrev_b32 v{acc+2*k}, 16, v{src+k}", f"v_and_b32 v{acc+2*k+1}, 0xffff0000, v{src+k}"]
            else:
                t = (T0, T1)[k & 1]
                out += [f"v_lshlrev_b32 v{t}, 16, v{src+k}", f"v_and_b32 v{t+1}, 0xffff0000, v{src+k}",
                        f"v_pk_add_f32 v[{acc+2*k}:{acc+2*k+1}], v[{acc+2*k}:{acc+2*k+1}], v[{t}:{t+1}]"]
        return out
    items = [(tt, g) for tt in range(2) for g in range(4)] + [(2, None)]
    if OPT['early']: A("s_branch L_red_first")
    A("L_red_loop:")
    A("s_cmp_eq_u32 s37, 0x1ff", "s_cbranch_scc1 L_red_nopoll")
    A(f"buffer_load_dword v{V_FL}, v{V_POLL}, {SRD_F}, 0 offen sc1")
    A("L_red_nopoll:", "s_waitcnt vmcnt(0)")
    A("s_andn2_b32 s42, s37, s38")
    for i, (tt, g) in enumerate(items):
        if tt < 2 and g == 0: A(f"s_and_b32 s50, s42, {hex(15 << (4 * tt))}", f"s_cbranch_scc0 L_red_nosumc{tt}")
        A(f"s_bitcmp1_b32 s42, {i}", f"s_cbranch_scc0 L_red_nosum{i}")
        for k in range(4):
            A(unpack_add(ACC(g, tt), DAT(g, tt, k), k == 0) if tt < 2 else unpack_add(A8, D8(k), k == 0))
        A(f"L_red_nosum{i}:")
        if tt < 2 and g == 3: A(f"L_red_nosumc{tt}:")
    A("s_mov_b32 s38, s37", "s_cmp_eq_u32 s38, 0x1ff", "s_cbranch_scc1 L_red_done")
    A("L_red_first:")
    A(f"v_cmp_eq_u32 vcc, 1, v{V_FL}", "s_nop 3", "s_mov_b32 s39, vcc_lo", "s_lshr_b32 s43, vcc_hi, s41", "s_and_b32 s43, s43, 15", "s_mov_b32 s40, s37")
    A("s_sub_u32 s53, s53, 1", "s_cmp_eq_u32 s53, 0", "s_cselect_b32 s39, -1, s39", "s_cselect_b32 s43, 15, s43", "s_cselect_b32 s53, 1, s53")
    for i, (tt, g) in enumerate(items):
        if tt < 2 and g == 0:
            A(f"s_bfe_u32 s50, s37, {hex((4 << 16) | (4 * tt))}", "s_cmp_eq_u32 s50, 15", f"s_cbranch_scc1 L_red_noissc{tt}",
              f"s_bfe_u32 s50, s39, {hex((16 << 16) | (16 * tt))}", "s_cmp_eq_u32 s50, 0", f"s_cbranch_scc1 L_red_noissc{tt}")
        A(f"s_bitcmp1_b32 s37, {i}", f"s_cbranch_scc1 L_red_noiss{i}")
        if tt < 2:
            A(f"s_bfe_u32 s50, s39, {hex((4 << 16) | (16 * tt + 4 * g))}", "s_cmp_eq_u32 s50, 15")
        else:
            A("s_cmp_eq_u32 s43, 15")
        A(f"s_cbranch_scc0 L_red_noiss{i}")
        if tt < 2: A(f"s_add_u32 s50, s{34+tt}, {g*4096}")
        if OPT['own']:
            A(f"s_cmp_eq_u32 s46, {g}" if tt < 2 else f"s_cmp_eq_u32 s46, {S_W}", "s_cselect_b32 s44, s47, 7")
        for k in range(4):
            o = f" offset:{k*1024}" if k else ""
            va = V_L16
            if OPT['own']:
                A(f"s_cmp_eq_u32 s44, {k}", "s_cselect_b32 s45, 0x40000000, 0", f"v_or_b32 v45, s45, v{V_L16}"); va = 45
            if tt < 2: A(f"buffer_load_dwordx4 {vr(DAT(g, tt, k))}, v{va}, {SRD_P}, s50 offen{o} {OPT['rld']}")
            else: A(f"buffer_load_dwordx4 {vr(D8(k))}, v{va}, {SRD_P}, s36 offen{o} {OPT['rld']}")
        A(f"s_bitset1_b32 s37, {i}", f"L_red_noiss{i}:")
        if tt < 2 and g == 3: A(f"L_red_noissc{tt}:")
    if OPT.get('rdst'):
        A("s_cmp_eq_u32 s40, 0", "s_cbranch_scc0 L_rs1", "s_cmp_lg_u32 s37, 0", "s_cbranch_scc0 L_rs1", stamp("r_first"), "L_rs1:")
        A("s_cmp_eq_u32 s37, 0x1ff", "s_cbranch_scc0 L_rs2", stamp("r_alliss"), "L_rs2:")
    A("s_cmp_lg_u32 s37, s40", "s_cbranch_scc1 L_red_loop", f"s_sleep {OPT['psleep']}", "s_branch L_red_loop")
    A("L_red_done:")
    if OPT.get('rdst'): A(stamp("r_summed"))
    A(f"s_lshl_b32 s50, {S_W}, 11", f"v_lshlrev_b32 v30, 5, {V_LANE}", f"v_add_u32 v30, {WOB}, v30", "v_add_u32 v31, s50, v30",
      f"ds_write_b128 v31, {vr(A8)}", f"ds_write_b128 v31, {vr(A8+4)} offset:16")
    late = OPT['own'] and OPT['latebar']
    for tt in range(2):
        a0 = ACC(0, tt)
        for g in range(1, 4):
            for k in range(4): A(f"v_pk_add_f32 v[{a0+2*k}:{a0+2*k+1}], v[{a0+2*k}:{a0+2*k+1}], v[{ACC(g,tt)+2*k}:{ACC(g,tt)+2*k+1}]")
    if late:
        A("s_waitcnt lgkmcnt(0)", "s_barrier", "ds_read_b128 v[36:39], v44", "ds_read_b128 v[40:43], v44 offset:4096")
    for tt in range(2):
        a0 = ACC(0, tt)
        if OPT['own']: A(("s_waitcnt lgkmcnt(1)" if late else "s_waitcnt lgkmcnt(2)") if tt == 0 else "s_waitcnt lgkmcnt(0)" if late else "s_nop 0", unpack_add(a0, 36 + 4 * tt, False))
        for k in range(4): A(f"v_cvt_pk_bf16_f32 v{64+4*tt+k}, v{a0+2*k}, v{a0+2*k+1}")
        A(f"s_lshl_b32 s50, {S_W}, 15", f"s_add_u32 s50, s50, s32", f"s_add_u32 s50, s50, {tt*4*32768}")
        A(f"buffer_store_dwordx4 {vr(64+4*tt)}, v{V_OUT}, {SRD_O}, s50 offen {OPT['ost']}")
    if not late: A("s_waitcnt lgkmcnt(0)", "s_barrier")
    A(f"s_cmp_eq_u32 {S_W}, 0", "s_cbranch_scc0 L_red_end")
    for g in range(4):
        A(f"ds_read_b128 {vr(80+8*g)}, v30 offset:{g*2048}", f"ds_read_b128 {vr(84+8*g)}, v30 offset:{g*2048+16}")
    if OPT['own']: A("ds_read_b128 v[36:39], v44 offset:8192")
    A("s_waitcnt lgkmcnt(0)")
    for g in range(1, 4):
        for k in range(4): A(f"v_pk_add_f32 v[{80+2*k}:{81+2*k}], v[{80+2*k}:{81+2*k}], v[{80+8*g+2*k}:{81+8*g+2*k}]")
    if OPT['own']: A(unpack_add(80, 36, False))
    for k in range(4): A(f"v_cvt_pk_bf16_f32 v{72+k}, v{80+2*k}, v{81+2*k}")
    A(f"s_add_u32 s50, s32, {8*32768}")
    A(f"buffer_store_dwordx4 {vr(72)}, v{V_OUT}, {SRD_O}, s50 offen {OPT['ost']}")
    A("L_red_end:")
    L2, n = hazards(L)
    return L2

def reduce_phase():
    if not OPT['linred']: return reduce_phase_groups()
    assert OPT['own'] and OPT['early']
    L = []; A = lambda *x: L.extend(II(*x))
    DA = lambda p: 64 + 4 * p
    DB = lambda p: 128 + 4 * p
    D8 = lambda k: 192 + 4 * k
    ACA, ACB, A8 = 208, 216, 224
    T0, T1 = 26, 28
    V_POLL, V_FL, V_L16, V_OUT = 46, 47, 32, 33
    A(f"v_lshrrev_b32 v30, 4, {V_LANE}", f"v_and_b32 v31, 15, {V_LANE}", f"v_lshlrev_b32 v{V_L16}, 4, {V_LANE}",
      f"v_lshlrev_b32 v{V_OUT}, 11, v31", f"v_lshl_add_u32 v{V_OUT}, v30, 4, v{V_OUT}")
    A(f"s_mul_i32 s33, {S_HP}, {9*16384}")
    A(f"s_lshl_b32 s50, {S_W}, 14", "s_add_u32 s34, s33, s50", "s_add_u32 s35, s34, 65536",
      f"s_add_u32 s36, s33, {8*16384}", f"s_lshl_b32 s50, {S_W}, 12", "s_add_u32 s36, s36, s50",
      f"s_lshl_b32 s41, {S_W}, 2", f"s_mov_b32 s53, {SPIN}")
    def loads(base, dst):
        for p in range(16):
            if p % 4 == 0: A(f"s_add_u32 s50, {base}, {p*1024}")
            o = f" offset:{(p % 4)*1024}" if p % 4 else ""
            A(f"s_cmp_eq_u32 {S_HP}, {p}", f"s_cbranch_scc1 L_rl_{base}_{p}",
              f"buffer_load_dwordx4 {vr(dst(p))}, v{V_L16}, {SRD_P}, s50 offen{o} {OPT['rld']}", f"L_rl_{base}_{p}:")
    def poll(name, test):
        A(f"L_poll_{name}:", f"v_cmp_eq_u32 vcc, 1, v{V_FL}", "s_nop 3")
        A(test)
        A(f"s_cbranch_scc1 L_poll_{name}_ok", "s_sub_u32 s53, s53, 1", "s_cmp_eq_u32 s53, 0", f"s_cbranch_scc1 L_poll_{name}_ok",
          f"s_sleep {OPT['psleep']}", f"buffer_load_dword v{V_FL}, v{V_POLL}, {SRD_F}, 0 offen sc1", "s_waitcnt vmcnt(0)", f"s_branch L_poll_{name}",
          f"L_poll_{name}_ok:")
    def unpack_add(acc, src):
        out = []
        for k in range(4):
            t = (T0, T1)[k & 1]
            out += [f"v_lshlrev_b32 v{t}, 16, v{src+k}", f"v_and_b32 v{t+1}, s60, v{src+k}",
                    f"v_pk_add_f32 v[{acc+2*k}:{acc+2*k+1}], v[{acc+2*k}:{acc+2*k+1}], v[{t}:{t+1}]"]
        return out
    A("s_mov_b32 s60, 0xffff0000")
    poll("a", ["s_and_b32 s50, vcc_lo, 0xffff", "s_cmp_eq_u32 s50, 0xffff"])
    loads("s34", DA)
    A(f"s_lshl_b32 s50, {S_W}, 10", f"s_add_u32 s50, s50, {OWNB}", f"v_add_u32 v44, s50, v{V_L16}",
      "s_waitcnt lgkmcnt(0)", "s_barrier", "ds_read_b128 v[36:39], v44", "ds_read_b128 v[40:43], v44 offset:4096")
    for r in range(ACA, ACA + 24): A(f"v_mov_b32 v{r}, 0")
    A(f"s_mul_i32 s32, {S_B}, {144*2048}", f"s_lshl_b32 s50, {S_BR}, 10", "s_add_u32 s32, s32, s50", f"s_lshl_b32 s50, {S_HP}, 6", "s_add_u32 s32, s32, s50")
    A(f"buffer_load_dword v{V_FL}, v{V_POLL}, {SRD_F}, 0 offen sc1", "s_waitcnt vmcnt(0)")
    poll("b", ["s_lshr_b32 s50, vcc_lo, 16", "s_lshr_b32 s51, vcc_hi, s41", "s_and_b32 s51, s51, 15", "s_lshl_b32 s51, s51, 16", "s_or_b32 s50, s50, s51",
               "s_cmp_eq_u32 s50, 0xfffff"])
    loads("s35", DB)
    for k in range(4):
        o = f" offset:{k*1024}" if k else ""
        A(f"s_add_u32 s50, s41, {k}", f"s_cmp_eq_u32 {S_HP}, s50", f"s_cbranch_scc1 L_rl8_{k}",
          f"buffer_load_dwordx4 {vr(D8(k))}, v{V_L16}, {SRD_P}, s36 offen{o} {OPT['rld']}", f"L_rl8_{k}:")
    for p in range(16):
        A(f"s_cmp_eq_u32 {S_HP}, {p}", f"s_cbranch_scc1 L_rs_a{p}", unpack_add(ACA, DA(p)), f"L_rs_a{p}:")
    A("s_waitcnt lgkmcnt(0)", unpack_add(ACA, 36))
    for k in range(4): A(f"v_cvt_pk_bf16_f32 v{64+k}, v{ACA+2*k}, v{ACA+2*k+1}")
    A(f"s_lshl_b32 s50, {S_W}, 15", "s_add_u32 s37, s50, s32")
    A(f"buffer_store_dwordx4 {vr(64)}, v{V_OUT}, {SRD_O}, s37 offen {OPT['ost']}")
    for p in range(16):
        A(f"s_waitcnt vmcnt({max(15 - p + 4 + 1 - 2, 0)})", f"s_cmp_eq_u32 {S_HP}, {p}", f"s_cbranch_scc1 L_rs_b{p}", unpack_add(ACB, DB(p)), f"L_rs_b{p}:")
    A(unpack_add(ACB, 40))
    for k in range(4): A(f"v_cvt_pk_bf16_f32 v{68+k}, v{ACB+2*k}, v{ACB+2*k+1}")
    A(f"s_add_u32 s37, s37, {4*32768}")
    A("s_waitcnt vmcnt(1)")
    for k in range(4):
        A(f"s_add_u32 s50, s41, {k}", f"s_cmp_eq_u32 {S_HP}, s50", f"s_cbranch_scc1 L_rs_c{k}", unpack_add(A8, D8(k)), f"L_rs_c{k}:")
    A(f"buffer_store_dwordx4 {vr(68)}, v{V_OUT}, {SRD_O}, s37 offen {OPT['ost']}")
    A(f"s_lshl_b32 s50, {S_W}, 11", f"v_lshlrev_b32 v30, 5, {V_LANE}", f"v_add_u32 v30, {WOB}, v30", "v_add_u32 v31, s50, v30",
      f"ds_write_b128 v31, {vr(A8)}", f"ds_write_b128 v31, {vr(A8+4)} offset:16")
    A("s_waitcnt lgkmcnt(0)", "s_barrier", f"s_cmp_eq_u32 {S_W}, 0", "s_cbranch_scc0 L_red_end")
    for g in range(4):
        A(f"ds_read_b128 {vr(80+8*g)}, v30 offset:{g*2048}", f"ds_read_b128 {vr(84+8*g)}, v30 offset:{g*2048+16}")
    A("ds_read_b128 v[36:39], v44 offset:8192")
    A("s_waitcnt lgkmcnt(0)")
    for g in range(1, 4):
        for k in range(4): A(f"v_pk_add_f32 v[{80+2*k}:{81+2*k}], v[{80+2*k}:{81+2*k}], v[{80+8*g+2*k}:{81+8*g+2*k}]")
    A(unpack_add(80, 36))
    for k in range(4): A(f"v_cvt_pk_bf16_f32 v{72+k}, v{80+2*k}, v{81+2*k}")
    A(f"s_add_u32 s50, s32, {8*32768}")
    A(f"buffer_store_dwordx4 {vr(72)}, v{V_OUT}, {SRD_O}, s50 offen {OPT['ost']}")
    A("L_red_end:")
    L2, n = hazards(L)
    return L2

def dump_regs(regs, slot, kind='v'):
    L = []; A = lambda *x: L.extend(II(*x))
    A("s_add_u32 s66, s58, 0x4000000", "s_addc_u32 s67, s59, 0",
      "s_lshl_b32 s50, s2, 2", f"s_add_u32 s50, s50, {S_W}", "s_lshl_b32 s50, s50, 16",
      f"v_lshlrev_b32 v253, 2, {V_LANE}", "v_add_u32 v253, s50, v253")
    for i, r in enumerate(regs):
        if kind == 'a':
            A(f"v_accvgpr_read_b32 v254, a{r}", "s_nop 0")
            A(f"global_store_dword v253, v254, s[66:67]")
        else:
            A(f"global_store_dword v253, v{r}, s[66:67]")
        A("v_add_u32 v253, 256, v253")
    A("s_waitcnt vmcnt(0)")
    return L

def main_kernel():
    L = []
    L += setup()
    L += stamp("start")
    L += phase_q()
    L += stamp("q_done")
    if OPT['dump'] == 'q':
        L += II("s_nop 7") + dump_regs([qfrag(t, s) + k for t in range(5) for s in range(4) for k in range(4)], 0)
        L += II("s_waitcnt vmcnt(0)", "s_endpgm")
    L += attention()
    if OPT['dump'] == 'o':
        L += II("s_nop 7") + dump_regs([oacc(dt, t) + k for t in range(5) for dt in range(8) for k in range(4)] + [lacc(t) for t in range(5)], 0, 'a')
        L += II("s_waitcnt vmcnt(0)", "s_endpgm")
    e, q = o_epilogue(); L += e
    L += stamp("o_done")
    if OPT.get('stop') == 'o':
        L += II("s_waitcnt vmcnt(0)") + stamp("end") + stamp_dump() + II("L_main_end:", "s_endpgm") + safe_paths()
        return L
    e, q = out_proj(q); L += e
    L += stamp("op_done")
    if OPT['fused']:
        L += reduce_phase()
        L += stamp("red_done")
    L += tr_dump()
    L += II("s_waitcnt vmcnt(0)")
    L += stamp("end")
    L += stamp_dump()
    L += II("L_main_end:", "s_endpgm")
    L += OWN_OOL + ATT_OOL
    L += safe_paths()
    return L

def reduce_kernel():
    L = []; A = lambda *x: L.extend(II(*x))
    A("s_cmp_ge_u32 s2, 256", "s_cbranch_scc1 L_red_end")
    A("s_load_dwordx2 s[4:5], s[0:1], 80", "s_load_dwordx2 s[6:7], s[0:1], 96")
    A("v_lshrrev_b32 v2, 6, v0", "v_and_b32 v1, 63, v0", "s_nop 0", "v_readfirstlane_b32 s12, v2", "s_nop 3")
    A("s_waitcnt lgkmcnt(0)")
    A("s_mul_i32 s13, s2, 9", "s_add_u32 s13, s13, s12", "s_lshl_b32 s13, s13, 14")
    A("s_add_u32 s16, s6, s13", "s_addc_u32 s17, s7, 0", "s_and_b32 s17, s17, 0xffff", "s_mov_b32 s18, 16384", "s_mov_b32 s19, 0x20000")
    A("v_lshlrev_b32 v2, 4, v1")
    for p in range(16):
        A(f"buffer_load_dwordx4 v[{8+4*p}:{11+4*p}], v2, s[16:19], 0 offen offset:{(p%4)*1024}" if p < 4 else
          f"buffer_load_dwordx4 v[{8+4*p}:{11+4*p}], v2, s[16:19], s{20+p//4} offen offset:{(p%4)*1024}")
        if p == 3: A("s_mov_b32 s21, 4096", "s_mov_b32 s22, 8192", "s_mov_b32 s23, 12288")
    A("s_lshr_b32 s14, s2, 4", "s_and_b32 s15, s2, 15",
      "s_and_b32 s24, s14, 7", "s_lshr_b32 s25, s14, 3",
      "s_mul_i32 s24, s24, 144", "s_lshl_b32 s26, s12, 4", "s_add_u32 s24, s24, s26", "s_lshl_b32 s24, s24, 11",
      "s_lshl_b32 s25, s25, 10", "s_lshl_b32 s15, s15, 6", "s_add_u32 s24, s24, s25", "s_add_u32 s24, s24, s15")
    A("v_and_b32 v3, 15, v1", "v_lshlrev_b32 v3, 11, v3", "v_lshrrev_b32 v4, 4, v1", "v_lshl_add_u32 v3, v4, 4, v3")
    A("s_mov_b32 s28, s4", "s_and_b32 s29, s5, 0xffff", "s_mov_b32 s30, 2359296", "s_mov_b32 s31, 0x20000")
    acc = 80
    for p in range(16):
        A(f"s_waitcnt vmcnt({15-p})")
        for k in range(4):
            r = 8 + 4 * p + k
            if p == 0:
                A(f"v_lshlrev_b32 v{acc+2*k}, 16, v{r}", f"v_and_b32 v{acc+2*k+1}, 0xffff0000, v{r}")
            else:
                A(f"v_lshlrev_b32 v6, 16, v{r}", f"v_and_b32 v7, 0xffff0000, v{r}",
                  f"v_add_f32 v{acc+2*k}, v{acc+2*k}, v6", f"v_add_f32 v{acc+2*k+1}, v{acc+2*k+1}, v7")
    for k in range(4): A(f"v_cvt_pk_bf16_f32 v{8+k}, v{acc+2*k}, v{acc+2*k+1}")
    A("buffer_store_dwordx4 v[8:11], v3, s[28:31], s24 offen")
    A("s_waitcnt vmcnt(0)")
    A("L_red_end:", "s_endpgm")
    return L

def kernel_text(name, body, vgpr, accum, sgpr=102):
    return f""".globl {name}
.p2align 8
.type {name},@function
{name}:
{text(body)}
"""
def kd(name, nfv, accum, sgpr=102):
    return f""".amdhsa_kernel {name}
  .amdhsa_next_free_vgpr {nfv}
  .amdhsa_next_free_sgpr {sgpr}
  .amdhsa_accum_offset {accum}
  .amdhsa_group_segment_fixed_size 0
  .amdhsa_kernarg_size 104
  .amdhsa_user_sgpr_count 2
  .amdhsa_user_sgpr_kernarg_segment_ptr 1
  .amdhsa_system_sgpr_workgroup_id_x 1
.end_amdhsa_kernel
"""

def build():
    stamp_id[0] = 0; STAMPS.clear()
    k1 = NAME + "_kernel"; k2 = "reduce_heads_kernel"
    m = main_kernel()
    hdr = """; Fused  x@wq -> softmax(q k^T / sqrt(128)) v -> @wo  for both branches, one launch, 256 workgroups x 4 waves.
"""
    if OPT['fused']:
        hdr += f"; @launch grid=(256,1,1) block=(256,1,1) lds=163840\n"
    else:
        hdr += f"; @launch kernel={k1} grid=(256,1,1) block=(256,1,1) lds=163840\n"
        hdr += f"; @launch kernel={k2} grid=(256,1,1) block=(576,1,1) lds=0\n"
    s = hdr + '.amdgcn_target "amdgcn-amd-amdhsa--gfx950"\n.text\n'
    s += kernel_text(k1, m, 512, 256)
    if not OPT['fused']: s += kernel_text(k2, reduce_kernel(), 96, 96)
    s += '.section .rodata,"a"\n.p2align 6\n' + kd(k1, 512, 256)
    if not OPT['fused']: s += ".p2align 6\n" + kd(k2, 96, 96, 40)
    return s

if __name__ == "__main__":
    ap = argparse.ArgumentParser()
    ap.add_argument("-o", default="cdna_kernels/" + NAME + ".s")
    ap.add_argument("--dump"); ap.add_argument("--stamps", action="store_true"); ap.add_argument("-v", action="store_true")
    ap.add_argument("--opt", action="append", default=[])
    a = ap.parse_args()
    OPT['dump'] = a.dump; OPT['stamps'] = a.stamps; OPT['verbose'] = a.v
    for o in a.opt:
        k, v = o.split("=", 1)
        OPT[k] = {'True': True, 'False': False}.get(v, int(v) if v.lstrip('-').isdigit() else v)
    s = build()
    open(a.o, "w").write(s)
    if a.stamps:
        import json; json.dump(STAMPS, open(a.o + ".stamps.json", "w"))
    print("wrote", a.o, len(s), "bytes")
```

```python
import sys, argparse
from ir import *

NAME = "concat_heads__gqa_block_cached__mha_block_cached__near_ridge"
OPT = dict(onepoll=True, linred=True, latebar=False, wsoff=0, own=True, early=True, l2pf=False, np1=0, pfw=1, pfkv=0, pfkvnt=False, psleep=8, ost='', lthr=0, start2=True, pf=2, pfnt=False, fused=True, rld='sc1', rot=True, wnt=False, xnt=False, wont=False, bursts=(3, 6, 9), dump=None, stamps=False, stop=None, kvnt=True, pst="sc1", verbose=False)

VB = 0
KB = 65536
WB = 16384
XB = 114688
WOA = 131072
WOB = 98304
OB = 0
def kphys(k): return ((k + 1) & 3) * 16384
def vphys(k): return (k & 3) * 16384

SRD_X, SRD_WQ, SRD_K, SRD_V, SRD_WO, SRD_P = "s[4:7]", "s[8:11]", "s[12:15]", "s[16:19]", "s[20:23]", "s[24:27]"
SRD_F, SRD_D, SRD_O = "s[68:71]", "s[72:75]", "s[80:83]"
S_W, S_U, S_QH, S_CNT = "s28", "s29", "s30", "s31"
S_SOFFX, S_SOFFW0, S_UNUSED, S_MW, S_MX, S_DSLOT, S_RSLOT, S_DW, S_DX = "s32", "s33", "s34", "s35", "s36", "s37", "s38", "s39", "s40"
S_BW, S_BX = "s41", "s42"
S_SOFFK, S_SOFFV, S_MK, S_MV = "s45", "s46", "s47", "s48"
S_T0, S_T1, S_T2, S_T3 = "s50", "s51", "s52", "s53"
S_HP, S_B, S_BR, S_CL = "s54", "s55", "s56", "s57"
S_WS = "s[58:59]"
S_SOFFP = "s60"
S_STAMP = "s[62:63]"
S_FLAG = "s64"
S_SAFE = "s61"
S_BX3 = "s38"
LTHR = 0x4b800000
S_KS, S_X0, S_W0 = "s88", "s89", "s87"
S_TAU, S_TB, S_TQ, S_T4N, S_TMASK, S_TSH, S_TM, S_TS = "s78", "s79", "s43", "s44", "s34", "s49", "s61", "s95"

V_LANE = "v1"
V_WQR = [2, 3, 4, 5]; V_XR = 6; V_XR4 = 14; V_OW4 = 50; V_OWB = 51
V_WQD = [7, 8, 9, 10]; V_XD = [11, 12, 13]; V_TG, V_TI, V_TB, V_TV = 14, 15, 62, 63
V_KD = [16, 17, 18, 19]; V_VD = [20, 21]
V_KR = [22, 23, 24, 25]; V_VR = [26 + i for i in range(8)]
V_WOD = [34, 35, 36, 37]; V_WOR = [38, 39, 40, 41]
V_OW, V_OR, V_OR8, V_PS = 42, 43, 44, 45
VT = [46 + i for i in range(18)]
RB = 64
def grp(t, s): return RB + (t * 4 + s) * 8
def qacc(dt, t): return grp(t, dt >> 1) + 4 * (dt & 1)
def qfrag(t, s): return grp(t, s)
def Sreg(kt, t): return grp(t, kt) + 4
def Preg(par, t): return grp(t, 2 + par) + 4
def cinit(t): return 224 + 4 * t
V_C0, V_C1 = 244, 245
def vr(b, n=4): return f"v[{b}:{b+n-1}]"
def ar(b, n=4): return f"a[{b}:{b+n-1}]"
def oacc(dt, t): return t * 32 + dt * 4
def lacc(t): return 160 + 4 * t
A_ONES = 180
def abuf(i): return 184 + 4 * i
def bbuf(t): return [48, 52, 56, 60, 248][t]
def kbuf(kt, s): return 216 + 4 * (kt * 4 + s)

MF = "v_mfma_f32_16x16x32_bf16"
def mfma(d, a, b, c): return I(f"{MF} {d}, {a}, {b}, {c}")
SCALE = (128 ** -0.5) * 1.4426950408889634
import struct
def f2u(x): return struct.unpack("<I", struct.pack("<f", x))[0]

def NT(): return " nt" if OPT['kvnt'] else ""

def CNTOFF(): return 128 if OPT.get('dbgst') is not None else 0
stamp_id = [0]
def stamp(name):
    if not OPT['stamps']: return []
    i = stamp_id[0]; stamp_id[0] += 1
    STAMPS.append(name)
    return II("s_memrealtime s[66:67]", "s_memtime s[64:65]", "s_waitcnt lgkmcnt(0)",
              f"v_writelane_b32 v0, s66, {i}", f"v_writelane_b32 v0, s64, {32 + i}")
def stamp_dump():
    if not OPT['stamps']: return []
    if OPT.get('dbgst') is not None:
        return II(f"s_cmp_eq_u32 s2, {OPT['dbgst']}", "s_cbranch_scc0 L_nodbg", f"s_cmp_eq_u32 {S_W}, 0", "s_cbranch_scc0 L_nodbg",
                  "v_readlane_b32 s50, v0, 0", "s_nop 3", "v_subrev_u32 v0, s50, v0",
                  f"v_lshlrev_b32 v1, 2, {V_LANE}", "v_cmp_gt_u32 vcc, 16, v1", f"v_lshrrev_b32 v2, 2, v1", "v_mov_b32 v3, 0x1000", "v_cmp_gt_u32 vcc, 16, v2", "s_nop 1",
                  "v_cndmask_b32 v1, v3, v1, vcc", f"buffer_store_dword v0, v1, {SRD_D}, 0 offen", "L_nodbg:")
    return II("s_add_u32 s62, s58, 0x8000000", "s_addc_u32 s63, s59, 0", "s_lshl_b32 s65, s2, 2", f"s_add_u32 s65, s65, {S_W}", "s_lshl_b32 s65, s65, 8",
              f"v_lshlrev_b32 v1, 2, {V_LANE}", "v_add_u32 v1, s65, v1", "global_store_dword v1, v0, s[62:63]")
STAMPS = []

def setup():
    L = []
    A = lambda *x: L.extend(II(*x))
    A("s_cmp_ge_u32 s2, 256", "s_cbranch_scc1 L_main_end")
    if OPT['stamps'] and OPT.get('t0st'): A("s_memrealtime s[100:101]")
    A("s_load_dwordx8 s[68:75], s[0:1], 0", "s_load_dwordx2 s[76:77], s[0:1], 32",
      "s_load_dwordx8 s[80:87], s[0:1], 40", "s_load_dwordx2 s[88:89], s[0:1], 72",
      f"s_load_dwordx2 {S_WS}, s[0:1], 96", "s_load_dwordx4 s[96:99], s[0:1], 80")
    A("s_and_b32 s50, s2, 7", "s_lshr_b32 s51, s2, 3",
      f"s_lshr_b32 {S_BR}, s50, 2",
      "s_and_b32 s52, s50, 3", "s_lshl_b32 s52, s52, 2", "s_and_b32 s53, s51, 3", f"s_add_u32 {S_HP}, s52, s53",
      f"s_lshr_b32 {S_B}, s51, 2",
      f"s_lshl_b32 s52, {S_BR}, 3", f"s_add_u32 {S_CL}, s52, {S_B}")
    A("v_lshrrev_b32 v46, 6, v0", f"v_and_b32 {V_LANE}, 63, v0", "s_nop 0", f"v_readfirstlane_b32 {S_W}, v46", "s_nop 3")
    A(f"s_lshr_b32 {S_U}, {S_W}, 1", f"s_and_b32 {S_QH}, {S_W}, 1", f"s_mov_b32 {S_SAFE}, 0")
    A(lane_consts_q())
    if OPT['stamps'] and OPT.get('t0st'):
        A("s_memrealtime s[66:67]")
    A("s_waitcnt lgkmcnt(0)")
    if OPT['stamps'] and OPT.get('t0st'):
        i0 = stamp_id[0]; stamp_id[0] += 2; STAMPS.extend(["entry", "consts_q"])
        A(f"v_writelane_b32 v0, s100, {i0}", f"v_writelane_b32 v0, s66, {i0+1}", f"v_writelane_b32 v0, s100, {32+i0}", f"v_writelane_b32 v0, s66, {33+i0}")
    A(f"s_cmp_eq_u32 {S_BR}, 1")
    for i in (0, 1, 6, 7): A(f"s_cselect_b32 s{68+i}, s{80+i}, s{68+i}")
    def srd(dst, lo, hi, off_expr_regs, nrec):
        A(f"s_add_u32 s{dst}, s{lo}, s50", f"s_addc_u32 s{dst+1}, s{hi}, 0", f"s_and_b32 s{dst+1}, s{dst+1}, 0xffff")
        A(nrec, f"s_mov_b32 s{dst+3}, 0x20000")
    A(f"s_mul_i32 s50, {S_B}, 147456"); srd(4, 68, 69, None, "s_mov_b32 s6, 147456")
    A(f"s_lshl_b32 s50, {S_HP}, 9"); srd(8, 74, 75, None, "s_sub_u32 s10, 4194304, s50")
    return L

def setup_b():
    L = []
    A = lambda *x: L.extend(II(*x))
    def srd(dst, lo, hi, off_expr_regs, nrec):
        A(f"s_add_u32 s{dst}, s{lo}, s50", f"s_addc_u32 s{dst+1}, s{hi}, 0", f"s_and_b32 s{dst+1}, s{dst+1}, 0xffff")
        A(nrec, f"s_mov_b32 s{dst+3}, 0x20000")
    A(f"s_cmp_eq_u32 {S_SAFE}, 1", "s_cbranch_scc1 L_setup_b_done")
    A(f"s_cmp_eq_u32 {S_BR}, 1")
    for i in (2, 3, 4, 5): A(f"s_cselect_b32 s{68+i}, s{80+i}, s{68+i}")
    A("s_cselect_b32 s76, s88, s76", "s_cselect_b32 s77, s89, s77")
    A(f"s_lshl_b32 s50, {S_B}, 5", f"s_lshl_b32 s51, {S_HP}, 1", "s_add_u32 s50, s50, s51", f"s_add_u32 s50, s50, {S_U}", "s_lshl_b32 s50, s50, 17")
    srd(12, 70, 71, None, "s_mov_b32 s14, 131072")
    srd(16, 72, 73, None, "s_mov_b32 s18, 131072")
    A(f"s_lshl_b32 s50, {S_HP}, 18", f"s_lshl_b32 s51, {S_W}, 8", "s_add_u32 s50, s50, s51")
    A("s_sub_u32 s52, 262144, s51")
    srd(20, 76, 77, None, "s_mov_b32 s22, s52")
    A(f"s_lshl_b32 s50, {S_HP}, 18"); srd(84, 76, 77, None, "s_mov_b32 s86, 262144")
    A(f"s_mul_i32 s50, {S_CL}, 2359296", f"s_add_u32 s50, s50, {hex(OPT['wsoff'])}"); srd(24, 58, 59, None, "s_mov_b32 s26, 2359296")
    if OPT['fused']:
        A(f"s_mul_i32 s50, {S_CL}, 4608", f"s_add_u32 s50, s50, {hex(OPT['wsoff'] + 0x2400000 + 0x40000)}"); srd(68, 58, 59, None, "s_mov_b32 s70, 4608")
        A("s_mov_b32 s72, s98", "s_and_b32 s73, s99, 0xffff", "s_mov_b32 s74, 256", "s_mov_b32 s75, 0x20000")
        A("s_mov_b32 s80, s96", "s_and_b32 s81, s97, 0xffff", "s_mov_b32 s82, 2359296", "s_mov_b32 s83, 0x20000")
        A(f"s_lshl_b32 s50, {S_W}, 7", f"s_lshl_b32 s51, {S_HP}, 2", "s_add_u32 s50, s50, s51",
          f"v_lshlrev_b32 v46, 9, {V_LANE}", "v_add_u32 v46, s50, v46", "v_mov_b32 v47, 0",
          f"buffer_store_dword v47, v46, {SRD_F}, 0 offen sc1" if not OPT.get('x_noclr') else "s_nop 0")
    A("L_setup_b_done:")
    return L

def lane_consts_q():
    L = []; A = lambda *x: L.extend(II(*x))
    l = V_LANE; t0, t1, t2, t3, t4, t5 = [f"v{x}" for x in VT[:6]]
    A(f"v_lshrrev_b32 {t0}, 4, {l}", f"v_bfe_u32 {t1}, {l}, 2, 2", f"v_and_b32 {t2}, 3, {l}", f"v_and_b32 {t3}, 15, {l}")
    w0, w1, w2, w3 = [f"v{x}" for x in V_WQD]
    A(f"v_lshrrev_b32 {t4}, 5, {l}", f"v_bfe_u32 {t5}, {l}, 4, 1",
      f"v_lshlrev_b32 {w0}, 2, {t4}", f"v_xor_b32 {w0}, {w0}, {t3}", f"v_lshlrev_b32 {w0}, 4, {w0}",
      f"v_lshl_add_u32 {w0}, {t5}, 8, {w0}", f"v_lshl_add_u32 {w0}, {t4}, 13, {w0}",
      f"v_xor_b32 {w1}, 0x80, {w0}", f"v_add_u32 {w1}, {2*8192 - 1024}, {w1}",
      f"v_add_u32 {w2}, {4*8192 - 2048}, {w0}", f"v_add_u32 {w3}, {4*8192 - 2048}, {w1}")
    A(f"v_lshlrev_b32 {t4}, 1, {t0}", f"v_mov_b32 {t5}, 0x78", f"v_lshrrev_b32 {t4}, {t4}, {t5}", f"v_and_b32 {t4}, 3, {t4}",
      f"v_xor_b32 {t4}, {t4}, {t2}", f"v_lshlrev_b32 {t4}, 4, {t4}",
      f"v_lshrrev_b32 {t5}, 2, {l}", f"v_lshl_add_u32 {t4}, {t5}, 10, {t4}")
    for j in range(2):
        A(f"v_add_u32 v{V_XD[j]}, {j*16384 - 1024*j}, {t4}")
    A(f"s_lshl_b32 s50, {S_W}, 1", "s_lshr_b32 s50, 0x78, s50", "s_and_b32 s50, s50, 3",
      f"v_xor_b32 {t4}, s50, {t2}", f"v_lshlrev_b32 {t4}, 4, {t4}", f"v_lshl_add_u32 {t4}, {t5}, 10, {t4}",
      f"s_lshl_b32 s50, {S_W}, 12", f"s_lshl_b32 s51, {S_W}, 15", "s_sub_u32 s50, s50, s51", f"s_add_u32 s50, s50, {128*1024}",
      f"v_add_u32 v{V_XD[2]}, s50, {t4}")
    return L

def lane_consts_q2():
    L = []; A = lambda *x: L.extend(II(*x))
    l = V_LANE; t0, t1, t2, t3, t4, t5 = [f"v{x}" for x in VT[:6]]
    A(f"v_lshrrev_b32 {t0}, 4, {l}", f"v_bfe_u32 {t1}, {l}, 2, 2", f"v_and_b32 {t2}, 3, {l}", f"v_and_b32 {t3}, 15, {l}")
    for n in range(4):
        A(f"v_add_u32 {t4}, {4*n}, {t0}", f"v_xor_b32 {t4}, {t4}, {t3}", f"v_lshlrev_b32 {t4}, 4, {t4}",
          f"v_lshl_add_u32 v{V_KD[n]}, {t0}, 8, {t4}")
    for n in range(2):
        A(f"v_add_u32 {t4}, {4*n}, {t0}", f"v_lshlrev_b32 {t4}, 1, {t4}", f"v_xor_b32 {t4}, {t4}, {t3}", f"v_lshlrev_b32 {t4}, 4, {t4}",
          f"v_lshl_add_u32 v{V_VD[n]}, {t0}, 8, {t4}")
    A(f"v_lshl_add_u32 {t4}, {t0}, 3, {t1}", f"v_lshlrev_b32 {t4}, 9, {t4}", f"v_lshl_add_u32 {t4}, {t2}, 4, {t4}",
      f"s_lshl_b32 s50, {S_U}, 8", f"s_add_u32 s50, s50, {WB}", f"v_add_u32 {t4}, s50, {t4}")
    A(f"s_lshl_b32 s51, {S_QH}, 1", f"v_xor_b32 {t1}, s51, {t1}")
    for s in range(4):
        A(f"v_xor_b32 {t5}, {s}, {t1}", f"v_lshl_add_u32 v{V_WQR[s]}, {t5}, 6, {t4}")
    A(f"v_lshrrev_b32 {t4}, 2, {t3}", f"v_lshlrev_b32 {t4}, 1, {t4}", f"v_mov_b32 {t5}, 0x78", f"v_lshrrev_b32 {t4}, {t4}, {t5}", f"v_and_b32 {t4}, 3, {t4}",
      f"v_xor_b32 {t4}, {t4}, {t0}", f"v_lshlrev_b32 {t4}, 4, {t4}", f"v_lshl_add_u32 {t4}, {t3}, 6, {t4}",
      f"s_mul_i32 s50, {S_QH}, 5120", f"s_add_u32 s50, s50, {XB}", f"v_add_u32 v{V_XR}, s50, {t4}", f"v_add_u32 v{V_XR4}, {XB + 4096}, {t4}")
    return L

def lane_consts_rest():
    L = []; A = lambda *x: L.extend(II(*x))
    l = V_LANE; t0, t1, t2, t3, t4, t5, t6 = [f"v{x}" for x in VT[:7]]
    A(f"v_lshrrev_b32 {t0}, 4, {l}", f"v_bfe_u32 {t1}, {l}, 2, 2", f"v_and_b32 {t2}, 3, {l}", f"v_and_b32 {t3}, 15, {l}")
    A(f"s_lshl_b32 s50, {S_U}, 13", f"s_add_u32 s51, s50, {KB}", f"v_lshlrev_b32 {t4}, 8, {t3}", f"v_add_u32 {t4}, s51, {t4}")
    A(f"s_lshl_b32 s51, {S_QH}, 3", f"v_xor_b32 {t6}, s51, {t3}")
    for s in range(4):
        A(f"v_add_u32 {t5}, {4*s}, {t0}", f"v_xor_b32 {t5}, {t5}, {t6}", f"v_lshl_add_u32 v{V_KR[s]}, {t5}, 4, {t4}")
    A(f"v_lshrrev_b32 {t4}, 2, {l}", f"v_and_b32 {t5}, 7, {t4}", f"v_lshlrev_b32 {t5}, 1, {t5}",
      f"v_lshlrev_b32 {t4}, 8, {t4}", f"v_add_u32 {t4}, s50, {t4}",
      f"v_and_b32 {t6}, 1, {t2}", f"v_lshl_add_u32 {t4}, {t6}, 3, {t4}",
      f"v_lshrrev_b32 {t6}, 1, {t2}",
      f"s_lshl_b32 s51, {S_QH}, 3", f"v_xor_b32 {t5}, s51, {t5}")
    for dt in range(8):
        d = f"v{V_VR[dt]}"
        A(f"v_add_u32 {d}, {2*dt}, {t6}", f"v_xor_b32 {d}, {d}, {t5}", f"v_lshl_add_u32 {d}, {d}, 4, {t4}")
    A(f"v_lshlrev_b32 {t4}, 2, {t0}", f"v_xor_b32 {t4}, {t4}, {t3}", f"v_lshlrev_b32 {t4}, 4, {t4}", f"v_lshl_add_u32 {t4}, {t0}, 10, {t4}")
    for n in range(4):
        A(f"v_add_u32 v{V_WOD[n]}, {n*3072}, {t4}")
    A(f"v_lshrrev_b32 {t4}, 2, {l}", f"v_lshlrev_b32 {t4}, 8, {t4}", f"v_lshl_add_u32 {t4}, {t2}, 4, {t4}",
      f"s_lshl_b32 s50, {S_W}, 13", f"s_add_u32 s50, s50, {WOB}", f"v_add_u32 {t4}, s50, {t4}")
    for cp in range(4):
        A(f"v_xor_b32 {t5}, {cp}, {t1}", f"v_lshl_add_u32 v{V_WOR[cp]}, {t5}, 6, {t4}")
    A(f"s_mul_i32 s50, {S_QH}, 40960", f"s_lshl_b32 s51, {S_U}, 12", "s_add_u32 s50, s50, s51",
      f"v_lshlrev_b32 v{V_OR}, 4, {l}", f"v_add_u32 v{V_OW}, s50, v{V_OR}", f"v_add_u32 v{V_OR8}, 0x10000, v{V_OR}")
    A(f"s_lshl_b32 s50, {S_HP}, 10", f"v_add_u32 v{V_PS}, s50, v{V_OR}")
    return L

def dma(voff, srd, soff, imm, nt=False):
    o = f" offset:{imm}" if imm else ""
    return I(f"buffer_load_dwordx4 v{voff}, {srd}, {soff} offen{o}{' nt' if nt else ''} lds")

def kv_group(kind, m0expr, soffreg):
    if kind == 'K':
        return [dma(V_KD[n], SRD_K, soffreg, n * 1024, OPT['kvnt']) for n in range(4)]
    return [dma(V_VD[n & 1], SRD_V, soffreg, n * 1024, OPT['kvnt']) for n in range(4)]

def kv_tile_full_unused(kind, j):
    L = []
    base = (KB + kphys(j)) if kind == 'K' else (VB + vphys(j))
    for gI in range(2):
        L += II(f"s_lshl_b32 s50, {S_U}, 13", f"s_add_u32 m0, s50, {base + gI*4096}", f"s_mov_b32 s51, {j*8192 + gI*4096}")
        L += kv_group(kind, None, "s51")
    return L

def stage_setup_scalar():
    rot = OPT['rot']
    R = II("s_lshr_b32 s50, s2, 3", "s_and_b32 s51, s50, 3", "s_lshr_b32 s50, s50, 2")
    if rot in (True, 1):   R += II("s_lshl_b32 s51, s51, 2", "s_lshl_b32 s50, s50, 1", "s_add_u32 s52, s50, s51")
    elif rot == 2:         R += II("s_lshr_b32 s50, s50, 1", "s_add_u32 s52, s50, s51", "s_lshl_b32 s52, s52, 2")
    elif rot == 3:         R += II("s_add_u32 s52, s50, s51", "s_lshl_b32 s52, s52, 2")
    elif rot == 4:         R += II("s_lshr_b32 s50, s50, 2", "s_lshl_b32 s50, s50, 3", "s_lshl_b32 s51, s51, 2", "s_add_u32 s52, s50, s51")
    elif rot == 5:         R += II("s_mul_i32 s50, s50, 3", "s_lshl_b32 s51, s51, 2", "s_add_u32 s52, s50, s51")
    elif rot == 6:         R += II("s_lshl_b32 s52, s50, 1")
    elif rot == 7:         R += II("s_lshl_b32 s50, s50, 1", "s_and_b32 s51, s51, 1", "s_lshl_b32 s51, s51, 3", "s_add_u32 s52, s50, s51")
    else:                  R += II("s_mov_b32 s52, 0")
    return R + II("s_and_b32 s52, s52, 15",
              f"s_lshl_b32 s50, s52, 6", f"s_lshl_b32 s51, {S_W}, 15", f"s_add_u32 {S_SOFFX}, s50, s51",
              f"s_lshl_b32 s50, s52, 18", f"s_lshl_b32 s51, {S_W}, 16", f"s_add_u32 {S_SOFFW0}, s50, s51",
              f"s_lshl_b32 s50, {S_W}, 12", f"s_add_u32 {S_BW}, s50, {WB}",
              f"s_lshl_b32 s50, {S_W}, 11", f"s_add_u32 {S_BX}, s50, {XB}",
              f"s_lshl_b32 s50, {S_W}, 8", f"s_add_u32 {S_BX3}, s50, {XB + 8192}",
              )
def kv_setup_scalar():
    return II(f"s_lshl_b32 {S_TQ}, {S_QH}, 12",
              f"s_lshl_b32 s50, {S_U}, 13", f"s_add_u32 s50, s50, {S_TQ}", f"s_add_u32 {S_MK}, s50, {KB}", f"s_add_u32 {S_MV}, s50, {VB}")

def stage_dma_list(slot):
    seq = []
    seq.append(([I(f"s_add_u32 m0, {S_BW}, {slot*16384}")], dma(V_WQD[0], SRD_WQ, S_SOFFW0, 0, OPT['wnt'])))
    for j in range(1, 4): seq.append(([], dma(V_WQD[j], SRD_WQ, S_SOFFW0, j * 1024, OPT['wnt'])))
    seq.append(([I(f"s_add_u32 m0, {S_BX}, {slot*9216}")], dma(V_XD[0], SRD_X, S_SOFFX, 0, OPT['xnt'])))
    seq.append(([], dma(V_XD[1], SRD_X, S_SOFFX, 1024, OPT['xnt'])))
    q = dma(V_XD[2], SRD_X, S_SOFFX, 0, OPT['xnt'])
    seq.append(([I(f"s_add_u32 m0, {S_BX3}, {slot*9216}")], Masked(q, 0xffff)))
    return seq

def place_dma(S, seq, gaps):
    k = 0
    last = None
    for e in seq:
        if e[0]:
            for p in e[0]: S.put(gaps[k], p)
            k += 1
        S.put(gaps[k], e[1]); last = gaps[k]
        if len(e) > 2:
            for p in e[2]: S.put(gaps[k] + 1, p)
        k += 1
    return last

def stage_advance_w():
    return II(f"s_add_u32 {S_SOFFW0}, {S_SOFFW0}, 262144", f"s_and_b32 {S_SOFFW0}, {S_SOFFW0}, 0x3fffff")
def stage_advance_x():
    return II(f"s_add_u32 {S_SOFFX}, {S_SOFFX}, 64", f"s_and_b32 {S_SOFFX}, {S_SOFFX}, 0xfffffbff")
def stage_advance(): return stage_advance_w() + stage_advance_x()

def straight(seq):
    L = []
    for e in seq:
        L += e[0]
        if e[0]: L += II("s_nop 0")
        L.append(e[1])
        if len(e) > 2: L += e[2]
    return L

def stage_issue_straight(slot):
    return straight(stage_dma_list(slot)) + stage_advance()

def wq_read(dt, h2, slot):
    if OPT.get('x_noread'): return I('s_nop 0')
    s, hf = dt >> 1, dt & 1
    b = abuf(dt) + 2 * h2
    off = slot * 16384 + hf * 8 + h2 * 2048
    return I(f"ds_read_b64_tr_b16 {ar(b,2)}, v{V_WQR[s]}" + (f" offset:{off}" if off else ""))
def x_read(t, slot):
    if OPT.get('x_noread'): return I('s_nop 0')
    off = slot * 9216 + (0 if t == 4 else t * 1024)
    return I(f"ds_read_b128 {vr(bbuf(t))}, v{V_XR4 if t == 4 else V_XR}" + (f" offset:{off}" if off else ""))
def q_mfma(dt, t):
    if OPT.get('x_t4') and t == 4: return I("s_nop 3")
    if OPT.get('x_t45') and t == 4 and dt >= 4: return I("s_nop 3")
    return mfma(vr(qacc(dt, t)), ar(abuf(dt)), vr(bbuf(t)), vr(qacc(dt, t)))

def half_group(kind, j):
    if kind == 'K':
        pre = II(f"s_add_u32 m0, {S_MK}, {kphys(j)}", f"s_add_u32 s51, {S_TQ}, {j*8192}")
    else:
        pre = II(f"s_add_u32 m0, {S_MV}, {vphys(j)}", f"s_add_u32 s51, {S_TQ}, {j*8192}")
    g = kv_group(kind, None, "s51")
    return [(pre, g[0])] + [([], x) for x in g[1:]]

def put_dmas(S, seq, gaps):
    prev = -1
    for e, g in zip(seq, gaps):
        if e[0]:
            assert g - 1 > prev or prev < 0, (g, prev)
            for p in e[0]: S.put(g - 1, p)
        S.put(g, e[1])
        if len(e) > 2:
            for p in e[2]: S.put(g + 1, p)
        prev = g
    assert len(seq) <= len(gaps)

QTAIL = (4, 5, 6, 7)
def q_tail(): return [q_mfma(dt, t) for t in range(4) for dt in QTAIL]
SRD_T = "s[96:99]"; V_T = [10, 11, 12, 13]; S_TM, S_TS = "s35", "s36"
V_TB2 = [252, 253, 254, 255]
V_TB = [244, 245, 246, 247]
DUMMY = 151552
def burst_list():
    g = [dma(V_TB[n], SRD_T, S_TS, n * 1024, OPT['kvnt']) for n in range(4)]
    return [([I(f"s_mov_b32 m0, {S_TM}")], g[0])] + [([], x) for x in g[1:]]

def q_body(ks, with_dma, burst=False, extra_dma=None, wait=None):
    slot = ks & 3
    ms = q_tail() + [q_mfma(dt, t) for t in range(5) for dt in range(4)]
    S = Sched(ms)
    a = lambda dt, h: wq_read(dt, h, slot)
    xr = lambda t: x_read(t, slot)
    plan = {0: a(0,0), 1: a(0,1), 2: a(1,0), 3: a(1,1), 4: xr(0), 5: a(2,0), 7: a(2,1), 8: xr(1), 9: a(3,0), 11: a(3,1),
            12: xr(2), 13: xr(4), 16: xr(3), 17: a(4,0), 19: a(4,1), 20: a(5,0), 21: a(5,1), 23: a(6,0), 24: a(6,1), 25: a(7,0), 27: a(7,1)}
    for g, ins in plan.items(): S.put(g, ins)
    if with_dma:
        put_dmas(S, stage_dma_list((ks + 3) & 3), [6, 10, 14, 18, 22, 26, 29])
        w = stage_advance_w(); x = stage_advance_x()
        S.put(19, w[0]); S.put(20, w[1]); S.put(30, x[0]); S.put(31, x[1])
    if burst:
        put_dmas(S, burst_list(), [32, 33, 34, 35]) if False else None
        put_dmas(S, burst_list(), [15, 28, 31, 33])  if False else None
    if extra_dma:
        put_dmas(S, extra_dma, [6, 10, 14, 18, 22, 26, 30, 32][:len(extra_dma)])
    return S

def q_finish(S, wait, wg=33):
    S.put(wg, tr_mark(), f"s_waitcnt vmcnt({wait}) lgkmcnt(0)", tr_commit())
    S.put(wg + 1, "s_barrier")
    seq, pend = lgkm_waits(S.flat())
    assert not pend
    if OPT['verbose']: print(S.report("q_body"))
    return seq

def tr_mark():
    return [Raw("s_memtime s[100:101]")] if OPT.get('trace') else []
def tr_commit():
    return [Raw("s_mov_b32 s95, m0\n  s_mov_b32 m0, s94\n  s_nop 0\n  v_writelane_b32 v0, s100, m0\n  s_mov_b32 m0, s95\n  s_add_u32 s94, s94, 1")] if OPT.get('trace') else []
def tr_dump():
    if not OPT.get('trace'): return []
    return II("s_add_u32 s66, s58, 0x9000000", "s_addc_u32 s67, s59, 0", "s_lshl_b32 s50, s2, 2", f"s_add_u32 s50, s50, {S_W}", "s_lshl_b32 s50, s50, 8",
              f"v_lshlrev_b32 v253, 2, {V_LANE}", "v_add_u32 v253, s50, v253", "global_store_dword v253, v0, s[66:67]")

def zero_init():
    L = II("v_mov_b32 v244, 0", "v_mov_b32 v245, 0", "v_mov_b32 v246, 0", "v_mov_b32 v247, 0", "s_nop 1")
    for r in range(RB, RB + 160, 16): L += II(f"v_mfma_f32_32x32x16_bf16 v[{r}:{r+15}], v[244:247], v[244:247], 0")
    for r in range(0, 256, 16): L += II(f"v_mfma_f32_32x32x16_bf16 a[{r}:{r+15}], v[244:247], v[244:247], 0")
    return L

def phase_q():
    L = []; A = lambda *x: L.extend(II(*x))
    A("L_phase_q:")
    A(stage_setup_scalar(), stage_issue_straight(0))
    A(setup_b())
    A(kv_setup_scalar())
    A(lane_consts_q2())
    A(stamp("q_issued"))
    A(zero_init())
    A(lane_consts_rest())
    A(f"s_mov_b32 {S_CNT}, 0")
    if OPT.get('trace'): A("s_mov_b32 s94, 1", "s_memtime s[100:101]", "s_waitcnt lgkmcnt(0)", "v_writelane_b32 v0, s100, 0")
    A(f"v_mov_b32 v{VT[0]}, 0x3f803f80")
    for r in range(4): A(f"v_accvgpr_write_b32 a{A_ONES + r}, v{VT[0]}")
    for t in range(5):
        for k in range(4): A(f"v_mov_b32 v{bbuf(t)+k}, 0")
    A("s_mov_b32 s96, s12", "s_mov_b32 s97, s13", "s_mov_b32 s98, s14", "s_mov_b32 s99, s15")
    for n in range(4): A(f"v_mov_b32 v{V_TB[n]}, v{V_KD[n]}")
    if OPT.get('stst'): A(stamp("consts"))
    A(stage_issue_straight(1))
    if OPT.get('stst'): A(stamp("s1_iss"))
    A("s_waitcnt vmcnt(7)")
    if OPT.get('stst'): A(stamp("s0_land"))
    A("s_barrier")
    if OPT['fused']:
        A(f"s_cmp_eq_u32 {S_SAFE}, 1", "s_cbranch_scc1 L_no_arrive")
        A(f"s_lshl_b32 s50, {S_CL}, 2", f"s_add_u32 s50, s50, {CNTOFF()}", f"s_lshl_b32 s51, {S_W}, 14", "s_add_u32 s50, s50, s51",
          f"v_lshlrev_b32 v46, 8, {V_LANE}", "v_add_u32 v46, s50, v46", "v_mov_b32 v47, 1",
          f"buffer_atomic_add v47, v46, {SRD_D}, 0 offen sc1")
        A("L_no_arrive:")
    A(stage_issue_straight(2))
    if OPT.get('stst'): A(stamp("s2_iss"))
    A(f"s_add_u32 {S_TM}, {S_MK}, {kphys(0)}", f"s_mov_b32 {S_TS}, {S_TQ}")
    A(stamp("q_start"))
    l2 = OPT['l2pf']
    if l2:
        A(f"s_add_u32 s37, {S_TQ}, {4*8192}", "s_mov_b32 s92, s12", "s_mov_b32 s93, s13", "s_mov_b32 s94, s14", "s_mov_b32 s95, s15",
          "s_mov_b64 vcc, -1")
    bodies = []
    QOOL = []
    for k in range(4):
        S = q_body(k, True)
        if k == 1:
            put_dmas(S, burst_list(), [32, 33, 34, 35])
        if k == 3 and l2:
            g = [dma(V_OR, "s[92:95]", "s37", n * 1024, False) for n in range(4)]
            put_dmas(S, [([I(f"s_mov_b32 m0, {DUMMY}")], g[0])] + [([], x) for x in g[1:]], [32, 33, 34, 35])
        if l2:
            n_steady, n_first = [(18, 14), (22, 18), (18, 18), (22, 22)][k]
        else:
            n_steady = n_first = 14 if k == 0 else 18
        if OPT.get('b0st') and k == 0:
            for nm, g in (("g5", 5), ("g6", 7), ("g15", 15), ("g20", 20), ("g30", 31)):
                S.put(g, Raw(f"s_cmp_eq_u32 {S_CNT}, 0\n  s_cbranch_scc0 L_b0_{nm}\n  " + "\n  ".join(x.txt for x in stamp(nm)) + f"\nL_b0_{nm}:"))
        late = (k == 1) or (k == 3 and l2)
        w = tr_mark() + II(f"s_waitcnt vmcnt({n_steady}) lgkmcnt(0)")
        if n_first != n_steady:
            w += II(f"s_cbranch_vccnz L_q_first{k}", f"L_q_back{k}:")
            QOOL += II(f"L_q_first{k}:", f"s_waitcnt vmcnt({n_first})", f"s_branch L_q_back{k}")
        w += tr_commit()
        if late:
            seq, pend = lgkm_waits(S.flat())
            seq += w + II("s_barrier")
        else:
            S.put(33, w); S.put(34, "s_barrier")
            seq, pend = lgkm_waits(S.flat())
            assert not pend
        if OPT['verbose']: print(S.report("q_body"))
        bodies.append(seq)
    hist = bodies[3][-24:]
    A(".p2align 6", "L_q_loop:")
    for bi, b in enumerate(bodies):
        b2, n = hazards(b, history=hist); L.extend(b2); hist = b2[-24:]
        if OPT.get('stst') and bi < 2: A(f"s_cmp_eq_u32 {S_CNT}, 0", f"s_cbranch_scc0 L_nost{bi}", stamp(f"body{bi}"), f"L_nost{bi}:")
    A(f"s_add_u32 {S_TM}, {S_TM}, 16384", f"s_add_u32 {S_TS}, {S_TS}, 8192", f"s_add_u32 {S_CNT}, {S_CNT}, 1")
    if l2:
        A("s_mov_b64 vcc, 0", f"s_cmp_eq_u32 {S_CNT}, 1", "s_cbranch_scc1 L_q_to1", "L_q_to1_done:")
    A(f"s_cmp_eq_u32 {S_CNT}, 2", "s_cbranch_scc0 L_q_tov_done",
      "s_mov_b32 s96, s16", "s_mov_b32 s97, s17", f"s_add_u32 {S_TM}, {S_MV}, {vphys(0)}", f"s_mov_b32 {S_TS}, {S_TQ}")
    if l2: A("s_mov_b32 s92, s12", "s_mov_b32 s93, s13", f"s_add_u32 s37, {S_TQ}, {5*8192}")
    for n in range(4): A(f"v_mov_b32 v{V_TB[n]}, v{V_VD[n & 1]}")
    A("L_q_tov_done:", f"s_cmp_lt_u32 {S_CNT}, 3", "s_cbranch_scc1 L_q_loop")
    OOL = []
    if l2: OOL += II("L_q_to1:", "s_mov_b32 s92, s16", "s_mov_b32 s93, s17", f"s_add_u32 s37, {S_TQ}, {3*8192}", "s_branch L_q_to1_done")
    OOL += QOOL
    b, n = hazards(q_finish(q_body(12, True), 18 if l2 else 14), history=hist); L.extend(b)
    b, n = hazards(q_finish(q_body(13, False, extra_dma=half_group('V', 1)), 15 if l2 else 11), history=b[-24:]); L.extend(b)
    b, n = hazards(q_finish(q_body(14, False, extra_dma=half_group('K', 2) + half_group('V', 2)), 12), history=b[-24:]); L.extend(b)
    b, n = hazards(q_finish(q_body(15, False), 12), history=b[-24:]); L.extend(b)
    if OOL:
        A("s_branch L_q_after_ool")
        L.extend(OOL)
        A("L_q_after_ool:")
    A(stamp("q_loop_done"))
    return L

def q_tiles(s): return range(5) if s < 2 else range(4)
def q_scale(ss):
    return [I(f"v_pk_mul_f32 {vr(grp(t,s)+2*k,2)}, {vr(grp(t,s)+2*k,2)}, {vr(V_C0,2)}") for s in ss for t in q_tiles(s) for k in range(4)]
def q_cvt(ss):
    return [I(f"v_cvt_pk_bf16_f32 v{grp(t,s)+k}, v{grp(t,s)+2*k}, v{grp(t,s)+2*k+1}") for s in ss for t in q_tiles(s) for k in range(4)]
QX = 155648

def transition():
    L = []; A = lambda *x: L.extend(II(*x))
    A(f"s_add_u32 {S_SOFFK}, {S_TQ}, {5*8192}", f"s_add_u32 {S_SOFFV}, {S_TQ}, {4*8192}")
    A(f"v_mov_b32 v{V_C0}, {hex(f2u(SCALE))}", f"v_mov_b32 v{V_C1}, {hex(f2u(SCALE))}")
    A(f"s_lshl_b32 s50, {S_W}, 11", f"s_add_u32 s50, s50, {QX}", f"v_lshlrev_b32 v7, 4, {V_LANE}", "v_add_u32 v8, s50, v7",
      "s_xor_b32 s50, s50, 2048", "v_add_u32 v9, s50, v7")
    k3 = half_group('K', 3)
    seq = [k_read(kt, s, 0) for kt in range(2) for s in range(4)]
    sc = q_scale((0, 1))
    seq += II("s_nop 3") + sc
    S = Sched(q_tail())
    cv = q_cvt((0, 1))
    sh = lambda c: any(f"v{grp(4,s)+k}," in c.txt.split()[1] + "," for s in (0, 1) for k in range(4))
    cv = [c for c in cv if sh(c)] + [c for c in cv if not sh(c)]
    S.spread(cv, [min(i * 2 // 5, 15) for i in range(40)])
    S.put(5, f"ds_write_b128 v8, {vr(grp(4,0))}"); S.put(7, f"ds_write_b128 v8, {vr(grp(4,1))} offset:1024")
    seq += S.flat()
    seq += II("s_waitcnt lgkmcnt(0)", "s_barrier", f"ds_read_b128 {vr(grp(4,2))}, v9", f"ds_read_b128 {vr(grp(4,3))}, v9 offset:1024")
    sc = q_scale((2, 3))
    seq += II("s_nop 3") + k3[0][0] + sc[:8] + [k3[0][1]] + sc[8:16] + [k3[1][1]] + sc[16:24] + [k3[2][1]] + sc[24:] + [k3[3][1]]
    qk = lambda kt, ss, c: [qk_mfma(kt, s, t, c) for s in ss for t in range(5)]
    S = Sched(qk(0, (0, 1), lambda t: "0") + qk(0, (2, 3), lambda t: "0"))
    S.spread(q_cvt((2, 3)), [min(i * 5 // 16, 9) for i in range(32)])
    S.spread([f"v_mov_b32 v{Preg(1,t)+k}, 0" for t in range(5) for k in range(4)], [10 + i // 2 for i in range(20)])
    seq += S.flat()
    seq += straight(half_group('V', 3))
    seq, _ = lgkm_waits(seq, final_zero=True)
    seq, n = hazards(seq); L.extend(seq)
    A(stamp("qk0_done"))
    A(f"s_cmp_eq_u32 {S_SAFE}, 1", "s_cbranch_scc1 L_safe_max")
    T = [2, 3, 4, 5, 6]
    U = [7, 8, 9, 10, 11]
    E = II("s_nop 5")
    for t in range(5): E += II(f"v_max3_f32 v{T[t]}, v{Sreg(0,t)}, v{Sreg(0,t)+1}, v{Sreg(0,t)+2}")
    for t in range(5): E += II(f"v_max_f32 v{T[t]}, v{T[t]}, v{Sreg(0,t)+3}")
    E += row_max_finish(T, U)
    S = Sched(qk(1, range(4), lambda t: vr(cinit(t))))
    sub = [f"v_add_f32 v{Sreg(0,t)+k}, v{Sreg(0,t)+k}, v{cinit(t)}" for t in range(5) for k in range(4)]
    ex = [f"v_exp_f32 v{Sreg(0,t)+k}, v{Sreg(0,t)+k}" for t in range(5) for k in range(4)]
    S.spread(sub, [i // 2 for i in range(20)])
    S.spread(ex, [min(2 + i, 19) for i in range(20)])
    E += S.flat()
    E += II("s_barrier")
    E += II("s_nop 3") + exps(1)
    E, n = hazards(E, history=L[-24:]); L.extend(E)
    A("L_max_done:")
    A(straight(half_group('K', 4)))
    return L

def row_max_finish(T, U):
    E = []
    for sw in ("v_permlane32_swap_b32", "v_permlane16_swap_b32"):
        for t in range(5): E += II(f"v_mov_b32 v{U[t]}, v{T[t]}")
        for t in range(5): E += II(f"{sw} v{T[t]}, v{U[t]}")
        for t in range(5): E += II(f"v_max_f32 v{T[t]}, v{T[t]}, v{U[t]}")
    for t in range(5):
        for k in range(4): E += II(f"v_sub_f32 v{cinit(t)+k}, 0, v{T[t]}")
    return E

def safe_paths():
    L = []; A = lambda *x: L.extend(II(*x))
    T = [2, 3, 4, 5, 6]; U = [7, 8, 9, 10, 11]
    ab = [(Sreg(0, t), Sreg(1, t)) for t in range(5)]
    A("L_safe_max:")
    for t in range(5): A(f"v_mov_b32 v{T[t]}, 0xff800000")
    A(f"s_mov_b32 {S_CNT}, 0")
    A("L_safe_loop:")
    A("s_waitcnt vmcnt(0) lgkmcnt(0)", "s_barrier")
    A(f"s_and_b32 s50, {S_CNT}, 15", "s_lshl_b32 s50, s50, 13", f"s_add_u32 s51, s50, {S_TQ}", f"s_add_u32 m0, {S_MK}, {kphys(0)}", "s_nop 0")
    A(kv_group('K', None, "s51"))
    A("s_waitcnt vmcnt(0)", "s_barrier")
    A([k_read(kt, s, 0) for kt in range(2) for s in range(4)], "s_waitcnt lgkmcnt(0)")
    A(f"s_cmp_eq_u32 {S_CNT}, 16", "s_cbranch_scc1 L_safe_last")
    A([qk_mfma(kt, s, t, lambda t: "0") for kt in range(2) for s in range(4) for t in range(5)], "s_nop 7", "s_nop 7")
    for t, (a, b) in enumerate(ab):
        A(f"v_max3_f32 v{T[t]}, v{T[t]}, v{a}, v{a+1}", f"v_max3_f32 v{T[t]}, v{T[t]}, v{a+2}, v{a+3}",
          f"v_max3_f32 v{T[t]}, v{T[t]}, v{b}, v{b+1}", f"v_max3_f32 v{T[t]}, v{T[t]}, v{b+2}, v{b+3}")
    A(f"s_add_u32 {S_CNT}, {S_CNT}, 1", f"s_cmp_lt_u32 {S_CNT}, 16", "s_cbranch_scc1 L_safe_loop")
    E, n = hazards(II("s_nop 3") + row_max_finish(T, U)); L.extend(E)
    A("s_branch L_safe_loop")
    A("L_safe_last:", "s_nop 3")
    A([qk_mfma(kt, s, t, lambda t: vr(cinit(t))) for kt in range(2) for s in range(4) for t in range(5)], "s_nop 7", "s_nop 7")
    A("s_barrier")
    for t, (a, b) in enumerate(ab):
        for base in (a, b):
            for k in range(4): A(f"v_exp_f32 v{base+k}, v{base+k}")
    A("s_nop 1", "s_branch L_max_done")
    if OPT['fused']:
        A("L_cnt_spin:", f"s_mov_b32 s53, {SPIN}", "L_cnt_spin_loop:", "s_sleep 2",
          f"buffer_load_dword v15, v14, {SRD_D}, 0 offen sc1", "s_waitcnt vmcnt(0)", "v_readfirstlane_b32 s52, v15", "s_nop 3",
          "s_cmp_ge_u32 s52, 16", "s_cbranch_scc1 L_cnt_ok", "s_sub_u32 s53, s53, 1", "s_cmp_lg_u32 s53, 0", "s_cbranch_scc1 L_cnt_spin_loop", "s_branch L_cnt_ok")
    A("L_restart:", f"s_mov_b32 {S_SAFE}, 1", "s_waitcnt vmcnt(0) lgkmcnt(0)", "s_barrier")
    A(lane_consts_q())
    A("s_branch L_phase_q")
    return L

def k_read(kt, s, slotk):
    off = kphys(slotk) + kt * 4096
    return I(f"ds_read_b128 {ar(kbuf(kt, s))}, v{V_KR[s]}" + (f" offset:{off}" if off else ""))
def v_read(dt, h, slotv):
    off = vphys(slotv) + h * 4096
    return I(f"ds_read_b64_tr_b16 {ar(abuf(dt) + 2*h, 2)}, v{V_VR[dt]}" + (f" offset:{off}" if off else ""))
def qk_mfma(kt, s, t, first_c):
    c = first_c(t) if s == 0 else vr(Sreg(kt, t))
    return mfma(vr(Sreg(kt, t)), ar(kbuf(kt, s)), vr(qfrag(t, s)), c)
def pv_mfma(dt, t, par):
    return mfma(ar(oacc(dt, t)), ar(abuf(dt)), vr(Preg(par, t)), ar(oacc(dt, t)))
def rs_mfma(t, par):
    return mfma(ar(lacc(t)), ar(A_ONES), vr(Preg(par, t)), ar(lacc(t)))
def cvts(par):
    out = []
    for kt in range(2):
        for t in range(5):
            s = Sreg(kt, t); p = Preg(par, t) + 2 * kt
            out.append(I(f"v_cvt_pk_bf16_f32 v{p}, v{s}, v{s+1}"))
            out.append(I(f"v_cvt_pk_bf16_f32 v{p+1}, v{s+2}, v{s+3}"))
    return out
def exps(kt):
    return [I(f"v_exp_f32 v{Sreg(kt,t)+i}, v{Sreg(kt,t)+i}") for t in range(5) for i in range(4)]

def att_dma(j, dyn=False):
    seq = []
    if j == 0 or j > 12: return seq
    if True:
        pre = II(f"s_add_u32 m0, {S_MK}, {kphys(j + 4)}")
        g = kv_group('K', None, S_SOFFK)
        seq += [(pre, g[0])] + [([], x) for x in g[1:]]
        seq[-1] = (seq[-1][0], seq[-1][1], II(f"s_add_u32 {S_SOFFK}, {S_SOFFK}, 8192"))
    if j + 3 <= 15:
        pre = II(f"s_add_u32 m0, {S_MV}, {vphys(j + 3)}")
        g = kv_group('V', None, S_SOFFV)
        s2 = [(pre, g[0])] + [([], x) for x in g[1:]]
        s2[-1] = (s2[-1][0], s2[-1][1], II(f"s_add_u32 {S_SOFFV}, {S_SOFFV}, 8192"))
        seq += s2
    return seq

def wo_dma(ks, slot_base_imm):
    seq = []
    for gI in range(2):
        pre = II(f"s_lshl_b32 s50, {S_W}, 13", f"s_add_u32 m0, s50, {slot_base_imm + gI*4096}", f"s_mov_b32 s51, {ks*32768 + gI*16384}")
        for n in range(4):
            seq.append((pre if n == 0 else [], dma(V_WOD[n], SRD_WO, "s51", n * 1024, OPT["wont"])))
    return seq

def att_body(j, vmwait, extra_dma=None):
    par_old, par_new = (j - 1) & 1, j & 1
    ms = [pv_mfma(dt, t, par_old) for dt in (5, 6, 7) for t in range(5)] + [rs_mfma(t, par_old) for t in range(5)]
    ms += [qk_mfma(kt, s, t, lambda t: vr(cinit(t))) for kt in range(2) for s in range(4) for t in range(5)]
    ms += [pv_mfma(dt, t, par_new) for dt in range(5) for t in range(5)]
    S = Sched(ms)
    cv = cvts(par_new)
    S.spread(cv, [1, 1, 3, 3, 6, 6, 8, 8, 11, 11, 13, 13, 16, 16, 18, 18, 21, 21, 23, 23])
    S.spread([k_read(kt, s, j + 1) for kt in range(2) for s in range(4)], [0, 2, 5, 7, 10, 12, 15, 17])
    vr_ = [v_read(dt, h, j) for dt in range(8) for h in range(2)]
    S.spread(vr_, [20, 22, 25, 26, 27, 28, 30, 31, 32, 33, 35, 36, 37, 38, 40, 61])
    d = att_dma(j) + (extra_dma or [])
    put_dmas(S, d, [4, 9, 14, 19, 24, 29, 34, 39])
    S.spread(exps(0), list(range(41, 61)))
    S.spread(exps(1), list(range(62, 82)))
    seq = S.flat()
    seq, pend = lgkm_waits(seq)
    seq += tr_mark() + II(f"s_waitcnt vmcnt({vmwait}) lgkmcnt(0)") + tr_commit() + II("s_barrier")
    if OPT['verbose']: print(S.report(f"att_body {j}"))
    return seq

WO1 = [192, 200, 208, 216, 224, 228, 232, 236]
def wofrag(ks, m, n=4, off=0):
    if ks == 0: return ar(216 + 4 * m + off, n)
    if ks == 1: return vr(WO1[m] + off, n)
    return ar((ks - 2) * 32 + 4 * m + off, n)
def wo_read(ks, m, h):
    cp, hf = m >> 1, m & 1
    off = (32768 if (ks & 1) == 0 else 0) + hf * 8 + h * 4096
    return I(f"ds_read_b64_tr_b16 {wofrag(ks, m, 2, 2*h)}, v{V_WOR[cp]}" + (f" offset:{off}" if off else ""))

def wo_prefetch(shift=0):
    n = OPT['pfw']
    L = II(f"s_add_u32 s50, {S_B}, {shift}", "s_and_b32 s50, s50, 7", "s_lshl_b32 s50, s50, 15", f"s_lshl_b32 s51, {S_W}, 13", "s_add_u32 s50, s50, s51")
    nt = " nt" if OPT['pfnt'] else ""
    if n == 8:
        L += II(f"v_lshlrev_b32 v46, 4, {V_LANE}")
        for i in range(8):
            L += II(f"s_add_u32 s51, s50, {i*1024}", f"buffer_load_dwordx4 v[252:255], v46, s[84:87], s51 offen{nt}")
    else:
        sh = {1: 7, 2: 6, 4: 5}[n]
        L += II(f"v_lshlrev_b32 v46, {sh}, {V_LANE}")
        for i in range(n):
            L += II(f"s_add_u32 s51, s50, {i * (64 << sh)}", f"buffer_load_dword v47, v46, s[84:87], s51 offen{nt}")
    return L

ATT_OOL = []
def attention():
    L = []; A = lambda *x: L.extend(II(*x))
    L += transition()
    A(stamp("att_start"))
    A(f"s_mov_b32 {S_CNT}, 0")
    b0, n = hazards(att_body(0, 16), history=L[-24:]); L.extend(b0)
    bodies = [att_body(j, 16) for j in range(1, 5)]
    hist = bodies[3][-24:]
    A(".p2align 6", "L_att_loop:")
    OOLA = []
    for i, b in enumerate(bodies):
        if i == 3:
            A(f"s_cmp_eq_u32 {S_CNT}, 2", "s_cbranch_scc0 L_att_nok_done")
            for n in range(4): A(f"v_add_u32 v{V_KD[n]}, 0x40000000, v{V_KD[n]}")
            A("L_att_nok_done:")
        b2, n = hazards(b, history=hist); L.extend(b2); hist = b2[-24:]
    if 0 <= OPT['pf'] < 3:
        A(f"s_cmp_eq_u32 {S_CNT}, {OPT['pf']}", "s_cbranch_scc0 L_att_nopf", wo_prefetch(), (wo_prefetch(4) if OPT.get('pfdup') else []), "L_att_nopf:")
    A(f"s_add_u32 {S_CNT}, {S_CNT}, 1", f"s_cmp_lt_u32 {S_CNT}, 3", "s_cbranch_scc1 L_att_loop")
    ATT_OOL.clear(); ATT_OOL.extend(OOLA)
    b, n = hazards(att_body(13, 16, extra_dma=wo_dma(0, WOA)), history=hist); L.extend(b); hist = b[-24:]
    if OPT.get('pf2nd'): A(wo_prefetch(4))
    b, n = hazards(att_body(14, 16, extra_dma=wo_dma(1, WOB)), history=hist); L.extend(b); hist = b[-24:]
    A(stamp("att_loop_done"))
    ms = [pv_mfma(dt, t, 0) for dt in (5, 6, 7) for t in range(5)] + [rs_mfma(t, 0) for t in range(5)]
    ms += [pv_mfma(dt, t, 1) for dt in range(8) for t in range(5)] + [rs_mfma(t, 1) for t in range(5)]
    S = Sched(ms)
    S.spread(cvts(1), list(range(0, 20)))
    S.spread([v_read(dt, h, 15) for dt in range(5) for h in range(2)], list(range(0, 10)))
    S.spread([v_read(dt, h, 15) for dt in (5, 6, 7) for h in range(2)], list(range(15, 21)))
    S.put(20, "s_waitcnt vmcnt(8)")
    S.spread([wo_read(0, m, h) for m in range(8) for h in range(2)], [21 + i // 2 for i in range(16)])
    S.put(28, "s_waitcnt vmcnt(0)")
    S.spread([wo_read(1, m, h) for m in range(8) for h in range(2)], [29 + i // 2 for i in range(16)])
    S.put(38, "s_waitcnt lgkmcnt(0)")
    if OPT['fused']:
        S.put(36, f"s_lshl_b32 s50, {S_CL}, 2", f"s_add_u32 s50, s50, {CNTOFF()}")
        S.spread([f"v_lshlrev_b32 v14, 8, {V_LANE}", "v_add_u32 v14, s50, v14"], [37, 37])
        S.put(38, f"buffer_load_dword v15, v14, {SRD_D}, 0 offen sc1")
    put_dmas(S, wo_dma(2, WOA), [41, 44, 47, 50, 54, 57, 60, 63])
    seq, pend = lgkm_waits(S.flat(), final_zero=True)
    seq, n = hazards(seq, history=hist); L.extend(seq)
    A("s_barrier")
    A("s_nop 3")
    A(stamp("att_done"))
    return L

def wo_dma_t(ks):
    d = wo_dma(ks, WOA if (ks & 1) == 0 else WOB)
    for e in d: e[1].tag = f"wo{ks}"
    return d
def wo_reads(ks): return [wo_read(ks, m, h) for m in range(8) for h in range(2)]

LFLAG = 90112

def o_epilogue():
    E = []
    tl = VT[0]; rc = VT[2]
    d3, d4, d5 = wo_dma_t(3), wo_dma_t(4), wo_dma_t(5)
    E += II(f"s_lshl_b32 s51, {S_QH}, 11", f"v_subrev_u32 v{V_OWB}, s51, v{V_OW}", f"v_add_u32 v{V_OW}, s51, v{V_OW}",
            f"s_lshl_b32 s50, {S_U}, 12", f"s_add_u32 s50, s50, 32768", "s_add_u32 s50, s50, s51", f"v_add_u32 v{V_OW4}, s50, v{V_OR}")
    def emit_dma(e):
        return e[0] + II("s_nop 0") * (1 if e[0] else 0) + [e[1]]
    nfr = 0
    for t in range(5):
        E += II(f"v_accvgpr_read_b32 v{tl}, a{lacc(t)}", f"v_rcp_f32 v{rc}, v{tl}", "s_nop 0", f"v_mov_b32 v{rc+1}, v{rc}")
        if t == 0: E += II(f"v_mov_b32 v{VT[1]}, v{tl}")
        else: E += II(f"v_max_f32 v{VT[1]}, v{VT[1]}, v{tl}")
        if t == 4:
            E += II(f"v_cmp_nge_f32 vcc, {hex(OPT['lthr'] or LTHR)}, v{VT[1]}", f"s_lshl_b32 s50, {S_W}, 2", f"s_add_u32 s50, s50, {LFLAG}", f"v_mov_b32 v52, s50",
                    "s_cmp_lg_u64 vcc, 0", "s_cselect_b32 s51, 1, 0", "v_mov_b32 v53, s51", "ds_write_b32 v52, v53")
        for ks in range(4 if t < 4 else 2):
            mid = []
            if nfr < 8: mid += emit_dma(d3[nfr])
            if 8 <= nfr < 16: mid += emit_dma(d4[nfr - 8])
            if nfr >= 16:
                for i in range(4): mid += emit_dma(d5[4 * (nfr - 16) + i])
            if OPT.get('x_oenodma'): mid = [x for x in mid if x.kind == 'dma'][:0] + [x for x in mid if x.kind != 'dma']
            rd = []
            cut = {0: (0, 6), 1: (6, 11), 2: (11, 16)}
            if 4 <= nfr < 7:
                if nfr == 4:
                    rd += [VmNeed("wo2")]
                    if OPT['fused']:
                        rd += II("v_readfirstlane_b32 s52, v15", "s_nop 3", "s_cmp_lt_u32 s52, 16", "s_cbranch_scc1 L_cnt_spin", "L_cnt_ok:")
                a_, b_ = cut[nfr - 4]; rd += wo_reads(2)[a_:b_]
            if 12 <= nfr < 15:
                if nfr == 12: rd += [VmNeed("wo3")]
                a_, b_ = cut[nfr - 12]; rd += wo_reads(3)[a_:b_]
            if OPT.get('oe_nord'): rd = [x for x in rd if x.kind != 'dsr']
            if OPT.get('oe_nowait'): rd = [x for x in rd if not isinstance(x, VmNeed)]
            if OPT.get('oe_nodma'): mid = []; rd = [x for x in rd if not (isinstance(x, VmNeed) and x.tag == 'wo3')]
            if nfr in (8, 16): E += II("s_waitcnt lgkmcnt(0)")
            E += rd
            for h in range(2):
                for k in range(4):
                    E += II(f"v_accvgpr_read_b32 v{52 + 4*h + k}, a{oacc(2*ks + h, t) + k}")
            E += mid
            for k in range(4): E += II(f"v_pk_mul_f32 {vr(52+2*k,2)}, {vr(52+2*k,2)}, {vr(rc,2)}")
            for k in range(4): E += II(f"v_cvt_pk_bf16_f32 v{60+k}, v{52+2*k}, v{53+2*k}")
            E += II(f"ds_write_b128 v{V_OW if ks < 2 else V_OWB}, {vr(60)} offset:{(t*8+ks)*1024}" if t < 4 else f"ds_write_b128 v{V_OW4}, {vr(60)} offset:{ks*1024}")
            nfr += 1
        if OPT['stamps'] and OPT.get('oest'): E += [Raw("\n  ".join(x.txt for x in stamp(f"oe{t}")))] + II("s_waitcnt lgkmcnt(0)")
    E, q = vm_waits(E, ["cnt"] + ["wo2"] * 8)
    E, pend = lgkm_waits(E, final_zero=True)
    E, n = hazards(E)
    return E + II("s_barrier"), q

def o_read(dst, t, ks):
    if t < 8: return I(f"ds_read_b128 {vr(dst)}, v{V_OR} offset:{(t*8+ks)*1024}")
    return I(f"ds_read_b128 {vr(dst)}, v{V_OR8} offset:{ks*1024}")
V_PSC = [196, 197, 198, 199]
V_OWNA = 204; S_OWN = "s49"
OWNB = 73728
OWN_OOL = []
OWN_BLK = {}
def pstore(src, t, cp):
    v = V_PSC[cp] if OPT['own'] else V_PS
    return (II(f"s_add_u32 s51, {S_SOFFP}, {(cp*9 + t)*16384}"),
            I(f"buffer_store_dwordx4 {vr(src)}, v{v}, {SRD_P}, s51 offen {OPT['pst']}"))
def own_hook(src, t, cp):
    if not OPT['own']: return []
    OWN_BLK.setdefault(t, []).extend(II(f"L_own_{t}_{cp}:", f"ds_write_b128 v{V_OWNA}, {vr(src)} offset:{t*1024}", f"s_branch L_ownb_{t}_{cp}"))
    return II(f"s_cmp_eq_u32 {S_OWN}, {cp}", f"s_cbranch_scc1 L_own_{t}_{cp}", f"L_ownb_{t}_{cp}:")

NP1 = 2
def acc1(t, m): return 64 + (t * 8 + m) * 4
def acc2(t, m): return 128 + ((t & 1) * 8 + m) * 4
def bfr1(par, t): return 2 + (par * 4 + t) * 4
STG = [48, 52, 56, 60]

def tile_epilogue(accf, t, k0):
    out = []
    for cp in range(4):
        a0, a1 = accf(t, 2*cp), accf(t, 2*cp + 1)
        d = STG[(k0 + cp) & 3]
        cv = II(f"v_cvt_pk_bf16_f32 v{d}, v{a0}, v{a0+1}", f"v_cvt_pk_bf16_f32 v{d+1}, v{a0+2}, v{a0+3}",
                f"v_cvt_pk_bf16_f32 v{d+2}, v{a1}, v{a1+1}", f"v_cvt_pk_bf16_f32 v{d+3}, v{a1+2}, v{a1+3}")
        pre, st = pstore(d, t, cp)
        if OPT.get('x_nost') and not (t == 8 and cp == 3): st = I("s_nop 0")
        st.tag = f"st{t}"
        out.append((cv, (pre, st), own_hook(d, t, cp)))
    return out

def out_proj(queue):
    L = []; A = lambda *x: L.extend(II(*x))
    A(f"s_mul_i32 {S_SOFFP}, {S_W}, {4*9*16384}")
    OWN_OOL.clear(); OWN_BLK.clear()
    if OPT['own']:
        A(f"s_lshr_b32 s50, {S_HP}, 2", f"s_and_b32 s51, {S_HP}, 3", f"s_cmp_eq_u32 s50, {S_W}", f"s_cselect_b32 {S_OWN}, s51, 7")
        for cp in range(4):
            A(f"s_cmp_eq_u32 {S_OWN}, {cp}", "s_cselect_b32 s50, 0x40000000, 0", f"v_or_b32 v{V_PSC[cp]}, s50, v{V_PS}")
        A(f"v_add_u32 v{V_OWNA}, {OWNB}, v{V_OR}")
    NP = OPT['np1']
    G = 8 * NP
    ms = [mfma(vr(acc1(t, m)), wofrag(ks, m), vr(bfr1(ks & 1, t)), ("0" if ks == 0 else vr(acc1(t, m)))) for ks in range(8) for m in range(8) for t in range(NP)]
    bt = lambda ks: 2 + 4 * ks
    P1 = len(ms)
    for t in range(NP, 9):
        ms += [mfma(vr(acc2(t, m)), wofrag(ks, m), vr(bt(ks)), ("0" if ks == 0 else vr(acc2(t, m)))) for ks in range(8) for m in range(8)]
    S = Sched(ms)
    def reads(ks, g0): S.spread(wo_reads(ks), [g0 + i // 2 for i in range(16)])
    def dmas(ks, g0, step=4): put_dmas(S, wo_dma_t(ks), [g0 + step * i for i in range(8)])
    def put_free(ins, g0):
        g = g0
        while S.cost(g) + COST[ins.kind] > 8: g += 1
        S.put(g, ins); return g
    def epi(t, accf, g0, stride):
        for cp, (cv, (spre, st), hook) in enumerate(tile_epilogue(accf, t, 0)):
            g = g0 + cp * stride
            S.spread(cv, [g, g, g + 1, g + 1])
            for p in spre: S.put(g + 1, p)
            for p in hook: S.put(g + 2, p)
            S.put(g + 2, st)
        if OPT['own']:
            blk = OWN_BLK.pop(t)
            S.put(g0 + 3 * stride + 4, Raw(f"s_branch L_ownx_{t}\n" + "\n".join((x.txt if x.kind == 'label' else "  " + x.txt) for x in blk) + f"\nL_ownx_{t}:"))
    if NP == 2:
        pre = [o_read(bfr1(0, t), t, 0) for t in range(NP)]
        S.put(0, VmNeed("wo4")); reads(4, 0)
        S.put(9, "s_waitcnt lgkmcnt(0)"); dmas(6, 11, 3)
        S.put(33, VmNeed("wo5")); reads(5, 33)
        S.put(42, "s_waitcnt lgkmcnt(0)"); dmas(7, 44, 3)
        S.put(84, VmNeed("wo6")); reads(6, 84)
        S.put(100, VmNeed("wo7")); reads(7, 100)
        for ks in range(7):
            g = ks * G + (1 if ks else 8)
            for t in range(NP):
                g = put_free(o_read(bfr1((ks + 1) & 1, t), t, ks + 1), g) + 1
            assert g <= (ks + 1) * G - 3, (ks, g)
        g = 6 * G + 4
        for ks in (2, 3, 6, 7): g = put_free(o_read(bt(ks), NP, ks), g) + 1
        g = 7 * G + 1
        for ks in (0, 1): g = put_free(o_read(bt(ks), NP, ks), g) + 1
        base = P1
        for ks in (4, 5): put_free(o_read(bt(ks), NP, ks), base + 1)
        epi(0, acc1, base + 4, 7); epi(1, acc1, base + 32, 7)
    else:
        assert NP == 0
        pre = [o_read(bt(ks), 0, ks) for ks in range(8)]
        S.put(0, VmNeed("wo4")); reads(4, 0)
        S.put(9, "s_waitcnt lgkmcnt(0)"); dmas(6, 11, 2)
        S.put(10, VmNeed("wo5"));
        S.spread(wo_reads(5), [12, 12, 14, 14, 16, 16, 18, 18, 20, 20, 22, 22, 24, 24, 26, 26])
        S.put(28, "s_waitcnt lgkmcnt(0)"); dmas(7, 30, 2)
        S.put(46, VmNeed("wo6")); S.spread(wo_reads(6), [46, 46, 46, 46] + [47 + i // 4 for i in range(12)])
        S.put(54, VmNeed("wo7")); S.spread(wo_reads(7), [54, 54, 54, 54] + [55 + i // 12 for i in range(12)])
    for t in range(NP, 9):
        b = P1 + (t - NP) * 64
        if t > NP: epi(t - 1, acc2, b + 6, 12)
        if t < 8:
            for ks in range(8):
                g = b + 8 * ks + 8
                if g >= b + 64: g = b + 64 + 1
                put_free(o_read(bt(ks), t + 1, ks), g)
    if OPT['fused']:
        g0 = P1 + (3 - NP) * 64 + 49
        S.put(g0, f"s_lshl_b32 s50, {S_W}, 7", f"s_lshl_b32 s52, {S_HP}, 2", "s_add_u32 s50, s50, s52")
        S.spread([f"v_lshlrev_b32 v36, 13, {V_LANE}", "v_add_u32 v36, s50, v36", "v_mov_b32 v37, 1"], [g0 + 1, g0 + 1, g0 + 2])
        S.put(g0 + 3, f"s_lshr_b32 s50, {S_HP}, 2", "s_lshl_b32 s50, s50, 7")
        S.spread([f"v_lshrrev_b32 v46, 4, {V_LANE}", "v_lshlrev_b32 v46, 9, v46", f"v_and_b32 v47, 15, {V_LANE}",
                  "v_lshl_add_u32 v46, v47, 2, v46", "v_add_u32 v46, s50, v46"], [g0 + 4, g0 + 4, g0 + 5, g0 + 9, g0 + 9])
        b = P1 + (8 - NP) * 64
        fa = I(f"buffer_store_dword v37, v36, {SRD_F}, 0 offen sc1"); fa.tag = "fl"
        if OPT['early']:
            S.put(b + 40, VmNeed("st3")); S.put(b + 41, fa)
            pl = I(f"buffer_load_dword v47, v46, {SRD_F}, 0 offen sc1"); pl.tag = "poll"
            S.put(b + 60, pl)
    if OPT['stamps'] and OPT.get('opst'):
        for nm, g in (("w1", 127), ("w3", 255), ("w5", 383), ("w8", 575)):
            S.put(g, Raw("\n  ".join(x.txt for x in stamp(nm))))
            S.put(g, "s_waitcnt lgkmcnt(0)")
    pre = II(f"v_mov_b32 v56, {LFLAG}", f"ds_read_b128 {vr(52)}, v56") + pre
    pre += II("s_waitcnt lgkmcnt(0)", "v_or3_b32 v52, v52, v53, v54", "v_or_b32 v52, v52, v55", "s_nop 0", "v_readfirstlane_b32 s50, v52", "s_nop 3",
              f"s_andn2_b32 s50, s50, {S_SAFE}", "s_cmp_lg_u32 s50, 0", "s_cbranch_scc1 L_restart")
    seq = pre + S.flat()
    tail = II("s_nop 7")
    for cp, (cv, (spre, st), hook) in enumerate(tile_epilogue(acc2, 8, 0)):
        tail += cv + spre + hook + [st]
    if OPT['own']:
        tail += II("s_branch L_ownx_8") + OWN_BLK.pop(8) + II("L_ownx_8:")
    if OPT['stamps'] and OPT.get('opst'): tail += stamp("st_iss")
    if OPT['fused']:
        fb = I(f"buffer_store_dword v37, v36, {SRD_F}, 0 offen offset:512 sc1"); fb.tag = "fl"
        fc = I(f"buffer_store_dword v37, v36, {SRD_F}, 0 offen offset:1024 sc1"); fc.tag = "fl"
        tail += [VmNeed("poll"), fb, VmNeed("st8"), fc] if OPT['early'] else [VmNeed("st8"), fa, fb, fc]
    seq, q = vm_waits(seq + tail, queue)
    seq, pend = lgkm_waits(seq)
    seq, n = hazards(seq)
    if OPT['verbose']: print(S.report("out_proj"), "nops", n)
    L += seq
    return L, q

SPIN = 1 << 22
def reduce_phase_groups():
    L = []; A = lambda *x: L.extend(II(*x))
    DAT = lambda g, tt, k: 64 + ((g * 2 + tt) * 4 + k) * 4
    D8 = lambda k: 192 + 4 * k
    ACC = lambda g, tt: [208, 216, 224, 232, 240, 248, 2, 10][g * 2 + tt]
    A8 = 18
    T0, T1 = 26, 28
    V_POLL, V_FL, V_L16, V_OUT = 46, 47, 32, 33
    A(f"v_lshrrev_b32 v30, 4, {V_LANE}", f"v_and_b32 v31, 15, {V_LANE}", f"v_lshlrev_b32 v{V_L16}, 4, {V_LANE}",
      f"v_lshlrev_b32 v{V_OUT}, 11, v31", f"v_lshl_add_u32 v{V_OUT}, v30, 4, v{V_OUT}")
    A(f"s_mul_i32 s32, {S_B}, {144*2048}", f"s_lshl_b32 s50, {S_BR}, 10", "s_add_u32 s32, s32, s50", f"s_lshl_b32 s50, {S_HP}, 6", "s_add_u32 s32, s32, s50")
    A(f"s_mul_i32 s33, {S_HP}, {9*16384}")
    A(f"s_lshl_b32 s50, {S_W}, 14", "s_add_u32 s34, s33, s50", "s_add_u32 s35, s34, 65536",
      f"s_add_u32 s36, s33, {8*16384}", f"s_lshl_b32 s50, {S_W}, 12", "s_add_u32 s36, s36, s50",
      f"s_lshl_b32 s41, {S_W}, 2")
    A("s_mov_b32 s37, 0", "s_mov_b32 s38, 0", f"s_mov_b32 s53, {SPIN}")
    if OPT['own']:
        A(f"s_lshr_b32 s46, {S_HP}, 2", f"s_and_b32 s47, {S_HP}, 3", f"s_lshl_b32 s50, {S_W}, 10", f"s_add_u32 s50, s50, {OWNB}", f"v_add_u32 v44, s50, v{V_L16}")
        if not OPT['latebar']:
            A("s_waitcnt lgkmcnt(0)", "s_barrier", "ds_read_b128 v[36:39], v44", "ds_read_b128 v[40:43], v44 offset:4096")
    def unpack_add(acc, src, first):
        out = []
        for k in range(4):
            if first:
                out += [f"v_lshlrev_b32 v{acc+2*k}, 16, v{src+k}", f"v_and_b32 v{acc+2*k+1}, 0xffff0000, v{src+k}"]
            else:
                t = (T0, T1)[k & 1]
                out += [f"v_lshlrev_b32 v{t}, 16, v{src+k}", f"v_and_b32 v{t+1}, 0xffff0000, v{src+k}",
                        f"v_pk_add_f32 v[{acc+2*k}:{acc+2*k+1}], v[{acc+2*k}:{acc+2*k+1}], v[{t}:{t+1}]"]
        return out
    items = [(tt, g) for tt in range(2) for g in range(4)] + [(2, None)]
    if OPT['early']: A("s_branch L_red_first")
    A("L_red_loop:")
    A("s_cmp_eq_u32 s37, 0x1ff", "s_cbranch_scc1 L_red_nopoll")
    A(f"buffer_load_dword v{V_FL}, v{V_POLL}, {SRD_F}, 0 offen sc1")
    A("L_red_nopoll:", "s_waitcnt vmcnt(0)")
    A("s_andn2_b32 s42, s37, s38")
    for i, (tt, g) in enumerate(items):
        if tt < 2 and g == 0: A(f"s_and_b32 s50, s42, {hex(15 << (4 * tt))}", f"s_cbranch_scc0 L_red_nosumc{tt}")
        A(f"s_bitcmp1_b32 s42, {i}", f"s_cbranch_scc0 L_red_nosum{i}")
        for k in range(4):
            A(unpack_add(ACC(g, tt), DAT(g, tt, k), k == 0) if tt < 2 else unpack_add(A8, D8(k), k == 0))
        A(f"L_red_nosum{i}:")
        if tt < 2 and g == 3: A(f"L_red_nosumc{tt}:")
    A("s_mov_b32 s38, s37", "s_cmp_eq_u32 s38, 0x1ff", "s_cbranch_scc1 L_red_done")
    A("L_red_first:")
    A(f"v_cmp_eq_u32 vcc, 1, v{V_FL}", "s_nop 3", "s_mov_b32 s39, vcc_lo", "s_lshr_b32 s43, vcc_hi, s41", "s_and_b32 s43, s43, 15", "s_mov_b32 s40, s37")
    A("s_sub_u32 s53, s53, 1", "s_cmp_eq_u32 s53, 0", "s_cselect_b32 s39, -1, s39", "s_cselect_b32 s43, 15, s43", "s_cselect_b32 s53, 1, s53")
    for i, (tt, g) in enumerate(items):
        if tt < 2 and g == 0:
            A(f"s_bfe_u32 s50, s37, {hex((4 << 16) | (4 * tt))}", "s_cmp_eq_u32 s50, 15", f"s_cbranch_scc1 L_red_noissc{tt}",
              f"s_bfe_u32 s50, s39, {hex((16 << 16) | (16 * tt))}", "s_cmp_eq_u32 s50, 0", f"s_cbranch_scc1 L_red_noissc{tt}")
        A(f"s_bitcmp1_b32 s37, {i}", f"s_cbranch_scc1 L_red_noiss{i}")
        if tt < 2:
            A(f"s_bfe_u32 s50, s39, {hex((4 << 16) | (16 * tt + 4 * g))}", "s_cmp_eq_u32 s50, 15")
        else:
            A("s_cmp_eq_u32 s43, 15")
        A(f"s_cbranch_scc0 L_red_noiss{i}")
        if tt < 2: A(f"s_add_u32 s50, s{34+tt}, {g*4096}")
        if OPT['own']:
            A(f"s_cmp_eq_u32 s46, {g}" if tt < 2 else f"s_cmp_eq_u32 s46, {S_W}", "s_cselect_b32 s44, s47, 7")
        for k in range(4):
            o = f" offset:{k*1024}" if k else ""
            va = V_L16
            if OPT['own']:
                A(f"s_cmp_eq_u32 s44, {k}", "s_cselect_b32 s45, 0x40000000, 0", f"v_or_b32 v45, s45, v{V_L16}"); va = 45
            if tt < 2: A(f"buffer_load_dwordx4 {vr(DAT(g, tt, k))}, v{va}, {SRD_P}, s50 offen{o} {OPT['rld']}")
            else: A(f"buffer_load_dwordx4 {vr(D8(k))}, v{va}, {SRD_P}, s36 offen{o} {OPT['rld']}")
        A(f"s_bitset1_b32 s37, {i}", f"L_red_noiss{i}:")
        if tt < 2 and g == 3: A(f"L_red_noissc{tt}:")
    if OPT.get('rdst'):
        A("s_cmp_eq_u32 s40, 0", "s_cbranch_scc0 L_rs1", "s_cmp_lg_u32 s37, 0", "s_cbranch_scc0 L_rs1", stamp("r_first"), "L_rs1:")
        A("s_cmp_eq_u32 s37, 0x1ff", "s_cbranch_scc0 L_rs2", stamp("r_alliss"), "L_rs2:")
    A("s_cmp_lg_u32 s37, s40", "s_cbranch_scc1 L_red_loop", f"s_sleep {OPT['psleep']}", "s_branch L_red_loop")
    A("L_red_done:")
    if OPT.get('rdst'): A(stamp("r_summed"))
    A(f"s_lshl_b32 s50, {S_W}, 11", f"v_lshlrev_b32 v30, 5, {V_LANE}", f"v_add_u32 v30, {WOB}, v30", "v_add_u32 v31, s50, v30",
      f"ds_write_b128 v31, {vr(A8)}", f"ds_write_b128 v31, {vr(A8+4)} offset:16")
    late = OPT['own'] and OPT['latebar']
    for tt in range(2):
        a0 = ACC(0, tt)
        for g in range(1, 4):
            for k in range(4): A(f"v_pk_add_f32 v[{a0+2*k}:{a0+2*k+1}], v[{a0+2*k}:{a0+2*k+1}], v[{ACC(g,tt)+2*k}:{ACC(g,tt)+2*k+1}]")
    if late:
        A("s_waitcnt lgkmcnt(0)", "s_barrier", "ds_read_b128 v[36:39], v44", "ds_read_b128 v[40:43], v44 offset:4096")
    for tt in range(2):
        a0 = ACC(0, tt)
        if OPT['own']: A(("s_waitcnt lgkmcnt(1)" if late else "s_waitcnt lgkmcnt(2)") if tt == 0 else "s_waitcnt lgkmcnt(0)" if late else "s_nop 0", unpack_add(a0, 36 + 4 * tt, False))
        for k in range(4): A(f"v_cvt_pk_bf16_f32 v{64+4*tt+k}, v{a0+2*k}, v{a0+2*k+1}")
        A(f"s_lshl_b32 s50, {S_W}, 15", f"s_add_u32 s50, s50, s32", f"s_add_u32 s50, s50, {tt*4*32768}")
        A(f"buffer_store_dwordx4 {vr(64+4*tt)}, v{V_OUT}, {SRD_O}, s50 offen {OPT['ost']}")
    if not late: A("s_waitcnt lgkmcnt(0)", "s_barrier")
    A(f"s_cmp_eq_u32 {S_W}, 0", "s_cbranch_scc0 L_red_end")
    for g in range(4):
        A(f"ds_read_b128 {vr(80+8*g)}, v30 offset:{g*2048}", f"ds_read_b128 {vr(84+8*g)}, v30 offset:{g*2048+16}")
    if OPT['own']: A("ds_read_b128 v[36:39], v44 offset:8192")
    A("s_waitcnt lgkmcnt(0)")
    for g in range(1, 4):
        for k in range(4): A(f"v_pk_add_f32 v[{80+2*k}:{81+2*k}], v[{80+2*k}:{81+2*k}], v[{80+8*g+2*k}:{81+8*g+2*k}]")
    if OPT['own']: A(unpack_add(80, 36, False))
    for k in range(4): A(f"v_cvt_pk_bf16_f32 v{72+k}, v{80+2*k}, v{81+2*k}")
    A(f"s_add_u32 s50, s32, {8*32768}")
    A(f"buffer_store_dwordx4 {vr(72)}, v{V_OUT}, {SRD_O}, s50 offen {OPT['ost']}")
    A("L_red_end:")
    L2, n = hazards(L)
    return L2

def reduce_phase():
    if not OPT['linred']: return reduce_phase_groups()
    assert OPT['own'] and OPT['early']
    L = []; A = lambda *x: L.extend(II(*x))
    DA = lambda p: 64 + 4 * p
    DB = lambda p: 128 + 4 * p
    D8 = lambda k: 192 + 4 * k
    ACA, ACB, A8 = 208, 216, 224
    T0, T1 = 26, 28
    V_POLL, V_FL, V_L16, V_OUT = 46, 47, 32, 33
    A(f"v_lshrrev_b32 v30, 4, {V_LANE}", f"v_and_b32 v31, 15, {V_LANE}", f"v_lshlrev_b32 v{V_L16}, 4, {V_LANE}",
      f"v_lshlrev_b32 v{V_OUT}, 11, v31", f"v_lshl_add_u32 v{V_OUT}, v30, 4, v{V_OUT}")
    A(f"s_mul_i32 s33, {S_HP}, {9*16384}")
    A(f"s_lshl_b32 s50, {S_W}, 14", "s_add_u32 s34, s33, s50", "s_add_u32 s35, s34, 65536",
      f"s_add_u32 s36, s33, {8*16384}", f"s_lshl_b32 s50, {S_W}, 12", "s_add_u32 s36, s36, s50",
      f"s_lshl_b32 s41, {S_W}, 2", f"s_mov_b32 s53, {SPIN}")
    def loads(base, dst):
        for p in range(16):
            if p % 4 == 0: A(f"s_add_u32 s50, {base}, {p*1024}")
            o = f" offset:{(p % 4)*1024}" if p % 4 else ""
            A(f"s_cmp_eq_u32 {S_HP}, {p}", f"s_cbranch_scc1 L_rl_{base}_{p}",
              f"buffer_load_dwordx4 {vr(dst(p))}, v{V_L16}, {SRD_P}, s50 offen{o} {OPT['rld']}", f"L_rl_{base}_{p}:")
    def poll(name, test):
        A(f"L_poll_{name}:", f"v_cmp_eq_u32 vcc, 1, v{V_FL}", "s_nop 3")
        A(test)
        A(f"s_cbranch_scc1 L_poll_{name}_ok", "s_sub_u32 s53, s53, 1", "s_cmp_eq_u32 s53, 0", f"s_cbranch_scc1 L_poll_{name}_ok",
          f"s_sleep {OPT['psleep']}", f"buffer_load_dword v{V_FL}, v{V_POLL}, {SRD_F}, 0 offen sc1", "s_waitcnt vmcnt(0)", f"s_branch L_poll_{name}",
          f"L_poll_{name}_ok:")
    def unpack_add(acc, src):
        out = []
        for k in range(4):
            t = (T0, T1)[k & 1]
            out += [f"v_lshlrev_b32 v{t}, 16, v{src+k}", f"v_and_b32 v{t+1}, s60, v{src+k}",
                    f"v_pk_add_f32 v[{acc+2*k}:{acc+2*k+1}], v[{acc+2*k}:{acc+2*k+1}], v[{t}:{t+1}]"]
        return out
    A("s_mov_b32 s60, 0xffff0000")
    one = OPT['onepoll']
    if one:
        A(f"s_cmp_eq_u32 {S_W}, 0", "s_cbranch_scc0 L_poll_a_skip")
    poll("a", ["s_and_b32 s50, vcc_lo, 0xffff", "s_cmp_eq_u32 s50, 0xffff"])
    if one:
        A("L_poll_a_skip:", "s_waitcnt lgkmcnt(0)", "s_barrier")
    loads("s34", DA)
    A(f"s_lshl_b32 s50, {S_W}, 10", f"s_add_u32 s50, s50, {OWNB}", f"v_add_u32 v44, s50, v{V_L16}")
    if not one: A("s_waitcnt lgkmcnt(0)", "s_barrier")
    A("ds_read_b128 v[36:39], v44", "ds_read_b128 v[40:43], v44 offset:4096")
    for r in range(ACA, ACA + 24): A(f"v_mov_b32 v{r}, 0")
    A(f"s_mul_i32 s32, {S_B}, {144*2048}", f"s_lshl_b32 s50, {S_BR}, 10", "s_add_u32 s32, s32, s50", f"s_lshl_b32 s50, {S_HP}, 6", "s_add_u32 s32, s32, s50")
    if one:
        A(f"s_cmp_eq_u32 {S_W}, 0", "s_cbranch_scc0 L_poll_b_skip")
        A(f"buffer_load_dword v{V_FL}, v{V_POLL}, {SRD_F}, 0 offen sc1", "s_waitcnt vmcnt(0)")
        poll("b", ["s_lshr_b32 s50, vcc_lo, 16", "s_and_b32 s51, vcc_hi, 0xffff", "s_lshl_b32 s51, s51, 16", "s_or_b32 s50, s50, s51", "s_cmp_eq_u32 s50, -1"])
        A("L_poll_b_skip:", "s_waitcnt vmcnt(0)", "s_barrier")
    else:
        A(f"buffer_load_dword v{V_FL}, v{V_POLL}, {SRD_F}, 0 offen sc1", "s_waitcnt vmcnt(0)")
        poll("b", ["s_lshr_b32 s50, vcc_lo, 16", "s_lshr_b32 s51, vcc_hi, s41", "s_and_b32 s51, s51, 15", "s_lshl_b32 s51, s51, 16", "s_or_b32 s50, s50, s51",
                   "s_cmp_eq_u32 s50, 0xfffff"])
    loads("s35", DB)
    for k in range(4):
        o = f" offset:{k*1024}" if k else ""
        A(f"s_add_u32 s50, s41, {k}", f"s_cmp_eq_u32 {S_HP}, s50", f"s_cbranch_scc1 L_rl8_{k}",
          f"buffer_load_dwordx4 {vr(D8(k))}, v{V_L16}, {SRD_P}, s36 offen{o} {OPT['rld']}", f"L_rl8_{k}:")
    for p in range(16):
        A(f"s_cmp_eq_u32 {S_HP}, {p}", f"s_cbranch_scc1 L_rs_a{p}", unpack_add(ACA, DA(p)), f"L_rs_a{p}:")
    A("s_waitcnt lgkmcnt(0)", unpack_add(ACA, 36))
    for k in range(4): A(f"v_cvt_pk_bf16_f32 v{64+k}, v{ACA+2*k}, v{ACA+2*k+1}")
    A(f"s_lshl_b32 s50, {S_W}, 15", "s_add_u32 s37, s50, s32")
    A(f"buffer_store_dwordx4 {vr(64)}, v{V_OUT}, {SRD_O}, s37 offen {OPT['ost']}")
    for p in range(16):
        A(f"s_waitcnt vmcnt({max(15 - p + 4 + 1 - 2, 0)})", f"s_cmp_eq_u32 {S_HP}, {p}", f"s_cbranch_scc1 L_rs_b{p}", unpack_add(ACB, DB(p)), f"L_rs_b{p}:")
    A(unpack_add(ACB, 40))
    for k in range(4): A(f"v_cvt_pk_bf16_f32 v{68+k}, v{ACB+2*k}, v{ACB+2*k+1}")
    A(f"s_add_u32 s37, s37, {4*32768}")
    A("s_waitcnt vmcnt(1)")
    for k in range(4):
        A(f"s_add_u32 s50, s41, {k}", f"s_cmp_eq_u32 {S_HP}, s50", f"s_cbranch_scc1 L_rs_c{k}", unpack_add(A8, D8(k)), f"L_rs_c{k}:")
    A(f"buffer_store_dwordx4 {vr(68)}, v{V_OUT}, {SRD_O}, s37 offen {OPT['ost']}")
    A(f"s_lshl_b32 s50, {S_W}, 11", f"v_lshlrev_b32 v30, 5, {V_LANE}", f"v_add_u32 v30, {WOB}, v30", "v_add_u32 v31, s50, v30",
      f"ds_write_b128 v31, {vr(A8)}", f"ds_write_b128 v31, {vr(A8+4)} offset:16")
    A("s_waitcnt lgkmcnt(0)", "s_barrier", f"s_cmp_eq_u32 {S_W}, 0", "s_cbranch_scc0 L_red_end")
    for g in range(4):
        A(f"ds_read_b128 {vr(80+8*g)}, v30 offset:{g*2048}", f"ds_read_b128 {vr(84+8*g)}, v30 offset:{g*2048+16}")
    A("ds_read_b128 v[36:39], v44 offset:8192")
    A("s_waitcnt lgkmcnt(0)")
    for g in range(1, 4):
        for k in range(4): A(f"v_pk_add_f32 v[{80+2*k}:{81+2*k}], v[{80+2*k}:{81+2*k}], v[{80+8*g+2*k}:{81+8*g+2*k}]")
    A(unpack_add(80, 36))
    for k in range(4): A(f"v_cvt_pk_bf16_f32 v{72+k}, v{80+2*k}, v{81+2*k}")
    A(f"s_add_u32 s50, s32, {8*32768}")
    A(f"buffer_store_dwordx4 {vr(72)}, v{V_OUT}, {SRD_O}, s50 offen {OPT['ost']}")
    A("L_red_end:")
    L2, n = hazards(L)
    return L2

def dump_regs(regs, slot, kind='v'):
    L = []; A = lambda *x: L.extend(II(*x))
    A("s_add_u32 s66, s58, 0x4000000", "s_addc_u32 s67, s59, 0",
      "s_lshl_b32 s50, s2, 2", f"s_add_u32 s50, s50, {S_W}", "s_lshl_b32 s50, s50, 16",
      f"v_lshlrev_b32 v253, 2, {V_LANE}", "v_add_u32 v253, s50, v253")
    for i, r in enumerate(regs):
        if kind == 'a':
            A(f"v_accvgpr_read_b32 v254, a{r}", "s_nop 0")
            A(f"global_store_dword v253, v254, s[66:67]")
        else:
            A(f"global_store_dword v253, v{r}, s[66:67]")
        A("v_add_u32 v253, 256, v253")
    A("s_waitcnt vmcnt(0)")
    return L

def main_kernel():
    L = []
    L += setup()
    L += stamp("start")
    L += phase_q()
    L += stamp("q_done")
    if OPT['dump'] == 'q':
        L += II("s_nop 7") + dump_regs([qfrag(t, s) + k for t in range(5) for s in range(4) for k in range(4)], 0)
        L += II("s_waitcnt vmcnt(0)", "s_endpgm")
    L += attention()
    if OPT['dump'] == 'o':
        L += II("s_nop 7") + dump_regs([oacc(dt, t) + k for t in range(5) for dt in range(8) for k in range(4)] + [lacc(t) for t in range(5)], 0, 'a')
        L += II("s_waitcnt vmcnt(0)", "s_endpgm")
    e, q = o_epilogue(); L += e
    L += stamp("o_done")
    if OPT.get('stop') == 'o':
        L += II("s_waitcnt vmcnt(0)") + stamp("end") + stamp_dump() + II("L_main_end:", "s_endpgm") + safe_paths()
        return L
    e, q = out_proj(q); L += e
    L += stamp("op_done")
    if OPT['fused']:
        L += reduce_phase()
        L += stamp("red_done")
    L += tr_dump()
    if not OPT.get('noendwait') or OPT['stamps']: L += II("s_waitcnt vmcnt(0)")
    L += stamp("end")
    L += stamp_dump()
    L += II("L_main_end:", "s_endpgm")
    L += OWN_OOL + ATT_OOL
    L += safe_paths()
    return L

def reduce_kernel():
    L = []; A = lambda *x: L.extend(II(*x))
    A("s_cmp_ge_u32 s2, 256", "s_cbranch_scc1 L_red_end")
    A("s_load_dwordx2 s[4:5], s[0:1], 80", "s_load_dwordx2 s[6:7], s[0:1], 96")
    A("v_lshrrev_b32 v2, 6, v0", "v_and_b32 v1, 63, v0", "s_nop 0", "v_readfirstlane_b32 s12, v2", "s_nop 3")
    A("s_waitcnt lgkmcnt(0)")
    A("s_mul_i32 s13, s2, 9", "s_add_u32 s13, s13, s12", "s_lshl_b32 s13, s13, 14")
    A("s_add_u32 s16, s6, s13", "s_addc_u32 s17, s7, 0", "s_and_b32 s17, s17, 0xffff", "s_mov_b32 s18, 16384", "s_mov_b32 s19, 0x20000")
    A("v_lshlrev_b32 v2, 4, v1")
    for p in range(16):
        A(f"buffer_load_dwordx4 v[{8+4*p}:{11+4*p}], v2, s[16:19], 0 offen offset:{(p%4)*1024}" if p < 4 else
          f"buffer_load_dwordx4 v[{8+4*p}:{11+4*p}], v2, s[16:19], s{20+p//4} offen offset:{(p%4)*1024}")
        if p == 3: A("s_mov_b32 s21, 4096", "s_mov_b32 s22, 8192", "s_mov_b32 s23, 12288")
    A("s_lshr_b32 s14, s2, 4", "s_and_b32 s15, s2, 15",
      "s_and_b32 s24, s14, 7", "s_lshr_b32 s25, s14, 3",
      "s_mul_i32 s24, s24, 144", "s_lshl_b32 s26, s12, 4", "s_add_u32 s24, s24, s26", "s_lshl_b32 s24, s24, 11",
      "s_lshl_b32 s25, s25, 10", "s_lshl_b32 s15, s15, 6", "s_add_u32 s24, s24, s25", "s_add_u32 s24, s24, s15")
    A("v_and_b32 v3, 15, v1", "v_lshlrev_b32 v3, 11, v3", "v_lshrrev_b32 v4, 4, v1", "v_lshl_add_u32 v3, v4, 4, v3")
    A("s_mov_b32 s28, s4", "s_and_b32 s29, s5, 0xffff", "s_mov_b32 s30, 2359296", "s_mov_b32 s31, 0x20000")
    acc = 80
    for p in range(16):
        A(f"s_waitcnt vmcnt({15-p})")
        for k in range(4):
            r = 8 + 4 * p + k
            if p == 0:
                A(f"v_lshlrev_b32 v{acc+2*k}, 16, v{r}", f"v_and_b32 v{acc+2*k+1}, 0xffff0000, v{r}")
            else:
                A(f"v_lshlrev_b32 v6, 16, v{r}", f"v_and_b32 v7, 0xffff0000, v{r}",
                  f"v_add_f32 v{acc+2*k}, v{acc+2*k}, v6", f"v_add_f32 v{acc+2*k+1}, v{acc+2*k+1}, v7")
    for k in range(4): A(f"v_cvt_pk_bf16_f32 v{8+k}, v{acc+2*k}, v{acc+2*k+1}")
    A("buffer_store_dwordx4 v[8:11], v3, s[28:31], s24 offen")
    A("s_waitcnt vmcnt(0)")
    A("L_red_end:", "s_endpgm")
    return L

def kernel_text(name, body, vgpr, accum, sgpr=102):
    return f""".globl {name}
.p2align 8
.type {name},@function
{name}:
{text(body)}
"""
def kd(name, nfv, accum, sgpr=102):
    return f""".amdhsa_kernel {name}
  .amdhsa_next_free_vgpr {nfv}
  .amdhsa_next_free_sgpr {sgpr}
  .amdhsa_accum_offset {accum}
  .amdhsa_group_segment_fixed_size 0
  .amdhsa_kernarg_size 104
  .amdhsa_user_sgpr_count 2
  .amdhsa_user_sgpr_kernarg_segment_ptr 1
  .amdhsa_system_sgpr_workgroup_id_x 1
.end_amdhsa_kernel
"""

def build():
    stamp_id[0] = 0; STAMPS.clear()
    k1 = NAME + "_kernel"; k2 = "reduce_heads_kernel"
    m = main_kernel()
    hdr = """; Fused  x@wq -> softmax(q k^T / sqrt(128)) v -> @wo  for both branches, one launch, 256 workgroups x 4 waves.
"""
    if OPT['fused']:
        hdr += f"; @launch grid=(256,1,1) block=(256,1,1) lds=163840\n"
    else:
        hdr += f"; @launch kernel={k1} grid=(256,1,1) block=(256,1,1) lds=163840\n"
        hdr += f"; @launch kernel={k2} grid=(256,1,1) block=(576,1,1) lds=0\n"
    s = hdr + '.amdgcn_target "amdgcn-amd-amdhsa--gfx950"\n.text\n'
    s += kernel_text(k1, m, 512, 256)
    if not OPT['fused']: s += kernel_text(k2, reduce_kernel(), 96, 96)
    s += '.section .rodata,"a"\n.p2align 6\n' + kd(k1, 512, 256)
    if not OPT['fused']: s += ".p2align 6\n" + kd(k2, 96, 96, 40)
    return s

if __name__ == "__main__":
    ap = argparse.ArgumentParser()
    ap.add_argument("-o", default="cdna_kernels/" + NAME + ".s")
    ap.add_argument("--dump"); ap.add_argument("--stamps", action="store_true"); ap.add_argument("-v", action="store_true")
    ap.add_argument("--opt", action="append", default=[])
    a = ap.parse_args()
    OPT['dump'] = a.dump; OPT['stamps'] = a.stamps; OPT['verbose'] = a.v
    for o in a.opt:
        k, v = o.split("=", 1)
        OPT[k] = {'True': True, 'False': False}.get(v, int(v) if v.lstrip('-').isdigit() else v)
    s = build()
    open(a.o, "w").write(s)
    if a.stamps:
        import json; json.dump(STAMPS, open(a.o + ".stamps.json", "w"))
    print("wrote", a.o, len(s), "bytes")
```

```python
import sys, argparse
from ir import *

NAME = "concat_heads__gqa_block_cached__mha_block_cached__near_ridge"
OPT = dict(onepoll=True, linred=True, latebar=False, wsoff=0, own=True, early=True, l2pf=False, np1=0, pfw=1, pfkv=0, pfkvnt=False, psleep=8, ost='nt', noendwait=True, lthr=0, start2=True, pf=2, pfnt=False, fused=True, rld='sc1', rot=True, wnt=False, xnt=False, wont=False, bursts=(3, 6, 9), dump=None, stamps=False, stop=None, kvnt=True, pst="sc1", verbose=False)

VB = 0
KB = 65536
WB = 16384
XB = 114688
WOA = 131072
WOB = 98304
OB = 0
def kphys(k): return ((k + 1) & 3) * 16384
def vphys(k): return (k & 3) * 16384

SRD_X, SRD_WQ, SRD_K, SRD_V, SRD_WO, SRD_P = "s[4:7]", "s[8:11]", "s[12:15]", "s[16:19]", "s[20:23]", "s[24:27]"
SRD_F, SRD_D, SRD_O = "s[68:71]", "s[72:75]", "s[80:83]"
S_W, S_U, S_QH, S_CNT = "s28", "s29", "s30", "s31"
S_SOFFX, S_SOFFW0, S_UNUSED, S_MW, S_MX, S_DSLOT, S_RSLOT, S_DW, S_DX = "s32", "s33", "s34", "s35", "s36", "s37", "s38", "s39", "s40"
S_BW, S_BX = "s41", "s42"
S_SOFFK, S_SOFFV, S_MK, S_MV = "s45", "s46", "s47", "s48"
S_T0, S_T1, S_T2, S_T3 = "s50", "s51", "s52", "s53"
S_HP, S_B, S_BR, S_CL = "s54", "s55", "s56", "s57"
S_WS = "s[58:59]"
S_SOFFP = "s60"
S_STAMP = "s[62:63]"
S_FLAG = "s64"
S_SAFE = "s61"
S_BX3 = "s38"
LTHR = 0x4b800000
S_KS, S_X0, S_W0 = "s88", "s89", "s87"
S_TAU, S_TB, S_TQ, S_T4N, S_TMASK, S_TSH, S_TM, S_TS = "s78", "s79", "s43", "s44", "s34", "s49", "s61", "s95"

V_LANE = "v1"
V_WQR = [2, 3, 4, 5]; V_XR = 6; V_XR4 = 14; V_OW4 = 50; V_OWB = 51
V_WQD = [7, 8, 9, 10]; V_XD = [11, 12, 13]; V_TG, V_TI, V_TB, V_TV = 14, 15, 62, 63
V_KD = [16, 17, 18, 19]; V_VD = [20, 21]
V_KR = [22, 23, 24, 25]; V_VR = [26 + i for i in range(8)]
V_WOD = [34, 35, 36, 37]; V_WOR = [38, 39, 40, 41]
V_OW, V_OR, V_OR8, V_PS = 42, 43, 44, 45
VT = [46 + i for i in range(18)]
RB = 64
def grp(t, s): return RB + (t * 4 + s) * 8
def qacc(dt, t): return grp(t, dt >> 1) + 4 * (dt & 1)
def qfrag(t, s): return grp(t, s)
def Sreg(kt, t): return grp(t, kt) + 4
def Preg(par, t): return grp(t, 2 + par) + 4
def cinit(t): return 224 + 4 * t
V_C0, V_C1 = 244, 245
def vr(b, n=4): return f"v[{b}:{b+n-1}]"
def ar(b, n=4): return f"a[{b}:{b+n-1}]"
def oacc(dt, t): return t * 32 + dt * 4
def lacc(t): return 160 + 4 * t
A_ONES = 180
def abuf(i): return 184 + 4 * i
def bbuf(t): return [48, 52, 56, 60, 248][t]
def kbuf(kt, s): return 216 + 4 * (kt * 4 + s)

MF = "v_mfma_f32_16x16x32_bf16"
def mfma(d, a, b, c): return I(f"{MF} {d}, {a}, {b}, {c}")
SCALE = (128 ** -0.5) * 1.4426950408889634
import struct
def f2u(x): return struct.unpack("<I", struct.pack("<f", x))[0]

def NT(): return " nt" if OPT['kvnt'] else ""

def CNTOFF(): return 128 if OPT.get('dbgst') is not None else 0
stamp_id = [0]
def stamp(name):
    if not OPT['stamps']: return []
    i = stamp_id[0]; stamp_id[0] += 1
    STAMPS.append(name)
    return II("s_memrealtime s[66:67]", "s_memtime s[64:65]", "s_waitcnt lgkmcnt(0)",
              f"v_writelane_b32 v0, s66, {i}", f"v_writelane_b32 v0, s64, {32 + i}")
def stamp_dump():
    if not OPT['stamps']: return []
    if OPT.get('dbgst') is not None:
        return II(f"s_cmp_eq_u32 s2, {OPT['dbgst']}", "s_cbranch_scc0 L_nodbg", f"s_cmp_eq_u32 {S_W}, 0", "s_cbranch_scc0 L_nodbg",
                  "v_readlane_b32 s50, v0, 0", "s_nop 3", "v_subrev_u32 v0, s50, v0",
                  f"v_lshlrev_b32 v1, 2, {V_LANE}", "v_cmp_gt_u32 vcc, 16, v1", f"v_lshrrev_b32 v2, 2, v1", "v_mov_b32 v3, 0x1000", "v_cmp_gt_u32 vcc, 16, v2", "s_nop 1",
                  "v_cndmask_b32 v1, v3, v1, vcc", f"buffer_store_dword v0, v1, {SRD_D}, 0 offen", "L_nodbg:")
    return II("s_add_u32 s62, s58, 0x8000000", "s_addc_u32 s63, s59, 0", "s_lshl_b32 s65, s2, 2", f"s_add_u32 s65, s65, {S_W}", "s_lshl_b32 s65, s65, 8",
              f"v_lshlrev_b32 v1, 2, {V_LANE}", "v_add_u32 v1, s65, v1", "global_store_dword v1, v0, s[62:63]")
STAMPS = []

def setup():
    L = []
    A = lambda *x: L.extend(II(*x))
    A("s_cmp_ge_u32 s2, 256", "s_cbranch_scc1 L_main_end")
    if OPT['stamps'] and OPT.get('t0st'): A("s_memrealtime s[100:101]")
    A("s_load_dwordx8 s[68:75], s[0:1], 0", "s_load_dwordx2 s[76:77], s[0:1], 32",
      "s_load_dwordx8 s[80:87], s[0:1], 40", "s_load_dwordx2 s[88:89], s[0:1], 72",
      f"s_load_dwordx2 {S_WS}, s[0:1], 96", "s_load_dwordx4 s[96:99], s[0:1], 80")
    A("s_and_b32 s50, s2, 7", "s_lshr_b32 s51, s2, 3",
      f"s_lshr_b32 {S_BR}, s50, 2",
      "s_and_b32 s52, s50, 3", "s_lshl_b32 s52, s52, 2", "s_and_b32 s53, s51, 3", f"s_add_u32 {S_HP}, s52, s53",
      f"s_lshr_b32 {S_B}, s51, 2",
      f"s_lshl_b32 s52, {S_BR}, 3", f"s_add_u32 {S_CL}, s52, {S_B}")
    A("v_lshrrev_b32 v46, 6, v0", f"v_and_b32 {V_LANE}, 63, v0", "s_nop 0", f"v_readfirstlane_b32 {S_W}, v46", "s_nop 3")
    A(f"s_lshr_b32 {S_U}, {S_W}, 1", f"s_and_b32 {S_QH}, {S_W}, 1", f"s_mov_b32 {S_SAFE}, 0")
    A(lane_consts_q())
    if OPT['stamps'] and OPT.get('t0st'):
        A("s_memrealtime s[66:67]")
    A("s_waitcnt lgkmcnt(0)")
    if OPT['stamps'] and OPT.get('t0st'):
        i0 = stamp_id[0]; stamp_id[0] += 2; STAMPS.extend(["entry", "consts_q"])
        A(f"v_writelane_b32 v0, s100, {i0}", f"v_writelane_b32 v0, s66, {i0+1}", f"v_writelane_b32 v0, s100, {32+i0}", f"v_writelane_b32 v0, s66, {33+i0}")
    A(f"s_cmp_eq_u32 {S_BR}, 1")
    for i in (0, 1, 6, 7): A(f"s_cselect_b32 s{68+i}, s{80+i}, s{68+i}")
    def srd(dst, lo, hi, off_expr_regs, nrec):
        A(f"s_add_u32 s{dst}, s{lo}, s50", f"s_addc_u32 s{dst+1}, s{hi}, 0", f"s_and_b32 s{dst+1}, s{dst+1}, 0xffff")
        A(nrec, f"s_mov_b32 s{dst+3}, 0x20000")
    A(f"s_mul_i32 s50, {S_B}, 147456"); srd(4, 68, 69, None, "s_mov_b32 s6, 147456")
    A(f"s_lshl_b32 s50, {S_HP}, 9"); srd(8, 74, 75, None, "s_sub_u32 s10, 4194304, s50")
    return L

def setup_b():
    L = []
    A = lambda *x: L.extend(II(*x))
    def srd(dst, lo, hi, off_expr_regs, nrec):
        A(f"s_add_u32 s{dst}, s{lo}, s50", f"s_addc_u32 s{dst+1}, s{hi}, 0", f"s_and_b32 s{dst+1}, s{dst+1}, 0xffff")
        A(nrec, f"s_mov_b32 s{dst+3}, 0x20000")
    A(f"s_cmp_eq_u32 {S_SAFE}, 1", "s_cbranch_scc1 L_setup_b_done")
    A(f"s_cmp_eq_u32 {S_BR}, 1")
    for i in (2, 3, 4, 5): A(f"s_cselect_b32 s{68+i}, s{80+i}, s{68+i}")
    A("s_cselect_b32 s76, s88, s76", "s_cselect_b32 s77, s89, s77")
    A(f"s_lshl_b32 s50, {S_B}, 5", f"s_lshl_b32 s51, {S_HP}, 1", "s_add_u32 s50, s50, s51", f"s_add_u32 s50, s50, {S_U}", "s_lshl_b32 s50, s50, 17")
    srd(12, 70, 71, None, "s_mov_b32 s14, 131072")
    srd(16, 72, 73, None, "s_mov_b32 s18, 131072")
    A(f"s_lshl_b32 s50, {S_HP}, 18", f"s_lshl_b32 s51, {S_W}, 8", "s_add_u32 s50, s50, s51")
    A("s_sub_u32 s52, 262144, s51")
    srd(20, 76, 77, None, "s_mov_b32 s22, s52")
    A(f"s_lshl_b32 s50, {S_HP}, 18"); srd(84, 76, 77, None, "s_mov_b32 s86, 262144")
    A(f"s_mul_i32 s50, {S_CL}, 2359296", f"s_add_u32 s50, s50, {hex(OPT['wsoff'])}"); srd(24, 58, 59, None, "s_mov_b32 s26, 2359296")
    if OPT['fused']:
        A(f"s_mul_i32 s50, {S_CL}, 4608", f"s_add_u32 s50, s50, {hex(OPT['wsoff'] + 0x2400000 + 0x40000)}"); srd(68, 58, 59, None, "s_mov_b32 s70, 4608")
        A("s_mov_b32 s72, s98", "s_and_b32 s73, s99, 0xffff", "s_mov_b32 s74, 256", "s_mov_b32 s75, 0x20000")
        A("s_mov_b32 s80, s96", "s_and_b32 s81, s97, 0xffff", "s_mov_b32 s82, 2359296", "s_mov_b32 s83, 0x20000")
        A(f"s_lshl_b32 s50, {S_W}, 7", f"s_lshl_b32 s51, {S_HP}, 2", "s_add_u32 s50, s50, s51",
          f"v_lshlrev_b32 v46, 9, {V_LANE}", "v_add_u32 v46, s50, v46", "v_mov_b32 v47, 0",
          f"buffer_store_dword v47, v46, {SRD_F}, 0 offen sc1" if not OPT.get('x_noclr') else "s_nop 0")
    A("L_setup_b_done:")
    return L

def lane_consts_q():
    L = []; A = lambda *x: L.extend(II(*x))
    l = V_LANE; t0, t1, t2, t3, t4, t5 = [f"v{x}" for x in VT[:6]]
    A(f"v_lshrrev_b32 {t0}, 4, {l}", f"v_bfe_u32 {t1}, {l}, 2, 2", f"v_and_b32 {t2}, 3, {l}", f"v_and_b32 {t3}, 15, {l}")
    w0, w1, w2, w3 = [f"v{x}" for x in V_WQD]
    A(f"v_lshrrev_b32 {t4}, 5, {l}", f"v_bfe_u32 {t5}, {l}, 4, 1",
      f"v_lshlrev_b32 {w0}, 2, {t4}", f"v_xor_b32 {w0}, {w0}, {t3}", f"v_lshlrev_b32 {w0}, 4, {w0}",
      f"v_lshl_add_u32 {w0}, {t5}, 8, {w0}", f"v_lshl_add_u32 {w0}, {t4}, 13, {w0}",
      f"v_xor_b32 {w1}, 0x80, {w0}", f"v_add_u32 {w1}, {2*8192 - 1024}, {w1}",
      f"v_add_u32 {w2}, {4*8192 - 2048}, {w0}", f"v_add_u32 {w3}, {4*8192 - 2048}, {w1}")
    A(f"v_lshlrev_b32 {t4}, 1, {t0}", f"v_mov_b32 {t5}, 0x78", f"v_lshrrev_b32 {t4}, {t4}, {t5}", f"v_and_b32 {t4}, 3, {t4}",
      f"v_xor_b32 {t4}, {t4}, {t2}", f"v_lshlrev_b32 {t4}, 4, {t4}",
      f"v_lshrrev_b32 {t5}, 2, {l}", f"v_lshl_add_u32 {t4}, {t5}, 10, {t4}")
    for j in range(2):
        A(f"v_add_u32 v{V_XD[j]}, {j*16384 - 1024*j}, {t4}")
    A(f"s_lshl_b32 s50, {S_W}, 1", "s_lshr_b32 s50, 0x78, s50", "s_and_b32 s50, s50, 3",
      f"v_xor_b32 {t4}, s50, {t2}", f"v_lshlrev_b32 {t4}, 4, {t4}", f"v_lshl_add_u32 {t4}, {t5}, 10, {t4}",
      f"s_lshl_b32 s50, {S_W}, 12", f"s_lshl_b32 s51, {S_W}, 15", "s_sub_u32 s50, s50, s51", f"s_add_u32 s50, s50, {128*1024}",
      f"v_add_u32 v{V_XD[2]}, s50, {t4}")
    return L

def lane_consts_q2():
    L = []; A = lambda *x: L.extend(II(*x))
    l = V_LANE; t0, t1, t2, t3, t4, t5 = [f"v{x}" for x in VT[:6]]
    A(f"v_lshrrev_b32 {t0}, 4, {l}", f"v_bfe_u32 {t1}, {l}, 2, 2", f"v_and_b32 {t2}, 3, {l}", f"v_and_b32 {t3}, 15, {l}")
    for n in range(4):
        A(f"v_add_u32 {t4}, {4*n}, {t0}", f"v_xor_b32 {t4}, {t4}, {t3}", f"v_lshlrev_b32 {t4}, 4, {t4}",
          f"v_lshl_add_u32 v{V_KD[n]}, {t0}, 8, {t4}")
    for n in range(2):
        A(f"v_add_u32 {t4}, {4*n}, {t0}", f"v_lshlrev_b32 {t4}, 1, {t4}", f"v_xor_b32 {t4}, {t4}, {t3}", f"v_lshlrev_b32 {t4}, 4, {t4}",
          f"v_lshl_add_u32 v{V_VD[n]}, {t0}, 8, {t4}")
    A(f"v_lshl_add_u32 {t4}, {t0}, 3, {t1}", f"v_lshlrev_b32 {t4}, 9, {t4}", f"v_lshl_add_u32 {t4}, {t2}, 4, {t4}",
      f"s_lshl_b32 s50, {S_U}, 8", f"s_add_u32 s50, s50, {WB}", f"v_add_u32 {t4}, s50, {t4}")
    A(f"s_lshl_b32 s51, {S_QH}, 1", f"v_xor_b32 {t1}, s51, {t1}")
    for s in range(4):
        A(f"v_xor_b32 {t5}, {s}, {t1}", f"v_lshl_add_u32 v{V_WQR[s]}, {t5}, 6, {t4}")
    A(f"v_lshrrev_b32 {t4}, 2, {t3}", f"v_lshlrev_b32 {t4}, 1, {t4}", f"v_mov_b32 {t5}, 0x78", f"v_lshrrev_b32 {t4}, {t4}, {t5}", f"v_and_b32 {t4}, 3, {t4}",
      f"v_xor_b32 {t4}, {t4}, {t0}", f"v_lshlrev_b32 {t4}, 4, {t4}", f"v_lshl_add_u32 {t4}, {t3}, 6, {t4}",
      f"s_mul_i32 s50, {S_QH}, 5120", f"s_add_u32 s50, s50, {XB}", f"v_add_u32 v{V_XR}, s50, {t4}", f"v_add_u32 v{V_XR4}, {XB + 4096}, {t4}")
    return L

def lane_consts_rest():
    L = []; A = lambda *x: L.extend(II(*x))
    l = V_LANE; t0, t1, t2, t3, t4, t5, t6 = [f"v{x}" for x in VT[:7]]
    A(f"v_lshrrev_b32 {t0}, 4, {l}", f"v_bfe_u32 {t1}, {l}, 2, 2", f"v_and_b32 {t2}, 3, {l}", f"v_and_b32 {t3}, 15, {l}")
    A(f"s_lshl_b32 s50, {S_U}, 13", f"s_add_u32 s51, s50, {KB}", f"v_lshlrev_b32 {t4}, 8, {t3}", f"v_add_u32 {t4}, s51, {t4}")
    A(f"s_lshl_b32 s51, {S_QH}, 3", f"v_xor_b32 {t6}, s51, {t3}")
    for s in range(4):
        A(f"v_add_u32 {t5}, {4*s}, {t0}", f"v_xor_b32 {t5}, {t5}, {t6}", f"v_lshl_add_u32 v{V_KR[s]}, {t5}, 4, {t4}")
    A(f"v_lshrrev_b32 {t4}, 2, {l}", f"v_and_b32 {t5}, 7, {t4}", f"v_lshlrev_b32 {t5}, 1, {t5}",
      f"v_lshlrev_b32 {t4}, 8, {t4}", f"v_add_u32 {t4}, s50, {t4}",
      f"v_and_b32 {t6}, 1, {t2}", f"v_lshl_add_u32 {t4}, {t6}, 3, {t4}",
      f"v_lshrrev_b32 {t6}, 1, {t2}",
      f"s_lshl_b32 s51, {S_QH}, 3", f"v_xor_b32 {t5}, s51, {t5}")
    for dt in range(8):
        d = f"v{V_VR[dt]}"
        A(f"v_add_u32 {d}, {2*dt}, {t6}", f"v_xor_b32 {d}, {d}, {t5}", f"v_lshl_add_u32 {d}, {d}, 4, {t4}")
    A(f"v_lshlrev_b32 {t4}, 2, {t0}", f"v_xor_b32 {t4}, {t4}, {t3}", f"v_lshlrev_b32 {t4}, 4, {t4}", f"v_lshl_add_u32 {t4}, {t0}, 10, {t4}")
    for n in range(4):
        A(f"v_add_u32 v{V_WOD[n]}, {n*3072}, {t4}")
    A(f"v_lshrrev_b32 {t4}, 2, {l}", f"v_lshlrev_b32 {t4}, 8, {t4}", f"v_lshl_add_u32 {t4}, {t2}, 4, {t4}",
      f"s_lshl_b32 s50, {S_W}, 13", f"s_add_u32 s50, s50, {WOB}", f"v_add_u32 {t4}, s50, {t4}")
    for cp in range(4):
        A(f"v_xor_b32 {t5}, {cp}, {t1}", f"v_lshl_add_u32 v{V_WOR[cp]}, {t5}, 6, {t4}")
    A(f"s_mul_i32 s50, {S_QH}, 40960", f"s_lshl_b32 s51, {S_U}, 12", "s_add_u32 s50, s50, s51",
      f"v_lshlrev_b32 v{V_OR}, 4, {l}", f"v_add_u32 v{V_OW}, s50, v{V_OR}", f"v_add_u32 v{V_OR8}, 0x10000, v{V_OR}")
    A(f"s_lshl_b32 s50, {S_HP}, 10", f"v_add_u32 v{V_PS}, s50, v{V_OR}")
    return L

def dma(voff, srd, soff, imm, nt=False):
    o = f" offset:{imm}" if imm else ""
    return I(f"buffer_load_dwordx4 v{voff}, {srd}, {soff} offen{o}{' nt' if nt else ''} lds")

def kv_group(kind, m0expr, soffreg):
    if kind == 'K':
        return [dma(V_KD[n], SRD_K, soffreg, n * 1024, OPT['kvnt']) for n in range(4)]
    return [dma(V_VD[n & 1], SRD_V, soffreg, n * 1024, OPT['kvnt']) for n in range(4)]

def kv_tile_full_unused(kind, j):
    L = []
    base = (KB + kphys(j)) if kind == 'K' else (VB + vphys(j))
    for gI in range(2):
        L += II(f"s_lshl_b32 s50, {S_U}, 13", f"s_add_u32 m0, s50, {base + gI*4096}", f"s_mov_b32 s51, {j*8192 + gI*4096}")
        L += kv_group(kind, None, "s51")
    return L

def stage_setup_scalar():
    rot = OPT['rot']
    R = II("s_lshr_b32 s50, s2, 3", "s_and_b32 s51, s50, 3", "s_lshr_b32 s50, s50, 2")
    if rot in (True, 1):   R += II("s_lshl_b32 s51, s51, 2", "s_lshl_b32 s50, s50, 1", "s_add_u32 s52, s50, s51")
    elif rot == 2:         R += II("s_lshr_b32 s50, s50, 1", "s_add_u32 s52, s50, s51", "s_lshl_b32 s52, s52, 2")
    elif rot == 3:         R += II("s_add_u32 s52, s50, s51", "s_lshl_b32 s52, s52, 2")
    elif rot == 4:         R += II("s_lshr_b32 s50, s50, 2", "s_lshl_b32 s50, s50, 3", "s_lshl_b32 s51, s51, 2", "s_add_u32 s52, s50, s51")
    elif rot == 5:         R += II("s_mul_i32 s50, s50, 3", "s_lshl_b32 s51, s51, 2", "s_add_u32 s52, s50, s51")
    elif rot == 6:         R += II("s_lshl_b32 s52, s50, 1")
    elif rot == 7:         R += II("s_lshl_b32 s50, s50, 1", "s_and_b32 s51, s51, 1", "s_lshl_b32 s51, s51, 3", "s_add_u32 s52, s50, s51")
    else:                  R += II("s_mov_b32 s52, 0")
    return R + II("s_and_b32 s52, s52, 15",
              f"s_lshl_b32 s50, s52, 6", f"s_lshl_b32 s51, {S_W}, 15", f"s_add_u32 {S_SOFFX}, s50, s51",
              f"s_lshl_b32 s50, s52, 18", f"s_lshl_b32 s51, {S_W}, 16", f"s_add_u32 {S_SOFFW0}, s50, s51",
              f"s_lshl_b32 s50, {S_W}, 12", f"s_add_u32 {S_BW}, s50, {WB}",
              f"s_lshl_b32 s50, {S_W}, 11", f"s_add_u32 {S_BX}, s50, {XB}",
              f"s_lshl_b32 s50, {S_W}, 8", f"s_add_u32 {S_BX3}, s50, {XB + 8192}",
              )
def kv_setup_scalar():
    return II(f"s_lshl_b32 {S_TQ}, {S_QH}, 12",
              f"s_lshl_b32 s50, {S_U}, 13", f"s_add_u32 s50, s50, {S_TQ}", f"s_add_u32 {S_MK}, s50, {KB}", f"s_add_u32 {S_MV}, s50, {VB}")

def stage_dma_list(slot):
    seq = []
    seq.append(([I(f"s_add_u32 m0, {S_BW}, {slot*16384}")], dma(V_WQD[0], SRD_WQ, S_SOFFW0, 0, OPT['wnt'])))
    for j in range(1, 4): seq.append(([], dma(V_WQD[j], SRD_WQ, S_SOFFW0, j * 1024, OPT['wnt'])))
    seq.append(([I(f"s_add_u32 m0, {S_BX}, {slot*9216}")], dma(V_XD[0], SRD_X, S_SOFFX, 0, OPT['xnt'])))
    seq.append(([], dma(V_XD[1], SRD_X, S_SOFFX, 1024, OPT['xnt'])))
    q = dma(V_XD[2], SRD_X, S_SOFFX, 0, OPT['xnt'])
    seq.append(([I(f"s_add_u32 m0, {S_BX3}, {slot*9216}")], Masked(q, 0xffff)))
    return seq

def place_dma(S, seq, gaps):
    k = 0
    last = None
    for e in seq:
        if e[0]:
            for p in e[0]: S.put(gaps[k], p)
            k += 1
        S.put(gaps[k], e[1]); last = gaps[k]
        if len(e) > 2:
            for p in e[2]: S.put(gaps[k] + 1, p)
        k += 1
    return last

def stage_advance_w():
    return II(f"s_add_u32 {S_SOFFW0}, {S_SOFFW0}, 262144", f"s_and_b32 {S_SOFFW0}, {S_SOFFW0}, 0x3fffff")
def stage_advance_x():
    return II(f"s_add_u32 {S_SOFFX}, {S_SOFFX}, 64", f"s_and_b32 {S_SOFFX}, {S_SOFFX}, 0xfffffbff")
def stage_advance(): return stage_advance_w() + stage_advance_x()

def straight(seq):
    L = []
    for e in seq:
        L += e[0]
        if e[0]: L += II("s_nop 0")
        L.append(e[1])
        if len(e) > 2: L += e[2]
    return L

def stage_issue_straight(slot):
    return straight(stage_dma_list(slot)) + stage_advance()

def wq_read(dt, h2, slot):
    if OPT.get('x_noread'): return I('s_nop 0')
    s, hf = dt >> 1, dt & 1
    b = abuf(dt) + 2 * h2
    off = slot * 16384 + hf * 8 + h2 * 2048
    return I(f"ds_read_b64_tr_b16 {ar(b,2)}, v{V_WQR[s]}" + (f" offset:{off}" if off else ""))
def x_read(t, slot):
    if OPT.get('x_noread'): return I('s_nop 0')
    off = slot * 9216 + (0 if t == 4 else t * 1024)
    return I(f"ds_read_b128 {vr(bbuf(t))}, v{V_XR4 if t == 4 else V_XR}" + (f" offset:{off}" if off else ""))
def q_mfma(dt, t):
    if OPT.get('x_t4') and t == 4: return I("s_nop 3")
    if OPT.get('x_t45') and t == 4 and dt >= 4: return I("s_nop 3")
    return mfma(vr(qacc(dt, t)), ar(abuf(dt)), vr(bbuf(t)), vr(qacc(dt, t)))

def half_group(kind, j):
    if kind == 'K':
        pre = II(f"s_add_u32 m0, {S_MK}, {kphys(j)}", f"s_add_u32 s51, {S_TQ}, {j*8192}")
    else:
        pre = II(f"s_add_u32 m0, {S_MV}, {vphys(j)}", f"s_add_u32 s51, {S_TQ}, {j*8192}")
    g = kv_group(kind, None, "s51")
    return [(pre, g[0])] + [([], x) for x in g[1:]]

def put_dmas(S, seq, gaps):
    prev = -1
    for e, g in zip(seq, gaps):
        if e[0]:
            assert g - 1 > prev or prev < 0, (g, prev)
            for p in e[0]: S.put(g - 1, p)
        S.put(g, e[1])
        if len(e) > 2:
            for p in e[2]: S.put(g + 1, p)
        prev = g
    assert len(seq) <= len(gaps)

QTAIL = (4, 5, 6, 7)
def q_tail(): return [q_mfma(dt, t) for t in range(4) for dt in QTAIL]
SRD_T = "s[96:99]"; V_T = [10, 11, 12, 13]; S_TM, S_TS = "s35", "s36"
V_TB2 = [252, 253, 254, 255]
V_TB = [244, 245, 246, 247]
DUMMY = 151552
def burst_list():
    g = [dma(V_TB[n], SRD_T, S_TS, n * 1024, OPT['kvnt']) for n in range(4)]
    return [([I(f"s_mov_b32 m0, {S_TM}")], g[0])] + [([], x) for x in g[1:]]

def q_body(ks, with_dma, burst=False, extra_dma=None, wait=None):
    slot = ks & 3
    ms = q_tail() + [q_mfma(dt, t) for t in range(5) for dt in range(4)]
    S = Sched(ms)
    a = lambda dt, h: wq_read(dt, h, slot)
    xr = lambda t: x_read(t, slot)
    plan = {0: a(0,0), 1: a(0,1), 2: a(1,0), 3: a(1,1), 4: xr(0), 5: a(2,0), 7: a(2,1), 8: xr(1), 9: a(3,0), 11: a(3,1),
            12: xr(2), 13: xr(4), 16: xr(3), 17: a(4,0), 19: a(4,1), 20: a(5,0), 21: a(5,1), 23: a(6,0), 24: a(6,1), 25: a(7,0), 27: a(7,1)}
    for g, ins in plan.items(): S.put(g, ins)
    if with_dma:
        put_dmas(S, stage_dma_list((ks + 3) & 3), [6, 10, 14, 18, 22, 26, 29])
        w = stage_advance_w(); x = stage_advance_x()
        S.put(19, w[0]); S.put(20, w[1]); S.put(30, x[0]); S.put(31, x[1])
    if burst:
        put_dmas(S, burst_list(), [32, 33, 34, 35]) if False else None
        put_dmas(S, burst_list(), [15, 28, 31, 33])  if False else None
    if extra_dma:
        put_dmas(S, extra_dma, [6, 10, 14, 18, 22, 26, 30, 32][:len(extra_dma)])
    return S

def q_finish(S, wait, wg=33):
    S.put(wg, tr_mark(), f"s_waitcnt vmcnt({wait}) lgkmcnt(0)", tr_commit())
    S.put(wg + 1, "s_barrier")
    seq, pend = lgkm_waits(S.flat())
    assert not pend
    if OPT['verbose']: print(S.report("q_body"))
    return seq

def tr_mark():
    return [Raw("s_memtime s[100:101]")] if OPT.get('trace') else []
def tr_commit():
    return [Raw("s_mov_b32 s95, m0\n  s_mov_b32 m0, s94\n  s_nop 0\n  v_writelane_b32 v0, s100, m0\n  s_mov_b32 m0, s95\n  s_add_u32 s94, s94, 1")] if OPT.get('trace') else []
def tr_dump():
    if not OPT.get('trace'): return []
    return II("s_add_u32 s66, s58, 0x9000000", "s_addc_u32 s67, s59, 0", "s_lshl_b32 s50, s2, 2", f"s_add_u32 s50, s50, {S_W}", "s_lshl_b32 s50, s50, 8",
              f"v_lshlrev_b32 v253, 2, {V_LANE}", "v_add_u32 v253, s50, v253", "global_store_dword v253, v0, s[66:67]")

def zero_init():
    L = II("v_mov_b32 v244, 0", "v_mov_b32 v245, 0", "v_mov_b32 v246, 0", "v_mov_b32 v247, 0", "s_nop 1")
    for r in range(RB, RB + 160, 16): L += II(f"v_mfma_f32_32x32x16_bf16 v[{r}:{r+15}], v[244:247], v[244:247], 0")
    for r in range(0, 256, 16): L += II(f"v_mfma_f32_32x32x16_bf16 a[{r}:{r+15}], v[244:247], v[244:247], 0")
    return L

def phase_q():
    L = []; A = lambda *x: L.extend(II(*x))
    A("L_phase_q:")
    A(stage_setup_scalar(), stage_issue_straight(0))
    A(setup_b())
    A(kv_setup_scalar())
    A(lane_consts_q2())
    A(stamp("q_issued"))
    A(zero_init())
    A(lane_consts_rest())
    A(f"s_mov_b32 {S_CNT}, 0")
    if OPT.get('trace'): A("s_mov_b32 s94, 1", "s_memtime s[100:101]", "s_waitcnt lgkmcnt(0)", "v_writelane_b32 v0, s100, 0")
    A(f"v_mov_b32 v{VT[0]}, 0x3f803f80")
    for r in range(4): A(f"v_accvgpr_write_b32 a{A_ONES + r}, v{VT[0]}")
    for t in range(5):
        for k in range(4): A(f"v_mov_b32 v{bbuf(t)+k}, 0")
    A("s_mov_b32 s96, s12", "s_mov_b32 s97, s13", "s_mov_b32 s98, s14", "s_mov_b32 s99, s15")
    for n in range(4): A(f"v_mov_b32 v{V_TB[n]}, v{V_KD[n]}")
    if OPT.get('stst'): A(stamp("consts"))
    A(stage_issue_straight(1))
    if OPT.get('stst'): A(stamp("s1_iss"))
    A("s_waitcnt vmcnt(7)")
    if OPT.get('stst'): A(stamp("s0_land"))
    A("s_barrier")
    if OPT['fused']:
        A(f"s_cmp_eq_u32 {S_SAFE}, 1", "s_cbranch_scc1 L_no_arrive")
        A(f"s_lshl_b32 s50, {S_CL}, 2", f"s_add_u32 s50, s50, {CNTOFF()}", f"s_lshl_b32 s51, {S_W}, 14", "s_add_u32 s50, s50, s51",
          f"v_lshlrev_b32 v46, 8, {V_LANE}", "v_add_u32 v46, s50, v46", "v_mov_b32 v47, 1",
          f"buffer_atomic_add v47, v46, {SRD_D}, 0 offen sc1")
        A("L_no_arrive:")
    A(stage_issue_straight(2))
    if OPT.get('stst'): A(stamp("s2_iss"))
    A(f"s_add_u32 {S_TM}, {S_MK}, {kphys(0)}", f"s_mov_b32 {S_TS}, {S_TQ}")
    A(stamp("q_start"))
    l2 = OPT['l2pf']
    if l2:
        A(f"s_add_u32 s37, {S_TQ}, {4*8192}", "s_mov_b32 s92, s12", "s_mov_b32 s93, s13", "s_mov_b32 s94, s14", "s_mov_b32 s95, s15",
          "s_mov_b64 vcc, -1")
    bodies = []
    QOOL = []
    for k in range(4):
        S = q_body(k, True)
        if k == 1:
            put_dmas(S, burst_list(), [32, 33, 34, 35])
        if k == 3 and l2:
            g = [dma(V_OR, "s[92:95]", "s37", n * 1024, False) for n in range(4)]
            put_dmas(S, [([I(f"s_mov_b32 m0, {DUMMY}")], g[0])] + [([], x) for x in g[1:]], [32, 33, 34, 35])
        if l2:
            n_steady, n_first = [(18, 14), (22, 18), (18, 18), (22, 22)][k]
        else:
            n_steady = n_first = 14 if k == 0 else 18
        if OPT.get('b0st') and k == 0:
            for nm, g in (("g5", 5), ("g6", 7), ("g15", 15), ("g20", 20), ("g30", 31)):
                S.put(g, Raw(f"s_cmp_eq_u32 {S_CNT}, 0\n  s_cbranch_scc0 L_b0_{nm}\n  " + "\n  ".join(x.txt for x in stamp(nm)) + f"\nL_b0_{nm}:"))
        late = (k == 1) or (k == 3 and l2)
        w = tr_mark() + II(f"s_waitcnt vmcnt({n_steady}) lgkmcnt(0)")
        if n_first != n_steady:
            w += II(f"s_cbranch_vccnz L_q_first{k}", f"L_q_back{k}:")
            QOOL += II(f"L_q_first{k}:", f"s_waitcnt vmcnt({n_first})", f"s_branch L_q_back{k}")
        w += tr_commit()
        if late:
            seq, pend = lgkm_waits(S.flat())
            seq += w + II("s_barrier")
        else:
            S.put(33, w); S.put(34, "s_barrier")
            seq, pend = lgkm_waits(S.flat())
            assert not pend
        if OPT['verbose']: print(S.report("q_body"))
        bodies.append(seq)
    hist = bodies[3][-24:]
    A(".p2align 6", "L_q_loop:")
    for bi, b in enumerate(bodies):
        b2, n = hazards(b, history=hist); L.extend(b2); hist = b2[-24:]
        if OPT.get('stst') and bi < 2: A(f"s_cmp_eq_u32 {S_CNT}, 0", f"s_cbranch_scc0 L_nost{bi}", stamp(f"body{bi}"), f"L_nost{bi}:")
    A(f"s_add_u32 {S_TM}, {S_TM}, 16384", f"s_add_u32 {S_TS}, {S_TS}, 8192", f"s_add_u32 {S_CNT}, {S_CNT}, 1")
    if l2:
        A("s_mov_b64 vcc, 0", f"s_cmp_eq_u32 {S_CNT}, 1", "s_cbranch_scc1 L_q_to1", "L_q_to1_done:")
    A(f"s_cmp_eq_u32 {S_CNT}, 2", "s_cbranch_scc0 L_q_tov_done",
      "s_mov_b32 s96, s16", "s_mov_b32 s97, s17", f"s_add_u32 {S_TM}, {S_MV}, {vphys(0)}", f"s_mov_b32 {S_TS}, {S_TQ}")
    if l2: A("s_mov_b32 s92, s12", "s_mov_b32 s93, s13", f"s_add_u32 s37, {S_TQ}, {5*8192}")
    for n in range(4): A(f"v_mov_b32 v{V_TB[n]}, v{V_VD[n & 1]}")
    A("L_q_tov_done:", f"s_cmp_lt_u32 {S_CNT}, 3", "s_cbranch_scc1 L_q_loop")
    OOL = []
    if l2: OOL += II("L_q_to1:", "s_mov_b32 s92, s16", "s_mov_b32 s93, s17", f"s_add_u32 s37, {S_TQ}, {3*8192}", "s_branch L_q_to1_done")
    OOL += QOOL
    b, n = hazards(q_finish(q_body(12, True), 18 if l2 else 14), history=hist); L.extend(b)
    b, n = hazards(q_finish(q_body(13, False, extra_dma=half_group('V', 1)), 15 if l2 else 11), history=b[-24:]); L.extend(b)
    b, n = hazards(q_finish(q_body(14, False, extra_dma=half_group('K', 2) + half_group('V', 2)), 12), history=b[-24:]); L.extend(b)
    b, n = hazards(q_finish(q_body(15, False), 12), history=b[-24:]); L.extend(b)
    if OOL:
        A("s_branch L_q_after_ool")
        L.extend(OOL)
        A("L_q_after_ool:")
    A(stamp("q_loop_done"))
    return L

def q_tiles(s): return range(5) if s < 2 else range(4)
def q_scale(ss):
    return [I(f"v_pk_mul_f32 {vr(grp(t,s)+2*k,2)}, {vr(grp(t,s)+2*k,2)}, {vr(V_C0,2)}") for s in ss for t in q_tiles(s) for k in range(4)]
def q_cvt(ss):
    return [I(f"v_cvt_pk_bf16_f32 v{grp(t,s)+k}, v{grp(t,s)+2*k}, v{grp(t,s)+2*k+1}") for s in ss for t in q_tiles(s) for k in range(4)]
QX = 155648

def transition():
    L = []; A = lambda *x: L.extend(II(*x))
    A(f"s_add_u32 {S_SOFFK}, {S_TQ}, {5*8192}", f"s_add_u32 {S_SOFFV}, {S_TQ}, {4*8192}")
    A(f"v_mov_b32 v{V_C0}, {hex(f2u(SCALE))}", f"v_mov_b32 v{V_C1}, {hex(f2u(SCALE))}")
    A(f"s_lshl_b32 s50, {S_W}, 11", f"s_add_u32 s50, s50, {QX}", f"v_lshlrev_b32 v7, 4, {V_LANE}", "v_add_u32 v8, s50, v7",
      "s_xor_b32 s50, s50, 2048", "v_add_u32 v9, s50, v7")
    k3 = half_group('K', 3)
    seq = [k_read(kt, s, 0) for kt in range(2) for s in range(4)]
    sc = q_scale((0, 1))
    seq += II("s_nop 3") + sc
    S = Sched(q_tail())
    cv = q_cvt((0, 1))
    sh = lambda c: any(f"v{grp(4,s)+k}," in c.txt.split()[1] + "," for s in (0, 1) for k in range(4))
    cv = [c for c in cv if sh(c)] + [c for c in cv if not sh(c)]
    S.spread(cv, [min(i * 2 // 5, 15) for i in range(40)])
    S.put(5, f"ds_write_b128 v8, {vr(grp(4,0))}"); S.put(7, f"ds_write_b128 v8, {vr(grp(4,1))} offset:1024")
    seq += S.flat()
    seq += II("s_waitcnt lgkmcnt(0)", "s_barrier", f"ds_read_b128 {vr(grp(4,2))}, v9", f"ds_read_b128 {vr(grp(4,3))}, v9 offset:1024")
    sc = q_scale((2, 3))
    seq += II("s_nop 3") + k3[0][0] + sc[:8] + [k3[0][1]] + sc[8:16] + [k3[1][1]] + sc[16:24] + [k3[2][1]] + sc[24:] + [k3[3][1]]
    qk = lambda kt, ss, c: [qk_mfma(kt, s, t, c) for s in ss for t in range(5)]
    S = Sched(qk(0, (0, 1), lambda t: "0") + qk(0, (2, 3), lambda t: "0"))
    S.spread(q_cvt((2, 3)), [min(i * 5 // 16, 9) for i in range(32)])
    S.spread([f"v_mov_b32 v{Preg(1,t)+k}, 0" for t in range(5) for k in range(4)], [10 + i // 2 for i in range(20)])
    seq += S.flat()
    seq += straight(half_group('V', 3))
    seq, _ = lgkm_waits(seq, final_zero=True)
    seq, n = hazards(seq); L.extend(seq)
    A(stamp("qk0_done"))
    A(f"s_cmp_eq_u32 {S_SAFE}, 1", "s_cbranch_scc1 L_safe_max")
    T = [2, 3, 4, 5, 6]
    U = [7, 8, 9, 10, 11]
    E = II("s_nop 5")
    for t in range(5): E += II(f"v_max3_f32 v{T[t]}, v{Sreg(0,t)}, v{Sreg(0,t)+1}, v{Sreg(0,t)+2}")
    for t in range(5): E += II(f"v_max_f32 v{T[t]}, v{T[t]}, v{Sreg(0,t)+3}")
    E += row_max_finish(T, U)
    S = Sched(qk(1, range(4), lambda t: vr(cinit(t))))
    sub = [f"v_add_f32 v{Sreg(0,t)+k}, v{Sreg(0,t)+k}, v{cinit(t)}" for t in range(5) for k in range(4)]
    ex = [f"v_exp_f32 v{Sreg(0,t)+k}, v{Sreg(0,t)+k}" for t in range(5) for k in range(4)]
    S.spread(sub, [i // 2 for i in range(20)])
    S.spread(ex, [min(2 + i, 19) for i in range(20)])
    E += S.flat()
    E += II("s_barrier")
    E += II("s_nop 3") + exps(1)
    E, n = hazards(E, history=L[-24:]); L.extend(E)
    A("L_max_done:")
    A(straight(half_group('K', 4)))
    return L

def row_max_finish(T, U):
    E = []
    for sw in ("v_permlane32_swap_b32", "v_permlane16_swap_b32"):
        for t in range(5): E += II(f"v_mov_b32 v{U[t]}, v{T[t]}")
        for t in range(5): E += II(f"{sw} v{T[t]}, v{U[t]}")
        for t in range(5): E += II(f"v_max_f32 v{T[t]}, v{T[t]}, v{U[t]}")
    for t in range(5):
        for k in range(4): E += II(f"v_sub_f32 v{cinit(t)+k}, 0, v{T[t]}")
    return E

def safe_paths():
    L = []; A = lambda *x: L.extend(II(*x))
    T = [2, 3, 4, 5, 6]; U = [7, 8, 9, 10, 11]
    ab = [(Sreg(0, t), Sreg(1, t)) for t in range(5)]
    A("L_safe_max:")
    for t in range(5): A(f"v_mov_b32 v{T[t]}, 0xff800000")
    A(f"s_mov_b32 {S_CNT}, 0")
    A("L_safe_loop:")
    A("s_waitcnt vmcnt(0) lgkmcnt(0)", "s_barrier")
    A(f"s_and_b32 s50, {S_CNT}, 15", "s_lshl_b32 s50, s50, 13", f"s_add_u32 s51, s50, {S_TQ}", f"s_add_u32 m0, {S_MK}, {kphys(0)}", "s_nop 0")
    A(kv_group('K', None, "s51"))
    A("s_waitcnt vmcnt(0)", "s_barrier")
    A([k_read(kt, s, 0) for kt in range(2) for s in range(4)], "s_waitcnt lgkmcnt(0)")
    A(f"s_cmp_eq_u32 {S_CNT}, 16", "s_cbranch_scc1 L_safe_last")
    A([qk_mfma(kt, s, t, lambda t: "0") for kt in range(2) for s in range(4) for t in range(5)], "s_nop 7", "s_nop 7")
    for t, (a, b) in enumerate(ab):
        A(f"v_max3_f32 v{T[t]}, v{T[t]}, v{a}, v{a+1}", f"v_max3_f32 v{T[t]}, v{T[t]}, v{a+2}, v{a+3}",
          f"v_max3_f32 v{T[t]}, v{T[t]}, v{b}, v{b+1}", f"v_max3_f32 v{T[t]}, v{T[t]}, v{b+2}, v{b+3}")
    A(f"s_add_u32 {S_CNT}, {S_CNT}, 1", f"s_cmp_lt_u32 {S_CNT}, 16", "s_cbranch_scc1 L_safe_loop")
    E, n = hazards(II("s_nop 3") + row_max_finish(T, U)); L.extend(E)
    A("s_branch L_safe_loop")
    A("L_safe_last:", "s_nop 3")
    A([qk_mfma(kt, s, t, lambda t: vr(cinit(t))) for kt in range(2) for s in range(4) for t in range(5)], "s_nop 7", "s_nop 7")
    A("s_barrier")
    for t, (a, b) in enumerate(ab):
        for base in (a, b):
            for k in range(4): A(f"v_exp_f32 v{base+k}, v{base+k}")
    A("s_nop 1", "s_branch L_max_done")
    if OPT['fused']:
        A("L_cnt_spin:", f"s_mov_b32 s53, {SPIN}", "L_cnt_spin_loop:", "s_sleep 2",
          f"buffer_load_dword v15, v14, {SRD_D}, 0 offen sc1", "s_waitcnt vmcnt(0)", "v_readfirstlane_b32 s52, v15", "s_nop 3",
          "s_cmp_ge_u32 s52, 16", "s_cbranch_scc1 L_cnt_ok", "s_sub_u32 s53, s53, 1", "s_cmp_lg_u32 s53, 0", "s_cbranch_scc1 L_cnt_spin_loop", "s_branch L_cnt_ok")
    A("L_restart:", f"s_mov_b32 {S_SAFE}, 1", "s_waitcnt vmcnt(0) lgkmcnt(0)", "s_barrier")
    A(lane_consts_q())
    A("s_branch L_phase_q")
    return L

def k_read(kt, s, slotk):
    off = kphys(slotk) + kt * 4096
    return I(f"ds_read_b128 {ar(kbuf(kt, s))}, v{V_KR[s]}" + (f" offset:{off}" if off else ""))
def v_read(dt, h, slotv):
    off = vphys(slotv) + h * 4096
    return I(f"ds_read_b64_tr_b16 {ar(abuf(dt) + 2*h, 2)}, v{V_VR[dt]}" + (f" offset:{off}" if off else ""))
def qk_mfma(kt, s, t, first_c):
    c = first_c(t) if s == 0 else vr(Sreg(kt, t))
    return mfma(vr(Sreg(kt, t)), ar(kbuf(kt, s)), vr(qfrag(t, s)), c)
def pv_mfma(dt, t, par):
    return mfma(ar(oacc(dt, t)), ar(abuf(dt)), vr(Preg(par, t)), ar(oacc(dt, t)))
def rs_mfma(t, par):
    return mfma(ar(lacc(t)), ar(A_ONES), vr(Preg(par, t)), ar(lacc(t)))
def cvts(par):
    out = []
    for kt in range(2):
        for t in range(5):
            s = Sreg(kt, t); p = Preg(par, t) + 2 * kt
            out.append(I(f"v_cvt_pk_bf16_f32 v{p}, v{s}, v{s+1}"))
            out.append(I(f"v_cvt_pk_bf16_f32 v{p+1}, v{s+2}, v{s+3}"))
    return out
def exps(kt):
    return [I(f"v_exp_f32 v{Sreg(kt,t)+i}, v{Sreg(kt,t)+i}") for t in range(5) for i in range(4)]

def att_dma(j, dyn=False):
    seq = []
    if j == 0 or j > 12: return seq
    if True:
        pre = II(f"s_add_u32 m0, {S_MK}, {kphys(j + 4)}")
        g = kv_group('K', None, S_SOFFK)
        seq += [(pre, g[0])] + [([], x) for x in g[1:]]
        seq[-1] = (seq[-1][0], seq[-1][1], II(f"s_add_u32 {S_SOFFK}, {S_SOFFK}, 8192"))
    if j + 3 <= 15:
        pre = II(f"s_add_u32 m0, {S_MV}, {vphys(j + 3)}")
        g = kv_group('V', None, S_SOFFV)
        s2 = [(pre, g[0])] + [([], x) for x in g[1:]]
        s2[-1] = (s2[-1][0], s2[-1][1], II(f"s_add_u32 {S_SOFFV}, {S_SOFFV}, 8192"))
        seq += s2
    return seq

def wo_dma(ks, slot_base_imm):
    seq = []
    for gI in range(2):
        pre = II(f"s_lshl_b32 s50, {S_W}, 13", f"s_add_u32 m0, s50, {slot_base_imm + gI*4096}", f"s_mov_b32 s51, {ks*32768 + gI*16384}")
        for n in range(4):
            seq.append((pre if n == 0 else [], dma(V_WOD[n], SRD_WO, "s51", n * 1024, OPT["wont"])))
    return seq

def att_body(j, vmwait, extra_dma=None):
    par_old, par_new = (j - 1) & 1, j & 1
    ms = [pv_mfma(dt, t, par_old) for dt in (5, 6, 7) for t in range(5)] + [rs_mfma(t, par_old) for t in range(5)]
    ms += [qk_mfma(kt, s, t, lambda t: vr(cinit(t))) for kt in range(2) for s in range(4) for t in range(5)]
    ms += [pv_mfma(dt, t, par_new) for dt in range(5) for t in range(5)]
    S = Sched(ms)
    cv = cvts(par_new)
    S.spread(cv, [1, 1, 3, 3, 6, 6, 8, 8, 11, 11, 13, 13, 16, 16, 18, 18, 21, 21, 23, 23])
    S.spread([k_read(kt, s, j + 1) for kt in range(2) for s in range(4)], [0, 2, 5, 7, 10, 12, 15, 17])
    vr_ = [v_read(dt, h, j) for dt in range(8) for h in range(2)]
    S.spread(vr_, [20, 22, 25, 26, 27, 28, 30, 31, 32, 33, 35, 36, 37, 38, 40, 61])
    d = att_dma(j) + (extra_dma or [])
    put_dmas(S, d, [4, 9, 14, 19, 24, 29, 34, 39])
    S.spread(exps(0), list(range(41, 61)))
    S.spread(exps(1), list(range(62, 82)))
    seq = S.flat()
    seq, pend = lgkm_waits(seq)
    seq += tr_mark() + II(f"s_waitcnt vmcnt({vmwait}) lgkmcnt(0)") + tr_commit() + II("s_barrier")
    if OPT['verbose']: print(S.report(f"att_body {j}"))
    return seq

WO1 = [192, 200, 208, 216, 224, 228, 232, 236]
def wofrag(ks, m, n=4, off=0):
    if ks == 0: return ar(216 + 4 * m + off, n)
    if ks == 1: return vr(WO1[m] + off, n)
    return ar((ks - 2) * 32 + 4 * m + off, n)
def wo_read(ks, m, h):
    cp, hf = m >> 1, m & 1
    off = (32768 if (ks & 1) == 0 else 0) + hf * 8 + h * 4096
    return I(f"ds_read_b64_tr_b16 {wofrag(ks, m, 2, 2*h)}, v{V_WOR[cp]}" + (f" offset:{off}" if off else ""))

def tlb_touch():
    L = II(f"v_mul_u32_u24 v46, 0x100000, {V_LANE}",
           f"buffer_load_dword v47, v46, {SRD_P}, 0 offen")
    if OPT['tlb'] == 2:
        L += II(f"s_mul_i32 s50, {S_B}, {144*2048}", f"v_lshlrev_b32 v46, 26, {V_LANE}", f"buffer_load_dword v47, v46, {SRD_O}, s50 offen")
    return L

def wo_prefetch(shift=0):
    n = OPT['pfw']
    L = II(f"s_add_u32 s50, {S_B}, {shift}", "s_and_b32 s50, s50, 7", "s_lshl_b32 s50, s50, 15", f"s_lshl_b32 s51, {S_W}, 13", "s_add_u32 s50, s50, s51")
    nt = " nt" if OPT['pfnt'] else ""
    if n == 8:
        L += II(f"v_lshlrev_b32 v46, 4, {V_LANE}")
        for i in range(8):
            L += II(f"s_add_u32 s51, s50, {i*1024}", f"buffer_load_dwordx4 v[252:255], v46, s[84:87], s51 offen{nt}")
    else:
        sh = {1: 7, 2: 6, 4: 5}[n]
        L += II(f"v_lshlrev_b32 v46, {sh}, {V_LANE}")
        for i in range(n):
            L += II(f"s_add_u32 s51, s50, {i * (64 << sh)}", f"buffer_load_dword v47, v46, s[84:87], s51 offen{nt}")
    return L

ATT_OOL = []
def attention():
    L = []; A = lambda *x: L.extend(II(*x))
    L += transition()
    A(stamp("att_start"))
    A(f"s_mov_b32 {S_CNT}, 0")
    b0, n = hazards(att_body(0, 16), history=L[-24:]); L.extend(b0)
    bodies = [att_body(j, 16) for j in range(1, 5)]
    hist = bodies[3][-24:]
    A(".p2align 6", "L_att_loop:")
    OOLA = []
    for i, b in enumerate(bodies):
        if i == 3:
            A(f"s_cmp_eq_u32 {S_CNT}, 2", "s_cbranch_scc0 L_att_nok_done")
            for n in range(4): A(f"v_add_u32 v{V_KD[n]}, 0x40000000, v{V_KD[n]}")
            A("L_att_nok_done:")
        b2, n = hazards(b, history=hist); L.extend(b2); hist = b2[-24:]
    if 0 <= OPT['pf'] < 3:
        A(f"s_cmp_eq_u32 {S_CNT}, {OPT['pf']}", "s_cbranch_scc0 L_att_nopf", wo_prefetch(), (wo_prefetch(4) if OPT.get('pfdup') else []),
          (tlb_touch() if OPT.get('tlb') else []), "L_att_nopf:")
    A(f"s_add_u32 {S_CNT}, {S_CNT}, 1", f"s_cmp_lt_u32 {S_CNT}, 3", "s_cbranch_scc1 L_att_loop")
    ATT_OOL.clear(); ATT_OOL.extend(OOLA)
    b, n = hazards(att_body(13, 16, extra_dma=wo_dma(0, WOA)), history=hist); L.extend(b); hist = b[-24:]
    if OPT.get('pf2nd'): A(wo_prefetch(4))
    b, n = hazards(att_body(14, 16, extra_dma=wo_dma(1, WOB)), history=hist); L.extend(b); hist = b[-24:]
    A(stamp("att_loop_done"))
    ms = [pv_mfma(dt, t, 0) for dt in (5, 6, 7) for t in range(5)] + [rs_mfma(t, 0) for t in range(5)]
    ms += [pv_mfma(dt, t, 1) for dt in range(8) for t in range(5)] + [rs_mfma(t, 1) for t in range(5)]
    S = Sched(ms)
    S.spread(cvts(1), list(range(0, 20)))
    S.spread([v_read(dt, h, 15) for dt in range(5) for h in range(2)], list(range(0, 10)))
    S.spread([v_read(dt, h, 15) for dt in (5, 6, 7) for h in range(2)], list(range(15, 21)))
    S.put(20, "s_waitcnt vmcnt(8)")
    S.spread([wo_read(0, m, h) for m in range(8) for h in range(2)], [21 + i // 2 for i in range(16)])
    S.put(28, "s_waitcnt vmcnt(0)")
    S.spread([wo_read(1, m, h) for m in range(8) for h in range(2)], [29 + i // 2 for i in range(16)])
    S.put(38, "s_waitcnt lgkmcnt(0)")
    if OPT['fused']:
        S.put(36, f"s_lshl_b32 s50, {S_CL}, 2", f"s_add_u32 s50, s50, {CNTOFF()}")
        S.spread([f"v_lshlrev_b32 v14, 8, {V_LANE}", "v_add_u32 v14, s50, v14"], [37, 37])
        S.put(38, f"buffer_load_dword v15, v14, {SRD_D}, 0 offen sc1")
    put_dmas(S, wo_dma(2, WOA), [41, 44, 47, 50, 54, 57, 60, 63])
    seq, pend = lgkm_waits(S.flat(), final_zero=True)
    seq, n = hazards(seq, history=hist); L.extend(seq)
    A("s_barrier")
    A("s_nop 3")
    A(stamp("att_done"))
    return L

def wo_dma_t(ks):
    d = wo_dma(ks, WOA if (ks & 1) == 0 else WOB)
    for e in d: e[1].tag = f"wo{ks}"
    return d
def wo_reads(ks): return [wo_read(ks, m, h) for m in range(8) for h in range(2)]

LFLAG = 90112

def o_epilogue():
    E = []
    tl = VT[0]; rc = VT[2]
    d3, d4, d5 = wo_dma_t(3), wo_dma_t(4), wo_dma_t(5)
    E += II(f"s_lshl_b32 s51, {S_QH}, 11", f"v_subrev_u32 v{V_OWB}, s51, v{V_OW}", f"v_add_u32 v{V_OW}, s51, v{V_OW}",
            f"s_lshl_b32 s50, {S_U}, 12", f"s_add_u32 s50, s50, 32768", "s_add_u32 s50, s50, s51", f"v_add_u32 v{V_OW4}, s50, v{V_OR}")
    def emit_dma(e):
        return e[0] + II("s_nop 0") * (1 if e[0] else 0) + [e[1]]
    nfr = 0
    for t in range(5):
        E += II(f"v_accvgpr_read_b32 v{tl}, a{lacc(t)}", f"v_rcp_f32 v{rc}, v{tl}", "s_nop 0", f"v_mov_b32 v{rc+1}, v{rc}")
        if t == 0: E += II(f"v_mov_b32 v{VT[1]}, v{tl}")
        else: E += II(f"v_max_f32 v{VT[1]}, v{VT[1]}, v{tl}")
        if t == 4:
            E += II(f"v_cmp_nge_f32 vcc, {hex(OPT['lthr'] or LTHR)}, v{VT[1]}", f"s_lshl_b32 s50, {S_W}, 2", f"s_add_u32 s50, s50, {LFLAG}", f"v_mov_b32 v52, s50",
                    "s_cmp_lg_u64 vcc, 0", "s_cselect_b32 s51, 1, 0", "v_mov_b32 v53, s51", "ds_write_b32 v52, v53")
        for ks in range(4 if t < 4 else 2):
            mid = []
            if nfr < 8: mid += emit_dma(d3[nfr])
            if 8 <= nfr < 16: mid += emit_dma(d4[nfr - 8])
            if nfr >= 16:
                for i in range(4): mid += emit_dma(d5[4 * (nfr - 16) + i])
            if OPT.get('x_oenodma'): mid = [x for x in mid if x.kind == 'dma'][:0] + [x for x in mid if x.kind != 'dma']
            rd = []
            cut = {0: (0, 6), 1: (6, 11), 2: (11, 16)}
            if 4 <= nfr < 7:
                if nfr == 4:
                    rd += [VmNeed("wo2")]
                    if OPT['fused']:
                        rd += II("v_readfirstlane_b32 s52, v15", "s_nop 3", "s_cmp_lt_u32 s52, 16", "s_cbranch_scc1 L_cnt_spin", "L_cnt_ok:")
                a_, b_ = cut[nfr - 4]; rd += wo_reads(2)[a_:b_]
            if 12 <= nfr < 15:
                if nfr == 12: rd += [VmNeed("wo3")]
                a_, b_ = cut[nfr - 12]; rd += wo_reads(3)[a_:b_]
            if OPT.get('oe_nord'): rd = [x for x in rd if x.kind != 'dsr']
            if OPT.get('oe_nowait'): rd = [x for x in rd if not isinstance(x, VmNeed)]
            if OPT.get('oe_nodma'): mid = []; rd = [x for x in rd if not (isinstance(x, VmNeed) and x.tag == 'wo3')]
            if nfr in (8, 16): E += II("s_waitcnt lgkmcnt(0)")
            E += rd
            for h in range(2):
                for k in range(4):
                    E += II(f"v_accvgpr_read_b32 v{52 + 4*h + k}, a{oacc(2*ks + h, t) + k}")
            E += mid
            for k in range(4): E += II(f"v_pk_mul_f32 {vr(52+2*k,2)}, {vr(52+2*k,2)}, {vr(rc,2)}")
            for k in range(4): E += II(f"v_cvt_pk_bf16_f32 v{60+k}, v{52+2*k}, v{53+2*k}")
            E += II(f"ds_write_b128 v{V_OW if ks < 2 else V_OWB}, {vr(60)} offset:{(t*8+ks)*1024}" if t < 4 else f"ds_write_b128 v{V_OW4}, {vr(60)} offset:{ks*1024}")
            nfr += 1
        if OPT['stamps'] and OPT.get('oest'): E += [Raw("\n  ".join(x.txt for x in stamp(f"oe{t}")))] + II("s_waitcnt lgkmcnt(0)")
    E, q = vm_waits(E, ["cnt"] + ["wo2"] * 8)
    E, pend = lgkm_waits(E, final_zero=True)
    E, n = hazards(E)
    return E + II("s_barrier"), q

def o_read(dst, t, ks):
    if t < 8: return I(f"ds_read_b128 {vr(dst)}, v{V_OR} offset:{(t*8+ks)*1024}")
    return I(f"ds_read_b128 {vr(dst)}, v{V_OR8} offset:{ks*1024}")
V_PSC = [196, 197, 198, 199]
V_OWNA = 204; S_OWN = "s49"
OWNB = 73728
OWN_OOL = []
OWN_BLK = {}
def pstore(src, t, cp):
    v = V_PSC[cp] if OPT['own'] else V_PS
    return (II(f"s_add_u32 s51, {S_SOFFP}, {(cp*9 + t)*16384}"),
            I(f"buffer_store_dwordx4 {vr(src)}, v{v}, {SRD_P}, s51 offen {OPT['pst']}"))
def own_hook(src, t, cp):
    if not OPT['own']: return []
    OWN_BLK.setdefault(t, []).extend(II(f"L_own_{t}_{cp}:", f"ds_write_b128 v{V_OWNA}, {vr(src)} offset:{t*1024}", f"s_branch L_ownb_{t}_{cp}"))
    return II(f"s_cmp_eq_u32 {S_OWN}, {cp}", f"s_cbranch_scc1 L_own_{t}_{cp}", f"L_ownb_{t}_{cp}:")

NP1 = 2
def acc1(t, m): return 64 + (t * 8 + m) * 4
def acc2(t, m): return 128 + ((t & 1) * 8 + m) * 4
def bfr1(par, t): return 2 + (par * 4 + t) * 4
STG = [48, 52, 56, 60]

def tile_epilogue(accf, t, k0):
    out = []
    for cp in range(4):
        a0, a1 = accf(t, 2*cp), accf(t, 2*cp + 1)
        d = STG[(k0 + cp) & 3]
        cv = II(f"v_cvt_pk_bf16_f32 v{d}, v{a0}, v{a0+1}", f"v_cvt_pk_bf16_f32 v{d+1}, v{a0+2}, v{a0+3}",
                f"v_cvt_pk_bf16_f32 v{d+2}, v{a1}, v{a1+1}", f"v_cvt_pk_bf16_f32 v{d+3}, v{a1+2}, v{a1+3}")
        pre, st = pstore(d, t, cp)
        if OPT.get('x_nost') and not (t == 8 and cp == 3): st = I("s_nop 0")
        st.tag = f"st{t}"
        out.append((cv, (pre, st), own_hook(d, t, cp)))
    return out

def out_proj(queue):
    L = []; A = lambda *x: L.extend(II(*x))
    A(f"s_mul_i32 {S_SOFFP}, {S_W}, {4*9*16384}")
    OWN_OOL.clear(); OWN_BLK.clear()
    if OPT['own']:
        A(f"s_lshr_b32 s50, {S_HP}, 2", f"s_and_b32 s51, {S_HP}, 3", f"s_cmp_eq_u32 s50, {S_W}", f"s_cselect_b32 {S_OWN}, s51, 7")
        for cp in range(4):
            A(f"s_cmp_eq_u32 {S_OWN}, {cp}", "s_cselect_b32 s50, 0x40000000, 0", f"v_or_b32 v{V_PSC[cp]}, s50, v{V_PS}")
        A(f"v_add_u32 v{V_OWNA}, {OWNB}, v{V_OR}")
    NP = OPT['np1']
    G = 8 * NP
    ms = [mfma(vr(acc1(t, m)), wofrag(ks, m), vr(bfr1(ks & 1, t)), ("0" if ks == 0 else vr(acc1(t, m)))) for ks in range(8) for m in range(8) for t in range(NP)]
    bt = lambda ks: 2 + 4 * ks
    P1 = len(ms)
    for t in range(NP, 9):
        ms += [mfma(vr(acc2(t, m)), wofrag(ks, m), vr(bt(ks)), ("0" if ks == 0 else vr(acc2(t, m)))) for ks in range(8) for m in range(8)]
    S = Sched(ms)
    def reads(ks, g0): S.spread(wo_reads(ks), [g0 + i // 2 for i in range(16)])
    def dmas(ks, g0, step=4): put_dmas(S, wo_dma_t(ks), [g0 + step * i for i in range(8)])
    def put_free(ins, g0):
        g = g0
        while S.cost(g) + COST[ins.kind] > 8: g += 1
        S.put(g, ins); return g
    def epi(t, accf, g0, stride):
        for cp, (cv, (spre, st), hook) in enumerate(tile_epilogue(accf, t, 0)):
            g = g0 + cp * stride
            S.spread(cv, [g, g, g + 1, g + 1])
            for p in spre: S.put(g + 1, p)
            for p in hook: S.put(g + 2, p)
            S.put(g + 2, st)
        if OPT['own']:
            blk = OWN_BLK.pop(t)
            S.put(g0 + 3 * stride + 4, Raw(f"s_branch L_ownx_{t}\n" + "\n".join((x.txt if x.kind == 'label' else "  " + x.txt) for x in blk) + f"\nL_ownx_{t}:"))
    if NP == 2:
        pre = [o_read(bfr1(0, t), t, 0) for t in range(NP)]
        S.put(0, VmNeed("wo4")); reads(4, 0)
        S.put(9, "s_waitcnt lgkmcnt(0)"); dmas(6, 11, 3)
        S.put(33, VmNeed("wo5")); reads(5, 33)
        S.put(42, "s_waitcnt lgkmcnt(0)"); dmas(7, 44, 3)
        S.put(84, VmNeed("wo6")); reads(6, 84)
        S.put(100, VmNeed("wo7")); reads(7, 100)
        for ks in range(7):
            g = ks * G + (1 if ks else 8)
            for t in range(NP):
                g = put_free(o_read(bfr1((ks + 1) & 1, t), t, ks + 1), g) + 1
            assert g <= (ks + 1) * G - 3, (ks, g)
        g = 6 * G + 4
        for ks in (2, 3, 6, 7): g = put_free(o_read(bt(ks), NP, ks), g) + 1
        g = 7 * G + 1
        for ks in (0, 1): g = put_free(o_read(bt(ks), NP, ks), g) + 1
        base = P1
        for ks in (4, 5): put_free(o_read(bt(ks), NP, ks), base + 1)
        epi(0, acc1, base + 4, 7); epi(1, acc1, base + 32, 7)
    else:
        assert NP == 0
        pre = [o_read(bt(ks), 0, ks) for ks in range(8)]
        S.put(0, VmNeed("wo4")); reads(4, 0)
        S.put(9, "s_waitcnt lgkmcnt(0)"); dmas(6, 11, 2)
        S.put(10, VmNeed("wo5"));
        S.spread(wo_reads(5), [12, 12, 14, 14, 16, 16, 18, 18, 20, 20, 22, 22, 24, 24, 26, 26])
        S.put(28, "s_waitcnt lgkmcnt(0)"); dmas(7, 30, 2)
        S.put(46, VmNeed("wo6")); S.spread(wo_reads(6), [46, 46, 46, 46] + [47 + i // 4 for i in range(12)])
        S.put(54, VmNeed("wo7")); S.spread(wo_reads(7), [54, 54, 54, 54] + [55 + i // 12 for i in range(12)])
    for t in range(NP, 9):
        b = P1 + (t - NP) * 64
        if t > NP: epi(t - 1, acc2, b + 6, 12)
        if t < 8:
            for ks in range(8):
                g = b + 8 * ks + 8
                if g >= b + 64: g = b + 64 + 1
                put_free(o_read(bt(ks), t + 1, ks), g)
    if OPT['fused']:
        g0 = P1 + (3 - NP) * 64 + 49
        S.put(g0, f"s_lshl_b32 s50, {S_W}, 7", f"s_lshl_b32 s52, {S_HP}, 2", "s_add_u32 s50, s50, s52")
        S.spread([f"v_lshlrev_b32 v36, 13, {V_LANE}", "v_add_u32 v36, s50, v36", "v_mov_b32 v37, 1"], [g0 + 1, g0 + 1, g0 + 2])
        S.put(g0 + 3, f"s_lshr_b32 s50, {S_HP}, 2", "s_lshl_b32 s50, s50, 7")
        S.spread([f"v_lshrrev_b32 v46, 4, {V_LANE}", "v_lshlrev_b32 v46, 9, v46", f"v_and_b32 v47, 15, {V_LANE}",
                  "v_lshl_add_u32 v46, v47, 2, v46", "v_add_u32 v46, s50, v46"], [g0 + 4, g0 + 4, g0 + 5, g0 + 9, g0 + 9])
        b = P1 + (8 - NP) * 64
        fa = I(f"buffer_store_dword v37, v36, {SRD_F}, 0 offen sc1"); fa.tag = "fl"
        if OPT['early']:
            S.put(b + 40, VmNeed("st3")); S.put(b + 41, fa)
            pl = I(f"buffer_load_dword v47, v46, {SRD_F}, 0 offen sc1"); pl.tag = "poll"
            S.put(b + 60, pl)
    if OPT['stamps'] and OPT.get('opst'):
        for nm, g in (("w1", 127), ("w3", 255), ("w5", 383), ("w8", 575)):
            S.put(g, Raw("\n  ".join(x.txt for x in stamp(nm))))
            S.put(g, "s_waitcnt lgkmcnt(0)")
    pre = II(f"v_mov_b32 v56, {LFLAG}", f"ds_read_b128 {vr(52)}, v56") + pre
    pre += II("s_waitcnt lgkmcnt(0)", "v_or3_b32 v52, v52, v53, v54", "v_or_b32 v52, v52, v55", "s_nop 0", "v_readfirstlane_b32 s50, v52", "s_nop 3",
              f"s_andn2_b32 s50, s50, {S_SAFE}", "s_cmp_lg_u32 s50, 0", "s_cbranch_scc1 L_restart")
    seq = pre + S.flat()
    tail = II("s_nop 7")
    for cp, (cv, (spre, st), hook) in enumerate(tile_epilogue(acc2, 8, 0)):
        tail += cv + spre + hook + [st]
    if OPT['own']:
        tail += II("s_branch L_ownx_8") + OWN_BLK.pop(8) + II("L_ownx_8:")
    if OPT['stamps'] and OPT.get('opst'): tail += stamp("st_iss")
    if OPT['fused']:
        fb = I(f"buffer_store_dword v37, v36, {SRD_F}, 0 offen offset:512 sc1"); fb.tag = "fl"
        fc = I(f"buffer_store_dword v37, v36, {SRD_F}, 0 offen offset:1024 sc1"); fc.tag = "fl"
        tail += [VmNeed("poll"), fb, VmNeed("st8"), fc] if OPT['early'] else [VmNeed("st8"), fa, fb, fc]
    seq, q = vm_waits(seq + tail, queue)
    seq, pend = lgkm_waits(seq)
    seq, n = hazards(seq)
    if OPT['verbose']: print(S.report("out_proj"), "nops", n)
    L += seq
    return L, q

SPIN = 1 << 22
def reduce_phase_groups():
    L = []; A = lambda *x: L.extend(II(*x))
    DAT = lambda g, tt, k: 64 + ((g * 2 + tt) * 4 + k) * 4
    D8 = lambda k: 192 + 4 * k
    ACC = lambda g, tt: [208, 216, 224, 232, 240, 248, 2, 10][g * 2 + tt]
    A8 = 18
    T0, T1 = 26, 28
    V_POLL, V_FL, V_L16, V_OUT = 46, 47, 32, 33
    A(f"v_lshrrev_b32 v30, 4, {V_LANE}", f"v_and_b32 v31, 15, {V_LANE}", f"v_lshlrev_b32 v{V_L16}, 4, {V_LANE}",
      f"v_lshlrev_b32 v{V_OUT}, 11, v31", f"v_lshl_add_u32 v{V_OUT}, v30, 4, v{V_OUT}")
    A(f"s_mul_i32 s32, {S_B}, {144*2048}", f"s_lshl_b32 s50, {S_BR}, 10", "s_add_u32 s32, s32, s50", f"s_lshl_b32 s50, {S_HP}, 6", "s_add_u32 s32, s32, s50")
    A(f"s_mul_i32 s33, {S_HP}, {9*16384}")
    A(f"s_lshl_b32 s50, {S_W}, 14", "s_add_u32 s34, s33, s50", "s_add_u32 s35, s34, 65536",
      f"s_add_u32 s36, s33, {8*16384}", f"s_lshl_b32 s50, {S_W}, 12", "s_add_u32 s36, s36, s50",
      f"s_lshl_b32 s41, {S_W}, 2")
    A("s_mov_b32 s37, 0", "s_mov_b32 s38, 0", f"s_mov_b32 s53, {SPIN}")
    if OPT['own']:
        A(f"s_lshr_b32 s46, {S_HP}, 2", f"s_and_b32 s47, {S_HP}, 3", f"s_lshl_b32 s50, {S_W}, 10", f"s_add_u32 s50, s50, {OWNB}", f"v_add_u32 v44, s50, v{V_L16}")
        if not OPT['latebar']:
            A("s_waitcnt lgkmcnt(0)", "s_barrier", "ds_read_b128 v[36:39], v44", "ds_read_b128 v[40:43], v44 offset:4096")
    def unpack_add(acc, src, first):
        out = []
        for k in range(4):
            if first:
                out += [f"v_lshlrev_b32 v{acc+2*k}, 16, v{src+k}", f"v_and_b32 v{acc+2*k+1}, 0xffff0000, v{src+k}"]
            else:
                t = (T0, T1)[k & 1]
                out += [f"v_lshlrev_b32 v{t}, 16, v{src+k}", f"v_and_b32 v{t+1}, 0xffff0000, v{src+k}",
                        f"v_pk_add_f32 v[{acc+2*k}:{acc+2*k+1}], v[{acc+2*k}:{acc+2*k+1}], v[{t}:{t+1}]"]
        return out
    items = [(tt, g) for tt in range(2) for g in range(4)] + [(2, None)]
    if OPT['early']: A("s_branch L_red_first")
    A("L_red_loop:")
    A("s_cmp_eq_u32 s37, 0x1ff", "s_cbranch_scc1 L_red_nopoll")
    A(f"buffer_load_dword v{V_FL}, v{V_POLL}, {SRD_F}, 0 offen sc1")
    A("L_red_nopoll:", "s_waitcnt vmcnt(0)")
    A("s_andn2_b32 s42, s37, s38")
    for i, (tt, g) in enumerate(items):
        if tt < 2 and g == 0: A(f"s_and_b32 s50, s42, {hex(15 << (4 * tt))}", f"s_cbranch_scc0 L_red_nosumc{tt}")
        A(f"s_bitcmp1_b32 s42, {i}", f"s_cbranch_scc0 L_red_nosum{i}")
        for k in range(4):
            A(unpack_add(ACC(g, tt), DAT(g, tt, k), k == 0) if tt < 2 else unpack_add(A8, D8(k), k == 0))
        A(f"L_red_nosum{i}:")
        if tt < 2 and g == 3: A(f"L_red_nosumc{tt}:")
    A("s_mov_b32 s38, s37", "s_cmp_eq_u32 s38, 0x1ff", "s_cbranch_scc1 L_red_done")
    A("L_red_first:")
    A(f"v_cmp_eq_u32 vcc, 1, v{V_FL}", "s_nop 3", "s_mov_b32 s39, vcc_lo", "s_lshr_b32 s43, vcc_hi, s41", "s_and_b32 s43, s43, 15", "s_mov_b32 s40, s37")
    A("s_sub_u32 s53, s53, 1", "s_cmp_eq_u32 s53, 0", "s_cselect_b32 s39, -1, s39", "s_cselect_b32 s43, 15, s43", "s_cselect_b32 s53, 1, s53")
    for i, (tt, g) in enumerate(items):
        if tt < 2 and g == 0:
            A(f"s_bfe_u32 s50, s37, {hex((4 << 16) | (4 * tt))}", "s_cmp_eq_u32 s50, 15", f"s_cbranch_scc1 L_red_noissc{tt}",
              f"s_bfe_u32 s50, s39, {hex((16 << 16) | (16 * tt))}", "s_cmp_eq_u32 s50, 0", f"s_cbranch_scc1 L_red_noissc{tt}")
        A(f"s_bitcmp1_b32 s37, {i}", f"s_cbranch_scc1 L_red_noiss{i}")
        if tt < 2:
            A(f"s_bfe_u32 s50, s39, {hex((4 << 16) | (16 * tt + 4 * g))}", "s_cmp_eq_u32 s50, 15")
        else:
            A("s_cmp_eq_u32 s43, 15")
        A(f"s_cbranch_scc0 L_red_noiss{i}")
        if tt < 2: A(f"s_add_u32 s50, s{34+tt}, {g*4096}")
        if OPT['own']:
            A(f"s_cmp_eq_u32 s46, {g}" if tt < 2 else f"s_cmp_eq_u32 s46, {S_W}", "s_cselect_b32 s44, s47, 7")
        for k in range(4):
            o = f" offset:{k*1024}" if k else ""
            va = V_L16
            if OPT['own']:
                A(f"s_cmp_eq_u32 s44, {k}", "s_cselect_b32 s45, 0x40000000, 0", f"v_or_b32 v45, s45, v{V_L16}"); va = 45
            if tt < 2: A(f"buffer_load_dwordx4 {vr(DAT(g, tt, k))}, v{va}, {SRD_P}, s50 offen{o} {OPT['rld']}")
            else: A(f"buffer_load_dwordx4 {vr(D8(k))}, v{va}, {SRD_P}, s36 offen{o} {OPT['rld']}")
        A(f"s_bitset1_b32 s37, {i}", f"L_red_noiss{i}:")
        if tt < 2 and g == 3: A(f"L_red_noissc{tt}:")
    if OPT.get('rdst'):
        A("s_cmp_eq_u32 s40, 0", "s_cbranch_scc0 L_rs1", "s_cmp_lg_u32 s37, 0", "s_cbranch_scc0 L_rs1", stamp("r_first"), "L_rs1:")
        A("s_cmp_eq_u32 s37, 0x1ff", "s_cbranch_scc0 L_rs2", stamp("r_alliss"), "L_rs2:")
    A("s_cmp_lg_u32 s37, s40", "s_cbranch_scc1 L_red_loop", f"s_sleep {OPT['psleep']}", "s_branch L_red_loop")
    A("L_red_done:")
    if OPT.get('rdst'): A(stamp("r_summed"))
    A(f"s_lshl_b32 s50, {S_W}, 11", f"v_lshlrev_b32 v30, 5, {V_LANE}", f"v_add_u32 v30, {WOB}, v30", "v_add_u32 v31, s50, v30",
      f"ds_write_b128 v31, {vr(A8)}", f"ds_write_b128 v31, {vr(A8+4)} offset:16")
    late = OPT['own'] and OPT['latebar']
    for tt in range(2):
        a0 = ACC(0, tt)
        for g in range(1, 4):
            for k in range(4): A(f"v_pk_add_f32 v[{a0+2*k}:{a0+2*k+1}], v[{a0+2*k}:{a0+2*k+1}], v[{ACC(g,tt)+2*k}:{ACC(g,tt)+2*k+1}]")
    if late:
        A("s_waitcnt lgkmcnt(0)", "s_barrier", "ds_read_b128 v[36:39], v44", "ds_read_b128 v[40:43], v44 offset:4096")
    for tt in range(2):
        a0 = ACC(0, tt)
        if OPT['own']: A(("s_waitcnt lgkmcnt(1)" if late else "s_waitcnt lgkmcnt(2)") if tt == 0 else "s_waitcnt lgkmcnt(0)" if late else "s_nop 0", unpack_add(a0, 36 + 4 * tt, False))
        for k in range(4): A(f"v_cvt_pk_bf16_f32 v{64+4*tt+k}, v{a0+2*k}, v{a0+2*k+1}")
        A(f"s_lshl_b32 s50, {S_W}, 15", f"s_add_u32 s50, s50, s32", f"s_add_u32 s50, s50, {tt*4*32768}")
        A(f"buffer_store_dwordx4 {vr(64+4*tt)}, v{V_OUT}, {SRD_O}, s50 offen {OPT['ost']}")
    if not late: A("s_waitcnt lgkmcnt(0)", "s_barrier")
    A(f"s_cmp_eq_u32 {S_W}, 0", "s_cbranch_scc0 L_red_end")
    for g in range(4):
        A(f"ds_read_b128 {vr(80+8*g)}, v30 offset:{g*2048}", f"ds_read_b128 {vr(84+8*g)}, v30 offset:{g*2048+16}")
    if OPT['own']: A("ds_read_b128 v[36:39], v44 offset:8192")
    A("s_waitcnt lgkmcnt(0)")
    for g in range(1, 4):
        for k in range(4): A(f"v_pk_add_f32 v[{80+2*k}:{81+2*k}], v[{80+2*k}:{81+2*k}], v[{80+8*g+2*k}:{81+8*g+2*k}]")
    if OPT['own']: A(unpack_add(80, 36, False))
    for k in range(4): A(f"v_cvt_pk_bf16_f32 v{72+k}, v{80+2*k}, v{81+2*k}")
    A(f"s_add_u32 s50, s32, {8*32768}")
    A(f"buffer_store_dwordx4 {vr(72)}, v{V_OUT}, {SRD_O}, s50 offen {OPT['ost']}")
    A("L_red_end:")
    L2, n = hazards(L)
    return L2

def reduce_phase():
    if not OPT['linred']: return reduce_phase_groups()
    assert OPT['own'] and OPT['early']
    L = []; A = lambda *x: L.extend(II(*x))
    DA = lambda p: 64 + 4 * p
    DB = lambda p: 128 + 4 * p
    D8 = lambda k: 192 + 4 * k
    ACA, ACB, A8 = 208, 216, 224
    T0, T1 = 26, 28
    V_POLL, V_FL, V_L16, V_OUT = 46, 47, 32, 33
    A(f"v_lshrrev_b32 v30, 4, {V_LANE}", f"v_and_b32 v31, 15, {V_LANE}", f"v_lshlrev_b32 v{V_L16}, 4, {V_LANE}",
      f"v_lshlrev_b32 v{V_OUT}, 11, v31", f"v_lshl_add_u32 v{V_OUT}, v30, 4, v{V_OUT}")
    A(f"s_mul_i32 s33, {S_HP}, {9*16384}")
    A(f"s_lshl_b32 s50, {S_W}, 14", "s_add_u32 s34, s33, s50", "s_add_u32 s35, s34, 65536",
      f"s_add_u32 s36, s33, {8*16384}", f"s_lshl_b32 s50, {S_W}, 12", "s_add_u32 s36, s36, s50",
      f"s_lshl_b32 s41, {S_W}, 2", f"s_mov_b32 s53, {SPIN}")
    def loads(base, dst):
        for p in range(16):
            if p % 4 == 0: A(f"s_add_u32 s50, {base}, {p*1024}")
            o = f" offset:{(p % 4)*1024}" if p % 4 else ""
            A(f"s_cmp_eq_u32 {S_HP}, {p}", f"s_cbranch_scc1 L_rl_{base}_{p}",
              f"buffer_load_dwordx4 {vr(dst(p))}, v{V_L16}, {SRD_P}, s50 offen{o} {OPT['rld']}", f"L_rl_{base}_{p}:")
    def poll(name, test):
        A(f"L_poll_{name}:", f"v_cmp_eq_u32 vcc, 1, v{V_FL}", "s_nop 3")
        A(test)
        A(f"s_cbranch_scc1 L_poll_{name}_ok", "s_sub_u32 s53, s53, 1", "s_cmp_eq_u32 s53, 0", f"s_cbranch_scc1 L_poll_{name}_ok",
          f"s_sleep {OPT['psleep']}", f"buffer_load_dword v{V_FL}, v{V_POLL}, {SRD_F}, 0 offen sc1", "s_waitcnt vmcnt(0)", f"s_branch L_poll_{name}",
          f"L_poll_{name}_ok:")
    def unpack_add(acc, src):
        out = []
        for k in range(4):
            t = (T0, T1)[k & 1]
            out += [f"v_lshlrev_b32 v{t}, 16, v{src+k}", f"v_and_b32 v{t+1}, s60, v{src+k}",
                    f"v_pk_add_f32 v[{acc+2*k}:{acc+2*k+1}], v[{acc+2*k}:{acc+2*k+1}], v[{t}:{t+1}]"]
        return out
    A("s_mov_b32 s60, 0xffff0000")
    one = OPT['onepoll']
    if one:
        A(f"s_cmp_eq_u32 {S_W}, 0", "s_cbranch_scc0 L_poll_a_skip")
    poll("a", ["s_and_b32 s50, vcc_lo, 0xffff", "s_cmp_eq_u32 s50, 0xffff"])
    if one:
        A("L_poll_a_skip:", "s_waitcnt lgkmcnt(0)", "s_barrier")
    loads("s34", DA)
    A(f"s_lshl_b32 s50, {S_W}, 10", f"s_add_u32 s50, s50, {OWNB}", f"v_add_u32 v44, s50, v{V_L16}")
    if not one: A("s_waitcnt lgkmcnt(0)", "s_barrier")
    A("ds_read_b128 v[36:39], v44", "ds_read_b128 v[40:43], v44 offset:4096")
    for r in range(ACA, ACA + 24): A(f"v_mov_b32 v{r}, 0")
    A(f"s_mul_i32 s32, {S_B}, {144*2048}", f"s_lshl_b32 s50, {S_BR}, 10", "s_add_u32 s32, s32, s50", f"s_lshl_b32 s50, {S_HP}, 6", "s_add_u32 s32, s32, s50")
    if one:
        A(f"s_cmp_eq_u32 {S_W}, 0", "s_cbranch_scc0 L_poll_b_skip")
        A(f"buffer_load_dword v{V_FL}, v{V_POLL}, {SRD_F}, 0 offen sc1", "s_waitcnt vmcnt(0)")
        poll("b", ["s_lshr_b32 s50, vcc_lo, 16", "s_and_b32 s51, vcc_hi, 0xffff", "s_lshl_b32 s51, s51, 16", "s_or_b32 s50, s50, s51", "s_cmp_eq_u32 s50, -1"])
        A("L_poll_b_skip:", "s_waitcnt vmcnt(0)", "s_barrier")
    else:
        A(f"buffer_load_dword v{V_FL}, v{V_POLL}, {SRD_F}, 0 offen sc1", "s_waitcnt vmcnt(0)")
        poll("b", ["s_lshr_b32 s50, vcc_lo, 16", "s_lshr_b32 s51, vcc_hi, s41", "s_and_b32 s51, s51, 15", "s_lshl_b32 s51, s51, 16", "s_or_b32 s50, s50, s51",
                   "s_cmp_eq_u32 s50, 0xfffff"])
    loads("s35", DB)
    for k in range(4):
        o = f" offset:{k*1024}" if k else ""
        A(f"s_add_u32 s50, s41, {k}", f"s_cmp_eq_u32 {S_HP}, s50", f"s_cbranch_scc1 L_rl8_{k}",
          f"buffer_load_dwordx4 {vr(D8(k))}, v{V_L16}, {SRD_P}, s36 offen{o} {OPT['rld']}", f"L_rl8_{k}:")
    for p in range(16):
        A(f"s_cmp_eq_u32 {S_HP}, {p}", f"s_cbranch_scc1 L_rs_a{p}", unpack_add(ACA, DA(p)), f"L_rs_a{p}:")
    A("s_waitcnt lgkmcnt(0)", unpack_add(ACA, 36))
    for k in range(4): A(f"v_cvt_pk_bf16_f32 v{64+k}, v{ACA+2*k}, v{ACA+2*k+1}")
    A(f"s_lshl_b32 s50, {S_W}, 15", "s_add_u32 s37, s50, s32")
    A(f"buffer_store_dwordx4 {vr(64)}, v{V_OUT}, {SRD_O}, s37 offen {OPT['ost']}")
    for p in range(16):
        A(f"s_waitcnt vmcnt({max(15 - p + 4 + 1 - 2, 0)})", f"s_cmp_eq_u32 {S_HP}, {p}", f"s_cbranch_scc1 L_rs_b{p}", unpack_add(ACB, DB(p)), f"L_rs_b{p}:")
    A(unpack_add(ACB, 40))
    for k in range(4): A(f"v_cvt_pk_bf16_f32 v{68+k}, v{ACB+2*k}, v{ACB+2*k+1}")
    A(f"s_add_u32 s37, s37, {4*32768}")
    A("s_waitcnt vmcnt(1)")
    for k in range(4):
        A(f"s_add_u32 s50, s41, {k}", f"s_cmp_eq_u32 {S_HP}, s50", f"s_cbranch_scc1 L_rs_c{k}", unpack_add(A8, D8(k)), f"L_rs_c{k}:")
    A(f"buffer_store_dwordx4 {vr(68)}, v{V_OUT}, {SRD_O}, s37 offen {OPT['ost']}")
    A(f"s_lshl_b32 s50, {S_W}, 11", f"v_lshlrev_b32 v30, 5, {V_LANE}", f"v_add_u32 v30, {WOB}, v30", "v_add_u32 v31, s50, v30",
      f"ds_write_b128 v31, {vr(A8)}", f"ds_write_b128 v31, {vr(A8+4)} offset:16")
    A("s_waitcnt lgkmcnt(0)", "s_barrier", f"s_cmp_eq_u32 {S_W}, 0", "s_cbranch_scc0 L_red_end")
    for g in range(4):
        A(f"ds_read_b128 {vr(80+8*g)}, v30 offset:{g*2048}", f"ds_read_b128 {vr(84+8*g)}, v30 offset:{g*2048+16}")
    A("ds_read_b128 v[36:39], v44 offset:8192")
    A("s_waitcnt lgkmcnt(0)")
    for g in range(1, 4):
        for k in range(4): A(f"v_pk_add_f32 v[{80+2*k}:{81+2*k}], v[{80+2*k}:{81+2*k}], v[{80+8*g+2*k}:{81+8*g+2*k}]")
    A(unpack_add(80, 36))
    for k in range(4): A(f"v_cvt_pk_bf16_f32 v{72+k}, v{80+2*k}, v{81+2*k}")
    A(f"s_add_u32 s50, s32, {8*32768}")
    A(f"buffer_store_dwordx4 {vr(72)}, v{V_OUT}, {SRD_O}, s50 offen {OPT['ost']}")
    A("L_red_end:")
    L2, n = hazards(L)
    return L2

def dump_regs(regs, slot, kind='v'):
    L = []; A = lambda *x: L.extend(II(*x))
    A("s_add_u32 s66, s58, 0x4000000", "s_addc_u32 s67, s59, 0",
      "s_lshl_b32 s50, s2, 2", f"s_add_u32 s50, s50, {S_W}", "s_lshl_b32 s50, s50, 16",
      f"v_lshlrev_b32 v253, 2, {V_LANE}", "v_add_u32 v253, s50, v253")
    for i, r in enumerate(regs):
        if kind == 'a':
            A(f"v_accvgpr_read_b32 v254, a{r}", "s_nop 0")
            A(f"global_store_dword v253, v254, s[66:67]")
        else:
            A(f"global_store_dword v253, v{r}, s[66:67]")
        A("v_add_u32 v253, 256, v253")
    A("s_waitcnt vmcnt(0)")
    return L

def main_kernel():
    L = []
    L += setup()
    L += stamp("start")
    L += phase_q()
    L += stamp("q_done")
    if OPT['dump'] == 'q':
        L += II("s_nop 7") + dump_regs([qfrag(t, s) + k for t in range(5) for s in range(4) for k in range(4)], 0)
        L += II("s_waitcnt vmcnt(0)", "s_endpgm")
    L += attention()
    if OPT['dump'] == 'o':
        L += II("s_nop 7") + dump_regs([oacc(dt, t) + k for t in range(5) for dt in range(8) for k in range(4)] + [lacc(t) for t in range(5)], 0, 'a')
        L += II("s_waitcnt vmcnt(0)", "s_endpgm")
    e, q = o_epilogue(); L += e
    L += stamp("o_done")
    if OPT.get('stop') == 'o':
        L += II("s_waitcnt vmcnt(0)") + stamp("end") + stamp_dump() + II("L_main_end:", "s_endpgm") + safe_paths()
        return L
    e, q = out_proj(q); L += e
    L += stamp("op_done")
    if OPT['fused']:
        L += reduce_phase()
        L += stamp("red_done")
    L += tr_dump()
    if not OPT.get('noendwait') or OPT['stamps']: L += II("s_waitcnt vmcnt(0)")
    L += stamp("end")
    L += stamp_dump()
    L += II("L_main_end:", "s_endpgm")
    L += OWN_OOL + ATT_OOL
    L += safe_paths()
    return L

def reduce_kernel():
    L = []; A = lambda *x: L.extend(II(*x))
    A("s_cmp_ge_u32 s2, 256", "s_cbranch_scc1 L_red_end")
    A("s_load_dwordx2 s[4:5], s[0:1], 80", "s_load_dwordx2 s[6:7], s[0:1], 96")
    A("v_lshrrev_b32 v2, 6, v0", "v_and_b32 v1, 63, v0", "s_nop 0", "v_readfirstlane_b32 s12, v2", "s_nop 3")
    A("s_waitcnt lgkmcnt(0)")
    A("s_mul_i32 s13, s2, 9", "s_add_u32 s13, s13, s12", "s_lshl_b32 s13, s13, 14")
    A("s_add_u32 s16, s6, s13", "s_addc_u32 s17, s7, 0", "s_and_b32 s17, s17, 0xffff", "s_mov_b32 s18, 16384", "s_mov_b32 s19, 0x20000")
    A("v_lshlrev_b32 v2, 4, v1")
    for p in range(16):
        A(f"buffer_load_dwordx4 v[{8+4*p}:{11+4*p}], v2, s[16:19], 0 offen offset:{(p%4)*1024}" if p < 4 else
          f"buffer_load_dwordx4 v[{8+4*p}:{11+4*p}], v2, s[16:19], s{20+p//4} offen offset:{(p%4)*1024}")
        if p == 3: A("s_mov_b32 s21, 4096", "s_mov_b32 s22, 8192", "s_mov_b32 s23, 12288")
    A("s_lshr_b32 s14, s2, 4", "s_and_b32 s15, s2, 15",
      "s_and_b32 s24, s14, 7", "s_lshr_b32 s25, s14, 3",
      "s_mul_i32 s24, s24, 144", "s_lshl_b32 s26, s12, 4", "s_add_u32 s24, s24, s26", "s_lshl_b32 s24, s24, 11",
      "s_lshl_b32 s25, s25, 10", "s_lshl_b32 s15, s15, 6", "s_add_u32 s24, s24, s25", "s_add_u32 s24, s24, s15")
    A("v_and_b32 v3, 15, v1", "v_lshlrev_b32 v3, 11, v3", "v_lshrrev_b32 v4, 4, v1", "v_lshl_add_u32 v3, v4, 4, v3")
    A("s_mov_b32 s28, s4", "s_and_b32 s29, s5, 0xffff", "s_mov_b32 s30, 2359296", "s_mov_b32 s31, 0x20000")
    acc = 80
    for p in range(16):
        A(f"s_waitcnt vmcnt({15-p})")
        for k in range(4):
            r = 8 + 4 * p + k
            if p == 0:
                A(f"v_lshlrev_b32 v{acc+2*k}, 16, v{r}", f"v_and_b32 v{acc+2*k+1}, 0xffff0000, v{r}")
            else:
                A(f"v_lshlrev_b32 v6, 16, v{r}", f"v_and_b32 v7, 0xffff0000, v{r}",
                  f"v_add_f32 v{acc+2*k}, v{acc+2*k}, v6", f"v_add_f32 v{acc+2*k+1}, v{acc+2*k+1}, v7")
    for k in range(4): A(f"v_cvt_pk_bf16_f32 v{8+k}, v{acc+2*k}, v{acc+2*k+1}")
    A("buffer_store_dwordx4 v[8:11], v3, s[28:31], s24 offen")
    A("s_waitcnt vmcnt(0)")
    A("L_red_end:", "s_endpgm")
    return L

def kernel_text(name, body, vgpr, accum, sgpr=102):
    return f""".globl {name}
.p2align 8
.type {name},@function
{name}:
{text(body)}
"""
def kd(name, nfv, accum, sgpr=102):
    return f""".amdhsa_kernel {name}
  .amdhsa_next_free_vgpr {nfv}
  .amdhsa_next_free_sgpr {sgpr}
  .amdhsa_accum_offset {accum}
  .amdhsa_group_segment_fixed_size 0
  .amdhsa_kernarg_size 104
  .amdhsa_user_sgpr_count 2
  .amdhsa_user_sgpr_kernarg_segment_ptr 1
  .amdhsa_system_sgpr_workgroup_id_x 1
.end_amdhsa_kernel
"""

def build():
    stamp_id[0] = 0; STAMPS.clear()
    k1 = NAME + "_kernel"; k2 = "reduce_heads_kernel"
    m = main_kernel()
    hdr = """; Fused  x@wq -> softmax(q k^T / sqrt(128)) v -> @wo  for both branches, one launch, 256 workgroups x 4 waves.
"""
    if OPT['fused']:
        hdr += f"; @launch grid=(256,1,1) block=(256,1,1) lds=163840\n"
    else:
        hdr += f"; @launch kernel={k1} grid=(256,1,1) block=(256,1,1) lds=163840\n"
        hdr += f"; @launch kernel={k2} grid=(256,1,1) block=(576,1,1) lds=0\n"
    s = hdr + '.amdgcn_target "amdgcn-amd-amdhsa--gfx950"\n.text\n'
    s += kernel_text(k1, m, 512, 256)
    if not OPT['fused']: s += kernel_text(k2, reduce_kernel(), 96, 96)
    s += '.section .rodata,"a"\n.p2align 6\n' + kd(k1, 512, 256)
    if not OPT['fused']: s += ".p2align 6\n" + kd(k2, 96, 96, 40)
    return s

if __name__ == "__main__":
    ap = argparse.ArgumentParser()
    ap.add_argument("-o", default="cdna_kernels/" + NAME + ".s")
    ap.add_argument("--dump"); ap.add_argument("--stamps", action="store_true"); ap.add_argument("-v", action="store_true")
    ap.add_argument("--opt", action="append", default=[])
    a = ap.parse_args()
    OPT['dump'] = a.dump; OPT['stamps'] = a.stamps; OPT['verbose'] = a.v
    for o in a.opt:
        k, v = o.split("=", 1)
        OPT[k] = {'True': True, 'False': False}.get(v, int(v) if v.lstrip('-').isdigit() else v)
    s = build()
    open(a.o, "w").write(s)
    if a.stamps:
        import json; json.dump(STAMPS, open(a.o + ".stamps.json", "w"))
    print("wrote", a.o, len(s), "bytes")
```

```python
import sys, argparse
from ir import *

NAME = "concat_heads__gqa_block_cached__mha_block_cached__near_ridge"
OPT = dict(pfexact=True, onepoll=True, linred=True, latebar=False, wsoff=0, own=True, early=True, l2pf=False, np1=0, pfw=1, pfkv=0, pfkvnt=False, psleep=8, ost='nt', noendwait=True, lthr=0, start2=True, pf=2, pfnt=False, fused=True, rld='sc1', rot=True, wnt=False, xnt=False, wont=False, bursts=(3, 6, 9), dump=None, stamps=False, stop=None, kvnt=True, pst="sc1", verbose=False)

VB = 0
KB = 65536
WB = 16384
XB = 114688
WOA = 131072
WOB = 98304
OB = 0
def kphys(k): return ((k + 1) & 3) * 16384
def vphys(k): return (k & 3) * 16384

SRD_X, SRD_WQ, SRD_K, SRD_V, SRD_WO, SRD_P = "s[4:7]", "s[8:11]", "s[12:15]", "s[16:19]", "s[20:23]", "s[24:27]"
SRD_F, SRD_D, SRD_O = "s[68:71]", "s[72:75]", "s[80:83]"
S_W, S_U, S_QH, S_CNT = "s28", "s29", "s30", "s31"
S_SOFFX, S_SOFFW0, S_UNUSED, S_MW, S_MX, S_DSLOT, S_RSLOT, S_DW, S_DX = "s32", "s33", "s34", "s35", "s36", "s37", "s38", "s39", "s40"
S_BW, S_BX = "s41", "s42"
S_SOFFK, S_SOFFV, S_MK, S_MV = "s45", "s46", "s47", "s48"
S_T0, S_T1, S_T2, S_T3 = "s50", "s51", "s52", "s53"
S_HP, S_B, S_BR, S_CL = "s54", "s55", "s56", "s57"
S_WS = "s[58:59]"
S_SOFFP = "s60"
S_STAMP = "s[62:63]"
S_FLAG = "s64"
S_SAFE = "s61"
S_BX3 = "s38"
LTHR = 0x4b800000
S_KS, S_X0, S_W0 = "s88", "s89", "s87"
S_TAU, S_TB, S_TQ, S_T4N, S_TMASK, S_TSH, S_TM, S_TS = "s78", "s79", "s43", "s44", "s34", "s49", "s61", "s95"

V_LANE = "v1"
V_WQR = [2, 3, 4, 5]; V_XR = 6; V_XR4 = 14; V_OW4 = 50; V_OWB = 51
V_WQD = [7, 8, 9, 10]; V_XD = [11, 12, 13]; V_TG, V_TI, V_TB, V_TV = 14, 15, 62, 63
V_KD = [16, 17, 18, 19]; V_VD = [20, 21]
V_KR = [22, 23, 24, 25]; V_VR = [26 + i for i in range(8)]
V_WOD = [34, 35, 36, 37]; V_WOR = [38, 39, 40, 41]
V_OW, V_OR, V_OR8, V_PS = 42, 43, 44, 45
VT = [46 + i for i in range(18)]
RB = 64
def grp(t, s): return RB + (t * 4 + s) * 8
def qacc(dt, t): return grp(t, dt >> 1) + 4 * (dt & 1)
def qfrag(t, s): return grp(t, s)
def Sreg(kt, t): return grp(t, kt) + 4
def Preg(par, t): return grp(t, 2 + par) + 4
def cinit(t): return 224 + 4 * t
V_C0, V_C1 = 244, 245
def vr(b, n=4): return f"v[{b}:{b+n-1}]"
def ar(b, n=4): return f"a[{b}:{b+n-1}]"
def oacc(dt, t): return t * 32 + dt * 4
def lacc(t): return 160 + 4 * t
A_ONES = 180
def abuf(i): return 184 + 4 * i
def bbuf(t): return [48, 52, 56, 60, 248][t]
def kbuf(kt, s): return 216 + 4 * (kt * 4 + s)

MF = "v_mfma_f32_16x16x32_bf16"
def mfma(d, a, b, c): return I(f"{MF} {d}, {a}, {b}, {c}")
SCALE = (128 ** -0.5) * 1.4426950408889634
import struct
def f2u(x): return struct.unpack("<I", struct.pack("<f", x))[0]

def NT(): return " nt" if OPT['kvnt'] else ""

def CNTOFF(): return 128 if OPT.get('dbgst') is not None else 0
stamp_id = [0]
def stamp(name):
    if not OPT['stamps']: return []
    i = stamp_id[0]; stamp_id[0] += 1
    STAMPS.append(name)
    return II("s_memrealtime s[66:67]", "s_memtime s[64:65]", "s_waitcnt lgkmcnt(0)",
              f"v_writelane_b32 v0, s66, {i}", f"v_writelane_b32 v0, s64, {32 + i}")
def stamp_dump():
    if not OPT['stamps']: return []
    if OPT.get('dbgst') is not None:
        return II(f"s_cmp_eq_u32 s2, {OPT['dbgst']}", "s_cbranch_scc0 L_nodbg", f"s_cmp_eq_u32 {S_W}, 0", "s_cbranch_scc0 L_nodbg",
                  "v_readlane_b32 s50, v0, 0", "s_nop 3", "v_subrev_u32 v0, s50, v0",
                  f"v_lshlrev_b32 v1, 2, {V_LANE}", "v_cmp_gt_u32 vcc, 16, v1", f"v_lshrrev_b32 v2, 2, v1", "v_mov_b32 v3, 0x1000", "v_cmp_gt_u32 vcc, 16, v2", "s_nop 1",
                  "v_cndmask_b32 v1, v3, v1, vcc", f"buffer_store_dword v0, v1, {SRD_D}, 0 offen", "L_nodbg:")
    return II("s_add_u32 s62, s58, 0x8000000", "s_addc_u32 s63, s59, 0", "s_lshl_b32 s65, s2, 2", f"s_add_u32 s65, s65, {S_W}", "s_lshl_b32 s65, s65, 8",
              f"v_lshlrev_b32 v1, 2, {V_LANE}", "v_add_u32 v1, s65, v1", "global_store_dword v1, v0, s[62:63]")
STAMPS = []

def setup():
    L = []
    A = lambda *x: L.extend(II(*x))
    A("s_cmp_ge_u32 s2, 256", "s_cbranch_scc1 L_main_end")
    if OPT['stamps'] and OPT.get('t0st'): A("s_memrealtime s[100:101]")
    A("s_load_dwordx8 s[68:75], s[0:1], 0", "s_load_dwordx2 s[76:77], s[0:1], 32",
      "s_load_dwordx8 s[80:87], s[0:1], 40", "s_load_dwordx2 s[88:89], s[0:1], 72",
      f"s_load_dwordx2 {S_WS}, s[0:1], 96", "s_load_dwordx4 s[96:99], s[0:1], 80")
    A("s_and_b32 s50, s2, 7", "s_lshr_b32 s51, s2, 3",
      f"s_lshr_b32 {S_BR}, s50, 2",
      "s_and_b32 s52, s50, 3", "s_lshl_b32 s52, s52, 2", "s_and_b32 s53, s51, 3", f"s_add_u32 {S_HP}, s52, s53",
      f"s_lshr_b32 {S_B}, s51, 2",
      f"s_lshl_b32 s52, {S_BR}, 3", f"s_add_u32 {S_CL}, s52, {S_B}")
    A("v_lshrrev_b32 v46, 6, v0", f"v_and_b32 {V_LANE}, 63, v0", "s_nop 0", f"v_readfirstlane_b32 {S_W}, v46", "s_nop 3")
    A(f"s_lshr_b32 {S_U}, {S_W}, 1", f"s_and_b32 {S_QH}, {S_W}, 1", f"s_mov_b32 {S_SAFE}, 0")
    A(lane_consts_q())
    if OPT['stamps'] and OPT.get('t0st'):
        A("s_memrealtime s[66:67]")
    A("s_waitcnt lgkmcnt(0)")
    if OPT['stamps'] and OPT.get('t0st'):
        i0 = stamp_id[0]; stamp_id[0] += 2; STAMPS.extend(["entry", "consts_q"])
        A(f"v_writelane_b32 v0, s100, {i0}", f"v_writelane_b32 v0, s66, {i0+1}", f"v_writelane_b32 v0, s100, {32+i0}", f"v_writelane_b32 v0, s66, {33+i0}")
    A(f"s_cmp_eq_u32 {S_BR}, 1")
    for i in (0, 1, 6, 7): A(f"s_cselect_b32 s{68+i}, s{80+i}, s{68+i}")
    def srd(dst, lo, hi, off_expr_regs, nrec):
        A(f"s_add_u32 s{dst}, s{lo}, s50", f"s_addc_u32 s{dst+1}, s{hi}, 0", f"s_and_b32 s{dst+1}, s{dst+1}, 0xffff")
        A(nrec, f"s_mov_b32 s{dst+3}, 0x20000")
    A(f"s_mul_i32 s50, {S_B}, 147456"); srd(4, 68, 69, None, "s_mov_b32 s6, 147456")
    A(f"s_lshl_b32 s50, {S_HP}, 9"); srd(8, 74, 75, None, "s_sub_u32 s10, 4194304, s50")
    return L

def setup_b():
    L = []
    A = lambda *x: L.extend(II(*x))
    def srd(dst, lo, hi, off_expr_regs, nrec):
        A(f"s_add_u32 s{dst}, s{lo}, s50", f"s_addc_u32 s{dst+1}, s{hi}, 0", f"s_and_b32 s{dst+1}, s{dst+1}, 0xffff")
        A(nrec, f"s_mov_b32 s{dst+3}, 0x20000")
    A(f"s_cmp_eq_u32 {S_SAFE}, 1", "s_cbranch_scc1 L_setup_b_done")
    A(f"s_cmp_eq_u32 {S_BR}, 1")
    for i in (2, 3, 4, 5): A(f"s_cselect_b32 s{68+i}, s{80+i}, s{68+i}")
    A("s_cselect_b32 s76, s88, s76", "s_cselect_b32 s77, s89, s77")
    A(f"s_lshl_b32 s50, {S_B}, 5", f"s_lshl_b32 s51, {S_HP}, 1", "s_add_u32 s50, s50, s51", f"s_add_u32 s50, s50, {S_U}", "s_lshl_b32 s50, s50, 17")
    srd(12, 70, 71, None, "s_mov_b32 s14, 131072")
    srd(16, 72, 73, None, "s_mov_b32 s18, 131072")
    A(f"s_lshl_b32 s50, {S_HP}, 18", f"s_lshl_b32 s51, {S_W}, 8", "s_add_u32 s50, s50, s51")
    A("s_sub_u32 s52, 262144, s51")
    srd(20, 76, 77, None, "s_mov_b32 s22, s52")
    A(f"s_lshl_b32 s50, {S_HP}, 18"); srd(84, 76, 77, None, "s_mov_b32 s86, 262144")
    A(f"s_mul_i32 s50, {S_CL}, 2359296", f"s_add_u32 s50, s50, {hex(OPT['wsoff'])}"); srd(24, 58, 59, None, "s_mov_b32 s26, 2359296")
    if OPT['fused']:
        A(f"s_mul_i32 s50, {S_CL}, 4608", f"s_add_u32 s50, s50, {hex(OPT['wsoff'] + 0x2400000 + 0x40000)}"); srd(68, 58, 59, None, "s_mov_b32 s70, 4608")
        A("s_mov_b32 s72, s98", "s_and_b32 s73, s99, 0xffff", "s_mov_b32 s74, 256", "s_mov_b32 s75, 0x20000")
        A("s_mov_b32 s80, s96", "s_and_b32 s81, s97, 0xffff", "s_mov_b32 s82, 2359296", "s_mov_b32 s83, 0x20000")
        A(f"s_lshl_b32 s50, {S_W}, 7", f"s_lshl_b32 s51, {S_HP}, 2", "s_add_u32 s50, s50, s51",
          f"v_lshlrev_b32 v46, 9, {V_LANE}", "v_add_u32 v46, s50, v46", "v_mov_b32 v47, 0",
          f"buffer_store_dword v47, v46, {SRD_F}, 0 offen sc1" if not OPT.get('x_noclr') else "s_nop 0")
    A("L_setup_b_done:")
    return L

def lane_consts_q():
    L = []; A = lambda *x: L.extend(II(*x))
    l = V_LANE; t0, t1, t2, t3, t4, t5 = [f"v{x}" for x in VT[:6]]
    A(f"v_lshrrev_b32 {t0}, 4, {l}", f"v_bfe_u32 {t1}, {l}, 2, 2", f"v_and_b32 {t2}, 3, {l}", f"v_and_b32 {t3}, 15, {l}")
    w0, w1, w2, w3 = [f"v{x}" for x in V_WQD]
    A(f"v_lshrrev_b32 {t4}, 5, {l}", f"v_bfe_u32 {t5}, {l}, 4, 1",
      f"v_lshlrev_b32 {w0}, 2, {t4}", f"v_xor_b32 {w0}, {w0}, {t3}", f"v_lshlrev_b32 {w0}, 4, {w0}",
      f"v_lshl_add_u32 {w0}, {t5}, 8, {w0}", f"v_lshl_add_u32 {w0}, {t4}, 13, {w0}",
      f"v_xor_b32 {w1}, 0x80, {w0}", f"v_add_u32 {w1}, {2*8192 - 1024}, {w1}",
      f"v_add_u32 {w2}, {4*8192 - 2048}, {w0}", f"v_add_u32 {w3}, {4*8192 - 2048}, {w1}")
    A(f"v_lshlrev_b32 {t4}, 1, {t0}", f"v_mov_b32 {t5}, 0x78", f"v_lshrrev_b32 {t4}, {t4}, {t5}", f"v_and_b32 {t4}, 3, {t4}",
      f"v_xor_b32 {t4}, {t4}, {t2}", f"v_lshlrev_b32 {t4}, 4, {t4}",
      f"v_lshrrev_b32 {t5}, 2, {l}", f"v_lshl_add_u32 {t4}, {t5}, 10, {t4}")
    for j in range(2):
        A(f"v_add_u32 v{V_XD[j]}, {j*16384 - 1024*j}, {t4}")
    A(f"s_lshl_b32 s50, {S_W}, 1", "s_lshr_b32 s50, 0x78, s50", "s_and_b32 s50, s50, 3",
      f"v_xor_b32 {t4}, s50, {t2}", f"v_lshlrev_b32 {t4}, 4, {t4}", f"v_lshl_add_u32 {t4}, {t5}, 10, {t4}",
      f"s_lshl_b32 s50, {S_W}, 12", f"s_lshl_b32 s51, {S_W}, 15", "s_sub_u32 s50, s50, s51", f"s_add_u32 s50, s50, {128*1024}",
      f"v_add_u32 v{V_XD[2]}, s50, {t4}")
    return L

def lane_consts_q2():
    L = []; A = lambda *x: L.extend(II(*x))
    l = V_LANE; t0, t1, t2, t3, t4, t5 = [f"v{x}" for x in VT[:6]]
    A(f"v_lshrrev_b32 {t0}, 4, {l}", f"v_bfe_u32 {t1}, {l}, 2, 2", f"v_and_b32 {t2}, 3, {l}", f"v_and_b32 {t3}, 15, {l}")
    for n in range(4):
        A(f"v_add_u32 {t4}, {4*n}, {t0}", f"v_xor_b32 {t4}, {t4}, {t3}", f"v_lshlrev_b32 {t4}, 4, {t4}",
          f"v_lshl_add_u32 v{V_KD[n]}, {t0}, 8, {t4}")
    for n in range(2):
        A(f"v_add_u32 {t4}, {4*n}, {t0}", f"v_lshlrev_b32 {t4}, 1, {t4}", f"v_xor_b32 {t4}, {t4}, {t3}", f"v_lshlrev_b32 {t4}, 4, {t4}",
          f"v_lshl_add_u32 v{V_VD[n]}, {t0}, 8, {t4}")
    A(f"v_lshl_add_u32 {t4}, {t0}, 3, {t1}", f"v_lshlrev_b32 {t4}, 9, {t4}", f"v_lshl_add_u32 {t4}, {t2}, 4, {t4}",
      f"s_lshl_b32 s50, {S_U}, 8", f"s_add_u32 s50, s50, {WB}", f"v_add_u32 {t4}, s50, {t4}")
    A(f"s_lshl_b32 s51, {S_QH}, 1", f"v_xor_b32 {t1}, s51, {t1}")
    for s in range(4):
        A(f"v_xor_b32 {t5}, {s}, {t1}", f"v_lshl_add_u32 v{V_WQR[s]}, {t5}, 6, {t4}")
    A(f"v_lshrrev_b32 {t4}, 2, {t3}", f"v_lshlrev_b32 {t4}, 1, {t4}", f"v_mov_b32 {t5}, 0x78", f"v_lshrrev_b32 {t4}, {t4}, {t5}", f"v_and_b32 {t4}, 3, {t4}",
      f"v_xor_b32 {t4}, {t4}, {t0}", f"v_lshlrev_b32 {t4}, 4, {t4}", f"v_lshl_add_u32 {t4}, {t3}, 6, {t4}",
      f"s_mul_i32 s50, {S_QH}, 5120", f"s_add_u32 s50, s50, {XB}", f"v_add_u32 v{V_XR}, s50, {t4}", f"v_add_u32 v{V_XR4}, {XB + 4096}, {t4}")
    return L

def lane_consts_rest():
    L = []; A = lambda *x: L.extend(II(*x))
    l = V_LANE; t0, t1, t2, t3, t4, t5, t6 = [f"v{x}" for x in VT[:7]]
    A(f"v_lshrrev_b32 {t0}, 4, {l}", f"v_bfe_u32 {t1}, {l}, 2, 2", f"v_and_b32 {t2}, 3, {l}", f"v_and_b32 {t3}, 15, {l}")
    A(f"s_lshl_b32 s50, {S_U}, 13", f"s_add_u32 s51, s50, {KB}", f"v_lshlrev_b32 {t4}, 8, {t3}", f"v_add_u32 {t4}, s51, {t4}")
    A(f"s_lshl_b32 s51, {S_QH}, 3", f"v_xor_b32 {t6}, s51, {t3}")
    for s in range(4):
        A(f"v_add_u32 {t5}, {4*s}, {t0}", f"v_xor_b32 {t5}, {t5}, {t6}", f"v_lshl_add_u32 v{V_KR[s]}, {t5}, 4, {t4}")
    A(f"v_lshrrev_b32 {t4}, 2, {l}", f"v_and_b32 {t5}, 7, {t4}", f"v_lshlrev_b32 {t5}, 1, {t5}",
      f"v_lshlrev_b32 {t4}, 8, {t4}", f"v_add_u32 {t4}, s50, {t4}",
      f"v_and_b32 {t6}, 1, {t2}", f"v_lshl_add_u32 {t4}, {t6}, 3, {t4}",
      f"v_lshrrev_b32 {t6}, 1, {t2}",
      f"s_lshl_b32 s51, {S_QH}, 3", f"v_xor_b32 {t5}, s51, {t5}")
    for dt in range(8):
        d = f"v{V_VR[dt]}"
        A(f"v_add_u32 {d}, {2*dt}, {t6}", f"v_xor_b32 {d}, {d}, {t5}", f"v_lshl_add_u32 {d}, {d}, 4, {t4}")
    A(f"v_lshlrev_b32 {t4}, 2, {t0}", f"v_xor_b32 {t4}, {t4}, {t3}", f"v_lshlrev_b32 {t4}, 4, {t4}", f"v_lshl_add_u32 {t4}, {t0}, 10, {t4}")
    for n in range(4):
        A(f"v_add_u32 v{V_WOD[n]}, {n*3072}, {t4}")
    A(f"v_lshrrev_b32 {t4}, 2, {l}", f"v_lshlrev_b32 {t4}, 8, {t4}", f"v_lshl_add_u32 {t4}, {t2}, 4, {t4}",
      f"s_lshl_b32 s50, {S_W}, 13", f"s_add_u32 s50, s50, {WOB}", f"v_add_u32 {t4}, s50, {t4}")
    for cp in range(4):
        A(f"v_xor_b32 {t5}, {cp}, {t1}", f"v_lshl_add_u32 v{V_WOR[cp]}, {t5}, 6, {t4}")
    A(f"s_mul_i32 s50, {S_QH}, 40960", f"s_lshl_b32 s51, {S_U}, 12", "s_add_u32 s50, s50, s51",
      f"v_lshlrev_b32 v{V_OR}, 4, {l}", f"v_add_u32 v{V_OW}, s50, v{V_OR}", f"v_add_u32 v{V_OR8}, 0x10000, v{V_OR}")
    A(f"s_lshl_b32 s50, {S_HP}, 10", f"v_add_u32 v{V_PS}, s50, v{V_OR}")
    return L

def dma(voff, srd, soff, imm, nt=False):
    o = f" offset:{imm}" if imm else ""
    return I(f"buffer_load_dwordx4 v{voff}, {srd}, {soff} offen{o}{' nt' if nt else ''} lds")

def kv_group(kind, m0expr, soffreg):
    if kind == 'K':
        return [dma(V_KD[n], SRD_K, soffreg, n * 1024, OPT['kvnt']) for n in range(4)]
    return [dma(V_VD[n & 1], SRD_V, soffreg, n * 1024, OPT['kvnt']) for n in range(4)]

def kv_tile_full_unused(kind, j):
    L = []
    base = (KB + kphys(j)) if kind == 'K' else (VB + vphys(j))
    for gI in range(2):
        L += II(f"s_lshl_b32 s50, {S_U}, 13", f"s_add_u32 m0, s50, {base + gI*4096}", f"s_mov_b32 s51, {j*8192 + gI*4096}")
        L += kv_group(kind, None, "s51")
    return L

def stage_setup_scalar():
    rot = OPT['rot']
    R = II("s_lshr_b32 s50, s2, 3", "s_and_b32 s51, s50, 3", "s_lshr_b32 s50, s50, 2")
    if rot in (True, 1):   R += II("s_lshl_b32 s51, s51, 2", "s_lshl_b32 s50, s50, 1", "s_add_u32 s52, s50, s51")
    elif rot == 2:         R += II("s_lshr_b32 s50, s50, 1", "s_add_u32 s52, s50, s51", "s_lshl_b32 s52, s52, 2")
    elif rot == 3:         R += II("s_add_u32 s52, s50, s51", "s_lshl_b32 s52, s52, 2")
    elif rot == 4:         R += II("s_lshr_b32 s50, s50, 2", "s_lshl_b32 s50, s50, 3", "s_lshl_b32 s51, s51, 2", "s_add_u32 s52, s50, s51")
    elif rot == 5:         R += II("s_mul_i32 s50, s50, 3", "s_lshl_b32 s51, s51, 2", "s_add_u32 s52, s50, s51")
    elif rot == 6:         R += II("s_lshl_b32 s52, s50, 1")
    elif rot == 7:         R += II("s_lshl_b32 s50, s50, 1", "s_and_b32 s51, s51, 1", "s_lshl_b32 s51, s51, 3", "s_add_u32 s52, s50, s51")
    else:                  R += II("s_mov_b32 s52, 0")
    return R + II("s_and_b32 s52, s52, 15",
              f"s_lshl_b32 s50, s52, 6", f"s_lshl_b32 s51, {S_W}, 15", f"s_add_u32 {S_SOFFX}, s50, s51",
              f"s_lshl_b32 s50, s52, 18", f"s_lshl_b32 s51, {S_W}, 16", f"s_add_u32 {S_SOFFW0}, s50, s51",
              f"s_lshl_b32 s50, {S_W}, 12", f"s_add_u32 {S_BW}, s50, {WB}",
              f"s_lshl_b32 s50, {S_W}, 11", f"s_add_u32 {S_BX}, s50, {XB}",
              f"s_lshl_b32 s50, {S_W}, 8", f"s_add_u32 {S_BX3}, s50, {XB + 8192}",
              )
def kv_setup_scalar():
    return II(f"s_lshl_b32 {S_TQ}, {S_QH}, 12",
              f"s_lshl_b32 s50, {S_U}, 13", f"s_add_u32 s50, s50, {S_TQ}", f"s_add_u32 {S_MK}, s50, {KB}", f"s_add_u32 {S_MV}, s50, {VB}")

def stage_dma_list(slot):
    seq = []
    seq.append(([I(f"s_add_u32 m0, {S_BW}, {slot*16384}")], dma(V_WQD[0], SRD_WQ, S_SOFFW0, 0, OPT['wnt'])))
    for j in range(1, 4): seq.append(([], dma(V_WQD[j], SRD_WQ, S_SOFFW0, j * 1024, OPT['wnt'])))
    seq.append(([I(f"s_add_u32 m0, {S_BX}, {slot*9216}")], dma(V_XD[0], SRD_X, S_SOFFX, 0, OPT['xnt'])))
    seq.append(([], dma(V_XD[1], SRD_X, S_SOFFX, 1024, OPT['xnt'])))
    q = dma(V_XD[2], SRD_X, S_SOFFX, 0, OPT['xnt'])
    seq.append(([I(f"s_add_u32 m0, {S_BX3}, {slot*9216}")], Masked(q, 0xffff)))
    return seq

def place_dma(S, seq, gaps):
    k = 0
    last = None
    for e in seq:
        if e[0]:
            for p in e[0]: S.put(gaps[k], p)
            k += 1
        S.put(gaps[k], e[1]); last = gaps[k]
        if len(e) > 2:
            for p in e[2]: S.put(gaps[k] + 1, p)
        k += 1
    return last

def stage_advance_w():
    return II(f"s_add_u32 {S_SOFFW0}, {S_SOFFW0}, 262144", f"s_and_b32 {S_SOFFW0}, {S_SOFFW0}, 0x3fffff")
def stage_advance_x():
    return II(f"s_add_u32 {S_SOFFX}, {S_SOFFX}, 64", f"s_and_b32 {S_SOFFX}, {S_SOFFX}, 0xfffffbff")
def stage_advance(): return stage_advance_w() + stage_advance_x()

def straight(seq):
    L = []
    for e in seq:
        L += e[0]
        if e[0]: L += II("s_nop 0")
        L.append(e[1])
        if len(e) > 2: L += e[2]
    return L

def stage_issue_straight(slot):
    return straight(stage_dma_list(slot)) + stage_advance()

def wq_read(dt, h2, slot):
    if OPT.get('x_noread'): return I('s_nop 0')
    s, hf = dt >> 1, dt & 1
    b = abuf(dt) + 2 * h2
    off = slot * 16384 + hf * 8 + h2 * 2048
    return I(f"ds_read_b64_tr_b16 {ar(b,2)}, v{V_WQR[s]}" + (f" offset:{off}" if off else ""))
def x_read(t, slot):
    if OPT.get('x_noread'): return I('s_nop 0')
    off = slot * 9216 + (0 if t == 4 else t * 1024)
    return I(f"ds_read_b128 {vr(bbuf(t))}, v{V_XR4 if t == 4 else V_XR}" + (f" offset:{off}" if off else ""))
def q_mfma(dt, t):
    if OPT.get('x_t4') and t == 4: return I("s_nop 3")
    if OPT.get('x_t45') and t == 4 and dt >= 4: return I("s_nop 3")
    return mfma(vr(qacc(dt, t)), ar(abuf(dt)), vr(bbuf(t)), vr(qacc(dt, t)))

def half_group(kind, j):
    if kind == 'K':
        pre = II(f"s_add_u32 m0, {S_MK}, {kphys(j)}", f"s_add_u32 s51, {S_TQ}, {j*8192}")
    else:
        pre = II(f"s_add_u32 m0, {S_MV}, {vphys(j)}", f"s_add_u32 s51, {S_TQ}, {j*8192}")
    g = kv_group(kind, None, "s51")
    return [(pre, g[0])] + [([], x) for x in g[1:]]

def put_dmas(S, seq, gaps):
    prev = -1
    for e, g in zip(seq, gaps):
        if e[0]:
            assert g - 1 > prev or prev < 0, (g, prev)
            for p in e[0]: S.put(g - 1, p)
        S.put(g, e[1])
        if len(e) > 2:
            for p in e[2]: S.put(g + 1, p)
        prev = g
    assert len(seq) <= len(gaps)

QTAIL = (4, 5, 6, 7)
def q_tail(): return [q_mfma(dt, t) for t in range(4) for dt in QTAIL]
SRD_T = "s[96:99]"; V_T = [10, 11, 12, 13]; S_TM, S_TS = "s35", "s36"
V_TB2 = [252, 253, 254, 255]
V_TB = [244, 245, 246, 247]
DUMMY = 151552
def burst_list():
    g = [dma(V_TB[n], SRD_T, S_TS, n * 1024, OPT['kvnt']) for n in range(4)]
    return [([I(f"s_mov_b32 m0, {S_TM}")], g[0])] + [([], x) for x in g[1:]]

def q_body(ks, with_dma, burst=False, extra_dma=None, wait=None):
    slot = ks & 3
    ms = q_tail() + [q_mfma(dt, t) for t in range(5) for dt in range(4)]
    S = Sched(ms)
    a = lambda dt, h: wq_read(dt, h, slot)
    xr = lambda t: x_read(t, slot)
    plan = {0: a(0,0), 1: a(0,1), 2: a(1,0), 3: a(1,1), 4: xr(0), 5: a(2,0), 7: a(2,1), 8: xr(1), 9: a(3,0), 11: a(3,1),
            12: xr(2), 13: xr(4), 16: xr(3), 17: a(4,0), 19: a(4,1), 20: a(5,0), 21: a(5,1), 23: a(6,0), 24: a(6,1), 25: a(7,0), 27: a(7,1)}
    for g, ins in plan.items(): S.put(g, ins)
    if with_dma:
        put_dmas(S, stage_dma_list((ks + 3) & 3), [6, 10, 14, 18, 22, 26, 29])
        w = stage_advance_w(); x = stage_advance_x()
        S.put(19, w[0]); S.put(20, w[1]); S.put(30, x[0]); S.put(31, x[1])
    if burst:
        put_dmas(S, burst_list(), [32, 33, 34, 35]) if False else None
        put_dmas(S, burst_list(), [15, 28, 31, 33])  if False else None
    if extra_dma:
        put_dmas(S, extra_dma, [6, 10, 14, 18, 22, 26, 30, 32][:len(extra_dma)])
    return S

def q_finish(S, wait, wg=33):
    S.put(wg, tr_mark(), f"s_waitcnt vmcnt({wait}) lgkmcnt(0)", tr_commit())
    S.put(wg + 1, "s_barrier")
    seq, pend = lgkm_waits(S.flat())
    assert not pend
    if OPT['verbose']: print(S.report("q_body"))
    return seq

def tr_mark():
    return [Raw("s_memtime s[100:101]")] if OPT.get('trace') else []
def tr_commit():
    return [Raw("s_mov_b32 s95, m0\n  s_mov_b32 m0, s94\n  s_nop 0\n  v_writelane_b32 v0, s100, m0\n  s_mov_b32 m0, s95\n  s_add_u32 s94, s94, 1")] if OPT.get('trace') else []
def tr_dump():
    if not OPT.get('trace'): return []
    return II("s_add_u32 s66, s58, 0x9000000", "s_addc_u32 s67, s59, 0", "s_lshl_b32 s50, s2, 2", f"s_add_u32 s50, s50, {S_W}", "s_lshl_b32 s50, s50, 8",
              f"v_lshlrev_b32 v253, 2, {V_LANE}", "v_add_u32 v253, s50, v253", "global_store_dword v253, v0, s[66:67]")

def zero_init():
    L = II("v_mov_b32 v244, 0", "v_mov_b32 v245, 0", "v_mov_b32 v246, 0", "v_mov_b32 v247, 0", "s_nop 1")
    for r in range(RB, RB + 160, 16): L += II(f"v_mfma_f32_32x32x16_bf16 v[{r}:{r+15}], v[244:247], v[244:247], 0")
    for r in range(0, 256, 16): L += II(f"v_mfma_f32_32x32x16_bf16 a[{r}:{r+15}], v[244:247], v[244:247], 0")
    return L

def phase_q():
    L = []; A = lambda *x: L.extend(II(*x))
    A("L_phase_q:")
    A(stage_setup_scalar(), stage_issue_straight(0))
    A(setup_b())
    A(kv_setup_scalar())
    A(lane_consts_q2())
    A(stamp("q_issued"))
    A(zero_init())
    A(lane_consts_rest())
    A(f"s_mov_b32 {S_CNT}, 0")
    if OPT.get('trace'): A("s_mov_b32 s94, 1", "s_memtime s[100:101]", "s_waitcnt lgkmcnt(0)", "v_writelane_b32 v0, s100, 0")
    A(f"v_mov_b32 v{VT[0]}, 0x3f803f80")
    for r in range(4): A(f"v_accvgpr_write_b32 a{A_ONES + r}, v{VT[0]}")
    for t in range(5):
        for k in range(4): A(f"v_mov_b32 v{bbuf(t)+k}, 0")
    A("s_mov_b32 s96, s12", "s_mov_b32 s97, s13", "s_mov_b32 s98, s14", "s_mov_b32 s99, s15")
    for n in range(4): A(f"v_mov_b32 v{V_TB[n]}, v{V_KD[n]}")
    if OPT.get('stst'): A(stamp("consts"))
    A(stage_issue_straight(1))
    if OPT.get('stst'): A(stamp("s1_iss"))
    A("s_waitcnt vmcnt(7)")
    if OPT.get('stst'): A(stamp("s0_land"))
    A("s_barrier")
    if OPT['fused']:
        A(f"s_cmp_eq_u32 {S_SAFE}, 1", "s_cbranch_scc1 L_no_arrive")
        A(f"s_lshl_b32 s50, {S_CL}, 2", f"s_add_u32 s50, s50, {CNTOFF()}", f"s_lshl_b32 s51, {S_W}, 14", "s_add_u32 s50, s50, s51",
          f"v_lshlrev_b32 v46, 8, {V_LANE}", "v_add_u32 v46, s50, v46", "v_mov_b32 v47, 1",
          f"buffer_atomic_add v47, v46, {SRD_D}, 0 offen sc1")
        A("L_no_arrive:")
    A(stage_issue_straight(2))
    if OPT.get('stst'): A(stamp("s2_iss"))
    A(f"s_add_u32 {S_TM}, {S_MK}, {kphys(0)}", f"s_mov_b32 {S_TS}, {S_TQ}")
    A(stamp("q_start"))
    l2 = OPT['l2pf']
    if l2:
        A(f"s_add_u32 s37, {S_TQ}, {4*8192}", "s_mov_b32 s92, s12", "s_mov_b32 s93, s13", "s_mov_b32 s94, s14", "s_mov_b32 s95, s15",
          "s_mov_b64 vcc, -1")
    bodies = []
    QOOL = []
    for k in range(4):
        S = q_body(k, True)
        if k == 1:
            put_dmas(S, burst_list(), [32, 33, 34, 35])
        if k == 3 and l2:
            g = [dma(V_OR, "s[92:95]", "s37", n * 1024, False) for n in range(4)]
            put_dmas(S, [([I(f"s_mov_b32 m0, {DUMMY}")], g[0])] + [([], x) for x in g[1:]], [32, 33, 34, 35])
        if l2:
            n_steady, n_first = [(18, 14), (22, 18), (18, 18), (22, 22)][k]
        else:
            n_steady = n_first = 14 if k == 0 else 18
        if OPT.get('b0st') and k == 0:
            for nm, g in (("g5", 5), ("g6", 7), ("g15", 15), ("g20", 20), ("g30", 31)):
                S.put(g, Raw(f"s_cmp_eq_u32 {S_CNT}, 0\n  s_cbranch_scc0 L_b0_{nm}\n  " + "\n  ".join(x.txt for x in stamp(nm)) + f"\nL_b0_{nm}:"))
        late = (k == 1) or (k == 3 and l2)
        w = tr_mark() + II(f"s_waitcnt vmcnt({n_steady}) lgkmcnt(0)")
        if n_first != n_steady:
            w += II(f"s_cbranch_vccnz L_q_first{k}", f"L_q_back{k}:")
            QOOL += II(f"L_q_first{k}:", f"s_waitcnt vmcnt({n_first})", f"s_branch L_q_back{k}")
        w += tr_commit()
        if late:
            seq, pend = lgkm_waits(S.flat())
            seq += w + II("s_barrier")
        else:
            S.put(33, w); S.put(34, "s_barrier")
            seq, pend = lgkm_waits(S.flat())
            assert not pend
        if OPT['verbose']: print(S.report("q_body"))
        bodies.append(seq)
    hist = bodies[3][-24:]
    A(".p2align 6", "L_q_loop:")
    for bi, b in enumerate(bodies):
        b2, n = hazards(b, history=hist); L.extend(b2); hist = b2[-24:]
        if OPT.get('stst') and bi < 2: A(f"s_cmp_eq_u32 {S_CNT}, 0", f"s_cbranch_scc0 L_nost{bi}", stamp(f"body{bi}"), f"L_nost{bi}:")
    A(f"s_add_u32 {S_TM}, {S_TM}, 16384", f"s_add_u32 {S_TS}, {S_TS}, 8192", f"s_add_u32 {S_CNT}, {S_CNT}, 1")
    if l2:
        A("s_mov_b64 vcc, 0", f"s_cmp_eq_u32 {S_CNT}, 1", "s_cbranch_scc1 L_q_to1", "L_q_to1_done:")
    A(f"s_cmp_eq_u32 {S_CNT}, 2", "s_cbranch_scc0 L_q_tov_done",
      "s_mov_b32 s96, s16", "s_mov_b32 s97, s17", f"s_add_u32 {S_TM}, {S_MV}, {vphys(0)}", f"s_mov_b32 {S_TS}, {S_TQ}")
    if l2: A("s_mov_b32 s92, s12", "s_mov_b32 s93, s13", f"s_add_u32 s37, {S_TQ}, {5*8192}")
    for n in range(4): A(f"v_mov_b32 v{V_TB[n]}, v{V_VD[n & 1]}")
    A("L_q_tov_done:", f"s_cmp_lt_u32 {S_CNT}, 3", "s_cbranch_scc1 L_q_loop")
    OOL = []
    if l2: OOL += II("L_q_to1:", "s_mov_b32 s92, s16", "s_mov_b32 s93, s17", f"s_add_u32 s37, {S_TQ}, {3*8192}", "s_branch L_q_to1_done")
    OOL += QOOL
    b, n = hazards(q_finish(q_body(12, True), 18 if l2 else 14), history=hist); L.extend(b)
    b, n = hazards(q_finish(q_body(13, False, extra_dma=half_group('V', 1)), 15 if l2 else 11), history=b[-24:]); L.extend(b)
    b, n = hazards(q_finish(q_body(14, False, extra_dma=half_group('K', 2) + half_group('V', 2)), 12), history=b[-24:]); L.extend(b)
    b, n = hazards(q_finish(q_body(15, False), 12), history=b[-24:]); L.extend(b)
    if OOL:
        A("s_branch L_q_after_ool")
        L.extend(OOL)
        A("L_q_after_ool:")
    A(stamp("q_loop_done"))
    return L

def q_tiles(s): return range(5) if s < 2 else range(4)
def q_scale(ss):
    return [I(f"v_pk_mul_f32 {vr(grp(t,s)+2*k,2)}, {vr(grp(t,s)+2*k,2)}, {vr(V_C0,2)}") for s in ss for t in q_tiles(s) for k in range(4)]
def q_cvt(ss):
    return [I(f"v_cvt_pk_bf16_f32 v{grp(t,s)+k}, v{grp(t,s)+2*k}, v{grp(t,s)+2*k+1}") for s in ss for t in q_tiles(s) for k in range(4)]
QX = 155648

def transition():
    L = []; A = lambda *x: L.extend(II(*x))
    A(f"s_add_u32 {S_SOFFK}, {S_TQ}, {5*8192}", f"s_add_u32 {S_SOFFV}, {S_TQ}, {4*8192}")
    A(f"v_mov_b32 v{V_C0}, {hex(f2u(SCALE))}", f"v_mov_b32 v{V_C1}, {hex(f2u(SCALE))}")
    A(f"s_lshl_b32 s50, {S_W}, 11", f"s_add_u32 s50, s50, {QX}", f"v_lshlrev_b32 v7, 4, {V_LANE}", "v_add_u32 v8, s50, v7",
      "s_xor_b32 s50, s50, 2048", "v_add_u32 v9, s50, v7")
    k3 = half_group('K', 3)
    seq = [k_read(kt, s, 0) for kt in range(2) for s in range(4)]
    sc = q_scale((0, 1))
    seq += II("s_nop 3") + sc
    S = Sched(q_tail())
    cv = q_cvt((0, 1))
    sh = lambda c: any(f"v{grp(4,s)+k}," in c.txt.split()[1] + "," for s in (0, 1) for k in range(4))
    cv = [c for c in cv if sh(c)] + [c for c in cv if not sh(c)]
    S.spread(cv, [min(i * 2 // 5, 15) for i in range(40)])
    S.put(5, f"ds_write_b128 v8, {vr(grp(4,0))}"); S.put(7, f"ds_write_b128 v8, {vr(grp(4,1))} offset:1024")
    seq += S.flat()
    seq += II("s_waitcnt lgkmcnt(0)", "s_barrier", f"ds_read_b128 {vr(grp(4,2))}, v9", f"ds_read_b128 {vr(grp(4,3))}, v9 offset:1024")
    sc = q_scale((2, 3))
    seq += II("s_nop 3") + k3[0][0] + sc[:8] + [k3[0][1]] + sc[8:16] + [k3[1][1]] + sc[16:24] + [k3[2][1]] + sc[24:] + [k3[3][1]]
    qk = lambda kt, ss, c: [qk_mfma(kt, s, t, c) for s in ss for t in range(5)]
    S = Sched(qk(0, (0, 1), lambda t: "0") + qk(0, (2, 3), lambda t: "0"))
    S.spread(q_cvt((2, 3)), [min(i * 5 // 16, 9) for i in range(32)])
    S.spread([f"v_mov_b32 v{Preg(1,t)+k}, 0" for t in range(5) for k in range(4)], [10 + i // 2 for i in range(20)])
    seq += S.flat()
    seq += straight(half_group('V', 3))
    seq, _ = lgkm_waits(seq, final_zero=True)
    seq, n = hazards(seq); L.extend(seq)
    A(stamp("qk0_done"))
    A(f"s_cmp_eq_u32 {S_SAFE}, 1", "s_cbranch_scc1 L_safe_max")
    T = [2, 3, 4, 5, 6]
    U = [7, 8, 9, 10, 11]
    E = II("s_nop 5")
    for t in range(5): E += II(f"v_max3_f32 v{T[t]}, v{Sreg(0,t)}, v{Sreg(0,t)+1}, v{Sreg(0,t)+2}")
    for t in range(5): E += II(f"v_max_f32 v{T[t]}, v{T[t]}, v{Sreg(0,t)+3}")
    E += row_max_finish(T, U)
    S = Sched(qk(1, range(4), lambda t: vr(cinit(t))))
    sub = [f"v_add_f32 v{Sreg(0,t)+k}, v{Sreg(0,t)+k}, v{cinit(t)}" for t in range(5) for k in range(4)]
    ex = [f"v_exp_f32 v{Sreg(0,t)+k}, v{Sreg(0,t)+k}" for t in range(5) for k in range(4)]
    S.spread(sub, [i // 2 for i in range(20)])
    S.spread(ex, [min(2 + i, 19) for i in range(20)])
    E += S.flat()
    E += II("s_barrier")
    E += II("s_nop 3") + exps(1)
    E, n = hazards(E, history=L[-24:]); L.extend(E)
    A("L_max_done:")
    A(straight(half_group('K', 4)))
    return L

def row_max_finish(T, U):
    E = []
    for sw in ("v_permlane32_swap_b32", "v_permlane16_swap_b32"):
        for t in range(5): E += II(f"v_mov_b32 v{U[t]}, v{T[t]}")
        for t in range(5): E += II(f"{sw} v{T[t]}, v{U[t]}")
        for t in range(5): E += II(f"v_max_f32 v{T[t]}, v{T[t]}, v{U[t]}")
    for t in range(5):
        for k in range(4): E += II(f"v_sub_f32 v{cinit(t)+k}, 0, v{T[t]}")
    return E

def safe_paths():
    L = []; A = lambda *x: L.extend(II(*x))
    T = [2, 3, 4, 5, 6]; U = [7, 8, 9, 10, 11]
    ab = [(Sreg(0, t), Sreg(1, t)) for t in range(5)]
    A("L_safe_max:")
    for t in range(5): A(f"v_mov_b32 v{T[t]}, 0xff800000")
    A(f"s_mov_b32 {S_CNT}, 0")
    A("L_safe_loop:")
    A("s_waitcnt vmcnt(0) lgkmcnt(0)", "s_barrier")
    A(f"s_and_b32 s50, {S_CNT}, 15", "s_lshl_b32 s50, s50, 13", f"s_add_u32 s51, s50, {S_TQ}", f"s_add_u32 m0, {S_MK}, {kphys(0)}", "s_nop 0")
    A(kv_group('K', None, "s51"))
    A("s_waitcnt vmcnt(0)", "s_barrier")
    A([k_read(kt, s, 0) for kt in range(2) for s in range(4)], "s_waitcnt lgkmcnt(0)")
    A(f"s_cmp_eq_u32 {S_CNT}, 16", "s_cbranch_scc1 L_safe_last")
    A([qk_mfma(kt, s, t, lambda t: "0") for kt in range(2) for s in range(4) for t in range(5)], "s_nop 7", "s_nop 7")
    for t, (a, b) in enumerate(ab):
        A(f"v_max3_f32 v{T[t]}, v{T[t]}, v{a}, v{a+1}", f"v_max3_f32 v{T[t]}, v{T[t]}, v{a+2}, v{a+3}",
          f"v_max3_f32 v{T[t]}, v{T[t]}, v{b}, v{b+1}", f"v_max3_f32 v{T[t]}, v{T[t]}, v{b+2}, v{b+3}")
    A(f"s_add_u32 {S_CNT}, {S_CNT}, 1", f"s_cmp_lt_u32 {S_CNT}, 16", "s_cbranch_scc1 L_safe_loop")
    E, n = hazards(II("s_nop 3") + row_max_finish(T, U)); L.extend(E)
    A("s_branch L_safe_loop")
    A("L_safe_last:", "s_nop 3")
    A([qk_mfma(kt, s, t, lambda t: vr(cinit(t))) for kt in range(2) for s in range(4) for t in range(5)], "s_nop 7", "s_nop 7")
    A("s_barrier")
    for t, (a, b) in enumerate(ab):
        for base in (a, b):
            for k in range(4): A(f"v_exp_f32 v{base+k}, v{base+k}")
    A("s_nop 1", "s_branch L_max_done")
    if OPT['fused']:
        A("L_cnt_spin:", f"s_mov_b32 s53, {SPIN}", "L_cnt_spin_loop:", "s_sleep 2",
          f"buffer_load_dword v15, v14, {SRD_D}, 0 offen sc1", "s_waitcnt vmcnt(0)", "v_readfirstlane_b32 s52, v15", "s_nop 3",
          "s_cmp_ge_u32 s52, 16", "s_cbranch_scc1 L_cnt_ok", "s_sub_u32 s53, s53, 1", "s_cmp_lg_u32 s53, 0", "s_cbranch_scc1 L_cnt_spin_loop", "s_branch L_cnt_ok")
    A("L_restart:", f"s_mov_b32 {S_SAFE}, 1", "s_waitcnt vmcnt(0) lgkmcnt(0)", "s_barrier")
    A(lane_consts_q())
    A("s_branch L_phase_q")
    return L

def k_read(kt, s, slotk):
    off = kphys(slotk) + kt * 4096
    return I(f"ds_read_b128 {ar(kbuf(kt, s))}, v{V_KR[s]}" + (f" offset:{off}" if off else ""))
def v_read(dt, h, slotv):
    off = vphys(slotv) + h * 4096
    return I(f"ds_read_b64_tr_b16 {ar(abuf(dt) + 2*h, 2)}, v{V_VR[dt]}" + (f" offset:{off}" if off else ""))
def qk_mfma(kt, s, t, first_c):
    c = first_c(t) if s == 0 else vr(Sreg(kt, t))
    return mfma(vr(Sreg(kt, t)), ar(kbuf(kt, s)), vr(qfrag(t, s)), c)
def pv_mfma(dt, t, par):
    return mfma(ar(oacc(dt, t)), ar(abuf(dt)), vr(Preg(par, t)), ar(oacc(dt, t)))
def rs_mfma(t, par):
    return mfma(ar(lacc(t)), ar(A_ONES), vr(Preg(par, t)), ar(lacc(t)))
def cvts(par):
    out = []
    for kt in range(2):
        for t in range(5):
            s = Sreg(kt, t); p = Preg(par, t) + 2 * kt
            out.append(I(f"v_cvt_pk_bf16_f32 v{p}, v{s}, v{s+1}"))
            out.append(I(f"v_cvt_pk_bf16_f32 v{p+1}, v{s+2}, v{s+3}"))
    return out
def exps(kt):
    return [I(f"v_exp_f32 v{Sreg(kt,t)+i}, v{Sreg(kt,t)+i}") for t in range(5) for i in range(4)]

def att_dma(j, dyn=False):
    seq = []
    if j == 0 or j > 12: return seq
    if True:
        pre = II(f"s_add_u32 m0, {S_MK}, {kphys(j + 4)}")
        g = kv_group('K', None, S_SOFFK)
        seq += [(pre, g[0])] + [([], x) for x in g[1:]]
        seq[-1] = (seq[-1][0], seq[-1][1], II(f"s_add_u32 {S_SOFFK}, {S_SOFFK}, 8192"))
    if j + 3 <= 15:
        pre = II(f"s_add_u32 m0, {S_MV}, {vphys(j + 3)}")
        g = kv_group('V', None, S_SOFFV)
        s2 = [(pre, g[0])] + [([], x) for x in g[1:]]
        s2[-1] = (s2[-1][0], s2[-1][1], II(f"s_add_u32 {S_SOFFV}, {S_SOFFV}, 8192"))
        seq += s2
    return seq

def wo_dma(ks, slot_base_imm):
    seq = []
    for gI in range(2):
        pre = II(f"s_lshl_b32 s50, {S_W}, 13", f"s_add_u32 m0, s50, {slot_base_imm + gI*4096}", f"s_mov_b32 s51, {ks*32768 + gI*16384}")
        for n in range(4):
            seq.append((pre if n == 0 else [], dma(V_WOD[n], SRD_WO, "s51", n * 1024, OPT["wont"])))
    return seq

def att_body(j, vmwait, extra_dma=None):
    par_old, par_new = (j - 1) & 1, j & 1
    ms = [pv_mfma(dt, t, par_old) for dt in (5, 6, 7) for t in range(5)] + [rs_mfma(t, par_old) for t in range(5)]
    ms += [qk_mfma(kt, s, t, lambda t: vr(cinit(t))) for kt in range(2) for s in range(4) for t in range(5)]
    ms += [pv_mfma(dt, t, par_new) for dt in range(5) for t in range(5)]
    S = Sched(ms)
    cv = cvts(par_new)
    S.spread(cv, [1, 1, 3, 3, 6, 6, 8, 8, 11, 11, 13, 13, 16, 16, 18, 18, 21, 21, 23, 23])
    S.spread([k_read(kt, s, j + 1) for kt in range(2) for s in range(4)], [0, 2, 5, 7, 10, 12, 15, 17])
    vr_ = [v_read(dt, h, j) for dt in range(8) for h in range(2)]
    S.spread(vr_, [20, 22, 25, 26, 27, 28, 30, 31, 32, 33, 35, 36, 37, 38, 40, 61])
    d = att_dma(j) + (extra_dma or [])
    put_dmas(S, d, [4, 9, 14, 19, 24, 29, 34, 39])
    S.spread(exps(0), list(range(41, 61)))
    S.spread(exps(1), list(range(62, 82)))
    seq = S.flat()
    seq, pend = lgkm_waits(seq)
    seq += tr_mark() + II(f"s_waitcnt vmcnt({vmwait}) lgkmcnt(0)") + tr_commit() + II("s_barrier")
    if OPT['verbose']: print(S.report(f"att_body {j}"))
    return seq

WO1 = [192, 200, 208, 216, 224, 228, 232, 236]
def wofrag(ks, m, n=4, off=0):
    if ks == 0: return ar(216 + 4 * m + off, n)
    if ks == 1: return vr(WO1[m] + off, n)
    return ar((ks - 2) * 32 + 4 * m + off, n)
def wo_read(ks, m, h):
    cp, hf = m >> 1, m & 1
    off = (32768 if (ks & 1) == 0 else 0) + hf * 8 + h * 4096
    return I(f"ds_read_b64_tr_b16 {wofrag(ks, m, 2, 2*h)}, v{V_WOR[cp]}" + (f" offset:{off}" if off else ""))

def tlb_touch():
    L = II(f"v_mul_u32_u24 v46, 0x100000, {V_LANE}",
           f"buffer_load_dword v47, v46, {SRD_P}, 0 offen")
    if OPT['tlb'] == 2:
        L += II(f"s_mul_i32 s50, {S_B}, {144*2048}", f"v_lshlrev_b32 v46, 26, {V_LANE}", f"buffer_load_dword v47, v46, {SRD_O}, s50 offen")
    return L

def wo_prefetch(shift=0):
    n = OPT['pfw']
    L = II(f"s_add_u32 s50, {S_B}, {shift}", "s_and_b32 s50, s50, 7", "s_lshl_b32 s50, s50, 15", f"s_lshl_b32 s51, {S_W}, 13", "s_add_u32 s50, s50, s51")
    nt = " nt" if OPT['pfnt'] else ""
    if n == 8:
        L += II(f"v_lshlrev_b32 v46, 4, {V_LANE}")
        for i in range(8):
            L += II(f"s_add_u32 s51, s50, {i*1024}", f"buffer_load_dwordx4 v[252:255], v46, s[84:87], s51 offen{nt}")
    else:
        sh = {1: 7, 2: 6, 4: 5}[n]
        L += II(f"v_lshlrev_b32 v46, {sh}, {V_LANE}")
        for i in range(n):
            L += II(f"s_add_u32 s51, s50, {i * (64 << sh)}", f"buffer_load_dword v47, v46, s[84:87], s51 offen{nt}")
    return L

ATT_OOL = []
def attention():
    L = []; A = lambda *x: L.extend(II(*x))
    L += transition()
    A(stamp("att_start"))
    A(f"s_mov_b32 {S_CNT}, 0")
    b0, n = hazards(att_body(0, 16), history=L[-24:]); L.extend(b0)
    bodies = [att_body(j, 16) for j in range(1, 5)]
    hist = bodies[3][-24:]
    A(".p2align 6", "L_att_loop:")
    OOLA = []
    for i, b in enumerate(bodies):
        if i == 3:
            A(f"s_cmp_eq_u32 {S_CNT}, 2", "s_cbranch_scc0 L_att_nok_done")
            for n in range(4): A(f"v_add_u32 v{V_KD[n]}, 0x40000000, v{V_KD[n]}")
            A("L_att_nok_done:")
        b2, n = hazards(b, history=hist); L.extend(b2); hist = b2[-24:]
    if 0 <= OPT['pf'] < 3:
        A(f"s_cmp_eq_u32 {S_CNT}, {OPT['pf']}", "s_cbranch_scc0 L_att_nopf", wo_prefetch(), (wo_prefetch(4) if OPT.get('pfdup') else []),
          (tlb_touch() if OPT.get('tlb') else []), "L_att_nopf:")
    A(f"s_add_u32 {S_CNT}, {S_CNT}, 1", f"s_cmp_lt_u32 {S_CNT}, 3", "s_cbranch_scc1 L_att_loop")
    ATT_OOL.clear(); ATT_OOL.extend(OOLA)
    npf = (OPT['pfw'] * (2 if OPT.get('pfdup') else 1) + (OPT.get('tlb') or 0)) if (OPT['pf'] == 2 and OPT['pfexact']) else 0
    b, n = hazards(att_body(13, 16 + npf, extra_dma=wo_dma(0, WOA)), history=hist); L.extend(b); hist = b[-24:]
    if OPT.get('pf2nd'): A(wo_prefetch(4))
    b, n = hazards(att_body(14, 16 + npf, extra_dma=wo_dma(1, WOB)), history=hist); L.extend(b); hist = b[-24:]
    A(stamp("att_loop_done"))
    ms = [pv_mfma(dt, t, 0) for dt in (5, 6, 7) for t in range(5)] + [rs_mfma(t, 0) for t in range(5)]
    ms += [pv_mfma(dt, t, 1) for dt in range(8) for t in range(5)] + [rs_mfma(t, 1) for t in range(5)]
    S = Sched(ms)
    S.spread(cvts(1), list(range(0, 20)))
    S.spread([v_read(dt, h, 15) for dt in range(5) for h in range(2)], list(range(0, 10)))
    S.spread([v_read(dt, h, 15) for dt in (5, 6, 7) for h in range(2)], list(range(15, 21)))
    S.put(20, "s_waitcnt vmcnt(8)")
    S.spread([wo_read(0, m, h) for m in range(8) for h in range(2)], [21 + i // 2 for i in range(16)])
    S.put(28, "s_waitcnt vmcnt(0)")
    S.spread([wo_read(1, m, h) for m in range(8) for h in range(2)], [29 + i // 2 for i in range(16)])
    S.put(38, "s_waitcnt lgkmcnt(0)")
    if OPT['fused']:
        S.put(36, f"s_lshl_b32 s50, {S_CL}, 2", f"s_add_u32 s50, s50, {CNTOFF()}")
        S.spread([f"v_lshlrev_b32 v14, 8, {V_LANE}", "v_add_u32 v14, s50, v14"], [37, 37])
        S.put(38, f"buffer_load_dword v15, v14, {SRD_D}, 0 offen sc1")
    put_dmas(S, wo_dma(2, WOA), [41, 44, 47, 50, 54, 57, 60, 63])
    seq, pend = lgkm_waits(S.flat(), final_zero=True)
    seq, n = hazards(seq, history=hist); L.extend(seq)
    A("s_barrier")
    A("s_nop 3")
    A(stamp("att_done"))
    return L

def wo_dma_t(ks):
    d = wo_dma(ks, WOA if (ks & 1) == 0 else WOB)
    for e in d: e[1].tag = f"wo{ks}"
    return d
def wo_reads(ks): return [wo_read(ks, m, h) for m in range(8) for h in range(2)]

LFLAG = 90112

def o_epilogue():
    E = []
    tl = VT[0]; rc = VT[2]
    d3, d4, d5 = wo_dma_t(3), wo_dma_t(4), wo_dma_t(5)
    E += II(f"s_lshl_b32 s51, {S_QH}, 11", f"v_subrev_u32 v{V_OWB}, s51, v{V_OW}", f"v_add_u32 v{V_OW}, s51, v{V_OW}",
            f"s_lshl_b32 s50, {S_U}, 12", f"s_add_u32 s50, s50, 32768", "s_add_u32 s50, s50, s51", f"v_add_u32 v{V_OW4}, s50, v{V_OR}")
    def emit_dma(e):
        return e[0] + II("s_nop 0") * (1 if e[0] else 0) + [e[1]]
    nfr = 0
    for t in range(5):
        E += II(f"v_accvgpr_read_b32 v{tl}, a{lacc(t)}", f"v_rcp_f32 v{rc}, v{tl}", "s_nop 0", f"v_mov_b32 v{rc+1}, v{rc}")
        if t == 0: E += II(f"v_mov_b32 v{VT[1]}, v{tl}")
        else: E += II(f"v_max_f32 v{VT[1]}, v{VT[1]}, v{tl}")
        if t == 4:
            E += II(f"v_cmp_nge_f32 vcc, {hex(OPT['lthr'] or LTHR)}, v{VT[1]}", f"s_lshl_b32 s50, {S_W}, 2", f"s_add_u32 s50, s50, {LFLAG}", f"v_mov_b32 v52, s50",
                    "s_cmp_lg_u64 vcc, 0", "s_cselect_b32 s51, 1, 0", "v_mov_b32 v53, s51", "ds_write_b32 v52, v53")
        for ks in range(4 if t < 4 else 2):
            mid = []
            if nfr < 8: mid += emit_dma(d3[nfr])
            if 8 <= nfr < 16: mid += emit_dma(d4[nfr - 8])
            if nfr >= 16:
                for i in range(4): mid += emit_dma(d5[4 * (nfr - 16) + i])
            if OPT.get('x_oenodma'): mid = [x for x in mid if x.kind == 'dma'][:0] + [x for x in mid if x.kind != 'dma']
            rd = []
            cut = {0: (0, 6), 1: (6, 11), 2: (11, 16)}
            if 4 <= nfr < 7:
                if nfr == 4:
                    rd += [VmNeed("wo2")]
                    if OPT['fused']:
                        rd += II("v_readfirstlane_b32 s52, v15", "s_nop 3", "s_cmp_lt_u32 s52, 16", "s_cbranch_scc1 L_cnt_spin", "L_cnt_ok:")
                a_, b_ = cut[nfr - 4]; rd += wo_reads(2)[a_:b_]
            if 12 <= nfr < 15:
                if nfr == 12: rd += [VmNeed("wo3")]
                a_, b_ = cut[nfr - 12]; rd += wo_reads(3)[a_:b_]
            if OPT.get('oe_nord'): rd = [x for x in rd if x.kind != 'dsr']
            if OPT.get('oe_nowait'): rd = [x for x in rd if not isinstance(x, VmNeed)]
            if OPT.get('oe_nodma'): mid = []; rd = [x for x in rd if not (isinstance(x, VmNeed) and x.tag == 'wo3')]
            if nfr in (8, 16): E += II("s_waitcnt lgkmcnt(0)")
            E += rd
            for h in range(2):
                for k in range(4):
                    E += II(f"v_accvgpr_read_b32 v{52 + 4*h + k}, a{oacc(2*ks + h, t) + k}")
            E += mid
            for k in range(4): E += II(f"v_pk_mul_f32 {vr(52+2*k,2)}, {vr(52+2*k,2)}, {vr(rc,2)}")
            for k in range(4): E += II(f"v_cvt_pk_bf16_f32 v{60+k}, v{52+2*k}, v{53+2*k}")
            E += II(f"ds_write_b128 v{V_OW if ks < 2 else V_OWB}, {vr(60)} offset:{(t*8+ks)*1024}" if t < 4 else f"ds_write_b128 v{V_OW4}, {vr(60)} offset:{ks*1024}")
            nfr += 1
        if OPT['stamps'] and OPT.get('oest'): E += [Raw("\n  ".join(x.txt for x in stamp(f"oe{t}")))] + II("s_waitcnt lgkmcnt(0)")
    E, q = vm_waits(E, ["cnt"] + ["wo2"] * 8)
    E, pend = lgkm_waits(E, final_zero=True)
    E, n = hazards(E)
    return E + II("s_barrier"), q

def o_read(dst, t, ks):
    if t < 8: return I(f"ds_read_b128 {vr(dst)}, v{V_OR} offset:{(t*8+ks)*1024}")
    return I(f"ds_read_b128 {vr(dst)}, v{V_OR8} offset:{ks*1024}")
V_PSC = [196, 197, 198, 199]
V_OWNA = 204; S_OWN = "s49"
OWNB = 73728
OWN_OOL = []
OWN_BLK = {}
def pstore(src, t, cp):
    v = V_PSC[cp] if OPT['own'] else V_PS
    return (II(f"s_add_u32 s51, {S_SOFFP}, {(cp*9 + t)*16384}"),
            I(f"buffer_store_dwordx4 {vr(src)}, v{v}, {SRD_P}, s51 offen {OPT['pst']}"))
def own_hook(src, t, cp):
    if not OPT['own']: return []
    OWN_BLK.setdefault(t, []).extend(II(f"L_own_{t}_{cp}:", f"ds_write_b128 v{V_OWNA}, {vr(src)} offset:{t*1024}", f"s_branch L_ownb_{t}_{cp}"))
    return II(f"s_cmp_eq_u32 {S_OWN}, {cp}", f"s_cbranch_scc1 L_own_{t}_{cp}", f"L_ownb_{t}_{cp}:")

NP1 = 2
def acc1(t, m): return 64 + (t * 8 + m) * 4
def acc2(t, m): return 128 + ((t & 1) * 8 + m) * 4
def bfr1(par, t): return 2 + (par * 4 + t) * 4
STG = [48, 52, 56, 60]

def tile_epilogue(accf, t, k0):
    out = []
    for cp in range(4):
        a0, a1 = accf(t, 2*cp), accf(t, 2*cp + 1)
        d = STG[(k0 + cp) & 3]
        cv = II(f"v_cvt_pk_bf16_f32 v{d}, v{a0}, v{a0+1}", f"v_cvt_pk_bf16_f32 v{d+1}, v{a0+2}, v{a0+3}",
                f"v_cvt_pk_bf16_f32 v{d+2}, v{a1}, v{a1+1}", f"v_cvt_pk_bf16_f32 v{d+3}, v{a1+2}, v{a1+3}")
        pre, st = pstore(d, t, cp)
        if OPT.get('x_nost') and not (t == 8 and cp == 3): st = I("s_nop 0")
        st.tag = f"st{t}"
        out.append((cv, (pre, st), own_hook(d, t, cp)))
    return out

def out_proj(queue):
    L = []; A = lambda *x: L.extend(II(*x))
    A(f"s_mul_i32 {S_SOFFP}, {S_W}, {4*9*16384}")
    OWN_OOL.clear(); OWN_BLK.clear()
    if OPT['own']:
        A(f"s_lshr_b32 s50, {S_HP}, 2", f"s_and_b32 s51, {S_HP}, 3", f"s_cmp_eq_u32 s50, {S_W}", f"s_cselect_b32 {S_OWN}, s51, 7")
        for cp in range(4):
            A(f"s_cmp_eq_u32 {S_OWN}, {cp}", "s_cselect_b32 s50, 0x40000000, 0", f"v_or_b32 v{V_PSC[cp]}, s50, v{V_PS}")
        A(f"v_add_u32 v{V_OWNA}, {OWNB}, v{V_OR}")
    NP = OPT['np1']
    G = 8 * NP
    ms = [mfma(vr(acc1(t, m)), wofrag(ks, m), vr(bfr1(ks & 1, t)), ("0" if ks == 0 else vr(acc1(t, m)))) for ks in range(8) for m in range(8) for t in range(NP)]
    bt = lambda ks: 2 + 4 * ks
    P1 = len(ms)
    for t in range(NP, 9):
        ms += [mfma(vr(acc2(t, m)), wofrag(ks, m), vr(bt(ks)), ("0" if ks == 0 else vr(acc2(t, m)))) for ks in range(8) for m in range(8)]
    S = Sched(ms)
    def reads(ks, g0): S.spread(wo_reads(ks), [g0 + i // 2 for i in range(16)])
    def dmas(ks, g0, step=4): put_dmas(S, wo_dma_t(ks), [g0 + step * i for i in range(8)])
    def put_free(ins, g0):
        g = g0
        while S.cost(g) + COST[ins.kind] > 8: g += 1
        S.put(g, ins); return g
    def epi(t, accf, g0, stride):
        for cp, (cv, (spre, st), hook) in enumerate(tile_epilogue(accf, t, 0)):
            g = g0 + cp * stride
            S.spread(cv, [g, g, g + 1, g + 1])
            for p in spre: S.put(g + 1, p)
            for p in hook: S.put(g + 2, p)
            S.put(g + 2, st)
        if OPT['own']:
            blk = OWN_BLK.pop(t)
            S.put(g0 + 3 * stride + 4, Raw(f"s_branch L_ownx_{t}\n" + "\n".join((x.txt if x.kind == 'label' else "  " + x.txt) for x in blk) + f"\nL_ownx_{t}:"))
    if NP == 2:
        pre = [o_read(bfr1(0, t), t, 0) for t in range(NP)]
        S.put(0, VmNeed("wo4")); reads(4, 0)
        S.put(9, "s_waitcnt lgkmcnt(0)"); dmas(6, 11, 3)
        S.put(33, VmNeed("wo5")); reads(5, 33)
        S.put(42, "s_waitcnt lgkmcnt(0)"); dmas(7, 44, 3)
        S.put(84, VmNeed("wo6")); reads(6, 84)
        S.put(100, VmNeed("wo7")); reads(7, 100)
        for ks in range(7):
            g = ks * G + (1 if ks else 8)
            for t in range(NP):
                g = put_free(o_read(bfr1((ks + 1) & 1, t), t, ks + 1), g) + 1
            assert g <= (ks + 1) * G - 3, (ks, g)
        g = 6 * G + 4
        for ks in (2, 3, 6, 7): g = put_free(o_read(bt(ks), NP, ks), g) + 1
        g = 7 * G + 1
        for ks in (0, 1): g = put_free(o_read(bt(ks), NP, ks), g) + 1
        base = P1
        for ks in (4, 5): put_free(o_read(bt(ks), NP, ks), base + 1)
        epi(0, acc1, base + 4, 7); epi(1, acc1, base + 32, 7)
    else:
        assert NP == 0
        pre = [o_read(bt(ks), 0, ks) for ks in range(8)]
        S.put(0, VmNeed("wo4")); reads(4, 0)
        S.put(9, "s_waitcnt lgkmcnt(0)"); dmas(6, 11, 2)
        S.put(10, VmNeed("wo5"));
        S.spread(wo_reads(5), [12, 12, 14, 14, 16, 16, 18, 18, 20, 20, 22, 22, 24, 24, 26, 26])
        S.put(28, "s_waitcnt lgkmcnt(0)"); dmas(7, 30, 2)
        S.put(46, VmNeed("wo6")); S.spread(wo_reads(6), [46, 46, 46, 46] + [47 + i // 4 for i in range(12)])
        S.put(54, VmNeed("wo7")); S.spread(wo_reads(7), [54, 54, 54, 54] + [55 + i // 12 for i in range(12)])
    for t in range(NP, 9):
        b = P1 + (t - NP) * 64
        if t > NP: epi(t - 1, acc2, b + 6, 12)
        if t < 8:
            for ks in range(8):
                g = b + 8 * ks + 8
                if g >= b + 64: g = b + 64 + 1
                put_free(o_read(bt(ks), t + 1, ks), g)
    if OPT['fused']:
        g0 = P1 + (3 - NP) * 64 + 49
        S.put(g0, f"s_lshl_b32 s50, {S_W}, 7", f"s_lshl_b32 s52, {S_HP}, 2", "s_add_u32 s50, s50, s52")
        S.spread([f"v_lshlrev_b32 v36, 13, {V_LANE}", "v_add_u32 v36, s50, v36", "v_mov_b32 v37, 1"], [g0 + 1, g0 + 1, g0 + 2])
        S.put(g0 + 3, f"s_lshr_b32 s50, {S_HP}, 2", "s_lshl_b32 s50, s50, 7")
        S.spread([f"v_lshrrev_b32 v46, 4, {V_LANE}", "v_lshlrev_b32 v46, 9, v46", f"v_and_b32 v47, 15, {V_LANE}",
                  "v_lshl_add_u32 v46, v47, 2, v46", "v_add_u32 v46, s50, v46"], [g0 + 4, g0 + 4, g0 + 5, g0 + 9, g0 + 9])
        b = P1 + (8 - NP) * 64
        fa = I(f"buffer_store_dword v37, v36, {SRD_F}, 0 offen sc1"); fa.tag = "fl"
        if OPT['early']:
            S.put(b + 40, VmNeed("st3")); S.put(b + 41, fa)
            pl = I(f"buffer_load_dword v47, v46, {SRD_F}, 0 offen sc1"); pl.tag = "poll"
            S.put(b + 60, pl)
    if OPT['stamps'] and OPT.get('opst'):
        for nm, g in (("w1", 127), ("w3", 255), ("w5", 383), ("w8", 575)):
            S.put(g, Raw("\n  ".join(x.txt for x in stamp(nm))))
            S.put(g, "s_waitcnt lgkmcnt(0)")
    pre = II(f"v_mov_b32 v56, {LFLAG}", f"ds_read_b128 {vr(52)}, v56") + pre
    pre += II("s_waitcnt lgkmcnt(0)", "v_or3_b32 v52, v52, v53, v54", "v_or_b32 v52, v52, v55", "s_nop 0", "v_readfirstlane_b32 s50, v52", "s_nop 3",
              f"s_andn2_b32 s50, s50, {S_SAFE}", "s_cmp_lg_u32 s50, 0", "s_cbranch_scc1 L_restart")
    seq = pre + S.flat()
    tail = II("s_nop 7")
    for cp, (cv, (spre, st), hook) in enumerate(tile_epilogue(acc2, 8, 0)):
        tail += cv + spre + hook + [st]
    if OPT['own']:
        tail += II("s_branch L_ownx_8") + OWN_BLK.pop(8) + II("L_ownx_8:")
    if OPT['stamps'] and OPT.get('opst'): tail += stamp("st_iss")
    if OPT['fused']:
        fb = I(f"buffer_store_dword v37, v36, {SRD_F}, 0 offen offset:512 sc1"); fb.tag = "fl"
        fc = I(f"buffer_store_dword v37, v36, {SRD_F}, 0 offen offset:1024 sc1"); fc.tag = "fl"
        tail += [VmNeed("poll"), fb, VmNeed("st8"), fc] if OPT['early'] else [VmNeed("st8"), fa, fb, fc]
    seq, q = vm_waits(seq + tail, queue)
    seq, pend = lgkm_waits(seq)
    seq, n = hazards(seq)
    if OPT['verbose']: print(S.report("out_proj"), "nops", n)
    L += seq
    return L, q

SPIN = 1 << 22
def reduce_phase_groups():
    L = []; A = lambda *x: L.extend(II(*x))
    DAT = lambda g, tt, k: 64 + ((g * 2 + tt) * 4 + k) * 4
    D8 = lambda k: 192 + 4 * k
    ACC = lambda g, tt: [208, 216, 224, 232, 240, 248, 2, 10][g * 2 + tt]
    A8 = 18
    T0, T1 = 26, 28
    V_POLL, V_FL, V_L16, V_OUT = 46, 47, 32, 33
    A(f"v_lshrrev_b32 v30, 4, {V_LANE}", f"v_and_b32 v31, 15, {V_LANE}", f"v_lshlrev_b32 v{V_L16}, 4, {V_LANE}",
      f"v_lshlrev_b32 v{V_OUT}, 11, v31", f"v_lshl_add_u32 v{V_OUT}, v30, 4, v{V_OUT}")
    A(f"s_mul_i32 s32, {S_B}, {144*2048}", f"s_lshl_b32 s50, {S_BR}, 10", "s_add_u32 s32, s32, s50", f"s_lshl_b32 s50, {S_HP}, 6", "s_add_u32 s32, s32, s50")
    A(f"s_mul_i32 s33, {S_HP}, {9*16384}")
    A(f"s_lshl_b32 s50, {S_W}, 14", "s_add_u32 s34, s33, s50", "s_add_u32 s35, s34, 65536",
      f"s_add_u32 s36, s33, {8*16384}", f"s_lshl_b32 s50, {S_W}, 12", "s_add_u32 s36, s36, s50",
      f"s_lshl_b32 s41, {S_W}, 2")
    A("s_mov_b32 s37, 0", "s_mov_b32 s38, 0", f"s_mov_b32 s53, {SPIN}")
    if OPT['own']:
        A(f"s_lshr_b32 s46, {S_HP}, 2", f"s_and_b32 s47, {S_HP}, 3", f"s_lshl_b32 s50, {S_W}, 10", f"s_add_u32 s50, s50, {OWNB}", f"v_add_u32 v44, s50, v{V_L16}")
        if not OPT['latebar']:
            A("s_waitcnt lgkmcnt(0)", "s_barrier", "ds_read_b128 v[36:39], v44", "ds_read_b128 v[40:43], v44 offset:4096")
    def unpack_add(acc, src, first):
        out = []
        for k in range(4):
            if first:
                out += [f"v_lshlrev_b32 v{acc+2*k}, 16, v{src+k}", f"v_and_b32 v{acc+2*k+1}, 0xffff0000, v{src+k}"]
            else:
                t = (T0, T1)[k & 1]
                out += [f"v_lshlrev_b32 v{t}, 16, v{src+k}", f"v_and_b32 v{t+1}, 0xffff0000, v{src+k}",
                        f"v_pk_add_f32 v[{acc+2*k}:{acc+2*k+1}], v[{acc+2*k}:{acc+2*k+1}], v[{t}:{t+1}]"]
        return out
    items = [(tt, g) for tt in range(2) for g in range(4)] + [(2, None)]
    if OPT['early']: A("s_branch L_red_first")
    A("L_red_loop:")
    A("s_cmp_eq_u32 s37, 0x1ff", "s_cbranch_scc1 L_red_nopoll")
    A(f"buffer_load_dword v{V_FL}, v{V_POLL}, {SRD_F}, 0 offen sc1")
    A("L_red_nopoll:", "s_waitcnt vmcnt(0)")
    A("s_andn2_b32 s42, s37, s38")
    for i, (tt, g) in enumerate(items):
        if tt < 2 and g == 0: A(f"s_and_b32 s50, s42, {hex(15 << (4 * tt))}", f"s_cbranch_scc0 L_red_nosumc{tt}")
        A(f"s_bitcmp1_b32 s42, {i}", f"s_cbranch_scc0 L_red_nosum{i}")
        for k in range(4):
            A(unpack_add(ACC(g, tt), DAT(g, tt, k), k == 0) if tt < 2 else unpack_add(A8, D8(k), k == 0))
        A(f"L_red_nosum{i}:")
        if tt < 2 and g == 3: A(f"L_red_nosumc{tt}:")
    A("s_mov_b32 s38, s37", "s_cmp_eq_u32 s38, 0x1ff", "s_cbranch_scc1 L_red_done")
    A("L_red_first:")
    A(f"v_cmp_eq_u32 vcc, 1, v{V_FL}", "s_nop 3", "s_mov_b32 s39, vcc_lo", "s_lshr_b32 s43, vcc_hi, s41", "s_and_b32 s43, s43, 15", "s_mov_b32 s40, s37")
    A("s_sub_u32 s53, s53, 1", "s_cmp_eq_u32 s53, 0", "s_cselect_b32 s39, -1, s39", "s_cselect_b32 s43, 15, s43", "s_cselect_b32 s53, 1, s53")
    for i, (tt, g) in enumerate(items):
        if tt < 2 and g == 0:
            A(f"s_bfe_u32 s50, s37, {hex((4 << 16) | (4 * tt))}", "s_cmp_eq_u32 s50, 15", f"s_cbranch_scc1 L_red_noissc{tt}",
              f"s_bfe_u32 s50, s39, {hex((16 << 16) | (16 * tt))}", "s_cmp_eq_u32 s50, 0", f"s_cbranch_scc1 L_red_noissc{tt}")
        A(f"s_bitcmp1_b32 s37, {i}", f"s_cbranch_scc1 L_red_noiss{i}")
        if tt < 2:
            A(f"s_bfe_u32 s50, s39, {hex((4 << 16) | (16 * tt + 4 * g))}", "s_cmp_eq_u32 s50, 15")
        else:
            A("s_cmp_eq_u32 s43, 15")
        A(f"s_cbranch_scc0 L_red_noiss{i}")
        if tt < 2: A(f"s_add_u32 s50, s{34+tt}, {g*4096}")
        if OPT['own']:
            A(f"s_cmp_eq_u32 s46, {g}" if tt < 2 else f"s_cmp_eq_u32 s46, {S_W}", "s_cselect_b32 s44, s47, 7")
        for k in range(4):
            o = f" offset:{k*1024}" if k else ""
            va = V_L16
            if OPT['own']:
                A(f"s_cmp_eq_u32 s44, {k}", "s_cselect_b32 s45, 0x40000000, 0", f"v_or_b32 v45, s45, v{V_L16}"); va = 45
            if tt < 2: A(f"buffer_load_dwordx4 {vr(DAT(g, tt, k))}, v{va}, {SRD_P}, s50 offen{o} {OPT['rld']}")
            else: A(f"buffer_load_dwordx4 {vr(D8(k))}, v{va}, {SRD_P}, s36 offen{o} {OPT['rld']}")
        A(f"s_bitset1_b32 s37, {i}", f"L_red_noiss{i}:")
        if tt < 2 and g == 3: A(f"L_red_noissc{tt}:")
    if OPT.get('rdst'):
        A("s_cmp_eq_u32 s40, 0", "s_cbranch_scc0 L_rs1", "s_cmp_lg_u32 s37, 0", "s_cbranch_scc0 L_rs1", stamp("r_first"), "L_rs1:")
        A("s_cmp_eq_u32 s37, 0x1ff", "s_cbranch_scc0 L_rs2", stamp("r_alliss"), "L_rs2:")
    A("s_cmp_lg_u32 s37, s40", "s_cbranch_scc1 L_red_loop", f"s_sleep {OPT['psleep']}", "s_branch L_red_loop")
    A("L_red_done:")
    if OPT.get('rdst'): A(stamp("r_summed"))
    A(f"s_lshl_b32 s50, {S_W}, 11", f"v_lshlrev_b32 v30, 5, {V_LANE}", f"v_add_u32 v30, {WOB}, v30", "v_add_u32 v31, s50, v30",
      f"ds_write_b128 v31, {vr(A8)}", f"ds_write_b128 v31, {vr(A8+4)} offset:16")
    late = OPT['own'] and OPT['latebar']
    for tt in range(2):
        a0 = ACC(0, tt)
        for g in range(1, 4):
            for k in range(4): A(f"v_pk_add_f32 v[{a0+2*k}:{a0+2*k+1}], v[{a0+2*k}:{a0+2*k+1}], v[{ACC(g,tt)+2*k}:{ACC(g,tt)+2*k+1}]")
    if late:
        A("s_waitcnt lgkmcnt(0)", "s_barrier", "ds_read_b128 v[36:39], v44", "ds_read_b128 v[40:43], v44 offset:4096")
    for tt in range(2):
        a0 = ACC(0, tt)
        if OPT['own']: A(("s_waitcnt lgkmcnt(1)" if late else "s_waitcnt lgkmcnt(2)") if tt == 0 else "s_waitcnt lgkmcnt(0)" if late else "s_nop 0", unpack_add(a0, 36 + 4 * tt, False))
        for k in range(4): A(f"v_cvt_pk_bf16_f32 v{64+4*tt+k}, v{a0+2*k}, v{a0+2*k+1}")
        A(f"s_lshl_b32 s50, {S_W}, 15", f"s_add_u32 s50, s50, s32", f"s_add_u32 s50, s50, {tt*4*32768}")
        A(f"buffer_store_dwordx4 {vr(64+4*tt)}, v{V_OUT}, {SRD_O}, s50 offen {OPT['ost']}")
    if not late: A("s_waitcnt lgkmcnt(0)", "s_barrier")
    A(f"s_cmp_eq_u32 {S_W}, 0", "s_cbranch_scc0 L_red_end")
    for g in range(4):
        A(f"ds_read_b128 {vr(80+8*g)}, v30 offset:{g*2048}", f"ds_read_b128 {vr(84+8*g)}, v30 offset:{g*2048+16}")
    if OPT['own']: A("ds_read_b128 v[36:39], v44 offset:8192")
    A("s_waitcnt lgkmcnt(0)")
    for g in range(1, 4):
        for k in range(4): A(f"v_pk_add_f32 v[{80+2*k}:{81+2*k}], v[{80+2*k}:{81+2*k}], v[{80+8*g+2*k}:{81+8*g+2*k}]")
    if OPT['own']: A(unpack_add(80, 36, False))
    for k in range(4): A(f"v_cvt_pk_bf16_f32 v{72+k}, v{80+2*k}, v{81+2*k}")
    A(f"s_add_u32 s50, s32, {8*32768}")
    A(f"buffer_store_dwordx4 {vr(72)}, v{V_OUT}, {SRD_O}, s50 offen {OPT['ost']}")
    A("L_red_end:")
    L2, n = hazards(L)
    return L2

def reduce_phase():
    if not OPT['linred']: return reduce_phase_groups()
    assert OPT['own'] and OPT['early']
    L = []; A = lambda *x: L.extend(II(*x))
    DA = lambda p: 64 + 4 * p
    DB = lambda p: 128 + 4 * p
    D8 = lambda k: 192 + 4 * k
    ACA, ACB, A8 = 208, 216, 224
    T0, T1 = 26, 28
    V_POLL, V_FL, V_L16, V_OUT = 46, 47, 32, 33
    A(f"v_lshrrev_b32 v30, 4, {V_LANE}", f"v_and_b32 v31, 15, {V_LANE}", f"v_lshlrev_b32 v{V_L16}, 4, {V_LANE}",
      f"v_lshlrev_b32 v{V_OUT}, 11, v31", f"v_lshl_add_u32 v{V_OUT}, v30, 4, v{V_OUT}")
    A(f"s_mul_i32 s33, {S_HP}, {9*16384}")
    A(f"s_lshl_b32 s50, {S_W}, 14", "s_add_u32 s34, s33, s50", "s_add_u32 s35, s34, 65536",
      f"s_add_u32 s36, s33, {8*16384}", f"s_lshl_b32 s50, {S_W}, 12", "s_add_u32 s36, s36, s50",
      f"s_lshl_b32 s41, {S_W}, 2", f"s_mov_b32 s53, {SPIN}")
    def loads(base, dst):
        for p in range(16):
            if p % 4 == 0: A(f"s_add_u32 s50, {base}, {p*1024}")
            o = f" offset:{(p % 4)*1024}" if p % 4 else ""
            A(f"s_cmp_eq_u32 {S_HP}, {p}", f"s_cbranch_scc1 L_rl_{base}_{p}",
              f"buffer_load_dwordx4 {vr(dst(p))}, v{V_L16}, {SRD_P}, s50 offen{o} {OPT['rld']}", f"L_rl_{base}_{p}:")
    def poll(name, test):
        A(f"L_poll_{name}:", f"v_cmp_eq_u32 vcc, 1, v{V_FL}", "s_nop 3")
        A(test)
        A(f"s_cbranch_scc1 L_poll_{name}_ok", "s_sub_u32 s53, s53, 1", "s_cmp_eq_u32 s53, 0", f"s_cbranch_scc1 L_poll_{name}_ok",
          f"s_sleep {OPT['psleep']}", f"buffer_load_dword v{V_FL}, v{V_POLL}, {SRD_F}, 0 offen sc1", "s_waitcnt vmcnt(0)", f"s_branch L_poll_{name}",
          f"L_poll_{name}_ok:")
    def unpack_add(acc, src):
        out = []
        for k in range(4):
            t = (T0, T1)[k & 1]
            out += [f"v_lshlrev_b32 v{t}, 16, v{src+k}", f"v_and_b32 v{t+1}, s60, v{src+k}",
                    f"v_pk_add_f32 v[{acc+2*k}:{acc+2*k+1}], v[{acc+2*k}:{acc+2*k+1}], v[{t}:{t+1}]"]
        return out
    A("s_mov_b32 s60, 0xffff0000")
    one = OPT['onepoll']
    if one:
        A(f"s_cmp_eq_u32 {S_W}, 0", "s_cbranch_scc0 L_poll_a_skip")
    poll("a", ["s_and_b32 s50, vcc_lo, 0xffff", "s_cmp_eq_u32 s50, 0xffff"])
    if one:
        A("L_poll_a_skip:", "s_waitcnt lgkmcnt(0)", "s_barrier")
    loads("s34", DA)
    A(f"s_lshl_b32 s50, {S_W}, 10", f"s_add_u32 s50, s50, {OWNB}", f"v_add_u32 v44, s50, v{V_L16}")
    if not one: A("s_waitcnt lgkmcnt(0)", "s_barrier")
    A("ds_read_b128 v[36:39], v44", "ds_read_b128 v[40:43], v44 offset:4096")
    for r in range(ACA, ACA + 24): A(f"v_mov_b32 v{r}, 0")
    A(f"s_mul_i32 s32, {S_B}, {144*2048}", f"s_lshl_b32 s50, {S_BR}, 10", "s_add_u32 s32, s32, s50", f"s_lshl_b32 s50, {S_HP}, 6", "s_add_u32 s32, s32, s50")
    if one:
        A(f"s_cmp_eq_u32 {S_W}, 0", "s_cbranch_scc0 L_poll_b_skip")
        A(f"buffer_load_dword v{V_FL}, v{V_POLL}, {SRD_F}, 0 offen sc1", "s_waitcnt vmcnt(0)")
        poll("b", ["s_lshr_b32 s50, vcc_lo, 16", "s_and_b32 s51, vcc_hi, 0xffff", "s_lshl_b32 s51, s51, 16", "s_or_b32 s50, s50, s51", "s_cmp_eq_u32 s50, -1"])
        A("L_poll_b_skip:", "s_waitcnt vmcnt(0)", "s_barrier")
    else:
        A(f"buffer_load_dword v{V_FL}, v{V_POLL}, {SRD_F}, 0 offen sc1", "s_waitcnt vmcnt(0)")
        poll("b", ["s_lshr_b32 s50, vcc_lo, 16", "s_lshr_b32 s51, vcc_hi, s41", "s_and_b32 s51, s51, 15", "s_lshl_b32 s51, s51, 16", "s_or_b32 s50, s50, s51",
                   "s_cmp_eq_u32 s50, 0xfffff"])
    loads("s35", DB)
    for k in range(4):
        o = f" offset:{k*1024}" if k else ""
        A(f"s_add_u32 s50, s41, {k}", f"s_cmp_eq_u32 {S_HP}, s50", f"s_cbranch_scc1 L_rl8_{k}",
          f"buffer_load_dwordx4 {vr(D8(k))}, v{V_L16}, {SRD_P}, s36 offen{o} {OPT['rld']}", f"L_rl8_{k}:")
    for p in range(16):
        A(f"s_cmp_eq_u32 {S_HP}, {p}", f"s_cbranch_scc1 L_rs_a{p}", unpack_add(ACA, DA(p)), f"L_rs_a{p}:")
    A("s_waitcnt lgkmcnt(0)", unpack_add(ACA, 36))
    for k in range(4): A(f"v_cvt_pk_bf16_f32 v{64+k}, v{ACA+2*k}, v{ACA+2*k+1}")
    A(f"s_lshl_b32 s50, {S_W}, 15", "s_add_u32 s37, s50, s32")
    A(f"buffer_store_dwordx4 {vr(64)}, v{V_OUT}, {SRD_O}, s37 offen {OPT['ost']}")
    for p in range(16):
        A(f"s_waitcnt vmcnt({max(15 - p + 4 + 1 - 2, 0)})", f"s_cmp_eq_u32 {S_HP}, {p}", f"s_cbranch_scc1 L_rs_b{p}", unpack_add(ACB, DB(p)), f"L_rs_b{p}:")
    A(unpack_add(ACB, 40))
    for k in range(4): A(f"v_cvt_pk_bf16_f32 v{68+k}, v{ACB+2*k}, v{ACB+2*k+1}")
    A(f"s_add_u32 s37, s37, {4*32768}")
    A("s_waitcnt vmcnt(1)")
    for k in range(4):
        A(f"s_add_u32 s50, s41, {k}", f"s_cmp_eq_u32 {S_HP}, s50", f"s_cbranch_scc1 L_rs_c{k}", unpack_add(A8, D8(k)), f"L_rs_c{k}:")
    A(f"buffer_store_dwordx4 {vr(68)}, v{V_OUT}, {SRD_O}, s37 offen {OPT['ost']}")
    A(f"s_lshl_b32 s50, {S_W}, 11", f"v_lshlrev_b32 v30, 5, {V_LANE}", f"v_add_u32 v30, {WOB}, v30", "v_add_u32 v31, s50, v30",
      f"ds_write_b128 v31, {vr(A8)}", f"ds_write_b128 v31, {vr(A8+4)} offset:16")
    A("s_waitcnt lgkmcnt(0)", "s_barrier", f"s_cmp_eq_u32 {S_W}, 0", "s_cbranch_scc0 L_red_end")
    for g in range(4):
        A(f"ds_read_b128 {vr(80+8*g)}, v30 offset:{g*2048}", f"ds_read_b128 {vr(84+8*g)}, v30 offset:{g*2048+16}")
    A("ds_read_b128 v[36:39], v44 offset:8192")
    A("s_waitcnt lgkmcnt(0)")
    for g in range(1, 4):
        for k in range(4): A(f"v_pk_add_f32 v[{80+2*k}:{81+2*k}], v[{80+2*k}:{81+2*k}], v[{80+8*g+2*k}:{81+8*g+2*k}]")
    A(unpack_add(80, 36))
    for k in range(4): A(f"v_cvt_pk_bf16_f32 v{72+k}, v{80+2*k}, v{81+2*k}")
    A(f"s_add_u32 s50, s32, {8*32768}")
    A(f"buffer_store_dwordx4 {vr(72)}, v{V_OUT}, {SRD_O}, s50 offen {OPT['ost']}")
    A("L_red_end:")
    L2, n = hazards(L)
    return L2

def dump_regs(regs, slot, kind='v'):
    L = []; A = lambda *x: L.extend(II(*x))
    A("s_add_u32 s66, s58, 0x4000000", "s_addc_u32 s67, s59, 0",
      "s_lshl_b32 s50, s2, 2", f"s_add_u32 s50, s50, {S_W}", "s_lshl_b32 s50, s50, 16",
      f"v_lshlrev_b32 v253, 2, {V_LANE}", "v_add_u32 v253, s50, v253")
    for i, r in enumerate(regs):
        if kind == 'a':
            A(f"v_accvgpr_read_b32 v254, a{r}", "s_nop 0")
            A(f"global_store_dword v253, v254, s[66:67]")
        else:
            A(f"global_store_dword v253, v{r}, s[66:67]")
        A("v_add_u32 v253, 256, v253")
    A("s_waitcnt vmcnt(0)")
    return L

def main_kernel():
    L = []
    L += setup()
    L += stamp("start")
    L += phase_q()
    L += stamp("q_done")
    if OPT['dump'] == 'q':
        L += II("s_nop 7") + dump_regs([qfrag(t, s) + k for t in range(5) for s in range(4) for k in range(4)], 0)
        L += II("s_waitcnt vmcnt(0)", "s_endpgm")
    L += attention()
    if OPT['dump'] == 'o':
        L += II("s_nop 7") + dump_regs([oacc(dt, t) + k for t in range(5) for dt in range(8) for k in range(4)] + [lacc(t) for t in range(5)], 0, 'a')
        L += II("s_waitcnt vmcnt(0)", "s_endpgm")
    e, q = o_epilogue(); L += e
    L += stamp("o_done")
    if OPT.get('stop') == 'o':
        L += II("s_waitcnt vmcnt(0)") + stamp("end") + stamp_dump() + II("L_main_end:", "s_endpgm") + safe_paths()
        return L
    e, q = out_proj(q); L += e
    L += stamp("op_done")
    if OPT['fused']:
        L += reduce_phase()
        L += stamp("red_done")
    L += tr_dump()
    if not OPT.get('noendwait') or OPT['stamps']: L += II("s_waitcnt vmcnt(0)")
    L += stamp("end")
    L += stamp_dump()
    L += II("L_main_end:", "s_endpgm")
    L += OWN_OOL + ATT_OOL
    L += safe_paths()
    return L

def reduce_kernel():
    L = []; A = lambda *x: L.extend(II(*x))
    A("s_cmp_ge_u32 s2, 256", "s_cbranch_scc1 L_red_end")
    A("s_load_dwordx2 s[4:5], s[0:1], 80", "s_load_dwordx2 s[6:7], s[0:1], 96")
    A("v_lshrrev_b32 v2, 6, v0", "v_and_b32 v1, 63, v0", "s_nop 0", "v_readfirstlane_b32 s12, v2", "s_nop 3")
    A("s_waitcnt lgkmcnt(0)")
    A("s_mul_i32 s13, s2, 9", "s_add_u32 s13, s13, s12", "s_lshl_b32 s13, s13, 14")
    A("s_add_u32 s16, s6, s13", "s_addc_u32 s17, s7, 0", "s_and_b32 s17, s17, 0xffff", "s_mov_b32 s18, 16384", "s_mov_b32 s19, 0x20000")
    A("v_lshlrev_b32 v2, 4, v1")
    for p in range(16):
        A(f"buffer_load_dwordx4 v[{8+4*p}:{11+4*p}], v2, s[16:19], 0 offen offset:{(p%4)*1024}" if p < 4 else
          f"buffer_load_dwordx4 v[{8+4*p}:{11+4*p}], v2, s[16:19], s{20+p//4} offen offset:{(p%4)*1024}")
        if p == 3: A("s_mov_b32 s21, 4096", "s_mov_b32 s22, 8192", "s_mov_b32 s23, 12288")
    A("s_lshr_b32 s14, s2, 4", "s_and_b32 s15, s2, 15",
      "s_and_b32 s24, s14, 7", "s_lshr_b32 s25, s14, 3",
      "s_mul_i32 s24, s24, 144", "s_lshl_b32 s26, s12, 4", "s_add_u32 s24, s24, s26", "s_lshl_b32 s24, s24, 11",
      "s_lshl_b32 s25, s25, 10", "s_lshl_b32 s15, s15, 6", "s_add_u32 s24, s24, s25", "s_add_u32 s24, s24, s15")
    A("v_and_b32 v3, 15, v1", "v_lshlrev_b32 v3, 11, v3", "v_lshrrev_b32 v4, 4, v1", "v_lshl_add_u32 v3, v4, 4, v3")
    A("s_mov_b32 s28, s4", "s_and_b32 s29, s5, 0xffff", "s_mov_b32 s30, 2359296", "s_mov_b32 s31, 0x20000")
    acc = 80
    for p in range(16):
        A(f"s_waitcnt vmcnt({15-p})")
        for k in range(4):
            r = 8 + 4 * p + k
            if p == 0:
                A(f"v_lshlrev_b32 v{acc+2*k}, 16, v{r}", f"v_and_b32 v{acc+2*k+1}, 0xffff0000, v{r}")
            else:
                A(f"v_lshlrev_b32 v6, 16, v{r}", f"v_and_b32 v7, 0xffff0000, v{r}",
                  f"v_add_f32 v{acc+2*k}, v{acc+2*k}, v6", f"v_add_f32 v{acc+2*k+1}, v{acc+2*k+1}, v7")
    for k in range(4): A(f"v_cvt_pk_bf16_f32 v{8+k}, v{acc+2*k}, v{acc+2*k+1}")
    A("buffer_store_dwordx4 v[8:11], v3, s[28:31], s24 offen")
    A("s_waitcnt vmcnt(0)")
    A("L_red_end:", "s_endpgm")
    return L

def kernel_text(name, body, vgpr, accum, sgpr=102):
    return f""".globl {name}
.p2align 8
.type {name},@function
{name}:
{text(body)}
"""
def kd(name, nfv, accum, sgpr=102):
    return f""".amdhsa_kernel {name}
  .amdhsa_next_free_vgpr {nfv}
  .amdhsa_next_free_sgpr {sgpr}
  .amdhsa_accum_offset {accum}
  .amdhsa_group_segment_fixed_size 0
  .amdhsa_kernarg_size 104
  .amdhsa_user_sgpr_count 2
  .amdhsa_user_sgpr_kernarg_segment_ptr 1
  .amdhsa_system_sgpr_workgroup_id_x 1
.end_amdhsa_kernel
"""

def build():
    stamp_id[0] = 0; STAMPS.clear()
    k1 = NAME + "_kernel"; k2 = "reduce_heads_kernel"
    m = main_kernel()
    hdr = """; Fused  x@wq -> softmax(q k^T / sqrt(128)) v -> @wo  for both branches, one launch, 256 workgroups x 4 waves.
"""
    if OPT['fused']:
        hdr += f"; @launch grid=(256,1,1) block=(256,1,1) lds=163840\n"
    else:
        hdr += f"; @launch kernel={k1} grid=(256,1,1) block=(256,1,1) lds=163840\n"
        hdr += f"; @launch kernel={k2} grid=(256,1,1) block=(576,1,1) lds=0\n"
    s = hdr + '.amdgcn_target "amdgcn-amd-amdhsa--gfx950"\n.text\n'
    s += kernel_text(k1, m, 512, 256)
    if not OPT['fused']: s += kernel_text(k2, reduce_kernel(), 96, 96)
    s += '.section .rodata,"a"\n.p2align 6\n' + kd(k1, 512, 256)
    if not OPT['fused']: s += ".p2align 6\n" + kd(k2, 96, 96, 40)
    return s

if __name__ == "__main__":
    ap = argparse.ArgumentParser()
    ap.add_argument("-o", default="cdna_kernels/" + NAME + ".s")
    ap.add_argument("--dump"); ap.add_argument("--stamps", action="store_true"); ap.add_argument("-v", action="store_true")
    ap.add_argument("--opt", action="append", default=[])
    a = ap.parse_args()
    OPT['dump'] = a.dump; OPT['stamps'] = a.stamps; OPT['verbose'] = a.v
    for o in a.opt:
        k, v = o.split("=", 1)
        OPT[k] = {'True': True, 'False': False}.get(v, int(v) if v.lstrip('-').isdigit() else v)
    s = build()
    open(a.o, "w").write(s)
    if a.stamps:
        import json; json.dump(STAMPS, open(a.o + ".stamps.json", "w"))
    print("wrote", a.o, len(s), "bytes")
```

```python
import sys, argparse
from ir import *

NAME = "concat_heads__gqa_block_cached__mha_block_cached__near_ridge"
OPT = dict(pfat=12, pfexact=True, onepoll=True, linred=True, latebar=False, wsoff=0, own=True, early=True, l2pf=False, np1=0, pfw=1, pfkv=0, pfkvnt=False, psleep=8, ost='nt', noendwait=True, lthr=0, start2=True, pf=2, pfnt=False, fused=True, rld='sc1', rot=True, wnt=False, xnt=False, wont=False, bursts=(3, 6, 9), dump=None, stamps=False, stop=None, kvnt=True, pst="sc1", verbose=False)

VB = 0
KB = 65536
WB = 16384
XB = 114688
WOA = 131072
WOB = 98304
OB = 0
def kphys(k): return ((k + 1) & 3) * 16384
def vphys(k): return (k & 3) * 16384

SRD_X, SRD_WQ, SRD_K, SRD_V, SRD_WO, SRD_P = "s[4:7]", "s[8:11]", "s[12:15]", "s[16:19]", "s[20:23]", "s[24:27]"
SRD_F, SRD_D, SRD_O = "s[68:71]", "s[72:75]", "s[80:83]"
S_W, S_U, S_QH, S_CNT = "s28", "s29", "s30", "s31"
S_SOFFX, S_SOFFW0, S_UNUSED, S_MW, S_MX, S_DSLOT, S_RSLOT, S_DW, S_DX = "s32", "s33", "s34", "s35", "s36", "s37", "s38", "s39", "s40"
S_BW, S_BX = "s41", "s42"
S_SOFFK, S_SOFFV, S_MK, S_MV = "s45", "s46", "s47", "s48"
S_T0, S_T1, S_T2, S_T3 = "s50", "s51", "s52", "s53"
S_HP, S_B, S_BR, S_CL = "s54", "s55", "s56", "s57"
S_WS = "s[58:59]"
S_SOFFP = "s60"
S_STAMP = "s[62:63]"
S_FLAG = "s64"
S_SAFE = "s61"
S_BX3 = "s38"
LTHR = 0x4b800000
S_KS, S_X0, S_W0 = "s88", "s89", "s87"
S_TAU, S_TB, S_TQ, S_T4N, S_TMASK, S_TSH, S_TM, S_TS = "s78", "s79", "s43", "s44", "s34", "s49", "s61", "s95"

V_LANE = "v1"
V_WQR = [2, 3, 4, 5]; V_XR = 6; V_XR4 = 14; V_OW4 = 50; V_OWB = 51
V_WQD = [7, 8, 9, 10]; V_XD = [11, 12, 13]; V_TG, V_TI, V_TB, V_TV = 14, 15, 62, 63
V_KD = [16, 17, 18, 19]; V_VD = [20, 21]
V_KR = [22, 23, 24, 25]; V_VR = [26 + i for i in range(8)]
V_WOD = [34, 35, 36, 37]; V_WOR = [38, 39, 40, 41]
V_OW, V_OR, V_OR8, V_PS = 42, 43, 44, 45
VT = [46 + i for i in range(18)]
RB = 64
def grp(t, s): return RB + (t * 4 + s) * 8
def qacc(dt, t): return grp(t, dt >> 1) + 4 * (dt & 1)
def qfrag(t, s): return grp(t, s)
def Sreg(kt, t): return grp(t, kt) + 4
def Preg(par, t): return grp(t, 2 + par) + 4
def cinit(t): return 224 + 4 * t
V_C0, V_C1 = 244, 245
def vr(b, n=4): return f"v[{b}:{b+n-1}]"
def ar(b, n=4): return f"a[{b}:{b+n-1}]"
def oacc(dt, t): return t * 32 + dt * 4
def lacc(t): return 160 + 4 * t
A_ONES = 180
def abuf(i): return 184 + 4 * i
def bbuf(t): return [48, 52, 56, 60, 248][t]
def kbuf(kt, s): return 216 + 4 * (kt * 4 + s)

MF = "v_mfma_f32_16x16x32_bf16"
def mfma(d, a, b, c): return I(f"{MF} {d}, {a}, {b}, {c}")
SCALE = (128 ** -0.5) * 1.4426950408889634
import struct
def f2u(x): return struct.unpack("<I", struct.pack("<f", x))[0]

def NT(): return " nt" if OPT['kvnt'] else ""

def CNTOFF(): return 128 if OPT.get('dbgst') is not None else 0
stamp_id = [0]
def stamp(name):
    if not OPT['stamps']: return []
    i = stamp_id[0]; stamp_id[0] += 1
    STAMPS.append(name)
    return II("s_memrealtime s[66:67]", "s_memtime s[64:65]", "s_waitcnt lgkmcnt(0)",
              f"v_writelane_b32 v0, s66, {i}", f"v_writelane_b32 v0, s64, {32 + i}")
def stamp_dump():
    if not OPT['stamps']: return []
    if OPT.get('dbgst') is not None:
        return II(f"s_cmp_eq_u32 s2, {OPT['dbgst']}", "s_cbranch_scc0 L_nodbg", f"s_cmp_eq_u32 {S_W}, 0", "s_cbranch_scc0 L_nodbg",
                  "v_readlane_b32 s50, v0, 0", "s_nop 3", "v_subrev_u32 v0, s50, v0",
                  f"v_lshlrev_b32 v1, 2, {V_LANE}", "v_cmp_gt_u32 vcc, 16, v1", f"v_lshrrev_b32 v2, 2, v1", "v_mov_b32 v3, 0x1000", "v_cmp_gt_u32 vcc, 16, v2", "s_nop 1",
                  "v_cndmask_b32 v1, v3, v1, vcc", f"buffer_store_dword v0, v1, {SRD_D}, 0 offen", "L_nodbg:")
    return II("s_add_u32 s62, s58, 0x8000000", "s_addc_u32 s63, s59, 0", "s_lshl_b32 s65, s2, 2", f"s_add_u32 s65, s65, {S_W}", "s_lshl_b32 s65, s65, 8",
              f"v_lshlrev_b32 v1, 2, {V_LANE}", "v_add_u32 v1, s65, v1", "global_store_dword v1, v0, s[62:63]")
STAMPS = []

def setup():
    L = []
    A = lambda *x: L.extend(II(*x))
    A("s_cmp_ge_u32 s2, 256", "s_cbranch_scc1 L_main_end")
    if OPT['stamps'] and OPT.get('t0st'): A("s_memrealtime s[100:101]")
    A("s_load_dwordx8 s[68:75], s[0:1], 0", "s_load_dwordx2 s[76:77], s[0:1], 32",
      "s_load_dwordx8 s[80:87], s[0:1], 40", "s_load_dwordx2 s[88:89], s[0:1], 72",
      f"s_load_dwordx2 {S_WS}, s[0:1], 96", "s_load_dwordx4 s[96:99], s[0:1], 80")
    A("s_and_b32 s50, s2, 7", "s_lshr_b32 s51, s2, 3",
      f"s_lshr_b32 {S_BR}, s50, 2",
      "s_and_b32 s52, s50, 3", "s_lshl_b32 s52, s52, 2", "s_and_b32 s53, s51, 3", f"s_add_u32 {S_HP}, s52, s53",
      f"s_lshr_b32 {S_B}, s51, 2",
      f"s_lshl_b32 s52, {S_BR}, 3", f"s_add_u32 {S_CL}, s52, {S_B}")
    A("v_lshrrev_b32 v46, 6, v0", f"v_and_b32 {V_LANE}, 63, v0", "s_nop 0", f"v_readfirstlane_b32 {S_W}, v46", "s_nop 3")
    A(f"s_lshr_b32 {S_U}, {S_W}, 1", f"s_and_b32 {S_QH}, {S_W}, 1", f"s_mov_b32 {S_SAFE}, 0")
    A(lane_consts_q())
    if OPT['stamps'] and OPT.get('t0st'):
        A("s_memrealtime s[66:67]")
    A("s_waitcnt lgkmcnt(0)")
    if OPT['stamps'] and OPT.get('t0st'):
        i0 = stamp_id[0]; stamp_id[0] += 2; STAMPS.extend(["entry", "consts_q"])
        A(f"v_writelane_b32 v0, s100, {i0}", f"v_writelane_b32 v0, s66, {i0+1}", f"v_writelane_b32 v0, s100, {32+i0}", f"v_writelane_b32 v0, s66, {33+i0}")
    A(f"s_cmp_eq_u32 {S_BR}, 1")
    for i in (0, 1, 6, 7): A(f"s_cselect_b32 s{68+i}, s{80+i}, s{68+i}")
    def srd(dst, lo, hi, off_expr_regs, nrec):
        A(f"s_add_u32 s{dst}, s{lo}, s50", f"s_addc_u32 s{dst+1}, s{hi}, 0", f"s_and_b32 s{dst+1}, s{dst+1}, 0xffff")
        A(nrec, f"s_mov_b32 s{dst+3}, 0x20000")
    A(f"s_mul_i32 s50, {S_B}, 147456"); srd(4, 68, 69, None, "s_mov_b32 s6, 147456")
    A(f"s_lshl_b32 s50, {S_HP}, 9"); srd(8, 74, 75, None, "s_sub_u32 s10, 4194304, s50")
    return L

def setup_b():
    L = []
    A = lambda *x: L.extend(II(*x))
    def srd(dst, lo, hi, off_expr_regs, nrec):
        A(f"s_add_u32 s{dst}, s{lo}, s50", f"s_addc_u32 s{dst+1}, s{hi}, 0", f"s_and_b32 s{dst+1}, s{dst+1}, 0xffff")
        A(nrec, f"s_mov_b32 s{dst+3}, 0x20000")
    A(f"s_cmp_eq_u32 {S_SAFE}, 1", "s_cbranch_scc1 L_setup_b_done")
    A(f"s_cmp_eq_u32 {S_BR}, 1")
    for i in (2, 3, 4, 5): A(f"s_cselect_b32 s{68+i}, s{80+i}, s{68+i}")
    A("s_cselect_b32 s76, s88, s76", "s_cselect_b32 s77, s89, s77")
    A(f"s_lshl_b32 s50, {S_B}, 5", f"s_lshl_b32 s51, {S_HP}, 1", "s_add_u32 s50, s50, s51", f"s_add_u32 s50, s50, {S_U}", "s_lshl_b32 s50, s50, 17")
    srd(12, 70, 71, None, "s_mov_b32 s14, 131072")
    srd(16, 72, 73, None, "s_mov_b32 s18, 131072")
    A(f"s_lshl_b32 s50, {S_HP}, 18", f"s_lshl_b32 s51, {S_W}, 8", "s_add_u32 s50, s50, s51")
    A("s_sub_u32 s52, 262144, s51")
    srd(20, 76, 77, None, "s_mov_b32 s22, s52")
    A(f"s_lshl_b32 s50, {S_HP}, 18"); srd(84, 76, 77, None, "s_mov_b32 s86, 262144")
    A(f"s_mul_i32 s50, {S_CL}, 2359296", f"s_add_u32 s50, s50, {hex(OPT['wsoff'])}"); srd(24, 58, 59, None, "s_mov_b32 s26, 2359296")
    if OPT['fused']:
        A(f"s_mul_i32 s50, {S_CL}, 4608", f"s_add_u32 s50, s50, {hex(OPT['wsoff'] + 0x2400000 + 0x40000)}"); srd(68, 58, 59, None, "s_mov_b32 s70, 4608")
        A("s_mov_b32 s72, s98", "s_and_b32 s73, s99, 0xffff", "s_mov_b32 s74, 256", "s_mov_b32 s75, 0x20000")
        A("s_mov_b32 s80, s96", "s_and_b32 s81, s97, 0xffff", "s_mov_b32 s82, 2359296", "s_mov_b32 s83, 0x20000")
        A(f"s_lshl_b32 s50, {S_W}, 7", f"s_lshl_b32 s51, {S_HP}, 2", "s_add_u32 s50, s50, s51",
          f"v_lshlrev_b32 v46, 9, {V_LANE}", "v_add_u32 v46, s50, v46", "v_mov_b32 v47, 0",
          f"buffer_store_dword v47, v46, {SRD_F}, 0 offen sc1" if not OPT.get('x_noclr') else "s_nop 0")
    A("L_setup_b_done:")
    return L

def lane_consts_q():
    L = []; A = lambda *x: L.extend(II(*x))
    l = V_LANE; t0, t1, t2, t3, t4, t5 = [f"v{x}" for x in VT[:6]]
    A(f"v_lshrrev_b32 {t0}, 4, {l}", f"v_bfe_u32 {t1}, {l}, 2, 2", f"v_and_b32 {t2}, 3, {l}", f"v_and_b32 {t3}, 15, {l}")
    w0, w1, w2, w3 = [f"v{x}" for x in V_WQD]
    A(f"v_lshrrev_b32 {t4}, 5, {l}", f"v_bfe_u32 {t5}, {l}, 4, 1",
      f"v_lshlrev_b32 {w0}, 2, {t4}", f"v_xor_b32 {w0}, {w0}, {t3}", f"v_lshlrev_b32 {w0}, 4, {w0}",
      f"v_lshl_add_u32 {w0}, {t5}, 8, {w0}", f"v_lshl_add_u32 {w0}, {t4}, 13, {w0}",
      f"v_xor_b32 {w1}, 0x80, {w0}", f"v_add_u32 {w1}, {2*8192 - 1024}, {w1}",
      f"v_add_u32 {w2}, {4*8192 - 2048}, {w0}", f"v_add_u32 {w3}, {4*8192 - 2048}, {w1}")
    A(f"v_lshlrev_b32 {t4}, 1, {t0}", f"v_mov_b32 {t5}, 0x78", f"v_lshrrev_b32 {t4}, {t4}, {t5}", f"v_and_b32 {t4}, 3, {t4}",
      f"v_xor_b32 {t4}, {t4}, {t2}", f"v_lshlrev_b32 {t4}, 4, {t4}",
      f"v_lshrrev_b32 {t5}, 2, {l}", f"v_lshl_add_u32 {t4}, {t5}, 10, {t4}")
    for j in range(2):
        A(f"v_add_u32 v{V_XD[j]}, {j*16384 - 1024*j}, {t4}")
    A(f"s_lshl_b32 s50, {S_W}, 1", "s_lshr_b32 s50, 0x78, s50", "s_and_b32 s50, s50, 3",
      f"v_xor_b32 {t4}, s50, {t2}", f"v_lshlrev_b32 {t4}, 4, {t4}", f"v_lshl_add_u32 {t4}, {t5}, 10, {t4}",
      f"s_lshl_b32 s50, {S_W}, 12", f"s_lshl_b32 s51, {S_W}, 15", "s_sub_u32 s50, s50, s51", f"s_add_u32 s50, s50, {128*1024}",
      f"v_add_u32 v{V_XD[2]}, s50, {t4}")
    return L

def lane_consts_q2():
    L = []; A = lambda *x: L.extend(II(*x))
    l = V_LANE; t0, t1, t2, t3, t4, t5 = [f"v{x}" for x in VT[:6]]
    A(f"v_lshrrev_b32 {t0}, 4, {l}", f"v_bfe_u32 {t1}, {l}, 2, 2", f"v_and_b32 {t2}, 3, {l}", f"v_and_b32 {t3}, 15, {l}")
    for n in range(4):
        A(f"v_add_u32 {t4}, {4*n}, {t0}", f"v_xor_b32 {t4}, {t4}, {t3}", f"v_lshlrev_b32 {t4}, 4, {t4}",
          f"v_lshl_add_u32 v{V_KD[n]}, {t0}, 8, {t4}")
    for n in range(2):
        A(f"v_add_u32 {t4}, {4*n}, {t0}", f"v_lshlrev_b32 {t4}, 1, {t4}", f"v_xor_b32 {t4}, {t4}, {t3}", f"v_lshlrev_b32 {t4}, 4, {t4}",
          f"v_lshl_add_u32 v{V_VD[n]}, {t0}, 8, {t4}")
    A(f"v_lshl_add_u32 {t4}, {t0}, 3, {t1}", f"v_lshlrev_b32 {t4}, 9, {t4}", f"v_lshl_add_u32 {t4}, {t2}, 4, {t4}",
      f"s_lshl_b32 s50, {S_U}, 8", f"s_add_u32 s50, s50, {WB}", f"v_add_u32 {t4}, s50, {t4}")
    A(f"s_lshl_b32 s51, {S_QH}, 1", f"v_xor_b32 {t1}, s51, {t1}")
    for s in range(4):
        A(f"v_xor_b32 {t5}, {s}, {t1}", f"v_lshl_add_u32 v{V_WQR[s]}, {t5}, 6, {t4}")
    A(f"v_lshrrev_b32 {t4}, 2, {t3}", f"v_lshlrev_b32 {t4}, 1, {t4}", f"v_mov_b32 {t5}, 0x78", f"v_lshrrev_b32 {t4}, {t4}, {t5}", f"v_and_b32 {t4}, 3, {t4}",
      f"v_xor_b32 {t4}, {t4}, {t0}", f"v_lshlrev_b32 {t4}, 4, {t4}", f"v_lshl_add_u32 {t4}, {t3}, 6, {t4}",
      f"s_mul_i32 s50, {S_QH}, 5120", f"s_add_u32 s50, s50, {XB}", f"v_add_u32 v{V_XR}, s50, {t4}", f"v_add_u32 v{V_XR4}, {XB + 4096}, {t4}")
    return L

def lane_consts_rest():
    L = []; A = lambda *x: L.extend(II(*x))
    l = V_LANE; t0, t1, t2, t3, t4, t5, t6 = [f"v{x}" for x in VT[:7]]
    A(f"v_lshrrev_b32 {t0}, 4, {l}", f"v_bfe_u32 {t1}, {l}, 2, 2", f"v_and_b32 {t2}, 3, {l}", f"v_and_b32 {t3}, 15, {l}")
    A(f"s_lshl_b32 s50, {S_U}, 13", f"s_add_u32 s51, s50, {KB}", f"v_lshlrev_b32 {t4}, 8, {t3}", f"v_add_u32 {t4}, s51, {t4}")
    A(f"s_lshl_b32 s51, {S_QH}, 3", f"v_xor_b32 {t6}, s51, {t3}")
    for s in range(4):
        A(f"v_add_u32 {t5}, {4*s}, {t0}", f"v_xor_b32 {t5}, {t5}, {t6}", f"v_lshl_add_u32 v{V_KR[s]}, {t5}, 4, {t4}")
    A(f"v_lshrrev_b32 {t4}, 2, {l}", f"v_and_b32 {t5}, 7, {t4}", f"v_lshlrev_b32 {t5}, 1, {t5}",
      f"v_lshlrev_b32 {t4}, 8, {t4}", f"v_add_u32 {t4}, s50, {t4}",
      f"v_and_b32 {t6}, 1, {t2}", f"v_lshl_add_u32 {t4}, {t6}, 3, {t4}",
      f"v_lshrrev_b32 {t6}, 1, {t2}",
      f"s_lshl_b32 s51, {S_QH}, 3", f"v_xor_b32 {t5}, s51, {t5}")
    for dt in range(8):
        d = f"v{V_VR[dt]}"
        A(f"v_add_u32 {d}, {2*dt}, {t6}", f"v_xor_b32 {d}, {d}, {t5}", f"v_lshl_add_u32 {d}, {d}, 4, {t4}")
    A(f"v_lshlrev_b32 {t4}, 2, {t0}", f"v_xor_b32 {t4}, {t4}, {t3}", f"v_lshlrev_b32 {t4}, 4, {t4}", f"v_lshl_add_u32 {t4}, {t0}, 10, {t4}")
    for n in range(4):
        A(f"v_add_u32 v{V_WOD[n]}, {n*3072}, {t4}")
    A(f"v_lshrrev_b32 {t4}, 2, {l}", f"v_lshlrev_b32 {t4}, 8, {t4}", f"v_lshl_add_u32 {t4}, {t2}, 4, {t4}",
      f"s_lshl_b32 s50, {S_W}, 13", f"s_add_u32 s50, s50, {WOB}", f"v_add_u32 {t4}, s50, {t4}")
    for cp in range(4):
        A(f"v_xor_b32 {t5}, {cp}, {t1}", f"v_lshl_add_u32 v{V_WOR[cp]}, {t5}, 6, {t4}")
    A(f"s_mul_i32 s50, {S_QH}, 40960", f"s_lshl_b32 s51, {S_U}, 12", "s_add_u32 s50, s50, s51",
      f"v_lshlrev_b32 v{V_OR}, 4, {l}", f"v_add_u32 v{V_OW}, s50, v{V_OR}", f"v_add_u32 v{V_OR8}, 0x10000, v{V_OR}")
    A(f"s_lshl_b32 s50, {S_HP}, 10", f"v_add_u32 v{V_PS}, s50, v{V_OR}")
    return L

def dma(voff, srd, soff, imm, nt=False):
    o = f" offset:{imm}" if imm else ""
    return I(f"buffer_load_dwordx4 v{voff}, {srd}, {soff} offen{o}{' nt' if nt else ''} lds")

def kv_group(kind, m0expr, soffreg):
    if kind == 'K':
        return [dma(V_KD[n], SRD_K, soffreg, n * 1024, OPT['kvnt']) for n in range(4)]
    return [dma(V_VD[n & 1], SRD_V, soffreg, n * 1024, OPT['kvnt']) for n in range(4)]

def kv_tile_full_unused(kind, j):
    L = []
    base = (KB + kphys(j)) if kind == 'K' else (VB + vphys(j))
    for gI in range(2):
        L += II(f"s_lshl_b32 s50, {S_U}, 13", f"s_add_u32 m0, s50, {base + gI*4096}", f"s_mov_b32 s51, {j*8192 + gI*4096}")
        L += kv_group(kind, None, "s51")
    return L

def stage_setup_scalar():
    rot = OPT['rot']
    R = II("s_lshr_b32 s50, s2, 3", "s_and_b32 s51, s50, 3", "s_lshr_b32 s50, s50, 2")
    if rot in (True, 1):   R += II("s_lshl_b32 s51, s51, 2", "s_lshl_b32 s50, s50, 1", "s_add_u32 s52, s50, s51")
    elif rot == 2:         R += II("s_lshr_b32 s50, s50, 1", "s_add_u32 s52, s50, s51", "s_lshl_b32 s52, s52, 2")
    elif rot == 3:         R += II("s_add_u32 s52, s50, s51", "s_lshl_b32 s52, s52, 2")
    elif rot == 4:         R += II("s_lshr_b32 s50, s50, 2", "s_lshl_b32 s50, s50, 3", "s_lshl_b32 s51, s51, 2", "s_add_u32 s52, s50, s51")
    elif rot == 5:         R += II("s_mul_i32 s50, s50, 3", "s_lshl_b32 s51, s51, 2", "s_add_u32 s52, s50, s51")
    elif rot == 6:         R += II("s_lshl_b32 s52, s50, 1")
    elif rot == 7:         R += II("s_lshl_b32 s50, s50, 1", "s_and_b32 s51, s51, 1", "s_lshl_b32 s51, s51, 3", "s_add_u32 s52, s50, s51")
    else:                  R += II("s_mov_b32 s52, 0")
    return R + II("s_and_b32 s52, s52, 15",
              f"s_lshl_b32 s50, s52, 6", f"s_lshl_b32 s51, {S_W}, 15", f"s_add_u32 {S_SOFFX}, s50, s51",
              f"s_lshl_b32 s50, s52, 18", f"s_lshl_b32 s51, {S_W}, 16", f"s_add_u32 {S_SOFFW0}, s50, s51",
              f"s_lshl_b32 s50, {S_W}, 12", f"s_add_u32 {S_BW}, s50, {WB}",
              f"s_lshl_b32 s50, {S_W}, 11", f"s_add_u32 {S_BX}, s50, {XB}",
              f"s_lshl_b32 s50, {S_W}, 8", f"s_add_u32 {S_BX3}, s50, {XB + 8192}",
              )
def kv_setup_scalar():
    return II(f"s_lshl_b32 {S_TQ}, {S_QH}, 12",
              f"s_lshl_b32 s50, {S_U}, 13", f"s_add_u32 s50, s50, {S_TQ}", f"s_add_u32 {S_MK}, s50, {KB}", f"s_add_u32 {S_MV}, s50, {VB}")

def stage_dma_list(slot):
    seq = []
    seq.append(([I(f"s_add_u32 m0, {S_BW}, {slot*16384}")], dma(V_WQD[0], SRD_WQ, S_SOFFW0, 0, OPT['wnt'])))
    for j in range(1, 4): seq.append(([], dma(V_WQD[j], SRD_WQ, S_SOFFW0, j * 1024, OPT['wnt'])))
    seq.append(([I(f"s_add_u32 m0, {S_BX}, {slot*9216}")], dma(V_XD[0], SRD_X, S_SOFFX, 0, OPT['xnt'])))
    seq.append(([], dma(V_XD[1], SRD_X, S_SOFFX, 1024, OPT['xnt'])))
    q = dma(V_XD[2], SRD_X, S_SOFFX, 0, OPT['xnt'])
    seq.append(([I(f"s_add_u32 m0, {S_BX3}, {slot*9216}")], Masked(q, 0xffff)))
    return seq

def place_dma(S, seq, gaps):
    k = 0
    last = None
    for e in seq:
        if e[0]:
            for p in e[0]: S.put(gaps[k], p)
            k += 1
        S.put(gaps[k], e[1]); last = gaps[k]
        if len(e) > 2:
            for p in e[2]: S.put(gaps[k] + 1, p)
        k += 1
    return last

def stage_advance_w():
    return II(f"s_add_u32 {S_SOFFW0}, {S_SOFFW0}, 262144", f"s_and_b32 {S_SOFFW0}, {S_SOFFW0}, 0x3fffff")
def stage_advance_x():
    return II(f"s_add_u32 {S_SOFFX}, {S_SOFFX}, 64", f"s_and_b32 {S_SOFFX}, {S_SOFFX}, 0xfffffbff")
def stage_advance(): return stage_advance_w() + stage_advance_x()

def straight(seq):
    L = []
    for e in seq:
        L += e[0]
        if e[0]: L += II("s_nop 0")
        L.append(e[1])
        if len(e) > 2: L += e[2]
    return L

def stage_issue_straight(slot):
    return straight(stage_dma_list(slot)) + stage_advance()

def wq_read(dt, h2, slot):
    if OPT.get('x_noread'): return I('s_nop 0')
    s, hf = dt >> 1, dt & 1
    b = abuf(dt) + 2 * h2
    off = slot * 16384 + hf * 8 + h2 * 2048
    return I(f"ds_read_b64_tr_b16 {ar(b,2)}, v{V_WQR[s]}" + (f" offset:{off}" if off else ""))
def x_read(t, slot):
    if OPT.get('x_noread'): return I('s_nop 0')
    off = slot * 9216 + (0 if t == 4 else t * 1024)
    return I(f"ds_read_b128 {vr(bbuf(t))}, v{V_XR4 if t == 4 else V_XR}" + (f" offset:{off}" if off else ""))
def q_mfma(dt, t):
    if OPT.get('x_t4') and t == 4: return I("s_nop 3")
    if OPT.get('x_t45') and t == 4 and dt >= 4: return I("s_nop 3")
    return mfma(vr(qacc(dt, t)), ar(abuf(dt)), vr(bbuf(t)), vr(qacc(dt, t)))

def half_group(kind, j):
    if kind == 'K':
        pre = II(f"s_add_u32 m0, {S_MK}, {kphys(j)}", f"s_add_u32 s51, {S_TQ}, {j*8192}")
    else:
        pre = II(f"s_add_u32 m0, {S_MV}, {vphys(j)}", f"s_add_u32 s51, {S_TQ}, {j*8192}")
    g = kv_group(kind, None, "s51")
    return [(pre, g[0])] + [([], x) for x in g[1:]]

def put_dmas(S, seq, gaps):
    prev = -1
    for e, g in zip(seq, gaps):
        if e[0]:
            assert g - 1 > prev or prev < 0, (g, prev)
            for p in e[0]: S.put(g - 1, p)
        S.put(g, e[1])
        if len(e) > 2:
            for p in e[2]: S.put(g + 1, p)
        prev = g
    assert len(seq) <= len(gaps)

QTAIL = (4, 5, 6, 7)
def q_tail(): return [q_mfma(dt, t) for t in range(4) for dt in QTAIL]
SRD_T = "s[96:99]"; V_T = [10, 11, 12, 13]; S_TM, S_TS = "s35", "s36"
V_TB2 = [252, 253, 254, 255]
V_TB = [244, 245, 246, 247]
DUMMY = 151552
def burst_list():
    g = [dma(V_TB[n], SRD_T, S_TS, n * 1024, OPT['kvnt']) for n in range(4)]
    return [([I(f"s_mov_b32 m0, {S_TM}")], g[0])] + [([], x) for x in g[1:]]

def q_body(ks, with_dma, burst=False, extra_dma=None, wait=None):
    slot = ks & 3
    ms = q_tail() + [q_mfma(dt, t) for t in range(5) for dt in range(4)]
    S = Sched(ms)
    a = lambda dt, h: wq_read(dt, h, slot)
    xr = lambda t: x_read(t, slot)
    plan = {0: a(0,0), 1: a(0,1), 2: a(1,0), 3: a(1,1), 4: xr(0), 5: a(2,0), 7: a(2,1), 8: xr(1), 9: a(3,0), 11: a(3,1),
            12: xr(2), 13: xr(4), 16: xr(3), 17: a(4,0), 19: a(4,1), 20: a(5,0), 21: a(5,1), 23: a(6,0), 24: a(6,1), 25: a(7,0), 27: a(7,1)}
    for g, ins in plan.items(): S.put(g, ins)
    if with_dma:
        put_dmas(S, stage_dma_list((ks + 3) & 3), [6, 10, 14, 18, 22, 26, 29])
        w = stage_advance_w(); x = stage_advance_x()
        S.put(19, w[0]); S.put(20, w[1]); S.put(30, x[0]); S.put(31, x[1])
    if burst:
        put_dmas(S, burst_list(), [32, 33, 34, 35]) if False else None
        put_dmas(S, burst_list(), [15, 28, 31, 33])  if False else None
    if extra_dma:
        put_dmas(S, extra_dma, [6, 10, 14, 18, 22, 26, 30, 32][:len(extra_dma)])
    return S

def q_finish(S, wait, wg=33):
    S.put(wg, tr_mark(), f"s_waitcnt vmcnt({wait}) lgkmcnt(0)", tr_commit())
    S.put(wg + 1, "s_barrier")
    seq, pend = lgkm_waits(S.flat())
    assert not pend
    if OPT['verbose']: print(S.report("q_body"))
    return seq

def tr_mark():
    return [Raw("s_memtime s[100:101]")] if OPT.get('trace') else []
def tr_commit():
    return [Raw("s_mov_b32 s95, m0\n  s_mov_b32 m0, s94\n  s_nop 0\n  v_writelane_b32 v0, s100, m0\n  s_mov_b32 m0, s95\n  s_add_u32 s94, s94, 1")] if OPT.get('trace') else []
def tr_dump():
    if not OPT.get('trace'): return []
    return II("s_add_u32 s66, s58, 0x9000000", "s_addc_u32 s67, s59, 0", "s_lshl_b32 s50, s2, 2", f"s_add_u32 s50, s50, {S_W}", "s_lshl_b32 s50, s50, 8",
              f"v_lshlrev_b32 v253, 2, {V_LANE}", "v_add_u32 v253, s50, v253", "global_store_dword v253, v0, s[66:67]")

def zero_init():
    L = II("v_mov_b32 v244, 0", "v_mov_b32 v245, 0", "v_mov_b32 v246, 0", "v_mov_b32 v247, 0", "s_nop 1")
    for r in range(RB, RB + 160, 16): L += II(f"v_mfma_f32_32x32x16_bf16 v[{r}:{r+15}], v[244:247], v[244:247], 0")
    for r in range(0, 256, 16): L += II(f"v_mfma_f32_32x32x16_bf16 a[{r}:{r+15}], v[244:247], v[244:247], 0")
    return L

def phase_q():
    L = []; A = lambda *x: L.extend(II(*x))
    A("L_phase_q:")
    A(stage_setup_scalar(), stage_issue_straight(0))
    A(setup_b())
    A(kv_setup_scalar())
    A(lane_consts_q2())
    A(stamp("q_issued"))
    A(zero_init())
    A(lane_consts_rest())
    A(f"s_mov_b32 {S_CNT}, 0")
    if OPT.get('trace'): A("s_mov_b32 s94, 1", "s_memtime s[100:101]", "s_waitcnt lgkmcnt(0)", "v_writelane_b32 v0, s100, 0")
    A(f"v_mov_b32 v{VT[0]}, 0x3f803f80")
    for r in range(4): A(f"v_accvgpr_write_b32 a{A_ONES + r}, v{VT[0]}")
    for t in range(5):
        for k in range(4): A(f"v_mov_b32 v{bbuf(t)+k}, 0")
    A("s_mov_b32 s96, s12", "s_mov_b32 s97, s13", "s_mov_b32 s98, s14", "s_mov_b32 s99, s15")
    for n in range(4): A(f"v_mov_b32 v{V_TB[n]}, v{V_KD[n]}")
    if OPT.get('stst'): A(stamp("consts"))
    A(stage_issue_straight(1))
    if OPT.get('stst'): A(stamp("s1_iss"))
    A("s_waitcnt vmcnt(7)")
    if OPT.get('stst'): A(stamp("s0_land"))
    A("s_barrier")
    if OPT['fused']:
        A(f"s_cmp_eq_u32 {S_SAFE}, 1", "s_cbranch_scc1 L_no_arrive")
        A(f"s_lshl_b32 s50, {S_CL}, 2", f"s_add_u32 s50, s50, {CNTOFF()}", f"s_lshl_b32 s51, {S_W}, 14", "s_add_u32 s50, s50, s51",
          f"v_lshlrev_b32 v46, 8, {V_LANE}", "v_add_u32 v46, s50, v46", "v_mov_b32 v47, 1",
          f"buffer_atomic_add v47, v46, {SRD_D}, 0 offen sc1")
        A("L_no_arrive:")
    A(stage_issue_straight(2))
    if OPT.get('stst'): A(stamp("s2_iss"))
    A(f"s_add_u32 {S_TM}, {S_MK}, {kphys(0)}", f"s_mov_b32 {S_TS}, {S_TQ}")
    A(stamp("q_start"))
    l2 = OPT['l2pf']
    if l2:
        A(f"s_add_u32 s37, {S_TQ}, {4*8192}", "s_mov_b32 s92, s12", "s_mov_b32 s93, s13", "s_mov_b32 s94, s14", "s_mov_b32 s95, s15",
          "s_mov_b64 vcc, -1")
    bodies = []
    QOOL = []
    for k in range(4):
        S = q_body(k, True)
        if k == 1:
            put_dmas(S, burst_list(), [32, 33, 34, 35])
        if k == 3 and l2:
            g = [dma(V_OR, "s[92:95]", "s37", n * 1024, False) for n in range(4)]
            put_dmas(S, [([I(f"s_mov_b32 m0, {DUMMY}")], g[0])] + [([], x) for x in g[1:]], [32, 33, 34, 35])
        if l2:
            n_steady, n_first = [(18, 14), (22, 18), (18, 18), (22, 22)][k]
        else:
            n_steady = n_first = 14 if k == 0 else 18
        if OPT.get('b0st') and k == 0:
            for nm, g in (("g5", 5), ("g6", 7), ("g15", 15), ("g20", 20), ("g30", 31)):
                S.put(g, Raw(f"s_cmp_eq_u32 {S_CNT}, 0\n  s_cbranch_scc0 L_b0_{nm}\n  " + "\n  ".join(x.txt for x in stamp(nm)) + f"\nL_b0_{nm}:"))
        late = (k == 1) or (k == 3 and l2)
        w = tr_mark() + II(f"s_waitcnt vmcnt({n_steady}) lgkmcnt(0)")
        if n_first != n_steady:
            w += II(f"s_cbranch_vccnz L_q_first{k}", f"L_q_back{k}:")
            QOOL += II(f"L_q_first{k}:", f"s_waitcnt vmcnt({n_first})", f"s_branch L_q_back{k}")
        w += tr_commit()
        if late:
            seq, pend = lgkm_waits(S.flat())
            seq += w + II("s_barrier")
        else:
            S.put(33, w); S.put(34, "s_barrier")
            seq, pend = lgkm_waits(S.flat())
            assert not pend
        if OPT['verbose']: print(S.report("q_body"))
        bodies.append(seq)
    hist = bodies[3][-24:]
    A(".p2align 6", "L_q_loop:")
    for bi, b in enumerate(bodies):
        b2, n = hazards(b, history=hist); L.extend(b2); hist = b2[-24:]
        if OPT.get('stst') and bi < 2: A(f"s_cmp_eq_u32 {S_CNT}, 0", f"s_cbranch_scc0 L_nost{bi}", stamp(f"body{bi}"), f"L_nost{bi}:")
    A(f"s_add_u32 {S_TM}, {S_TM}, 16384", f"s_add_u32 {S_TS}, {S_TS}, 8192", f"s_add_u32 {S_CNT}, {S_CNT}, 1")
    if l2:
        A("s_mov_b64 vcc, 0", f"s_cmp_eq_u32 {S_CNT}, 1", "s_cbranch_scc1 L_q_to1", "L_q_to1_done:")
    A(f"s_cmp_eq_u32 {S_CNT}, 2", "s_cbranch_scc0 L_q_tov_done",
      "s_mov_b32 s96, s16", "s_mov_b32 s97, s17", f"s_add_u32 {S_TM}, {S_MV}, {vphys(0)}", f"s_mov_b32 {S_TS}, {S_TQ}")
    if l2: A("s_mov_b32 s92, s12", "s_mov_b32 s93, s13", f"s_add_u32 s37, {S_TQ}, {5*8192}")
    for n in range(4): A(f"v_mov_b32 v{V_TB[n]}, v{V_VD[n & 1]}")
    A("L_q_tov_done:", f"s_cmp_lt_u32 {S_CNT}, 3", "s_cbranch_scc1 L_q_loop")
    OOL = []
    if l2: OOL += II("L_q_to1:", "s_mov_b32 s92, s16", "s_mov_b32 s93, s17", f"s_add_u32 s37, {S_TQ}, {3*8192}", "s_branch L_q_to1_done")
    OOL += QOOL
    b, n = hazards(q_finish(q_body(12, True), 18 if l2 else 14), history=hist); L.extend(b)
    b, n = hazards(q_finish(q_body(13, False, extra_dma=half_group('V', 1)), 15 if l2 else 11), history=b[-24:]); L.extend(b)
    b, n = hazards(q_finish(q_body(14, False, extra_dma=half_group('K', 2) + half_group('V', 2)), 12), history=b[-24:]); L.extend(b)
    b, n = hazards(q_finish(q_body(15, False), 12), history=b[-24:]); L.extend(b)
    if OOL:
        A("s_branch L_q_after_ool")
        L.extend(OOL)
        A("L_q_after_ool:")
    A(stamp("q_loop_done"))
    return L

def q_tiles(s): return range(5) if s < 2 else range(4)
def q_scale(ss):
    return [I(f"v_pk_mul_f32 {vr(grp(t,s)+2*k,2)}, {vr(grp(t,s)+2*k,2)}, {vr(V_C0,2)}") for s in ss for t in q_tiles(s) for k in range(4)]
def q_cvt(ss):
    return [I(f"v_cvt_pk_bf16_f32 v{grp(t,s)+k}, v{grp(t,s)+2*k}, v{grp(t,s)+2*k+1}") for s in ss for t in q_tiles(s) for k in range(4)]
QX = 155648

def transition():
    L = []; A = lambda *x: L.extend(II(*x))
    A(f"s_add_u32 {S_SOFFK}, {S_TQ}, {5*8192}", f"s_add_u32 {S_SOFFV}, {S_TQ}, {4*8192}")
    A(f"v_mov_b32 v{V_C0}, {hex(f2u(SCALE))}", f"v_mov_b32 v{V_C1}, {hex(f2u(SCALE))}")
    A(f"s_lshl_b32 s50, {S_W}, 11", f"s_add_u32 s50, s50, {QX}", f"v_lshlrev_b32 v7, 4, {V_LANE}", "v_add_u32 v8, s50, v7",
      "s_xor_b32 s50, s50, 2048", "v_add_u32 v9, s50, v7")
    k3 = half_group('K', 3)
    seq = [k_read(kt, s, 0) for kt in range(2) for s in range(4)]
    sc = q_scale((0, 1))
    seq += II("s_nop 3") + sc
    S = Sched(q_tail())
    cv = q_cvt((0, 1))
    sh = lambda c: any(f"v{grp(4,s)+k}," in c.txt.split()[1] + "," for s in (0, 1) for k in range(4))
    cv = [c for c in cv if sh(c)] + [c for c in cv if not sh(c)]
    S.spread(cv, [min(i * 2 // 5, 15) for i in range(40)])
    S.put(5, f"ds_write_b128 v8, {vr(grp(4,0))}"); S.put(7, f"ds_write_b128 v8, {vr(grp(4,1))} offset:1024")
    seq += S.flat()
    seq += II("s_waitcnt lgkmcnt(0)", "s_barrier", f"ds_read_b128 {vr(grp(4,2))}, v9", f"ds_read_b128 {vr(grp(4,3))}, v9 offset:1024")
    sc = q_scale((2, 3))
    seq += II("s_nop 3") + k3[0][0] + sc[:8] + [k3[0][1]] + sc[8:16] + [k3[1][1]] + sc[16:24] + [k3[2][1]] + sc[24:] + [k3[3][1]]
    qk = lambda kt, ss, c: [qk_mfma(kt, s, t, c) for s in ss for t in range(5)]
    S = Sched(qk(0, (0, 1), lambda t: "0") + qk(0, (2, 3), lambda t: "0"))
    S.spread(q_cvt((2, 3)), [min(i * 5 // 16, 9) for i in range(32)])
    S.spread([f"v_mov_b32 v{Preg(1,t)+k}, 0" for t in range(5) for k in range(4)], [10 + i // 2 for i in range(20)])
    seq += S.flat()
    seq += straight(half_group('V', 3))
    seq, _ = lgkm_waits(seq, final_zero=True)
    seq, n = hazards(seq); L.extend(seq)
    A(stamp("qk0_done"))
    A(f"s_cmp_eq_u32 {S_SAFE}, 1", "s_cbranch_scc1 L_safe_max")
    T = [2, 3, 4, 5, 6]
    U = [7, 8, 9, 10, 11]
    E = II("s_nop 5")
    for t in range(5): E += II(f"v_max3_f32 v{T[t]}, v{Sreg(0,t)}, v{Sreg(0,t)+1}, v{Sreg(0,t)+2}")
    for t in range(5): E += II(f"v_max_f32 v{T[t]}, v{T[t]}, v{Sreg(0,t)+3}")
    E += row_max_finish(T, U)
    S = Sched(qk(1, range(4), lambda t: vr(cinit(t))))
    sub = [f"v_add_f32 v{Sreg(0,t)+k}, v{Sreg(0,t)+k}, v{cinit(t)}" for t in range(5) for k in range(4)]
    ex = [f"v_exp_f32 v{Sreg(0,t)+k}, v{Sreg(0,t)+k}" for t in range(5) for k in range(4)]
    S.spread(sub, [i // 2 for i in range(20)])
    S.spread(ex, [min(2 + i, 19) for i in range(20)])
    E += S.flat()
    E += II("s_barrier")
    E += II("s_nop 3") + exps(1)
    E, n = hazards(E, history=L[-24:]); L.extend(E)
    A("L_max_done:")
    A(straight(half_group('K', 4)))
    return L

def row_max_finish(T, U):
    E = []
    for sw in ("v_permlane32_swap_b32", "v_permlane16_swap_b32"):
        for t in range(5): E += II(f"v_mov_b32 v{U[t]}, v{T[t]}")
        for t in range(5): E += II(f"{sw} v{T[t]}, v{U[t]}")
        for t in range(5): E += II(f"v_max_f32 v{T[t]}, v{T[t]}, v{U[t]}")
    for t in range(5):
        for k in range(4): E += II(f"v_sub_f32 v{cinit(t)+k}, 0, v{T[t]}")
    return E

def safe_paths():
    L = []; A = lambda *x: L.extend(II(*x))
    T = [2, 3, 4, 5, 6]; U = [7, 8, 9, 10, 11]
    ab = [(Sreg(0, t), Sreg(1, t)) for t in range(5)]
    A("L_safe_max:")
    for t in range(5): A(f"v_mov_b32 v{T[t]}, 0xff800000")
    A(f"s_mov_b32 {S_CNT}, 0")
    A("L_safe_loop:")
    A("s_waitcnt vmcnt(0) lgkmcnt(0)", "s_barrier")
    A(f"s_and_b32 s50, {S_CNT}, 15", "s_lshl_b32 s50, s50, 13", f"s_add_u32 s51, s50, {S_TQ}", f"s_add_u32 m0, {S_MK}, {kphys(0)}", "s_nop 0")
    A(kv_group('K', None, "s51"))
    A("s_waitcnt vmcnt(0)", "s_barrier")
    A([k_read(kt, s, 0) for kt in range(2) for s in range(4)], "s_waitcnt lgkmcnt(0)")
    A(f"s_cmp_eq_u32 {S_CNT}, 16", "s_cbranch_scc1 L_safe_last")
    A([qk_mfma(kt, s, t, lambda t: "0") for kt in range(2) for s in range(4) for t in range(5)], "s_nop 7", "s_nop 7")
    for t, (a, b) in enumerate(ab):
        A(f"v_max3_f32 v{T[t]}, v{T[t]}, v{a}, v{a+1}", f"v_max3_f32 v{T[t]}, v{T[t]}, v{a+2}, v{a+3}",
          f"v_max3_f32 v{T[t]}, v{T[t]}, v{b}, v{b+1}", f"v_max3_f32 v{T[t]}, v{T[t]}, v{b+2}, v{b+3}")
    A(f"s_add_u32 {S_CNT}, {S_CNT}, 1", f"s_cmp_lt_u32 {S_CNT}, 16", "s_cbranch_scc1 L_safe_loop")
    E, n = hazards(II("s_nop 3") + row_max_finish(T, U)); L.extend(E)
    A("s_branch L_safe_loop")
    A("L_safe_last:", "s_nop 3")
    A([qk_mfma(kt, s, t, lambda t: vr(cinit(t))) for kt in range(2) for s in range(4) for t in range(5)], "s_nop 7", "s_nop 7")
    A("s_barrier")
    for t, (a, b) in enumerate(ab):
        for base in (a, b):
            for k in range(4): A(f"v_exp_f32 v{base+k}, v{base+k}")
    A("s_nop 1", "s_branch L_max_done")
    if OPT['fused']:
        A("L_cnt_spin:", f"s_mov_b32 s53, {SPIN}", "L_cnt_spin_loop:", "s_sleep 2",
          f"buffer_load_dword v15, v14, {SRD_D}, 0 offen sc1", "s_waitcnt vmcnt(0)", "v_readfirstlane_b32 s52, v15", "s_nop 3",
          "s_cmp_ge_u32 s52, 16", "s_cbranch_scc1 L_cnt_ok", "s_sub_u32 s53, s53, 1", "s_cmp_lg_u32 s53, 0", "s_cbranch_scc1 L_cnt_spin_loop", "s_branch L_cnt_ok")
    A("L_restart:", f"s_mov_b32 {S_SAFE}, 1", "s_waitcnt vmcnt(0) lgkmcnt(0)", "s_barrier")
    A(lane_consts_q())
    A("s_branch L_phase_q")
    return L

def k_read(kt, s, slotk):
    off = kphys(slotk) + kt * 4096
    return I(f"ds_read_b128 {ar(kbuf(kt, s))}, v{V_KR[s]}" + (f" offset:{off}" if off else ""))
def v_read(dt, h, slotv):
    off = vphys(slotv) + h * 4096
    return I(f"ds_read_b64_tr_b16 {ar(abuf(dt) + 2*h, 2)}, v{V_VR[dt]}" + (f" offset:{off}" if off else ""))
def qk_mfma(kt, s, t, first_c):
    c = first_c(t) if s == 0 else vr(Sreg(kt, t))
    return mfma(vr(Sreg(kt, t)), ar(kbuf(kt, s)), vr(qfrag(t, s)), c)
def pv_mfma(dt, t, par):
    return mfma(ar(oacc(dt, t)), ar(abuf(dt)), vr(Preg(par, t)), ar(oacc(dt, t)))
def rs_mfma(t, par):
    return mfma(ar(lacc(t)), ar(A_ONES), vr(Preg(par, t)), ar(lacc(t)))
def cvts(par):
    out = []
    for kt in range(2):
        for t in range(5):
            s = Sreg(kt, t); p = Preg(par, t) + 2 * kt
            out.append(I(f"v_cvt_pk_bf16_f32 v{p}, v{s}, v{s+1}"))
            out.append(I(f"v_cvt_pk_bf16_f32 v{p+1}, v{s+2}, v{s+3}"))
    return out
def exps(kt):
    return [I(f"v_exp_f32 v{Sreg(kt,t)+i}, v{Sreg(kt,t)+i}") for t in range(5) for i in range(4)]

def att_dma(j, dyn=False):
    seq = []
    if j == 0 or j > 12: return seq
    if True:
        pre = II(f"s_add_u32 m0, {S_MK}, {kphys(j + 4)}")
        g = kv_group('K', None, S_SOFFK)
        seq += [(pre, g[0])] + [([], x) for x in g[1:]]
        seq[-1] = (seq[-1][0], seq[-1][1], II(f"s_add_u32 {S_SOFFK}, {S_SOFFK}, 8192"))
    if j + 3 <= 15:
        pre = II(f"s_add_u32 m0, {S_MV}, {vphys(j + 3)}")
        g = kv_group('V', None, S_SOFFV)
        s2 = [(pre, g[0])] + [([], x) for x in g[1:]]
        s2[-1] = (s2[-1][0], s2[-1][1], II(f"s_add_u32 {S_SOFFV}, {S_SOFFV}, 8192"))
        seq += s2
    return seq

def wo_dma(ks, slot_base_imm):
    seq = []
    for gI in range(2):
        pre = II(f"s_lshl_b32 s50, {S_W}, 13", f"s_add_u32 m0, s50, {slot_base_imm + gI*4096}", f"s_mov_b32 s51, {ks*32768 + gI*16384}")
        for n in range(4):
            seq.append((pre if n == 0 else [], dma(V_WOD[n], SRD_WO, "s51", n * 1024, OPT["wont"])))
    return seq

def att_body(j, vmwait, extra_dma=None):
    par_old, par_new = (j - 1) & 1, j & 1
    ms = [pv_mfma(dt, t, par_old) for dt in (5, 6, 7) for t in range(5)] + [rs_mfma(t, par_old) for t in range(5)]
    ms += [qk_mfma(kt, s, t, lambda t: vr(cinit(t))) for kt in range(2) for s in range(4) for t in range(5)]
    ms += [pv_mfma(dt, t, par_new) for dt in range(5) for t in range(5)]
    S = Sched(ms)
    cv = cvts(par_new)
    S.spread(cv, [1, 1, 3, 3, 6, 6, 8, 8, 11, 11, 13, 13, 16, 16, 18, 18, 21, 21, 23, 23])
    S.spread([k_read(kt, s, j + 1) for kt in range(2) for s in range(4)], [0, 2, 5, 7, 10, 12, 15, 17])
    vr_ = [v_read(dt, h, j) for dt in range(8) for h in range(2)]
    S.spread(vr_, [20, 22, 25, 26, 27, 28, 30, 31, 32, 33, 35, 36, 37, 38, 40, 61])
    d = att_dma(j) + (extra_dma or [])
    put_dmas(S, d, [4, 9, 14, 19, 24, 29, 34, 39])
    S.spread(exps(0), list(range(41, 61)))
    S.spread(exps(1), list(range(62, 82)))
    seq = S.flat()
    seq, pend = lgkm_waits(seq)
    seq += tr_mark() + II(f"s_waitcnt vmcnt({vmwait}) lgkmcnt(0)") + tr_commit() + II("s_barrier")
    if OPT['verbose']: print(S.report(f"att_body {j}"))
    return seq

WO1 = [192, 200, 208, 216, 224, 228, 232, 236]
def wofrag(ks, m, n=4, off=0):
    if ks == 0: return ar(216 + 4 * m + off, n)
    if ks == 1: return vr(WO1[m] + off, n)
    return ar((ks - 2) * 32 + 4 * m + off, n)
def wo_read(ks, m, h):
    cp, hf = m >> 1, m & 1
    off = (32768 if (ks & 1) == 0 else 0) + hf * 8 + h * 4096
    return I(f"ds_read_b64_tr_b16 {wofrag(ks, m, 2, 2*h)}, v{V_WOR[cp]}" + (f" offset:{off}" if off else ""))

def tlb_touch():
    L = II(f"v_mul_u32_u24 v46, 0x100000, {V_LANE}",
           f"buffer_load_dword v47, v46, {SRD_P}, 0 offen")
    if OPT['tlb'] == 2:
        L += II(f"s_mul_i32 s50, {S_B}, {144*2048}", f"v_lshlrev_b32 v46, 26, {V_LANE}", f"buffer_load_dword v47, v46, {SRD_O}, s50 offen")
    return L

def wo_prefetch(shift=0):
    n = OPT['pfw']
    L = II(f"s_add_u32 s50, {S_B}, {shift}", "s_and_b32 s50, s50, 7", "s_lshl_b32 s50, s50, 15", f"s_lshl_b32 s51, {S_W}, 13", "s_add_u32 s50, s50, s51")
    nt = " nt" if OPT['pfnt'] else ""
    if n == 8:
        L += II(f"v_lshlrev_b32 v46, 4, {V_LANE}")
        for i in range(8):
            L += II(f"s_add_u32 s51, s50, {i*1024}", f"buffer_load_dwordx4 v[252:255], v46, s[84:87], s51 offen{nt}")
    else:
        sh = {1: 7, 2: 6, 4: 5}[n]
        L += II(f"v_lshlrev_b32 v46, {sh}, {V_LANE}")
        for i in range(n):
            L += II(f"s_add_u32 s51, s50, {i * (64 << sh)}", f"buffer_load_dword v47, v46, s[84:87], s51 offen{nt}")
    return L

ATT_OOL = []
def attention():
    L = []; A = lambda *x: L.extend(II(*x))
    L += transition()
    A(stamp("att_start"))
    A(f"s_mov_b32 {S_CNT}, 0")
    b0, n = hazards(att_body(0, 16), history=L[-24:]); L.extend(b0)
    bodies = [att_body(j, 16) for j in range(1, 5)]
    hist = bodies[3][-24:]
    A(".p2align 6", "L_att_loop:")
    OOLA = []
    for i, b in enumerate(bodies):
        if i == 3:
            A(f"s_cmp_eq_u32 {S_CNT}, 2", "s_cbranch_scc0 L_att_nok_done")
            for n in range(4): A(f"v_add_u32 v{V_KD[n]}, 0x40000000, v{V_KD[n]}")
            A("L_att_nok_done:")
        b2, n = hazards(b, history=hist); L.extend(b2); hist = b2[-24:]
        if OPT['pf'] == 2 and OPT['pfat'] == 9 + i and i < 3:
            A(f"s_cmp_eq_u32 {S_CNT}, 2", "s_cbranch_scc0 L_att_nopf0", wo_prefetch(), "L_att_nopf0:")
    if 0 <= OPT['pf'] < 3 and OPT['pfat'] == 12:
        A(f"s_cmp_eq_u32 {S_CNT}, {OPT['pf']}", "s_cbranch_scc0 L_att_nopf", wo_prefetch(), (wo_prefetch(4) if OPT.get('pfdup') else []),
          (tlb_touch() if OPT.get('tlb') else []), "L_att_nopf:")
    A(f"s_add_u32 {S_CNT}, {S_CNT}, 1", f"s_cmp_lt_u32 {S_CNT}, 3", "s_cbranch_scc1 L_att_loop")
    ATT_OOL.clear(); ATT_OOL.extend(OOLA)
    npf = (OPT['pfw'] * (2 if OPT.get('pfdup') else 1) + (OPT.get('tlb') or 0)) if (OPT['pf'] == 2 and OPT['pfexact'] and OPT['pfat'] == 12) else 0
    b, n = hazards(att_body(13, 16 + npf, extra_dma=wo_dma(0, WOA)), history=hist); L.extend(b); hist = b[-24:]
    if OPT.get('pf2nd'): A(wo_prefetch(4))
    b, n = hazards(att_body(14, 16 + npf, extra_dma=wo_dma(1, WOB)), history=hist); L.extend(b); hist = b[-24:]
    A(stamp("att_loop_done"))
    ms = [pv_mfma(dt, t, 0) for dt in (5, 6, 7) for t in range(5)] + [rs_mfma(t, 0) for t in range(5)]
    ms += [pv_mfma(dt, t, 1) for dt in range(8) for t in range(5)] + [rs_mfma(t, 1) for t in range(5)]
    S = Sched(ms)
    S.spread(cvts(1), list(range(0, 20)))
    S.spread([v_read(dt, h, 15) for dt in range(5) for h in range(2)], list(range(0, 10)))
    S.spread([v_read(dt, h, 15) for dt in (5, 6, 7) for h in range(2)], list(range(15, 21)))
    S.put(20, "s_waitcnt vmcnt(8)")
    S.spread([wo_read(0, m, h) for m in range(8) for h in range(2)], [21 + i // 2 for i in range(16)])
    S.put(28, "s_waitcnt vmcnt(0)")
    S.spread([wo_read(1, m, h) for m in range(8) for h in range(2)], [29 + i // 2 for i in range(16)])
    S.put(38, "s_waitcnt lgkmcnt(0)")
    if OPT['fused']:
        S.put(36, f"s_lshl_b32 s50, {S_CL}, 2", f"s_add_u32 s50, s50, {CNTOFF()}")
        S.spread([f"v_lshlrev_b32 v14, 8, {V_LANE}", "v_add_u32 v14, s50, v14"], [37, 37])
        S.put(38, f"buffer_load_dword v15, v14, {SRD_D}, 0 offen sc1")
    put_dmas(S, wo_dma(2, WOA), [41, 44, 47, 50, 54, 57, 60, 63])
    seq, pend = lgkm_waits(S.flat(), final_zero=True)
    seq, n = hazards(seq, history=hist); L.extend(seq)
    A("s_barrier")
    A("s_nop 3")
    A(stamp("att_done"))
    return L

def wo_dma_t(ks):
    d = wo_dma(ks, WOA if (ks & 1) == 0 else WOB)
    for e in d: e[1].tag = f"wo{ks}"
    return d
def wo_reads(ks): return [wo_read(ks, m, h) for m in range(8) for h in range(2)]

LFLAG = 90112

def o_epilogue():
    E = []
    tl = VT[0]; rc = VT[2]
    d3, d4, d5 = wo_dma_t(3), wo_dma_t(4), wo_dma_t(5)
    E += II(f"s_lshl_b32 s51, {S_QH}, 11", f"v_subrev_u32 v{V_OWB}, s51, v{V_OW}", f"v_add_u32 v{V_OW}, s51, v{V_OW}",
            f"s_lshl_b32 s50, {S_U}, 12", f"s_add_u32 s50, s50, 32768", "s_add_u32 s50, s50, s51", f"v_add_u32 v{V_OW4}, s50, v{V_OR}")
    def emit_dma(e):
        return e[0] + II("s_nop 0") * (1 if e[0] else 0) + [e[1]]
    nfr = 0
    for t in range(5):
        E += II(f"v_accvgpr_read_b32 v{tl}, a{lacc(t)}", f"v_rcp_f32 v{rc}, v{tl}", "s_nop 0", f"v_mov_b32 v{rc+1}, v{rc}")
        if t == 0: E += II(f"v_mov_b32 v{VT[1]}, v{tl}")
        else: E += II(f"v_max_f32 v{VT[1]}, v{VT[1]}, v{tl}")
        if t == 4:
            E += II(f"v_cmp_nge_f32 vcc, {hex(OPT['lthr'] or LTHR)}, v{VT[1]}", f"s_lshl_b32 s50, {S_W}, 2", f"s_add_u32 s50, s50, {LFLAG}", f"v_mov_b32 v52, s50",
                    "s_cmp_lg_u64 vcc, 0", "s_cselect_b32 s51, 1, 0", "v_mov_b32 v53, s51", "ds_write_b32 v52, v53")
        for ks in range(4 if t < 4 else 2):
            mid = []
            if nfr < 8: mid += emit_dma(d3[nfr])
            if 8 <= nfr < 16: mid += emit_dma(d4[nfr - 8])
            if nfr >= 16:
                for i in range(4): mid += emit_dma(d5[4 * (nfr - 16) + i])
            if OPT.get('x_oenodma'): mid = [x for x in mid if x.kind == 'dma'][:0] + [x for x in mid if x.kind != 'dma']
            rd = []
            cut = {0: (0, 6), 1: (6, 11), 2: (11, 16)}
            if 4 <= nfr < 7:
                if nfr == 4:
                    rd += [VmNeed("wo2")]
                    if OPT['fused']:
                        rd += II("v_readfirstlane_b32 s52, v15", "s_nop 3", "s_cmp_lt_u32 s52, 16", "s_cbranch_scc1 L_cnt_spin", "L_cnt_ok:")
                a_, b_ = cut[nfr - 4]; rd += wo_reads(2)[a_:b_]
            if 12 <= nfr < 15:
                if nfr == 12: rd += [VmNeed("wo3")]
                a_, b_ = cut[nfr - 12]; rd += wo_reads(3)[a_:b_]
            if OPT.get('oe_nord'): rd = [x for x in rd if x.kind != 'dsr']
            if OPT.get('oe_nowait'): rd = [x for x in rd if not isinstance(x, VmNeed)]
            if OPT.get('oe_nodma'): mid = []; rd = [x for x in rd if not (isinstance(x, VmNeed) and x.tag == 'wo3')]
            if nfr in (8, 16): E += II("s_waitcnt lgkmcnt(0)")
            E += rd
            for h in range(2):
                for k in range(4):
                    E += II(f"v_accvgpr_read_b32 v{52 + 4*h + k}, a{oacc(2*ks + h, t) + k}")
            E += mid
            for k in range(4): E += II(f"v_pk_mul_f32 {vr(52+2*k,2)}, {vr(52+2*k,2)}, {vr(rc,2)}")
            for k in range(4): E += II(f"v_cvt_pk_bf16_f32 v{60+k}, v{52+2*k}, v{53+2*k}")
            E += II(f"ds_write_b128 v{V_OW if ks < 2 else V_OWB}, {vr(60)} offset:{(t*8+ks)*1024}" if t < 4 else f"ds_write_b128 v{V_OW4}, {vr(60)} offset:{ks*1024}")
            nfr += 1
        if OPT['stamps'] and OPT.get('oest'): E += [Raw("\n  ".join(x.txt for x in stamp(f"oe{t}")))] + II("s_waitcnt lgkmcnt(0)")
    E, q = vm_waits(E, ["cnt"] + ["wo2"] * 8)
    E, pend = lgkm_waits(E, final_zero=True)
    E, n = hazards(E)
    return E + II("s_barrier"), q

def o_read(dst, t, ks):
    if t < 8: return I(f"ds_read_b128 {vr(dst)}, v{V_OR} offset:{(t*8+ks)*1024}")
    return I(f"ds_read_b128 {vr(dst)}, v{V_OR8} offset:{ks*1024}")
V_PSC = [196, 197, 198, 199]
V_OWNA = 204; S_OWN = "s49"
OWNB = 73728
OWN_OOL = []
OWN_BLK = {}
def pstore(src, t, cp):
    v = V_PSC[cp] if OPT['own'] else V_PS
    return (II(f"s_add_u32 s51, {S_SOFFP}, {(cp*9 + t)*16384}"),
            I(f"buffer_store_dwordx4 {vr(src)}, v{v}, {SRD_P}, s51 offen {OPT['pst']}"))
def own_hook(src, t, cp):
    if not OPT['own']: return []
    OWN_BLK.setdefault(t, []).extend(II(f"L_own_{t}_{cp}:", f"ds_write_b128 v{V_OWNA}, {vr(src)} offset:{t*1024}", f"s_branch L_ownb_{t}_{cp}"))
    return II(f"s_cmp_eq_u32 {S_OWN}, {cp}", f"s_cbranch_scc1 L_own_{t}_{cp}", f"L_ownb_{t}_{cp}:")

NP1 = 2
def acc1(t, m): return 64 + (t * 8 + m) * 4
def acc2(t, m): return 128 + ((t & 1) * 8 + m) * 4
def bfr1(par, t): return 2 + (par * 4 + t) * 4
STG = [48, 52, 56, 60]

def tile_epilogue(accf, t, k0):
    out = []
    for cp in range(4):
        a0, a1 = accf(t, 2*cp), accf(t, 2*cp + 1)
        d = STG[(k0 + cp) & 3]
        cv = II(f"v_cvt_pk_bf16_f32 v{d}, v{a0}, v{a0+1}", f"v_cvt_pk_bf16_f32 v{d+1}, v{a0+2}, v{a0+3}",
                f"v_cvt_pk_bf16_f32 v{d+2}, v{a1}, v{a1+1}", f"v_cvt_pk_bf16_f32 v{d+3}, v{a1+2}, v{a1+3}")
        pre, st = pstore(d, t, cp)
        if OPT.get('x_nost') and not (t == 8 and cp == 3): st = I("s_nop 0")
        st.tag = f"st{t}"
        out.append((cv, (pre, st), own_hook(d, t, cp)))
    return out

def out_proj(queue):
    L = []; A = lambda *x: L.extend(II(*x))
    A(f"s_mul_i32 {S_SOFFP}, {S_W}, {4*9*16384}")
    OWN_OOL.clear(); OWN_BLK.clear()
    if OPT['own']:
        A(f"s_lshr_b32 s50, {S_HP}, 2", f"s_and_b32 s51, {S_HP}, 3", f"s_cmp_eq_u32 s50, {S_W}", f"s_cselect_b32 {S_OWN}, s51, 7")
        for cp in range(4):
            A(f"s_cmp_eq_u32 {S_OWN}, {cp}", "s_cselect_b32 s50, 0x40000000, 0", f"v_or_b32 v{V_PSC[cp]}, s50, v{V_PS}")
        A(f"v_add_u32 v{V_OWNA}, {OWNB}, v{V_OR}")
    NP = OPT['np1']
    G = 8 * NP
    ms = [mfma(vr(acc1(t, m)), wofrag(ks, m), vr(bfr1(ks & 1, t)), ("0" if ks == 0 else vr(acc1(t, m)))) for ks in range(8) for m in range(8) for t in range(NP)]
    bt = lambda ks: 2 + 4 * ks
    P1 = len(ms)
    for t in range(NP, 9):
        ms += [mfma(vr(acc2(t, m)), wofrag(ks, m), vr(bt(ks)), ("0" if ks == 0 else vr(acc2(t, m)))) for ks in range(8) for m in range(8)]
    S = Sched(ms)
    def reads(ks, g0): S.spread(wo_reads(ks), [g0 + i // 2 for i in range(16)])
    def dmas(ks, g0, step=4): put_dmas(S, wo_dma_t(ks), [g0 + step * i for i in range(8)])
    def put_free(ins, g0):
        g = g0
        while S.cost(g) + COST[ins.kind] > 8: g += 1
        S.put(g, ins); return g
    def epi(t, accf, g0, stride):
        for cp, (cv, (spre, st), hook) in enumerate(tile_epilogue(accf, t, 0)):
            g = g0 + cp * stride
            S.spread(cv, [g, g, g + 1, g + 1])
            for p in spre: S.put(g + 1, p)
            for p in hook: S.put(g + 2, p)
            S.put(g + 2, st)
        if OPT['own']:
            blk = OWN_BLK.pop(t)
            S.put(g0 + 3 * stride + 4, Raw(f"s_branch L_ownx_{t}\n" + "\n".join((x.txt if x.kind == 'label' else "  " + x.txt) for x in blk) + f"\nL_ownx_{t}:"))
    if NP == 2:
        pre = [o_read(bfr1(0, t), t, 0) for t in range(NP)]
        S.put(0, VmNeed("wo4")); reads(4, 0)
        S.put(9, "s_waitcnt lgkmcnt(0)"); dmas(6, 11, 3)
        S.put(33, VmNeed("wo5")); reads(5, 33)
        S.put(42, "s_waitcnt lgkmcnt(0)"); dmas(7, 44, 3)
        S.put(84, VmNeed("wo6")); reads(6, 84)
        S.put(100, VmNeed("wo7")); reads(7, 100)
        for ks in range(7):
            g = ks * G + (1 if ks else 8)
            for t in range(NP):
                g = put_free(o_read(bfr1((ks + 1) & 1, t), t, ks + 1), g) + 1
            assert g <= (ks + 1) * G - 3, (ks, g)
        g = 6 * G + 4
        for ks in (2, 3, 6, 7): g = put_free(o_read(bt(ks), NP, ks), g) + 1
        g = 7 * G + 1
        for ks in (0, 1): g = put_free(o_read(bt(ks), NP, ks), g) + 1
        base = P1
        for ks in (4, 5): put_free(o_read(bt(ks), NP, ks), base + 1)
        epi(0, acc1, base + 4, 7); epi(1, acc1, base + 32, 7)
    else:
        assert NP == 0
        pre = [o_read(bt(ks), 0, ks) for ks in range(8)]
        S.put(0, VmNeed("wo4")); reads(4, 0)
        S.put(9, "s_waitcnt lgkmcnt(0)"); dmas(6, 11, 2)
        S.put(10, VmNeed("wo5"));
        S.spread(wo_reads(5), [12, 12, 14, 14, 16, 16, 18, 18, 20, 20, 22, 22, 24, 24, 26, 26])
        S.put(28, "s_waitcnt lgkmcnt(0)"); dmas(7, 30, 2)
        S.put(46, VmNeed("wo6")); S.spread(wo_reads(6), [46, 46, 46, 46] + [47 + i // 4 for i in range(12)])
        S.put(54, VmNeed("wo7")); S.spread(wo_reads(7), [54, 54, 54, 54] + [55 + i // 12 for i in range(12)])
    for t in range(NP, 9):
        b = P1 + (t - NP) * 64
        if t > NP: epi(t - 1, acc2, b + 6, 12)
        if t < 8:
            for ks in range(8):
                g = b + 8 * ks + 8
                if g >= b + 64: g = b + 64 + 1
                put_free(o_read(bt(ks), t + 1, ks), g)
    if OPT['fused']:
        g0 = P1 + (3 - NP) * 64 + 49
        S.put(g0, f"s_lshl_b32 s50, {S_W}, 7", f"s_lshl_b32 s52, {S_HP}, 2", "s_add_u32 s50, s50, s52")
        S.spread([f"v_lshlrev_b32 v36, 13, {V_LANE}", "v_add_u32 v36, s50, v36", "v_mov_b32 v37, 1"], [g0 + 1, g0 + 1, g0 + 2])
        S.put(g0 + 3, f"s_lshr_b32 s50, {S_HP}, 2", "s_lshl_b32 s50, s50, 7")
        S.spread([f"v_lshrrev_b32 v46, 4, {V_LANE}", "v_lshlrev_b32 v46, 9, v46", f"v_and_b32 v47, 15, {V_LANE}",
                  "v_lshl_add_u32 v46, v47, 2, v46", "v_add_u32 v46, s50, v46"], [g0 + 4, g0 + 4, g0 + 5, g0 + 9, g0 + 9])
        b = P1 + (8 - NP) * 64
        fa = I(f"buffer_store_dword v37, v36, {SRD_F}, 0 offen sc1"); fa.tag = "fl"
        if OPT['early']:
            S.put(b + 40, VmNeed("st3")); S.put(b + 41, fa)
            pl = I(f"buffer_load_dword v47, v46, {SRD_F}, 0 offen sc1"); pl.tag = "poll"
            S.put(b + 60, pl)
    if OPT['stamps'] and OPT.get('opst'):
        for nm, g in (("w1", 127), ("w3", 255), ("w5", 383), ("w8", 575)):
            S.put(g, Raw("\n  ".join(x.txt for x in stamp(nm))))
            S.put(g, "s_waitcnt lgkmcnt(0)")
    pre = II(f"v_mov_b32 v56, {LFLAG}", f"ds_read_b128 {vr(52)}, v56") + pre
    pre += II("s_waitcnt lgkmcnt(0)", "v_or3_b32 v52, v52, v53, v54", "v_or_b32 v52, v52, v55", "s_nop 0", "v_readfirstlane_b32 s50, v52", "s_nop 3",
              f"s_andn2_b32 s50, s50, {S_SAFE}", "s_cmp_lg_u32 s50, 0", "s_cbranch_scc1 L_restart")
    seq = pre + S.flat()
    tail = II("s_nop 7")
    for cp, (cv, (spre, st), hook) in enumerate(tile_epilogue(acc2, 8, 0)):
        tail += cv + spre + hook + [st]
    if OPT['own']:
        tail += II("s_branch L_ownx_8") + OWN_BLK.pop(8) + II("L_ownx_8:")
    if OPT['stamps'] and OPT.get('opst'): tail += stamp("st_iss")
    if OPT['fused']:
        fb = I(f"buffer_store_dword v37, v36, {SRD_F}, 0 offen offset:512 sc1"); fb.tag = "fl"
        fc = I(f"buffer_store_dword v37, v36, {SRD_F}, 0 offen offset:1024 sc1"); fc.tag = "fl"
        tail += [VmNeed("poll"), fb, VmNeed("st8"), fc] if OPT['early'] else [VmNeed("st8"), fa, fb, fc]
    seq, q = vm_waits(seq + tail, queue)
    seq, pend = lgkm_waits(seq)
    seq, n = hazards(seq)
    if OPT['verbose']: print(S.report("out_proj"), "nops", n)
    L += seq
    return L, q

SPIN = 1 << 22
def reduce_phase_groups():
    L = []; A = lambda *x: L.extend(II(*x))
    DAT = lambda g, tt, k: 64 + ((g * 2 + tt) * 4 + k) * 4
    D8 = lambda k: 192 + 4 * k
    ACC = lambda g, tt: [208, 216, 224, 232, 240, 248, 2, 10][g * 2 + tt]
    A8 = 18
    T0, T1 = 26, 28
    V_POLL, V_FL, V_L16, V_OUT = 46, 47, 32, 33
    A(f"v_lshrrev_b32 v30, 4, {V_LANE}", f"v_and_b32 v31, 15, {V_LANE}", f"v_lshlrev_b32 v{V_L16}, 4, {V_LANE}",
      f"v_lshlrev_b32 v{V_OUT}, 11, v31", f"v_lshl_add_u32 v{V_OUT}, v30, 4, v{V_OUT}")
    A(f"s_mul_i32 s32, {S_B}, {144*2048}", f"s_lshl_b32 s50, {S_BR}, 10", "s_add_u32 s32, s32, s50", f"s_lshl_b32 s50, {S_HP}, 6", "s_add_u32 s32, s32, s50")
    A(f"s_mul_i32 s33, {S_HP}, {9*16384}")
    A(f"s_lshl_b32 s50, {S_W}, 14", "s_add_u32 s34, s33, s50", "s_add_u32 s35, s34, 65536",
      f"s_add_u32 s36, s33, {8*16384}", f"s_lshl_b32 s50, {S_W}, 12", "s_add_u32 s36, s36, s50",
      f"s_lshl_b32 s41, {S_W}, 2")
    A("s_mov_b32 s37, 0", "s_mov_b32 s38, 0", f"s_mov_b32 s53, {SPIN}")
    if OPT['own']:
        A(f"s_lshr_b32 s46, {S_HP}, 2", f"s_and_b32 s47, {S_HP}, 3", f"s_lshl_b32 s50, {S_W}, 10", f"s_add_u32 s50, s50, {OWNB}", f"v_add_u32 v44, s50, v{V_L16}")
        if not OPT['latebar']:
            A("s_waitcnt lgkmcnt(0)", "s_barrier", "ds_read_b128 v[36:39], v44", "ds_read_b128 v[40:43], v44 offset:4096")
    def unpack_add(acc, src, first):
        out = []
        for k in range(4):
            if first:
                out += [f"v_lshlrev_b32 v{acc+2*k}, 16, v{src+k}", f"v_and_b32 v{acc+2*k+1}, 0xffff0000, v{src+k}"]
            else:
                t = (T0, T1)[k & 1]
                out += [f"v_lshlrev_b32 v{t}, 16, v{src+k}", f"v_and_b32 v{t+1}, 0xffff0000, v{src+k}",
                        f"v_pk_add_f32 v[{acc+2*k}:{acc+2*k+1}], v[{acc+2*k}:{acc+2*k+1}], v[{t}:{t+1}]"]
        return out
    items = [(tt, g) for tt in range(2) for g in range(4)] + [(2, None)]
    if OPT['early']: A("s_branch L_red_first")
    A("L_red_loop:")
    A("s_cmp_eq_u32 s37, 0x1ff", "s_cbranch_scc1 L_red_nopoll")
    A(f"buffer_load_dword v{V_FL}, v{V_POLL}, {SRD_F}, 0 offen sc1")
    A("L_red_nopoll:", "s_waitcnt vmcnt(0)")
    A("s_andn2_b32 s42, s37, s38")
    for i, (tt, g) in enumerate(items):
        if tt < 2 and g == 0: A(f"s_and_b32 s50, s42, {hex(15 << (4 * tt))}", f"s_cbranch_scc0 L_red_nosumc{tt}")
        A(f"s_bitcmp1_b32 s42, {i}", f"s_cbranch_scc0 L_red_nosum{i}")
        for k in range(4):
            A(unpack_add(ACC(g, tt), DAT(g, tt, k), k == 0) if tt < 2 else unpack_add(A8, D8(k), k == 0))
        A(f"L_red_nosum{i}:")
        if tt < 2 and g == 3: A(f"L_red_nosumc{tt}:")
    A("s_mov_b32 s38, s37", "s_cmp_eq_u32 s38, 0x1ff", "s_cbranch_scc1 L_red_done")
    A("L_red_first:")
    A(f"v_cmp_eq_u32 vcc, 1, v{V_FL}", "s_nop 3", "s_mov_b32 s39, vcc_lo", "s_lshr_b32 s43, vcc_hi, s41", "s_and_b32 s43, s43, 15", "s_mov_b32 s40, s37")
    A("s_sub_u32 s53, s53, 1", "s_cmp_eq_u32 s53, 0", "s_cselect_b32 s39, -1, s39", "s_cselect_b32 s43, 15, s43", "s_cselect_b32 s53, 1, s53")
    for i, (tt, g) in enumerate(items):
        if tt < 2 and g == 0:
            A(f"s_bfe_u32 s50, s37, {hex((4 << 16) | (4 * tt))}", "s_cmp_eq_u32 s50, 15", f"s_cbranch_scc1 L_red_noissc{tt}",
              f"s_bfe_u32 s50, s39, {hex((16 << 16) | (16 * tt))}", "s_cmp_eq_u32 s50, 0", f"s_cbranch_scc1 L_red_noissc{tt}")
        A(f"s_bitcmp1_b32 s37, {i}", f"s_cbranch_scc1 L_red_noiss{i}")
        if tt < 2:
            A(f"s_bfe_u32 s50, s39, {hex((4 << 16) | (16 * tt + 4 * g))}", "s_cmp_eq_u32 s50, 15")
        else:
            A("s_cmp_eq_u32 s43, 15")
        A(f"s_cbranch_scc0 L_red_noiss{i}")
        if tt < 2: A(f"s_add_u32 s50, s{34+tt}, {g*4096}")
        if OPT['own']:
            A(f"s_cmp_eq_u32 s46, {g}" if tt < 2 else f"s_cmp_eq_u32 s46, {S_W}", "s_cselect_b32 s44, s47, 7")
        for k in range(4):
            o = f" offset:{k*1024}" if k else ""
            va = V_L16
            if OPT['own']:
                A(f"s_cmp_eq_u32 s44, {k}", "s_cselect_b32 s45, 0x40000000, 0", f"v_or_b32 v45, s45, v{V_L16}"); va = 45
            if tt < 2: A(f"buffer_load_dwordx4 {vr(DAT(g, tt, k))}, v{va}, {SRD_P}, s50 offen{o} {OPT['rld']}")
            else: A(f"buffer_load_dwordx4 {vr(D8(k))}, v{va}, {SRD_P}, s36 offen{o} {OPT['rld']}")
        A(f"s_bitset1_b32 s37, {i}", f"L_red_noiss{i}:")
        if tt < 2 and g == 3: A(f"L_red_noissc{tt}:")
    if OPT.get('rdst'):
        A("s_cmp_eq_u32 s40, 0", "s_cbranch_scc0 L_rs1", "s_cmp_lg_u32 s37, 0", "s_cbranch_scc0 L_rs1", stamp("r_first"), "L_rs1:")
        A("s_cmp_eq_u32 s37, 0x1ff", "s_cbranch_scc0 L_rs2", stamp("r_alliss"), "L_rs2:")
    A("s_cmp_lg_u32 s37, s40", "s_cbranch_scc1 L_red_loop", f"s_sleep {OPT['psleep']}", "s_branch L_red_loop")
    A("L_red_done:")
    if OPT.get('rdst'): A(stamp("r_summed"))
    A(f"s_lshl_b32 s50, {S_W}, 11", f"v_lshlrev_b32 v30, 5, {V_LANE}", f"v_add_u32 v30, {WOB}, v30", "v_add_u32 v31, s50, v30",
      f"ds_write_b128 v31, {vr(A8)}", f"ds_write_b128 v31, {vr(A8+4)} offset:16")
    late = OPT['own'] and OPT['latebar']
    for tt in range(2):
        a0 = ACC(0, tt)
        for g in range(1, 4):
            for k in range(4): A(f"v_pk_add_f32 v[{a0+2*k}:{a0+2*k+1}], v[{a0+2*k}:{a0+2*k+1}], v[{ACC(g,tt)+2*k}:{ACC(g,tt)+2*k+1}]")
    if late:
        A("s_waitcnt lgkmcnt(0)", "s_barrier", "ds_read_b128 v[36:39], v44", "ds_read_b128 v[40:43], v44 offset:4096")
    for tt in range(2):
        a0 = ACC(0, tt)
        if OPT['own']: A(("s_waitcnt lgkmcnt(1)" if late else "s_waitcnt lgkmcnt(2)") if tt == 0 else "s_waitcnt lgkmcnt(0)" if late else "s_nop 0", unpack_add(a0, 36 + 4 * tt, False))
        for k in range(4): A(f"v_cvt_pk_bf16_f32 v{64+4*tt+k}, v{a0+2*k}, v{a0+2*k+1}")
        A(f"s_lshl_b32 s50, {S_W}, 15", f"s_add_u32 s50, s50, s32", f"s_add_u32 s50, s50, {tt*4*32768}")
        A(f"buffer_store_dwordx4 {vr(64+4*tt)}, v{V_OUT}, {SRD_O}, s50 offen {OPT['ost']}")
    if not late: A("s_waitcnt lgkmcnt(0)", "s_barrier")
    A(f"s_cmp_eq_u32 {S_W}, 0", "s_cbranch_scc0 L_red_end")
    for g in range(4):
        A(f"ds_read_b128 {vr(80+8*g)}, v30 offset:{g*2048}", f"ds_read_b128 {vr(84+8*g)}, v30 offset:{g*2048+16}")
    if OPT['own']: A("ds_read_b128 v[36:39], v44 offset:8192")
    A("s_waitcnt lgkmcnt(0)")
    for g in range(1, 4):
        for k in range(4): A(f"v_pk_add_f32 v[{80+2*k}:{81+2*k}], v[{80+2*k}:{81+2*k}], v[{80+8*g+2*k}:{81+8*g+2*k}]")
    if OPT['own']: A(unpack_add(80, 36, False))
    for k in range(4): A(f"v_cvt_pk_bf16_f32 v{72+k}, v{80+2*k}, v{81+2*k}")
    A(f"s_add_u32 s50, s32, {8*32768}")
    A(f"buffer_store_dwordx4 {vr(72)}, v{V_OUT}, {SRD_O}, s50 offen {OPT['ost']}")
    A("L_red_end:")
    L2, n = hazards(L)
    return L2

def reduce_phase():
    if not OPT['linred']: return reduce_phase_groups()
    assert OPT['own'] and OPT['early']
    L = []; A = lambda *x: L.extend(II(*x))
    DA = lambda p: 64 + 4 * p
    DB = lambda p: 128 + 4 * p
    D8 = lambda k: 192 + 4 * k
    ACA, ACB, A8 = 208, 216, 224
    T0, T1 = 26, 28
    V_POLL, V_FL, V_L16, V_OUT = 46, 47, 32, 33
    A(f"v_lshrrev_b32 v30, 4, {V_LANE}", f"v_and_b32 v31, 15, {V_LANE}", f"v_lshlrev_b32 v{V_L16}, 4, {V_LANE}",
      f"v_lshlrev_b32 v{V_OUT}, 11, v31", f"v_lshl_add_u32 v{V_OUT}, v30, 4, v{V_OUT}")
    A(f"s_mul_i32 s33, {S_HP}, {9*16384}")
    A(f"s_lshl_b32 s50, {S_W}, 14", "s_add_u32 s34, s33, s50", "s_add_u32 s35, s34, 65536",
      f"s_add_u32 s36, s33, {8*16384}", f"s_lshl_b32 s50, {S_W}, 12", "s_add_u32 s36, s36, s50",
      f"s_lshl_b32 s41, {S_W}, 2", f"s_mov_b32 s53, {SPIN}")
    def loads(base, dst):
        for p in range(16):
            if p % 4 == 0: A(f"s_add_u32 s50, {base}, {p*1024}")
            o = f" offset:{(p % 4)*1024}" if p % 4 else ""
            A(f"s_cmp_eq_u32 {S_HP}, {p}", f"s_cbranch_scc1 L_rl_{base}_{p}",
              f"buffer_load_dwordx4 {vr(dst(p))}, v{V_L16}, {SRD_P}, s50 offen{o} {OPT['rld']}", f"L_rl_{base}_{p}:")
    def poll(name, test):
        A(f"L_poll_{name}:", f"v_cmp_eq_u32 vcc, 1, v{V_FL}", "s_nop 3")
        A(test)
        A(f"s_cbranch_scc1 L_poll_{name}_ok", "s_sub_u32 s53, s53, 1", "s_cmp_eq_u32 s53, 0", f"s_cbranch_scc1 L_poll_{name}_ok",
          f"s_sleep {OPT['psleep']}", f"buffer_load_dword v{V_FL}, v{V_POLL}, {SRD_F}, 0 offen sc1", "s_waitcnt vmcnt(0)", f"s_branch L_poll_{name}",
          f"L_poll_{name}_ok:")
    def unpack_add(acc, src):
        out = []
        for k in range(4):
            t = (T0, T1)[k & 1]
            out += [f"v_lshlrev_b32 v{t}, 16, v{src+k}", f"v_and_b32 v{t+1}, s60, v{src+k}",
                    f"v_pk_add_f32 v[{acc+2*k}:{acc+2*k+1}], v[{acc+2*k}:{acc+2*k+1}], v[{t}:{t+1}]"]
        return out
    A("s_mov_b32 s60, 0xffff0000")
    one = OPT['onepoll']
    if one:
        A(f"s_cmp_eq_u32 {S_W}, 0", "s_cbranch_scc0 L_poll_a_skip")
    poll("a", ["s_and_b32 s50, vcc_lo, 0xffff", "s_cmp_eq_u32 s50, 0xffff"])
    if one:
        A("L_poll_a_skip:", "s_waitcnt lgkmcnt(0)", "s_barrier")
    loads("s34", DA)
    A(f"s_lshl_b32 s50, {S_W}, 10", f"s_add_u32 s50, s50, {OWNB}", f"v_add_u32 v44, s50, v{V_L16}")
    if not one: A("s_waitcnt lgkmcnt(0)", "s_barrier")
    A("ds_read_b128 v[36:39], v44", "ds_read_b128 v[40:43], v44 offset:4096")
    for r in range(ACA, ACA + 24): A(f"v_mov_b32 v{r}, 0")
    A(f"s_mul_i32 s32, {S_B}, {144*2048}", f"s_lshl_b32 s50, {S_BR}, 10", "s_add_u32 s32, s32, s50", f"s_lshl_b32 s50, {S_HP}, 6", "s_add_u32 s32, s32, s50")
    if one:
        A(f"s_cmp_eq_u32 {S_W}, 0", "s_cbranch_scc0 L_poll_b_skip")
        A(f"buffer_load_dword v{V_FL}, v{V_POLL}, {SRD_F}, 0 offen sc1", "s_waitcnt vmcnt(0)")
        poll("b", ["s_lshr_b32 s50, vcc_lo, 16", "s_and_b32 s51, vcc_hi, 0xffff", "s_lshl_b32 s51, s51, 16", "s_or_b32 s50, s50, s51", "s_cmp_eq_u32 s50, -1"])
        A("L_poll_b_skip:", "s_waitcnt vmcnt(0)", "s_barrier")
    else:
        A(f"buffer_load_dword v{V_FL}, v{V_POLL}, {SRD_F}, 0 offen sc1", "s_waitcnt vmcnt(0)")
        poll("b", ["s_lshr_b32 s50, vcc_lo, 16", "s_lshr_b32 s51, vcc_hi, s41", "s_and_b32 s51, s51, 15", "s_lshl_b32 s51, s51, 16", "s_or_b32 s50, s50, s51",
                   "s_cmp_eq_u32 s50, 0xfffff"])
    loads("s35", DB)
    for k in range(4):
        o = f" offset:{k*1024}" if k else ""
        A(f"s_add_u32 s50, s41, {k}", f"s_cmp_eq_u32 {S_HP}, s50", f"s_cbranch_scc1 L_rl8_{k}",
          f"buffer_load_dwordx4 {vr(D8(k))}, v{V_L16}, {SRD_P}, s36 offen{o} {OPT['rld']}", f"L_rl8_{k}:")
    for p in range(16):
        A(f"s_cmp_eq_u32 {S_HP}, {p}", f"s_cbranch_scc1 L_rs_a{p}", unpack_add(ACA, DA(p)), f"L_rs_a{p}:")
    A("s_waitcnt lgkmcnt(0)", unpack_add(ACA, 36))
    for k in range(4): A(f"v_cvt_pk_bf16_f32 v{64+k}, v{ACA+2*k}, v{ACA+2*k+1}")
    A(f"s_lshl_b32 s50, {S_W}, 15", "s_add_u32 s37, s50, s32")
    A(f"buffer_store_dwordx4 {vr(64)}, v{V_OUT}, {SRD_O}, s37 offen {OPT['ost']}")
    for p in range(16):
        A(f"s_waitcnt vmcnt({max(15 - p + 4 + 1 - 2, 0)})", f"s_cmp_eq_u32 {S_HP}, {p}", f"s_cbranch_scc1 L_rs_b{p}", unpack_add(ACB, DB(p)), f"L_rs_b{p}:")
    A(unpack_add(ACB, 40))
    for k in range(4): A(f"v_cvt_pk_bf16_f32 v{68+k}, v{ACB+2*k}, v{ACB+2*k+1}")
    A(f"s_add_u32 s37, s37, {4*32768}")
    A("s_waitcnt vmcnt(1)")
    for k in range(4):
        A(f"s_add_u32 s50, s41, {k}", f"s_cmp_eq_u32 {S_HP}, s50", f"s_cbranch_scc1 L_rs_c{k}", unpack_add(A8, D8(k)), f"L_rs_c{k}:")
    A(f"buffer_store_dwordx4 {vr(68)}, v{V_OUT}, {SRD_O}, s37 offen {OPT['ost']}")
    A(f"s_lshl_b32 s50, {S_W}, 11", f"v_lshlrev_b32 v30, 5, {V_LANE}", f"v_add_u32 v30, {WOB}, v30", "v_add_u32 v31, s50, v30",
      f"ds_write_b128 v31, {vr(A8)}", f"ds_write_b128 v31, {vr(A8+4)} offset:16")
    A("s_waitcnt lgkmcnt(0)", "s_barrier", f"s_cmp_eq_u32 {S_W}, 0", "s_cbranch_scc0 L_red_end")
    for g in range(4):
        A(f"ds_read_b128 {vr(80+8*g)}, v30 offset:{g*2048}", f"ds_read_b128 {vr(84+8*g)}, v30 offset:{g*2048+16}")
    A("ds_read_b128 v[36:39], v44 offset:8192")
    A("s_waitcnt lgkmcnt(0)")
    for g in range(1, 4):
        for k in range(4): A(f"v_pk_add_f32 v[{80+2*k}:{81+2*k}], v[{80+2*k}:{81+2*k}], v[{80+8*g+2*k}:{81+8*g+2*k}]")
    A(unpack_add(80, 36))
    for k in range(4): A(f"v_cvt_pk_bf16_f32 v{72+k}, v{80+2*k}, v{81+2*k}")
    A(f"s_add_u32 s50, s32, {8*32768}")
    A(f"buffer_store_dwordx4 {vr(72)}, v{V_OUT}, {SRD_O}, s50 offen {OPT['ost']}")
    A("L_red_end:")
    L2, n = hazards(L)
    return L2

def dump_regs(regs, slot, kind='v'):
    L = []; A = lambda *x: L.extend(II(*x))
    A("s_add_u32 s66, s58, 0x4000000", "s_addc_u32 s67, s59, 0",
      "s_lshl_b32 s50, s2, 2", f"s_add_u32 s50, s50, {S_W}", "s_lshl_b32 s50, s50, 16",
      f"v_lshlrev_b32 v253, 2, {V_LANE}", "v_add_u32 v253, s50, v253")
    for i, r in enumerate(regs):
        if kind == 'a':
            A(f"v_accvgpr_read_b32 v254, a{r}", "s_nop 0")
            A(f"global_store_dword v253, v254, s[66:67]")
        else:
            A(f"global_store_dword v253, v{r}, s[66:67]")
        A("v_add_u32 v253, 256, v253")
    A("s_waitcnt vmcnt(0)")
    return L

def main_kernel():
    L = []
    L += setup()
    L += stamp("start")
    L += phase_q()
    L += stamp("q_done")
    if OPT['dump'] == 'q':
        L += II("s_nop 7") + dump_regs([qfrag(t, s) + k for t in range(5) for s in range(4) for k in range(4)], 0)
        L += II("s_waitcnt vmcnt(0)", "s_endpgm")
    L += attention()
    if OPT['dump'] == 'o':
        L += II("s_nop 7") + dump_regs([oacc(dt, t) + k for t in range(5) for dt in range(8) for k in range(4)] + [lacc(t) for t in range(5)], 0, 'a')
        L += II("s_waitcnt vmcnt(0)", "s_endpgm")
    e, q = o_epilogue(); L += e
    L += stamp("o_done")
    if OPT.get('stop') == 'o':
        L += II("s_waitcnt vmcnt(0)") + stamp("end") + stamp_dump() + II("L_main_end:", "s_endpgm") + safe_paths()
        return L
    e, q = out_proj(q); L += e
    L += stamp("op_done")
    if OPT['fused']:
        L += reduce_phase()
        L += stamp("red_done")
    L += tr_dump()
    if not OPT.get('noendwait') or OPT['stamps']: L += II("s_waitcnt vmcnt(0)")
    L += stamp("end")
    L += stamp_dump()
    L += II("L_main_end:", "s_endpgm")
    L += OWN_OOL + ATT_OOL
    L += safe_paths()
    return L

def reduce_kernel():
    L = []; A = lambda *x: L.extend(II(*x))
    A("s_cmp_ge_u32 s2, 256", "s_cbranch_scc1 L_red_end")
    A("s_load_dwordx2 s[4:5], s[0:1], 80", "s_load_dwordx2 s[6:7], s[0:1], 96")
    A("v_lshrrev_b32 v2, 6, v0", "v_and_b32 v1, 63, v0", "s_nop 0", "v_readfirstlane_b32 s12, v2", "s_nop 3")
    A("s_waitcnt lgkmcnt(0)")
    A("s_mul_i32 s13, s2, 9", "s_add_u32 s13, s13, s12", "s_lshl_b32 s13, s13, 14")
    A("s_add_u32 s16, s6, s13", "s_addc_u32 s17, s7, 0", "s_and_b32 s17, s17, 0xffff", "s_mov_b32 s18, 16384", "s_mov_b32 s19, 0x20000")
    A("v_lshlrev_b32 v2, 4, v1")
    for p in range(16):
        A(f"buffer_load_dwordx4 v[{8+4*p}:{11+4*p}], v2, s[16:19], 0 offen offset:{(p%4)*1024}" if p < 4 else
          f"buffer_load_dwordx4 v[{8+4*p}:{11+4*p}], v2, s[16:19], s{20+p//4} offen offset:{(p%4)*1024}")
        if p == 3: A("s_mov_b32 s21, 4096", "s_mov_b32 s22, 8192", "s_mov_b32 s23, 12288")
    A("s_lshr_b32 s14, s2, 4", "s_and_b32 s15, s2, 15",
      "s_and_b32 s24, s14, 7", "s_lshr_b32 s25, s14, 3",
      "s_mul_i32 s24, s24, 144", "s_lshl_b32 s26, s12, 4", "s_add_u32 s24, s24, s26", "s_lshl_b32 s24, s24, 11",
      "s_lshl_b32 s25, s25, 10", "s_lshl_b32 s15, s15, 6", "s_add_u32 s24, s24, s25", "s_add_u32 s24, s24, s15")
    A("v_and_b32 v3, 15, v1", "v_lshlrev_b32 v3, 11, v3", "v_lshrrev_b32 v4, 4, v1", "v_lshl_add_u32 v3, v4, 4, v3")
    A("s_mov_b32 s28, s4", "s_and_b32 s29, s5, 0xffff", "s_mov_b32 s30, 2359296", "s_mov_b32 s31, 0x20000")
    acc = 80
    for p in range(16):
        A(f"s_waitcnt vmcnt({15-p})")
        for k in range(4):
            r = 8 + 4 * p + k
            if p == 0:
                A(f"v_lshlrev_b32 v{acc+2*k}, 16, v{r}", f"v_and_b32 v{acc+2*k+1}, 0xffff0000, v{r}")
            else:
                A(f"v_lshlrev_b32 v6, 16, v{r}", f"v_and_b32 v7, 0xffff0000, v{r}",
                  f"v_add_f32 v{acc+2*k}, v{acc+2*k}, v6", f"v_add_f32 v{acc+2*k+1}, v{acc+2*k+1}, v7")
    for k in range(4): A(f"v_cvt_pk_bf16_f32 v{8+k}, v{acc+2*k}, v{acc+2*k+1}")
    A("buffer_store_dwordx4 v[8:11], v3, s[28:31], s24 offen")
    A("s_waitcnt vmcnt(0)")
    A("L_red_end:", "s_endpgm")
    return L

def kernel_text(name, body, vgpr, accum, sgpr=102):
    return f""".globl {name}
.p2align 8
.type {name},@function
{name}:
{text(body)}
"""
def kd(name, nfv, accum, sgpr=102):
    return f""".amdhsa_kernel {name}
  .amdhsa_next_free_vgpr {nfv}
  .amdhsa_next_free_sgpr {sgpr}
  .amdhsa_accum_offset {accum}
  .amdhsa_group_segment_fixed_size 0
  .amdhsa_kernarg_size 104
  .amdhsa_user_sgpr_count 2
  .amdhsa_user_sgpr_kernarg_segment_ptr 1
  .amdhsa_system_sgpr_workgroup_id_x 1
.end_amdhsa_kernel
"""

def build():
    stamp_id[0] = 0; STAMPS.clear()
    k1 = NAME + "_kernel"; k2 = "reduce_heads_kernel"
    m = main_kernel()
    hdr = """; Fused  x@wq -> softmax(q k^T / sqrt(128)) v -> @wo  for both branches, one launch, 256 workgroups x 4 waves.
"""
    if OPT['fused']:
        hdr += f"; @launch grid=(256,1,1) block=(256,1,1) lds=163840\n"
    else:
        hdr += f"; @launch kernel={k1} grid=(256,1,1) block=(256,1,1) lds=163840\n"
        hdr += f"; @launch kernel={k2} grid=(256,1,1) block=(576,1,1) lds=0\n"
    s = hdr + '.amdgcn_target "amdgcn-amd-amdhsa--gfx950"\n.text\n'
    s += kernel_text(k1, m, 512, 256)
    if not OPT['fused']: s += kernel_text(k2, reduce_kernel(), 96, 96)
    s += '.section .rodata,"a"\n.p2align 6\n' + kd(k1, 512, 256)
    if not OPT['fused']: s += ".p2align 6\n" + kd(k2, 96, 96, 40)
    return s

if __name__ == "__main__":
    ap = argparse.ArgumentParser()
    ap.add_argument("-o", default="cdna_kernels/" + NAME + ".s")
    ap.add_argument("--dump"); ap.add_argument("--stamps", action="store_true"); ap.add_argument("-v", action="store_true")
    ap.add_argument("--opt", action="append", default=[])
    a = ap.parse_args()
    OPT['dump'] = a.dump; OPT['stamps'] = a.stamps; OPT['verbose'] = a.v
    for o in a.opt:
        k, v = o.split("=", 1)
        OPT[k] = {'True': True, 'False': False}.get(v, int(v) if v.lstrip('-').isdigit() else v)
    s = build()
    open(a.o, "w").write(s)
    if a.stamps:
        import json; json.dump(STAMPS, open(a.o + ".stamps.json", "w"))
    print("wrote", a.o, len(s), "bytes")
```

```python
import sys, argparse
from ir import *

NAME = "concat_heads__gqa_block_cached__mha_block_cached__near_ridge"
OPT = dict(pfat=12, pfexact=True, onepoll=True, linred=True, latebar=False, wsoff=0, own=True, early=True, l2pf=False, np1=0, pfw=1, pfkv=0, pfkvnt=False, psleep=8, ost='nt', noendwait=True, lthr=0, start2=True, pf=2, pfnt=False, fused=True, rld='sc1', rot=True, wnt=False, xnt=False, wont=False, bursts=(3, 6, 9), dump=None, stamps=False, stop=None, kvnt=True, pst="sc1", verbose=False)

VB = 0
KB = 65536
WB = 16384
XB = 114688
WOA = 131072
WOB = 98304
OB = 0
def kphys(k): return ((k + 1) & 3) * 16384
def vphys(k): return (k & 3) * 16384

SRD_X, SRD_WQ, SRD_K, SRD_V, SRD_WO, SRD_P = "s[4:7]", "s[8:11]", "s[12:15]", "s[16:19]", "s[20:23]", "s[24:27]"
SRD_F, SRD_D, SRD_O = "s[68:71]", "s[72:75]", "s[80:83]"
S_W, S_U, S_QH, S_CNT = "s28", "s29", "s30", "s31"
S_SOFFX, S_SOFFW0, S_UNUSED, S_MW, S_MX, S_DSLOT, S_RSLOT, S_DW, S_DX = "s32", "s33", "s34", "s35", "s36", "s37", "s38", "s39", "s40"
S_BW, S_BX = "s41", "s42"
S_SOFFK, S_SOFFV, S_MK, S_MV = "s45", "s46", "s47", "s48"
S_T0, S_T1, S_T2, S_T3 = "s50", "s51", "s52", "s53"
S_HP, S_B, S_BR, S_CL = "s54", "s55", "s56", "s57"
S_WS = "s[58:59]"
S_SOFFP = "s60"
S_STAMP = "s[62:63]"
S_FLAG = "s64"
S_SAFE = "s61"
S_BX3 = "s38"
LTHR = 0x4b800000
S_KS, S_X0, S_W0 = "s88", "s89", "s87"
S_TAU, S_TB, S_TQ, S_T4N, S_TMASK, S_TSH, S_TM, S_TS = "s78", "s79", "s43", "s44", "s34", "s49", "s61", "s95"

V_LANE = "v1"
V_WQR = [2, 3, 4, 5]; V_XR = 6; V_XR4 = 14; V_OW4 = 50; V_OWB = 51
V_WQD = [7, 8, 9, 10]; V_XD = [11, 12, 13]; V_TG, V_TI, V_TB, V_TV = 14, 15, 62, 63
V_KD = [16, 17, 18, 19]; V_VD = [20, 21]
V_KR = [22, 23, 24, 25]; V_VR = [26 + i for i in range(8)]
V_WOD = [34, 35, 36, 37]; V_WOR = [38, 39, 40, 41]
V_OW, V_OR, V_OR8, V_PS = 42, 43, 44, 45
VT = [46 + i for i in range(18)]
RB = 64
def grp(t, s): return RB + (t * 4 + s) * 8
def qacc(dt, t): return grp(t, dt >> 1) + 4 * (dt & 1)
def qfrag(t, s): return grp(t, s)
def Sreg(kt, t): return grp(t, kt) + 4
def Preg(par, t): return grp(t, 2 + par) + 4
def cinit(t): return 224 + 4 * t
V_C0, V_C1 = 244, 245
def vr(b, n=4): return f"v[{b}:{b+n-1}]"
def ar(b, n=4): return f"a[{b}:{b+n-1}]"
def oacc(dt, t): return t * 32 + dt * 4
def lacc(t): return 160 + 4 * t
A_ONES = 180
def abuf(i): return 184 + 4 * i
def bbuf(t): return [48, 52, 56, 60, 248][t]
def kbuf(kt, s): return 216 + 4 * (kt * 4 + s)

MF = "v_mfma_f32_16x16x32_bf16"
def mfma(d, a, b, c): return I(f"{MF} {d}, {a}, {b}, {c}")
SCALE = (128 ** -0.5) * 1.4426950408889634
import struct
def f2u(x): return struct.unpack("<I", struct.pack("<f", x))[0]

def NT(): return " nt" if OPT['kvnt'] else ""

def CNTOFF(): return 128 if OPT.get('dbgst') is not None else 0
stamp_id = [0]
def stamp(name):
    if not OPT['stamps']: return []
    i = stamp_id[0]; stamp_id[0] += 1
    STAMPS.append(name)
    return II("s_memrealtime s[66:67]", "s_memtime s[64:65]", "s_waitcnt lgkmcnt(0)",
              f"v_writelane_b32 v0, s66, {i}", f"v_writelane_b32 v0, s64, {32 + i}")
def stamp_dump():
    if not OPT['stamps']: return []
    if OPT.get('dbgst') is not None:
        return II(f"s_cmp_eq_u32 s2, {OPT['dbgst']}", "s_cbranch_scc0 L_nodbg", f"s_cmp_eq_u32 {S_W}, 0", "s_cbranch_scc0 L_nodbg",
                  "v_readlane_b32 s50, v0, 0", "s_nop 3", "v_subrev_u32 v0, s50, v0",
                  f"v_lshlrev_b32 v1, 2, {V_LANE}", "v_cmp_gt_u32 vcc, 16, v1", f"v_lshrrev_b32 v2, 2, v1", "v_mov_b32 v3, 0x1000", "v_cmp_gt_u32 vcc, 16, v2", "s_nop 1",
                  "v_cndmask_b32 v1, v3, v1, vcc", f"buffer_store_dword v0, v1, {SRD_D}, 0 offen", "L_nodbg:")
    return II("s_add_u32 s62, s58, 0x8000000", "s_addc_u32 s63, s59, 0", "s_lshl_b32 s65, s2, 2", f"s_add_u32 s65, s65, {S_W}", "s_lshl_b32 s65, s65, 8",
              f"v_lshlrev_b32 v1, 2, {V_LANE}", "v_add_u32 v1, s65, v1", "global_store_dword v1, v0, s[62:63]")
STAMPS = []

def setup():
    L = []
    A = lambda *x: L.extend(II(*x))
    A("s_cmp_ge_u32 s2, 256", "s_cbranch_scc1 L_main_end")
    if OPT['stamps'] and OPT.get('t0st'): A("s_memrealtime s[100:101]")
    A("s_load_dwordx8 s[68:75], s[0:1], 0", "s_load_dwordx2 s[76:77], s[0:1], 32",
      "s_load_dwordx8 s[80:87], s[0:1], 40", "s_load_dwordx2 s[88:89], s[0:1], 72",
      f"s_load_dwordx2 {S_WS}, s[0:1], 96", "s_load_dwordx4 s[96:99], s[0:1], 80")
    A("s_and_b32 s50, s2, 7", "s_lshr_b32 s51, s2, 3",
      f"s_lshr_b32 {S_BR}, s50, 2",
      "s_and_b32 s52, s50, 3", "s_lshl_b32 s52, s52, 2", "s_and_b32 s53, s51, 3", f"s_add_u32 {S_HP}, s52, s53",
      f"s_lshr_b32 {S_B}, s51, 2",
      f"s_lshl_b32 s52, {S_BR}, 3", f"s_add_u32 {S_CL}, s52, {S_B}")
    A("v_lshrrev_b32 v46, 6, v0", f"v_and_b32 {V_LANE}, 63, v0", "s_nop 0", f"v_readfirstlane_b32 {S_W}, v46", "s_nop 3")
    A(f"s_lshr_b32 {S_U}, {S_W}, 1", f"s_and_b32 {S_QH}, {S_W}, 1", f"s_mov_b32 {S_SAFE}, 0")
    A(lane_consts_q())
    if OPT['stamps'] and OPT.get('t0st'):
        A("s_memrealtime s[66:67]")
    A("s_waitcnt lgkmcnt(0)")
    if OPT['stamps'] and OPT.get('t0st'):
        i0 = stamp_id[0]; stamp_id[0] += 2; STAMPS.extend(["entry", "consts_q"])
        A(f"v_writelane_b32 v0, s100, {i0}", f"v_writelane_b32 v0, s66, {i0+1}", f"v_writelane_b32 v0, s100, {32+i0}", f"v_writelane_b32 v0, s66, {33+i0}")
    A(f"s_cmp_eq_u32 {S_BR}, 1")
    for i in (0, 1, 6, 7): A(f"s_cselect_b32 s{68+i}, s{80+i}, s{68+i}")
    def srd(dst, lo, hi, off_expr_regs, nrec):
        A(f"s_add_u32 s{dst}, s{lo}, s50", f"s_addc_u32 s{dst+1}, s{hi}, 0", f"s_and_b32 s{dst+1}, s{dst+1}, 0xffff")
        A(nrec, f"s_mov_b32 s{dst+3}, 0x20000")
    A(f"s_mul_i32 s50, {S_B}, 147456"); srd(4, 68, 69, None, "s_mov_b32 s6, 147456")
    A(f"s_lshl_b32 s50, {S_HP}, 9"); srd(8, 74, 75, None, "s_sub_u32 s10, 4194304, s50")
    return L

def setup_b():
    L = []
    A = lambda *x: L.extend(II(*x))
    def srd(dst, lo, hi, off_expr_regs, nrec):
        A(f"s_add_u32 s{dst}, s{lo}, s50", f"s_addc_u32 s{dst+1}, s{hi}, 0", f"s_and_b32 s{dst+1}, s{dst+1}, 0xffff")
        A(nrec, f"s_mov_b32 s{dst+3}, 0x20000")
    A(f"s_cmp_eq_u32 {S_SAFE}, 1", "s_cbranch_scc1 L_setup_b_done")
    A(f"s_cmp_eq_u32 {S_BR}, 1")
    for i in (2, 3, 4, 5): A(f"s_cselect_b32 s{68+i}, s{80+i}, s{68+i}")
    A("s_cselect_b32 s76, s88, s76", "s_cselect_b32 s77, s89, s77")
    A(f"s_lshl_b32 s50, {S_B}, 5", f"s_lshl_b32 s51, {S_HP}, 1", "s_add_u32 s50, s50, s51", f"s_add_u32 s50, s50, {S_U}", "s_lshl_b32 s50, s50, 17")
    srd(12, 70, 71, None, "s_mov_b32 s14, 131072")
    srd(16, 72, 73, None, "s_mov_b32 s18, 131072")
    A(f"s_lshl_b32 s50, {S_HP}, 18", f"s_lshl_b32 s51, {S_W}, 8", "s_add_u32 s50, s50, s51")
    A("s_sub_u32 s52, 262144, s51")
    srd(20, 76, 77, None, "s_mov_b32 s22, s52")
    A(f"s_lshl_b32 s50, {S_HP}, 18"); srd(84, 76, 77, None, "s_mov_b32 s86, 262144")
    A(f"s_mul_i32 s50, {S_CL}, 2359296", f"s_add_u32 s50, s50, {hex(OPT['wsoff'])}"); srd(24, 58, 59, None, "s_mov_b32 s26, 2359296")
    if OPT['fused']:
        A(f"s_mul_i32 s50, {S_CL}, 4608", f"s_add_u32 s50, s50, {hex(OPT['wsoff'] + 0x2400000 + 0x40000)}"); srd(68, 58, 59, None, "s_mov_b32 s70, 4608")
        A("s_mov_b32 s72, s98", "s_and_b32 s73, s99, 0xffff", "s_mov_b32 s74, 256", "s_mov_b32 s75, 0x20000")
        A("s_mov_b32 s80, s96", "s_and_b32 s81, s97, 0xffff", "s_mov_b32 s82, 2359296", "s_mov_b32 s83, 0x20000")
        A(f"s_lshl_b32 s50, {S_W}, 7", f"s_lshl_b32 s51, {S_HP}, 2", "s_add_u32 s50, s50, s51",
          f"v_lshlrev_b32 v46, 9, {V_LANE}", "v_add_u32 v46, s50, v46", "v_mov_b32 v47, 0",
          f"buffer_store_dword v47, v46, {SRD_F}, 0 offen sc1" if not OPT.get('x_noclr') else "s_nop 0")
    A("L_setup_b_done:")
    return L

def lane_consts_q():
    L = []; A = lambda *x: L.extend(II(*x))
    l = V_LANE; t0, t1, t2, t3, t4, t5 = [f"v{x}" for x in VT[:6]]
    A(f"v_lshrrev_b32 {t0}, 4, {l}", f"v_bfe_u32 {t1}, {l}, 2, 2", f"v_and_b32 {t2}, 3, {l}", f"v_and_b32 {t3}, 15, {l}")
    w0, w1, w2, w3 = [f"v{x}" for x in V_WQD]
    A(f"v_lshrrev_b32 {t4}, 5, {l}", f"v_bfe_u32 {t5}, {l}, 4, 1",
      f"v_lshlrev_b32 {w0}, 2, {t4}", f"v_xor_b32 {w0}, {w0}, {t3}", f"v_lshlrev_b32 {w0}, 4, {w0}",
      f"v_lshl_add_u32 {w0}, {t5}, 8, {w0}", f"v_lshl_add_u32 {w0}, {t4}, 13, {w0}",
      f"v_xor_b32 {w1}, 0x80, {w0}", f"v_add_u32 {w1}, {2*8192 - 1024}, {w1}",
      f"v_add_u32 {w2}, {4*8192 - 2048}, {w0}", f"v_add_u32 {w3}, {4*8192 - 2048}, {w1}")
    A(f"v_lshlrev_b32 {t4}, 1, {t0}", f"v_mov_b32 {t5}, 0x78", f"v_lshrrev_b32 {t4}, {t4}, {t5}", f"v_and_b32 {t4}, 3, {t4}",
      f"v_xor_b32 {t4}, {t4}, {t2}", f"v_lshlrev_b32 {t4}, 4, {t4}",
      f"v_lshrrev_b32 {t5}, 2, {l}", f"v_lshl_add_u32 {t4}, {t5}, 10, {t4}")
    for j in range(2):
        A(f"v_add_u32 v{V_XD[j]}, {j*16384 - 1024*j}, {t4}")
    A(f"s_lshl_b32 s50, {S_W}, 1", "s_lshr_b32 s50, 0x78, s50", "s_and_b32 s50, s50, 3",
      f"v_xor_b32 {t4}, s50, {t2}", f"v_lshlrev_b32 {t4}, 4, {t4}", f"v_lshl_add_u32 {t4}, {t5}, 10, {t4}",
      f"s_lshl_b32 s50, {S_W}, 12", f"s_lshl_b32 s51, {S_W}, 15", "s_sub_u32 s50, s50, s51", f"s_add_u32 s50, s50, {128*1024}",
      f"v_add_u32 v{V_XD[2]}, s50, {t4}")
    return L

def lane_consts_q2():
    L = []; A = lambda *x: L.extend(II(*x))
    l = V_LANE; t0, t1, t2, t3, t4, t5 = [f"v{x}" for x in VT[:6]]
    A(f"v_lshrrev_b32 {t0}, 4, {l}", f"v_bfe_u32 {t1}, {l}, 2, 2", f"v_and_b32 {t2}, 3, {l}", f"v_and_b32 {t3}, 15, {l}")
    for n in range(4):
        A(f"v_add_u32 {t4}, {4*n}, {t0}", f"v_xor_b32 {t4}, {t4}, {t3}", f"v_lshlrev_b32 {t4}, 4, {t4}",
          f"v_lshl_add_u32 v{V_KD[n]}, {t0}, 8, {t4}")
    for n in range(2):
        A(f"v_add_u32 {t4}, {4*n}, {t0}", f"v_lshlrev_b32 {t4}, 1, {t4}", f"v_xor_b32 {t4}, {t4}, {t3}", f"v_lshlrev_b32 {t4}, 4, {t4}",
          f"v_lshl_add_u32 v{V_VD[n]}, {t0}, 8, {t4}")
    A(f"v_lshl_add_u32 {t4}, {t0}, 3, {t1}", f"v_lshlrev_b32 {t4}, 9, {t4}", f"v_lshl_add_u32 {t4}, {t2}, 4, {t4}",
      f"s_lshl_b32 s50, {S_U}, 8", f"s_add_u32 s50, s50, {WB}", f"v_add_u32 {t4}, s50, {t4}")
    A(f"s_lshl_b32 s51, {S_QH}, 1", f"v_xor_b32 {t1}, s51, {t1}")
    for s in range(4):
        A(f"v_xor_b32 {t5}, {s}, {t1}", f"v_lshl_add_u32 v{V_WQR[s]}, {t5}, 6, {t4}")
    A(f"v_lshrrev_b32 {t4}, 2, {t3}", f"v_lshlrev_b32 {t4}, 1, {t4}", f"v_mov_b32 {t5}, 0x78", f"v_lshrrev_b32 {t4}, {t4}, {t5}", f"v_and_b32 {t4}, 3, {t4}",
      f"v_xor_b32 {t4}, {t4}, {t0}", f"v_lshlrev_b32 {t4}, 4, {t4}", f"v_lshl_add_u32 {t4}, {t3}, 6, {t4}",
      f"s_mul_i32 s50, {S_QH}, 5120", f"s_add_u32 s50, s50, {XB}", f"v_add_u32 v{V_XR}, s50, {t4}", f"v_add_u32 v{V_XR4}, {XB + 4096}, {t4}")
    return L

def lane_consts_rest():
    L = []; A = lambda *x: L.extend(II(*x))
    l = V_LANE; t0, t1, t2, t3, t4, t5, t6 = [f"v{x}" for x in VT[:7]]
    A(f"v_lshrrev_b32 {t0}, 4, {l}", f"v_bfe_u32 {t1}, {l}, 2, 2", f"v_and_b32 {t2}, 3, {l}", f"v_and_b32 {t3}, 15, {l}")
    A(f"s_lshl_b32 s50, {S_U}, 13", f"s_add_u32 s51, s50, {KB}", f"v_lshlrev_b32 {t4}, 8, {t3}", f"v_add_u32 {t4}, s51, {t4}")
    A(f"s_lshl_b32 s51, {S_QH}, 3", f"v_xor_b32 {t6}, s51, {t3}")
    for s in range(4):
        A(f"v_add_u32 {t5}, {4*s}, {t0}", f"v_xor_b32 {t5}, {t5}, {t6}", f"v_lshl_add_u32 v{V_KR[s]}, {t5}, 4, {t4}")
    A(f"v_lshrrev_b32 {t4}, 2, {l}", f"v_and_b32 {t5}, 7, {t4}", f"v_lshlrev_b32 {t5}, 1, {t5}",
      f"v_lshlrev_b32 {t4}, 8, {t4}", f"v_add_u32 {t4}, s50, {t4}",
      f"v_and_b32 {t6}, 1, {t2}", f"v_lshl_add_u32 {t4}, {t6}, 3, {t4}",
      f"v_lshrrev_b32 {t6}, 1, {t2}",
      f"s_lshl_b32 s51, {S_QH}, 3", f"v_xor_b32 {t5}, s51, {t5}")
    for dt in range(8):
        d = f"v{V_VR[dt]}"
        A(f"v_add_u32 {d}, {2*dt}, {t6}", f"v_xor_b32 {d}, {d}, {t5}", f"v_lshl_add_u32 {d}, {d}, 4, {t4}")
    A(f"v_lshlrev_b32 {t4}, 2, {t0}", f"v_xor_b32 {t4}, {t4}, {t3}", f"v_lshlrev_b32 {t4}, 4, {t4}", f"v_lshl_add_u32 {t4}, {t0}, 10, {t4}")
    for n in range(4):
        A(f"v_add_u32 v{V_WOD[n]}, {n*3072}, {t4}")
    A(f"v_lshrrev_b32 {t4}, 2, {l}", f"v_lshlrev_b32 {t4}, 8, {t4}", f"v_lshl_add_u32 {t4}, {t2}, 4, {t4}",
      f"s_lshl_b32 s50, {S_W}, 13", f"s_add_u32 s50, s50, {WOB}", f"v_add_u32 {t4}, s50, {t4}")
    for cp in range(4):
        A(f"v_xor_b32 {t5}, {cp}, {t1}", f"v_lshl_add_u32 v{V_WOR[cp]}, {t5}, 6, {t4}")
    A(f"s_mul_i32 s50, {S_QH}, 40960", f"s_lshl_b32 s51, {S_U}, 12", "s_add_u32 s50, s50, s51",
      f"v_lshlrev_b32 v{V_OR}, 4, {l}", f"v_add_u32 v{V_OW}, s50, v{V_OR}", f"v_add_u32 v{V_OR8}, 0x10000, v{V_OR}")
    A(f"s_lshl_b32 s50, {S_HP}, 10", f"v_add_u32 v{V_PS}, s50, v{V_OR}")
    return L

def dma(voff, srd, soff, imm, nt=False):
    o = f" offset:{imm}" if imm else ""
    return I(f"buffer_load_dwordx4 v{voff}, {srd}, {soff} offen{o}{' nt' if nt else ''} lds")

def kv_group(kind, m0expr, soffreg):
    if kind == 'K':
        return [dma(V_KD[n], SRD_K, soffreg, n * 1024, OPT['kvnt']) for n in range(4)]
    return [dma(V_VD[n & 1], SRD_V, soffreg, n * 1024, OPT['kvnt']) for n in range(4)]

def kv_tile_full_unused(kind, j):
    L = []
    base = (KB + kphys(j)) if kind == 'K' else (VB + vphys(j))
    for gI in range(2):
        L += II(f"s_lshl_b32 s50, {S_U}, 13", f"s_add_u32 m0, s50, {base + gI*4096}", f"s_mov_b32 s51, {j*8192 + gI*4096}")
        L += kv_group(kind, None, "s51")
    return L

def stage_setup_scalar():
    rot = OPT['rot']
    R = II("s_lshr_b32 s50, s2, 3", "s_and_b32 s51, s50, 3", "s_lshr_b32 s50, s50, 2")
    if rot in (True, 1):   R += II("s_lshl_b32 s51, s51, 2", "s_lshl_b32 s50, s50, 1", "s_add_u32 s52, s50, s51")
    elif rot == 2:         R += II("s_lshr_b32 s50, s50, 1", "s_add_u32 s52, s50, s51", "s_lshl_b32 s52, s52, 2")
    elif rot == 3:         R += II("s_add_u32 s52, s50, s51", "s_lshl_b32 s52, s52, 2")
    elif rot == 4:         R += II("s_lshr_b32 s50, s50, 2", "s_lshl_b32 s50, s50, 3", "s_lshl_b32 s51, s51, 2", "s_add_u32 s52, s50, s51")
    elif rot == 5:         R += II("s_mul_i32 s50, s50, 3", "s_lshl_b32 s51, s51, 2", "s_add_u32 s52, s50, s51")
    elif rot == 6:         R += II("s_lshl_b32 s52, s50, 1")
    elif rot == 7:         R += II("s_lshl_b32 s50, s50, 1", "s_and_b32 s51, s51, 1", "s_lshl_b32 s51, s51, 3", "s_add_u32 s52, s50, s51")
    else:                  R += II("s_mov_b32 s52, 0")
    return R + II("s_and_b32 s52, s52, 15",
              f"s_lshl_b32 s50, s52, 6", f"s_lshl_b32 s51, {S_W}, 15", f"s_add_u32 {S_SOFFX}, s50, s51",
              f"s_lshl_b32 s50, s52, 18", f"s_lshl_b32 s51, {S_W}, 16", f"s_add_u32 {S_SOFFW0}, s50, s51",
              f"s_lshl_b32 s50, {S_W}, 12", f"s_add_u32 {S_BW}, s50, {WB}",
              f"s_lshl_b32 s50, {S_W}, 11", f"s_add_u32 {S_BX}, s50, {XB}",
              f"s_lshl_b32 s50, {S_W}, 8", f"s_add_u32 {S_BX3}, s50, {XB + 8192}",
              )
def kv_setup_scalar():
    return II(f"s_lshl_b32 {S_TQ}, {S_QH}, 12",
              f"s_lshl_b32 s50, {S_U}, 13", f"s_add_u32 s50, s50, {S_TQ}", f"s_add_u32 {S_MK}, s50, {KB}", f"s_add_u32 {S_MV}, s50, {VB}")

def stage_dma_list(slot):
    seq = []
    seq.append(([I(f"s_add_u32 m0, {S_BW}, {slot*16384}")], dma(V_WQD[0], SRD_WQ, S_SOFFW0, 0, OPT['wnt'])))
    for j in range(1, 4): seq.append(([], dma(V_WQD[j], SRD_WQ, S_SOFFW0, j * 1024, OPT['wnt'])))
    seq.append(([I(f"s_add_u32 m0, {S_BX}, {slot*9216}")], dma(V_XD[0], SRD_X, S_SOFFX, 0, OPT['xnt'])))
    seq.append(([], dma(V_XD[1], SRD_X, S_SOFFX, 1024, OPT['xnt'])))
    q = dma(V_XD[2], SRD_X, S_SOFFX, 0, OPT['xnt'])
    seq.append(([I(f"s_add_u32 m0, {S_BX3}, {slot*9216}")], Masked(q, 0xffff)))
    return seq

def place_dma(S, seq, gaps):
    k = 0
    last = None
    for e in seq:
        if e[0]:
            for p in e[0]: S.put(gaps[k], p)
            k += 1
        S.put(gaps[k], e[1]); last = gaps[k]
        if len(e) > 2:
            for p in e[2]: S.put(gaps[k] + 1, p)
        k += 1
    return last

def stage_advance_w():
    return II(f"s_add_u32 {S_SOFFW0}, {S_SOFFW0}, 262144", f"s_and_b32 {S_SOFFW0}, {S_SOFFW0}, 0x3fffff")
def stage_advance_x():
    return II(f"s_add_u32 {S_SOFFX}, {S_SOFFX}, 64", f"s_and_b32 {S_SOFFX}, {S_SOFFX}, 0xfffffbff")
def stage_advance(): return stage_advance_w() + stage_advance_x()

def straight(seq):
    L = []
    for e in seq:
        L += e[0]
        if e[0]: L += II("s_nop 0")
        L.append(e[1])
        if len(e) > 2: L += e[2]
    return L

def stage_issue_straight(slot):
    return straight(stage_dma_list(slot)) + stage_advance()

def wq_read(dt, h2, slot):
    if OPT.get('x_noread'): return I('s_nop 0')
    s, hf = dt >> 1, dt & 1
    b = abuf(dt) + 2 * h2
    off = slot * 16384 + hf * 8 + h2 * 2048
    return I(f"ds_read_b64_tr_b16 {ar(b,2)}, v{V_WQR[s]}" + (f" offset:{off}" if off else ""))
def x_read(t, slot):
    if OPT.get('x_noread'): return I('s_nop 0')
    off = slot * 9216 + (0 if t == 4 else t * 1024)
    return I(f"ds_read_b128 {vr(bbuf(t))}, v{V_XR4 if t == 4 else V_XR}" + (f" offset:{off}" if off else ""))
def q_mfma(dt, t):
    if OPT.get('x_t4') and t == 4: return I("s_nop 3")
    if OPT.get('x_t45') and t == 4 and dt >= 4: return I("s_nop 3")
    return mfma(vr(qacc(dt, t)), ar(abuf(dt)), vr(bbuf(t)), vr(qacc(dt, t)))

def half_group(kind, j):
    if kind == 'K':
        pre = II(f"s_add_u32 m0, {S_MK}, {kphys(j)}", f"s_add_u32 s51, {S_TQ}, {j*8192}")
    else:
        pre = II(f"s_add_u32 m0, {S_MV}, {vphys(j)}", f"s_add_u32 s51, {S_TQ}, {j*8192}")
    g = kv_group(kind, None, "s51")
    return [(pre, g[0])] + [([], x) for x in g[1:]]

def put_dmas(S, seq, gaps):
    prev = -1
    for e, g in zip(seq, gaps):
        if e[0]:
            assert g - 1 > prev or prev < 0, (g, prev)
            for p in e[0]: S.put(g - 1, p)
        S.put(g, e[1])
        if len(e) > 2:
            for p in e[2]: S.put(g + 1, p)
        prev = g
    assert len(seq) <= len(gaps)

QTAIL = (4, 5, 6, 7)
def q_tail(): return [q_mfma(dt, t) for t in range(4) for dt in QTAIL]
SRD_T = "s[96:99]"; V_T = [10, 11, 12, 13]; S_TM, S_TS = "s35", "s36"
V_TB2 = [252, 253, 254, 255]
V_TB = [244, 245, 246, 247]
DUMMY = 151552
def burst_list():
    g = [dma(V_TB[n], SRD_T, S_TS, n * 1024, OPT['kvnt']) for n in range(4)]
    return [([I(f"s_mov_b32 m0, {S_TM}")], g[0])] + [([], x) for x in g[1:]]

def q_body(ks, with_dma, burst=False, extra_dma=None, wait=None):
    slot = ks & 3
    ms = q_tail() + [q_mfma(dt, t) for t in range(5) for dt in range(4)]
    S = Sched(ms)
    a = lambda dt, h: wq_read(dt, h, slot)
    xr = lambda t: x_read(t, slot)
    plan = {0: a(0,0), 1: a(0,1), 2: a(1,0), 3: a(1,1), 4: xr(0), 5: a(2,0), 7: a(2,1), 8: xr(1), 9: a(3,0), 11: a(3,1),
            12: xr(2), 13: xr(4), 16: xr(3), 17: a(4,0), 19: a(4,1), 20: a(5,0), 21: a(5,1), 23: a(6,0), 24: a(6,1), 25: a(7,0), 27: a(7,1)}
    for g, ins in plan.items(): S.put(g, ins)
    if with_dma:
        put_dmas(S, stage_dma_list((ks + 3) & 3), [6, 10, 14, 18, 22, 26, 29])
        w = stage_advance_w(); x = stage_advance_x()
        S.put(19, w[0]); S.put(20, w[1]); S.put(30, x[0]); S.put(31, x[1])
    if burst:
        put_dmas(S, burst_list(), [32, 33, 34, 35]) if False else None
        put_dmas(S, burst_list(), [15, 28, 31, 33])  if False else None
    if extra_dma:
        put_dmas(S, extra_dma, [6, 10, 14, 18, 22, 26, 30, 32][:len(extra_dma)])
    return S

def q_finish(S, wait, wg=33):
    S.put(wg, tr_mark(), f"s_waitcnt vmcnt({wait}) lgkmcnt(0)", tr_commit())
    S.put(wg + 1, "s_barrier")
    seq, pend = lgkm_waits(S.flat())
    assert not pend
    if OPT['verbose']: print(S.report("q_body"))
    return seq

def tr_mark():
    return [Raw("s_memtime s[100:101]")] if OPT.get('trace') else []
def tr_commit():
    return [Raw("s_mov_b32 s95, m0\n  s_mov_b32 m0, s94\n  s_nop 0\n  v_writelane_b32 v0, s100, m0\n  s_mov_b32 m0, s95\n  s_add_u32 s94, s94, 1")] if OPT.get('trace') else []
def tr_dump():
    if not OPT.get('trace'): return []
    return II("s_add_u32 s66, s58, 0x9000000", "s_addc_u32 s67, s59, 0", "s_lshl_b32 s50, s2, 2", f"s_add_u32 s50, s50, {S_W}", "s_lshl_b32 s50, s50, 8",
              f"v_lshlrev_b32 v253, 2, {V_LANE}", "v_add_u32 v253, s50, v253", "global_store_dword v253, v0, s[66:67]")

def zero_init():
    L = II("v_mov_b32 v244, 0", "v_mov_b32 v245, 0", "v_mov_b32 v246, 0", "v_mov_b32 v247, 0", "s_nop 1")
    for r in range(RB, RB + 160, 16): L += II(f"v_mfma_f32_32x32x16_bf16 v[{r}:{r+15}], v[244:247], v[244:247], 0")
    for r in range(0, 256, 16): L += II(f"v_mfma_f32_32x32x16_bf16 a[{r}:{r+15}], v[244:247], v[244:247], 0")
    return L

def phase_q():
    L = []; A = lambda *x: L.extend(II(*x))
    A("L_phase_q:")
    A(stage_setup_scalar(), stage_issue_straight(0))
    A(setup_b())
    A(kv_setup_scalar())
    A(lane_consts_q2())
    A(stamp("q_issued"))
    A(zero_init())
    A(lane_consts_rest())
    A(f"s_mov_b32 {S_CNT}, 0")
    if OPT.get('trace'): A("s_mov_b32 s94, 1", "s_memtime s[100:101]", "s_waitcnt lgkmcnt(0)", "v_writelane_b32 v0, s100, 0")
    A(f"v_mov_b32 v{VT[0]}, 0x3f803f80")
    for r in range(4): A(f"v_accvgpr_write_b32 a{A_ONES + r}, v{VT[0]}")
    for t in range(5):
        for k in range(4): A(f"v_mov_b32 v{bbuf(t)+k}, 0")
    A("s_mov_b32 s96, s12", "s_mov_b32 s97, s13", "s_mov_b32 s98, s14", "s_mov_b32 s99, s15")
    for n in range(4): A(f"v_mov_b32 v{V_TB[n]}, v{V_KD[n]}")
    if OPT.get('stst'): A(stamp("consts"))
    A(stage_issue_straight(1))
    if OPT.get('stst'): A(stamp("s1_iss"))
    A("s_waitcnt vmcnt(7)")
    if OPT.get('stst'): A(stamp("s0_land"))
    A("s_barrier")
    if OPT['fused']:
        A(f"s_cmp_eq_u32 {S_SAFE}, 1", "s_cbranch_scc1 L_no_arrive")
        A(f"s_lshl_b32 s50, {S_CL}, 2", f"s_add_u32 s50, s50, {CNTOFF()}", f"s_lshl_b32 s51, {S_W}, 14", "s_add_u32 s50, s50, s51",
          f"v_lshlrev_b32 v46, 8, {V_LANE}", "v_add_u32 v46, s50, v46", "v_mov_b32 v47, 1",
          f"buffer_atomic_add v47, v46, {SRD_D}, 0 offen sc1")
        A("L_no_arrive:")
    A(stage_issue_straight(2))
    if OPT.get('stst'): A(stamp("s2_iss"))
    A(f"s_add_u32 {S_TM}, {S_MK}, {kphys(0)}", f"s_mov_b32 {S_TS}, {S_TQ}")
    A(stamp("q_start"))
    l2 = OPT['l2pf']
    if l2:
        A(f"s_add_u32 s37, {S_TQ}, {4*8192}", "s_mov_b32 s92, s12", "s_mov_b32 s93, s13", "s_mov_b32 s94, s14", "s_mov_b32 s95, s15",
          "s_mov_b64 vcc, -1")
    bodies = []
    QOOL = []
    for k in range(4):
        S = q_body(k, True)
        if k == 1:
            put_dmas(S, burst_list(), [32, 33, 34, 35])
        if k == 3 and l2:
            g = [dma(V_OR, "s[92:95]", "s37", n * 1024, False) for n in range(4)]
            put_dmas(S, [([I(f"s_mov_b32 m0, {DUMMY}")], g[0])] + [([], x) for x in g[1:]], [32, 33, 34, 35])
        if l2:
            n_steady, n_first = [(18, 14), (22, 18), (18, 18), (22, 22)][k]
        else:
            n_steady = n_first = 14 if k == 0 else 18
        if OPT.get('b0st') and k == 0:
            for nm, g in (("g5", 5), ("g6", 7), ("g15", 15), ("g20", 20), ("g30", 31)):
                S.put(g, Raw(f"s_cmp_eq_u32 {S_CNT}, 0\n  s_cbranch_scc0 L_b0_{nm}\n  " + "\n  ".join(x.txt for x in stamp(nm)) + f"\nL_b0_{nm}:"))
        late = (k == 1) or (k == 3 and l2)
        w = tr_mark() + II(f"s_waitcnt vmcnt({n_steady}) lgkmcnt(0)")
        if n_first != n_steady:
            w += II(f"s_cbranch_vccnz L_q_first{k}", f"L_q_back{k}:")
            QOOL += II(f"L_q_first{k}:", f"s_waitcnt vmcnt({n_first})", f"s_branch L_q_back{k}")
        w += tr_commit()
        if late:
            seq, pend = lgkm_waits(S.flat())
            seq += w + II("s_barrier")
        else:
            S.put(33, w); S.put(34, "s_barrier")
            seq, pend = lgkm_waits(S.flat())
            assert not pend
        if OPT['verbose']: print(S.report("q_body"))
        bodies.append(seq)
    hist = bodies[3][-24:]
    A(".p2align 6", "L_q_loop:")
    for bi, b in enumerate(bodies):
        b2, n = hazards(b, history=hist); L.extend(b2); hist = b2[-24:]
        if OPT.get('stst') and bi < 2: A(f"s_cmp_eq_u32 {S_CNT}, 0", f"s_cbranch_scc0 L_nost{bi}", stamp(f"body{bi}"), f"L_nost{bi}:")
    A(f"s_add_u32 {S_TM}, {S_TM}, 16384", f"s_add_u32 {S_TS}, {S_TS}, 8192", f"s_add_u32 {S_CNT}, {S_CNT}, 1")
    if l2:
        A("s_mov_b64 vcc, 0", f"s_cmp_eq_u32 {S_CNT}, 1", "s_cbranch_scc1 L_q_to1", "L_q_to1_done:")
    A(f"s_cmp_eq_u32 {S_CNT}, 2", "s_cbranch_scc0 L_q_tov_done",
      "s_mov_b32 s96, s16", "s_mov_b32 s97, s17", f"s_add_u32 {S_TM}, {S_MV}, {vphys(0)}", f"s_mov_b32 {S_TS}, {S_TQ}")
    if l2: A("s_mov_b32 s92, s12", "s_mov_b32 s93, s13", f"s_add_u32 s37, {S_TQ}, {5*8192}")
    for n in range(4): A(f"v_mov_b32 v{V_TB[n]}, v{V_VD[n & 1]}")
    A("L_q_tov_done:", f"s_cmp_lt_u32 {S_CNT}, 3", "s_cbranch_scc1 L_q_loop")
    OOL = []
    if l2: OOL += II("L_q_to1:", "s_mov_b32 s92, s16", "s_mov_b32 s93, s17", f"s_add_u32 s37, {S_TQ}, {3*8192}", "s_branch L_q_to1_done")
    OOL += QOOL
    b, n = hazards(q_finish(q_body(12, True), 18 if l2 else 14), history=hist); L.extend(b)
    b, n = hazards(q_finish(q_body(13, False, extra_dma=half_group('V', 1)), 15 if l2 else 11), history=b[-24:]); L.extend(b)
    b, n = hazards(q_finish(q_body(14, False, extra_dma=half_group('K', 2) + half_group('V', 2)), 12), history=b[-24:]); L.extend(b)
    b, n = hazards(q_finish(q_body(15, False), 12), history=b[-24:]); L.extend(b)
    if OOL:
        A("s_branch L_q_after_ool")
        L.extend(OOL)
        A("L_q_after_ool:")
    A(stamp("q_loop_done"))
    return L

def q_tiles(s): return range(5) if s < 2 else range(4)
def q_scale(ss):
    return [I(f"v_pk_mul_f32 {vr(grp(t,s)+2*k,2)}, {vr(grp(t,s)+2*k,2)}, {vr(V_C0,2)}") for s in ss for t in q_tiles(s) for k in range(4)]
def q_cvt(ss):
    return [I(f"v_cvt_pk_bf16_f32 v{grp(t,s)+k}, v{grp(t,s)+2*k}, v{grp(t,s)+2*k+1}") for s in ss for t in q_tiles(s) for k in range(4)]
QX = 155648

def transition():
    L = []; A = lambda *x: L.extend(II(*x))
    A(f"s_add_u32 {S_SOFFK}, {S_TQ}, {5*8192}", f"s_add_u32 {S_SOFFV}, {S_TQ}, {4*8192}")
    A(f"v_mov_b32 v{V_C0}, {hex(f2u(SCALE))}", f"v_mov_b32 v{V_C1}, {hex(f2u(SCALE))}")
    A(f"s_lshl_b32 s50, {S_W}, 11", f"s_add_u32 s50, s50, {QX}", f"v_lshlrev_b32 v7, 4, {V_LANE}", "v_add_u32 v8, s50, v7",
      "s_xor_b32 s50, s50, 2048", "v_add_u32 v9, s50, v7")
    k3 = half_group('K', 3)
    seq = [k_read(kt, s, 0) for kt in range(2) for s in range(4)]
    sc = q_scale((0, 1))
    seq += II("s_nop 3") + sc
    S = Sched(q_tail())
    cv = q_cvt((0, 1))
    sh = lambda c: any(f"v{grp(4,s)+k}," in c.txt.split()[1] + "," for s in (0, 1) for k in range(4))
    cv = [c for c in cv if sh(c)] + [c for c in cv if not sh(c)]
    S.spread(cv, [min(i * 2 // 5, 15) for i in range(40)])
    S.put(5, f"ds_write_b128 v8, {vr(grp(4,0))}"); S.put(7, f"ds_write_b128 v8, {vr(grp(4,1))} offset:1024")
    seq += S.flat()
    seq += II("s_waitcnt lgkmcnt(0)", "s_barrier", f"ds_read_b128 {vr(grp(4,2))}, v9", f"ds_read_b128 {vr(grp(4,3))}, v9 offset:1024")
    sc = q_scale((2, 3))
    seq += II("s_nop 3") + k3[0][0] + sc[:8] + [k3[0][1]] + sc[8:16] + [k3[1][1]] + sc[16:24] + [k3[2][1]] + sc[24:] + [k3[3][1]]
    qk = lambda kt, ss, c: [qk_mfma(kt, s, t, c) for s in ss for t in range(5)]
    S = Sched(qk(0, (0, 1), lambda t: "0") + qk(0, (2, 3), lambda t: "0"))
    S.spread(q_cvt((2, 3)), [min(i * 5 // 16, 9) for i in range(32)])
    S.spread([f"v_mov_b32 v{Preg(1,t)+k}, 0" for t in range(5) for k in range(4)], [10 + i // 2 for i in range(20)])
    seq += S.flat()
    seq += straight(half_group('V', 3))
    seq, _ = lgkm_waits(seq, final_zero=True)
    seq, n = hazards(seq); L.extend(seq)
    A(stamp("qk0_done"))
    A(f"s_cmp_eq_u32 {S_SAFE}, 1", "s_cbranch_scc1 L_safe_max")
    T = [2, 3, 4, 5, 6]
    U = [7, 8, 9, 10, 11]
    E = II("s_nop 5")
    for t in range(5): E += II(f"v_max3_f32 v{T[t]}, v{Sreg(0,t)}, v{Sreg(0,t)+1}, v{Sreg(0,t)+2}")
    for t in range(5): E += II(f"v_max_f32 v{T[t]}, v{T[t]}, v{Sreg(0,t)+3}")
    E += row_max_finish(T, U)
    S = Sched(qk(1, range(4), lambda t: vr(cinit(t))))
    sub = [f"v_add_f32 v{Sreg(0,t)+k}, v{Sreg(0,t)+k}, v{cinit(t)}" for t in range(5) for k in range(4)]
    ex = [f"v_exp_f32 v{Sreg(0,t)+k}, v{Sreg(0,t)+k}" for t in range(5) for k in range(4)]
    S.spread(sub, [i // 2 for i in range(20)])
    S.spread(ex, [min(2 + i, 19) for i in range(20)])
    E += S.flat()
    E += II("s_barrier")
    E += II("s_nop 3") + exps(1)
    E, n = hazards(E, history=L[-24:]); L.extend(E)
    A("L_max_done:")
    A(straight(half_group('K', 4)))
    return L

def row_max_finish(T, U):
    E = []
    for sw in ("v_permlane32_swap_b32", "v_permlane16_swap_b32"):
        for t in range(5): E += II(f"v_mov_b32 v{U[t]}, v{T[t]}")
        for t in range(5): E += II(f"{sw} v{T[t]}, v{U[t]}")
        for t in range(5): E += II(f"v_max_f32 v{T[t]}, v{T[t]}, v{U[t]}")
    for t in range(5):
        for k in range(4): E += II(f"v_sub_f32 v{cinit(t)+k}, 0, v{T[t]}")
    return E

def safe_paths():
    L = []; A = lambda *x: L.extend(II(*x))
    T = [2, 3, 4, 5, 6]; U = [7, 8, 9, 10, 11]
    ab = [(Sreg(0, t), Sreg(1, t)) for t in range(5)]
    A("L_safe_max:")
    for t in range(5): A(f"v_mov_b32 v{T[t]}, 0xff800000")
    A(f"s_mov_b32 {S_CNT}, 0")
    A("L_safe_loop:")
    A("s_waitcnt vmcnt(0) lgkmcnt(0)", "s_barrier")
    A(f"s_and_b32 s50, {S_CNT}, 15", "s_lshl_b32 s50, s50, 13", f"s_add_u32 s51, s50, {S_TQ}", f"s_add_u32 m0, {S_MK}, {kphys(0)}", "s_nop 0")
    A(kv_group('K', None, "s51"))
    A("s_waitcnt vmcnt(0)", "s_barrier")
    A([k_read(kt, s, 0) for kt in range(2) for s in range(4)], "s_waitcnt lgkmcnt(0)")
    A(f"s_cmp_eq_u32 {S_CNT}, 16", "s_cbranch_scc1 L_safe_last")
    A([qk_mfma(kt, s, t, lambda t: "0") for kt in range(2) for s in range(4) for t in range(5)], "s_nop 7", "s_nop 7")
    for t, (a, b) in enumerate(ab):
        A(f"v_max3_f32 v{T[t]}, v{T[t]}, v{a}, v{a+1}", f"v_max3_f32 v{T[t]}, v{T[t]}, v{a+2}, v{a+3}",
          f"v_max3_f32 v{T[t]}, v{T[t]}, v{b}, v{b+1}", f"v_max3_f32 v{T[t]}, v{T[t]}, v{b+2}, v{b+3}")
    A(f"s_add_u32 {S_CNT}, {S_CNT}, 1", f"s_cmp_lt_u32 {S_CNT}, 16", "s_cbranch_scc1 L_safe_loop")
    E, n = hazards(II("s_nop 3") + row_max_finish(T, U)); L.extend(E)
    A("s_branch L_safe_loop")
    A("L_safe_last:", "s_nop 3")
    A([qk_mfma(kt, s, t, lambda t: vr(cinit(t))) for kt in range(2) for s in range(4) for t in range(5)], "s_nop 7", "s_nop 7")
    A("s_barrier")
    for t, (a, b) in enumerate(ab):
        for base in (a, b):
            for k in range(4): A(f"v_exp_f32 v{base+k}, v{base+k}")
    A("s_nop 1", "s_branch L_max_done")
    if OPT['fused']:
        A("L_cnt_spin:", f"s_mov_b32 s53, {SPIN}", "L_cnt_spin_loop:", "s_sleep 2",
          f"buffer_load_dword v15, v14, {SRD_D}, 0 offen sc1", "s_waitcnt vmcnt(0)", "v_readfirstlane_b32 s52, v15", "s_nop 3",
          "s_cmp_ge_u32 s52, 16", "s_cbranch_scc1 L_cnt_ok", "s_sub_u32 s53, s53, 1", "s_cmp_lg_u32 s53, 0", "s_cbranch_scc1 L_cnt_spin_loop", "s_branch L_cnt_ok")
    A("L_restart:", f"s_mov_b32 {S_SAFE}, 1", "s_waitcnt vmcnt(0) lgkmcnt(0)", "s_barrier")
    A(lane_consts_q())
    A("s_branch L_phase_q")
    return L

def k_read(kt, s, slotk):
    off = kphys(slotk) + kt * 4096
    return I(f"ds_read_b128 {ar(kbuf(kt, s))}, v{V_KR[s]}" + (f" offset:{off}" if off else ""))
def v_read(dt, h, slotv):
    off = vphys(slotv) + h * 4096
    return I(f"ds_read_b64_tr_b16 {ar(abuf(dt) + 2*h, 2)}, v{V_VR[dt]}" + (f" offset:{off}" if off else ""))
def qk_mfma(kt, s, t, first_c):
    c = first_c(t) if s == 0 else vr(Sreg(kt, t))
    return mfma(vr(Sreg(kt, t)), ar(kbuf(kt, s)), vr(qfrag(t, s)), c)
def pv_mfma(dt, t, par):
    return mfma(ar(oacc(dt, t)), ar(abuf(dt)), vr(Preg(par, t)), ar(oacc(dt, t)))
def rs_mfma(t, par):
    return mfma(ar(lacc(t)), ar(A_ONES), vr(Preg(par, t)), ar(lacc(t)))
def cvts(par):
    out = []
    for kt in range(2):
        for t in range(5):
            s = Sreg(kt, t); p = Preg(par, t) + 2 * kt
            out.append(I(f"v_cvt_pk_bf16_f32 v{p}, v{s}, v{s+1}"))
            out.append(I(f"v_cvt_pk_bf16_f32 v{p+1}, v{s+2}, v{s+3}"))
    return out
def exps(kt):
    return [I(f"v_exp_f32 v{Sreg(kt,t)+i}, v{Sreg(kt,t)+i}") for t in range(5) for i in range(4)]

def att_dma(j, dyn=False):
    seq = []
    if j == 0 or j > 12: return seq
    if True:
        pre = II(f"s_add_u32 m0, {S_MK}, {kphys(j + 4)}")
        g = kv_group('K', None, S_SOFFK)
        seq += [(pre, g[0])] + [([], x) for x in g[1:]]
        seq[-1] = (seq[-1][0], seq[-1][1], II(f"s_add_u32 {S_SOFFK}, {S_SOFFK}, 8192"))
    if j + 3 <= 15:
        pre = II(f"s_add_u32 m0, {S_MV}, {vphys(j + 3)}")
        g = kv_group('V', None, S_SOFFV)
        s2 = [(pre, g[0])] + [([], x) for x in g[1:]]
        s2[-1] = (s2[-1][0], s2[-1][1], II(f"s_add_u32 {S_SOFFV}, {S_SOFFV}, 8192"))
        seq += s2
    return seq

def wo_dma(ks, slot_base_imm):
    seq = []
    for gI in range(2):
        pre = II(f"s_lshl_b32 s50, {S_W}, 13", f"s_add_u32 m0, s50, {slot_base_imm + gI*4096}", f"s_mov_b32 s51, {ks*32768 + gI*16384}")
        for n in range(4):
            seq.append((pre if n == 0 else [], dma(V_WOD[n], SRD_WO, "s51", n * 1024, OPT["wont"])))
    return seq

def att_body(j, vmwait, extra_dma=None):
    par_old, par_new = (j - 1) & 1, j & 1
    ms = [pv_mfma(dt, t, par_old) for dt in (5, 6, 7) for t in range(5)] + [rs_mfma(t, par_old) for t in range(5)]
    ms += [qk_mfma(kt, s, t, lambda t: vr(cinit(t))) for kt in range(2) for s in range(4) for t in range(5)]
    ms += [pv_mfma(dt, t, par_new) for dt in range(5) for t in range(5)]
    S = Sched(ms)
    cv = cvts(par_new)
    S.spread(cv, [1, 1, 3, 3, 6, 6, 8, 8, 11, 11, 13, 13, 16, 16, 18, 18, 21, 21, 23, 23])
    S.spread([k_read(kt, s, j + 1) for kt in range(2) for s in range(4)], [0, 2, 5, 7, 10, 12, 15, 17])
    vr_ = [v_read(dt, h, j) for dt in range(8) for h in range(2)]
    S.spread(vr_, [20, 22, 25, 26, 27, 28, 30, 31, 32, 33, 35, 36, 37, 38, 40, 61])
    d = att_dma(j) + (extra_dma or [])
    put_dmas(S, d, [4, 9, 14, 19, 24, 29, 34, 39])
    S.spread(exps(0), list(range(41, 61)))
    S.spread(exps(1), list(range(62, 82)))
    seq = S.flat()
    seq, pend = lgkm_waits(seq)
    seq += tr_mark() + II(f"s_waitcnt vmcnt({vmwait}) lgkmcnt(0)") + tr_commit() + II("s_barrier")
    if OPT['verbose']: print(S.report(f"att_body {j}"))
    return seq

WO1 = [192, 200, 208, 216, 224, 228, 232, 236]
def wofrag(ks, m, n=4, off=0):
    if ks == 0: return ar(216 + 4 * m + off, n)
    if ks == 1: return vr(WO1[m] + off, n)
    return ar((ks - 2) * 32 + 4 * m + off, n)
def wo_read(ks, m, h):
    cp, hf = m >> 1, m & 1
    off = (32768 if (ks & 1) == 0 else 0) + hf * 8 + h * 4096
    return I(f"ds_read_b64_tr_b16 {wofrag(ks, m, 2, 2*h)}, v{V_WOR[cp]}" + (f" offset:{off}" if off else ""))

def tlb_touch():
    L = II(f"v_mul_u32_u24 v46, 0x100000, {V_LANE}",
           f"buffer_load_dword v47, v46, {SRD_P}, 0 offen")
    if OPT['tlb'] == 2:
        L += II(f"s_mul_i32 s50, {S_B}, {144*2048}", f"v_lshlrev_b32 v46, 26, {V_LANE}", f"buffer_load_dword v47, v46, {SRD_O}, s50 offen")
    return L

def wo_prefetch(shift=0):
    n = OPT['pfw']
    L = II(f"s_add_u32 s50, {S_B}, {shift}", "s_and_b32 s50, s50, 7", "s_lshl_b32 s50, s50, 15", f"s_lshl_b32 s51, {S_W}, 13", "s_add_u32 s50, s50, s51")
    nt = " nt" if OPT['pfnt'] else ""
    if n == 8:
        L += II(f"v_lshlrev_b32 v46, 4, {V_LANE}")
        for i in range(8):
            L += II(f"s_add_u32 s51, s50, {i*1024}", f"buffer_load_dwordx4 v[252:255], v46, s[84:87], s51 offen{nt}")
    else:
        sh = {1: 7, 2: 6, 4: 5}[n]
        L += II(f"v_lshlrev_b32 v46, {sh}, {V_LANE}")
        for i in range(n):
            L += II(f"s_add_u32 s51, s50, {i * (64 << sh)}", f"buffer_load_dword v47, v46, s[84:87], s51 offen{nt}")
    return L

ATT_OOL = []
def attention():
    L = []; A = lambda *x: L.extend(II(*x))
    L += transition()
    A(stamp("att_start"))
    A(f"s_mov_b32 {S_CNT}, 0")
    b0, n = hazards(att_body(0, 16), history=L[-24:]); L.extend(b0)
    bodies = [att_body(j, 16) for j in range(1, 5)]
    hist = bodies[3][-24:]
    A(".p2align 6", "L_att_loop:")
    OOLA = []
    for i, b in enumerate(bodies):
        if i == 3:
            A(f"s_cmp_eq_u32 {S_CNT}, 2", "s_cbranch_scc0 L_att_nok_done")
            for n in range(4): A(f"v_add_u32 v{V_KD[n]}, 0x40000000, v{V_KD[n]}")
            A("L_att_nok_done:")
        b2, n = hazards(b, history=hist); L.extend(b2); hist = b2[-24:]
        if OPT['pf'] == 2 and OPT['pfat'] == 9 + i and i < 3:
            A(f"s_cmp_eq_u32 {S_CNT}, 2", "s_cbranch_scc0 L_att_nopf0", wo_prefetch(), "L_att_nopf0:")
    if 0 <= OPT['pf'] < 3 and OPT['pfat'] == 12:
        A(f"s_cmp_eq_u32 {S_CNT}, {OPT['pf']}", "s_cbranch_scc0 L_att_nopf", wo_prefetch(), (wo_prefetch(4) if OPT.get('pfdup') else []),
          (tlb_touch() if OPT.get('tlb') else []), "L_att_nopf:")
    A(f"s_add_u32 {S_CNT}, {S_CNT}, 1", f"s_cmp_lt_u32 {S_CNT}, 3", "s_cbranch_scc1 L_att_loop")
    ATT_OOL.clear(); ATT_OOL.extend(OOLA)
    npf = (OPT['pfw'] * (2 if OPT.get('pfdup') else 1) + (OPT.get('tlb') or 0)) if (OPT['pf'] == 2 and OPT['pfexact'] and OPT['pfat'] == 12) else 0
    b, n = hazards(att_body(13, 16 + npf, extra_dma=wo_dma(0, WOA)), history=hist); L.extend(b); hist = b[-24:]
    if OPT.get('pf2nd'): A(wo_prefetch(4))
    late_pf = OPT['pf'] == 2 and OPT['pfat'] == 13
    if late_pf: A(wo_prefetch())
    b, n = hazards(att_body(14, 16 + npf + (OPT['pfw'] if late_pf else 0), extra_dma=wo_dma(1, WOB)), history=hist); L.extend(b); hist = b[-24:]
    A(stamp("att_loop_done"))
    ms = [pv_mfma(dt, t, 0) for dt in (5, 6, 7) for t in range(5)] + [rs_mfma(t, 0) for t in range(5)]
    ms += [pv_mfma(dt, t, 1) for dt in range(8) for t in range(5)] + [rs_mfma(t, 1) for t in range(5)]
    S = Sched(ms)
    S.spread(cvts(1), list(range(0, 20)))
    S.spread([v_read(dt, h, 15) for dt in range(5) for h in range(2)], list(range(0, 10)))
    S.spread([v_read(dt, h, 15) for dt in (5, 6, 7) for h in range(2)], list(range(15, 21)))
    S.put(20, f"s_waitcnt vmcnt({8 + (OPT['pfw'] if late_pf else 0)})")
    S.spread([wo_read(0, m, h) for m in range(8) for h in range(2)], [21 + i // 2 for i in range(16)])
    S.put(28, "s_waitcnt vmcnt(0)")
    S.spread([wo_read(1, m, h) for m in range(8) for h in range(2)], [29 + i // 2 for i in range(16)])
    S.put(38, "s_waitcnt lgkmcnt(0)")
    if OPT['fused']:
        S.put(36, f"s_lshl_b32 s50, {S_CL}, 2", f"s_add_u32 s50, s50, {CNTOFF()}")
        S.spread([f"v_lshlrev_b32 v14, 8, {V_LANE}", "v_add_u32 v14, s50, v14"], [37, 37])
        S.put(38, f"buffer_load_dword v15, v14, {SRD_D}, 0 offen sc1")
    put_dmas(S, wo_dma(2, WOA), [41, 44, 47, 50, 54, 57, 60, 63])
    seq, pend = lgkm_waits(S.flat(), final_zero=True)
    seq, n = hazards(seq, history=hist); L.extend(seq)
    A("s_barrier")
    A("s_nop 3")
    A(stamp("att_done"))
    return L

def wo_dma_t(ks):
    d = wo_dma(ks, WOA if (ks & 1) == 0 else WOB)
    for e in d: e[1].tag = f"wo{ks}"
    return d
def wo_reads(ks): return [wo_read(ks, m, h) for m in range(8) for h in range(2)]

LFLAG = 90112

def o_epilogue():
    E = []
    tl = VT[0]; rc = VT[2]
    d3, d4, d5 = wo_dma_t(3), wo_dma_t(4), wo_dma_t(5)
    E += II(f"s_lshl_b32 s51, {S_QH}, 11", f"v_subrev_u32 v{V_OWB}, s51, v{V_OW}", f"v_add_u32 v{V_OW}, s51, v{V_OW}",
            f"s_lshl_b32 s50, {S_U}, 12", f"s_add_u32 s50, s50, 32768", "s_add_u32 s50, s50, s51", f"v_add_u32 v{V_OW4}, s50, v{V_OR}")
    def emit_dma(e):
        return e[0] + II("s_nop 0") * (1 if e[0] else 0) + [e[1]]
    nfr = 0
    for t in range(5):
        E += II(f"v_accvgpr_read_b32 v{tl}, a{lacc(t)}", f"v_rcp_f32 v{rc}, v{tl}", "s_nop 0", f"v_mov_b32 v{rc+1}, v{rc}")
        if t == 0: E += II(f"v_mov_b32 v{VT[1]}, v{tl}")
        else: E += II(f"v_max_f32 v{VT[1]}, v{VT[1]}, v{tl}")
        if t == 4:
            E += II(f"v_cmp_nge_f32 vcc, {hex(OPT['lthr'] or LTHR)}, v{VT[1]}", f"s_lshl_b32 s50, {S_W}, 2", f"s_add_u32 s50, s50, {LFLAG}", f"v_mov_b32 v52, s50",
                    "s_cmp_lg_u64 vcc, 0", "s_cselect_b32 s51, 1, 0", "v_mov_b32 v53, s51", "ds_write_b32 v52, v53")
        for ks in range(4 if t < 4 else 2):
            mid = []
            if nfr < 8: mid += emit_dma(d3[nfr])
            if 8 <= nfr < 16: mid += emit_dma(d4[nfr - 8])
            if nfr >= 16:
                for i in range(4): mid += emit_dma(d5[4 * (nfr - 16) + i])
            if OPT.get('x_oenodma'): mid = [x for x in mid if x.kind == 'dma'][:0] + [x for x in mid if x.kind != 'dma']
            rd = []
            cut = {0: (0, 6), 1: (6, 11), 2: (11, 16)}
            if 4 <= nfr < 7:
                if nfr == 4:
                    rd += [VmNeed("wo2")]
                    if OPT['fused']:
                        rd += II("v_readfirstlane_b32 s52, v15", "s_nop 3", "s_cmp_lt_u32 s52, 16", "s_cbranch_scc1 L_cnt_spin", "L_cnt_ok:")
                a_, b_ = cut[nfr - 4]; rd += wo_reads(2)[a_:b_]
            if 12 <= nfr < 15:
                if nfr == 12: rd += [VmNeed("wo3")]
                a_, b_ = cut[nfr - 12]; rd += wo_reads(3)[a_:b_]
            if OPT.get('oe_nord'): rd = [x for x in rd if x.kind != 'dsr']
            if OPT.get('oe_nowait'): rd = [x for x in rd if not isinstance(x, VmNeed)]
            if OPT.get('oe_nodma'): mid = []; rd = [x for x in rd if not (isinstance(x, VmNeed) and x.tag == 'wo3')]
            if nfr in (8, 16): E += II("s_waitcnt lgkmcnt(0)")
            E += rd
            for h in range(2):
                for k in range(4):
                    E += II(f"v_accvgpr_read_b32 v{52 + 4*h + k}, a{oacc(2*ks + h, t) + k}")
            E += mid
            for k in range(4): E += II(f"v_pk_mul_f32 {vr(52+2*k,2)}, {vr(52+2*k,2)}, {vr(rc,2)}")
            for k in range(4): E += II(f"v_cvt_pk_bf16_f32 v{60+k}, v{52+2*k}, v{53+2*k}")
            E += II(f"ds_write_b128 v{V_OW if ks < 2 else V_OWB}, {vr(60)} offset:{(t*8+ks)*1024}" if t < 4 else f"ds_write_b128 v{V_OW4}, {vr(60)} offset:{ks*1024}")
            nfr += 1
        if OPT['stamps'] and OPT.get('oest'): E += [Raw("\n  ".join(x.txt for x in stamp(f"oe{t}")))] + II("s_waitcnt lgkmcnt(0)")
    E, q = vm_waits(E, ["cnt"] + ["wo2"] * 8)
    E, pend = lgkm_waits(E, final_zero=True)
    E, n = hazards(E)
    return E + II("s_barrier"), q

def o_read(dst, t, ks):
    if t < 8: return I(f"ds_read_b128 {vr(dst)}, v{V_OR} offset:{(t*8+ks)*1024}")
    return I(f"ds_read_b128 {vr(dst)}, v{V_OR8} offset:{ks*1024}")
V_PSC = [196, 197, 198, 199]
V_OWNA = 204; S_OWN = "s49"
OWNB = 73728
OWN_OOL = []
OWN_BLK = {}
def pstore(src, t, cp):
    v = V_PSC[cp] if OPT['own'] else V_PS
    return (II(f"s_add_u32 s51, {S_SOFFP}, {(cp*9 + t)*16384}"),
            I(f"buffer_store_dwordx4 {vr(src)}, v{v}, {SRD_P}, s51 offen {OPT['pst']}"))
def own_hook(src, t, cp):
    if not OPT['own']: return []
    OWN_BLK.setdefault(t, []).extend(II(f"L_own_{t}_{cp}:", f"ds_write_b128 v{V_OWNA}, {vr(src)} offset:{t*1024}", f"s_branch L_ownb_{t}_{cp}"))
    return II(f"s_cmp_eq_u32 {S_OWN}, {cp}", f"s_cbranch_scc1 L_own_{t}_{cp}", f"L_ownb_{t}_{cp}:")

NP1 = 2
def acc1(t, m): return 64 + (t * 8 + m) * 4
def acc2(t, m): return 128 + ((t & 1) * 8 + m) * 4
def bfr1(par, t): return 2 + (par * 4 + t) * 4
STG = [48, 52, 56, 60]

def tile_epilogue(accf, t, k0):
    out = []
    for cp in range(4):
        a0, a1 = accf(t, 2*cp), accf(t, 2*cp + 1)
        d = STG[(k0 + cp) & 3]
        cv = II(f"v_cvt_pk_bf16_f32 v{d}, v{a0}, v{a0+1}", f"v_cvt_pk_bf16_f32 v{d+1}, v{a0+2}, v{a0+3}",
                f"v_cvt_pk_bf16_f32 v{d+2}, v{a1}, v{a1+1}", f"v_cvt_pk_bf16_f32 v{d+3}, v{a1+2}, v{a1+3}")
        pre, st = pstore(d, t, cp)
        if OPT.get('x_nost') and not (t == 8 and cp == 3): st = I("s_nop 0")
        st.tag = f"st{t}"
        out.append((cv, (pre, st), own_hook(d, t, cp)))
    return out

def out_proj(queue):
    L = []; A = lambda *x: L.extend(II(*x))
    A(f"s_mul_i32 {S_SOFFP}, {S_W}, {4*9*16384}")
    OWN_OOL.clear(); OWN_BLK.clear()
    if OPT['own']:
        A(f"s_lshr_b32 s50, {S_HP}, 2", f"s_and_b32 s51, {S_HP}, 3", f"s_cmp_eq_u32 s50, {S_W}", f"s_cselect_b32 {S_OWN}, s51, 7")
        for cp in range(4):
            A(f"s_cmp_eq_u32 {S_OWN}, {cp}", "s_cselect_b32 s50, 0x40000000, 0", f"v_or_b32 v{V_PSC[cp]}, s50, v{V_PS}")
        A(f"v_add_u32 v{V_OWNA}, {OWNB}, v{V_OR}")
    NP = OPT['np1']
    G = 8 * NP
    ms = [mfma(vr(acc1(t, m)), wofrag(ks, m), vr(bfr1(ks & 1, t)), ("0" if ks == 0 else vr(acc1(t, m)))) for ks in range(8) for m in range(8) for t in range(NP)]
    bt = lambda ks: 2 + 4 * ks
    P1 = len(ms)
    for t in range(NP, 9):
        ms += [mfma(vr(acc2(t, m)), wofrag(ks, m), vr(bt(ks)), ("0" if ks == 0 else vr(acc2(t, m)))) for ks in range(8) for m in range(8)]
    S = Sched(ms)
    def reads(ks, g0): S.spread(wo_reads(ks), [g0 + i // 2 for i in range(16)])
    def dmas(ks, g0, step=4): put_dmas(S, wo_dma_t(ks), [g0 + step * i for i in range(8)])
    def put_free(ins, g0):
        g = g0
        while S.cost(g) + COST[ins.kind] > 8: g += 1
        S.put(g, ins); return g
    def epi(t, accf, g0, stride):
        for cp, (cv, (spre, st), hook) in enumerate(tile_epilogue(accf, t, 0)):
            g = g0 + cp * stride
            S.spread(cv, [g, g, g + 1, g + 1])
            for p in spre: S.put(g + 1, p)
            for p in hook: S.put(g + 2, p)
            S.put(g + 2, st)
        if OPT['own']:
            blk = OWN_BLK.pop(t)
            S.put(g0 + 3 * stride + 4, Raw(f"s_branch L_ownx_{t}\n" + "\n".join((x.txt if x.kind == 'label' else "  " + x.txt) for x in blk) + f"\nL_ownx_{t}:"))
    if NP == 2:
        pre = [o_read(bfr1(0, t), t, 0) for t in range(NP)]
        S.put(0, VmNeed("wo4")); reads(4, 0)
        S.put(9, "s_waitcnt lgkmcnt(0)"); dmas(6, 11, 3)
        S.put(33, VmNeed("wo5")); reads(5, 33)
        S.put(42, "s_waitcnt lgkmcnt(0)"); dmas(7, 44, 3)
        S.put(84, VmNeed("wo6")); reads(6, 84)
        S.put(100, VmNeed("wo7")); reads(7, 100)
        for ks in range(7):
            g = ks * G + (1 if ks else 8)
            for t in range(NP):
                g = put_free(o_read(bfr1((ks + 1) & 1, t), t, ks + 1), g) + 1
            assert g <= (ks + 1) * G - 3, (ks, g)
        g = 6 * G + 4
        for ks in (2, 3, 6, 7): g = put_free(o_read(bt(ks), NP, ks), g) + 1
        g = 7 * G + 1
        for ks in (0, 1): g = put_free(o_read(bt(ks), NP, ks), g) + 1
        base = P1
        for ks in (4, 5): put_free(o_read(bt(ks), NP, ks), base + 1)
        epi(0, acc1, base + 4, 7); epi(1, acc1, base + 32, 7)
    else:
        assert NP == 0
        pre = [o_read(bt(ks), 0, ks) for ks in range(8)]
        S.put(0, VmNeed("wo4")); reads(4, 0)
        S.put(9, "s_waitcnt lgkmcnt(0)"); dmas(6, 11, 2)
        S.put(10, VmNeed("wo5"));
        S.spread(wo_reads(5), [12, 12, 14, 14, 16, 16, 18, 18, 20, 20, 22, 22, 24, 24, 26, 26])
        S.put(28, "s_waitcnt lgkmcnt(0)"); dmas(7, 30, 2)
        S.put(46, VmNeed("wo6")); S.spread(wo_reads(6), [46, 46, 46, 46] + [47 + i // 4 for i in range(12)])
        S.put(54, VmNeed("wo7")); S.spread(wo_reads(7), [54, 54, 54, 54] + [55 + i // 12 for i in range(12)])
    for t in range(NP, 9):
        b = P1 + (t - NP) * 64
        if t > NP: epi(t - 1, acc2, b + 6, 12)
        if t < 8:
            for ks in range(8):
                g = b + 8 * ks + 8
                if g >= b + 64: g = b + 64 + 1
                put_free(o_read(bt(ks), t + 1, ks), g)
    if OPT['fused']:
        g0 = P1 + (3 - NP) * 64 + 49
        S.put(g0, f"s_lshl_b32 s50, {S_W}, 7", f"s_lshl_b32 s52, {S_HP}, 2", "s_add_u32 s50, s50, s52")
        S.spread([f"v_lshlrev_b32 v36, 13, {V_LANE}", "v_add_u32 v36, s50, v36", "v_mov_b32 v37, 1"], [g0 + 1, g0 + 1, g0 + 2])
        S.put(g0 + 3, f"s_lshr_b32 s50, {S_HP}, 2", "s_lshl_b32 s50, s50, 7")
        S.spread([f"v_lshrrev_b32 v46, 4, {V_LANE}", "v_lshlrev_b32 v46, 9, v46", f"v_and_b32 v47, 15, {V_LANE}",
                  "v_lshl_add_u32 v46, v47, 2, v46", "v_add_u32 v46, s50, v46"], [g0 + 4, g0 + 4, g0 + 5, g0 + 9, g0 + 9])
        b = P1 + (8 - NP) * 64
        fa = I(f"buffer_store_dword v37, v36, {SRD_F}, 0 offen sc1"); fa.tag = "fl"
        if OPT['early']:
            S.put(b + 40, VmNeed("st3")); S.put(b + 41, fa)
            pl = I(f"buffer_load_dword v47, v46, {SRD_F}, 0 offen sc1"); pl.tag = "poll"
            S.put(b + 60, pl)
    if OPT['stamps'] and OPT.get('opst'):
        for nm, g in (("w1", 127), ("w3", 255), ("w5", 383), ("w8", 575)):
            S.put(g, Raw("\n  ".join(x.txt for x in stamp(nm))))
            S.put(g, "s_waitcnt lgkmcnt(0)")
    pre = II(f"v_mov_b32 v56, {LFLAG}", f"ds_read_b128 {vr(52)}, v56") + pre
    pre += II("s_waitcnt lgkmcnt(0)", "v_or3_b32 v52, v52, v53, v54", "v_or_b32 v52, v52, v55", "s_nop 0", "v_readfirstlane_b32 s50, v52", "s_nop 3",
              f"s_andn2_b32 s50, s50, {S_SAFE}", "s_cmp_lg_u32 s50, 0", "s_cbranch_scc1 L_restart")
    seq = pre + S.flat()
    tail = II("s_nop 7")
    for cp, (cv, (spre, st), hook) in enumerate(tile_epilogue(acc2, 8, 0)):
        tail += cv + spre + hook + [st]
    if OPT['own']:
        tail += II("s_branch L_ownx_8") + OWN_BLK.pop(8) + II("L_ownx_8:")
    if OPT['stamps'] and OPT.get('opst'): tail += stamp("st_iss")
    if OPT['fused']:
        fb = I(f"buffer_store_dword v37, v36, {SRD_F}, 0 offen offset:512 sc1"); fb.tag = "fl"
        fc = I(f"buffer_store_dword v37, v36, {SRD_F}, 0 offen offset:1024 sc1"); fc.tag = "fl"
        tail += [VmNeed("poll"), fb, VmNeed("st8"), fc] if OPT['early'] else [VmNeed("st8"), fa, fb, fc]
    seq, q = vm_waits(seq + tail, queue)
    seq, pend = lgkm_waits(seq)
    seq, n = hazards(seq)
    if OPT['verbose']: print(S.report("out_proj"), "nops", n)
    L += seq
    return L, q

SPIN = 1 << 22
def reduce_phase_groups():
    L = []; A = lambda *x: L.extend(II(*x))
    DAT = lambda g, tt, k: 64 + ((g * 2 + tt) * 4 + k) * 4
    D8 = lambda k: 192 + 4 * k
    ACC = lambda g, tt: [208, 216, 224, 232, 240, 248, 2, 10][g * 2 + tt]
    A8 = 18
    T0, T1 = 26, 28
    V_POLL, V_FL, V_L16, V_OUT = 46, 47, 32, 33
    A(f"v_lshrrev_b32 v30, 4, {V_LANE}", f"v_and_b32 v31, 15, {V_LANE}", f"v_lshlrev_b32 v{V_L16}, 4, {V_LANE}",
      f"v_lshlrev_b32 v{V_OUT}, 11, v31", f"v_lshl_add_u32 v{V_OUT}, v30, 4, v{V_OUT}")
    A(f"s_mul_i32 s32, {S_B}, {144*2048}", f"s_lshl_b32 s50, {S_BR}, 10", "s_add_u32 s32, s32, s50", f"s_lshl_b32 s50, {S_HP}, 6", "s_add_u32 s32, s32, s50")
    A(f"s_mul_i32 s33, {S_HP}, {9*16384}")
    A(f"s_lshl_b32 s50, {S_W}, 14", "s_add_u32 s34, s33, s50", "s_add_u32 s35, s34, 65536",
      f"s_add_u32 s36, s33, {8*16384}", f"s_lshl_b32 s50, {S_W}, 12", "s_add_u32 s36, s36, s50",
      f"s_lshl_b32 s41, {S_W}, 2")
    A("s_mov_b32 s37, 0", "s_mov_b32 s38, 0", f"s_mov_b32 s53, {SPIN}")
    if OPT['own']:
        A(f"s_lshr_b32 s46, {S_HP}, 2", f"s_and_b32 s47, {S_HP}, 3", f"s_lshl_b32 s50, {S_W}, 10", f"s_add_u32 s50, s50, {OWNB}", f"v_add_u32 v44, s50, v{V_L16}")
        if not OPT['latebar']:
            A("s_waitcnt lgkmcnt(0)", "s_barrier", "ds_read_b128 v[36:39], v44", "ds_read_b128 v[40:43], v44 offset:4096")
    def unpack_add(acc, src, first):
        out = []
        for k in range(4):
            if first:
                out += [f"v_lshlrev_b32 v{acc+2*k}, 16, v{src+k}", f"v_and_b32 v{acc+2*k+1}, 0xffff0000, v{src+k}"]
            else:
                t = (T0, T1)[k & 1]
                out += [f"v_lshlrev_b32 v{t}, 16, v{src+k}", f"v_and_b32 v{t+1}, 0xffff0000, v{src+k}",
                        f"v_pk_add_f32 v[{acc+2*k}:{acc+2*k+1}], v[{acc+2*k}:{acc+2*k+1}], v[{t}:{t+1}]"]
        return out
    items = [(tt, g) for tt in range(2) for g in range(4)] + [(2, None)]
    if OPT['early']: A("s_branch L_red_first")
    A("L_red_loop:")
    A("s_cmp_eq_u32 s37, 0x1ff", "s_cbranch_scc1 L_red_nopoll")
    A(f"buffer_load_dword v{V_FL}, v{V_POLL}, {SRD_F}, 0 offen sc1")
    A("L_red_nopoll:", "s_waitcnt vmcnt(0)")
    A("s_andn2_b32 s42, s37, s38")
    for i, (tt, g) in enumerate(items):
        if tt < 2 and g == 0: A(f"s_and_b32 s50, s42, {hex(15 << (4 * tt))}", f"s_cbranch_scc0 L_red_nosumc{tt}")
        A(f"s_bitcmp1_b32 s42, {i}", f"s_cbranch_scc0 L_red_nosum{i}")
        for k in range(4):
            A(unpack_add(ACC(g, tt), DAT(g, tt, k), k == 0) if tt < 2 else unpack_add(A8, D8(k), k == 0))
        A(f"L_red_nosum{i}:")
        if tt < 2 and g == 3: A(f"L_red_nosumc{tt}:")
    A("s_mov_b32 s38, s37", "s_cmp_eq_u32 s38, 0x1ff", "s_cbranch_scc1 L_red_done")
    A("L_red_first:")
    A(f"v_cmp_eq_u32 vcc, 1, v{V_FL}", "s_nop 3", "s_mov_b32 s39, vcc_lo", "s_lshr_b32 s43, vcc_hi, s41", "s_and_b32 s43, s43, 15", "s_mov_b32 s40, s37")
    A("s_sub_u32 s53, s53, 1", "s_cmp_eq_u32 s53, 0", "s_cselect_b32 s39, -1, s39", "s_cselect_b32 s43, 15, s43", "s_cselect_b32 s53, 1, s53")
    for i, (tt, g) in enumerate(items):
        if tt < 2 and g == 0:
            A(f"s_bfe_u32 s50, s37, {hex((4 << 16) | (4 * tt))}", "s_cmp_eq_u32 s50, 15", f"s_cbranch_scc1 L_red_noissc{tt}",
              f"s_bfe_u32 s50, s39, {hex((16 << 16) | (16 * tt))}", "s_cmp_eq_u32 s50, 0", f"s_cbranch_scc1 L_red_noissc{tt}")
        A(f"s_bitcmp1_b32 s37, {i}", f"s_cbranch_scc1 L_red_noiss{i}")
        if tt < 2:
            A(f"s_bfe_u32 s50, s39, {hex((4 << 16) | (16 * tt + 4 * g))}", "s_cmp_eq_u32 s50, 15")
        else:
            A("s_cmp_eq_u32 s43, 15")
        A(f"s_cbranch_scc0 L_red_noiss{i}")
        if tt < 2: A(f"s_add_u32 s50, s{34+tt}, {g*4096}")
        if OPT['own']:
            A(f"s_cmp_eq_u32 s46, {g}" if tt < 2 else f"s_cmp_eq_u32 s46, {S_W}", "s_cselect_b32 s44, s47, 7")
        for k in range(4):
            o = f" offset:{k*1024}" if k else ""
            va = V_L16
            if OPT['own']:
                A(f"s_cmp_eq_u32 s44, {k}", "s_cselect_b32 s45, 0x40000000, 0", f"v_or_b32 v45, s45, v{V_L16}"); va = 45
            if tt < 2: A(f"buffer_load_dwordx4 {vr(DAT(g, tt, k))}, v{va}, {SRD_P}, s50 offen{o} {OPT['rld']}")
            else: A(f"buffer_load_dwordx4 {vr(D8(k))}, v{va}, {SRD_P}, s36 offen{o} {OPT['rld']}")
        A(f"s_bitset1_b32 s37, {i}", f"L_red_noiss{i}:")
        if tt < 2 and g == 3: A(f"L_red_noissc{tt}:")
    if OPT.get('rdst'):
        A("s_cmp_eq_u32 s40, 0", "s_cbranch_scc0 L_rs1", "s_cmp_lg_u32 s37, 0", "s_cbranch_scc0 L_rs1", stamp("r_first"), "L_rs1:")
        A("s_cmp_eq_u32 s37, 0x1ff", "s_cbranch_scc0 L_rs2", stamp("r_alliss"), "L_rs2:")
    A("s_cmp_lg_u32 s37, s40", "s_cbranch_scc1 L_red_loop", f"s_sleep {OPT['psleep']}", "s_branch L_red_loop")
    A("L_red_done:")
    if OPT.get('rdst'): A(stamp("r_summed"))
    A(f"s_lshl_b32 s50, {S_W}, 11", f"v_lshlrev_b32 v30, 5, {V_LANE}", f"v_add_u32 v30, {WOB}, v30", "v_add_u32 v31, s50, v30",
      f"ds_write_b128 v31, {vr(A8)}", f"ds_write_b128 v31, {vr(A8+4)} offset:16")
    late = OPT['own'] and OPT['latebar']
    for tt in range(2):
        a0 = ACC(0, tt)
        for g in range(1, 4):
            for k in range(4): A(f"v_pk_add_f32 v[{a0+2*k}:{a0+2*k+1}], v[{a0+2*k}:{a0+2*k+1}], v[{ACC(g,tt)+2*k}:{ACC(g,tt)+2*k+1}]")
    if late:
        A("s_waitcnt lgkmcnt(0)", "s_barrier", "ds_read_b128 v[36:39], v44", "ds_read_b128 v[40:43], v44 offset:4096")
    for tt in range(2):
        a0 = ACC(0, tt)
        if OPT['own']: A(("s_waitcnt lgkmcnt(1)" if late else "s_waitcnt lgkmcnt(2)") if tt == 0 else "s_waitcnt lgkmcnt(0)" if late else "s_nop 0", unpack_add(a0, 36 + 4 * tt, False))
        for k in range(4): A(f"v_cvt_pk_bf16_f32 v{64+4*tt+k}, v{a0+2*k}, v{a0+2*k+1}")
        A(f"s_lshl_b32 s50, {S_W}, 15", f"s_add_u32 s50, s50, s32", f"s_add_u32 s50, s50, {tt*4*32768}")
        A(f"buffer_store_dwordx4 {vr(64+4*tt)}, v{V_OUT}, {SRD_O}, s50 offen {OPT['ost']}")
    if not late: A("s_waitcnt lgkmcnt(0)", "s_barrier")
    A(f"s_cmp_eq_u32 {S_W}, 0", "s_cbranch_scc0 L_red_end")
    for g in range(4):
        A(f"ds_read_b128 {vr(80+8*g)}, v30 offset:{g*2048}", f"ds_read_b128 {vr(84+8*g)}, v30 offset:{g*2048+16}")
    if OPT['own']: A("ds_read_b128 v[36:39], v44 offset:8192")
    A("s_waitcnt lgkmcnt(0)")
    for g in range(1, 4):
        for k in range(4): A(f"v_pk_add_f32 v[{80+2*k}:{81+2*k}], v[{80+2*k}:{81+2*k}], v[{80+8*g+2*k}:{81+8*g+2*k}]")
    if OPT['own']: A(unpack_add(80, 36, False))
    for k in range(4): A(f"v_cvt_pk_bf16_f32 v{72+k}, v{80+2*k}, v{81+2*k}")
    A(f"s_add_u32 s50, s32, {8*32768}")
    A(f"buffer_store_dwordx4 {vr(72)}, v{V_OUT}, {SRD_O}, s50 offen {OPT['ost']}")
    A("L_red_end:")
    L2, n = hazards(L)
    return L2

def reduce_phase():
    if not OPT['linred']: return reduce_phase_groups()
    assert OPT['own'] and OPT['early']
    L = []; A = lambda *x: L.extend(II(*x))
    DA = lambda p: 64 + 4 * p
    DB = lambda p: 128 + 4 * p
    D8 = lambda k: 192 + 4 * k
    ACA, ACB, A8 = 208, 216, 224
    T0, T1 = 26, 28
    V_POLL, V_FL, V_L16, V_OUT = 46, 47, 32, 33
    A(f"v_lshrrev_b32 v30, 4, {V_LANE}", f"v_and_b32 v31, 15, {V_LANE}", f"v_lshlrev_b32 v{V_L16}, 4, {V_LANE}",
      f"v_lshlrev_b32 v{V_OUT}, 11, v31", f"v_lshl_add_u32 v{V_OUT}, v30, 4, v{V_OUT}")
    A(f"s_mul_i32 s33, {S_HP}, {9*16384}")
    A(f"s_lshl_b32 s50, {S_W}, 14", "s_add_u32 s34, s33, s50", "s_add_u32 s35, s34, 65536",
      f"s_add_u32 s36, s33, {8*16384}", f"s_lshl_b32 s50, {S_W}, 12", "s_add_u32 s36, s36, s50",
      f"s_lshl_b32 s41, {S_W}, 2", f"s_mov_b32 s53, {SPIN}")
    def loads(base, dst):
        for p in range(16):
            if p % 4 == 0: A(f"s_add_u32 s50, {base}, {p*1024}")
            o = f" offset:{(p % 4)*1024}" if p % 4 else ""
            A(f"s_cmp_eq_u32 {S_HP}, {p}", f"s_cbranch_scc1 L_rl_{base}_{p}",
              f"buffer_load_dwordx4 {vr(dst(p))}, v{V_L16}, {SRD_P}, s50 offen{o} {OPT['rld']}", f"L_rl_{base}_{p}:")
    def poll(name, test):
        A(f"L_poll_{name}:", f"v_cmp_eq_u32 vcc, 1, v{V_FL}", "s_nop 3")
        A(test)
        A(f"s_cbranch_scc1 L_poll_{name}_ok", "s_sub_u32 s53, s53, 1", "s_cmp_eq_u32 s53, 0", f"s_cbranch_scc1 L_poll_{name}_ok",
          f"s_sleep {OPT['psleep']}", f"buffer_load_dword v{V_FL}, v{V_POLL}, {SRD_F}, 0 offen sc1", "s_waitcnt vmcnt(0)", f"s_branch L_poll_{name}",
          f"L_poll_{name}_ok:")
    def unpack_add(acc, src):
        out = []
        for k in range(4):
            t = (T0, T1)[k & 1]
            out += [f"v_lshlrev_b32 v{t}, 16, v{src+k}", f"v_and_b32 v{t+1}, s60, v{src+k}",
                    f"v_pk_add_f32 v[{acc+2*k}:{acc+2*k+1}], v[{acc+2*k}:{acc+2*k+1}], v[{t}:{t+1}]"]
        return out
    A("s_mov_b32 s60, 0xffff0000")
    one = OPT['onepoll']
    if one:
        A(f"s_cmp_eq_u32 {S_W}, 0", "s_cbranch_scc0 L_poll_a_skip")
    poll("a", ["s_and_b32 s50, vcc_lo, 0xffff", "s_cmp_eq_u32 s50, 0xffff"])
    if one:
        A("L_poll_a_skip:", "s_waitcnt lgkmcnt(0)", "s_barrier")
    loads("s34", DA)
    A(f"s_lshl_b32 s50, {S_W}, 10", f"s_add_u32 s50, s50, {OWNB}", f"v_add_u32 v44, s50, v{V_L16}")
    if not one: A("s_waitcnt lgkmcnt(0)", "s_barrier")
    A("ds_read_b128 v[36:39], v44", "ds_read_b128 v[40:43], v44 offset:4096")
    for r in range(ACA, ACA + 24): A(f"v_mov_b32 v{r}, 0")
    A(f"s_mul_i32 s32, {S_B}, {144*2048}", f"s_lshl_b32 s50, {S_BR}, 10", "s_add_u32 s32, s32, s50", f"s_lshl_b32 s50, {S_HP}, 6", "s_add_u32 s32, s32, s50")
    if one:
        A(f"s_cmp_eq_u32 {S_W}, 0", "s_cbranch_scc0 L_poll_b_skip")
        A(f"buffer_load_dword v{V_FL}, v{V_POLL}, {SRD_F}, 0 offen sc1", "s_waitcnt vmcnt(0)")
        poll("b", ["s_lshr_b32 s50, vcc_lo, 16", "s_and_b32 s51, vcc_hi, 0xffff", "s_lshl_b32 s51, s51, 16", "s_or_b32 s50, s50, s51", "s_cmp_eq_u32 s50, -1"])
        A("L_poll_b_skip:", "s_waitcnt vmcnt(0)", "s_barrier")
    else:
        A(f"buffer_load_dword v{V_FL}, v{V_POLL}, {SRD_F}, 0 offen sc1", "s_waitcnt vmcnt(0)")
        poll("b", ["s_lshr_b32 s50, vcc_lo, 16", "s_lshr_b32 s51, vcc_hi, s41", "s_and_b32 s51, s51, 15", "s_lshl_b32 s51, s51, 16", "s_or_b32 s50, s50, s51",
                   "s_cmp_eq_u32 s50, 0xfffff"])
    loads("s35", DB)
    for k in range(4):
        o = f" offset:{k*1024}" if k else ""
        A(f"s_add_u32 s50, s41, {k}", f"s_cmp_eq_u32 {S_HP}, s50", f"s_cbranch_scc1 L_rl8_{k}",
          f"buffer_load_dwordx4 {vr(D8(k))}, v{V_L16}, {SRD_P}, s36 offen{o} {OPT['rld']}", f"L_rl8_{k}:")
    for p in range(16):
        A(f"s_cmp_eq_u32 {S_HP}, {p}", f"s_cbranch_scc1 L_rs_a{p}", unpack_add(ACA, DA(p)), f"L_rs_a{p}:")
    A("s_waitcnt lgkmcnt(0)", unpack_add(ACA, 36))
    for k in range(4): A(f"v_cvt_pk_bf16_f32 v{64+k}, v{ACA+2*k}, v{ACA+2*k+1}")
    A(f"s_lshl_b32 s50, {S_W}, 15", "s_add_u32 s37, s50, s32")
    A(f"buffer_store_dwordx4 {vr(64)}, v{V_OUT}, {SRD_O}, s37 offen {OPT['ost']}")
    for p in range(16):
        A(f"s_waitcnt vmcnt({max(15 - p + 4 + 1 - 2, 0)})", f"s_cmp_eq_u32 {S_HP}, {p}", f"s_cbranch_scc1 L_rs_b{p}", unpack_add(ACB, DB(p)), f"L_rs_b{p}:")
    A(unpack_add(ACB, 40))
    for k in range(4): A(f"v_cvt_pk_bf16_f32 v{68+k}, v{ACB+2*k}, v{ACB+2*k+1}")
    A(f"s_add_u32 s37, s37, {4*32768}")
    A("s_waitcnt vmcnt(1)")
    for k in range(4):
        A(f"s_add_u32 s50, s41, {k}", f"s_cmp_eq_u32 {S_HP}, s50", f"s_cbranch_scc1 L_rs_c{k}", unpack_add(A8, D8(k)), f"L_rs_c{k}:")
    A(f"buffer_store_dwordx4 {vr(68)}, v{V_OUT}, {SRD_O}, s37 offen {OPT['ost']}")
    A(f"s_lshl_b32 s50, {S_W}, 11", f"v_lshlrev_b32 v30, 5, {V_LANE}", f"v_add_u32 v30, {WOB}, v30", "v_add_u32 v31, s50, v30",
      f"ds_write_b128 v31, {vr(A8)}", f"ds_write_b128 v31, {vr(A8+4)} offset:16")
    A("s_waitcnt lgkmcnt(0)", "s_barrier", f"s_cmp_eq_u32 {S_W}, 0", "s_cbranch_scc0 L_red_end")
    for g in range(4):
        A(f"ds_read_b128 {vr(80+8*g)}, v30 offset:{g*2048}", f"ds_read_b128 {vr(84+8*g)}, v30 offset:{g*2048+16}")
    A("ds_read_b128 v[36:39], v44 offset:8192")
    A("s_waitcnt lgkmcnt(0)")
    for g in range(1, 4):
        for k in range(4): A(f"v_pk_add_f32 v[{80+2*k}:{81+2*k}], v[{80+2*k}:{81+2*k}], v[{80+8*g+2*k}:{81+8*g+2*k}]")
    A(unpack_add(80, 36))
    for k in range(4): A(f"v_cvt_pk_bf16_f32 v{72+k}, v{80+2*k}, v{81+2*k}")
    A(f"s_add_u32 s50, s32, {8*32768}")
    A(f"buffer_store_dwordx4 {vr(72)}, v{V_OUT}, {SRD_O}, s50 offen {OPT['ost']}")
    A("L_red_end:")
    L2, n = hazards(L)
    return L2

def dump_regs(regs, slot, kind='v'):
    L = []; A = lambda *x: L.extend(II(*x))
    A("s_add_u32 s66, s58, 0x4000000", "s_addc_u32 s67, s59, 0",
      "s_lshl_b32 s50, s2, 2", f"s_add_u32 s50, s50, {S_W}", "s_lshl_b32 s50, s50, 16",
      f"v_lshlrev_b32 v253, 2, {V_LANE}", "v_add_u32 v253, s50, v253")
    for i, r in enumerate(regs):
        if kind == 'a':
            A(f"v_accvgpr_read_b32 v254, a{r}", "s_nop 0")
            A(f"global_store_dword v253, v254, s[66:67]")
        else:
            A(f"global_store_dword v253, v{r}, s[66:67]")
        A("v_add_u32 v253, 256, v253")
    A("s_waitcnt vmcnt(0)")
    return L

def main_kernel():
    L = []
    L += setup()
    L += stamp("start")
    L += phase_q()
    L += stamp("q_done")
    if OPT['dump'] == 'q':
        L += II("s_nop 7") + dump_regs([qfrag(t, s) + k for t in range(5) for s in range(4) for k in range(4)], 0)
        L += II("s_waitcnt vmcnt(0)", "s_endpgm")
    L += attention()
    if OPT['dump'] == 'o':
        L += II("s_nop 7") + dump_regs([oacc(dt, t) + k for t in range(5) for dt in range(8) for k in range(4)] + [lacc(t) for t in range(5)], 0, 'a')
        L += II("s_waitcnt vmcnt(0)", "s_endpgm")
    e, q = o_epilogue(); L += e
    L += stamp("o_done")
    if OPT.get('stop') == 'o':
        L += II("s_waitcnt vmcnt(0)") + stamp("end") + stamp_dump() + II("L_main_end:", "s_endpgm") + safe_paths()
        return L
    e, q = out_proj(q); L += e
    L += stamp("op_done")
    if OPT['fused']:
        L += reduce_phase()
        L += stamp("red_done")
    L += tr_dump()
    if not OPT.get('noendwait') or OPT['stamps']: L += II("s_waitcnt vmcnt(0)")
    L += stamp("end")
    L += stamp_dump()
    L += II("L_main_end:", "s_endpgm")
    L += OWN_OOL + ATT_OOL
    L += safe_paths()
    return L

def reduce_kernel():
    L = []; A = lambda *x: L.extend(II(*x))
    A("s_cmp_ge_u32 s2, 256", "s_cbranch_scc1 L_red_end")
    A("s_load_dwordx2 s[4:5], s[0:1], 80", "s_load_dwordx2 s[6:7], s[0:1], 96")
    A("v_lshrrev_b32 v2, 6, v0", "v_and_b32 v1, 63, v0", "s_nop 0", "v_readfirstlane_b32 s12, v2", "s_nop 3")
    A("s_waitcnt lgkmcnt(0)")
    A("s_mul_i32 s13, s2, 9", "s_add_u32 s13, s13, s12", "s_lshl_b32 s13, s13, 14")
    A("s_add_u32 s16, s6, s13", "s_addc_u32 s17, s7, 0", "s_and_b32 s17, s17, 0xffff", "s_mov_b32 s18, 16384", "s_mov_b32 s19, 0x20000")
    A("v_lshlrev_b32 v2, 4, v1")
    for p in range(16):
        A(f"buffer_load_dwordx4 v[{8+4*p}:{11+4*p}], v2, s[16:19], 0 offen offset:{(p%4)*1024}" if p < 4 else
          f"buffer_load_dwordx4 v[{8+4*p}:{11+4*p}], v2, s[16:19], s{20+p//4} offen offset:{(p%4)*1024}")
        if p == 3: A("s_mov_b32 s21, 4096", "s_mov_b32 s22, 8192", "s_mov_b32 s23, 12288")
    A("s_lshr_b32 s14, s2, 4", "s_and_b32 s15, s2, 15",
      "s_and_b32 s24, s14, 7", "s_lshr_b32 s25, s14, 3",
      "s_mul_i32 s24, s24, 144", "s_lshl_b32 s26, s12, 4", "s_add_u32 s24, s24, s26", "s_lshl_b32 s24, s24, 11",
      "s_lshl_b32 s25, s25, 10", "s_lshl_b32 s15, s15, 6", "s_add_u32 s24, s24, s25", "s_add_u32 s24, s24, s15")
    A("v_and_b32 v3, 15, v1", "v_lshlrev_b32 v3, 11, v3", "v_lshrrev_b32 v4, 4, v1", "v_lshl_add_u32 v3, v4, 4, v3")
    A("s_mov_b32 s28, s4", "s_and_b32 s29, s5, 0xffff", "s_mov_b32 s30, 2359296", "s_mov_b32 s31, 0x20000")
    acc = 80
    for p in range(16):
        A(f"s_waitcnt vmcnt({15-p})")
        for k in range(4):
            r = 8 + 4 * p + k
            if p == 0:
                A(f"v_lshlrev_b32 v{acc+2*k}, 16, v{r}", f"v_and_b32 v{acc+2*k+1}, 0xffff0000, v{r}")
            else:
                A(f"v_lshlrev_b32 v6, 16, v{r}", f"v_and_b32 v7, 0xffff0000, v{r}",
                  f"v_add_f32 v{acc+2*k}, v{acc+2*k}, v6", f"v_add_f32 v{acc+2*k+1}, v{acc+2*k+1}, v7")
    for k in range(4): A(f"v_cvt_pk_bf16_f32 v{8+k}, v{acc+2*k}, v{acc+2*k+1}")
    A("buffer_store_dwordx4 v[8:11], v3, s[28:31], s24 offen")
    A("s_waitcnt vmcnt(0)")
    A("L_red_end:", "s_endpgm")
    return L

def kernel_text(name, body, vgpr, accum, sgpr=102):
    return f""".globl {name}
.p2align 8
.type {name},@function
{name}:
{text(body)}
"""
def kd(name, nfv, accum, sgpr=102):
    return f""".amdhsa_kernel {name}
  .amdhsa_next_free_vgpr {nfv}
  .amdhsa_next_free_sgpr {sgpr}
  .amdhsa_accum_offset {accum}
  .amdhsa_group_segment_fixed_size 0
  .amdhsa_kernarg_size 104
  .amdhsa_user_sgpr_count 2
  .amdhsa_user_sgpr_kernarg_segment_ptr 1
  .amdhsa_system_sgpr_workgroup_id_x 1
.end_amdhsa_kernel
"""

def build():
    stamp_id[0] = 0; STAMPS.clear()
    k1 = NAME + "_kernel"; k2 = "reduce_heads_kernel"
    m = main_kernel()
    hdr = """; Fused  x@wq -> softmax(q k^T / sqrt(128)) v -> @wo  for both branches, one launch, 256 workgroups x 4 waves.
"""
    if OPT['fused']:
        hdr += f"; @launch grid=(256,1,1) block=(256,1,1) lds=163840\n"
    else:
        hdr += f"; @launch kernel={k1} grid=(256,1,1) block=(256,1,1) lds=163840\n"
        hdr += f"; @launch kernel={k2} grid=(256,1,1) block=(576,1,1) lds=0\n"
    s = hdr + '.amdgcn_target "amdgcn-amd-amdhsa--gfx950"\n.text\n'
    s += kernel_text(k1, m, 512, 256)
    if not OPT['fused']: s += kernel_text(k2, reduce_kernel(), 96, 96)
    s += '.section .rodata,"a"\n.p2align 6\n' + kd(k1, 512, 256)
    if not OPT['fused']: s += ".p2align 6\n" + kd(k2, 96, 96, 40)
    return s

if __name__ == "__main__":
    ap = argparse.ArgumentParser()
    ap.add_argument("-o", default="cdna_kernels/" + NAME + ".s")
    ap.add_argument("--dump"); ap.add_argument("--stamps", action="store_true"); ap.add_argument("-v", action="store_true")
    ap.add_argument("--opt", action="append", default=[])
    a = ap.parse_args()
    OPT['dump'] = a.dump; OPT['stamps'] = a.stamps; OPT['verbose'] = a.v
    for o in a.opt:
        k, v = o.split("=", 1)
        OPT[k] = {'True': True, 'False': False}.get(v, int(v) if v.lstrip('-').isdigit() else v)
    s = build()
    open(a.o, "w").write(s)
    if a.stamps:
        import json; json.dump(STAMPS, open(a.o + ".stamps.json", "w"))
    print("wrote", a.o, len(s), "bytes")
```

```python
import sys, argparse
from ir import *

NAME = "concat_heads__gqa_block_cached__mha_block_cached__near_ridge"
OPT = dict(pfat=12, pfexact=True, onepoll=True, linred=True, latebar=False, wsoff=0, own=True, early=True, l2pf=False, np1=0, pfw=1, pfkv=0, pfkvnt=False, psleep=8, ost='nt', noendwait=True, lthr=0, start2=True, pf=2, pfnt=False, fused=True, rld='sc1', rot=True, wnt=False, xnt=False, wont=False, bursts=(3, 6, 9), dump=None, stamps=False, stop=None, kvnt=True, pst="sc1", verbose=False)

VB = 0
KB = 65536
WB = 16384
XB = 114688
WOA = 131072
WOB = 98304
OB = 0
def kphys(k): return ((k + 1) & 3) * 16384
def vphys(k): return (k & 3) * 16384

SRD_X, SRD_WQ, SRD_K, SRD_V, SRD_WO, SRD_P = "s[4:7]", "s[8:11]", "s[12:15]", "s[16:19]", "s[20:23]", "s[24:27]"
SRD_F, SRD_D, SRD_O = "s[68:71]", "s[72:75]", "s[80:83]"
S_W, S_U, S_QH, S_CNT = "s28", "s29", "s30", "s31"
S_SOFFX, S_SOFFW0, S_UNUSED, S_MW, S_MX, S_DSLOT, S_RSLOT, S_DW, S_DX = "s32", "s33", "s34", "s35", "s36", "s37", "s38", "s39", "s40"
S_BW, S_BX = "s41", "s42"
S_SOFFK, S_SOFFV, S_MK, S_MV = "s45", "s46", "s47", "s48"
S_T0, S_T1, S_T2, S_T3 = "s50", "s51", "s52", "s53"
S_HP, S_B, S_BR, S_CL = "s54", "s55", "s56", "s57"
S_WS = "s[58:59]"
S_SOFFP = "s60"
S_STAMP = "s[62:63]"
S_FLAG = "s64"
S_SAFE = "s61"
S_BX3 = "s38"
LTHR = 0x4b800000
S_KS, S_X0, S_W0 = "s88", "s89", "s87"
S_TAU, S_TB, S_TQ, S_T4N, S_TMASK, S_TSH, S_TM, S_TS = "s78", "s79", "s43", "s44", "s34", "s49", "s61", "s95"

V_LANE = "v1"
V_WQR = [2, 3, 4, 5]; V_XR = 6; V_XR4 = 14; V_OW4 = 50; V_OWB = 51
V_WQD = [7, 8, 9, 10]; V_XD = [11, 12, 13]; V_TG, V_TI, V_TB, V_TV = 14, 15, 62, 63
V_KD = [16, 17, 18, 19]; V_VD = [20, 21]
V_KR = [22, 23, 24, 25]; V_VR = [26 + i for i in range(8)]
V_WOD = [34, 35, 36, 37]; V_WOR = [38, 39, 40, 41]
V_OW, V_OR, V_OR8, V_PS = 42, 43, 44, 45
VT = [46 + i for i in range(18)]
RB = 64
def grp(t, s): return RB + (t * 4 + s) * 8
def qacc(dt, t): return grp(t, dt >> 1) + 4 * (dt & 1)
def qfrag(t, s): return grp(t, s)
def Sreg(kt, t): return grp(t, kt) + 4
def Preg(par, t): return grp(t, 2 + par) + 4
def cinit(t): return 224 + 4 * t
V_C0, V_C1 = 244, 245
def vr(b, n=4): return f"v[{b}:{b+n-1}]"
def ar(b, n=4): return f"a[{b}:{b+n-1}]"
def oacc(dt, t): return t * 32 + dt * 4
def lacc(t): return 160 + 4 * t
A_ONES = 180
def abuf(i): return 184 + 4 * i
def bbuf(t): return [48, 52, 56, 60, 248][t]
def kbuf(kt, s): return 216 + 4 * (kt * 4 + s)

MF = "v_mfma_f32_16x16x32_bf16"
def mfma(d, a, b, c): return I(f"{MF} {d}, {a}, {b}, {c}")
SCALE = (128 ** -0.5) * 1.4426950408889634
import struct
def f2u(x): return struct.unpack("<I", struct.pack("<f", x))[0]

def NT(): return " nt" if OPT['kvnt'] else ""

def CNTOFF(): return 128 if OPT.get('dbgst') is not None else 0
stamp_id = [0]
def stamp(name):
    if not OPT['stamps']: return []
    i = stamp_id[0]; stamp_id[0] += 1
    STAMPS.append(name)
    return II("s_memrealtime s[66:67]", "s_memtime s[64:65]", "s_waitcnt lgkmcnt(0)",
              f"v_writelane_b32 v0, s66, {i}", f"v_writelane_b32 v0, s64, {32 + i}")
def stamp_dump():
    if not OPT['stamps']: return []
    if OPT.get('dbgst') is not None:
        return II(f"s_cmp_eq_u32 s2, {OPT['dbgst']}", "s_cbranch_scc0 L_nodbg", f"s_cmp_eq_u32 {S_W}, 0", "s_cbranch_scc0 L_nodbg",
                  "v_readlane_b32 s50, v0, 0", "s_nop 3", "v_subrev_u32 v0, s50, v0",
                  f"v_lshlrev_b32 v1, 2, {V_LANE}", "v_cmp_gt_u32 vcc, 16, v1", f"v_lshrrev_b32 v2, 2, v1", "v_mov_b32 v3, 0x1000", "v_cmp_gt_u32 vcc, 16, v2", "s_nop 1",
                  "v_cndmask_b32 v1, v3, v1, vcc", f"buffer_store_dword v0, v1, {SRD_D}, 0 offen", "L_nodbg:")
    return II("s_add_u32 s62, s58, 0x8000000", "s_addc_u32 s63, s59, 0", "s_lshl_b32 s65, s2, 2", f"s_add_u32 s65, s65, {S_W}", "s_lshl_b32 s65, s65, 8",
              f"v_lshlrev_b32 v1, 2, {V_LANE}", "v_add_u32 v1, s65, v1", "global_store_dword v1, v0, s[62:63]")
STAMPS = []

def setup():
    L = []
    A = lambda *x: L.extend(II(*x))
    A("s_cmp_ge_u32 s2, 256", "s_cbranch_scc1 L_main_end")
    if OPT['stamps'] and OPT.get('t0st'): A("s_memrealtime s[100:101]")
    A("s_load_dwordx8 s[68:75], s[0:1], 0", "s_load_dwordx2 s[76:77], s[0:1], 32",
      "s_load_dwordx8 s[80:87], s[0:1], 40", "s_load_dwordx2 s[88:89], s[0:1], 72",
      f"s_load_dwordx2 {S_WS}, s[0:1], 96", "s_load_dwordx4 s[96:99], s[0:1], 80")
    A("s_and_b32 s50, s2, 7", "s_lshr_b32 s51, s2, 3",
      f"s_lshr_b32 {S_BR}, s50, 2",
      "s_and_b32 s52, s50, 3", "s_lshl_b32 s52, s52, 2", "s_and_b32 s53, s51, 3", f"s_add_u32 {S_HP}, s52, s53",
      f"s_lshr_b32 {S_B}, s51, 2",
      f"s_lshl_b32 s52, {S_BR}, 3", f"s_add_u32 {S_CL}, s52, {S_B}")
    A("v_lshrrev_b32 v46, 6, v0", f"v_and_b32 {V_LANE}, 63, v0", "s_nop 0", f"v_readfirstlane_b32 {S_W}, v46", "s_nop 3")
    A(f"s_lshr_b32 {S_U}, {S_W}, 1", f"s_and_b32 {S_QH}, {S_W}, 1", f"s_mov_b32 {S_SAFE}, 0")
    A(lane_consts_q())
    if OPT['stamps'] and OPT.get('t0st'):
        A("s_memrealtime s[66:67]")
    A("s_waitcnt lgkmcnt(0)")
    if OPT['stamps'] and OPT.get('t0st'):
        i0 = stamp_id[0]; stamp_id[0] += 2; STAMPS.extend(["entry", "consts_q"])
        A(f"v_writelane_b32 v0, s100, {i0}", f"v_writelane_b32 v0, s66, {i0+1}", f"v_writelane_b32 v0, s100, {32+i0}", f"v_writelane_b32 v0, s66, {33+i0}")
    A(f"s_cmp_eq_u32 {S_BR}, 1")
    for i in (0, 1, 6, 7): A(f"s_cselect_b32 s{68+i}, s{80+i}, s{68+i}")
    def srd(dst, lo, hi, off_expr_regs, nrec):
        A(f"s_add_u32 s{dst}, s{lo}, s50", f"s_addc_u32 s{dst+1}, s{hi}, 0", f"s_and_b32 s{dst+1}, s{dst+1}, 0xffff")
        A(nrec, f"s_mov_b32 s{dst+3}, 0x20000")
    A(f"s_mul_i32 s50, {S_B}, 147456"); srd(4, 68, 69, None, "s_mov_b32 s6, 147456")
    A(f"s_lshl_b32 s50, {S_HP}, 9"); srd(8, 74, 75, None, "s_sub_u32 s10, 4194304, s50")
    return L

def setup_b():
    L = []
    A = lambda *x: L.extend(II(*x))
    def srd(dst, lo, hi, off_expr_regs, nrec):
        A(f"s_add_u32 s{dst}, s{lo}, s50", f"s_addc_u32 s{dst+1}, s{hi}, 0", f"s_and_b32 s{dst+1}, s{dst+1}, 0xffff")
        A(nrec, f"s_mov_b32 s{dst+3}, 0x20000")
    A(f"s_cmp_eq_u32 {S_SAFE}, 1", "s_cbranch_scc1 L_setup_b_done")
    A(f"s_cmp_eq_u32 {S_BR}, 1")
    for i in (2, 3, 4, 5): A(f"s_cselect_b32 s{68+i}, s{80+i}, s{68+i}")
    A("s_cselect_b32 s76, s88, s76", "s_cselect_b32 s77, s89, s77")
    A(f"s_lshl_b32 s50, {S_B}, 5", f"s_lshl_b32 s51, {S_HP}, 1", "s_add_u32 s50, s50, s51", f"s_add_u32 s50, s50, {S_U}", "s_lshl_b32 s50, s50, 17")
    srd(12, 70, 71, None, "s_mov_b32 s14, 131072")
    srd(16, 72, 73, None, "s_mov_b32 s18, 131072")
    A(f"s_lshl_b32 s50, {S_HP}, 18", f"s_lshl_b32 s51, {S_W}, 8", "s_add_u32 s50, s50, s51")
    A("s_sub_u32 s52, 262144, s51")
    srd(20, 76, 77, None, "s_mov_b32 s22, s52")
    A(f"s_lshl_b32 s50, {S_HP}, 18"); srd(84, 76, 77, None, "s_mov_b32 s86, 262144")
    A(f"s_mul_i32 s50, {S_CL}, 2359296", f"s_add_u32 s50, s50, {hex(OPT['wsoff'])}"); srd(24, 58, 59, None, "s_mov_b32 s26, 2359296")
    if OPT['fused']:
        A(f"s_mul_i32 s50, {S_CL}, 4608", f"s_add_u32 s50, s50, {hex(OPT['wsoff'] + 0x2400000 + 0x40000)}"); srd(68, 58, 59, None, "s_mov_b32 s70, 4608")
        A("s_mov_b32 s72, s98", "s_and_b32 s73, s99, 0xffff", "s_mov_b32 s74, 256", "s_mov_b32 s75, 0x20000")
        A("s_mov_b32 s80, s96", "s_and_b32 s81, s97, 0xffff", "s_mov_b32 s82, 2359296", "s_mov_b32 s83, 0x20000")
        A(f"s_lshl_b32 s50, {S_W}, 7", f"s_lshl_b32 s51, {S_HP}, 2", "s_add_u32 s50, s50, s51",
          f"v_lshlrev_b32 v46, 9, {V_LANE}", "v_add_u32 v46, s50, v46", "v_mov_b32 v47, 0",
          f"buffer_store_dword v47, v46, {SRD_F}, 0 offen sc1" if not OPT.get('x_noclr') else "s_nop 0")
    A("L_setup_b_done:")
    return L

def lane_consts_q():
    L = []; A = lambda *x: L.extend(II(*x))
    l = V_LANE; t0, t1, t2, t3, t4, t5 = [f"v{x}" for x in VT[:6]]
    A(f"v_lshrrev_b32 {t0}, 4, {l}", f"v_bfe_u32 {t1}, {l}, 2, 2", f"v_and_b32 {t2}, 3, {l}", f"v_and_b32 {t3}, 15, {l}")
    w0, w1, w2, w3 = [f"v{x}" for x in V_WQD]
    A(f"v_lshrrev_b32 {t4}, 5, {l}", f"v_bfe_u32 {t5}, {l}, 4, 1",
      f"v_lshlrev_b32 {w0}, 2, {t4}", f"v_xor_b32 {w0}, {w0}, {t3}", f"v_lshlrev_b32 {w0}, 4, {w0}",
      f"v_lshl_add_u32 {w0}, {t5}, 8, {w0}", f"v_lshl_add_u32 {w0}, {t4}, 13, {w0}",
      f"v_xor_b32 {w1}, 0x80, {w0}", f"v_add_u32 {w1}, {2*8192 - 1024}, {w1}",
      f"v_add_u32 {w2}, {4*8192 - 2048}, {w0}", f"v_add_u32 {w3}, {4*8192 - 2048}, {w1}")
    A(f"v_lshlrev_b32 {t4}, 1, {t0}", f"v_mov_b32 {t5}, 0x78", f"v_lshrrev_b32 {t4}, {t4}, {t5}", f"v_and_b32 {t4}, 3, {t4}",
      f"v_xor_b32 {t4}, {t4}, {t2}", f"v_lshlrev_b32 {t4}, 4, {t4}",
      f"v_lshrrev_b32 {t5}, 2, {l}", f"v_lshl_add_u32 {t4}, {t5}, 10, {t4}")
    for j in range(2):
        A(f"v_add_u32 v{V_XD[j]}, {j*16384 - 1024*j}, {t4}")
    A(f"s_lshl_b32 s50, {S_W}, 1", "s_lshr_b32 s50, 0x78, s50", "s_and_b32 s50, s50, 3",
      f"v_xor_b32 {t4}, s50, {t2}", f"v_lshlrev_b32 {t4}, 4, {t4}", f"v_lshl_add_u32 {t4}, {t5}, 10, {t4}",
      f"s_lshl_b32 s50, {S_W}, 12", f"s_lshl_b32 s51, {S_W}, 15", "s_sub_u32 s50, s50, s51", f"s_add_u32 s50, s50, {128*1024}",
      f"v_add_u32 v{V_XD[2]}, s50, {t4}")
    return L

def lane_consts_q2():
    L = []; A = lambda *x: L.extend(II(*x))
    l = V_LANE; t0, t1, t2, t3, t4, t5 = [f"v{x}" for x in VT[:6]]
    A(f"v_lshrrev_b32 {t0}, 4, {l}", f"v_bfe_u32 {t1}, {l}, 2, 2", f"v_and_b32 {t2}, 3, {l}", f"v_and_b32 {t3}, 15, {l}")
    for n in range(4):
        A(f"v_add_u32 {t4}, {4*n}, {t0}", f"v_xor_b32 {t4}, {t4}, {t3}", f"v_lshlrev_b32 {t4}, 4, {t4}",
          f"v_lshl_add_u32 v{V_KD[n]}, {t0}, 8, {t4}")
    for n in range(2):
        A(f"v_add_u32 {t4}, {4*n}, {t0}", f"v_lshlrev_b32 {t4}, 1, {t4}", f"v_xor_b32 {t4}, {t4}, {t3}", f"v_lshlrev_b32 {t4}, 4, {t4}",
          f"v_lshl_add_u32 v{V_VD[n]}, {t0}, 8, {t4}")
    A(f"v_lshl_add_u32 {t4}, {t0}, 3, {t1}", f"v_lshlrev_b32 {t4}, 9, {t4}", f"v_lshl_add_u32 {t4}, {t2}, 4, {t4}",
      f"s_lshl_b32 s50, {S_U}, 8", f"s_add_u32 s50, s50, {WB}", f"v_add_u32 {t4}, s50, {t4}")
    A(f"s_lshl_b32 s51, {S_QH}, 1", f"v_xor_b32 {t1}, s51, {t1}")
    for s in range(4):
        A(f"v_xor_b32 {t5}, {s}, {t1}", f"v_lshl_add_u32 v{V_WQR[s]}, {t5}, 6, {t4}")
    A(f"v_lshrrev_b32 {t4}, 2, {t3}", f"v_lshlrev_b32 {t4}, 1, {t4}", f"v_mov_b32 {t5}, 0x78", f"v_lshrrev_b32 {t4}, {t4}, {t5}", f"v_and_b32 {t4}, 3, {t4}",
      f"v_xor_b32 {t4}, {t4}, {t0}", f"v_lshlrev_b32 {t4}, 4, {t4}", f"v_lshl_add_u32 {t4}, {t3}, 6, {t4}",
      f"s_mul_i32 s50, {S_QH}, 5120", f"s_add_u32 s50, s50, {XB}", f"v_add_u32 v{V_XR}, s50, {t4}", f"v_add_u32 v{V_XR4}, {XB + 4096}, {t4}")
    return L

def lane_consts_rest():
    L = []; A = lambda *x: L.extend(II(*x))
    l = V_LANE; t0, t1, t2, t3, t4, t5, t6 = [f"v{x}" for x in VT[:7]]
    A(f"v_lshrrev_b32 {t0}, 4, {l}", f"v_bfe_u32 {t1}, {l}, 2, 2", f"v_and_b32 {t2}, 3, {l}", f"v_and_b32 {t3}, 15, {l}")
    A(f"s_lshl_b32 s50, {S_U}, 13", f"s_add_u32 s51, s50, {KB}", f"v_lshlrev_b32 {t4}, 8, {t3}", f"v_add_u32 {t4}, s51, {t4}")
    A(f"s_lshl_b32 s51, {S_QH}, 3", f"v_xor_b32 {t6}, s51, {t3}")
    for s in range(4):
        A(f"v_add_u32 {t5}, {4*s}, {t0}", f"v_xor_b32 {t5}, {t5}, {t6}", f"v_lshl_add_u32 v{V_KR[s]}, {t5}, 4, {t4}")
    A(f"v_lshrrev_b32 {t4}, 2, {l}", f"v_and_b32 {t5}, 7, {t4}", f"v_lshlrev_b32 {t5}, 1, {t5}",
      f"v_lshlrev_b32 {t4}, 8, {t4}", f"v_add_u32 {t4}, s50, {t4}",
      f"v_and_b32 {t6}, 1, {t2}", f"v_lshl_add_u32 {t4}, {t6}, 3, {t4}",
      f"v_lshrrev_b32 {t6}, 1, {t2}",
      f"s_lshl_b32 s51, {S_QH}, 3", f"v_xor_b32 {t5}, s51, {t5}")
    for dt in range(8):
        d = f"v{V_VR[dt]}"
        A(f"v_add_u32 {d}, {2*dt}, {t6}", f"v_xor_b32 {d}, {d}, {t5}", f"v_lshl_add_u32 {d}, {d}, 4, {t4}")
    A(f"v_lshlrev_b32 {t4}, 2, {t0}", f"v_xor_b32 {t4}, {t4}, {t3}", f"v_lshlrev_b32 {t4}, 4, {t4}", f"v_lshl_add_u32 {t4}, {t0}, 10, {t4}")
    for n in range(4):
        A(f"v_add_u32 v{V_WOD[n]}, {n*3072}, {t4}")
    A(f"v_lshrrev_b32 {t4}, 2, {l}", f"v_lshlrev_b32 {t4}, 8, {t4}", f"v_lshl_add_u32 {t4}, {t2}, 4, {t4}",
      f"s_lshl_b32 s50, {S_W}, 13", f"s_add_u32 s50, s50, {WOB}", f"v_add_u32 {t4}, s50, {t4}")
    for cp in range(4):
        A(f"v_xor_b32 {t5}, {cp}, {t1}", f"v_lshl_add_u32 v{V_WOR[cp]}, {t5}, 6, {t4}")
    A(f"s_mul_i32 s50, {S_QH}, 40960", f"s_lshl_b32 s51, {S_U}, 12", "s_add_u32 s50, s50, s51",
      f"v_lshlrev_b32 v{V_OR}, 4, {l}", f"v_add_u32 v{V_OW}, s50, v{V_OR}", f"v_add_u32 v{V_OR8}, 0x10000, v{V_OR}")
    A(f"s_lshl_b32 s50, {S_HP}, 10", f"v_add_u32 v{V_PS}, s50, v{V_OR}")
    return L

def dma(voff, srd, soff, imm, nt=False):
    o = f" offset:{imm}" if imm else ""
    return I(f"buffer_load_dwordx4 v{voff}, {srd}, {soff} offen{o}{' nt' if nt else ''} lds")

def kv_group(kind, m0expr, soffreg):
    if kind == 'K':
        return [dma(V_KD[n], SRD_K, soffreg, n * 1024, OPT['kvnt']) for n in range(4)]
    return [dma(V_VD[n & 1], SRD_V, soffreg, n * 1024, OPT['kvnt']) for n in range(4)]

def kv_tile_full_unused(kind, j):
    L = []
    base = (KB + kphys(j)) if kind == 'K' else (VB + vphys(j))
    for gI in range(2):
        L += II(f"s_lshl_b32 s50, {S_U}, 13", f"s_add_u32 m0, s50, {base + gI*4096}", f"s_mov_b32 s51, {j*8192 + gI*4096}")
        L += kv_group(kind, None, "s51")
    return L

def stage_setup_scalar():
    rot = OPT['rot']
    R = II("s_lshr_b32 s50, s2, 3", "s_and_b32 s51, s50, 3", "s_lshr_b32 s50, s50, 2")
    if rot in (True, 1):   R += II("s_lshl_b32 s51, s51, 2", "s_lshl_b32 s50, s50, 1", "s_add_u32 s52, s50, s51")
    elif rot == 2:         R += II("s_lshr_b32 s50, s50, 1", "s_add_u32 s52, s50, s51", "s_lshl_b32 s52, s52, 2")
    elif rot == 3:         R += II("s_add_u32 s52, s50, s51", "s_lshl_b32 s52, s52, 2")
    elif rot == 4:         R += II("s_lshr_b32 s50, s50, 2", "s_lshl_b32 s50, s50, 3", "s_lshl_b32 s51, s51, 2", "s_add_u32 s52, s50, s51")
    elif rot == 5:         R += II("s_mul_i32 s50, s50, 3", "s_lshl_b32 s51, s51, 2", "s_add_u32 s52, s50, s51")
    elif rot == 6:         R += II("s_lshl_b32 s52, s50, 1")
    elif rot == 7:         R += II("s_lshl_b32 s50, s50, 1", "s_and_b32 s51, s51, 1", "s_lshl_b32 s51, s51, 3", "s_add_u32 s52, s50, s51")
    else:                  R += II("s_mov_b32 s52, 0")
    return R + II("s_and_b32 s52, s52, 15",
              f"s_lshl_b32 s50, s52, 6", f"s_lshl_b32 s51, {S_W}, 15", f"s_add_u32 {S_SOFFX}, s50, s51",
              f"s_lshl_b32 s50, s52, 18", f"s_lshl_b32 s51, {S_W}, 16", f"s_add_u32 {S_SOFFW0}, s50, s51",
              f"s_lshl_b32 s50, {S_W}, 12", f"s_add_u32 {S_BW}, s50, {WB}",
              f"s_lshl_b32 s50, {S_W}, 11", f"s_add_u32 {S_BX}, s50, {XB}",
              f"s_lshl_b32 s50, {S_W}, 8", f"s_add_u32 {S_BX3}, s50, {XB + 8192}",
              )
def kv_setup_scalar():
    return II(f"s_lshl_b32 {S_TQ}, {S_QH}, 12",
              f"s_lshl_b32 s50, {S_U}, 13", f"s_add_u32 s50, s50, {S_TQ}", f"s_add_u32 {S_MK}, s50, {KB}", f"s_add_u32 {S_MV}, s50, {VB}")

def stage_dma_list(slot):
    seq = []
    seq.append(([I(f"s_add_u32 m0, {S_BW}, {slot*16384}")], dma(V_WQD[0], SRD_WQ, S_SOFFW0, 0, OPT['wnt'])))
    for j in range(1, 4): seq.append(([], dma(V_WQD[j], SRD_WQ, S_SOFFW0, j * 1024, OPT['wnt'])))
    seq.append(([I(f"s_add_u32 m0, {S_BX}, {slot*9216}")], dma(V_XD[0], SRD_X, S_SOFFX, 0, OPT['xnt'])))
    seq.append(([], dma(V_XD[1], SRD_X, S_SOFFX, 1024, OPT['xnt'])))
    q = dma(V_XD[2], SRD_X, S_SOFFX, 0, OPT['xnt'])
    seq.append(([I(f"s_add_u32 m0, {S_BX3}, {slot*9216}")], Masked(q, 0xffff)))
    return seq

def place_dma(S, seq, gaps):
    k = 0
    last = None
    for e in seq:
        if e[0]:
            for p in e[0]: S.put(gaps[k], p)
            k += 1
        S.put(gaps[k], e[1]); last = gaps[k]
        if len(e) > 2:
            for p in e[2]: S.put(gaps[k] + 1, p)
        k += 1
    return last

def stage_advance_w():
    return II(f"s_add_u32 {S_SOFFW0}, {S_SOFFW0}, 262144", f"s_and_b32 {S_SOFFW0}, {S_SOFFW0}, 0x3fffff")
def stage_advance_x():
    return II(f"s_add_u32 {S_SOFFX}, {S_SOFFX}, 64", f"s_and_b32 {S_SOFFX}, {S_SOFFX}, 0xfffffbff")
def stage_advance(): return stage_advance_w() + stage_advance_x()

def straight(seq):
    L = []
    for e in seq:
        L += e[0]
        if e[0]: L += II("s_nop 0")
        L.append(e[1])
        if len(e) > 2: L += e[2]
    return L

def stage_issue_straight(slot):
    return straight(stage_dma_list(slot)) + stage_advance()

def wq_read(dt, h2, slot):
    if OPT.get('x_noread'): return I('s_nop 0')
    s, hf = dt >> 1, dt & 1
    b = abuf(dt) + 2 * h2
    off = slot * 16384 + hf * 8 + h2 * 2048
    return I(f"ds_read_b64_tr_b16 {ar(b,2)}, v{V_WQR[s]}" + (f" offset:{off}" if off else ""))
def x_read(t, slot):
    if OPT.get('x_noread'): return I('s_nop 0')
    off = slot * 9216 + (0 if t == 4 else t * 1024)
    return I(f"ds_read_b128 {vr(bbuf(t))}, v{V_XR4 if t == 4 else V_XR}" + (f" offset:{off}" if off else ""))
def q_mfma(dt, t):
    if OPT.get('x_t4') and t == 4: return I("s_nop 3")
    if OPT.get('x_t45') and t == 4 and dt >= 4: return I("s_nop 3")
    return mfma(vr(qacc(dt, t)), ar(abuf(dt)), vr(bbuf(t)), vr(qacc(dt, t)))

def half_group(kind, j):
    if kind == 'K':
        pre = II(f"s_add_u32 m0, {S_MK}, {kphys(j)}", f"s_add_u32 s51, {S_TQ}, {j*8192}")
    else:
        pre = II(f"s_add_u32 m0, {S_MV}, {vphys(j)}", f"s_add_u32 s51, {S_TQ}, {j*8192}")
    g = kv_group(kind, None, "s51")
    return [(pre, g[0])] + [([], x) for x in g[1:]]

def put_dmas(S, seq, gaps):
    prev = -1
    for e, g in zip(seq, gaps):
        if e[0]:
            assert g - 1 > prev or prev < 0, (g, prev)
            for p in e[0]: S.put(g - 1, p)
        S.put(g, e[1])
        if len(e) > 2:
            for p in e[2]: S.put(g + 1, p)
        prev = g
    assert len(seq) <= len(gaps)

QTAIL = (4, 5, 6, 7)
def q_tail(): return [q_mfma(dt, t) for t in range(4) for dt in QTAIL]
SRD_T = "s[96:99]"; V_T = [10, 11, 12, 13]; S_TM, S_TS = "s35", "s36"
V_TB2 = [252, 253, 254, 255]
V_TB = [244, 245, 246, 247]
DUMMY = 151552
def burst_list():
    g = [dma(V_TB[n], SRD_T, S_TS, n * 1024, OPT['kvnt']) for n in range(4)]
    return [([I(f"s_mov_b32 m0, {S_TM}")], g[0])] + [([], x) for x in g[1:]]

def q_body(ks, with_dma, burst=False, extra_dma=None, wait=None):
    slot = ks & 3
    ms = q_tail() + [q_mfma(dt, t) for t in range(5) for dt in range(4)]
    S = Sched(ms)
    a = lambda dt, h: wq_read(dt, h, slot)
    xr = lambda t: x_read(t, slot)
    plan = {0: a(0,0), 1: a(0,1), 2: a(1,0), 3: a(1,1), 4: xr(0), 5: a(2,0), 7: a(2,1), 8: xr(1), 9: a(3,0), 11: a(3,1),
            12: xr(2), 13: xr(4), 16: xr(3), 17: a(4,0), 19: a(4,1), 20: a(5,0), 21: a(5,1), 23: a(6,0), 24: a(6,1), 25: a(7,0), 27: a(7,1)}
    for g, ins in plan.items(): S.put(g, ins)
    if with_dma:
        put_dmas(S, stage_dma_list((ks + 3) & 3), [6, 10, 14, 18, 22, 26, 29])
        w = stage_advance_w(); x = stage_advance_x()
        S.put(19, w[0]); S.put(20, w[1]); S.put(30, x[0]); S.put(31, x[1])
    if burst:
        put_dmas(S, burst_list(), [32, 33, 34, 35]) if False else None
        put_dmas(S, burst_list(), [15, 28, 31, 33])  if False else None
    if extra_dma:
        put_dmas(S, extra_dma, [6, 10, 14, 18, 22, 26, 30, 32][:len(extra_dma)])
    return S

def q_finish(S, wait, wg=33):
    S.put(wg, tr_mark(), f"s_waitcnt vmcnt({wait}) lgkmcnt(0)", tr_commit())
    S.put(wg + 1, "s_barrier")
    seq, pend = lgkm_waits(S.flat())
    assert not pend
    if OPT['verbose']: print(S.report("q_body"))
    return seq

def tr_mark():
    return [Raw("s_memtime s[100:101]")] if OPT.get('trace') else []
def tr_commit():
    return [Raw("s_mov_b32 s95, m0\n  s_mov_b32 m0, s94\n  s_nop 0\n  v_writelane_b32 v0, s100, m0\n  s_mov_b32 m0, s95\n  s_add_u32 s94, s94, 1")] if OPT.get('trace') else []
def tr_dump():
    if not OPT.get('trace'): return []
    return II("s_add_u32 s66, s58, 0x9000000", "s_addc_u32 s67, s59, 0", "s_lshl_b32 s50, s2, 2", f"s_add_u32 s50, s50, {S_W}", "s_lshl_b32 s50, s50, 8",
              f"v_lshlrev_b32 v253, 2, {V_LANE}", "v_add_u32 v253, s50, v253", "global_store_dword v253, v0, s[66:67]")

def zero_init():
    L = II("v_mov_b32 v244, 0", "v_mov_b32 v245, 0", "v_mov_b32 v246, 0", "v_mov_b32 v247, 0", "s_nop 1")
    for r in range(RB, RB + 160, 16): L += II(f"v_mfma_f32_32x32x16_bf16 v[{r}:{r+15}], v[244:247], v[244:247], 0")
    for r in range(0, 256, 16): L += II(f"v_mfma_f32_32x32x16_bf16 a[{r}:{r+15}], v[244:247], v[244:247], 0")
    return L

def phase_q():
    L = []; A = lambda *x: L.extend(II(*x))
    A("L_phase_q:")
    A(stage_setup_scalar(), stage_issue_straight(0))
    A(setup_b())
    A(kv_setup_scalar())
    A(lane_consts_q2())
    A(stamp("q_issued"))
    A(zero_init())
    A(lane_consts_rest())
    A(f"s_mov_b32 {S_CNT}, 0")
    if OPT.get('trace'): A("s_mov_b32 s94, 1", "s_memtime s[100:101]", "s_waitcnt lgkmcnt(0)", "v_writelane_b32 v0, s100, 0")
    A(f"v_mov_b32 v{VT[0]}, 0x3f803f80")
    for r in range(4): A(f"v_accvgpr_write_b32 a{A_ONES + r}, v{VT[0]}")
    for t in range(5):
        for k in range(4): A(f"v_mov_b32 v{bbuf(t)+k}, 0")
    A("s_mov_b32 s96, s12", "s_mov_b32 s97, s13", "s_mov_b32 s98, s14", "s_mov_b32 s99, s15")
    for n in range(4): A(f"v_mov_b32 v{V_TB[n]}, v{V_KD[n]}")
    if OPT.get('stst'): A(stamp("consts"))
    A(stage_issue_straight(1))
    if OPT.get('stst'): A(stamp("s1_iss"))
    A("s_waitcnt vmcnt(7)")
    if OPT.get('stst'): A(stamp("s0_land"))
    A("s_barrier")
    if OPT['fused']:
        A(f"s_cmp_eq_u32 {S_SAFE}, 1", "s_cbranch_scc1 L_no_arrive")
        A(f"s_lshl_b32 s50, {S_CL}, 2", f"s_add_u32 s50, s50, {CNTOFF()}", f"s_lshl_b32 s51, {S_W}, 14", "s_add_u32 s50, s50, s51",
          f"v_lshlrev_b32 v46, 8, {V_LANE}", "v_add_u32 v46, s50, v46", "v_mov_b32 v47, 1",
          f"buffer_atomic_add v47, v46, {SRD_D}, 0 offen sc1")
        A("L_no_arrive:")
    A(stage_issue_straight(2))
    if OPT.get('stst'): A(stamp("s2_iss"))
    A(f"s_add_u32 {S_TM}, {S_MK}, {kphys(0)}", f"s_mov_b32 {S_TS}, {S_TQ}")
    A(stamp("q_start"))
    l2 = OPT['l2pf']
    if l2:
        A(f"s_add_u32 s37, {S_TQ}, {4*8192}", "s_mov_b32 s92, s12", "s_mov_b32 s93, s13", "s_mov_b32 s94, s14", "s_mov_b32 s95, s15",
          "s_mov_b64 vcc, -1")
    bodies = []
    QOOL = []
    for k in range(4):
        S = q_body(k, True)
        if k == 1:
            put_dmas(S, burst_list(), [32, 33, 34, 35])
        if k == 3 and l2:
            g = [dma(V_OR, "s[92:95]", "s37", n * 1024, False) for n in range(4)]
            put_dmas(S, [([I(f"s_mov_b32 m0, {DUMMY}")], g[0])] + [([], x) for x in g[1:]], [32, 33, 34, 35])
        if l2:
            n_steady, n_first = [(18, 14), (22, 18), (18, 18), (22, 22)][k]
        else:
            n_steady = n_first = 14 if k == 0 else 18
        if OPT.get('b0st') and k == 0:
            for nm, g in (("g5", 5), ("g6", 7), ("g15", 15), ("g20", 20), ("g30", 31)):
                S.put(g, Raw(f"s_cmp_eq_u32 {S_CNT}, 0\n  s_cbranch_scc0 L_b0_{nm}\n  " + "\n  ".join(x.txt for x in stamp(nm)) + f"\nL_b0_{nm}:"))
        late = (k == 1) or (k == 3 and l2)
        w = tr_mark() + II(f"s_waitcnt vmcnt({n_steady}) lgkmcnt(0)")
        if n_first != n_steady:
            w += II(f"s_cbranch_vccnz L_q_first{k}", f"L_q_back{k}:")
            QOOL += II(f"L_q_first{k}:", f"s_waitcnt vmcnt({n_first})", f"s_branch L_q_back{k}")
        w += tr_commit()
        if late:
            seq, pend = lgkm_waits(S.flat())
            seq += w + II("s_barrier")
        else:
            S.put(33, w); S.put(34, "s_barrier")
            seq, pend = lgkm_waits(S.flat())
            assert not pend
        if OPT['verbose']: print(S.report("q_body"))
        bodies.append(seq)
    hist = bodies[3][-24:]
    A(".p2align 6", "L_q_loop:")
    for bi, b in enumerate(bodies):
        b2, n = hazards(b, history=hist); L.extend(b2); hist = b2[-24:]
        if OPT.get('stst') and bi < 2: A(f"s_cmp_eq_u32 {S_CNT}, 0", f"s_cbranch_scc0 L_nost{bi}", stamp(f"body{bi}"), f"L_nost{bi}:")
    A(f"s_add_u32 {S_TM}, {S_TM}, 16384", f"s_add_u32 {S_TS}, {S_TS}, 8192", f"s_add_u32 {S_CNT}, {S_CNT}, 1")
    if l2:
        A("s_mov_b64 vcc, 0", f"s_cmp_eq_u32 {S_CNT}, 1", "s_cbranch_scc1 L_q_to1", "L_q_to1_done:")
    A(f"s_cmp_eq_u32 {S_CNT}, 2", "s_cbranch_scc0 L_q_tov_done",
      "s_mov_b32 s96, s16", "s_mov_b32 s97, s17", f"s_add_u32 {S_TM}, {S_MV}, {vphys(0)}", f"s_mov_b32 {S_TS}, {S_TQ}")
    if l2: A("s_mov_b32 s92, s12", "s_mov_b32 s93, s13", f"s_add_u32 s37, {S_TQ}, {5*8192}")
    for n in range(4): A(f"v_mov_b32 v{V_TB[n]}, v{V_VD[n & 1]}")
    A("L_q_tov_done:", f"s_cmp_lt_u32 {S_CNT}, 3", "s_cbranch_scc1 L_q_loop")
    OOL = []
    if l2: OOL += II("L_q_to1:", "s_mov_b32 s92, s16", "s_mov_b32 s93, s17", f"s_add_u32 s37, {S_TQ}, {3*8192}", "s_branch L_q_to1_done")
    OOL += QOOL
    b, n = hazards(q_finish(q_body(12, True), 18 if l2 else 14), history=hist); L.extend(b)
    b, n = hazards(q_finish(q_body(13, False, extra_dma=half_group('V', 1)), 15 if l2 else 11), history=b[-24:]); L.extend(b)
    b, n = hazards(q_finish(q_body(14, False, extra_dma=half_group('K', 2) + half_group('V', 2)), 12), history=b[-24:]); L.extend(b)
    b, n = hazards(q_finish(q_body(15, False), 12), history=b[-24:]); L.extend(b)
    if OOL:
        A("s_branch L_q_after_ool")
        L.extend(OOL)
        A("L_q_after_ool:")
    A(stamp("q_loop_done"))
    return L

def q_tiles(s): return range(5) if s < 2 else range(4)
def q_scale(ss):
    return [I(f"v_pk_mul_f32 {vr(grp(t,s)+2*k,2)}, {vr(grp(t,s)+2*k,2)}, {vr(V_C0,2)}") for s in ss for t in q_tiles(s) for k in range(4)]
def q_cvt(ss):
    return [I(f"v_cvt_pk_bf16_f32 v{grp(t,s)+k}, v{grp(t,s)+2*k}, v{grp(t,s)+2*k+1}") for s in ss for t in q_tiles(s) for k in range(4)]
QX = 155648

def transition():
    L = []; A = lambda *x: L.extend(II(*x))
    A(f"s_add_u32 {S_SOFFK}, {S_TQ}, {5*8192}", f"s_add_u32 {S_SOFFV}, {S_TQ}, {4*8192}")
    A(f"v_mov_b32 v{V_C0}, {hex(f2u(SCALE))}", f"v_mov_b32 v{V_C1}, {hex(f2u(SCALE))}")
    A(f"s_lshl_b32 s50, {S_W}, 11", f"s_add_u32 s50, s50, {QX}", f"v_lshlrev_b32 v7, 4, {V_LANE}", "v_add_u32 v8, s50, v7",
      "s_xor_b32 s50, s50, 2048", "v_add_u32 v9, s50, v7")
    k3 = half_group('K', 3)
    seq = [k_read(kt, s, 0) for kt in range(2) for s in range(4)]
    sc = q_scale((0, 1))
    seq += II("s_nop 3") + sc
    S = Sched(q_tail())
    cv = q_cvt((0, 1))
    sh = lambda c: any(f"v{grp(4,s)+k}," in c.txt.split()[1] + "," for s in (0, 1) for k in range(4))
    cv = [c for c in cv if sh(c)] + [c for c in cv if not sh(c)]
    S.spread(cv, [min(i * 2 // 5, 15) for i in range(40)])
    S.put(5, f"ds_write_b128 v8, {vr(grp(4,0))}"); S.put(7, f"ds_write_b128 v8, {vr(grp(4,1))} offset:1024")
    seq += S.flat()
    seq += II("s_waitcnt lgkmcnt(0)", "s_barrier", f"ds_read_b128 {vr(grp(4,2))}, v9", f"ds_read_b128 {vr(grp(4,3))}, v9 offset:1024")
    sc = q_scale((2, 3))
    seq += II("s_nop 3") + k3[0][0] + sc[:8] + [k3[0][1]] + sc[8:16] + [k3[1][1]] + sc[16:24] + [k3[2][1]] + sc[24:] + [k3[3][1]]
    qk = lambda kt, ss, c: [qk_mfma(kt, s, t, c) for s in ss for t in range(5)]
    S = Sched(qk(0, (0, 1), lambda t: "0") + qk(0, (2, 3), lambda t: "0"))
    S.spread(q_cvt((2, 3)), [min(i * 5 // 16, 9) for i in range(32)])
    S.spread([f"v_mov_b32 v{Preg(1,t)+k}, 0" for t in range(5) for k in range(4)], [10 + i // 2 for i in range(20)])
    seq += S.flat()
    seq += straight(half_group('V', 3))
    seq, _ = lgkm_waits(seq, final_zero=True)
    seq, n = hazards(seq); L.extend(seq)
    A(stamp("qk0_done"))
    A(f"s_cmp_eq_u32 {S_SAFE}, 1", "s_cbranch_scc1 L_safe_max")
    T = [2, 3, 4, 5, 6]
    U = [7, 8, 9, 10, 11]
    E = II("s_nop 5")
    for t in range(5): E += II(f"v_max3_f32 v{T[t]}, v{Sreg(0,t)}, v{Sreg(0,t)+1}, v{Sreg(0,t)+2}")
    for t in range(5): E += II(f"v_max_f32 v{T[t]}, v{T[t]}, v{Sreg(0,t)+3}")
    E += row_max_finish(T, U)
    S = Sched(qk(1, range(4), lambda t: vr(cinit(t))))
    sub = [f"v_add_f32 v{Sreg(0,t)+k}, v{Sreg(0,t)+k}, v{cinit(t)}" for t in range(5) for k in range(4)]
    ex = [f"v_exp_f32 v{Sreg(0,t)+k}, v{Sreg(0,t)+k}" for t in range(5) for k in range(4)]
    S.spread(sub, [i // 2 for i in range(20)])
    S.spread(ex, [min(2 + i, 19) for i in range(20)])
    E += S.flat()
    E += II("s_barrier")
    E += II("s_nop 3") + exps(1)
    E, n = hazards(E, history=L[-24:]); L.extend(E)
    A("L_max_done:")
    A(straight(half_group('K', 4)))
    return L

def row_max_finish(T, U):
    E = []
    for sw in ("v_permlane32_swap_b32", "v_permlane16_swap_b32"):
        for t in range(5): E += II(f"v_mov_b32 v{U[t]}, v{T[t]}")
        for t in range(5): E += II(f"{sw} v{T[t]}, v{U[t]}")
        for t in range(5): E += II(f"v_max_f32 v{T[t]}, v{T[t]}, v{U[t]}")
    for t in range(5):
        for k in range(4): E += II(f"v_sub_f32 v{cinit(t)+k}, 0, v{T[t]}")
    return E

def safe_paths():
    L = []; A = lambda *x: L.extend(II(*x))
    T = [2, 3, 4, 5, 6]; U = [7, 8, 9, 10, 11]
    ab = [(Sreg(0, t), Sreg(1, t)) for t in range(5)]
    A("L_safe_max:")
    for t in range(5): A(f"v_mov_b32 v{T[t]}, 0xff800000")
    A(f"s_mov_b32 {S_CNT}, 0")
    A("L_safe_loop:")
    A("s_waitcnt vmcnt(0) lgkmcnt(0)", "s_barrier")
    A(f"s_and_b32 s50, {S_CNT}, 15", "s_lshl_b32 s50, s50, 13", f"s_add_u32 s51, s50, {S_TQ}", f"s_add_u32 m0, {S_MK}, {kphys(0)}", "s_nop 0")
    A(kv_group('K', None, "s51"))
    A("s_waitcnt vmcnt(0)", "s_barrier")
    A([k_read(kt, s, 0) for kt in range(2) for s in range(4)], "s_waitcnt lgkmcnt(0)")
    A(f"s_cmp_eq_u32 {S_CNT}, 16", "s_cbranch_scc1 L_safe_last")
    A([qk_mfma(kt, s, t, lambda t: "0") for kt in range(2) for s in range(4) for t in range(5)], "s_nop 7", "s_nop 7")
    for t, (a, b) in enumerate(ab):
        A(f"v_max3_f32 v{T[t]}, v{T[t]}, v{a}, v{a+1}", f"v_max3_f32 v{T[t]}, v{T[t]}, v{a+2}, v{a+3}",
          f"v_max3_f32 v{T[t]}, v{T[t]}, v{b}, v{b+1}", f"v_max3_f32 v{T[t]}, v{T[t]}, v{b+2}, v{b+3}")
    A(f"s_add_u32 {S_CNT}, {S_CNT}, 1", f"s_cmp_lt_u32 {S_CNT}, 16", "s_cbranch_scc1 L_safe_loop")
    E, n = hazards(II("s_nop 3") + row_max_finish(T, U)); L.extend(E)
    A("s_branch L_safe_loop")
    A("L_safe_last:", "s_nop 3")
    A([qk_mfma(kt, s, t, lambda t: vr(cinit(t))) for kt in range(2) for s in range(4) for t in range(5)], "s_nop 7", "s_nop 7")
    A("s_barrier")
    for t, (a, b) in enumerate(ab):
        for base in (a, b):
            for k in range(4): A(f"v_exp_f32 v{base+k}, v{base+k}")
    A("s_nop 1", "s_branch L_max_done")
    if OPT['fused']:
        A("L_cnt_spin:", f"s_mov_b32 s53, {SPIN}", "L_cnt_spin_loop:", "s_sleep 2",
          f"buffer_load_dword v15, v14, {SRD_D}, 0 offen sc1", "s_waitcnt vmcnt(0)", "v_readfirstlane_b32 s52, v15", "s_nop 3",
          "s_cmp_ge_u32 s52, 16", "s_cbranch_scc1 L_cnt_ok", "s_sub_u32 s53, s53, 1", "s_cmp_lg_u32 s53, 0", "s_cbranch_scc1 L_cnt_spin_loop", "s_branch L_cnt_ok")
    A("L_restart:", f"s_mov_b32 {S_SAFE}, 1", "s_waitcnt vmcnt(0) lgkmcnt(0)", "s_barrier")
    A(lane_consts_q())
    A("s_branch L_phase_q")
    return L

def k_read(kt, s, slotk):
    off = kphys(slotk) + kt * 4096
    return I(f"ds_read_b128 {ar(kbuf(kt, s))}, v{V_KR[s]}" + (f" offset:{off}" if off else ""))
def v_read(dt, h, slotv):
    off = vphys(slotv) + h * 4096
    return I(f"ds_read_b64_tr_b16 {ar(abuf(dt) + 2*h, 2)}, v{V_VR[dt]}" + (f" offset:{off}" if off else ""))
def qk_mfma(kt, s, t, first_c):
    c = first_c(t) if s == 0 else vr(Sreg(kt, t))
    return mfma(vr(Sreg(kt, t)), ar(kbuf(kt, s)), vr(qfrag(t, s)), c)
def pv_mfma(dt, t, par):
    return mfma(ar(oacc(dt, t)), ar(abuf(dt)), vr(Preg(par, t)), ar(oacc(dt, t)))
def rs_mfma(t, par):
    return mfma(ar(lacc(t)), ar(A_ONES), vr(Preg(par, t)), ar(lacc(t)))
def cvts(par):
    out = []
    for kt in range(2):
        for t in range(5):
            s = Sreg(kt, t); p = Preg(par, t) + 2 * kt
            out.append(I(f"v_cvt_pk_bf16_f32 v{p}, v{s}, v{s+1}"))
            out.append(I(f"v_cvt_pk_bf16_f32 v{p+1}, v{s+2}, v{s+3}"))
    return out
def exps(kt):
    return [I(f"v_exp_f32 v{Sreg(kt,t)+i}, v{Sreg(kt,t)+i}") for t in range(5) for i in range(4)]

def att_dma(j, dyn=False):
    seq = []
    if j == 0 or j > 12: return seq
    if True:
        pre = II(f"s_add_u32 m0, {S_MK}, {kphys(j + 4)}")
        g = kv_group('K', None, S_SOFFK)
        seq += [(pre, g[0])] + [([], x) for x in g[1:]]
        seq[-1] = (seq[-1][0], seq[-1][1], II(f"s_add_u32 {S_SOFFK}, {S_SOFFK}, 8192"))
    if j + 3 <= 15:
        pre = II(f"s_add_u32 m0, {S_MV}, {vphys(j + 3)}")
        g = kv_group('V', None, S_SOFFV)
        s2 = [(pre, g[0])] + [([], x) for x in g[1:]]
        s2[-1] = (s2[-1][0], s2[-1][1], II(f"s_add_u32 {S_SOFFV}, {S_SOFFV}, 8192"))
        seq += s2
    return seq

def wo_dma(ks, slot_base_imm):
    seq = []
    for gI in range(2):
        pre = II(f"s_lshl_b32 s50, {S_W}, 13", f"s_add_u32 m0, s50, {slot_base_imm + gI*4096}", f"s_mov_b32 s51, {ks*32768 + gI*16384}")
        for n in range(4):
            seq.append((pre if n == 0 else [], dma(V_WOD[n], SRD_WO, "s51", n * 1024, OPT["wont"])))
    return seq

def att_body(j, vmwait, extra_dma=None):
    par_old, par_new = (j - 1) & 1, j & 1
    ms = [pv_mfma(dt, t, par_old) for dt in (5, 6, 7) for t in range(5)] + [rs_mfma(t, par_old) for t in range(5)]
    ms += [qk_mfma(kt, s, t, lambda t: vr(cinit(t))) for kt in range(2) for s in range(4) for t in range(5)]
    ms += [pv_mfma(dt, t, par_new) for dt in range(5) for t in range(5)]
    S = Sched(ms)
    cv = cvts(par_new)
    S.spread(cv, [1, 1, 3, 3, 6, 6, 8, 8, 11, 11, 13, 13, 16, 16, 18, 18, 21, 21, 23, 23])
    S.spread([k_read(kt, s, j + 1) for kt in range(2) for s in range(4)], [0, 2, 5, 7, 10, 12, 15, 17])
    vr_ = [v_read(dt, h, j) for dt in range(8) for h in range(2)]
    S.spread(vr_, [20, 22, 25, 26, 27, 28, 30, 31, 32, 33, 35, 36, 37, 38, 40, 61])
    d = att_dma(j) + (extra_dma or [])
    put_dmas(S, d, [4, 9, 14, 19, 24, 29, 34, 39])
    S.spread(exps(0), list(range(41, 61)))
    S.spread(exps(1), list(range(62, 82)))
    seq = S.flat()
    seq, pend = lgkm_waits(seq)
    seq += tr_mark() + II(f"s_waitcnt vmcnt({vmwait}) lgkmcnt(0)") + tr_commit() + II("s_barrier")
    if OPT['verbose']: print(S.report(f"att_body {j}"))
    return seq

WO1 = [192, 200, 208, 216, 224, 228, 232, 236]
def wofrag(ks, m, n=4, off=0):
    if ks == 0: return ar(216 + 4 * m + off, n)
    if ks == 1: return vr(WO1[m] + off, n)
    return ar((ks - 2) * 32 + 4 * m + off, n)
def wo_read(ks, m, h):
    cp, hf = m >> 1, m & 1
    off = (32768 if (ks & 1) == 0 else 0) + hf * 8 + h * 4096
    return I(f"ds_read_b64_tr_b16 {wofrag(ks, m, 2, 2*h)}, v{V_WOR[cp]}" + (f" offset:{off}" if off else ""))

def tlb_touch():
    L = II(f"v_mul_u32_u24 v46, 0x100000, {V_LANE}",
           f"buffer_load_dword v47, v46, {SRD_P}, 0 offen")
    if OPT['tlb'] == 2:
        L += II(f"s_mul_i32 s50, {S_B}, {144*2048}", f"v_lshlrev_b32 v46, 26, {V_LANE}", f"buffer_load_dword v47, v46, {SRD_O}, s50 offen")
    return L

def wo_prefetch(shift=0):
    n = OPT['pfw']
    L = II(f"s_add_u32 s50, {S_B}, {shift}", "s_and_b32 s50, s50, 7", "s_lshl_b32 s50, s50, 15", f"s_lshl_b32 s51, {S_W}, 13", "s_add_u32 s50, s50, s51")
    nt = " nt" if OPT['pfnt'] else ""
    if n == 8:
        L += II(f"v_lshlrev_b32 v46, 4, {V_LANE}")
        for i in range(8):
            L += II(f"s_add_u32 s51, s50, {i*1024}", f"buffer_load_dwordx4 v[252:255], v46, s[84:87], s51 offen{nt}")
    else:
        sh = {1: 7, 2: 6, 4: 5}[n]
        L += II(f"v_lshlrev_b32 v46, {sh}, {V_LANE}")
        for i in range(n):
            L += II(f"s_add_u32 s51, s50, {i * (64 << sh)}", f"buffer_load_dword v47, v46, s[84:87], s51 offen{nt}")
    return L

ATT_OOL = []
def attention():
    L = []; A = lambda *x: L.extend(II(*x))
    L += transition()
    A(stamp("att_start"))
    A(f"s_mov_b32 {S_CNT}, 0")
    b0, n = hazards(att_body(0, 16), history=L[-24:]); L.extend(b0)
    bodies = [att_body(j, 16) for j in range(1, 5)]
    hist = bodies[3][-24:]
    A(".p2align 6", "L_att_loop:")
    OOLA = []
    for i, b in enumerate(bodies):
        if i == 3:
            A(f"s_cmp_eq_u32 {S_CNT}, 2", "s_cbranch_scc0 L_att_nok_done")
            for n in range(4): A(f"v_add_u32 v{V_KD[n]}, 0x40000000, v{V_KD[n]}")
            A("L_att_nok_done:")
        b2, n = hazards(b, history=hist); L.extend(b2); hist = b2[-24:]
        if OPT['pf'] == 2 and OPT['pfat'] == 9 + i and i < 3:
            A(f"s_cmp_eq_u32 {S_CNT}, 2", "s_cbranch_scc0 L_att_nopf0", wo_prefetch(), "L_att_nopf0:")
    if 0 <= OPT['pf'] < 3 and OPT['pfat'] == 12:
        A(f"s_cmp_eq_u32 {S_CNT}, {OPT['pf']}", "s_cbranch_scc0 L_att_nopf", wo_prefetch(), (wo_prefetch(4) if OPT.get('pfdup') else []),
          (tlb_touch() if OPT.get('tlb') else []), "L_att_nopf:")
    A(f"s_add_u32 {S_CNT}, {S_CNT}, 1", f"s_cmp_lt_u32 {S_CNT}, 3", "s_cbranch_scc1 L_att_loop")
    ATT_OOL.clear(); ATT_OOL.extend(OOLA)
    npf = (OPT['pfw'] * (2 if OPT.get('pfdup') else 1) + (OPT.get('tlb') or 0)) if (OPT['pf'] == 2 and OPT['pfexact'] and OPT['pfat'] == 12) else 0
    b, n = hazards(att_body(13, 16 + npf, extra_dma=wo_dma(0, WOA)), history=hist); L.extend(b); hist = b[-24:]
    if OPT.get('pf2nd'): A(wo_prefetch(4))
    late_pf = OPT['pf'] == 2 and OPT['pfat'] == 13
    if late_pf: A(wo_prefetch())
    b, n = hazards(att_body(14, 16 + npf + (OPT['pfw'] if late_pf else 0), extra_dma=wo_dma(1, WOB)), history=hist); L.extend(b); hist = b[-24:]
    last_pf = OPT['pf'] == 2 and OPT['pfat'] == 14
    if last_pf: A(wo_prefetch())
    A(stamp("att_loop_done"))
    ms = [pv_mfma(dt, t, 0) for dt in (5, 6, 7) for t in range(5)] + [rs_mfma(t, 0) for t in range(5)]
    ms += [pv_mfma(dt, t, 1) for dt in range(8) for t in range(5)] + [rs_mfma(t, 1) for t in range(5)]
    S = Sched(ms)
    S.spread(cvts(1), list(range(0, 20)))
    S.spread([v_read(dt, h, 15) for dt in range(5) for h in range(2)], list(range(0, 10)))
    S.spread([v_read(dt, h, 15) for dt in (5, 6, 7) for h in range(2)], list(range(15, 21)))
    S.put(20, f"s_waitcnt vmcnt({8 + (OPT['pfw'] if (late_pf or last_pf) else 0)})")
    S.spread([wo_read(0, m, h) for m in range(8) for h in range(2)], [21 + i // 2 for i in range(16)])
    S.put(28, f"s_waitcnt vmcnt({OPT['pfw'] if last_pf else 0})")
    S.spread([wo_read(1, m, h) for m in range(8) for h in range(2)], [29 + i // 2 for i in range(16)])
    S.put(38, "s_waitcnt lgkmcnt(0)")
    if OPT['fused']:
        S.put(36, f"s_lshl_b32 s50, {S_CL}, 2", f"s_add_u32 s50, s50, {CNTOFF()}")
        S.spread([f"v_lshlrev_b32 v14, 8, {V_LANE}", "v_add_u32 v14, s50, v14"], [37, 37])
        S.put(38, f"buffer_load_dword v15, v14, {SRD_D}, 0 offen sc1")
    put_dmas(S, wo_dma(2, WOA), [41, 44, 47, 50, 54, 57, 60, 63])
    seq, pend = lgkm_waits(S.flat(), final_zero=True)
    seq, n = hazards(seq, history=hist); L.extend(seq)
    A("s_barrier")
    A("s_nop 3")
    A(stamp("att_done"))
    return L

def wo_dma_t(ks):
    d = wo_dma(ks, WOA if (ks & 1) == 0 else WOB)
    for e in d: e[1].tag = f"wo{ks}"
    return d
def wo_reads(ks): return [wo_read(ks, m, h) for m in range(8) for h in range(2)]

LFLAG = 90112

def o_epilogue():
    E = []
    tl = VT[0]; rc = VT[2]
    d3, d4, d5 = wo_dma_t(3), wo_dma_t(4), wo_dma_t(5)
    E += II(f"s_lshl_b32 s51, {S_QH}, 11", f"v_subrev_u32 v{V_OWB}, s51, v{V_OW}", f"v_add_u32 v{V_OW}, s51, v{V_OW}",
            f"s_lshl_b32 s50, {S_U}, 12", f"s_add_u32 s50, s50, 32768", "s_add_u32 s50, s50, s51", f"v_add_u32 v{V_OW4}, s50, v{V_OR}")
    def emit_dma(e):
        return e[0] + II("s_nop 0") * (1 if e[0] else 0) + [e[1]]
    nfr = 0
    for t in range(5):
        E += II(f"v_accvgpr_read_b32 v{tl}, a{lacc(t)}", f"v_rcp_f32 v{rc}, v{tl}", "s_nop 0", f"v_mov_b32 v{rc+1}, v{rc}")
        if t == 0: E += II(f"v_mov_b32 v{VT[1]}, v{tl}")
        else: E += II(f"v_max_f32 v{VT[1]}, v{VT[1]}, v{tl}")
        if t == 4:
            E += II(f"v_cmp_nge_f32 vcc, {hex(OPT['lthr'] or LTHR)}, v{VT[1]}", f"s_lshl_b32 s50, {S_W}, 2", f"s_add_u32 s50, s50, {LFLAG}", f"v_mov_b32 v52, s50",
                    "s_cmp_lg_u64 vcc, 0", "s_cselect_b32 s51, 1, 0", "v_mov_b32 v53, s51", "ds_write_b32 v52, v53")
        for ks in range(4 if t < 4 else 2):
            mid = []
            if nfr < 8: mid += emit_dma(d3[nfr])
            if 8 <= nfr < 16: mid += emit_dma(d4[nfr - 8])
            if nfr >= 16:
                for i in range(4): mid += emit_dma(d5[4 * (nfr - 16) + i])
            if OPT.get('x_oenodma'): mid = [x for x in mid if x.kind == 'dma'][:0] + [x for x in mid if x.kind != 'dma']
            rd = []
            cut = {0: (0, 6), 1: (6, 11), 2: (11, 16)}
            if 4 <= nfr < 7:
                if nfr == 4:
                    rd += [VmNeed("wo2")]
                    if OPT['fused']:
                        rd += II("v_readfirstlane_b32 s52, v15", "s_nop 3", "s_cmp_lt_u32 s52, 16", "s_cbranch_scc1 L_cnt_spin", "L_cnt_ok:")
                a_, b_ = cut[nfr - 4]; rd += wo_reads(2)[a_:b_]
            if 12 <= nfr < 15:
                if nfr == 12: rd += [VmNeed("wo3")]
                a_, b_ = cut[nfr - 12]; rd += wo_reads(3)[a_:b_]
            if OPT.get('oe_nord'): rd = [x for x in rd if x.kind != 'dsr']
            if OPT.get('oe_nowait'): rd = [x for x in rd if not isinstance(x, VmNeed)]
            if OPT.get('oe_nodma'): mid = []; rd = [x for x in rd if not (isinstance(x, VmNeed) and x.tag == 'wo3')]
            if nfr in (8, 16): E += II("s_waitcnt lgkmcnt(0)")
            E += rd
            for h in range(2):
                for k in range(4):
                    E += II(f"v_accvgpr_read_b32 v{52 + 4*h + k}, a{oacc(2*ks + h, t) + k}")
            E += mid
            for k in range(4): E += II(f"v_pk_mul_f32 {vr(52+2*k,2)}, {vr(52+2*k,2)}, {vr(rc,2)}")
            for k in range(4): E += II(f"v_cvt_pk_bf16_f32 v{60+k}, v{52+2*k}, v{53+2*k}")
            E += II(f"ds_write_b128 v{V_OW if ks < 2 else V_OWB}, {vr(60)} offset:{(t*8+ks)*1024}" if t < 4 else f"ds_write_b128 v{V_OW4}, {vr(60)} offset:{ks*1024}")
            nfr += 1
        if OPT['stamps'] and OPT.get('oest'): E += [Raw("\n  ".join(x.txt for x in stamp(f"oe{t}")))] + II("s_waitcnt lgkmcnt(0)")
    E, q = vm_waits(E, ["cnt"] + ["wo2"] * 8)
    E, pend = lgkm_waits(E, final_zero=True)
    E, n = hazards(E)
    return E + II("s_barrier"), q

def o_read(dst, t, ks):
    if t < 8: return I(f"ds_read_b128 {vr(dst)}, v{V_OR} offset:{(t*8+ks)*1024}")
    return I(f"ds_read_b128 {vr(dst)}, v{V_OR8} offset:{ks*1024}")
V_PSC = [196, 197, 198, 199]
V_OWNA = 204; S_OWN = "s49"
OWNB = 73728
OWN_OOL = []
OWN_BLK = {}
def pstore(src, t, cp):
    v = V_PSC[cp] if OPT['own'] else V_PS
    return (II(f"s_add_u32 s51, {S_SOFFP}, {(cp*9 + t)*16384}"),
            I(f"buffer_store_dwordx4 {vr(src)}, v{v}, {SRD_P}, s51 offen {OPT['pst']}"))
def own_hook(src, t, cp):
    if not OPT['own']: return []
    OWN_BLK.setdefault(t, []).extend(II(f"L_own_{t}_{cp}:", f"ds_write_b128 v{V_OWNA}, {vr(src)} offset:{t*1024}", f"s_branch L_ownb_{t}_{cp}"))
    return II(f"s_cmp_eq_u32 {S_OWN}, {cp}", f"s_cbranch_scc1 L_own_{t}_{cp}", f"L_ownb_{t}_{cp}:")

NP1 = 2
def acc1(t, m): return 64 + (t * 8 + m) * 4
def acc2(t, m): return 128 + ((t & 1) * 8 + m) * 4
def bfr1(par, t): return 2 + (par * 4 + t) * 4
STG = [48, 52, 56, 60]

def tile_epilogue(accf, t, k0):
    out = []
    for cp in range(4):
        a0, a1 = accf(t, 2*cp), accf(t, 2*cp + 1)
        d = STG[(k0 + cp) & 3]
        cv = II(f"v_cvt_pk_bf16_f32 v{d}, v{a0}, v{a0+1}", f"v_cvt_pk_bf16_f32 v{d+1}, v{a0+2}, v{a0+3}",
                f"v_cvt_pk_bf16_f32 v{d+2}, v{a1}, v{a1+1}", f"v_cvt_pk_bf16_f32 v{d+3}, v{a1+2}, v{a1+3}")
        pre, st = pstore(d, t, cp)
        if OPT.get('x_nost') and not (t == 8 and cp == 3): st = I("s_nop 0")
        st.tag = f"st{t}"
        out.append((cv, (pre, st), own_hook(d, t, cp)))
    return out

def out_proj(queue):
    L = []; A = lambda *x: L.extend(II(*x))
    A(f"s_mul_i32 {S_SOFFP}, {S_W}, {4*9*16384}")
    OWN_OOL.clear(); OWN_BLK.clear()
    if OPT['own']:
        A(f"s_lshr_b32 s50, {S_HP}, 2", f"s_and_b32 s51, {S_HP}, 3", f"s_cmp_eq_u32 s50, {S_W}", f"s_cselect_b32 {S_OWN}, s51, 7")
        for cp in range(4):
            A(f"s_cmp_eq_u32 {S_OWN}, {cp}", "s_cselect_b32 s50, 0x40000000, 0", f"v_or_b32 v{V_PSC[cp]}, s50, v{V_PS}")
        A(f"v_add_u32 v{V_OWNA}, {OWNB}, v{V_OR}")
    NP = OPT['np1']
    G = 8 * NP
    ms = [mfma(vr(acc1(t, m)), wofrag(ks, m), vr(bfr1(ks & 1, t)), ("0" if ks == 0 else vr(acc1(t, m)))) for ks in range(8) for m in range(8) for t in range(NP)]
    bt = lambda ks: 2 + 4 * ks
    P1 = len(ms)
    for t in range(NP, 9):
        ms += [mfma(vr(acc2(t, m)), wofrag(ks, m), vr(bt(ks)), ("0" if ks == 0 else vr(acc2(t, m)))) for ks in range(8) for m in range(8)]
    S = Sched(ms)
    def reads(ks, g0): S.spread(wo_reads(ks), [g0 + i // 2 for i in range(16)])
    def dmas(ks, g0, step=4): put_dmas(S, wo_dma_t(ks), [g0 + step * i for i in range(8)])
    def put_free(ins, g0):
        g = g0
        while S.cost(g) + COST[ins.kind] > 8: g += 1
        S.put(g, ins); return g
    def epi(t, accf, g0, stride):
        for cp, (cv, (spre, st), hook) in enumerate(tile_epilogue(accf, t, 0)):
            g = g0 + cp * stride
            S.spread(cv, [g, g, g + 1, g + 1])
            for p in spre: S.put(g + 1, p)
            for p in hook: S.put(g + 2, p)
            S.put(g + 2, st)
        if OPT['own']:
            blk = OWN_BLK.pop(t)
            S.put(g0 + 3 * stride + 4, Raw(f"s_branch L_ownx_{t}\n" + "\n".join((x.txt if x.kind == 'label' else "  " + x.txt) for x in blk) + f"\nL_ownx_{t}:"))
    if NP == 2:
        pre = [o_read(bfr1(0, t), t, 0) for t in range(NP)]
        S.put(0, VmNeed("wo4")); reads(4, 0)
        S.put(9, "s_waitcnt lgkmcnt(0)"); dmas(6, 11, 3)
        S.put(33, VmNeed("wo5")); reads(5, 33)
        S.put(42, "s_waitcnt lgkmcnt(0)"); dmas(7, 44, 3)
        S.put(84, VmNeed("wo6")); reads(6, 84)
        S.put(100, VmNeed("wo7")); reads(7, 100)
        for ks in range(7):
            g = ks * G + (1 if ks else 8)
            for t in range(NP):
                g = put_free(o_read(bfr1((ks + 1) & 1, t), t, ks + 1), g) + 1
            assert g <= (ks + 1) * G - 3, (ks, g)
        g = 6 * G + 4
        for ks in (2, 3, 6, 7): g = put_free(o_read(bt(ks), NP, ks), g) + 1
        g = 7 * G + 1
        for ks in (0, 1): g = put_free(o_read(bt(ks), NP, ks), g) + 1
        base = P1
        for ks in (4, 5): put_free(o_read(bt(ks), NP, ks), base + 1)
        epi(0, acc1, base + 4, 7); epi(1, acc1, base + 32, 7)
    else:
        assert NP == 0
        pre = [o_read(bt(ks), 0, ks) for ks in range(8)]
        S.put(0, VmNeed("wo4")); reads(4, 0)
        S.put(9, "s_waitcnt lgkmcnt(0)"); dmas(6, 11, 2)
        S.put(10, VmNeed("wo5"));
        S.spread(wo_reads(5), [12, 12, 14, 14, 16, 16, 18, 18, 20, 20, 22, 22, 24, 24, 26, 26])
        S.put(28, "s_waitcnt lgkmcnt(0)"); dmas(7, 30, 2)
        S.put(46, VmNeed("wo6")); S.spread(wo_reads(6), [46, 46, 46, 46] + [47 + i // 4 for i in range(12)])
        S.put(54, VmNeed("wo7")); S.spread(wo_reads(7), [54, 54, 54, 54] + [55 + i // 12 for i in range(12)])
    for t in range(NP, 9):
        b = P1 + (t - NP) * 64
        if t > NP: epi(t - 1, acc2, b + 6, 12)
        if t < 8:
            for ks in range(8):
                g = b + 8 * ks + 8
                if g >= b + 64: g = b + 64 + 1
                put_free(o_read(bt(ks), t + 1, ks), g)
    if OPT['fused']:
        g0 = P1 + (3 - NP) * 64 + 49
        S.put(g0, f"s_lshl_b32 s50, {S_W}, 7", f"s_lshl_b32 s52, {S_HP}, 2", "s_add_u32 s50, s50, s52")
        S.spread([f"v_lshlrev_b32 v36, 13, {V_LANE}", "v_add_u32 v36, s50, v36", "v_mov_b32 v37, 1"], [g0 + 1, g0 + 1, g0 + 2])
        S.put(g0 + 3, f"s_lshr_b32 s50, {S_HP}, 2", "s_lshl_b32 s50, s50, 7")
        S.spread([f"v_lshrrev_b32 v46, 4, {V_LANE}", "v_lshlrev_b32 v46, 9, v46", f"v_and_b32 v47, 15, {V_LANE}",
                  "v_lshl_add_u32 v46, v47, 2, v46", "v_add_u32 v46, s50, v46"], [g0 + 4, g0 + 4, g0 + 5, g0 + 9, g0 + 9])
        b = P1 + (8 - NP) * 64
        fa = I(f"buffer_store_dword v37, v36, {SRD_F}, 0 offen sc1"); fa.tag = "fl"
        if OPT['early']:
            S.put(b + 40, VmNeed("st3")); S.put(b + 41, fa)
            pl = I(f"buffer_load_dword v47, v46, {SRD_F}, 0 offen sc1"); pl.tag = "poll"
            S.put(b + 60, pl)
    if OPT['stamps'] and OPT.get('opst'):
        for nm, g in (("w1", 127), ("w3", 255), ("w5", 383), ("w8", 575)):
            S.put(g, Raw("\n  ".join(x.txt for x in stamp(nm))))
            S.put(g, "s_waitcnt lgkmcnt(0)")
    pre = II(f"v_mov_b32 v56, {LFLAG}", f"ds_read_b128 {vr(52)}, v56") + pre
    pre += II("s_waitcnt lgkmcnt(0)", "v_or3_b32 v52, v52, v53, v54", "v_or_b32 v52, v52, v55", "s_nop 0", "v_readfirstlane_b32 s50, v52", "s_nop 3",
              f"s_andn2_b32 s50, s50, {S_SAFE}", "s_cmp_lg_u32 s50, 0", "s_cbranch_scc1 L_restart")
    seq = pre + S.flat()
    tail = II("s_nop 7")
    for cp, (cv, (spre, st), hook) in enumerate(tile_epilogue(acc2, 8, 0)):
        tail += cv + spre + hook + [st]
    if OPT['own']:
        tail += II("s_branch L_ownx_8") + OWN_BLK.pop(8) + II("L_ownx_8:")
    if OPT['stamps'] and OPT.get('opst'): tail += stamp("st_iss")
    if OPT['fused']:
        fb = I(f"buffer_store_dword v37, v36, {SRD_F}, 0 offen offset:512 sc1"); fb.tag = "fl"
        fc = I(f"buffer_store_dword v37, v36, {SRD_F}, 0 offen offset:1024 sc1"); fc.tag = "fl"
        tail += [VmNeed("poll"), fb, VmNeed("st8"), fc] if OPT['early'] else [VmNeed("st8"), fa, fb, fc]
    seq, q = vm_waits(seq + tail, queue)
    seq, pend = lgkm_waits(seq)
    seq, n = hazards(seq)
    if OPT['verbose']: print(S.report("out_proj"), "nops", n)
    L += seq
    return L, q

SPIN = 1 << 22
def reduce_phase_groups():
    L = []; A = lambda *x: L.extend(II(*x))
    DAT = lambda g, tt, k: 64 + ((g * 2 + tt) * 4 + k) * 4
    D8 = lambda k: 192 + 4 * k
    ACC = lambda g, tt: [208, 216, 224, 232, 240, 248, 2, 10][g * 2 + tt]
    A8 = 18
    T0, T1 = 26, 28
    V_POLL, V_FL, V_L16, V_OUT = 46, 47, 32, 33
    A(f"v_lshrrev_b32 v30, 4, {V_LANE}", f"v_and_b32 v31, 15, {V_LANE}", f"v_lshlrev_b32 v{V_L16}, 4, {V_LANE}",
      f"v_lshlrev_b32 v{V_OUT}, 11, v31", f"v_lshl_add_u32 v{V_OUT}, v30, 4, v{V_OUT}")
    A(f"s_mul_i32 s32, {S_B}, {144*2048}", f"s_lshl_b32 s50, {S_BR}, 10", "s_add_u32 s32, s32, s50", f"s_lshl_b32 s50, {S_HP}, 6", "s_add_u32 s32, s32, s50")
    A(f"s_mul_i32 s33, {S_HP}, {9*16384}")
    A(f"s_lshl_b32 s50, {S_W}, 14", "s_add_u32 s34, s33, s50", "s_add_u32 s35, s34, 65536",
      f"s_add_u32 s36, s33, {8*16384}", f"s_lshl_b32 s50, {S_W}, 12", "s_add_u32 s36, s36, s50",
      f"s_lshl_b32 s41, {S_W}, 2")
    A("s_mov_b32 s37, 0", "s_mov_b32 s38, 0", f"s_mov_b32 s53, {SPIN}")
    if OPT['own']:
        A(f"s_lshr_b32 s46, {S_HP}, 2", f"s_and_b32 s47, {S_HP}, 3", f"s_lshl_b32 s50, {S_W}, 10", f"s_add_u32 s50, s50, {OWNB}", f"v_add_u32 v44, s50, v{V_L16}")
        if not OPT['latebar']:
            A("s_waitcnt lgkmcnt(0)", "s_barrier", "ds_read_b128 v[36:39], v44", "ds_read_b128 v[40:43], v44 offset:4096")
    def unpack_add(acc, src, first):
        out = []
        for k in range(4):
            if first:
                out += [f"v_lshlrev_b32 v{acc+2*k}, 16, v{src+k}", f"v_and_b32 v{acc+2*k+1}, 0xffff0000, v{src+k}"]
            else:
                t = (T0, T1)[k & 1]
                out += [f"v_lshlrev_b32 v{t}, 16, v{src+k}", f"v_and_b32 v{t+1}, 0xffff0000, v{src+k}",
                        f"v_pk_add_f32 v[{acc+2*k}:{acc+2*k+1}], v[{acc+2*k}:{acc+2*k+1}], v[{t}:{t+1}]"]
        return out
    items = [(tt, g) for tt in range(2) for g in range(4)] + [(2, None)]
    if OPT['early']: A("s_branch L_red_first")
    A("L_red_loop:")
    A("s_cmp_eq_u32 s37, 0x1ff", "s_cbranch_scc1 L_red_nopoll")
    A(f"buffer_load_dword v{V_FL}, v{V_POLL}, {SRD_F}, 0 offen sc1")
    A("L_red_nopoll:", "s_waitcnt vmcnt(0)")
    A("s_andn2_b32 s42, s37, s38")
    for i, (tt, g) in enumerate(items):
        if tt < 2 and g == 0: A(f"s_and_b32 s50, s42, {hex(15 << (4 * tt))}", f"s_cbranch_scc0 L_red_nosumc{tt}")
        A(f"s_bitcmp1_b32 s42, {i}", f"s_cbranch_scc0 L_red_nosum{i}")
        for k in range(4):
            A(unpack_add(ACC(g, tt), DAT(g, tt, k), k == 0) if tt < 2 else unpack_add(A8, D8(k), k == 0))
        A(f"L_red_nosum{i}:")
        if tt < 2 and g == 3: A(f"L_red_nosumc{tt}:")
    A("s_mov_b32 s38, s37", "s_cmp_eq_u32 s38, 0x1ff", "s_cbranch_scc1 L_red_done")
    A("L_red_first:")
    A(f"v_cmp_eq_u32 vcc, 1, v{V_FL}", "s_nop 3", "s_mov_b32 s39, vcc_lo", "s_lshr_b32 s43, vcc_hi, s41", "s_and_b32 s43, s43, 15", "s_mov_b32 s40, s37")
    A("s_sub_u32 s53, s53, 1", "s_cmp_eq_u32 s53, 0", "s_cselect_b32 s39, -1, s39", "s_cselect_b32 s43, 15, s43", "s_cselect_b32 s53, 1, s53")
    for i, (tt, g) in enumerate(items):
        if tt < 2 and g == 0:
            A(f"s_bfe_u32 s50, s37, {hex((4 << 16) | (4 * tt))}", "s_cmp_eq_u32 s50, 15", f"s_cbranch_scc1 L_red_noissc{tt}",
              f"s_bfe_u32 s50, s39, {hex((16 << 16) | (16 * tt))}", "s_cmp_eq_u32 s50, 0", f"s_cbranch_scc1 L_red_noissc{tt}")
        A(f"s_bitcmp1_b32 s37, {i}", f"s_cbranch_scc1 L_red_noiss{i}")
        if tt < 2:
            A(f"s_bfe_u32 s50, s39, {hex((4 << 16) | (16 * tt + 4 * g))}", "s_cmp_eq_u32 s50, 15")
        else:
            A("s_cmp_eq_u32 s43, 15")
        A(f"s_cbranch_scc0 L_red_noiss{i}")
        if tt < 2: A(f"s_add_u32 s50, s{34+tt}, {g*4096}")
        if OPT['own']:
            A(f"s_cmp_eq_u32 s46, {g}" if tt < 2 else f"s_cmp_eq_u32 s46, {S_W}", "s_cselect_b32 s44, s47, 7")
        for k in range(4):
            o = f" offset:{k*1024}" if k else ""
            va = V_L16
            if OPT['own']:
                A(f"s_cmp_eq_u32 s44, {k}", "s_cselect_b32 s45, 0x40000000, 0", f"v_or_b32 v45, s45, v{V_L16}"); va = 45
            if tt < 2: A(f"buffer_load_dwordx4 {vr(DAT(g, tt, k))}, v{va}, {SRD_P}, s50 offen{o} {OPT['rld']}")
            else: A(f"buffer_load_dwordx4 {vr(D8(k))}, v{va}, {SRD_P}, s36 offen{o} {OPT['rld']}")
        A(f"s_bitset1_b32 s37, {i}", f"L_red_noiss{i}:")
        if tt < 2 and g == 3: A(f"L_red_noissc{tt}:")
    if OPT.get('rdst'):
        A("s_cmp_eq_u32 s40, 0", "s_cbranch_scc0 L_rs1", "s_cmp_lg_u32 s37, 0", "s_cbranch_scc0 L_rs1", stamp("r_first"), "L_rs1:")
        A("s_cmp_eq_u32 s37, 0x1ff", "s_cbranch_scc0 L_rs2", stamp("r_alliss"), "L_rs2:")
    A("s_cmp_lg_u32 s37, s40", "s_cbranch_scc1 L_red_loop", f"s_sleep {OPT['psleep']}", "s_branch L_red_loop")
    A("L_red_done:")
    if OPT.get('rdst'): A(stamp("r_summed"))
    A(f"s_lshl_b32 s50, {S_W}, 11", f"v_lshlrev_b32 v30, 5, {V_LANE}", f"v_add_u32 v30, {WOB}, v30", "v_add_u32 v31, s50, v30",
      f"ds_write_b128 v31, {vr(A8)}", f"ds_write_b128 v31, {vr(A8+4)} offset:16")
    late = OPT['own'] and OPT['latebar']
    for tt in range(2):
        a0 = ACC(0, tt)
        for g in range(1, 4):
            for k in range(4): A(f"v_pk_add_f32 v[{a0+2*k}:{a0+2*k+1}], v[{a0+2*k}:{a0+2*k+1}], v[{ACC(g,tt)+2*k}:{ACC(g,tt)+2*k+1}]")
    if late:
        A("s_waitcnt lgkmcnt(0)", "s_barrier", "ds_read_b128 v[36:39], v44", "ds_read_b128 v[40:43], v44 offset:4096")
    for tt in range(2):
        a0 = ACC(0, tt)
        if OPT['own']: A(("s_waitcnt lgkmcnt(1)" if late else "s_waitcnt lgkmcnt(2)") if tt == 0 else "s_waitcnt lgkmcnt(0)" if late else "s_nop 0", unpack_add(a0, 36 + 4 * tt, False))
        for k in range(4): A(f"v_cvt_pk_bf16_f32 v{64+4*tt+k}, v{a0+2*k}, v{a0+2*k+1}")
        A(f"s_lshl_b32 s50, {S_W}, 15", f"s_add_u32 s50, s50, s32", f"s_add_u32 s50, s50, {tt*4*32768}")
        A(f"buffer_store_dwordx4 {vr(64+4*tt)}, v{V_OUT}, {SRD_O}, s50 offen {OPT['ost']}")
    if not late: A("s_waitcnt lgkmcnt(0)", "s_barrier")
    A(f"s_cmp_eq_u32 {S_W}, 0", "s_cbranch_scc0 L_red_end")
    for g in range(4):
        A(f"ds_read_b128 {vr(80+8*g)}, v30 offset:{g*2048}", f"ds_read_b128 {vr(84+8*g)}, v30 offset:{g*2048+16}")
    if OPT['own']: A("ds_read_b128 v[36:39], v44 offset:8192")
    A("s_waitcnt lgkmcnt(0)")
    for g in range(1, 4):
        for k in range(4): A(f"v_pk_add_f32 v[{80+2*k}:{81+2*k}], v[{80+2*k}:{81+2*k}], v[{80+8*g+2*k}:{81+8*g+2*k}]")
    if OPT['own']: A(unpack_add(80, 36, False))
    for k in range(4): A(f"v_cvt_pk_bf16_f32 v{72+k}, v{80+2*k}, v{81+2*k}")
    A(f"s_add_u32 s50, s32, {8*32768}")
    A(f"buffer_store_dwordx4 {vr(72)}, v{V_OUT}, {SRD_O}, s50 offen {OPT['ost']}")
    A("L_red_end:")
    L2, n = hazards(L)
    return L2

def reduce_phase():
    if not OPT['linred']: return reduce_phase_groups()
    assert OPT['own'] and OPT['early']
    L = []; A = lambda *x: L.extend(II(*x))
    DA = lambda p: 64 + 4 * p
    DB = lambda p: 128 + 4 * p
    D8 = lambda k: 192 + 4 * k
    ACA, ACB, A8 = 208, 216, 224
    T0, T1 = 26, 28
    V_POLL, V_FL, V_L16, V_OUT = 46, 47, 32, 33
    A(f"v_lshrrev_b32 v30, 4, {V_LANE}", f"v_and_b32 v31, 15, {V_LANE}", f"v_lshlrev_b32 v{V_L16}, 4, {V_LANE}",
      f"v_lshlrev_b32 v{V_OUT}, 11, v31", f"v_lshl_add_u32 v{V_OUT}, v30, 4, v{V_OUT}")
    A(f"s_mul_i32 s33, {S_HP}, {9*16384}")
    A(f"s_lshl_b32 s50, {S_W}, 14", "s_add_u32 s34, s33, s50", "s_add_u32 s35, s34, 65536",
      f"s_add_u32 s36, s33, {8*16384}", f"s_lshl_b32 s50, {S_W}, 12", "s_add_u32 s36, s36, s50",
      f"s_lshl_b32 s41, {S_W}, 2", f"s_mov_b32 s53, {SPIN}")
    def loads(base, dst):
        for p in range(16):
            if p % 4 == 0: A(f"s_add_u32 s50, {base}, {p*1024}")
            o = f" offset:{(p % 4)*1024}" if p % 4 else ""
            A(f"s_cmp_eq_u32 {S_HP}, {p}", f"s_cbranch_scc1 L_rl_{base}_{p}",
              f"buffer_load_dwordx4 {vr(dst(p))}, v{V_L16}, {SRD_P}, s50 offen{o} {OPT['rld']}", f"L_rl_{base}_{p}:")
    def poll(name, test):
        A(f"L_poll_{name}:", f"v_cmp_eq_u32 vcc, 1, v{V_FL}", "s_nop 3")
        A(test)
        A(f"s_cbranch_scc1 L_poll_{name}_ok", "s_sub_u32 s53, s53, 1", "s_cmp_eq_u32 s53, 0", f"s_cbranch_scc1 L_poll_{name}_ok",
          f"s_sleep {OPT['psleep']}", f"buffer_load_dword v{V_FL}, v{V_POLL}, {SRD_F}, 0 offen sc1", "s_waitcnt vmcnt(0)", f"s_branch L_poll_{name}",
          f"L_poll_{name}_ok:")
    def unpack_add(acc, src):
        out = []
        for k in range(4):
            t = (T0, T1)[k & 1]
            out += [f"v_lshlrev_b32 v{t}, 16, v{src+k}", f"v_and_b32 v{t+1}, s60, v{src+k}",
                    f"v_pk_add_f32 v[{acc+2*k}:{acc+2*k+1}], v[{acc+2*k}:{acc+2*k+1}], v[{t}:{t+1}]"]
        return out
    A("s_mov_b32 s60, 0xffff0000")
    one = OPT['onepoll']
    if one:
        A(f"s_cmp_eq_u32 {S_W}, 0", "s_cbranch_scc0 L_poll_a_skip")
    poll("a", ["s_and_b32 s50, vcc_lo, 0xffff", "s_cmp_eq_u32 s50, 0xffff"])
    if one:
        A("L_poll_a_skip:", "s_waitcnt lgkmcnt(0)", "s_barrier")
    loads("s34", DA)
    A(f"s_lshl_b32 s50, {S_W}, 10", f"s_add_u32 s50, s50, {OWNB}", f"v_add_u32 v44, s50, v{V_L16}")
    if not one: A("s_waitcnt lgkmcnt(0)", "s_barrier")
    A("ds_read_b128 v[36:39], v44", "ds_read_b128 v[40:43], v44 offset:4096")
    for r in range(ACA, ACA + 24): A(f"v_mov_b32 v{r}, 0")
    A(f"s_mul_i32 s32, {S_B}, {144*2048}", f"s_lshl_b32 s50, {S_BR}, 10", "s_add_u32 s32, s32, s50", f"s_lshl_b32 s50, {S_HP}, 6", "s_add_u32 s32, s32, s50")
    if one:
        A(f"s_cmp_eq_u32 {S_W}, 0", "s_cbranch_scc0 L_poll_b_skip")
        A(f"buffer_load_dword v{V_FL}, v{V_POLL}, {SRD_F}, 0 offen sc1", "s_waitcnt vmcnt(0)")
        poll("b", ["s_lshr_b32 s50, vcc_lo, 16", "s_and_b32 s51, vcc_hi, 0xffff", "s_lshl_b32 s51, s51, 16", "s_or_b32 s50, s50, s51", "s_cmp_eq_u32 s50, -1"])
        A("L_poll_b_skip:", "s_waitcnt vmcnt(0)", "s_barrier")
    else:
        A(f"buffer_load_dword v{V_FL}, v{V_POLL}, {SRD_F}, 0 offen sc1", "s_waitcnt vmcnt(0)")
        poll("b", ["s_lshr_b32 s50, vcc_lo, 16", "s_lshr_b32 s51, vcc_hi, s41", "s_and_b32 s51, s51, 15", "s_lshl_b32 s51, s51, 16", "s_or_b32 s50, s50, s51",
                   "s_cmp_eq_u32 s50, 0xfffff"])
    loads("s35", DB)
    for k in range(4):
        o = f" offset:{k*1024}" if k else ""
        A(f"s_add_u32 s50, s41, {k}", f"s_cmp_eq_u32 {S_HP}, s50", f"s_cbranch_scc1 L_rl8_{k}",
          f"buffer_load_dwordx4 {vr(D8(k))}, v{V_L16}, {SRD_P}, s36 offen{o} {OPT['rld']}", f"L_rl8_{k}:")
    for p in range(16):
        A(f"s_cmp_eq_u32 {S_HP}, {p}", f"s_cbranch_scc1 L_rs_a{p}", unpack_add(ACA, DA(p)), f"L_rs_a{p}:")
    A("s_waitcnt lgkmcnt(0)", unpack_add(ACA, 36))
    for k in range(4): A(f"v_cvt_pk_bf16_f32 v{64+k}, v{ACA+2*k}, v{ACA+2*k+1}")
    A(f"s_lshl_b32 s50, {S_W}, 15", "s_add_u32 s37, s50, s32")
    A(f"buffer_store_dwordx4 {vr(64)}, v{V_OUT}, {SRD_O}, s37 offen {OPT['ost']}")
    for p in range(16):
        A(f"s_waitcnt vmcnt({max(15 - p + 4 + 1 - 2, 0)})", f"s_cmp_eq_u32 {S_HP}, {p}", f"s_cbranch_scc1 L_rs_b{p}", unpack_add(ACB, DB(p)), f"L_rs_b{p}:")
    A(unpack_add(ACB, 40))
    for k in range(4): A(f"v_cvt_pk_bf16_f32 v{68+k}, v{ACB+2*k}, v{ACB+2*k+1}")
    A(f"s_add_u32 s37, s37, {4*32768}")
    A("s_waitcnt vmcnt(1)")
    for k in range(4):
        A(f"s_add_u32 s50, s41, {k}", f"s_cmp_eq_u32 {S_HP}, s50", f"s_cbranch_scc1 L_rs_c{k}", unpack_add(A8, D8(k)), f"L_rs_c{k}:")
    A(f"buffer_store_dwordx4 {vr(68)}, v{V_OUT}, {SRD_O}, s37 offen {OPT['ost']}")
    A(f"s_lshl_b32 s50, {S_W}, 11", f"v_lshlrev_b32 v30, 5, {V_LANE}", f"v_add_u32 v30, {WOB}, v30", "v_add_u32 v31, s50, v30",
      f"ds_write_b128 v31, {vr(A8)}", f"ds_write_b128 v31, {vr(A8+4)} offset:16")
    A("s_waitcnt lgkmcnt(0)", "s_barrier", f"s_cmp_eq_u32 {S_W}, 0", "s_cbranch_scc0 L_red_end")
    for g in range(4):
        A(f"ds_read_b128 {vr(80+8*g)}, v30 offset:{g*2048}", f"ds_read_b128 {vr(84+8*g)}, v30 offset:{g*2048+16}")
    A("ds_read_b128 v[36:39], v44 offset:8192")
    A("s_waitcnt lgkmcnt(0)")
    for g in range(1, 4):
        for k in range(4): A(f"v_pk_add_f32 v[{80+2*k}:{81+2*k}], v[{80+2*k}:{81+2*k}], v[{80+8*g+2*k}:{81+8*g+2*k}]")
    A(unpack_add(80, 36))
    for k in range(4): A(f"v_cvt_pk_bf16_f32 v{72+k}, v{80+2*k}, v{81+2*k}")
    A(f"s_add_u32 s50, s32, {8*32768}")
    A(f"buffer_store_dwordx4 {vr(72)}, v{V_OUT}, {SRD_O}, s50 offen {OPT['ost']}")
    A("L_red_end:")
    L2, n = hazards(L)
    return L2

def dump_regs(regs, slot, kind='v'):
    L = []; A = lambda *x: L.extend(II(*x))
    A("s_add_u32 s66, s58, 0x4000000", "s_addc_u32 s67, s59, 0",
      "s_lshl_b32 s50, s2, 2", f"s_add_u32 s50, s50, {S_W}", "s_lshl_b32 s50, s50, 16",
      f"v_lshlrev_b32 v253, 2, {V_LANE}", "v_add_u32 v253, s50, v253")
    for i, r in enumerate(regs):
        if kind == 'a':
            A(f"v_accvgpr_read_b32 v254, a{r}", "s_nop 0")
            A(f"global_store_dword v253, v254, s[66:67]")
        else:
            A(f"global_store_dword v253, v{r}, s[66:67]")
        A("v_add_u32 v253, 256, v253")
    A("s_waitcnt vmcnt(0)")
    return L

def main_kernel():
    L = []
    L += setup()
    L += stamp("start")
    L += phase_q()
    L += stamp("q_done")
    if OPT['dump'] == 'q':
        L += II("s_nop 7") + dump_regs([qfrag(t, s) + k for t in range(5) for s in range(4) for k in range(4)], 0)
        L += II("s_waitcnt vmcnt(0)", "s_endpgm")
    L += attention()
    if OPT['dump'] == 'o':
        L += II("s_nop 7") + dump_regs([oacc(dt, t) + k for t in range(5) for dt in range(8) for k in range(4)] + [lacc(t) for t in range(5)], 0, 'a')
        L += II("s_waitcnt vmcnt(0)", "s_endpgm")
    e, q = o_epilogue(); L += e
    L += stamp("o_done")
    if OPT.get('stop') == 'o':
        L += II("s_waitcnt vmcnt(0)") + stamp("end") + stamp_dump() + II("L_main_end:", "s_endpgm") + safe_paths()
        return L
    e, q = out_proj(q); L += e
    L += stamp("op_done")
    if OPT['fused']:
        L += reduce_phase()
        L += stamp("red_done")
    L += tr_dump()
    if not OPT.get('noendwait') or OPT['stamps']: L += II("s_waitcnt vmcnt(0)")
    L += stamp("end")
    L += stamp_dump()
    L += II("L_main_end:", "s_endpgm")
    L += OWN_OOL + ATT_OOL
    L += safe_paths()
    return L

def reduce_kernel():
    L = []; A = lambda *x: L.extend(II(*x))
    A("s_cmp_ge_u32 s2, 256", "s_cbranch_scc1 L_red_end")
    A("s_load_dwordx2 s[4:5], s[0:1], 80", "s_load_dwordx2 s[6:7], s[0:1], 96")
    A("v_lshrrev_b32 v2, 6, v0", "v_and_b32 v1, 63, v0", "s_nop 0", "v_readfirstlane_b32 s12, v2", "s_nop 3")
    A("s_waitcnt lgkmcnt(0)")
    A("s_mul_i32 s13, s2, 9", "s_add_u32 s13, s13, s12", "s_lshl_b32 s13, s13, 14")
    A("s_add_u32 s16, s6, s13", "s_addc_u32 s17, s7, 0", "s_and_b32 s17, s17, 0xffff", "s_mov_b32 s18, 16384", "s_mov_b32 s19, 0x20000")
    A("v_lshlrev_b32 v2, 4, v1")
    for p in range(16):
        A(f"buffer_load_dwordx4 v[{8+4*p}:{11+4*p}], v2, s[16:19], 0 offen offset:{(p%4)*1024}" if p < 4 else
          f"buffer_load_dwordx4 v[{8+4*p}:{11+4*p}], v2, s[16:19], s{20+p//4} offen offset:{(p%4)*1024}")
        if p == 3: A("s_mov_b32 s21, 4096", "s_mov_b32 s22, 8192", "s_mov_b32 s23, 12288")
    A("s_lshr_b32 s14, s2, 4", "s_and_b32 s15, s2, 15",
      "s_and_b32 s24, s14, 7", "s_lshr_b32 s25, s14, 3",
      "s_mul_i32 s24, s24, 144", "s_lshl_b32 s26, s12, 4", "s_add_u32 s24, s24, s26", "s_lshl_b32 s24, s24, 11",
      "s_lshl_b32 s25, s25, 10", "s_lshl_b32 s15, s15, 6", "s_add_u32 s24, s24, s25", "s_add_u32 s24, s24, s15")
    A("v_and_b32 v3, 15, v1", "v_lshlrev_b32 v3, 11, v3", "v_lshrrev_b32 v4, 4, v1", "v_lshl_add_u32 v3, v4, 4, v3")
    A("s_mov_b32 s28, s4", "s_and_b32 s29, s5, 0xffff", "s_mov_b32 s30, 2359296", "s_mov_b32 s31, 0x20000")
    acc = 80
    for p in range(16):
        A(f"s_waitcnt vmcnt({15-p})")
        for k in range(4):
            r = 8 + 4 * p + k
            if p == 0:
                A(f"v_lshlrev_b32 v{acc+2*k}, 16, v{r}", f"v_and_b32 v{acc+2*k+1}, 0xffff0000, v{r}")
            else:
                A(f"v_lshlrev_b32 v6, 16, v{r}", f"v_and_b32 v7, 0xffff0000, v{r}",
                  f"v_add_f32 v{acc+2*k}, v{acc+2*k}, v6", f"v_add_f32 v{acc+2*k+1}, v{acc+2*k+1}, v7")
    for k in range(4): A(f"v_cvt_pk_bf16_f32 v{8+k}, v{acc+2*k}, v{acc+2*k+1}")
    A("buffer_store_dwordx4 v[8:11], v3, s[28:31], s24 offen")
    A("s_waitcnt vmcnt(0)")
    A("L_red_end:", "s_endpgm")
    return L

def kernel_text(name, body, vgpr, accum, sgpr=102):
    return f""".globl {name}
.p2align 8
.type {name},@function
{name}:
{text(body)}
"""
def kd(name, nfv, accum, sgpr=102):
    return f""".amdhsa_kernel {name}
  .amdhsa_next_free_vgpr {nfv}
  .amdhsa_next_free_sgpr {sgpr}
  .amdhsa_accum_offset {accum}
  .amdhsa_group_segment_fixed_size 0
  .amdhsa_kernarg_size 104
  .amdhsa_user_sgpr_count 2
  .amdhsa_user_sgpr_kernarg_segment_ptr 1
  .amdhsa_system_sgpr_workgroup_id_x 1
.end_amdhsa_kernel
"""

def build():
    stamp_id[0] = 0; STAMPS.clear()
    k1 = NAME + "_kernel"; k2 = "reduce_heads_kernel"
    m = main_kernel()
    hdr = """; Fused  x@wq -> softmax(q k^T / sqrt(128)) v -> @wo  for both branches, one launch, 256 workgroups x 4 waves.
"""
    if OPT['fused']:
        hdr += f"; @launch grid=(256,1,1) block=(256,1,1) lds=163840\n"
    else:
        hdr += f"; @launch kernel={k1} grid=(256,1,1) block=(256,1,1) lds=163840\n"
        hdr += f"; @launch kernel={k2} grid=(256,1,1) block=(576,1,1) lds=0\n"
    s = hdr + '.amdgcn_target "amdgcn-amd-amdhsa--gfx950"\n.text\n'
    s += kernel_text(k1, m, 512, 256)
    if not OPT['fused']: s += kernel_text(k2, reduce_kernel(), 96, 96)
    s += '.section .rodata,"a"\n.p2align 6\n' + kd(k1, 512, 256)
    if not OPT['fused']: s += ".p2align 6\n" + kd(k2, 96, 96, 40)
    return s

if __name__ == "__main__":
    ap = argparse.ArgumentParser()
    ap.add_argument("-o", default="cdna_kernels/" + NAME + ".s")
    ap.add_argument("--dump"); ap.add_argument("--stamps", action="store_true"); ap.add_argument("-v", action="store_true")
    ap.add_argument("--opt", action="append", default=[])
    a = ap.parse_args()
    OPT['dump'] = a.dump; OPT['stamps'] = a.stamps; OPT['verbose'] = a.v
    for o in a.opt:
        k, v = o.split("=", 1)
        OPT[k] = {'True': True, 'False': False}.get(v, int(v) if v.lstrip('-').isdigit() else v)
    s = build()
    open(a.o, "w").write(s)
    if a.stamps:
        import json; json.dump(STAMPS, open(a.o + ".stamps.json", "w"))
    print("wrote", a.o, len(s), "bytes")
```

```python
import sys, argparse
from ir import *

NAME = "concat_heads__gqa_block_cached__mha_block_cached__near_ridge"
OPT = dict(worot=True, pfat=12, pfexact=True, onepoll=True, linred=True, latebar=False, wsoff=0, own=True, early=True, l2pf=False, np1=0, pfw=1, pfkv=0, pfkvnt=False, psleep=8, ost='nt', noendwait=True, lthr=0, start2=True, pf=2, pfnt=False, fused=True, rld='sc1', rot=True, wnt=False, xnt=False, wont=False, bursts=(3, 6, 9), dump=None, stamps=False, stop=None, kvnt=True, pst="sc1", verbose=False)

VB = 0
KB = 65536
WB = 16384
XB = 114688
WOA = 131072
WOB = 98304
OB = 0
def kphys(k): return ((k + 1) & 3) * 16384
def vphys(k): return (k & 3) * 16384

SRD_X, SRD_WQ, SRD_K, SRD_V, SRD_WO, SRD_P = "s[4:7]", "s[8:11]", "s[12:15]", "s[16:19]", "s[20:23]", "s[24:27]"
SRD_F, SRD_D, SRD_O = "s[68:71]", "s[72:75]", "s[80:83]"
S_W, S_U, S_QH, S_CNT = "s28", "s29", "s30", "s31"
S_SOFFX, S_SOFFW0, S_UNUSED, S_MW, S_MX, S_DSLOT, S_RSLOT, S_DW, S_DX = "s32", "s33", "s34", "s35", "s36", "s37", "s38", "s39", "s40"
S_BW, S_BX = "s41", "s42"
S_SOFFK, S_SOFFV, S_MK, S_MV = "s45", "s46", "s47", "s48"
S_T0, S_T1, S_T2, S_T3 = "s50", "s51", "s52", "s53"
S_HP, S_B, S_BR, S_CL = "s54", "s55", "s56", "s57"
S_WS = "s[58:59]"
S_SOFFP = "s60"
S_STAMP = "s[62:63]"
S_FLAG = "s64"
S_SAFE = "s61"
S_B15 = "s39"
S_BX3 = "s38"
LTHR = 0x4b800000
S_KS, S_X0, S_W0 = "s88", "s89", "s87"
S_TAU, S_TB, S_TQ, S_T4N, S_TMASK, S_TSH, S_TM, S_TS = "s78", "s79", "s43", "s44", "s34", "s49", "s61", "s95"

V_LANE = "v1"
V_WQR = [2, 3, 4, 5]; V_XR = 6; V_XR4 = 14; V_OW4 = 50; V_OWB = 51
V_WQD = [7, 8, 9, 10]; V_XD = [11, 12, 13]; V_TG, V_TI, V_TB, V_TV = 14, 15, 62, 63
V_KD = [16, 17, 18, 19]; V_VD = [20, 21]
V_KR = [22, 23, 24, 25]; V_VR = [26 + i for i in range(8)]
V_WOD = [34, 35, 36, 37]; V_WOR = [38, 39, 40, 41]
V_OW, V_OR, V_OR8, V_PS = 42, 43, 44, 45
VT = [46 + i for i in range(18)]
RB = 64
def grp(t, s): return RB + (t * 4 + s) * 8
def qacc(dt, t): return grp(t, dt >> 1) + 4 * (dt & 1)
def qfrag(t, s): return grp(t, s)
def Sreg(kt, t): return grp(t, kt) + 4
def Preg(par, t): return grp(t, 2 + par) + 4
def cinit(t): return 224 + 4 * t
V_C0, V_C1 = 244, 245
def vr(b, n=4): return f"v[{b}:{b+n-1}]"
def ar(b, n=4): return f"a[{b}:{b+n-1}]"
def oacc(dt, t): return t * 32 + dt * 4
def lacc(t): return 160 + 4 * t
A_ONES = 180
def abuf(i): return 184 + 4 * i
def bbuf(t): return [48, 52, 56, 60, 248][t]
def kbuf(kt, s): return 216 + 4 * (kt * 4 + s)

MF = "v_mfma_f32_16x16x32_bf16"
def mfma(d, a, b, c): return I(f"{MF} {d}, {a}, {b}, {c}")
SCALE = (128 ** -0.5) * 1.4426950408889634
import struct
def f2u(x): return struct.unpack("<I", struct.pack("<f", x))[0]

def NT(): return " nt" if OPT['kvnt'] else ""

def CNTOFF(): return 128 if OPT.get('dbgst') is not None else 0
stamp_id = [0]
def stamp(name):
    if not OPT['stamps']: return []
    i = stamp_id[0]; stamp_id[0] += 1
    STAMPS.append(name)
    return II("s_memrealtime s[66:67]", "s_memtime s[64:65]", "s_waitcnt lgkmcnt(0)",
              f"v_writelane_b32 v0, s66, {i}", f"v_writelane_b32 v0, s64, {32 + i}")
def stamp_dump():
    if not OPT['stamps']: return []
    if OPT.get('dbgst') is not None:
        return II(f"s_cmp_eq_u32 s2, {OPT['dbgst']}", "s_cbranch_scc0 L_nodbg", f"s_cmp_eq_u32 {S_W}, 0", "s_cbranch_scc0 L_nodbg",
                  "v_readlane_b32 s50, v0, 0", "s_nop 3", "v_subrev_u32 v0, s50, v0",
                  f"v_lshlrev_b32 v1, 2, {V_LANE}", "v_cmp_gt_u32 vcc, 16, v1", f"v_lshrrev_b32 v2, 2, v1", "v_mov_b32 v3, 0x1000", "v_cmp_gt_u32 vcc, 16, v2", "s_nop 1",
                  "v_cndmask_b32 v1, v3, v1, vcc", f"buffer_store_dword v0, v1, {SRD_D}, 0 offen", "L_nodbg:")
    return II("s_add_u32 s62, s58, 0x8000000", "s_addc_u32 s63, s59, 0", "s_lshl_b32 s65, s2, 2", f"s_add_u32 s65, s65, {S_W}", "s_lshl_b32 s65, s65, 8",
              f"v_lshlrev_b32 v1, 2, {V_LANE}", "v_add_u32 v1, s65, v1", "global_store_dword v1, v0, s[62:63]")
STAMPS = []

def setup():
    L = []
    A = lambda *x: L.extend(II(*x))
    A("s_cmp_ge_u32 s2, 256", "s_cbranch_scc1 L_main_end")
    if OPT['stamps'] and OPT.get('t0st'): A("s_memrealtime s[100:101]")
    A("s_load_dwordx8 s[68:75], s[0:1], 0", "s_load_dwordx2 s[76:77], s[0:1], 32",
      "s_load_dwordx8 s[80:87], s[0:1], 40", "s_load_dwordx2 s[88:89], s[0:1], 72",
      f"s_load_dwordx2 {S_WS}, s[0:1], 96", "s_load_dwordx4 s[96:99], s[0:1], 80")
    A("s_and_b32 s50, s2, 7", "s_lshr_b32 s51, s2, 3",
      f"s_lshr_b32 {S_BR}, s50, 2",
      "s_and_b32 s52, s50, 3", "s_lshl_b32 s52, s52, 2", "s_and_b32 s53, s51, 3", f"s_add_u32 {S_HP}, s52, s53",
      f"s_lshr_b32 {S_B}, s51, 2",
      f"s_lshl_b32 s52, {S_BR}, 3", f"s_add_u32 {S_CL}, s52, {S_B}")
    A("v_lshrrev_b32 v46, 6, v0", f"v_and_b32 {V_LANE}, 63, v0", "s_nop 0", f"v_readfirstlane_b32 {S_W}, v46", "s_nop 3")
    A(f"s_lshr_b32 {S_U}, {S_W}, 1", f"s_and_b32 {S_QH}, {S_W}, 1", f"s_mov_b32 {S_SAFE}, 0")
    A(lane_consts_q())
    if OPT['stamps'] and OPT.get('t0st'):
        A("s_memrealtime s[66:67]")
    A("s_waitcnt lgkmcnt(0)")
    if OPT['stamps'] and OPT.get('t0st'):
        i0 = stamp_id[0]; stamp_id[0] += 2; STAMPS.extend(["entry", "consts_q"])
        A(f"v_writelane_b32 v0, s100, {i0}", f"v_writelane_b32 v0, s66, {i0+1}", f"v_writelane_b32 v0, s100, {32+i0}", f"v_writelane_b32 v0, s66, {33+i0}")
    A(f"s_cmp_eq_u32 {S_BR}, 1")
    for i in (0, 1, 6, 7): A(f"s_cselect_b32 s{68+i}, s{80+i}, s{68+i}")
    def srd(dst, lo, hi, off_expr_regs, nrec):
        A(f"s_add_u32 s{dst}, s{lo}, s50", f"s_addc_u32 s{dst+1}, s{hi}, 0", f"s_and_b32 s{dst+1}, s{dst+1}, 0xffff")
        A(nrec, f"s_mov_b32 s{dst+3}, 0x20000")
    A(f"s_mul_i32 s50, {S_B}, 147456"); srd(4, 68, 69, None, "s_mov_b32 s6, 147456")
    A(f"s_lshl_b32 s50, {S_HP}, 9"); srd(8, 74, 75, None, "s_sub_u32 s10, 4194304, s50")
    return L

def setup_b():
    L = []
    A = lambda *x: L.extend(II(*x))
    def srd(dst, lo, hi, off_expr_regs, nrec):
        A(f"s_add_u32 s{dst}, s{lo}, s50", f"s_addc_u32 s{dst+1}, s{hi}, 0", f"s_and_b32 s{dst+1}, s{dst+1}, 0xffff")
        A(nrec, f"s_mov_b32 s{dst+3}, 0x20000")
    A(f"s_cmp_eq_u32 {S_SAFE}, 1", "s_cbranch_scc1 L_setup_b_done")
    A(f"s_cmp_eq_u32 {S_BR}, 1")
    for i in (2, 3, 4, 5): A(f"s_cselect_b32 s{68+i}, s{80+i}, s{68+i}")
    A("s_cselect_b32 s76, s88, s76", "s_cselect_b32 s77, s89, s77")
    A(f"s_lshl_b32 s50, {S_B}, 5", f"s_lshl_b32 s51, {S_HP}, 1", "s_add_u32 s50, s50, s51", f"s_add_u32 s50, s50, {S_U}", "s_lshl_b32 s50, s50, 17")
    srd(12, 70, 71, None, "s_mov_b32 s14, 131072")
    srd(16, 72, 73, None, "s_mov_b32 s18, 131072")
    A(f"s_lshl_b32 s50, {S_HP}, 18", f"s_lshl_b32 s51, {S_W}, 8", "s_add_u32 s50, s50, s51")
    A("s_sub_u32 s52, 262144, s51")
    srd(20, 76, 77, None, "s_mov_b32 s22, s52")
    A(f"s_lshl_b32 s50, {S_HP}, 18"); srd(84, 76, 77, None, "s_mov_b32 s86, 262144")
    A(f"s_mul_i32 s50, {S_CL}, 2359296", f"s_add_u32 s50, s50, {hex(OPT['wsoff'])}"); srd(24, 58, 59, None, "s_mov_b32 s26, 2359296")
    if OPT['fused']:
        A(f"s_mul_i32 s50, {S_CL}, 4608", f"s_add_u32 s50, s50, {hex(OPT['wsoff'] + 0x2400000 + 0x40000)}"); srd(68, 58, 59, None, "s_mov_b32 s70, 4608")
        A("s_mov_b32 s72, s98", "s_and_b32 s73, s99, 0xffff", "s_mov_b32 s74, 256", "s_mov_b32 s75, 0x20000")
        A("s_mov_b32 s80, s96", "s_and_b32 s81, s97, 0xffff", "s_mov_b32 s82, 2359296", "s_mov_b32 s83, 0x20000")
        A(f"s_lshl_b32 s50, {S_W}, 7", f"s_lshl_b32 s51, {S_HP}, 2", "s_add_u32 s50, s50, s51",
          f"v_lshlrev_b32 v46, 9, {V_LANE}", "v_add_u32 v46, s50, v46", "v_mov_b32 v47, 0",
          f"buffer_store_dword v47, v46, {SRD_F}, 0 offen sc1" if not OPT.get('x_noclr') else "s_nop 0")
    A("L_setup_b_done:")
    return L

def lane_consts_q():
    L = []; A = lambda *x: L.extend(II(*x))
    l = V_LANE; t0, t1, t2, t3, t4, t5 = [f"v{x}" for x in VT[:6]]
    A(f"v_lshrrev_b32 {t0}, 4, {l}", f"v_bfe_u32 {t1}, {l}, 2, 2", f"v_and_b32 {t2}, 3, {l}", f"v_and_b32 {t3}, 15, {l}")
    w0, w1, w2, w3 = [f"v{x}" for x in V_WQD]
    A(f"v_lshrrev_b32 {t4}, 5, {l}", f"v_bfe_u32 {t5}, {l}, 4, 1",
      f"v_lshlrev_b32 {w0}, 2, {t4}", f"v_xor_b32 {w0}, {w0}, {t3}", f"v_lshlrev_b32 {w0}, 4, {w0}",
      f"v_lshl_add_u32 {w0}, {t5}, 8, {w0}", f"v_lshl_add_u32 {w0}, {t4}, 13, {w0}",
      f"v_xor_b32 {w1}, 0x80, {w0}", f"v_add_u32 {w1}, {2*8192 - 1024}, {w1}",
      f"v_add_u32 {w2}, {4*8192 - 2048}, {w0}", f"v_add_u32 {w3}, {4*8192 - 2048}, {w1}")
    A(f"v_lshlrev_b32 {t4}, 1, {t0}", f"v_mov_b32 {t5}, 0x78", f"v_lshrrev_b32 {t4}, {t4}, {t5}", f"v_and_b32 {t4}, 3, {t4}",
      f"v_xor_b32 {t4}, {t4}, {t2}", f"v_lshlrev_b32 {t4}, 4, {t4}",
      f"v_lshrrev_b32 {t5}, 2, {l}", f"v_lshl_add_u32 {t4}, {t5}, 10, {t4}")
    for j in range(2):
        A(f"v_add_u32 v{V_XD[j]}, {j*16384 - 1024*j}, {t4}")
    A(f"s_lshl_b32 s50, {S_W}, 1", "s_lshr_b32 s50, 0x78, s50", "s_and_b32 s50, s50, 3",
      f"v_xor_b32 {t4}, s50, {t2}", f"v_lshlrev_b32 {t4}, 4, {t4}", f"v_lshl_add_u32 {t4}, {t5}, 10, {t4}",
      f"s_lshl_b32 s50, {S_W}, 12", f"s_lshl_b32 s51, {S_W}, 15", "s_sub_u32 s50, s50, s51", f"s_add_u32 s50, s50, {128*1024}",
      f"v_add_u32 v{V_XD[2]}, s50, {t4}")
    return L

def lane_consts_q2():
    L = []; A = lambda *x: L.extend(II(*x))
    l = V_LANE; t0, t1, t2, t3, t4, t5 = [f"v{x}" for x in VT[:6]]
    A(f"v_lshrrev_b32 {t0}, 4, {l}", f"v_bfe_u32 {t1}, {l}, 2, 2", f"v_and_b32 {t2}, 3, {l}", f"v_and_b32 {t3}, 15, {l}")
    for n in range(4):
        A(f"v_add_u32 {t4}, {4*n}, {t0}", f"v_xor_b32 {t4}, {t4}, {t3}", f"v_lshlrev_b32 {t4}, 4, {t4}",
          f"v_lshl_add_u32 v{V_KD[n]}, {t0}, 8, {t4}")
    for n in range(2):
        A(f"v_add_u32 {t4}, {4*n}, {t0}", f"v_lshlrev_b32 {t4}, 1, {t4}", f"v_xor_b32 {t4}, {t4}, {t3}", f"v_lshlrev_b32 {t4}, 4, {t4}",
          f"v_lshl_add_u32 v{V_VD[n]}, {t0}, 8, {t4}")
    A(f"v_lshl_add_u32 {t4}, {t0}, 3, {t1}", f"v_lshlrev_b32 {t4}, 9, {t4}", f"v_lshl_add_u32 {t4}, {t2}, 4, {t4}",
      f"s_lshl_b32 s50, {S_U}, 8", f"s_add_u32 s50, s50, {WB}", f"v_add_u32 {t4}, s50, {t4}")
    A(f"s_lshl_b32 s51, {S_QH}, 1", f"v_xor_b32 {t1}, s51, {t1}")
    for s in range(4):
        A(f"v_xor_b32 {t5}, {s}, {t1}", f"v_lshl_add_u32 v{V_WQR[s]}, {t5}, 6, {t4}")
    A(f"v_lshrrev_b32 {t4}, 2, {t3}", f"v_lshlrev_b32 {t4}, 1, {t4}", f"v_mov_b32 {t5}, 0x78", f"v_lshrrev_b32 {t4}, {t4}, {t5}", f"v_and_b32 {t4}, 3, {t4}",
      f"v_xor_b32 {t4}, {t4}, {t0}", f"v_lshlrev_b32 {t4}, 4, {t4}", f"v_lshl_add_u32 {t4}, {t3}, 6, {t4}",
      f"s_mul_i32 s50, {S_QH}, 5120", f"s_add_u32 s50, s50, {XB}", f"v_add_u32 v{V_XR}, s50, {t4}", f"v_add_u32 v{V_XR4}, {XB + 4096}, {t4}")
    return L

def lane_consts_rest():
    L = []; A = lambda *x: L.extend(II(*x))
    l = V_LANE; t0, t1, t2, t3, t4, t5, t6 = [f"v{x}" for x in VT[:7]]
    A(f"v_lshrrev_b32 {t0}, 4, {l}", f"v_bfe_u32 {t1}, {l}, 2, 2", f"v_and_b32 {t2}, 3, {l}", f"v_and_b32 {t3}, 15, {l}")
    A(f"s_lshl_b32 s50, {S_U}, 13", f"s_add_u32 s51, s50, {KB}", f"v_lshlrev_b32 {t4}, 8, {t3}", f"v_add_u32 {t4}, s51, {t4}")
    A(f"s_lshl_b32 s51, {S_QH}, 3", f"v_xor_b32 {t6}, s51, {t3}")
    for s in range(4):
        A(f"v_add_u32 {t5}, {4*s}, {t0}", f"v_xor_b32 {t5}, {t5}, {t6}", f"v_lshl_add_u32 v{V_KR[s]}, {t5}, 4, {t4}")
    A(f"v_lshrrev_b32 {t4}, 2, {l}", f"v_and_b32 {t5}, 7, {t4}", f"v_lshlrev_b32 {t5}, 1, {t5}",
      f"v_lshlrev_b32 {t4}, 8, {t4}", f"v_add_u32 {t4}, s50, {t4}",
      f"v_and_b32 {t6}, 1, {t2}", f"v_lshl_add_u32 {t4}, {t6}, 3, {t4}",
      f"v_lshrrev_b32 {t6}, 1, {t2}",
      f"s_lshl_b32 s51, {S_QH}, 3", f"v_xor_b32 {t5}, s51, {t5}")
    for dt in range(8):
        d = f"v{V_VR[dt]}"
        A(f"v_add_u32 {d}, {2*dt}, {t6}", f"v_xor_b32 {d}, {d}, {t5}", f"v_lshl_add_u32 {d}, {d}, 4, {t4}")
    A(f"v_lshlrev_b32 {t4}, 2, {t0}", f"v_xor_b32 {t4}, {t4}, {t3}", f"v_lshlrev_b32 {t4}, 4, {t4}", f"v_lshl_add_u32 {t4}, {t0}, 10, {t4}")
    for n in range(4):
        A(f"v_add_u32 v{V_WOD[n]}, {n*3072}, {t4}")
    A(f"v_lshrrev_b32 {t4}, 2, {l}", f"v_lshlrev_b32 {t4}, 8, {t4}", f"v_lshl_add_u32 {t4}, {t2}, 4, {t4}",
      f"s_lshl_b32 s50, {S_W}, 13", f"s_add_u32 s50, s50, {WOB}", f"v_add_u32 {t4}, s50, {t4}")
    for cp in range(4):
        A(f"v_xor_b32 {t5}, {cp}, {t1}", f"v_lshl_add_u32 v{V_WOR[cp]}, {t5}, 6, {t4}")
    A(f"s_mul_i32 s50, {S_QH}, 40960", f"s_lshl_b32 s51, {S_U}, 12", "s_add_u32 s50, s50, s51",
      f"v_lshlrev_b32 v{V_OR}, 4, {l}", f"v_add_u32 v{V_OW}, s50, v{V_OR}", f"v_add_u32 v{V_OR8}, 0x10000, v{V_OR}")
    A(f"s_lshl_b32 s50, {S_HP}, 10", f"v_add_u32 v{V_PS}, s50, v{V_OR}")
    return L

def dma(voff, srd, soff, imm, nt=False):
    o = f" offset:{imm}" if imm else ""
    return I(f"buffer_load_dwordx4 v{voff}, {srd}, {soff} offen{o}{' nt' if nt else ''} lds")

def kv_group(kind, m0expr, soffreg):
    if kind == 'K':
        return [dma(V_KD[n], SRD_K, soffreg, n * 1024, OPT['kvnt']) for n in range(4)]
    return [dma(V_VD[n & 1], SRD_V, soffreg, n * 1024, OPT['kvnt']) for n in range(4)]

def kv_tile_full_unused(kind, j):
    L = []
    base = (KB + kphys(j)) if kind == 'K' else (VB + vphys(j))
    for gI in range(2):
        L += II(f"s_lshl_b32 s50, {S_U}, 13", f"s_add_u32 m0, s50, {base + gI*4096}", f"s_mov_b32 s51, {j*8192 + gI*4096}")
        L += kv_group(kind, None, "s51")
    return L

def stage_setup_scalar():
    rot = OPT['rot']
    R = II("s_lshr_b32 s50, s2, 3", "s_and_b32 s51, s50, 3", "s_lshr_b32 s50, s50, 2")
    if rot in (True, 1):   R += II("s_lshl_b32 s51, s51, 2", "s_lshl_b32 s50, s50, 1", "s_add_u32 s52, s50, s51")
    elif rot == 2:         R += II("s_lshr_b32 s50, s50, 1", "s_add_u32 s52, s50, s51", "s_lshl_b32 s52, s52, 2")
    elif rot == 3:         R += II("s_add_u32 s52, s50, s51", "s_lshl_b32 s52, s52, 2")
    elif rot == 4:         R += II("s_lshr_b32 s50, s50, 2", "s_lshl_b32 s50, s50, 3", "s_lshl_b32 s51, s51, 2", "s_add_u32 s52, s50, s51")
    elif rot == 5:         R += II("s_mul_i32 s50, s50, 3", "s_lshl_b32 s51, s51, 2", "s_add_u32 s52, s50, s51")
    elif rot == 6:         R += II("s_lshl_b32 s52, s50, 1")
    elif rot == 7:         R += II("s_lshl_b32 s50, s50, 1", "s_and_b32 s51, s51, 1", "s_lshl_b32 s51, s51, 3", "s_add_u32 s52, s50, s51")
    else:                  R += II("s_mov_b32 s52, 0")
    return R + II("s_and_b32 s52, s52, 15",
              f"s_lshl_b32 s50, s52, 6", f"s_lshl_b32 s51, {S_W}, 15", f"s_add_u32 {S_SOFFX}, s50, s51",
              f"s_lshl_b32 s50, s52, 18", f"s_lshl_b32 s51, {S_W}, 16", f"s_add_u32 {S_SOFFW0}, s50, s51",
              f"s_lshl_b32 s50, {S_W}, 12", f"s_add_u32 {S_BW}, s50, {WB}",
              f"s_lshl_b32 s50, {S_W}, 11", f"s_add_u32 {S_BX}, s50, {XB}",
              f"s_lshl_b32 s50, {S_W}, 8", f"s_add_u32 {S_BX3}, s50, {XB + 8192}",
              )
def kv_setup_scalar():
    return II(f"s_lshl_b32 {S_B15}, {S_B}, 15", f"s_lshl_b32 {S_TQ}, {S_QH}, 12",
              f"s_lshl_b32 s50, {S_U}, 13", f"s_add_u32 s50, s50, {S_TQ}", f"s_add_u32 {S_MK}, s50, {KB}", f"s_add_u32 {S_MV}, s50, {VB}")

def stage_dma_list(slot):
    seq = []
    seq.append(([I(f"s_add_u32 m0, {S_BW}, {slot*16384}")], dma(V_WQD[0], SRD_WQ, S_SOFFW0, 0, OPT['wnt'])))
    for j in range(1, 4): seq.append(([], dma(V_WQD[j], SRD_WQ, S_SOFFW0, j * 1024, OPT['wnt'])))
    seq.append(([I(f"s_add_u32 m0, {S_BX}, {slot*9216}")], dma(V_XD[0], SRD_X, S_SOFFX, 0, OPT['xnt'])))
    seq.append(([], dma(V_XD[1], SRD_X, S_SOFFX, 1024, OPT['xnt'])))
    q = dma(V_XD[2], SRD_X, S_SOFFX, 0, OPT['xnt'])
    seq.append(([I(f"s_add_u32 m0, {S_BX3}, {slot*9216}")], Masked(q, 0xffff)))
    return seq

def place_dma(S, seq, gaps):
    k = 0
    last = None
    for e in seq:
        if e[0]:
            for p in e[0]: S.put(gaps[k], p)
            k += 1
        S.put(gaps[k], e[1]); last = gaps[k]
        if len(e) > 2:
            for p in e[2]: S.put(gaps[k] + 1, p)
        k += 1
    return last

def stage_advance_w():
    return II(f"s_add_u32 {S_SOFFW0}, {S_SOFFW0}, 262144", f"s_and_b32 {S_SOFFW0}, {S_SOFFW0}, 0x3fffff")
def stage_advance_x():
    return II(f"s_add_u32 {S_SOFFX}, {S_SOFFX}, 64", f"s_and_b32 {S_SOFFX}, {S_SOFFX}, 0xfffffbff")
def stage_advance(): return stage_advance_w() + stage_advance_x()

def straight(seq):
    L = []
    for e in seq:
        L += e[0]
        if e[0]: L += II("s_nop 0")
        L.append(e[1])
        if len(e) > 2: L += e[2]
    return L

def stage_issue_straight(slot):
    return straight(stage_dma_list(slot)) + stage_advance()

def wq_read(dt, h2, slot):
    if OPT.get('x_noread'): return I('s_nop 0')
    s, hf = dt >> 1, dt & 1
    b = abuf(dt) + 2 * h2
    off = slot * 16384 + hf * 8 + h2 * 2048
    return I(f"ds_read_b64_tr_b16 {ar(b,2)}, v{V_WQR[s]}" + (f" offset:{off}" if off else ""))
def x_read(t, slot):
    if OPT.get('x_noread'): return I('s_nop 0')
    off = slot * 9216 + (0 if t == 4 else t * 1024)
    return I(f"ds_read_b128 {vr(bbuf(t))}, v{V_XR4 if t == 4 else V_XR}" + (f" offset:{off}" if off else ""))
def q_mfma(dt, t):
    if OPT.get('x_t4') and t == 4: return I("s_nop 3")
    if OPT.get('x_t45') and t == 4 and dt >= 4: return I("s_nop 3")
    return mfma(vr(qacc(dt, t)), ar(abuf(dt)), vr(bbuf(t)), vr(qacc(dt, t)))

def half_group(kind, j):
    if kind == 'K':
        pre = II(f"s_add_u32 m0, {S_MK}, {kphys(j)}", f"s_add_u32 s51, {S_TQ}, {j*8192}")
    else:
        pre = II(f"s_add_u32 m0, {S_MV}, {vphys(j)}", f"s_add_u32 s51, {S_TQ}, {j*8192}")
    g = kv_group(kind, None, "s51")
    return [(pre, g[0])] + [([], x) for x in g[1:]]

def put_dmas(S, seq, gaps):
    prev = -1
    for e, g in zip(seq, gaps):
        if e[0]:
            assert g - 1 > prev or prev < 0, (g, prev)
            for p in e[0]: S.put(g - 1, p)
        S.put(g, e[1])
        if len(e) > 2:
            for p in e[2]: S.put(g + 1, p)
        prev = g
    assert len(seq) <= len(gaps)

QTAIL = (4, 5, 6, 7)
def q_tail(): return [q_mfma(dt, t) for t in range(4) for dt in QTAIL]
SRD_T = "s[96:99]"; V_T = [10, 11, 12, 13]; S_TM, S_TS = "s35", "s36"
V_TB2 = [252, 253, 254, 255]
V_TB = [244, 245, 246, 247]
DUMMY = 151552
def burst_list():
    g = [dma(V_TB[n], SRD_T, S_TS, n * 1024, OPT['kvnt']) for n in range(4)]
    return [([I(f"s_mov_b32 m0, {S_TM}")], g[0])] + [([], x) for x in g[1:]]

def q_body(ks, with_dma, burst=False, extra_dma=None, wait=None):
    slot = ks & 3
    ms = q_tail() + [q_mfma(dt, t) for t in range(5) for dt in range(4)]
    S = Sched(ms)
    a = lambda dt, h: wq_read(dt, h, slot)
    xr = lambda t: x_read(t, slot)
    plan = {0: a(0,0), 1: a(0,1), 2: a(1,0), 3: a(1,1), 4: xr(0), 5: a(2,0), 7: a(2,1), 8: xr(1), 9: a(3,0), 11: a(3,1),
            12: xr(2), 13: xr(4), 16: xr(3), 17: a(4,0), 19: a(4,1), 20: a(5,0), 21: a(5,1), 23: a(6,0), 24: a(6,1), 25: a(7,0), 27: a(7,1)}
    for g, ins in plan.items(): S.put(g, ins)
    if with_dma:
        put_dmas(S, stage_dma_list((ks + 3) & 3), [6, 10, 14, 18, 22, 26, 29])
        w = stage_advance_w(); x = stage_advance_x()
        S.put(19, w[0]); S.put(20, w[1]); S.put(30, x[0]); S.put(31, x[1])
    if burst:
        put_dmas(S, burst_list(), [32, 33, 34, 35]) if False else None
        put_dmas(S, burst_list(), [15, 28, 31, 33])  if False else None
    if extra_dma:
        put_dmas(S, extra_dma, [6, 10, 14, 18, 22, 26, 30, 32][:len(extra_dma)])
    return S

def q_finish(S, wait, wg=33):
    S.put(wg, tr_mark(), f"s_waitcnt vmcnt({wait}) lgkmcnt(0)", tr_commit())
    S.put(wg + 1, "s_barrier")
    seq, pend = lgkm_waits(S.flat())
    assert not pend
    if OPT['verbose']: print(S.report("q_body"))
    return seq

def tr_mark():
    return [Raw("s_memtime s[100:101]")] if OPT.get('trace') else []
def tr_commit():
    return [Raw("s_mov_b32 s95, m0\n  s_mov_b32 m0, s94\n  s_nop 0\n  v_writelane_b32 v0, s100, m0\n  s_mov_b32 m0, s95\n  s_add_u32 s94, s94, 1")] if OPT.get('trace') else []
def tr_dump():
    if not OPT.get('trace'): return []
    return II("s_add_u32 s66, s58, 0x9000000", "s_addc_u32 s67, s59, 0", "s_lshl_b32 s50, s2, 2", f"s_add_u32 s50, s50, {S_W}", "s_lshl_b32 s50, s50, 8",
              f"v_lshlrev_b32 v253, 2, {V_LANE}", "v_add_u32 v253, s50, v253", "global_store_dword v253, v0, s[66:67]")

def zero_init():
    L = II("v_mov_b32 v244, 0", "v_mov_b32 v245, 0", "v_mov_b32 v246, 0", "v_mov_b32 v247, 0", "s_nop 1")
    for r in range(RB, RB + 160, 16): L += II(f"v_mfma_f32_32x32x16_bf16 v[{r}:{r+15}], v[244:247], v[244:247], 0")
    for r in range(0, 256, 16): L += II(f"v_mfma_f32_32x32x16_bf16 a[{r}:{r+15}], v[244:247], v[244:247], 0")
    return L

def phase_q():
    L = []; A = lambda *x: L.extend(II(*x))
    A("L_phase_q:")
    A(stage_setup_scalar(), stage_issue_straight(0))
    A(setup_b())
    A(kv_setup_scalar())
    A(lane_consts_q2())
    A(stamp("q_issued"))
    A(zero_init())
    A(lane_consts_rest())
    A(f"s_mov_b32 {S_CNT}, 0")
    if OPT.get('trace'): A("s_mov_b32 s94, 1", "s_memtime s[100:101]", "s_waitcnt lgkmcnt(0)", "v_writelane_b32 v0, s100, 0")
    A(f"v_mov_b32 v{VT[0]}, 0x3f803f80")
    for r in range(4): A(f"v_accvgpr_write_b32 a{A_ONES + r}, v{VT[0]}")
    for t in range(5):
        for k in range(4): A(f"v_mov_b32 v{bbuf(t)+k}, 0")
    A("s_mov_b32 s96, s12", "s_mov_b32 s97, s13", "s_mov_b32 s98, s14", "s_mov_b32 s99, s15")
    for n in range(4): A(f"v_mov_b32 v{V_TB[n]}, v{V_KD[n]}")
    if OPT.get('stst'): A(stamp("consts"))
    A(stage_issue_straight(1))
    if OPT.get('stst'): A(stamp("s1_iss"))
    A("s_waitcnt vmcnt(7)")
    if OPT.get('stst'): A(stamp("s0_land"))
    A("s_barrier")
    if OPT['fused']:
        A(f"s_cmp_eq_u32 {S_SAFE}, 1", "s_cbranch_scc1 L_no_arrive")
        A(f"s_lshl_b32 s50, {S_CL}, 2", f"s_add_u32 s50, s50, {CNTOFF()}", f"s_lshl_b32 s51, {S_W}, 14", "s_add_u32 s50, s50, s51",
          f"v_lshlrev_b32 v46, 8, {V_LANE}", "v_add_u32 v46, s50, v46", "v_mov_b32 v47, 1",
          f"buffer_atomic_add v47, v46, {SRD_D}, 0 offen sc1")
        A("L_no_arrive:")
    A(stage_issue_straight(2))
    if OPT.get('stst'): A(stamp("s2_iss"))
    A(f"s_add_u32 {S_TM}, {S_MK}, {kphys(0)}", f"s_mov_b32 {S_TS}, {S_TQ}")
    A(stamp("q_start"))
    l2 = OPT['l2pf']
    if l2:
        A(f"s_add_u32 s37, {S_TQ}, {4*8192}", "s_mov_b32 s92, s12", "s_mov_b32 s93, s13", "s_mov_b32 s94, s14", "s_mov_b32 s95, s15",
          "s_mov_b64 vcc, -1")
    bodies = []
    QOOL = []
    for k in range(4):
        S = q_body(k, True)
        if k == 1:
            put_dmas(S, burst_list(), [32, 33, 34, 35])
        if k == 3 and l2:
            g = [dma(V_OR, "s[92:95]", "s37", n * 1024, False) for n in range(4)]
            put_dmas(S, [([I(f"s_mov_b32 m0, {DUMMY}")], g[0])] + [([], x) for x in g[1:]], [32, 33, 34, 35])
        if l2:
            n_steady, n_first = [(18, 14), (22, 18), (18, 18), (22, 22)][k]
        else:
            n_steady = n_first = 14 if k == 0 else 18
        if OPT.get('b0st') and k == 0:
            for nm, g in (("g5", 5), ("g6", 7), ("g15", 15), ("g20", 20), ("g30", 31)):
                S.put(g, Raw(f"s_cmp_eq_u32 {S_CNT}, 0\n  s_cbranch_scc0 L_b0_{nm}\n  " + "\n  ".join(x.txt for x in stamp(nm)) + f"\nL_b0_{nm}:"))
        late = (k == 1) or (k == 3 and l2)
        w = tr_mark() + II(f"s_waitcnt vmcnt({n_steady}) lgkmcnt(0)")
        if n_first != n_steady:
            w += II(f"s_cbranch_vccnz L_q_first{k}", f"L_q_back{k}:")
            QOOL += II(f"L_q_first{k}:", f"s_waitcnt vmcnt({n_first})", f"s_branch L_q_back{k}")
        w += tr_commit()
        if late:
            seq, pend = lgkm_waits(S.flat())
            seq += w + II("s_barrier")
        else:
            S.put(33, w); S.put(34, "s_barrier")
            seq, pend = lgkm_waits(S.flat())
            assert not pend
        if OPT['verbose']: print(S.report("q_body"))
        bodies.append(seq)
    hist = bodies[3][-24:]
    A(".p2align 6", "L_q_loop:")
    for bi, b in enumerate(bodies):
        b2, n = hazards(b, history=hist); L.extend(b2); hist = b2[-24:]
        if OPT.get('stst') and bi < 2: A(f"s_cmp_eq_u32 {S_CNT}, 0", f"s_cbranch_scc0 L_nost{bi}", stamp(f"body{bi}"), f"L_nost{bi}:")
    A(f"s_add_u32 {S_TM}, {S_TM}, 16384", f"s_add_u32 {S_TS}, {S_TS}, 8192", f"s_add_u32 {S_CNT}, {S_CNT}, 1")
    if l2:
        A("s_mov_b64 vcc, 0", f"s_cmp_eq_u32 {S_CNT}, 1", "s_cbranch_scc1 L_q_to1", "L_q_to1_done:")
    A(f"s_cmp_eq_u32 {S_CNT}, 2", "s_cbranch_scc0 L_q_tov_done",
      "s_mov_b32 s96, s16", "s_mov_b32 s97, s17", f"s_add_u32 {S_TM}, {S_MV}, {vphys(0)}", f"s_mov_b32 {S_TS}, {S_TQ}")
    if l2: A("s_mov_b32 s92, s12", "s_mov_b32 s93, s13", f"s_add_u32 s37, {S_TQ}, {5*8192}")
    for n in range(4): A(f"v_mov_b32 v{V_TB[n]}, v{V_VD[n & 1]}")
    A("L_q_tov_done:", f"s_cmp_lt_u32 {S_CNT}, 3", "s_cbranch_scc1 L_q_loop")
    OOL = []
    if l2: OOL += II("L_q_to1:", "s_mov_b32 s92, s16", "s_mov_b32 s93, s17", f"s_add_u32 s37, {S_TQ}, {3*8192}", "s_branch L_q_to1_done")
    OOL += QOOL
    b, n = hazards(q_finish(q_body(12, True), 18 if l2 else 14), history=hist); L.extend(b)
    b, n = hazards(q_finish(q_body(13, False, extra_dma=half_group('V', 1)), 15 if l2 else 11), history=b[-24:]); L.extend(b)
    b, n = hazards(q_finish(q_body(14, False, extra_dma=half_group('K', 2) + half_group('V', 2)), 12), history=b[-24:]); L.extend(b)
    b, n = hazards(q_finish(q_body(15, False), 12), history=b[-24:]); L.extend(b)
    if OOL:
        A("s_branch L_q_after_ool")
        L.extend(OOL)
        A("L_q_after_ool:")
    A(stamp("q_loop_done"))
    return L

def q_tiles(s): return range(5) if s < 2 else range(4)
def q_scale(ss):
    return [I(f"v_pk_mul_f32 {vr(grp(t,s)+2*k,2)}, {vr(grp(t,s)+2*k,2)}, {vr(V_C0,2)}") for s in ss for t in q_tiles(s) for k in range(4)]
def q_cvt(ss):
    return [I(f"v_cvt_pk_bf16_f32 v{grp(t,s)+k}, v{grp(t,s)+2*k}, v{grp(t,s)+2*k+1}") for s in ss for t in q_tiles(s) for k in range(4)]
QX = 155648

def transition():
    L = []; A = lambda *x: L.extend(II(*x))
    A(f"s_add_u32 {S_SOFFK}, {S_TQ}, {5*8192}", f"s_add_u32 {S_SOFFV}, {S_TQ}, {4*8192}")
    A(f"v_mov_b32 v{V_C0}, {hex(f2u(SCALE))}", f"v_mov_b32 v{V_C1}, {hex(f2u(SCALE))}")
    A(f"s_lshl_b32 s50, {S_W}, 11", f"s_add_u32 s50, s50, {QX}", f"v_lshlrev_b32 v7, 4, {V_LANE}", "v_add_u32 v8, s50, v7",
      "s_xor_b32 s50, s50, 2048", "v_add_u32 v9, s50, v7")
    k3 = half_group('K', 3)
    seq = [k_read(kt, s, 0) for kt in range(2) for s in range(4)]
    sc = q_scale((0, 1))
    seq += II("s_nop 3") + sc
    S = Sched(q_tail())
    cv = q_cvt((0, 1))
    sh = lambda c: any(f"v{grp(4,s)+k}," in c.txt.split()[1] + "," for s in (0, 1) for k in range(4))
    cv = [c for c in cv if sh(c)] + [c for c in cv if not sh(c)]
    S.spread(cv, [min(i * 2 // 5, 15) for i in range(40)])
    S.put(5, f"ds_write_b128 v8, {vr(grp(4,0))}"); S.put(7, f"ds_write_b128 v8, {vr(grp(4,1))} offset:1024")
    seq += S.flat()
    seq += II("s_waitcnt lgkmcnt(0)", "s_barrier", f"ds_read_b128 {vr(grp(4,2))}, v9", f"ds_read_b128 {vr(grp(4,3))}, v9 offset:1024")
    sc = q_scale((2, 3))
    seq += II("s_nop 3") + k3[0][0] + sc[:8] + [k3[0][1]] + sc[8:16] + [k3[1][1]] + sc[16:24] + [k3[2][1]] + sc[24:] + [k3[3][1]]
    qk = lambda kt, ss, c: [qk_mfma(kt, s, t, c) for s in ss for t in range(5)]
    S = Sched(qk(0, (0, 1), lambda t: "0") + qk(0, (2, 3), lambda t: "0"))
    S.spread(q_cvt((2, 3)), [min(i * 5 // 16, 9) for i in range(32)])
    S.spread([f"v_mov_b32 v{Preg(1,t)+k}, 0" for t in range(5) for k in range(4)], [10 + i // 2 for i in range(20)])
    seq += S.flat()
    seq += straight(half_group('V', 3))
    seq, _ = lgkm_waits(seq, final_zero=True)
    seq, n = hazards(seq); L.extend(seq)
    A(stamp("qk0_done"))
    A(f"s_cmp_eq_u32 {S_SAFE}, 1", "s_cbranch_scc1 L_safe_max")
    T = [2, 3, 4, 5, 6]
    U = [7, 8, 9, 10, 11]
    E = II("s_nop 5")
    for t in range(5): E += II(f"v_max3_f32 v{T[t]}, v{Sreg(0,t)}, v{Sreg(0,t)+1}, v{Sreg(0,t)+2}")
    for t in range(5): E += II(f"v_max_f32 v{T[t]}, v{T[t]}, v{Sreg(0,t)+3}")
    E += row_max_finish(T, U)
    S = Sched(qk(1, range(4), lambda t: vr(cinit(t))))
    sub = [f"v_add_f32 v{Sreg(0,t)+k}, v{Sreg(0,t)+k}, v{cinit(t)}" for t in range(5) for k in range(4)]
    ex = [f"v_exp_f32 v{Sreg(0,t)+k}, v{Sreg(0,t)+k}" for t in range(5) for k in range(4)]
    S.spread(sub, [i // 2 for i in range(20)])
    S.spread(ex, [min(2 + i, 19) for i in range(20)])
    E += S.flat()
    E += II("s_barrier")
    E += II("s_nop 3") + exps(1)
    E, n = hazards(E, history=L[-24:]); L.extend(E)
    A("L_max_done:")
    A(straight(half_group('K', 4)))
    return L

def row_max_finish(T, U):
    E = []
    for sw in ("v_permlane32_swap_b32", "v_permlane16_swap_b32"):
        for t in range(5): E += II(f"v_mov_b32 v{U[t]}, v{T[t]}")
        for t in range(5): E += II(f"{sw} v{T[t]}, v{U[t]}")
        for t in range(5): E += II(f"v_max_f32 v{T[t]}, v{T[t]}, v{U[t]}")
    for t in range(5):
        for k in range(4): E += II(f"v_sub_f32 v{cinit(t)+k}, 0, v{T[t]}")
    return E

def safe_paths():
    L = []; A = lambda *x: L.extend(II(*x))
    T = [2, 3, 4, 5, 6]; U = [7, 8, 9, 10, 11]
    ab = [(Sreg(0, t), Sreg(1, t)) for t in range(5)]
    A("L_safe_max:")
    for t in range(5): A(f"v_mov_b32 v{T[t]}, 0xff800000")
    A(f"s_mov_b32 {S_CNT}, 0")
    A("L_safe_loop:")
    A("s_waitcnt vmcnt(0) lgkmcnt(0)", "s_barrier")
    A(f"s_and_b32 s50, {S_CNT}, 15", "s_lshl_b32 s50, s50, 13", f"s_add_u32 s51, s50, {S_TQ}", f"s_add_u32 m0, {S_MK}, {kphys(0)}", "s_nop 0")
    A(kv_group('K', None, "s51"))
    A("s_waitcnt vmcnt(0)", "s_barrier")
    A([k_read(kt, s, 0) for kt in range(2) for s in range(4)], "s_waitcnt lgkmcnt(0)")
    A(f"s_cmp_eq_u32 {S_CNT}, 16", "s_cbranch_scc1 L_safe_last")
    A([qk_mfma(kt, s, t, lambda t: "0") for kt in range(2) for s in range(4) for t in range(5)], "s_nop 7", "s_nop 7")
    for t, (a, b) in enumerate(ab):
        A(f"v_max3_f32 v{T[t]}, v{T[t]}, v{a}, v{a+1}", f"v_max3_f32 v{T[t]}, v{T[t]}, v{a+2}, v{a+3}",
          f"v_max3_f32 v{T[t]}, v{T[t]}, v{b}, v{b+1}", f"v_max3_f32 v{T[t]}, v{T[t]}, v{b+2}, v{b+3}")
    A(f"s_add_u32 {S_CNT}, {S_CNT}, 1", f"s_cmp_lt_u32 {S_CNT}, 16", "s_cbranch_scc1 L_safe_loop")
    E, n = hazards(II("s_nop 3") + row_max_finish(T, U)); L.extend(E)
    A("s_branch L_safe_loop")
    A("L_safe_last:", "s_nop 3")
    A([qk_mfma(kt, s, t, lambda t: vr(cinit(t))) for kt in range(2) for s in range(4) for t in range(5)], "s_nop 7", "s_nop 7")
    A("s_barrier")
    for t, (a, b) in enumerate(ab):
        for base in (a, b):
            for k in range(4): A(f"v_exp_f32 v{base+k}, v{base+k}")
    A("s_nop 1", "s_branch L_max_done")
    if OPT['fused']:
        A("L_cnt_spin:", f"s_mov_b32 s53, {SPIN}", "L_cnt_spin_loop:", "s_sleep 2",
          f"buffer_load_dword v15, v14, {SRD_D}, 0 offen sc1", "s_waitcnt vmcnt(0)", "v_readfirstlane_b32 s52, v15", "s_nop 3",
          "s_cmp_ge_u32 s52, 16", "s_cbranch_scc1 L_cnt_ok", "s_sub_u32 s53, s53, 1", "s_cmp_lg_u32 s53, 0", "s_cbranch_scc1 L_cnt_spin_loop", "s_branch L_cnt_ok")
    A("L_restart:", f"s_mov_b32 {S_SAFE}, 1", "s_waitcnt vmcnt(0) lgkmcnt(0)", "s_barrier")
    A(lane_consts_q())
    A("s_branch L_phase_q")
    return L

def k_read(kt, s, slotk):
    off = kphys(slotk) + kt * 4096
    return I(f"ds_read_b128 {ar(kbuf(kt, s))}, v{V_KR[s]}" + (f" offset:{off}" if off else ""))
def v_read(dt, h, slotv):
    off = vphys(slotv) + h * 4096
    return I(f"ds_read_b64_tr_b16 {ar(abuf(dt) + 2*h, 2)}, v{V_VR[dt]}" + (f" offset:{off}" if off else ""))
def qk_mfma(kt, s, t, first_c):
    c = first_c(t) if s == 0 else vr(Sreg(kt, t))
    return mfma(vr(Sreg(kt, t)), ar(kbuf(kt, s)), vr(qfrag(t, s)), c)
def pv_mfma(dt, t, par):
    return mfma(ar(oacc(dt, t)), ar(abuf(dt)), vr(Preg(par, t)), ar(oacc(dt, t)))
def rs_mfma(t, par):
    return mfma(ar(lacc(t)), ar(A_ONES), vr(Preg(par, t)), ar(lacc(t)))
def cvts(par):
    out = []
    for kt in range(2):
        for t in range(5):
            s = Sreg(kt, t); p = Preg(par, t) + 2 * kt
            out.append(I(f"v_cvt_pk_bf16_f32 v{p}, v{s}, v{s+1}"))
            out.append(I(f"v_cvt_pk_bf16_f32 v{p+1}, v{s+2}, v{s+3}"))
    return out
def exps(kt):
    return [I(f"v_exp_f32 v{Sreg(kt,t)+i}, v{Sreg(kt,t)+i}") for t in range(5) for i in range(4)]

def att_dma(j, dyn=False):
    seq = []
    if j == 0 or j > 12: return seq
    if True:
        pre = II(f"s_add_u32 m0, {S_MK}, {kphys(j + 4)}")
        g = kv_group('K', None, S_SOFFK)
        seq += [(pre, g[0])] + [([], x) for x in g[1:]]
        seq[-1] = (seq[-1][0], seq[-1][1], II(f"s_add_u32 {S_SOFFK}, {S_SOFFK}, 8192"))
    if j + 3 <= 15:
        pre = II(f"s_add_u32 m0, {S_MV}, {vphys(j + 3)}")
        g = kv_group('V', None, S_SOFFV)
        s2 = [(pre, g[0])] + [([], x) for x in g[1:]]
        s2[-1] = (s2[-1][0], s2[-1][1], II(f"s_add_u32 {S_SOFFV}, {S_SOFFV}, 8192"))
        seq += s2
    return seq

def wo_dma(ks, slot_base_imm):
    seq = []
    for gI in range(2):
        src = f"s_xor_b32 s51, {S_B15}, {ks*32768 + gI*16384}" if OPT['worot'] else f"s_mov_b32 s51, {ks*32768 + gI*16384}"
        pre = II(f"s_lshl_b32 s50, {S_W}, 13", f"s_add_u32 m0, s50, {slot_base_imm + gI*4096}", src)
        for n in range(4):
            seq.append((pre if n == 0 else [], dma(V_WOD[n], SRD_WO, "s51", n * 1024, OPT["wont"])))
    return seq

def att_body(j, vmwait, extra_dma=None):
    par_old, par_new = (j - 1) & 1, j & 1
    ms = [pv_mfma(dt, t, par_old) for dt in (5, 6, 7) for t in range(5)] + [rs_mfma(t, par_old) for t in range(5)]
    ms += [qk_mfma(kt, s, t, lambda t: vr(cinit(t))) for kt in range(2) for s in range(4) for t in range(5)]
    ms += [pv_mfma(dt, t, par_new) for dt in range(5) for t in range(5)]
    S = Sched(ms)
    cv = cvts(par_new)
    S.spread(cv, [1, 1, 3, 3, 6, 6, 8, 8, 11, 11, 13, 13, 16, 16, 18, 18, 21, 21, 23, 23])
    S.spread([k_read(kt, s, j + 1) for kt in range(2) for s in range(4)], [0, 2, 5, 7, 10, 12, 15, 17])
    vr_ = [v_read(dt, h, j) for dt in range(8) for h in range(2)]
    S.spread(vr_, [20, 22, 25, 26, 27, 28, 30, 31, 32, 33, 35, 36, 37, 38, 40, 61])
    d = att_dma(j) + (extra_dma or [])
    put_dmas(S, d, [4, 9, 14, 19, 24, 29, 34, 39])
    S.spread(exps(0), list(range(41, 61)))
    S.spread(exps(1), list(range(62, 82)))
    seq = S.flat()
    seq, pend = lgkm_waits(seq)
    seq += tr_mark() + II(f"s_waitcnt vmcnt({vmwait}) lgkmcnt(0)") + tr_commit() + II("s_barrier")
    if OPT['verbose']: print(S.report(f"att_body {j}"))
    return seq

WO1 = [192, 200, 208, 216, 224, 228, 232, 236]
def wofrag(ks, m, n=4, off=0):
    if ks == 0: return ar(216 + 4 * m + off, n)
    if ks == 1: return vr(WO1[m] + off, n)
    return ar((ks - 2) * 32 + 4 * m + off, n)
def wo_read(ks, m, h):
    cp, hf = m >> 1, m & 1
    off = (32768 if (ks & 1) == 0 else 0) + hf * 8 + h * 4096
    return I(f"ds_read_b64_tr_b16 {wofrag(ks, m, 2, 2*h)}, v{V_WOR[cp]}" + (f" offset:{off}" if off else ""))

def tlb_touch():
    L = II(f"v_mul_u32_u24 v46, 0x100000, {V_LANE}",
           f"buffer_load_dword v47, v46, {SRD_P}, 0 offen")
    if OPT['tlb'] == 2:
        L += II(f"s_mul_i32 s50, {S_B}, {144*2048}", f"v_lshlrev_b32 v46, 26, {V_LANE}", f"buffer_load_dword v47, v46, {SRD_O}, s50 offen")
    return L

def wo_prefetch(shift=0):
    n = OPT['pfw']
    L = II(f"s_add_u32 s50, {S_B}, {shift}", "s_and_b32 s50, s50, 7", "s_lshl_b32 s50, s50, 15", f"s_lshl_b32 s51, {S_W}, 13", "s_add_u32 s50, s50, s51")
    nt = " nt" if OPT['pfnt'] else ""
    if n == 8:
        L += II(f"v_lshlrev_b32 v46, 4, {V_LANE}")
        for i in range(8):
            L += II(f"s_add_u32 s51, s50, {i*1024}", f"buffer_load_dwordx4 v[252:255], v46, s[84:87], s51 offen{nt}")
    else:
        sh = {1: 7, 2: 6, 4: 5}[n]
        L += II(f"v_lshlrev_b32 v46, {sh}, {V_LANE}")
        for i in range(n):
            L += II(f"s_add_u32 s51, s50, {i * (64 << sh)}", f"buffer_load_dword v47, v46, s[84:87], s51 offen{nt}")
    return L

ATT_OOL = []
def attention():
    L = []; A = lambda *x: L.extend(II(*x))
    L += transition()
    A(stamp("att_start"))
    A(f"s_mov_b32 {S_CNT}, 0")
    b0, n = hazards(att_body(0, 16), history=L[-24:]); L.extend(b0)
    bodies = [att_body(j, 16) for j in range(1, 5)]
    hist = bodies[3][-24:]
    A(".p2align 6", "L_att_loop:")
    OOLA = []
    for i, b in enumerate(bodies):
        if i == 3:
            A(f"s_cmp_eq_u32 {S_CNT}, 2", "s_cbranch_scc0 L_att_nok_done")
            for n in range(4): A(f"v_add_u32 v{V_KD[n]}, 0x40000000, v{V_KD[n]}")
            A("L_att_nok_done:")
        b2, n = hazards(b, history=hist); L.extend(b2); hist = b2[-24:]
        if OPT['pf'] == 2 and OPT['pfat'] == 9 + i and i < 3:
            A(f"s_cmp_eq_u32 {S_CNT}, 2", "s_cbranch_scc0 L_att_nopf0", wo_prefetch(), "L_att_nopf0:")
    if 0 <= OPT['pf'] < 3 and OPT['pfat'] == 12:
        A(f"s_cmp_eq_u32 {S_CNT}, {OPT['pf']}", "s_cbranch_scc0 L_att_nopf", wo_prefetch(), (wo_prefetch(4) if OPT.get('pfdup') else []),
          (tlb_touch() if OPT.get('tlb') else []), "L_att_nopf:")
    A(f"s_add_u32 {S_CNT}, {S_CNT}, 1", f"s_cmp_lt_u32 {S_CNT}, 3", "s_cbranch_scc1 L_att_loop")
    ATT_OOL.clear(); ATT_OOL.extend(OOLA)
    npf = (OPT['pfw'] * (2 if OPT.get('pfdup') else 1) + (OPT.get('tlb') or 0)) if (OPT['pf'] == 2 and OPT['pfexact'] and OPT['pfat'] == 12) else 0
    b, n = hazards(att_body(13, 16 + npf, extra_dma=wo_dma(0, WOA)), history=hist); L.extend(b); hist = b[-24:]
    if OPT.get('pf2nd'): A(wo_prefetch(4))
    late_pf = OPT['pf'] == 2 and OPT['pfat'] == 13
    if late_pf: A(wo_prefetch())
    b, n = hazards(att_body(14, 16 + npf + (OPT['pfw'] if late_pf else 0), extra_dma=wo_dma(1, WOB)), history=hist); L.extend(b); hist = b[-24:]
    last_pf = OPT['pf'] == 2 and OPT['pfat'] == 14
    if last_pf: A(wo_prefetch())
    A(stamp("att_loop_done"))
    ms = [pv_mfma(dt, t, 0) for dt in (5, 6, 7) for t in range(5)] + [rs_mfma(t, 0) for t in range(5)]
    ms += [pv_mfma(dt, t, 1) for dt in range(8) for t in range(5)] + [rs_mfma(t, 1) for t in range(5)]
    S = Sched(ms)
    S.spread(cvts(1), list(range(0, 20)))
    S.spread([v_read(dt, h, 15) for dt in range(5) for h in range(2)], list(range(0, 10)))
    S.spread([v_read(dt, h, 15) for dt in (5, 6, 7) for h in range(2)], list(range(15, 21)))
    S.put(20, f"s_waitcnt vmcnt({8 + (OPT['pfw'] if (late_pf or last_pf) else 0)})")
    S.spread([wo_read(0, m, h) for m in range(8) for h in range(2)], [21 + i // 2 for i in range(16)])
    S.put(28, f"s_waitcnt vmcnt({OPT['pfw'] if last_pf else 0})")
    S.spread([wo_read(1, m, h) for m in range(8) for h in range(2)], [29 + i // 2 for i in range(16)])
    S.put(38, "s_waitcnt lgkmcnt(0)")
    if OPT['fused']:
        S.put(36, f"s_lshl_b32 s50, {S_CL}, 2", f"s_add_u32 s50, s50, {CNTOFF()}")
        S.spread([f"v_lshlrev_b32 v14, 8, {V_LANE}", "v_add_u32 v14, s50, v14"], [37, 37])
        S.put(38, f"buffer_load_dword v15, v14, {SRD_D}, 0 offen sc1")
    put_dmas(S, wo_dma(2, WOA), [41, 44, 47, 50, 54, 57, 60, 63])
    seq, pend = lgkm_waits(S.flat(), final_zero=True)
    seq, n = hazards(seq, history=hist); L.extend(seq)
    A("s_barrier")
    A("s_nop 3")
    A(stamp("att_done"))
    return L

def wo_dma_t(ks):
    d = wo_dma(ks, WOA if (ks & 1) == 0 else WOB)
    for e in d: e[1].tag = f"wo{ks}"
    return d
def wo_reads(ks): return [wo_read(ks, m, h) for m in range(8) for h in range(2)]

LFLAG = 90112

def o_epilogue():
    E = []
    tl = VT[0]; rc = VT[2]
    d3, d4, d5 = wo_dma_t(3), wo_dma_t(4), wo_dma_t(5)
    E += II(f"s_lshl_b32 s51, {S_QH}, 11", f"v_subrev_u32 v{V_OWB}, s51, v{V_OW}", f"v_add_u32 v{V_OW}, s51, v{V_OW}",
            f"s_lshl_b32 s50, {S_U}, 12", f"s_add_u32 s50, s50, 32768", "s_add_u32 s50, s50, s51", f"v_add_u32 v{V_OW4}, s50, v{V_OR}")
    def emit_dma(e):
        return e[0] + II("s_nop 0") * (1 if e[0] else 0) + [e[1]]
    nfr = 0
    for t in range(5):
        E += II(f"v_accvgpr_read_b32 v{tl}, a{lacc(t)}", f"v_rcp_f32 v{rc}, v{tl}", "s_nop 0", f"v_mov_b32 v{rc+1}, v{rc}")
        if t == 0: E += II(f"v_mov_b32 v{VT[1]}, v{tl}")
        else: E += II(f"v_max_f32 v{VT[1]}, v{VT[1]}, v{tl}")
        if t == 4:
            E += II(f"v_cmp_nge_f32 vcc, {hex(OPT['lthr'] or LTHR)}, v{VT[1]}", f"s_lshl_b32 s50, {S_W}, 2", f"s_add_u32 s50, s50, {LFLAG}", f"v_mov_b32 v52, s50",
                    "s_cmp_lg_u64 vcc, 0", "s_cselect_b32 s51, 1, 0", "v_mov_b32 v53, s51", "ds_write_b32 v52, v53")
        for ks in range(4 if t < 4 else 2):
            mid = []
            if nfr < 8: mid += emit_dma(d3[nfr])
            if 8 <= nfr < 16: mid += emit_dma(d4[nfr - 8])
            if nfr >= 16:
                for i in range(4): mid += emit_dma(d5[4 * (nfr - 16) + i])
            if OPT.get('x_oenodma'): mid = [x for x in mid if x.kind == 'dma'][:0] + [x for x in mid if x.kind != 'dma']
            rd = []
            cut = {0: (0, 6), 1: (6, 11), 2: (11, 16)}
            if 4 <= nfr < 7:
                if nfr == 4:
                    rd += [VmNeed("wo2")]
                    if OPT['fused']:
                        rd += II("v_readfirstlane_b32 s52, v15", "s_nop 3", "s_cmp_lt_u32 s52, 16", "s_cbranch_scc1 L_cnt_spin", "L_cnt_ok:")
                a_, b_ = cut[nfr - 4]; rd += wo_reads(2)[a_:b_]
            if 12 <= nfr < 15:
                if nfr == 12: rd += [VmNeed("wo3")]
                a_, b_ = cut[nfr - 12]; rd += wo_reads(3)[a_:b_]
            if OPT.get('oe_nord'): rd = [x for x in rd if x.kind != 'dsr']
            if OPT.get('oe_nowait'): rd = [x for x in rd if not isinstance(x, VmNeed)]
            if OPT.get('oe_nodma'): mid = []; rd = [x for x in rd if not (isinstance(x, VmNeed) and x.tag == 'wo3')]
            if nfr in (8, 16): E += II("s_waitcnt lgkmcnt(0)")
            E += rd
            for h in range(2):
                for k in range(4):
                    E += II(f"v_accvgpr_read_b32 v{52 + 4*h + k}, a{oacc(2*ks + h, t) + k}")
            E += mid
            for k in range(4): E += II(f"v_pk_mul_f32 {vr(52+2*k,2)}, {vr(52+2*k,2)}, {vr(rc,2)}")
            for k in range(4): E += II(f"v_cvt_pk_bf16_f32 v{60+k}, v{52+2*k}, v{53+2*k}")
            E += II(f"ds_write_b128 v{V_OW if ks < 2 else V_OWB}, {vr(60)} offset:{(t*8+ks)*1024}" if t < 4 else f"ds_write_b128 v{V_OW4}, {vr(60)} offset:{ks*1024}")
            nfr += 1
        if OPT['stamps'] and OPT.get('oest'): E += [Raw("\n  ".join(x.txt for x in stamp(f"oe{t}")))] + II("s_waitcnt lgkmcnt(0)")
    E, q = vm_waits(E, ["cnt"] + ["wo2"] * 8)
    E, pend = lgkm_waits(E, final_zero=True)
    E, n = hazards(E)
    return E + II("s_barrier"), q

V_ORX = [240 + i for i in range(8)]
def o_read(dst, t, ks):
    if OPT['worot']:
        off = 0 if t == 0 else (t - 1) * 8192
        return I(f"ds_read_b128 {vr(dst)}, v{V_ORX[ks]}" + (f" offset:{off}" if off else ""))
    if t < 8: return I(f"ds_read_b128 {vr(dst)}, v{V_OR} offset:{(t*8+ks)*1024}")
    return I(f"ds_read_b128 {vr(dst)}, v{V_OR8} offset:{ks*1024}")
V_PSC = [196, 197, 198, 199]
V_OWNA = 204; S_OWN = "s49"
OWNB = 73728
OWN_OOL = []
OWN_BLK = {}
def pstore(src, t, cp):
    v = V_PSC[cp] if OPT['own'] else V_PS
    return (II(f"s_add_u32 s51, {S_SOFFP}, {(cp*9 + t)*16384}"),
            I(f"buffer_store_dwordx4 {vr(src)}, v{v}, {SRD_P}, s51 offen {OPT['pst']}"))
def own_hook(src, t, cp):
    if not OPT['own']: return []
    OWN_BLK.setdefault(t, []).extend(II(f"L_own_{t}_{cp}:", f"ds_write_b128 v{V_OWNA}, {vr(src)} offset:{t*1024}", f"s_branch L_ownb_{t}_{cp}"))
    return II(f"s_cmp_eq_u32 {S_OWN}, {cp}", f"s_cbranch_scc1 L_own_{t}_{cp}", f"L_ownb_{t}_{cp}:")

NP1 = 2
def acc1(t, m): return 64 + (t * 8 + m) * 4
def acc2(t, m): return 128 + ((t & 1) * 8 + m) * 4
def bfr1(par, t): return 2 + (par * 4 + t) * 4
STG = [48, 52, 56, 60]

def tile_epilogue(accf, t, k0):
    out = []
    for cp in range(4):
        a0, a1 = accf(t, 2*cp), accf(t, 2*cp + 1)
        d = STG[(k0 + cp) & 3]
        cv = II(f"v_cvt_pk_bf16_f32 v{d}, v{a0}, v{a0+1}", f"v_cvt_pk_bf16_f32 v{d+1}, v{a0+2}, v{a0+3}",
                f"v_cvt_pk_bf16_f32 v{d+2}, v{a1}, v{a1+1}", f"v_cvt_pk_bf16_f32 v{d+3}, v{a1+2}, v{a1+3}")
        pre, st = pstore(d, t, cp)
        if OPT.get('x_nost') and not (t == 8 and cp == 3): st = I("s_nop 0")
        st.tag = f"st{t}"
        out.append((cv, (pre, st), own_hook(d, t, cp)))
    return out

def out_proj(queue):
    L = []; A = lambda *x: L.extend(II(*x))
    A(f"s_mul_i32 {S_SOFFP}, {S_W}, {4*9*16384}")
    OWN_OOL.clear(); OWN_BLK.clear()
    if OPT['own']:
        A(f"s_lshr_b32 s50, {S_HP}, 2", f"s_and_b32 s51, {S_HP}, 3", f"s_cmp_eq_u32 s50, {S_W}", f"s_cselect_b32 {S_OWN}, s51, 7")
        for cp in range(4):
            A(f"s_cmp_eq_u32 {S_OWN}, {cp}", "s_cselect_b32 s50, 0x40000000, 0", f"v_or_b32 v{V_PSC[cp]}, s50, v{V_PS}")
        A(f"v_add_u32 v{V_OWNA}, {OWNB}, v{V_OR}")
    NP = OPT['np1']
    G = 8 * NP
    ms = [mfma(vr(acc1(t, m)), wofrag(ks, m), vr(bfr1(ks & 1, t)), ("0" if ks == 0 else vr(acc1(t, m)))) for ks in range(8) for m in range(8) for t in range(NP)]
    bt = lambda ks: 2 + 4 * ks
    P1 = len(ms)
    for t in range(NP, 9):
        ms += [mfma(vr(acc2(t, m)), wofrag(ks, m), vr(bt(ks)), ("0" if ks == 0 else vr(acc2(t, m)))) for ks in range(8) for m in range(8)]
    S = Sched(ms)
    def reads(ks, g0): S.spread(wo_reads(ks), [g0 + i // 2 for i in range(16)])
    def dmas(ks, g0, step=4): put_dmas(S, wo_dma_t(ks), [g0 + step * i for i in range(8)])
    def put_free(ins, g0):
        g = g0
        while S.cost(g) + COST[ins.kind] > 8: g += 1
        S.put(g, ins); return g
    def epi(t, accf, g0, stride):
        for cp, (cv, (spre, st), hook) in enumerate(tile_epilogue(accf, t, 0)):
            g = g0 + cp * stride
            S.spread(cv, [g, g, g + 1, g + 1])
            for p in spre: S.put(g + 1, p)
            for p in hook: S.put(g + 2, p)
            S.put(g + 2, st)
        if OPT['own']:
            blk = OWN_BLK.pop(t)
            S.put(g0 + 3 * stride + 4, Raw(f"s_branch L_ownx_{t}\n" + "\n".join((x.txt if x.kind == 'label' else "  " + x.txt) for x in blk) + f"\nL_ownx_{t}:"))
    if NP == 2:
        pre = [o_read(bfr1(0, t), t, 0) for t in range(NP)]
        S.put(0, VmNeed("wo4")); reads(4, 0)
        S.put(9, "s_waitcnt lgkmcnt(0)"); dmas(6, 11, 3)
        S.put(33, VmNeed("wo5")); reads(5, 33)
        S.put(42, "s_waitcnt lgkmcnt(0)"); dmas(7, 44, 3)
        S.put(84, VmNeed("wo6")); reads(6, 84)
        S.put(100, VmNeed("wo7")); reads(7, 100)
        for ks in range(7):
            g = ks * G + (1 if ks else 8)
            for t in range(NP):
                g = put_free(o_read(bfr1((ks + 1) & 1, t), t, ks + 1), g) + 1
            assert g <= (ks + 1) * G - 3, (ks, g)
        g = 6 * G + 4
        for ks in (2, 3, 6, 7): g = put_free(o_read(bt(ks), NP, ks), g) + 1
        g = 7 * G + 1
        for ks in (0, 1): g = put_free(o_read(bt(ks), NP, ks), g) + 1
        base = P1
        for ks in (4, 5): put_free(o_read(bt(ks), NP, ks), base + 1)
        epi(0, acc1, base + 4, 7); epi(1, acc1, base + 32, 7)
    else:
        assert NP == 0
        pre = []
        if OPT['worot']:
            for i in range(8): pre += II(f"s_xor_b32 s50, {S_B}, {i}", "s_lshl_b32 s50, s50, 10", f"v_add_u32 v{V_ORX[i]}, s50, v{V_OR}")
        pre += [o_read(bt(ks), 0, ks) for ks in range(8)]
        if OPT['worot']:
            for i in range(8): pre += II(f"v_add_u32 v{V_ORX[i]}, 0x2000, v{V_ORX[i]}")
        S.put(0, VmNeed("wo4")); reads(4, 0)
        S.put(9, "s_waitcnt lgkmcnt(0)"); dmas(6, 11, 2)
        S.put(10, VmNeed("wo5"));
        S.spread(wo_reads(5), [12, 12, 14, 14, 16, 16, 18, 18, 20, 20, 22, 22, 24, 24, 26, 26])
        S.put(28, "s_waitcnt lgkmcnt(0)"); dmas(7, 30, 2)
        S.put(46, VmNeed("wo6")); S.spread(wo_reads(6), [46, 46, 46, 46] + [47 + i // 4 for i in range(12)])
        S.put(54, VmNeed("wo7")); S.spread(wo_reads(7), [54, 54, 54, 54] + [55 + i // 12 for i in range(12)])
    for t in range(NP, 9):
        b = P1 + (t - NP) * 64
        if t > NP: epi(t - 1, acc2, b + 6, 12)
        if t < 8:
            for ks in range(8):
                g = b + 8 * ks + 8
                if g >= b + 64: g = b + 64 + 1
                put_free(o_read(bt(ks), t + 1, ks), g)
    if OPT['fused']:
        g0 = P1 + (3 - NP) * 64 + 49
        S.put(g0, f"s_lshl_b32 s50, {S_W}, 7", f"s_lshl_b32 s52, {S_HP}, 2", "s_add_u32 s50, s50, s52")
        S.spread([f"v_lshlrev_b32 v36, 13, {V_LANE}", "v_add_u32 v36, s50, v36", "v_mov_b32 v37, 1"], [g0 + 1, g0 + 1, g0 + 2])
        S.put(g0 + 3, f"s_lshr_b32 s50, {S_HP}, 2", "s_lshl_b32 s50, s50, 7")
        S.spread([f"v_lshrrev_b32 v46, 4, {V_LANE}", "v_lshlrev_b32 v46, 9, v46", f"v_and_b32 v47, 15, {V_LANE}",
                  "v_lshl_add_u32 v46, v47, 2, v46", "v_add_u32 v46, s50, v46"], [g0 + 4, g0 + 4, g0 + 5, g0 + 9, g0 + 9])
        b = P1 + (8 - NP) * 64
        fa = I(f"buffer_store_dword v37, v36, {SRD_F}, 0 offen sc1"); fa.tag = "fl"
        if OPT['early']:
            S.put(b + 40, VmNeed("st3")); S.put(b + 41, fa)
            pl = I(f"buffer_load_dword v47, v46, {SRD_F}, 0 offen sc1"); pl.tag = "poll"
            S.put(b + 60, pl)
    if OPT['stamps'] and OPT.get('opst'):
        for nm, g in (("w1", 127), ("w3", 255), ("w5", 383), ("w8", 575)):
            S.put(g, Raw("\n  ".join(x.txt for x in stamp(nm))))
            S.put(g, "s_waitcnt lgkmcnt(0)")
    pre = II(f"v_mov_b32 v56, {LFLAG}", f"ds_read_b128 {vr(52)}, v56") + pre
    pre += II("s_waitcnt lgkmcnt(0)", "v_or3_b32 v52, v52, v53, v54", "v_or_b32 v52, v52, v55", "s_nop 0", "v_readfirstlane_b32 s50, v52", "s_nop 3",
              f"s_andn2_b32 s50, s50, {S_SAFE}", "s_cmp_lg_u32 s50, 0", "s_cbranch_scc1 L_restart")
    seq = pre + S.flat()
    tail = II("s_nop 7")
    for cp, (cv, (spre, st), hook) in enumerate(tile_epilogue(acc2, 8, 0)):
        tail += cv + spre + hook + [st]
    if OPT['own']:
        tail += II("s_branch L_ownx_8") + OWN_BLK.pop(8) + II("L_ownx_8:")
    if OPT['stamps'] and OPT.get('opst'): tail += stamp("st_iss")
    if OPT['fused']:
        fb = I(f"buffer_store_dword v37, v36, {SRD_F}, 0 offen offset:512 sc1"); fb.tag = "fl"
        fc = I(f"buffer_store_dword v37, v36, {SRD_F}, 0 offen offset:1024 sc1"); fc.tag = "fl"
        tail += [VmNeed("poll"), fb, VmNeed("st8"), fc] if OPT['early'] else [VmNeed("st8"), fa, fb, fc]
    seq, q = vm_waits(seq + tail, queue)
    seq, pend = lgkm_waits(seq)
    seq, n = hazards(seq)
    if OPT['verbose']: print(S.report("out_proj"), "nops", n)
    L += seq
    return L, q

SPIN = 1 << 22
def reduce_phase_groups():
    L = []; A = lambda *x: L.extend(II(*x))
    DAT = lambda g, tt, k: 64 + ((g * 2 + tt) * 4 + k) * 4
    D8 = lambda k: 192 + 4 * k
    ACC = lambda g, tt: [208, 216, 224, 232, 240, 248, 2, 10][g * 2 + tt]
    A8 = 18
    T0, T1 = 26, 28
    V_POLL, V_FL, V_L16, V_OUT = 46, 47, 32, 33
    A(f"v_lshrrev_b32 v30, 4, {V_LANE}", f"v_and_b32 v31, 15, {V_LANE}", f"v_lshlrev_b32 v{V_L16}, 4, {V_LANE}",
      f"v_lshlrev_b32 v{V_OUT}, 11, v31", f"v_lshl_add_u32 v{V_OUT}, v30, 4, v{V_OUT}")
    A(f"s_mul_i32 s32, {S_B}, {144*2048}", f"s_lshl_b32 s50, {S_BR}, 10", "s_add_u32 s32, s32, s50", f"s_lshl_b32 s50, {S_HP}, 6", "s_add_u32 s32, s32, s50")
    A(f"s_mul_i32 s33, {S_HP}, {9*16384}")
    A(f"s_lshl_b32 s50, {S_W}, 14", "s_add_u32 s34, s33, s50", "s_add_u32 s35, s34, 65536",
      f"s_add_u32 s36, s33, {8*16384}", f"s_lshl_b32 s50, {S_W}, 12", "s_add_u32 s36, s36, s50",
      f"s_lshl_b32 s41, {S_W}, 2")
    A("s_mov_b32 s37, 0", "s_mov_b32 s38, 0", f"s_mov_b32 s53, {SPIN}")
    if OPT['own']:
        A(f"s_lshr_b32 s46, {S_HP}, 2", f"s_and_b32 s47, {S_HP}, 3", f"s_lshl_b32 s50, {S_W}, 10", f"s_add_u32 s50, s50, {OWNB}", f"v_add_u32 v44, s50, v{V_L16}")
        if not OPT['latebar']:
            A("s_waitcnt lgkmcnt(0)", "s_barrier", "ds_read_b128 v[36:39], v44", "ds_read_b128 v[40:43], v44 offset:4096")
    def unpack_add(acc, src, first):
        out = []
        for k in range(4):
            if first:
                out += [f"v_lshlrev_b32 v{acc+2*k}, 16, v{src+k}", f"v_and_b32 v{acc+2*k+1}, 0xffff0000, v{src+k}"]
            else:
                t = (T0, T1)[k & 1]
                out += [f"v_lshlrev_b32 v{t}, 16, v{src+k}", f"v_and_b32 v{t+1}, 0xffff0000, v{src+k}",
                        f"v_pk_add_f32 v[{acc+2*k}:{acc+2*k+1}], v[{acc+2*k}:{acc+2*k+1}], v[{t}:{t+1}]"]
        return out
    items = [(tt, g) for tt in range(2) for g in range(4)] + [(2, None)]
    if OPT['early']: A("s_branch L_red_first")
    A("L_red_loop:")
    A("s_cmp_eq_u32 s37, 0x1ff", "s_cbranch_scc1 L_red_nopoll")
    A(f"buffer_load_dword v{V_FL}, v{V_POLL}, {SRD_F}, 0 offen sc1")
    A("L_red_nopoll:", "s_waitcnt vmcnt(0)")
    A("s_andn2_b32 s42, s37, s38")
    for i, (tt, g) in enumerate(items):
        if tt < 2 and g == 0: A(f"s_and_b32 s50, s42, {hex(15 << (4 * tt))}", f"s_cbranch_scc0 L_red_nosumc{tt}")
        A(f"s_bitcmp1_b32 s42, {i}", f"s_cbranch_scc0 L_red_nosum{i}")
        for k in range(4):
            A(unpack_add(ACC(g, tt), DAT(g, tt, k), k == 0) if tt < 2 else unpack_add(A8, D8(k), k == 0))
        A(f"L_red_nosum{i}:")
        if tt < 2 and g == 3: A(f"L_red_nosumc{tt}:")
    A("s_mov_b32 s38, s37", "s_cmp_eq_u32 s38, 0x1ff", "s_cbranch_scc1 L_red_done")
    A("L_red_first:")
    A(f"v_cmp_eq_u32 vcc, 1, v{V_FL}", "s_nop 3", "s_mov_b32 s39, vcc_lo", "s_lshr_b32 s43, vcc_hi, s41", "s_and_b32 s43, s43, 15", "s_mov_b32 s40, s37")
    A("s_sub_u32 s53, s53, 1", "s_cmp_eq_u32 s53, 0", "s_cselect_b32 s39, -1, s39", "s_cselect_b32 s43, 15, s43", "s_cselect_b32 s53, 1, s53")
    for i, (tt, g) in enumerate(items):
        if tt < 2 and g == 0:
            A(f"s_bfe_u32 s50, s37, {hex((4 << 16) | (4 * tt))}", "s_cmp_eq_u32 s50, 15", f"s_cbranch_scc1 L_red_noissc{tt}",
              f"s_bfe_u32 s50, s39, {hex((16 << 16) | (16 * tt))}", "s_cmp_eq_u32 s50, 0", f"s_cbranch_scc1 L_red_noissc{tt}")
        A(f"s_bitcmp1_b32 s37, {i}", f"s_cbranch_scc1 L_red_noiss{i}")
        if tt < 2:
            A(f"s_bfe_u32 s50, s39, {hex((4 << 16) | (16 * tt + 4 * g))}", "s_cmp_eq_u32 s50, 15")
        else:
            A("s_cmp_eq_u32 s43, 15")
        A(f"s_cbranch_scc0 L_red_noiss{i}")
        if tt < 2: A(f"s_add_u32 s50, s{34+tt}, {g*4096}")
        if OPT['own']:
            A(f"s_cmp_eq_u32 s46, {g}" if tt < 2 else f"s_cmp_eq_u32 s46, {S_W}", "s_cselect_b32 s44, s47, 7")
        for k in range(4):
            o = f" offset:{k*1024}" if k else ""
            va = V_L16
            if OPT['own']:
                A(f"s_cmp_eq_u32 s44, {k}", "s_cselect_b32 s45, 0x40000000, 0", f"v_or_b32 v45, s45, v{V_L16}"); va = 45
            if tt < 2: A(f"buffer_load_dwordx4 {vr(DAT(g, tt, k))}, v{va}, {SRD_P}, s50 offen{o} {OPT['rld']}")
            else: A(f"buffer_load_dwordx4 {vr(D8(k))}, v{va}, {SRD_P}, s36 offen{o} {OPT['rld']}")
        A(f"s_bitset1_b32 s37, {i}", f"L_red_noiss{i}:")
        if tt < 2 and g == 3: A(f"L_red_noissc{tt}:")
    if OPT.get('rdst'):
        A("s_cmp_eq_u32 s40, 0", "s_cbranch_scc0 L_rs1", "s_cmp_lg_u32 s37, 0", "s_cbranch_scc0 L_rs1", stamp("r_first"), "L_rs1:")
        A("s_cmp_eq_u32 s37, 0x1ff", "s_cbranch_scc0 L_rs2", stamp("r_alliss"), "L_rs2:")
    A("s_cmp_lg_u32 s37, s40", "s_cbranch_scc1 L_red_loop", f"s_sleep {OPT['psleep']}", "s_branch L_red_loop")
    A("L_red_done:")
    if OPT.get('rdst'): A(stamp("r_summed"))
    A(f"s_lshl_b32 s50, {S_W}, 11", f"v_lshlrev_b32 v30, 5, {V_LANE}", f"v_add_u32 v30, {WOB}, v30", "v_add_u32 v31, s50, v30",
      f"ds_write_b128 v31, {vr(A8)}", f"ds_write_b128 v31, {vr(A8+4)} offset:16")
    late = OPT['own'] and OPT['latebar']
    for tt in range(2):
        a0 = ACC(0, tt)
        for g in range(1, 4):
            for k in range(4): A(f"v_pk_add_f32 v[{a0+2*k}:{a0+2*k+1}], v[{a0+2*k}:{a0+2*k+1}], v[{ACC(g,tt)+2*k}:{ACC(g,tt)+2*k+1}]")
    if late:
        A("s_waitcnt lgkmcnt(0)", "s_barrier", "ds_read_b128 v[36:39], v44", "ds_read_b128 v[40:43], v44 offset:4096")
    for tt in range(2):
        a0 = ACC(0, tt)
        if OPT['own']: A(("s_waitcnt lgkmcnt(1)" if late else "s_waitcnt lgkmcnt(2)") if tt == 0 else "s_waitcnt lgkmcnt(0)" if late else "s_nop 0", unpack_add(a0, 36 + 4 * tt, False))
        for k in range(4): A(f"v_cvt_pk_bf16_f32 v{64+4*tt+k}, v{a0+2*k}, v{a0+2*k+1}")
        A(f"s_lshl_b32 s50, {S_W}, 15", f"s_add_u32 s50, s50, s32", f"s_add_u32 s50, s50, {tt*4*32768}")
        A(f"buffer_store_dwordx4 {vr(64+4*tt)}, v{V_OUT}, {SRD_O}, s50 offen {OPT['ost']}")
    if not late: A("s_waitcnt lgkmcnt(0)", "s_barrier")
    A(f"s_cmp_eq_u32 {S_W}, 0", "s_cbranch_scc0 L_red_end")
    for g in range(4):
        A(f"ds_read_b128 {vr(80+8*g)}, v30 offset:{g*2048}", f"ds_read_b128 {vr(84+8*g)}, v30 offset:{g*2048+16}")
    if OPT['own']: A("ds_read_b128 v[36:39], v44 offset:8192")
    A("s_waitcnt lgkmcnt(0)")
    for g in range(1, 4):
        for k in range(4): A(f"v_pk_add_f32 v[{80+2*k}:{81+2*k}], v[{80+2*k}:{81+2*k}], v[{80+8*g+2*k}:{81+8*g+2*k}]")
    if OPT['own']: A(unpack_add(80, 36, False))
    for k in range(4): A(f"v_cvt_pk_bf16_f32 v{72+k}, v{80+2*k}, v{81+2*k}")
    A(f"s_add_u32 s50, s32, {8*32768}")
    A(f"buffer_store_dwordx4 {vr(72)}, v{V_OUT}, {SRD_O}, s50 offen {OPT['ost']}")
    A("L_red_end:")
    L2, n = hazards(L)
    return L2

def reduce_phase():
    if not OPT['linred']: return reduce_phase_groups()
    assert OPT['own'] and OPT['early']
    L = []; A = lambda *x: L.extend(II(*x))
    DA = lambda p: 64 + 4 * p
    DB = lambda p: 128 + 4 * p
    D8 = lambda k: 192 + 4 * k
    ACA, ACB, A8 = 208, 216, 224
    T0, T1 = 26, 28
    V_POLL, V_FL, V_L16, V_OUT = 46, 47, 32, 33
    A(f"v_lshrrev_b32 v30, 4, {V_LANE}", f"v_and_b32 v31, 15, {V_LANE}", f"v_lshlrev_b32 v{V_L16}, 4, {V_LANE}",
      f"v_lshlrev_b32 v{V_OUT}, 11, v31", f"v_lshl_add_u32 v{V_OUT}, v30, 4, v{V_OUT}")
    A(f"s_mul_i32 s33, {S_HP}, {9*16384}")
    A(f"s_lshl_b32 s50, {S_W}, 14", "s_add_u32 s34, s33, s50", "s_add_u32 s35, s34, 65536",
      f"s_add_u32 s36, s33, {8*16384}", f"s_lshl_b32 s50, {S_W}, 12", "s_add_u32 s36, s36, s50",
      f"s_lshl_b32 s41, {S_W}, 2", f"s_mov_b32 s53, {SPIN}")
    def loads(base, dst):
        for p in range(16):
            if p % 4 == 0: A(f"s_add_u32 s50, {base}, {p*1024}")
            o = f" offset:{(p % 4)*1024}" if p % 4 else ""
            A(f"s_cmp_eq_u32 {S_HP}, {p}", f"s_cbranch_scc1 L_rl_{base}_{p}",
              f"buffer_load_dwordx4 {vr(dst(p))}, v{V_L16}, {SRD_P}, s50 offen{o} {OPT['rld']}", f"L_rl_{base}_{p}:")
    def poll(name, test):
        A(f"L_poll_{name}:", f"v_cmp_eq_u32 vcc, 1, v{V_FL}", "s_nop 3")
        A(test)
        A(f"s_cbranch_scc1 L_poll_{name}_ok", "s_sub_u32 s53, s53, 1", "s_cmp_eq_u32 s53, 0", f"s_cbranch_scc1 L_poll_{name}_ok",
          f"s_sleep {OPT['psleep']}", f"buffer_load_dword v{V_FL}, v{V_POLL}, {SRD_F}, 0 offen sc1", "s_waitcnt vmcnt(0)", f"s_branch L_poll_{name}",
          f"L_poll_{name}_ok:")
    def unpack_add(acc, src):
        out = []
        for k in range(4):
            t = (T0, T1)[k & 1]
            out += [f"v_lshlrev_b32 v{t}, 16, v{src+k}", f"v_and_b32 v{t+1}, s60, v{src+k}",
                    f"v_pk_add_f32 v[{acc+2*k}:{acc+2*k+1}], v[{acc+2*k}:{acc+2*k+1}], v[{t}:{t+1}]"]
        return out
    A("s_mov_b32 s60, 0xffff0000")
    one = OPT['onepoll']
    if one:
        A(f"s_cmp_eq_u32 {S_W}, 0", "s_cbranch_scc0 L_poll_a_skip")
    poll("a", ["s_and_b32 s50, vcc_lo, 0xffff", "s_cmp_eq_u32 s50, 0xffff"])
    if one:
        A("L_poll_a_skip:", "s_waitcnt lgkmcnt(0)", "s_barrier")
    loads("s34", DA)
    A(f"s_lshl_b32 s50, {S_W}, 10", f"s_add_u32 s50, s50, {OWNB}", f"v_add_u32 v44, s50, v{V_L16}")
    if not one: A("s_waitcnt lgkmcnt(0)", "s_barrier")
    A("ds_read_b128 v[36:39], v44", "ds_read_b128 v[40:43], v44 offset:4096")
    for r in range(ACA, ACA + 24): A(f"v_mov_b32 v{r}, 0")
    A(f"s_mul_i32 s32, {S_B}, {144*2048}", f"s_lshl_b32 s50, {S_BR}, 10", "s_add_u32 s32, s32, s50", f"s_lshl_b32 s50, {S_HP}, 6", "s_add_u32 s32, s32, s50")
    if one:
        A(f"s_cmp_eq_u32 {S_W}, 0", "s_cbranch_scc0 L_poll_b_skip")
        A(f"buffer_load_dword v{V_FL}, v{V_POLL}, {SRD_F}, 0 offen sc1", "s_waitcnt vmcnt(0)")
        poll("b", ["s_lshr_b32 s50, vcc_lo, 16", "s_and_b32 s51, vcc_hi, 0xffff", "s_lshl_b32 s51, s51, 16", "s_or_b32 s50, s50, s51", "s_cmp_eq_u32 s50, -1"])
        A("L_poll_b_skip:", "s_waitcnt vmcnt(0)", "s_barrier")
    else:
        A(f"buffer_load_dword v{V_FL}, v{V_POLL}, {SRD_F}, 0 offen sc1", "s_waitcnt vmcnt(0)")
        poll("b", ["s_lshr_b32 s50, vcc_lo, 16", "s_lshr_b32 s51, vcc_hi, s41", "s_and_b32 s51, s51, 15", "s_lshl_b32 s51, s51, 16", "s_or_b32 s50, s50, s51",
                   "s_cmp_eq_u32 s50, 0xfffff"])
    loads("s35", DB)
    for k in range(4):
        o = f" offset:{k*1024}" if k else ""
        A(f"s_add_u32 s50, s41, {k}", f"s_cmp_eq_u32 {S_HP}, s50", f"s_cbranch_scc1 L_rl8_{k}",
          f"buffer_load_dwordx4 {vr(D8(k))}, v{V_L16}, {SRD_P}, s36 offen{o} {OPT['rld']}", f"L_rl8_{k}:")
    for p in range(16):
        A(f"s_cmp_eq_u32 {S_HP}, {p}", f"s_cbranch_scc1 L_rs_a{p}", unpack_add(ACA, DA(p)), f"L_rs_a{p}:")
    A("s_waitcnt lgkmcnt(0)", unpack_add(ACA, 36))
    for k in range(4): A(f"v_cvt_pk_bf16_f32 v{64+k}, v{ACA+2*k}, v{ACA+2*k+1}")
    A(f"s_lshl_b32 s50, {S_W}, 15", "s_add_u32 s37, s50, s32")
    A(f"buffer_store_dwordx4 {vr(64)}, v{V_OUT}, {SRD_O}, s37 offen {OPT['ost']}")
    for p in range(16):
        A(f"s_waitcnt vmcnt({max(15 - p + 4 + 1 - 2, 0)})", f"s_cmp_eq_u32 {S_HP}, {p}", f"s_cbranch_scc1 L_rs_b{p}", unpack_add(ACB, DB(p)), f"L_rs_b{p}:")
    A(unpack_add(ACB, 40))
    for k in range(4): A(f"v_cvt_pk_bf16_f32 v{68+k}, v{ACB+2*k}, v{ACB+2*k+1}")
    A(f"s_add_u32 s37, s37, {4*32768}")
    A("s_waitcnt vmcnt(1)")
    for k in range(4):
        A(f"s_add_u32 s50, s41, {k}", f"s_cmp_eq_u32 {S_HP}, s50", f"s_cbranch_scc1 L_rs_c{k}", unpack_add(A8, D8(k)), f"L_rs_c{k}:")
    A(f"buffer_store_dwordx4 {vr(68)}, v{V_OUT}, {SRD_O}, s37 offen {OPT['ost']}")
    A(f"s_lshl_b32 s50, {S_W}, 11", f"v_lshlrev_b32 v30, 5, {V_LANE}", f"v_add_u32 v30, {WOB}, v30", "v_add_u32 v31, s50, v30",
      f"ds_write_b128 v31, {vr(A8)}", f"ds_write_b128 v31, {vr(A8+4)} offset:16")
    A("s_waitcnt lgkmcnt(0)", "s_barrier", f"s_cmp_eq_u32 {S_W}, 0", "s_cbranch_scc0 L_red_end")
    for g in range(4):
        A(f"ds_read_b128 {vr(80+8*g)}, v30 offset:{g*2048}", f"ds_read_b128 {vr(84+8*g)}, v30 offset:{g*2048+16}")
    A("ds_read_b128 v[36:39], v44 offset:8192")
    A("s_waitcnt lgkmcnt(0)")
    for g in range(1, 4):
        for k in range(4): A(f"v_pk_add_f32 v[{80+2*k}:{81+2*k}], v[{80+2*k}:{81+2*k}], v[{80+8*g+2*k}:{81+8*g+2*k}]")
    A(unpack_add(80, 36))
    for k in range(4): A(f"v_cvt_pk_bf16_f32 v{72+k}, v{80+2*k}, v{81+2*k}")
    A(f"s_add_u32 s50, s32, {8*32768}")
    A(f"buffer_store_dwordx4 {vr(72)}, v{V_OUT}, {SRD_O}, s50 offen {OPT['ost']}")
    A("L_red_end:")
    L2, n = hazards(L)
    return L2

def dump_regs(regs, slot, kind='v'):
    L = []; A = lambda *x: L.extend(II(*x))
    A("s_add_u32 s66, s58, 0x4000000", "s_addc_u32 s67, s59, 0",
      "s_lshl_b32 s50, s2, 2", f"s_add_u32 s50, s50, {S_W}", "s_lshl_b32 s50, s50, 16",
      f"v_lshlrev_b32 v253, 2, {V_LANE}", "v_add_u32 v253, s50, v253")
    for i, r in enumerate(regs):
        if kind == 'a':
            A(f"v_accvgpr_read_b32 v254, a{r}", "s_nop 0")
            A(f"global_store_dword v253, v254, s[66:67]")
        else:
            A(f"global_store_dword v253, v{r}, s[66:67]")
        A("v_add_u32 v253, 256, v253")
    A("s_waitcnt vmcnt(0)")
    return L

def main_kernel():
    L = []
    L += setup()
    L += stamp("start")
    L += phase_q()
    L += stamp("q_done")
    if OPT['dump'] == 'q':
        L += II("s_nop 7") + dump_regs([qfrag(t, s) + k for t in range(5) for s in range(4) for k in range(4)], 0)
        L += II("s_waitcnt vmcnt(0)", "s_endpgm")
    L += attention()
    if OPT['dump'] == 'o':
        L += II("s_nop 7") + dump_regs([oacc(dt, t) + k for t in range(5) for dt in range(8) for k in range(4)] + [lacc(t) for t in range(5)], 0, 'a')
        L += II("s_waitcnt vmcnt(0)", "s_endpgm")
    e, q = o_epilogue(); L += e
    L += stamp("o_done")
    if OPT.get('stop') == 'o':
        L += II("s_waitcnt vmcnt(0)") + stamp("end") + stamp_dump() + II("L_main_end:", "s_endpgm") + safe_paths()
        return L
    e, q = out_proj(q); L += e
    L += stamp("op_done")
    if OPT['fused']:
        L += reduce_phase()
        L += stamp("red_done")
    L += tr_dump()
    if not OPT.get('noendwait') or OPT['stamps']: L += II("s_waitcnt vmcnt(0)")
    L += stamp("end")
    L += stamp_dump()
    L += II("L_main_end:", "s_endpgm")
    L += OWN_OOL + ATT_OOL
    L += safe_paths()
    return L

def reduce_kernel():
    L = []; A = lambda *x: L.extend(II(*x))
    A("s_cmp_ge_u32 s2, 256", "s_cbranch_scc1 L_red_end")
    A("s_load_dwordx2 s[4:5], s[0:1], 80", "s_load_dwordx2 s[6:7], s[0:1], 96")
    A("v_lshrrev_b32 v2, 6, v0", "v_and_b32 v1, 63, v0", "s_nop 0", "v_readfirstlane_b32 s12, v2", "s_nop 3")
    A("s_waitcnt lgkmcnt(0)")
    A("s_mul_i32 s13, s2, 9", "s_add_u32 s13, s13, s12", "s_lshl_b32 s13, s13, 14")
    A("s_add_u32 s16, s6, s13", "s_addc_u32 s17, s7, 0", "s_and_b32 s17, s17, 0xffff", "s_mov_b32 s18, 16384", "s_mov_b32 s19, 0x20000")
    A("v_lshlrev_b32 v2, 4, v1")
    for p in range(16):
        A(f"buffer_load_dwordx4 v[{8+4*p}:{11+4*p}], v2, s[16:19], 0 offen offset:{(p%4)*1024}" if p < 4 else
          f"buffer_load_dwordx4 v[{8+4*p}:{11+4*p}], v2, s[16:19], s{20+p//4} offen offset:{(p%4)*1024}")
        if p == 3: A("s_mov_b32 s21, 4096", "s_mov_b32 s22, 8192", "s_mov_b32 s23, 12288")
    A("s_lshr_b32 s14, s2, 4", "s_and_b32 s15, s2, 15",
      "s_and_b32 s24, s14, 7", "s_lshr_b32 s25, s14, 3",
      "s_mul_i32 s24, s24, 144", "s_lshl_b32 s26, s12, 4", "s_add_u32 s24, s24, s26", "s_lshl_b32 s24, s24, 11",
      "s_lshl_b32 s25, s25, 10", "s_lshl_b32 s15, s15, 6", "s_add_u32 s24, s24, s25", "s_add_u32 s24, s24, s15")
    A("v_and_b32 v3, 15, v1", "v_lshlrev_b32 v3, 11, v3", "v_lshrrev_b32 v4, 4, v1", "v_lshl_add_u32 v3, v4, 4, v3")
    A("s_mov_b32 s28, s4", "s_and_b32 s29, s5, 0xffff", "s_mov_b32 s30, 2359296", "s_mov_b32 s31, 0x20000")
    acc = 80
    for p in range(16):
        A(f"s_waitcnt vmcnt({15-p})")
        for k in range(4):
            r = 8 + 4 * p + k
            if p == 0:
                A(f"v_lshlrev_b32 v{acc+2*k}, 16, v{r}", f"v_and_b32 v{acc+2*k+1}, 0xffff0000, v{r}")
            else:
                A(f"v_lshlrev_b32 v6, 16, v{r}", f"v_and_b32 v7, 0xffff0000, v{r}",
                  f"v_add_f32 v{acc+2*k}, v{acc+2*k}, v6", f"v_add_f32 v{acc+2*k+1}, v{acc+2*k+1}, v7")
    for k in range(4): A(f"v_cvt_pk_bf16_f32 v{8+k}, v{acc+2*k}, v{acc+2*k+1}")
    A("buffer_store_dwordx4 v[8:11], v3, s[28:31], s24 offen")
    A("s_waitcnt vmcnt(0)")
    A("L_red_end:", "s_endpgm")
    return L

def kernel_text(name, body, vgpr, accum, sgpr=102):
    return f""".globl {name}
.p2align 8
.type {name},@function
{name}:
{text(body)}
"""
def kd(name, nfv, accum, sgpr=102):
    return f""".amdhsa_kernel {name}
  .amdhsa_next_free_vgpr {nfv}
  .amdhsa_next_free_sgpr {sgpr}
  .amdhsa_accum_offset {accum}
  .amdhsa_group_segment_fixed_size 0
  .amdhsa_kernarg_size 104
  .amdhsa_user_sgpr_count 2
  .amdhsa_user_sgpr_kernarg_segment_ptr 1
  .amdhsa_system_sgpr_workgroup_id_x 1
.end_amdhsa_kernel
"""

def build():
    stamp_id[0] = 0; STAMPS.clear()
    k1 = NAME + "_kernel"; k2 = "reduce_heads_kernel"
    m = main_kernel()
    hdr = """; Fused  x@wq -> softmax(q k^T / sqrt(128)) v -> @wo  for both branches, one launch, 256 workgroups x 4 waves.
"""
    if OPT['fused']:
        hdr += f"; @launch grid=(256,1,1) block=(256,1,1) lds=163840\n"
    else:
        hdr += f"; @launch kernel={k1} grid=(256,1,1) block=(256,1,1) lds=163840\n"
        hdr += f"; @launch kernel={k2} grid=(256,1,1) block=(576,1,1) lds=0\n"
    s = hdr + '.amdgcn_target "amdgcn-amd-amdhsa--gfx950"\n.text\n'
    s += kernel_text(k1, m, 512, 256)
    if not OPT['fused']: s += kernel_text(k2, reduce_kernel(), 96, 96)
    s += '.section .rodata,"a"\n.p2align 6\n' + kd(k1, 512, 256)
    if not OPT['fused']: s += ".p2align 6\n" + kd(k2, 96, 96, 40)
    return s

if __name__ == "__main__":
    ap = argparse.ArgumentParser()
    ap.add_argument("-o", default="cdna_kernels/" + NAME + ".s")
    ap.add_argument("--dump"); ap.add_argument("--stamps", action="store_true"); ap.add_argument("-v", action="store_true")
    ap.add_argument("--opt", action="append", default=[])
    a = ap.parse_args()
    OPT['dump'] = a.dump; OPT['stamps'] = a.stamps; OPT['verbose'] = a.v
    for o in a.opt:
        k, v = o.split("=", 1)
        OPT[k] = {'True': True, 'False': False}.get(v, int(v) if v.lstrip('-').isdigit() else v)
    s = build()
    open(a.o, "w").write(s)
    if a.stamps:
        import json; json.dump(STAMPS, open(a.o + ".stamps.json", "w"))
    print("wrote", a.o, len(s), "bytes")
```

```python
import sys, argparse
from ir import *

NAME = "concat_heads__gqa_block_cached__mha_block_cached__near_ridge"
OPT = dict(worot=True, pfat=12, pfexact=True, onepoll=True, linred=True, latebar=False, wsoff=0, own=True, early=True, l2pf=False, np1=0, pfw=1, pfkv=0, pfkvnt=False, psleep=8, ost='nt', noendwait=True, lthr=0, start2=True, pf=2, pfnt=False, fused=True, rld='sc1', rot=True, wnt=False, xnt=False, wont=False, bursts=(3, 6, 9), dump=None, stamps=False, stop=None, kvnt=True, pst="sc1", verbose=False)

VB = 0
KB = 65536
WB = 16384
XB = 114688
WOA = 131072
WOB = 98304
OB = 0
def kphys(k): return ((k + 1) & 3) * 16384
def vphys(k): return (k & 3) * 16384

SRD_X, SRD_WQ, SRD_K, SRD_V, SRD_WO, SRD_P = "s[4:7]", "s[8:11]", "s[12:15]", "s[16:19]", "s[20:23]", "s[24:27]"
SRD_F, SRD_D, SRD_O = "s[68:71]", "s[72:75]", "s[80:83]"
S_W, S_U, S_QH, S_CNT = "s28", "s29", "s30", "s31"
S_SOFFX, S_SOFFW0, S_UNUSED, S_MW, S_MX, S_DSLOT, S_RSLOT, S_DW, S_DX = "s32", "s33", "s34", "s35", "s36", "s37", "s38", "s39", "s40"
S_BW, S_BX = "s41", "s42"
S_SOFFK, S_SOFFV, S_MK, S_MV = "s45", "s46", "s47", "s48"
S_T0, S_T1, S_T2, S_T3 = "s50", "s51", "s52", "s53"
S_HP, S_B, S_BR, S_CL = "s54", "s55", "s56", "s57"
S_WS = "s[58:59]"
S_SOFFP = "s60"
S_STAMP = "s[62:63]"
S_FLAG = "s64"
S_SAFE = "s61"
S_B15 = "s39"
S_BX3 = "s38"
LTHR = 0x4b800000
S_KS, S_X0, S_W0 = "s88", "s89", "s87"
S_TAU, S_TB, S_TQ, S_T4N, S_TMASK, S_TSH, S_TM, S_TS = "s78", "s79", "s43", "s44", "s34", "s49", "s61", "s95"

V_LANE = "v1"
V_WQR = [2, 3, 4, 5]; V_XR = 6; V_XR4 = 14; V_OW4 = 50; V_OWB = 51
V_WQD = [7, 8, 9, 10]; V_XD = [11, 12, 13]; V_TG, V_TI, V_TB, V_TV = 14, 15, 62, 63
V_KD = [16, 17, 18, 19]; V_VD = [20, 21]
V_KR = [22, 23, 24, 25]; V_VR = [26 + i for i in range(8)]
V_WOD = [34, 35, 36, 37]; V_WOR = [38, 39, 40, 41]
V_OW, V_OR, V_OR8, V_PS = 42, 43, 44, 45
VT = [46 + i for i in range(18)]
RB = 64
def grp(t, s): return RB + (t * 4 + s) * 8
def qacc(dt, t): return grp(t, dt >> 1) + 4 * (dt & 1)
def qfrag(t, s): return grp(t, s)
def Sreg(kt, t): return grp(t, kt) + 4
def Preg(par, t): return grp(t, 2 + par) + 4
def cinit(t): return 224 + 4 * t
V_C0, V_C1 = 244, 245
def vr(b, n=4): return f"v[{b}:{b+n-1}]"
def ar(b, n=4): return f"a[{b}:{b+n-1}]"
def oacc(dt, t): return t * 32 + dt * 4
def lacc(t): return 160 + 4 * t
A_ONES = 180
def abuf(i): return 184 + 4 * i
def bbuf(t): return [48, 52, 56, 60, 248][t]
def kbuf(kt, s): return 216 + 4 * (kt * 4 + s)

MF = "v_mfma_f32_16x16x32_bf16"
def mfma(d, a, b, c): return I(f"{MF} {d}, {a}, {b}, {c}")
SCALE = (128 ** -0.5) * 1.4426950408889634
import struct
def f2u(x): return struct.unpack("<I", struct.pack("<f", x))[0]

def NT(): return " nt" if OPT['kvnt'] else ""

def CNTOFF(): return 128 if OPT.get('dbgst') is not None else 0
stamp_id = [0]
def stamp(name):
    if not OPT['stamps']: return []
    i = stamp_id[0]; stamp_id[0] += 1
    STAMPS.append(name)
    return II("s_memrealtime s[66:67]", "s_memtime s[64:65]", "s_waitcnt lgkmcnt(0)",
              f"v_writelane_b32 v0, s66, {i}", f"v_writelane_b32 v0, s64, {32 + i}")
def stamp_dump():
    if not OPT['stamps']: return []
    if OPT.get('dbgst') is not None:
        return II(f"s_cmp_eq_u32 s2, {OPT['dbgst']}", "s_cbranch_scc0 L_nodbg", f"s_cmp_eq_u32 {S_W}, 0", "s_cbranch_scc0 L_nodbg",
                  "v_readlane_b32 s50, v0, 0", "s_nop 3", "v_subrev_u32 v0, s50, v0",
                  f"v_lshlrev_b32 v1, 2, {V_LANE}", "v_cmp_gt_u32 vcc, 16, v1", f"v_lshrrev_b32 v2, 2, v1", "v_mov_b32 v3, 0x1000", "v_cmp_gt_u32 vcc, 16, v2", "s_nop 1",
                  "v_cndmask_b32 v1, v3, v1, vcc", f"buffer_store_dword v0, v1, {SRD_D}, 0 offen", "L_nodbg:")
    return II("s_add_u32 s62, s58, 0x8000000", "s_addc_u32 s63, s59, 0", "s_lshl_b32 s65, s2, 2", f"s_add_u32 s65, s65, {S_W}", "s_lshl_b32 s65, s65, 8",
              f"v_lshlrev_b32 v1, 2, {V_LANE}", "v_add_u32 v1, s65, v1", "global_store_dword v1, v0, s[62:63]")
STAMPS = []

def setup():
    L = []
    A = lambda *x: L.extend(II(*x))
    A("s_cmp_ge_u32 s2, 256", "s_cbranch_scc1 L_main_end")
    if OPT['stamps'] and OPT.get('t0st'): A("s_memrealtime s[100:101]")
    A("s_load_dwordx8 s[68:75], s[0:1], 0", "s_load_dwordx2 s[76:77], s[0:1], 32",
      "s_load_dwordx8 s[80:87], s[0:1], 40", "s_load_dwordx2 s[88:89], s[0:1], 72",
      f"s_load_dwordx2 {S_WS}, s[0:1], 96", "s_load_dwordx4 s[96:99], s[0:1], 80")
    A("s_and_b32 s50, s2, 7", "s_lshr_b32 s51, s2, 3",
      f"s_lshr_b32 {S_BR}, s50, 2",
      "s_and_b32 s52, s50, 3", "s_lshl_b32 s52, s52, 2", "s_and_b32 s53, s51, 3", f"s_add_u32 {S_HP}, s52, s53",
      f"s_lshr_b32 {S_B}, s51, 2",
      f"s_lshl_b32 s52, {S_BR}, 3", f"s_add_u32 {S_CL}, s52, {S_B}")
    A("v_lshrrev_b32 v46, 6, v0", f"v_and_b32 {V_LANE}, 63, v0", "s_nop 0", f"v_readfirstlane_b32 {S_W}, v46", "s_nop 3")
    A(f"s_lshr_b32 {S_U}, {S_W}, 1", f"s_and_b32 {S_QH}, {S_W}, 1", f"s_mov_b32 {S_SAFE}, 0")
    A(lane_consts_q())
    if OPT['stamps'] and OPT.get('t0st'):
        A("s_memrealtime s[66:67]")
    A("s_waitcnt lgkmcnt(0)")
    if OPT['stamps'] and OPT.get('t0st'):
        i0 = stamp_id[0]; stamp_id[0] += 2; STAMPS.extend(["entry", "consts_q"])
        A(f"v_writelane_b32 v0, s100, {i0}", f"v_writelane_b32 v0, s66, {i0+1}", f"v_writelane_b32 v0, s100, {32+i0}", f"v_writelane_b32 v0, s66, {33+i0}")
    A(f"s_cmp_eq_u32 {S_BR}, 1")
    for i in (0, 1, 6, 7): A(f"s_cselect_b32 s{68+i}, s{80+i}, s{68+i}")
    def srd(dst, lo, hi, off_expr_regs, nrec):
        A(f"s_add_u32 s{dst}, s{lo}, s50", f"s_addc_u32 s{dst+1}, s{hi}, 0", f"s_and_b32 s{dst+1}, s{dst+1}, 0xffff")
        A(nrec, f"s_mov_b32 s{dst+3}, 0x20000")
    A(f"s_mul_i32 s50, {S_B}, 147456"); srd(4, 68, 69, None, "s_mov_b32 s6, 147456")
    A(f"s_lshl_b32 s50, {S_HP}, 9"); srd(8, 74, 75, None, "s_sub_u32 s10, 4194304, s50")
    return L

def setup_b():
    L = []
    A = lambda *x: L.extend(II(*x))
    def srd(dst, lo, hi, off_expr_regs, nrec):
        A(f"s_add_u32 s{dst}, s{lo}, s50", f"s_addc_u32 s{dst+1}, s{hi}, 0", f"s_and_b32 s{dst+1}, s{dst+1}, 0xffff")
        A(nrec, f"s_mov_b32 s{dst+3}, 0x20000")
    A(f"s_cmp_eq_u32 {S_SAFE}, 1", "s_cbranch_scc1 L_setup_b_done")
    A(f"s_cmp_eq_u32 {S_BR}, 1")
    for i in (2, 3, 4, 5): A(f"s_cselect_b32 s{68+i}, s{80+i}, s{68+i}")
    A("s_cselect_b32 s76, s88, s76", "s_cselect_b32 s77, s89, s77")
    A(f"s_lshl_b32 s50, {S_B}, 5", f"s_lshl_b32 s51, {S_HP}, 1", "s_add_u32 s50, s50, s51", f"s_add_u32 s50, s50, {S_U}", "s_lshl_b32 s50, s50, 17")
    srd(12, 70, 71, None, "s_mov_b32 s14, 131072")
    srd(16, 72, 73, None, "s_mov_b32 s18, 131072")
    A(f"s_lshl_b32 s50, {S_HP}, 18", f"s_lshl_b32 s51, {S_W}, 8", "s_add_u32 s50, s50, s51")
    A("s_sub_u32 s52, 262144, s51")
    srd(20, 76, 77, None, "s_mov_b32 s22, s52")
    A(f"s_lshl_b32 s50, {S_HP}, 18"); srd(84, 76, 77, None, "s_mov_b32 s86, 262144")
    A(f"s_mul_i32 s50, {S_CL}, 2359296", f"s_add_u32 s50, s50, {hex(OPT['wsoff'])}"); srd(24, 58, 59, None, "s_mov_b32 s26, 2359296")
    if OPT['fused']:
        A(f"s_mul_i32 s50, {S_CL}, 4608", f"s_add_u32 s50, s50, {hex(OPT['wsoff'] + 0x2400000 + 0x40000)}"); srd(68, 58, 59, None, "s_mov_b32 s70, 4608")
        A("s_mov_b32 s72, s98", "s_and_b32 s73, s99, 0xffff", "s_mov_b32 s74, 256", "s_mov_b32 s75, 0x20000")
        A("s_mov_b32 s80, s96", "s_and_b32 s81, s97, 0xffff", "s_mov_b32 s82, 2359296", "s_mov_b32 s83, 0x20000")
        A(f"s_lshl_b32 s50, {S_W}, 7", f"s_lshl_b32 s51, {S_HP}, 2", "s_add_u32 s50, s50, s51",
          f"v_lshlrev_b32 v46, 9, {V_LANE}", "v_add_u32 v46, s50, v46", "v_mov_b32 v47, 0",
          f"buffer_store_dword v47, v46, {SRD_F}, 0 offen sc1" if not OPT.get('x_noclr') else "s_nop 0")
    if OPT.get('tlb0'):
        A(f"s_lshl_b32 s50, {S_W}, 6", f"v_add_u32 v48, s50, {V_LANE}", "v_lshlrev_b32 v48, 20, v48")
        t = OPT['tlb0']
        if t & 1: A(f"buffer_load_dword v15, v48, {SRD_K}, 0 offen", f"buffer_load_dword v15, v48, {SRD_V}, 0 offen")
        if t & 2: A(f"buffer_load_dword v15, v48, s[84:87], 0 offen")
        if t & 4: A(f"buffer_load_dword v15, v48, {SRD_P}, 0 offen")
        if t & 8: A(f"s_mul_i32 s50, {S_B}, {144*2048}", f"buffer_load_dword v15, v48, {SRD_O}, s50 offen")
    A("L_setup_b_done:")
    return L

def lane_consts_q():
    L = []; A = lambda *x: L.extend(II(*x))
    l = V_LANE; t0, t1, t2, t3, t4, t5 = [f"v{x}" for x in VT[:6]]
    A(f"v_lshrrev_b32 {t0}, 4, {l}", f"v_bfe_u32 {t1}, {l}, 2, 2", f"v_and_b32 {t2}, 3, {l}", f"v_and_b32 {t3}, 15, {l}")
    w0, w1, w2, w3 = [f"v{x}" for x in V_WQD]
    A(f"v_lshrrev_b32 {t4}, 5, {l}", f"v_bfe_u32 {t5}, {l}, 4, 1",
      f"v_lshlrev_b32 {w0}, 2, {t4}", f"v_xor_b32 {w0}, {w0}, {t3}", f"v_lshlrev_b32 {w0}, 4, {w0}",
      f"v_lshl_add_u32 {w0}, {t5}, 8, {w0}", f"v_lshl_add_u32 {w0}, {t4}, 13, {w0}",
      f"v_xor_b32 {w1}, 0x80, {w0}", f"v_add_u32 {w1}, {2*8192 - 1024}, {w1}",
      f"v_add_u32 {w2}, {4*8192 - 2048}, {w0}", f"v_add_u32 {w3}, {4*8192 - 2048}, {w1}")
    A(f"v_lshlrev_b32 {t4}, 1, {t0}", f"v_mov_b32 {t5}, 0x78", f"v_lshrrev_b32 {t4}, {t4}, {t5}", f"v_and_b32 {t4}, 3, {t4}",
      f"v_xor_b32 {t4}, {t4}, {t2}", f"v_lshlrev_b32 {t4}, 4, {t4}",
      f"v_lshrrev_b32 {t5}, 2, {l}", f"v_lshl_add_u32 {t4}, {t5}, 10, {t4}")
    for j in range(2):
        A(f"v_add_u32 v{V_XD[j]}, {j*16384 - 1024*j}, {t4}")
    A(f"s_lshl_b32 s50, {S_W}, 1", "s_lshr_b32 s50, 0x78, s50", "s_and_b32 s50, s50, 3",
      f"v_xor_b32 {t4}, s50, {t2}", f"v_lshlrev_b32 {t4}, 4, {t4}", f"v_lshl_add_u32 {t4}, {t5}, 10, {t4}",
      f"s_lshl_b32 s50, {S_W}, 12", f"s_lshl_b32 s51, {S_W}, 15", "s_sub_u32 s50, s50, s51", f"s_add_u32 s50, s50, {128*1024}",
      f"v_add_u32 v{V_XD[2]}, s50, {t4}")
    return L

def lane_consts_q2():
    L = []; A = lambda *x: L.extend(II(*x))
    l = V_LANE; t0, t1, t2, t3, t4, t5 = [f"v{x}" for x in VT[:6]]
    A(f"v_lshrrev_b32 {t0}, 4, {l}", f"v_bfe_u32 {t1}, {l}, 2, 2", f"v_and_b32 {t2}, 3, {l}", f"v_and_b32 {t3}, 15, {l}")
    for n in range(4):
        A(f"v_add_u32 {t4}, {4*n}, {t0}", f"v_xor_b32 {t4}, {t4}, {t3}", f"v_lshlrev_b32 {t4}, 4, {t4}",
          f"v_lshl_add_u32 v{V_KD[n]}, {t0}, 8, {t4}")
    for n in range(2):
        A(f"v_add_u32 {t4}, {4*n}, {t0}", f"v_lshlrev_b32 {t4}, 1, {t4}", f"v_xor_b32 {t4}, {t4}, {t3}", f"v_lshlrev_b32 {t4}, 4, {t4}",
          f"v_lshl_add_u32 v{V_VD[n]}, {t0}, 8, {t4}")
    A(f"v_lshl_add_u32 {t4}, {t0}, 3, {t1}", f"v_lshlrev_b32 {t4}, 9, {t4}", f"v_lshl_add_u32 {t4}, {t2}, 4, {t4}",
      f"s_lshl_b32 s50, {S_U}, 8", f"s_add_u32 s50, s50, {WB}", f"v_add_u32 {t4}, s50, {t4}")
    A(f"s_lshl_b32 s51, {S_QH}, 1", f"v_xor_b32 {t1}, s51, {t1}")
    for s in range(4):
        A(f"v_xor_b32 {t5}, {s}, {t1}", f"v_lshl_add_u32 v{V_WQR[s]}, {t5}, 6, {t4}")
    A(f"v_lshrrev_b32 {t4}, 2, {t3}", f"v_lshlrev_b32 {t4}, 1, {t4}", f"v_mov_b32 {t5}, 0x78", f"v_lshrrev_b32 {t4}, {t4}, {t5}", f"v_and_b32 {t4}, 3, {t4}",
      f"v_xor_b32 {t4}, {t4}, {t0}", f"v_lshlrev_b32 {t4}, 4, {t4}", f"v_lshl_add_u32 {t4}, {t3}, 6, {t4}",
      f"s_mul_i32 s50, {S_QH}, 5120", f"s_add_u32 s50, s50, {XB}", f"v_add_u32 v{V_XR}, s50, {t4}", f"v_add_u32 v{V_XR4}, {XB + 4096}, {t4}")
    return L

def lane_consts_rest():
    L = []; A = lambda *x: L.extend(II(*x))
    l = V_LANE; t0, t1, t2, t3, t4, t5, t6 = [f"v{x}" for x in VT[:7]]
    A(f"v_lshrrev_b32 {t0}, 4, {l}", f"v_bfe_u32 {t1}, {l}, 2, 2", f"v_and_b32 {t2}, 3, {l}", f"v_and_b32 {t3}, 15, {l}")
    A(f"s_lshl_b32 s50, {S_U}, 13", f"s_add_u32 s51, s50, {KB}", f"v_lshlrev_b32 {t4}, 8, {t3}", f"v_add_u32 {t4}, s51, {t4}")
    A(f"s_lshl_b32 s51, {S_QH}, 3", f"v_xor_b32 {t6}, s51, {t3}")
    for s in range(4):
        A(f"v_add_u32 {t5}, {4*s}, {t0}", f"v_xor_b32 {t5}, {t5}, {t6}", f"v_lshl_add_u32 v{V_KR[s]}, {t5}, 4, {t4}")
    A(f"v_lshrrev_b32 {t4}, 2, {l}", f"v_and_b32 {t5}, 7, {t4}", f"v_lshlrev_b32 {t5}, 1, {t5}",
      f"v_lshlrev_b32 {t4}, 8, {t4}", f"v_add_u32 {t4}, s50, {t4}",
      f"v_and_b32 {t6}, 1, {t2}", f"v_lshl_add_u32 {t4}, {t6}, 3, {t4}",
      f"v_lshrrev_b32 {t6}, 1, {t2}",
      f"s_lshl_b32 s51, {S_QH}, 3", f"v_xor_b32 {t5}, s51, {t5}")
    for dt in range(8):
        d = f"v{V_VR[dt]}"
        A(f"v_add_u32 {d}, {2*dt}, {t6}", f"v_xor_b32 {d}, {d}, {t5}", f"v_lshl_add_u32 {d}, {d}, 4, {t4}")
    A(f"v_lshlrev_b32 {t4}, 2, {t0}", f"v_xor_b32 {t4}, {t4}, {t3}", f"v_lshlrev_b32 {t4}, 4, {t4}", f"v_lshl_add_u32 {t4}, {t0}, 10, {t4}")
    for n in range(4):
        A(f"v_add_u32 v{V_WOD[n]}, {n*3072}, {t4}")
    A(f"v_lshrrev_b32 {t4}, 2, {l}", f"v_lshlrev_b32 {t4}, 8, {t4}", f"v_lshl_add_u32 {t4}, {t2}, 4, {t4}",
      f"s_lshl_b32 s50, {S_W}, 13", f"s_add_u32 s50, s50, {WOB}", f"v_add_u32 {t4}, s50, {t4}")
    for cp in range(4):
        A(f"v_xor_b32 {t5}, {cp}, {t1}", f"v_lshl_add_u32 v{V_WOR[cp]}, {t5}, 6, {t4}")
    A(f"s_mul_i32 s50, {S_QH}, 40960", f"s_lshl_b32 s51, {S_U}, 12", "s_add_u32 s50, s50, s51",
      f"v_lshlrev_b32 v{V_OR}, 4, {l}", f"v_add_u32 v{V_OW}, s50, v{V_OR}", f"v_add_u32 v{V_OR8}, 0x10000, v{V_OR}")
    A(f"s_lshl_b32 s50, {S_HP}, 10", f"v_add_u32 v{V_PS}, s50, v{V_OR}")
    return L

def dma(voff, srd, soff, imm, nt=False):
    o = f" offset:{imm}" if imm else ""
    return I(f"buffer_load_dwordx4 v{voff}, {srd}, {soff} offen{o}{' nt' if nt else ''} lds")

def kv_group(kind, m0expr, soffreg):
    if kind == 'K':
        return [dma(V_KD[n], SRD_K, soffreg, n * 1024, OPT['kvnt']) for n in range(4)]
    return [dma(V_VD[n & 1], SRD_V, soffreg, n * 1024, OPT['kvnt']) for n in range(4)]

def kv_tile_full_unused(kind, j):
    L = []
    base = (KB + kphys(j)) if kind == 'K' else (VB + vphys(j))
    for gI in range(2):
        L += II(f"s_lshl_b32 s50, {S_U}, 13", f"s_add_u32 m0, s50, {base + gI*4096}", f"s_mov_b32 s51, {j*8192 + gI*4096}")
        L += kv_group(kind, None, "s51")
    return L

def stage_setup_scalar():
    rot = OPT['rot']
    R = II("s_lshr_b32 s50, s2, 3", "s_and_b32 s51, s50, 3", "s_lshr_b32 s50, s50, 2")
    if rot in (True, 1):   R += II("s_lshl_b32 s51, s51, 2", "s_lshl_b32 s50, s50, 1", "s_add_u32 s52, s50, s51")
    elif rot == 2:         R += II("s_lshr_b32 s50, s50, 1", "s_add_u32 s52, s50, s51", "s_lshl_b32 s52, s52, 2")
    elif rot == 3:         R += II("s_add_u32 s52, s50, s51", "s_lshl_b32 s52, s52, 2")
    elif rot == 4:         R += II("s_lshr_b32 s50, s50, 2", "s_lshl_b32 s50, s50, 3", "s_lshl_b32 s51, s51, 2", "s_add_u32 s52, s50, s51")
    elif rot == 5:         R += II("s_mul_i32 s50, s50, 3", "s_lshl_b32 s51, s51, 2", "s_add_u32 s52, s50, s51")
    elif rot == 6:         R += II("s_lshl_b32 s52, s50, 1")
    elif rot == 7:         R += II("s_lshl_b32 s50, s50, 1", "s_and_b32 s51, s51, 1", "s_lshl_b32 s51, s51, 3", "s_add_u32 s52, s50, s51")
    else:                  R += II("s_mov_b32 s52, 0")
    return R + II("s_and_b32 s52, s52, 15",
              f"s_lshl_b32 s50, s52, 6", f"s_lshl_b32 s51, {S_W}, 15", f"s_add_u32 {S_SOFFX}, s50, s51",
              f"s_lshl_b32 s50, s52, 18", f"s_lshl_b32 s51, {S_W}, 16", f"s_add_u32 {S_SOFFW0}, s50, s51",
              f"s_lshl_b32 s50, {S_W}, 12", f"s_add_u32 {S_BW}, s50, {WB}",
              f"s_lshl_b32 s50, {S_W}, 11", f"s_add_u32 {S_BX}, s50, {XB}",
              f"s_lshl_b32 s50, {S_W}, 8", f"s_add_u32 {S_BX3}, s50, {XB + 8192}",
              )
def kv_setup_scalar():
    return II(f"s_lshl_b32 {S_B15}, {S_B}, 15", f"s_lshl_b32 {S_TQ}, {S_QH}, 12",
              f"s_lshl_b32 s50, {S_U}, 13", f"s_add_u32 s50, s50, {S_TQ}", f"s_add_u32 {S_MK}, s50, {KB}", f"s_add_u32 {S_MV}, s50, {VB}")

def stage_dma_list(slot):
    seq = []
    seq.append(([I(f"s_add_u32 m0, {S_BW}, {slot*16384}")], dma(V_WQD[0], SRD_WQ, S_SOFFW0, 0, OPT['wnt'])))
    for j in range(1, 4): seq.append(([], dma(V_WQD[j], SRD_WQ, S_SOFFW0, j * 1024, OPT['wnt'])))
    seq.append(([I(f"s_add_u32 m0, {S_BX}, {slot*9216}")], dma(V_XD[0], SRD_X, S_SOFFX, 0, OPT['xnt'])))
    seq.append(([], dma(V_XD[1], SRD_X, S_SOFFX, 1024, OPT['xnt'])))
    q = dma(V_XD[2], SRD_X, S_SOFFX, 0, OPT['xnt'])
    seq.append(([I(f"s_add_u32 m0, {S_BX3}, {slot*9216}")], Masked(q, 0xffff)))
    return seq

def place_dma(S, seq, gaps):
    k = 0
    last = None
    for e in seq:
        if e[0]:
            for p in e[0]: S.put(gaps[k], p)
            k += 1
        S.put(gaps[k], e[1]); last = gaps[k]
        if len(e) > 2:
            for p in e[2]: S.put(gaps[k] + 1, p)
        k += 1
    return last

def stage_advance_w():
    return II(f"s_add_u32 {S_SOFFW0}, {S_SOFFW0}, 262144", f"s_and_b32 {S_SOFFW0}, {S_SOFFW0}, 0x3fffff")
def stage_advance_x():
    return II(f"s_add_u32 {S_SOFFX}, {S_SOFFX}, 64", f"s_and_b32 {S_SOFFX}, {S_SOFFX}, 0xfffffbff")
def stage_advance(): return stage_advance_w() + stage_advance_x()

def straight(seq):
    L = []
    for e in seq:
        L += e[0]
        if e[0]: L += II("s_nop 0")
        L.append(e[1])
        if len(e) > 2: L += e[2]
    return L

def stage_issue_straight(slot):
    return straight(stage_dma_list(slot)) + stage_advance()

def wq_read(dt, h2, slot):
    if OPT.get('x_noread'): return I('s_nop 0')
    s, hf = dt >> 1, dt & 1
    b = abuf(dt) + 2 * h2
    off = slot * 16384 + hf * 8 + h2 * 2048
    return I(f"ds_read_b64_tr_b16 {ar(b,2)}, v{V_WQR[s]}" + (f" offset:{off}" if off else ""))
def x_read(t, slot):
    if OPT.get('x_noread'): return I('s_nop 0')
    off = slot * 9216 + (0 if t == 4 else t * 1024)
    return I(f"ds_read_b128 {vr(bbuf(t))}, v{V_XR4 if t == 4 else V_XR}" + (f" offset:{off}" if off else ""))
def q_mfma(dt, t):
    if OPT.get('x_t4') and t == 4: return I("s_nop 3")
    if OPT.get('x_t45') and t == 4 and dt >= 4: return I("s_nop 3")
    return mfma(vr(qacc(dt, t)), ar(abuf(dt)), vr(bbuf(t)), vr(qacc(dt, t)))

def half_group(kind, j):
    if kind == 'K':
        pre = II(f"s_add_u32 m0, {S_MK}, {kphys(j)}", f"s_add_u32 s51, {S_TQ}, {j*8192}")
    else:
        pre = II(f"s_add_u32 m0, {S_MV}, {vphys(j)}", f"s_add_u32 s51, {S_TQ}, {j*8192}")
    g = kv_group(kind, None, "s51")
    return [(pre, g[0])] + [([], x) for x in g[1:]]

def put_dmas(S, seq, gaps):
    prev = -1
    for e, g in zip(seq, gaps):
        if e[0]:
            assert g - 1 > prev or prev < 0, (g, prev)
            for p in e[0]: S.put(g - 1, p)
        S.put(g, e[1])
        if len(e) > 2:
            for p in e[2]: S.put(g + 1, p)
        prev = g
    assert len(seq) <= len(gaps)

QTAIL = (4, 5, 6, 7)
def q_tail(): return [q_mfma(dt, t) for t in range(4) for dt in QTAIL]
SRD_T = "s[96:99]"; V_T = [10, 11, 12, 13]; S_TM, S_TS = "s35", "s36"
V_TB2 = [252, 253, 254, 255]
V_TB = [244, 245, 246, 247]
DUMMY = 151552
def burst_list():
    g = [dma(V_TB[n], SRD_T, S_TS, n * 1024, OPT['kvnt']) for n in range(4)]
    return [([I(f"s_mov_b32 m0, {S_TM}")], g[0])] + [([], x) for x in g[1:]]

def q_body(ks, with_dma, burst=False, extra_dma=None, wait=None):
    slot = ks & 3
    ms = q_tail() + [q_mfma(dt, t) for t in range(5) for dt in range(4)]
    S = Sched(ms)
    a = lambda dt, h: wq_read(dt, h, slot)
    xr = lambda t: x_read(t, slot)
    plan = {0: a(0,0), 1: a(0,1), 2: a(1,0), 3: a(1,1), 4: xr(0), 5: a(2,0), 7: a(2,1), 8: xr(1), 9: a(3,0), 11: a(3,1),
            12: xr(2), 13: xr(4), 16: xr(3), 17: a(4,0), 19: a(4,1), 20: a(5,0), 21: a(5,1), 23: a(6,0), 24: a(6,1), 25: a(7,0), 27: a(7,1)}
    for g, ins in plan.items(): S.put(g, ins)
    if with_dma:
        put_dmas(S, stage_dma_list((ks + 3) & 3), [6, 10, 14, 18, 22, 26, 29])
        w = stage_advance_w(); x = stage_advance_x()
        S.put(19, w[0]); S.put(20, w[1]); S.put(30, x[0]); S.put(31, x[1])
    if burst:
        put_dmas(S, burst_list(), [32, 33, 34, 35]) if False else None
        put_dmas(S, burst_list(), [15, 28, 31, 33])  if False else None
    if extra_dma:
        put_dmas(S, extra_dma, [6, 10, 14, 18, 22, 26, 30, 32][:len(extra_dma)])
    return S

def q_finish(S, wait, wg=33):
    S.put(wg, tr_mark(), f"s_waitcnt vmcnt({wait}) lgkmcnt(0)", tr_commit())
    S.put(wg + 1, "s_barrier")
    seq, pend = lgkm_waits(S.flat())
    assert not pend
    if OPT['verbose']: print(S.report("q_body"))
    return seq

def tr_mark():
    return [Raw("s_memtime s[100:101]")] if OPT.get('trace') else []
def tr_commit():
    return [Raw("s_mov_b32 s95, m0\n  s_mov_b32 m0, s94\n  s_nop 0\n  v_writelane_b32 v0, s100, m0\n  s_mov_b32 m0, s95\n  s_add_u32 s94, s94, 1")] if OPT.get('trace') else []
def tr_dump():
    if not OPT.get('trace'): return []
    return II("s_add_u32 s66, s58, 0x9000000", "s_addc_u32 s67, s59, 0", "s_lshl_b32 s50, s2, 2", f"s_add_u32 s50, s50, {S_W}", "s_lshl_b32 s50, s50, 8",
              f"v_lshlrev_b32 v253, 2, {V_LANE}", "v_add_u32 v253, s50, v253", "global_store_dword v253, v0, s[66:67]")

def zero_init():
    L = II("v_mov_b32 v244, 0", "v_mov_b32 v245, 0", "v_mov_b32 v246, 0", "v_mov_b32 v247, 0", "s_nop 1")
    for r in range(RB, RB + 160, 16): L += II(f"v_mfma_f32_32x32x16_bf16 v[{r}:{r+15}], v[244:247], v[244:247], 0")
    for r in range(0, 256, 16): L += II(f"v_mfma_f32_32x32x16_bf16 a[{r}:{r+15}], v[244:247], v[244:247], 0")
    return L

def phase_q():
    L = []; A = lambda *x: L.extend(II(*x))
    A("L_phase_q:")
    A(stage_setup_scalar(), stage_issue_straight(0))
    A(setup_b())
    A(kv_setup_scalar())
    A(lane_consts_q2())
    A(stamp("q_issued"))
    A(zero_init())
    A(lane_consts_rest())
    A(f"s_mov_b32 {S_CNT}, 0")
    if OPT.get('trace'): A("s_mov_b32 s94, 1", "s_memtime s[100:101]", "s_waitcnt lgkmcnt(0)", "v_writelane_b32 v0, s100, 0")
    A(f"v_mov_b32 v{VT[0]}, 0x3f803f80")
    for r in range(4): A(f"v_accvgpr_write_b32 a{A_ONES + r}, v{VT[0]}")
    for t in range(5):
        for k in range(4): A(f"v_mov_b32 v{bbuf(t)+k}, 0")
    A("s_mov_b32 s96, s12", "s_mov_b32 s97, s13", "s_mov_b32 s98, s14", "s_mov_b32 s99, s15")
    for n in range(4): A(f"v_mov_b32 v{V_TB[n]}, v{V_KD[n]}")
    if OPT.get('stst'): A(stamp("consts"))
    A(stage_issue_straight(1))
    if OPT.get('stst'): A(stamp("s1_iss"))
    A("s_waitcnt vmcnt(7)")
    if OPT.get('stst'): A(stamp("s0_land"))
    A("s_barrier")
    if OPT['fused']:
        A(f"s_cmp_eq_u32 {S_SAFE}, 1", "s_cbranch_scc1 L_no_arrive")
        A(f"s_lshl_b32 s50, {S_CL}, 2", f"s_add_u32 s50, s50, {CNTOFF()}", f"s_lshl_b32 s51, {S_W}, 14", "s_add_u32 s50, s50, s51",
          f"v_lshlrev_b32 v46, 8, {V_LANE}", "v_add_u32 v46, s50, v46", "v_mov_b32 v47, 1",
          f"buffer_atomic_add v47, v46, {SRD_D}, 0 offen sc1")
        A("L_no_arrive:")
    A(stage_issue_straight(2))
    if OPT.get('stst'): A(stamp("s2_iss"))
    A(f"s_add_u32 {S_TM}, {S_MK}, {kphys(0)}", f"s_mov_b32 {S_TS}, {S_TQ}")
    A(stamp("q_start"))
    l2 = OPT['l2pf']
    if l2:
        A(f"s_add_u32 s37, {S_TQ}, {4*8192}", "s_mov_b32 s92, s12", "s_mov_b32 s93, s13", "s_mov_b32 s94, s14", "s_mov_b32 s95, s15",
          "s_mov_b64 vcc, -1")
    bodies = []
    QOOL = []
    for k in range(4):
        S = q_body(k, True)
        if k == 1:
            put_dmas(S, burst_list(), [32, 33, 34, 35])
        if k == 3 and l2:
            g = [dma(V_OR, "s[92:95]", "s37", n * 1024, False) for n in range(4)]
            put_dmas(S, [([I(f"s_mov_b32 m0, {DUMMY}")], g[0])] + [([], x) for x in g[1:]], [32, 33, 34, 35])
        if l2:
            n_steady, n_first = [(18, 14), (22, 18), (18, 18), (22, 22)][k]
        else:
            n_steady = n_first = 14 if k == 0 else 18
        if OPT.get('b0st') and k == 0:
            for nm, g in (("g5", 5), ("g6", 7), ("g15", 15), ("g20", 20), ("g30", 31)):
                S.put(g, Raw(f"s_cmp_eq_u32 {S_CNT}, 0\n  s_cbranch_scc0 L_b0_{nm}\n  " + "\n  ".join(x.txt for x in stamp(nm)) + f"\nL_b0_{nm}:"))
        late = (k == 1) or (k == 3 and l2)
        w = tr_mark() + II(f"s_waitcnt vmcnt({n_steady}) lgkmcnt(0)")
        if n_first != n_steady:
            w += II(f"s_cbranch_vccnz L_q_first{k}", f"L_q_back{k}:")
            QOOL += II(f"L_q_first{k}:", f"s_waitcnt vmcnt({n_first})", f"s_branch L_q_back{k}")
        w += tr_commit()
        if late:
            seq, pend = lgkm_waits(S.flat())
            seq += w + II("s_barrier")
        else:
            S.put(33, w); S.put(34, "s_barrier")
            seq, pend = lgkm_waits(S.flat())
            assert not pend
        if OPT['verbose']: print(S.report("q_body"))
        bodies.append(seq)
    hist = bodies[3][-24:]
    A(".p2align 6", "L_q_loop:")
    for bi, b in enumerate(bodies):
        b2, n = hazards(b, history=hist); L.extend(b2); hist = b2[-24:]
        if OPT.get('stst') and bi < 2: A(f"s_cmp_eq_u32 {S_CNT}, 0", f"s_cbranch_scc0 L_nost{bi}", stamp(f"body{bi}"), f"L_nost{bi}:")
    A(f"s_add_u32 {S_TM}, {S_TM}, 16384", f"s_add_u32 {S_TS}, {S_TS}, 8192", f"s_add_u32 {S_CNT}, {S_CNT}, 1")
    if l2:
        A("s_mov_b64 vcc, 0", f"s_cmp_eq_u32 {S_CNT}, 1", "s_cbranch_scc1 L_q_to1", "L_q_to1_done:")
    A(f"s_cmp_eq_u32 {S_CNT}, 2", "s_cbranch_scc0 L_q_tov_done",
      "s_mov_b32 s96, s16", "s_mov_b32 s97, s17", f"s_add_u32 {S_TM}, {S_MV}, {vphys(0)}", f"s_mov_b32 {S_TS}, {S_TQ}")
    if l2: A("s_mov_b32 s92, s12", "s_mov_b32 s93, s13", f"s_add_u32 s37, {S_TQ}, {5*8192}")
    for n in range(4): A(f"v_mov_b32 v{V_TB[n]}, v{V_VD[n & 1]}")
    A("L_q_tov_done:", f"s_cmp_lt_u32 {S_CNT}, 3", "s_cbranch_scc1 L_q_loop")
    OOL = []
    if l2: OOL += II("L_q_to1:", "s_mov_b32 s92, s16", "s_mov_b32 s93, s17", f"s_add_u32 s37, {S_TQ}, {3*8192}", "s_branch L_q_to1_done")
    OOL += QOOL
    b, n = hazards(q_finish(q_body(12, True), 18 if l2 else 14), history=hist); L.extend(b)
    b, n = hazards(q_finish(q_body(13, False, extra_dma=half_group('V', 1)), 15 if l2 else 11), history=b[-24:]); L.extend(b)
    b, n = hazards(q_finish(q_body(14, False, extra_dma=half_group('K', 2) + half_group('V', 2)), 12), history=b[-24:]); L.extend(b)
    b, n = hazards(q_finish(q_body(15, False), 12), history=b[-24:]); L.extend(b)
    if OOL:
        A("s_branch L_q_after_ool")
        L.extend(OOL)
        A("L_q_after_ool:")
    A(stamp("q_loop_done"))
    return L

def q_tiles(s): return range(5) if s < 2 else range(4)
def q_scale(ss):
    return [I(f"v_pk_mul_f32 {vr(grp(t,s)+2*k,2)}, {vr(grp(t,s)+2*k,2)}, {vr(V_C0,2)}") for s in ss for t in q_tiles(s) for k in range(4)]
def q_cvt(ss):
    return [I(f"v_cvt_pk_bf16_f32 v{grp(t,s)+k}, v{grp(t,s)+2*k}, v{grp(t,s)+2*k+1}") for s in ss for t in q_tiles(s) for k in range(4)]
QX = 155648

def transition():
    L = []; A = lambda *x: L.extend(II(*x))
    A(f"s_add_u32 {S_SOFFK}, {S_TQ}, {5*8192}", f"s_add_u32 {S_SOFFV}, {S_TQ}, {4*8192}")
    A(f"v_mov_b32 v{V_C0}, {hex(f2u(SCALE))}", f"v_mov_b32 v{V_C1}, {hex(f2u(SCALE))}")
    A(f"s_lshl_b32 s50, {S_W}, 11", f"s_add_u32 s50, s50, {QX}", f"v_lshlrev_b32 v7, 4, {V_LANE}", "v_add_u32 v8, s50, v7",
      "s_xor_b32 s50, s50, 2048", "v_add_u32 v9, s50, v7")
    k3 = half_group('K', 3)
    seq = [k_read(kt, s, 0) for kt in range(2) for s in range(4)]
    sc = q_scale((0, 1))
    seq += II("s_nop 3") + sc
    S = Sched(q_tail())
    cv = q_cvt((0, 1))
    sh = lambda c: any(f"v{grp(4,s)+k}," in c.txt.split()[1] + "," for s in (0, 1) for k in range(4))
    cv = [c for c in cv if sh(c)] + [c for c in cv if not sh(c)]
    S.spread(cv, [min(i * 2 // 5, 15) for i in range(40)])
    S.put(5, f"ds_write_b128 v8, {vr(grp(4,0))}"); S.put(7, f"ds_write_b128 v8, {vr(grp(4,1))} offset:1024")
    seq += S.flat()
    seq += II("s_waitcnt lgkmcnt(0)", "s_barrier", f"ds_read_b128 {vr(grp(4,2))}, v9", f"ds_read_b128 {vr(grp(4,3))}, v9 offset:1024")
    sc = q_scale((2, 3))
    seq += II("s_nop 3") + k3[0][0] + sc[:8] + [k3[0][1]] + sc[8:16] + [k3[1][1]] + sc[16:24] + [k3[2][1]] + sc[24:] + [k3[3][1]]
    qk = lambda kt, ss, c: [qk_mfma(kt, s, t, c) for s in ss for t in range(5)]
    S = Sched(qk(0, (0, 1), lambda t: "0") + qk(0, (2, 3), lambda t: "0"))
    S.spread(q_cvt((2, 3)), [min(i * 5 // 16, 9) for i in range(32)])
    S.spread([f"v_mov_b32 v{Preg(1,t)+k}, 0" for t in range(5) for k in range(4)], [10 + i // 2 for i in range(20)])
    seq += S.flat()
    seq += straight(half_group('V', 3))
    seq, _ = lgkm_waits(seq, final_zero=True)
    seq, n = hazards(seq); L.extend(seq)
    A(stamp("qk0_done"))
    A(f"s_cmp_eq_u32 {S_SAFE}, 1", "s_cbranch_scc1 L_safe_max")
    T = [2, 3, 4, 5, 6]
    U = [7, 8, 9, 10, 11]
    E = II("s_nop 5")
    for t in range(5): E += II(f"v_max3_f32 v{T[t]}, v{Sreg(0,t)}, v{Sreg(0,t)+1}, v{Sreg(0,t)+2}")
    for t in range(5): E += II(f"v_max_f32 v{T[t]}, v{T[t]}, v{Sreg(0,t)+3}")
    E += row_max_finish(T, U)
    S = Sched(qk(1, range(4), lambda t: vr(cinit(t))))
    sub = [f"v_add_f32 v{Sreg(0,t)+k}, v{Sreg(0,t)+k}, v{cinit(t)}" for t in range(5) for k in range(4)]
    ex = [f"v_exp_f32 v{Sreg(0,t)+k}, v{Sreg(0,t)+k}" for t in range(5) for k in range(4)]
    S.spread(sub, [i // 2 for i in range(20)])
    S.spread(ex, [min(2 + i, 19) for i in range(20)])
    E += S.flat()
    E += II("s_barrier")
    E += II("s_nop 3") + exps(1)
    E, n = hazards(E, history=L[-24:]); L.extend(E)
    A("L_max_done:")
    A(straight(half_group('K', 4)))
    return L

def row_max_finish(T, U):
    E = []
    for sw in ("v_permlane32_swap_b32", "v_permlane16_swap_b32"):
        for t in range(5): E += II(f"v_mov_b32 v{U[t]}, v{T[t]}")
        for t in range(5): E += II(f"{sw} v{T[t]}, v{U[t]}")
        for t in range(5): E += II(f"v_max_f32 v{T[t]}, v{T[t]}, v{U[t]}")
    for t in range(5):
        for k in range(4): E += II(f"v_sub_f32 v{cinit(t)+k}, 0, v{T[t]}")
    return E

def safe_paths():
    L = []; A = lambda *x: L.extend(II(*x))
    T = [2, 3, 4, 5, 6]; U = [7, 8, 9, 10, 11]
    ab = [(Sreg(0, t), Sreg(1, t)) for t in range(5)]
    A("L_safe_max:")
    for t in range(5): A(f"v_mov_b32 v{T[t]}, 0xff800000")
    A(f"s_mov_b32 {S_CNT}, 0")
    A("L_safe_loop:")
    A("s_waitcnt vmcnt(0) lgkmcnt(0)", "s_barrier")
    A(f"s_and_b32 s50, {S_CNT}, 15", "s_lshl_b32 s50, s50, 13", f"s_add_u32 s51, s50, {S_TQ}", f"s_add_u32 m0, {S_MK}, {kphys(0)}", "s_nop 0")
    A(kv_group('K', None, "s51"))
    A("s_waitcnt vmcnt(0)", "s_barrier")
    A([k_read(kt, s, 0) for kt in range(2) for s in range(4)], "s_waitcnt lgkmcnt(0)")
    A(f"s_cmp_eq_u32 {S_CNT}, 16", "s_cbranch_scc1 L_safe_last")
    A([qk_mfma(kt, s, t, lambda t: "0") for kt in range(2) for s in range(4) for t in range(5)], "s_nop 7", "s_nop 7")
    for t, (a, b) in enumerate(ab):
        A(f"v_max3_f32 v{T[t]}, v{T[t]}, v{a}, v{a+1}", f"v_max3_f32 v{T[t]}, v{T[t]}, v{a+2}, v{a+3}",
          f"v_max3_f32 v{T[t]}, v{T[t]}, v{b}, v{b+1}", f"v_max3_f32 v{T[t]}, v{T[t]}, v{b+2}, v{b+3}")
    A(f"s_add_u32 {S_CNT}, {S_CNT}, 1", f"s_cmp_lt_u32 {S_CNT}, 16", "s_cbranch_scc1 L_safe_loop")
    E, n = hazards(II("s_nop 3") + row_max_finish(T, U)); L.extend(E)
    A("s_branch L_safe_loop")
    A("L_safe_last:", "s_nop 3")
    A([qk_mfma(kt, s, t, lambda t: vr(cinit(t))) for kt in range(2) for s in range(4) for t in range(5)], "s_nop 7", "s_nop 7")
    A("s_barrier")
    for t, (a, b) in enumerate(ab):
        for base in (a, b):
            for k in range(4): A(f"v_exp_f32 v{base+k}, v{base+k}")
    A("s_nop 1", "s_branch L_max_done")
    if OPT['fused']:
        A("L_cnt_spin:", f"s_mov_b32 s53, {SPIN}", "L_cnt_spin_loop:", "s_sleep 2",
          f"buffer_load_dword v15, v14, {SRD_D}, 0 offen sc1", "s_waitcnt vmcnt(0)", "v_readfirstlane_b32 s52, v15", "s_nop 3",
          "s_cmp_ge_u32 s52, 16", "s_cbranch_scc1 L_cnt_ok", "s_sub_u32 s53, s53, 1", "s_cmp_lg_u32 s53, 0", "s_cbranch_scc1 L_cnt_spin_loop", "s_branch L_cnt_ok")
    A("L_restart:", f"s_mov_b32 {S_SAFE}, 1", "s_waitcnt vmcnt(0) lgkmcnt(0)", "s_barrier")
    A(lane_consts_q())
    A("s_branch L_phase_q")
    return L

def k_read(kt, s, slotk):
    off = kphys(slotk) + kt * 4096
    return I(f"ds_read_b128 {ar(kbuf(kt, s))}, v{V_KR[s]}" + (f" offset:{off}" if off else ""))
def v_read(dt, h, slotv):
    off = vphys(slotv) + h * 4096
    return I(f"ds_read_b64_tr_b16 {ar(abuf(dt) + 2*h, 2)}, v{V_VR[dt]}" + (f" offset:{off}" if off else ""))
def qk_mfma(kt, s, t, first_c):
    c = first_c(t) if s == 0 else vr(Sreg(kt, t))
    return mfma(vr(Sreg(kt, t)), ar(kbuf(kt, s)), vr(qfrag(t, s)), c)
def pv_mfma(dt, t, par):
    return mfma(ar(oacc(dt, t)), ar(abuf(dt)), vr(Preg(par, t)), ar(oacc(dt, t)))
def rs_mfma(t, par):
    return mfma(ar(lacc(t)), ar(A_ONES), vr(Preg(par, t)), ar(lacc(t)))
def cvts(par):
    out = []
    for kt in range(2):
        for t in range(5):
            s = Sreg(kt, t); p = Preg(par, t) + 2 * kt
            out.append(I(f"v_cvt_pk_bf16_f32 v{p}, v{s}, v{s+1}"))
            out.append(I(f"v_cvt_pk_bf16_f32 v{p+1}, v{s+2}, v{s+3}"))
    return out
def exps(kt):
    return [I(f"v_exp_f32 v{Sreg(kt,t)+i}, v{Sreg(kt,t)+i}") for t in range(5) for i in range(4)]

def att_dma(j, dyn=False):
    seq = []
    if j == 0 or j > 12: return seq
    if True:
        pre = II(f"s_add_u32 m0, {S_MK}, {kphys(j + 4)}")
        g = kv_group('K', None, S_SOFFK)
        seq += [(pre, g[0])] + [([], x) for x in g[1:]]
        seq[-1] = (seq[-1][0], seq[-1][1], II(f"s_add_u32 {S_SOFFK}, {S_SOFFK}, 8192"))
    if j + 3 <= 15:
        pre = II(f"s_add_u32 m0, {S_MV}, {vphys(j + 3)}")
        g = kv_group('V', None, S_SOFFV)
        s2 = [(pre, g[0])] + [([], x) for x in g[1:]]
        s2[-1] = (s2[-1][0], s2[-1][1], II(f"s_add_u32 {S_SOFFV}, {S_SOFFV}, 8192"))
        seq += s2
    return seq

def wo_dma(ks, slot_base_imm):
    seq = []
    for gI in range(2):
        src = f"s_xor_b32 s51, {S_B15}, {ks*32768 + gI*16384}" if OPT['worot'] else f"s_mov_b32 s51, {ks*32768 + gI*16384}"
        pre = II(f"s_lshl_b32 s50, {S_W}, 13", f"s_add_u32 m0, s50, {slot_base_imm + gI*4096}", src)
        for n in range(4):
            seq.append((pre if n == 0 else [], dma(V_WOD[n], SRD_WO, "s51", n * 1024, OPT["wont"])))
    return seq

def att_body(j, vmwait, extra_dma=None):
    par_old, par_new = (j - 1) & 1, j & 1
    ms = [pv_mfma(dt, t, par_old) for dt in (5, 6, 7) for t in range(5)] + [rs_mfma(t, par_old) for t in range(5)]
    ms += [qk_mfma(kt, s, t, lambda t: vr(cinit(t))) for kt in range(2) for s in range(4) for t in range(5)]
    ms += [pv_mfma(dt, t, par_new) for dt in range(5) for t in range(5)]
    S = Sched(ms)
    cv = cvts(par_new)
    S.spread(cv, [1, 1, 3, 3, 6, 6, 8, 8, 11, 11, 13, 13, 16, 16, 18, 18, 21, 21, 23, 23])
    S.spread([k_read(kt, s, j + 1) for kt in range(2) for s in range(4)], [0, 2, 5, 7, 10, 12, 15, 17])
    vr_ = [v_read(dt, h, j) for dt in range(8) for h in range(2)]
    S.spread(vr_, [20, 22, 25, 26, 27, 28, 30, 31, 32, 33, 35, 36, 37, 38, 40, 61])
    d = att_dma(j) + (extra_dma or [])
    put_dmas(S, d, [4, 9, 14, 19, 24, 29, 34, 39])
    S.spread(exps(0), list(range(41, 61)))
    S.spread(exps(1), list(range(62, 82)))
    seq = S.flat()
    seq, pend = lgkm_waits(seq)
    seq += tr_mark() + II(f"s_waitcnt vmcnt({vmwait}) lgkmcnt(0)") + tr_commit() + II("s_barrier")
    if OPT['verbose']: print(S.report(f"att_body {j}"))
    return seq

WO1 = [192, 200, 208, 216, 224, 228, 232, 236]
def wofrag(ks, m, n=4, off=0):
    if ks == 0: return ar(216 + 4 * m + off, n)
    if ks == 1: return vr(WO1[m] + off, n)
    return ar((ks - 2) * 32 + 4 * m + off, n)
def wo_read(ks, m, h):
    cp, hf = m >> 1, m & 1
    off = (32768 if (ks & 1) == 0 else 0) + hf * 8 + h * 4096
    return I(f"ds_read_b64_tr_b16 {wofrag(ks, m, 2, 2*h)}, v{V_WOR[cp]}" + (f" offset:{off}" if off else ""))

def tlb_touch():
    L = II(f"v_mul_u32_u24 v46, 0x100000, {V_LANE}",
           f"buffer_load_dword v47, v46, {SRD_P}, 0 offen")
    if OPT['tlb'] == 2:
        L += II(f"s_mul_i32 s50, {S_B}, {144*2048}", f"v_lshlrev_b32 v46, 26, {V_LANE}", f"buffer_load_dword v47, v46, {SRD_O}, s50 offen")
    return L

def wo_prefetch(shift=0):
    n = OPT['pfw']
    L = II(f"s_add_u32 s50, {S_B}, {shift}", "s_and_b32 s50, s50, 7", "s_lshl_b32 s50, s50, 15", f"s_lshl_b32 s51, {S_W}, 13", "s_add_u32 s50, s50, s51")
    nt = " nt" if OPT['pfnt'] else ""
    if n == 8:
        L += II(f"v_lshlrev_b32 v46, 4, {V_LANE}")
        for i in range(8):
            L += II(f"s_add_u32 s51, s50, {i*1024}", f"buffer_load_dwordx4 v[252:255], v46, s[84:87], s51 offen{nt}")
    else:
        sh = {1: 7, 2: 6, 4: 5}[n]
        L += II(f"v_lshlrev_b32 v46, {sh}, {V_LANE}")
        for i in range(n):
            L += II(f"s_add_u32 s51, s50, {i * (64 << sh)}", f"buffer_load_dword v47, v46, s[84:87], s51 offen{nt}")
    return L

ATT_OOL = []
def attention():
    L = []; A = lambda *x: L.extend(II(*x))
    L += transition()
    A(stamp("att_start"))
    A(f"s_mov_b32 {S_CNT}, 0")
    b0, n = hazards(att_body(0, 16), history=L[-24:]); L.extend(b0)
    bodies = [att_body(j, 16) for j in range(1, 5)]
    hist = bodies[3][-24:]
    A(".p2align 6", "L_att_loop:")
    OOLA = []
    for i, b in enumerate(bodies):
        if i == 3:
            A(f"s_cmp_eq_u32 {S_CNT}, 2", "s_cbranch_scc0 L_att_nok_done")
            for n in range(4): A(f"v_add_u32 v{V_KD[n]}, 0x40000000, v{V_KD[n]}")
            A("L_att_nok_done:")
        b2, n = hazards(b, history=hist); L.extend(b2); hist = b2[-24:]
        if OPT['pf'] == 2 and OPT['pfat'] == 9 + i and i < 3:
            A(f"s_cmp_eq_u32 {S_CNT}, 2", "s_cbranch_scc0 L_att_nopf0", wo_prefetch(), "L_att_nopf0:")
    if 0 <= OPT['pf'] < 3 and OPT['pfat'] == 12:
        A(f"s_cmp_eq_u32 {S_CNT}, {OPT['pf']}", "s_cbranch_scc0 L_att_nopf", wo_prefetch(), (wo_prefetch(4) if OPT.get('pfdup') else []),
          (tlb_touch() if OPT.get('tlb') else []), "L_att_nopf:")
    A(f"s_add_u32 {S_CNT}, {S_CNT}, 1", f"s_cmp_lt_u32 {S_CNT}, 3", "s_cbranch_scc1 L_att_loop")
    ATT_OOL.clear(); ATT_OOL.extend(OOLA)
    npf = (OPT['pfw'] * (2 if OPT.get('pfdup') else 1) + (OPT.get('tlb') or 0)) if (OPT['pf'] == 2 and OPT['pfexact'] and OPT['pfat'] == 12) else 0
    b, n = hazards(att_body(13, 16 + npf, extra_dma=wo_dma(0, WOA)), history=hist); L.extend(b); hist = b[-24:]
    if OPT.get('pf2nd'): A(wo_prefetch(4))
    late_pf = OPT['pf'] == 2 and OPT['pfat'] == 13
    if late_pf: A(wo_prefetch())
    b, n = hazards(att_body(14, 16 + npf + (OPT['pfw'] if late_pf else 0), extra_dma=wo_dma(1, WOB)), history=hist); L.extend(b); hist = b[-24:]
    last_pf = OPT['pf'] == 2 and OPT['pfat'] == 14
    if last_pf: A(wo_prefetch())
    A(stamp("att_loop_done"))
    ms = [pv_mfma(dt, t, 0) for dt in (5, 6, 7) for t in range(5)] + [rs_mfma(t, 0) for t in range(5)]
    ms += [pv_mfma(dt, t, 1) for dt in range(8) for t in range(5)] + [rs_mfma(t, 1) for t in range(5)]
    S = Sched(ms)
    S.spread(cvts(1), list(range(0, 20)))
    S.spread([v_read(dt, h, 15) for dt in range(5) for h in range(2)], list(range(0, 10)))
    S.spread([v_read(dt, h, 15) for dt in (5, 6, 7) for h in range(2)], list(range(15, 21)))
    S.put(20, f"s_waitcnt vmcnt({8 + (OPT['pfw'] if (late_pf or last_pf) else 0)})")
    S.spread([wo_read(0, m, h) for m in range(8) for h in range(2)], [21 + i // 2 for i in range(16)])
    S.put(28, f"s_waitcnt vmcnt({OPT['pfw'] if last_pf else 0})")
    S.spread([wo_read(1, m, h) for m in range(8) for h in range(2)], [29 + i // 2 for i in range(16)])
    S.put(38, "s_waitcnt lgkmcnt(0)")
    if OPT['fused']:
        S.put(36, f"s_lshl_b32 s50, {S_CL}, 2", f"s_add_u32 s50, s50, {CNTOFF()}")
        S.spread([f"v_lshlrev_b32 v14, 8, {V_LANE}", "v_add_u32 v14, s50, v14"], [37, 37])
        S.put(38, f"buffer_load_dword v15, v14, {SRD_D}, 0 offen sc1")
    put_dmas(S, wo_dma(2, WOA), [41, 44, 47, 50, 54, 57, 60, 63])
    seq, pend = lgkm_waits(S.flat(), final_zero=True)
    seq, n = hazards(seq, history=hist); L.extend(seq)
    A("s_barrier")
    A("s_nop 3")
    A(stamp("att_done"))
    return L

def wo_dma_t(ks):
    d = wo_dma(ks, WOA if (ks & 1) == 0 else WOB)
    for e in d: e[1].tag = f"wo{ks}"
    return d
def wo_reads(ks): return [wo_read(ks, m, h) for m in range(8) for h in range(2)]

LFLAG = 90112

def o_epilogue():
    E = []
    tl = VT[0]; rc = VT[2]
    d3, d4, d5 = wo_dma_t(3), wo_dma_t(4), wo_dma_t(5)
    E += II(f"s_lshl_b32 s51, {S_QH}, 11", f"v_subrev_u32 v{V_OWB}, s51, v{V_OW}", f"v_add_u32 v{V_OW}, s51, v{V_OW}",
            f"s_lshl_b32 s50, {S_U}, 12", f"s_add_u32 s50, s50, 32768", "s_add_u32 s50, s50, s51", f"v_add_u32 v{V_OW4}, s50, v{V_OR}")
    def emit_dma(e):
        return e[0] + II("s_nop 0") * (1 if e[0] else 0) + [e[1]]
    nfr = 0
    for t in range(5):
        E += II(f"v_accvgpr_read_b32 v{tl}, a{lacc(t)}", f"v_rcp_f32 v{rc}, v{tl}", "s_nop 0", f"v_mov_b32 v{rc+1}, v{rc}")
        if t == 0: E += II(f"v_mov_b32 v{VT[1]}, v{tl}")
        else: E += II(f"v_max_f32 v{VT[1]}, v{VT[1]}, v{tl}")
        if t == 4:
            E += II(f"v_cmp_nge_f32 vcc, {hex(OPT['lthr'] or LTHR)}, v{VT[1]}", f"s_lshl_b32 s50, {S_W}, 2", f"s_add_u32 s50, s50, {LFLAG}", f"v_mov_b32 v52, s50",
                    "s_cmp_lg_u64 vcc, 0", "s_cselect_b32 s51, 1, 0", "v_mov_b32 v53, s51", "ds_write_b32 v52, v53")
        for ks in range(4 if t < 4 else 2):
            mid = []
            if nfr < 8: mid += emit_dma(d3[nfr])
            if 8 <= nfr < 16: mid += emit_dma(d4[nfr - 8])
            if nfr >= 16:
                for i in range(4): mid += emit_dma(d5[4 * (nfr - 16) + i])
            if OPT.get('x_oenodma'): mid = [x for x in mid if x.kind == 'dma'][:0] + [x for x in mid if x.kind != 'dma']
            rd = []
            cut = {0: (0, 6), 1: (6, 11), 2: (11, 16)}
            if 4 <= nfr < 7:
                if nfr == 4:
                    rd += [VmNeed("wo2")]
                    if OPT['fused']:
                        rd += II("v_readfirstlane_b32 s52, v15", "s_nop 3", "s_cmp_lt_u32 s52, 16", "s_cbranch_scc1 L_cnt_spin", "L_cnt_ok:")
                a_, b_ = cut[nfr - 4]; rd += wo_reads(2)[a_:b_]
            if 12 <= nfr < 15:
                if nfr == 12: rd += [VmNeed("wo3")]
                a_, b_ = cut[nfr - 12]; rd += wo_reads(3)[a_:b_]
            if OPT.get('oe_nord'): rd = [x for x in rd if x.kind != 'dsr']
            if OPT.get('oe_nowait'): rd = [x for x in rd if not isinstance(x, VmNeed)]
            if OPT.get('oe_nodma'): mid = []; rd = [x for x in rd if not (isinstance(x, VmNeed) and x.tag == 'wo3')]
            if nfr in (8, 16): E += II("s_waitcnt lgkmcnt(0)")
            E += rd
            for h in range(2):
                for k in range(4):
                    E += II(f"v_accvgpr_read_b32 v{52 + 4*h + k}, a{oacc(2*ks + h, t) + k}")
            E += mid
            for k in range(4): E += II(f"v_pk_mul_f32 {vr(52+2*k,2)}, {vr(52+2*k,2)}, {vr(rc,2)}")
            for k in range(4): E += II(f"v_cvt_pk_bf16_f32 v{60+k}, v{52+2*k}, v{53+2*k}")
            E += II(f"ds_write_b128 v{V_OW if ks < 2 else V_OWB}, {vr(60)} offset:{(t*8+ks)*1024}" if t < 4 else f"ds_write_b128 v{V_OW4}, {vr(60)} offset:{ks*1024}")
            nfr += 1
        if OPT['stamps'] and OPT.get('oest'): E += [Raw("\n  ".join(x.txt for x in stamp(f"oe{t}")))] + II("s_waitcnt lgkmcnt(0)")
    E, q = vm_waits(E, ["cnt"] + ["wo2"] * 8)
    E, pend = lgkm_waits(E, final_zero=True)
    E, n = hazards(E)
    return E + II("s_barrier"), q

V_ORX = [240 + i for i in range(8)]
def o_read(dst, t, ks):
    if OPT['worot']:
        off = 0 if t == 0 else (t - 1) * 8192
        return I(f"ds_read_b128 {vr(dst)}, v{V_ORX[ks]}" + (f" offset:{off}" if off else ""))
    if t < 8: return I(f"ds_read_b128 {vr(dst)}, v{V_OR} offset:{(t*8+ks)*1024}")
    return I(f"ds_read_b128 {vr(dst)}, v{V_OR8} offset:{ks*1024}")
V_PSC = [196, 197, 198, 199]
V_OWNA = 204; S_OWN = "s49"
OWNB = 73728
OWN_OOL = []
OWN_BLK = {}
def pstore(src, t, cp):
    v = V_PSC[cp] if OPT['own'] else V_PS
    return (II(f"s_add_u32 s51, {S_SOFFP}, {(cp*9 + t)*16384}"),
            I(f"buffer_store_dwordx4 {vr(src)}, v{v}, {SRD_P}, s51 offen {OPT['pst']}"))
def own_hook(src, t, cp):
    if not OPT['own']: return []
    OWN_BLK.setdefault(t, []).extend(II(f"L_own_{t}_{cp}:", f"ds_write_b128 v{V_OWNA}, {vr(src)} offset:{t*1024}", f"s_branch L_ownb_{t}_{cp}"))
    return II(f"s_cmp_eq_u32 {S_OWN}, {cp}", f"s_cbranch_scc1 L_own_{t}_{cp}", f"L_ownb_{t}_{cp}:")

NP1 = 2
def acc1(t, m): return 64 + (t * 8 + m) * 4
def acc2(t, m): return 128 + ((t & 1) * 8 + m) * 4
def bfr1(par, t): return 2 + (par * 4 + t) * 4
STG = [48, 52, 56, 60]

def tile_epilogue(accf, t, k0):
    out = []
    for cp in range(4):
        a0, a1 = accf(t, 2*cp), accf(t, 2*cp + 1)
        d = STG[(k0 + cp) & 3]
        cv = II(f"v_cvt_pk_bf16_f32 v{d}, v{a0}, v{a0+1}", f"v_cvt_pk_bf16_f32 v{d+1}, v{a0+2}, v{a0+3}",
                f"v_cvt_pk_bf16_f32 v{d+2}, v{a1}, v{a1+1}", f"v_cvt_pk_bf16_f32 v{d+3}, v{a1+2}, v{a1+3}")
        pre, st = pstore(d, t, cp)
        if OPT.get('x_nost') and not (t == 8 and cp == 3): st = I("s_nop 0")
        st.tag = f"st{t}"
        out.append((cv, (pre, st), own_hook(d, t, cp)))
    return out

def out_proj(queue):
    L = []; A = lambda *x: L.extend(II(*x))
    A(f"s_mul_i32 {S_SOFFP}, {S_W}, {4*9*16384}")
    OWN_OOL.clear(); OWN_BLK.clear()
    if OPT['own']:
        A(f"s_lshr_b32 s50, {S_HP}, 2", f"s_and_b32 s51, {S_HP}, 3", f"s_cmp_eq_u32 s50, {S_W}", f"s_cselect_b32 {S_OWN}, s51, 7")
        for cp in range(4):
            A(f"s_cmp_eq_u32 {S_OWN}, {cp}", "s_cselect_b32 s50, 0x40000000, 0", f"v_or_b32 v{V_PSC[cp]}, s50, v{V_PS}")
        A(f"v_add_u32 v{V_OWNA}, {OWNB}, v{V_OR}")
    NP = OPT['np1']
    G = 8 * NP
    ms = [mfma(vr(acc1(t, m)), wofrag(ks, m), vr(bfr1(ks & 1, t)), ("0" if ks == 0 else vr(acc1(t, m)))) for ks in range(8) for m in range(8) for t in range(NP)]
    bt = lambda ks: 2 + 4 * ks
    P1 = len(ms)
    for t in range(NP, 9):
        ms += [mfma(vr(acc2(t, m)), wofrag(ks, m), vr(bt(ks)), ("0" if ks == 0 else vr(acc2(t, m)))) for ks in range(8) for m in range(8)]
    S = Sched(ms)
    def reads(ks, g0): S.spread(wo_reads(ks), [g0 + i // 2 for i in range(16)])
    def dmas(ks, g0, step=4): put_dmas(S, wo_dma_t(ks), [g0 + step * i for i in range(8)])
    def put_free(ins, g0):
        g = g0
        while S.cost(g) + COST[ins.kind] > 8: g += 1
        S.put(g, ins); return g
    def epi(t, accf, g0, stride):
        for cp, (cv, (spre, st), hook) in enumerate(tile_epilogue(accf, t, 0)):
            g = g0 + cp * stride
            S.spread(cv, [g, g, g + 1, g + 1])
            for p in spre: S.put(g + 1, p)
            for p in hook: S.put(g + 2, p)
            S.put(g + 2, st)
        if OPT['own']:
            blk = OWN_BLK.pop(t)
            S.put(g0 + 3 * stride + 4, Raw(f"s_branch L_ownx_{t}\n" + "\n".join((x.txt if x.kind == 'label' else "  " + x.txt) for x in blk) + f"\nL_ownx_{t}:"))
    if NP == 2:
        pre = [o_read(bfr1(0, t), t, 0) for t in range(NP)]
        S.put(0, VmNeed("wo4")); reads(4, 0)
        S.put(9, "s_waitcnt lgkmcnt(0)"); dmas(6, 11, 3)
        S.put(33, VmNeed("wo5")); reads(5, 33)
        S.put(42, "s_waitcnt lgkmcnt(0)"); dmas(7, 44, 3)
        S.put(84, VmNeed("wo6")); reads(6, 84)
        S.put(100, VmNeed("wo7")); reads(7, 100)
        for ks in range(7):
            g = ks * G + (1 if ks else 8)
            for t in range(NP):
                g = put_free(o_read(bfr1((ks + 1) & 1, t), t, ks + 1), g) + 1
            assert g <= (ks + 1) * G - 3, (ks, g)
        g = 6 * G + 4
        for ks in (2, 3, 6, 7): g = put_free(o_read(bt(ks), NP, ks), g) + 1
        g = 7 * G + 1
        for ks in (0, 1): g = put_free(o_read(bt(ks), NP, ks), g) + 1
        base = P1
        for ks in (4, 5): put_free(o_read(bt(ks), NP, ks), base + 1)
        epi(0, acc1, base + 4, 7); epi(1, acc1, base + 32, 7)
    else:
        assert NP == 0
        pre = []
        if OPT['worot']:
            for i in range(8): pre += II(f"s_xor_b32 s50, {S_B}, {i}", "s_lshl_b32 s50, s50, 10", f"v_add_u32 v{V_ORX[i]}, s50, v{V_OR}")
        pre += [o_read(bt(ks), 0, ks) for ks in range(8)]
        if OPT['worot']:
            for i in range(8): pre += II(f"v_add_u32 v{V_ORX[i]}, 0x2000, v{V_ORX[i]}")
        S.put(0, VmNeed("wo4")); reads(4, 0)
        S.put(9, "s_waitcnt lgkmcnt(0)"); dmas(6, 11, 2)
        S.put(10, VmNeed("wo5"));
        S.spread(wo_reads(5), [12, 12, 14, 14, 16, 16, 18, 18, 20, 20, 22, 22, 24, 24, 26, 26])
        S.put(28, "s_waitcnt lgkmcnt(0)"); dmas(7, 30, 2)
        S.put(46, VmNeed("wo6")); S.spread(wo_reads(6), [46, 46, 46, 46] + [47 + i // 4 for i in range(12)])
        S.put(54, VmNeed("wo7")); S.spread(wo_reads(7), [54, 54, 54, 54] + [55 + i // 12 for i in range(12)])
    for t in range(NP, 9):
        b = P1 + (t - NP) * 64
        if t > NP: epi(t - 1, acc2, b + 6, 12)
        if t < 8:
            for ks in range(8):
                g = b + 8 * ks + 8
                if g >= b + 64: g = b + 64 + 1
                put_free(o_read(bt(ks), t + 1, ks), g)
    if OPT['fused']:
        g0 = P1 + (3 - NP) * 64 + 49
        S.put(g0, f"s_lshl_b32 s50, {S_W}, 7", f"s_lshl_b32 s52, {S_HP}, 2", "s_add_u32 s50, s50, s52")
        S.spread([f"v_lshlrev_b32 v36, 13, {V_LANE}", "v_add_u32 v36, s50, v36", "v_mov_b32 v37, 1"], [g0 + 1, g0 + 1, g0 + 2])
        S.put(g0 + 3, f"s_lshr_b32 s50, {S_HP}, 2", "s_lshl_b32 s50, s50, 7")
        S.spread([f"v_lshrrev_b32 v46, 4, {V_LANE}", "v_lshlrev_b32 v46, 9, v46", f"v_and_b32 v47, 15, {V_LANE}",
                  "v_lshl_add_u32 v46, v47, 2, v46", "v_add_u32 v46, s50, v46"], [g0 + 4, g0 + 4, g0 + 5, g0 + 9, g0 + 9])
        b = P1 + (8 - NP) * 64
        fa = I(f"buffer_store_dword v37, v36, {SRD_F}, 0 offen sc1"); fa.tag = "fl"
        if OPT['early']:
            S.put(b + 40, VmNeed("st3")); S.put(b + 41, fa)
            pl = I(f"buffer_load_dword v47, v46, {SRD_F}, 0 offen sc1"); pl.tag = "poll"
            S.put(b + 60, pl)
    if OPT['stamps'] and OPT.get('opst'):
        for nm, g in (("w1", 127), ("w3", 255), ("w5", 383), ("w8", 575)):
            S.put(g, Raw("\n  ".join(x.txt for x in stamp(nm))))
            S.put(g, "s_waitcnt lgkmcnt(0)")
    pre = II(f"v_mov_b32 v56, {LFLAG}", f"ds_read_b128 {vr(52)}, v56") + pre
    pre += II("s_waitcnt lgkmcnt(0)", "v_or3_b32 v52, v52, v53, v54", "v_or_b32 v52, v52, v55", "s_nop 0", "v_readfirstlane_b32 s50, v52", "s_nop 3",
              f"s_andn2_b32 s50, s50, {S_SAFE}", "s_cmp_lg_u32 s50, 0", "s_cbranch_scc1 L_restart")
    seq = pre + S.flat()
    tail = II("s_nop 7")
    for cp, (cv, (spre, st), hook) in enumerate(tile_epilogue(acc2, 8, 0)):
        tail += cv + spre + hook + [st]
    if OPT['own']:
        tail += II("s_branch L_ownx_8") + OWN_BLK.pop(8) + II("L_ownx_8:")
    if OPT['stamps'] and OPT.get('opst'): tail += stamp("st_iss")
    if OPT['fused']:
        fb = I(f"buffer_store_dword v37, v36, {SRD_F}, 0 offen offset:512 sc1"); fb.tag = "fl"
        fc = I(f"buffer_store_dword v37, v36, {SRD_F}, 0 offen offset:1024 sc1"); fc.tag = "fl"
        tail += [VmNeed("poll"), fb, VmNeed("st8"), fc] if OPT['early'] else [VmNeed("st8"), fa, fb, fc]
    seq, q = vm_waits(seq + tail, queue)
    seq, pend = lgkm_waits(seq)
    seq, n = hazards(seq)
    if OPT['verbose']: print(S.report("out_proj"), "nops", n)
    L += seq
    return L, q

SPIN = 1 << 22
def reduce_phase_groups():
    L = []; A = lambda *x: L.extend(II(*x))
    DAT = lambda g, tt, k: 64 + ((g * 2 + tt) * 4 + k) * 4
    D8 = lambda k: 192 + 4 * k
    ACC = lambda g, tt: [208, 216, 224, 232, 240, 248, 2, 10][g * 2 + tt]
    A8 = 18
    T0, T1 = 26, 28
    V_POLL, V_FL, V_L16, V_OUT = 46, 47, 32, 33
    A(f"v_lshrrev_b32 v30, 4, {V_LANE}", f"v_and_b32 v31, 15, {V_LANE}", f"v_lshlrev_b32 v{V_L16}, 4, {V_LANE}",
      f"v_lshlrev_b32 v{V_OUT}, 11, v31", f"v_lshl_add_u32 v{V_OUT}, v30, 4, v{V_OUT}")
    A(f"s_mul_i32 s32, {S_B}, {144*2048}", f"s_lshl_b32 s50, {S_BR}, 10", "s_add_u32 s32, s32, s50", f"s_lshl_b32 s50, {S_HP}, 6", "s_add_u32 s32, s32, s50")
    A(f"s_mul_i32 s33, {S_HP}, {9*16384}")
    A(f"s_lshl_b32 s50, {S_W}, 14", "s_add_u32 s34, s33, s50", "s_add_u32 s35, s34, 65536",
      f"s_add_u32 s36, s33, {8*16384}", f"s_lshl_b32 s50, {S_W}, 12", "s_add_u32 s36, s36, s50",
      f"s_lshl_b32 s41, {S_W}, 2")
    A("s_mov_b32 s37, 0", "s_mov_b32 s38, 0", f"s_mov_b32 s53, {SPIN}")
    if OPT['own']:
        A(f"s_lshr_b32 s46, {S_HP}, 2", f"s_and_b32 s47, {S_HP}, 3", f"s_lshl_b32 s50, {S_W}, 10", f"s_add_u32 s50, s50, {OWNB}", f"v_add_u32 v44, s50, v{V_L16}")
        if not OPT['latebar']:
            A("s_waitcnt lgkmcnt(0)", "s_barrier", "ds_read_b128 v[36:39], v44", "ds_read_b128 v[40:43], v44 offset:4096")
    def unpack_add(acc, src, first):
        out = []
        for k in range(4):
            if first:
                out += [f"v_lshlrev_b32 v{acc+2*k}, 16, v{src+k}", f"v_and_b32 v{acc+2*k+1}, 0xffff0000, v{src+k}"]
            else:
                t = (T0, T1)[k & 1]
                out += [f"v_lshlrev_b32 v{t}, 16, v{src+k}", f"v_and_b32 v{t+1}, 0xffff0000, v{src+k}",
                        f"v_pk_add_f32 v[{acc+2*k}:{acc+2*k+1}], v[{acc+2*k}:{acc+2*k+1}], v[{t}:{t+1}]"]
        return out
    items = [(tt, g) for tt in range(2) for g in range(4)] + [(2, None)]
    if OPT['early']: A("s_branch L_red_first")
    A("L_red_loop:")
    A("s_cmp_eq_u32 s37, 0x1ff", "s_cbranch_scc1 L_red_nopoll")
    A(f"buffer_load_dword v{V_FL}, v{V_POLL}, {SRD_F}, 0 offen sc1")
    A("L_red_nopoll:", "s_waitcnt vmcnt(0)")
    A("s_andn2_b32 s42, s37, s38")
    for i, (tt, g) in enumerate(items):
        if tt < 2 and g == 0: A(f"s_and_b32 s50, s42, {hex(15 << (4 * tt))}", f"s_cbranch_scc0 L_red_nosumc{tt}")
        A(f"s_bitcmp1_b32 s42, {i}", f"s_cbranch_scc0 L_red_nosum{i}")
        for k in range(4):
            A(unpack_add(ACC(g, tt), DAT(g, tt, k), k == 0) if tt < 2 else unpack_add(A8, D8(k), k == 0))
        A(f"L_red_nosum{i}:")
        if tt < 2 and g == 3: A(f"L_red_nosumc{tt}:")
    A("s_mov_b32 s38, s37", "s_cmp_eq_u32 s38, 0x1ff", "s_cbranch_scc1 L_red_done")
    A("L_red_first:")
    A(f"v_cmp_eq_u32 vcc, 1, v{V_FL}", "s_nop 3", "s_mov_b32 s39, vcc_lo", "s_lshr_b32 s43, vcc_hi, s41", "s_and_b32 s43, s43, 15", "s_mov_b32 s40, s37")
    A("s_sub_u32 s53, s53, 1", "s_cmp_eq_u32 s53, 0", "s_cselect_b32 s39, -1, s39", "s_cselect_b32 s43, 15, s43", "s_cselect_b32 s53, 1, s53")
    for i, (tt, g) in enumerate(items):
        if tt < 2 and g == 0:
            A(f"s_bfe_u32 s50, s37, {hex((4 << 16) | (4 * tt))}", "s_cmp_eq_u32 s50, 15", f"s_cbranch_scc1 L_red_noissc{tt}",
              f"s_bfe_u32 s50, s39, {hex((16 << 16) | (16 * tt))}", "s_cmp_eq_u32 s50, 0", f"s_cbranch_scc1 L_red_noissc{tt}")
        A(f"s_bitcmp1_b32 s37, {i}", f"s_cbranch_scc1 L_red_noiss{i}")
        if tt < 2:
            A(f"s_bfe_u32 s50, s39, {hex((4 << 16) | (16 * tt + 4 * g))}", "s_cmp_eq_u32 s50, 15")
        else:
            A("s_cmp_eq_u32 s43, 15")
        A(f"s_cbranch_scc0 L_red_noiss{i}")
        if tt < 2: A(f"s_add_u32 s50, s{34+tt}, {g*4096}")
        if OPT['own']:
            A(f"s_cmp_eq_u32 s46, {g}" if tt < 2 else f"s_cmp_eq_u32 s46, {S_W}", "s_cselect_b32 s44, s47, 7")
        for k in range(4):
            o = f" offset:{k*1024}" if k else ""
            va = V_L16
            if OPT['own']:
                A(f"s_cmp_eq_u32 s44, {k}", "s_cselect_b32 s45, 0x40000000, 0", f"v_or_b32 v45, s45, v{V_L16}"); va = 45
            if tt < 2: A(f"buffer_load_dwordx4 {vr(DAT(g, tt, k))}, v{va}, {SRD_P}, s50 offen{o} {OPT['rld']}")
            else: A(f"buffer_load_dwordx4 {vr(D8(k))}, v{va}, {SRD_P}, s36 offen{o} {OPT['rld']}")
        A(f"s_bitset1_b32 s37, {i}", f"L_red_noiss{i}:")
        if tt < 2 and g == 3: A(f"L_red_noissc{tt}:")
    if OPT.get('rdst'):
        A("s_cmp_eq_u32 s40, 0", "s_cbranch_scc0 L_rs1", "s_cmp_lg_u32 s37, 0", "s_cbranch_scc0 L_rs1", stamp("r_first"), "L_rs1:")
        A("s_cmp_eq_u32 s37, 0x1ff", "s_cbranch_scc0 L_rs2", stamp("r_alliss"), "L_rs2:")
    A("s_cmp_lg_u32 s37, s40", "s_cbranch_scc1 L_red_loop", f"s_sleep {OPT['psleep']}", "s_branch L_red_loop")
    A("L_red_done:")
    if OPT.get('rdst'): A(stamp("r_summed"))
    A(f"s_lshl_b32 s50, {S_W}, 11", f"v_lshlrev_b32 v30, 5, {V_LANE}", f"v_add_u32 v30, {WOB}, v30", "v_add_u32 v31, s50, v30",
      f"ds_write_b128 v31, {vr(A8)}", f"ds_write_b128 v31, {vr(A8+4)} offset:16")
    late = OPT['own'] and OPT['latebar']
    for tt in range(2):
        a0 = ACC(0, tt)
        for g in range(1, 4):
            for k in range(4): A(f"v_pk_add_f32 v[{a0+2*k}:{a0+2*k+1}], v[{a0+2*k}:{a0+2*k+1}], v[{ACC(g,tt)+2*k}:{ACC(g,tt)+2*k+1}]")
    if late:
        A("s_waitcnt lgkmcnt(0)", "s_barrier", "ds_read_b128 v[36:39], v44", "ds_read_b128 v[40:43], v44 offset:4096")
    for tt in range(2):
        a0 = ACC(0, tt)
        if OPT['own']: A(("s_waitcnt lgkmcnt(1)" if late else "s_waitcnt lgkmcnt(2)") if tt == 0 else "s_waitcnt lgkmcnt(0)" if late else "s_nop 0", unpack_add(a0, 36 + 4 * tt, False))
        for k in range(4): A(f"v_cvt_pk_bf16_f32 v{64+4*tt+k}, v{a0+2*k}, v{a0+2*k+1}")
        A(f"s_lshl_b32 s50, {S_W}, 15", f"s_add_u32 s50, s50, s32", f"s_add_u32 s50, s50, {tt*4*32768}")
        A(f"buffer_store_dwordx4 {vr(64+4*tt)}, v{V_OUT}, {SRD_O}, s50 offen {OPT['ost']}")
    if not late: A("s_waitcnt lgkmcnt(0)", "s_barrier")
    A(f"s_cmp_eq_u32 {S_W}, 0", "s_cbranch_scc0 L_red_end")
    for g in range(4):
        A(f"ds_read_b128 {vr(80+8*g)}, v30 offset:{g*2048}", f"ds_read_b128 {vr(84+8*g)}, v30 offset:{g*2048+16}")
    if OPT['own']: A("ds_read_b128 v[36:39], v44 offset:8192")
    A("s_waitcnt lgkmcnt(0)")
    for g in range(1, 4):
        for k in range(4): A(f"v_pk_add_f32 v[{80+2*k}:{81+2*k}], v[{80+2*k}:{81+2*k}], v[{80+8*g+2*k}:{81+8*g+2*k}]")
    if OPT['own']: A(unpack_add(80, 36, False))
    for k in range(4): A(f"v_cvt_pk_bf16_f32 v{72+k}, v{80+2*k}, v{81+2*k}")
    A(f"s_add_u32 s50, s32, {8*32768}")
    A(f"buffer_store_dwordx4 {vr(72)}, v{V_OUT}, {SRD_O}, s50 offen {OPT['ost']}")
    A("L_red_end:")
    L2, n = hazards(L)
    return L2

def reduce_phase():
    if not OPT['linred']: return reduce_phase_groups()
    assert OPT['own'] and OPT['early']
    L = []; A = lambda *x: L.extend(II(*x))
    DA = lambda p: 64 + 4 * p
    DB = lambda p: 128 + 4 * p
    D8 = lambda k: 192 + 4 * k
    ACA, ACB, A8 = 208, 216, 224
    T0, T1 = 26, 28
    V_POLL, V_FL, V_L16, V_OUT = 46, 47, 32, 33
    A(f"v_lshrrev_b32 v30, 4, {V_LANE}", f"v_and_b32 v31, 15, {V_LANE}", f"v_lshlrev_b32 v{V_L16}, 4, {V_LANE}",
      f"v_lshlrev_b32 v{V_OUT}, 11, v31", f"v_lshl_add_u32 v{V_OUT}, v30, 4, v{V_OUT}")
    A(f"s_mul_i32 s33, {S_HP}, {9*16384}")
    A(f"s_lshl_b32 s50, {S_W}, 14", "s_add_u32 s34, s33, s50", "s_add_u32 s35, s34, 65536",
      f"s_add_u32 s36, s33, {8*16384}", f"s_lshl_b32 s50, {S_W}, 12", "s_add_u32 s36, s36, s50",
      f"s_lshl_b32 s41, {S_W}, 2", f"s_mov_b32 s53, {SPIN}")
    def loads(base, dst):
        for p in range(16):
            if p % 4 == 0: A(f"s_add_u32 s50, {base}, {p*1024}")
            o = f" offset:{(p % 4)*1024}" if p % 4 else ""
            A(f"s_cmp_eq_u32 {S_HP}, {p}", f"s_cbranch_scc1 L_rl_{base}_{p}",
              f"buffer_load_dwordx4 {vr(dst(p))}, v{V_L16}, {SRD_P}, s50 offen{o} {OPT['rld']}", f"L_rl_{base}_{p}:")
    def poll(name, test):
        A(f"L_poll_{name}:", f"v_cmp_eq_u32 vcc, 1, v{V_FL}", "s_nop 3")
        A(test)
        A(f"s_cbranch_scc1 L_poll_{name}_ok", "s_sub_u32 s53, s53, 1", "s_cmp_eq_u32 s53, 0", f"s_cbranch_scc1 L_poll_{name}_ok",
          f"s_sleep {OPT['psleep']}", f"buffer_load_dword v{V_FL}, v{V_POLL}, {SRD_F}, 0 offen sc1", "s_waitcnt vmcnt(0)", f"s_branch L_poll_{name}",
          f"L_poll_{name}_ok:")
    def unpack_add(acc, src):
        out = []
        for k in range(4):
            t = (T0, T1)[k & 1]
            out += [f"v_lshlrev_b32 v{t}, 16, v{src+k}", f"v_and_b32 v{t+1}, s60, v{src+k}",
                    f"v_pk_add_f32 v[{acc+2*k}:{acc+2*k+1}], v[{acc+2*k}:{acc+2*k+1}], v[{t}:{t+1}]"]
        return out
    A("s_mov_b32 s60, 0xffff0000")
    one = OPT['onepoll']
    if one:
        A(f"s_cmp_eq_u32 {S_W}, 0", "s_cbranch_scc0 L_poll_a_skip")
    poll("a", ["s_and_b32 s50, vcc_lo, 0xffff", "s_cmp_eq_u32 s50, 0xffff"])
    if one:
        A("L_poll_a_skip:", "s_waitcnt lgkmcnt(0)", "s_barrier")
    loads("s34", DA)
    A(f"s_lshl_b32 s50, {S_W}, 10", f"s_add_u32 s50, s50, {OWNB}", f"v_add_u32 v44, s50, v{V_L16}")
    if not one: A("s_waitcnt lgkmcnt(0)", "s_barrier")
    A("ds_read_b128 v[36:39], v44", "ds_read_b128 v[40:43], v44 offset:4096")
    for r in range(ACA, ACA + 24): A(f"v_mov_b32 v{r}, 0")
    A(f"s_mul_i32 s32, {S_B}, {144*2048}", f"s_lshl_b32 s50, {S_BR}, 10", "s_add_u32 s32, s32, s50", f"s_lshl_b32 s50, {S_HP}, 6", "s_add_u32 s32, s32, s50")
    if one:
        A(f"s_cmp_eq_u32 {S_W}, 0", "s_cbranch_scc0 L_poll_b_skip")
        A(f"buffer_load_dword v{V_FL}, v{V_POLL}, {SRD_F}, 0 offen sc1", "s_waitcnt vmcnt(0)")
        poll("b", ["s_lshr_b32 s50, vcc_lo, 16", "s_and_b32 s51, vcc_hi, 0xffff", "s_lshl_b32 s51, s51, 16", "s_or_b32 s50, s50, s51", "s_cmp_eq_u32 s50, -1"])
        A("L_poll_b_skip:", "s_waitcnt vmcnt(0)", "s_barrier")
    else:
        A(f"buffer_load_dword v{V_FL}, v{V_POLL}, {SRD_F}, 0 offen sc1", "s_waitcnt vmcnt(0)")
        poll("b", ["s_lshr_b32 s50, vcc_lo, 16", "s_lshr_b32 s51, vcc_hi, s41", "s_and_b32 s51, s51, 15", "s_lshl_b32 s51, s51, 16", "s_or_b32 s50, s50, s51",
                   "s_cmp_eq_u32 s50, 0xfffff"])
    loads("s35", DB)
    for k in range(4):
        o = f" offset:{k*1024}" if k else ""
        A(f"s_add_u32 s50, s41, {k}", f"s_cmp_eq_u32 {S_HP}, s50", f"s_cbranch_scc1 L_rl8_{k}",
          f"buffer_load_dwordx4 {vr(D8(k))}, v{V_L16}, {SRD_P}, s36 offen{o} {OPT['rld']}", f"L_rl8_{k}:")
    for p in range(16):
        A(f"s_cmp_eq_u32 {S_HP}, {p}", f"s_cbranch_scc1 L_rs_a{p}", unpack_add(ACA, DA(p)), f"L_rs_a{p}:")
    A("s_waitcnt lgkmcnt(0)", unpack_add(ACA, 36))
    for k in range(4): A(f"v_cvt_pk_bf16_f32 v{64+k}, v{ACA+2*k}, v{ACA+2*k+1}")
    A(f"s_lshl_b32 s50, {S_W}, 15", "s_add_u32 s37, s50, s32")
    A(f"buffer_store_dwordx4 {vr(64)}, v{V_OUT}, {SRD_O}, s37 offen {OPT['ost']}")
    for p in range(16):
        A(f"s_waitcnt vmcnt({max(15 - p + 4 + 1 - 2, 0)})", f"s_cmp_eq_u32 {S_HP}, {p}", f"s_cbranch_scc1 L_rs_b{p}", unpack_add(ACB, DB(p)), f"L_rs_b{p}:")
    A(unpack_add(ACB, 40))
    for k in range(4): A(f"v_cvt_pk_bf16_f32 v{68+k}, v{ACB+2*k}, v{ACB+2*k+1}")
    A(f"s_add_u32 s37, s37, {4*32768}")
    A("s_waitcnt vmcnt(1)")
    for k in range(4):
        A(f"s_add_u32 s50, s41, {k}", f"s_cmp_eq_u32 {S_HP}, s50", f"s_cbranch_scc1 L_rs_c{k}", unpack_add(A8, D8(k)), f"L_rs_c{k}:")
    A(f"buffer_store_dwordx4 {vr(68)}, v{V_OUT}, {SRD_O}, s37 offen {OPT['ost']}")
    A(f"s_lshl_b32 s50, {S_W}, 11", f"v_lshlrev_b32 v30, 5, {V_LANE}", f"v_add_u32 v30, {WOB}, v30", "v_add_u32 v31, s50, v30",
      f"ds_write_b128 v31, {vr(A8)}", f"ds_write_b128 v31, {vr(A8+4)} offset:16")
    A("s_waitcnt lgkmcnt(0)", "s_barrier", f"s_cmp_eq_u32 {S_W}, 0", "s_cbranch_scc0 L_red_end")
    for g in range(4):
        A(f"ds_read_b128 {vr(80+8*g)}, v30 offset:{g*2048}", f"ds_read_b128 {vr(84+8*g)}, v30 offset:{g*2048+16}")
    A("ds_read_b128 v[36:39], v44 offset:8192")
    A("s_waitcnt lgkmcnt(0)")
    for g in range(1, 4):
        for k in range(4): A(f"v_pk_add_f32 v[{80+2*k}:{81+2*k}], v[{80+2*k}:{81+2*k}], v[{80+8*g+2*k}:{81+8*g+2*k}]")
    A(unpack_add(80, 36))
    for k in range(4): A(f"v_cvt_pk_bf16_f32 v{72+k}, v{80+2*k}, v{81+2*k}")
    A(f"s_add_u32 s50, s32, {8*32768}")
    A(f"buffer_store_dwordx4 {vr(72)}, v{V_OUT}, {SRD_O}, s50 offen {OPT['ost']}")
    A("L_red_end:")
    L2, n = hazards(L)
    return L2

def dump_regs(regs, slot, kind='v'):
    L = []; A = lambda *x: L.extend(II(*x))
    A("s_add_u32 s66, s58, 0x4000000", "s_addc_u32 s67, s59, 0",
      "s_lshl_b32 s50, s2, 2", f"s_add_u32 s50, s50, {S_W}", "s_lshl_b32 s50, s50, 16",
      f"v_lshlrev_b32 v253, 2, {V_LANE}", "v_add_u32 v253, s50, v253")
    for i, r in enumerate(regs):
        if kind == 'a':
            A(f"v_accvgpr_read_b32 v254, a{r}", "s_nop 0")
            A(f"global_store_dword v253, v254, s[66:67]")
        else:
            A(f"global_store_dword v253, v{r}, s[66:67]")
        A("v_add_u32 v253, 256, v253")
    A("s_waitcnt vmcnt(0)")
    return L

def main_kernel():
    L = []
    L += setup()
    L += stamp("start")
    L += phase_q()
    L += stamp("q_done")
    if OPT['dump'] == 'q':
        L += II("s_nop 7") + dump_regs([qfrag(t, s) + k for t in range(5) for s in range(4) for k in range(4)], 0)
        L += II("s_waitcnt vmcnt(0)", "s_endpgm")
    L += attention()
    if OPT['dump'] == 'o':
        L += II("s_nop 7") + dump_regs([oacc(dt, t) + k for t in range(5) for dt in range(8) for k in range(4)] + [lacc(t) for t in range(5)], 0, 'a')
        L += II("s_waitcnt vmcnt(0)", "s_endpgm")
    e, q = o_epilogue(); L += e
    L += stamp("o_done")
    if OPT.get('stop') == 'o':
        L += II("s_waitcnt vmcnt(0)") + stamp("end") + stamp_dump() + II("L_main_end:", "s_endpgm") + safe_paths()
        return L
    e, q = out_proj(q); L += e
    L += stamp("op_done")
    if OPT['fused']:
        L += reduce_phase()
        L += stamp("red_done")
    L += tr_dump()
    if not OPT.get('noendwait') or OPT['stamps']: L += II("s_waitcnt vmcnt(0)")
    L += stamp("end")
    L += stamp_dump()
    L += II("L_main_end:", "s_endpgm")
    L += OWN_OOL + ATT_OOL
    L += safe_paths()
    return L

def reduce_kernel():
    L = []; A = lambda *x: L.extend(II(*x))
    A("s_cmp_ge_u32 s2, 256", "s_cbranch_scc1 L_red_end")
    A("s_load_dwordx2 s[4:5], s[0:1], 80", "s_load_dwordx2 s[6:7], s[0:1], 96")
    A("v_lshrrev_b32 v2, 6, v0", "v_and_b32 v1, 63, v0", "s_nop 0", "v_readfirstlane_b32 s12, v2", "s_nop 3")
    A("s_waitcnt lgkmcnt(0)")
    A("s_mul_i32 s13, s2, 9", "s_add_u32 s13, s13, s12", "s_lshl_b32 s13, s13, 14")
    A("s_add_u32 s16, s6, s13", "s_addc_u32 s17, s7, 0", "s_and_b32 s17, s17, 0xffff", "s_mov_b32 s18, 16384", "s_mov_b32 s19, 0x20000")
    A("v_lshlrev_b32 v2, 4, v1")
    for p in range(16):
        A(f"buffer_load_dwordx4 v[{8+4*p}:{11+4*p}], v2, s[16:19], 0 offen offset:{(p%4)*1024}" if p < 4 else
          f"buffer_load_dwordx4 v[{8+4*p}:{11+4*p}], v2, s[16:19], s{20+p//4} offen offset:{(p%4)*1024}")
        if p == 3: A("s_mov_b32 s21, 4096", "s_mov_b32 s22, 8192", "s_mov_b32 s23, 12288")
    A("s_lshr_b32 s14, s2, 4", "s_and_b32 s15, s2, 15",
      "s_and_b32 s24, s14, 7", "s_lshr_b32 s25, s14, 3",
      "s_mul_i32 s24, s24, 144", "s_lshl_b32 s26, s12, 4", "s_add_u32 s24, s24, s26", "s_lshl_b32 s24, s24, 11",
      "s_lshl_b32 s25, s25, 10", "s_lshl_b32 s15, s15, 6", "s_add_u32 s24, s24, s25", "s_add_u32 s24, s24, s15")
    A("v_and_b32 v3, 15, v1", "v_lshlrev_b32 v3, 11, v3", "v_lshrrev_b32 v4, 4, v1", "v_lshl_add_u32 v3, v4, 4, v3")
    A("s_mov_b32 s28, s4", "s_and_b32 s29, s5, 0xffff", "s_mov_b32 s30, 2359296", "s_mov_b32 s31, 0x20000")
    acc = 80
    for p in range(16):
        A(f"s_waitcnt vmcnt({15-p})")
        for k in range(4):
            r = 8 + 4 * p + k
            if p == 0:
                A(f"v_lshlrev_b32 v{acc+2*k}, 16, v{r}", f"v_and_b32 v{acc+2*k+1}, 0xffff0000, v{r}")
            else:
                A(f"v_lshlrev_b32 v6, 16, v{r}", f"v_and_b32 v7, 0xffff0000, v{r}",
                  f"v_add_f32 v{acc+2*k}, v{acc+2*k}, v6", f"v_add_f32 v{acc+2*k+1}, v{acc+2*k+1}, v7")
    for k in range(4): A(f"v_cvt_pk_bf16_f32 v{8+k}, v{acc+2*k}, v{acc+2*k+1}")
    A("buffer_store_dwordx4 v[8:11], v3, s[28:31], s24 offen")
    A("s_waitcnt vmcnt(0)")
    A("L_red_end:", "s_endpgm")
    return L

def kernel_text(name, body, vgpr, accum, sgpr=102):
    return f""".globl {name}
.p2align 8
.type {name},@function
{name}:
{text(body)}
"""
def kd(name, nfv, accum, sgpr=102):
    return f""".amdhsa_kernel {name}
  .amdhsa_next_free_vgpr {nfv}
  .amdhsa_next_free_sgpr {sgpr}
  .amdhsa_accum_offset {accum}
  .amdhsa_group_segment_fixed_size 0
  .amdhsa_kernarg_size 104
  .amdhsa_user_sgpr_count 2
  .amdhsa_user_sgpr_kernarg_segment_ptr 1
  .amdhsa_system_sgpr_workgroup_id_x 1
.end_amdhsa_kernel
"""

def build():
    stamp_id[0] = 0; STAMPS.clear()
    k1 = NAME + "_kernel"; k2 = "reduce_heads_kernel"
    m = main_kernel()
    hdr = """; Fused  x@wq -> softmax(q k^T / sqrt(128)) v -> @wo  for both branches, one launch, 256 workgroups x 4 waves.
"""
    if OPT['fused']:
        hdr += f"; @launch grid=(256,1,1) block=(256,1,1) lds=163840\n"
    else:
        hdr += f"; @launch kernel={k1} grid=(256,1,1) block=(256,1,1) lds=163840\n"
        hdr += f"; @launch kernel={k2} grid=(256,1,1) block=(576,1,1) lds=0\n"
    s = hdr + '.amdgcn_target "amdgcn-amd-amdhsa--gfx950"\n.text\n'
    s += kernel_text(k1, m, 512, 256)
    if not OPT['fused']: s += kernel_text(k2, reduce_kernel(), 96, 96)
    s += '.section .rodata,"a"\n.p2align 6\n' + kd(k1, 512, 256)
    if not OPT['fused']: s += ".p2align 6\n" + kd(k2, 96, 96, 40)
    return s

if __name__ == "__main__":
    ap = argparse.ArgumentParser()
    ap.add_argument("-o", default="cdna_kernels/" + NAME + ".s")
    ap.add_argument("--dump"); ap.add_argument("--stamps", action="store_true"); ap.add_argument("-v", action="store_true")
    ap.add_argument("--opt", action="append", default=[])
    a = ap.parse_args()
    OPT['dump'] = a.dump; OPT['stamps'] = a.stamps; OPT['verbose'] = a.v
    for o in a.opt:
        k, v = o.split("=", 1)
        OPT[k] = {'True': True, 'False': False}.get(v, int(v) if v.lstrip('-').isdigit() else v)
    s = build()
    open(a.o, "w").write(s)
    if a.stamps:
        import json; json.dump(STAMPS, open(a.o + ".stamps.json", "w"))
    print("wrote", a.o, len(s), "bytes")
```
